```python
import torch

def _softmax(x, axis=-1):
    return torch.softmax(x, dim=axis)
def _gelu(x):
    return torch.nn.functional.gelu(x, approximate="tanh")
def _silu(x):
    return torch.nn.functional.silu(x)
def _sigmoid(x):
    return torch.sigmoid(x)
def _layernorm(x, axis=-1, eps=1e-5):
    m = x.mean(dim=axis, keepdim=True)
    v = x.var(dim=axis, keepdim=True, unbiased=False)
    return (x - m) / torch.sqrt(v + eps)
def _scatter_add(tgt, idx, src, axis=0):
    return tgt.clone().index_add_(axis, idx, src)
def _segment_sum(src, seg, n):
    out = torch.zeros((n,) + src.shape[1:], dtype=src.dtype)
    return out.index_add_(0, seg, src)
def _pad(x, pw):
    flat = tuple(v for pair in reversed(pw) for v in pair)
    return torch.nn.functional.pad(x, flat)

kernel_name = 'standalone__mpnn_edge_mlp__graph'

def setup_inputs():

    _w = (lambda a: (lambda t: t.to(torch.bfloat16) if t.is_floating_point() else t)(torch.as_tensor(a)))
    N, deg, D, De = 12500, 32, 128, max(4, 1)
    E = N * deg
    return {
        "x": _w((lambda *s: torch.randn(*s, dtype=torch.bfloat16) * 0.05)(N, D)),
        "e_attr": _w((lambda *s: torch.randn(*s, dtype=torch.bfloat16) * 0.4)(E, De)),
        "src": _w((lambda lo, hi, *s: torch.randint(lo, hi, s))(0, N, E).to(torch.int64)),
        "dst": _w((lambda lo, hi, *s: torch.randint(lo, hi, s))(0, N, E).to(torch.int64)),
        "w_msg": _w((lambda *s: torch.randn(*s, dtype=torch.bfloat16) * 0.4)(2 * D + De, D)),
        "w_upd": _w((lambda *s: torch.randn(*s, dtype=torch.bfloat16) * 0.05)(2 * D, D)),
    }

def reference(x, e_attr, src, dst, w_msg, w_upd):
    N, D = x.shape
    m_in = torch.concatenate([x[src], x[dst], e_attr], axis=-1)
    msg = _silu(m_in @ w_msg)
    agg = _segment_sum(msg, dst, N)
    return _silu(torch.concatenate([x, agg], axis=-1) @ w_upd)
```

```python
N=12500; E=400000
NSORT=125; EPW=3200
NGEMM=131; RPW=96
NPREP=13
WS_P=0
WS_REC=0x400000
WS_TBL=0xB00000
WS_STAT=0xB40000
WS_WF=0xB50000
WS_W3F=WS_WF+3*32768
WS_C3=WS_W3F+2048
LOG2E_NEG=0xBFB8AA3B

class Asm:
    def __init__(s): s.l=[]
    def __call__(s,t):
        for x in t.strip('\n').split('\n'):
            x=x.strip()
            if not x: continue
            if x.endswith(':') : s.l.append(x)
            else: s.l.append('    '+x)
    def text(s): return '\n'.join(s.l)+'\n'

def srd(a,d,lo,size,off=0,stride=0):
    if off:
        a(f"s_add_u32 s{d}, s{lo}, {hex(off)}\ns_addc_u32 s{d+1}, s{lo+1}, 0\ns_and_b32 s{d+1}, s{d+1}, 0xffff")
    else:
        a(f"s_mov_b32 s{d}, s{lo}\ns_and_b32 s{d+1}, s{lo+1}, 0xffff")
    if stride: a(f"s_or_b32 s{d+1}, s{d+1}, {hex(stride<<16)}")
    a(f"s_mov_b32 s{d+2}, {size}\ns_mov_b32 s{d+3}, 0x00020000")

def dpp_scan(a,op,regs):
    steps=["row_shr:1 row_mask:0xf bank_mask:0xf bound_ctrl:0","row_shr:2 row_mask:0xf bank_mask:0xf bound_ctrl:0",
           "row_shr:4 row_mask:0xf bank_mask:0xf bound_ctrl:0","row_shr:8 row_mask:0xf bank_mask:0xf bound_ctrl:0",
           "row_bcast:15 row_mask:0xa bank_mask:0xf","row_bcast:31 row_mask:0xc bank_mask:0xf"]
    pad=max(0,2-(len(regs)-1))
    a("s_nop 1")
    for st in steps:
        for r in regs: a(f"{op}_dpp v{r}, v{r}, v{r} {st}")
        if pad: a(f"s_nop {pad-1}")

def kd(name,vgpr,sgpr=96):
    return f""".amdhsa_kernel {name}
  .amdhsa_next_free_vgpr {vgpr}
  .amdhsa_next_free_sgpr {sgpr}
  .amdhsa_accum_offset {(vgpr+3)//4*4}
  .amdhsa_group_segment_fixed_size 0
  .amdhsa_kernarg_size 72
  .amdhsa_user_sgpr_count 2
  .amdhsa_user_sgpr_kernarg_segment_ptr 1
  .amdhsa_system_sgpr_workgroup_id_x 1
  .amdhsa_float_denorm_mode_32 3
.end_amdhsa_kernel
"""
```

```python
from common import *
K1_LDS=57344
K1_GRID=NSORT+NGEMM+NPREP

def gen_k1():
    a=Asm()
    a(f"""
k1_kernel:
s_cmp_ge_u32 s2, {K1_GRID}
s_cbranch_scc1 K1_END
s_load_dwordx16 s[4:19], s[0:1], 0
s_load_dwordx2 s[20:21], s[0:1], 64
v_lshrrev_b32 v1, 6, v0
v_and_b32 v2, 63, v0
v_readfirstlane_b32 s60, v1
s_cmp_ge_u32 s2, {NSORT+NGEMM}
s_cbranch_scc1 K1_PREP
s_cmp_ge_u32 s2, {NSORT}
s_cbranch_scc1 K1_GEMM
""")
    HIST=0; BASE=1024; S=2048; ERAW=S+25600
    D=8; SR=16; K=24; R=32
    a(f"""
s_mul_i32 s48, s2, {EPW*4}
s_mul_i32 s49, s2, {EPW*8}
s_mul_i32 s50, s2, {EPW*16}
v_lshlrev_b32 v3, 2, v0
v_add_u32 v4, 4096, v3
v_add_u32 v5, 8192, v3
v_add_u32 v6, 12288, v3
v_lshlrev_b32 v7, 4, v0
v_mov_b32 v40, 0
s_waitcnt lgkmcnt(0)
""")
    srd(a,24,10,E*4);
    for i in range(6): a(f"buffer_load_dword v{D+i}, v{3+i//2}, s[24:27], s48 offen offset:{(i&1)*2048}")
    a("s_cmp_lt_u32 s60, 2\ns_cbranch_scc0 K1S_a")
    a(f"buffer_load_dword v{D+6}, v6, s[24:27], s48 offen")
    a("K1S_a:")
    srd(a,28,8,E*4)
    for i in range(6): a(f"buffer_load_dword v{SR+i}, v{3+i//2}, s[28:31], s48 offen offset:{(i&1)*2048}")
    a("s_cmp_lt_u32 s60, 2\ns_cbranch_scc0 K1S_b")
    a(f"buffer_load_dword v{SR+6}, v6, s[28:31], s48 offen")
    a("K1S_b:")
    srd(a,32,6,E*8)
    a(f"s_lshl_b32 s51, s60, 10\ns_add_u32 s51, s51, {ERAW}")
    for j in range(3):
        a(f"s_add_u32 m0, s51, {j*8192}\ns_add_u32 s52, s49, {j*8192}\nbuffer_load_dwordx4 v7, s[32:35], s52 offen lds")
    a("s_cmp_eq_u32 s60, 0\ns_cbranch_scc0 K1S_c")
    a(f"s_add_u32 m0, s51, {3*8192}\ns_add_u32 s52, s49, {3*8192}\nbuffer_load_dwordx4 v7, s[32:35], s52 offen lds")
    a("K1S_c:")
    a("ds_write_b32 v3, v40")
    srd(a,36,20,NSORT*EPW*16,off=WS_REC)
    srd(a,40,20,NSORT*1024,off=WS_TBL)
    srd(a,44,20,8192,off=WS_STAT)
    a("v_mov_b32 v41, 8\ns_waitcnt lgkmcnt(0)\ns_barrier")
    def keyrank(i):
        a(f"""
v_and_b32 v42, 7, v{D+i}
v_lshrrev_b32 v43, 1, v{D+i}
v_and_b32 v43, 0x7c, v43
v_lshl_or_b32 v{K+i}, v42, 7, v43
ds_add_rtn_u32 v{R+i}, v{K+i}, v41
""")
    a("s_waitcnt vmcnt(9)")
    for i in range(6): keyrank(i)
    a("s_cmp_lt_u32 s60, 2\ns_cbranch_scc0 K1S_d")
    keyrank(6)
    a("K1S_d:")
    a(f"""
v_lshlrev_b32 v44, 4, v2
s_waitcnt lgkmcnt(0)
s_barrier
ds_read_b128 v[48:51], v44
s_waitcnt lgkmcnt(0)
v_add_u32 v52, v48, v49
v_add3_u32 v52, v52, v50, v51
v_mov_b32 v53, v52
""")
    dpp_scan(a,"v_add_u32",[53])
    a(f"""
v_sub_u32 v56, v53, v52
v_add_u32 v57, v56, v48
v_add_u32 v58, v57, v49
v_add_u32 v59, v58, v50
ds_write_b128 v44, v[56:59] offset:{BASE}
""")
    for i in range(7): a(f"ds_read_b32 v{K+i}, v{K+i} offset:{BASE}") if i<6 else None
    a("s_cmp_lt_u32 s60, 2\ns_cbranch_scc0 K1S_e")
    a(f"ds_read_b32 v{K+6}, v{K+6} offset:{BASE}")
    a("K1S_e:")
    a("s_cmp_eq_u32 s60, 7\ns_cbranch_scc0 K1S_f")
    for j in range(4):
        a(f"v_lshrrev_b32 v{56+j}, 3, v{56+j}\nv_lshl_or_b32 v{56+j}, v{48+j}, 13, v{56+j}")
    a("s_lshl_b32 s53, s2, 10\nbuffer_store_dwordx4 v[56:59], v44, s[40:43], s53 offen")
    a("K1S_f:")
    a("v_lshlrev_b32 v45, 3, v0\ns_waitcnt vmcnt(3) lgkmcnt(0)")
    def scat(i):
        a(f"""
v_lshrrev_b32 v42, 8, v{D+i}
v_lshl_or_b32 v{60+2*i}, v42, 25, v{SR+i}
v_add_u32 v{61+2*i}, {i*4096}, v45
v_add_u32 v{K+i}, v{K+i}, v{R+i}
ds_write_b64 v{K+i}, v[{60+2*i}:{61+2*i}] offset:{S}
""")
    for i in range(6): scat(i)
    a("s_cmp_lt_u32 s60, 2\ns_cbranch_scc0 K1S_g")
    scat(6)
    a("K1S_g:")
    a("s_waitcnt vmcnt(0) lgkmcnt(0)\ns_barrier")
    a("s_cmp_lt_u32 s60, 2\ns_cbranch_scc0 K1S_i")
    a(f"ds_read_b64 v[{82+24}:{83+24}], v45 offset:{S+6*4096}\ns_waitcnt lgkmcnt(0)\nds_read_b64 v[{80+24}:{81+24}], v{83+24} offset:{ERAW}")
    a("K1S_i:")
    for i in range(6): a(f"ds_read_b64 v[{82+4*i}:{83+4*i}], v45 offset:{S+i*4096}")
    for i in range(6):
        a(f"s_waitcnt lgkmcnt(5)")
        a(f"ds_read_b64 v[{80+4*i}:{81+4*i}], v{83+4*i} offset:{ERAW}")
    a("v_mov_b32 v46, 0\ns_mov_b32 s54, 0x7fff7fff")
    def outp(i):
        a(f"""
v_lshrrev_b32 v{83+4*i}, 22, v{82+4*i}
s_add_u32 s52, s50, {i*8192}
v_and_b32 v42, s54, v{80+4*i}
buffer_store_dwordx4 v[{80+4*i}:{83+4*i}], v7, s[36:39], s52 offen
v_and_b32 v43, s54, v{81+4*i}
v_pk_max_u16 v46, v46, v42
v_pk_max_u16 v46, v46, v43
""")
    for i in range(6):
        a(f"s_waitcnt lgkmcnt({5-i})"); outp(i)
    a("s_cmp_lt_u32 s60, 2\ns_cbranch_scc0 K1S_h\ns_waitcnt lgkmcnt(0)")
    outp(6)
    a("K1S_h:")
    a("v_lshlrev_b32 v42, 16, v46\nv_and_b32 v46, 0xffff0000, v46\nv_max_u32 v46, v46, v42")
    dpp_scan(a,"v_max_u32",[46])
    a(f"""
s_lshl_b32 s53, s2, 3
s_add_u32 s53, s53, s60
s_add_u32 s53, s53, {NGEMM*8}
s_lshl_b32 s53, s53, 2
v_mov_b32 v42, 0
v_cmp_eq_u32 vcc, 63, v2
s_and_saveexec_b64 s[56:57], vcc
buffer_store_dword v46, v42, s[44:47], s53 offen
s_endpgm
""")
    XL=32768
    a(f"""
K1_GEMM:
s_sub_u32 s61, s2, {NSORT}
s_mul_i32 s48, s61, {RPW*256}
v_lshrrev_b32 v3, 4, v0                 ; 4w+a
v_and_b32 v4, 15, v0                    ; c16 / n
v_lshrrev_b32 v5, 4, v2                 ; a / g
v_and_b32 v6, 15, v3
v_xor_b32 v6, v6, v4
v_lshlrev_b32 v6, 4, v6
v_lshl_or_b32 v6, v3, 8, v6             ; x voffset
v_and_b32 v7, 8, v3                     ; ((w>>1)&1)<<3
v_lshl_or_b32 v7, v5, 1, v7             ; 2f
v_xor_b32 v7, v7, v4
v_lshlrev_b32 v7, 4, v7
v_lshl_or_b32 v7, v3, 8, v7             ; w voffset
s_lshl_b32 s51, s60, 10
s_waitcnt lgkmcnt(0)
""")
    srd(a,24,4,N*256); srd(a,28,12,260*256)
    for j in range(3):
        a(f"s_add_u32 m0, s51, {XL+j*8192}\ns_add_u32 s52, s48, {j*8192}\nbuffer_load_dwordx4 v6, s[24:27], s52 offen lds")
    for j in range(4):
        a(f"s_add_u32 m0, s51, {j*8192}\ns_mov_b32 s52, {j*8192}\nbuffer_load_dwordx4 v7, s[28:31], s52 offen lds")
    srd(a,32,20,NGEMM*RPW*256,off=WS_P)
    srd(a,44,20,8192,off=WS_STAT)
    a(f"""
s_lshr_b32 s62, s60, 2
s_and_b32 s63, s60, 3
s_mul_i32 s53, s62, {48*256}
s_add_u32 s53, s53, {XL}
v_lshlrev_b32 v12, 8, v4
v_add_u32 v12, s53, v12
""")
    for s in range(4):
        a(f"v_or_b32 v13, {4*s}, v5\nv_xor_b32 v13, v13, v4\nv_lshl_add_u32 v{8+s}, v13, 4, v12")
    a(f"""
v_lshrrev_b32 v13, 2, v4
v_lshl_add_u32 v16, v5, 3, v13          ; row
v_lshlrev_b32 v16, 8, v16
v_and_b32 v17, 3, v4
v_lshl_add_u32 v16, v17, 3, v16
v_and_b32 v17, 1, v5
v_lshl_or_b32 v13, v17, 2, v13          ; f
s_lshl_b32 s53, s63, 1
v_xor_b32 v17, s53, v13
v_lshl_add_u32 v14, v17, 5, v16
v_xor_b32 v17, 1, v17
v_lshl_add_u32 v15, v17, 5, v16
""")
    a(f"""
s_mul_i32 s53, s62, {48*256}
s_lshl_b32 s54, s63, 6
s_add_u32 s53, s53, s54
v_lshlrev_b32 v18, 10, v5
v_lshl_add_u32 v18, v4, 2, v18
v_add_u32 v18, s53, v18
s_mov_b32 s56, {hex(LOG2E_NEG)}
s_mov_b32 s57, {hex(LOG2E_NEG)}
s_waitcnt vmcnt(0)
s_barrier
""")
    BF=20; AF=52; AC=100
    for s in range(4):
        for nt in range(2):
            r=BF+8*s+4*nt
            a(f"ds_read_b64_tr_b16 v[{r}:{r+1}], v{14+nt} offset:{s*8192}\nds_read_b64_tr_b16 v[{r+2}:{r+3}], v{14+nt} offset:{s*8192+1024}")
        for T in range(3):
            r=AF+12*s+4*T
            a(f"ds_read_b128 v[{r}:{r+3}], v{8+s} offset:{T*4096}")
        if s>=1:
            sp=s-1
            a("s_waitcnt lgkmcnt(7)")
            for T in range(3):
                for nt in range(2):
                    c=AC+8*T+4*nt
                    a(f"v_mfma_f32_16x16x32_bf16 v[{c}:{c+3}], v[{AF+12*sp+4*T}:{AF+12*sp+4*T+3}], v[{BF+8*sp+4*nt}:{BF+8*sp+4*nt+3}], "+("0" if sp==0 else f"v[{c}:{c+3}]"))
    a("s_waitcnt lgkmcnt(0)")
    sp=3
    for T in range(3):
        for nt in range(2):
            c=AC+8*T+4*nt
            a(f"v_mfma_f32_16x16x32_bf16 v[{c}:{c+3}], v[{AF+12*sp+4*T}:{AF+12*sp+4*T+3}], v[{BF+8*sp+4*nt}:{BF+8*sp+4*nt+3}], v[{c}:{c+3}]")
    a("s_nop 5")
    for T in range(3):
        if T==2: a("s_nop 1")
        c=AC+8*T
        for j in range(4): a(f"v_pk_mul_f32 v[{c+2*j}:{c+2*j+1}], v[{c+2*j}:{c+2*j+1}], s[56:57]")
        a(f"s_add_u32 s52, s48, {T*4096}")
        for i in range(4):
            a(f"v_cvt_pk_bf16_f32 v{20+4*T+i}, v{c+i}, v{c+4+i}")
            a(f"buffer_store_dword v{20+4*T+i}, v18, s[32:35], s52 offen offset:{i*256}")
    a("s_mov_b32 s54, 0x7fff7fff\nv_mov_b32 v40, 0")
    for r in range(20,32): a(f"v_and_b32 v41, s54, v{r}\nv_pk_max_u16 v40, v40, v41")
    a("v_lshlrev_b32 v41, 16, v40\nv_and_b32 v40, 0xffff0000, v40\nv_max_u32 v19, v40, v41")
    dpp_scan(a,"v_max_u32",[19])
    a(f"""
s_lshl_b32 s53, s61, 3
s_add_u32 s53, s53, s60
s_lshl_b32 s53, s53, 2
v_mov_b32 v42, 0
v_cmp_eq_u32 vcc, 63, v2
s_and_saveexec_b64 s[56:57], vcc
buffer_store_dword v19, v42, s[44:47], s53 offen
s_endpgm
""")
    a(f"""
K1_PREP:
s_sub_u32 s61, s2, {NSORT+NGEMM}
v_and_b32 v4, 15, v0                    ; n
v_lshrrev_b32 v5, 4, v2                 ; g
s_waitcnt lgkmcnt(0)
""")
    srd(a,24,12,260*256); srd(a,28,14,256*256); srd(a,32,20,3*32768+2048+16,off=WS_WF)
    a(f"""
s_cmp_eq_u32 s61, 12
s_cbranch_scc1 K1_W3
s_and_b32 s62, s61, 3
s_lshl_b32 s62, s62, 1
s_lshr_b32 s63, s60, 2
s_add_u32 s62, s62, s63                 ; w'
s_and_b32 s63, s60, 3                   ; s
s_lshl_b32 s53, s61, 13
v_lshlrev_b32 v7, 4, v0
s_lshl_b32 s54, s63, 13                 ; s*32 rows*256
s_cmp_ge_u32 s61, 8
s_cbranch_scc1 K1_P2
s_cmp_ge_u32 s61, 4
s_cbranch_scc1 K1_P1
s_lshr_b32 s55, s62, 1
s_lshl_b32 s55, s55, 6
s_and_b32 s56, s62, 1
s_lshl_b32 s56, s56, 4
s_add_u32 s55, s55, s56
s_add_u32 s54, s54, s55
s_add_u32 s54, s54, 32768
v_and_b32 v8, 1, v4
v_lshlrev_b32 v8, 5, v8
v_and_b32 v9, 14, v4
v_add_u32 v8, v8, v9
v_lshl_add_u32 v8, v5, 11, v8
""")
    for j in range(8): a(f"buffer_load_ushort v{16+j}, v8, s[24:27], s54 offen offset:{j*256}")
    a(f"""
s_branch K1_PS
K1_P1:
s_lshl_b32 s55, s62, 5
s_add_u32 s54, s54, s55
v_lshlrev_b32 v8, 1, v4
v_lshl_add_u32 v8, v5, 11, v8
""")
    for j in range(8): a(f"buffer_load_ushort v{16+j}, v8, s[28:31], s54 offen offset:{j*256}")
    a(f"""
s_branch K1_PS
K1_P2:
s_lshl_b32 s55, s62, 5
s_add_u32 s54, s54, s55
s_add_u32 s54, s54, 32768
v_lshlrev_b32 v8, 1, v4
v_lshl_add_u32 v8, v5, 10, v8
v_add_u32 v9, 4096, v8
""")
    for j in range(8): a(f"buffer_load_ushort v{16+j}, v{8+(j&1)}, s[28:31], s54 offen offset:{(j>>1)*256}")
    a(f"""
K1_PS:
s_waitcnt vmcnt(0)
v_lshl_or_b32 v12, v17, 16, v16
v_lshl_or_b32 v13, v19, 16, v18
v_lshl_or_b32 v14, v21, 16, v20
v_lshl_or_b32 v15, v23, 16, v22
buffer_store_dwordx4 v[12:15], v7, s[32:35], s53 offen
s_endpgm
K1_W3:
s_cmp_ge_u32 s60, 4
s_cbranch_scc1 K1_END
v_and_b32 v8, 1, v2
v_lshlrev_b32 v8, 5, v8
v_and_b32 v9, 30, v2
v_add_u32 v8, v8, v9
s_lshl_b32 s54, s60, 6
s_add_u32 s54, s54, 65536
""")
    for k in range(4): a(f"buffer_load_ushort v{12+k}, v8, s[24:27], s54 offen offset:{k*256}")
    a(f"s_mov_b32 s56, {hex(LOG2E_NEG)}\ns_waitcnt vmcnt(0)")
    for k in range(4): a(f"v_lshlrev_b32 v{12+k}, 16, v{12+k}\nv_mul_f32 v{12+k}, s56, v{12+k}")
    a("""
v_cvt_pk_bf16_f32 v16, v12, v13
v_cvt_pk_bf16_f32 v17, v14, v15
v_lshlrev_b32 v20, 16, v16
v_and_b32 v21, 0xffff0000, v16
v_lshlrev_b32 v22, 16, v17
v_and_b32 v23, 0xffff0000, v17
v_sub_f32 v20, v12, v20
v_sub_f32 v21, v13, v21
v_sub_f32 v22, v14, v22
v_sub_f32 v23, v15, v23
v_cvt_pk_bf16_f32 v18, v20, v21
v_cvt_pk_bf16_f32 v19, v22, v23
v_cmp_lt_u32 vcc, 31, v2
v_add_f32 v24, abs(v12), abs(v13)
v_add_f32 v25, abs(v14), abs(v15)
v_cndmask_b32 v16, v16, v18, vcc
v_cndmask_b32 v17, v17, v19, vcc
v_add_f32 v24, v24, v25
v_lshlrev_b32 v7, 3, v0
s_mov_b32 s53, 98304
buffer_store_dwordx2 v[16:17], v7, s[32:35], s53 offen
v_and_b32 v24, 0x7fffffff, v24
""")
    dpp_scan(a,"v_max_u32",[24])
    a(f"""
s_lshl_b32 s53, s60, 2
s_add_u32 s53, s53, {3*32768+2048}
v_mov_b32 v42, 0
v_cmp_eq_u32 vcc, 63, v2
s_and_saveexec_b64 s[56:57], vcc
buffer_store_dword v24, v42, s[32:35], s53 offen
K1_END:
s_endpgm
""")
    return a.text()
```

```python
from common import *
CNT=0; MISC=256; CM=512; OH0=1024; OH1=1600
Q2=2304; QS=52*128
AGG=Q2+4*QS
REC=AGG+50*512
GBUF=REC+32768
K2_LDS=GBUF+65536
ONE2=0x3F803F80
JUNK=49*512
NULLW2=0xFFFF|(JUNK<<16)
NULLY=512
ID0=4; ID1=8; B3=12; A=28; Z=[60,76]; A3=92; EE=96; NN=112; DD=116; GG=120; AG=124; NO=128
IDX=132; AR=148; RB=156; SB=157; HB=158; VY=159; OHC=160; VL=161; AGC=162
WU2=164; UA=180; W2F=196; WU1=212; RK=228; TT=236; QA=240; RC=96; XF=28
sP=24; sX=28; sT=32; sR=36; sW=40; sS=44; sO=48
sWV=60; sB=61; sNN=62; sT0=63; sNT=64; sBUF=65; sQ=66; sW8=67; sMAG=68
sISC=70
sLSB=72
sRND=74; sMAXC=75; sC3=76
sTMP=80
sEX=88

def mfma32(d,x,y,c): return f"v_mfma_f32_32x32x16_bf16 v[{d}:{d+15}], v[{x}:{x+3}], v[{y}:{y+3}], "+("0" if c is None else f"v[{c}:{c+15}]")
def mfma16(d,x,y,c): return f"v_mfma_f32_16x16x32_bf16 v[{d}:{d+3}], v[{x}:{x+3}], v[{y}:{y+3}], "+("0" if c is None else f"v[{c}:{c+3}]")
def P2(r): return f"v[{r}:{r+1}]"

def init_rec(a):
    a(f"""
v_lshlrev_b32 v1, 4, v0
v_add_u32 v1, {REC}, v1
v_mov_b32 v{QA}, 0
v_mov_b32 v{QA+1}, 0
v_mov_b32 v{QA+2}, {hex(NULLW2)}
v_mov_b32 v{QA+3}, {NULLY}
""")
    for j in range(4): a(f"ds_write_b128 v1, v[{QA}:{QA+3}] offset:{j*8192}")

def load_recs(a,lab,nslots,slow):
    pass

def gen_k2():
    a=Asm()
    sM=90
    a(f"""
k2_kernel:
s_cmp_ge_u32 s2, 256
s_cbranch_scc1 K2_END
s_load_dwordx16 s[4:19], s[0:1], 0
s_load_dwordx2 s[20:21], s[0:1], 64
v_lshrrev_b32 v1, 6, v0
v_and_b32 v{VL}, 63, v0
v_readfirstlane_b32 s{sWV}, v1
s_and_b32 s80, s2, 7
s_lshl_b32 s80, s80, 5
s_lshr_b32 s81, s2, 3
s_or_b32 s80, s80, s81
s_lshl_b32 s80, s80, 2                  ; key*4
s_cmp_lt_u32 s2, {N-256*48}
s_cselect_b32 s{sNN}, 49, 48
v_lshrrev_b32 v2, 4, v0                 ; 4w+a
v_lshlrev_b32 v3, 10, v2
s_waitcnt lgkmcnt(0)
""")
    srd(a,sT,20,NSORT*1024,off=WS_TBL)
    for i in range(4):
        a(f"s_add_u32 s81, s80, {i*32768}\nbuffer_load_dword v{TT+i}, v3, s[{sT}:{sT+3}], s81 offen")
    a(f"s_add_u32 s82, s20, {hex(WS_C3)}\ns_addc_u32 s83, s21, 0\ns_load_dwordx4 s[{sC3}:{sC3+3}], s[82:83], 0")
    srd(a,sX,4,N,stride=256)
    a(f"""
v_and_b32 v1, 15, v0
v_and_b32 v{AR+1}, 15, v2
v_xor_b32 v{AR+1}, v{AR+1}, v1
v_lshlrev_b32 v{AR+1}, 4, v{AR+1}
v_mov_b32 v{AR+3}, v{AR+1}
v_lshl_add_u32 v{AR}, v2, 8, s2
v_add_u32 v{AR+2}, 8192, v{AR}
s_lshl_b32 s{sBUF}, s{sWV}, 10
s_add_u32 m0, s{sBUF}, {GBUF}
s_nop 0
buffer_load_dwordx4 v[{AR}:{AR+1}], s[{sX}:{sX+3}], 0 idxen offen lds
s_add_u32 m0, s{sBUF}, {GBUF+8192}
s_nop 0
buffer_load_dwordx4 v[{AR+2}:{AR+3}], s[{sX}:{sX+3}], 0 idxen offen lds
""")
    srd(a,sW,20,3*32768+2048,off=WS_WF)
    a(f"v_lshlrev_b32 v{AR+4}, 4, v{VL}\ns_lshl_b32 s84, s{sWV}, 12")
    for s in range(4): a(f"buffer_load_dwordx4 v[{W2F+4*s}:{W2F+4*s+3}], v{AR+4}, s[{sW}:{sW+3}], s84 offen offset:{s*1024}")
    a(f"v_lshlrev_b32 v{AR+5}, 3, v{VL}\ns_mov_b32 s85, 98304")
    for q in range(4): a(f"buffer_load_dwordx2 v[{B3+4*q+2}:{B3+4*q+3}], v{AR+5}, s[{sW}:{sW+3}], s85 offen offset:{q*512}")
    srd(a,sS,20,8192,off=WS_STAT)
    a(f"v_lshlrev_b32 v{AR+6}, 4, v0\nbuffer_load_dwordx4 v[{NO}:{NO+3}], v{AR+6}, s[{sS}:{sS+3}], 0 offen")
    srd(a,sR,20,NSORT*EPW*16,off=WS_REC)
    srd(a,sP,20,N,off=WS_P,stride=256)
    srd(a,sO,16,N*256)
    init_rec(a)
    a(f"""
v_mov_b32 v{QA+4}, 0
v_mov_b32 v{QA+5}, 0
v_mov_b32 v{QA+6}, 0
v_mov_b32 v{QA+7}, 0
""")
    for j in range(3): a(f"ds_write_b128 v{AR+6}, v[{QA+4}:{QA+7}] offset:{AGG+j*8192}")
    a(f"""
s_cmp_eq_u32 s{sWV}, 0
s_cbranch_scc0 K2_i1
ds_write_b128 v{AR+6}, v[{QA+4}:{QA+7}] offset:{AGG+3*8192}
K2_i1:
v_mov_b32 v1, {hex(ONE2)}
""")
    for j,t in enumerate([64,65,100,101]):
        a(f"v_cmp_eq_u32 vcc, {t}, v0\ns_nop 1\nv_cndmask_b32 v{QA+8+j}, 0, v1, vcc")
    a(f"""
v_cmp_gt_u32 vcc, 144, v0
s_and_saveexec_b64 s[{sEX}:{sEX+1}], vcc
ds_write_b128 v{AR+6}, v[{QA+8}:{QA+11}]
s_mov_b64 exec, s[{sEX}:{sEX+1}]
""")
    def recs(slow):
        ns=4 if slow else 8
        a(f"v_and_b32 v1, 15, v0\nv_lshrrev_b32 v2, 4, v0")
        if slow:
            a(f"v_cmp_gt_u32 s[86:87], 8, v1\ns_lshl_b32 s80, s{sRND}, 3\nv_add_u32 v1, s80, v1")
        a(f"v_mul_u32_u24 v2, {EPW}, v2\nv_add_u32 v2, v2, v1")
        for i in range(ns):
            g=i&3
            if i==4: a("v_add_u32 v1, 16, v1\nv_add_u32 v2, 16, v2")
            a(f"""
v_lshrrev_b32 v3, 16, v{TT+g}
v_cmp_lt_u32 vcc, v1, v3
v_and_b32 v3, 0xffff, v{TT+g}
v_add_lshl_u32 v3, v3, v2, 4
""")
            if slow: a("s_and_b64 vcc, vcc, s[86:87]\ns_nop 1")
            a(f"""
v_cndmask_b32 v{RK+i}, 2.0, v3, vcc
s_mov_b32 s80, {g*32*EPW*16}
buffer_load_dwordx4 v[{RC+4*i}:{RC+4*i+3}], v{RK+i}, s[{sR}:{sR+3}], s80 offen
""")
        return ns
    def hist(ns,lab,extra):
        a("v_mov_b32 v1, 16")
        for i in range(ns):
            a(f"""
v_cmp_ne_u32 vcc, 2.0, v{RK+i}
s_waitcnt vmcnt({ns-1-i+extra})
v_lshrrev_b32 v{IDX+2*i}, 23, v{RC+4*i+2}
s_and_saveexec_b64 s[{sEX}:{sEX+1}], vcc
ds_add_rtn_u32 v{RK+i}, v{IDX+2*i}, v1
s_mov_b64 exec, s[{sEX}:{sEX+1}]
""")
    def scan():
        a(f"""
v_lshlrev_b32 v1, 2, v{VL}
ds_read_b32 v3, v1
ds_read_b128 v[{QA}:{QA+3}], v{QA+4} offset:{MISC}
v_cmp_gt_u32 vcc, s{sNN}, v{VL}
s_waitcnt lgkmcnt(1)
v_add_u32 v3, 48, v3
v_and_b32 v3, 0xffffffc0, v3
v_max_u32 v3, 192, v3
v_cndmask_b32 v3, 0, v3, vcc
v_mov_b32 v2, v3
""")
        dpp_scan(a,"v_add_u32",[2])
        a(f"""
v_readlane_b32 s80, v2, 63
v_sub_u32 v2, v2, v3
v_add_u32 v2, {REC}, v2
s_add_u32 s{sNT}, s80, 511
s_lshr_b32 s{sNT}, s{sNT}, 9
""")
    def scatter(ns,lab):
        for i in range(ns): a(f"ds_bpermute_b32 v{IDX+2*i}, v{IDX+2*i}, v2")
        a(f"""
s_cmp_eq_u32 s{sWV}, 7
s_cbranch_scc0 {lab}
v_cmp_gt_u32 vcc, s{sNN}, v{VL}
v_lshlrev_b32 v{QA+5}, 9, v{VL}
v_lshrrev_b32 v3, 6, v3
v_mul_lo_u32 v3, v3, s{sMAG}
ds_write_b32 v1, v3 offset:{CM}
s_and_saveexec_b64 s[{sEX}:{sEX+1}], vcc
ds_write_b16 v2, v{QA+5} offset:10
ds_write_b16 v2, v{QA+5} offset:74
ds_write_b16 v2, v{QA+5} offset:138
s_mov_b64 exec, s[{sEX}:{sEX+1}]
{lab}:
s_waitcnt lgkmcnt(0)
""")
        for i in range(ns):
            a(f"""
v_cmp_ne_u32 vcc, 2.0, v{RK+i}
v_add_u32 v{IDX+2*i}, v{IDX+2*i}, v{RK+i}
s_and_saveexec_b64 s[{sEX}:{sEX+1}], vcc
ds_write_b128 v{IDX+2*i}, v[{RC+4*i}:{RC+4*i+3}]
s_mov_b64 exec, s[{sEX}:{sEX+1}]
""")
    a("s_waitcnt vmcnt(11)")
    recs(False)
    a(f"s_add_u32 s84, s84, 32768")
    for s in range(4): a(f"buffer_load_dwordx4 v[{WU1+4*s}:{WU1+4*s+3}], v{AR+4}, s[{sW}:{sW+3}], s84 offen offset:{s*1024}")
    a(f"s_add_u32 s84, s84, 32768")
    for s in range(4): a(f"buffer_load_dwordx4 v[{WU2+4*s}:{WU2+4*s+3}], v{AR+4}, s[{sW}:{sW+3}], s84 offen offset:{s*1024}")
    def fragaddr():
        a(f"""
v_and_b32 v1, 15, v0
v_lshrrev_b32 v2, 4, v{VL}
v_lshlrev_b32 v3, 8, v1
v_add_u32 v3, {GBUF}, v3
""")
        for s in range(4):
            a(f"v_or_b32 v{AR+s}, {4*s}, v2\nv_xor_b32 v{AR+s}, v{AR+s}, v1\nv_lshl_add_u32 v{AR+s}, v{AR+s}, 4, v3")
    fragaddr()
    a(f"""
s_lshr_b32 s80, s{sWV}, 1
s_mul_i32 s80, s80, {QS}
s_and_b32 s81, s{sWV}, 1
s_lshl_b32 s81, s81, 6
s_add_u32 s80, s80, s81
s_add_u32 s80, s80, {Q2}
v_lshlrev_b32 v{AR+5}, 9, v2
v_lshl_add_u32 v{AR+5}, v1, 2, v{AR+5}
v_add_u32 v{AR+5}, s80, v{AR+5}
s_waitcnt vmcnt(16) lgkmcnt(0)
s_barrier
""")
    for T in range(4):
        for s in range(4): a(f"ds_read_b128 v[{XF+16*T+4*s}:{XF+16*T+4*s+3}], v{AR+s} offset:{T*4096}")
        if T==2:
            a("s_waitcnt lgkmcnt(8)")
            for s in range(4): a(mfma16(QA,XF+4*s,W2F+4*s,None if s==0 else QA))
    a(f"""
v_max_u32 v{NO}, v{NO}, v{NO+1}
v_max3_u32 v{NO}, v{NO}, v{NO+2}, v{NO+3}
v_cmp_gt_u32 vcc, {NGEMM*2}, v0
v_max_u32 v{NO+3}, v{TT}, v{TT+1}
v_max3_u32 v{NO+3}, v{NO+3}, v{TT+2}, v{TT+3}
v_cndmask_b32 v{NO+1}, v{NO}, 0, vcc
v_cndmask_b32 v{NO}, 0, v{NO}, vcc
v_lshrrev_b32 v{NO+3}, 16, v{NO+3}
""")
    for T in range(1,4):
        a(f"s_waitcnt lgkmcnt({4*(3-T)})")
        for s in range(4): a(mfma16(QA+4*T,XF+16*T+4*s,W2F+4*s,None if s==0 else QA+4*T))
    a(f"s_mov_b32 s80, {hex(LOG2E_NEG)}\ns_mov_b32 s81, {hex(LOG2E_NEG)}\ns_mov_b32 s82, 0x7fffffff\nv_mov_b32 v{NO+2}, 0")
    for T in range(4):
        if T==3: a(f"v_cmp_gt_u32 vcc, 16, v{VL}\ns_and_saveexec_b64 s[{sEX}:{sEX+1}], vcc")
        c=QA+4*T
        a(f"v_pk_mul_f32 {P2(c)}, {P2(c)}, s[80:81]\nv_pk_mul_f32 {P2(c+2)}, {P2(c+2)}, s[80:81]")
        for i in range(4):
            a(f"""
v_and_b32 v1, 0xffff0000, v{c+i}
v_and_b32 v3, s82, v{c+i}
v_sub_f32 v2, v{c+i}, v1
v_max_u32 v{NO+2}, v{NO+2}, v3
v_cvt_pk_bf16_f32 v{c+i}, v2, v1
ds_write_b32 v{AR+5}, v{c+i} offset:{T*2048+i*128}
""")
    a(f"s_mov_b64 exec, s[{sEX}:{sEX+1}]")
    dpp_scan(a,"v_max_u32",[NO,NO+1,NO+2,NO+3])
    a(f"""
v_mov_b32 v{QA+4}, 0
v_cmp_eq_u32 vcc, 63, v{VL}
s_and_saveexec_b64 s[{sEX}:{sEX+1}], vcc
""")
    for j in range(4): a(f"ds_max_u32 v{QA+4}, v{NO+j} offset:{MISC+4*j}")
    a(f"s_mov_b64 exec, s[{sEX}:{sEX+1}]")
    a(f"""
v_and_b32 v1, 31, v{VL}                 ; rho
v_lshrrev_b32 v2, 5, v{VL}              ; h
; slot = 16 b4 + 8 b0 + 4 b2 + 2 b3 + b1
v_and_b32 v3, 20, v1
v_and_b32 v{RB}, 1, v1
v_lshl_or_b32 v3, v{RB}, 3, v3
v_bfe_u32 v{RB}, v1, 3, 1
v_lshl_or_b32 v3, v{RB}, 1, v3
v_bfe_u32 v{RB}, v1, 1, 1
v_or_b32 v3, v3, v{RB}                  ; slot
s_lshl_b32 s{sBUF}, s{sWV}, 13
s_add_u32 s{sBUF}, s{sBUF}, {GBUF}
s_lshl_b32 s80, s{sWV}, 9
s_add_u32 s80, s80, {REC}
v_lshl_add_u32 v{RB}, v3, 4, s80
v_lshl_add_u32 v{HB}, v2, 6, s80
v_lshl_add_u32 v3, v3, 8, s{sBUF}
v_and_b32 v{SB}, 15, v1
""")
    for t in range(8):
        a(f"v_or_b32 v{AR+t}, {2*t}, v2\nv_xor_b32 v{AR+t}, v{AR+t}, v{SB}\nv_lshl_add_u32 v{AR+t}, v{AR+t}, 4, v3")
    a(f"""
v_mul_u32_u24 v{OHC}, {OH1-OH0}, v2
v_lshlrev_b32 v{AGC}, 2, v1
v_add_u32 v{AGC}, {AGG}, v{AGC}
v_mov_b32 v{AGC+1}, v{AGC}
v_lshlrev_b32 v3, 3, v2
v_sub_u32 v3, v1, v3                    ; n - 8h
v_and_b32 v{VY}, 1, v3
v_lshlrev_b32 v{VY}, 4, v{VY}
v_mov_b32 v2, 0x3f80
v_lshlrev_b32 v{VY}, v{VY}, v2          ; 0x3f80 << 16*(odd)
v_lshrrev_b32 v3, 1, v3
""")
    for s in range(2):
        for j in range(4):
            a(f"v_cmp_eq_u32 vcc, {8*s+j}, v3\ns_nop 1\nv_cndmask_b32 v{ID0+4*s+j}, 0, v{VY}, vcc")
    a(f"""
v_lshrrev_b32 v2, 4, v{VL}              ; a
v_and_b32 v1, 15, v{VL}
v_and_b32 v3, 2, v2
v_lshlrev_b32 v3, 2, v3
v_xor_b32 v1, v1, v3
v_and_b32 v3, 1, v2
v_lshlrev_b32 v3, 1, v3
v_xor_b32 v1, v1, v3
v_lshlrev_b32 v1, 4, v1
v_lshl_add_u32 v{SB}, v2, 4, s80
""")
    for i in range(8): a(f"v_xor_b32 v{IDX+2*i+1}, {(4*(i&1)+((i>>1)&1))*16}, v1")
    hist(8,"h",8)
    a("s_waitcnt lgkmcnt(0)\ns_barrier")
    scan()
    a(f"""
s_max_u32 s{sC3}, s{sC3}, s{sC3+1}
s_max_u32 s{sC3+2}, s{sC3+2}, s{sC3+3}
s_max_u32 s{sC3}, s{sC3}, s{sC3+2}
s_waitcnt lgkmcnt(0)
v_add_f32 v{QA}, v{QA}, v{QA+2}
v_fma_f32 v{QA}, v{QA+1}, s{sC3}, v{QA}
v_mul_f32 v{QA}, 0x40820000, v{QA}       ; *4.0625
v_readfirstlane_b32 s{sMAXC}, v{QA+3}
v_readfirstlane_b32 s81, v{QA}
s_nop 3
s_and_b32 s81, s81, 0x7fffffff
s_cmp_gt_u32 s81, 0x42f00000
s_cbranch_scc1 K2_SLOW
s_cmp_gt_u32 s{sMAXC}, 32
s_cbranch_scc1 K2_SLOW
s_cmp_gt_u32 s80, 32768
s_cbranch_scc1 K2_SLOW
s_max_u32 s81, s81, 0x35800000           ; >= 2^-20
s_and_b32 s81, s81, 0x7f800000
s_add_u32 s{sMAG}, s81, 0x01400000       ; 1.5*2^(ex+2)
s_mov_b32 s{sMAG+1}, s{sMAG}
s_sub_u32 s{sLSB}, s81, {hex(21<<23)}    ; 2^(ex+2-23)
s_mov_b32 s{sLSB+1}, s{sLSB}
s_sub_u32 s82, {hex(127<<23)}, s{sLSB}
s_add_u32 s{sISC}, s82, {hex(LOG2E_NEG)}
s_mov_b32 s{sISC+1}, s{sISC}
""")
    scatter(8,"K2_sc1")
    a("s_waitcnt lgkmcnt(0)\ns_barrier")
    def ugemm():
        for T in range(4):
            for s in range(4):
                x,y=(WU1+4*s,XF+16*T+4*s) if T<3 else (XF+16*T+4*s,WU1+4*s)
                a(mfma16(UA+4*T,x,y,None if s==0 else UA+4*T))
        a("s_nop 7")
        for j in range(8): a(f"v_pk_mul_f32 {P2(UA+2*j)}, {P2(UA+2*j)}, s[{sISC}:{sISC+1}]")
    def rd_idx():
        for i in range(8): a(f"ds_read_u16 v{IDX+2*i}, v{SB} offset:{64*i+8}")
    def rd_no():
        for u in range(2):
            for par in range(2): a(f"ds_read_u16 v{NO+2*u+par}, v{HB} offset:{256*u+128*par+10}")
        a(f"ds_read_b32 v{VY}, v{RB} offset:12")
    def dma():
        L=[]
        for i in range(8):
            L.append((f"s_mov_b32 m0, s{sBUF}" if i==0 else "s_add_u32 m0, m0, 1024")+f"\ns_nop 0\nbuffer_load_dwordx4 {P2(IDX+2*i)}, s[{sP}:{sP+3}], 0 idxen offen lds")
        return L
    def win():
        a(f"""
v_readfirstlane_b32 s{sQ}, v{NO}
s_nop 3
s_lshr_b32 s{sW8}, s{sQ}, 6
s_sub_u32 s{sW8}, 0, s{sW8}
s_lshr_b32 m0, s{sQ}, 2
v_add3_u32 v{VY}, v{VY}, v{OHC}, s{sW8}
""")
    def rd_b3(q): return f"ds_read_addtid_b32 v{B3+4*q} offset:{Q2+q*QS}\nds_read_addtid_b32 v{B3+4*q+1} offset:{Q2+q*QS+256}"
    rd_a3=f"ds_read_b64 {P2(A3)}, v{VY} offset:{OH0}\nds_read_b64 {P2(A3+2)}, v{RB}"
    def rd_a(t): return f"ds_read_b128 v[{A+4*t}:{A+4*t+3}], v{AR+t}"
    a(f"""
s_mov_b32 s{sT0}, s{sWV}
s_cmp_lt_u32 s{sT0}, s{sNT}
s_cbranch_scc1 K2_go
s_waitcnt vmcnt(0)
""")
    ugemm()
    a("s_branch K2_EPI\nK2_go:")
    rd_idx(); rd_no()
    a("s_waitcnt lgkmcnt(5)")
    for x in dma(): a(x)
    a(f"v_add_u32 v{SB}, 4096, v{SB}\ns_waitcnt lgkmcnt(0)")
    win()
    for q in range(4): a(rd_b3(q))
    a(rd_a3)
    a("s_waitcnt vmcnt(8)")
    ugemm()
    rd_idx()
    a(f"""
v_add_u32 v{SB}, 4096, v{SB}
v_add_u32 v{RB}, 4096, v{RB}
v_add_u32 v{HB}, 4096, v{HB}
""")
    for j in range(4): a(f"v_mov_b32 v{NN+j}, 0\nv_mov_b32 v{DD+j}, 1.0\nv_add_u32 v{AG+j}, {JUNK}, v{AGC}")
    a("s_waitcnt vmcnt(0)")
    for t in range(8): a(rd_a(t))
    a(f"""
s_waitcnt lgkmcnt(0)
s_add_u32 s80, s{sT0}, 8
s_cmp_lt_u32 s80, s{sNT}
s_cbranch_scc0 K2_p1
""")
    for x in dma(): a(x)
    a("K2_p1:")
    a(mfma32(Z[0],A3,B3,None)); a(mfma32(Z[0],A,ID0,Z[0])); a(mfma32(Z[0],A+4,ID1,Z[0]))
    a("s_nop 7")
    def finals(qprev):
        for u in range(2): a(f"v_pk_fma_f32 {P2(GG+2*u)}, {P2(NN+2*u)}, {P2(DD+2*u)}, s[{sMAG}:{sMAG+1}]")
        for j in range(4): a(f"ds_add_u32 v{AG+j}, v{GG+j} offset:{qprev*128}")
    def ex(zc,r): return f"v_exp_f32 v{EE+r}, v{zc+r}"
    a(".p2align 6\nK2_LOOP:")
    for q in range(4):
        zc=Z[q&1]; zn=Z[(q+1)&1]; qn=(q+1)&3
        ms=[(A3,B3+4*qn),(A+8*qn,ID0),(A+8*qn+4,ID1)]
        if q==3: ms=[ms[1],ms[2],ms[0]]
        if q==1:
            a("s_waitcnt lgkmcnt(0)"); win(); a(rd_b3(0)); a(rd_b3(1))
        if q==2:
            a("s_waitcnt vmcnt(0)")
            for t in range(6): a(rd_a(t))
        if q==3:
            a(f"s_waitcnt lgkmcnt(0)\ns_add_u32 s80, s{sT0}, 16\ns_cmp_lt_u32 s80, s{sNT}\ns_cbranch_scc0 K2_l1")
            for x in dma(): a(x)
            a("K2_l1:")
        a(mfma32(zn,ms[0][0],ms[0][1],None))
        for j in range(4): a(f"v_rcp_f32 v{DD+j}, v{DD+j}")
        if q==1: a(rd_b3(2))
        if q==2: a(rd_b3(3)); a(rd_a3)
        a(mfma32(zn,ms[1][0],ms[1][1],zn))
        for r in (0,1,2,3): a(ex(zc,r))
        a(mfma32(zn,ms[2][0],ms[2][1],zn))
        for r in (8,9,10,11): a(ex(zc,r))
        if q==2: a(rd_a(6)); a(rd_a(7))
        finals((q-1)&3)
        if q==0:
            for u in range(2): a(f"v_pk_add_f32 {P2(AG+2*u)}, {P2(NO+2*u)}, {P2(AGC)}")
            rd_no(); rd_idx()
        pend=[4,5,12,13,6,7,14,15]
        seq=[]
        for u in range(2): seq.append(f"v_pk_add_f32 {P2(DD+2*u)}, {P2(EE+8*u)}, 1.0 op_sel_hi:[1,0]")
        for m in range(1,4):
            for u in range(2):
                src=(zc+8*u) if m==1 else NN+2*u
                seq.append(f"v_pk_fma_f32 {P2(NN+2*u)}, {P2(src)}, {P2(EE+8*u+2*m)}, {P2(src)}")
            for u in range(2): seq.append(f"v_pk_fma_f32 {P2(NN+2*u)}, {P2(zc+8*u+2*m)}, {P2(DD+2*u)}, {P2(NN+2*u)}")
            for u in range(2): seq.append(f"v_pk_fma_f32 {P2(DD+2*u)}, {P2(DD+2*u)}, {P2(EE+8*u+2*m)}, {P2(DD+2*u)}")
        slots={0:4,1:5,2:12,3:13,5:6,7:7,9:14,11:15}
        for k,x in enumerate(seq):
            a(x)
            if k in slots: a(ex(zc,slots[k]))
        if q==2: a(f"v_add_u32 v{RB}, 4096, v{RB}")
        if q==1: a(f"v_add_u32 v{SB}, 4096, v{SB}\nv_add_u32 v{HB}, 4096, v{HB}")
    a(f"""
s_add_u32 s{sT0}, s{sT0}, 8
s_cmp_lt_u32 s{sT0}, s{sNT}
s_cbranch_scc1 K2_LOOP
""")
    for j in range(4): a(f"v_rcp_f32 v{DD+j}, v{DD+j}")
    a("s_nop 0")
    finals(3)
    AGB=GBUF; OST=GBUF+16384
    def convert(slow):
        a(f"""
v_lshlrev_b32 v1, 4, v0
v_lshrrev_b32 v2, 5, v0                 ; node&15
v_lshlrev_b32 v3, 2, v2
s_waitcnt vmcnt(0) lgkmcnt(0)
s_barrier
""")
        for j in range(4):
            a(f"ds_read_b128 v[{A+4*j}:{A+4*j+3}], v1 offset:{AGG+j*8192}")
            if not slow: a(f"ds_read_b32 v{A+16+j}, v3 offset:{CM+64*j}")
        a(f"""
v_bfe_u32 v3, v0, 1, 4
v_xor_b32 v3, v3, v2
v_lshlrev_b32 v3, 4, v3
v_lshl_add_u32 v3, v2, 8, v3
v_and_b32 v1, 1, v0
v_lshl_add_u32 v3, v1, 3, v3
v_add_u32 v3, {AGB}, v3
""")
        for j in range(4):
            a(f"s_waitcnt lgkmcnt({3 if slow else 6-j})")
            if not slow:
                for i in range(4): a(f"v_sub_u32 v{A+4*j+i}, v{A+4*j+i}, v{A+16+j}")
                for i in range(4): a(f"v_cvt_f32_i32 v{A+4*j+i}, v{A+4*j+i}")
            a(f"v_cvt_pk_bf16_f32 v{A+4*j}, v{A+4*j}, v{A+4*j+1}\nv_cvt_pk_bf16_f32 v{A+4*j+1}, v{A+4*j+2}, v{A+4*j+3}")
            a(f"ds_write_b64 v3, {P2(A+4*j)} offset:{j*4096}")
    a("K2_EPI:")
    convert(False)
    a("K2_FIN:")
    fragaddr()
    a(f"""
s_lshl_b32 s80, s{sWV}, 1
v_lshrrev_b32 v{AR+4}, 1, v2
v_or_b32 v{AR+4}, s80, v{AR+4}
v_xor_b32 v{AR+4}, v{AR+4}, v1
v_lshl_add_u32 v{AR+4}, v{AR+4}, 4, v3
v_and_b32 v2, 1, v2
v_lshl_add_u32 v{AR+4}, v2, 3, v{AR+4}
v_lshlrev_b32 v{AR+5}, 1, v1
s_waitcnt lgkmcnt(0)
s_barrier
""")
    for T in range(4):
        for s in range(4): a(f"ds_read_b128 v[{XF+16*T+4*s}:{XF+16*T+4*s+3}], v{AR+s} offset:{T*4096}")
        if T==2:
            a("s_waitcnt lgkmcnt(8)")
            for s in range(4): a(mfma16(UA,WU2+4*s,XF+4*s,UA))
    for T in range(1,4):
        a(f"s_waitcnt lgkmcnt({4*(3-T)})")
        for s in range(4):
            x,y=(WU2+4*s,XF+16*T+4*s) if T<3 else (XF+16*T+4*s,WU2+4*s)
            a(mfma16(UA+4*T,x,y,UA+4*T))
    for T in range(3):
        c=UA+4*T; e=EE+4*T
        a(f"v_pk_mul_f32 {P2(e)}, {P2(c)}, s[{sLSB}:{sLSB+1}]\nv_pk_mul_f32 {P2(e+2)}, {P2(c+2)}, s[{sLSB}:{sLSB+1}]")
        for i in range(4): a(f"v_exp_f32 v{e+i}, v{e+i}")
        a("s_nop 0")
        a(f"v_pk_fma_f32 {P2(e)}, {P2(e)}, s[{sISC}:{sISC+1}], s[{sISC}:{sISC+1}]\nv_pk_fma_f32 {P2(e+2)}, {P2(e+2)}, s[{sISC}:{sISC+1}], s[{sISC}:{sISC+1}]")
        for i in range(4): a(f"v_rcp_f32 v{e+i}, v{e+i}")
        a("s_nop 0")
        a(f"v_pk_mul_f32 {P2(e)}, {P2(e)}, {P2(c)}\nv_pk_mul_f32 {P2(e+2)}, {P2(e+2)}, {P2(c+2)}")
        a(f"v_cvt_pk_bf16_f32 v{e}, v{e}, v{e+1}\nv_cvt_pk_bf16_f32 v{e+1}, v{e+2}, v{e+3}")
        a(f"ds_write_b64 v{AR+4}, {P2(e)} offset:{16384+T*4096}")
    c=UA+12; e=EE+12
    a(f"""
v_mul_f32 v{e}, s{sLSB}, v{c}
v_exp_f32 v{e}, v{e}
s_add_u32 s80, s2, {48*256}
v_fma_f32 v{e}, v{e}, s{sISC}, s{sISC}
v_rcp_f32 v{e}, v{e}
s_lshl_b32 s80, s80, 8
v_mul_f32 v{e}, v{e}, v{c}
s_lshl_b32 s81, s{sWV}, 5
s_add_u32 s80, s80, s81
v_cvt_pk_bf16_f32 v{e}, v{e}, v{e}
v_cmp_gt_u32 vcc, 16, v{VL}
s_and_saveexec_b64 s[{sEX}:{sEX+1}], vcc
buffer_store_short v{e}, v{AR+5}, s[{sO}:{sO+3}], s80 offen
s_mov_b64 exec, s[{sEX}:{sEX+1}]
v_lshlrev_b32 v1, 4, v0
v_add_u32 v1, {OST}, v1
v_lshrrev_b32 v2, 4, v0                 ; node (0..31)
v_xor_b32 v3, v2, v0
v_and_b32 v3, 15, v3
v_lshlrev_b32 v3, 4, v3
v_lshl_add_u32 v3, v2, 16, v3
s_lshl_b32 s80, s2, 8
s_add_u32 s81, s80, {32*65536}
s_waitcnt lgkmcnt(0)
s_barrier
ds_read_b128 v[{A}:{A+3}], v1
s_cmp_lt_u32 s{sWV}, 4
s_cbranch_scc0 K2_e1
ds_read_b128 v[{A+4}:{A+7}], v1 offset:8192
s_waitcnt lgkmcnt(0)
buffer_store_dwordx4 v[{A+4}:{A+7}], v3, s[{sO}:{sO+3}], s81 offen
K2_e1:
s_waitcnt lgkmcnt(0)
buffer_store_dwordx4 v[{A}:{A+3}], v3, s[{sO}:{sO+3}], s80 offen
K2_END:
s_endpgm
""")
    a(f"""
K2_SLOW:
s_mov_b32 s{sMAG}, 0
s_mov_b32 s{sLSB}, 1.0
s_mov_b32 s{sLSB+1}, 1.0
s_mov_b32 s{sISC}, {hex(LOG2E_NEG)}
s_mov_b32 s{sISC+1}, {hex(LOG2E_NEG)}
s_mov_b32 s{sRND}, 0
s_waitcnt vmcnt(0)
""")
    ugemm()
    a(f"""
v_mov_b32 v{WU1}, v{RB}
v_mov_b32 v{WU1+1}, v{SB}
v_mov_b32 v{WU1+2}, v{HB}
K2_SR:
s_lshl_b32 s80, s{sRND}, 3
s_cmp_lt_u32 s80, s{sMAXC}
s_cbranch_scc0 K2_SE
s_waitcnt lgkmcnt(0)
s_barrier
""")
    init_rec(a)
    a(f"v_lshlrev_b32 v1, 2, v{VL}\nds_write_b32 v1, v{QA}\nv_mov_b32 v{QA+4}, 0")
    recs(True)
    a("s_waitcnt lgkmcnt(0)\ns_barrier")
    hist(4,"sh",0)
    a("s_waitcnt lgkmcnt(0)\ns_barrier")
    scan()
    scatter(4,"K2_sc2")
    a(f"""
s_waitcnt lgkmcnt(0)
s_barrier
v_mov_b32 v{RB}, v{WU1}
v_mov_b32 v{SB}, v{WU1+1}
v_mov_b32 v{HB}, v{WU1+2}
s_mov_b32 s{sT0}, s{sWV}
K2_ST:
s_cmp_lt_u32 s{sT0}, s{sNT}
s_cbranch_scc0 K2_SN
""")
    rd_idx(); rd_no()
    a("s_waitcnt lgkmcnt(0)")
    for x in dma(): a(x)
    win()
    for q in range(4): a(rd_b3(q))
    a(rd_a3)
    for j in range(4): a(f"v_add_u32 v{AG+j}, v{NO+j}, v{AGC}")
    a("s_waitcnt vmcnt(0) lgkmcnt(0)")
    for t in range(8): a(rd_a(t))
    a("s_waitcnt lgkmcnt(0)")
    for q in range(4):
        z=Z[0]
        a(mfma32(z,A3,B3+4*q,None)); a(mfma32(z,A+8*q,ID0,z)); a(mfma32(z,A+8*q+4,ID1,z))
        a("s_nop 15")
        for r in range(16): a(f"v_exp_f32 v{EE+r}, v{z+r}")
        for r in range(16): a(f"v_add_f32 v{EE+r}, 1.0, v{EE+r}")
        for r in range(16): a(f"v_rcp_f32 v{EE+r}, v{EE+r}")
        for m in range(4):
            for u in range(2):
                for par in range(2):
                    r=8*u+2*m+par; g=GG+2*u+par
                    a(f"v_mul_f32 v{g}, v{z+r}, v{EE+r}" if m==0 else f"v_fmac_f32 v{g}, v{z+r}, v{EE+r}")
        for j in range(4): a(f"ds_add_f32 v{AG+j}, v{GG+j} offset:{q*128}")
        a("s_waitcnt lgkmcnt(0)")
    a(f"""
v_add_u32 v{SB}, 4096, v{SB}
v_add_u32 v{RB}, 4096, v{RB}
v_add_u32 v{HB}, 4096, v{HB}
s_add_u32 s{sT0}, s{sT0}, 8
s_branch K2_ST
K2_SN:
s_add_u32 s{sRND}, s{sRND}, 1
s_branch K2_SR
K2_SE:
""")
    convert(True)
    a("s_branch K2_FIN")
    return a.text()
```

```python
import sys
from common import *
from k1 import *
from k2 import *
hdr=open('standalone__mpnn_edge_mlp__graph.s.ref').read().split('; Override')[0]
out=hdr
out+=f"; @launch kernel=k1_kernel grid=({K1_GRID},1,1) block=(512,1,1) lds={K1_LDS}\n"
out+=f"; @launch kernel=k2_kernel grid=(256,1,1) block=(512,1,1) lds={K2_LDS}\n"
out+='.amdgcn_target "amdgcn-amd-amdhsa--gfx950"\n.text\n'
for n,g in (("k1_kernel",gen_k1),("k2_kernel",gen_k2)):
    out+=f".globl {n}\n.p2align 8\n.type {n},@function\n"+g()
out+='.section .rodata,"a"\n.p2align 6\n'+kd("k1_kernel",128)+".p2align 6\n"+kd("k2_kernel",256)
dst=sys.argv[1] if len(sys.argv)>1 else 'standalone__mpnn_edge_mlp__graph.s'
open(dst,'w').write(out)
```

```python
N=12500; E=400000
NSORT=125; EPW=3200
NGEMM=131; RPW=96
NPREP=13
WS_P=0
WS_REC=0x400000
WS_TBL=0xB00000
WS_STAT=0xB40000
WS_WF=0xB50000
WS_W3F=WS_WF+3*32768
WS_C3=WS_W3F+2048
LOG2E_NEG=0xBFB8AA3B

class Asm:
    def __init__(s): s.l=[]
    def __call__(s,t):
        for x in t.strip('\n').split('\n'):
            x=x.strip()
            if not x: continue
            if x.endswith(':') : s.l.append(x)
            else: s.l.append('    '+x)
    def text(s): return '\n'.join(s.l)+'\n'

def srd(a,d,lo,size,off=0,stride=0):
    if off:
        a(f"s_add_u32 s{d}, s{lo}, {hex(off)}\ns_addc_u32 s{d+1}, s{lo+1}, 0\ns_and_b32 s{d+1}, s{d+1}, 0xffff")
    else:
        a(f"s_mov_b32 s{d}, s{lo}\ns_and_b32 s{d+1}, s{lo+1}, 0xffff")
    if stride: a(f"s_or_b32 s{d+1}, s{d+1}, {hex(stride<<16)}")
    a(f"s_mov_b32 s{d+2}, {size}\ns_mov_b32 s{d+3}, 0x00020000")

def dpp_scan(a,op,regs):
    steps=["row_shr:1 row_mask:0xf bank_mask:0xf bound_ctrl:0","row_shr:2 row_mask:0xf bank_mask:0xf bound_ctrl:0",
           "row_shr:4 row_mask:0xf bank_mask:0xf bound_ctrl:0","row_shr:8 row_mask:0xf bank_mask:0xf bound_ctrl:0",
           "row_bcast:15 row_mask:0xa bank_mask:0xf","row_bcast:31 row_mask:0xc bank_mask:0xf"]
    pad=max(0,2-(len(regs)-1))
    a("s_nop 1")
    for st in steps:
        for r in regs: a(f"{op}_dpp v{r}, v{r}, v{r} {st}")
        if pad: a(f"s_nop {pad-1}")

def kd(name,vgpr,sgpr=102):
    return f""".amdhsa_kernel {name}
  .amdhsa_next_free_vgpr {vgpr}
  .amdhsa_next_free_sgpr {sgpr}
  .amdhsa_accum_offset {(vgpr+3)//4*4}
  .amdhsa_group_segment_fixed_size 0
  .amdhsa_kernarg_size 72
  .amdhsa_user_sgpr_count 2
  .amdhsa_user_sgpr_kernarg_segment_ptr 1
  .amdhsa_system_sgpr_workgroup_id_x 1
  .amdhsa_float_denorm_mode_32 3
.end_amdhsa_kernel
"""

import os
PROF=int(os.environ.get('PROF','0'))
WS_PROF=0xC00000
def stamp(a,i,real=False):
    if not PROF: return
    a(f"{'s_memrealtime' if real else 's_memtime'} s[100:101]\ns_waitcnt lgkmcnt(0)\ns_mov_b32 s{88+i}, s100")
def stamp_out(a,kidx,swave,n=12):
    if not PROF: return
    a("s_mov_b64 exec, -1")
    a(f"s_add_u32 s4, s20, {hex(WS_PROF+kidx*0x40000)}\ns_addc_u32 s5, s21, 0\ns_and_b32 s5, s5, 0xffff\ns_mov_b32 s6, 0x40000\ns_mov_b32 s7, 0x00020000")
    if PROF==2:
        a(f"s_and_b32 s3, s2, 15\ns_lshl_b32 s3, s3, 3\ns_add_u32 s3, s3, s{swave}\ns_cmp_eq_u32 s3, 7\ns_cbranch_scc1 1\ns_endpgm")
        a(f"s_add_u32 s4, s18, {512*(1-kidx)}\ns_addc_u32 s5, s19, 0\ns_and_b32 s5, s5, 0xffff\ns_mov_b32 s6, 256")
        a("s_not_b32 s88, s88")
        for i in range(2,11): a(f"s_sub_u32 s{88+i}, s{88+i}, s89")
        a("s_mov_b32 s89, s99")
        a("v_mov_b32 v1, 0")
        idx=[0,1,2,10] if kidx==0 else [0,1,2,3,4,5,6,7,8,9,10]
        for j,i in enumerate(idx): a(f"v_writelane_b32 v1, s{88+i}, {j}")
        a(f"v_and_b32 v2, 63, v0\nv_lshlrev_b32 v2, 2, v2\nv_cmp_gt_u32 vcc, {4*len(idx)}, v2\ns_and_saveexec_b64 s[8:9], vcc\nbuffer_atomic_umax v1, v2, s[4:7], 0 offen offset:{16*kidx}")
        return
    a("v_mov_b32 v1, 0")
    for i in range(n): a(f"v_writelane_b32 v1, s{88+i}, {i}")
    a(f"s_lshl_b32 s100, s2, 3\ns_add_u32 s100, s100, s{swave}\ns_lshl_b32 s100, s100, 6")
    a("v_and_b32 v2, 63, v0\nv_lshlrev_b32 v2, 2, v2\nv_cmp_gt_u32 vcc, 64, v2\ns_and_saveexec_b64 s[8:9], vcc\nbuffer_store_dword v1, v2, s[4:7], s100 offen")
```

```python
from common import *
K1_LDS=57344
K1_GRID=NSORT+NGEMM+NPREP

def gen_k1():
    a=Asm()
    a(f"""
k1_kernel:
s_cmp_ge_u32 s2, {K1_GRID}
s_cbranch_scc1 K1_END
s_load_dwordx16 s[4:19], s[0:1], 0
s_load_dwordx2 s[20:21], s[0:1], 64
v_lshrrev_b32 v1, 6, v0
v_and_b32 v2, 63, v0
v_readfirstlane_b32 s60, v1
s_cmp_ge_u32 s2, {NSORT+NGEMM}
s_cbranch_scc1 K1_PREP
s_cmp_ge_u32 s2, {NSORT}
s_cbranch_scc1 K1_GEMM
""")
    HIST=0; BASE=1024; S=2048; ERAW=S+25600
    D=8; SR=16; K=24; R=32
    a(f"""
s_mul_i32 s48, s2, {EPW*4}
s_mul_i32 s49, s2, {EPW*8}
s_mul_i32 s50, s2, {EPW*16}
v_lshlrev_b32 v3, 2, v0
v_add_u32 v4, 4096, v3
v_add_u32 v5, 8192, v3
v_add_u32 v6, 12288, v3
v_lshlrev_b32 v7, 4, v0
v_mov_b32 v40, 0
s_waitcnt lgkmcnt(0)
""")
    stamp(a,0,True); stamp(a,1)
    srd(a,24,10,E*4);
    for i in range(6): a(f"buffer_load_dword v{D+i}, v{3+i//2}, s[24:27], s48 offen offset:{(i&1)*2048}")
    a("s_cmp_lt_u32 s60, 2\ns_cbranch_scc0 K1S_a")
    a(f"buffer_load_dword v{D+6}, v6, s[24:27], s48 offen")
    a("K1S_a:")
    srd(a,28,8,E*4)
    for i in range(6): a(f"buffer_load_dword v{SR+i}, v{3+i//2}, s[28:31], s48 offen offset:{(i&1)*2048}")
    a("s_cmp_lt_u32 s60, 2\ns_cbranch_scc0 K1S_b")
    a(f"buffer_load_dword v{SR+6}, v6, s[28:31], s48 offen")
    a("K1S_b:")
    srd(a,32,6,E*8)
    a(f"s_lshl_b32 s51, s60, 10\ns_add_u32 s51, s51, {ERAW}")
    for j in range(3):
        a(f"s_add_u32 m0, s51, {j*8192}\ns_add_u32 s52, s49, {j*8192}\nbuffer_load_dwordx4 v7, s[32:35], s52 offen lds")
    a("s_cmp_eq_u32 s60, 0\ns_cbranch_scc0 K1S_c")
    a(f"s_add_u32 m0, s51, {3*8192}\ns_add_u32 s52, s49, {3*8192}\nbuffer_load_dwordx4 v7, s[32:35], s52 offen lds")
    a("K1S_c:")
    a("ds_write_b32 v3, v40")
    srd(a,36,20,NSORT*EPW*16,off=WS_REC)
    srd(a,40,20,NSORT*1024,off=WS_TBL)
    srd(a,44,20,8192,off=WS_STAT)
    a("v_mov_b32 v41, 8\ns_waitcnt lgkmcnt(0)\ns_barrier")
    def keyrank(i):
        a(f"""
v_and_b32 v42, 7, v{D+i}
v_lshrrev_b32 v43, 1, v{D+i}
v_and_b32 v43, 0x7c, v43
v_lshl_or_b32 v{K+i}, v42, 7, v43
ds_add_rtn_u32 v{R+i}, v{K+i}, v41
""")
    a("s_waitcnt vmcnt(9)")
    stamp(a,2)
    for i in range(6): keyrank(i)
    a("s_cmp_lt_u32 s60, 2\ns_cbranch_scc0 K1S_d")
    keyrank(6)
    a("K1S_d:")
    a(f"""
v_lshlrev_b32 v44, 4, v2
s_waitcnt lgkmcnt(0)
s_barrier
ds_read_b128 v[48:51], v44
s_waitcnt lgkmcnt(0)
v_add_u32 v52, v48, v49
v_add3_u32 v52, v52, v50, v51
v_mov_b32 v53, v52
""")
    stamp(a,3)
    dpp_scan(a,"v_add_u32",[53])
    a(f"""
v_sub_u32 v56, v53, v52
v_add_u32 v57, v56, v48
v_add_u32 v58, v57, v49
v_add_u32 v59, v58, v50
ds_write_b128 v44, v[56:59] offset:{BASE}
""")
    for i in range(7): a(f"ds_read_b32 v{K+i}, v{K+i} offset:{BASE}") if i<6 else None
    a("s_cmp_lt_u32 s60, 2\ns_cbranch_scc0 K1S_e")
    a(f"ds_read_b32 v{K+6}, v{K+6} offset:{BASE}")
    a("K1S_e:")
    a("s_cmp_eq_u32 s60, 7\ns_cbranch_scc0 K1S_f")
    for j in range(4):
        a(f"v_lshrrev_b32 v{56+j}, 3, v{56+j}\nv_lshl_or_b32 v{56+j}, v{48+j}, 13, v{56+j}")
    a("s_lshl_b32 s53, s2, 10\nbuffer_store_dwordx4 v[56:59], v44, s[40:43], s53 offen")
    a("K1S_f:")
    a("v_lshlrev_b32 v45, 3, v0\ns_waitcnt vmcnt(3) lgkmcnt(0)")
    stamp(a,4)
    def scat(i):
        a(f"""
v_lshrrev_b32 v42, 8, v{D+i}
v_lshl_or_b32 v{60+2*i}, v42, 25, v{SR+i}
v_add_u32 v{61+2*i}, {i*4096}, v45
v_add_u32 v{K+i}, v{K+i}, v{R+i}
ds_write_b64 v{K+i}, v[{60+2*i}:{61+2*i}] offset:{S}
""")
    for i in range(6): scat(i)
    a("s_cmp_lt_u32 s60, 2\ns_cbranch_scc0 K1S_g")
    scat(6)
    a("K1S_g:")
    a("s_waitcnt vmcnt(0) lgkmcnt(0)\ns_barrier")
    stamp(a,5)
    a("s_cmp_lt_u32 s60, 2\ns_cbranch_scc0 K1S_i")
    a(f"ds_read_b64 v[{82+24}:{83+24}], v45 offset:{S+6*4096}\ns_waitcnt lgkmcnt(0)\nds_read_b64 v[{80+24}:{81+24}], v{83+24} offset:{ERAW}")
    a("K1S_i:")
    for i in range(6): a(f"ds_read_b64 v[{82+4*i}:{83+4*i}], v45 offset:{S+i*4096}")
    for i in range(6):
        a(f"s_waitcnt lgkmcnt(5)")
        a(f"ds_read_b64 v[{80+4*i}:{81+4*i}], v{83+4*i} offset:{ERAW}")
    a("v_mov_b32 v46, 0\ns_mov_b32 s54, 0x7fff7fff")
    def outp(i):
        a(f"""
v_lshrrev_b32 v{83+4*i}, 22, v{82+4*i}
s_add_u32 s52, s50, {i*8192}
v_and_b32 v42, s54, v{80+4*i}
buffer_store_dwordx4 v[{80+4*i}:{83+4*i}], v7, s[36:39], s52 offen
v_and_b32 v43, s54, v{81+4*i}
v_pk_max_u16 v46, v46, v42
v_pk_max_u16 v46, v46, v43
""")
    for i in range(6):
        a(f"s_waitcnt lgkmcnt({5-i})"); outp(i)
    a("s_cmp_lt_u32 s60, 2\ns_cbranch_scc0 K1S_h\ns_waitcnt lgkmcnt(0)")
    outp(6)
    a("K1S_h:")
    a("v_lshlrev_b32 v42, 16, v46\nv_and_b32 v46, 0xffff0000, v46\nv_max_u32 v46, v46, v42")
    dpp_scan(a,"v_max_u32",[46])
    a(f"""
s_lshl_b32 s53, s2, 3
s_add_u32 s53, s53, s60
s_add_u32 s53, s53, {NGEMM*8}
s_lshl_b32 s53, s53, 2
v_mov_b32 v42, 0
v_cmp_eq_u32 vcc, 63, v2
s_and_saveexec_b64 s[56:57], vcc
buffer_store_dword v46, v42, s[44:47], s53 offen
""")
    stamp(a,6)
    if PROF: a("s_waitcnt vmcnt(0)")
    stamp(a,10); stamp(a,11,True); stamp_out(a,0,60)
    a("s_endpgm")
    XL=32768
    a(f"""
K1_GEMM:
s_sub_u32 s61, s2, {NSORT}
s_mul_i32 s48, s61, {RPW*256}
v_lshrrev_b32 v3, 4, v0                 ; 4w+a
v_and_b32 v4, 15, v0                    ; c16 / n
v_lshrrev_b32 v5, 4, v2                 ; a / g
v_and_b32 v6, 15, v3
v_xor_b32 v6, v6, v4
v_lshlrev_b32 v6, 4, v6
v_lshl_or_b32 v6, v3, 8, v6             ; x voffset
v_and_b32 v7, 8, v3                     ; ((w>>1)&1)<<3
v_lshl_or_b32 v7, v5, 1, v7             ; 2f
v_xor_b32 v7, v7, v4
v_lshlrev_b32 v7, 4, v7
v_lshl_or_b32 v7, v3, 8, v7             ; w voffset
s_lshl_b32 s51, s60, 10
s_waitcnt lgkmcnt(0)
""")
    stamp(a,0,True); stamp(a,1)
    srd(a,24,4,N*256); srd(a,28,12,260*256)
    for j in range(3):
        a(f"s_add_u32 m0, s51, {XL+j*8192}\ns_add_u32 s52, s48, {j*8192}\nbuffer_load_dwordx4 v6, s[24:27], s52 offen lds")
    for j in range(4):
        a(f"s_add_u32 m0, s51, {j*8192}\ns_mov_b32 s52, {j*8192}\nbuffer_load_dwordx4 v7, s[28:31], s52 offen lds")
    srd(a,32,20,NGEMM*RPW*256,off=WS_P)
    srd(a,44,20,8192,off=WS_STAT)
    a(f"""
s_lshr_b32 s62, s60, 2
s_and_b32 s63, s60, 3
s_mul_i32 s53, s62, {48*256}
s_add_u32 s53, s53, {XL}
v_lshlrev_b32 v12, 8, v4
v_add_u32 v12, s53, v12
""")
    for s in range(4):
        a(f"v_or_b32 v13, {4*s}, v5\nv_xor_b32 v13, v13, v4\nv_lshl_add_u32 v{8+s}, v13, 4, v12")
    a(f"""
v_lshrrev_b32 v13, 2, v4
v_lshl_add_u32 v16, v5, 3, v13          ; row
v_lshlrev_b32 v16, 8, v16
v_and_b32 v17, 3, v4
v_lshl_add_u32 v16, v17, 3, v16
v_and_b32 v17, 1, v5
v_lshl_or_b32 v13, v17, 2, v13          ; f
s_lshl_b32 s53, s63, 1
v_xor_b32 v17, s53, v13
v_lshl_add_u32 v14, v17, 5, v16
v_xor_b32 v17, 1, v17
v_lshl_add_u32 v15, v17, 5, v16
""")
    a(f"""
s_mul_i32 s53, s62, {48*256}
s_lshl_b32 s54, s63, 6
s_add_u32 s53, s53, s54
v_lshlrev_b32 v18, 10, v5
v_lshl_add_u32 v18, v4, 2, v18
v_add_u32 v18, s53, v18
s_mov_b32 s56, {hex(LOG2E_NEG)}
s_mov_b32 s57, {hex(LOG2E_NEG)}
s_waitcnt vmcnt(0)
s_barrier
""")
    stamp(a,2)
    BF=20; AF=52; AC=100
    for s in range(4):
        for nt in range(2):
            r=BF+8*s+4*nt
            a(f"ds_read_b64_tr_b16 v[{r}:{r+1}], v{14+nt} offset:{s*8192}\nds_read_b64_tr_b16 v[{r+2}:{r+3}], v{14+nt} offset:{s*8192+1024}")
        for T in range(3):
            r=AF+12*s+4*T
            a(f"ds_read_b128 v[{r}:{r+3}], v{8+s} offset:{T*4096}")
        if s>=1:
            sp=s-1
            a("s_waitcnt lgkmcnt(7)")
            for T in range(3):
                for nt in range(2):
                    c=AC+8*T+4*nt
                    a(f"v_mfma_f32_16x16x32_bf16 v[{c}:{c+3}], v[{AF+12*sp+4*T}:{AF+12*sp+4*T+3}], v[{BF+8*sp+4*nt}:{BF+8*sp+4*nt+3}], "+("0" if sp==0 else f"v[{c}:{c+3}]"))
    a("s_waitcnt lgkmcnt(0)")
    sp=3
    for T in range(3):
        for nt in range(2):
            c=AC+8*T+4*nt
            a(f"v_mfma_f32_16x16x32_bf16 v[{c}:{c+3}], v[{AF+12*sp+4*T}:{AF+12*sp+4*T+3}], v[{BF+8*sp+4*nt}:{BF+8*sp+4*nt+3}], v[{c}:{c+3}]")
    a("s_nop 5")
    stamp(a,3)
    for T in range(3):
        if T==2: a("s_nop 1")
        c=AC+8*T
        for j in range(4): a(f"v_pk_mul_f32 v[{c+2*j}:{c+2*j+1}], v[{c+2*j}:{c+2*j+1}], s[56:57]")
        a(f"s_add_u32 s52, s48, {T*4096}")
        for i in range(4):
            a(f"v_cvt_pk_bf16_f32 v{20+4*T+i}, v{c+i}, v{c+4+i}")
            a(f"buffer_store_dword v{20+4*T+i}, v18, s[32:35], s52 offen offset:{i*256}")
    a("s_mov_b32 s54, 0x7fff7fff\nv_mov_b32 v40, 0")
    for r in range(20,32): a(f"v_and_b32 v41, s54, v{r}\nv_pk_max_u16 v40, v40, v41")
    a("v_lshlrev_b32 v41, 16, v40\nv_and_b32 v40, 0xffff0000, v40\nv_max_u32 v19, v40, v41")
    dpp_scan(a,"v_max_u32",[19])
    a(f"""
s_lshl_b32 s53, s61, 3
s_add_u32 s53, s53, s60
s_lshl_b32 s53, s53, 2
v_mov_b32 v42, 0
v_cmp_eq_u32 vcc, 63, v2
s_and_saveexec_b64 s[56:57], vcc
buffer_store_dword v19, v42, s[44:47], s53 offen
""")
    stamp(a,6)
    if PROF: a("s_waitcnt vmcnt(0)")
    stamp(a,10); stamp(a,11,True); stamp_out(a,0,60)
    a("s_endpgm")
    a(f"""
K1_PREP:
s_sub_u32 s61, s2, {NSORT+NGEMM}
v_and_b32 v4, 15, v0                    ; n
v_lshrrev_b32 v5, 4, v2                 ; g
s_waitcnt lgkmcnt(0)
""")
    srd(a,24,12,260*256); srd(a,28,14,256*256); srd(a,32,20,3*32768+2048+16,off=WS_WF)
    a(f"""
s_cmp_eq_u32 s61, 12
s_cbranch_scc1 K1_W3
s_and_b32 s62, s61, 3
s_lshl_b32 s62, s62, 1
s_lshr_b32 s63, s60, 2
s_add_u32 s62, s62, s63                 ; w'
s_and_b32 s63, s60, 3                   ; s
s_lshl_b32 s53, s61, 13
v_lshlrev_b32 v7, 4, v0
s_lshl_b32 s54, s63, 13                 ; s*32 rows*256
s_cmp_ge_u32 s61, 8
s_cbranch_scc1 K1_P2
s_cmp_ge_u32 s61, 4
s_cbranch_scc1 K1_P1
s_lshr_b32 s55, s62, 1
s_lshl_b32 s55, s55, 6
s_and_b32 s56, s62, 1
s_lshl_b32 s56, s56, 4
s_add_u32 s55, s55, s56
s_add_u32 s54, s54, s55
s_add_u32 s54, s54, 32768
v_and_b32 v8, 1, v4
v_lshlrev_b32 v8, 5, v8
v_and_b32 v9, 14, v4
v_add_u32 v8, v8, v9
v_lshl_add_u32 v8, v5, 11, v8
""")
    for j in range(8): a(f"buffer_load_ushort v{16+j}, v8, s[24:27], s54 offen offset:{j*256}")
    a(f"""
s_branch K1_PS
K1_P1:
s_lshl_b32 s55, s62, 5
s_add_u32 s54, s54, s55
v_lshlrev_b32 v8, 1, v4
v_lshl_add_u32 v8, v5, 11, v8
""")
    for j in range(8): a(f"buffer_load_ushort v{16+j}, v8, s[28:31], s54 offen offset:{j*256}")
    a(f"""
s_branch K1_PS
K1_P2:
s_lshl_b32 s55, s62, 5
s_add_u32 s54, s54, s55
s_add_u32 s54, s54, 32768
v_lshlrev_b32 v8, 1, v4
v_lshl_add_u32 v8, v5, 10, v8
v_add_u32 v9, 4096, v8
""")
    for j in range(8): a(f"buffer_load_ushort v{16+j}, v{8+(j&1)}, s[28:31], s54 offen offset:{(j>>1)*256}")
    a(f"""
K1_PS:
s_waitcnt vmcnt(0)
v_lshl_or_b32 v12, v17, 16, v16
v_lshl_or_b32 v13, v19, 16, v18
v_lshl_or_b32 v14, v21, 16, v20
v_lshl_or_b32 v15, v23, 16, v22
buffer_store_dwordx4 v[12:15], v7, s[32:35], s53 offen
s_endpgm
K1_W3:
s_cmp_ge_u32 s60, 4
s_cbranch_scc1 K1_END
v_and_b32 v8, 1, v2
v_lshlrev_b32 v8, 5, v8
v_and_b32 v9, 30, v2
v_add_u32 v8, v8, v9
s_lshl_b32 s54, s60, 6
s_add_u32 s54, s54, 65536
""")
    for k in range(4): a(f"buffer_load_ushort v{12+k}, v8, s[24:27], s54 offen offset:{k*256}")
    a(f"s_mov_b32 s56, {hex(LOG2E_NEG)}\ns_waitcnt vmcnt(0)")
    for k in range(4): a(f"v_lshlrev_b32 v{12+k}, 16, v{12+k}\nv_mul_f32 v{12+k}, s56, v{12+k}")
    a("""
v_cvt_pk_bf16_f32 v16, v12, v13
v_cvt_pk_bf16_f32 v17, v14, v15
v_lshlrev_b32 v20, 16, v16
v_and_b32 v21, 0xffff0000, v16
v_lshlrev_b32 v22, 16, v17
v_and_b32 v23, 0xffff0000, v17
v_sub_f32 v20, v12, v20
v_sub_f32 v21, v13, v21
v_sub_f32 v22, v14, v22
v_sub_f32 v23, v15, v23
v_cvt_pk_bf16_f32 v18, v20, v21
v_cvt_pk_bf16_f32 v19, v22, v23
v_cmp_lt_u32 vcc, 31, v2
v_add_f32 v24, abs(v12), abs(v13)
v_add_f32 v25, abs(v14), abs(v15)
v_cndmask_b32 v16, v16, v18, vcc
v_cndmask_b32 v17, v17, v19, vcc
v_add_f32 v24, v24, v25
v_lshlrev_b32 v7, 3, v0
s_mov_b32 s53, 98304
buffer_store_dwordx2 v[16:17], v7, s[32:35], s53 offen
v_and_b32 v24, 0x7fffffff, v24
""")
    dpp_scan(a,"v_max_u32",[24])
    a(f"""
s_lshl_b32 s53, s60, 2
s_add_u32 s53, s53, {3*32768+2048}
v_mov_b32 v42, 0
v_cmp_eq_u32 vcc, 63, v2
s_and_saveexec_b64 s[56:57], vcc
buffer_store_dword v24, v42, s[32:35], s53 offen
K1_END:
s_endpgm
""")
    return a.text()
```

```python
from common import *
X=int(os.environ.get('X','0'))
CNT=0; MISC=256; CM=512; OH0=1024; OH1=1600
Q2=2304; QS=52*128
AGG=Q2+4*QS
REC=AGG+50*512
GBUF=REC+32768
K2_LDS=GBUF+65536
ONE2=0x3F803F80
JUNK=49*512
NULLW2=0xFFFF|(JUNK<<16)
NULLY=512
ID0=4; ID1=8; B3=12; A=28; Z=[60,76]; A3=92; EE=96; NN=112; DD=116; GG=120; AG=124; NO=128
IDX=132; AR=148; RB=156; SB=157; HB=158; VY=159; OHC=160; VL=161; AGC=162
WU2=164; UA=180; W2F=196; WU1=212; RK=228; TT=236; QA=240; RC=96; XF=28
sP=24; sX=28; sT=32; sR=36; sW=40; sS=44; sO=48
sWV=60; sB=61; sNN=62; sT0=63; sNT=64; sBUF=65; sQ=66; sW8=67; sMAG=68
sISC=70
sLSB=72
sRND=74; sMAXC=75; sC3=76
sTMP=80
sEX=52

def mfma32(d,x,y,c): return f"v_mfma_f32_32x32x16_bf16 v[{d}:{d+15}], v[{x}:{x+3}], v[{y}:{y+3}], "+("0" if c is None else f"v[{c}:{c+15}]")
def mfma16(d,x,y,c): return f"v_mfma_f32_16x16x32_bf16 v[{d}:{d+3}], v[{x}:{x+3}], v[{y}:{y+3}], "+("0" if c is None else f"v[{c}:{c+3}]")
def P2(r): return f"v[{r}:{r+1}]"

def init_rec(a):
    a(f"""
v_lshlrev_b32 v1, 4, v0
v_add_u32 v1, {REC}, v1
v_mov_b32 v{QA}, 0
v_mov_b32 v{QA+1}, 0
v_mov_b32 v{QA+2}, {hex(NULLW2)}
v_mov_b32 v{QA+3}, {NULLY}
""")
    for j in range(4): a(f"ds_write_b128 v1, v[{QA}:{QA+3}] offset:{j*8192}")

def load_recs(a,lab,nslots,slow):
    pass

def gen_k2():
    a=Asm()
    sM=90
    a(f"""
k2_kernel:
s_cmp_ge_u32 s2, 256
s_cbranch_scc1 K2_END
s_load_dwordx16 s[4:19], s[0:1], 0
s_load_dwordx2 s[20:21], s[0:1], 64
v_lshrrev_b32 v1, 6, v0
v_and_b32 v{VL}, 63, v0
v_readfirstlane_b32 s{sWV}, v1
s_and_b32 s80, s2, 7
s_lshl_b32 s80, s80, 5
s_lshr_b32 s81, s2, 3
s_or_b32 s80, s80, s81
s_lshl_b32 s80, s80, 2                  ; key*4
s_cmp_lt_u32 s2, {N-256*48}
s_cselect_b32 s{sNN}, 49, 48
v_lshrrev_b32 v2, 4, v0                 ; 4w+a
v_lshlrev_b32 v3, 10, v2
s_waitcnt lgkmcnt(0)
""")
    stamp(a,0,True); stamp(a,1)
    srd(a,sT,20,NSORT*1024,off=WS_TBL)
    for i in range(4):
        a(f"s_add_u32 s81, s80, {i*32768}\nbuffer_load_dword v{TT+i}, v3, s[{sT}:{sT+3}], s81 offen")
    a(f"s_add_u32 s82, s20, {hex(WS_C3)}\ns_addc_u32 s83, s21, 0\ns_load_dwordx4 s[{sC3}:{sC3+3}], s[82:83], 0")
    srd(a,sX,4,N,stride=256)
    a(f"""
v_and_b32 v1, 15, v0
v_and_b32 v{AR+1}, 15, v2
v_xor_b32 v{AR+1}, v{AR+1}, v1
v_lshlrev_b32 v{AR+1}, 4, v{AR+1}
v_mov_b32 v{AR+3}, v{AR+1}
v_lshl_add_u32 v{AR}, v2, 8, s2
v_add_u32 v{AR+2}, 8192, v{AR}
s_lshl_b32 s{sBUF}, s{sWV}, 10
s_add_u32 m0, s{sBUF}, {GBUF}
s_nop 0
buffer_load_dwordx4 v[{AR}:{AR+1}], s[{sX}:{sX+3}], 0 idxen offen lds
s_add_u32 m0, s{sBUF}, {GBUF+8192}
s_nop 0
buffer_load_dwordx4 v[{AR+2}:{AR+3}], s[{sX}:{sX+3}], 0 idxen offen lds
""")
    srd(a,sW,20,3*32768+2048,off=WS_WF)
    a(f"v_lshlrev_b32 v{AR+4}, 4, v{VL}\ns_lshl_b32 s84, s{sWV}, 12")
    for s in range(4): a(f"buffer_load_dwordx4 v[{W2F+4*s}:{W2F+4*s+3}], v{AR+4}, s[{sW}:{sW+3}], s84 offen offset:{s*1024}")
    a(f"v_lshlrev_b32 v{AR+5}, 3, v{VL}\ns_mov_b32 s85, 98304")
    for q in range(4): a(f"buffer_load_dwordx2 v[{B3+4*q+2}:{B3+4*q+3}], v{AR+5}, s[{sW}:{sW+3}], s85 offen offset:{q*512}")
    srd(a,sS,20,8192,off=WS_STAT)
    a(f"v_lshlrev_b32 v{AR+6}, 4, v0\nbuffer_load_dwordx4 v[{NO}:{NO+3}], v{AR+6}, s[{sS}:{sS+3}], 0 offen")
    srd(a,sR,20,NSORT*EPW*16,off=WS_REC)
    srd(a,sP,20,N,off=WS_P,stride=256)
    srd(a,sO,16,N*256)
    init_rec(a)
    a(f"""
v_mov_b32 v{QA+4}, 0
v_mov_b32 v{QA+5}, 0
v_mov_b32 v{QA+6}, 0
v_mov_b32 v{QA+7}, 0
""")
    for j in range(3): a(f"ds_write_b128 v{AR+6}, v[{QA+4}:{QA+7}] offset:{AGG+j*8192}")
    a(f"""
s_cmp_eq_u32 s{sWV}, 0
s_cbranch_scc0 K2_i1
ds_write_b128 v{AR+6}, v[{QA+4}:{QA+7}] offset:{AGG+3*8192}
K2_i1:
v_mov_b32 v1, {hex(ONE2)}
""")
    for j,t in enumerate([64,65,100,101]):
        a(f"v_cmp_eq_u32 vcc, {t}, v0\ns_nop 1\nv_cndmask_b32 v{QA+8+j}, 0, v1, vcc")
    a(f"""
v_cmp_gt_u32 vcc, 144, v0
s_and_saveexec_b64 s[{sEX}:{sEX+1}], vcc
ds_write_b128 v{AR+6}, v[{QA+8}:{QA+11}]
s_mov_b64 exec, s[{sEX}:{sEX+1}]
""")
    def recs(slow):
        ns=4 if slow else 8
        a(f"v_and_b32 v1, 15, v0\nv_lshrrev_b32 v2, 4, v0")
        if slow:
            a(f"v_cmp_gt_u32 s[86:87], 8, v1\ns_lshl_b32 s80, s{sRND}, 3\nv_add_u32 v1, s80, v1")
        a(f"v_mul_u32_u24 v2, {EPW}, v2\nv_add_u32 v2, v2, v1")
        for i in range(ns):
            g=i&3
            if i==4: a("v_add_u32 v1, 16, v1\nv_add_u32 v2, 16, v2")
            a(f"""
v_lshrrev_b32 v3, 16, v{TT+g}
v_cmp_lt_u32 vcc, v1, v3
v_and_b32 v3, 0xffff, v{TT+g}
v_add_lshl_u32 v3, v3, v2, 4
""")
            if slow: a("s_and_b64 vcc, vcc, s[86:87]\ns_nop 1")
            a(f"""
v_cndmask_b32 v{RK+i}, 2.0, v3, vcc
s_mov_b32 s80, {g*32*EPW*16}
buffer_load_dwordx4 v[{RC+4*i}:{RC+4*i+3}], v{RK+i}, s[{sR}:{sR+3}], s80 offen
""")
        return ns
    def hist(ns,lab,extra):
        a("v_mov_b32 v1, 16")
        for i in range(ns):
            a(f"""
v_cmp_ne_u32 vcc, 2.0, v{RK+i}
s_waitcnt vmcnt({ns-1-i+extra})
v_lshrrev_b32 v{IDX+2*i}, 23, v{RC+4*i+2}
s_and_saveexec_b64 s[{sEX}:{sEX+1}], vcc
ds_add_rtn_u32 v{RK+i}, v{IDX+2*i}, v1
s_mov_b64 exec, s[{sEX}:{sEX+1}]
""")
    def scan():
        a(f"""
v_lshlrev_b32 v1, 2, v{VL}
ds_read_b32 v3, v1
ds_read_b128 v[{QA}:{QA+3}], v{QA+4} offset:{MISC}
v_cmp_gt_u32 vcc, s{sNN}, v{VL}
s_waitcnt lgkmcnt(1)
v_add_u32 v3, 48, v3
v_and_b32 v3, 0xffffffc0, v3
v_max_u32 v3, 192, v3
v_cndmask_b32 v3, 0, v3, vcc
v_mov_b32 v2, v3
""")
        dpp_scan(a,"v_add_u32",[2])
        a(f"""
v_readlane_b32 s80, v2, 63
v_sub_u32 v2, v2, v3
v_add_u32 v2, {REC}, v2
s_add_u32 s{sNT}, s80, 511
s_lshr_b32 s{sNT}, s{sNT}, 9
""")
    def scatter(ns,lab):
        for i in range(ns): a(f"ds_bpermute_b32 v{IDX+2*i}, v{IDX+2*i}, v2")
        a(f"""
s_cmp_eq_u32 s{sWV}, 7
s_cbranch_scc0 {lab}
v_cmp_gt_u32 vcc, s{sNN}, v{VL}
v_lshlrev_b32 v{QA+5}, 9, v{VL}
v_lshrrev_b32 v3, 6, v3
v_mul_lo_u32 v3, v3, s{sMAG}
ds_write_b32 v1, v3 offset:{CM}
s_and_saveexec_b64 s[{sEX}:{sEX+1}], vcc
ds_write_b16 v2, v{QA+5} offset:10
ds_write_b16 v2, v{QA+5} offset:74
ds_write_b16 v2, v{QA+5} offset:138
s_mov_b64 exec, s[{sEX}:{sEX+1}]
{lab}:
s_waitcnt lgkmcnt(0)
""")
        for i in range(ns):
            a(f"""
v_cmp_ne_u32 vcc, 2.0, v{RK+i}
v_add_u32 v{IDX+2*i}, v{IDX+2*i}, v{RK+i}
s_and_saveexec_b64 s[{sEX}:{sEX+1}], vcc
ds_write_b128 v{IDX+2*i}, v[{RC+4*i}:{RC+4*i+3}]
s_mov_b64 exec, s[{sEX}:{sEX+1}]
""")
    a("s_waitcnt vmcnt(11)")
    stamp(a,2)
    recs(False)
    a(f"s_add_u32 s84, s84, 32768")
    for s in range(4): a(f"buffer_load_dwordx4 v[{WU1+4*s}:{WU1+4*s+3}], v{AR+4}, s[{sW}:{sW+3}], s84 offen offset:{s*1024}")
    a(f"s_add_u32 s84, s84, 32768")
    for s in range(4): a(f"buffer_load_dwordx4 v[{WU2+4*s}:{WU2+4*s+3}], v{AR+4}, s[{sW}:{sW+3}], s84 offen offset:{s*1024}")
    def fragaddr():
        a(f"""
v_and_b32 v1, 15, v0
v_lshrrev_b32 v2, 4, v{VL}
v_lshlrev_b32 v3, 8, v1
v_add_u32 v3, {GBUF}, v3
""")
        for s in range(4):
            a(f"v_or_b32 v{AR+s}, {4*s}, v2\nv_xor_b32 v{AR+s}, v{AR+s}, v1\nv_lshl_add_u32 v{AR+s}, v{AR+s}, 4, v3")
    fragaddr()
    a(f"""
s_lshr_b32 s80, s{sWV}, 1
s_mul_i32 s80, s80, {QS}
s_and_b32 s81, s{sWV}, 1
s_lshl_b32 s81, s81, 6
s_add_u32 s80, s80, s81
s_add_u32 s80, s80, {Q2}
v_lshlrev_b32 v{AR+5}, 9, v2
v_lshl_add_u32 v{AR+5}, v1, 2, v{AR+5}
v_add_u32 v{AR+5}, s80, v{AR+5}
s_waitcnt vmcnt(16) lgkmcnt(0)
s_barrier
""")
    stamp(a,3)
    for T in range(4):
        for s in range(4): a(f"ds_read_b128 v[{XF+16*T+4*s}:{XF+16*T+4*s+3}], v{AR+s} offset:{T*4096}")
        if T==2:
            a("s_waitcnt lgkmcnt(8)")
            for s in range(4): a(mfma16(QA,XF+4*s,W2F+4*s,None if s==0 else QA))
    a(f"""
v_max_u32 v{NO}, v{NO}, v{NO+1}
v_max3_u32 v{NO}, v{NO}, v{NO+2}, v{NO+3}
v_cmp_gt_u32 vcc, {NGEMM*2}, v0
v_max_u32 v{NO+3}, v{TT}, v{TT+1}
v_max3_u32 v{NO+3}, v{NO+3}, v{TT+2}, v{TT+3}
v_cndmask_b32 v{NO+1}, v{NO}, 0, vcc
v_cndmask_b32 v{NO}, 0, v{NO}, vcc
v_lshrrev_b32 v{NO+3}, 16, v{NO+3}
""")
    for T in range(1,4):
        a(f"s_waitcnt lgkmcnt({4*(3-T)})")
        for s in range(4): a(mfma16(QA+4*T,XF+16*T+4*s,W2F+4*s,None if s==0 else QA+4*T))
    a(f"s_mov_b32 s80, {hex(LOG2E_NEG)}\ns_mov_b32 s81, {hex(LOG2E_NEG)}\ns_mov_b32 s82, 0x7fffffff\nv_mov_b32 v{NO+2}, 0")
    for T in range(4):
        if T==3: a(f"v_cmp_gt_u32 vcc, 16, v{VL}\ns_and_saveexec_b64 s[{sEX}:{sEX+1}], vcc")
        c=QA+4*T
        a(f"v_pk_mul_f32 {P2(c)}, {P2(c)}, s[80:81]\nv_pk_mul_f32 {P2(c+2)}, {P2(c+2)}, s[80:81]")
        for i in range(4):
            a(f"""
v_and_b32 v1, 0xffff0000, v{c+i}
v_and_b32 v3, s82, v{c+i}
v_sub_f32 v2, v{c+i}, v1
v_max_u32 v{NO+2}, v{NO+2}, v3
v_cvt_pk_bf16_f32 v{c+i}, v2, v1
ds_write_b32 v{AR+5}, v{c+i} offset:{T*2048+i*128}
""")
    a(f"s_mov_b64 exec, s[{sEX}:{sEX+1}]")
    dpp_scan(a,"v_max_u32",[NO,NO+1,NO+2,NO+3])
    a(f"""
v_mov_b32 v{QA+4}, 0
v_cmp_eq_u32 vcc, 63, v{VL}
s_and_saveexec_b64 s[{sEX}:{sEX+1}], vcc
""")
    for j in range(4): a(f"ds_max_u32 v{QA+4}, v{NO+j} offset:{MISC+4*j}")
    a(f"s_mov_b64 exec, s[{sEX}:{sEX+1}]")
    a(f"""
v_and_b32 v1, 31, v{VL}                 ; rho
v_lshrrev_b32 v2, 5, v{VL}              ; h
; slot = 16 b4 + 8 b0 + 4 b2 + 2 b3 + b1
v_and_b32 v3, 20, v1
v_and_b32 v{RB}, 1, v1
v_lshl_or_b32 v3, v{RB}, 3, v3
v_bfe_u32 v{RB}, v1, 3, 1
v_lshl_or_b32 v3, v{RB}, 1, v3
v_bfe_u32 v{RB}, v1, 1, 1
v_or_b32 v3, v3, v{RB}                  ; slot
s_lshl_b32 s{sBUF}, s{sWV}, 13
s_add_u32 s{sBUF}, s{sBUF}, {GBUF}
s_lshl_b32 s80, s{sWV}, 9
s_add_u32 s80, s80, {REC}
v_lshl_add_u32 v{RB}, v3, 4, s80
v_lshl_add_u32 v{HB}, v2, 6, s80
v_lshl_add_u32 v3, v3, 8, s{sBUF}
v_and_b32 v{SB}, 15, v1
""")
    for t in range(8):
        a(f"v_or_b32 v{AR+t}, {2*t}, v2\nv_xor_b32 v{AR+t}, v{AR+t}, v{SB}\nv_lshl_add_u32 v{AR+t}, v{AR+t}, 4, v3")
    a(f"""
v_mul_u32_u24 v{OHC}, {OH1-OH0}, v2
v_lshlrev_b32 v{AGC}, 2, v1
v_add_u32 v{AGC}, {AGG}, v{AGC}
v_mov_b32 v{AGC+1}, v{AGC}
v_lshlrev_b32 v3, 3, v2
v_sub_u32 v3, v1, v3                    ; n - 8h
v_and_b32 v{VY}, 1, v3
v_lshlrev_b32 v{VY}, 4, v{VY}
v_mov_b32 v2, 0x3f80
v_lshlrev_b32 v{VY}, v{VY}, v2          ; 0x3f80 << 16*(odd)
v_lshrrev_b32 v3, 1, v3
""")
    for s in range(2):
        for j in range(4):
            a(f"v_cmp_eq_u32 vcc, {8*s+j}, v3\ns_nop 1\nv_cndmask_b32 v{ID0+4*s+j}, 0, v{VY}, vcc")
    a(f"""
v_lshrrev_b32 v2, 4, v{VL}              ; a
v_and_b32 v1, 15, v{VL}
v_and_b32 v3, 2, v2
v_lshlrev_b32 v3, 2, v3
v_xor_b32 v1, v1, v3
v_and_b32 v3, 1, v2
v_lshlrev_b32 v3, 1, v3
v_xor_b32 v1, v1, v3
v_lshlrev_b32 v1, 4, v1
v_lshl_add_u32 v{SB}, v2, 4, s80
""")
    for i in range(8): a(f"v_xor_b32 v{IDX+2*i+1}, {(4*(i&1)+((i>>1)&1))*16}, v1")
    stamp(a,4)
    hist(8,"h",8)
    a("s_waitcnt lgkmcnt(0)\ns_barrier")
    stamp(a,5)
    scan()
    a(f"""
s_max_u32 s{sC3}, s{sC3}, s{sC3+1}
s_max_u32 s{sC3+2}, s{sC3+2}, s{sC3+3}
s_max_u32 s{sC3}, s{sC3}, s{sC3+2}
s_waitcnt lgkmcnt(0)
v_add_f32 v{QA}, v{QA}, v{QA+2}
v_fma_f32 v{QA}, v{QA+1}, s{sC3}, v{QA}
v_mul_f32 v{QA}, 0x40820000, v{QA}       ; *4.0625
v_readfirstlane_b32 s{sMAXC}, v{QA+3}
v_readfirstlane_b32 s81, v{QA}
s_nop 3
s_and_b32 s81, s81, 0x7fffffff
s_cmp_gt_u32 s81, 0x42f00000
s_cbranch_scc1 K2_SLOW
s_cmp_gt_u32 s{sMAXC}, 32
s_cbranch_scc1 K2_SLOW
s_cmp_gt_u32 s80, 32768
s_cbranch_scc1 K2_SLOW
s_max_u32 s81, s81, 0x35800000           ; >= 2^-20
s_and_b32 s81, s81, 0x7f800000
s_add_u32 s{sMAG}, s81, 0x01400000       ; 1.5*2^(ex+2)
s_mov_b32 s{sMAG+1}, s{sMAG}
s_sub_u32 s{sLSB}, s81, {hex(21<<23)}    ; 2^(ex+2-23)
s_mov_b32 s{sLSB+1}, s{sLSB}
s_sub_u32 s82, {hex(127<<23)}, s{sLSB}
s_add_u32 s{sISC}, s82, {hex(LOG2E_NEG)}
s_mov_b32 s{sISC+1}, s{sISC}
""")
    scatter(8,"K2_sc1")
    a("s_waitcnt lgkmcnt(0)\ns_barrier")
    stamp(a,6)
    def ugemm():
        for T in range(4):
            for s in range(4):
                x,y=(WU1+4*s,XF+16*T+4*s) if T<3 else (XF+16*T+4*s,WU1+4*s)
                a(mfma16(UA+4*T,x,y,None if s==0 else UA+4*T))
        a("s_nop 7")
        for j in range(8): a(f"v_pk_mul_f32 {P2(UA+2*j)}, {P2(UA+2*j)}, s[{sISC}:{sISC+1}]")
    def rd_idx():
        for i in range(8): a(f"ds_read_u16 v{IDX+2*i}, v{SB} offset:{64*i+8}")
    def rd_no():
        for u in range(2):
            for par in range(2): a(f"ds_read_u16 v{NO+2*u+par}, v{HB} offset:{256*u+128*par+10}")
        a(f"ds_read_b32 v{VY}, v{RB} offset:12")
    def dma():
        L=[]
        for i in range(8):
            L.append((f"s_mov_b32 m0, s{sBUF}" if i==0 else "s_add_u32 m0, m0, 1024")+f"\ns_nop 0\nbuffer_load_dwordx4 {P2(IDX+2*i)}, s[{sP}:{sP+3}], 0 idxen offen lds")
        return L
    def win():
        a(f"""
v_readfirstlane_b32 s{sQ}, v{NO}
s_nop 3
s_lshr_b32 s{sW8}, s{sQ}, 6
s_sub_u32 s{sW8}, 0, s{sW8}
s_lshr_b32 m0, s{sQ}, 2
v_add3_u32 v{VY}, v{VY}, v{OHC}, s{sW8}
""")
    def rd_b3(q): return f"ds_read_addtid_b32 v{B3+4*q} offset:{Q2+q*QS}\nds_read_addtid_b32 v{B3+4*q+1} offset:{Q2+q*QS+256}"
    rd_a3=f"ds_read_b64 {P2(A3)}, v{VY} offset:{OH0}\nds_read_b64 {P2(A3+2)}, v{RB}"
    def rd_a(t): return f"ds_read_b128 v[{A+4*t}:{A+4*t+3}], v{AR+t}"
    a(f"""
s_mov_b32 s{sT0}, s{sWV}
s_cmp_lt_u32 s{sT0}, s{sNT}
s_cbranch_scc1 K2_go
s_waitcnt vmcnt(0)
""")
    ugemm()
    a("s_branch K2_EPI\nK2_go:")
    rd_idx(); rd_no()
    a("s_waitcnt lgkmcnt(5)")
    for x in dma(): a(x)
    a(f"v_add_u32 v{SB}, 4096, v{SB}\ns_waitcnt lgkmcnt(0)")
    win()
    for q in range(4): a(rd_b3(q))
    a(rd_a3)
    a("s_waitcnt vmcnt(8)")
    ugemm()
    rd_idx()
    a(f"""
v_add_u32 v{SB}, 4096, v{SB}
v_add_u32 v{RB}, 4096, v{RB}
v_add_u32 v{HB}, 4096, v{HB}
""")
    for j in range(4): a(f"v_mov_b32 v{NN+j}, 0\nv_mov_b32 v{DD+j}, 1.0\nv_add_u32 v{AG+j}, {JUNK}, v{AGC}")
    a("s_waitcnt vmcnt(0)")
    for t in range(8): a(rd_a(t))
    a(f"""
s_waitcnt lgkmcnt(0)
s_add_u32 s80, s{sT0}, 8
s_cmp_lt_u32 s80, s{sNT}
s_cbranch_scc0 K2_p1
""")
    for x in dma(): a(x)
    a("K2_p1:")
    stamp(a,7)
    a(mfma32(Z[0],A3,B3,None)); a(mfma32(Z[0],A,ID0,Z[0])); a(mfma32(Z[0],A+4,ID1,Z[0]))
    a("s_nop 7")
    def finals(qprev):
        for u in range(2): a(f"v_pk_fma_f32 {P2(GG+2*u)}, {P2(NN+2*u)}, {P2(DD+2*u)}, s[{sMAG}:{sMAG+1}]")
        if not X&2:
            for j in range(4): a(f"ds_add_u32 v{AG+j}, v{GG+j} offset:{qprev*128}")
    def ex(zc,r): return f"v_exp_f32 v{EE+r}, v{zc+r}"
    a(".p2align 6\nK2_LOOP:")
    for q in range(4):
        zc=Z[q&1]; zn=Z[(q+1)&1]; qn=(q+1)&3
        ms=[(A3,B3+4*qn),(A+8*qn,ID0),(A+8*qn+4,ID1)]
        if q==3: ms=[ms[1],ms[2],ms[0]]
        if q==1:
            a("s_waitcnt lgkmcnt(0)"); win(); a(rd_b3(0)); a(rd_b3(1))
        if q==2:
            a("s_waitcnt vmcnt(0)")
            for t in range(6): a(rd_a(t))
        if q==3:
            a(f"s_waitcnt lgkmcnt(0)\ns_add_u32 s80, s{sT0}, 16\ns_cmp_lt_u32 s80, s{sNT}\ns_cbranch_scc0 K2_l1")
            if not X&1:
                for x in dma(): a(x)
            a("K2_l1:")
        a(mfma32(zn,ms[0][0],ms[0][1],None))
        for j in range(4): a(f"v_rcp_f32 v{DD+j}, v{DD+j}")
        if q==1: a(rd_b3(2))
        if q==2: a(rd_b3(3)); a(rd_a3)
        a(mfma32(zn,ms[1][0],ms[1][1],zn))
        for r in (0,1,2,3): a(ex(zc,r))
        a(mfma32(zn,ms[2][0],ms[2][1],zn))
        for r in (8,9,10,11): a(ex(zc,r))
        if q==2: a(rd_a(6)); a(rd_a(7))
        finals((q-1)&3)
        if q==0:
            for u in range(2): a(f"v_pk_add_f32 {P2(AG+2*u)}, {P2(NO+2*u)}, {P2(AGC)}")
            rd_no()
            if not X&4: rd_idx()
        pend=[4,5,12,13,6,7,14,15]
        seq=[]
        for u in range(2): seq.append(f"v_pk_add_f32 {P2(DD+2*u)}, {P2(EE+8*u)}, 1.0 op_sel_hi:[1,0]")
        for m in range(1,4):
            for u in range(2):
                src=(zc+8*u) if m==1 else NN+2*u
                seq.append(f"v_pk_fma_f32 {P2(NN+2*u)}, {P2(src)}, {P2(EE+8*u+2*m)}, {P2(src)}")
            for u in range(2): seq.append(f"v_pk_fma_f32 {P2(NN+2*u)}, {P2(zc+8*u+2*m)}, {P2(DD+2*u)}, {P2(NN+2*u)}")
            for u in range(2): seq.append(f"v_pk_fma_f32 {P2(DD+2*u)}, {P2(DD+2*u)}, {P2(EE+8*u+2*m)}, {P2(DD+2*u)}")
        slots={0:4,1:5,2:12,3:13,5:6,7:7,9:14,11:15}
        for k,x in enumerate(seq):
            a(x)
            if k in slots: a(ex(zc,slots[k]))
        if q==2: a(f"v_add_u32 v{RB}, 4096, v{RB}")
        if q==1: a(f"v_add_u32 v{SB}, 4096, v{SB}\nv_add_u32 v{HB}, 4096, v{HB}")
    a(f"""
s_add_u32 s{sT0}, s{sT0}, 8
s_cmp_lt_u32 s{sT0}, s{sNT}
s_cbranch_scc1 K2_LOOP
""")
    for j in range(4): a(f"v_rcp_f32 v{DD+j}, v{DD+j}")
    a("s_nop 0")
    finals(3)
    AGB=GBUF; OST=GBUF+16384
    def convert(slow):
        a(f"""
v_lshlrev_b32 v1, 4, v0
v_lshrrev_b32 v2, 5, v0                 ; node&15
v_lshlrev_b32 v3, 2, v2
s_waitcnt vmcnt(0) lgkmcnt(0)
s_barrier
""")
        for j in range(4):
            a(f"ds_read_b128 v[{A+4*j}:{A+4*j+3}], v1 offset:{AGG+j*8192}")
            if not slow: a(f"ds_read_b32 v{A+16+j}, v3 offset:{CM+64*j}")
        a(f"""
v_bfe_u32 v3, v0, 1, 4
v_xor_b32 v3, v3, v2
v_lshlrev_b32 v3, 4, v3
v_lshl_add_u32 v3, v2, 8, v3
v_and_b32 v1, 1, v0
v_lshl_add_u32 v3, v1, 3, v3
v_add_u32 v3, {AGB}, v3
""")
        for j in range(4):
            a(f"s_waitcnt lgkmcnt({3 if slow else 6-j})")
            if not slow:
                for i in range(4): a(f"v_sub_u32 v{A+4*j+i}, v{A+4*j+i}, v{A+16+j}")
                for i in range(4): a(f"v_cvt_f32_i32 v{A+4*j+i}, v{A+4*j+i}")
            a(f"v_cvt_pk_bf16_f32 v{A+4*j}, v{A+4*j}, v{A+4*j+1}\nv_cvt_pk_bf16_f32 v{A+4*j+1}, v{A+4*j+2}, v{A+4*j+3}")
            a(f"ds_write_b64 v3, {P2(A+4*j)} offset:{j*4096}")
    a("K2_EPI:")
    stamp(a,8)
    convert(False)
    a("K2_FIN:")
    stamp(a,9)
    fragaddr()
    a(f"""
s_lshl_b32 s80, s{sWV}, 1
v_lshrrev_b32 v{AR+4}, 1, v2
v_or_b32 v{AR+4}, s80, v{AR+4}
v_xor_b32 v{AR+4}, v{AR+4}, v1
v_lshl_add_u32 v{AR+4}, v{AR+4}, 4, v3
v_and_b32 v2, 1, v2
v_lshl_add_u32 v{AR+4}, v2, 3, v{AR+4}
v_lshlrev_b32 v{AR+5}, 1, v1
s_waitcnt lgkmcnt(0)
s_barrier
""")
    for T in range(4):
        for s in range(4): a(f"ds_read_b128 v[{XF+16*T+4*s}:{XF+16*T+4*s+3}], v{AR+s} offset:{T*4096}")
        if T==2:
            a("s_waitcnt lgkmcnt(8)")
            for s in range(4): a(mfma16(UA,WU2+4*s,XF+4*s,UA))
    for T in range(1,4):
        a(f"s_waitcnt lgkmcnt({4*(3-T)})")
        for s in range(4):
            x,y=(WU2+4*s,XF+16*T+4*s) if T<3 else (XF+16*T+4*s,WU2+4*s)
            a(mfma16(UA+4*T,x,y,UA+4*T))
    for T in range(3):
        c=UA+4*T; e=EE+4*T
        a(f"v_pk_mul_f32 {P2(e)}, {P2(c)}, s[{sLSB}:{sLSB+1}]\nv_pk_mul_f32 {P2(e+2)}, {P2(c+2)}, s[{sLSB}:{sLSB+1}]")
        for i in range(4): a(f"v_exp_f32 v{e+i}, v{e+i}")
        a("s_nop 0")
        a(f"v_pk_fma_f32 {P2(e)}, {P2(e)}, s[{sISC}:{sISC+1}], s[{sISC}:{sISC+1}]\nv_pk_fma_f32 {P2(e+2)}, {P2(e+2)}, s[{sISC}:{sISC+1}], s[{sISC}:{sISC+1}]")
        for i in range(4): a(f"v_rcp_f32 v{e+i}, v{e+i}")
        a("s_nop 0")
        a(f"v_pk_mul_f32 {P2(e)}, {P2(e)}, {P2(c)}\nv_pk_mul_f32 {P2(e+2)}, {P2(e+2)}, {P2(c+2)}")
        a(f"v_cvt_pk_bf16_f32 v{e}, v{e}, v{e+1}\nv_cvt_pk_bf16_f32 v{e+1}, v{e+2}, v{e+3}")
        a(f"ds_write_b64 v{AR+4}, {P2(e)} offset:{16384+T*4096}")
    c=UA+12; e=EE+12
    a(f"""
v_mul_f32 v{e}, s{sLSB}, v{c}
v_exp_f32 v{e}, v{e}
s_add_u32 s80, s2, {48*256}
v_fma_f32 v{e}, v{e}, s{sISC}, s{sISC}
v_rcp_f32 v{e}, v{e}
s_lshl_b32 s80, s80, 8
v_mul_f32 v{e}, v{e}, v{c}
s_lshl_b32 s81, s{sWV}, 5
s_add_u32 s80, s80, s81
v_cvt_pk_bf16_f32 v{e}, v{e}, v{e}
v_cmp_gt_u32 vcc, 16, v{VL}
s_and_saveexec_b64 s[{sEX}:{sEX+1}], vcc
buffer_store_short v{e}, v{AR+5}, s[{sO}:{sO+3}], s80 offen
s_mov_b64 exec, s[{sEX}:{sEX+1}]
v_lshlrev_b32 v1, 4, v0
v_add_u32 v1, {OST}, v1
v_lshrrev_b32 v2, 4, v0                 ; node (0..31)
v_xor_b32 v3, v2, v0
v_and_b32 v3, 15, v3
v_lshlrev_b32 v3, 4, v3
v_lshl_add_u32 v3, v2, 16, v3
s_lshl_b32 s80, s2, 8
s_add_u32 s81, s80, {32*65536}
s_waitcnt lgkmcnt(0)
s_barrier
ds_read_b128 v[{A}:{A+3}], v1
s_cmp_lt_u32 s{sWV}, 4
s_cbranch_scc0 K2_e1
ds_read_b128 v[{A+4}:{A+7}], v1 offset:8192
s_waitcnt lgkmcnt(0)
buffer_store_dwordx4 v[{A+4}:{A+7}], v3, s[{sO}:{sO+3}], s81 offen
K2_e1:
s_waitcnt lgkmcnt(0)
buffer_store_dwordx4 v[{A}:{A+3}], v3, s[{sO}:{sO+3}], s80 offen
""")
    if PROF: a("s_waitcnt vmcnt(0)")
    stamp(a,10); stamp(a,11,True)
    stamp_out(a,1,sWV)
    a("K2_END:\ns_endpgm")
    a(f"""
K2_SLOW:
s_mov_b32 s{sMAG}, 0
s_mov_b32 s{sLSB}, 1.0
s_mov_b32 s{sLSB+1}, 1.0
s_mov_b32 s{sISC}, {hex(LOG2E_NEG)}
s_mov_b32 s{sISC+1}, {hex(LOG2E_NEG)}
s_mov_b32 s{sRND}, 0
s_waitcnt vmcnt(0)
""")
    ugemm()
    a(f"""
v_mov_b32 v{WU1}, v{RB}
v_mov_b32 v{WU1+1}, v{SB}
v_mov_b32 v{WU1+2}, v{HB}
K2_SR:
s_lshl_b32 s80, s{sRND}, 3
s_cmp_lt_u32 s80, s{sMAXC}
s_cbranch_scc0 K2_SE
s_waitcnt lgkmcnt(0)
s_barrier
""")
    init_rec(a)
    a(f"v_lshlrev_b32 v1, 2, v{VL}\nds_write_b32 v1, v{QA}\nv_mov_b32 v{QA+4}, 0")
    recs(True)
    a("s_waitcnt lgkmcnt(0)\ns_barrier")
    hist(4,"sh",0)
    a("s_waitcnt lgkmcnt(0)\ns_barrier")
    scan()
    scatter(4,"K2_sc2")
    a(f"""
s_waitcnt lgkmcnt(0)
s_barrier
v_mov_b32 v{RB}, v{WU1}
v_mov_b32 v{SB}, v{WU1+1}
v_mov_b32 v{HB}, v{WU1+2}
s_mov_b32 s{sT0}, s{sWV}
K2_ST:
s_cmp_lt_u32 s{sT0}, s{sNT}
s_cbranch_scc0 K2_SN
""")
    rd_idx(); rd_no()
    a("s_waitcnt lgkmcnt(0)")
    for x in dma(): a(x)
    win()
    for q in range(4): a(rd_b3(q))
    a(rd_a3)
    for j in range(4): a(f"v_add_u32 v{AG+j}, v{NO+j}, v{AGC}")
    a("s_waitcnt vmcnt(0) lgkmcnt(0)")
    for t in range(8): a(rd_a(t))
    a("s_waitcnt lgkmcnt(0)")
    for q in range(4):
        z=Z[0]
        a(mfma32(z,A3,B3+4*q,None)); a(mfma32(z,A+8*q,ID0,z)); a(mfma32(z,A+8*q+4,ID1,z))
        a("s_nop 15")
        for r in range(16): a(f"v_exp_f32 v{EE+r}, v{z+r}")
        for r in range(16): a(f"v_add_f32 v{EE+r}, 1.0, v{EE+r}")
        for r in range(16): a(f"v_rcp_f32 v{EE+r}, v{EE+r}")
        for m in range(4):
            for u in range(2):
                for par in range(2):
                    r=8*u+2*m+par; g=GG+2*u+par
                    a(f"v_mul_f32 v{g}, v{z+r}, v{EE+r}" if m==0 else f"v_fmac_f32 v{g}, v{z+r}, v{EE+r}")
        for j in range(4): a(f"ds_add_f32 v{AG+j}, v{GG+j} offset:{q*128}")
        a("s_waitcnt lgkmcnt(0)")
    a(f"""
v_add_u32 v{SB}, 4096, v{SB}
v_add_u32 v{RB}, 4096, v{RB}
v_add_u32 v{HB}, 4096, v{HB}
s_add_u32 s{sT0}, s{sT0}, 8
s_branch K2_ST
K2_SN:
s_add_u32 s{sRND}, s{sRND}, 1
s_branch K2_SR
K2_SE:
""")
    convert(True)
    a("s_branch K2_FIN")
    return a.text()
```

```python
N=12500; E=400000
NSORT=125; EPW=3200
NGEMM=131; RPW=96
NPREP=13
import os
WSB=int(os.environ.get('WSB','0'))<<20
WS_P=WSB+0x1000
WS_REC=WSB+0x400000
RSZ=12
WS_WF=WSB+0xB00000
O_W3F=3*32768; O_C3=O_W3F+2048; O_STAT=O_W3F+4096; O_TBL=O_STAT+8192; WF_SIZE=O_TBL+NSORT*1024
WS_W3F=WS_WF+O_W3F
WS_C3=WS_WF+O_C3
WS_STAT=WS_WF+O_STAT
WS_TBL=WS_WF+O_TBL
LOG2E_NEG=0xBFB8AA3B

class Asm:
    def __init__(s): s.l=[]
    def __call__(s,t):
        for x in t.strip('\n').split('\n'):
            x=x.strip()
            if not x: continue
            if x.endswith(':') : s.l.append(x)
            else: s.l.append('    '+x)
    def text(s): return '\n'.join(s.l)+'\n'

def srd(a,d,lo,size,off=0,stride=0):
    if off:
        a(f"s_add_u32 s{d}, s{lo}, {hex(off)}\ns_addc_u32 s{d+1}, s{lo+1}, 0\ns_and_b32 s{d+1}, s{d+1}, 0xffff")
    else:
        a(f"s_mov_b32 s{d}, s{lo}\ns_and_b32 s{d+1}, s{lo+1}, 0xffff")
    if stride: a(f"s_or_b32 s{d+1}, s{d+1}, {hex(stride<<16)}")
    a(f"s_mov_b32 s{d+2}, {size}\ns_mov_b32 s{d+3}, 0x00020000")

def dpp_scan(a,op,regs):
    steps=["row_shr:1 row_mask:0xf bank_mask:0xf bound_ctrl:0","row_shr:2 row_mask:0xf bank_mask:0xf bound_ctrl:0",
           "row_shr:4 row_mask:0xf bank_mask:0xf bound_ctrl:0","row_shr:8 row_mask:0xf bank_mask:0xf bound_ctrl:0",
           "row_bcast:15 row_mask:0xa bank_mask:0xf","row_bcast:31 row_mask:0xc bank_mask:0xf"]
    pad=max(0,2-(len(regs)-1))
    a("s_nop 1")
    for st in steps:
        for r in regs: a(f"{op}_dpp v{r}, v{r}, v{r} {st}")
        if pad: a(f"s_nop {pad-1}")

def kd(name,vgpr,sgpr=102):
    return f""".amdhsa_kernel {name}
  .amdhsa_next_free_vgpr {vgpr}
  .amdhsa_next_free_sgpr {sgpr}
  .amdhsa_accum_offset {(vgpr+3)//4*4}
  .amdhsa_group_segment_fixed_size 0
  .amdhsa_kernarg_size 72
  .amdhsa_user_sgpr_count 2
  .amdhsa_user_sgpr_kernarg_segment_ptr 1
  .amdhsa_system_sgpr_workgroup_id_x 1
  .amdhsa_float_denorm_mode_32 3
.end_amdhsa_kernel
"""

import os
PROF=int(os.environ.get('PROF','0'))
WS_PROF=0xC00000
def stamp(a,i,real=False):
    if not PROF: return
    a(f"{'s_memrealtime' if real else 's_memtime'} s[100:101]\ns_waitcnt lgkmcnt(0)\ns_mov_b32 s{88+i}, s100")
def stamp_out(a,kidx,swave,n=12):
    if not PROF: return
    a("s_mov_b64 exec, -1")
    a(f"s_add_u32 s4, s20, {hex(WS_PROF+kidx*0x40000)}\ns_addc_u32 s5, s21, 0\ns_and_b32 s5, s5, 0xffff\ns_mov_b32 s6, 0x40000\ns_mov_b32 s7, 0x00020000")
    if PROF==2:
        a(f"s_and_b32 s3, s2, 15\ns_lshl_b32 s3, s3, 3\ns_add_u32 s3, s3, s{swave}\ns_cmp_eq_u32 s3, 7\ns_cbranch_scc1 1\ns_endpgm")
        a(f"s_add_u32 s4, s18, {512*(1-kidx)}\ns_addc_u32 s5, s19, 0\ns_and_b32 s5, s5, 0xffff\ns_mov_b32 s6, 256")
        a("s_not_b32 s88, s88")
        for i in range(2,11): a(f"s_sub_u32 s{88+i}, s{88+i}, s89")
        a("s_mov_b32 s89, s99")
        a("v_mov_b32 v1, 0")
        idx=[0,1,2,10] if kidx==0 else [0,1,2,3,4,5,6,7,8,9,10]
        for j,i in enumerate(idx): a(f"v_writelane_b32 v1, s{88+i}, {j}")
        a(f"v_and_b32 v2, 63, v0\nv_lshlrev_b32 v2, 2, v2\nv_cmp_gt_u32 vcc, {4*len(idx)}, v2\ns_and_saveexec_b64 s[8:9], vcc\nbuffer_atomic_umax v1, v2, s[4:7], 0 offen offset:{16*kidx}")
        return
    a("v_mov_b32 v1, 0")
    for i in range(n): a(f"v_writelane_b32 v1, s{88+i}, {i}")
    a(f"s_lshl_b32 s100, s2, 3\ns_add_u32 s100, s100, s{swave}\ns_lshl_b32 s100, s100, 6")
    a("v_and_b32 v2, 63, v0\nv_lshlrev_b32 v2, 2, v2\nv_cmp_gt_u32 vcc, 64, v2\ns_and_saveexec_b64 s[8:9], vcc\nbuffer_store_dword v1, v2, s[4:7], s100 offen")

def absmax_fin(a,mx,mn,t):
    a(f"""
v_and_b32 v{mx}, 0x7fff7fff, v{mx}
v_and_b32 v{mn}, 0x7fff7fff, v{mn}
v_pk_max_u16 v{mx}, v{mx}, v{mn}
v_lshlrev_b32 v{t}, 16, v{mx}
v_and_b32 v{mx}, 0xffff0000, v{mx}
v_max_u32 v{mx}, v{mx}, v{t}
""")
```

```python
from common import *
K1_LDS=57344
STF=os.environ.get('STF',' sc0 sc1')
K1_GRID=NSORT+NGEMM+NPREP

def gen_k1():
    a=Asm()
    a(f"""
k1_kernel:
s_cmp_ge_u32 s2, {K1_GRID}
s_cbranch_scc1 K1_END
s_load_dwordx16 s[4:19], s[0:1], 0
s_load_dwordx2 s[20:21], s[0:1], 64
v_lshrrev_b32 v1, 6, v0
v_and_b32 v2, 63, v0
v_readfirstlane_b32 s60, v1
s_cmp_ge_u32 s2, {NSORT+NGEMM}
s_cbranch_scc1 K1_PREP
s_cmp_ge_u32 s2, {NSORT}
s_cbranch_scc1 K1_GEMM
""")
    HIST=0; BASE=1024; S=2048; ERAW=S+25600
    D=8; SR=16; K=24; R=32
    a(f"""
s_mul_i32 s48, s2, {EPW*4}
v_lshlrev_b32 v3, 2, v0
v_add_u32 v4, 4096, v3
v_add_u32 v5, 8192, v3
v_add_u32 v6, 12288, v3
v_mov_b32 v40, 0
s_waitcnt lgkmcnt(0)
""")
    stamp(a,0,True); stamp(a,1)
    srd(a,24,10,E*4)
    for i in range(6): a(f"buffer_load_dword v{D+i}, v{3+i//2}, s[24:27], s48 offen offset:{(i&1)*2048}")
    a("s_cmp_lt_u32 s60, 2\ns_cbranch_scc0 K1S_a")
    a(f"buffer_load_dword v{D+6}, v6, s[24:27], s48 offen")
    a("K1S_a:")
    a("ds_write_b32 v3, v40")
    srd(a,28,8,E*4)
    srd(a,32,6,E*8)
    a(f"""
s_mul_i32 s49, s2, {EPW*8}
s_mul_i32 s50, s2, {EPW*RSZ}
v_lshlrev_b32 v7, 4, v0
s_lshl_b32 s51, s60, 10
s_add_u32 s51, s51, {ERAW}
s_waitcnt lgkmcnt(0)
s_barrier
""")
    for i in range(6): a(f"buffer_load_dword v{SR+i}, v{3+i//2}, s[28:31], s48 offen offset:{(i&1)*2048}")
    a("s_cmp_lt_u32 s60, 2\ns_cbranch_scc0 K1S_b")
    a(f"buffer_load_dword v{SR+6}, v6, s[28:31], s48 offen")
    a("K1S_b:")
    for j in range(3):
        a(f"s_add_u32 m0, s51, {j*8192}\ns_add_u32 s52, s49, {j*8192}\nbuffer_load_dwordx4 v7, s[32:35], s52 offen lds")
    a("s_cmp_eq_u32 s60, 0\ns_cbranch_scc0 K1S_c")
    a(f"s_add_u32 m0, s51, {3*8192}\ns_add_u32 s52, s49, {3*8192}\nbuffer_load_dwordx4 v7, s[32:35], s52 offen lds")
    a("K1S_c:")
    srd(a,36,20,NSORT*EPW*RSZ,off=WS_REC)
    srd(a,44,20,WF_SIZE,off=WS_WF)
    a(f"""
v_mov_b32 v41, 8
v_lshlrev_b32 v45, 3, v0
v_lshlrev_b32 v44, 4, v2
v_mul_u32_u24 v47, {RSZ}, v0
v_mov_b32 v46, 0
v_mov_b32 v43, 0
""")
    for i in range(7): a(f"v_add_u32 v{61+2*i}, {i*4096}, v45")
    def keyrank(i):
        a(f"""
v_lshlrev_b32_sdwa v{K+i}, 2, v{D+i} dst_sel:DWORD dst_unused:UNUSED_PAD src0_sel:DWORD src1_sel:BYTE_0
v_lshrrev_b32 v{D+i}, 8, v{D+i}
ds_add_rtn_u32 v{R+i}, v{K+i}, v41
""")
    a("s_waitcnt vmcnt(9)")
    stamp(a,2)
    for i in range(6): keyrank(i)
    a("s_cmp_lt_u32 s60, 2\ns_cbranch_scc0 K1S_d")
    keyrank(6)
    a("K1S_d:")
    a(f"""
s_waitcnt lgkmcnt(0)
s_barrier
ds_read_b128 v[48:51], v44
s_waitcnt lgkmcnt(0)
v_add_u32 v52, v48, v49
v_add3_u32 v52, v52, v50, v51
v_mov_b32 v53, v52
""")
    stamp(a,3)
    dpp_scan(a,"v_add_u32",[53])
    a(f"""
v_sub_u32 v56, v53, v52
v_add_u32 v57, v56, v48
v_add_u32 v58, v57, v49
v_add_u32 v59, v58, v50
ds_write_b128 v44, v[56:59] offset:{BASE}
""")
    for i in range(6): a(f"ds_read_b32 v{K+i}, v{K+i} offset:{BASE}")
    a("s_cmp_lt_u32 s60, 2\ns_cbranch_scc0 K1S_e")
    a(f"ds_read_b32 v{K+6}, v{K+6} offset:{BASE}")
    a("K1S_e:")
    a("s_cmp_eq_u32 s60, 7\ns_cbranch_scc0 K1S_f")
    for j in range(4):
        a(f"v_lshrrev_b32 v42, 1, v{56+j}\nv_add_u32 v{56+j}, v42, v{56+j}\nv_lshl_or_b32 v{56+j}, v{48+j}, 13, v{56+j}")
    a(f"s_lshl_b32 s53, s2, 10\ns_add_u32 s53, s53, {O_TBL}\nbuffer_store_dwordx4 v[56:59], v44, s[44:47], s53 offen{STF}")
    a("K1S_f:")
    a("s_waitcnt vmcnt(3)")
    for i in range(7): a(f"v_lshl_or_b32 v{60+2*i}, v{D+i}, 19, v{SR+i}")
    a("s_waitcnt lgkmcnt(0)")
    stamp(a,4)
    def scat(i):
        a(f"""
v_add_u32 v{K+i}, v{K+i}, v{R+i}
ds_write_b64 v{K+i}, v[{60+2*i}:{61+2*i}] offset:{S}
""")
    for i in range(6): scat(i)
    a("s_cmp_lt_u32 s60, 2\ns_cbranch_scc0 K1S_g")
    scat(6)
    a("K1S_g:")
    a("s_waitcnt vmcnt(0) lgkmcnt(0)\ns_barrier")
    stamp(a,5)
    a("s_cmp_lt_u32 s60, 2\ns_cbranch_scc0 K1S_i")
    a(f"ds_read_b64 v[{82+24}:{83+24}], v45 offset:{S+6*4096}\ns_waitcnt lgkmcnt(0)\nds_read_b64 v[{80+24}:{81+24}], v{83+24} offset:{ERAW}")
    a("K1S_i:")
    for i in range(6): a(f"ds_read_b64 v[{82+4*i}:{83+4*i}], v45 offset:{S+i*4096}")
    for i in range(6):
        a(f"s_waitcnt lgkmcnt(5)")
        a(f"ds_read_b64 v[{80+4*i}:{81+4*i}], v{83+4*i} offset:{ERAW}")
    def outp(i):
        a(f"""
s_add_u32 s52, s50, {i*512*RSZ}
buffer_store_dwordx3 v[{80+4*i}:{82+4*i}], v47, s[36:39], s52 offen{STF}
""")
    def st(i): a(f"v_pk_maximum3_f16 v46, v46, v{80+4*i}, v{81+4*i}\nv_pk_minimum3_f16 v43, v43, v{80+4*i}, v{81+4*i}")
    for i in range(6):
        a(f"s_waitcnt lgkmcnt({5-i})"); outp(i)
    a("s_cmp_lt_u32 s60, 2\ns_cbranch_scc0 K1S_h")
    outp(6); st(6)
    a("K1S_h:")
    for i in range(6): st(i)
    absmax_fin(a,46,43,42)
    dpp_scan(a,"v_max_u32",[46])
    a(f"""
s_lshl_b32 s53, s2, 3
s_add_u32 s53, s53, s60
s_lshl_b32 s53, s53, 2
s_add_u32 s53, s53, {O_STAT+NGEMM*32}
s_mov_b32 exec_lo, 0
s_brev_b32 exec_hi, 1
buffer_store_dword v46, v40, s[44:47], s53 offen{STF}
""")
    stamp(a,6)
    if PROF: a("s_waitcnt vmcnt(0)")
    stamp(a,10); stamp(a,11,True); stamp_out(a,0,60)
    a("s_endpgm")
    XL=32768
    a(f"""
K1_GEMM:
s_sub_u32 s61, s2, {NSORT}
s_mul_i32 s48, s61, {RPW*256}
v_lshrrev_b32 v3, 4, v0                 ; 4w+a
v_and_b32 v4, 15, v0                    ; c16 / n
v_lshrrev_b32 v5, 4, v2                 ; a / g
v_and_b32 v6, 15, v3
v_xor_b32 v6, v6, v4
v_lshlrev_b32 v6, 4, v6
v_lshl_or_b32 v6, v3, 8, v6             ; x voffset
v_and_b32 v7, 8, v3                     ; ((w>>1)&1)<<3
v_lshl_or_b32 v7, v5, 1, v7             ; 2f
v_xor_b32 v7, v7, v4
v_lshlrev_b32 v7, 4, v7
v_lshl_or_b32 v7, v3, 8, v7             ; w voffset
s_lshl_b32 s51, s60, 10
s_waitcnt lgkmcnt(0)
""")
    stamp(a,0,True); stamp(a,1)
    srd(a,24,4,N*256); srd(a,28,12,260*256)
    for j in range(3):
        a(f"s_add_u32 m0, s51, {XL+j*8192}\ns_add_u32 s52, s48, {j*8192}\nbuffer_load_dwordx4 v6, s[24:27], s52 offen lds")
    for j in range(4):
        a(f"s_add_u32 m0, s51, {j*8192}\ns_mov_b32 s52, {j*8192}\nbuffer_load_dwordx4 v7, s[28:31], s52 offen lds")
    srd(a,32,20,NGEMM*RPW*256,off=WS_P)
    srd(a,44,20,WF_SIZE,off=WS_WF)
    a(f"""
s_lshr_b32 s62, s60, 2
s_and_b32 s63, s60, 3
s_mul_i32 s53, s62, {48*256}
s_add_u32 s53, s53, {XL}
v_lshlrev_b32 v12, 8, v4
v_add_u32 v12, s53, v12
""")
    for s in range(4):
        a(f"v_or_b32 v13, {4*s}, v5\nv_xor_b32 v13, v13, v4\nv_lshl_add_u32 v{8+s}, v13, 4, v12")
    a(f"""
v_lshrrev_b32 v13, 2, v4
v_lshl_add_u32 v16, v5, 3, v13          ; row
v_lshlrev_b32 v16, 8, v16
v_and_b32 v17, 3, v4
v_lshl_add_u32 v16, v17, 3, v16
v_and_b32 v17, 1, v5
v_lshl_or_b32 v13, v17, 2, v13          ; f
s_lshl_b32 s53, s63, 1
v_xor_b32 v17, s53, v13
v_lshl_add_u32 v14, v17, 5, v16
v_xor_b32 v17, 1, v17
v_lshl_add_u32 v15, v17, 5, v16
""")
    a(f"""
s_mul_i32 s53, s62, {48*256}
s_lshl_b32 s54, s63, 6
s_add_u32 s53, s53, s54
v_lshlrev_b32 v18, 10, v5
v_lshl_add_u32 v18, v4, 2, v18
v_add_u32 v18, s53, v18
s_mov_b32 s56, {hex(LOG2E_NEG)}
s_mov_b32 s57, {hex(LOG2E_NEG)}
s_waitcnt vmcnt(0)
s_barrier
""")
    stamp(a,2)
    BF=20; AF=52; AC=100
    for s in range(4):
        for nt in range(2):
            r=BF+8*s+4*nt
            a(f"ds_read_b64_tr_b16 v[{r}:{r+1}], v{14+nt} offset:{s*8192}\nds_read_b64_tr_b16 v[{r+2}:{r+3}], v{14+nt} offset:{s*8192+1024}")
        for T in range(3):
            r=AF+12*s+4*T
            a(f"ds_read_b128 v[{r}:{r+3}], v{8+s} offset:{T*4096}")
        if s>=1:
            sp=s-1
            a("s_waitcnt lgkmcnt(7)")
            for T in range(3):
                for nt in range(2):
                    c=AC+8*T+4*nt
                    a(f"v_mfma_f32_16x16x32_bf16 v[{c}:{c+3}], v[{AF+12*sp+4*T}:{AF+12*sp+4*T+3}], v[{BF+8*sp+4*nt}:{BF+8*sp+4*nt+3}], "+("0" if sp==0 else f"v[{c}:{c+3}]"))
    a("s_waitcnt lgkmcnt(0)")
    sp=3
    for T in range(3):
        for nt in range(2):
            c=AC+8*T+4*nt
            a(f"v_mfma_f32_16x16x32_bf16 v[{c}:{c+3}], v[{AF+12*sp+4*T}:{AF+12*sp+4*T+3}], v[{BF+8*sp+4*nt}:{BF+8*sp+4*nt+3}], v[{c}:{c+3}]")
    a("s_nop 5")
    stamp(a,3)
    for T in range(3):
        if T==2: a("s_nop 1")
        c=AC+8*T
        for j in range(4): a(f"v_pk_mul_f32 v[{c+2*j}:{c+2*j+1}], v[{c+2*j}:{c+2*j+1}], s[56:57]")
        a(f"s_add_u32 s52, s48, {T*4096}")
        for i in range(4):
            a(f"v_cvt_pk_bf16_f32 v{20+4*T+i}, v{c+i}, v{c+4+i}")
            a(f"buffer_store_dword v{20+4*T+i}, v18, s[32:35], s52 offen offset:{i*256}{STF}")
    a("v_pk_maximum3_f16 v19, v20, v21, v22\nv_pk_minimum3_f16 v40, v20, v21, v22")
    for r in (23,25,27,29): a(f"v_pk_maximum3_f16 v19, v19, v{r}, v{r+1}\nv_pk_minimum3_f16 v40, v40, v{r}, v{r+1}")
    a("v_pk_maximum3_f16 v19, v19, v31, v31\nv_pk_minimum3_f16 v40, v40, v31, v31")
    absmax_fin(a,19,40,41)
    dpp_scan(a,"v_max_u32",[19])
    a(f"""
s_lshl_b32 s53, s61, 3
s_add_u32 s53, s53, s60
s_lshl_b32 s53, s53, 2
s_add_u32 s53, s53, {O_STAT}
v_mov_b32 v42, 0
s_mov_b32 exec_lo, 0
s_brev_b32 exec_hi, 1
buffer_store_dword v19, v42, s[44:47], s53 offen{STF}
""")
    stamp(a,6)
    if PROF: a("s_waitcnt vmcnt(0)")
    stamp(a,10); stamp(a,11,True); stamp_out(a,0,60)
    a("s_endpgm")
    a(f"""
K1_PREP:
s_sub_u32 s61, s2, {NSORT+NGEMM}
v_and_b32 v4, 15, v0                    ; n
v_lshrrev_b32 v5, 4, v2                 ; g
s_waitcnt lgkmcnt(0)
""")
    srd(a,24,12,260*256); srd(a,28,14,256*256); srd(a,32,20,3*32768+2048+16,off=WS_WF)
    a(f"""
s_cmp_eq_u32 s61, 12
s_cbranch_scc1 K1_W3
s_and_b32 s62, s61, 3
s_lshl_b32 s62, s62, 1
s_lshr_b32 s63, s60, 2
s_add_u32 s62, s62, s63                 ; w'
s_and_b32 s63, s60, 3                   ; s
s_lshl_b32 s53, s61, 13
v_lshlrev_b32 v7, 4, v0
s_lshl_b32 s54, s63, 13                 ; s*32 rows*256
s_cmp_ge_u32 s61, 8
s_cbranch_scc1 K1_P2
s_cmp_ge_u32 s61, 4
s_cbranch_scc1 K1_P1
s_lshr_b32 s55, s62, 1
s_lshl_b32 s55, s55, 6
s_and_b32 s56, s62, 1
s_lshl_b32 s56, s56, 4
s_add_u32 s55, s55, s56
s_add_u32 s54, s54, s55
s_add_u32 s54, s54, 32768
v_and_b32 v8, 1, v4
v_lshlrev_b32 v8, 5, v8
v_and_b32 v9, 14, v4
v_add_u32 v8, v8, v9
v_lshl_add_u32 v8, v5, 11, v8
""")
    for j in range(8): a(f"buffer_load_ushort v{16+j}, v8, s[24:27], s54 offen offset:{j*256}")
    a(f"""
s_branch K1_PS
K1_P1:
s_lshl_b32 s55, s62, 5
s_add_u32 s54, s54, s55
v_lshlrev_b32 v8, 1, v4
v_lshl_add_u32 v8, v5, 11, v8
""")
    for j in range(8): a(f"buffer_load_ushort v{16+j}, v8, s[28:31], s54 offen offset:{j*256}")
    a(f"""
s_branch K1_PS
K1_P2:
s_lshl_b32 s55, s62, 5
s_add_u32 s54, s54, s55
s_add_u32 s54, s54, 32768
v_lshlrev_b32 v8, 1, v4
v_lshl_add_u32 v8, v5, 10, v8
v_add_u32 v9, 4096, v8
""")
    for j in range(8): a(f"buffer_load_ushort v{16+j}, v{8+(j&1)}, s[28:31], s54 offen offset:{(j>>1)*256}")
    a(f"""
K1_PS:
s_waitcnt vmcnt(0)
v_lshl_or_b32 v12, v17, 16, v16
v_lshl_or_b32 v13, v19, 16, v18
v_lshl_or_b32 v14, v21, 16, v20
v_lshl_or_b32 v15, v23, 16, v22
buffer_store_dwordx4 v[12:15], v7, s[32:35], s53 offen
s_endpgm
K1_W3:
s_cmp_ge_u32 s60, 4
s_cbranch_scc1 K1_END
v_and_b32 v8, 1, v2
v_lshlrev_b32 v8, 5, v8
v_and_b32 v9, 30, v2
v_add_u32 v8, v8, v9
s_lshl_b32 s54, s60, 6
s_add_u32 s54, s54, 65536
""")
    for k in range(4): a(f"buffer_load_ushort v{12+k}, v8, s[24:27], s54 offen offset:{k*256}")
    a(f"s_mov_b32 s56, {hex(LOG2E_NEG)}\ns_waitcnt vmcnt(0)")
    for k in range(4): a(f"v_lshlrev_b32 v{12+k}, 16, v{12+k}\nv_mul_f32 v{12+k}, s56, v{12+k}")
    a("""
v_cvt_pk_bf16_f32 v16, v12, v13
v_cvt_pk_bf16_f32 v17, v14, v15
v_lshlrev_b32 v20, 16, v16
v_and_b32 v21, 0xffff0000, v16
v_lshlrev_b32 v22, 16, v17
v_and_b32 v23, 0xffff0000, v17
v_sub_f32 v20, v12, v20
v_sub_f32 v21, v13, v21
v_sub_f32 v22, v14, v22
v_sub_f32 v23, v15, v23
v_cvt_pk_bf16_f32 v18, v20, v21
v_cvt_pk_bf16_f32 v19, v22, v23
v_cmp_lt_u32 vcc, 31, v2
v_add_f32 v24, abs(v12), abs(v13)
v_add_f32 v25, abs(v14), abs(v15)
v_cndmask_b32 v16, v16, v18, vcc
v_cndmask_b32 v17, v17, v19, vcc
v_add_f32 v24, v24, v25
v_lshlrev_b32 v7, 3, v0
s_mov_b32 s53, 98304
buffer_store_dwordx2 v[16:17], v7, s[32:35], s53 offen
v_and_b32 v24, 0x7fffffff, v24
""")
    dpp_scan(a,"v_max_u32",[24])
    a(f"""
s_lshl_b32 s53, s60, 2
s_add_u32 s53, s53, {3*32768+2048}
v_mov_b32 v42, 0
v_cmp_eq_u32 vcc, 63, v2
s_and_saveexec_b64 s[56:57], vcc
buffer_store_dword v24, v42, s[32:35], s53 offen
K1_END:
s_endpgm
""")
    return a.text()
```

```python
from common import *
X=int(os.environ.get('X','0'))
PFP=int(os.environ.get('PFP','0'))
OLDF=int(os.environ.get('OLDF','4'))
DSP=[int(c,36) for c in os.environ.get('DSP','0055aaff')]
PFR=int(os.environ.get('PFR','1'))
PRIO=int(os.environ.get('PRIO','1'))
CNT=0; BT=2304; MISC=256; OH=392; GN=1024; STB=2816; RS=1040
AGB=STB+16*RS
Q2=AGB+16384; QS=52*128
REC=Q2+4*QS
GBUF=REC+32768
K2_LDS=GBUF+65536
AGG=STB
ONE2=0x3F803F80
NULLW2=0xFFFF|(512<<16)
PADMIN=20
ID0=4; ID1=8; B3=12; A=28; Z=[60,76]; A3=92; EE=96; NN=112; DD=116; GP=120; SS=124
IDX=128; AR=144; RB=152; SB=153; SA=154; VY=155; OHC=156; VL=157; WT=158; DR=159
ACC=160; WU2=192; UA=208; W2F=160; WU1=176; QA=224; TT=240; RK=244; RC=96; XF=28
FA=252
sP=24; sX=28; sW=32; sR=36; sM=40
sWV=56; sK=57; sNN=58; sI=59; sNT=60; sBUF=61; sQ=62; sW8=63; sCNT=64; sT0=65
sL2E=66
sINC=68
sRND=70; sMAXC=71; sC3=72
sFLAG=76; sBUF2=77; sMA=78
sMB=80
sHEAD=82; sNF=83
t0,t1,t2,t3=84,85,86,87

def mfma32(d,x,y,c): return f"v_mfma_f32_32x32x16_bf16 v[{d}:{d+15}], v[{x}:{x+3}], v[{y}:{y+3}], "+("0" if c is None else f"v[{c}:{c+15}]")
def mfma16(d,x,y,c): return f"v_mfma_f32_16x16x32_bf16 v[{d}:{d+3}], v[{x}:{x+3}], v[{y}:{y+3}], "+("0" if c is None else f"v[{c}:{c+3}]")
def P2(r): return f"v[{r}:{r+1}]"
def S2(r): return f"s[{r}:{r+1}]"
def SR4(r): return f"s[{r}:{r+3}]"

PTS=os.environ.get('PTS','T,b1,b2,b3,g0,pro,loop,mrg').split(',')
def gen_k2():
    a=Asm()
    def pt(n,vm=None):
        if PROF and n in PTS:
            if vm is not None: a(f"s_waitcnt vmcnt({vm})")
            stamp(a,2+PTS.index(n))
    def init_rec():
        a(f"""
v_add_u32 v2, {REC}, v1
v_mov_b32 v{QA}, 0
v_mov_b32 v{QA+1}, 0
v_mov_b32 v{QA+2}, {hex(NULLW2)}
""")
        for j in range(4): a(f"ds_write_b96 v2, v[{QA}:{QA+2}] offset:{j*8192}")
    a(f"""
k2_kernel:
s_cmp_ge_u32 s2, 256
s_cbranch_scc1 K2_END
s_load_dwordx2 s[4:5], s[0:1], 0
s_load_dwordx4 s[16:19], s[0:1], 48
s_load_dwordx2 s[20:21], s[0:1], 64
v_lshrrev_b32 v1, 6, v0
v_lshrrev_b32 v2, 4, v0                 ; 4w+a
v_readfirstlane_b32 s{sWV}, v1
s_and_b32 s{sK}, s2, 7
s_lshl_b32 s{sK}, s{sK}, 5
s_lshr_b32 s{t0}, s2, 3
s_or_b32 s{sK}, s{sK}, s{t0}
s_lshl_b32 s{t0}, s{sK}, 2
s_add_u32 s{t0}, s{t0}, {O_TBL}
s_add_u32 s{t1}, s{t0}, 32768
s_add_u32 s{t2}, s{t0}, 65536
s_add_u32 s{t3}, s{t0}, 98304
v_lshlrev_b32 v3, 10, v2                ; T voffset
v_and_b32 v{FA+1}, 15, v0
v_mul_u32_u24 v{FA}, {EPW}, v2
v_add_u32 v{FA}, v{FA}, v{FA+1}
v_mul_u32_u24 v{FA}, {RSZ}, v{FA}
v_add_u32 v{FA+2}, 16, v{FA+1}
v_lshlrev_b32 v1, 4, v0
v_mov_b32 v{QA+4}, 0
v_mov_b32 v{QA+5}, 0
v_mov_b32 v{QA+6}, 0
v_mov_b32 v{QA+7}, 0
s_waitcnt lgkmcnt(0)
""")
    stamp(a,0,True); stamp(a,1)
    srd(a,sW,20,WF_SIZE,off=WS_WF)
    for i in range(4): a(f"buffer_load_dword v{TT+i}, v3, {SR4(sW)}, s{t0+i} offen")
    srd(a,sR,20,NSORT*EPW*RSZ,off=WS_REC)
    a(f"s_add_u32 s{t2}, s20, {hex(WS_C3)}\ns_addc_u32 s{t3}, s21, 0\ns_load_dwordx4 s[{sC3}:{sC3+3}], {S2(t2)}, 0")
    a(f"ds_write_b128 v1, v[{QA+4}:{QA+7}]\nds_write_b128 v1, v[{QA+4}:{QA+7}] offset:8192")
    a(f"""
s_cmp_lt_u32 s{sWV}, 3
s_cbranch_scc0 K2_a1
ds_write_b128 v1, v[{QA+4}:{QA+7}] offset:16384
s_cmp_eq_u32 s{sWV}, 0
s_cbranch_scc0 K2_a1
v_mov_b32 v5, {hex(ONE2)}
ds_write2_b32 v{QA+4}, v5, v5 offset0:{OH//4} offset1:{OH//4+5}
K2_a1:
""")
    srd(a,sX,4,N,stride=256)
    a(f"""
v_and_b32 v{VL}, 63, v0
v_xor_b32 v{A+1}, v2, v0
v_and_b32 v{A+1}, 15, v{A+1}
v_lshlrev_b32 v{A+1}, 4, v{A+1}
v_mov_b32 v{A+3}, v{A+1}
v_lshl_add_u32 v{A}, v2, 8, s{sK}
v_add_u32 v{A+2}, 8192, v{A}
v_lshlrev_b32 v{DR}, 4, v{VL}
s_lshl_b32 s{sBUF2}, s{sWV}, 12
s_lshl_b32 s{t0}, s{sWV}, 10
s_add_u32 m0, s{t0}, {AGB}
s_mov_b32 s{sL2E}, {hex(LOG2E_NEG)}
buffer_load_dwordx4 v[{A}:{A+1}], {SR4(sX)}, 0 idxen offen lds
s_add_u32 m0, s{t0}, {AGB+8192}
s_mov_b32 s{sL2E+1}, {hex(LOG2E_NEG)}
buffer_load_dwordx4 v[{A+2}:{A+3}], {SR4(sX)}, 0 idxen offen lds
""")
    def wload(reg,k,v=DR):
        a(f"s_add_u32 s{t3}, s{sBUF2}, {32768*k}")
        for s in range(4): a(f"buffer_load_dwordx4 v[{reg+4*s}:{reg+4*s+3}], v{v}, {SR4(sW)}, s{t3} offen offset:{s*1024}")
    wload(W2F,0)
    def recs(slow):
        for g in range(4):
            a(f"v_add_u32_sdwa v{RK+g}, v{FA}, v{TT+g} dst_sel:DWORD dst_unused:UNUSED_PAD src0_sel:DWORD src1_sel:WORD_0")
            a(f"v_cmp_lt_u32_sdwa {S2(sM+2*g)}, v{FA+1}, v{TT+g} src0_sel:DWORD src1_sel:WORD_1")
            if not slow: a(f"v_cmp_lt_u32_sdwa {S2(sM+8+2*g)}, v{FA+2}, v{TT+g} src0_sel:DWORD src1_sel:WORD_1")
        for g in range(4): a(f"s_mov_b32 s{t0+g}, {g*32*EPW*RSZ}")
        if not slow:
            for g in range(4):
                a(f"""
s_or_b64 exec, {S2(sM+8+2*g)}, 1
buffer_load_dwordx3 v[{RC+16+4*g}:{RC+18+4*g}], v{RK+g}, {SR4(sR)}, s{t0+g} offen offset:{16*RSZ}
""")
        for g in range(4):
            if slow: a(f"s_and_b64 {S2(sM+2*g)}, {S2(sM+2*g)}, {S2(sM+8)}")
            a(f"""
s_or_b64 exec, {S2(sM+2*g)}, 1
buffer_load_dwordx3 v[{RC+4*g}:{RC+2+4*g}], v{RK+g}, {SR4(sR)}, s{t0+g} offen
""")
        a("s_mov_b64 exec, -1")
    def hist(ns,lab,extra):
        a("v_mov_b32 v1, 16")
        order=([4,5,6,7] if ns==8 else [])+[0,1,2,3]
        for i in order:
            if i==4: a(f"s_waitcnt vmcnt({4+extra})")
            if i<4: a(f"s_waitcnt vmcnt({3-i+extra})")
            a(f"s_mov_b64 exec, {S2(sM+2*i)}")
            if i>=4: a(f"s_cbranch_execz {lab}{i}")
            a(f"v_lshrrev_b32 v{RC+4*i+3}, 17, v{RC+4*i+2}\nds_add_rtn_u32 v{RK+i}, v{RC+4*i+3}, v1")
            if i>=4: a(f"{lab}{i}:")
        a("s_mov_b64 exec, -1")
    def scan():
        a(f"""
v_lshlrev_b32 v1, 2, v{VL}
ds_read_b32 v3, v1
v_cmp_gt_u32 vcc, s{sNN}, v{VL}
s_waitcnt lgkmcnt(0)
v_add_u32 v3, 48, v3
v_and_b32 v3, 0xffffffc0, v3
v_max_u32 v3, {PADMIN*16}, v3
v_cndmask_b32 v3, 0, v3, vcc
v_mov_b32 v2, v3
""")
        dpp_scan(a,"v_add_u32",[2])
        a(f"""
v_readlane_b32 s{t0}, v2, 63
v_sub_u32 v2, v2, v3
ds_write_b32 v1, v2 offset:{BT}
""")
    def scatter(ns,lab,slow):
        order=[0,1,2,3]+([4,5,6,7] if ns==8 else [])
        for i in order:
            a(f"s_mov_b64 exec, {S2(sM+2*i)}")
            a(f"ds_read_b32 v{RC+4*i+3}, v{RC+4*i+3} offset:{BT}")
        a(f"""
s_mov_b64 exec, -1
v_lshrrev_b32 v{QA}, 5, v2
s_lshl_b32 s{t1}, s{sWV}, 1
s_lshl_b32 s{t2}, s{sWV}, 6
v_add_u32 v{QA}, s{t1}, v{QA}           ; 2*(G0+w)
v_cmp_lt_u32 vcc, s{t2}, v3
""")
        if not slow: a(f"v_add_u32 v{QA+1}, v{QA}, v{QA+3}")
        for k,i in enumerate(order):
            if k<4: a(f"s_waitcnt lgkmcnt({ns-1})")
            if k==4: a(f"s_waitcnt lgkmcnt(4)")
            a(f"s_mov_b64 exec, {S2(sM+2*i)}")
            if i>=4: a(f"s_cbranch_execz {lab}{i}")
            a(f"v_add_u32 v{RK+i}, v{RC+4*i+3}, v{RK+i}\nds_write_b96 v{RK+i}, v[{RC+4*i}:{RC+4*i+2}] offset:{REC}")
            if i>=4: a(f"{lab}{i}:")
        a(f"""
{lab}f:
s_mov_b64 exec, vcc
s_add_u32 s{t2}, s{t2}, 512
ds_write_b16 v{QA}, v{QA+4} offset:{GN}
v_cmp_lt_u32 vcc, s{t2}, v3
""")
        if not slow: a(f"ds_write_b16 v{QA+1}, v{QA+5} offset:{STB}")
        a(f"""
s_add_u32 s{t2}, s{t2}, 512
s_mov_b64 exec, vcc
ds_write_b16 v{QA}, v{QA+4} offset:{GN+16}
v_cmp_lt_u32 vcc, s{t2}, v3
""")
        if not slow: a(f"ds_write_b16 v{QA+1}, v{QA+5} offset:{STB+16}\nv_add_u32 v{QA+1}, 32, v{QA+1}")
        a(f"""
v_add_u32 v{QA}, 32, v{QA}
s_cmp_lg_u64 vcc, 0
s_cbranch_scc1 {lab}f
s_mov_b64 exec, -1
""")
    a("s_waitcnt vmcnt(6)")
    pt('T')
    recs(False)
    pt('recs'); pt('recw',0)
    init_rec()
    def fragaddr(base):
        a(f"v_xor_b32 v3, v2, v1\nv_lshlrev_b32 v3, 4, v3\nv_lshl_add_u32 v3, v1, 8, v3\nv_add_u32 v{FA}, {base}, v3")
        for s in range(1,4): a(f"v_xor_b32 v{FA+s}, {64*s}, v{FA}")
    a(f"""
s_lshr_b32 s{t0}, s{sWV}, 1
s_mul_i32 s{t0}, s{t0}, {QS}
s_and_b32 s{t1}, s{sWV}, 1
s_lshl_b32 s{t1}, s{t1}, 6
s_add_u32 s{t0}, s{t0}, s{t1}
s_add_u32 s{t0}, s{t0}, {Q2}
v_mov_b32 v1, v{FA+1}
v_lshrrev_b32 v2, 4, v{VL}              ; a / g
v_lshl_add_u32 v{A3}, v2, 9, s{t0}
v_lshl_add_u32 v{A3}, v1, 2, v{A3}
v_add_u32 v{A3+1}, 128, v{A3}
""")
    fragaddr(AGB)
    pt('init')
    a("s_waitcnt vmcnt(8) lgkmcnt(0)\ns_barrier")
    pt('b1')
    for T in range(3):
        for s in range(4): a(f"ds_read_b128 v[{XF+16*T+4*s}:{XF+16*T+4*s+3}], v{FA+s} offset:{T*4096}")
    a(f"""
v_lshlrev_b32 v{SB}, 4, v2
v_mul_u32_u24 v{SA}, {RS}, v1
v_lshrrev_b32 v2, 2, v{VL}
v_and_b32 v2, 8, v2
v_lshrrev_b32 v3, 3, v{VL}
v_and_or_b32 v2, v3, 2, v2
v_xor_b32 v2, v2, v1
v_lshlrev_b32 v2, 4, v2
s_waitcnt lgkmcnt(8)
""")
    for s in range(4): a(mfma16(QA,XF+4*s,W2F+4*s,None if s==0 else QA))
    for s in range(4): a(f"ds_read_b128 v[{XF+48+4*s}:{XF+48+4*s+3}], v{FA+s} offset:{3*4096}")
    xo=[f"v_xor_b32 v{IDX+2*i+1}, {(4*(i>>2)+(i&1))*16+3072-1024*(i&3)}, v2" for i in range(8)]
    for T in range(1,4):
        a(f"s_waitcnt lgkmcnt({4*(3-T)})")
        for s in range(4):
            a(mfma16(QA+4*T,XF+16*T+4*s,W2F+4*s,None if s==0 else QA+4*T))
            if xo: a(xo.pop(0))
    pt('qm')
    H=AR; MX=WT
    for T in range(3):
        c=QA+4*T
        a(f"v_pk_mul_f32 {P2(c)}, {P2(c)}, {S2(sL2E)}\nv_pk_mul_f32 {P2(c+2)}, {P2(c+2)}, {S2(sL2E)}")
        for i in range(4): a(f"v_and_b32 v{H+i}, 0xffff0000, v{c+i}")
        a(f"v_maximum3_f32 v{MX}, {'0' if T==0 else 'v'+str(MX)}, abs(v{c}), abs(v{c+1})\nv_maximum3_f32 v{MX}, v{MX}, abs(v{c+2}), abs(v{c+3})")
        a(f"v_pk_add_f32 {P2(c)}, {P2(c)}, {P2(H)} neg_lo:[0,1] neg_hi:[0,1]\nv_pk_add_f32 {P2(c+2)}, {P2(c+2)}, {P2(H+2)} neg_lo:[0,1] neg_hi:[0,1]")
        for i in range(4): a(f"v_cvt_pk_bf16_f32 v{c+i}, v{c+i}, v{H+i}")
    c=QA+12
    a(f"""
v_mul_f32 v{c}, s{sL2E}, v{c}
v_and_b32 v{H}, 0xffff0000, v{c}
v_maximum3_f32 v{MX}, v{MX}, abs(v{c}), abs(v{c})
v_sub_f32 v{c}, v{c}, v{H}
v_cvt_pk_bf16_f32 v{c}, v{c}, v{H}
""")
    for T in range(4):
        c=QA+4*T
        if T==3: a("s_mov_b32 exec_lo, 0xffff\ns_mov_b32 exec_hi, 0")
        a(f"ds_write2st64_b32 v{A3}, v{c}, v{c+2} offset0:{8*T} offset1:{8*T+1}\nds_write2st64_b32 v{A3+1}, v{c+1}, v{c+3} offset0:{8*T} offset1:{8*T+1}")
    a(f"""
s_mov_b64 exec, -1
v_lshlrev_b32 v1, 4, v0
v_lshlrev_b32 v2, 3, v{VL}
s_mov_b32 s{t0}, {O_W3F}
s_mov_b32 s{t1}, {O_STAT}
s_cmp_lt_u32 s{sK}, {N-256*48}
s_cselect_b32 s{sNN}, 49, 48
""")
    pt('qc')
    srd(a,sP,20,N,off=WS_P-3072,stride=256)
    a(f"buffer_load_dwordx4 v[{UA}:{UA+3}], v1, {SR4(sW)}, s{t1} offen")
    for q in range(4): a(f"buffer_load_dwordx2 v[{B3+4*q+2}:{B3+4*q+3}], v2, {SR4(sW)}, s{t0} offen offset:{q*512}")
    extra=5
    pt('xl')
    hist(8,"K2_h",extra)
    pt('hist')
    if PFP:
        a(f"""
s_lshr_b32 s{t1}, s2, 3
s_mul_i32 s{t1}, s{t1}, 391
v_lshrrev_b32 v4, 1, v{VL}
s_mul_i32 s{t2}, s{sWV}, {PFP//2}
s_add_u32 s{t1}, s{t1}, s{t2}
v_add_u32 v4, s{t1}, v4
v_and_b32 v5, 1, v0
v_lshlrev_b32 v5, 7, v5
s_mov_b64 exec, {hex((1<<PFP)-1) if PFP<32 else -1}
""")
        if 32<=PFP<64: a(f"s_mov_b32 exec_hi, {hex((1<<(PFP-32))-1)}")
        a(f"buffer_load_dword v{A3+2}, v[4:5], {SR4(sP)}, 0 idxen offen offset:3072\ns_mov_b64 exec, -1")
    a(f"v_mov_b32 v{QA+3}, v{SA}\nv_lshlrev_b32 v{QA+4}, 7, v{VL}\nv_mov_b32 v{QA+5}, 0x3f80")
    a("s_waitcnt lgkmcnt(0)\ns_barrier")
    pt('b2')
    scan()
    a(f"""
s_add_u32 s{sNT}, s{t0}, 511
s_lshr_b32 s{sNT}, s{sNT}, 9
s_lshr_b32 s{sCNT}, s{sNT}, 3
s_lshl_b32 s{t1}, s{sCNT}, 9
v_cmp_lt_u32 vcc, s{t1}, v3
s_mov_b32 s{sFLAG}, 1
s_cmp_gt_u32 s{t0}, 32768
s_cbranch_scc1 K2_nosc
s_cmp_lg_u64 vcc, 0
s_cbranch_scc1 K2_nosc
s_mov_b32 s{sFLAG}, 0
""")
    pt('scan')
    scatter(8,"K2_s",False)
    a("K2_nosc:")
    pt('scat')
    wload(WU1,1)
    a(f"""
s_mul_i32 s{sT0}, s{sCNT}, s{sWV}
s_and_b32 s{t2}, s{sNT}, 7
s_min_u32 s{t3}, s{t2}, s{sWV}
s_add_u32 s{sT0}, s{sT0}, s{t3}
s_cmp_lt_u32 s{sWV}, s{t2}
s_addc_u32 s{sCNT}, s{sCNT}, 0
s_lshl_b32 s{t0}, s{sT0}, 9
s_add_u32 s{t1}, s{t0}, {REC}
s_lshl_b32 s{t2}, s{sT0}, 4
v_add_u32 v{SB}, s{t1}, v{SB}
s_max_u32 s{sC3}, s{sC3}, s{sC3+1}
s_max_u32 s{sC3+2}, s{sC3+2}, s{sC3+3}
s_max_u32 s{sC3}, s{sC3}, s{sC3+2}
v_cmp_gt_u32 vcc, {NGEMM*2}, v0
v_mov_b32 v2, s{sC3}
v_max_u32 v3, v{TT}, v{TT+1}
v_max3_u32 v3, v3, v{TT+2}, v{TT+3}
v_mul_f32 v2, 0.5, v2
s_lshl_b32 s{sBUF}, s{sWV}, 13
s_add_u32 s{sBUF}, s{sBUF}, {GBUF}
v_cndmask_b32 v2, v2, 1.0, vcc
v_cmp_lt_u32 vcc, {hex((33<<16)-1)}, v3
s_waitcnt vmcnt({8+(1 if PFP else 0)})
v_max_u32 v1, v{UA}, v{UA+1}
v_max3_u32 v1, v1, v{UA+2}, v{UA+3}
s_mov_b64 {S2(sM)}, vcc
v_mul_f32 v1, v1, v2
v_maximum3_f32 v1, v1, v{MX}, v{MX}
v_mov_b32 v3, 0
v_cmp_nge_f32 vcc, 0x40e80000, v1       ; !(7.25 >= x)
v_add_u32 v1, s{t2}, v{DR}
s_or_b64 vcc, vcc, {S2(sM)}
s_cbranch_scc0 K2_ok
ds_write_b32 v3, v{FA} offset:{MISC}
K2_ok:
""")
    pt('wu1')
    a("s_waitcnt lgkmcnt(0)\ns_barrier")
    pt('b3')
    def rd_idx(off=0):
        for i in range(8): a(f"ds_read_u16 v{IDX+2*i}, v{SB} offset:{64*i+8+off}")
    def dma1(i,nop=True):
        L=[]
        if i==0: L.append(f"s_mov_b32 m0, s{sBUF}\ns_nop 0")
        if i==4: L.append(f"s_add_u32 m0, s{sBUF}, 4096\ns_nop 0")
        L.append(f"buffer_load_dwordx4 {P2(IDX+2*i)}, {SR4(sP)}, 0 idxen offen offset:{1024*(i&3)} lds")
        return "\n".join(L)
    def dma():
        for i in range(8): a(dma1(i))
    def rd_b3(q): return f"ds_read_addtid_b32 v{B3+4*q} offset:{Q2+q*QS}\nds_read_addtid_b32 v{B3+4*q+1} offset:{Q2+q*QS+256}"
    def rd_a3(off=0): return f"ds_read_b64 {P2(A3)}, v{VY} offset:{OH}\nds_read_b64 {P2(A3+2)}, v{RB} offset:{off}"
    def rd_a(t): return f"ds_read_b128 v[{A+4*t}:{A+4*t+3}], v{AR+t}"
    rd_s=f"s_mov_b64 exec, {S2(sMA)}\nds_read_b64 {P2(SS)}, v{SA} offset:{STB}\ns_mov_b64 exec, {S2(sMB)}\nds_read_b64 {P2(SS+2)}, v{SA} offset:{STB}\ns_mov_b64 exec, -1"
    rd_idx()
    a(f"""
ds_read_u16 v{WT}, v1 offset:{GN}
ds_read_b32 v{GP}, v3 offset:{MISC}
s_cmp_lt_u32 s{sWV}, {OLDF}
s_cbranch_scc0 K2_d0
s_waitcnt lgkmcnt(2)
""")
    dma()
    a("K2_d0:")
    pt('d0')
    a(f"""
v_lshrrev_b32 v2, 5, v{VL}              ; h
; slot = 16 b2 + 8 b4 + 4 b0 + 2 b3 + b1
v_and_b32 v3, 5, v{VL}
v_lshlrev_b32 v3, 2, v3
v_lshrrev_b32 v1, 1, v{VL}
v_and_or_b32 v3, v1, 9, v3
v_lshrrev_b32 v1, 2, v{VL}
v_and_or_b32 v3, v1, 2, v3              ; slot
v_lshl_add_u32 v{RB}, v3, 4, s{t1}
ds_read_u16 v{VY}, v{RB} offset:10
v_lshl_add_u32 v3, v3, 8, s{sBUF}
v_and_b32 v1, 15, v{VL}
v_xor_b32 v1, v2, v1
v_lshl_add_u32 v{AR}, v1, 4, v3
""")
    for t in range(1,8): a(f"v_xor_b32 v{AR+t}, {32*t}, v{AR}")
    a(f"""
v_mul_i32_i24 v{OHC}, -8, v2
v_lshl_add_u32 v{SA}, v2, 3, v{SA}
v_add_u32 v{SA}, s{t2}, v{SA}
s_waitcnt lgkmcnt(1)
v_readfirstlane_b32 s{sNF}, v{WT}
v_readfirstlane_b32 s{t3}, v{GP}
v_and_b32 v1, 1, v{VL}
v_lshlrev_b32 v1, 4, v1
v_mov_b32 v3, 0x3f80
v_lshlrev_b32 v1, v1, v3                ; 0x3f80 << 16*(odd)
s_or_b32 s{sFLAG}, s{sFLAG}, s{t3}
s_lshr_b32 s{t2}, s{sNF}, 7
v_subrev_u32 v2, s{t2}, v{VL}
v_and_b32 v2, 15, v2
v_add_u32 v{DR}, s{t2}, v2
v_lshlrev_b32 v2, 2, v{DR}
ds_read_b32 v{SS}, v2 offset:{BT}
""")
    for s in range(2):
        for j in range(4):
            lo=3<<(16*s+2*j); hi=(3<<(16*s+8+2*j))
            a(f"s_mov_b32 vcc_lo, {hex(lo)}\ns_mov_b32 vcc_hi, {hex(hi)}\nv_cndmask_b32 v{ID0+4*s+j}, 0, v1, vcc")
    a(f"s_cmp_lt_u32 s{sWV}, {OLDF}\ns_cbranch_scc1 K2_d1")
    dma()
    a("K2_d1:")
    pt('d1')
    a(f"""
s_lshr_b32 s{sW8}, s{sNF}, 4
s_sub_u32 s{sW8}, 0, s{sW8}
s_mov_b32 m0, s{sNF}
s_waitcnt vmcnt(8) lgkmcnt(0)
v_add3_u32 v{VY}, v{VY}, v{OHC}, s{sW8}
""")
    for q in range(4): a(rd_b3(q))
    a(rd_a3())
    fill=f"""
s_add_u32 s{t1}, s{sT0}, s{sCNT}
s_lshl_b32 s{t1}, s{t1}, 9
s_add_u32 s{t2}, s{sWV}, 48
v_mov_b32 v1, s{t2}
v_cmp_gt_u32 vcc, s{t0}, v{SS}
v_cmp_gt_u32 {S2(t2)}, s{t1}, v{SS}
v_cmp_gt_u32 {S2(t0)}, s{sNN}, v{DR}
v_cndmask_b32 v{DR}, v{DR}, v1, vcc
s_cmp_lg_u64 vcc, 0
s_cselect_b32 s{sHEAD}, 1, 0
s_and_b64 vcc, {S2(t2)}, {S2(t0)}
v_lshrrev_b32 v1, 2, v{VL}
v_cndmask_b32 v{DR}, 63, v{DR}, vcc
v_and_b32 v1, 4, v1
v_xor_b32 v1, v1, v{DR}
v_and_b32 v1, 15, v1
v_lshlrev_b32 v1, 4, v1
v_lshl_add_u32 v{DR}, v{DR}, 8, v1
v_sub_u32 v{DR}, v{DR}, v{OHC}
v_mov_b32 v{SS}, 0
v_mov_b32 v{SS+1}, 0
v_mov_b32 v{SS+2}, 0
v_mov_b32 v{SS+3}, 0
s_mov_b32 s{sINC}, 512
s_mov_b32 s{sINC+1}, 512
s_mov_b32 s{sMA}, 0x0000ffff
s_mov_b32 s{sMA+1}, 0x0000ffff
s_not_b64 {S2(sMB)}, {S2(sMA)}
v_lshlrev_b32 v1, 4, v{VL}
v_mov_b32 v3, 0
s_mov_b32 s{sI}, 1
s_sub_u32 s{sCNT}, s{sCNT}, 1
""".strip().split("\n")
    for T in range(4):
        for s in range(4):
            x,y=(WU1+4*s,XF+16*T+4*s) if T<3 else (XF+16*T+4*s,WU1+4*s)
            a(mfma16(UA+4*T,x,y,None if s==0 else UA+4*T))
            for _ in range(2):
                if fill: a(fill.pop(0))
    assert not fill
    rd_idx(512)
    a(mfma32(ACC+16,SS,SS,None))
    for j in range(7): a(f"v_mul_f32 v{UA+2*j}, s{sL2E}, v{UA+2*j}"+(f"\nv_mul_f32 v{UA+2*j+1}, s{sL2E}, v{UA+2*j+1}" if j<6 else ""))
    a(f"s_cmp_lg_u32 s{sFLAG}, 0\ns_cbranch_scc1 K2_SLOW")
    pt('pre')
    if PRIO: a("s_setprio 3")
    a("s_waitcnt vmcnt(0)")
    pt('g0')
    for t in range(8): a(rd_a(t))
    a("s_waitcnt lgkmcnt(6)")
    a(mfma32(Z[0],A3,B3,None)); a(mfma32(Z[0],A,ID0,Z[0])); a(mfma32(Z[0],A+4,ID1,Z[0]))
    a("s_nop 3\ns_waitcnt lgkmcnt(0)")
    pt('pro')
    def finals(qprev):
        for u in range(2): a(f"v_pk_mul_f32 {P2(NN+2*u)}, {P2(NN+2*u)}, {P2(DD+2*u)}")
        for u in range(2): a(f"v_cvt_pk_bf16_f32 v{GP+2*(qprev&1)+u}, v{NN+2*u}, v{NN+2*u+1}")
    def ex(zc,r): return f"v_exp_f32 v{EE+r}, v{zc+r}"
    def body(first):
        for q in range(4):
            zc=Z[q&1]; zn=Z[(q+1)&1]; qn=(q+1)&3
            ms=[(A3,B3+4*qn),(A+8*qn,ID0),(A+8*qn+4,ID1)]
            if q==3: ms=[ms[1],ms[2],ms[0]]
            pend=[0,1,2,3,8,9,10,11,4,5,12,13,6,7,14,15]
            f0=first and q==0
            if q==0:
                a(f"v_readlane_b32 s{sQ}, v{WT}, s{sI}")
                a(f"ds_read_u16 v{VY}, v{RB} offset:{512+10}")
                if not first: rd_idx(1024)
                else: a("s_nop 3")
            if q==2:
                a("s_waitcnt vmcnt(0)")
                for t in range(6): a(rd_a(t))
            if q==3:
                a(f"s_waitcnt lgkmcnt(0)\ns_cmp_gt_u32 s{sCNT}, 1\ns_cselect_b64 vcc, -1, 0")
            a(mfma32(zn,ms[0][0],ms[0][1],None))
            if not f0:
                for j in range(4): a(f"v_rcp_f32 v{DD+j}, v{DD+j}")
            else:
                for r in range(4): a(ex(zc,pend.pop(0)))
            if q==0:
                a(f"s_lshr_b32 s{sW8}, s{sQ}, 4\ns_mov_b32 m0, s{sQ}\ns_sub_u32 s{sW8}, 0, s{sW8}")
                a(rd_b3(0)); a(rd_b3(1))
            if q==1:
                if first: a(f"s_mov_b32 m0, s{sQ}"); rd_idx(1024)
                a(rd_b3(2))
            if q==2: a(rd_b3(3)); a(rd_a3(512))
            a(mfma32(zn,ms[1][0],ms[1][1],zn))
            for r in range(4): a(ex(zc,pend.pop(0)))
            a(mfma32(zn,ms[2][0],ms[2][1],zn))
            for r in range(4): a(ex(zc,pend.pop(0)))
            if q&1:
                p=1 if q==1 else 0
                if not (first and q==1):
                    a(mfma32(ACC+16*p,GP,SS,None if first else ACC+16*p))
                    for r in range(4): a(ex(zc,pend.pop(0)))
                if q==1: a(rd_s)
            if q==2: a(rd_a(6)); a(rd_a(7))
            if not f0: finals((q-1)&3)
            seq=[]
            for u in range(2): seq.append(f"v_pk_add_f32 {P2(DD+2*u)}, {P2(EE+8*u)}, 1.0 op_sel_hi:[1,0]")
            for m in range(1,4):
                for u in range(2):
                    src=(zc+8*u) if m==1 else NN+2*u
                    seq.append(f"v_pk_fma_f32 {P2(NN+2*u)}, {P2(src)}, {P2(EE+8*u+2*m)}, {P2(src)}")
                for u in range(2): seq.append(f"v_pk_fma_f32 {P2(NN+2*u)}, {P2(zc+8*u+2*m)}, {P2(DD+2*u)}, {P2(NN+2*u)}")
                for u in range(2): seq.append(f"v_pk_fma_f32 {P2(DD+2*u)}, {P2(DD+2*u)}, {P2(EE+8*u+2*m)}, {P2(DD+2*u)}")
            slots=[0,1,2,3,5,7,9,11] if len(pend)==8 else [1,4,7,10]
            dpos={}
            if (q==3 or f0) and not X&1:
                for i in range(8): dpos.setdefault(DSP[i],[]).append(i)
            for k,x in enumerate(seq):
                if k in dpos:
                    guard=(q==3 and not first)
                    lab=f"K2_l{k}"
                    if guard: a(f"s_cbranch_vccz {lab}")
                    for i in dpos[k]: a(dma1(i))
                    if guard: a(f"{lab}:")
                a(x)
                if k in slots: a(ex(zc,pend.pop(0)))
            if first and q==3: wload(WU2,2,1)
            if q==1: a(f"s_waitcnt lgkmcnt({2 if first else 4})\nv_add3_u32 v{VY}, v{VY}, v{OHC}, s{sW8}\nv_add_u32 v{SA}, 16, v{SA}")
            if q==2: a(f"v_pk_add_f32 {P2(RB)}, {P2(RB)}, {S2(sINC)}")
    body(True)
    a("s_branch K2_LE\n.p2align 6\nK2_LOOP:")
    body(False)
    a("K2_LE:")
    if PRIO:
        for rem,pr in ((5,2),(3,1),(1,0)):
            a(f"s_cmp_eq_u32 s{sCNT}, {rem}\ns_cbranch_scc0 K2_pr{rem}\ns_setprio {pr}\nK2_pr{rem}:")
    a(f"""
s_add_u32 s{sI}, s{sI}, 1
s_sub_u32 s{sCNT}, s{sCNT}, 1
s_cbranch_scc0 K2_LOOP
""")
    for j in range(4): a(f"v_rcp_f32 v{DD+j}, v{DD+j}")
    a("s_nop 0")
    finals(3)
    a("s_nop 1")
    a(mfma32(ACC+16,GP,SS,ACC+16))
    pt('loop')
    for p in range(2):
        if p==1: a("s_nop 0")
        for j in range(4):
            c=ACC+16*p+4*j
            a(f"v_cvt_pk_bf16_f32 v{c}, v{c}, v{c+1}\nv_cvt_pk_bf16_f32 v{c+1}, v{c+2}, v{c+3}")
            if p or j: a(f"v_xor_b32 v1, {(8*p+j)*16}, v{DR}")
            a(f"ds_write_b64 v{1 if (p or j) else DR}, {P2(c)} offset:{AGB}")
    a(f"""
s_lshr_b32 s{t0}, s{sNF}, 7             ; nf
s_and_b32 s{t1}, s{t0}, 15
s_lshl_b32 s{t1}, s{t1}, 4
s_lshl_b32 s{t0}, s{t0}, 8
s_or_b32 s{t0}, s{t0}, s{t1}
s_mul_i32 s{t1}, s{sWV}, 272
s_add_u32 s{t1}, s{t1}, {48*256}
v_lshlrev_b32 v3, 2, v{VL}
v_xor_b32 v1, s{t0}, v3
v_xor_b32 v2, s{t1}, v3
s_cmp_eq_u32 s{sHEAD}, 0
s_waitcnt lgkmcnt(0)
s_barrier
s_cbranch_scc1 K2_FIN
ds_read_b32 v4, v1 offset:{AGB}
ds_read_b32 v5, v2 offset:{AGB}
s_waitcnt lgkmcnt(0)
v_lshlrev_b32 v6, 16, v4
v_and_b32 v7, 0xffff0000, v4
v_lshlrev_b32 v8, 16, v5
v_and_b32 v9, 0xffff0000, v5
v_pk_add_f32 v[6:7], v[6:7], v[8:9]
v_cvt_pk_bf16_f32 v6, v6, v7
ds_write_b32 v1, v6 offset:{AGB}
K2_FIN:
""")
    OST=GBUF
    srd(a,sX,16,N*256)
    a(f"""
v_and_b32 v1, 15, v{VL}
s_lshl_b32 s{t0}, s{sWV}, 1
v_lshrrev_b32 v2, 5, v{VL}
v_or_b32 v2, s{t0}, v2
v_xor_b32 v2, v2, v1
v_lshlrev_b32 v2, 4, v2
v_lshl_add_u32 v2, v1, 8, v2
v_lshrrev_b32 v3, 1, v{VL}
v_and_or_b32 v2, v3, 8, v2
v_add_u32 v{AR}, {OST}, v2
v_lshlrev_b32 v{AR+1}, 1, v1
s_waitcnt vmcnt(0) lgkmcnt(0)
s_barrier
""")
    pt('mrg')
    for T in range(4):
        for s in range(4): a(f"ds_read_b128 v[{XF+16*T+4*s}:{XF+16*T+4*s+3}], v{FA+s} offset:{T*4096}")
        if T==2:
            a("s_waitcnt lgkmcnt(8)")
            for s in range(4): a(mfma16(UA,WU2+4*s,XF+4*s,UA))
    def silu(T):
        c=UA+4*T; e=EE+4*T
        L=[f"v_exp_f32 v{e+i}, v{c+i}" for i in range(4)]
        L+=[f"v_fma_f32 v{e+i}, v{e+i}, s{sL2E}, s{sL2E}" for i in range(4)]
        L+=[f"v_rcp_f32 v{e+i}, v{e+i}" for i in range(4)]
        L+=[f"v_mul_f32 v{e+i}, v{e+i}, v{c+i}" for i in range(4)]
        L+=[f"v_cvt_pk_bf16_f32 v{e}, v{e}, v{e+1}",f"v_cvt_pk_bf16_f32 v{e+1}, v{e+2}, v{e+3}",f"ds_write_b64 v{AR}, {P2(e)} offset:{T*4096}"]
        return L
    for T in range(1,4):
        a(f"s_waitcnt lgkmcnt({4*(3-T)})")
        for s in range(4):
            x,y=(WU2+4*s,XF+16*T+4*s) if T<3 else (XF+16*T+4*s,WU2+4*s)
            a(mfma16(UA+4*T,x,y,UA+4*T))
    for T in range(3):
        for x in silu(T): a(x)
    c=UA+12; e=EE+12
    a(f"""
v_exp_f32 v{e}, v{c}
s_add_u32 s{t0}, s{sK}, {48*256}
v_fma_f32 v{e}, v{e}, s{sL2E}, s{sL2E}
v_rcp_f32 v{e}, v{e}
s_lshl_b32 s{t0}, s{t0}, 8
v_mul_f32 v{e}, v{e}, v{c}
s_lshl_b32 s{t1}, s{sWV}, 5
s_add_u32 s{t0}, s{t0}, s{t1}
v_cvt_pk_bf16_f32 v{e}, v{e}, v{e}
s_mov_b32 exec_lo, 0xffff
s_mov_b32 exec_hi, 0
buffer_store_short v{e}, v{AR+1}, {SR4(sX)}, s{t0} offen
s_mov_b64 exec, -1
v_lshlrev_b32 v1, 4, v0
v_add_u32 v1, {OST}, v1
v_lshrrev_b32 v2, 4, v0                 ; node (0..31)
v_xor_b32 v3, v2, v0
v_and_b32 v3, 15, v3
v_lshlrev_b32 v3, 4, v3
v_lshl_add_u32 v3, v2, 16, v3
s_lshl_b32 s{t0}, s{sK}, 8
s_add_u32 s{t1}, s{t0}, {32*65536}
s_waitcnt lgkmcnt(0)
s_barrier
ds_read_b128 v[{A}:{A+3}], v1
s_cmp_lt_u32 s{sWV}, 4
s_cbranch_scc0 K2_e1
ds_read_b128 v[{A+4}:{A+7}], v1 offset:8192
s_waitcnt lgkmcnt(0)
buffer_store_dwordx4 v[{A+4}:{A+7}], v3, {SR4(sX)}, s{t1} offen
K2_e1:
s_waitcnt lgkmcnt(0)
buffer_store_dwordx4 v[{A}:{A+3}], v3, {SR4(sX)}, s{t0} offen
""")
    if PROF: a("s_waitcnt vmcnt(0)")
    stamp(a,10); stamp(a,11,True)
    stamp_out(a,1,sWV)
    a("K2_END:\ns_endpgm")
    SV=ACC
    AGs=SV+8
    a(f"""
K2_SLOW:
""")
    wload(WU2,2,1)
    a(f"""
v_max_u32 v1, v{TT}, v{TT+1}
v_max3_u32 v1, v1, v{TT+2}, v{TT+3}
v_lshrrev_b32 v1, 16, v1
ds_max_u32 v3, v1 offset:{MISC+4}
v_mov_b32 v{SS}, 0
v_mov_b32 v{SS+1}, 0
v_mov_b32 v{SS+2}, 0
v_mov_b32 v{SS+3}, 0
s_waitcnt vmcnt(0) lgkmcnt(0)
s_barrier
ds_read_b32 v1, v3 offset:{MISC+4}
s_waitcnt lgkmcnt(0)
v_readfirstlane_b32 s{sMAXC}, v1
s_mov_b32 s{sRND}, 0
s_sub_u32 s{t0}, s{sWV}, s{sT0}
s_lshl_b32 s{t0}, s{t0}, 9
v_add_u32 v{SV+4}, s{t0}, v{RB}
v_add_u32 v{SV+5}, s{t0}, v{SB}
s_lshl_b32 s{t0}, s{sWV}, 4
v_sub_u32 v{SV+6}, s{t0}, v{OHC}
v_and_b32 v{SV+7}, 31, v{VL}
v_lshlrev_b32 v{SV+7}, 2, v{SV+7}
""")
    for s in range(4): a(f"v_mov_b32 v{SV+s}, v{FA+s}")
    a(f"v_lshlrev_b32 v1, 4, v0")
    for j in range(4): a(f"ds_write_b128 v1, v[{SS}:{SS+3}] offset:{AGG+j*8192}")
    a(f"""
K2_SR:
s_lshl_b32 s{t0}, s{sRND}, 3
s_cmp_lt_u32 s{t0}, s{sMAXC}
s_cbranch_scc0 K2_SE
s_waitcnt lgkmcnt(0)
s_barrier
v_lshlrev_b32 v1, 4, v0
""")
    init_rec()
    a(f"""
v_lshlrev_b32 v1, 2, v{VL}
ds_write_b32 v1, v{QA}
v_lshlrev_b32 v{QA+4}, 7, v{VL}
v_and_b32 v{FA+1}, 15, v0
v_cmp_gt_u32 {S2(sM+8)}, 8, v{FA+1}
v_add_u32 v{FA+1}, s{t0}, v{FA+1}
v_lshrrev_b32 v2, 4, v0
v_mul_u32_u24 v{FA}, {EPW}, v2
v_add_u32 v{FA}, v{FA}, v{FA+1}
v_mul_u32_u24 v{FA}, {RSZ}, v{FA}
""")
    recs(True)
    a("s_waitcnt lgkmcnt(0)\ns_barrier")
    hist(4,"K2_sh",0)
    a("s_waitcnt lgkmcnt(0)\ns_barrier")
    scan()
    a(f"s_nop 3\ns_add_u32 s{sNT}, s{t0}, 511\ns_lshr_b32 s{sNT}, s{sNT}, 9")
    scatter(4,"K2_ss",True)
    a(f"""
s_waitcnt lgkmcnt(0)
s_barrier
v_mov_b32 v{RB}, v{SV+4}
v_mov_b32 v{SB}, v{SV+5}
v_mov_b32 v{SV+12}, v{SV+6}
s_mov_b32 s{sI}, s{sWV}
K2_ST:
s_cmp_lt_u32 s{sI}, s{sNT}
s_cbranch_scc0 K2_SN
""")
    rd_idx()
    for j in range(4): a(f"ds_read_u16 v{AGs+j}, v{SV+12} offset:{GN+2*j}")
    a(f"ds_read_u16 v{VY}, v{RB} offset:10\ns_waitcnt lgkmcnt(0)")
    dma()
    a(f"""
v_readfirstlane_b32 s{sQ}, v{AGs}
s_nop 3
s_lshr_b32 s{sW8}, s{sQ}, 4
s_sub_u32 s{sW8}, 0, s{sW8}
s_mov_b32 m0, s{sQ}
v_add3_u32 v{VY}, v{VY}, v{OHC}, s{sW8}
""")
    for q in range(4): a(rd_b3(q))
    a(rd_a3())
    for j in range(4): a(f"v_lshl_add_u32 v{AGs+j}, v{AGs+j}, 2, v{SV+7}")
    a("s_waitcnt vmcnt(0) lgkmcnt(0)")
    for t in range(8): a(rd_a(t))
    a("s_waitcnt lgkmcnt(0)")
    for q in range(4):
        z=Z[0]
        a(mfma32(z,A3,B3+4*q,None)); a(mfma32(z,A+8*q,ID0,z)); a(mfma32(z,A+8*q+4,ID1,z))
        a("s_nop 15")
        for r in range(16): a(f"v_exp_f32 v{EE+r}, v{z+r}")
        for r in range(16): a(f"v_add_f32 v{EE+r}, 1.0, v{EE+r}")
        for r in range(16): a(f"v_rcp_f32 v{EE+r}, v{EE+r}")
        for m in range(4):
            for u in range(2):
                for par in range(2):
                    r=8*u+2*m+par; g=GP+2*u+par
                    a(f"v_mul_f32 v{g}, v{z+r}, v{EE+r}" if m==0 else f"v_fmac_f32 v{g}, v{z+r}, v{EE+r}")
        for j in range(4): a(f"ds_add_f32 v{AGs+j}, v{GP+j} offset:{AGG+q*128}")
        a("s_waitcnt lgkmcnt(0)")
    a(f"""
v_add_u32 v{SB}, 4096, v{SB}
v_add_u32 v{RB}, 4096, v{RB}
v_add_u32 v{SV+12}, 128, v{SV+12}
s_add_u32 s{sI}, s{sI}, 8
s_branch K2_ST
K2_SN:
s_add_u32 s{sRND}, s{sRND}, 1
s_branch K2_SR
K2_SE:
v_lshlrev_b32 v1, 4, v0
v_lshrrev_b32 v2, 5, v0                 ; node&15
s_waitcnt vmcnt(0) lgkmcnt(0)
s_barrier
""")
    for j in range(4): a(f"ds_read_b128 v[{A+4*j}:{A+4*j+3}], v1 offset:{AGG+j*8192}")
    a(f"""
v_bfe_u32 v3, v0, 1, 4
v_xor_b32 v3, v3, v2
v_lshlrev_b32 v3, 4, v3
v_lshl_add_u32 v3, v2, 8, v3
v_and_b32 v1, 1, v0
v_lshl_add_u32 v3, v1, 3, v3
s_waitcnt lgkmcnt(0)
s_barrier
""")
    for j in range(4):
        a(f"v_cvt_pk_bf16_f32 v{A+4*j}, v{A+4*j}, v{A+4*j+1}\nv_cvt_pk_bf16_f32 v{A+4*j+1}, v{A+4*j+2}, v{A+4*j+3}")
        a(f"ds_write_b64 v3, {P2(A+4*j)} offset:{AGB+j*4096}")
    for s in range(4): a(f"v_mov_b32 v{FA+s}, v{SV+s}")
    a("s_branch K2_FIN")
    return a.text()
```

```python
from common import *
X=int(os.environ.get('X','0'))
PRIO=int(os.environ.get('PRIO','1'))
DSP=[int(c,36) for c in os.environ.get('DSP','00000000')]
OLDF=int(os.environ.get('OLDF','8'))
PTS=os.environ.get('PTS','b1,bS,bW,bF,bR,b2,b3,pro').split(',')
SC=' sc1'
GSC=os.environ.get('GSC',' sc1')
NPROD=250; EP=1600
F_P=0x1000; F_REC=0x400000; F_TBL=0xB00000; F_FLG=0xB90000; F_SIZE=0xBA0000
CNT=0; MISC=256; OH=392; GN=1024; BT=2304; STB=2816; RS=1040
AGB=STB+16*RS
W3L=AGB+56*256
Q2=AGB+16384; QS=52*128
S1=Q2; ERAW=Q2+12800
REC=Q2+4*QS
LIST=REC; PSC=REC+8192
GBUF=REC+32768
HIST=GBUF+65536; BASE=HIST+1024
KF_LDS=BASE+1024
AGG=STB
ONE2=0x3F803F80
NULLW2=0xFFFF|(512<<16)
PADMIN=20
CAPT=63
ID0=4; ID1=8; B3=12; A=28; Z=[60,76]; A3=92; EE=96; NN=112; DD=116; GP=120; SS=124
IDX=128; AR=144; RB=152; SB=153; SA=154; VY=155; OHC=156; VL=157; WT=158; DR=159
ACC=160; WU2=192; UA=208; WF=160; WU1=176; QA=224; RC=96; XF=28; GA=192
TRU=240; TD=241; TC=242; TO=243; RK=244; FA=252
sP=24; sX=28; sA=32; sR=36; sM=40
sWV=56; sK=57; sNN=58; sI=59; sNT=60; sBUF=61; sQ=62; sW8=63; sCNT=64; sT0=65
sL2E=66; sINC=68; sRND=70; sTOT=71; sNON=72; sBUD=73; sW4=74; sBAD=75
sFLAG=76; sLO=77; sMA=78; sMB=80; sHEAD=82; sNF=83
t0,t1,t2,t3=84,85,86,87
BUDGET=20000

def mfma32(d,x,y,c): return f"v_mfma_f32_32x32x16_bf16 v[{d}:{d+15}], v[{x}:{x+3}], v[{y}:{y+3}], "+("0" if c is None else f"v[{c}:{c+15}]")
def mfma16(d,x,y,c): return f"v_mfma_f32_16x16x32_bf16 v[{d}:{d+3}], v[{x}:{x+3}], v[{y}:{y+3}], "+("0" if c is None else f"v[{c}:{c+3}]")
def P2(r): return f"v[{r}:{r+1}]"
def P4(r): return f"v[{r}:{r+3}]"
def S2(r): return f"s[{r}:{r+1}]"
def SR4(r): return f"s[{r}:{r+3}]"

def gen_kf(name):
    a=Asm()
    def pt(n):
        if PROF and n in PTS: stamp(a,2+PTS.index(n))
    def bar(n,w="s_waitcnt lgkmcnt(0)"):
        a(w+"\ns_barrier"); pt(n)
    def consts():
        srd(a,sP,20,N,off=F_P-3072,stride=256)
        srd(a,sR,20,F_SIZE)
        a(f"""
s_cmp_lt_u32 s{sK}, {N-256*48}
s_cselect_b32 s{sNN}, 49, 48
s_lshl_b32 s{sBUF}, s{sWV}, 13
s_add_u32 s{sBUF}, s{sBUF}, {GBUF}
s_mov_b32 s{sL2E}, {hex(LOG2E_NEG)}
s_mov_b32 s{sL2E+1}, {hex(LOG2E_NEG)}
s_mov_b32 s{sINC}, 512
s_mov_b32 s{sINC+1}, 512
s_mov_b32 s{sMA}, 0x0000ffff
s_mov_b32 s{sMA+1}, 0x0000ffff
s_not_b64 {S2(sMB)}, {S2(sMA)}
s_mov_b32 s{sBUD}, {BUDGET}
v_lshrrev_b32 v2, 5, v{VL}              ; h
v_and_b32 v3, 5, v{VL}
v_lshlrev_b32 v3, 2, v3
v_lshrrev_b32 v1, 1, v{VL}
v_and_or_b32 v3, v1, 9, v3
v_lshrrev_b32 v1, 2, v{VL}
v_and_or_b32 v3, v1, 2, v3              ; slot
v_lshlrev_b32 v{RB}, 4, v3
v_lshl_add_u32 v3, v3, 8, s{sBUF}
v_and_b32 v{WT}, 15, v{VL}              ; n / c16
v_xor_b32 v1, v2, v{WT}
v_lshl_add_u32 v{AR}, v1, 4, v3
""")
        for t in range(1,8): a(f"v_xor_b32 v{AR+t}, {32*t}, v{AR}")
        a(f"""
v_mul_i32_i24 v{OHC}, -8, v2
v_mul_u32_u24 v{SA}, {RS}, v{WT}
v_and_b32 v1, 1, v{VL}
v_lshlrev_b32 v1, 4, v1
v_mov_b32 v3, 0x3f80
v_lshlrev_b32 v1, v1, v3
""")
        for s in range(2):
            for j in range(4):
                lo=3<<(16*s+2*j); hi=(3<<(16*s+8+2*j))
                a(f"s_mov_b32 vcc_lo, {hex(lo)}\ns_mov_b32 vcc_hi, {hex(hi)}\nv_cndmask_b32 v{ID0+4*s+j}, 0, v1, vcc")
        a(f"""
v_lshrrev_b32 v2, 4, v{VL}              ; a / g
v_lshlrev_b32 v{SB}, 4, v2
v_lshrrev_b32 v1, 2, v{VL}
v_and_b32 v1, 8, v1
v_lshrrev_b32 v3, 3, v{VL}
v_and_or_b32 v1, v3, 2, v1
v_xor_b32 v1, v1, v{WT}
v_lshlrev_b32 v1, 4, v1
""")
        for i in range(8): a(f"v_xor_b32 v{IDX+2*i+1}, {(4*(i>>2)+(i&1))*16+3072-1024*(i&3)}, v1")
        a(f"v_xor_b32 v3, v2, v{WT}\nv_lshlrev_b32 v3, 4, v3\nv_lshl_add_u32 v3, v{WT}, 8, v3\nv_add_u32 v{FA}, {AGB}, v3")
        for s in range(1,4): a(f"v_xor_b32 v{FA+s}, {64*s}, v{FA}")
        a(f"""
v_lshrrev_b32 v1, 2, v{WT}
v_lshl_add_u32 v3, v2, 3, v1
v_lshlrev_b32 v3, 8, v3
v_add_u32 v{VY}, {GBUF}, v3
v_and_b32 v2, 1, v2
v_lshl_or_b32 v{DR}, v2, 2, v1
v_and_b32 v1, 3, v{VL}
v_lshl_add_u32 v3, v1, 3, v{VY}
v_xor_b32 v2, s{sWV}, v{DR}
v_lshl_add_u32 v{TRU}, v2, 5, v3
""")
    def trfrag(dst,addr,off):
        for s in range(4):
            a(f"ds_read_b64_tr_b16 {P2(dst+4*s)}, v{addr} offset:{off+s*8192}\nds_read_b64_tr_b16 {P2(dst+4*s+2)}, v{addr} offset:{off+s*8192+1024}")
    def wdma_addr(v):
        a(f"""
v_bfe_u32 v1, v0, 4, 4                  ; 4w'+a
v_and_b32 v2, 8, v1
v_and_b32 v3, 3, v1
v_lshl_or_b32 v2, v3, 1, v2             ; 2f
v_xor_b32 v2, v2, v0
v_and_b32 v2, 15, v2
v_lshlrev_b32 v2, 4, v2
v_lshl_or_b32 v{v}, v1, 8, v2
""")
    def wdma(v,sr,goff,moff):
        a(f"s_lshl_b32 s{t0}, s{sW4}, 10")
        for j in range(8):
            a(f"s_add_u32 m0, s{t0}, {GBUF+goff+j*4096}\ns_mov_b32 s{t1}, {moff+j*4096}\nbuffer_load_dwordx4 v{v}, {SR4(sr)}, s{t1} offen lds")
    def xfrags(Ts):
        for T in Ts:
            for s in range(4): a(f"ds_read_b128 {P4(XF+16*T+4*s)}, v{FA+s} offset:{T*4096}")
    def ugemm():
        for T in range(4):
            for s in range(4):
                x,y=(WU1+4*s,XF+16*T+4*s) if T<3 else (XF+16*T+4*s,WU1+4*s)
                a(mfma16(UA+4*T,x,y,None if s==0 else UA+4*T))
    def uscale():
        for j in range(7): a(f"v_pk_mul_f32 {P2(UA+2*j)}, {P2(UA+2*j)}, {S2(sL2E)}")
    def w3rd():
        a(f"v_lshlrev_b32 v1, 3, v{VL}")
        for q in range(4): a(f"ds_read_b64 {P2(B3+4*q+2)}, v1 offset:{W3L+q*512}")
    def scan(keepcnt=None):
        a(f"""
v_lshlrev_b32 v1, 2, v{VL}
ds_read_b32 v{keepcnt if keepcnt else 3}, v1
v_cmp_gt_u32 vcc, s{sNN}, v{VL}
s_waitcnt lgkmcnt(0)
v_add_u32 v3, 48, v{keepcnt if keepcnt else 3}
v_and_b32 v3, 0xffffffc0, v3
v_max_u32 v3, {PADMIN*16}, v3
v_cndmask_b32 v3, 0, v3, vcc
v_mov_b32 v2, v3
""")
        dpp_scan(a,"v_add_u32",[2])
        a(f"""
v_readlane_b32 s{t0}, v2, 63
v_sub_u32 v2, v2, v3
""")
    def ranges(lab):
        a(f"""
s_add_u32 s{sNT}, s{t0}, 511
s_lshr_b32 s{sNT}, s{sNT}, 9
s_lshr_b32 s{sCNT}, s{sNT}, 3
s_lshl_b32 s{t1}, s{sCNT}, 9
v_cmp_lt_u32 vcc, s{t1}, v3
s_mov_b32 s{sFLAG}, 1
s_cmp_gt_u32 s{sNT}, {CAPT}
s_cbranch_scc1 {lab}
s_cmp_lg_u64 vcc, 0
s_cbranch_scc1 {lab}
s_mov_b32 s{sFLAG}, 0
""")
    def expand(lab,cap):
        a(f"""
v_subrev_u32 v1, s{sLO}, v{TO}
v_add_u32 v2, v1, v{TC}
v_med3_i32 v1, v1, 0, s{t3}
v_med3_i32 v2, v2, 0, s{t3}
v_sub_u32 v2, v2, v1
v_lshlrev_b32 v1, 2, v1
{lab}:
""")
        for j in range(16):
            a(f"v_cmpx_lt_i32 vcc, {j}, v2\nds_write_b32 v1, v{TD} offset:{LIST+4*j}")
        a(f"""
v_add_u32 v2, -16, v2
v_add_u32 v1, 64, v1
v_cmp_lt_i32 vcc, 0, v2
s_cmp_lg_u64 vcc, 0
s_cbranch_scc1 {lab}
s_mov_b64 exec, -1
""")
    def recload(ns,lab):
        a(f"v_and_b32 v3, 255, v0\nv_lshlrev_b32 v1, 2, v3\nv_add_u32 v1, {LIST}, v1")
        for i in reversed(range(ns)): a(f"ds_read_b32 v{RK+i}, v1 offset:{1024*i}")
        a(f"v_add_u32 v2, s{sLO}, v3\nv_lshlrev_b32 v2, 4, v2\ns_mov_b32 s{t1}, s{sTOT}")
        for i in range(ns):
            a(f"v_cmp_gt_i32 {S2(sM+2*i)}, s{t1}, v3\ns_sub_u32 s{t1}, s{t1}, 256")
        for i in reversed(range(ns)):
            a(f"""
s_mov_b64 exec, {S2(sM+2*i)}
s_cbranch_execz {lab}{i}
s_waitcnt lgkmcnt({i})
v_add_u32 v{RK+i}, v{RK+i}, v2
s_mov_b32 s{t1}, {4096*i}
buffer_load_dwordx4 {P4(RC+4*i)}, v{RK+i}, {SR4(sR)}, s{t1} offen{SC}
{lab}{i}:
""")
        a("s_mov_b64 exec, -1")
    def hist(ns,lab):
        a("v_mov_b32 v1, 16")
        for i in reversed(range(ns)):
            a(f"""
s_mov_b64 exec, {S2(sM+2*i)}
s_cbranch_execz {lab}e{i}
s_waitcnt vmcnt({i})
{lab}c{i}:
v_cmp_ne_u32 vcc, s{sNON}, v{RC+4*i+3}
s_cbranch_vccnz {lab}r{i}
{lab}k{i}:
v_lshrrev_b32 v{RC+4*i+3}, 17, v{RC+4*i+2}
ds_add_rtn_u32 v{RK+i}, v{RC+4*i+3}, v1
{lab}e{i}:
""")
        a(f"s_mov_b64 exec, -1")
    def hist_retry(ns,lab):
        for i in range(ns):
            a(f"""
{lab}r{i}:
s_sub_u32 s{sBUD}, s{sBUD}, 1
s_cbranch_scc1 {lab}x{i}
s_mov_b64 exec, vcc
s_mov_b32 s{t1}, {4096*i}
buffer_load_dwordx4 {P4(RC+4*i)}, v{RK+i}, {SR4(sR)}, s{t1} offen{SC}
s_mov_b64 exec, {S2(sM+2*i)}
s_waitcnt vmcnt(0)
s_branch {lab}c{i}
{lab}x{i}:
s_mov_b32 s{sBUD}, 0
v_mov_b32 v{RC+4*i+2}, 0
s_branch {lab}k{i}
""")
    def scatter(ns,lab):
        a(f"ds_write_b32 v1, v2 offset:{BT}")
        for i in range(ns):
            a(f"s_mov_b64 exec, {S2(sM+2*i)}\nds_read_b32 v{RC+4*i+3}, v{RC+4*i+3} offset:{BT}")
        for i in range(ns):
            a(f"""
s_mov_b64 exec, {S2(sM+2*i)}
s_cbranch_execz {lab}e
s_waitcnt lgkmcnt({ns-1})
v_add_u32 v{RK+i}, v{RC+4*i+3}, v{RK+i}
ds_write_b96 v{RK+i}, v[{RC+4*i}:{RC+4*i+2}] offset:{REC}
""")
        a(f"{lab}e:\ns_mov_b64 exec, -1")
    def fill(lab,slow):
        a(f"""
v_lshrrev_b32 v{QA}, 5, v2
s_lshl_b32 s{t1}, s{sWV}, 1
s_lshl_b32 s{t2}, s{sWV}, 6
v_add_u32 v{QA}, s{t1}, v{QA}
v_subrev_u32 v{QA+2}, s{t2}, v3         ; padded - 64w
v_lshlrev_b32 v{QA+4}, 7, v{VL}
""")
        if not slow: a(f"v_add_u32 v{QA+1}, v{QA}, v{SA}\nv_mov_b32 v{QA+5}, 0x3f80")
        a(f"{lab}f:")
        for j in range(4):
            a(f"v_cmpx_lt_i32 vcc, {256*j}, v{QA+2}\nds_write_b16 v{QA}, v{QA+4} offset:{GN+8*j}")
            if not slow: a(f"ds_write_b16 v{QA+1}, v{QA+5} offset:{STB+8*j}")
        a(f"v_add_u32 v{QA+2}, -1024, v{QA+2}\nv_add_u32 v{QA}, 32, v{QA}")
        if not slow: a(f"v_add_u32 v{QA+1}, 32, v{QA+1}")
        a(f"""
v_cmp_lt_i32 vcc, 0, v{QA+2}
s_cmp_lg_u64 vcc, 0
s_cbranch_scc1 {lab}f
s_mov_b64 exec, -1
s_lshl_b32 s{t1}, s{sWV}, 4
v_mov_b32 v{QA+8}, 0
v_mov_b32 v{QA+9}, 0
v_mov_b32 v{QA+10}, {hex(NULLW2)}
v_add_u32 v{QA+6}, s{t1}, v{QA+6}
v_sub_u32 v{QA+2}, v3, v{QA+6}
v_add_u32 v{QA+6}, v2, v{QA+6}
v_lshl_add_u32 v{QA+7}, v{VL}, 4, s{t0}
s_mov_b32 exec_hi, 0
ds_write_b96 v{QA+7}, v[{QA+8}:{QA+10}] offset:{REC}
s_mov_b32 exec_hi, -1
""")
        for j in range(5):
            a(f"v_cmpx_lt_i32 vcc, {64*j}, v{QA+2}\nds_write_b96 v{QA+6}, v[{QA+8}:{QA+10}] offset:{REC+64*j}")
            if j==0: a(f"v_cmp_lt_i32 vcc, 64, v{QA+2}\ns_cmp_lg_u64 vcc, 0\ns_cbranch_scc0 {lab}p")
        a(f"{lab}p:\ns_mov_b64 exec, -1")

    a(f"""
{name}:
s_cmp_ge_u32 s2, 256
s_cbranch_scc1 KF_END
s_load_dwordx16 s[4:19], s[0:1], 0
s_load_dwordx2 s[20:21], s[0:1], 64
v_lshrrev_b32 v1, 6, v0
v_and_b32 v{VL}, 63, v0
v_readfirstlane_b32 s{sWV}, v1
s_and_b32 s{sK}, s2, 7
s_lshl_b32 s{sK}, s{sK}, 5
s_lshr_b32 s{t0}, s2, 3
s_or_b32 s{sK}, s{sK}, s{t0}
s_and_b32 s{sW4}, s{sWV}, 3
s_cmp_ge_u32 s{sWV}, 4
s_cbranch_scc1 KF_T
""")
    D=28; SRc=36; K=44; R=52; W2=60; RO=80
    sD=40; sS=44; sE=48
    a(f"""
s_min_u32 s{t2}, s2, {NPROD-1}
s_mul_i32 s{t2}, s{t2}, {EP*4}
v_lshlrev_b32 v108, 2, v0
v_add_u32 v109, 4096, v108
v_lshlrev_b32 v110, 4, v0
s_waitcnt lgkmcnt(0)
""")
    stamp(a,0,True); stamp(a,1)
    srd(a,sD,10,E*4)
    def ld7(dst,sr,lab):
        for i in range(6): a(f"buffer_load_dword v{dst+i}, v{108+i//4}, {SR4(sr)}, s{t2} offen offset:{(i&3)*1024}")
        a(f"s_cmp_eq_u32 s{sWV}, 0\ns_cbranch_scc0 {lab}\nbuffer_load_dword v{dst+6}, v109, {SR4(sr)}, s{t2} offen offset:2048\n{lab}:")
    ld7(D,sD,"KS_a")
    srd(a,sS,8,E*4); srd(a,sE,6,E*8)
    a("s_barrier")
    ld7(SRc,sS,"KS_b")
    a(f"s_lshl_b32 s{t2}, s{t2}, 1\ns_lshl_b32 s{t0}, s{sWV}, 10")
    for j in range(4):
        if j==3: a(f"s_cmp_eq_u32 s{sWV}, 0\ns_cbranch_scc0 KS_c")
        a(f"s_add_u32 m0, s{t0}, {ERAW+j*4096}\ns_add_u32 s{t1}, s{t2}, {j*4096}\nbuffer_load_dwordx4 v110, {SR4(sE)}, s{t1} offen lds")
    a("KS_c:")
    consts()
    a(f"""
s_lshl_b32 s{t0}, s{sWV}, 1
v_xor_b32 v2, s{t0}, v{DR}
v_lshl_add_u32 v{TC}, v2, 5, v3
v_xor_b32 v{TO}, 32, v{TC}
s_lshl_b32 s{t0}, s{sWV}, 2
v_or_b32 v1, s{t0}, v1                  ; 4u + c
v_lshlrev_b32 v2, 1, v{DR}
v_xor_b32 v1, v1, v2
v_lshl_add_u32 v{TD}, v1, 4, v{VY}
v_mov_b32 v111, 8
v_lshlrev_b32 v112, 3, v0
v_lshlrev_b32 v113, 4, v{VL}
v_add_u32 v113, {HIST}, v113
v_mov_b32 v114, 0
v_mov_b32 v115, 0
s_mov_b32 s{t3}, {HIST}
""")
    for i in range(7): a(f"v_add_u32 v{W2+1+2*i}, {i*2048}, v112")
    a(f"s_cmp_ge_u32 s2, {NPROD}\ns_cbranch_scc1 KS_d\ns_waitcnt vmcnt(9)")
    pt('dst')
    def keyrank(i):
        a(f"""
v_and_b32 v{K+i}, 255, v{D+i}
v_lshl_add_u32 v{K+i}, v{K+i}, 2, s{t3}
v_lshrrev_b32 v{D+i}, 8, v{D+i}
ds_add_rtn_u32 v{R+i}, v{K+i}, v111
""")
    for i in range(6): keyrank(i)
    a(f"s_cmp_eq_u32 s{sWV}, 0\ns_cbranch_scc0 KS_d")
    keyrank(6)
    a("KS_d:")
    bar('b1')
    a(f"""
s_cmp_ge_u32 s2, {NPROD}
s_cbranch_scc1 KS_g
ds_read_b128 v[116:119], v113
s_waitcnt lgkmcnt(0)
v_add_u32 v2, v116, v117
v_add3_u32 v2, v2, v118, v119
v_mov_b32 v3, v2
""")
    dpp_scan(a,"v_add_u32",[3])
    a(f"""
v_sub_u32 v120, v3, v2
v_add_u32 v121, v120, v116
v_add_u32 v122, v121, v117
v_add_u32 v123, v122, v118
ds_write_b128 v113, v[120:123] offset:1024
""")
    for i in range(6): a(f"ds_read_b32 v{K+i}, v{K+i} offset:1024")
    a(f"s_cmp_eq_u32 s{sWV}, 0\ns_cbranch_scc0 KS_e\nds_read_b32 v{K+6}, v{K+6} offset:1024\nKS_e:")
    a("s_waitcnt vmcnt(3)")
    for i in range(7): a(f"v_lshl_or_b32 v{W2+2*i}, v{D+i}, 19, v{SRc+i}")
    a("s_waitcnt lgkmcnt(0)")
    def scat(i): a(f"v_add_u32 v{K+i}, v{K+i}, v{R+i}\nds_write_b64 v{K+i}, {P2(W2+2*i)} offset:{S1}")
    for i in range(6): scat(i)
    a(f"s_cmp_eq_u32 s{sWV}, 0\ns_cbranch_scc0 KS_f")
    scat(6)
    a("KS_f:")
    for j in range(4): a(f"v_lshlrev_b32 v{120+j}, 1, v{120+j}\nv_lshl_or_b32 v{QA+2*j}, v{116+j}, 13, v{120+j}")
    a("KS_g:")
    a(f"v_mov_b32 v3, 0\nv_lshlrev_b32 v2, 5, v{VL}")
    pt('sc1')
    bar('bS',"s_waitcnt vmcnt(0) lgkmcnt(0)")
    a(f"""
ds_read_b32 v1, v3 offset:{MISC+8}
s_cmp_ge_u32 s2, {NPROD}
s_cbranch_scc1 KS_j
s_cmp_eq_u32 s{sWV}, 0
s_cbranch_scc0 KS_h
ds_read_b64 {P2(RO+26)}, v112 offset:{S1+6*2048}
s_waitcnt lgkmcnt(0)
ds_read_b64 {P2(RO+24)}, v{RO+27} offset:{ERAW}
KS_h:
""")
    for i in range(6): a(f"ds_read_b64 {P2(RO+2+4*i)}, v112 offset:{S1+i*2048}")
    for i in range(6): a(f"s_waitcnt lgkmcnt(5)\nds_read_b64 {P2(RO+4*i)}, v{RO+3+4*i} offset:{ERAW}")
    a(f"""
s_cmp_eq_u32 s{sWV}, 3
s_cbranch_scc0 KS_i
v_mov_b32 v{QA+1}, v1
v_mov_b32 v{QA+3}, v1
v_mov_b32 v{QA+5}, v1
v_mov_b32 v{QA+7}, v1
s_lshl_b32 s{t0}, s2, 11
s_add_u32 s{t0}, s{t0}, {F_TBL}
buffer_store_dwordx4 {P4(QA)}, v2, {SR4(sR)}, s{t0} offen{SC}
buffer_store_dwordx4 {P4(QA+4)}, v2, {SR4(sR)}, s{t0} offen offset:16{SC}
KS_i:
s_mul_i32 s{t0}, s2, {EP*16}
""")
    def outp(i): a(f"v_mov_b32 v{RO+3+4*i}, v1\ns_add_u32 s{t1}, s{t0}, {F_REC+i*4096}\nbuffer_store_dwordx4 {P4(RO+4*i)}, v110, {SR4(sR)}, s{t1} offen{SC}")
    def st(i): a(f"v_pk_maximum3_f16 v114, v114, v{RO+4*i}, v{RO+1+4*i}\nv_pk_minimum3_f16 v115, v115, v{RO+4*i}, v{RO+1+4*i}")
    for i in range(6): a(f"s_waitcnt lgkmcnt({5-i})"); outp(i)
    for i in range(6): st(i)
    a(f"s_cmp_eq_u32 s{sWV}, 0\ns_cbranch_scc0 KS_j")
    outp(6); st(6)
    a("KS_j:")
    pt('out')
    a("s_waitcnt lgkmcnt(0)")
    a(f"v_readfirstlane_b32 s{sNON}, v1")
    absmax_fin(a,114,115,2)
    a(f"""
s_lshl_b32 s{t0}, s{sWV}, 12
s_add_u32 s{t0}, s{t0}, {PSC}
v_lshrrev_b32 v1, 1, v{VL}
v_lshrrev_b32 v2, 4, v{VL}
v_xor_b32 v1, v1, v2
v_and_b32 v1, 3, v1
v_lshlrev_b32 v1, 4, v1
v_lshl_add_u32 v1, v{WT}, 6, v1
v_add_u32 v116, s{t0}, v1
v_lshl_add_u32 v117, v{VL}, 4, s{t0}
v_lshrrev_b32 v1, 3, v{VL}
v_xor_b32 v1, v1, v{VL}
v_and_b32 v1, 3, v1
v_lshlrev_b32 v1, 4, v1
v_lshrrev_b32 v2, 2, v{VL}
v_lshl_add_u32 v118, v2, 16, v1
""")
    bar('bW',"s_nop 0")
    a(f"ds_read_b32 v119, v3 offset:{MISC+12}")
    trfrag(WF,TD,0);
    xfrags([0])
    a("s_waitcnt lgkmcnt(0)")
    trfrag(WF+16,TD,8)
    xfrags([1])
    def pm(T,i):
        for s in range(4): a(mfma16(GA+8*T+4*i,WF+16*i+4*s,XF+16*T+4*s,None if s==0 else GA+8*T+4*i))
    pm(0,0)
    a("s_waitcnt lgkmcnt(4)"); xfrags([2,3]); pm(0,1)
    a("s_waitcnt lgkmcnt(8)"); pm(1,0); pm(1,1)
    a("s_waitcnt lgkmcnt(4)"); pm(2,0); pm(2,1)
    a("s_waitcnt lgkmcnt(0)"); pm(3,0); pm(3,1)
    a(f"""
v_mul_f32 v114, v114, v119
s_lshl_b32 s{t0}, s{sK}, 8
s_lshl_b32 s{t1}, s{sWV}, 6
s_add_u32 s{t0}, s{t0}, s{t1}
v_cmp_nge_f32 vcc, 0x41680000, v114      ; !(14.5 >= e*c3)
""")
    for T in range(4):
        c=GA+8*T
        for j in range(4): a(f"v_pk_mul_f32 {P2(c+2*j)}, {P2(c+2*j)}, {S2(sL2E)}")
        for j in range(4): a(f"v_cvt_pk_bf16_f32 v{c+j}, v{c+2*j}, v{c+2*j+1}")
        a(f"ds_write_b128 v116, {P4(c)} offset:{T*1024}\nds_read_b128 {P4(c+4)}, v117 offset:{T*1024}")
    a(f"s_mov_b64 {S2(sM)}, vcc")
    for T in range(4):
        c=GA+8*T+4
        a(f"s_add_u32 s{t1}, s{t0}, {F_P+T*16*65536}\ns_waitcnt lgkmcnt({2*(3-T)})")
        if T==3: a("s_mov_b64 exec, 15")
        a(f"buffer_store_dwordx4 {P4(c)}, v118, {SR4(sR)}, s{t1} offen{SC}")
        if T==0: a(f"v_pk_maximum3_f16 v114, v{c}, v{c+1}, v{c+2}\nv_pk_minimum3_f16 v115, v{c}, v{c+1}, v{c+2}\nv_pk_maximum3_f16 v114, v114, v{c+3}, v{c+3}\nv_pk_minimum3_f16 v115, v115, v{c+3}, v{c+3}")
        else: a(f"v_pk_maximum3_f16 v114, v114, v{c}, v{c+1}\nv_pk_minimum3_f16 v115, v115, v{c}, v{c+1}\nv_pk_maximum3_f16 v114, v114, v{c+2}, v{c+3}\nv_pk_minimum3_f16 v115, v115, v{c+2}, v{c+3}")
    a("s_mov_b64 exec, -1")
    pt('pst')
    bar('bF',"s_nop 0")
    trfrag(WF,TC,32768);
    absmax_fin(a,114,115,2)
    a(f"""
s_mul_i32 s{t0}, s{sWV}, {QS}
s_add_u32 s{t0}, s{t0}, {Q2}
v_cmp_lt_u32 vcc, 0x40e80000, v114
v_lshrrev_b32 v2, 4, v{VL}
v_lshl_add_u32 v116, v2, 9, s{t0}
v_lshl_add_u32 v116, v{WT}, 2, v116
v_add_u32 v117, 128, v116
v_add_u32 v118, 64, v116
v_add_u32 v119, 192, v116
s_or_b64 {S2(sM)}, vcc, {S2(sM)}
s_cselect_b32 s{sBAD}, 2, 0
s_waitcnt lgkmcnt(0)
""")
    trfrag(WF+16,TO,32768)
    for i in range(2):
        if i==1: a("s_waitcnt lgkmcnt(0)")
        for T in range(4):
            for s in range(4): a(mfma16(GA+16*i+4*T,XF+16*T+4*s,WF+16*i+4*s,None if s==0 else GA+16*i+4*T))
    H=QA; MX=114
    for i in range(2):
        for T in range(3):
            c=GA+16*i+4*T
            a(f"v_pk_mul_f32 {P2(c)}, {P2(c)}, {S2(sL2E)}\nv_pk_mul_f32 {P2(c+2)}, {P2(c+2)}, {S2(sL2E)}")
            for k in range(4): a(f"v_and_b32 v{H+k}, 0xffff0000, v{c+k}")
            a(f"v_maximum3_f32 v{MX}, {'0' if T==0 and i==0 else 'v'+str(MX)}, abs(v{c}), abs(v{c+1})\nv_maximum3_f32 v{MX}, v{MX}, abs(v{c+2}), abs(v{c+3})")
            a(f"v_pk_add_f32 {P2(c)}, {P2(c)}, {P2(H)} neg_lo:[0,1] neg_hi:[0,1]\nv_pk_add_f32 {P2(c+2)}, {P2(c+2)}, {P2(H+2)} neg_lo:[0,1] neg_hi:[0,1]")
            for k in range(4): a(f"v_cvt_pk_bf16_f32 v{c+k}, v{c+k}, v{H+k}")
        for T in range(3):
            c=GA+16*i+4*T
            a(f"ds_write2st64_b32 v{116+2*i}, v{c}, v{c+2} offset0:{8*T} offset1:{8*T+1}\nds_write2st64_b32 v{117+2*i}, v{c+1}, v{c+3} offset0:{8*T} offset1:{8*T+1}")
    a("s_mov_b32 exec_lo, 0xffff\ns_mov_b32 exec_hi, 0")
    for i in range(2):
        c=GA+16*i+12
        a(f"""
v_mul_f32 v{c}, s{sL2E}, v{c}
v_and_b32 v{H}, 0xffff0000, v{c}
v_maximum3_f32 v{MX}, v{MX}, abs(v{c}), abs(v{c})
v_sub_f32 v{c}, v{c}, v{H}
v_cvt_pk_bf16_f32 v{c}, v{c}, v{H}
ds_write2st64_b32 v{116+2*i}, v{c}, v{c+2} offset0:24 offset1:25
ds_write2st64_b32 v{117+2*i}, v{c+1}, v{c+3} offset0:24 offset1:25
""")
    a(f"""
s_mov_b64 exec, -1
v_cmp_nge_f32 vcc, 0x40e80000, v{MX}
v_mov_b32 v3, 0
s_cbranch_vccz KS_k
ds_write_b32 v3, v{FA} offset:{MISC}
KS_k:
""")
    pt('qd')
    bar('bR',"s_waitcnt vmcnt(4) lgkmcnt(0)")
    trfrag(WU1,TRU,0); w3rd()
    wdma_addr(116)
    srd(a,sA,14,256*256)
    a("s_waitcnt lgkmcnt(0)")
    ugemm()
    a(f"""
s_xor_b32 s{t0}, s{sNON}, s{sBAD}
v_mov_b32 v1, s{t0}
s_lshl_b32 s{t1}, s2, 4
s_lshl_b32 s{t2}, s{sWV}, 2
s_add_u32 s{t1}, s{t1}, s{t2}
s_add_u32 s{t1}, s{t1}, {F_FLG}
v_mov_b32 v3, 0
s_waitcnt vmcnt(0)
s_mov_b64 exec, 1
buffer_store_dword v1, v3, {SR4(sR)}, s{t1} offen{SC}
s_mov_b64 exec, -1
""")
    pt('pfl')
    wdma(116,sA,32768,32768)
    uscale()
    bar('b2',"s_waitcnt vmcnt(0)")
    a(f"s_mov_b32 s{sLO}, {F_FLG}\nbuffer_load_dwordx4 v[116:119], v110, {SR4(sR)}, s{sLO} offen{SC}")
    scan(QA+6)
    ranges("KS_l")
    fill("KSz",False)
    a("KS_l:")
    trfrag(WU2,TRU,32768)
    a(f"""
s_or_b32 s{t1}, s{sNON}, 2
KS_m:
s_waitcnt vmcnt(0)
v_and_b32 v1, v116, v117
v_or_b32 v2, v116, v117
v_and_b32 v3, v118, v119
v_or3_b32 v2, v2, v118, v119
v_and_b32 v1, v1, v3
v_or_b32 v3, 2, v2
v_or_b32 v1, 2, v1
v_cmp_ne_u32 vcc, s{t1}, v3
v_cmp_ne_u32 {S2(t2)}, s{t1}, v1
s_or_b64 vcc, vcc, {S2(t2)}
s_cbranch_scc0 KS_n
s_sub_u32 s{sBUD}, s{sBUD}, 1
s_cbranch_scc1 KS_n
buffer_load_dwordx4 v[116:119], v110, {SR4(sR)}, s{sLO} offen{SC}
s_branch KS_m
KS_n:
v_cmp_ne_u32 vcc, s{sNON}, v2
v_mov_b32 v3, 0
s_cbranch_vccz KF_J
ds_write_b32 v3, v{FA} offset:{MISC}
s_branch KF_J
""")
    a(f"""
KF_T:
v_and_b32 v28, 255, v0
v_lshlrev_b32 v29, 2, v28
v_add_u32 v29, {HIST}, v29
v_mov_b32 v32, 0
v_mov_b32 v33, 0
v_mov_b32 v34, 0
v_mov_b32 v35, 0
ds_write_b32 v29, v32
v_lshlrev_b32 v30, 4, v28
s_waitcnt lgkmcnt(0)
""")
    stamp(a,0,True); stamp(a,1)
    a("s_barrier")
    sG=40
    srd(a,sG,18,256)
    a(f"""
s_cmp_eq_u32 s2, 0
s_cbranch_scc0 KT_a
s_cmp_eq_u32 s{sWV}, 4
s_cbranch_scc0 KT_a
s_memrealtime {S2(t2)}
s_waitcnt lgkmcnt(0)
s_lshl_b32 s{t0}, s{t2}, 2
s_or_b32 s{t0}, s{t0}, 1
v_mov_b32 v1, s{t0}
s_mov_b64 exec, 1
buffer_store_dword v1, v32, {SR4(sG)}, 0 offen{SC}
s_mov_b64 exec, -1
KT_a:
""")
    srd(a,sA,12,260*256)
    a(f"v_and_b32 v1, 31, v{VL}\nv_lshlrev_b32 v1, 1, v1\ns_lshl_b32 s{t0}, s{sW4}, 6\ns_add_u32 s{t0}, s{t0}, 65536")
    for k in range(4): a(f"buffer_load_ushort v{40+k}, v1, {SR4(sA)}, s{t0} offen offset:{k*256}")
    for j in range(4): a(f"ds_write_b128 v30, v[32:35] offset:{j*4096}")
    a(f"""
s_cmp_eq_u32 s{sWV}, 7
s_cbranch_scc1 KT_b
ds_write_b128 v30, v[32:35] offset:16384
s_cmp_eq_u32 s{sWV}, 4
s_cbranch_scc0 KT_b
v_mov_b32 v1, {hex(ONE2)}
ds_write2_b32 v32, v1, v1 offset0:{OH//4} offset1:{OH//4+5}
KT_b:
""")
    consts()
    srd(a,sX,4,N,stride=256)
    wdma_addr(31)
    a(f"""
v_xor_b32 v37, v1, v0
v_and_b32 v37, 15, v37
v_lshlrev_b32 v37, 4, v37
v_lshl_add_u32 v36, v1, 8, s{sK}
""")
    bar('b1')
    a(f"buffer_load_dword v44, v32, {SR4(sG)}, 0 offen{SC}\ns_lshl_b32 s{t0}, s{sW4}, 10")
    for j in range(4):
        if j==3: a(f"s_cmp_eq_u32 s{sWV}, 4\ns_cbranch_scc0 KT_c")
        a(f"s_add_u32 m0, s{t0}, {AGB+j*4096}\ns_nop 0\nbuffer_load_dwordx4 v[36:37], {SR4(sX)}, 0 idxen offen lds\nv_add_u32 v36, 4096, v36")
    a("KT_c:")
    wdma(31,sA,0,0)
    a(f"""
s_waitcnt vmcnt(11)
KT_d:
v_readfirstlane_b32 s{sNON}, v44
s_nop 3
s_cmp_lg_u32 s{sNON}, 0
s_cbranch_scc1 KT_e
s_cmp_eq_u32 s{sBUD}, 0
s_cbranch_scc1 KT_e
s_sub_u32 s{sBUD}, s{sBUD}, 1
buffer_load_dword v44, v32, {SR4(sG)}, 0 offen{SC}
s_waitcnt vmcnt(0)
s_branch KT_d
KT_e:
ds_write_b32 v32, v44 offset:{MISC+8}
""")
    bar('bS')
    wdma(31,sA,32768,32768)
    for k in range(4): a(f"v_lshlrev_b32 v{40+k}, 16, v{40+k}\nv_mul_f32 v{40+k}, s{sL2E}, v{40+k}")
    a(f"""
v_cvt_pk_bf16_f32 v46, v40, v41
v_cvt_pk_bf16_f32 v47, v42, v43
v_lshlrev_b32 v48, 16, v46
v_and_b32 v49, 0xffff0000, v46
v_lshlrev_b32 v50, 16, v47
v_and_b32 v51, 0xffff0000, v47
v_add_f32 v52, abs(v40), abs(v41)
v_sub_f32 v48, v40, v48
v_sub_f32 v49, v41, v49
v_sub_f32 v50, v42, v50
v_sub_f32 v51, v43, v51
v_add_f32 v53, abs(v42), abs(v43)
s_mov_b32 exec_lo, 0
v_cvt_pk_bf16_f32 v46, v48, v49
v_cvt_pk_bf16_f32 v47, v50, v51
s_mov_b32 exec_lo, -1
v_add_f32 v52, v52, v53
v_lshlrev_b32 v1, 3, v28
v_and_b32 v52, 0x7fffffff, v52
ds_write_b64 v1, v[46:47] offset:{W3L}
""")
    dpp_scan(a,"v_max_u32",[52])
    a(f"""
s_mov_b32 exec_lo, 0
s_brev_b32 exec_hi, 1
ds_max_u32 v32, v52 offset:{MISC+12}
s_mov_b64 exec, -1
""")
    bar('bW',"s_waitcnt vmcnt(8) lgkmcnt(0)")
    srd(a,sA,14,256*256)
    a(f"""
v_lshlrev_b32 v38, 11, v28
s_lshl_b32 s{sLO}, s{sK}, 3
s_add_u32 s{sLO}, s{sLO}, {F_TBL}
v_cmp_gt_u32 vcc, {NPROD}, v28
v_mov_b32 v{TC}, 0
s_mov_b64 {S2(sM)}, vcc
""")
    xfr_early=False
    bar('bF',"s_waitcnt vmcnt(0)")
    a(f"""
s_mov_b64 exec, {S2(sM)}
KT_f:
buffer_load_dwordx2 {P2(TC)}, v38, {SR4(sR)}, s{sLO} offen{SC}
s_waitcnt vmcnt(0)
v_cmp_ne_u32 vcc, s{sNON}, v{TC+1}
s_cbranch_vccz KT_g
s_sub_u32 s{sBUD}, s{sBUD}, 1
s_cbranch_scc0 KT_f
s_mov_b32 s{sBUD}, 0
v_mov_b32 v{TC}, 0
KT_g:
s_mov_b64 exec, -1
""")
    pt('tp')
    wdma(31,sA,0,0)
    a(f"""
v_and_b32 v{TD}, 0xffff, v{TC}
v_lshrrev_b32 v{TC}, 16, v{TC}
v_mov_b32 v{TO}, v{TC}
v_mul_u32_u24 v1, {EP*16}, v28
v_add_u32 v1, {F_REC}, v1
v_add_u32 v{TD}, v{TD}, v1
""")
    dpp_scan(a,"v_add_u32",[TO])
    a(f"""
s_mov_b32 exec_lo, 0
s_brev_b32 exec_hi, 1
ds_add_rtn_u32 v1, v32, v{TO} offset:{MISC+4}
s_mov_b64 exec, -1
v_sub_u32 v{TO}, v{TO}, v{TC}
s_mov_b32 s{sLO}, 0
s_mov_b32 s{t3}, 2048
s_waitcnt lgkmcnt(0)
v_readlane_b32 s{t0}, v1, 63
s_nop 1
v_add_u32 v{TO}, s{t0}, v{TO}
v_lshlrev_b32 v1, 4, v{TO}
v_sub_u32 v{TD}, v{TD}, v1
""")
    expand("KT_x",2048)
    if PRIO: a("s_setprio 2")
    a("v_mov_b32 v3, 0")
    pt('exp')
    bar('bR',"s_waitcnt vmcnt(0) lgkmcnt(0)")
    a(f"ds_read_b32 v1, v3 offset:{MISC+4}\ns_waitcnt lgkmcnt(0)\nv_readfirstlane_b32 s{sTOT}, v1")
    recload(8,"KT_l")
    pt('rl')
    trfrag(WU1,TRU,0); xfrags([0])
    a("s_waitcnt lgkmcnt(0)")
    xfrags([1,2,3])
    a(f"""
s_cmp_gt_u32 s{sTOT}, 2048
s_cbranch_scc0 KT_h
v_mov_b32 v3, 0
ds_write_b32 v3, v{FA} offset:{MISC}
KT_h:
s_waitcnt lgkmcnt(0)
""")
    w3rd()
    ugemm()
    a("s_nop 7")
    uscale()
    pt('ud')
    hist(8,"KT_h")
    bar('b2')
    scan()
    ranges("KT_i")
    scatter(8,"KT_s")
    a("KT_i:")
    trfrag(WU2,TRU,32768)
    a(f"""
KF_J:
s_mul_i32 s{sT0}, s{sCNT}, s{sWV}
s_and_b32 s{t2}, s{sNT}, 7
s_min_u32 s{t3}, s{t2}, s{sWV}
s_add_u32 s{sT0}, s{sT0}, s{t3}
s_cmp_lt_u32 s{sWV}, s{t2}
s_addc_u32 s{sCNT}, s{sCNT}, 0
s_lshl_b32 s{t0}, s{sT0}, 9
s_add_u32 s{t1}, s{t0}, {REC}
s_lshl_b32 s{t2}, s{sT0}, 4
v_add_u32 v{SB}, s{t1}, v{SB}
v_add_u32 v{RB}, s{t1}, v{RB}
v_sub_u32 v{SA}, v{SA}, v{OHC}
v_add_u32 v{SA}, s{t2}, v{SA}
v_lshl_add_u32 v1, v{VL}, 4, s{t2}
v_mov_b32 v3, 0
""")
    if PRIO: a("s_setprio 3")
    bar('b3')
    def rd_idx(off=0):
        for i in range(8): a(f"ds_read_u16 v{IDX+2*i}, v{SB} offset:{64*i+8+off}")
    def dma1(i):
        L=[]
        if i==0: L.append(f"s_mov_b32 m0, s{sBUF}\ns_nop 0")
        if i==4: L.append(f"s_add_u32 m0, s{sBUF}, 4096\ns_nop 0")
        L.append(f"buffer_load_dwordx4 {P2(IDX+2*i)}, {SR4(sP)}, 0 idxen offen offset:{1024*(i&3)}{GSC} lds")
        return "\n".join(L)
    def dma():
        for i in range(8): a(dma1(i))
    def rd_b3(q): return f"ds_read_addtid_b32 v{B3+4*q} offset:{Q2+q*QS}\nds_read_addtid_b32 v{B3+4*q+1} offset:{Q2+q*QS+256}"
    def rd_a3(off=0): return f"ds_read_b64 {P2(A3)}, v{VY} offset:{OH}\nds_read_b64 {P2(A3+2)}, v{RB} offset:{off}"
    def rd_a(t): return f"ds_read_b128 {P4(A+4*t)}, v{AR+t}"
    rd_s=f"s_mov_b64 exec, {S2(sMA)}\nds_read_b64 {P2(SS)}, v{SA} offset:{STB}\ns_mov_b64 exec, {S2(sMB)}\nds_read_b64 {P2(SS+2)}, v{SA} offset:{STB}\ns_mov_b64 exec, -1"
    rd_idx()
    a(f"""
ds_read_u16 v{WT}, v1 offset:{GN}
ds_read_b32 v{GP}, v3 offset:{MISC}
ds_read_u16 v{VY}, v{RB} offset:10
s_waitcnt lgkmcnt(3)
""")
    dma()
    pt('d0')
    a(f"""
s_waitcnt lgkmcnt(0)
v_readfirstlane_b32 s{sNF}, v{WT}
v_readfirstlane_b32 s{t3}, v{GP}
""")
    rd_idx(512)
    a(f"""
s_or_b32 s{sFLAG}, s{sFLAG}, s{t3}
s_cbranch_scc1 KF_SLOW
s_lshr_b32 s{t2}, s{sNF}, 7
v_subrev_u32 v2, s{t2}, v{VL}
v_and_b32 v2, 15, v2
v_add_u32 v{DR}, s{t2}, v2
v_lshlrev_b32 v2, 2, v{DR}
ds_read_b32 v{GP}, v2 offset:{BT}
s_lshr_b32 s{sW8}, s{sNF}, 4
s_sub_u32 s{sW8}, 0, s{sW8}
s_mov_b32 m0, s{sNF}
v_add3_u32 v{VY}, v{VY}, v{OHC}, s{sW8}
""")
    for q in range(4): a(rd_b3(q))
    a(rd_a3())
    a(f"""
v_mov_b32 v{SS}, 0
v_mov_b32 v{SS+1}, 0
v_mov_b32 v{SS+2}, 0
v_mov_b32 v{SS+3}, 0
s_add_u32 s{t1}, s{sT0}, s{sCNT}
s_lshl_b32 s{t1}, s{t1}, 9
s_add_u32 s{t2}, s{sWV}, 48
v_mov_b32 v1, s{t2}
{mfma32(ACC+16,SS,SS,None)}
s_waitcnt lgkmcnt(10)
v_cmp_gt_u32 vcc, s{t0}, v{GP}
v_cmp_gt_u32 {S2(t2)}, s{t1}, v{GP}
v_cmp_gt_u32 {S2(t0)}, s{sNN}, v{DR}
v_cndmask_b32 v{DR}, v{DR}, v1, vcc
s_cmp_lg_u64 vcc, 0
s_cselect_b32 s{sHEAD}, 1, 0
s_and_b64 vcc, {S2(t2)}, {S2(t0)}
v_lshrrev_b32 v1, 2, v{VL}
v_cndmask_b32 v{DR}, 63, v{DR}, vcc
v_and_b32 v1, 4, v1
v_xor_b32 v1, v1, v{DR}
v_and_b32 v1, 15, v1
v_lshlrev_b32 v1, 4, v1
v_lshl_add_u32 v{DR}, v{DR}, 8, v1
v_sub_u32 v{DR}, v{DR}, v{OHC}
s_mov_b32 s{sI}, 1
s_sub_u32 s{sCNT}, s{sCNT}, 1
""")
    pt('pre')
    a("s_waitcnt vmcnt(0)")
    pt('g0')
    for t in range(8): a(rd_a(t))
    a("s_waitcnt lgkmcnt(6)")
    a(mfma32(Z[0],A3,B3,None)); a(mfma32(Z[0],A,ID0,Z[0])); a(mfma32(Z[0],A+4,ID1,Z[0]))
    a("s_nop 3\ns_waitcnt lgkmcnt(0)")
    pt('pro')
    def finals(qprev):
        for u in range(2): a(f"v_pk_mul_f32 {P2(NN+2*u)}, {P2(NN+2*u)}, {P2(DD+2*u)}")
        for u in range(2): a(f"v_cvt_pk_bf16_f32 v{GP+2*(qprev&1)+u}, v{NN+2*u}, v{NN+2*u+1}")
    def ex(zc,r): return f"v_exp_f32 v{EE+r}, v{zc+r}"
    def body(first):
        for q in range(4):
            zc=Z[q&1]; zn=Z[(q+1)&1]; qn=(q+1)&3
            ms=[(A3,B3+4*qn),(A+8*qn,ID0),(A+8*qn+4,ID1)]
            if q==3: ms=[ms[1],ms[2],ms[0]]
            pend=[0,1,2,3,8,9,10,11,4,5,12,13,6,7,14,15]
            f0=first and q==0
            if q==0:
                a(f"v_readlane_b32 s{sQ}, v{WT}, s{sI}")
                a(f"ds_read_u16 v{VY}, v{RB} offset:{512+10}")
                if not first: rd_idx(1024)
                else: a("s_nop 3")
            if q==2:
                a("s_waitcnt vmcnt(0)")
                for t in range(6): a(rd_a(t))
            if q==3:
                a(f"s_waitcnt lgkmcnt(0)\ns_cmp_gt_u32 s{sCNT}, 1\ns_cselect_b64 vcc, -1, 0")
            a(mfma32(zn,ms[0][0],ms[0][1],None))
            if not f0:
                for j in range(4): a(f"v_rcp_f32 v{DD+j}, v{DD+j}")
            else:
                for r in range(4): a(ex(zc,pend.pop(0)))
            if q==0:
                a(f"s_lshr_b32 s{sW8}, s{sQ}, 4\ns_mov_b32 m0, s{sQ}\ns_sub_u32 s{sW8}, 0, s{sW8}")
                a(rd_b3(0)); a(rd_b3(1))
            if q==1:
                if first: a(f"s_mov_b32 m0, s{sQ}"); rd_idx(1024)
                a(rd_b3(2))
            if q==2: a(rd_b3(3)); a(rd_a3(512))
            a(mfma32(zn,ms[1][0],ms[1][1],zn))
            for r in range(4): a(ex(zc,pend.pop(0)))
            a(mfma32(zn,ms[2][0],ms[2][1],zn))
            for r in range(4): a(ex(zc,pend.pop(0)))
            if q&1:
                p=1 if q==1 else 0
                if not (first and q==1):
                    a(mfma32(ACC+16*p,GP,SS,None if first else ACC+16*p))
                    for r in range(4): a(ex(zc,pend.pop(0)))
                if q==1: a(rd_s)
            if q==2: a(rd_a(6)); a(rd_a(7))
            if not f0: finals((q-1)&3)
            seq=[]
            for u in range(2): seq.append(f"v_pk_add_f32 {P2(DD+2*u)}, {P2(EE+8*u)}, 1.0 op_sel_hi:[1,0]")
            for m in range(1,4):
                for u in range(2):
                    src=(zc+8*u) if m==1 else NN+2*u
                    seq.append(f"v_pk_fma_f32 {P2(NN+2*u)}, {P2(src)}, {P2(EE+8*u+2*m)}, {P2(src)}")
                for u in range(2): seq.append(f"v_pk_fma_f32 {P2(NN+2*u)}, {P2(zc+8*u+2*m)}, {P2(DD+2*u)}, {P2(NN+2*u)}")
                for u in range(2): seq.append(f"v_pk_fma_f32 {P2(DD+2*u)}, {P2(DD+2*u)}, {P2(EE+8*u+2*m)}, {P2(DD+2*u)}")
            slots=[0,1,2,3,5,7,9,11] if len(pend)==8 else [1,4,7,10]
            dpos={}
            if (q==3 or f0) and not X&1:
                for i in range(8): dpos.setdefault(DSP[i],[]).append(i)
            for k,x in enumerate(seq):
                if k in dpos:
                    guard=(q==3 and not first)
                    lab=f"KF_l{k}"
                    if guard: a(f"s_cbranch_vccz {lab}")
                    for i in dpos[k]: a(dma1(i))
                    if guard: a(f"{lab}:")
                a(x)
                if k in slots: a(ex(zc,pend.pop(0)))
            if q==1: a(f"s_waitcnt lgkmcnt({2 if first else 4})\nv_add3_u32 v{VY}, v{VY}, v{OHC}, s{sW8}\nv_add_u32 v{SA}, 16, v{SA}")
            if q==2: a(f"v_pk_add_f32 {P2(RB)}, {P2(RB)}, {S2(sINC)}")
    body(True)
    a("s_branch KF_LE\n.p2align 6\nKF_LOOP:")
    body(False)
    a("KF_LE:")
    if PRIO:
        for rem,pr in ((5,2),(3,1),(1,0)):
            a(f"s_cmp_eq_u32 s{sCNT}, {rem}\ns_cbranch_scc0 KF_pr{rem}\ns_setprio {pr}\nKF_pr{rem}:")
    a(f"""
s_add_u32 s{sI}, s{sI}, 1
s_sub_u32 s{sCNT}, s{sCNT}, 1
s_cbranch_scc0 KF_LOOP
""")
    for j in range(4): a(f"v_rcp_f32 v{DD+j}, v{DD+j}")
    a("s_nop 0")
    finals(3)
    a("s_nop 1")
    a(mfma32(ACC+16,GP,SS,ACC+16))
    pt('loop')
    for p in range(2):
        if p==1: a("s_nop 0")
        for j in range(4):
            c=ACC+16*p+4*j
            a(f"v_cvt_pk_bf16_f32 v{c}, v{c}, v{c+1}\nv_cvt_pk_bf16_f32 v{c+1}, v{c+2}, v{c+3}")
            if p or j: a(f"v_xor_b32 v1, {(8*p+j)*16}, v{DR}")
            a(f"ds_write_b64 v{1 if (p or j) else DR}, {P2(c)} offset:{AGB}")
    a(f"""
s_lshr_b32 s{t0}, s{sNF}, 7             ; nf
s_and_b32 s{t1}, s{t0}, 15
s_lshl_b32 s{t1}, s{t1}, 4
s_lshl_b32 s{t0}, s{t0}, 8
s_or_b32 s{t0}, s{t0}, s{t1}
s_mul_i32 s{t1}, s{sWV}, 272
s_add_u32 s{t1}, s{t1}, {48*256}
v_lshlrev_b32 v3, 2, v{VL}
v_xor_b32 v1, s{t0}, v3
v_xor_b32 v2, s{t1}, v3
s_cmp_eq_u32 s{sHEAD}, 0
s_waitcnt lgkmcnt(0)
s_barrier
s_cbranch_scc1 KF_FIN
ds_read_b32 v4, v1 offset:{AGB}
ds_read_b32 v5, v2 offset:{AGB}
s_waitcnt lgkmcnt(0)
v_lshlrev_b32 v6, 16, v4
v_and_b32 v7, 0xffff0000, v4
v_lshlrev_b32 v8, 16, v5
v_and_b32 v9, 0xffff0000, v5
v_pk_add_f32 v[6:7], v[6:7], v[8:9]
v_cvt_pk_bf16_f32 v6, v6, v7
ds_write_b32 v1, v6 offset:{AGB}
KF_FIN:
""")
    OST=GBUF
    srd(a,sX,16,N*256)
    a(f"""
v_and_b32 v1, 15, v{VL}
s_lshl_b32 s{t0}, s{sWV}, 1
v_lshrrev_b32 v2, 5, v{VL}
v_or_b32 v2, s{t0}, v2
v_xor_b32 v2, v2, v1
v_lshlrev_b32 v2, 4, v2
v_lshl_add_u32 v2, v1, 8, v2
v_lshrrev_b32 v3, 1, v{VL}
v_and_or_b32 v2, v3, 8, v2
v_add_u32 v{AR}, {OST}, v2
v_lshlrev_b32 v{AR+1}, 1, v1
""")
    bar('mrg',"s_waitcnt vmcnt(0) lgkmcnt(0)")
    for T in range(4):
        xfrags([T])
        if T==2:
            a("s_waitcnt lgkmcnt(8)")
            for s in range(4): a(mfma16(UA,WU2+4*s,XF+4*s,UA))
    def silu(T):
        c=UA+4*T; e=EE+4*T
        L=[f"v_exp_f32 v{e+i}, v{c+i}" for i in range(4)]
        L+=[f"v_fma_f32 v{e+i}, v{e+i}, s{sL2E}, s{sL2E}" for i in range(4)]
        L+=[f"v_rcp_f32 v{e+i}, v{e+i}" for i in range(4)]
        L+=[f"v_mul_f32 v{e+i}, v{e+i}, v{c+i}" for i in range(4)]
        L+=[f"v_cvt_pk_bf16_f32 v{e}, v{e}, v{e+1}",f"v_cvt_pk_bf16_f32 v{e+1}, v{e+2}, v{e+3}",f"ds_write_b64 v{AR}, {P2(e)} offset:{T*4096}"]
        return L
    for T in range(1,4):
        a(f"s_waitcnt lgkmcnt({4*(3-T)})")
        for s in range(4):
            x,y=(WU2+4*s,XF+16*T+4*s) if T<3 else (XF+16*T+4*s,WU2+4*s)
            a(mfma16(UA+4*T,x,y,UA+4*T))
    for T in range(3):
        for x in silu(T): a(x)
    c=UA+12; e=EE+12
    a(f"""
v_exp_f32 v{e}, v{c}
s_add_u32 s{t0}, s{sK}, {48*256}
v_fma_f32 v{e}, v{e}, s{sL2E}, s{sL2E}
v_rcp_f32 v{e}, v{e}
s_lshl_b32 s{t0}, s{t0}, 8
v_mul_f32 v{e}, v{e}, v{c}
s_lshl_b32 s{t1}, s{sWV}, 5
s_add_u32 s{t0}, s{t0}, s{t1}
v_cvt_pk_bf16_f32 v{e}, v{e}, v{e}
s_mov_b32 exec_lo, 0xffff
s_mov_b32 exec_hi, 0
buffer_store_short v{e}, v{AR+1}, {SR4(sX)}, s{t0} offen
s_mov_b64 exec, -1
v_lshlrev_b32 v1, 4, v0
v_add_u32 v1, {OST}, v1
v_lshrrev_b32 v2, 4, v0
v_xor_b32 v3, v2, v0
v_and_b32 v3, 15, v3
v_lshlrev_b32 v3, 4, v3
v_lshl_add_u32 v3, v2, 16, v3
s_lshl_b32 s{t0}, s{sK}, 8
s_add_u32 s{t1}, s{t0}, {32*65536}
s_waitcnt lgkmcnt(0)
s_barrier
ds_read_b128 {P4(A)}, v1
s_cmp_lt_u32 s{sWV}, 4
s_cbranch_scc0 KF_e1
ds_read_b128 {P4(A+4)}, v1 offset:8192
s_waitcnt lgkmcnt(0)
buffer_store_dwordx4 {P4(A+4)}, v3, {SR4(sX)}, s{t1} offen
KF_e1:
s_waitcnt lgkmcnt(0)
buffer_store_dwordx4 {P4(A)}, v3, {SR4(sX)}, s{t0} offen
""")
    if PROF: a("s_waitcnt vmcnt(0)")
    stamp(a,10); stamp(a,11,True)
    stamp_out(a,1,sWV)
    a("KF_END:\ns_endpgm")
    hist_retry(8,"KT_h")
    SV=ACC; AGs=SV+8
    a(f"""
KF_SLOW:
s_setprio 0
ds_read_b32 v1, v3 offset:{MISC+4}
v_mov_b32 v{SS}, 0
v_mov_b32 v{SS+1}, 0
v_mov_b32 v{SS+2}, 0
v_mov_b32 v{SS+3}, 0
s_waitcnt vmcnt(0) lgkmcnt(0)
v_readfirstlane_b32 s{sRND}, v1
s_mov_b32 s{sLO}, 0
s_sub_u32 s{t0}, s{sWV}, s{sT0}
s_lshl_b32 s{t0}, s{t0}, 9
v_add_u32 v{SV+4}, s{t0}, v{RB}
v_add_u32 v{SV+5}, s{t0}, v{SB}
s_lshl_b32 s{t0}, s{sWV}, 4
v_sub_u32 v{SV+6}, s{t0}, v{OHC}
v_and_b32 v{SV+7}, 31, v{VL}
v_lshlrev_b32 v{SV+7}, 2, v{SV+7}
v_lshlrev_b32 v1, 4, v0
""")
    for j in range(4): a(f"ds_write_b128 v1, {P4(SS)} offset:{AGG+j*8192}")
    a(f"""
KF_SR:
s_cmp_lt_u32 s{sLO}, s{sRND}
s_cbranch_scc0 KF_SE
s_waitcnt lgkmcnt(0)
s_barrier
s_cmp_ge_u32 s{sWV}, 4
s_cbranch_scc1 KF_ST
; ---- S waves
v_lshlrev_b32 v1, 2, v{VL}
v_mov_b32 v2, 0
ds_write_b32 v1, v2
s_waitcnt lgkmcnt(0)
s_barrier
s_barrier
""")
    scan(QA+6)
    fill("KFs",True)
    a(f"""
s_branch KF_SJ
KF_ST:
s_mov_b32 s{t3}, 1024
""")
    expand("KF_x",1024)
    a(f"s_sub_u32 s{sTOT}, s{sRND}, s{sLO}\ns_min_u32 s{sTOT}, s{sTOT}, 1024\ns_waitcnt lgkmcnt(0)\ns_barrier")
    recload(4,"KF_rl")
    hist(4,"KF_h")
    a("s_waitcnt vmcnt(0) lgkmcnt(0)\ns_barrier")
    scan()
    scatter(4,"KF_s")
    a(f"""
KF_SJ:
s_add_u32 s{sNT}, s{t0}, 511
s_lshr_b32 s{sNT}, s{sNT}, 9
s_waitcnt lgkmcnt(0)
s_barrier
v_mov_b32 v{RB}, v{SV+4}
v_mov_b32 v{SB}, v{SV+5}
v_mov_b32 v{SV+12}, v{SV+6}
s_mov_b32 s{sI}, s{sWV}
KF_SL:
s_cmp_lt_u32 s{sI}, s{sNT}
s_cbranch_scc0 KF_SN
""")
    rd_idx()
    for j in range(4): a(f"ds_read_u16 v{AGs+j}, v{SV+12} offset:{GN+2*j}")
    a(f"ds_read_u16 v{VY}, v{RB} offset:10\ns_waitcnt lgkmcnt(0)")
    dma()
    a(f"""
v_readfirstlane_b32 s{sQ}, v{AGs}
s_nop 3
s_lshr_b32 s{sW8}, s{sQ}, 4
s_sub_u32 s{sW8}, 0, s{sW8}
s_mov_b32 m0, s{sQ}
v_add3_u32 v{VY}, v{VY}, v{OHC}, s{sW8}
""")
    for q in range(4): a(rd_b3(q))
    a(rd_a3())
    for j in range(4): a(f"v_lshl_add_u32 v{AGs+j}, v{AGs+j}, 2, v{SV+7}")
    a("s_waitcnt vmcnt(0) lgkmcnt(0)")
    for t in range(8): a(rd_a(t))
    a("s_waitcnt lgkmcnt(0)")
    for q in range(4):
        z=Z[0]
        a(mfma32(z,A3,B3+4*q,None)); a(mfma32(z,A+8*q,ID0,z)); a(mfma32(z,A+8*q+4,ID1,z))
        a("s_nop 15")
        for r in range(16): a(f"v_exp_f32 v{EE+r}, v{z+r}")
        for r in range(16): a(f"v_add_f32 v{EE+r}, 1.0, v{EE+r}")
        for r in range(16): a(f"v_rcp_f32 v{EE+r}, v{EE+r}")
        for m in range(4):
            for u in range(2):
                for par in range(2):
                    r=8*u+2*m+par; g=GP+2*u+par
                    a(f"v_mul_f32 v{g}, v{z+r}, v{EE+r}" if m==0 else f"v_fmac_f32 v{g}, v{z+r}, v{EE+r}")
        for j in range(4): a(f"ds_add_f32 v{AGs+j}, v{GP+j} offset:{AGG+q*128}")
        a("s_waitcnt lgkmcnt(0)")
    a(f"""
v_add_u32 v{SB}, 4096, v{SB}
v_add_u32 v{RB}, 4096, v{RB}
v_add_u32 v{SV+12}, 128, v{SV+12}
s_add_u32 s{sI}, s{sI}, 8
s_branch KF_SL
KF_SN:
s_add_u32 s{sLO}, s{sLO}, 1024
s_branch KF_SR
KF_SE:
v_lshlrev_b32 v1, 4, v0
v_lshrrev_b32 v2, 5, v0
s_waitcnt vmcnt(0) lgkmcnt(0)
s_barrier
""")
    for j in range(4): a(f"ds_read_b128 {P4(A+4*j)}, v1 offset:{AGG+j*8192}")
    a(f"""
v_bfe_u32 v3, v0, 1, 4
v_xor_b32 v3, v3, v2
v_lshlrev_b32 v3, 4, v3
v_lshl_add_u32 v3, v2, 8, v3
v_and_b32 v1, 1, v0
v_lshl_add_u32 v3, v1, 3, v3
s_waitcnt lgkmcnt(0)
s_barrier
""")
    for j in range(4):
        a(f"v_cvt_pk_bf16_f32 v{A+4*j}, v{A+4*j}, v{A+4*j+1}\nv_cvt_pk_bf16_f32 v{A+4*j+1}, v{A+4*j+2}, v{A+4*j+3}")
        a(f"ds_write_b64 v3, {P2(A+4*j)} offset:{AGB+j*4096}")
    a("s_branch KF_FIN")
    hist_retry(4,"KF_h")
    return a.text()

if __name__=='__main__':
    import sys
    nm='standalone__mpnn_edge_mlp__graph_kernel'
    hdr=open('standalone__mpnn_edge_mlp__graph.s.ref').read().split('; Override')[0]
    out=hdr+(f"; @launch kernel={nm} grid=(256,1,1) block=(512,1,1) lds={KF_LDS}\n" if os.environ.get('LISTF') else f"; @launch grid=(256,1,1) block=(512,1,1) lds={KF_LDS}\n")
    out+='.amdgcn_target "amdgcn-amd-amdhsa--gfx950"\n.text\n'
    out+=f".globl {nm}\n.p2align 8\n.type {nm},@function\n"+gen_kf(nm)
    out+='.section .rodata,"a"\n.p2align 6\n'+kd(nm,256)
    open(sys.argv[1],'w').write(out)
```

```python
from common import *
X=int(os.environ.get('X','0'))
PRIO=int(os.environ.get('PRIO','1'))
DSP=[int(c,36) for c in os.environ.get('DSP','00000000')]
TDLY=int(os.environ.get('TDLY','0'))
FLI=int(os.environ.get('FLI','1'))
WUS=int(os.environ.get('WUS','1'))
OLDF=int(os.environ.get('OLDF','8'))
PTS=os.environ.get('PTS','b1,bS,bW,bR,b2,b3,pro,loop').split(',')
SC=' sc1'
GSC=os.environ.get('GSC',' sc1')
NPROD=250; EP=1600
F_P=0x1000; F_REC=0x400000; F_TBL=0xB00000; F_FLG=0xB90000; F_SIZE=0xBA0000
CNT=0; MISC=256; OH=392; GN=1024; BT=2304; STB=2816; RS=1040
AGB=STB+16*RS
W3L=AGB+56*256
Q2=AGB+16384; QS=52*128
S1=Q2; ERAW=Q2+12800
REC=Q2+4*QS
LIST=REC; PSC=REC+8192
GBUF=REC+32768
HIST=GBUF+65536; BASE=HIST+1024
KF_LDS=BASE+1024
AGG=STB
ONE2=0x3F803F80
NULLW2=0xFFFF|(512<<16)
PADMIN=20
CAPT=63
ID0=4; ID1=8; B3=12; A=28; Z=[60,76]; A3=92; EE=96; NN=112; DD=116; GP=120; SS=124
IDX=128; AR=144; RB=152; SB=153; SA=154; VY=155; OHC=156; VL=157; WT=158; DR=159
ACC=160; WU2=192; UA=208; WF=160; WU1=176; QA=224; RC=96; XF=28; GA=192
PO=92; TRU=240; TD=241; TC=242; TO=243; RK=244; FA=252
sP=24; sX=28; sA=32; sR=36; sM=40
sWV=56; sK=57; sNN=58; sI=59; sNT=60; sBUF=61; sQ=62; sW8=63; sCNT=64; sT0=65
sL2E=66; sINC=68; sRND=70; sTOT=71; sNON=72; sBUD=73; sW4=74; sBAD=75
sWU=3; sW4K=22; sOT=23; sFLAG=76; sLO=77; sMA=78; sMB=80; sHEAD=82; sNF=83
t0,t1,t2,t3=84,85,86,87
BUDGET=20000

def mfma32(d,x,y,c): return f"v_mfma_f32_32x32x16_bf16 v[{d}:{d+15}], v[{x}:{x+3}], v[{y}:{y+3}], "+("0" if c is None else f"v[{c}:{c+15}]")
def mfma16(d,x,y,c): return f"v_mfma_f32_16x16x32_bf16 v[{d}:{d+3}], v[{x}:{x+3}], v[{y}:{y+3}], "+("0" if c is None else f"v[{c}:{c+3}]")
def P2(r): return f"v[{r}:{r+1}]"
def P4(r): return f"v[{r}:{r+3}]"
def S2(r): return f"s[{r}:{r+1}]"
def SR4(r): return f"s[{r}:{r+3}]"

def gen_kf(name):
    a=Asm()
    def pt(n):
        if PROF and n in PTS: stamp(a,2+PTS.index(n))
    def bar(n,w="s_waitcnt lgkmcnt(0)"):
        a(w+"\ns_barrier"); pt(n)
    def consts():
        srd(a,sP,20,N,off=F_P-3072,stride=256)
        srd(a,sR,20,F_SIZE)
        a(f"""
s_cmp_lt_u32 s{sK}, {N-256*48}
s_cselect_b32 s{sNN}, 49, 48
s_lshl_b32 s{sBUF}, s{sWV}, 13
s_add_u32 s{sBUF}, s{sBUF}, {GBUF}
s_mov_b32 s{sL2E}, {hex(LOG2E_NEG)}
s_mov_b32 s{sL2E+1}, {hex(LOG2E_NEG)}
s_mov_b32 s{sINC}, 512
s_mov_b32 s{sINC+1}, 512
s_mov_b32 s{sMA}, 0x0000ffff
s_mov_b32 s{sMA+1}, 0x0000ffff
s_not_b64 {S2(sMB)}, {S2(sMA)}
s_mov_b32 s{sBUD}, {BUDGET}
v_lshrrev_b32 v2, 5, v{VL}              ; h
v_and_b32 v3, 5, v{VL}
v_lshlrev_b32 v3, 2, v3
v_lshrrev_b32 v1, 1, v{VL}
v_and_or_b32 v3, v1, 9, v3
v_lshrrev_b32 v1, 2, v{VL}
v_and_or_b32 v3, v1, 2, v3              ; slot
v_lshlrev_b32 v{RB}, 4, v3
v_lshl_add_u32 v3, v3, 8, s{sBUF}
v_and_b32 v{WT}, 15, v{VL}              ; n / c16
v_xor_b32 v1, v2, v{WT}
v_lshl_add_u32 v{AR}, v1, 4, v3
""")
        for t in range(1,8): a(f"v_xor_b32 v{AR+t}, {32*t}, v{AR}")
        a(f"""
v_mul_i32_i24 v{OHC}, -8, v2
v_mul_u32_u24 v{SA}, {RS}, v{WT}
v_and_b32 v1, 1, v{VL}
v_lshlrev_b32 v1, 4, v1
v_mov_b32 v3, 0x3f80
v_lshlrev_b32 v1, v1, v3
""")
        for s in range(2):
            for j in range(4):
                lo=3<<(16*s+2*j); hi=(3<<(16*s+8+2*j))
                a(f"s_mov_b32 vcc_lo, {hex(lo)}\ns_mov_b32 vcc_hi, {hex(hi)}\nv_cndmask_b32 v{ID0+4*s+j}, 0, v1, vcc")
        a(f"""
v_lshrrev_b32 v2, 4, v{VL}              ; a / g
v_lshlrev_b32 v{SB}, 4, v2
v_lshrrev_b32 v1, 2, v{VL}
v_and_b32 v1, 8, v1
v_lshrrev_b32 v3, 3, v{VL}
v_and_or_b32 v1, v3, 2, v1
v_xor_b32 v1, v1, v{WT}
v_lshlrev_b32 v1, 4, v1
""")
        for i in range(8): a(f"v_xor_b32 v{IDX+2*i+1}, {(4*(i>>2)+(i&1))*16+3072-1024*(i&3)}, v1")
        a(f"v_xor_b32 v3, v2, v{WT}\nv_lshlrev_b32 v3, 4, v3\nv_lshl_add_u32 v3, v{WT}, 8, v3\nv_add_u32 v{FA}, {AGB}, v3")
        for s in range(1,4): a(f"v_xor_b32 v{FA+s}, {64*s}, v{FA}")
        a(f"""
s_lshl_b32 s{t0}, s{sW4}, 13
s_add_u32 s{t0}, s{t0}, {GBUF}
s_lshr_b32 s{t1}, s{sWV}, 2
s_lshl_b32 s{sOT}, s{sW4}, 1
s_or_b32 s{sOT}, s{sOT}, s{t1}
v_lshrrev_b32 v1, 2, v{WT}
v_lshl_add_u32 v1, v2, 3, v1
v_lshl_add_u32 v{DR}, v1, 6, s{t0}
v_xor_b32 v2, s{t1}, v2
v_and_b32 v2, 1, v2
v_and_b32 v3, 3, v{VL}
v_lshl_add_u32 v{TRU}, v2, 5, v{DR}
v_lshl_add_u32 v{TRU}, v3, 3, v{TRU}
v_lshrrev_b32 v1, 4, v{VL}
v_and_b32 v1, 2, v1
v_xor_b32 v1, v1, v{VL}
v_and_b32 v1, 3, v1
v_lshlrev_b32 v1, 4, v1
v_lshrrev_b32 v2, 2, v{VL}
v_lshl_or_b32 v{VY}, v2, 8, v1
""")
    def trfrag(dst,addr,off,ks,hs):
        for s in range(4):
            a(f"ds_read_b64_tr_b16 {P2(dst+4*s)}, v{addr} offset:{off+s*ks}\nds_read_b64_tr_b16 {P2(dst+4*s+2)}, v{addr} offset:{off+s*ks+hs}")
    def tru(dst,off): trfrag(dst,TRU,off,2048,256)
    def sdma(sr,moff,loff=0,v=VY):
        a(f"s_lshl_b32 s{t0}, s{sW4}, 6")
        for j in range(8):
            a(f"s_add_u32 m0, s{sBUF}, {loff+j*1024}\ns_add_u32 s{t1}, s{t0}, {moff+j*4096}\nbuffer_load_dwordx4 v{v}, {SR4(sr)}, s{t1} offen lds")
    def xfrags(Ts):
        for T in Ts:
            for s in range(4): a(f"ds_read_b128 {P4(XF+16*T+4*s)}, v{FA+s} offset:{T*4096}")
    def ugemm():
        for T in range(4):
            for s in range(4):
                x,y=(WU1+4*s,XF+16*T+4*s) if T<3 else (XF+16*T+4*s,WU1+4*s)
                a(mfma16(UA+4*T,x,y,None if s==0 else UA+4*T))
    def uscale():
        for j in range(7): a(f"v_pk_mul_f32 {P2(UA+2*j)}, {P2(UA+2*j)}, {S2(sL2E)}")
    def w3rd():
        a(f"v_lshlrev_b32 v1, 3, v{VL}")
        for q in range(4): a(f"ds_read_b64 {P2(B3+4*q+2)}, v1 offset:{W3L+q*512}")
    def scan(keepcnt=None):
        a(f"""
v_lshlrev_b32 v1, 2, v{VL}
ds_read_b32 v{keepcnt if keepcnt else 3}, v1
v_cmp_gt_u32 vcc, s{sNN}, v{VL}
s_waitcnt lgkmcnt(0)
v_add_u32 v3, 48, v{keepcnt if keepcnt else 3}
v_and_b32 v3, 0xffffffc0, v3
v_max_u32 v3, {PADMIN*16}, v3
v_cndmask_b32 v3, 0, v3, vcc
v_mov_b32 v2, v3
""")
        dpp_scan(a,"v_add_u32",[2])
        a(f"""
v_readlane_b32 s{t0}, v2, 63
v_sub_u32 v2, v2, v3
""")
    def ranges(lab):
        a(f"""
s_add_u32 s{sNT}, s{t0}, 511
s_lshr_b32 s{sNT}, s{sNT}, 9
s_lshr_b32 s{sCNT}, s{sNT}, 3
s_lshl_b32 s{t1}, s{sCNT}, 9
v_cmp_lt_u32 vcc, s{t1}, v3
s_mov_b32 s{sFLAG}, 1
s_cmp_gt_u32 s{sNT}, {CAPT}
s_cbranch_scc1 {lab}
s_cmp_lg_u64 vcc, 0
s_cbranch_scc1 {lab}
s_mov_b32 s{sFLAG}, 0
""")
    def expand(lab,cap):
        a(f"""
v_subrev_u32 v1, s{sLO}, v{TO}
v_add_u32 v2, v1, v{TC}
v_med3_i32 v1, v1, 0, s{t3}
v_med3_i32 v2, v2, 0, s{t3}
v_sub_u32 v2, v2, v1
v_lshlrev_b32 v1, 2, v1
{lab}:
""")
        for j in range(16):
            a(f"v_cmpx_lt_i32 vcc, {j}, v2\nds_write_b32 v1, v{TD} offset:{LIST+4*j}")
        a(f"""
v_add_u32 v2, -16, v2
v_add_u32 v1, 64, v1
v_cmp_lt_i32 vcc, 0, v2
s_cmp_lg_u64 vcc, 0
s_cbranch_scc1 {lab}
s_mov_b64 exec, -1
""")
    def recload(ns,lab):
        a(f"v_and_b32 v3, 255, v0\nv_lshlrev_b32 v1, 2, v3\nv_add_u32 v1, {LIST}, v1")
        for i in reversed(range(ns)): a(f"ds_read_b32 v{RK+i}, v1 offset:{1024*i}")
        a(f"v_add_u32 v2, s{sLO}, v3\nv_lshlrev_b32 v2, 4, v2\ns_mov_b32 s{t1}, s{sTOT}")
        for i in range(ns):
            a(f"v_cmp_gt_i32 {S2(sM+2*i)}, s{t1}, v3\ns_sub_u32 s{t1}, s{t1}, 256")
        for i in reversed(range(ns)):
            a(f"""
s_mov_b64 exec, {S2(sM+2*i)}
s_cbranch_execz {lab}{i}
s_waitcnt lgkmcnt({i})
v_add_u32 v{RK+i}, v{RK+i}, v2
s_mov_b32 s{t1}, {4096*i}
buffer_load_dwordx4 {P4(RC+4*i)}, v{RK+i}, {SR4(sR)}, s{t1} offen{SC}
{lab}{i}:
""")
        a("s_mov_b64 exec, -1")
    def hist(ns,lab,extra=0):
        a("v_mov_b32 v1, 16")
        for i in reversed(range(ns)):
            a(f"""
s_mov_b64 exec, {S2(sM+2*i)}
s_cbranch_execz {lab}e{i}
s_waitcnt vmcnt({i+extra})
{lab}c{i}:
v_cmp_ne_u32 vcc, s{sNON}, v{RC+4*i+3}
s_cbranch_vccnz {lab}r{i}
{lab}k{i}:
v_lshrrev_b32 v{RC+4*i+3}, 17, v{RC+4*i+2}
ds_add_rtn_u32 v{RK+i}, v{RC+4*i+3}, v1
{lab}e{i}:
""")
        a(f"s_mov_b64 exec, -1")
    def hist_retry(ns,lab):
        for i in range(ns):
            a(f"""
{lab}r{i}:
s_sub_u32 s{sBUD}, s{sBUD}, 1
s_cbranch_scc1 {lab}x{i}
s_mov_b64 exec, vcc
s_mov_b32 s{t1}, {4096*i}
buffer_load_dwordx4 {P4(RC+4*i)}, v{RK+i}, {SR4(sR)}, s{t1} offen{SC}
s_mov_b64 exec, {S2(sM+2*i)}
s_waitcnt vmcnt(0)
s_branch {lab}c{i}
{lab}x{i}:
s_mov_b32 s{sBUD}, 0
v_mov_b32 v{RC+4*i+2}, 0
s_branch {lab}k{i}
""")
    def scatter(ns,lab):
        a(f"ds_write_b32 v1, v2 offset:{BT}")
        for i in range(ns):
            a(f"s_mov_b64 exec, {S2(sM+2*i)}\nds_read_b32 v{RC+4*i+3}, v{RC+4*i+3} offset:{BT}")
        for i in range(ns):
            a(f"""
s_mov_b64 exec, {S2(sM+2*i)}
s_cbranch_execz {lab}e
s_waitcnt lgkmcnt({ns-1})
v_add_u32 v{RK+i}, v{RC+4*i+3}, v{RK+i}
ds_write_b96 v{RK+i}, v[{RC+4*i}:{RC+4*i+2}] offset:{REC}
""")
        a(f"{lab}e:\ns_mov_b64 exec, -1")
    def fill(lab,slow):
        a(f"""
v_lshrrev_b32 v{QA}, 5, v2
s_lshl_b32 s{t1}, s{sWV}, 1
s_lshl_b32 s{t2}, s{sWV}, 6
v_add_u32 v{QA}, s{t1}, v{QA}
v_subrev_u32 v{QA+2}, s{t2}, v3         ; padded - 64w
v_lshlrev_b32 v{QA+4}, 7, v{VL}
""")
        if not slow: a(f"v_add_u32 v{QA+1}, v{QA}, v{SA}\nv_mov_b32 v{QA+5}, 0x3f80")
        a(f"{lab}f:")
        for j in range(4):
            a(f"v_cmpx_lt_i32 vcc, {256*j}, v{QA+2}\nds_write_b16 v{QA}, v{QA+4} offset:{GN+8*j}")
            if not slow: a(f"ds_write_b16 v{QA+1}, v{QA+5} offset:{STB+8*j}")
        a(f"v_add_u32 v{QA+2}, -1024, v{QA+2}\nv_add_u32 v{QA}, 32, v{QA}")
        if not slow: a(f"v_add_u32 v{QA+1}, 32, v{QA+1}")
        a(f"""
v_cmp_lt_i32 vcc, 0, v{QA+2}
s_cmp_lg_u64 vcc, 0
s_cbranch_scc1 {lab}f
s_mov_b64 exec, -1
s_lshl_b32 s{t1}, s{sWV}, 4
v_mov_b32 v{QA+8}, 0
v_mov_b32 v{QA+9}, 0
v_mov_b32 v{QA+10}, {hex(NULLW2)}
v_add_u32 v{QA+6}, s{t1}, v{QA+6}
v_sub_u32 v{QA+2}, v3, v{QA+6}
v_add_u32 v{QA+6}, v2, v{QA+6}
v_lshl_add_u32 v{QA+7}, v{VL}, 4, s{t0}
s_mov_b32 exec_hi, 0
ds_write_b96 v{QA+7}, v[{QA+8}:{QA+10}] offset:{REC}
s_mov_b32 exec_hi, -1
""")
        for j in range(5):
            a(f"v_cmpx_lt_i32 vcc, {64*j}, v{QA+2}\nds_write_b96 v{QA+6}, v[{QA+8}:{QA+10}] offset:{REC+64*j}")
            if j==0: a(f"v_cmp_lt_i32 vcc, 64, v{QA+2}\ns_cmp_lg_u64 vcc, 0\ns_cbranch_scc0 {lab}p")
        a(f"{lab}p:\ns_mov_b64 exec, -1")

    a(f"""
{name}:
s_cmp_ge_u32 s2, 256
s_cbranch_scc1 KF_END
s_load_dwordx16 s[4:19], s[0:1], 0
s_load_dwordx2 s[20:21], s[0:1], 64
v_lshrrev_b32 v1, 6, v0
v_and_b32 v{VL}, 63, v0
v_readfirstlane_b32 s{sWV}, v1
s_and_b32 s{sK}, s2, 7
s_lshl_b32 s{sK}, s{sK}, 5
s_lshr_b32 s{t0}, s2, 3
s_or_b32 s{sK}, s{sK}, s{t0}
s_and_b32 s{sW4}, s{sWV}, 3
s_lshl_b32 s{sW4K}, s{sW4}, 10
s_cmp_ge_u32 s{sWV}, 4
s_cbranch_scc1 KF_T
""")
    D=28; SRc=36; K=44; R=52; W2=60; RO=80
    sD=40; sS=44; sE=48
    a(f"""
s_min_u32 s{t2}, s2, {NPROD-1}
s_mul_i32 s{t2}, s{t2}, {EP*4}
v_lshlrev_b32 v108, 2, v0
v_add_u32 v109, 4096, v108
v_lshlrev_b32 v110, 4, v0
s_waitcnt lgkmcnt(0)
""")
    stamp(a,0,True); stamp(a,1)
    srd(a,sD,10,E*4)
    def ld7(dst,sr,lab):
        for i in range(6): a(f"buffer_load_dword v{dst+i}, v{108+i//4}, {SR4(sr)}, s{t2} offen offset:{(i&3)*1024}")
        a(f"s_cmp_eq_u32 s{sWV}, 0\ns_cbranch_scc0 {lab}\nbuffer_load_dword v{dst+6}, v109, {SR4(sr)}, s{t2} offen offset:2048\n{lab}:")
    ld7(D,sD,"KS_a")
    srd(a,sS,8,E*4); srd(a,sE,6,E*8)
    a("s_barrier")
    ld7(SRc,sS,"KS_b")
    a(f"s_lshl_b32 s{t2}, s{t2}, 1\ns_lshl_b32 s{t0}, s{sWV}, 10")
    for j in range(4):
        if j==3: a(f"s_cmp_eq_u32 s{sWV}, 0\ns_cbranch_scc0 KS_c")
        a(f"s_add_u32 m0, s{t0}, {ERAW+j*4096}\ns_add_u32 s{t1}, s{t2}, {j*4096}\nbuffer_load_dwordx4 v110, {SR4(sE)}, s{t1} offen lds")
    a("KS_c:")
    consts()
    a(f"""
v_xor_b32 v{TO}, 32, v{TRU}
v_lshrrev_b32 v2, 3, v{VL}
v_and_b32 v2, 2, v2
v_xor_b32 v2, v2, v3
v_lshl_add_u32 v{TD}, v2, 4, v{DR}
v_mov_b32 v111, 8
v_lshlrev_b32 v112, 3, v0
v_lshlrev_b32 v113, 4, v{VL}
v_add_u32 v113, {HIST}, v113
v_mov_b32 v114, 0
v_mov_b32 v115, 0
s_mov_b32 s{t3}, {HIST}
""")
    for i in range(7): a(f"v_add_u32 v{W2+1+2*i}, {i*2048}, v112")
    a(f"s_cmp_ge_u32 s2, {NPROD}\ns_cbranch_scc1 KS_d\ns_waitcnt vmcnt(9)")
    pt('dst')
    def keyrank(i):
        a(f"""
v_and_b32 v{K+i}, 255, v{D+i}
v_lshl_add_u32 v{K+i}, v{K+i}, 2, s{t3}
v_lshrrev_b32 v{D+i}, 8, v{D+i}
ds_add_rtn_u32 v{R+i}, v{K+i}, v111
""")
    for i in range(6): keyrank(i)
    a(f"s_cmp_eq_u32 s{sWV}, 0\ns_cbranch_scc0 KS_d")
    keyrank(6)
    a("KS_d:")
    bar('b1')
    a(f"""
s_cmp_ge_u32 s2, {NPROD}
s_cbranch_scc1 KS_g
ds_read_b128 v[116:119], v113
s_waitcnt lgkmcnt(0)
v_add_u32 v2, v116, v117
v_add3_u32 v2, v2, v118, v119
v_mov_b32 v3, v2
""")
    dpp_scan(a,"v_add_u32",[3])
    a(f"""
v_sub_u32 v120, v3, v2
v_add_u32 v121, v120, v116
v_add_u32 v122, v121, v117
v_add_u32 v123, v122, v118
ds_write_b128 v113, v[120:123] offset:1024
""")
    for i in range(6): a(f"ds_read_b32 v{K+i}, v{K+i} offset:1024")
    a(f"s_cmp_eq_u32 s{sWV}, 0\ns_cbranch_scc0 KS_e\nds_read_b32 v{K+6}, v{K+6} offset:1024\nKS_e:")
    a("s_waitcnt vmcnt(3)")
    for i in range(7): a(f"v_lshl_or_b32 v{W2+2*i}, v{D+i}, 19, v{SRc+i}")
    a(f"s_waitcnt lgkmcnt(0)")
    def scat(i): a(f"v_add_u32 v{K+i}, v{K+i}, v{R+i}\nds_write_b64 v{K+i}, {P2(W2+2*i)} offset:{S1}")
    for i in range(6): scat(i)
    a(f"s_cmp_eq_u32 s{sWV}, 0\ns_cbranch_scc0 KS_f")
    scat(6)
    a("KS_f:")
    for j in range(4): a(f"v_lshlrev_b32 v{120+j}, 1, v{120+j}\nv_lshl_or_b32 v{QA+2*j}, v{116+j}, 13, v{120+j}")
    a("KS_g:")
    pt('sc1')
    a(f"s_load_dword s{sNON}, s[18:19], 0\nv_mov_b32 v3, 0\nv_lshlrev_b32 v2, 5, v{VL}")
    srd(a,sD,18,256)
    a(f"""
s_lshl_b32 s{t0}, s2, 11
s_add_u32 s{t0}, s{t0}, {F_TBL}
s_waitcnt lgkmcnt(0)
s_cmp_lg_u32 s{sNON}, 0
s_cbranch_scc1 KS_n1
s_load_dword s{sNON}, s[18:19], 128
s_waitcnt lgkmcnt(0)
KS_n0:
s_cmp_lg_u32 s{sNON}, 0
s_cbranch_scc1 KS_n1
s_cmp_eq_u32 s{sBUD}, 0
s_cbranch_scc1 KS_n1
s_sub_u32 s{sBUD}, s{sBUD}, 1
buffer_load_dword v1, v3, {SR4(sD)}, 0 offen{SC}
s_waitcnt vmcnt(0)
v_readfirstlane_b32 s{sNON}, v1
s_nop 3
s_branch KS_n0
KS_n1:
v_mov_b32 v1, s{sNON}
v_mov_b32 v{QA+1}, v1
v_mov_b32 v{QA+3}, v1
v_mov_b32 v{QA+5}, v1
v_mov_b32 v{QA+7}, v1
ds_write_b32 v3, v1 offset:{MISC+8}
""")
    pt('non')
    bar('bS',"s_waitcnt vmcnt(0) lgkmcnt(0)")
    a(f"""
s_cmp_ge_u32 s2, {NPROD}
s_cbranch_scc1 KS_j
s_cmp_eq_u32 s{sWV}, 0
s_cbranch_scc0 KS_h
ds_read_b64 {P2(RO+26)}, v112 offset:{S1+6*2048}
s_waitcnt lgkmcnt(0)
ds_read_b64 {P2(RO+24)}, v{RO+27} offset:{ERAW}
KS_h:
""")
    for i in range(6): a(f"ds_read_b64 {P2(RO+2+4*i)}, v112 offset:{S1+i*2048}")
    for i in range(6): a(f"s_waitcnt lgkmcnt(5)\nds_read_b64 {P2(RO+4*i)}, v{RO+3+4*i} offset:{ERAW}")
    a(f"""
s_cmp_eq_u32 s{sWV}, 3
s_cbranch_scc0 KS_i
buffer_store_dwordx4 {P4(QA)}, v2, {SR4(sR)}, s{t0} offen{SC}
buffer_store_dwordx4 {P4(QA+4)}, v2, {SR4(sR)}, s{t0} offen offset:16{SC}
KS_i:
s_mul_i32 s{t0}, s2, {EP*16}
""")
    def outp(i): a(f"v_mov_b32 v{RO+3+4*i}, v1\ns_add_u32 s{t1}, s{t0}, {F_REC+i*4096}\nbuffer_store_dwordx4 {P4(RO+4*i)}, v110, {SR4(sR)}, s{t1} offen{SC}")
    def st(i): a(f"v_pk_maximum3_f16 v114, v114, v{RO+4*i}, v{RO+1+4*i}\nv_pk_minimum3_f16 v115, v115, v{RO+4*i}, v{RO+1+4*i}")
    for i in range(6): a(f"s_waitcnt lgkmcnt({5-i})"); outp(i)
    for i in range(6): st(i)
    a(f"s_cmp_eq_u32 s{sWV}, 0\ns_cbranch_scc0 KS_j")
    outp(6); st(6)
    a("KS_j:")
    pt('out')
    if PROF and 'drn' in PTS: a("s_waitcnt vmcnt(0)")
    pt('drn')
    absmax_fin(a,114,115,2)
    a(f"""
s_lshl_b32 s{t0}, s{sWV}, 12
s_add_u32 s{t0}, s{t0}, {PSC}
v_lshrrev_b32 v1, 1, v{VL}
v_lshrrev_b32 v2, 4, v{VL}
v_xor_b32 v1, v1, v2
v_and_b32 v1, 3, v1
v_lshlrev_b32 v1, 4, v1
v_lshl_add_u32 v1, v{WT}, 6, v1
v_add_u32 v116, s{t0}, v1
v_lshl_add_u32 v117, v{VL}, 4, s{t0}
v_lshrrev_b32 v1, 3, v{VL}
v_xor_b32 v1, v1, v{VL}
v_and_b32 v1, 3, v1
v_lshlrev_b32 v1, 4, v1
v_lshrrev_b32 v2, 2, v{VL}
v_lshl_add_u32 v118, v2, 16, v1
""")
    bar('bW',"s_nop 0")
    a(f"ds_read_b32 v119, v3 offset:{MISC+12}")
    trfrag(WF,TD,32768,2048,256)
    xfrags([0])
    a("s_waitcnt lgkmcnt(0)")
    trfrag(WF+16,TD,32768+8,2048,256)
    xfrags([1])
    def pm(T,i):
        for s in range(4): a(mfma16(GA+8*T+4*i,WF+16*i+4*s,XF+16*T+4*s,None if s==0 else GA+8*T+4*i))
    pm(0,0)
    a("s_waitcnt lgkmcnt(4)"); xfrags([2,3]); pm(0,1)
    a("s_waitcnt lgkmcnt(8)"); pm(1,0); pm(1,1)
    a("s_waitcnt lgkmcnt(4)"); pm(2,0); pm(2,1)
    a("s_waitcnt lgkmcnt(0)"); pm(3,0); pm(3,1)
    a(f"""
v_mul_f32 v114, v114, v119
s_lshl_b32 s{t0}, s{sK}, 8
s_lshl_b32 s{t1}, s{sWV}, 6
s_add_u32 s{t0}, s{t0}, s{t1}
v_cmp_nge_f32 vcc, 0x41680000, v114      ; !(14.5 >= e*c3)
""")
    srd(a,sA,12,260*256)
    for T in range(4):
        c=GA+8*T
        for j in range(4): a(f"v_pk_mul_f32 {P2(c+2*j)}, {P2(c+2*j)}, {S2(sL2E)}")
        for j in range(4): a(f"v_cvt_pk_bf16_f32 v{c+j}, v{c+2*j}, v{c+2*j+1}")
        a(f"ds_write_b128 v116, {P4(c)} offset:{T*1024}\nds_read_b128 {P4(PO+4*T)}, v117 offset:{T*1024}")
    a(f"s_mov_b64 {S2(sM)}, vcc")
    pt('pg')
    for T in range(4):
        c=PO+4*T
        a(f"s_add_u32 s{t1}, s{t0}, {F_P+T*16*65536}\ns_waitcnt lgkmcnt({2*(3-T)})")
        if T==3: a("s_mov_b64 exec, 15")
        a(f"buffer_store_dwordx4 {P4(c)}, v118, {SR4(sR)}, s{t1} offen{SC}")
        if T==0: a(f"v_pk_maximum3_f16 v114, v{c}, v{c+1}, v{c+2}\nv_pk_minimum3_f16 v115, v{c}, v{c+1}, v{c+2}\nv_pk_maximum3_f16 v114, v114, v{c+3}, v{c+3}\nv_pk_minimum3_f16 v115, v115, v{c+3}, v{c+3}")
        else: a(f"v_pk_maximum3_f16 v114, v114, v{c}, v{c+1}\nv_pk_minimum3_f16 v115, v115, v{c}, v{c+1}\nv_pk_maximum3_f16 v114, v114, v{c+2}, v{c+3}\nv_pk_minimum3_f16 v115, v115, v{c+2}, v{c+3}")
    a("s_mov_b64 exec, -1")
    absmax_fin(a,114,115,2)
    a(f"""
s_mul_i32 s{t0}, s{sWV}, {QS}
s_add_u32 s{t0}, s{t0}, {Q2}
v_cmp_lt_u32 vcc, 0x40e80000, v114
v_lshrrev_b32 v2, 4, v{VL}
v_lshl_add_u32 v120, v2, 9, s{t0}
v_lshl_add_u32 v120, v{WT}, 2, v120
v_add_u32 v121, 128, v120
v_add_u32 v122, 64, v120
v_add_u32 v123, 192, v120
s_or_b64 {S2(sM)}, vcc, {S2(sM)}
s_cselect_b32 s{sBAD}, 2, 0
""")
    pt('pst')
    sdma(sA,32768)
    pt('w2i')
    a(f"""
s_xor_b32 s{t0}, s{sNON}, s{sBAD}
v_mov_b32 v1, s{t0}
s_lshl_b32 s{t1}, s2, 4
s_lshl_b32 s{t2}, s{sWV}, 2
s_add_u32 s{t1}, s{t1}, s{t2}
s_add_u32 s{t1}, s{t1}, {F_FLG}
s_waitcnt vmcnt(8)
s_mov_b64 exec, 1
buffer_store_dword v1, v3, {SR4(sR)}, s{t1} offen{SC}
s_mov_b64 exec, -1
""")
    pt('pfl')
    bar('bR',"s_nop 0")
    w3rd()
    a("s_waitcnt vmcnt(1)")
    trfrag(WF,TRU,0,2048,256)
    a("s_waitcnt lgkmcnt(0)")
    trfrag(WF+16,TO,0,2048,256)
    for i in range(2):
        if i==1: a("s_waitcnt lgkmcnt(0)")
        for T in range(4):
            for s in range(4): a(mfma16(GA+16*i+4*T,XF+16*T+4*s,WF+16*i+4*s,None if s==0 else GA+16*i+4*T))
    H=QA; MX=114
    srd(a,sA,14,256*256)
    for i in range(2):
        for T in range(3):
            c=GA+16*i+4*T
            a(f"v_pk_mul_f32 {P2(c)}, {P2(c)}, {S2(sL2E)}\nv_pk_mul_f32 {P2(c+2)}, {P2(c+2)}, {S2(sL2E)}")
            for k in range(4): a(f"v_and_b32 v{H+k}, 0xffff0000, v{c+k}")
            a(f"v_maximum3_f32 v{MX}, {'0' if T==0 and i==0 else 'v'+str(MX)}, abs(v{c}), abs(v{c+1})\nv_maximum3_f32 v{MX}, v{MX}, abs(v{c+2}), abs(v{c+3})")
            a(f"v_pk_add_f32 {P2(c)}, {P2(c)}, {P2(H)} neg_lo:[0,1] neg_hi:[0,1]\nv_pk_add_f32 {P2(c+2)}, {P2(c+2)}, {P2(H+2)} neg_lo:[0,1] neg_hi:[0,1]")
            for k in range(4): a(f"v_cvt_pk_bf16_f32 v{c+k}, v{c+k}, v{H+k}")
        if i==FLI: a(f"s_mov_b32 s{sLO}, {F_FLG}\nbuffer_load_dwordx4 v[116:119], v110, {SR4(sR)}, s{sLO} offen{SC}")
        for T in range(3):
            c=GA+16*i+4*T
            a(f"ds_write2st64_b32 v{120+2*i}, v{c}, v{c+2} offset0:{8*T} offset1:{8*T+1}\nds_write2st64_b32 v{121+2*i}, v{c+1}, v{c+3} offset0:{8*T} offset1:{8*T+1}")
    a("s_mov_b32 exec_lo, 0xffff\ns_mov_b32 exec_hi, 0")
    for i in range(2):
        c=GA+16*i+12
        a(f"""
v_mul_f32 v{c}, s{sL2E}, v{c}
v_and_b32 v{H}, 0xffff0000, v{c}
v_maximum3_f32 v{MX}, v{MX}, abs(v{c}), abs(v{c})
v_sub_f32 v{c}, v{c}, v{H}
v_cvt_pk_bf16_f32 v{c}, v{c}, v{H}
ds_write2st64_b32 v{120+2*i}, v{c}, v{c+2} offset0:24 offset1:25
ds_write2st64_b32 v{121+2*i}, v{c+1}, v{c+3} offset0:24 offset1:25
""")
    a(f"""
s_mov_b64 exec, -1
v_cmp_nge_f32 vcc, 0x40e80000, v{MX}
v_mov_b32 v3, 0
s_cbranch_vccz KS_k
ds_write_b32 v3, v{FA} offset:{MISC}
KS_k:
""")
    pt('qd')
    sdma(sA,0,32768)
    a(f"v_mov_b32 v{TD}, v{VY}")
    pt('wui')
    bar('b2')
    scan(QA+6)
    ranges("KS_l")
    fill("KSz",False)
    a("KS_l:")
    pt('fil')
    a(f"""
s_or_b32 s{t1}, s{sNON}, 2
KS_m:
s_waitcnt vmcnt(0)
v_and_b32 v1, v116, v117
v_or_b32 v2, v116, v117
v_and_b32 v3, v118, v119
v_or3_b32 v2, v2, v118, v119
v_and_b32 v1, v1, v3
v_or_b32 v3, 2, v2
v_or_b32 v1, 2, v1
v_cmp_ne_u32 vcc, s{t1}, v3
v_cmp_ne_u32 {S2(t2)}, s{t1}, v1
s_or_b64 vcc, vcc, {S2(t2)}
s_cbranch_scc0 KS_n
s_sub_u32 s{sBUD}, s{sBUD}, 1
s_cbranch_scc1 KS_n
s_sleep 8
buffer_load_dwordx4 v[116:119], v110, {SR4(sR)}, s{sLO} offen{SC}
s_branch KS_m
KS_n:
v_cmp_ne_u32 vcc, s{sNON}, v2
v_mov_b32 v3, 0
s_cbranch_vccz KF_J
ds_write_b32 v3, v{FA} offset:{MISC}
s_branch KF_J
""")
    a(f"""
KF_T:
v_and_b32 v28, 255, v0
v_lshlrev_b32 v29, 2, v28
v_add_u32 v29, {HIST}, v29
v_mov_b32 v32, 0
v_mov_b32 v33, 0
v_mov_b32 v34, 0
v_mov_b32 v35, 0
ds_write_b32 v29, v32
v_lshlrev_b32 v30, 4, v28
s_memrealtime {S2(t2)}
s_waitcnt lgkmcnt(0)
""")
    stamp(a,0,True); stamp(a,1)
    sG=40
    srd(a,sG,18,256)
    a(f"""
s_cmp_eq_u32 s2, 0
s_cbranch_scc0 KT_a
s_cmp_eq_u32 s{sWV}, 4
s_cbranch_scc0 KT_a
s_lshl_b32 s{t0}, s{t2}, 2
s_or_b32 s{t0}, s{t0}, 1
v_mov_b32 v1, s{t0}
v_lshlrev_b32 v2, 7, v{VL}
s_mov_b64 exec, 3
buffer_store_dword v1, v2, {SR4(sG)}, 0 offen{SC}
s_mov_b64 exec, -1
KT_a:
s_barrier
""")
    srd(a,sA,14,256*256)
    a(f"""
s_lshr_b32 s{t0}, s2, 3
s_lshl_b32 s{t0}, s{t0}, 11
s_lshl_b32 s{t1}, s{sW4}, 9
s_add_u32 s{t0}, s{t0}, s{t1}
v_lshlrev_b32 v2, 7, v{VL}
s_mov_b64 exec, 15
buffer_load_dword v45, v2, {SR4(sA)}, s{t0} offen
""")
    srd(a,sA,12,260*256)
    a(f"buffer_load_dword v45, v2, {SR4(sA)}, s{t0} offen\ns_mov_b64 exec, -1")
    a(f"v_and_b32 v1, 31, v{VL}\nv_lshlrev_b32 v1, 1, v1\ns_lshl_b32 s{t0}, s{sW4}, 6\ns_add_u32 s{t0}, s{t0}, 65536")
    for k in range(4): a(f"buffer_load_ushort v{40+k}, v1, {SR4(sA)}, s{t0} offen offset:{k*256}")
    srd(a,sX,4,N,stride=256)
    a(f"""
v_lshrrev_b32 v1, 4, v28
v_xor_b32 v37, v1, v0
v_and_b32 v37, 15, v37
v_lshlrev_b32 v37, 4, v37
v_lshl_add_u32 v36, v1, 8, s{sK}
""")
    for j in range(4):
        if j==3: a(f"s_cmp_eq_u32 s{sWV}, 4\ns_cbranch_scc0 KT_c")
        a(f"s_add_u32 m0, s{sW4K}, {AGB+j*4096}\ns_nop 0\nbuffer_load_dwordx4 v[36:37], {SR4(sX)}, 0 idxen offen lds\nv_add_u32 v36, 4096, v36")
    a("KT_c:")
    for j in range(4): a(f"ds_write_b128 v30, v[32:35] offset:{j*4096}")
    a(f"""
s_cmp_eq_u32 s{sWV}, 7
s_cbranch_scc1 KT_b
ds_write_b128 v30, v[32:35] offset:16384
s_cmp_eq_u32 s{sWV}, 4
s_cbranch_scc0 KT_b
v_mov_b32 v1, {hex(ONE2)}
ds_write2_b32 v32, v1, v1 offset0:{OH//4} offset1:{OH//4+5}
KT_b:
""")
    consts()
    bar('b1')
    sdma(sA,0)
    a(f"""
v_lshlrev_b32 v38, 11, v28
s_lshl_b32 s{sLO}, s{sK}, 3
s_add_u32 s{sLO}, s{sLO}, {F_TBL}
v_cmp_gt_u32 vcc, {NPROD}, v28
v_mov_b32 v{TC}, 0
s_mov_b64 {S2(sM+4)}, vcc
""")
    pt('w1i')
    bar('bS')
    a(f"ds_read_b32 v44, v32 offset:{MISC+8}\ns_waitcnt vmcnt(11)")
    for k in range(4): a(f"v_lshlrev_b32 v{40+k}, 16, v{40+k}\nv_mul_f32 v{40+k}, s{sL2E}, v{40+k}")
    a(f"""
v_cvt_pk_bf16_f32 v46, v40, v41
v_cvt_pk_bf16_f32 v47, v42, v43
v_lshlrev_b32 v48, 16, v46
v_and_b32 v49, 0xffff0000, v46
v_lshlrev_b32 v50, 16, v47
v_and_b32 v51, 0xffff0000, v47
v_add_f32 v52, abs(v40), abs(v41)
v_sub_f32 v48, v40, v48
v_sub_f32 v49, v41, v49
v_sub_f32 v50, v42, v50
v_sub_f32 v51, v43, v51
v_add_f32 v53, abs(v42), abs(v43)
s_mov_b32 exec_lo, 0
v_cvt_pk_bf16_f32 v46, v48, v49
v_cvt_pk_bf16_f32 v47, v50, v51
s_mov_b32 exec_lo, -1
v_add_f32 v52, v52, v53
v_lshlrev_b32 v1, 3, v28
v_and_b32 v52, 0x7fffffff, v52
ds_write_b64 v1, v[46:47] offset:{W3L}
""")
    dpp_scan(a,"v_max_u32",[52])
    a(f"""
s_mov_b32 exec_lo, 0
s_brev_b32 exec_hi, 1
ds_max_u32 v32, v52 offset:{MISC+12}
s_mov_b64 exec, -1
""")
    pt('w3')
    bar('bW',"s_waitcnt vmcnt(0) lgkmcnt(0)")
    a(f"""
v_readfirstlane_b32 s{sNON}, v44
s_mov_b64 exec, {S2(sM+4)}
buffer_load_dwordx2 {P2(TC)}, v38, {SR4(sR)}, s{sLO} offen{SC}
KT_f:
s_waitcnt vmcnt(0)
v_cmp_ne_u32 vcc, s{sNON}, v{TC+1}
s_cbranch_vccz KT_g
s_mov_b64 exec, vcc
s_sub_u32 s{sBUD}, s{sBUD}, 1
s_cbranch_scc1 KT_f2
buffer_load_dwordx2 {P2(TC)}, v38, {SR4(sR)}, s{sLO} offen{SC}
s_branch KT_f
KT_f2:
s_mov_b32 s{sBUD}, 0
v_mov_b32 v{TC}, 0
KT_g:
s_mov_b64 exec, -1
""")
    pt('tp')
    a(f"""
v_and_b32 v{TD}, 0xffff, v{TC}
v_lshrrev_b32 v{TC}, 16, v{TC}
v_mov_b32 v{TO}, v{TC}
v_mul_u32_u24 v1, {EP*16}, v28
v_add_u32 v1, {F_REC}, v1
v_add_u32 v{TD}, v{TD}, v1
""")
    dpp_scan(a,"v_add_u32",[TO])
    a(f"""
s_mov_b32 exec_lo, 0
s_brev_b32 exec_hi, 1
ds_add_rtn_u32 v1, v32, v{TO} offset:{MISC+4}
s_mov_b64 exec, -1
v_sub_u32 v{TO}, v{TO}, v{TC}
s_mov_b32 s{sLO}, 0
s_mov_b32 s{t3}, 2048
s_waitcnt lgkmcnt(0)
v_readlane_b32 s{t0}, v1, 63
s_nop 1
v_add_u32 v{TO}, s{t0}, v{TO}
v_lshlrev_b32 v1, 4, v{TO}
v_sub_u32 v{TD}, v{TD}, v1
""")
    expand("KT_x",2048)
    if PRIO: a("s_setprio 2")
    a("v_mov_b32 v3, 0")
    pt('exp')
    bar('bR',"s_waitcnt vmcnt(0) lgkmcnt(0)")
    a(f"ds_read_b32 v1, v3 offset:{MISC+4}\ns_waitcnt lgkmcnt(0)\nv_readfirstlane_b32 s{sTOT}, v1")
    recload(8,"KT_l")
    pt('rl')
    xfrags([0,1,2])
    a(f"""
s_cmp_gt_u32 s{sTOT}, 2048
s_cbranch_scc0 KT_h
v_mov_b32 v3, 0
ds_write_b32 v3, v{FA} offset:{MISC}
KT_h:
""")
    xfrags([3]); w3rd()
    pt('ud')
    hist(8,"KT_h")
    pt('hs')
    bar('b2')
    scan()
    ranges("KT_i")
    scatter(8,"KT_s")
    a("KT_i:")
    pt('sca')
    a(f"""
KF_J:
s_cmp_lt_u32 s{sWV}, 4
s_cselect_b32 s{sWU}, 1, -1
s_mul_i32 s{sT0}, s{sCNT}, s{sWV}
s_and_b32 s{t2}, s{sNT}, 7
s_min_u32 s{t3}, s{t2}, s{sWV}
s_add_u32 s{sT0}, s{sT0}, s{t3}
s_cmp_lt_u32 s{sWV}, s{t2}
s_addc_u32 s{sCNT}, s{sCNT}, 0
s_lshl_b32 s{t0}, s{sT0}, 9
s_add_u32 s{t1}, s{t0}, {REC}
s_lshl_b32 s{t2}, s{sT0}, 4
v_add_u32 v{SB}, s{t1}, v{SB}
v_add_u32 v{RB}, s{t1}, v{RB}
v_sub_u32 v{SA}, v{SA}, v{OHC}
v_add_u32 v{SA}, s{t2}, v{SA}
v_lshl_add_u32 v1, v{VL}, 4, s{t2}
v_mov_b32 v3, 0
""")
    if PRIO: a("s_setprio 3")
    bar('b3')
    def rd_idx(off=0):
        for i in range(8): a(f"ds_read_u16 v{IDX+2*i}, v{SB} offset:{64*i+8+off}")
    def dma1(i):
        L=[]
        if i==0: L.append(f"s_mov_b32 m0, s{sBUF}\ns_nop 0")
        if i==4: L.append(f"s_add_u32 m0, s{sBUF}, 4096\ns_nop 0")
        L.append(f"buffer_load_dwordx4 {P2(IDX+2*i)}, {SR4(sP)}, 0 idxen offen offset:{1024*(i&3)}{GSC} lds")
        return "\n".join(L)
    def dma():
        for i in range(8): a(dma1(i))
    def rd_b3(q): return f"ds_read_addtid_b32 v{B3+4*q} offset:{Q2+q*QS}\nds_read_addtid_b32 v{B3+4*q+1} offset:{Q2+q*QS+256}"
    def rd_a3(off=0): return f"ds_read_b64 {P2(A3)}, v{VY} offset:{OH}\nds_read_b64 {P2(A3+2)}, v{RB} offset:{off}"
    def rd_a(t): return f"ds_read_b128 {P4(A+4*t)}, v{AR+t}"
    rd_s=f"s_mov_b64 exec, {S2(sMA)}\nds_read_b64 {P2(SS)}, v{SA} offset:{STB}\ns_mov_b64 exec, {S2(sMB)}\nds_read_b64 {P2(SS+2)}, v{SA} offset:{STB}\ns_mov_b64 exec, -1"
    rd_idx()
    a(f"""
ds_read_u16 v{WT}, v1 offset:{GN}
ds_read_b32 v{GP}, v3 offset:{MISC}
ds_read_u16 v{VY}, v{RB} offset:10
s_cmp_ge_u32 s{sWV}, 4
s_cbranch_scc1 KF_d0
s_waitcnt lgkmcnt(3)
""")
    a(dma1(0)); a(dma1(1))
    tru(WU1,32768)
    for i in range(2,5): a(dma1(i))
    a("s_waitcnt lgkmcnt(0)\ns_barrier")
    for i in range(5,8): a(dma1(i))
    a("s_branch KF_d1\nKF_d0:")
    tru(WU1,32768)
    a("s_waitcnt lgkmcnt(0)\ns_barrier")
    dma()
    a("KF_d1:")
    pt('d0')
    a(f"""
s_waitcnt lgkmcnt(0)
v_readfirstlane_b32 s{sNF}, v{WT}
v_readfirstlane_b32 s{t3}, v{GP}
""")
    ugemm()
    rd_idx(512)
    uscale()
    a(f"""
s_or_b32 s{sFLAG}, s{sFLAG}, s{t3}
s_cbranch_scc1 KF_SLOW
s_lshr_b32 s{t2}, s{sNF}, 7
v_subrev_u32 v2, s{t2}, v{VL}
v_and_b32 v2, 15, v2
v_add_u32 v{DR}, s{t2}, v2
v_lshlrev_b32 v2, 2, v{DR}
ds_read_b32 v{GP}, v2 offset:{BT}
s_lshr_b32 s{sW8}, s{sNF}, 4
s_sub_u32 s{sW8}, 0, s{sW8}
s_mov_b32 m0, s{sNF}
v_add3_u32 v{VY}, v{VY}, v{OHC}, s{sW8}
""")
    for q in range(4): a(rd_b3(q))
    a(rd_a3())
    a(f"""
v_mov_b32 v{SS}, 0
v_mov_b32 v{SS+1}, 0
v_mov_b32 v{SS+2}, 0
v_mov_b32 v{SS+3}, 0
s_add_u32 s{t1}, s{sT0}, s{sCNT}
s_lshl_b32 s{t1}, s{t1}, 9
s_add_u32 s{t2}, s{sWV}, 48
v_mov_b32 v1, s{t2}
{mfma32(ACC+16,SS,SS,None)}
s_waitcnt lgkmcnt(10)
v_cmp_gt_u32 vcc, s{t0}, v{GP}
v_cmp_gt_u32 {S2(t2)}, s{t1}, v{GP}
v_cmp_gt_u32 {S2(t0)}, s{sNN}, v{DR}
v_cndmask_b32 v{DR}, v{DR}, v1, vcc
s_cmp_lg_u64 vcc, 0
s_cselect_b32 s{sHEAD}, 1, 0
s_and_b64 vcc, {S2(t2)}, {S2(t0)}
v_lshrrev_b32 v1, 2, v{VL}
v_cndmask_b32 v{DR}, 63, v{DR}, vcc
v_and_b32 v1, 4, v1
v_xor_b32 v1, v1, v{DR}
v_and_b32 v1, 15, v1
v_lshlrev_b32 v1, 4, v1
v_lshl_add_u32 v{DR}, v{DR}, 8, v1
v_sub_u32 v{DR}, v{DR}, v{OHC}
s_mov_b32 s{sI}, 1
s_sub_u32 s{sCNT}, s{sCNT}, 1
""")
    pt('pre')
    a("s_waitcnt vmcnt(0)")
    pt('g0')
    for t in range(8): a(rd_a(t))
    a("s_waitcnt lgkmcnt(6)")
    a(mfma32(Z[0],A3,B3,None)); a(mfma32(Z[0],A,ID0,Z[0])); a(mfma32(Z[0],A+4,ID1,Z[0]))
    a("s_nop 3\ns_waitcnt lgkmcnt(0)")
    pt('pro')
    def finals(qprev):
        for u in range(2): a(f"v_pk_mul_f32 {P2(NN+2*u)}, {P2(NN+2*u)}, {P2(DD+2*u)}")
        for u in range(2): a(f"v_cvt_pk_bf16_f32 v{GP+2*(qprev&1)+u}, v{NN+2*u}, v{NN+2*u+1}")
    def ex(zc,r): return f"v_exp_f32 v{EE+r}, v{zc+r}"
    def body(first):
        for q in range(4):
            zc=Z[q&1]; zn=Z[(q+1)&1]; qn=(q+1)&3
            ms=[(A3,B3+4*qn),(A+8*qn,ID0),(A+8*qn+4,ID1)]
            if q==3: ms=[ms[1],ms[2],ms[0]]
            pend=[0,1,2,3,8,9,10,11,4,5,12,13,6,7,14,15]
            f0=first and q==0
            if q==0:
                a(f"v_readlane_b32 s{sQ}, v{WT}, s{sI}")
                a(f"ds_read_u16 v{VY}, v{RB} offset:{512+10}")
                if not first: rd_idx(1024)
                else: a("s_nop 3")
            if q==2:
                a("s_waitcnt vmcnt(0)")
                for t in range(6): a(rd_a(t))
            if q==3:
                a(f"s_waitcnt lgkmcnt(0)\ns_cmp_gt_u32 s{sCNT}, 1\ns_cselect_b64 vcc, -1, 0")
            a(mfma32(zn,ms[0][0],ms[0][1],None))
            if not f0:
                for j in range(4): a(f"v_rcp_f32 v{DD+j}, v{DD+j}")
            else:
                for r in range(4): a(ex(zc,pend.pop(0)))
            if q==0:
                a(f"s_lshr_b32 s{sW8}, s{sQ}, 4\ns_mov_b32 m0, s{sQ}\ns_sub_u32 s{sW8}, 0, s{sW8}")
                a(rd_b3(0)); a(rd_b3(1))
            if q==1:
                if first: a(f"s_mov_b32 m0, s{sQ}"); rd_idx(1024)
                a(rd_b3(2))
            if q==2: a(rd_b3(3)); a(rd_a3(512))
            a(mfma32(zn,ms[1][0],ms[1][1],zn))
            for r in range(4): a(ex(zc,pend.pop(0)))
            a(mfma32(zn,ms[2][0],ms[2][1],zn))
            for r in range(4): a(ex(zc,pend.pop(0)))
            if q&1:
                p=1 if q==1 else 0
                if not (first and q==1):
                    a(mfma32(ACC+16*p,GP,SS,None if first else ACC+16*p))
                    for r in range(4): a(ex(zc,pend.pop(0)))
                if q==1: a(rd_s)
            if q==2: a(rd_a(6)); a(rd_a(7))
            if not f0: finals((q-1)&3)
            seq=[]
            for u in range(2): seq.append(f"v_pk_add_f32 {P2(DD+2*u)}, {P2(EE+8*u)}, 1.0 op_sel_hi:[1,0]")
            for m in range(1,4):
                for u in range(2):
                    src=(zc+8*u) if m==1 else NN+2*u
                    seq.append(f"v_pk_fma_f32 {P2(NN+2*u)}, {P2(src)}, {P2(EE+8*u+2*m)}, {P2(src)}")
                for u in range(2): seq.append(f"v_pk_fma_f32 {P2(NN+2*u)}, {P2(zc+8*u+2*m)}, {P2(DD+2*u)}, {P2(NN+2*u)}")
                for u in range(2): seq.append(f"v_pk_fma_f32 {P2(DD+2*u)}, {P2(DD+2*u)}, {P2(EE+8*u+2*m)}, {P2(DD+2*u)}")
            slots=[0,1,2,3,5,7,9,11] if len(pend)==8 else [1,4,7,10]
            dpos={}
            if (q==3 or f0) and not X&1:
                for i in range(8): dpos.setdefault(DSP[i],[]).append(i)
            for k,x in enumerate(seq):
                if k in dpos:
                    guard=(q==3 and not first)
                    lab=f"KF_l{k}"
                    if guard: a(f"s_cbranch_vccz {lab}")
                    for i in dpos[k]: a(dma1(i))
                    if guard:
                        if k==max(dpos):
                            a(f"s_branch {lab}b\n{lab}:\ns_cmp_eq_u32 s{sCNT}, s{sWU}\ns_cbranch_scc0 {lab}b")
                            sdma(sA,32768,0,TD)
                            a(f"{lab}b:")
                        else: a(f"{lab}:")
                a(x)
                if k in slots: a(ex(zc,pend.pop(0)))
            if q==1: a(f"s_waitcnt lgkmcnt({2 if first else 4})\nv_add3_u32 v{VY}, v{VY}, v{OHC}, s{sW8}\nv_add_u32 v{SA}, 16, v{SA}")
            if q==2: a(f"v_pk_add_f32 {P2(RB)}, {P2(RB)}, {S2(sINC)}")
    body(True)
    a("s_branch KF_LE\n.p2align 6\nKF_LOOP:")
    body(False)
    a("KF_LE:")
    if PRIO:
        for rem,pr in ((5,2),(3,1),(1,0)):
            a(f"s_cmp_eq_u32 s{sCNT}, {rem}\ns_cbranch_scc0 KF_pr{rem}\ns_setprio {pr}\nKF_pr{rem}:")
    a(f"""
s_add_u32 s{sI}, s{sI}, 1
s_sub_u32 s{sCNT}, s{sCNT}, 1
s_cbranch_scc0 KF_LOOP
""")
    for j in range(4): a(f"v_rcp_f32 v{DD+j}, v{DD+j}")
    a("s_nop 0")
    finals(3)
    a("s_nop 1")
    a(mfma32(ACC+16,GP,SS,ACC+16))
    pt('loop')
    for p in range(2):
        if p==1: a("s_nop 0")
        for j in range(4):
            c=ACC+16*p+4*j
            a(f"v_cvt_pk_bf16_f32 v{c}, v{c}, v{c+1}\nv_cvt_pk_bf16_f32 v{c+1}, v{c+2}, v{c+3}")
            if p or j: a(f"v_xor_b32 v1, {(8*p+j)*16}, v{DR}")
            a(f"ds_write_b64 v{1 if (p or j) else DR}, {P2(c)} offset:{AGB}")
    a(f"""
s_lshr_b32 s{t0}, s{sNF}, 7             ; nf
s_and_b32 s{t1}, s{t0}, 15
s_lshl_b32 s{t1}, s{t1}, 4
s_lshl_b32 s{t0}, s{t0}, 8
s_or_b32 s{t0}, s{t0}, s{t1}
s_mul_i32 s{t1}, s{sWV}, 272
s_add_u32 s{t1}, s{t1}, {48*256}
v_lshlrev_b32 v3, 2, v{VL}
v_xor_b32 v1, s{t0}, v3
v_xor_b32 v2, s{t1}, v3
s_cmp_eq_u32 s{sHEAD}, 0
s_waitcnt vmcnt(0) lgkmcnt(0)
s_barrier
s_cbranch_scc1 KF_FIN
ds_read_b32 v4, v1 offset:{AGB}
ds_read_b32 v5, v2 offset:{AGB}
s_waitcnt lgkmcnt(0)
v_lshlrev_b32 v6, 16, v4
v_and_b32 v7, 0xffff0000, v4
v_lshlrev_b32 v8, 16, v5
v_and_b32 v9, 0xffff0000, v5
v_pk_add_f32 v[6:7], v[6:7], v[8:9]
v_cvt_pk_bf16_f32 v6, v6, v7
ds_write_b32 v1, v6 offset:{AGB}
KF_FIN:
""")
    OST=GBUF+32768
    tru(WU2,0)
    srd(a,sX,16,N*256)
    a(f"""
v_and_b32 v1, 15, v{VL}
s_lshl_b32 s{t0}, s{sOT}, 1
v_lshrrev_b32 v2, 5, v{VL}
v_or_b32 v2, s{t0}, v2
v_xor_b32 v2, v2, v1
v_lshlrev_b32 v2, 4, v2
v_lshl_add_u32 v2, v1, 8, v2
v_lshrrev_b32 v3, 1, v{VL}
v_and_or_b32 v2, v3, 8, v2
v_add_u32 v{AR}, {OST}, v2
v_lshlrev_b32 v{AR+1}, 1, v1
""")
    bar('mrg',"s_waitcnt vmcnt(0) lgkmcnt(0)")
    for T in range(4):
        xfrags([T])
        if T==2:
            a("s_waitcnt lgkmcnt(8)")
            for s in range(4): a(mfma16(UA,WU2+4*s,XF+4*s,UA))
    def silu(T):
        c=UA+4*T; e=EE+4*T
        L=[f"v_exp_f32 v{e+i}, v{c+i}" for i in range(4)]
        L+=[f"v_fma_f32 v{e+i}, v{e+i}, s{sL2E}, s{sL2E}" for i in range(4)]
        L+=[f"v_rcp_f32 v{e+i}, v{e+i}" for i in range(4)]
        L+=[f"v_mul_f32 v{e+i}, v{e+i}, v{c+i}" for i in range(4)]
        L+=[f"v_cvt_pk_bf16_f32 v{e}, v{e}, v{e+1}",f"v_cvt_pk_bf16_f32 v{e+1}, v{e+2}, v{e+3}",f"ds_write_b64 v{AR}, {P2(e)} offset:{T*4096}"]
        return L
    for T in range(1,4):
        a(f"s_waitcnt lgkmcnt({4*(3-T)})")
        for s in range(4):
            x,y=(WU2+4*s,XF+16*T+4*s) if T<3 else (XF+16*T+4*s,WU2+4*s)
            a(mfma16(UA+4*T,x,y,UA+4*T))
    for T in range(3):
        for x in silu(T): a(x)
    c=UA+12; e=EE+12
    a(f"""
v_exp_f32 v{e}, v{c}
s_add_u32 s{t0}, s{sK}, {48*256}
v_fma_f32 v{e}, v{e}, s{sL2E}, s{sL2E}
v_rcp_f32 v{e}, v{e}
s_lshl_b32 s{t0}, s{t0}, 8
v_mul_f32 v{e}, v{e}, v{c}
s_lshl_b32 s{t1}, s{sOT}, 5
s_add_u32 s{t0}, s{t0}, s{t1}
v_cvt_pk_bf16_f32 v{e}, v{e}, v{e}
s_mov_b32 exec_lo, 0xffff
s_mov_b32 exec_hi, 0
buffer_store_short v{e}, v{AR+1}, {SR4(sX)}, s{t0} offen
s_mov_b64 exec, -1
v_lshlrev_b32 v1, 4, v0
v_add_u32 v1, {OST}, v1
v_lshrrev_b32 v2, 4, v0
v_xor_b32 v3, v2, v0
v_and_b32 v3, 15, v3
v_lshlrev_b32 v3, 4, v3
v_lshl_add_u32 v3, v2, 16, v3
s_lshl_b32 s{t0}, s{sK}, 8
s_add_u32 s{t1}, s{t0}, {32*65536}
s_waitcnt lgkmcnt(0)
s_barrier
ds_read_b128 {P4(A)}, v1
s_cmp_lt_u32 s{sWV}, 4
s_cbranch_scc0 KF_e1
ds_read_b128 {P4(A+4)}, v1 offset:8192
s_waitcnt lgkmcnt(0)
buffer_store_dwordx4 {P4(A+4)}, v3, {SR4(sX)}, s{t1} offen
KF_e1:
s_waitcnt lgkmcnt(0)
buffer_store_dwordx4 {P4(A)}, v3, {SR4(sX)}, s{t0} offen
""")
    if PROF: a("s_waitcnt vmcnt(0)")
    stamp(a,10); stamp(a,11,True)
    stamp_out(a,1,sWV)
    a("KF_END:\ns_endpgm")
    hist_retry(8,"KT_h")
    SV=ACC; AGs=SV+8
    a(f"""
KF_SLOW:
s_setprio 0
ds_read_b32 v1, v3 offset:{MISC+4}
v_mov_b32 v{SS}, 0
v_mov_b32 v{SS+1}, 0
v_mov_b32 v{SS+2}, 0
v_mov_b32 v{SS+3}, 0
s_waitcnt vmcnt(0) lgkmcnt(0)
v_readfirstlane_b32 s{sRND}, v1
s_mov_b32 s{sLO}, 0
s_sub_u32 s{t0}, s{sWV}, s{sT0}
s_lshl_b32 s{t0}, s{t0}, 9
v_add_u32 v{SV+4}, s{t0}, v{RB}
v_add_u32 v{SV+5}, s{t0}, v{SB}
s_lshl_b32 s{t0}, s{sWV}, 4
v_sub_u32 v{SV+6}, s{t0}, v{OHC}
v_and_b32 v{SV+7}, 31, v{VL}
v_lshlrev_b32 v{SV+7}, 2, v{SV+7}
v_lshlrev_b32 v1, 4, v0
""")
    for j in range(4): a(f"ds_write_b128 v1, {P4(SS)} offset:{AGG+j*8192}")
    a(f"""
KF_SR:
s_cmp_lt_u32 s{sLO}, s{sRND}
s_cbranch_scc0 KF_SE
s_waitcnt lgkmcnt(0)
s_barrier
s_cmp_ge_u32 s{sWV}, 4
s_cbranch_scc1 KF_ST
; ---- S waves
v_lshlrev_b32 v1, 2, v{VL}
v_mov_b32 v2, 0
ds_write_b32 v1, v2
s_waitcnt lgkmcnt(0)
s_barrier
s_barrier
""")
    scan(QA+6)
    fill("KFs",True)
    a(f"""
s_branch KF_SJ
KF_ST:
s_mov_b32 s{t3}, 1024
""")
    expand("KF_x",1024)
    a(f"s_sub_u32 s{sTOT}, s{sRND}, s{sLO}\ns_min_u32 s{sTOT}, s{sTOT}, 1024\ns_waitcnt lgkmcnt(0)\ns_barrier")
    recload(4,"KF_rl")
    hist(4,"KF_h")
    a("s_waitcnt vmcnt(0) lgkmcnt(0)\ns_barrier")
    scan()
    scatter(4,"KF_s")
    a(f"""
KF_SJ:
s_add_u32 s{sNT}, s{t0}, 511
s_lshr_b32 s{sNT}, s{sNT}, 9
s_waitcnt lgkmcnt(0)
s_barrier
v_mov_b32 v{RB}, v{SV+4}
v_mov_b32 v{SB}, v{SV+5}
v_mov_b32 v{SV+12}, v{SV+6}
s_mov_b32 s{sI}, s{sWV}
KF_SL:
s_cmp_lt_u32 s{sI}, s{sNT}
s_cbranch_scc0 KF_SN
""")
    rd_idx()
    for j in range(4): a(f"ds_read_u16 v{AGs+j}, v{SV+12} offset:{GN+2*j}")
    a(f"ds_read_u16 v{VY}, v{RB} offset:10\ns_waitcnt lgkmcnt(0)")
    dma()
    a(f"""
v_readfirstlane_b32 s{sQ}, v{AGs}
s_nop 3
s_lshr_b32 s{sW8}, s{sQ}, 4
s_sub_u32 s{sW8}, 0, s{sW8}
s_mov_b32 m0, s{sQ}
v_add3_u32 v{VY}, v{VY}, v{OHC}, s{sW8}
""")
    for q in range(4): a(rd_b3(q))
    a(rd_a3())
    for j in range(4): a(f"v_lshl_add_u32 v{AGs+j}, v{AGs+j}, 2, v{SV+7}")
    a("s_waitcnt vmcnt(0) lgkmcnt(0)")
    for t in range(8): a(rd_a(t))
    a("s_waitcnt lgkmcnt(0)")
    for q in range(4):
        z=Z[0]
        a(mfma32(z,A3,B3+4*q,None)); a(mfma32(z,A+8*q,ID0,z)); a(mfma32(z,A+8*q+4,ID1,z))
        a("s_nop 15")
        for r in range(16): a(f"v_exp_f32 v{EE+r}, v{z+r}")
        for r in range(16): a(f"v_add_f32 v{EE+r}, 1.0, v{EE+r}")
        for r in range(16): a(f"v_rcp_f32 v{EE+r}, v{EE+r}")
        for m in range(4):
            for u in range(2):
                for par in range(2):
                    r=8*u+2*m+par; g=GP+2*u+par
                    a(f"v_mul_f32 v{g}, v{z+r}, v{EE+r}" if m==0 else f"v_fmac_f32 v{g}, v{z+r}, v{EE+r}")
        for j in range(4): a(f"ds_add_f32 v{AGs+j}, v{GP+j} offset:{AGG+q*128}")
        a("s_waitcnt lgkmcnt(0)")
    a(f"""
v_add_u32 v{SB}, 4096, v{SB}
v_add_u32 v{RB}, 4096, v{RB}
v_add_u32 v{SV+12}, 128, v{SV+12}
s_add_u32 s{sI}, s{sI}, 8
s_branch KF_SL
KF_SN:
s_add_u32 s{sLO}, s{sLO}, 1024
s_branch KF_SR
KF_SE:
s_cmp_lt_u32 s{sWV}, 4
s_cbranch_scc0 KF_SE2
""")
    sdma(sA,32768,0,TD)
    a(f"""
KF_SE2:
v_lshlrev_b32 v1, 4, v0
v_lshrrev_b32 v2, 5, v0
s_waitcnt vmcnt(0) lgkmcnt(0)
s_barrier
""")
    for j in range(4): a(f"ds_read_b128 {P4(A+4*j)}, v1 offset:{AGG+j*8192}")
    a(f"""
v_bfe_u32 v3, v0, 1, 4
v_xor_b32 v3, v3, v2
v_lshlrev_b32 v3, 4, v3
v_lshl_add_u32 v3, v2, 8, v3
v_and_b32 v1, 1, v0
v_lshl_add_u32 v3, v1, 3, v3
s_waitcnt lgkmcnt(0)
s_barrier
""")
    for j in range(4):
        a(f"v_cvt_pk_bf16_f32 v{A+4*j}, v{A+4*j}, v{A+4*j+1}\nv_cvt_pk_bf16_f32 v{A+4*j+1}, v{A+4*j+2}, v{A+4*j+3}")
        a(f"ds_write_b64 v3, {P2(A+4*j)} offset:{AGB+j*4096}")
    a("s_branch KF_FIN")
    hist_retry(4,"KF_h")
    return a.text()

if __name__=='__main__':
    import sys
    nm='standalone__mpnn_edge_mlp__graph_kernel'
    hdr=open('standalone__mpnn_edge_mlp__graph.s.ref').read().split('; Override')[0]
    out=hdr+(f"; @launch kernel={nm} grid=(256,1,1) block=(512,1,1) lds={KF_LDS}\n" if os.environ.get('LISTF') else f"; @launch grid=(256,1,1) block=(512,1,1) lds={KF_LDS}\n")
    out+='.amdgcn_target "amdgcn-amd-amdhsa--gfx950"\n.text\n'
    out+=f".globl {nm}\n.p2align 8\n.type {nm},@function\n"+gen_kf(nm)
    out+='.section .rodata,"a"\n.p2align 6\n'+kd(nm,256)
    open(sys.argv[1],'w').write(out)
```

```python
N=12500; E=400000
NSORT=125; EPW=3200
NGEMM=131; RPW=96
NPREP=13
import os
WSB=int(os.environ.get('WSB','0'))<<20
WS_P=WSB+0x1000
WS_REC=WSB+0x400000
RSZ=12
WS_WF=WSB+0xB00000
O_W3F=3*32768; O_C3=O_W3F+2048; O_STAT=O_W3F+4096; O_TBL=O_STAT+8192; WF_SIZE=O_TBL+NSORT*1024
WS_W3F=WS_WF+O_W3F
WS_C3=WS_WF+O_C3
WS_STAT=WS_WF+O_STAT
WS_TBL=WS_WF+O_TBL
LOG2E_NEG=0xBFB8AA3B

class Asm:
    def __init__(s): s.l=[]
    def __call__(s,t):
        for x in t.strip('\n').split('\n'):
            x=x.strip()
            if not x: continue
            if x.endswith(':') : s.l.append(x)
            else: s.l.append('    '+x)
    def text(s): return '\n'.join(s.l)+'\n'

def srd(a,d,lo,size,off=0,stride=0):
    if off:
        a(f"s_add_u32 s{d}, s{lo}, {hex(off)}\ns_addc_u32 s{d+1}, s{lo+1}, 0\ns_and_b32 s{d+1}, s{d+1}, 0xffff")
    else:
        a(f"s_mov_b32 s{d}, s{lo}\ns_and_b32 s{d+1}, s{lo+1}, 0xffff")
    if stride: a(f"s_or_b32 s{d+1}, s{d+1}, {hex(stride<<16)}")
    a(f"s_mov_b32 s{d+2}, {size}\ns_mov_b32 s{d+3}, 0x00020000")

def dpp_scan(a,op,regs):
    steps=["row_shr:1 row_mask:0xf bank_mask:0xf bound_ctrl:0","row_shr:2 row_mask:0xf bank_mask:0xf bound_ctrl:0",
           "row_shr:4 row_mask:0xf bank_mask:0xf bound_ctrl:0","row_shr:8 row_mask:0xf bank_mask:0xf bound_ctrl:0",
           "row_bcast:15 row_mask:0xa bank_mask:0xf","row_bcast:31 row_mask:0xc bank_mask:0xf"]
    pad=max(0,2-(len(regs)-1))
    a("s_nop 1")
    for st in steps:
        for r in regs: a(f"{op}_dpp v{r}, v{r}, v{r} {st}")
        if pad: a(f"s_nop {pad-1}")

def kd(name,vgpr,sgpr=102):
    return f""".amdhsa_kernel {name}
  .amdhsa_next_free_vgpr {vgpr}
  .amdhsa_next_free_sgpr {sgpr}
  .amdhsa_accum_offset {(vgpr+3)//4*4}
  .amdhsa_group_segment_fixed_size 0
  .amdhsa_kernarg_size 72
  .amdhsa_user_sgpr_count 2
  .amdhsa_user_sgpr_kernarg_segment_ptr 1
  .amdhsa_system_sgpr_workgroup_id_x 1
  .amdhsa_float_denorm_mode_32 3
.end_amdhsa_kernel
"""

import os
PROF=int(os.environ.get('PROF','0'))
WS_PROF=0xC00000
REAL=int(os.environ.get('REAL','0'))
PW=int(os.environ.get('PW','7'))
def stamp(a,i,real=False):
    if not PROF: return
    if REAL and 2<=i<=9: real=True
    a(f"{'s_memrealtime' if real else 's_memtime'} s[100:101]\ns_waitcnt lgkmcnt(0)\ns_mov_b32 s{88+i}, s100")
def stamp_out(a,kidx,swave,n=12):
    if not PROF: return
    a("s_mov_b64 exec, -1")
    a(f"s_add_u32 s4, s20, {hex(WS_PROF+kidx*0x40000)}\ns_addc_u32 s5, s21, 0\ns_and_b32 s5, s5, 0xffff\ns_mov_b32 s6, 0x40000\ns_mov_b32 s7, 0x00020000")
    if PROF==2:
        a(f"{('s_xor_b32 s3, s2, '+os.environ['PWG']) if os.environ.get('PWG') else 's_and_b32 s3, s2, 0'}\ns_lshl_b32 s3, s3, 3\ns_add_u32 s3, s3, s{swave}\ns_cmp_eq_u32 s3, {PW}\ns_cbranch_scc1 1\ns_endpgm")
        a(f"s_add_u32 s4, s18, {512*(1-kidx)}\ns_addc_u32 s5, s19, 0\ns_and_b32 s5, s5, 0xffff\ns_mov_b32 s6, 256")
        a("s_not_b32 s88, s88")
        for i in range(2,11):
            if not (REAL and i<10): a(f"s_sub_u32 s{88+i}, s{88+i}, s89")
        a("s_mov_b32 s89, s99")
        a("v_mov_b32 v1, 0")
        idx=[0,1,2,10] if kidx==0 else [0,1,2,3,4,5,6,7,8,9,10]
        for j,i in enumerate(idx): a(f"v_writelane_b32 v1, s{88+i}, {j}")
        a(f"v_and_b32 v2, 63, v0\nv_lshlrev_b32 v2, 2, v2\nv_cmp_gt_u32 vcc, {4*len(idx)}, v2\ns_and_saveexec_b64 s[8:9], vcc\nbuffer_atomic_umax v1, v2, s[4:7], 0 offen offset:{16*kidx}")
        return
    a("v_mov_b32 v1, 0")
    for i in range(n): a(f"v_writelane_b32 v1, s{88+i}, {i}")
    a(f"s_lshl_b32 s100, s2, 3\ns_add_u32 s100, s100, s{swave}\ns_lshl_b32 s100, s100, 6")
    a("v_and_b32 v2, 63, v0\nv_lshlrev_b32 v2, 2, v2\nv_cmp_gt_u32 vcc, 64, v2\ns_and_saveexec_b64 s[8:9], vcc\nbuffer_store_dword v1, v2, s[4:7], s100 offen")

def absmax_fin(a,mx,mn,t):
    a(f"""
v_and_b32 v{mx}, 0x7fff7fff, v{mx}
v_and_b32 v{mn}, 0x7fff7fff, v{mn}
v_pk_max_u16 v{mx}, v{mx}, v{mn}
v_lshlrev_b32 v{t}, 16, v{mx}
v_and_b32 v{mx}, 0xffff0000, v{mx}
v_max_u32 v{mx}, v{mx}, v{t}
""")
```

```python
from common import *
X=int(os.environ.get('X','0'))
PRIO=int(os.environ.get('PRIO','1'))
DSP=[int(c,36) for c in os.environ.get('DSP','00000000')]
def EV(n,d): return int(os.environ.get(n,d))
TPOS=EV('TPOS',3); PFP=EV('PFP',0); XORD=EV('XORD',3); WUI=EV('WUI',2); FLP=EV('FLP',1); FSL=EV('FSL',8); TE=EV('TE',0); W1N=EV('W1N',5); QW=EV('QW',1); GP_=EV('GP',1)
PTS=os.environ.get('PTS','b1,bS,tp,pfl,rl,b2,b3,pro').split(',')
SC=' sc1'
GSC=os.environ.get('GSC',' sc1')
NPROD=250; EP=1600
F_P=0x1000; F_REC=0x400000; F_TBL=0xB00000; F_FLG=0xB90000; F_SIZE=0xBA0000
CNT=0; MISC=256; OH=392; GL=928; BT=1872; STB=2144; RS=944
mSLOW=MISC; mS=MISC+4; mGX=MISC+8; mGP=MISC+12; mC3=MISC+16; mPD=MISC+20; mSL=MISC+24; mMX=MISC+28
AGB=17408
W3L=AGB+56*256
Q2=AGB+16384; QS=52*128
S1=Q2; ERAW=Q2+12800
WB=Q2+4*QS; NULLG=49*256; EB=WB+NULLG+16
HIST=WB; PSC=WB+2048
GBUF=98304
KF_LDS=GBUF+65536
assert EB+2*NULLG+32<=GBUF and STB+16*RS<=AGB
AGG=STB
ONE2=0x3F803F80
NULLW2=0xFFFF|(512<<16)
CAPT=58
ID0=4; ID1=8; B3=12; A=28; Z=[60,76]; A3=92; EE=96; NN=112; DD=116; GP=120; SS=124
IDX=128; AR=144; RB=152; SB=153; SA=154; VY=155; OHC=156; VL=157; WT=158; DR=159
ACC=160; WU2=192; UA=208; WF=160; WU1=176; QA=224; RC=96; XF=28; GA=192
GA0=232; YA=234; EA=235; M4=236; EC=237; VZ=238; PO=92; TRU=240; TD=241; TC=242; TO=243; RK=244; FA=252
sP=24; sX=28; sA=32; sR=36; sM=40
sWV=56; sK=57; sNN=58; sI=59; sNT=60; sBUF=61; sQ=62; sW8=63; sCNT=64; sT0=65
sL2E=66; sINC=68; sRND=70; sTOT=71; sNON=72; sBUD=73; sW4=74; sLB=75
sWU=3; sW4K=22; sOT=23; sFLAG=76; sLO=77; sMA=78; sMB=80; sHEAD=82; sNF=83
t0,t1,t2,t3=84,85,86,87
BUDGET=20000

def mfma32(d,x,y,c): return f"v_mfma_f32_32x32x16_bf16 v[{d}:{d+15}], v[{x}:{x+3}], v[{y}:{y+3}], "+("0" if c is None else f"v[{c}:{c+15}]")
def mfma16(d,x,y,c): return f"v_mfma_f32_16x16x32_bf16 v[{d}:{d+3}], v[{x}:{x+3}], v[{y}:{y+3}], "+("0" if c is None else f"v[{c}:{c+3}]")
def P2(r): return f"v[{r}:{r+1}]"
def P4(r): return f"v[{r}:{r+3}]"
def S2(r): return f"s[{r}:{r+1}]"
def SR4(r): return f"s[{r}:{r+3}]"

def gen_kf(name):
    a=Asm()
    def pt(n):
        if PROF and n in PTS: stamp(a,2+PTS.index(n))
    def bar(n,w="s_waitcnt lgkmcnt(0)"):
        a(w+"\ns_barrier"); pt(n)
    def gsync(n,lab,off,target,va,vt,pre=None):
        if pre: a(pre)
        a(f"""
v_mov_b32 v{vt}, 1
s_mov_b64 exec, 1
ds_add_u32 v{va}, v{vt} offset:{off}
s_mov_b64 exec, -1
{lab}:
ds_read_b32 v{vt}, v{va} offset:{off}
s_waitcnt lgkmcnt(0)
v_readfirstlane_b32 s{t1}, v{vt}
s_and_b32 s{t1}, s{t1}, 255
s_cmp_lt_u32 s{t1}, {target}
s_cbranch_scc1 {lab}
""")
        pt(n)
    def gwait(lab,off,target,va,vt):
        a(f"""
{lab}:
ds_read_b32 v{vt}, v{va} offset:{off}
s_waitcnt lgkmcnt(0)
v_readfirstlane_b32 s{t1}, v{vt}
s_and_b32 s{t1}, s{t1}, 255
s_cmp_lt_u32 s{t1}, {target}
s_cbranch_scc1 {lab}
""")
    def consts():
        srd(a,sP,20,N,off=F_P-3072,stride=256)
        srd(a,sR,20,F_SIZE)
        a(f"""
s_cmp_lt_u32 s{sK}, {N-256*48}
s_cselect_b32 s{sNN}, 49, 48
s_mov_b32 s{sL2E}, {hex(LOG2E_NEG)}
s_mov_b32 s{sL2E+1}, {hex(LOG2E_NEG)}
s_mov_b32 s{sINC}, 16
s_mov_b32 s{sINC+1}, 16
s_mov_b32 s{sMA}, 0x0000ffff
s_mov_b32 s{sMA+1}, 0x0000ffff
s_not_b64 {S2(sMB)}, {S2(sMA)}
s_mov_b32 s{sBUD}, {BUDGET}
v_lshrrev_b32 v2, 5, v{VL}              ; h
; g = 4 b2 + 2 b4 + b0 ; m = 2 b3 + b1 ; slot = 16 b2 + 4 m + (g&3)
v_lshrrev_b32 v1, 3, v{VL}
v_and_b32 v1, 2, v1
v_and_or_b32 v1, v{VL}, 5, v1           ; g
v_lshlrev_b32 v{RB}, 1, v1
v_lshlrev_b32 v3, 1, v{VL}
v_and_b32 v3, 4, v3
v_and_or_b32 v{M4}, v{VL}, 8, v3        ; 4m
v_lshlrev_b32 v{EC}, 1, v{M4}
v_add_u32 v{EC}, {EB}, v{EC}
v_lshlrev_b32 v3, 2, v1
v_and_or_b32 v3, v3, 16, v{M4}
v_and_or_b32 v3, v1, 3, v3              ; slot
v_lshl_add_u32 v3, v3, 8, s{sBUF}
v_and_b32 v{WT}, 15, v{VL}              ; n / c16
v_xor_b32 v1, v2, v{WT}
v_lshl_add_u32 v{AR}, v1, 4, v3
""")
        for t in range(1,8): a(f"v_xor_b32 v{AR+t}, {32*t}, v{AR}")
        a(f"""
v_mul_i32_i24 v{OHC}, -8, v2
v_mul_u32_u24 v{SA}, {RS}, v{WT}
v_and_b32 v1, 1, v{VL}
v_lshlrev_b32 v1, 4, v1
v_mov_b32 v3, 0x3f80
v_lshlrev_b32 v1, v1, v3
""")
        for s in range(2):
            for j in range(4):
                lo=3<<(16*s+2*j); hi=(3<<(16*s+8+2*j))
                a(f"s_mov_b32 vcc_lo, {hex(lo)}\ns_mov_b32 vcc_hi, {hex(hi)}\nv_cndmask_b32 v{ID0+4*s+j}, 0, v1, vcc")
        a(f"""
v_lshrrev_b32 v2, 4, v{VL}              ; a / g
v_lshlrev_b32 v{SB}, 1, v2
v_and_b32 v1, 1, v2
v_xor_b32 v1, v1, v{WT}
v_lshlrev_b32 v1, 4, v1
""")
        for i in range(8): a(f"v_xor_b32 v{IDX+2*i+1}, {(8*((i>>1)&1)+4*(i>>2)+2*(i&1))*16+3072-1024*(i&3)}, v1")
        a(f"v_xor_b32 v3, v2, v{WT}\nv_lshlrev_b32 v3, 4, v3\nv_lshl_add_u32 v3, v{WT}, 8, v3\nv_add_u32 v{FA}, {AGB}, v3")
        for s in range(1,4): a(f"v_xor_b32 v{FA+s}, {64*s}, v{FA}")
        a(f"""
s_lshl_b32 s{t0}, s{sW4}, 13
s_add_u32 s{t0}, s{t0}, {GBUF}
s_lshr_b32 s{t1}, s{sWV}, 2
s_lshl_b32 s{sOT}, s{sW4}, 1
s_or_b32 s{sOT}, s{sOT}, s{t1}
v_lshrrev_b32 v1, 2, v{WT}
v_lshl_add_u32 v1, v2, 3, v1
v_lshl_add_u32 v{DR}, v1, 6, s{t0}
v_xor_b32 v2, s{t1}, v2
v_and_b32 v2, 1, v2
v_and_b32 v3, 3, v{VL}
v_lshl_add_u32 v{TRU}, v2, 5, v{DR}
v_lshl_add_u32 v{TRU}, v3, 3, v{TRU}
""")
    def tagh():
        a(f"""
s_mul_i32 s{sNON}, s{sNON}, 0x9E3779B1
s_add_u32 s{sNON}, s{sNON}, 0x7F4A7C15
s_lshr_b32 s{t1}, s{sNON}, 15
s_xor_b32 s{sNON}, s{sNON}, s{t1}
""")
    def vyc():
        a(f"""
v_lshrrev_b32 v1, 4, v{VL}
v_and_b32 v1, 2, v1
v_xor_b32 v1, v1, v{VL}
v_and_b32 v1, 3, v1
v_lshlrev_b32 v1, 4, v1
v_lshrrev_b32 v2, 2, v{VL}
v_lshl_or_b32 v{VY}, v2, 8, v1
""")
    def trfrag(dst,addr,off,ks,hs):
        for s in range(4):
            a(f"ds_read_b64_tr_b16 {P2(dst+4*s)}, v{addr} offset:{off+s*ks}\nds_read_b64_tr_b16 {P2(dst+4*s+2)}, v{addr} offset:{off+s*ks+hs}")
    def tru(dst,off): trfrag(dst,TRU,off,2048,256)
    def sdma(sr,moff,loff=0,v=VY,js=range(8)):
        a(f"s_lshl_b32 s{t0}, s{sW4}, 6")
        for j in js:
            a(f"s_add_u32 m0, s{sBUF}, {loff+j*1024}\ns_add_u32 s{t1}, s{t0}, {moff+j*4096}\nbuffer_load_dwordx4 v{v}, {SR4(sr)}, s{t1} offen lds")
    def xfrags(Ts):
        for T in Ts:
            for s in range(4): a(f"ds_read_b128 {P4(XF+16*T+4*s)}, v{FA+s} offset:{T*4096}")
    def ugemm():
        for T in range(4):
            for s in range(4):
                x,y=(WU1+4*s,XF+16*T+4*s) if T<3 else (XF+16*T+4*s,WU1+4*s)
                a(mfma16(UA+4*T,x,y,None if s==0 else UA+4*T))
    def uscale():
        for j in range(7): a(f"v_pk_mul_f32 {P2(UA+2*j)}, {P2(UA+2*j)}, {S2(sL2E)}")
    def w3rd():
        a(f"v_lshlrev_b32 v1, 3, v{VL}")
        for q in range(4): a(f"ds_read_b64 {P2(B3+4*q+2)}, v1 offset:{W3L+q*512}")
    F=A3
    def scan(slow):
        a(f"""
v_lshlrev_b32 v1, 2, v{VL}
ds_read_b32 v{F}, v1
v_cmp_gt_u32 vcc, s{sNN}, v{VL}
v_lshlrev_b32 v{F+1}, 8, v{VL}
s_waitcnt lgkmcnt(0)
v_sub_u32 v{QA}, v{F}, v{F+1}
""")
        if slow:
            a(f"""
s_movk_i32 s{t1}, 256
v_subrev_u32 v{QA}, s{sHEAD}, v{QA}
v_cmp_lt_i32 {S2(t2)}, s{t1}, v{QA}
v_med3_i32 v{QA}, v{QA}, 0, s{t1}
v_add_u32 v{F}, v{F+1}, v{QA}
""")
        a(f"""
v_add_u32 v3, 12, v{QA}
v_and_b32 v3, -16, v3
v_max_u32 v3, 80, v3
v_cndmask_b32 v3, 0, v3, vcc
v_mov_b32 v2, v3
""")
        dpp_scan(a,"v_add_u32",[2])
        a(f"""
v_readlane_b32 s{t0}, v2, 63
v_sub_u32 v2, v2, v3
""")
    def fill(lab,slow):
        a(f"""
s_lshl_b32 s{t1}, s{sWV}, 4
v_add_u32 v{QA+1}, s{t1}, v2
v_lshrrev_b32 v{QA+1}, 3, v{QA+1}       ; 2*(G0+w)
v_add_u32 v{F+1}, s{t1}, v{F+1}         ; 256n+16w
v_subrev_u32 v{QA+2}, s{t1}, v3         ; g16-16w
v_add_u32 v{F+2}, 128, v{F+1}
""")
        if not slow: a(f"v_add_u32 v{QA+3}, v{QA+1}, v{SA}\nv_mov_b32 v{F+3}, 0x3f80\nds_write_b32 v1, v2 offset:{BT}")
        for k in range(2):
            a(f"v_cmpx_lt_i32 vcc, {128*k}, v{QA+2}\nds_write_b16 v{QA+1}, v{F+1+k} offset:{GL+16*k}")
            if not slow: a(f"ds_write_b16 v{QA+3}, v{F+3} offset:{STB+16*k}")
        a(f"""
s_mov_b64 exec, -1
s_lshl_b32 s{t1}, s{sWV}, 2
v_sub_u32 v{QA+2}, v3, v{QA}
v_add_u32 v{F}, s{t1}, v{F}
v_subrev_u32 v{QA+2}, s{t1}, v{QA+2}    ; pad4 - 4w
v_mov_b32 v{QA+4}, 0
v_mov_b32 v{QA+5}, 0
v_mov_b32 v{QA+6}, {hex(NULLW2)}
v_cmp_lt_i32 vcc, 0, v{QA+2}
s_mov_b32 s{t1}, {EB}
s_cbranch_vccz {lab}p
v_lshl_add_u32 v{QA+7}, v{F}, 1, s{t1}
""")
        for k in range(3):
            a(f"v_cmpx_lt_i32 vcc, {32*k}, v{QA+2}\nds_write_b32 v{F}, v{QA+6} offset:{WB+32*k}\nds_write_b64 v{QA+7}, {P2(QA+4)} offset:{64*k}")
        a(f"""
s_mov_b64 exec, -1
{lab}p:
s_cmp_eq_u32 s{sWV}, 7
s_cbranch_scc0 {lab}q
s_lshr_b32 s{t1}, s{t0}, 3
v_lshl_add_u32 v{QA+1}, v{VL}, 1, s{t1}
v_mov_b32 v{QA+2}, {NULLG}
v_add_u32 v{QA+3}, {NULLG}, v1
v_lshlrev_b32 v{QA+7}, 1, v1
v_add_u32 v{QA+7}, {EB+2*NULLG}, v{QA+7}
s_mov_b64 exec, 0xff
ds_write_b16 v{QA+1}, v{QA+2} offset:{GL}
s_mov_b64 exec, 15
ds_write_b32 v{QA+3}, v{QA+6} offset:{WB}
ds_write_b64 v{QA+7}, {P2(QA+4)}
s_mov_b64 exec, -1
{lab}q:
""")
    def expand(lab):
        a(f"""
v_subrev_u32 v1, s{sLO}, v{TO}
v_add_u32 v2, v1, v{TC}
v_med3_i32 v1, v1, 0, s{t3}
v_med3_i32 v2, v2, 0, s{t3}
v_sub_u32 v2, v2, v1
v_lshl_add_u32 v1, v1, 2, s{sLB}
{lab}:
""")
        for j in range(16):
            a(f"v_cmpx_lt_i32 vcc, {j}, v2\nds_write_b32 v1, v{TD} offset:{4*j}")
        a(f"""
v_add_u32 v2, -16, v2
v_add_u32 v1, 64, v1
v_cmp_lt_i32 vcc, 0, v2
s_cmp_lg_u64 vcc, 0
s_cbranch_scc1 {lab}
s_mov_b64 exec, -1
""")
    def rl1(i): return f"buffer_load_dwordx4 {P4(RC+4*i)}, v{RK+i}, {SR4(sR)}, {'0' if i<4 else 's'+str(sQ)} offen offset:{1024*(i&3)}{SC}"
    def reclist(ns):
        a(f"v_lshl_add_u32 v1, v{VL}, 2, s{sLB}")
        for i in reversed(range(ns)): a(f"ds_read_b32 v{RK+i}, v1 offset:{256*i}")
        a(f"v_add_u32 v2, s{sLO}, v{VL}\nv_lshlrev_b32 v2, 4, v2\ns_movk_i32 s{sQ}, 4096")
        for i in range(ns):
            a(f"v_cmp_gt_i32 {S2(sM+2*i)}, s{t1}, v{VL}\ns_sub_u32 s{t1}, s{t1}, 64")
        a("s_waitcnt lgkmcnt(0)")
        for i in range(ns): a(f"v_add_u32 v{RK+i}, v{RK+i}, v2")
    def recload(ns,lab):
        for i in reversed(range(ns)):
            a(f"s_mov_b64 exec, {S2(sM+2*i)}\ns_cbranch_execz {lab}{i}\n{rl1(i)}\n{lab}{i}:")
        a("s_mov_b64 exec, -1")
    def hist(ns,lab,extra,scat):
        a(f"v_mov_b32 v1, 4\ns_mov_b32 s{sW8}, {EB}")
        def sc(i,n):
            a(f"""
s_mov_b64 exec, {S2(sM+2*i)}
s_waitcnt lgkmcnt({n})
v_min_u32 v{RK+i}, {NULLG-4}, v{RK+i}
v_lshl_add_u32 v{RC+4*i+3}, v{RK+i}, 1, s{sW8}
ds_write_b32 v{RK+i}, v{RC+4*i+2} offset:{WB}
ds_write_b64 v{RC+4*i+3}, {P2(RC+4*i)}
""")
        for i in reversed(range(ns)):
            a(f"""
s_mov_b64 exec, {S2(sM+2*i)}
s_waitcnt vmcnt({i+extra})
{lab}c{i}:
v_cmp_ne_u32 vcc, s{sNON}, v{RC+4*i+3}
s_cbranch_vccnz {lab}r{i}
{lab}k{i}:
v_lshrrev_b32 v{RC+4*i+3}, 17, v{RC+4*i+2}
ds_add_rtn_u32 v{RK+i}, v{RC+4*i+3}, v1
""")
            if scat and i<ns-1: sc(i+1,1)
        if scat: sc(0,2)
        a(f"s_mov_b64 exec, -1")
    def hist_retry(ns,lab):
        for i in range(ns):
            a(f"""
{lab}r{i}:
s_sub_u32 s{sBUD}, s{sBUD}, 1
s_cbranch_scc1 {lab}x{i}
s_mov_b64 exec, vcc
{rl1(i)}
s_mov_b64 exec, {S2(sM+2*i)}
s_waitcnt vmcnt(0)
s_branch {lab}c{i}
{lab}x{i}:
s_mov_b32 s{sBUD}, 0
v_mov_b32 v{RC+4*i+2}, 0
s_branch {lab}k{i}
""")
    def arrive(off,vt): a(f"v_mov_b32 v{vt}, 1\ns_mov_b64 exec, 1\nds_add_u32 v{VZ}, v{vt} offset:{off}\ns_mov_b64 exec, -1")

    a(f"""
{name}:
s_cmp_ge_u32 s2, 256
s_cbranch_scc1 KF_END
s_load_dwordx16 s[4:19], s[0:1], 0
s_load_dwordx2 s[20:21], s[0:1], 64
v_lshrrev_b32 v1, 6, v0
v_and_b32 v{VL}, 63, v0
v_mov_b32 v{VZ}, 0
v_readfirstlane_b32 s{sWV}, v1
s_and_b32 s{sK}, s2, 7
s_lshl_b32 s{sK}, s{sK}, 5
s_lshr_b32 s{t0}, s2, 3
s_or_b32 s{sK}, s{sK}, s{t0}
s_and_b32 s{sW4}, s{sWV}, 3
s_lshl_b32 s{sW4K}, s{sW4}, 10
s_lshl_b32 s{sBUF}, s{sWV}, 13
s_add_u32 s{sBUF}, s{sBUF}, {GBUF}
s_cmp_ge_u32 s{sWV}, 4
s_cbranch_scc1 KF_T
""")
    D=28; SRc=36; K=44; R=52; W2=60; RO=80
    sD=40; sS=44; sE=48
    Q16="s_mov_b64 exec, 0xffff"; FULL="s_mov_b64 exec, -1"
    a(f"""
s_min_u32 s{t2}, s2, {NPROD-1}
s_mul_i32 s{t2}, s{t2}, {EP*4}
s_mul_i32 s{t3}, s{sWV}, 400
v_add_u32 v108, s{t3}, v{VL}
v_lshlrev_b32 v109, 2, v108
s_waitcnt lgkmcnt(0)
""")
    stamp(a,0,True); stamp(a,1)
    srd(a,sD,10,E*4)
    def ld7(dst,sr):
        for i in range(7):
            if i==6: a(Q16)
            a(f"buffer_load_dword v{dst+i}, v109, {SR4(sr)}, s{t2} offen offset:{i*256}")
        a(FULL)
    ld7(D,sD)
    a(f"s_load_dword s{sNON}, s[20:21], 0")
    srd(a,sS,8,E*4); srd(a,sE,6,E*8)
    if XORD==3: consts()
    a("s_barrier")
    ld7(SRc,sS)
    a(f"""
s_lshl_b32 s{sLB}, s{t3}, 3
s_lshl_b32 s{t2}, s{t2}, 1
s_add_u32 s{t2}, s{t2}, s{sLB}
s_add_u32 m0, s{sLB}, {ERAW}
v_lshlrev_b32 v113, 4, v{VL}
s_add_u32 s{sLB}, s{sLB}, {S1}
""")
    for j in range(4):
        if j==3: a("s_mov_b64 exec, 0xff")
        a(f"buffer_load_dwordx4 v113, {SR4(sE)}, s{t2} offen offset:{1024*j} lds")
    a(FULL)
    if XORD!=3: consts()
    a(f"""
v_mov_b32 v111, 8
v_lshlrev_b32 v112, 3, v108
v_lshlrev_b32 v110, 4, v108
""")
    for i in range(7): a(f"v_add_u32 v{W2+1+2*i}, {i*512}, v112")
    a(f"s_cmp_ge_u32 s2, {NPROD}\ns_cbranch_scc1 KS_d\ns_waitcnt vmcnt(11)")
    pt('dst')
    for i in range(7):
        if i==6: a(Q16)
        a(f"v_lshlrev_b32_sdwa v{K+i}, 2, v{D+i} dst_sel:DWORD dst_unused:UNUSED_PAD src0_sel:DWORD src1_sel:BYTE_0\nds_add_rtn_u32 v{R+i}, v{K+i}, v111 offset:{HIST}")
    a(FULL+"\nKS_d:")
    gsync('b1',"KS_y1",mS,4,VZ,2)
    a(f"ds_read_b128 v[116:119], v113 offset:{HIST}")
    tagh()
    for i in range(7): a(f"v_lshrrev_b32 v{D+i}, 8, v{D+i}")
    a(f"""
v_mov_b32 v1, s{sNON}
s_waitcnt lgkmcnt(0)
v_add_u32 v2, v116, v117
v_add3_u32 v2, v2, v118, v119
v_mov_b32 v3, v2
""")
    dpp_scan(a,"v_add_u32",[3])
    a(f"""
v_sub_u32 v120, v3, v2
v_add_u32 v121, v120, v116
v_add_u32 v122, v121, v117
v_add_u32 v123, v122, v118
ds_write_b128 v113, v[120:123] offset:{HIST+1024}
""")
    for i in range(7):
        if i==6: a(Q16)
        a(f"ds_read_b32 v{K+i}, v{K+i} offset:{HIST+1024}")
    a(FULL)
    def tpub():
        for j in range(4): a(f"v_lshlrev_b32 v2, 1, v{120+j}\nv_lshl_or_b32 v{QA+2*j}, v{116+j}, 13, v2\nv_mov_b32 v{QA+2*j+1}, v1")
        a(f"""
s_lshl_b32 s{t2}, s2, 11
s_add_u32 s{t2}, s{t2}, {F_TBL}
s_lshl_b32 s{t3}, s{sWV}, 4
s_lshl_b64 exec, 0xffff, s{t3}
buffer_store_dwordx4 {P4(QA)}, v113, {SR4(sR)}, s{t2} offen{SC}
buffer_store_dwordx4 {P4(QA+4)}, v113, {SR4(sR)}, s{t2} offen offset:1024{SC}
s_mov_b64 exec, -1
""")
    if TE==0: tpub()
    a(f"s_cmp_ge_u32 s2, {NPROD}\ns_cbranch_scc1 KS_e\ns_waitcnt vmcnt({6 if TE==0 else 4})")
    if X&64:
        for i in range(7): a(f"v_and_b32 v{SRc+i}, 0x1ff, v{SRc+i}")
    for i in range(7): a(f"v_lshl_or_b32 v{W2+2*i}, v{D+i}, 19, v{SRc+i}")
    a(f"s_waitcnt lgkmcnt(0)")
    for i in range(7):
        if i==6: a(Q16)
        a(f"v_add_u32 v{K+i}, v{K+i}, v{R+i}\nds_write_b64 v{K+i}, {P2(W2+2*i)} offset:{S1}")
    a(FULL+"\nKS_e:")
    pt('sc1')
    if TE==1: tpub()
    a(f"""
v_lshlrev_b32 v114, 11, v0
s_lshr_b32 s{sLO}, s{sK}, 2
s_lshl_b32 s{sLO}, s{sLO}, 4
s_and_b32 s{t0}, s{sK}, 1
s_lshl_b32 s{t0}, s{t0}, 3
s_add_u32 s{sLO}, s{sLO}, s{t0}
s_and_b32 s{t0}, s{sK}, 2
s_lshl_b32 s{t0}, s{t0}, 9
s_add_u32 s{sLO}, s{sLO}, s{t0}
s_add_u32 s{sLO}, s{sLO}, {F_TBL}
v_cmp_gt_u32 vcc, {NPROD}, v0
v_mov_b32 v{TC}, 0
s_mul_i32 s{t0}, s2, {EP*16}
s_add_u32 s{t0}, s{t0}, {F_REC}
s_add_u32 s{t2}, s{t0}, 4096
v_mul_u32_u24 v115, {EP*16}, v0
v_add_u32 v115, {F_REC}, v115
""")
    gsync('bS',"KS_y2",mS,8,VZ,2,"s_waitcnt vmcnt(2)")
    tl=f"s_mov_b64 exec, vcc\nbuffer_load_dwordx2 {P2(TC)}, v114, {SR4(sR)}, s{sLO} offen{SC}\ns_mov_b64 exec, -1"
    a(f"""
s_cmp_ge_u32 s2, {NPROD}
s_cbranch_scc0 KS_h0
""")
    gwait("KS_h1",mPD,4,VZ,2)
    a(f"""
{tl}
s_waitcnt vmcnt(0)
s_branch KS_j
KS_h0:
""")
    order=[6,0,1,2,3,4,5]
    for i in order:
        if i==6: a(Q16)
        a(f"ds_read_b64 {P2(RO+2+4*i)}, v112 offset:{S1+i*512}")
        if i==6: a(FULL)
    for i in order:
        if i==6: a(Q16)
        a(f"s_waitcnt lgkmcnt(6)\nds_read_b64 {P2(RO+4*i)}, v{RO+3+4*i} offset:{ERAW}")
        if i==6: a(FULL)
    for k,i in enumerate(order):
        if k-1==TPOS: a(tl)
        if i==6: a(Q16)
        a(f"s_waitcnt lgkmcnt({6-k})\nv_mov_b32 v{RO+3+4*i}, v1\nbuffer_store_dwordx4 {P4(RO+4*i)}, v110, {SR4(sR)}, s{t0 if i<4 else t2} offen offset:{1024*(i&3)}{SC}")
        if i==6: a(FULL)
    if TPOS==6: a(tl)
    pt('out')
    a(f"""
s_waitcnt vmcnt({6-TPOS})
KS_j:
s_mov_b64 exec, vcc
KT_f:
v_cmp_ne_u32 vcc, s{sNON}, v{TC+1}
s_cbranch_vccz KT_g
s_mov_b64 exec, vcc
s_sub_u32 s{sBUD}, s{sBUD}, 1
s_cbranch_scc1 KT_f2
buffer_load_dwordx2 {P2(TC)}, v114, {SR4(sR)}, s{sLO} offen{SC}
s_waitcnt vmcnt(0)
s_branch KT_f
KT_f2:
s_mov_b32 s{sBUD}, 0
v_mov_b32 v{TC}, 0
KT_g:
s_mov_b64 exec, -1
""")
    pt('tp')
    a(f"""
v_lshrrev_b32 v{TO}, 16, v{TC}
v_add_u32_sdwa v{TD}, v115, v{TC} dst_sel:DWORD dst_unused:UNUSED_PAD src0_sel:DWORD src1_sel:WORD_0
v_mov_b32 v{TC}, v{TO}
""")
    dpp_scan(a,"v_add_u32",[TO])
    a(f"""
v_readlane_b32 s{sTOT}, v{TO}, 63
v_sub_u32 v{TO}, v{TO}, v{TC}
s_mov_b32 s{sLO}, 0
s_movk_i32 s{t3}, 512
v_lshlrev_b32 v1, 4, v{TO}
v_sub_u32 v{TD}, v{TD}, v1
""")
    expand("KT_x")
    a(f"s_mov_b32 s{t1}, s{sTOT}")
    reclist(8)
    arrive(mSL,1)
    for i in range(8): a(f"v_mov_b32 v{RC+4*i}, 0\nv_mov_b32 v{RC+4*i+1}, 0")
    pt('exp')
    gwait("KS_rw",mPD,4,VZ,1)
    a("s_waitcnt vmcnt(0)")
    recload(8,"KT_l")
    pt('rl')
    if PFP:
        a(f"""
s_lshr_b32 s{t1}, s2, 3
s_mul_i32 s{t1}, s{t1}, 391
v_lshrrev_b32 v2, 1, v0
v_add_u32 v2, s{t1}, v2
v_and_b32 v3, 1, v0
v_lshlrev_b32 v3, 7, v3
buffer_load_dword v{QA+15}, v[2:3], {SR4(sP)}, 0 idxen offen offset:3072{SC}
""")
    a(f"ds_read_b32 v{QA}, v{VZ} offset:{mC3}")
    xfrags([0,1,2]); a("s_waitcnt lgkmcnt(4)"); xfrags([3]); w3rd()
    hist(8,"KT_h",1 if PFP else 0,True)
    a(f"v_pk_maximum3_f16 v1, v{RC}, v{RC+1}, v{RC+1}\nv_pk_minimum3_f16 v2, v{RC}, v{RC+1}, v{RC+1}")
    for i in range(1,8): a(f"v_pk_maximum3_f16 v1, v1, v{RC+4*i}, v{RC+4*i+1}\nv_pk_minimum3_f16 v2, v2, v{RC+4*i}, v{RC+4*i+1}")
    absmax_fin(a,1,2,3)
    a(f"""
v_mul_f32 v1, v1, v{QA}
s_cmp_gt_u32 s{sTOT}, 512
v_cmp_nge_f32 vcc, 0x41680000, v1       ; !(14.5 >= e*c3)
s_cbranch_scc1 KT_j
s_cbranch_vccz KF_J
KT_j:
ds_write_b32 v{VZ}, v{FA} offset:{mSLOW}
s_branch KF_J
""")
    a(f"""
KF_T:
v_and_b32 v108, 255, v0
v_lshlrev_b32 v109, 2, v108
v_mov_b32 v32, 0
v_mov_b32 v33, 0
v_mov_b32 v34, 0
v_mov_b32 v35, 0
ds_write_b32 v109, v32 offset:{HIST}
v_lshlrev_b32 v2, 2, v{VL}
v_lshlrev_b32 v3, 8, v{VL}
ds_write2st64_b32 v2, v3, v32 offset0:0 offset1:1
v_lshlrev_b32 v110, 4, v108
v_lshrrev_b32 v1, 4, v108
v_xor_b32 v37, v1, v0
v_and_b32 v37, 15, v37
v_lshlrev_b32 v37, 4, v37
v_lshl_add_u32 v36, v1, 8, s{sK}
s_waitcnt lgkmcnt(0)
""")
    stamp(a,0,True); stamp(a,1)
    sG=40
    srd(a,sX,4,N,stride=256)
    def xld():
        for j in range(4):
            if j==3: a(f"s_cmp_eq_u32 s{sWV}, 4\ns_cbranch_scc0 KT_c")
            a(f"s_add_u32 m0, s{sW4K}, {AGB+j*4096}\ns_nop 0\nbuffer_load_dwordx4 v[36:37], {SR4(sX)}, 0 idxen offen lds\nv_add_u32 v36, 4096, v36")
        a("KT_c:")
    def warm():
        srd(a,sG,14,256*256)
        a(f"""
s_lshr_b32 s{t0}, s2, 3
s_lshl_b32 s{t0}, s{t0}, 11
s_lshl_b32 s{t1}, s{sW4}, 9
s_add_u32 s{t0}, s{t0}, s{t1}
v_lshlrev_b32 v2, 7, v{VL}
s_mov_b64 exec, 15
buffer_load_dword v111, v2, {SR4(sG)}, s{t0} offen
buffer_load_dword v111, v2, {SR4(sA)}, s{t0} offen
s_mov_b64 exec, -1
v_and_b32 v1, 31, v{VL}
v_lshlrev_b32 v1, 1, v1
s_lshl_b32 s{t0}, s{sW4}, 6
s_add_u32 s{t0}, s{t0}, 65536
""")
        for k in range(4): a(f"buffer_load_ushort v{124+k}, v1, {SR4(sA)}, s{t0} offen offset:{k*256}")
    def zer():
        a(f"v_cmp_le_u32 vcc, 32, v108\ns_mov_b64 exec, vcc\nds_write_b128 v110, v[32:35]\ns_mov_b64 exec, -1")
        for j in range(1,4): a(f"ds_write_b128 v110, v[32:35] offset:{j*4096}")
        a(f"""
s_cmp_eq_u32 s{sWV}, 4
s_cbranch_scc0 KT_b
ds_write_b128 v110, v[32:35] offset:16384
KT_b:
""")
    a(f"s_load_dword s{sNON}, s[20:21], 0")
    if XORD==3:
        if GP_: a(f"s_setprio {GP_}")
        xld(); srd(a,sA,12,260*256); vyc(); sdma(sA,0,0,VY,range(W1N)); warm()
    else:
        a("s_barrier"); srd(a,sA,12,260*256); warm(); vyc()
    zer()
    consts()
    a(f"""
v_xor_b32 v{TC}, 32, v{TRU}
v_lshrrev_b32 v2, 3, v{VL}
v_and_b32 v2, 2, v2
v_xor_b32 v2, v2, v3
v_lshl_add_u32 v{TD}, v2, 4, v{DR}
s_lshl_b32 s{t0}, s{sW4}, 2
v_lshrrev_b32 v2, 4, v{VL}
v_or_b32 v1, s{t0}, v2                  ; 4u+g
v_xor_b32 v3, v1, v{WT}
v_lshlrev_b32 v3, 4, v3
v_lshl_add_u32 v116, v{WT}, 8, v3
v_add_u32 v116, {PSC}, v116
v_add_u32 v117, {PSC}, v110
v_lshl_add_u32 v118, v1, 16, v3
s_mul_i32 s{t0}, s{sW4}, {QS}
s_add_u32 s{t0}, s{t0}, {Q2}
v_lshl_add_u32 v120, v2, 9, s{t0}
v_lshl_add_u32 v120, v{WT}, 2, v120
v_add_u32 v121, 128, v120
v_add_u32 v122, 64, v120
v_add_u32 v123, 192, v120
v_mov_b32 v3, 0
""")
    if XORD==2:
        gwait("KG_x",mS,4,VZ,1); xld()
    if XORD!=3: sdma(sA,0)
    else: sdma(sA,0,0,VY,range(W1N,8)); a("s_barrier")
    pt('w1i')
    def w3m():
        w=[124,125,126,127]; u=QA
        for k in range(4): a(f"v_lshlrev_b32 v{w[k]}, 16, v{w[k]}\nv_mul_f32 v{w[k]}, s{sL2E}, v{w[k]}")
        a(f"""
v_cvt_pk_bf16_f32 v{u}, v124, v125
v_cvt_pk_bf16_f32 v{u+1}, v126, v127
v_lshlrev_b32 v{u+2}, 16, v{u}
v_and_b32 v{u+3}, 0xffff0000, v{u}
v_lshlrev_b32 v{u+4}, 16, v{u+1}
v_and_b32 v{u+5}, 0xffff0000, v{u+1}
v_add_f32 v{u+6}, abs(v124), abs(v125)
v_sub_f32 v{u+2}, v124, v{u+2}
v_sub_f32 v{u+3}, v125, v{u+3}
v_sub_f32 v{u+4}, v126, v{u+4}
v_sub_f32 v{u+5}, v127, v{u+5}
v_add_f32 v{u+7}, abs(v126), abs(v127)
s_mov_b32 exec_lo, 0
v_cvt_pk_bf16_f32 v{u}, v{u+2}, v{u+3}
v_cvt_pk_bf16_f32 v{u+1}, v{u+4}, v{u+5}
s_mov_b32 exec_lo, -1
v_add_f32 v{u+6}, v{u+6}, v{u+7}
v_lshlrev_b32 v1, 3, v108
v_and_b32 v{u+6}, 0x7fffffff, v{u+6}
ds_write_b64 v1, {P2(u)} offset:{W3L}
""")
        dpp_scan(a,"v_max_u32",[u+6])
        a(f"""
s_mov_b32 exec_lo, 0
s_brev_b32 exec_hi, 1
ds_max_u32 v{VZ}, v{u+6} offset:{mC3}
s_mov_b64 exec, -1
""")
    if XORD!=3:
        a(f"s_waitcnt vmcnt({11 if XORD>=1 else 8})"); w3m()
    gsync('bX',"KG_y1",mGX,4,VZ,2,f"s_waitcnt vmcnt({14 if XORD==3 else 8})")
    xfrags([0])
    a(f"s_waitcnt vmcnt(0)")
    pt('xl')
    trfrag(WF,TD,32768,2048,256)
    a("s_waitcnt lgkmcnt(7)")
    trfrag(WF+16,TD,32768+8,2048,256)
    def pm(T,i):
        for s in range(4): a(mfma16(GA+8*T+4*i,WF+16*i+4*s,XF+16*T+4*s,None if s==0 else GA+8*T+4*i))
    def pcv(T):
        c=GA+8*T
        L=[f"v_mul_f32 v{c+j}, s{sL2E}, v{c+j}" for j in range(8)]
        L+=[f"v_cvt_pk_bf16_f32 v{c+j}, v{c+2*j}, v{c+2*j+1}" for j in range(4)]
        L+=[f"ds_write_b128 v116, {P4(c)} offset:{T*4096}"]
        return L
    def pmi(T,fillers):
        for i in range(2):
            for s in range(4):
                a(mfma16(GA+8*T+4*i,WF+16*i+4*s,XF+16*T+4*s,None if s==0 else GA+8*T+4*i))
                for _ in range(2):
                    if fillers: a(fillers.pop(0))
    a("s_waitcnt lgkmcnt(8)"); xfrags([1]); pm(0,0)
    a("s_waitcnt lgkmcnt(4)"); xfrags([2,3]); pm(0,1)
    a("s_waitcnt lgkmcnt(8)"); pm(1,0); pm(1,1)
    a("s_waitcnt lgkmcnt(0)"); pmi(2,pcv(0)); pmi(3,pcv(1))
    a(f"s_lshl_b32 s{t0}, s{sK}, 8\ns_nop 2")
    for T in (2,3):
        for x in pcv(T): a(x)
    gsync('pg',"KG_y2",mGP,4,VZ,2)
    for T in range(4): a(f"ds_read_b128 {P4(PO+4*T)}, v117 offset:{T*4096}")
    a(f"""
s_cmp_eq_u32 s{sWV}, 4
s_cbranch_scc0 KG_p
s_add_u32 s{t1}, s{t0}, {F_P+3*16*65536}
s_waitcnt lgkmcnt(0)
s_mov_b64 exec, 0xffff
buffer_store_dwordx4 {P4(PO+12)}, v118, {SR4(sR)}, s{t1} offen{SC}
s_mov_b64 exec, -1
KG_p:
""")
    for T in range(3):
        a(f"s_add_u32 s{t1}, s{t0}, {F_P+T*16*65536}\ns_waitcnt lgkmcnt({3-T})")
        a(f"buffer_store_dwordx4 {P4(PO+4*T)}, v118, {SR4(sR)}, s{t1} offen{SC}")
    pt('pst')
    if GP_: a("s_setprio 0")
    sdma(sA,32768,-32768)
    pt('w2i')
    tagh()
    a(f"v_mov_b32 v1, {hex(ONE2)}\nds_write2_b32 v{VZ}, v1, v1 offset0:{OH//4} offset1:{OH//4+5}")
    if XORD==3: w3m()
    for T in range(4):
        c=GA+8*T
        if T==3: a("s_mov_b32 exec_lo, 0x10001\ns_mov_b32 exec_hi, 0x10001")
        if T==0: a(f"v_pk_maximum3_f16 v114, v{c}, v{c+1}, v{c+2}\nv_pk_minimum3_f16 v115, v{c}, v{c+1}, v{c+2}\nv_pk_maximum3_f16 v114, v114, v{c+3}, v{c+3}\nv_pk_minimum3_f16 v115, v115, v{c+3}, v{c+3}")
        else: a(f"v_pk_maximum3_f16 v114, v114, v{c}, v{c+1}\nv_pk_minimum3_f16 v115, v115, v{c}, v{c+1}\nv_pk_maximum3_f16 v114, v114, v{c+2}, v{c+3}\nv_pk_minimum3_f16 v115, v115, v{c+2}, v{c+3}")
    a("s_mov_b64 exec, -1")
    absmax_fin(a,114,115,2)
    a(f"""
v_cmp_lt_u32 vcc, 0x40e80000, v114
s_lshl_b32 s{t2}, s2, 4
s_add_u32 s{t2}, s{t2}, {F_FLG}
s_cmp_lg_u64 vcc, 0
s_cselect_b32 s{t0}, 0x101, 1
v_mov_b32 v1, s{t0}
s_waitcnt vmcnt(8)
s_mov_b64 exec, 1
ds_add_rtn_u32 v1, v{VZ}, v1 offset:{mPD}
s_waitcnt lgkmcnt(0)
v_readfirstlane_b32 s{t1}, v1
s_add_u32 s{t1}, s{t1}, s{t0}
s_and_b32 s{t0}, s{t1}, 255
s_cmp_eq_u32 s{t0}, 4
s_cbranch_scc0 KG_f
s_cmp_gt_u32 s{t1}, 255
s_cselect_b32 s{t0}, 2, 0
s_xor_b32 s{t0}, s{sNON}, s{t0}
v_mov_b32 v1, s{t0}
buffer_store_dword v1, v{VZ}, {SR4(sR)}, s{t2} offen{SC}
s_waitcnt vmcnt(1)
s_branch KG_f2
KG_f:
s_waitcnt vmcnt(0)
KG_f2:
s_mov_b64 exec, -1
""")
    pt('pfl')
    srd(a,sA,14,256*256)
    trfrag(WF,TC,0,2048,256)
    a(f"v_mov_b32 v{TD}, v{VY}\ns_waitcnt lgkmcnt(0)")
    trfrag(WF+16,TRU,0,2048,256)
    for i in range(2):
        if i==1: a("s_waitcnt lgkmcnt(0)")
        for T in range(4):
            for s in range(4): a(mfma16(GA+16*i+4*T,XF+16*T+4*s,WF+16*i+4*s,None if s==0 else GA+16*i+4*T))
    gwait("KG_w0",mPD,4,VZ,1)
    w3rd()
    if WUI==3: sdma(sA,0)
    if QW==0: gwait("KG_w",mSL,4,VZ,1)
    H=QA; MX=114
    for i in range(2):
        if i==WUI: sdma(sA,0)
        for T in range(3):
            c=GA+16*i+4*T
            a(f"v_pk_mul_f32 {P2(c)}, {P2(c)}, {S2(sL2E)}\nv_pk_mul_f32 {P2(c+2)}, {P2(c+2)}, {S2(sL2E)}")
            for k in range(4): a(f"v_and_b32 v{H+k}, 0xffff0000, v{c+k}")
            a(f"v_maximum3_f32 v{MX}, {'0' if T==0 and i==0 else 'v'+str(MX)}, abs(v{c}), abs(v{c+1})\nv_maximum3_f32 v{MX}, v{MX}, abs(v{c+2}), abs(v{c+3})")
            a(f"v_pk_add_f32 {P2(c)}, {P2(c)}, {P2(H)} neg_lo:[0,1] neg_hi:[0,1]\nv_pk_add_f32 {P2(c+2)}, {P2(c+2)}, {P2(H+2)} neg_lo:[0,1] neg_hi:[0,1]")
            for k in range(4): a(f"v_cvt_pk_bf16_f32 v{c+k}, v{c+k}, v{H+k}")
        def qw(i):
            for T in range(3):
                c=GA+16*i+4*T
                a(f"ds_write2st64_b32 v{120+2*i}, v{c}, v{c+2} offset0:{8*T} offset1:{8*T+1}\nds_write2st64_b32 v{121+2*i}, v{c+1}, v{c+3} offset0:{8*T} offset1:{8*T+1}")
        if QW==0: qw(i)
    if QW==1: gwait("KG_w",mSL,4,VZ,1); qw(0); qw(1)
    a("s_mov_b32 exec_lo, 0xffff\ns_mov_b32 exec_hi, 0")
    for i in range(2):
        c=GA+16*i+12
        a(f"""
v_mul_f32 v{c}, s{sL2E}, v{c}
v_and_b32 v{H}, 0xffff0000, v{c}
v_maximum3_f32 v{MX}, v{MX}, abs(v{c}), abs(v{c})
v_sub_f32 v{c}, v{c}, v{H}
v_cvt_pk_bf16_f32 v{c}, v{c}, v{H}
ds_write2st64_b32 v{120+2*i}, v{c}, v{c+2} offset0:24 offset1:25
ds_write2st64_b32 v{121+2*i}, v{c+1}, v{c+3} offset0:24 offset1:25
""")
    a(f"""
s_mov_b64 exec, -1
v_cmp_nge_f32 vcc, 0x40e80000, v{MX}
s_cbranch_vccz KG_q
ds_write_b32 v{VZ}, v{FA} offset:{mSLOW}
KG_q:
""")
    pt('qd')
    if WUI==2: sdma(sA,0)
    pt('wui')
    a("KF_J:")
    pt('hs')
    srd(a,sA,14,256*256)
    fl=f"""
s_cmp_ge_u32 s{sWV}, 4
s_cbranch_scc0 KF_f0
s_mov_b32 s{sLO}, {F_FLG}
buffer_load_dword v116, v110, {SR4(sR)}, s{sLO} offen{SC}
KF_f0:
"""
    a(f"""
s_cmp_lt_u32 s{sWV}, 4
s_cselect_b32 s{sWU}, -1, 1
""")
    if FLP==0: a(fl)
    bar('b2')
    if FLP==1: a(fl)
    scan(False)
    a(f"""
v_cmp_lt_u32 vcc, 0x100, v{QA}
s_add_u32 s{sNT}, s{t0}, 127
s_lshr_b32 s{sNT}, s{sNT}, 7
s_lshr_b32 s{sCNT}, s{sNT}, 3
s_mov_b32 s{sFLAG}, 1
s_cmp_gt_u32 s{sNT}, {CAPT}
s_cbranch_scc1 KF_l
s_cbranch_vccnz KF_l
s_mov_b32 s{sFLAG}, 0
""")
    fill("KFz",False)
    a("KF_l:")
    pt('fil')
    a(f"""
s_mul_i32 s{sT0}, s{sCNT}, s{sWV}
s_and_b32 s{t2}, s{sNT}, 7
s_min_u32 s{t3}, s{t2}, s{sWV}
s_add_u32 s{sT0}, s{sT0}, s{t3}
s_cmp_lt_u32 s{sWV}, s{t2}
s_addc_u32 s{sCNT}, s{sCNT}, 0
s_lshl_b32 s{t0}, s{sT0}, 7
s_lshl_b32 s{t2}, s{sT0}, 4
v_add_u32 v{SB}, s{t2}, v{SB}
v_add_u32 v{RB}, s{t2}, v{RB}
v_sub_u32 v{SA}, v{SA}, v{OHC}
v_add_u32 v{SA}, s{t2}, v{SA}
v_lshl_add_u32 v1, v{VL}, 4, s{t2}
s_cmp_ge_u32 s{sWV}, 4
s_cbranch_scc0 KS_o
s_or_b32 s{t1}, s{sNON}, 2
KS_m:
s_waitcnt vmcnt(0)
v_or_b32 v2, 2, v116
v_cmp_ne_u32 vcc, s{t1}, v2
s_cbranch_vccz KS_n
s_sub_u32 s{sBUD}, s{sBUD}, 1
s_cbranch_scc1 KS_n
s_sleep {FSL}
s_mov_b64 exec, vcc
buffer_load_dword v116, v110, {SR4(sR)}, s{sLO} offen{SC}
s_mov_b64 exec, -1
s_branch KS_m
KS_n:
v_cmp_ne_u32 vcc, s{sNON}, v116
s_cbranch_vccz KS_o
ds_write_b32 v{VZ}, v{FA} offset:{mSLOW}
KS_o:
""")
    if PRIO: a("s_setprio 3")
    bar('b3')
    def rd_ga(off): a(f"ds_read_u16 v{GA0}, v{SB} offset:{GL+off}\nds_read_u16 v{GA0+1}, v{SB} offset:{GL+off+8}")
    def rd_gg(off): a(f"ds_read_u16 v{YA}, v{RB} offset:{GL+off}")
    def rd_y(): a(f"v_lshl_add_u32 v{EA}, v{YA}, 1, v{EC}\nv_add_u32 v{YA}, v{YA}, v{M4}\nds_read_u16 v{VY}, v{YA} offset:{WB+2}")
    def rd_idx():
        for i in range(8): a(f"ds_read_u16 v{IDX+2*i}, v{GA0+(i>>2)} offset:{WB+4*(i&3)}")
    def dma1(i):
        L=[]
        if i==0: L.append(f"s_mov_b32 m0, s{sBUF}\ns_nop 0")
        if i==4: L.append(f"s_add_u32 m0, s{sBUF}, 4096\ns_nop 0")
        L.append(f"buffer_load_dwordx4 {P2(IDX+2*i)}, {SR4(sP)}, 0 idxen offen offset:{1024*(i&3)}{GSC} lds")
        return "\n".join(L)
    def dma():
        for i in range(8): a(dma1(i))
    def rd_b3(q): return f"ds_read_addtid_b32 v{B3+4*q} offset:{Q2+q*QS}\nds_read_addtid_b32 v{B3+4*q+1} offset:{Q2+q*QS+256}"
    def rd_a3(): return f"ds_read_b64 {P2(A3)}, v{VY} offset:{OH}\nds_read_b64 {P2(A3+2)}, v{EA}"
    def rd_a(t): return f"ds_read_b128 {P4(A+4*t)}, v{AR+t}"
    rd_s=f"s_mov_b64 exec, {S2(sMA)}\nds_read_b64 {P2(SS)}, v{SA} offset:{STB}\ns_mov_b64 exec, {S2(sMB)}\nds_read_b64 {P2(SS+2)}, v{SA} offset:{STB}\ns_mov_b64 exec, -1"
    rd_ga(0); rd_gg(0)
    a(f"""
ds_read_u16 v{WT}, v1 offset:{GL}
ds_read_b32 v{GP}, v{VZ} offset:{mSLOW}
s_waitcnt lgkmcnt(3)
""")
    rd_idx()
    a(f"""
s_cmp_ge_u32 s{sWV}, 4
s_cbranch_scc1 KF_d0
s_waitcnt lgkmcnt(0)
""")
    a(dma1(0)); a(dma1(1))
    tru(WU1,32768)
    for i in range(2,5): a(dma1(i))
    a("s_waitcnt lgkmcnt(0)\ns_barrier")
    for i in range(5,8): a(dma1(i))
    a("s_branch KF_d1\nKF_d0:\ns_waitcnt lgkmcnt(6)")
    tru(WU1,32768)
    a("s_waitcnt lgkmcnt(0)\ns_barrier")
    dma()
    a("KF_d1:")
    pt('d0')
    a(f"v_readfirstlane_b32 s{sNF}, v{WT}\nv_readfirstlane_b32 s{t3}, v{GP}")
    rd_y(); rd_ga(16)
    ugemm()
    a("s_waitcnt lgkmcnt(0)")
    rd_idx()
    uscale()
    a(f"""
s_or_b32 s{sFLAG}, s{sFLAG}, s{t3}
s_cbranch_scc1 KF_SLOW
s_lshr_b32 s{sNF}, s{sNF}, 8
v_subrev_u32 v2, s{sNF}, v{VL}
v_and_b32 v2, 15, v2
v_add_u32 v{DR}, s{sNF}, v2
v_lshlrev_b32 v2, 2, v{DR}
ds_read_b32 v{GP}, v2 offset:{BT}
s_mul_i32 s{sW8}, s{sNF}, -8
s_lshl_b32 m0, s{sNF}, 7
v_add3_u32 v{VY}, v{VY}, v{OHC}, s{sW8}
""")
    for q in range(4): a(rd_b3(q))
    a(rd_a3())
    a(f"""
v_mov_b32 v{SS}, 0
v_mov_b32 v{SS+1}, 0
v_mov_b32 v{SS+2}, 0
v_mov_b32 v{SS+3}, 0
s_add_u32 s{t1}, s{sT0}, s{sCNT}
s_lshl_b32 s{t1}, s{t1}, 7
s_add_u32 s{t2}, s{sWV}, 48
v_mov_b32 v1, s{t2}
{mfma32(ACC+16,SS,SS,None)}
s_waitcnt lgkmcnt(10)
v_cmp_gt_u32 vcc, s{t0}, v{GP}
v_cmp_gt_u32 {S2(t2)}, s{t1}, v{GP}
v_cmp_gt_u32 {S2(t0)}, s{sNN}, v{DR}
v_cndmask_b32 v{DR}, v{DR}, v1, vcc
s_cmp_lg_u64 vcc, 0
s_cselect_b32 s{sHEAD}, 1, 0
s_and_b64 vcc, {S2(t2)}, {S2(t0)}
v_lshrrev_b32 v1, 2, v{VL}
v_cndmask_b32 v{DR}, 63, v{DR}, vcc
v_and_b32 v1, 4, v1
v_xor_b32 v1, v1, v{DR}
v_and_b32 v1, 15, v1
v_lshlrev_b32 v1, 4, v1
v_lshl_add_u32 v{DR}, v{DR}, 8, v1
v_sub_u32 v{DR}, v{DR}, v{OHC}
s_mov_b32 s{sI}, 1
s_sub_u32 s{sCNT}, s{sCNT}, 1
""")
    pt('pre')
    a("s_waitcnt vmcnt(0)")
    pt('g0')
    for t in range(8): a(rd_a(t))
    a("s_waitcnt lgkmcnt(6)")
    a(mfma32(Z[0],A3,B3,None)); a(mfma32(Z[0],A,ID0,Z[0])); a(mfma32(Z[0],A+4,ID1,Z[0]))
    a("s_nop 3\ns_waitcnt lgkmcnt(0)")
    pt('pro')
    def finals(qprev):
        for u in range(2): a(f"v_pk_mul_f32 {P2(NN+2*u)}, {P2(NN+2*u)}, {P2(DD+2*u)}")
        for u in range(2): a(f"v_cvt_pk_bf16_f32 v{GP+2*(qprev&1)+u}, v{NN+2*u}, v{NN+2*u+1}")
    def ex(zc,r): return f"v_exp_f32 v{EE+r}, v{zc+r}"
    def body(first):
        for q in range(4):
            zc=Z[q&1]; zn=Z[(q+1)&1]; qn=(q+1)&3
            ms=[(A3,B3+4*qn),(A+8*qn,ID0),(A+8*qn+4,ID1)]
            if q==3: ms=[ms[1],ms[2],ms[0]]
            pend=[0,1,2,3,8,9,10,11,4,5,12,13,6,7,14,15]
            f0=first and q==0
            if q==0:
                a(f"v_readlane_b32 s{sQ}, v{WT}, s{sI}")
                rd_gg(16); rd_ga(32)
                if first: a("s_nop 1")
            if q==1:
                a("s_waitcnt lgkmcnt(4)"); rd_y(); rd_idx()
            if q==2:
                a("s_waitcnt vmcnt(0)")
                for t in range(6): a(rd_a(t))
            if q==3:
                a(f"s_waitcnt lgkmcnt(0)\ns_cmp_gt_u32 s{sCNT}, 1\ns_cselect_b64 vcc, -1, 0")
            a(mfma32(zn,ms[0][0],ms[0][1],None))
            if not f0:
                for j in range(4): a(f"v_rcp_f32 v{DD+j}, v{DD+j}")
            else:
                for r in range(4): a(ex(zc,pend.pop(0)))
            if q==0:
                a(f"s_lshr_b32 s{sQ}, s{sQ}, 8\ns_lshl_b32 m0, s{sQ}, 7\ns_mul_i32 s{sW8}, s{sQ}, -8")
                a(rd_b3(0)); a(rd_b3(1))
            if q==1:
                if first: a(f"s_lshl_b32 m0, s{sQ}, 7\ns_nop 0")
                a(rd_b3(2))
            if q==2: a(rd_b3(3)); a(rd_a3())
            a(mfma32(zn,ms[1][0],ms[1][1],zn))
            for r in range(4): a(ex(zc,pend.pop(0)))
            a(mfma32(zn,ms[2][0],ms[2][1],zn))
            for r in range(4): a(ex(zc,pend.pop(0)))
            if q&1:
                p=1 if q==1 else 0
                if not (first and q==1):
                    a(mfma32(ACC+16*p,GP,SS,None if first else ACC+16*p))
                    for r in range(4): a(ex(zc,pend.pop(0)))
                if q==1: a(rd_s)
            if q==2: a(rd_a(6)); a(rd_a(7))
            if not f0: finals((q-1)&3)
            seq=[]
            for u in range(2): seq.append(f"v_pk_add_f32 {P2(DD+2*u)}, {P2(EE+8*u)}, 1.0 op_sel_hi:[1,0]")
            for m in range(1,4):
                for u in range(2):
                    src=(zc+8*u) if m==1 else NN+2*u
                    seq.append(f"v_pk_fma_f32 {P2(NN+2*u)}, {P2(src)}, {P2(EE+8*u+2*m)}, {P2(src)}")
                for u in range(2): seq.append(f"v_pk_fma_f32 {P2(NN+2*u)}, {P2(zc+8*u+2*m)}, {P2(DD+2*u)}, {P2(NN+2*u)}")
                for u in range(2): seq.append(f"v_pk_fma_f32 {P2(DD+2*u)}, {P2(DD+2*u)}, {P2(EE+8*u+2*m)}, {P2(DD+2*u)}")
            slots=[0,1,2,3,5,7,9,11] if len(pend)==8 else [1,4,7,10]
            dpos={}
            if (q==3 or f0) and not X&1:
                for i in range(8): dpos.setdefault(DSP[i],[]).append(i)
            for k,x in enumerate(seq):
                if k in dpos:
                    guard=(q==3 and not first)
                    lab=f"KF_l{k}"
                    if guard: a(f"s_cbranch_vccz {lab}")
                    for i in dpos[k]: a(dma1(i))
                    if guard:
                        if k==max(dpos):
                            a(f"s_branch {lab}b\n{lab}:\ns_cmp_eq_u32 s{sCNT}, s{sWU}\ns_cbranch_scc0 {lab}b")
                            sdma(sA,32768,0,TD)
                            a(f"{lab}b:")
                        else: a(f"{lab}:")
                a(x)
                if k in slots: a(ex(zc,pend.pop(0)))
            if q==1: a(f"s_waitcnt lgkmcnt(4)\nv_add3_u32 v{VY}, v{VY}, v{OHC}, s{sW8}\nv_add_u32 v{SA}, 16, v{SA}")
            if q==2: a(f"v_pk_add_f32 {P2(RB)}, {P2(RB)}, {S2(sINC)}")
    body(True)
    a("s_branch KF_LE\n.p2align 6\nKF_LOOP:")
    body(False)
    a("KF_LE:")
    if PRIO:
        for rem,pr in ((5,2),(3,1),(1,0)):
            a(f"s_cmp_eq_u32 s{sCNT}, {rem}\ns_cbranch_scc0 KF_pr{rem}\ns_setprio {pr}\nKF_pr{rem}:")
    a(f"""
s_add_u32 s{sI}, s{sI}, 1
s_sub_u32 s{sCNT}, s{sCNT}, 1
s_cbranch_scc0 KF_LOOP
""")
    for j in range(4): a(f"v_rcp_f32 v{DD+j}, v{DD+j}")
    a("s_nop 0")
    finals(3)
    a("s_nop 1")
    a(mfma32(ACC+16,GP,SS,ACC+16))
    pt('loop')
    for p in range(2):
        if p==1: a("s_nop 0")
        for j in range(4):
            c=ACC+16*p+4*j
            a(f"v_cvt_pk_bf16_f32 v{c}, v{c}, v{c+1}\nv_cvt_pk_bf16_f32 v{c+1}, v{c+2}, v{c+3}")
            if p or j: a(f"v_xor_b32 v1, {(8*p+j)*16}, v{DR}")
            a(f"ds_write_b64 v{1 if (p or j) else DR}, {P2(c)} offset:{AGB}")
    a(f"""
s_and_b32 s{t1}, s{sNF}, 15
s_lshl_b32 s{t1}, s{t1}, 4
s_lshl_b32 s{t0}, s{sNF}, 8
s_or_b32 s{t0}, s{t0}, s{t1}
s_mul_i32 s{t1}, s{sWV}, 272
s_add_u32 s{t1}, s{t1}, {48*256}
v_lshlrev_b32 v3, 2, v{VL}
v_xor_b32 v1, s{t0}, v3
v_xor_b32 v2, s{t1}, v3
s_cmp_eq_u32 s{sHEAD}, 0
s_waitcnt vmcnt(0) lgkmcnt(0)
s_barrier
s_cbranch_scc1 KF_FIN
ds_read_b32 v4, v1 offset:{AGB}
ds_read_b32 v5, v2 offset:{AGB}
s_waitcnt lgkmcnt(0)
v_lshlrev_b32 v6, 16, v4
v_and_b32 v7, 0xffff0000, v4
v_lshlrev_b32 v8, 16, v5
v_and_b32 v9, 0xffff0000, v5
v_pk_add_f32 v[6:7], v[6:7], v[8:9]
v_cvt_pk_bf16_f32 v6, v6, v7
ds_write_b32 v1, v6 offset:{AGB}
KF_FIN:
""")
    OST=GBUF
    tru(WU2,32768)
    srd(a,sX,16,N*256)
    a(f"""
v_and_b32 v1, 15, v{VL}
s_lshl_b32 s{t0}, s{sOT}, 1
v_lshrrev_b32 v2, 5, v{VL}
v_or_b32 v2, s{t0}, v2
v_xor_b32 v2, v2, v1
v_lshlrev_b32 v2, 4, v2
v_lshl_add_u32 v2, v1, 8, v2
v_lshrrev_b32 v3, 1, v{VL}
v_and_or_b32 v2, v3, 8, v2
v_add_u32 v{AR}, {OST}, v2
v_lshlrev_b32 v{AR+1}, 1, v1
""")
    bar('mrg',"s_waitcnt vmcnt(0) lgkmcnt(0)")
    for T in range(4):
        xfrags([T])
        if T==2:
            a("s_waitcnt lgkmcnt(8)")
            for s in range(4): a(mfma16(UA,WU2+4*s,XF+4*s,UA))
    def silu(T):
        c=UA+4*T; e=EE+4*T
        L=[f"v_exp_f32 v{e+i}, v{c+i}" for i in range(4)]
        L+=[f"v_fma_f32 v{e+i}, v{e+i}, s{sL2E}, s{sL2E}" for i in range(4)]
        L+=[f"v_rcp_f32 v{e+i}, v{e+i}" for i in range(4)]
        L+=[f"v_mul_f32 v{e+i}, v{e+i}, v{c+i}" for i in range(4)]
        L+=[f"v_cvt_pk_bf16_f32 v{e}, v{e}, v{e+1}",f"v_cvt_pk_bf16_f32 v{e+1}, v{e+2}, v{e+3}",f"ds_write_b64 v{AR}, {P2(e)} offset:{T*4096}"]
        return L
    for T in range(1,4):
        a(f"s_waitcnt lgkmcnt({4*(3-T)})")
        for s in range(4):
            x,y=(WU2+4*s,XF+16*T+4*s) if T<3 else (XF+16*T+4*s,WU2+4*s)
            a(mfma16(UA+4*T,x,y,UA+4*T))
    for T in range(3):
        for x in silu(T): a(x)
    c=UA+12; e=EE+12
    a(f"""
v_exp_f32 v{e}, v{c}
s_add_u32 s{t0}, s{sK}, {48*256}
v_fma_f32 v{e}, v{e}, s{sL2E}, s{sL2E}
v_rcp_f32 v{e}, v{e}
s_lshl_b32 s{t0}, s{t0}, 8
v_mul_f32 v{e}, v{e}, v{c}
s_lshl_b32 s{t1}, s{sOT}, 5
s_add_u32 s{t0}, s{t0}, s{t1}
v_cvt_pk_bf16_f32 v{e}, v{e}, v{e}
s_mov_b32 exec_lo, 0xffff
s_mov_b32 exec_hi, 0
buffer_store_short v{e}, v{AR+1}, {SR4(sX)}, s{t0} offen
s_mov_b64 exec, -1
v_lshlrev_b32 v1, 4, v0
v_add_u32 v1, {OST}, v1
v_lshrrev_b32 v2, 4, v0
v_xor_b32 v3, v2, v0
v_and_b32 v3, 15, v3
v_lshlrev_b32 v3, 4, v3
v_lshl_add_u32 v3, v2, 16, v3
s_lshl_b32 s{t0}, s{sK}, 8
s_add_u32 s{t1}, s{t0}, {32*65536}
s_waitcnt lgkmcnt(0)
s_barrier
ds_read_b128 {P4(A)}, v1
s_cmp_lt_u32 s{sWV}, 4
s_cbranch_scc0 KF_e1
ds_read_b128 {P4(A+4)}, v1 offset:8192
s_waitcnt lgkmcnt(0)
buffer_store_dwordx4 {P4(A+4)}, v3, {SR4(sX)}, s{t1} offen
KF_e1:
s_waitcnt lgkmcnt(0)
buffer_store_dwordx4 {P4(A)}, v3, {SR4(sX)}, s{t0} offen
""")
    a(f"""
s_or_b32 s{t0}, s2, s{sWV}
s_cbranch_scc1 KF_e2
v_mov_b32 v1, s{sNON}
v_mov_b32 v2, 0
s_mov_b64 exec, 1
buffer_store_dword v1, v2, {SR4(sR)}, 0 offen
KF_e2:
""")
    if PROF: a("s_waitcnt vmcnt(0)")
    stamp(a,10); stamp(a,11,True)
    stamp_out(a,1,sWV)
    a("KF_END:\ns_endpgm")
    hist_retry(8,"KT_h")
    SV=ACC; AGs=SV+8; RS_=SV+16
    a(f"""
KF_SLOW:
s_setprio 0
s_cmp_ge_u32 s{sWV}, 4
s_cselect_b32 s{sTOT}, 0, s{sTOT}
v_mov_b32 v1, s{sTOT}
ds_max_u32 v{VZ}, v1 offset:{mMX}
v_mov_b32 v{SS}, 0
v_mov_b32 v{SS+1}, 0
v_mov_b32 v{SS+2}, 0
v_mov_b32 v{SS+3}, 0
s_mov_b32 s{sLO}, 0
s_mov_b32 s{sLB}, s{sBUF}
s_sub_u32 s{t0}, s{sWV}, s{sT0}
s_lshl_b32 s{t0}, s{t0}, 4
v_add_u32 v{SV+4}, s{t0}, v{RB}
v_add_u32 v{SV+5}, s{t0}, v{SB}
s_lshl_b32 s{t0}, s{sWV}, 4
v_sub_u32 v{SV+6}, s{t0}, v{OHC}
v_and_b32 v{SV+7}, 31, v{VL}
v_lshlrev_b32 v{SV+7}, 2, v{SV+7}
v_lshlrev_b32 v1, 4, v0
""")
    for j in range(3): a(f"ds_write_b128 v1, {P4(SS)} offset:{AGG+j*8192}")
    a(f"""
v_lshlrev_b32 v1, 4, v{VL}
ds_write_b128 v1, {P4(SS)} offset:{AGG+3*8192}
s_waitcnt vmcnt(0) lgkmcnt(0)
s_barrier
ds_read_b32 v1, v{VZ} offset:{mMX}
s_waitcnt lgkmcnt(0)
v_readfirstlane_b32 s{sRND}, v1
KF_SR:
s_cmp_lt_u32 s{sLO}, s{sRND}
s_cbranch_scc0 KF_SE
s_barrier
v_lshlrev_b32 v1, 2, v{VL}
v_lshlrev_b32 v2, 8, v{VL}
ds_write_b32 v1, v2
s_waitcnt lgkmcnt(0)
s_barrier
s_cmp_ge_u32 s{sWV}, 4
s_cbranch_scc1 KF_S1
s_movk_i32 s{t3}, 256
""")
    expand("KF_x")
    a(f"s_sub_u32 s{t1}, s{sTOT}, s{sLO}")
    reclist(4)
    recload(4,"KF_rl")
    hist(4,"KF_h",0,False)
    a("s_waitcnt lgkmcnt(0)")
    for i in range(4):
        a(f"""
v_mov_b32 v{RS_+4*i}, v{RC+4*i}
v_mov_b32 v{RS_+4*i+1}, v{RC+4*i+1}
v_mov_b32 v{RS_+4*i+2}, v{RC+4*i+2}
v_lshlrev_b32 v1, 6, v{RC+4*i+3}
v_sub_u32 v1, v{RK+i}, v1
v_cndmask_b32 v{RS_+4*i+3}, -1, v1, {S2(sM+2*i)}
""")
    a(f"""
KF_S1:
s_mov_b32 s{sHEAD}, 0                    ; 256*k
KF_SK:
s_waitcnt lgkmcnt(0)
s_barrier
s_cmp_ge_u32 s{sWV}, 4
s_cbranch_scc1 KF_S2
s_mov_b32 s{t1}, {EB}
""")
    for i in range(4):
        a(f"""
v_subrev_u32 v1, s{sHEAD}, v{RS_+4*i+3}
v_lshrrev_b32 v2, 19, v{RS_+4*i+2}
v_lshl_add_u32 v2, v2, 8, v1
v_lshl_add_u32 v3, v2, 1, s{t1}
v_cmpx_gt_u32 vcc, 0x100, v1
ds_write_b32 v2, v{RS_+4*i+2} offset:{WB}
ds_write_b64 v3, {P2(RS_+4*i)}
s_mov_b64 exec, -1
""")
    a("KF_S2:")
    scan(True)
    a(f"s_cmp_lg_u64 {S2(t2)}, 0\ns_cselect_b32 s{sFLAG}, 1, 0")
    fill("KFs",True)
    a(f"""
s_add_u32 s{sNT}, s{t0}, 127
s_lshr_b32 s{sNT}, s{sNT}, 7
s_waitcnt lgkmcnt(0)
s_barrier
v_mov_b32 v{RB}, v{SV+4}
v_mov_b32 v{SB}, v{SV+5}
v_mov_b32 v{SV+12}, v{SV+6}
s_mov_b32 s{sI}, s{sWV}
KF_SL:
s_cmp_lt_u32 s{sI}, s{sNT}
s_cbranch_scc0 KF_SN
""")
    rd_ga(0); rd_gg(0)
    for j in range(4): a(f"ds_read_u16 v{AGs+j}, v{SV+12} offset:{GL+2*j}")
    a("s_waitcnt lgkmcnt(0)")
    rd_y(); rd_idx()
    a("s_waitcnt lgkmcnt(0)")
    dma()
    for j in range(4): a(f"v_lshrrev_b32 v{AGs+j}, 8, v{AGs+j}")
    a(f"""
v_readfirstlane_b32 s{sQ}, v{AGs}
s_nop 3
s_mul_i32 s{sW8}, s{sQ}, -8
s_lshl_b32 m0, s{sQ}, 7
v_add3_u32 v{VY}, v{VY}, v{OHC}, s{sW8}
""")
    for q in range(4): a(rd_b3(q))
    a(rd_a3())
    for j in range(4): a(f"v_lshl_add_u32 v{AGs+j}, v{AGs+j}, 9, v{SV+7}")
    a("s_waitcnt vmcnt(0) lgkmcnt(0)")
    for t in range(8): a(rd_a(t))
    a("s_waitcnt lgkmcnt(0)")
    for q in range(4):
        z=Z[0]
        a(mfma32(z,A3,B3+4*q,None)); a(mfma32(z,A+8*q,ID0,z)); a(mfma32(z,A+8*q+4,ID1,z))
        a("s_nop 15")
        for r in range(16): a(f"v_exp_f32 v{EE+r}, v{z+r}")
        for r in range(16): a(f"v_add_f32 v{EE+r}, 1.0, v{EE+r}")
        for r in range(16): a(f"v_rcp_f32 v{EE+r}, v{EE+r}")
        for m in range(4):
            for u in range(2):
                for par in range(2):
                    r=8*u+2*m+par; g=GP+2*u+par
                    a(f"v_mul_f32 v{g}, v{z+r}, v{EE+r}" if m==0 else f"v_fmac_f32 v{g}, v{z+r}, v{EE+r}")
        for j in range(4): a(f"ds_add_f32 v{AGs+j}, v{GP+j} offset:{AGG+q*128}")
        a("s_waitcnt lgkmcnt(0)")
    a(f"""
v_add_u32 v{SB}, 128, v{SB}
v_add_u32 v{RB}, 128, v{RB}
v_add_u32 v{SV+12}, 128, v{SV+12}
s_add_u32 s{sI}, s{sI}, 8
s_branch KF_SL
KF_SN:
s_add_u32 s{sHEAD}, s{sHEAD}, 256
s_cmp_lg_u32 s{sFLAG}, 0
s_cbranch_scc1 KF_SK
s_add_u32 s{sLO}, s{sLO}, 256
s_branch KF_SR
KF_SE:
s_cmp_ge_u32 s{sWV}, 4
s_cbranch_scc0 KF_SE2
""")
    sdma(sA,32768,0,TD)
    a(f"""
KF_SE2:
v_lshlrev_b32 v1, 4, v0
v_lshrrev_b32 v2, 5, v0
s_waitcnt vmcnt(0) lgkmcnt(0)
s_barrier
""")
    for j in range(4): a(f"ds_read_b128 {P4(A+4*j)}, v1 offset:{AGG+j*8192}")
    a(f"""
v_bfe_u32 v3, v0, 1, 4
v_xor_b32 v3, v3, v2
v_lshlrev_b32 v3, 4, v3
v_lshl_add_u32 v3, v2, 8, v3
v_and_b32 v1, 1, v0
v_lshl_add_u32 v3, v1, 3, v3
s_waitcnt lgkmcnt(0)
s_barrier
""")
    for j in range(4):
        a(f"v_cvt_pk_bf16_f32 v{A+4*j}, v{A+4*j}, v{A+4*j+1}\nv_cvt_pk_bf16_f32 v{A+4*j+1}, v{A+4*j+2}, v{A+4*j+3}")
        a(f"ds_write_b64 v3, {P2(A+4*j)} offset:{AGB+j*4096}")
    a("s_branch KF_FIN")
    hist_retry(4,"KF_h")
    return a.text()

if __name__=='__main__':
    import sys
    nm='standalone__mpnn_edge_mlp__graph_kernel'
    hdr=open('standalone__mpnn_edge_mlp__graph.s.ref').read().split('; Override')[0]
    out=hdr+(f"; @launch kernel={nm} grid=(256,1,1) block=(512,1,1) lds={KF_LDS}\n" if os.environ.get('LISTF') else f"; @launch grid=(256,1,1) block=(512,1,1) lds={KF_LDS}\n")
    out+='.amdgcn_target "amdgcn-amd-amdhsa--gfx950"\n.text\n'
    out+=f".globl {nm}\n.p2align 8\n.type {nm},@function\n"+gen_kf(nm)
    out+='.section .rodata,"a"\n.p2align 6\n'+kd(nm,256)
    open(sys.argv[1],'w').write(out)
```

```python
from common import *
X=int(os.environ.get('X','0'))
PRIO=int(os.environ.get('PRIO','1'))
DSP=[int(c,36) for c in os.environ.get('DSP','00000000')]
def EV(n,d): return int(os.environ.get(n,d))
TPOS=EV('TPOS',6); PFP=EV('PFP',0); XORD=EV('XORD',2); WUI=EV('WUI',2); FLP=EV('FLP',1); FSL=EV('FSL',8); TE=EV('TE',1); W1N=EV('W1N',5); GP_=EV('GP',0); PFI=EV('PFI',1); SWW=EV('SWW',1)
PTS=os.environ.get('PTS','b1,bS,tp,pfl,rl,b2,b3,pro').split(',')
SC=' sc1'
GSC=os.environ.get('GSC',' sc1')
NPROD=250; EP=1600
F_P=0x1000; F_REC=0x400000; F_TBL=0xB00000; F_FLG=0xB90000; F_SIZE=0xBA0000
CNT=0; MISC=256; OH=392; GL=928; BT=1872; STB=2144; RS=944
mSLOW=MISC; mS=MISC+4; mGX=MISC+8; mGP=MISC+12; mC3=MISC+16; mPD=MISC+20; mSL=MISC+24; mMX=MISC+28; mPI=MISC+32; mH=MISC+36; mNT=MISC+40; mW=MISC+44
AGB=17408
W3L=AGB+56*256
Q2=AGB+16384; QS=52*128
S1=Q2; ERAW=Q2+12800
WB=Q2+4*QS; NULLG=49*256; EB=WB+NULLG+16
HIST=WB; PSC=WB+2048
GBUF=98304
KF_LDS=GBUF+65536
assert EB+2*NULLG+32<=GBUF and STB+16*RS<=AGB
AGG=STB
ONE2=0x3F803F80
NULLW2=0xFFFF|(512<<16)
CAPT=58
ID0=4; ID1=8; B3=12; A=28; Z=[60,76]; A3=92; EE=96; NN=112; DD=116; GP=120; SS=124
IDX=128; AR=144; RB=152; SB=153; SA=154; VY=155; OHC=156; VL=157; WT=158; DR=159
ACC=160; WU2=192; UA=208; WF=160; WU1=176; QA=224; RC=96; XF=28; GA=192
GA0=232; YA=234; EA=235; M4=236; EC=237; VZ=238; PO=92; TRU=240; TD=241; TC=242; TO=243; RK=244; FA=252
sP=24; sX=28; sA=32; sR=36; sM=40
sWV=56; sK=57; sNN=58; sI=59; sNT=60; sBUF=61; sQ=62; sW8=63; sCNT=64; sT0=65
sL2E=66; sINC=68; sRND=70; sTOT=71; sNON=72; sBUD=73; sW4=74; sLB=75
sWU=3; sW4K=22; sOT=23; sFLAG=76; sLO=77; sMA=78; sMB=80; sHEAD=82; sNF=83
t0,t1,t2,t3=84,85,86,87
BUDGET=20000

def mfma32(d,x,y,c): return f"v_mfma_f32_32x32x16_bf16 v[{d}:{d+15}], v[{x}:{x+3}], v[{y}:{y+3}], "+("0" if c is None else f"v[{c}:{c+15}]")
def mfma16(d,x,y,c): return f"v_mfma_f32_16x16x32_bf16 v[{d}:{d+3}], v[{x}:{x+3}], v[{y}:{y+3}], "+("0" if c is None else f"v[{c}:{c+3}]")
def P2(r): return f"v[{r}:{r+1}]"
def P4(r): return f"v[{r}:{r+3}]"
def S2(r): return f"s[{r}:{r+1}]"
def SR4(r): return f"s[{r}:{r+3}]"

def gen_kf(name):
    a=Asm()
    def pt(n):
        if PROF and n in PTS: stamp(a,2+PTS.index(n))
    def bar(n,w="s_waitcnt lgkmcnt(0)"):
        a(w+"\ns_barrier"); pt(n)
    def gsync(n,lab,off,target,va,vt,pre=None):
        if pre: a(pre)
        a(f"""
v_mov_b32 v{vt}, 1
s_mov_b64 exec, 1
ds_add_u32 v{va}, v{vt} offset:{off}
s_mov_b64 exec, -1
{lab}:
ds_read_b32 v{vt}, v{va} offset:{off}
s_waitcnt lgkmcnt(0)
v_readfirstlane_b32 s{t1}, v{vt}
s_and_b32 s{t1}, s{t1}, 255
s_cmp_lt_u32 s{t1}, {target}
s_cbranch_scc1 {lab}
""")
        pt(n)
    def gwait(lab,off,target,va,vt):
        a(f"""
{lab}:
ds_read_b32 v{vt}, v{va} offset:{off}
s_waitcnt lgkmcnt(0)
v_readfirstlane_b32 s{t1}, v{vt}
s_and_b32 s{t1}, s{t1}, 255
s_cmp_lt_u32 s{t1}, {target}
s_cbranch_scc1 {lab}
""")
    def consts():
        srd(a,sP,20,N,off=F_P-3072,stride=256)
        srd(a,sR,20,F_SIZE)
        a(f"""
s_cmp_lt_u32 s{sK}, {N-256*48}
s_cselect_b32 s{sNN}, 49, 48
s_mov_b32 s{sL2E}, {hex(LOG2E_NEG)}
s_mov_b32 s{sL2E+1}, {hex(LOG2E_NEG)}
s_mov_b32 s{sINC}, 16
s_mov_b32 s{sINC+1}, 16
s_mov_b32 s{sMA}, 0x0000ffff
s_mov_b32 s{sMA+1}, 0x0000ffff
s_not_b64 {S2(sMB)}, {S2(sMA)}
s_mov_b32 s{sBUD}, {BUDGET}
v_lshrrev_b32 v2, 5, v{VL}              ; h
; g = 4 b2 + 2 b4 + b0 ; m = 2 b3 + b1 ; slot = 16 b2 + 4 m + (g&3)
v_lshrrev_b32 v1, 3, v{VL}
v_and_b32 v1, 2, v1
v_and_or_b32 v1, v{VL}, 5, v1           ; g
v_lshlrev_b32 v{RB}, 1, v1
v_lshlrev_b32 v3, 1, v{VL}
v_and_b32 v3, 4, v3
v_and_or_b32 v{M4}, v{VL}, 8, v3        ; 4m
v_lshlrev_b32 v{EC}, 1, v{M4}
v_add_u32 v{EC}, {EB}, v{EC}
v_lshlrev_b32 v3, 2, v1
v_and_or_b32 v3, v3, 16, v{M4}
v_and_or_b32 v3, v1, 3, v3              ; slot
v_lshl_add_u32 v3, v3, 8, s{sBUF}
v_and_b32 v{WT}, 15, v{VL}              ; n / c16
v_xor_b32 v1, v2, v{WT}
v_lshl_add_u32 v{AR}, v1, 4, v3
""")
        for t in range(1,8): a(f"v_xor_b32 v{AR+t}, {32*t}, v{AR}")
        a(f"""
v_mul_i32_i24 v{OHC}, -8, v2
v_mul_u32_u24 v{SA}, {RS}, v{WT}
v_and_b32 v1, 1, v{VL}
v_lshlrev_b32 v1, 4, v1
v_mov_b32 v3, 0x3f80
v_lshlrev_b32 v1, v1, v3
""")
        for s in range(2):
            for j in range(4):
                lo=3<<(16*s+2*j); hi=(3<<(16*s+8+2*j))
                a(f"s_mov_b32 vcc_lo, {hex(lo)}\ns_mov_b32 vcc_hi, {hex(hi)}\nv_cndmask_b32 v{ID0+4*s+j}, 0, v1, vcc")
        a(f"""
v_lshrrev_b32 v2, 4, v{VL}              ; a / g
v_lshlrev_b32 v{SB}, 1, v2
v_and_b32 v1, 1, v2
v_xor_b32 v1, v1, v{WT}
v_lshlrev_b32 v1, 4, v1
""")
        for i in range(8): a(f"v_xor_b32 v{IDX+2*i+1}, {(8*((i>>1)&1)+4*(i>>2)+2*(i&1))*16+3072-1024*(i&3)}, v1")
        a(f"v_xor_b32 v3, v2, v{WT}\nv_lshlrev_b32 v3, 4, v3\nv_lshl_add_u32 v3, v{WT}, 8, v3\nv_add_u32 v{FA}, {AGB}, v3")
        for s in range(1,4): a(f"v_xor_b32 v{FA+s}, {64*s}, v{FA}")
        a(f"""
s_lshl_b32 s{t0}, s{sW4}, 13
s_add_u32 s{t0}, s{t0}, {GBUF}
s_lshr_b32 s{t1}, s{sWV}, 2
s_lshl_b32 s{sOT}, s{sW4}, 1
s_or_b32 s{sOT}, s{sOT}, s{t1}
v_lshrrev_b32 v1, 2, v{WT}
v_lshl_add_u32 v1, v2, 3, v1
v_lshl_add_u32 v{DR}, v1, 6, s{t0}
v_xor_b32 v2, s{t1}, v2
v_and_b32 v2, 1, v2
v_and_b32 v3, 3, v{VL}
v_lshl_add_u32 v{TRU}, v2, 5, v{DR}
v_lshl_add_u32 v{TRU}, v3, 3, v{TRU}
""")
    def tagh():
        a(f"""
s_mul_i32 s{sNON}, s{sNON}, 0x9E3779B1
s_add_u32 s{sNON}, s{sNON}, 0x7F4A7C15
s_lshr_b32 s{t1}, s{sNON}, 15
s_xor_b32 s{sNON}, s{sNON}, s{t1}
""")
    def vyc():
        a(f"""
v_lshrrev_b32 v1, 4, v{VL}
v_and_b32 v1, 2, v1
v_xor_b32 v1, v1, v{VL}
v_and_b32 v1, 3, v1
v_lshlrev_b32 v1, 4, v1
v_lshrrev_b32 v2, 2, v{VL}
v_lshl_or_b32 v{VY}, v2, 8, v1
""")
    def trfrag(dst,addr,off,ks,hs):
        for s in range(4):
            a(f"ds_read_b64_tr_b16 {P2(dst+4*s)}, v{addr} offset:{off+s*ks}\nds_read_b64_tr_b16 {P2(dst+4*s+2)}, v{addr} offset:{off+s*ks+hs}")
    def tru(dst,off): trfrag(dst,TRU,off,2048,256)
    def sdma(sr,moff,loff=0,v=VY,js=range(8)):
        a(f"s_lshl_b32 s{t0}, s{sW4}, 6")
        for j in js:
            a(f"s_add_u32 m0, s{sBUF}, {loff+j*1024}\ns_add_u32 s{t1}, s{t0}, {moff+j*4096}\nbuffer_load_dwordx4 v{v}, {SR4(sr)}, s{t1} offen lds")
    def xfrags(Ts):
        for T in Ts:
            for s in range(4): a(f"ds_read_b128 {P4(XF+16*T+4*s)}, v{FA+s} offset:{T*4096}")
    def ugemm():
        for T in range(4):
            for s in range(4):
                x,y=(WU1+4*s,XF+16*T+4*s) if T<3 else (XF+16*T+4*s,WU1+4*s)
                a(mfma16(UA+4*T,x,y,None if s==0 else UA+4*T))
    def uscale():
        for j in range(7): a(f"v_pk_mul_f32 {P2(UA+2*j)}, {P2(UA+2*j)}, {S2(sL2E)}")
    def w3rd():
        a(f"v_lshlrev_b32 v1, 3, v{VL}")
        for q in range(4): a(f"ds_read_b64 {P2(B3+4*q+2)}, v1 offset:{W3L+q*512}")
    F=A3
    def scan(slow):
        a(f"""
v_lshlrev_b32 v1, 2, v{VL}
ds_read_b32 v{F}, v1
v_cmp_gt_u32 vcc, s{sNN}, v{VL}
v_lshlrev_b32 v{F+1}, 8, v{VL}
s_waitcnt lgkmcnt(0)
v_sub_u32 v{QA}, v{F}, v{F+1}
""")
        if slow:
            a(f"""
s_movk_i32 s{t1}, 256
v_subrev_u32 v{QA}, s{sHEAD}, v{QA}
v_cmp_lt_i32 {S2(t2)}, s{t1}, v{QA}
v_med3_i32 v{QA}, v{QA}, 0, s{t1}
v_add_u32 v{F}, v{F+1}, v{QA}
""")
        a(f"""
v_add_u32 v3, 12, v{QA}
v_and_b32 v3, -16, v3
v_max_u32 v3, 80, v3
v_cndmask_b32 v3, 0, v3, vcc
v_mov_b32 v2, v3
""")
        dpp_scan(a,"v_add_u32",[2])
        a(f"""
v_readlane_b32 s{t0}, v2, 63
v_sub_u32 v2, v2, v3
""")
    def fill(lab,slow,nw):
        a(f"""
s_lshl_b32 s{t1}, s{sWV}, 4
v_add_u32 v{QA+1}, s{t1}, v2
v_lshrrev_b32 v{QA+1}, 3, v{QA+1}       ; 2*(G0+w)
v_add_u32 v{F+1}, s{t1}, v{F+1}         ; 256n+16w
v_subrev_u32 v{QA+2}, s{t1}, v3         ; g16-16w
""")
        if not slow: a(f"v_add_u32 v{QA+3}, v{QA+1}, v{SA}\nv_mov_b32 v{F+3}, 0x3f80\nds_write_b32 v1, v2 offset:{BT}")
        for k in range(16//nw):
            a(f"v_cmpx_lt_i32 vcc, {16*nw*k}, v{QA+2}\nds_write_b16 v{QA+1}, v{F+1+(k&1)} offset:{GL+2*nw*k}")
            if k+1<16//nw: a(f"v_add_u32 v{F+1+((k+1)&1)}, {16*nw}, v{F+1+(k&1)}")
            if not slow: a(f"ds_write_b16 v{QA+3}, v{F+3} offset:{STB+2*nw*k}")
        a(f"""
s_mov_b64 exec, -1
s_lshl_b32 s{t1}, s{sWV}, 2
v_sub_u32 v{QA+2}, v3, v{QA}
v_add_u32 v{F}, s{t1}, v{F}
v_subrev_u32 v{QA+2}, s{t1}, v{QA+2}    ; pad4 - 4w
s_mov_b32 s{t1}, {EB}
v_mov_b32 v{QA+4}, 0
v_mov_b32 v{QA+5}, 0
v_mov_b32 v{QA+6}, {hex(NULLW2)}
v_lshl_add_u32 v{QA+7}, v{F}, 1, s{t1}
""")
        for k in range(-(-20//nw)):
            a(f"v_cmpx_lt_i32 vcc, {4*nw*k}, v{QA+2}")
            if k==1: a(f"s_cbranch_vccz {lab}p")
            a(f"ds_write_b32 v{F}, v{QA+6} offset:{WB+4*nw*k}\nds_write_b64 v{QA+7}, {P2(QA+4)} offset:{8*nw*k}")
        a(f"""
{lab}p:
s_mov_b64 exec, -1
s_cmp_eq_u32 s{sWV}, 3
s_cbranch_scc0 {lab}q
s_lshr_b32 s{t1}, s{t0}, 3
v_lshl_add_u32 v{QA+1}, v{VL}, 1, s{t1}
v_mov_b32 v{QA+2}, {NULLG}
v_add_u32 v{QA+3}, {NULLG}, v1
v_lshlrev_b32 v{QA+7}, 1, v1
v_add_u32 v{QA+7}, {EB+2*NULLG}, v{QA+7}
s_mov_b64 exec, 0xff
ds_write_b16 v{QA+1}, v{QA+2} offset:{GL}
s_mov_b64 exec, 15
ds_write_b32 v{QA+3}, v{QA+6} offset:{WB}
ds_write_b64 v{QA+7}, {P2(QA+4)}
s_mov_b64 exec, -1
{lab}q:
""")
    def expand(lab):
        a(f"""
v_subrev_u32 v1, s{sLO}, v{TO}
v_add_u32 v2, v1, v{TC}
v_med3_i32 v1, v1, 0, s{t3}
v_med3_i32 v2, v2, 0, s{t3}
v_sub_u32 v2, v2, v1
v_lshl_add_u32 v1, v1, 2, s{sLB}
{lab}:
""")
        for j in range(16):
            a(f"v_cmpx_lt_i32 vcc, {j}, v2\nds_write_b32 v1, v{TD} offset:{4*j}")
        a(f"""
v_add_u32 v2, -16, v2
v_add_u32 v1, 64, v1
v_cmp_lt_i32 vcc, 0, v2
s_cmp_lg_u64 vcc, 0
s_cbranch_scc1 {lab}
s_mov_b64 exec, -1
""")
    def rl1(i): return f"buffer_load_dwordx4 {P4(RC+4*i)}, v{RK+i}, {SR4(sR)}, {'0' if i<4 else 's'+str(sQ)} offen offset:{1024*(i&3)}{SC}"
    def reclist(ns):
        a(f"v_lshl_add_u32 v1, v{VL}, 2, s{sLB}")
        for i in reversed(range(ns)): a(f"ds_read_b32 v{RK+i}, v1 offset:{256*i}")
        a(f"v_add_u32 v2, s{sLO}, v{VL}\nv_lshlrev_b32 v2, 4, v2\ns_movk_i32 s{sQ}, 4096")
        for i in range(ns):
            a(f"v_cmp_gt_i32 {S2(sM+2*i)}, s{t1}, v{VL}\ns_sub_u32 s{t1}, s{t1}, 64")
        a("s_waitcnt lgkmcnt(0)")
        for i in range(ns): a(f"v_add_u32 v{RK+i}, v{RK+i}, v2")
    def recload(ns,lab):
        for i in reversed(range(ns)):
            a(f"s_mov_b64 exec, {S2(sM+2*i)}\ns_cbranch_execz {lab}{i}\n{rl1(i)}\n{lab}{i}:")
        a("s_mov_b64 exec, -1")
    def hist(ns,lab,extra,scat):
        a(f"v_mov_b32 v1, 4\ns_mov_b32 s{sW8}, {EB}")
        def sc(i,n):
            a(f"""
s_mov_b64 exec, {S2(sM+2*i)}
s_waitcnt lgkmcnt({n})
v_min_u32 v{RK+i}, {NULLG-4}, v{RK+i}
v_lshl_add_u32 v{RC+4*i+3}, v{RK+i}, 1, s{sW8}
ds_write_b32 v{RK+i}, v{RC+4*i+2} offset:{WB}
ds_write_b64 v{RC+4*i+3}, {P2(RC+4*i)}
""")
        for i in reversed(range(ns)):
            a(f"""
s_mov_b64 exec, {S2(sM+2*i)}
s_waitcnt vmcnt({i+extra})
{lab}c{i}:
v_cmp_ne_u32 vcc, s{sNON}, v{RC+4*i+3}
s_cbranch_vccnz {lab}r{i}
{lab}k{i}:
v_lshrrev_b32 v{RC+4*i+3}, 17, v{RC+4*i+2}
ds_add_rtn_u32 v{RK+i}, v{RC+4*i+3}, v1
""")
            if scat and i==0: a(f"s_mov_b64 exec, 1\nds_add_u32 v{VZ}, v1 offset:{mH}")
            if scat and i<ns-1: sc(i+1,(1 if i==ns-2 else 3)+(1 if i==0 else 0))
        if scat: sc(0,3)
        a(f"s_mov_b64 exec, -1")
    def hist_retry(ns,lab):
        for i in range(ns):
            a(f"""
{lab}r{i}:
s_sub_u32 s{sBUD}, s{sBUD}, 1
s_cbranch_scc1 {lab}x{i}
s_mov_b64 exec, vcc
{rl1(i)}
s_mov_b64 exec, {S2(sM+2*i)}
s_waitcnt vmcnt(0)
s_branch {lab}c{i}
{lab}x{i}:
s_mov_b32 s{sBUD}, 0
v_mov_b32 v{RC+4*i+2}, 0
s_branch {lab}k{i}
""")
    def qfull(lab,mid):
        H=QA+4; MX=QA+1
        a(f"v_xor_b32 v{TC}, 32, v{TRU}")
        trfrag(WF,TC,0,2048,256)
        a(f"""
s_mul_i32 s{t0}, s{sW4}, {QS}
s_add_u32 s{t0}, s{t0}, {Q2}
v_lshl_add_u32 v120, v{SB}, 8, s{t0}
v_lshl_add_u32 v120, v{WT}, 2, v120
v_add_u32 v121, 128, v120
v_add_u32 v122, 64, v120
v_add_u32 v123, 192, v120
s_waitcnt lgkmcnt(0)
""")
        tru(WF+16,0)
        def cv(i,T,pk):
            c=GA+16*i+4*T
            L=[]
            if pk: L+=[f"v_pk_mul_f32 {P2(c)}, {P2(c)}, {S2(sL2E)}",f"v_pk_mul_f32 {P2(c+2)}, {P2(c+2)}, {S2(sL2E)}"]
            else: L+=[f"v_mul_f32 v{c+k}, s{sL2E}, v{c+k}" for k in range(4)]
            L+=[f"v_and_b32 v{H+k}, 0xffff0000, v{c+k}" for k in range(4)]
            L+=[f"v_maximum3_f32 v{MX}, {'0' if T==0 and i==0 else 'v'+str(MX)}, abs(v{c}), abs(v{c+1})",f"v_maximum3_f32 v{MX}, v{MX}, abs(v{c+2}), abs(v{c+3})"]
            if pk: L+=[f"v_pk_add_f32 {P2(c)}, {P2(c)}, {P2(H)} neg_lo:[0,1] neg_hi:[0,1]",f"v_pk_add_f32 {P2(c+2)}, {P2(c+2)}, {P2(H+2)} neg_lo:[0,1] neg_hi:[0,1]"]
            else: L+=[f"v_sub_f32 v{c+k}, v{c+k}, v{H+k}" for k in range(4)]
            L+=[f"v_cvt_pk_bf16_f32 v{c+k}, v{c+k}, v{H+k}" for k in range(4)]
            return L
        for T in range(4):
            for s in range(4): a(mfma16(GA+4*T,XF+16*T+4*s,WF+4*s,None if s==0 else GA+4*T))
        a("s_waitcnt lgkmcnt(0)")
        fl=cv(0,0,0)+cv(0,1,0)
        for T in range(4):
            for s in range(4):
                a(mfma16(GA+16+4*T,XF+16*T+4*s,WF+16+4*s,None if s==0 else GA+16+4*T))
                for _ in range(2): a(fl.pop(0))
        if PFI==0: mid()
        for x in fl+cv(0,2,1)+cv(1,0,1)+cv(1,1,1)+cv(1,2,1): a(x)
        if PFI==1: mid()
        gwait(lab+"w",mSL,4,VZ,1)
        for i in range(2):
            for T in range(3):
                c=GA+16*i+4*T
                a(f"ds_write2st64_b32 v{120+2*i}, v{c}, v{c+2} offset0:{8*T} offset1:{8*T+1}\nds_write2st64_b32 v{121+2*i}, v{c+1}, v{c+3} offset0:{8*T} offset1:{8*T+1}")
        a("s_mov_b64 exec, 0xffff")
        for i in range(2):
            c=GA+16*i+12
            a(f"""
v_mul_f32 v{c}, s{sL2E}, v{c}
v_and_b32 v{H}, 0xffff0000, v{c}
v_maximum3_f32 v{MX}, v{MX}, abs(v{c}), abs(v{c})
v_sub_f32 v{c}, v{c}, v{H}
v_cvt_pk_bf16_f32 v{c}, v{c}, v{H}
ds_write2st64_b32 v{120+2*i}, v{c}, v{c+2} offset0:24 offset1:25
ds_write2st64_b32 v{121+2*i}, v{c+1}, v{c+3} offset0:24 offset1:25
""")
        a(f"""
s_mov_b64 exec, -1
v_cmp_nge_f32 vcc, 0x40e80000, v{MX}
s_cbranch_vccz {lab}q
ds_write_b32 v{VZ}, v{FA} offset:{mSLOW}
{lab}q:
""")
        pt('qd')
    def ranges():
        a(f"""
s_lshr_b32 s{sCNT}, s{sNT}, 3
s_mul_i32 s{sT0}, s{sCNT}, s{sWV}
s_and_b32 s{t2}, s{sNT}, 7
s_min_u32 s{t3}, s{t2}, s{sWV}
s_add_u32 s{sT0}, s{sT0}, s{t3}
s_cmp_lt_u32 s{sWV}, s{t2}
s_addc_u32 s{sCNT}, s{sCNT}, 0
s_lshl_b32 s{t0}, s{sT0}, 7
s_lshl_b32 s{t2}, s{sT0}, 4
v_add_u32 v{SB}, s{t2}, v{SB}
v_add_u32 v{RB}, s{t2}, v{RB}
v_sub_u32 v{SA}, v{SA}, v{OHC}
v_add_u32 v{SA}, s{t2}, v{SA}
v_lshl_add_u32 v1, v{VL}, 4, s{t2}
""")
    def arrive(off,vt): a(f"v_mov_b32 v{vt}, 1\ns_mov_b64 exec, 1\nds_add_u32 v{VZ}, v{vt} offset:{off}\ns_mov_b64 exec, -1")

    a(f"""
{name}:
s_cmp_ge_u32 s2, 256
s_cbranch_scc1 KF_END
s_load_dwordx16 s[4:19], s[0:1], 0
s_load_dwordx2 s[20:21], s[0:1], 64
v_lshrrev_b32 v1, 6, v0
v_and_b32 v{VL}, 63, v0
v_mov_b32 v{VZ}, 0
v_readfirstlane_b32 s{sWV}, v1
s_and_b32 s{sK}, s2, 7
s_lshl_b32 s{sK}, s{sK}, 5
s_lshr_b32 s{t0}, s2, 3
s_or_b32 s{sK}, s{sK}, s{t0}
s_and_b32 s{sW4}, s{sWV}, 3
s_lshl_b32 s{sW4K}, s{sW4}, 10
s_lshl_b32 s{sBUF}, s{sWV}, 13
s_add_u32 s{sBUF}, s{sBUF}, {GBUF}
s_cmp_ge_u32 s{sWV}, 4
s_cbranch_scc1 KF_T
""")
    D=28; SRc=36; K=44; R=52; W2=60; RO=80
    sD=40; sS=44; sE=48
    Q16="s_mov_b64 exec, 0xffff"; FULL="s_mov_b64 exec, -1"
    a(f"""
s_min_u32 s{t2}, s2, {NPROD-1}
s_mul_i32 s{t2}, s{t2}, {EP*4}
s_mul_i32 s{t3}, s{sWV}, 400
v_add_u32 v108, s{t3}, v{VL}
v_lshlrev_b32 v109, 2, v108
s_waitcnt lgkmcnt(0)
""")
    stamp(a,0,True); stamp(a,1)
    srd(a,sD,10,E*4)
    def ld7(dst,sr):
        for i in range(7):
            if i==6: a(Q16)
            a(f"buffer_load_dword v{dst+i}, v109, {SR4(sr)}, s{t2} offen offset:{i*256}")
        a(FULL)
    ld7(D,sD)
    a(f"s_load_dword s{sNON}, s[20:21], 0")
    srd(a,sS,8,E*4); srd(a,sE,6,E*8)
    a("s_barrier")
    ld7(SRc,sS)
    a(f"""
s_lshl_b32 s{sLB}, s{t3}, 3
s_lshl_b32 s{t2}, s{t2}, 1
s_add_u32 s{t2}, s{t2}, s{sLB}
s_add_u32 m0, s{sLB}, {ERAW}
v_lshlrev_b32 v113, 4, v{VL}
s_add_u32 s{sLB}, s{sLB}, {S1}
""")
    for j in range(4):
        if j==3: a("s_mov_b64 exec, 0xff")
        a(f"buffer_load_dwordx4 v113, {SR4(sE)}, s{t2} offen offset:{1024*j} lds")
    a(FULL)
    consts()
    a(f"""
v_mov_b32 v111, 8
v_lshlrev_b32 v112, 3, v108
v_lshlrev_b32 v110, 4, v108
""")
    for i in range(7): a(f"v_add_u32 v{W2+1+2*i}, {i*512}, v112")
    a(f"s_cmp_ge_u32 s2, {NPROD}\ns_cbranch_scc1 KS_d\ns_waitcnt vmcnt(11)")
    pt('dst')
    for i in range(7):
        if i==6: a(Q16)
        a(f"v_lshlrev_b32_sdwa v{K+i}, 2, v{D+i} dst_sel:DWORD dst_unused:UNUSED_PAD src0_sel:DWORD src1_sel:BYTE_0\nds_add_rtn_u32 v{R+i}, v{K+i}, v111 offset:{HIST}")
    a(FULL+"\nKS_d:")
    gsync('b1',"KS_y1",mS,4,VZ,2)
    a(f"ds_read_b128 v[116:119], v113 offset:{HIST}")
    tagh()
    for i in range(7): a(f"v_lshrrev_b32 v{D+i}, 8, v{D+i}")
    a(f"""
v_mov_b32 v1, s{sNON}
s_waitcnt lgkmcnt(0)
v_add_u32 v2, v116, v117
v_add3_u32 v2, v2, v118, v119
v_mov_b32 v3, v2
""")
    dpp_scan(a,"v_add_u32",[3])
    a(f"""
v_sub_u32 v120, v3, v2
v_add_u32 v121, v120, v116
v_add_u32 v122, v121, v117
v_add_u32 v123, v122, v118
ds_write_b128 v113, v[120:123] offset:{HIST+1024}
""")
    for i in range(7):
        if i==6: a(Q16)
        a(f"ds_read_b32 v{K+i}, v{K+i} offset:{HIST+1024}")
    a(FULL)
    def tpub():
        for j in range(4): a(f"v_lshlrev_b32 v2, 1, v{120+j}\nv_lshl_or_b32 v{QA+2*j}, v{116+j}, 13, v2\nv_mov_b32 v{QA+2*j+1}, v1")
        a(f"""
s_lshl_b32 s{t2}, s2, 11
s_add_u32 s{t2}, s{t2}, {F_TBL}
s_lshl_b32 s{t3}, s{sWV}, 4
s_lshl_b64 exec, 0xffff, s{t3}
buffer_store_dwordx4 {P4(QA)}, v113, {SR4(sR)}, s{t2} offen{SC}
buffer_store_dwordx4 {P4(QA+4)}, v113, {SR4(sR)}, s{t2} offen offset:1024{SC}
s_mov_b64 exec, -1
""")
    if TE==0: tpub()
    a(f"s_cmp_ge_u32 s2, {NPROD}\ns_cbranch_scc1 KS_e\ns_waitcnt vmcnt({6 if TE==0 else 4})")
    if X&64:
        for i in range(7): a(f"v_and_b32 v{SRc+i}, 0x1ff, v{SRc+i}")
    for i in range(7): a(f"v_lshl_or_b32 v{W2+2*i}, v{D+i}, 19, v{SRc+i}")
    a(f"s_waitcnt lgkmcnt(0)")
    for i in range(7):
        if i==6: a(Q16)
        a(f"v_add_u32 v{K+i}, v{K+i}, v{R+i}\nds_write_b64 v{K+i}, {P2(W2+2*i)} offset:{S1}")
    a(FULL+"\nKS_e:")
    pt('sc1')
    if TE==1: tpub()
    a(f"""
v_lshlrev_b32 v114, 11, v0
s_lshr_b32 s{sLO}, s{sK}, 2
s_lshl_b32 s{sLO}, s{sLO}, 4
s_and_b32 s{t0}, s{sK}, 1
s_lshl_b32 s{t0}, s{t0}, 3
s_add_u32 s{sLO}, s{sLO}, s{t0}
s_and_b32 s{t0}, s{sK}, 2
s_lshl_b32 s{t0}, s{t0}, 9
s_add_u32 s{sLO}, s{sLO}, s{t0}
s_add_u32 s{sLO}, s{sLO}, {F_TBL}
v_cmp_gt_u32 vcc, {NPROD}, v0
v_mov_b32 v{TC}, 0
s_mul_i32 s{t0}, s2, {EP*16}
s_add_u32 s{t0}, s{t0}, {F_REC}
s_add_u32 s{t2}, s{t0}, 4096
v_mul_u32_u24 v115, {EP*16}, v0
v_add_u32 v115, {F_REC}, v115
""")
    gsync('bS',"KS_y2",mS,8,VZ,2,"s_waitcnt vmcnt(2)")
    tl=f"s_mov_b64 exec, vcc\nbuffer_load_dwordx2 {P2(TC)}, v114, {SR4(sR)}, s{sLO} offen{SC}\ns_mov_b64 exec, -1"
    a(f"""
s_cmp_ge_u32 s2, {NPROD}
s_cbranch_scc0 KS_h0
""")
    gwait("KS_h1",mPD,4,VZ,2)
    a(f"""
{tl}
s_waitcnt vmcnt(0)
s_branch KS_j
KS_h0:
""")
    order=[6,0,1,2,3,4,5]
    if SWW: gwait("KS_ww",mW,4,VZ,2)
    for i in order:
        if i==6: a(Q16)
        a(f"ds_read_b64 {P2(RO+2+4*i)}, v112 offset:{S1+i*512}")
        if i==6: a(FULL)
    for i in order:
        if i==6: a(Q16)
        a(f"s_waitcnt lgkmcnt(6)\nds_read_b64 {P2(RO+4*i)}, v{RO+3+4*i} offset:{ERAW}")
        if i==6: a(FULL)
    for k,i in enumerate(order):
        if k-1==TPOS: a(tl)
        if i==6: a(Q16)
        a(f"s_waitcnt lgkmcnt({6-k})\nv_mov_b32 v{RO+3+4*i}, v1\nbuffer_store_dwordx4 {P4(RO+4*i)}, v110, {SR4(sR)}, s{t0 if i<4 else t2} offen offset:{1024*(i&3)}{SC}")
        if i==6: a(FULL)
    if TPOS==6: a(tl)
    pt('out')
    a(f"""
s_waitcnt vmcnt({6-TPOS})
KS_j:
s_mov_b64 exec, vcc
KT_f:
v_cmp_ne_u32 vcc, s{sNON}, v{TC+1}
s_cbranch_vccz KT_g
s_mov_b64 exec, vcc
s_sub_u32 s{sBUD}, s{sBUD}, 1
s_cbranch_scc1 KT_f2
buffer_load_dwordx2 {P2(TC)}, v114, {SR4(sR)}, s{sLO} offen{SC}
s_waitcnt vmcnt(0)
s_branch KT_f
KT_f2:
s_mov_b32 s{sBUD}, 0
v_mov_b32 v{TC}, 0
KT_g:
s_mov_b64 exec, -1
""")
    pt('tp')
    a(f"""
v_lshrrev_b32 v{TO}, 16, v{TC}
v_add_u32_sdwa v{TD}, v115, v{TC} dst_sel:DWORD dst_unused:UNUSED_PAD src0_sel:DWORD src1_sel:WORD_0
v_mov_b32 v{TC}, v{TO}
""")
    dpp_scan(a,"v_add_u32",[TO])
    a(f"""
v_readlane_b32 s{sTOT}, v{TO}, 63
v_sub_u32 v{TO}, v{TO}, v{TC}
s_mov_b32 s{sLO}, 0
s_movk_i32 s{t3}, 512
v_lshlrev_b32 v1, 4, v{TO}
v_sub_u32 v{TD}, v{TD}, v1
""")
    expand("KT_x")
    a(f"s_mov_b32 s{t1}, s{sTOT}")
    reclist(8)
    arrive(mSL,1)
    for i in range(8): a(f"v_mov_b32 v{RC+4*i}, 0\nv_mov_b32 v{RC+4*i+1}, 0")
    pt('exp')
    gwait("KS_xw",mGX,4,VZ,1)
    a(f"ds_read_b32 v{YA}, v{VZ} offset:{mC3}")
    xfrags([0,1,2]); a("s_waitcnt lgkmcnt(4)"); xfrags([3]); w3rd()
    gwait("KS_rw",mPD,4,VZ,1)
    a("s_waitcnt vmcnt(0)")
    recload(8,"KT_l")
    pt('rl')
    if PFP:
        a(f"""
s_lshr_b32 s{t1}, s2, 3
s_mul_i32 s{t1}, s{t1}, 391
v_lshrrev_b32 v2, 1, v0
v_add_u32 v2, s{t1}, v2
v_and_b32 v3, 1, v0
v_lshlrev_b32 v3, 7, v3
buffer_load_dword v{QA+15}, v[2:3], {SR4(sP)}, 0 idxen offen offset:3072{SC}
""")
    gwait("KS_w2",mPI,4,VZ,1)
    tru(WU1,32768)
    a("s_waitcnt lgkmcnt(0)")
    ugemm()
    pt('ud')
    hist(8,"KT_h",1 if PFP else 0,True)
    pt('hs')
    gwait("KS_b2",mH,16,VZ,1)
    pt('b2')
    scan(False)
    a(f"""
v_cmp_lt_u32 vcc, 0x100, v{QA}
s_add_u32 s{sNT}, s{t0}, 127
s_lshr_b32 s{sNT}, s{sNT}, 7
s_cmp_gt_u32 s{sNT}, {CAPT}
s_cbranch_scc1 KT_j
s_cbranch_vccnz KT_j
""")
    fill("KFz",False,4)
    a(f"v_mov_b32 v1, s{sNT}\nds_write_b32 v{VZ}, v1 offset:{mNT}")
    pt('fil')
    a(f"v_pk_maximum3_f16 v1, v{RC}, v{RC+1}, v{RC+1}\nv_pk_minimum3_f16 v2, v{RC}, v{RC+1}, v{RC+1}")
    for i in range(1,8): a(f"v_pk_maximum3_f16 v1, v1, v{RC+4*i}, v{RC+4*i+1}\nv_pk_minimum3_f16 v2, v2, v{RC+4*i}, v{RC+4*i+1}")
    absmax_fin(a,1,2,3)
    a(f"""
v_mul_f32 v1, v1, v{YA}
s_cmp_gt_u32 s{sTOT}, 512
v_cmp_nge_f32 vcc, 0x41680000, v1       ; !(14.5 >= e*c3)
s_cbranch_scc1 KT_j
s_cbranch_vccz KT_k
KT_j:
ds_write_b32 v{VZ}, v{FA} offset:{mSLOW}
KT_k:
s_mov_b32 s{sWU}, -1
""")
    ranges()
    srd(a,sA,14,256*256)
    if PRIO: a("s_setprio 3")
    bar('b3')
    a("s_branch KF_J")
    a(f"""
KF_T:
v_and_b32 v108, 255, v0
v_lshlrev_b32 v109, 2, v108
v_mov_b32 v32, 0
v_mov_b32 v33, 0
v_mov_b32 v34, 0
v_mov_b32 v35, 0
ds_write_b32 v109, v32 offset:{HIST}
v_lshlrev_b32 v2, 2, v{VL}
v_lshlrev_b32 v3, 8, v{VL}
ds_write2st64_b32 v2, v3, v32 offset0:0 offset1:1
v_lshlrev_b32 v110, 4, v108
v_lshrrev_b32 v1, 4, v108
v_xor_b32 v37, v1, v0
v_and_b32 v37, 15, v37
v_lshlrev_b32 v37, 4, v37
v_lshl_add_u32 v36, v1, 8, s{sK}
s_waitcnt lgkmcnt(0)
""")
    stamp(a,0,True); stamp(a,1)
    sG=40
    srd(a,sX,4,N,stride=256)
    def xld():
        for j in range(4):
            if j==3: a(f"s_cmp_eq_u32 s{sWV}, 4\ns_cbranch_scc0 KT_c")
            a(f"s_add_u32 m0, s{sW4K}, {AGB+j*4096}\ns_nop 0\nbuffer_load_dwordx4 v[36:37], {SR4(sX)}, 0 idxen offen lds\nv_add_u32 v36, 4096, v36")
        a("KT_c:")
    def warm():
        srd(a,sG,14,256*256)
        a(f"""
s_lshr_b32 s{t0}, s2, 3
s_lshl_b32 s{t0}, s{t0}, 11
s_lshl_b32 s{t1}, s{sW4}, 9
s_add_u32 s{t0}, s{t0}, s{t1}
v_lshlrev_b32 v2, 7, v{VL}
s_mov_b64 exec, 15
buffer_load_dword v111, v2, {SR4(sG)}, s{t0} offen
buffer_load_dword v111, v2, {SR4(sA)}, s{t0} offen
s_mov_b64 exec, -1
v_and_b32 v1, 31, v{VL}
v_lshlrev_b32 v1, 1, v1
s_lshl_b32 s{t0}, s{sW4}, 6
s_add_u32 s{t0}, s{t0}, 65536
""")
        for k in range(4): a(f"buffer_load_ushort v{124+k}, v1, {SR4(sA)}, s{t0} offen offset:{k*256}")
    def zer():
        a(f"v_cmp_le_u32 vcc, 32, v108\ns_mov_b64 exec, vcc\nds_write_b128 v110, v[32:35]\ns_mov_b64 exec, -1")
        for j in range(1,4): a(f"ds_write_b128 v110, v[32:35] offset:{j*4096}")
        a(f"""
s_cmp_eq_u32 s{sWV}, 4
s_cbranch_scc0 KT_b
ds_write_b128 v110, v[32:35] offset:16384
KT_b:
""")
    a(f"s_load_dword s{sNON}, s[20:21], 0")
    a("s_barrier"); srd(a,sA,12,260*256); warm(); vyc()
    if XORD==1: xld()
    zer()
    consts()
    a(f"""
v_lshrrev_b32 v2, 3, v{VL}
v_and_b32 v2, 2, v2
v_xor_b32 v2, v2, v3
v_lshl_add_u32 v{TD}, v2, 4, v{DR}
s_lshl_b32 s{t0}, s{sW4}, 2
v_lshrrev_b32 v2, 4, v{VL}
v_or_b32 v1, s{t0}, v2                  ; 4u+g
v_xor_b32 v3, v1, v{WT}
v_lshlrev_b32 v3, 4, v3
v_lshl_add_u32 v116, v{WT}, 8, v3
v_add_u32 v116, {PSC}, v116
v_add_u32 v117, {PSC}, v110
v_lshl_add_u32 v118, v1, 16, v3
""")
    if XORD==2:
        gwait("KG_x",mS,4,VZ,1); xld()
    sdma(sA,0)
    sdma(sA,32768,-32768)
    arrive(mW,1)
    pt('w1i')
    def w3m():
        w=[124,125,126,127]; u=QA
        for k in range(4): a(f"v_lshlrev_b32 v{w[k]}, 16, v{w[k]}\nv_mul_f32 v{w[k]}, s{sL2E}, v{w[k]}")
        a(f"""
v_cvt_pk_bf16_f32 v{u}, v124, v125
v_cvt_pk_bf16_f32 v{u+1}, v126, v127
v_lshlrev_b32 v{u+2}, 16, v{u}
v_and_b32 v{u+3}, 0xffff0000, v{u}
v_lshlrev_b32 v{u+4}, 16, v{u+1}
v_and_b32 v{u+5}, 0xffff0000, v{u+1}
v_add_f32 v{u+6}, abs(v124), abs(v125)
v_sub_f32 v{u+2}, v124, v{u+2}
v_sub_f32 v{u+3}, v125, v{u+3}
v_sub_f32 v{u+4}, v126, v{u+4}
v_sub_f32 v{u+5}, v127, v{u+5}
v_add_f32 v{u+7}, abs(v126), abs(v127)
s_mov_b32 exec_lo, 0
v_cvt_pk_bf16_f32 v{u}, v{u+2}, v{u+3}
v_cvt_pk_bf16_f32 v{u+1}, v{u+4}, v{u+5}
s_mov_b32 exec_lo, -1
v_add_f32 v{u+6}, v{u+6}, v{u+7}
v_lshlrev_b32 v1, 3, v108
v_and_b32 v{u+6}, 0x7fffffff, v{u+6}
ds_write_b64 v1, {P2(u)} offset:{W3L}
""")
        dpp_scan(a,"v_max_u32",[u+6])
        a(f"""
s_mov_b32 exec_lo, 0
s_brev_b32 exec_hi, 1
ds_max_u32 v{VZ}, v{u+6} offset:{mC3}
s_mov_b64 exec, -1
""")
    e2=8
    a(f"s_waitcnt vmcnt({11+e2})"); w3m()
    tagh()
    a(f"v_mov_b32 v1, {hex(ONE2)}\nds_write2_b32 v{VZ}, v1, v1 offset0:{OH//4} offset1:{OH//4+5}")
    gsync('bX',"KG_y1",mGX,4,VZ,2,f"s_waitcnt vmcnt({8+e2})")
    if GP_: a(f"s_setprio {GP_}")
    xfrags([0])
    a(f"s_waitcnt vmcnt({e2})")
    pt('xl')
    trfrag(WF,TD,32768,2048,256)
    a("s_waitcnt lgkmcnt(7)")
    trfrag(WF+16,TD,32768+8,2048,256)
    def pm(T,i):
        for s in range(4): a(mfma16(GA+8*T+4*i,WF+16*i+4*s,XF+16*T+4*s,None if s==0 else GA+8*T+4*i))
    def pcv(T):
        c=GA+8*T
        L=[f"v_mul_f32 v{c+j}, s{sL2E}, v{c+j}" for j in range(8)]
        L+=[f"v_cvt_pk_bf16_f32 v{c+j}, v{c+2*j}, v{c+2*j+1}" for j in range(4)]
        L+=[f"ds_write_b128 v116, {P4(c)} offset:{T*4096}"]
        return L
    def pmi(T,fillers):
        for i in range(2):
            for s in range(4):
                a(mfma16(GA+8*T+4*i,WF+16*i+4*s,XF+16*T+4*s,None if s==0 else GA+8*T+4*i))
                for _ in range(2):
                    if fillers: a(fillers.pop(0))
    a("s_waitcnt lgkmcnt(8)"); xfrags([1]); pm(0,0)
    a("s_waitcnt lgkmcnt(4)"); xfrags([2,3]); pm(0,1)
    a("s_waitcnt lgkmcnt(8)"); pm(1,0); pm(1,1)
    a("s_waitcnt lgkmcnt(0)"); pmi(2,pcv(0)); pmi(3,pcv(1))
    a(f"s_lshl_b32 s{t2}, s{sK}, 8\ns_nop 2")
    for T in (2,3):
        for x in pcv(T): a(x)
    gsync('pg',"KG_y2",mGP,4,VZ,2)
    for T in range(4): a(f"ds_read_b128 {P4(PO+4*T)}, v117 offset:{T*4096}")
    a("s_waitcnt vmcnt(0)")
    for T in range(3):
        a(f"s_add_u32 s{t1}, s{t2}, {F_P+T*16*65536}\ns_waitcnt lgkmcnt({3-T})")
        a(f"buffer_store_dwordx4 {P4(PO+4*T)}, v118, {SR4(sR)}, s{t1} offen{SC}")
    a(f"""
s_cmp_eq_u32 s{sWV}, 4
s_cbranch_scc0 KG_p
s_add_u32 s{t1}, s{t2}, {F_P+3*16*65536}
s_waitcnt lgkmcnt(0)
s_mov_b64 exec, 0xffff
buffer_store_dwordx4 {P4(PO+12)}, v118, {SR4(sR)}, s{t1} offen{SC}
s_mov_b64 exec, -1
KG_p:
""")
    pt('pst')
    if GP_: a("s_setprio 0")
    srd(a,sA,14,256*256)
    w3rd()
    for T in range(4):
        c=GA+8*T
        if T==3: a("s_mov_b32 exec_lo, 0x10001\ns_mov_b32 exec_hi, 0x10001")
        if T==0: a(f"v_pk_maximum3_f16 v114, v{c}, v{c+1}, v{c+2}\nv_pk_minimum3_f16 v115, v{c}, v{c+1}, v{c+2}\nv_pk_maximum3_f16 v114, v114, v{c+3}, v{c+3}\nv_pk_minimum3_f16 v115, v115, v{c+3}, v{c+3}")
        else: a(f"v_pk_maximum3_f16 v114, v114, v{c}, v{c+1}\nv_pk_minimum3_f16 v115, v115, v{c}, v{c+1}\nv_pk_maximum3_f16 v114, v114, v{c+2}, v{c+3}\nv_pk_minimum3_f16 v115, v115, v{c+2}, v{c+3}")
    a("s_mov_b64 exec, -1")
    absmax_fin(a,114,115,2)
    a(f"""
v_cmp_lt_u32 vcc, 0x40e80000, v114
v_mov_b32 v{TD}, v{VY}
s_cmp_lg_u64 vcc, 0
s_cselect_b32 s{sFLAG}, 0x101, 1
""")
    def pflag(n):
        a(f"""
s_lshl_b32 s{t2}, s2, 4
s_add_u32 s{t2}, s{t2}, {F_FLG}
v_mov_b32 v1, s{sFLAG}
s_waitcnt vmcnt({n})
s_mov_b64 exec, 1
ds_add_rtn_u32 v1, v{VZ}, v1 offset:{mPD}
s_waitcnt lgkmcnt(0)
v_readfirstlane_b32 s{t1}, v1
s_add_u32 s{t1}, s{t1}, s{sFLAG}
s_and_b32 s{t0}, s{t1}, 255
s_cmp_eq_u32 s{t0}, 4
s_cbranch_scc0 KG_f
s_cmp_gt_u32 s{t1}, 255
s_cselect_b32 s{t0}, 2, 0
s_xor_b32 s{t0}, s{sNON}, s{t0}
v_mov_b32 v1, s{t0}
buffer_store_dword v1, v{VZ}, {SR4(sR)}, s{t2} offen{SC}
s_waitcnt vmcnt(1)
s_branch KG_f2
KG_f:
s_waitcnt vmcnt(0)
KG_f2:
s_mov_b64 exec, -1
""")
        pt('pfl')
    def mid():
        sdma(sA,0); pflag(8); arrive(mPI,1)
    qfull("KGq",mid)
    tru(WU1,32768)
    if FLP==1: gwait("KG_b2",mH,16,VZ,1)
    a(f"""
s_mov_b32 s{sLO}, {F_FLG}
buffer_load_dword v116, v110, {SR4(sR)}, s{sLO} offen{SC}
s_waitcnt lgkmcnt(0)
""")
    ugemm()
    a(f"""
s_mov_b32 s{sWU}, 1
s_or_b32 s{t1}, s{sNON}, 2
KS_m:
s_waitcnt vmcnt(0)
v_or_b32 v2, 2, v116
v_cmp_ne_u32 vcc, s{t1}, v2
s_cbranch_vccz KS_n
s_sub_u32 s{sBUD}, s{sBUD}, 1
s_cbranch_scc1 KS_n
s_sleep {FSL}
s_mov_b64 exec, vcc
buffer_load_dword v116, v110, {SR4(sR)}, s{sLO} offen{SC}
s_mov_b64 exec, -1
s_branch KS_m
KS_n:
v_cmp_ne_u32 vcc, s{sNON}, v116
s_cbranch_vccz KS_o
ds_write_b32 v{VZ}, v{FA} offset:{mSLOW}
KS_o:
""")
    pt('flg')
    if PRIO: a("s_setprio 3")
    bar('b3')
    a(f"ds_read_b32 v1, v{VZ} offset:{mNT}\ns_waitcnt lgkmcnt(0)\nv_readfirstlane_b32 s{sNT}, v1")
    ranges()
    a("KF_J:")
    def rd_ga(off): a(f"ds_read_u16 v{GA0}, v{SB} offset:{GL+off}\nds_read_u16 v{GA0+1}, v{SB} offset:{GL+off+8}")
    def rd_gg(off): a(f"ds_read_u16 v{YA}, v{RB} offset:{GL+off}")
    def rd_y(): a(f"v_lshl_add_u32 v{EA}, v{YA}, 1, v{EC}\nv_add_u32 v{YA}, v{YA}, v{M4}\nds_read_u16 v{VY}, v{YA} offset:{WB+2}")
    def rd_idx():
        for i in range(8): a(f"ds_read_u16 v{IDX+2*i}, v{GA0+(i>>2)} offset:{WB+4*(i&3)}")
    def dma1(i):
        L=[]
        if i==0: L.append(f"s_mov_b32 m0, s{sBUF}\ns_nop 0")
        if i==4: L.append(f"s_add_u32 m0, s{sBUF}, 4096\ns_nop 0")
        L.append(f"buffer_load_dwordx4 {P2(IDX+2*i)}, {SR4(sP)}, 0 idxen offen offset:{1024*(i&3)}{GSC} lds")
        return "\n".join(L)
    def dma():
        for i in range(8): a(dma1(i))
    def rd_b3(q): return f"ds_read_addtid_b32 v{B3+4*q} offset:{Q2+q*QS}\nds_read_addtid_b32 v{B3+4*q+1} offset:{Q2+q*QS+256}"
    def rd_a3(): return f"ds_read_b64 {P2(A3)}, v{VY} offset:{OH}\nds_read_b64 {P2(A3+2)}, v{EA}"
    def rd_a(t): return f"ds_read_b128 {P4(A+4*t)}, v{AR+t}"
    rd_s=f"s_mov_b64 exec, {S2(sMA)}\nds_read_b64 {P2(SS)}, v{SA} offset:{STB}\ns_mov_b64 exec, {S2(sMB)}\nds_read_b64 {P2(SS+2)}, v{SA} offset:{STB}\ns_mov_b64 exec, -1"
    rd_ga(0); rd_gg(0)
    a(f"""
ds_read_u16 v{WT}, v1 offset:{GL}
ds_read_b32 v{GP}, v{VZ} offset:{mSLOW}
s_waitcnt lgkmcnt(3)
""")
    rd_idx()
    a("s_waitcnt lgkmcnt(0)")
    dma()
    pt('d0')
    a(f"v_readfirstlane_b32 s{sNF}, v{WT}\nv_readfirstlane_b32 s{t3}, v{GP}")
    rd_y(); rd_ga(16)
    uscale()
    a("s_waitcnt lgkmcnt(0)")
    rd_idx()
    a(f"""
s_cmp_lg_u32 s{t3}, 0
s_cbranch_scc1 KF_SLOW
s_lshr_b32 s{sNF}, s{sNF}, 8
v_subrev_u32 v2, s{sNF}, v{VL}
v_and_b32 v2, 15, v2
v_add_u32 v{DR}, s{sNF}, v2
v_lshlrev_b32 v2, 2, v{DR}
ds_read_b32 v{GP}, v2 offset:{BT}
s_mul_i32 s{sW8}, s{sNF}, -8
s_lshl_b32 m0, s{sNF}, 7
v_add3_u32 v{VY}, v{VY}, v{OHC}, s{sW8}
""")
    for q in range(4): a(rd_b3(q))
    a(rd_a3())
    a(f"""
v_mov_b32 v{SS}, 0
v_mov_b32 v{SS+1}, 0
v_mov_b32 v{SS+2}, 0
v_mov_b32 v{SS+3}, 0
s_add_u32 s{t1}, s{sT0}, s{sCNT}
s_lshl_b32 s{t1}, s{t1}, 7
s_add_u32 s{t2}, s{sWV}, 48
v_mov_b32 v1, s{t2}
{mfma32(ACC+16,SS,SS,None)}
s_waitcnt lgkmcnt(10)
v_cmp_gt_u32 vcc, s{t0}, v{GP}
v_cmp_gt_u32 {S2(t2)}, s{t1}, v{GP}
v_cmp_gt_u32 {S2(t0)}, s{sNN}, v{DR}
v_cndmask_b32 v{DR}, v{DR}, v1, vcc
s_cmp_lg_u64 vcc, 0
s_cselect_b32 s{sHEAD}, 1, 0
s_and_b64 vcc, {S2(t2)}, {S2(t0)}
v_lshrrev_b32 v1, 2, v{VL}
v_cndmask_b32 v{DR}, 63, v{DR}, vcc
v_and_b32 v1, 4, v1
v_xor_b32 v1, v1, v{DR}
v_and_b32 v1, 15, v1
v_lshlrev_b32 v1, 4, v1
v_lshl_add_u32 v{DR}, v{DR}, 8, v1
v_sub_u32 v{DR}, v{DR}, v{OHC}
s_mov_b32 s{sI}, 1
s_sub_u32 s{sCNT}, s{sCNT}, 1
""")
    pt('pre')
    a("s_waitcnt vmcnt(0)")
    pt('g0')
    for t in range(8): a(rd_a(t))
    a("s_waitcnt lgkmcnt(6)")
    a(mfma32(Z[0],A3,B3,None)); a(mfma32(Z[0],A,ID0,Z[0])); a(mfma32(Z[0],A+4,ID1,Z[0]))
    a("s_nop 3\ns_waitcnt lgkmcnt(0)")
    pt('pro')
    def finals(qprev):
        for u in range(2): a(f"v_pk_mul_f32 {P2(NN+2*u)}, {P2(NN+2*u)}, {P2(DD+2*u)}")
        for u in range(2): a(f"v_cvt_pk_bf16_f32 v{GP+2*(qprev&1)+u}, v{NN+2*u}, v{NN+2*u+1}")
    def ex(zc,r): return f"v_exp_f32 v{EE+r}, v{zc+r}"
    def body(first):
        for q in range(4):
            zc=Z[q&1]; zn=Z[(q+1)&1]; qn=(q+1)&3
            ms=[(A3,B3+4*qn),(A+8*qn,ID0),(A+8*qn+4,ID1)]
            if q==3: ms=[ms[1],ms[2],ms[0]]
            pend=[0,1,2,3,8,9,10,11,4,5,12,13,6,7,14,15]
            f0=first and q==0
            if q==0:
                a(f"v_readlane_b32 s{sQ}, v{WT}, s{sI}")
                rd_gg(16); rd_ga(32)
                if first: a("s_nop 1")
            if q==1:
                a("s_waitcnt lgkmcnt(4)"); rd_y(); rd_idx()
            if q==2:
                a("s_waitcnt vmcnt(0)")
                for t in range(6): a(rd_a(t))
            if q==3:
                a(f"s_waitcnt lgkmcnt(0)\ns_cmp_gt_u32 s{sCNT}, 1\ns_cselect_b64 vcc, -1, 0")
            a(mfma32(zn,ms[0][0],ms[0][1],None))
            if not f0:
                for j in range(4): a(f"v_rcp_f32 v{DD+j}, v{DD+j}")
            else:
                for r in range(4): a(ex(zc,pend.pop(0)))
            if q==0:
                a(f"s_lshr_b32 s{sQ}, s{sQ}, 8\ns_lshl_b32 m0, s{sQ}, 7\ns_mul_i32 s{sW8}, s{sQ}, -8")
                a(rd_b3(0)); a(rd_b3(1))
            if q==1:
                if first: a(f"s_lshl_b32 m0, s{sQ}, 7\ns_nop 0")
                a(rd_b3(2))
            if q==2: a(rd_b3(3)); a(rd_a3())
            a(mfma32(zn,ms[1][0],ms[1][1],zn))
            for r in range(4): a(ex(zc,pend.pop(0)))
            a(mfma32(zn,ms[2][0],ms[2][1],zn))
            for r in range(4): a(ex(zc,pend.pop(0)))
            if q&1:
                p=1 if q==1 else 0
                if not (first and q==1):
                    a(mfma32(ACC+16*p,GP,SS,None if first else ACC+16*p))
                    for r in range(4): a(ex(zc,pend.pop(0)))
                if q==1: a(rd_s)
            if q==2: a(rd_a(6)); a(rd_a(7))
            if not f0: finals((q-1)&3)
            seq=[]
            for u in range(2): seq.append(f"v_pk_add_f32 {P2(DD+2*u)}, {P2(EE+8*u)}, 1.0 op_sel_hi:[1,0]")
            for m in range(1,4):
                for u in range(2):
                    src=(zc+8*u) if m==1 else NN+2*u
                    seq.append(f"v_pk_fma_f32 {P2(NN+2*u)}, {P2(src)}, {P2(EE+8*u+2*m)}, {P2(src)}")
                for u in range(2): seq.append(f"v_pk_fma_f32 {P2(NN+2*u)}, {P2(zc+8*u+2*m)}, {P2(DD+2*u)}, {P2(NN+2*u)}")
                for u in range(2): seq.append(f"v_pk_fma_f32 {P2(DD+2*u)}, {P2(DD+2*u)}, {P2(EE+8*u+2*m)}, {P2(DD+2*u)}")
            slots=[0,1,2,3,5,7,9,11] if len(pend)==8 else [1,4,7,10]
            dpos={}
            if (q==3 or f0) and not X&1:
                for i in range(8): dpos.setdefault(DSP[i],[]).append(i)
            for k,x in enumerate(seq):
                if k in dpos:
                    guard=(q==3 and not first)
                    lab=f"KF_l{k}"
                    if guard: a(f"s_cbranch_vccz {lab}")
                    for i in dpos[k]: a(dma1(i))
                    if guard:
                        if k==max(dpos):
                            a(f"s_branch {lab}b\n{lab}:\ns_cmp_eq_u32 s{sCNT}, s{sWU}\ns_cbranch_scc0 {lab}b")
                            sdma(sA,32768,0,TD)
                            a(f"{lab}b:")
                        else: a(f"{lab}:")
                a(x)
                if k in slots: a(ex(zc,pend.pop(0)))
            if q==1: a(f"s_waitcnt lgkmcnt(4)\nv_add3_u32 v{VY}, v{VY}, v{OHC}, s{sW8}\nv_add_u32 v{SA}, 16, v{SA}")
            if q==2: a(f"v_pk_add_f32 {P2(RB)}, {P2(RB)}, {S2(sINC)}")
    body(True)
    a("s_branch KF_LE\n.p2align 6\nKF_LOOP:")
    body(False)
    a("KF_LE:")
    if PRIO:
        for rem,pr in ((5,2),(3,1),(1,0)):
            a(f"s_cmp_eq_u32 s{sCNT}, {rem}\ns_cbranch_scc0 KF_pr{rem}\ns_setprio {pr}\nKF_pr{rem}:")
    a(f"""
s_add_u32 s{sI}, s{sI}, 1
s_sub_u32 s{sCNT}, s{sCNT}, 1
s_cbranch_scc0 KF_LOOP
""")
    for j in range(4): a(f"v_rcp_f32 v{DD+j}, v{DD+j}")
    a("s_nop 0")
    finals(3)
    a("s_nop 1")
    a(mfma32(ACC+16,GP,SS,ACC+16))
    pt('loop')
    for p in range(2):
        if p==1: a("s_nop 0")
        for j in range(4):
            c=ACC+16*p+4*j
            a(f"v_cvt_pk_bf16_f32 v{c}, v{c}, v{c+1}\nv_cvt_pk_bf16_f32 v{c+1}, v{c+2}, v{c+3}")
            if p or j: a(f"v_xor_b32 v1, {(8*p+j)*16}, v{DR}")
            a(f"ds_write_b64 v{1 if (p or j) else DR}, {P2(c)} offset:{AGB}")
    a(f"""
s_and_b32 s{t1}, s{sNF}, 15
s_lshl_b32 s{t1}, s{t1}, 4
s_lshl_b32 s{t0}, s{sNF}, 8
s_or_b32 s{t0}, s{t0}, s{t1}
s_mul_i32 s{t1}, s{sWV}, 272
s_add_u32 s{t1}, s{t1}, {48*256}
v_lshlrev_b32 v3, 2, v{VL}
v_xor_b32 v1, s{t0}, v3
v_xor_b32 v2, s{t1}, v3
s_cmp_eq_u32 s{sHEAD}, 0
s_waitcnt vmcnt(0) lgkmcnt(0)
s_barrier
s_cbranch_scc1 KF_FIN
ds_read_b32 v4, v1 offset:{AGB}
ds_read_b32 v5, v2 offset:{AGB}
s_waitcnt lgkmcnt(0)
v_lshlrev_b32 v6, 16, v4
v_and_b32 v7, 0xffff0000, v4
v_lshlrev_b32 v8, 16, v5
v_and_b32 v9, 0xffff0000, v5
v_pk_add_f32 v[6:7], v[6:7], v[8:9]
v_cvt_pk_bf16_f32 v6, v6, v7
ds_write_b32 v1, v6 offset:{AGB}
KF_FIN:
""")
    OST=GBUF
    tru(WU2,32768)
    srd(a,sX,16,N*256)
    a(f"""
v_and_b32 v1, 15, v{VL}
s_lshl_b32 s{t0}, s{sOT}, 1
v_lshrrev_b32 v2, 5, v{VL}
v_or_b32 v2, s{t0}, v2
v_xor_b32 v2, v2, v1
v_lshlrev_b32 v2, 4, v2
v_lshl_add_u32 v2, v1, 8, v2
v_lshrrev_b32 v3, 1, v{VL}
v_and_or_b32 v2, v3, 8, v2
v_add_u32 v{AR}, {OST}, v2
v_lshlrev_b32 v{AR+1}, 1, v1
""")
    bar('mrg',"s_waitcnt vmcnt(0) lgkmcnt(0)")
    for T in range(4):
        xfrags([T])
        if T==2:
            a("s_waitcnt lgkmcnt(8)")
            for s in range(4): a(mfma16(UA,WU2+4*s,XF+4*s,UA))
    def silu(T):
        c=UA+4*T; e=EE+4*T
        L=[f"v_exp_f32 v{e+i}, v{c+i}" for i in range(4)]
        L+=[f"v_fma_f32 v{e+i}, v{e+i}, s{sL2E}, s{sL2E}" for i in range(4)]
        L+=[f"v_rcp_f32 v{e+i}, v{e+i}" for i in range(4)]
        L+=[f"v_mul_f32 v{e+i}, v{e+i}, v{c+i}" for i in range(4)]
        L+=[f"v_cvt_pk_bf16_f32 v{e}, v{e}, v{e+1}",f"v_cvt_pk_bf16_f32 v{e+1}, v{e+2}, v{e+3}",f"ds_write_b64 v{AR}, {P2(e)} offset:{T*4096}"]
        return L
    for T in range(1,4):
        a(f"s_waitcnt lgkmcnt({4*(3-T)})")
        for s in range(4):
            x,y=(WU2+4*s,XF+16*T+4*s) if T<3 else (XF+16*T+4*s,WU2+4*s)
            a(mfma16(UA+4*T,x,y,UA+4*T))
    for T in range(3):
        for x in silu(T): a(x)
    c=UA+12; e=EE+12
    a(f"""
v_exp_f32 v{e}, v{c}
s_add_u32 s{t0}, s{sK}, {48*256}
v_fma_f32 v{e}, v{e}, s{sL2E}, s{sL2E}
v_rcp_f32 v{e}, v{e}
s_lshl_b32 s{t0}, s{t0}, 8
v_mul_f32 v{e}, v{e}, v{c}
s_lshl_b32 s{t1}, s{sOT}, 5
s_add_u32 s{t0}, s{t0}, s{t1}
v_cvt_pk_bf16_f32 v{e}, v{e}, v{e}
s_mov_b32 exec_lo, 0xffff
s_mov_b32 exec_hi, 0
buffer_store_short v{e}, v{AR+1}, {SR4(sX)}, s{t0} offen
s_mov_b64 exec, -1
v_lshlrev_b32 v1, 4, v0
v_add_u32 v1, {OST}, v1
v_lshrrev_b32 v2, 4, v0
v_xor_b32 v3, v2, v0
v_and_b32 v3, 15, v3
v_lshlrev_b32 v3, 4, v3
v_lshl_add_u32 v3, v2, 16, v3
s_lshl_b32 s{t0}, s{sK}, 8
s_add_u32 s{t1}, s{t0}, {32*65536}
s_waitcnt lgkmcnt(0)
s_barrier
ds_read_b128 {P4(A)}, v1
s_cmp_lt_u32 s{sWV}, 4
s_cbranch_scc0 KF_e1
ds_read_b128 {P4(A+4)}, v1 offset:8192
s_waitcnt lgkmcnt(0)
buffer_store_dwordx4 {P4(A+4)}, v3, {SR4(sX)}, s{t1} offen
KF_e1:
s_waitcnt lgkmcnt(0)
buffer_store_dwordx4 {P4(A)}, v3, {SR4(sX)}, s{t0} offen
""")
    a(f"""
s_or_b32 s{t0}, s2, s{sWV}
s_cbranch_scc1 KF_e2
v_mov_b32 v1, s{sNON}
v_mov_b32 v2, 0
s_mov_b64 exec, 1
buffer_store_dword v1, v2, {SR4(sR)}, 0 offen
KF_e2:
""")
    if PROF: a("s_waitcnt vmcnt(0)")
    stamp(a,10); stamp(a,11,True)
    stamp_out(a,1,sWV)
    a("KF_END:\ns_endpgm")
    hist_retry(8,"KT_h")
    SV=ACC; AGs=SV+8; RS_=SV+16
    a(f"""
KF_SLOW:
s_setprio 0
s_cmp_ge_u32 s{sWV}, 4
s_cselect_b32 s{sTOT}, 0, s{sTOT}
v_mov_b32 v1, s{sTOT}
ds_max_u32 v{VZ}, v1 offset:{mMX}
v_mov_b32 v{SS}, 0
v_mov_b32 v{SS+1}, 0
v_mov_b32 v{SS+2}, 0
v_mov_b32 v{SS+3}, 0
s_mov_b32 s{sLO}, 0
s_mov_b32 s{sLB}, s{sBUF}
s_sub_u32 s{t0}, s{sWV}, s{sT0}
s_lshl_b32 s{t0}, s{t0}, 4
v_add_u32 v{SV+4}, s{t0}, v{RB}
v_add_u32 v{SV+5}, s{t0}, v{SB}
s_lshl_b32 s{t0}, s{sWV}, 4
v_sub_u32 v{SV+6}, s{t0}, v{OHC}
v_and_b32 v{SV+7}, 31, v{VL}
v_lshlrev_b32 v{SV+7}, 2, v{SV+7}
v_lshlrev_b32 v1, 4, v0
""")
    for j in range(3): a(f"ds_write_b128 v1, {P4(SS)} offset:{AGG+j*8192}")
    a(f"""
v_lshlrev_b32 v1, 4, v{VL}
ds_write_b128 v1, {P4(SS)} offset:{AGG+3*8192}
s_waitcnt vmcnt(0) lgkmcnt(0)
s_barrier
ds_read_b32 v1, v{VZ} offset:{mMX}
s_waitcnt lgkmcnt(0)
v_readfirstlane_b32 s{sRND}, v1
KF_SR:
s_cmp_lt_u32 s{sLO}, s{sRND}
s_cbranch_scc0 KF_SE
s_barrier
v_lshlrev_b32 v1, 2, v{VL}
v_lshlrev_b32 v2, 8, v{VL}
ds_write_b32 v1, v2
s_waitcnt lgkmcnt(0)
s_barrier
s_cmp_ge_u32 s{sWV}, 4
s_cbranch_scc1 KF_S1
s_movk_i32 s{t3}, 256
""")
    expand("KF_x")
    a(f"s_sub_u32 s{t1}, s{sTOT}, s{sLO}")
    reclist(4)
    recload(4,"KF_rl")
    hist(4,"KF_h",0,False)
    a("s_waitcnt lgkmcnt(0)")
    for i in range(4):
        a(f"""
v_mov_b32 v{RS_+4*i}, v{RC+4*i}
v_mov_b32 v{RS_+4*i+1}, v{RC+4*i+1}
v_mov_b32 v{RS_+4*i+2}, v{RC+4*i+2}
v_lshlrev_b32 v1, 6, v{RC+4*i+3}
v_sub_u32 v1, v{RK+i}, v1
v_cndmask_b32 v{RS_+4*i+3}, -1, v1, {S2(sM+2*i)}
""")
    a(f"""
KF_S1:
s_mov_b32 s{sHEAD}, 0                    ; 256*k
KF_SK:
s_waitcnt lgkmcnt(0)
s_barrier
s_cmp_ge_u32 s{sWV}, 4
s_cbranch_scc1 KF_S2
s_mov_b32 s{t1}, {EB}
""")
    for i in range(4):
        a(f"""
v_subrev_u32 v1, s{sHEAD}, v{RS_+4*i+3}
v_lshrrev_b32 v2, 19, v{RS_+4*i+2}
v_lshl_add_u32 v2, v2, 8, v1
v_lshl_add_u32 v3, v2, 1, s{t1}
v_cmpx_gt_u32 vcc, 0x100, v1
ds_write_b32 v2, v{RS_+4*i+2} offset:{WB}
ds_write_b64 v3, {P2(RS_+4*i)}
s_mov_b64 exec, -1
""")
    a("KF_S2:")
    scan(True)
    a(f"s_cmp_lg_u64 {S2(t2)}, 0\ns_cselect_b32 s{sFLAG}, 1, 0")
    fill("KFs",True,8)
    a(f"""
s_add_u32 s{sNT}, s{t0}, 127
s_lshr_b32 s{sNT}, s{sNT}, 7
s_waitcnt lgkmcnt(0)
s_barrier
v_mov_b32 v{RB}, v{SV+4}
v_mov_b32 v{SB}, v{SV+5}
v_mov_b32 v{SV+12}, v{SV+6}
s_mov_b32 s{sI}, s{sWV}
KF_SL:
s_cmp_lt_u32 s{sI}, s{sNT}
s_cbranch_scc0 KF_SN
""")
    rd_ga(0); rd_gg(0)
    for j in range(4): a(f"ds_read_u16 v{AGs+j}, v{SV+12} offset:{GL+2*j}")
    a("s_waitcnt lgkmcnt(0)")
    rd_y(); rd_idx()
    a("s_waitcnt lgkmcnt(0)")
    dma()
    for j in range(4): a(f"v_lshrrev_b32 v{AGs+j}, 8, v{AGs+j}")
    a(f"""
v_readfirstlane_b32 s{sQ}, v{AGs}
s_nop 3
s_mul_i32 s{sW8}, s{sQ}, -8
s_lshl_b32 m0, s{sQ}, 7
v_add3_u32 v{VY}, v{VY}, v{OHC}, s{sW8}
""")
    for q in range(4): a(rd_b3(q))
    a(rd_a3())
    for j in range(4): a(f"v_lshl_add_u32 v{AGs+j}, v{AGs+j}, 9, v{SV+7}")
    a("s_waitcnt vmcnt(0) lgkmcnt(0)")
    for t in range(8): a(rd_a(t))
    a("s_waitcnt lgkmcnt(0)")
    for q in range(4):
        z=Z[0]
        a(mfma32(z,A3,B3+4*q,None)); a(mfma32(z,A+8*q,ID0,z)); a(mfma32(z,A+8*q+4,ID1,z))
        a("s_nop 15")
        for r in range(16): a(f"v_exp_f32 v{EE+r}, v{z+r}")
        for r in range(16): a(f"v_add_f32 v{EE+r}, 1.0, v{EE+r}")
        for r in range(16): a(f"v_rcp_f32 v{EE+r}, v{EE+r}")
        for m in range(4):
            for u in range(2):
                for par in range(2):
                    r=8*u+2*m+par; g=GP+2*u+par
                    a(f"v_mul_f32 v{g}, v{z+r}, v{EE+r}" if m==0 else f"v_fmac_f32 v{g}, v{z+r}, v{EE+r}")
        for j in range(4): a(f"ds_add_f32 v{AGs+j}, v{GP+j} offset:{AGG+q*128}")
        a("s_waitcnt lgkmcnt(0)")
    a(f"""
v_add_u32 v{SB}, 128, v{SB}
v_add_u32 v{RB}, 128, v{RB}
v_add_u32 v{SV+12}, 128, v{SV+12}
s_add_u32 s{sI}, s{sI}, 8
s_branch KF_SL
KF_SN:
s_add_u32 s{sHEAD}, s{sHEAD}, 256
s_cmp_lg_u32 s{sFLAG}, 0
s_cbranch_scc1 KF_SK
s_add_u32 s{sLO}, s{sLO}, 256
s_branch KF_SR
KF_SE:
s_cmp_ge_u32 s{sWV}, 4
s_cbranch_scc0 KF_SE2
""")
    sdma(sA,32768,0,TD)
    a(f"""
KF_SE2:
v_lshlrev_b32 v1, 4, v0
v_lshrrev_b32 v2, 5, v0
s_waitcnt vmcnt(0) lgkmcnt(0)
s_barrier
""")
    for j in range(4): a(f"ds_read_b128 {P4(A+4*j)}, v1 offset:{AGG+j*8192}")
    a(f"""
v_bfe_u32 v3, v0, 1, 4
v_xor_b32 v3, v3, v2
v_lshlrev_b32 v3, 4, v3
v_lshl_add_u32 v3, v2, 8, v3
v_and_b32 v1, 1, v0
v_lshl_add_u32 v3, v1, 3, v3
s_waitcnt lgkmcnt(0)
s_barrier
""")
    for j in range(4):
        a(f"v_cvt_pk_bf16_f32 v{A+4*j}, v{A+4*j}, v{A+4*j+1}\nv_cvt_pk_bf16_f32 v{A+4*j+1}, v{A+4*j+2}, v{A+4*j+3}")
        a(f"ds_write_b64 v3, {P2(A+4*j)} offset:{AGB+j*4096}")
    a("s_branch KF_FIN")
    hist_retry(4,"KF_h")
    return a.text()

if __name__=='__main__':
    import sys
    nm='standalone__mpnn_edge_mlp__graph_kernel'
    hdr=open('standalone__mpnn_edge_mlp__graph.s.ref').read().split('; Override')[0]
    out=hdr+(f"; @launch kernel={nm} grid=(256,1,1) block=(512,1,1) lds={KF_LDS}\n" if os.environ.get('LISTF') else f"; @launch grid=(256,1,1) block=(512,1,1) lds={KF_LDS}\n")
    out+='.amdgcn_target "amdgcn-amd-amdhsa--gfx950"\n.text\n'
    out+=f".globl {nm}\n.p2align 8\n.type {nm},@function\n"+gen_kf(nm)
    out+='.section .rodata,"a"\n.p2align 6\n'+kd(nm,256)
    open(sys.argv[1],'w').write(out)
```

```python
from common import *
X=int(os.environ.get('X','0'))
PRIO=int(os.environ.get('PRIO','1'))
DSP=[int(c,36) for c in os.environ.get('DSP','00000000')]
def EV(n,d): return int(os.environ.get(n,d))
TPOS=EV('TPOS',6); PFP=EV('PFP',0); XORD=EV('XORD',2); WUI=EV('WUI',2); FLP=EV('FLP',1); FSL=EV('FSL',8); TE=EV('TE',1); W1N=EV('W1N',5); GP_=EV('GP',0); PFI=EV('PFI',1); SWW=EV('SWW',1)
PTS=os.environ.get('PTS','b1,bS,tp,pfl,rl,b2,b3,pro').split(',')
SC=' sc1'
OSC=os.environ.get('OSC','')
GSC=os.environ.get('GSC',' sc1')
NPROD=250; EP=1600
F_P=0x1000; F_REC=0x400000; F_TBL=0xB00000; F_FLG=0xB90000; F_SIZE=0xBA0000
CNT=0; MISC=256; OH=392; GL=928; BT=1872; STB=2144; RS=944
mSLOW=MISC; mS=MISC+4; mGX=MISC+8; mGP=MISC+12; mC3=MISC+16; mPD=MISC+20; mSL=MISC+24; mMX=MISC+28; mPI=MISC+32; mH=MISC+36; mNT=MISC+40; mW=MISC+44
AGB=17408
W3L=AGB+56*256
Q2=AGB+16384; QS=52*128
S1=Q2; ERAW=Q2+12800
WB=Q2+4*QS; NULLG=49*256; EB=WB+NULLG+16
HIST=WB; PSC=WB+2048
GBUF=98304
KF_LDS=GBUF+65536
assert EB+2*NULLG+32<=GBUF and STB+16*RS<=AGB
AGG=STB
ONE2=0x3F803F80
NULLW2=0xFFFF|(512<<16)
CAPT=58
ID0=4; ID1=8; B3=12; A=28; Z=[60,76]; A3=92; EE=96; NN=112; DD=116; GP=120; SS=124
IDX=128; AR=144; RB=152; SB=153; SA=154; VY=155; OHC=156; VL=157; WT=158; DR=159
ACC=160; WU2=192; UA=208; WF=160; WU1=176; QA=224; RC=96; XF=28; GA=192
GA0=232; YA=234; EA=235; M4=236; EC=237; VZ=238; PO=92; TRU=240; TD=241; TC=242; TO=243; RK=244; FA=252
sP=24; sX=28; sA=32; sR=36; sM=40
sWV=56; sK=57; sNN=58; sI=59; sNT=60; sBUF=61; sQ=62; sW8=63; sCNT=64; sT0=65
sL2E=66; sINC=68; sRND=70; sTOT=71; sNON=72; sBUD=73; sW4=74; sLB=75
sWU=3; sW4K=22; sOT=23; sFLAG=76; sLO=77; sMA=78; sMB=80; sHEAD=82; sNF=83
t0,t1,t2,t3=84,85,86,87
BUDGET=20000

def mfma32(d,x,y,c): return f"v_mfma_f32_32x32x16_bf16 v[{d}:{d+15}], v[{x}:{x+3}], v[{y}:{y+3}], "+("0" if c is None else f"v[{c}:{c+15}]")
def mfma16(d,x,y,c): return f"v_mfma_f32_16x16x32_bf16 v[{d}:{d+3}], v[{x}:{x+3}], v[{y}:{y+3}], "+("0" if c is None else f"v[{c}:{c+3}]")
def P2(r): return f"v[{r}:{r+1}]"
def P4(r): return f"v[{r}:{r+3}]"
def S2(r): return f"s[{r}:{r+1}]"
def SR4(r): return f"s[{r}:{r+3}]"

def gen_kf(name):
    a=Asm()
    def pt(n):
        if PROF and n in PTS: stamp(a,2+PTS.index(n))
    def bar(n,w="s_waitcnt lgkmcnt(0)"):
        a(w+"\ns_barrier"); pt(n)
    def gsync(n,lab,off,target,va,vt,pre=None):
        if pre: a(pre)
        a(f"""
v_mov_b32 v{vt}, 1
s_mov_b64 exec, 1
ds_add_u32 v{va}, v{vt} offset:{off}
s_mov_b64 exec, -1
{lab}:
ds_read_b32 v{vt}, v{va} offset:{off}
s_waitcnt lgkmcnt(0)
v_readfirstlane_b32 s{t1}, v{vt}
s_and_b32 s{t1}, s{t1}, 255
s_cmp_lt_u32 s{t1}, {target}
s_cbranch_scc1 {lab}
""")
        pt(n)
    def gwait(lab,off,target,va,vt):
        a(f"""
{lab}:
ds_read_b32 v{vt}, v{va} offset:{off}
s_waitcnt lgkmcnt(0)
v_readfirstlane_b32 s{t1}, v{vt}
s_and_b32 s{t1}, s{t1}, 255
s_cmp_lt_u32 s{t1}, {target}
s_cbranch_scc1 {lab}
""")
    def consts():
        srd(a,sP,20,N,off=F_P-3072,stride=256)
        srd(a,sR,20,F_SIZE)
        a(f"""
s_cmp_lt_u32 s{sK}, {N-256*48}
s_cselect_b32 s{sNN}, 49, 48
s_mov_b32 s{sL2E}, {hex(LOG2E_NEG)}
s_mov_b32 s{sL2E+1}, {hex(LOG2E_NEG)}
s_mov_b32 s{sINC}, 16
s_mov_b32 s{sINC+1}, 16
s_mov_b32 s{sMA}, 0x0000ffff
s_mov_b32 s{sMA+1}, 0x0000ffff
s_not_b64 {S2(sMB)}, {S2(sMA)}
s_mov_b32 s{sBUD}, {BUDGET}
v_lshrrev_b32 v2, 5, v{VL}              ; h
; g = 4 b2 + 2 b4 + b0 ; m = 2 b3 + b1 ; slot = 16 b2 + 4 m + (g&3)
v_lshrrev_b32 v1, 3, v{VL}
v_and_b32 v1, 2, v1
v_and_or_b32 v1, v{VL}, 5, v1           ; g
v_lshlrev_b32 v{RB}, 1, v1
v_lshlrev_b32 v3, 1, v{VL}
v_and_b32 v3, 4, v3
v_and_or_b32 v{M4}, v{VL}, 8, v3        ; 4m
v_lshlrev_b32 v{EC}, 1, v{M4}
v_add_u32 v{EC}, {EB}, v{EC}
v_lshlrev_b32 v3, 2, v1
v_and_or_b32 v3, v3, 16, v{M4}
v_and_or_b32 v3, v1, 3, v3              ; slot
v_lshl_add_u32 v3, v3, 8, s{sBUF}
v_and_b32 v{WT}, 15, v{VL}              ; n / c16
v_xor_b32 v1, v2, v{WT}
v_lshl_add_u32 v{AR}, v1, 4, v3
""")
        for t in range(1,8): a(f"v_xor_b32 v{AR+t}, {32*t}, v{AR}")
        a(f"""
v_mul_i32_i24 v{OHC}, -8, v2
v_mul_u32_u24 v{SA}, {RS}, v{WT}
v_and_b32 v1, 1, v{VL}
v_lshlrev_b32 v1, 4, v1
v_mov_b32 v3, 0x3f80
v_lshlrev_b32 v1, v1, v3
""")
        for s in range(2):
            for j in range(4):
                lo=3<<(16*s+2*j); hi=(3<<(16*s+8+2*j))
                a(f"s_mov_b32 vcc_lo, {hex(lo)}\ns_mov_b32 vcc_hi, {hex(hi)}\nv_cndmask_b32 v{ID0+4*s+j}, 0, v1, vcc")
        a(f"""
v_lshrrev_b32 v2, 4, v{VL}              ; a / g
v_lshlrev_b32 v{SB}, 1, v2
v_and_b32 v1, 1, v2
v_xor_b32 v1, v1, v{WT}
v_lshlrev_b32 v1, 4, v1
""")
        for i in range(8): a(f"v_xor_b32 v{IDX+2*i+1}, {(8*((i>>1)&1)+4*(i>>2)+2*(i&1))*16+3072-1024*(i&3)}, v1")
        a(f"v_xor_b32 v3, v2, v{WT}\nv_lshlrev_b32 v3, 4, v3\nv_lshl_add_u32 v3, v{WT}, 8, v3\nv_add_u32 v{FA}, {AGB}, v3")
        for s in range(1,4): a(f"v_xor_b32 v{FA+s}, {64*s}, v{FA}")
        a(f"""
s_lshl_b32 s{t0}, s{sW4}, 13
s_add_u32 s{t0}, s{t0}, {GBUF}
s_lshr_b32 s{t1}, s{sWV}, 2
s_lshl_b32 s{sOT}, s{sW4}, 1
s_or_b32 s{sOT}, s{sOT}, s{t1}
v_lshrrev_b32 v1, 2, v{WT}
v_lshl_add_u32 v1, v2, 3, v1
v_lshl_add_u32 v{DR}, v1, 6, s{t0}
v_xor_b32 v2, s{t1}, v2
v_and_b32 v2, 1, v2
v_and_b32 v3, 3, v{VL}
v_lshl_add_u32 v{TRU}, v2, 5, v{DR}
v_lshl_add_u32 v{TRU}, v3, 3, v{TRU}
""")
    def tagh():
        a(f"""
s_mul_i32 s{sNON}, s{sNON}, 0x9E3779B1
s_add_u32 s{sNON}, s{sNON}, 0x7F4A7C15
s_lshr_b32 s{t1}, s{sNON}, 15
s_xor_b32 s{sNON}, s{sNON}, s{t1}
""")
    def vyc():
        a(f"""
v_lshrrev_b32 v1, 4, v{VL}
v_and_b32 v1, 2, v1
v_xor_b32 v1, v1, v{VL}
v_and_b32 v1, 3, v1
v_lshlrev_b32 v1, 4, v1
v_lshrrev_b32 v2, 2, v{VL}
v_lshl_or_b32 v{VY}, v2, 8, v1
""")
    def trfrag(dst,addr,off,ks,hs):
        for s in range(4):
            a(f"ds_read_b64_tr_b16 {P2(dst+4*s)}, v{addr} offset:{off+s*ks}\nds_read_b64_tr_b16 {P2(dst+4*s+2)}, v{addr} offset:{off+s*ks+hs}")
    def tru(dst,off): trfrag(dst,TRU,off,2048,256)
    def sdma(sr,moff,loff=0,v=VY,js=range(8)):
        a(f"s_lshl_b32 s{t0}, s{sW4}, 6")
        for j in js:
            a(f"s_add_u32 m0, s{sBUF}, {loff+j*1024}\ns_add_u32 s{t1}, s{t0}, {moff+j*4096}\nbuffer_load_dwordx4 v{v}, {SR4(sr)}, s{t1} offen lds")
    def xfrags(Ts):
        for T in Ts:
            for s in range(4): a(f"ds_read_b128 {P4(XF+16*T+4*s)}, v{FA+s} offset:{T*4096}")
    def ugemm():
        for T in range(4):
            for s in range(4):
                x,y=(WU1+4*s,XF+16*T+4*s) if T<3 else (XF+16*T+4*s,WU1+4*s)
                a(mfma16(UA+4*T,x,y,None if s==0 else UA+4*T))
    def uscale():
        for j in range(7): a(f"v_pk_mul_f32 {P2(UA+2*j)}, {P2(UA+2*j)}, {S2(sL2E)}")
    def w3rd():
        a(f"v_lshlrev_b32 v1, 3, v{VL}")
        for q in range(4): a(f"ds_read_b64 {P2(B3+4*q+2)}, v1 offset:{W3L+q*512}")
    F=A3
    def scan(slow):
        a(f"""
v_lshlrev_b32 v1, 2, v{VL}
ds_read_b32 v{F}, v1
v_cmp_gt_u32 vcc, s{sNN}, v{VL}
v_lshlrev_b32 v{F+1}, 8, v{VL}
s_waitcnt lgkmcnt(0)
v_sub_u32 v{QA}, v{F}, v{F+1}
""")
        if slow:
            a(f"""
s_movk_i32 s{t1}, 256
v_subrev_u32 v{QA}, s{sHEAD}, v{QA}
v_cmp_lt_i32 {S2(t2)}, s{t1}, v{QA}
v_med3_i32 v{QA}, v{QA}, 0, s{t1}
v_add_u32 v{F}, v{F+1}, v{QA}
""")
        a(f"""
v_add_u32 v3, 12, v{QA}
v_and_b32 v3, -16, v3
v_max_u32 v3, 80, v3
v_cndmask_b32 v3, 0, v3, vcc
v_mov_b32 v2, v3
""")
        dpp_scan(a,"v_add_u32",[2])
        a(f"""
v_readlane_b32 s{t0}, v2, 63
v_sub_u32 v2, v2, v3
""")
    def fill(lab,slow,nw):
        a(f"""
s_lshl_b32 s{t1}, s{sWV}, 4
v_add_u32 v{QA+1}, s{t1}, v2
v_lshrrev_b32 v{QA+1}, 3, v{QA+1}       ; 2*(G0+w)
v_add_u32 v{F+1}, s{t1}, v{F+1}         ; 256n+16w
v_subrev_u32 v{QA+2}, s{t1}, v3         ; g16-16w
""")
        if not slow: a(f"v_add_u32 v{QA+3}, v{QA+1}, v{SA}\nv_mov_b32 v{F+3}, 0x3f80\nds_write_b32 v1, v2 offset:{BT}")
        for k in range(16//nw):
            a(f"v_cmpx_lt_i32 vcc, {16*nw*k}, v{QA+2}\nds_write_b16 v{QA+1}, v{F+1+(k&1)} offset:{GL+2*nw*k}")
            if k+1<16//nw: a(f"v_add_u32 v{F+1+((k+1)&1)}, {16*nw}, v{F+1+(k&1)}")
            if not slow: a(f"ds_write_b16 v{QA+3}, v{F+3} offset:{STB+2*nw*k}")
        a(f"""
s_mov_b64 exec, -1
s_lshl_b32 s{t1}, s{sWV}, 2
v_sub_u32 v{QA+2}, v3, v{QA}
v_add_u32 v{F}, s{t1}, v{F}
v_subrev_u32 v{QA+2}, s{t1}, v{QA+2}    ; pad4 - 4w
s_mov_b32 s{t1}, {EB}
v_mov_b32 v{QA+4}, 0
v_mov_b32 v{QA+5}, 0
v_mov_b32 v{QA+6}, {hex(NULLW2)}
v_lshl_add_u32 v{QA+7}, v{F}, 1, s{t1}
""")
        for k in range(-(-20//nw)):
            a(f"v_cmpx_lt_i32 vcc, {4*nw*k}, v{QA+2}")
            if k==1: a(f"s_cbranch_vccz {lab}p")
            a(f"ds_write_b32 v{F}, v{QA+6} offset:{WB+4*nw*k}\nds_write_b64 v{QA+7}, {P2(QA+4)} offset:{8*nw*k}")
        a(f"""
{lab}p:
s_mov_b64 exec, -1
s_cmp_eq_u32 s{sWV}, 3
s_cbranch_scc0 {lab}q
s_lshr_b32 s{t1}, s{t0}, 3
v_lshl_add_u32 v{QA+1}, v{VL}, 1, s{t1}
v_mov_b32 v{QA+2}, {NULLG}
v_add_u32 v{QA+3}, {NULLG}, v1
v_lshlrev_b32 v{QA+7}, 1, v1
v_add_u32 v{QA+7}, {EB+2*NULLG}, v{QA+7}
s_mov_b64 exec, 0xff
ds_write_b16 v{QA+1}, v{QA+2} offset:{GL}
s_mov_b64 exec, 15
ds_write_b32 v{QA+3}, v{QA+6} offset:{WB}
ds_write_b64 v{QA+7}, {P2(QA+4)}
s_mov_b64 exec, -1
{lab}q:
""")
    def expand(lab):
        a(f"""
v_subrev_u32 v1, s{sLO}, v{TO}
v_add_u32 v2, v1, v{TC}
v_med3_i32 v1, v1, 0, s{t3}
v_med3_i32 v2, v2, 0, s{t3}
v_sub_u32 v2, v2, v1
v_lshl_add_u32 v1, v1, 2, s{sLB}
{lab}:
""")
        for j in range(16):
            a(f"v_cmpx_lt_i32 vcc, {j}, v2\nds_write_b32 v1, v{TD} offset:{4*j}")
        a(f"""
v_add_u32 v2, -16, v2
v_add_u32 v1, 64, v1
v_cmp_lt_i32 vcc, 0, v2
s_cmp_lg_u64 vcc, 0
s_cbranch_scc1 {lab}
s_mov_b64 exec, -1
""")
    def rl1(i): return f"buffer_load_dwordx4 {P4(RC+4*i)}, v{RK+i}, {SR4(sR)}, {'0' if i<4 else 's'+str(sQ)} offen offset:{1024*(i&3)}{SC}"
    def reclist(ns):
        a(f"v_lshl_add_u32 v1, v{VL}, 2, s{sLB}")
        for i in reversed(range(ns)): a(f"ds_read_b32 v{RK+i}, v1 offset:{256*i}")
        a(f"v_add_u32 v2, s{sLO}, v{VL}\nv_lshlrev_b32 v2, 4, v2\ns_movk_i32 s{sQ}, 4096")
        for i in range(ns):
            a(f"v_cmp_gt_i32 {S2(sM+2*i)}, s{t1}, v{VL}\ns_sub_u32 s{t1}, s{t1}, 64")
        a("s_waitcnt lgkmcnt(0)")
        for i in range(ns): a(f"v_add_u32 v{RK+i}, v{RK+i}, v2")
    def recload(ns,lab):
        for i in reversed(range(ns)):
            a(f"s_mov_b64 exec, {S2(sM+2*i)}\ns_cbranch_execz {lab}{i}\n{rl1(i)}\n{lab}{i}:")
        a("s_mov_b64 exec, -1")
    def hist(ns,lab,extra,scat):
        a(f"v_mov_b32 v1, 4\ns_mov_b32 s{sW8}, {EB}")
        def sc(i,n):
            a(f"""
s_mov_b64 exec, {S2(sM+2*i)}
s_waitcnt lgkmcnt({n})
v_min_u32 v{RK+i}, {NULLG-4}, v{RK+i}
v_lshl_add_u32 v{RC+4*i+3}, v{RK+i}, 1, s{sW8}
ds_write_b32 v{RK+i}, v{RC+4*i+2} offset:{WB}
ds_write_b64 v{RC+4*i+3}, {P2(RC+4*i)}
""")
        for i in reversed(range(ns)):
            a(f"""
s_mov_b64 exec, {S2(sM+2*i)}
s_waitcnt vmcnt({i+extra})
{lab}c{i}:
v_cmp_ne_u32 vcc, s{sNON}, v{RC+4*i+3}
s_cbranch_vccnz {lab}r{i}
{lab}k{i}:
v_lshrrev_b32 v{RC+4*i+3}, 17, v{RC+4*i+2}
ds_add_rtn_u32 v{RK+i}, v{RC+4*i+3}, v1
""")
            if scat and i==0: a(f"s_mov_b64 exec, 1\nds_add_u32 v{VZ}, v1 offset:{mH}")
            if scat and i<ns-1: sc(i+1,(1 if i==ns-2 else 3)+(1 if i==0 else 0))
        if scat: sc(0,3)
        a(f"s_mov_b64 exec, -1")
    def hist_retry(ns,lab):
        for i in range(ns):
            a(f"""
{lab}r{i}:
s_sub_u32 s{sBUD}, s{sBUD}, 1
s_cbranch_scc1 {lab}x{i}
s_mov_b64 exec, vcc
{rl1(i)}
s_mov_b64 exec, {S2(sM+2*i)}
s_waitcnt vmcnt(0)
s_branch {lab}c{i}
{lab}x{i}:
s_mov_b32 s{sBUD}, 0
v_mov_b32 v{RC+4*i+2}, 0
s_branch {lab}k{i}
""")
    def qfull(lab,mid):
        H=QA+4; MX=QA+1
        a(f"v_xor_b32 v{TC}, 32, v{TRU}")
        trfrag(WF,TC,0,2048,256)
        a(f"""
s_mul_i32 s{t0}, s{sW4}, {QS}
s_add_u32 s{t0}, s{t0}, {Q2}
v_lshl_add_u32 v120, v{SB}, 8, s{t0}
v_lshl_add_u32 v120, v{WT}, 2, v120
v_add_u32 v121, 128, v120
v_add_u32 v122, 64, v120
v_add_u32 v123, 192, v120
s_waitcnt lgkmcnt(0)
""")
        tru(WF+16,0)
        def cv(i,T,pk):
            c=GA+16*i+4*T
            L=[]
            if pk: L+=[f"v_pk_mul_f32 {P2(c)}, {P2(c)}, {S2(sL2E)}",f"v_pk_mul_f32 {P2(c+2)}, {P2(c+2)}, {S2(sL2E)}"]
            else: L+=[f"v_mul_f32 v{c+k}, s{sL2E}, v{c+k}" for k in range(4)]
            L+=[f"v_and_b32 v{H+k}, 0xffff0000, v{c+k}" for k in range(4)]
            L+=[f"v_maximum3_f32 v{MX}, {'0' if T==0 and i==0 else 'v'+str(MX)}, abs(v{c}), abs(v{c+1})",f"v_maximum3_f32 v{MX}, v{MX}, abs(v{c+2}), abs(v{c+3})"]
            if pk: L+=[f"v_pk_add_f32 {P2(c)}, {P2(c)}, {P2(H)} neg_lo:[0,1] neg_hi:[0,1]",f"v_pk_add_f32 {P2(c+2)}, {P2(c+2)}, {P2(H+2)} neg_lo:[0,1] neg_hi:[0,1]"]
            else: L+=[f"v_sub_f32 v{c+k}, v{c+k}, v{H+k}" for k in range(4)]
            L+=[f"v_cvt_pk_bf16_f32 v{c+k}, v{c+k}, v{H+k}" for k in range(4)]
            return L
        for T in range(4):
            for s in range(4): a(mfma16(GA+4*T,XF+16*T+4*s,WF+4*s,None if s==0 else GA+4*T))
        a("s_waitcnt lgkmcnt(0)")
        fl=cv(0,0,0)+cv(0,1,0)
        for T in range(4):
            for s in range(4):
                a(mfma16(GA+16+4*T,XF+16*T+4*s,WF+16+4*s,None if s==0 else GA+16+4*T))
                for _ in range(2): a(fl.pop(0))
        if PFI==0: mid()
        for x in fl+cv(0,2,1)+cv(1,0,1)+cv(1,1,1)+cv(1,2,1): a(x)
        if PFI==1: mid()
        gwait(lab+"w",mSL,4,VZ,1)
        for i in range(2):
            for T in range(3):
                c=GA+16*i+4*T
                a(f"ds_write2st64_b32 v{120+2*i}, v{c}, v{c+2} offset0:{8*T} offset1:{8*T+1}\nds_write2st64_b32 v{121+2*i}, v{c+1}, v{c+3} offset0:{8*T} offset1:{8*T+1}")
        a("s_mov_b64 exec, 0xffff")
        for i in range(2):
            c=GA+16*i+12
            a(f"""
v_mul_f32 v{c}, s{sL2E}, v{c}
v_and_b32 v{H}, 0xffff0000, v{c}
v_maximum3_f32 v{MX}, v{MX}, abs(v{c}), abs(v{c})
v_sub_f32 v{c}, v{c}, v{H}
v_cvt_pk_bf16_f32 v{c}, v{c}, v{H}
ds_write2st64_b32 v{120+2*i}, v{c}, v{c+2} offset0:24 offset1:25
ds_write2st64_b32 v{121+2*i}, v{c+1}, v{c+3} offset0:24 offset1:25
""")
        a(f"""
s_mov_b64 exec, -1
v_cmp_nge_f32 vcc, 0x40e80000, v{MX}
s_cbranch_vccz {lab}q
ds_write_b32 v{VZ}, v{FA} offset:{mSLOW}
{lab}q:
""")
        pt('qd')
    def ranges():
        a(f"""
s_lshr_b32 s{sCNT}, s{sNT}, 3
s_mul_i32 s{sT0}, s{sCNT}, s{sWV}
s_and_b32 s{t2}, s{sNT}, 7
s_min_u32 s{t3}, s{t2}, s{sWV}
s_add_u32 s{sT0}, s{sT0}, s{t3}
s_cmp_lt_u32 s{sWV}, s{t2}
s_addc_u32 s{sCNT}, s{sCNT}, 0
s_lshl_b32 s{t0}, s{sT0}, 7
s_lshl_b32 s{t2}, s{sT0}, 4
v_add_u32 v{SB}, s{t2}, v{SB}
v_add_u32 v{RB}, s{t2}, v{RB}
v_sub_u32 v{SA}, v{SA}, v{OHC}
v_add_u32 v{SA}, s{t2}, v{SA}
v_lshl_add_u32 v1, v{VL}, 4, s{t2}
""")
    def arrive(off,vt): a(f"v_mov_b32 v{vt}, 1\ns_mov_b64 exec, 1\nds_add_u32 v{VZ}, v{vt} offset:{off}\ns_mov_b64 exec, -1")

    a(f"""
{name}:
s_cmp_ge_u32 s2, 256
s_cbranch_scc1 KF_END
s_load_dwordx16 s[4:19], s[0:1], 0
s_load_dwordx2 s[20:21], s[0:1], 64
v_lshrrev_b32 v1, 6, v0
v_and_b32 v{VL}, 63, v0
v_mov_b32 v{VZ}, 0
v_readfirstlane_b32 s{sWV}, v1
s_and_b32 s{sK}, s2, 7
s_lshl_b32 s{sK}, s{sK}, 5
s_lshr_b32 s{t0}, s2, 3
s_or_b32 s{sK}, s{sK}, s{t0}
s_and_b32 s{sW4}, s{sWV}, 3
s_lshl_b32 s{sW4K}, s{sW4}, 10
s_lshl_b32 s{sBUF}, s{sWV}, 13
s_add_u32 s{sBUF}, s{sBUF}, {GBUF}
s_cmp_ge_u32 s{sWV}, 4
s_cbranch_scc1 KF_T
""")
    D=28; SRc=36; K=44; R=52; W2=60; RO=80
    sD=40; sS=44; sE=48
    Q16="s_mov_b64 exec, 0xffff"; FULL="s_mov_b64 exec, -1"
    a(f"""
s_min_u32 s{t2}, s2, {NPROD-1}
s_mul_i32 s{t2}, s{t2}, {EP*4}
s_mul_i32 s{t3}, s{sWV}, 400
v_add_u32 v108, s{t3}, v{VL}
v_lshlrev_b32 v109, 2, v108
s_waitcnt lgkmcnt(0)
""")
    stamp(a,0,True); stamp(a,1)
    srd(a,sD,10,E*4)
    def ld7(dst,sr):
        for i in range(7):
            if i==6: a(Q16)
            a(f"buffer_load_dword v{dst+i}, v109, {SR4(sr)}, s{t2} offen offset:{i*256}")
        a(FULL)
    ld7(D,sD)
    a(f"s_load_dword s{sNON}, s[20:21], 0")
    srd(a,sS,8,E*4); srd(a,sE,6,E*8)
    a("s_barrier")
    ld7(SRc,sS)
    a(f"""
s_lshl_b32 s{sLB}, s{t3}, 3
s_lshl_b32 s{t2}, s{t2}, 1
s_add_u32 s{t2}, s{t2}, s{sLB}
s_add_u32 m0, s{sLB}, {ERAW}
v_lshlrev_b32 v113, 4, v{VL}
s_add_u32 s{sLB}, s{sLB}, {S1}
""")
    for j in range(4):
        if j==3: a("s_mov_b64 exec, 0xff")
        a(f"buffer_load_dwordx4 v113, {SR4(sE)}, s{t2} offen offset:{1024*j} lds")
    a(FULL)
    consts()
    a(f"""
v_mov_b32 v111, 8
v_lshlrev_b32 v112, 3, v108
v_lshlrev_b32 v110, 4, v108
""")
    for i in range(7): a(f"v_add_u32 v{W2+1+2*i}, {i*512}, v112")
    a(f"s_cmp_ge_u32 s2, {NPROD}\ns_cbranch_scc1 KS_d\ns_waitcnt vmcnt(11)")
    pt('dst')
    for i in range(7):
        if i==6: a(Q16)
        a(f"v_lshlrev_b32_sdwa v{K+i}, 2, v{D+i} dst_sel:DWORD dst_unused:UNUSED_PAD src0_sel:DWORD src1_sel:BYTE_0\nds_add_rtn_u32 v{R+i}, v{K+i}, v111 offset:{HIST}")
    a(FULL+"\nKS_d:")
    gsync('b1',"KS_y1",mS,4,VZ,2)
    a(f"ds_read_b128 v[116:119], v113 offset:{HIST}")
    tagh()
    for i in range(7): a(f"v_lshrrev_b32 v{D+i}, 8, v{D+i}")
    a(f"""
v_mov_b32 v1, s{sNON}
s_waitcnt lgkmcnt(0)
v_add_u32 v2, v116, v117
v_add3_u32 v2, v2, v118, v119
v_mov_b32 v3, v2
""")
    dpp_scan(a,"v_add_u32",[3])
    a(f"""
v_sub_u32 v120, v3, v2
v_add_u32 v121, v120, v116
v_add_u32 v122, v121, v117
v_add_u32 v123, v122, v118
ds_write_b128 v113, v[120:123] offset:{HIST+1024}
""")
    for i in range(7):
        if i==6: a(Q16)
        a(f"ds_read_b32 v{K+i}, v{K+i} offset:{HIST+1024}")
    a(FULL)
    def tpub():
        for j in range(4): a(f"v_lshlrev_b32 v2, 1, v{120+j}\nv_lshl_or_b32 v{QA+2*j}, v{116+j}, 13, v2\nv_mov_b32 v{QA+2*j+1}, v1")
        a(f"""
s_lshl_b32 s{t2}, s2, 11
s_add_u32 s{t2}, s{t2}, {F_TBL}
s_lshl_b32 s{t3}, s{sWV}, 4
s_lshl_b64 exec, 0xffff, s{t3}
buffer_store_dwordx4 {P4(QA)}, v113, {SR4(sR)}, s{t2} offen{SC}
buffer_store_dwordx4 {P4(QA+4)}, v113, {SR4(sR)}, s{t2} offen offset:1024{SC}
s_mov_b64 exec, -1
""")
    if TE==0: tpub()
    a(f"s_cmp_ge_u32 s2, {NPROD}\ns_cbranch_scc1 KS_e\ns_waitcnt vmcnt({6 if TE==0 else 4})")
    if X&64:
        for i in range(7): a(f"v_and_b32 v{SRc+i}, 0x1ff, v{SRc+i}")
    for i in range(7): a(f"v_lshl_or_b32 v{W2+2*i}, v{D+i}, 19, v{SRc+i}")
    a(f"s_waitcnt lgkmcnt(0)")
    for i in range(7):
        if i==6: a(Q16)
        a(f"v_add_u32 v{K+i}, v{K+i}, v{R+i}\nds_write_b64 v{K+i}, {P2(W2+2*i)} offset:{S1}")
    a(FULL+"\nKS_e:")
    pt('sc1')
    if TE==1: tpub()
    a(f"""
v_lshlrev_b32 v114, 11, v0
s_lshr_b32 s{sLO}, s{sK}, 2
s_lshl_b32 s{sLO}, s{sLO}, 4
s_and_b32 s{t0}, s{sK}, 1
s_lshl_b32 s{t0}, s{t0}, 3
s_add_u32 s{sLO}, s{sLO}, s{t0}
s_and_b32 s{t0}, s{sK}, 2
s_lshl_b32 s{t0}, s{t0}, 9
s_add_u32 s{sLO}, s{sLO}, s{t0}
s_add_u32 s{sLO}, s{sLO}, {F_TBL}
v_cmp_gt_u32 vcc, {NPROD}, v0
v_mov_b32 v{TC}, 0
s_mul_i32 s{t0}, s2, {EP*16}
s_add_u32 s{t0}, s{t0}, {F_REC}
s_add_u32 s{t2}, s{t0}, 4096
v_mul_u32_u24 v115, {EP*16}, v0
v_add_u32 v115, {F_REC}, v115
""")
    gsync('bS',"KS_y2",mS,8,VZ,2,"s_waitcnt vmcnt(2)")
    tl=f"s_mov_b64 exec, vcc\nbuffer_load_dwordx2 {P2(TC)}, v114, {SR4(sR)}, s{sLO} offen{SC}\ns_mov_b64 exec, -1"
    a(f"""
s_cmp_ge_u32 s2, {NPROD}
s_cbranch_scc0 KS_h0
""")
    gwait("KS_h1",mPD,4,VZ,2)
    a(f"""
{tl}
s_waitcnt vmcnt(0)
s_branch KS_j
KS_h0:
""")
    order=[6,0,1,2,3,4,5]
    if SWW: gwait("KS_ww",mW,4,VZ,2)
    for i in order:
        if i==6: a(Q16)
        a(f"ds_read_b64 {P2(RO+2+4*i)}, v112 offset:{S1+i*512}")
        if i==6: a(FULL)
    for i in order:
        if i==6: a(Q16)
        a(f"s_waitcnt lgkmcnt(6)\nds_read_b64 {P2(RO+4*i)}, v{RO+3+4*i} offset:{ERAW}")
        if i==6: a(FULL)
    for k,i in enumerate(order):
        if k-1==TPOS: a(tl)
        if i==6: a(Q16)
        a(f"s_waitcnt lgkmcnt({6-k})\nv_mov_b32 v{RO+3+4*i}, v1\nbuffer_store_dwordx4 {P4(RO+4*i)}, v110, {SR4(sR)}, s{t0 if i<4 else t2} offen offset:{1024*(i&3)}{SC}")
        if i==6: a(FULL)
    if TPOS==6: a(tl)
    pt('out')
    a(f"""
s_waitcnt vmcnt({6-TPOS})
KS_j:
s_mov_b64 exec, vcc
KT_f:
v_cmp_ne_u32 vcc, s{sNON}, v{TC+1}
s_cbranch_vccz KT_g
s_mov_b64 exec, vcc
s_sub_u32 s{sBUD}, s{sBUD}, 1
s_cbranch_scc1 KT_f2
buffer_load_dwordx2 {P2(TC)}, v114, {SR4(sR)}, s{sLO} offen{SC}
s_waitcnt vmcnt(0)
s_branch KT_f
KT_f2:
s_mov_b32 s{sBUD}, 0
v_mov_b32 v{TC}, 0
KT_g:
s_mov_b64 exec, -1
""")
    pt('tp')
    a(f"""
v_lshrrev_b32 v{TO}, 16, v{TC}
v_add_u32_sdwa v{TD}, v115, v{TC} dst_sel:DWORD dst_unused:UNUSED_PAD src0_sel:DWORD src1_sel:WORD_0
v_mov_b32 v{TC}, v{TO}
""")
    dpp_scan(a,"v_add_u32",[TO])
    a(f"""
v_readlane_b32 s{sTOT}, v{TO}, 63
v_sub_u32 v{TO}, v{TO}, v{TC}
s_mov_b32 s{sLO}, 0
s_movk_i32 s{t3}, 512
v_lshlrev_b32 v1, 4, v{TO}
v_sub_u32 v{TD}, v{TD}, v1
""")
    expand("KT_x")
    a(f"s_mov_b32 s{t1}, s{sTOT}")
    reclist(8)
    arrive(mSL,1)
    for i in range(8): a(f"v_mov_b32 v{RC+4*i}, 0\nv_mov_b32 v{RC+4*i+1}, 0")
    pt('exp')
    gwait("KS_xw",mGX,4,VZ,1)
    a(f"ds_read_b32 v{YA}, v{VZ} offset:{mC3}")
    xfrags([0,1,2]); a("s_waitcnt lgkmcnt(4)"); xfrags([3]); w3rd()
    gwait("KS_rw",mPD,4,VZ,1)
    a("s_waitcnt vmcnt(0)")
    recload(8,"KT_l")
    pt('rl')
    if PFP:
        a(f"""
s_lshr_b32 s{t1}, s2, 3
s_mul_i32 s{t1}, s{t1}, 391
v_lshrrev_b32 v2, 1, v0
v_add_u32 v2, s{t1}, v2
v_and_b32 v3, 1, v0
v_lshlrev_b32 v3, 7, v3
buffer_load_dword v{QA+15}, v[2:3], {SR4(sP)}, 0 idxen offen offset:3072{SC}
""")
    gwait("KS_w2",mPI,4,VZ,1)
    tru(WU1,32768)
    a("s_waitcnt lgkmcnt(0)")
    ugemm()
    pt('ud')
    hist(8,"KT_h",1 if PFP else 0,True)
    pt('hs')
    gwait("KS_b2",mH,16,VZ,1)
    pt('b2')
    scan(False)
    a(f"""
v_cmp_lt_u32 vcc, 0x100, v{QA}
s_add_u32 s{sNT}, s{t0}, 127
s_lshr_b32 s{sNT}, s{sNT}, 7
s_cmp_gt_u32 s{sNT}, {CAPT}
s_cbranch_scc1 KT_j
s_cbranch_vccnz KT_j
""")
    fill("KFz",False,4)
    a(f"v_mov_b32 v1, s{sNT}\nds_write_b32 v{VZ}, v1 offset:{mNT}")
    pt('fil')
    a(f"v_pk_maximum3_f16 v1, v{RC}, v{RC+1}, v{RC+1}\nv_pk_minimum3_f16 v2, v{RC}, v{RC+1}, v{RC+1}")
    for i in range(1,8): a(f"v_pk_maximum3_f16 v1, v1, v{RC+4*i}, v{RC+4*i+1}\nv_pk_minimum3_f16 v2, v2, v{RC+4*i}, v{RC+4*i+1}")
    absmax_fin(a,1,2,3)
    a(f"""
v_mul_f32 v1, v1, v{YA}
s_cmp_gt_u32 s{sTOT}, 512
v_cmp_nge_f32 vcc, 0x41680000, v1       ; !(14.5 >= e*c3)
s_cbranch_scc1 KT_j
s_cbranch_vccz KT_k
KT_j:
ds_write_b32 v{VZ}, v{FA} offset:{mSLOW}
KT_k:
s_mov_b32 s{sWU}, -1
""")
    ranges()
    srd(a,sA,14,256*256)
    if PRIO: a("s_setprio 3")
    bar('b3')
    a("s_branch KF_J")
    a(f"""
KF_T:
v_and_b32 v108, 255, v0
v_lshlrev_b32 v109, 2, v108
v_mov_b32 v32, 0
v_mov_b32 v33, 0
v_mov_b32 v34, 0
v_mov_b32 v35, 0
ds_write_b32 v109, v32 offset:{HIST}
v_lshlrev_b32 v2, 2, v{VL}
v_lshlrev_b32 v3, 8, v{VL}
ds_write2st64_b32 v2, v3, v32 offset0:0 offset1:1
v_lshlrev_b32 v110, 4, v108
v_lshrrev_b32 v1, 4, v108
v_xor_b32 v37, v1, v0
v_and_b32 v37, 15, v37
v_lshlrev_b32 v37, 4, v37
v_lshl_add_u32 v36, v1, 8, s{sK}
s_waitcnt lgkmcnt(0)
""")
    stamp(a,0,True); stamp(a,1)
    sG=40
    srd(a,sX,4,N,stride=256)
    def xld():
        for j in range(4):
            if j==3: a(f"s_cmp_eq_u32 s{sWV}, 4\ns_cbranch_scc0 KT_c")
            a(f"s_add_u32 m0, s{sW4K}, {AGB+j*4096}\ns_nop 0\nbuffer_load_dwordx4 v[36:37], {SR4(sX)}, 0 idxen offen lds\nv_add_u32 v36, 4096, v36")
        a("KT_c:")
    def warm():
        srd(a,sG,14,256*256)
        a(f"""
s_lshr_b32 s{t0}, s2, 3
s_lshl_b32 s{t0}, s{t0}, 11
s_lshl_b32 s{t1}, s{sW4}, 9
s_add_u32 s{t0}, s{t0}, s{t1}
v_lshlrev_b32 v2, 7, v{VL}
s_mov_b64 exec, 15
buffer_load_dword v111, v2, {SR4(sG)}, s{t0} offen
buffer_load_dword v111, v2, {SR4(sA)}, s{t0} offen
s_mov_b64 exec, -1
v_and_b32 v1, 31, v{VL}
v_lshlrev_b32 v1, 1, v1
s_lshl_b32 s{t0}, s{sW4}, 6
s_add_u32 s{t0}, s{t0}, 65536
""")
        for k in range(4): a(f"buffer_load_ushort v{124+k}, v1, {SR4(sA)}, s{t0} offen offset:{k*256}")
    def zer():
        a(f"v_cmp_le_u32 vcc, 32, v108\ns_mov_b64 exec, vcc\nds_write_b128 v110, v[32:35]\ns_mov_b64 exec, -1")
        for j in range(1,4): a(f"ds_write_b128 v110, v[32:35] offset:{j*4096}")
        a(f"""
s_cmp_eq_u32 s{sWV}, 4
s_cbranch_scc0 KT_b
ds_write_b128 v110, v[32:35] offset:16384
KT_b:
""")
    a(f"s_load_dword s{sNON}, s[20:21], 0")
    a("s_barrier"); srd(a,sA,12,260*256); warm(); vyc()
    if XORD==1: xld()
    zer()
    consts()
    a(f"""
v_lshrrev_b32 v2, 3, v{VL}
v_and_b32 v2, 2, v2
v_xor_b32 v2, v2, v3
v_lshl_add_u32 v{TD}, v2, 4, v{DR}
s_lshl_b32 s{t0}, s{sW4}, 2
v_lshrrev_b32 v2, 4, v{VL}
v_or_b32 v1, s{t0}, v2                  ; 4u+g
v_xor_b32 v3, v1, v{WT}
v_lshlrev_b32 v3, 4, v3
v_lshl_add_u32 v116, v{WT}, 8, v3
v_add_u32 v116, {PSC}, v116
v_add_u32 v117, {PSC}, v110
v_lshl_add_u32 v118, v1, 16, v3
""")
    if XORD==2:
        gwait("KG_x",mS,4,VZ,1); xld()
    sdma(sA,0)
    sdma(sA,32768,-32768)
    arrive(mW,1)
    pt('w1i')
    def w3m():
        w=[124,125,126,127]; u=QA
        for k in range(4): a(f"v_lshlrev_b32 v{w[k]}, 16, v{w[k]}\nv_mul_f32 v{w[k]}, s{sL2E}, v{w[k]}")
        a(f"""
v_cvt_pk_bf16_f32 v{u}, v124, v125
v_cvt_pk_bf16_f32 v{u+1}, v126, v127
v_lshlrev_b32 v{u+2}, 16, v{u}
v_and_b32 v{u+3}, 0xffff0000, v{u}
v_lshlrev_b32 v{u+4}, 16, v{u+1}
v_and_b32 v{u+5}, 0xffff0000, v{u+1}
v_add_f32 v{u+6}, abs(v124), abs(v125)
v_sub_f32 v{u+2}, v124, v{u+2}
v_sub_f32 v{u+3}, v125, v{u+3}
v_sub_f32 v{u+4}, v126, v{u+4}
v_sub_f32 v{u+5}, v127, v{u+5}
v_add_f32 v{u+7}, abs(v126), abs(v127)
s_mov_b32 exec_lo, 0
v_cvt_pk_bf16_f32 v{u}, v{u+2}, v{u+3}
v_cvt_pk_bf16_f32 v{u+1}, v{u+4}, v{u+5}
s_mov_b32 exec_lo, -1
v_add_f32 v{u+6}, v{u+6}, v{u+7}
v_lshlrev_b32 v1, 3, v108
v_and_b32 v{u+6}, 0x7fffffff, v{u+6}
ds_write_b64 v1, {P2(u)} offset:{W3L}
""")
        dpp_scan(a,"v_max_u32",[u+6])
        a(f"""
s_mov_b32 exec_lo, 0
s_brev_b32 exec_hi, 1
ds_max_u32 v{VZ}, v{u+6} offset:{mC3}
s_mov_b64 exec, -1
""")
    e2=8
    a(f"s_waitcnt vmcnt({11+e2})"); w3m()
    tagh()
    a(f"v_mov_b32 v1, {hex(ONE2)}\nds_write2_b32 v{VZ}, v1, v1 offset0:{OH//4} offset1:{OH//4+5}")
    gsync('bX',"KG_y1",mGX,4,VZ,2,f"s_waitcnt vmcnt({8+e2})")
    if GP_: a(f"s_setprio {GP_}")
    xfrags([0])
    a(f"s_waitcnt vmcnt({e2})")
    pt('xl')
    trfrag(WF,TD,32768,2048,256)
    a("s_waitcnt lgkmcnt(7)")
    trfrag(WF+16,TD,32768+8,2048,256)
    def pm(T,i):
        for s in range(4): a(mfma16(GA+8*T+4*i,WF+16*i+4*s,XF+16*T+4*s,None if s==0 else GA+8*T+4*i))
    def pcv(T):
        c=GA+8*T
        L=[f"v_mul_f32 v{c+j}, s{sL2E}, v{c+j}" for j in range(8)]
        L+=[f"v_cvt_pk_bf16_f32 v{c+j}, v{c+2*j}, v{c+2*j+1}" for j in range(4)]
        L+=[f"ds_write_b128 v116, {P4(c)} offset:{T*4096}"]
        return L
    def pmi(T,fillers):
        for i in range(2):
            for s in range(4):
                a(mfma16(GA+8*T+4*i,WF+16*i+4*s,XF+16*T+4*s,None if s==0 else GA+8*T+4*i))
                for _ in range(2):
                    if fillers: a(fillers.pop(0))
    a("s_waitcnt lgkmcnt(8)"); xfrags([1]); pm(0,0)
    a("s_waitcnt lgkmcnt(4)"); xfrags([2,3]); pm(0,1)
    a("s_waitcnt lgkmcnt(8)"); pm(1,0); pm(1,1)
    a("s_waitcnt lgkmcnt(0)"); pmi(2,pcv(0)); pmi(3,pcv(1))
    a(f"s_lshl_b32 s{t2}, s{sK}, 8\ns_nop 2")
    for T in (2,3):
        for x in pcv(T): a(x)
    gsync('pg',"KG_y2",mGP,4,VZ,2)
    for T in range(4): a(f"ds_read_b128 {P4(PO+4*T)}, v117 offset:{T*4096}")
    a("s_waitcnt vmcnt(0)")
    for T in range(3):
        a(f"s_add_u32 s{t1}, s{t2}, {F_P+T*16*65536}\ns_waitcnt lgkmcnt({3-T})")
        a(f"buffer_store_dwordx4 {P4(PO+4*T)}, v118, {SR4(sR)}, s{t1} offen{SC}")
    a(f"""
s_cmp_eq_u32 s{sWV}, 4
s_cbranch_scc0 KG_p
s_add_u32 s{t1}, s{t2}, {F_P+3*16*65536}
s_waitcnt lgkmcnt(0)
s_mov_b64 exec, 0xffff
buffer_store_dwordx4 {P4(PO+12)}, v118, {SR4(sR)}, s{t1} offen{SC}
s_mov_b64 exec, -1
KG_p:
""")
    pt('pst')
    if GP_: a("s_setprio 0")
    srd(a,sA,14,256*256)
    w3rd()
    for T in range(4):
        c=GA+8*T
        if T==3: a("s_mov_b32 exec_lo, 0x10001\ns_mov_b32 exec_hi, 0x10001")
        if T==0: a(f"v_pk_maximum3_f16 v114, v{c}, v{c+1}, v{c+2}\nv_pk_minimum3_f16 v115, v{c}, v{c+1}, v{c+2}\nv_pk_maximum3_f16 v114, v114, v{c+3}, v{c+3}\nv_pk_minimum3_f16 v115, v115, v{c+3}, v{c+3}")
        else: a(f"v_pk_maximum3_f16 v114, v114, v{c}, v{c+1}\nv_pk_minimum3_f16 v115, v115, v{c}, v{c+1}\nv_pk_maximum3_f16 v114, v114, v{c+2}, v{c+3}\nv_pk_minimum3_f16 v115, v115, v{c+2}, v{c+3}")
    a("s_mov_b64 exec, -1")
    absmax_fin(a,114,115,2)
    a(f"""
v_cmp_lt_u32 vcc, 0x40e80000, v114
v_mov_b32 v{TD}, v{VY}
s_cmp_lg_u64 vcc, 0
s_cselect_b32 s{sFLAG}, 0x101, 1
""")
    def pflag(n):
        a(f"""
s_lshl_b32 s{t2}, s2, 4
s_add_u32 s{t2}, s{t2}, {F_FLG}
v_mov_b32 v1, s{sFLAG}
s_waitcnt vmcnt({n})
s_mov_b64 exec, 1
ds_add_rtn_u32 v1, v{VZ}, v1 offset:{mPD}
s_waitcnt lgkmcnt(0)
v_readfirstlane_b32 s{t1}, v1
s_add_u32 s{t1}, s{t1}, s{sFLAG}
s_and_b32 s{t0}, s{t1}, 255
s_cmp_eq_u32 s{t0}, 4
s_cbranch_scc0 KG_f
s_cmp_gt_u32 s{t1}, 255
s_cselect_b32 s{t0}, 2, 0
s_xor_b32 s{t0}, s{sNON}, s{t0}
v_mov_b32 v1, s{t0}
buffer_store_dword v1, v{VZ}, {SR4(sR)}, s{t2} offen{SC}
s_waitcnt vmcnt(1)
s_branch KG_f2
KG_f:
s_waitcnt vmcnt(0)
KG_f2:
s_mov_b64 exec, -1
""")
        pt('pfl')
    def mid():
        sdma(sA,0); pflag(8); arrive(mPI,1)
    qfull("KGq",mid)
    tru(WU1,32768)
    if FLP==1: gwait("KG_b2",mH,16,VZ,1)
    a(f"""
s_mov_b32 s{sLO}, {F_FLG}
buffer_load_dword v116, v110, {SR4(sR)}, s{sLO} offen{SC}
s_waitcnt lgkmcnt(0)
""")
    ugemm()
    a(f"""
s_mov_b32 s{sWU}, 1
s_or_b32 s{t1}, s{sNON}, 2
KS_m:
s_waitcnt vmcnt(0)
v_or_b32 v2, 2, v116
v_cmp_ne_u32 vcc, s{t1}, v2
s_cbranch_vccz KS_n
s_sub_u32 s{sBUD}, s{sBUD}, 1
s_cbranch_scc1 KS_n
s_sleep {FSL}
s_mov_b64 exec, vcc
buffer_load_dword v116, v110, {SR4(sR)}, s{sLO} offen{SC}
s_mov_b64 exec, -1
s_branch KS_m
KS_n:
v_cmp_ne_u32 vcc, s{sNON}, v116
s_cbranch_vccz KS_o
ds_write_b32 v{VZ}, v{FA} offset:{mSLOW}
KS_o:
""")
    pt('flg')
    if PRIO: a("s_setprio 3")
    bar('b3')
    a(f"ds_read_b32 v1, v{VZ} offset:{mNT}\ns_waitcnt lgkmcnt(0)\nv_readfirstlane_b32 s{sNT}, v1")
    ranges()
    a("KF_J:")
    def rd_ga(off): a(f"ds_read_u16 v{GA0}, v{SB} offset:{GL+off}\nds_read_u16 v{GA0+1}, v{SB} offset:{GL+off+8}")
    def rd_gg(off): a(f"ds_read_u16 v{YA}, v{RB} offset:{GL+off}")
    def rd_y(): a(f"v_lshl_add_u32 v{EA}, v{YA}, 1, v{EC}\nv_add_u32 v{YA}, v{YA}, v{M4}\nds_read_u16 v{VY}, v{YA} offset:{WB+2}")
    def rd_idx():
        for i in range(8): a(f"ds_read_u16 v{IDX+2*i}, v{GA0+(i>>2)} offset:{WB+4*(i&3)}")
    def dma1(i):
        L=[]
        if i==0: L.append(f"s_mov_b32 m0, s{sBUF}\ns_nop 0")
        if i==4: L.append(f"s_add_u32 m0, s{sBUF}, 4096\ns_nop 0")
        L.append(f"buffer_load_dwordx4 {P2(IDX+2*i)}, {SR4(sP)}, 0 idxen offen offset:{1024*(i&3)}{GSC} lds")
        return "\n".join(L)
    def dma():
        for i in range(8): a(dma1(i))
    def rd_b3(q): return f"ds_read_addtid_b32 v{B3+4*q} offset:{Q2+q*QS}\nds_read_addtid_b32 v{B3+4*q+1} offset:{Q2+q*QS+256}"
    def rd_a3(): return f"ds_read_b64 {P2(A3)}, v{VY} offset:{OH}\nds_read_b64 {P2(A3+2)}, v{EA}"
    def rd_a(t): return f"ds_read_b128 {P4(A+4*t)}, v{AR+t}"
    rd_s=f"s_mov_b64 exec, {S2(sMA)}\nds_read_b64 {P2(SS)}, v{SA} offset:{STB}\ns_mov_b64 exec, {S2(sMB)}\nds_read_b64 {P2(SS+2)}, v{SA} offset:{STB}\ns_mov_b64 exec, -1"
    rd_ga(0); rd_gg(0)
    a(f"""
ds_read_u16 v{WT}, v1 offset:{GL}
ds_read_b32 v{GP}, v{VZ} offset:{mSLOW}
s_waitcnt lgkmcnt(3)
""")
    rd_idx()
    a("s_waitcnt lgkmcnt(0)")
    dma()
    pt('d0')
    a(f"v_readfirstlane_b32 s{sNF}, v{WT}\nv_readfirstlane_b32 s{t3}, v{GP}")
    rd_y(); rd_ga(16)
    uscale()
    a("s_waitcnt lgkmcnt(0)")
    rd_idx()
    a(f"""
s_cmp_lg_u32 s{t3}, 0
s_cbranch_scc1 KF_SLOW
s_lshr_b32 s{sNF}, s{sNF}, 8
v_subrev_u32 v2, s{sNF}, v{VL}
v_and_b32 v2, 15, v2
v_add_u32 v{DR}, s{sNF}, v2
v_lshlrev_b32 v2, 2, v{DR}
ds_read_b32 v{GP}, v2 offset:{BT}
s_mul_i32 s{sW8}, s{sNF}, -8
s_lshl_b32 m0, s{sNF}, 7
v_add3_u32 v{VY}, v{VY}, v{OHC}, s{sW8}
""")
    for q in range(4): a(rd_b3(q))
    a(rd_a3())
    a(f"""
v_mov_b32 v{SS}, 0
v_mov_b32 v{SS+1}, 0
v_mov_b32 v{SS+2}, 0
v_mov_b32 v{SS+3}, 0
s_add_u32 s{t1}, s{sT0}, s{sCNT}
s_lshl_b32 s{t1}, s{t1}, 7
s_add_u32 s{t2}, s{sWV}, 48
v_mov_b32 v1, s{t2}
{mfma32(ACC+16,SS,SS,None)}
s_waitcnt lgkmcnt(10)
v_cmp_gt_u32 vcc, s{t0}, v{GP}
v_cmp_gt_u32 {S2(t2)}, s{t1}, v{GP}
v_cmp_gt_u32 {S2(t0)}, s{sNN}, v{DR}
v_cndmask_b32 v{DR}, v{DR}, v1, vcc
s_cmp_lg_u64 vcc, 0
s_cselect_b32 s{sHEAD}, 1, 0
s_and_b64 vcc, {S2(t2)}, {S2(t0)}
v_lshrrev_b32 v1, 2, v{VL}
v_cndmask_b32 v{DR}, 63, v{DR}, vcc
v_and_b32 v1, 4, v1
v_xor_b32 v1, v1, v{DR}
v_and_b32 v1, 15, v1
v_lshlrev_b32 v1, 4, v1
v_lshl_add_u32 v{DR}, v{DR}, 8, v1
v_sub_u32 v{DR}, v{DR}, v{OHC}
s_mov_b32 s{sI}, 1
s_sub_u32 s{sCNT}, s{sCNT}, 1
""")
    pt('pre')
    a("s_waitcnt vmcnt(0)")
    pt('g0')
    for t in range(8): a(rd_a(t))
    a("s_waitcnt lgkmcnt(6)")
    a(mfma32(Z[0],A3,B3,None)); a(mfma32(Z[0],A,ID0,Z[0])); a(mfma32(Z[0],A+4,ID1,Z[0]))
    a("s_nop 3\ns_waitcnt lgkmcnt(0)")
    pt('pro')
    def finals(qprev):
        for u in range(2): a(f"v_pk_mul_f32 {P2(NN+2*u)}, {P2(NN+2*u)}, {P2(DD+2*u)}")
        for u in range(2): a(f"v_cvt_pk_bf16_f32 v{GP+2*(qprev&1)+u}, v{NN+2*u}, v{NN+2*u+1}")
    def ex(zc,r): return f"v_exp_f32 v{EE+r}, v{zc+r}"
    def body(first):
        for q in range(4):
            zc=Z[q&1]; zn=Z[(q+1)&1]; qn=(q+1)&3
            ms=[(A3,B3+4*qn),(A+8*qn,ID0),(A+8*qn+4,ID1)]
            if q==3: ms=[ms[1],ms[2],ms[0]]
            pend=[0,1,2,3,8,9,10,11,4,5,12,13,6,7,14,15]
            f0=first and q==0
            if q==0:
                a(f"v_readlane_b32 s{sQ}, v{WT}, s{sI}")
                rd_gg(16); rd_ga(32)
                if first: a("s_nop 1")
            if q==1:
                a("s_waitcnt lgkmcnt(4)"); rd_y(); rd_idx()
            if q==2:
                a("s_waitcnt vmcnt(0)")
                for t in range(6): a(rd_a(t))
            if q==3:
                a(f"s_waitcnt lgkmcnt(0)\ns_cmp_gt_u32 s{sCNT}, 1\ns_cselect_b64 vcc, -1, 0")
            a(mfma32(zn,ms[0][0],ms[0][1],None))
            if not f0:
                for j in range(4): a(f"v_rcp_f32 v{DD+j}, v{DD+j}")
            else:
                for r in range(4): a(ex(zc,pend.pop(0)))
            if q==0:
                a(f"s_lshr_b32 s{sQ}, s{sQ}, 8\ns_lshl_b32 m0, s{sQ}, 7\ns_mul_i32 s{sW8}, s{sQ}, -8")
                a(rd_b3(0)); a(rd_b3(1))
            if q==1:
                if first: a(f"s_lshl_b32 m0, s{sQ}, 7\ns_nop 0")
                a(rd_b3(2))
            if q==2: a(rd_b3(3)); a(rd_a3())
            a(mfma32(zn,ms[1][0],ms[1][1],zn))
            for r in range(4): a(ex(zc,pend.pop(0)))
            a(mfma32(zn,ms[2][0],ms[2][1],zn))
            for r in range(4): a(ex(zc,pend.pop(0)))
            if q&1:
                p=1 if q==1 else 0
                if not (first and q==1):
                    a(mfma32(ACC+16*p,GP,SS,None if first else ACC+16*p))
                    for r in range(4): a(ex(zc,pend.pop(0)))
                if q==1: a(rd_s)
            if q==2: a(rd_a(6)); a(rd_a(7))
            if not f0: finals((q-1)&3)
            seq=[]
            for u in range(2): seq.append(f"v_pk_add_f32 {P2(DD+2*u)}, {P2(EE+8*u)}, 1.0 op_sel_hi:[1,0]")
            for m in range(1,4):
                for u in range(2):
                    src=(zc+8*u) if m==1 else NN+2*u
                    seq.append(f"v_pk_fma_f32 {P2(NN+2*u)}, {P2(src)}, {P2(EE+8*u+2*m)}, {P2(src)}")
                for u in range(2): seq.append(f"v_pk_fma_f32 {P2(NN+2*u)}, {P2(zc+8*u+2*m)}, {P2(DD+2*u)}, {P2(NN+2*u)}")
                for u in range(2): seq.append(f"v_pk_fma_f32 {P2(DD+2*u)}, {P2(DD+2*u)}, {P2(EE+8*u+2*m)}, {P2(DD+2*u)}")
            slots=[0,1,2,3,5,7,9,11] if len(pend)==8 else [1,4,7,10]
            dpos={}
            if (q==3 or f0) and not X&1:
                for i in range(8): dpos.setdefault(DSP[i],[]).append(i)
            for k,x in enumerate(seq):
                if k in dpos:
                    guard=(q==3 and not first)
                    lab=f"KF_l{k}"
                    if guard: a(f"s_cbranch_vccz {lab}")
                    for i in dpos[k]: a(dma1(i))
                    if guard:
                        if k==max(dpos):
                            a(f"s_branch {lab}b\n{lab}:\ns_cmp_eq_u32 s{sCNT}, s{sWU}\ns_cbranch_scc0 {lab}b")
                            sdma(sA,32768,0,TD)
                            a(f"{lab}b:")
                        else: a(f"{lab}:")
                a(x)
                if k in slots: a(ex(zc,pend.pop(0)))
            if q==1: a(f"s_waitcnt lgkmcnt(4)\nv_add3_u32 v{VY}, v{VY}, v{OHC}, s{sW8}\nv_add_u32 v{SA}, 16, v{SA}")
            if q==2: a(f"v_pk_add_f32 {P2(RB)}, {P2(RB)}, {S2(sINC)}")
    body(True)
    a("s_branch KF_LE\n.p2align 6\nKF_LOOP:")
    body(False)
    a("KF_LE:")
    if PRIO:
        for rem,pr in ((5,2),(3,1),(1,0)):
            a(f"s_cmp_eq_u32 s{sCNT}, {rem}\ns_cbranch_scc0 KF_pr{rem}\ns_setprio {pr}\nKF_pr{rem}:")
    a(f"""
s_add_u32 s{sI}, s{sI}, 1
s_sub_u32 s{sCNT}, s{sCNT}, 1
s_cbranch_scc0 KF_LOOP
""")
    for j in range(4): a(f"v_rcp_f32 v{DD+j}, v{DD+j}")
    a("s_nop 0")
    finals(3)
    a("s_nop 1")
    a(mfma32(ACC+16,GP,SS,ACC+16))
    pt('loop')
    for p in range(2):
        if p==1: a("s_nop 0")
        for j in range(4):
            c=ACC+16*p+4*j
            a(f"v_cvt_pk_bf16_f32 v{c}, v{c}, v{c+1}\nv_cvt_pk_bf16_f32 v{c+1}, v{c+2}, v{c+3}")
            if p or j: a(f"v_xor_b32 v1, {(8*p+j)*16}, v{DR}")
            a(f"ds_write_b64 v{1 if (p or j) else DR}, {P2(c)} offset:{AGB}")
    a(f"""
s_and_b32 s{t1}, s{sNF}, 15
s_lshl_b32 s{t1}, s{t1}, 4
s_lshl_b32 s{t0}, s{sNF}, 8
s_or_b32 s{t0}, s{t0}, s{t1}
s_mul_i32 s{t1}, s{sWV}, 272
s_add_u32 s{t1}, s{t1}, {48*256}
v_lshlrev_b32 v3, 2, v{VL}
v_xor_b32 v1, s{t0}, v3
v_xor_b32 v2, s{t1}, v3
s_cmp_eq_u32 s{sHEAD}, 0
s_waitcnt vmcnt(0) lgkmcnt(0)
s_barrier
s_cbranch_scc1 KF_FIN
ds_read_b32 v4, v1 offset:{AGB}
ds_read_b32 v5, v2 offset:{AGB}
s_waitcnt lgkmcnt(0)
v_lshlrev_b32 v6, 16, v4
v_and_b32 v7, 0xffff0000, v4
v_lshlrev_b32 v8, 16, v5
v_and_b32 v9, 0xffff0000, v5
v_pk_add_f32 v[6:7], v[6:7], v[8:9]
v_cvt_pk_bf16_f32 v6, v6, v7
ds_write_b32 v1, v6 offset:{AGB}
KF_FIN:
""")
    OST=GBUF
    tru(WU2,32768)
    srd(a,sX,16,N*256)
    a(f"""
v_and_b32 v1, 15, v{VL}
s_lshl_b32 s{t0}, s{sOT}, 1
v_lshrrev_b32 v2, 5, v{VL}
v_or_b32 v2, s{t0}, v2
v_xor_b32 v2, v2, v1
v_lshlrev_b32 v2, 4, v2
v_lshl_add_u32 v2, v1, 8, v2
v_lshrrev_b32 v3, 1, v{VL}
v_and_or_b32 v2, v3, 8, v2
v_add_u32 v{AR}, {OST}, v2
v_lshlrev_b32 v{AR+1}, 1, v1
""")
    bar('mrg',"s_waitcnt vmcnt(0) lgkmcnt(0)")
    for T in range(4):
        xfrags([T])
        if T==2:
            a("s_waitcnt lgkmcnt(8)")
            for s in range(4): a(mfma16(UA,WU2+4*s,XF+4*s,UA))
    def silu(T):
        c=UA+4*T; e=EE+4*T
        L=[f"v_exp_f32 v{e+i}, v{c+i}" for i in range(4)]
        L+=[f"v_fma_f32 v{e+i}, v{e+i}, s{sL2E}, s{sL2E}" for i in range(4)]
        L+=[f"v_rcp_f32 v{e+i}, v{e+i}" for i in range(4)]
        L+=[f"v_mul_f32 v{e+i}, v{e+i}, v{c+i}" for i in range(4)]
        L+=[f"v_cvt_pk_bf16_f32 v{e}, v{e}, v{e+1}",f"v_cvt_pk_bf16_f32 v{e+1}, v{e+2}, v{e+3}",f"ds_write_b64 v{AR}, {P2(e)} offset:{T*4096}"]
        return L
    for T in range(1,4):
        a(f"s_waitcnt lgkmcnt({4*(3-T)})")
        for s in range(4):
            x,y=(WU2+4*s,XF+16*T+4*s) if T<3 else (XF+16*T+4*s,WU2+4*s)
            a(mfma16(UA+4*T,x,y,UA+4*T))
    for T in range(3):
        for x in silu(T): a(x)
    c=UA+12; e=EE+12
    a(f"""
v_exp_f32 v{e}, v{c}
s_add_u32 s{t0}, s{sK}, {48*256}
v_fma_f32 v{e}, v{e}, s{sL2E}, s{sL2E}
v_rcp_f32 v{e}, v{e}
s_lshl_b32 s{t0}, s{t0}, 8
v_mul_f32 v{e}, v{e}, v{c}
s_lshl_b32 s{t1}, s{sOT}, 5
s_add_u32 s{t0}, s{t0}, s{t1}
v_cvt_pk_bf16_f32 v{e}, v{e}, v{e}
s_mov_b32 exec_lo, 0xffff
s_mov_b32 exec_hi, 0
buffer_store_short v{e}, v{AR+1}, {SR4(sX)}, s{t0} offen{OSC}
s_mov_b64 exec, -1
v_lshlrev_b32 v1, 4, v0
v_add_u32 v1, {OST}, v1
v_lshrrev_b32 v2, 4, v0
v_xor_b32 v3, v2, v0
v_and_b32 v3, 15, v3
v_lshlrev_b32 v3, 4, v3
v_lshl_add_u32 v3, v2, 16, v3
s_lshl_b32 s{t0}, s{sK}, 8
s_add_u32 s{t1}, s{t0}, {32*65536}
s_waitcnt lgkmcnt(0)
s_barrier
ds_read_b128 {P4(A)}, v1
s_cmp_lt_u32 s{sWV}, 4
s_cbranch_scc0 KF_e1
ds_read_b128 {P4(A+4)}, v1 offset:8192
s_waitcnt lgkmcnt(0)
buffer_store_dwordx4 {P4(A+4)}, v3, {SR4(sX)}, s{t1} offen{OSC}
KF_e1:
s_waitcnt lgkmcnt(0)
buffer_store_dwordx4 {P4(A)}, v3, {SR4(sX)}, s{t0} offen{OSC}
""")
    a(f"""
s_or_b32 s{t0}, s2, s{sWV}
s_cbranch_scc1 KF_e2
v_mov_b32 v1, s{sNON}
v_mov_b32 v2, 0
s_mov_b64 exec, 1
buffer_store_dword v1, v2, {SR4(sR)}, 0 offen
KF_e2:
""")
    if PROF: a("s_waitcnt vmcnt(0)")
    stamp(a,10); stamp(a,11,True)
    stamp_out(a,1,sWV)
    a("KF_END:\ns_endpgm")
    hist_retry(8,"KT_h")
    SV=ACC; AGs=SV+8; RS_=SV+16
    a(f"""
KF_SLOW:
s_setprio 0
s_cmp_ge_u32 s{sWV}, 4
s_cselect_b32 s{sTOT}, 0, s{sTOT}
v_mov_b32 v1, s{sTOT}
ds_max_u32 v{VZ}, v1 offset:{mMX}
v_mov_b32 v{SS}, 0
v_mov_b32 v{SS+1}, 0
v_mov_b32 v{SS+2}, 0
v_mov_b32 v{SS+3}, 0
s_mov_b32 s{sLO}, 0
s_mov_b32 s{sLB}, s{sBUF}
s_sub_u32 s{t0}, s{sWV}, s{sT0}
s_lshl_b32 s{t0}, s{t0}, 4
v_add_u32 v{SV+4}, s{t0}, v{RB}
v_add_u32 v{SV+5}, s{t0}, v{SB}
s_lshl_b32 s{t0}, s{sWV}, 4
v_sub_u32 v{SV+6}, s{t0}, v{OHC}
v_and_b32 v{SV+7}, 31, v{VL}
v_lshlrev_b32 v{SV+7}, 2, v{SV+7}
v_lshlrev_b32 v1, 4, v0
""")
    for j in range(3): a(f"ds_write_b128 v1, {P4(SS)} offset:{AGG+j*8192}")
    a(f"""
v_lshlrev_b32 v1, 4, v{VL}
ds_write_b128 v1, {P4(SS)} offset:{AGG+3*8192}
s_waitcnt vmcnt(0) lgkmcnt(0)
s_barrier
ds_read_b32 v1, v{VZ} offset:{mMX}
s_waitcnt lgkmcnt(0)
v_readfirstlane_b32 s{sRND}, v1
KF_SR:
s_cmp_lt_u32 s{sLO}, s{sRND}
s_cbranch_scc0 KF_SE
s_barrier
v_lshlrev_b32 v1, 2, v{VL}
v_lshlrev_b32 v2, 8, v{VL}
ds_write_b32 v1, v2
s_waitcnt lgkmcnt(0)
s_barrier
s_cmp_ge_u32 s{sWV}, 4
s_cbranch_scc1 KF_S1
s_movk_i32 s{t3}, 256
""")
    expand("KF_x")
    a(f"s_sub_u32 s{t1}, s{sTOT}, s{sLO}")
    reclist(4)
    recload(4,"KF_rl")
    hist(4,"KF_h",0,False)
    a("s_waitcnt lgkmcnt(0)")
    for i in range(4):
        a(f"""
v_mov_b32 v{RS_+4*i}, v{RC+4*i}
v_mov_b32 v{RS_+4*i+1}, v{RC+4*i+1}
v_mov_b32 v{RS_+4*i+2}, v{RC+4*i+2}
v_lshlrev_b32 v1, 6, v{RC+4*i+3}
v_sub_u32 v1, v{RK+i}, v1
v_cndmask_b32 v{RS_+4*i+3}, -1, v1, {S2(sM+2*i)}
""")
    a(f"""
KF_S1:
s_mov_b32 s{sHEAD}, 0                    ; 256*k
KF_SK:
s_waitcnt lgkmcnt(0)
s_barrier
s_cmp_ge_u32 s{sWV}, 4
s_cbranch_scc1 KF_S2
s_mov_b32 s{t1}, {EB}
""")
    for i in range(4):
        a(f"""
v_subrev_u32 v1, s{sHEAD}, v{RS_+4*i+3}
v_lshrrev_b32 v2, 19, v{RS_+4*i+2}
v_lshl_add_u32 v2, v2, 8, v1
v_lshl_add_u32 v3, v2, 1, s{t1}
v_cmpx_gt_u32 vcc, 0x100, v1
ds_write_b32 v2, v{RS_+4*i+2} offset:{WB}
ds_write_b64 v3, {P2(RS_+4*i)}
s_mov_b64 exec, -1
""")
    a("KF_S2:")
    scan(True)
    a(f"s_cmp_lg_u64 {S2(t2)}, 0\ns_cselect_b32 s{sFLAG}, 1, 0")
    fill("KFs",True,8)
    a(f"""
s_add_u32 s{sNT}, s{t0}, 127
s_lshr_b32 s{sNT}, s{sNT}, 7
s_waitcnt lgkmcnt(0)
s_barrier
v_mov_b32 v{RB}, v{SV+4}
v_mov_b32 v{SB}, v{SV+5}
v_mov_b32 v{SV+12}, v{SV+6}
s_mov_b32 s{sI}, s{sWV}
KF_SL:
s_cmp_lt_u32 s{sI}, s{sNT}
s_cbranch_scc0 KF_SN
""")
    rd_ga(0); rd_gg(0)
    for j in range(4): a(f"ds_read_u16 v{AGs+j}, v{SV+12} offset:{GL+2*j}")
    a("s_waitcnt lgkmcnt(0)")
    rd_y(); rd_idx()
    a("s_waitcnt lgkmcnt(0)")
    dma()
    for j in range(4): a(f"v_lshrrev_b32 v{AGs+j}, 8, v{AGs+j}")
    a(f"""
v_readfirstlane_b32 s{sQ}, v{AGs}
s_nop 3
s_mul_i32 s{sW8}, s{sQ}, -8
s_lshl_b32 m0, s{sQ}, 7
v_add3_u32 v{VY}, v{VY}, v{OHC}, s{sW8}
""")
    for q in range(4): a(rd_b3(q))
    a(rd_a3())
    for j in range(4): a(f"v_lshl_add_u32 v{AGs+j}, v{AGs+j}, 9, v{SV+7}")
    a("s_waitcnt vmcnt(0) lgkmcnt(0)")
    for t in range(8): a(rd_a(t))
    a("s_waitcnt lgkmcnt(0)")
    for q in range(4):
        z=Z[0]
        a(mfma32(z,A3,B3+4*q,None)); a(mfma32(z,A+8*q,ID0,z)); a(mfma32(z,A+8*q+4,ID1,z))
        a("s_nop 15")
        for r in range(16): a(f"v_exp_f32 v{EE+r}, v{z+r}")
        for r in range(16): a(f"v_add_f32 v{EE+r}, 1.0, v{EE+r}")
        for r in range(16): a(f"v_rcp_f32 v{EE+r}, v{EE+r}")
        for m in range(4):
            for u in range(2):
                for par in range(2):
                    r=8*u+2*m+par; g=GP+2*u+par
                    a(f"v_mul_f32 v{g}, v{z+r}, v{EE+r}" if m==0 else f"v_fmac_f32 v{g}, v{z+r}, v{EE+r}")
        for j in range(4): a(f"ds_add_f32 v{AGs+j}, v{GP+j} offset:{AGG+q*128}")
        a("s_waitcnt lgkmcnt(0)")
    a(f"""
v_add_u32 v{SB}, 128, v{SB}
v_add_u32 v{RB}, 128, v{RB}
v_add_u32 v{SV+12}, 128, v{SV+12}
s_add_u32 s{sI}, s{sI}, 8
s_branch KF_SL
KF_SN:
s_add_u32 s{sHEAD}, s{sHEAD}, 256
s_cmp_lg_u32 s{sFLAG}, 0
s_cbranch_scc1 KF_SK
s_add_u32 s{sLO}, s{sLO}, 256
s_branch KF_SR
KF_SE:
s_cmp_ge_u32 s{sWV}, 4
s_cbranch_scc0 KF_SE2
""")
    sdma(sA,32768,0,TD)
    a(f"""
KF_SE2:
v_lshlrev_b32 v1, 4, v0
v_lshrrev_b32 v2, 5, v0
s_waitcnt vmcnt(0) lgkmcnt(0)
s_barrier
""")
    for j in range(4): a(f"ds_read_b128 {P4(A+4*j)}, v1 offset:{AGG+j*8192}")
    a(f"""
v_bfe_u32 v3, v0, 1, 4
v_xor_b32 v3, v3, v2
v_lshlrev_b32 v3, 4, v3
v_lshl_add_u32 v3, v2, 8, v3
v_and_b32 v1, 1, v0
v_lshl_add_u32 v3, v1, 3, v3
s_waitcnt lgkmcnt(0)
s_barrier
""")
    for j in range(4):
        a(f"v_cvt_pk_bf16_f32 v{A+4*j}, v{A+4*j}, v{A+4*j+1}\nv_cvt_pk_bf16_f32 v{A+4*j+1}, v{A+4*j+2}, v{A+4*j+3}")
        a(f"ds_write_b64 v3, {P2(A+4*j)} offset:{AGB+j*4096}")
    a("s_branch KF_FIN")
    hist_retry(4,"KF_h")
    return a.text()

if __name__=='__main__':
    import sys
    nm='standalone__mpnn_edge_mlp__graph_kernel'
    hdr=open('standalone__mpnn_edge_mlp__graph.s.ref').read().split('; Override')[0]
    out=hdr+(f"; @launch kernel={nm} grid=(256,1,1) block=(512,1,1) lds={KF_LDS}\n" if os.environ.get('LISTF') else f"; @launch grid=(256,1,1) block=(512,1,1) lds={KF_LDS}\n")
    out+='.amdgcn_target "amdgcn-amd-amdhsa--gfx950"\n.text\n'
    out+=f".globl {nm}\n.p2align 8\n.type {nm},@function\n"+gen_kf(nm)
    out+='.section .rodata,"a"\n.p2align 6\n'+kd(nm,256)
    open(sys.argv[1],'w').write(out)
```

```python
from common import *
X=int(os.environ.get('X','0'))
PRIO=int(os.environ.get('PRIO','1'))
DSP=[int(c,36) for c in os.environ.get('DSP','00000000')]
def EV(n,d): return int(os.environ.get(n,d))
TPOS=EV('TPOS',6); PFP=EV('PFP',0); XORD=EV('XORD',2); WUI=EV('WUI',2); FLP=EV('FLP',1); FSL=EV('FSL',8); TE=EV('TE',1); W1N=EV('W1N',5); GP_=EV('GP',0); CPF=EV('CPF',0); PFI=EV('PFI',1); SWW=EV('SWW',1)
PTS=os.environ.get('PTS','b1,bS,tp,pfl,rl,b2,b3,pro').split(',')
SC=' sc1'
OSC=os.environ.get('OSC',' sc1')
GSC=os.environ.get('GSC',' sc1')
NPROD=250; EP=1600
F_P=0x1000; F_REC=0x400000; F_TBL=0xB00000; F_FLG=0xB90000; F_SIZE=0xBA0000
CNT=0; MISC=256; OH=392; GL=928; BT=1872; STB=2144; RS=944
mSLOW=MISC; mS=MISC+4; mGX=MISC+8; mGP=MISC+12; mC3=MISC+16; mPD=MISC+20; mSL=MISC+24; mMX=MISC+28; mPI=MISC+32; mH=MISC+36; mNT=MISC+40; mW=MISC+44
AGB=17408
W3L=AGB+56*256
Q2=AGB+16384; QS=52*128
S1=Q2; ERAW=Q2+12800
WB=Q2+4*QS; NULLG=49*256; EB=WB+NULLG+16
HIST=WB; PSC=WB+2048
GBUF=98304
KF_LDS=GBUF+65536
assert EB+2*NULLG+32<=GBUF and STB+16*RS<=AGB
AGG=STB
ONE2=0x3F803F80
NULLW2=0xFFFF|(512<<16)
CAPT=58
ID0=4; ID1=8; B3=12; A=28; Z=[60,76]; A3=92; EE=96; NN=112; DD=116; GP=120; SS=124
IDX=128; AR=144; RB=152; SB=153; SA=154; VY=155; OHC=156; VL=157; WT=158; DR=159
ACC=160; WU2=192; UA=208; WF=160; WU1=176; QA=224; RC=96; XF=28; GA=192
GA0=232; YA=234; EA=235; M4=236; EC=237; VZ=238; PO=92; TRU=240; TD=241; TC=242; TO=243; RK=244; FA=252
sP=24; sX=28; sA=32; sR=36; sM=40
sWV=56; sK=57; sNN=58; sI=59; sNT=60; sBUF=61; sQ=62; sW8=63; sCNT=64; sT0=65
sL2E=66; sINC=68; sRND=70; sTOT=71; sNON=72; sBUD=73; sW4=74; sLB=75
sWU=3; sW4K=22; sOT=23; sFLAG=76; sLO=77; sMA=78; sMB=80; sHEAD=82; sNF=83
t0,t1,t2,t3=84,85,86,87
BUDGET=20000

def mfma32(d,x,y,c): return f"v_mfma_f32_32x32x16_bf16 v[{d}:{d+15}], v[{x}:{x+3}], v[{y}:{y+3}], "+("0" if c is None else f"v[{c}:{c+15}]")
def mfma16(d,x,y,c): return f"v_mfma_f32_16x16x32_bf16 v[{d}:{d+3}], v[{x}:{x+3}], v[{y}:{y+3}], "+("0" if c is None else f"v[{c}:{c+3}]")
def P2(r): return f"v[{r}:{r+1}]"
def P4(r): return f"v[{r}:{r+3}]"
def S2(r): return f"s[{r}:{r+1}]"
def SR4(r): return f"s[{r}:{r+3}]"

def gen_kf(name):
    a=Asm()
    def pt(n):
        if PROF and n in PTS: stamp(a,2+PTS.index(n))
    def bar(n,w="s_waitcnt lgkmcnt(0)"):
        a(w+"\ns_barrier"); pt(n)
    def gsync(n,lab,off,target,va,vt,pre=None):
        if pre: a(pre)
        a(f"""
v_mov_b32 v{vt}, 1
s_mov_b64 exec, 1
ds_add_u32 v{va}, v{vt} offset:{off}
s_mov_b64 exec, -1
{lab}:
ds_read_b32 v{vt}, v{va} offset:{off}
s_waitcnt lgkmcnt(0)
v_readfirstlane_b32 s{t1}, v{vt}
s_and_b32 s{t1}, s{t1}, 255
s_cmp_lt_u32 s{t1}, {target}
s_cbranch_scc1 {lab}
""")
        pt(n)
    def gwait(lab,off,target,va,vt):
        a(f"""
{lab}:
ds_read_b32 v{vt}, v{va} offset:{off}
s_waitcnt lgkmcnt(0)
v_readfirstlane_b32 s{t1}, v{vt}
s_and_b32 s{t1}, s{t1}, 255
s_cmp_lt_u32 s{t1}, {target}
s_cbranch_scc1 {lab}
""")
    def consts():
        srd(a,sP,20,N,off=F_P-3072,stride=256)
        srd(a,sR,20,F_SIZE)
        a(f"""
s_cmp_lt_u32 s{sK}, {N-256*48}
s_cselect_b32 s{sNN}, 49, 48
s_mov_b32 s{sL2E}, {hex(LOG2E_NEG)}
s_mov_b32 s{sL2E+1}, {hex(LOG2E_NEG)}
s_mov_b32 s{sINC}, 16
s_mov_b32 s{sINC+1}, 16
s_mov_b32 s{sMA}, 0x0000ffff
s_mov_b32 s{sMA+1}, 0x0000ffff
s_not_b64 {S2(sMB)}, {S2(sMA)}
s_mov_b32 s{sBUD}, {BUDGET}
v_lshrrev_b32 v2, 5, v{VL}              ; h
; g = 4 b2 + 2 b4 + b0 ; m = 2 b3 + b1 ; slot = 16 b2 + 4 m + (g&3)
v_lshrrev_b32 v1, 3, v{VL}
v_and_b32 v1, 2, v1
v_and_or_b32 v1, v{VL}, 5, v1           ; g
v_lshlrev_b32 v{RB}, 1, v1
v_lshlrev_b32 v3, 1, v{VL}
v_and_b32 v3, 4, v3
v_and_or_b32 v{M4}, v{VL}, 8, v3        ; 4m
v_lshlrev_b32 v{EC}, 1, v{M4}
v_add_u32 v{EC}, {EB}, v{EC}
v_lshlrev_b32 v3, 2, v1
v_and_or_b32 v3, v3, 16, v{M4}
v_and_or_b32 v3, v1, 3, v3              ; slot
v_lshl_add_u32 v3, v3, 8, s{sBUF}
v_and_b32 v{WT}, 15, v{VL}              ; n / c16
v_xor_b32 v1, v2, v{WT}
v_lshl_add_u32 v{AR}, v1, 4, v3
""")
        for t in range(1,8): a(f"v_xor_b32 v{AR+t}, {32*t}, v{AR}")
        a(f"""
v_mul_i32_i24 v{OHC}, -8, v2
v_mul_u32_u24 v{SA}, {RS}, v{WT}
v_and_b32 v1, 1, v{VL}
v_lshlrev_b32 v1, 4, v1
v_mov_b32 v3, 0x3f80
v_lshlrev_b32 v1, v1, v3
""")
        for s in range(2):
            for j in range(4):
                lo=3<<(16*s+2*j); hi=(3<<(16*s+8+2*j))
                a(f"s_mov_b32 vcc_lo, {hex(lo)}\ns_mov_b32 vcc_hi, {hex(hi)}\nv_cndmask_b32 v{ID0+4*s+j}, 0, v1, vcc")
        a(f"""
v_lshrrev_b32 v2, 4, v{VL}              ; a / g
v_lshlrev_b32 v{SB}, 1, v2
v_and_b32 v1, 1, v2
v_xor_b32 v1, v1, v{WT}
v_lshlrev_b32 v1, 4, v1
""")
        for i in range(8): a(f"v_xor_b32 v{IDX+2*i+1}, {(8*((i>>1)&1)+4*(i>>2)+2*(i&1))*16+3072-1024*(i&3)}, v1")
        a(f"v_xor_b32 v3, v2, v{WT}\nv_lshlrev_b32 v3, 4, v3\nv_lshl_add_u32 v3, v{WT}, 8, v3\nv_add_u32 v{FA}, {AGB}, v3")
        for s in range(1,4): a(f"v_xor_b32 v{FA+s}, {64*s}, v{FA}")
        a(f"""
s_lshl_b32 s{t0}, s{sW4}, 13
s_add_u32 s{t0}, s{t0}, {GBUF}
s_lshr_b32 s{t1}, s{sWV}, 2
s_lshl_b32 s{sOT}, s{sW4}, 1
s_or_b32 s{sOT}, s{sOT}, s{t1}
v_lshrrev_b32 v1, 2, v{WT}
v_lshl_add_u32 v1, v2, 3, v1
v_lshl_add_u32 v{DR}, v1, 6, s{t0}
v_xor_b32 v2, s{t1}, v2
v_and_b32 v2, 1, v2
v_and_b32 v3, 3, v{VL}
v_lshl_add_u32 v{TRU}, v2, 5, v{DR}
v_lshl_add_u32 v{TRU}, v3, 3, v{TRU}
""")
    def tagh():
        a(f"""
s_mul_i32 s{sNON}, s{sNON}, 0x9E3779B1
s_add_u32 s{sNON}, s{sNON}, 0x7F4A7C15
s_lshr_b32 s{t1}, s{sNON}, 15
s_xor_b32 s{sNON}, s{sNON}, s{t1}
""")
    def vyc():
        a(f"""
v_lshrrev_b32 v1, 4, v{VL}
v_and_b32 v1, 2, v1
v_xor_b32 v1, v1, v{VL}
v_and_b32 v1, 3, v1
v_lshlrev_b32 v1, 4, v1
v_lshrrev_b32 v2, 2, v{VL}
v_lshl_or_b32 v{VY}, v2, 8, v1
""")
    def trfrag(dst,addr,off,ks,hs):
        for s in range(4):
            a(f"ds_read_b64_tr_b16 {P2(dst+4*s)}, v{addr} offset:{off+s*ks}\nds_read_b64_tr_b16 {P2(dst+4*s+2)}, v{addr} offset:{off+s*ks+hs}")
    def tru(dst,off): trfrag(dst,TRU,off,2048,256)
    def sdma(sr,moff,loff=0,v=VY,js=range(8)):
        a(f"s_lshl_b32 s{t0}, s{sW4}, 6")
        for j in js:
            a(f"s_add_u32 m0, s{sBUF}, {loff+j*1024}\ns_add_u32 s{t1}, s{t0}, {moff+j*4096}\nbuffer_load_dwordx4 v{v}, {SR4(sr)}, s{t1} offen lds")
    def xfrags(Ts):
        for T in Ts:
            for s in range(4): a(f"ds_read_b128 {P4(XF+16*T+4*s)}, v{FA+s} offset:{T*4096}")
    def ugemm():
        for T in range(4):
            for s in range(4):
                x,y=(WU1+4*s,XF+16*T+4*s) if T<3 else (XF+16*T+4*s,WU1+4*s)
                a(mfma16(UA+4*T,x,y,None if s==0 else UA+4*T))
    def uscale():
        for j in range(7): a(f"v_pk_mul_f32 {P2(UA+2*j)}, {P2(UA+2*j)}, {S2(sL2E)}")
    def w3rd():
        a(f"v_lshlrev_b32 v1, 3, v{VL}")
        for q in range(4): a(f"ds_read_b64 {P2(B3+4*q+2)}, v1 offset:{W3L+q*512}")
    F=A3
    def scan(slow):
        a(f"""
v_lshlrev_b32 v1, 2, v{VL}
ds_read_b32 v{F}, v1
v_cmp_gt_u32 vcc, s{sNN}, v{VL}
v_lshlrev_b32 v{F+1}, 8, v{VL}
s_waitcnt lgkmcnt(0)
v_sub_u32 v{QA}, v{F}, v{F+1}
""")
        if slow:
            a(f"""
s_movk_i32 s{t1}, 256
v_subrev_u32 v{QA}, s{sHEAD}, v{QA}
v_cmp_lt_i32 {S2(t2)}, s{t1}, v{QA}
v_med3_i32 v{QA}, v{QA}, 0, s{t1}
v_add_u32 v{F}, v{F+1}, v{QA}
""")
        a(f"""
v_add_u32 v3, 12, v{QA}
v_and_b32 v3, -16, v3
v_max_u32 v3, 80, v3
v_cndmask_b32 v3, 0, v3, vcc
v_mov_b32 v2, v3
""")
        dpp_scan(a,"v_add_u32",[2])
        a(f"""
v_readlane_b32 s{t0}, v2, 63
v_sub_u32 v2, v2, v3
""")
    def fill(lab,slow,nw):
        a(f"""
s_lshl_b32 s{t1}, s{sWV}, 4
v_add_u32 v{QA+1}, s{t1}, v2
v_lshrrev_b32 v{QA+1}, 3, v{QA+1}       ; 2*(G0+w)
v_add_u32 v{F+1}, s{t1}, v{F+1}         ; 256n+16w
v_subrev_u32 v{QA+2}, s{t1}, v3         ; g16-16w
""")
        if not slow: a(f"v_add_u32 v{QA+3}, v{QA+1}, v{SA}\nv_mov_b32 v{F+3}, 0x3f80\nds_write_b32 v1, v2 offset:{BT}")
        for k in range(16//nw):
            a(f"v_cmpx_lt_i32 vcc, {16*nw*k}, v{QA+2}\nds_write_b16 v{QA+1}, v{F+1+(k&1)} offset:{GL+2*nw*k}")
            if k+1<16//nw: a(f"v_add_u32 v{F+1+((k+1)&1)}, {16*nw}, v{F+1+(k&1)}")
            if not slow: a(f"ds_write_b16 v{QA+3}, v{F+3} offset:{STB+2*nw*k}")
        a(f"""
s_mov_b64 exec, -1
s_lshl_b32 s{t1}, s{sWV}, 2
v_sub_u32 v{QA+2}, v3, v{QA}
v_add_u32 v{F}, s{t1}, v{F}
v_subrev_u32 v{QA+2}, s{t1}, v{QA+2}    ; pad4 - 4w
s_mov_b32 s{t1}, {EB}
v_mov_b32 v{QA+4}, 0
v_mov_b32 v{QA+5}, 0
v_mov_b32 v{QA+6}, {hex(NULLW2)}
v_lshl_add_u32 v{QA+7}, v{F}, 1, s{t1}
""")
        for k in range(-(-20//nw)):
            a(f"v_cmpx_lt_i32 vcc, {4*nw*k}, v{QA+2}")
            if k==1: a(f"s_cbranch_vccz {lab}p")
            a(f"ds_write_b32 v{F}, v{QA+6} offset:{WB+4*nw*k}\nds_write_b64 v{QA+7}, {P2(QA+4)} offset:{8*nw*k}")
        a(f"""
{lab}p:
s_mov_b64 exec, -1
s_cmp_eq_u32 s{sWV}, 3
s_cbranch_scc0 {lab}q
s_lshr_b32 s{t1}, s{t0}, 3
v_lshl_add_u32 v{QA+1}, v{VL}, 1, s{t1}
v_mov_b32 v{QA+2}, {NULLG}
v_add_u32 v{QA+3}, {NULLG}, v1
v_lshlrev_b32 v{QA+7}, 1, v1
v_add_u32 v{QA+7}, {EB+2*NULLG}, v{QA+7}
s_mov_b64 exec, 0xff
ds_write_b16 v{QA+1}, v{QA+2} offset:{GL}
s_mov_b64 exec, 15
ds_write_b32 v{QA+3}, v{QA+6} offset:{WB}
ds_write_b64 v{QA+7}, {P2(QA+4)}
s_mov_b64 exec, -1
{lab}q:
""")
    def expand(lab):
        a(f"""
v_subrev_u32 v1, s{sLO}, v{TO}
v_add_u32 v2, v1, v{TC}
v_med3_i32 v1, v1, 0, s{t3}
v_med3_i32 v2, v2, 0, s{t3}
v_sub_u32 v2, v2, v1
v_lshl_add_u32 v1, v1, 2, s{sLB}
{lab}:
""")
        for j in range(16):
            a(f"v_cmpx_lt_i32 vcc, {j}, v2\nds_write_b32 v1, v{TD} offset:{4*j}")
        a(f"""
v_add_u32 v2, -16, v2
v_add_u32 v1, 64, v1
v_cmp_lt_i32 vcc, 0, v2
s_cmp_lg_u64 vcc, 0
s_cbranch_scc1 {lab}
s_mov_b64 exec, -1
""")
    def rl1(i): return f"buffer_load_dwordx4 {P4(RC+4*i)}, v{RK+i}, {SR4(sR)}, {'0' if i<4 else 's'+str(sQ)} offen offset:{1024*(i&3)}{SC}"
    def reclist(ns):
        a(f"v_lshl_add_u32 v1, v{VL}, 2, s{sLB}")
        for i in reversed(range(ns)): a(f"ds_read_b32 v{RK+i}, v1 offset:{256*i}")
        a(f"v_add_u32 v2, s{sLO}, v{VL}\nv_lshlrev_b32 v2, 4, v2\ns_movk_i32 s{sQ}, 4096")
        for i in range(ns):
            a(f"v_cmp_gt_i32 {S2(sM+2*i)}, s{t1}, v{VL}\ns_sub_u32 s{t1}, s{t1}, 64")
        a("s_waitcnt lgkmcnt(0)")
        for i in range(ns): a(f"v_add_u32 v{RK+i}, v{RK+i}, v2")
    def recload(ns,lab):
        for i in reversed(range(ns)):
            a(f"s_mov_b64 exec, {S2(sM+2*i)}\ns_cbranch_execz {lab}{i}\n{rl1(i)}\n{lab}{i}:")
        a("s_mov_b64 exec, -1")
    def hist(ns,lab,extra,scat):
        a(f"v_mov_b32 v1, 4\ns_mov_b32 s{sW8}, {EB}")
        def sc(i,n):
            a(f"""
s_mov_b64 exec, {S2(sM+2*i)}
s_waitcnt lgkmcnt({n})
v_min_u32 v{RK+i}, {NULLG-4}, v{RK+i}
v_lshl_add_u32 v{RC+4*i+3}, v{RK+i}, 1, s{sW8}
ds_write_b32 v{RK+i}, v{RC+4*i+2} offset:{WB}
ds_write_b64 v{RC+4*i+3}, {P2(RC+4*i)}
""")
        for i in reversed(range(ns)):
            a(f"""
s_mov_b64 exec, {S2(sM+2*i)}
s_waitcnt vmcnt({i+extra})
{lab}c{i}:
v_cmp_ne_u32 vcc, s{sNON}, v{RC+4*i+3}
s_cbranch_vccnz {lab}r{i}
{lab}k{i}:
v_lshrrev_b32 v{RC+4*i+3}, 17, v{RC+4*i+2}
ds_add_rtn_u32 v{RK+i}, v{RC+4*i+3}, v1
""")
            if scat and i==0: a(f"s_mov_b64 exec, 1\nds_add_u32 v{VZ}, v1 offset:{mH}")
            if scat and i<ns-1: sc(i+1,(1 if i==ns-2 else 3)+(1 if i==0 else 0))
        if scat: sc(0,3)
        a(f"s_mov_b64 exec, -1")
    def hist_retry(ns,lab):
        for i in range(ns):
            a(f"""
{lab}r{i}:
s_sub_u32 s{sBUD}, s{sBUD}, 1
s_cbranch_scc1 {lab}x{i}
s_mov_b64 exec, vcc
{rl1(i)}
s_mov_b64 exec, {S2(sM+2*i)}
s_waitcnt vmcnt(0)
s_branch {lab}c{i}
{lab}x{i}:
s_mov_b32 s{sBUD}, 0
v_mov_b32 v{RC+4*i+2}, 0
s_branch {lab}k{i}
""")
    def qfull(lab,mid):
        H=QA+4; MX=QA+1
        a(f"v_xor_b32 v{TC}, 32, v{TRU}")
        trfrag(WF,TC,0,2048,256)
        a(f"""
s_mul_i32 s{t0}, s{sW4}, {QS}
s_add_u32 s{t0}, s{t0}, {Q2}
v_lshl_add_u32 v120, v{SB}, 8, s{t0}
v_lshl_add_u32 v120, v{WT}, 2, v120
v_add_u32 v121, 128, v120
v_add_u32 v122, 64, v120
v_add_u32 v123, 192, v120
s_waitcnt lgkmcnt(0)
""")
        tru(WF+16,0)
        def cv(i,T,pk):
            c=GA+16*i+4*T
            L=[]
            if pk: L+=[f"v_pk_mul_f32 {P2(c)}, {P2(c)}, {S2(sL2E)}",f"v_pk_mul_f32 {P2(c+2)}, {P2(c+2)}, {S2(sL2E)}"]
            else: L+=[f"v_mul_f32 v{c+k}, s{sL2E}, v{c+k}" for k in range(4)]
            L+=[f"v_and_b32 v{H+k}, 0xffff0000, v{c+k}" for k in range(4)]
            L+=[f"v_maximum3_f32 v{MX}, {'0' if T==0 and i==0 else 'v'+str(MX)}, abs(v{c}), abs(v{c+1})",f"v_maximum3_f32 v{MX}, v{MX}, abs(v{c+2}), abs(v{c+3})"]
            if pk: L+=[f"v_pk_add_f32 {P2(c)}, {P2(c)}, {P2(H)} neg_lo:[0,1] neg_hi:[0,1]",f"v_pk_add_f32 {P2(c+2)}, {P2(c+2)}, {P2(H+2)} neg_lo:[0,1] neg_hi:[0,1]"]
            else: L+=[f"v_sub_f32 v{c+k}, v{c+k}, v{H+k}" for k in range(4)]
            L+=[f"v_cvt_pk_bf16_f32 v{c+k}, v{c+k}, v{H+k}" for k in range(4)]
            return L
        for T in range(4):
            for s in range(4): a(mfma16(GA+4*T,XF+16*T+4*s,WF+4*s,None if s==0 else GA+4*T))
        a("s_waitcnt lgkmcnt(0)")
        fl=cv(0,0,0)+cv(0,1,0)
        for T in range(4):
            for s in range(4):
                a(mfma16(GA+16+4*T,XF+16*T+4*s,WF+16+4*s,None if s==0 else GA+16+4*T))
                for _ in range(2): a(fl.pop(0))
        if PFI==0: mid()
        for x in fl+cv(0,2,1)+cv(1,0,1)+cv(1,1,1)+cv(1,2,1): a(x)
        if PFI==1: mid()
        gwait(lab+"w",mSL,4,VZ,1)
        for i in range(2):
            for T in range(3):
                c=GA+16*i+4*T
                a(f"ds_write2st64_b32 v{120+2*i}, v{c}, v{c+2} offset0:{8*T} offset1:{8*T+1}\nds_write2st64_b32 v{121+2*i}, v{c+1}, v{c+3} offset0:{8*T} offset1:{8*T+1}")
        a("s_mov_b64 exec, 0xffff")
        for i in range(2):
            c=GA+16*i+12
            a(f"""
v_mul_f32 v{c}, s{sL2E}, v{c}
v_and_b32 v{H}, 0xffff0000, v{c}
v_maximum3_f32 v{MX}, v{MX}, abs(v{c}), abs(v{c})
v_sub_f32 v{c}, v{c}, v{H}
v_cvt_pk_bf16_f32 v{c}, v{c}, v{H}
ds_write2st64_b32 v{120+2*i}, v{c}, v{c+2} offset0:24 offset1:25
ds_write2st64_b32 v{121+2*i}, v{c+1}, v{c+3} offset0:24 offset1:25
""")
        a(f"""
s_mov_b64 exec, -1
v_cmp_nge_f32 vcc, 0x40e80000, v{MX}
s_cbranch_vccz {lab}q
ds_write_b32 v{VZ}, v{FA} offset:{mSLOW}
{lab}q:
""")
        pt('qd')
    def ranges():
        a(f"""
s_lshr_b32 s{sCNT}, s{sNT}, 3
s_mul_i32 s{sT0}, s{sCNT}, s{sWV}
s_and_b32 s{t2}, s{sNT}, 7
s_min_u32 s{t3}, s{t2}, s{sWV}
s_add_u32 s{sT0}, s{sT0}, s{t3}
s_cmp_lt_u32 s{sWV}, s{t2}
s_addc_u32 s{sCNT}, s{sCNT}, 0
s_lshl_b32 s{t0}, s{sT0}, 7
s_lshl_b32 s{t2}, s{sT0}, 4
v_add_u32 v{SB}, s{t2}, v{SB}
v_add_u32 v{RB}, s{t2}, v{RB}
v_sub_u32 v{SA}, v{SA}, v{OHC}
v_add_u32 v{SA}, s{t2}, v{SA}
v_lshl_add_u32 v1, v{VL}, 4, s{t2}
""")
    def arrive(off,vt): a(f"v_mov_b32 v{vt}, 1\ns_mov_b64 exec, 1\nds_add_u32 v{VZ}, v{vt} offset:{off}\ns_mov_b64 exec, -1")

    a(f"""
{name}:
s_cmp_ge_u32 s2, 256
s_cbranch_scc1 KF_END
s_load_dwordx16 s[4:19], s[0:1], 0
s_load_dwordx2 s[20:21], s[0:1], 64
v_lshrrev_b32 v1, 6, v0
v_and_b32 v{VL}, 63, v0
v_mov_b32 v{VZ}, 0
v_readfirstlane_b32 s{sWV}, v1
s_and_b32 s{sK}, s2, 7
s_lshl_b32 s{sK}, s{sK}, 5
s_lshr_b32 s{t0}, s2, 3
s_or_b32 s{sK}, s{sK}, s{t0}
s_and_b32 s{sW4}, s{sWV}, 3
s_lshl_b32 s{sW4K}, s{sW4}, 10
s_lshl_b32 s{sBUF}, s{sWV}, 13
s_add_u32 s{sBUF}, s{sBUF}, {GBUF}
s_cmp_ge_u32 s{sWV}, 4
s_cbranch_scc1 KF_T
""")
    D=28; SRc=36; K=44; R=52; W2=60; RO=80
    sD=40; sS=44; sE=48
    Q16="s_mov_b64 exec, 0xffff"; FULL="s_mov_b64 exec, -1"
    a(f"""
s_min_u32 s{t2}, s2, {NPROD-1}
s_mul_i32 s{t2}, s{t2}, {EP*4}
s_mul_i32 s{t3}, s{sWV}, 400
v_add_u32 v108, s{t3}, v{VL}
v_lshlrev_b32 v109, 2, v108
s_waitcnt lgkmcnt(0)
""")
    stamp(a,0,True); stamp(a,1)
    srd(a,sD,10,E*4)
    def ld7(dst,sr):
        for i in range(7):
            if i==6: a(Q16)
            a(f"buffer_load_dword v{dst+i}, v109, {SR4(sr)}, s{t2} offen offset:{i*256}")
        a(FULL)
    ld7(D,sD)
    a(f"s_load_dword s{sNON}, s[20:21], 0")
    srd(a,sS,8,E*4); srd(a,sE,6,E*8)
    a("s_barrier")
    ld7(SRc,sS)
    a(f"""
s_lshl_b32 s{sLB}, s{t3}, 3
s_lshl_b32 s{t2}, s{t2}, 1
s_add_u32 s{t2}, s{t2}, s{sLB}
s_add_u32 m0, s{sLB}, {ERAW}
v_lshlrev_b32 v113, 4, v{VL}
s_add_u32 s{sLB}, s{sLB}, {S1}
""")
    for j in range(4):
        if j==3: a("s_mov_b64 exec, 0xff")
        a(f"buffer_load_dwordx4 v113, {SR4(sE)}, s{t2} offen offset:{1024*j} lds")
    a(FULL)
    consts()
    a(f"""
v_mov_b32 v111, 8
v_lshlrev_b32 v112, 3, v108
v_lshlrev_b32 v110, 4, v108
""")
    for i in range(7): a(f"v_add_u32 v{W2+1+2*i}, {i*512}, v112")
    a(f"s_cmp_ge_u32 s2, {NPROD}\ns_cbranch_scc1 KS_d\ns_waitcnt vmcnt(11)")
    pt('dst')
    for i in range(7):
        if i==6: a(Q16)
        a(f"v_lshlrev_b32_sdwa v{K+i}, 2, v{D+i} dst_sel:DWORD dst_unused:UNUSED_PAD src0_sel:DWORD src1_sel:BYTE_0\nds_add_rtn_u32 v{R+i}, v{K+i}, v111 offset:{HIST}")
    a(FULL+"\nKS_d:")
    gsync('b1',"KS_y1",mS,4,VZ,2)
    a(f"ds_read_b128 v[116:119], v113 offset:{HIST}")
    tagh()
    for i in range(7): a(f"v_lshrrev_b32 v{D+i}, 8, v{D+i}")
    a(f"""
v_mov_b32 v1, s{sNON}
s_waitcnt lgkmcnt(0)
v_add_u32 v2, v116, v117
v_add3_u32 v2, v2, v118, v119
v_mov_b32 v3, v2
""")
    dpp_scan(a,"v_add_u32",[3])
    a(f"""
v_sub_u32 v120, v3, v2
v_add_u32 v121, v120, v116
v_add_u32 v122, v121, v117
v_add_u32 v123, v122, v118
ds_write_b128 v113, v[120:123] offset:{HIST+1024}
""")
    for i in range(7):
        if i==6: a(Q16)
        a(f"ds_read_b32 v{K+i}, v{K+i} offset:{HIST+1024}")
    a(FULL)
    def tpub():
        for j in range(4): a(f"v_lshlrev_b32 v2, 1, v{120+j}\nv_lshl_or_b32 v{QA+2*j}, v{116+j}, 13, v2\nv_mov_b32 v{QA+2*j+1}, v1")
        a(f"""
s_lshl_b32 s{t2}, s2, 11
s_add_u32 s{t2}, s{t2}, {F_TBL}
s_lshl_b32 s{t3}, s{sWV}, 4
s_lshl_b64 exec, 0xffff, s{t3}
buffer_store_dwordx4 {P4(QA)}, v113, {SR4(sR)}, s{t2} offen{SC}
buffer_store_dwordx4 {P4(QA+4)}, v113, {SR4(sR)}, s{t2} offen offset:1024{SC}
s_mov_b64 exec, -1
""")
    if TE==0: tpub()
    a(f"s_cmp_ge_u32 s2, {NPROD}\ns_cbranch_scc1 KS_e\ns_waitcnt vmcnt({6 if TE==0 else 4})")
    if X&64:
        for i in range(7): a(f"v_and_b32 v{SRc+i}, 0x1ff, v{SRc+i}")
    for i in range(7): a(f"v_lshl_or_b32 v{W2+2*i}, v{D+i}, 19, v{SRc+i}")
    a(f"s_waitcnt lgkmcnt(0)")
    for i in range(7):
        if i==6: a(Q16)
        a(f"v_add_u32 v{K+i}, v{K+i}, v{R+i}\nds_write_b64 v{K+i}, {P2(W2+2*i)} offset:{S1}")
    a(FULL+"\nKS_e:")
    pt('sc1')
    if TE==1: tpub()
    a(f"""
v_lshlrev_b32 v114, 11, v0
s_lshr_b32 s{sLO}, s{sK}, 2
s_lshl_b32 s{sLO}, s{sLO}, 4
s_and_b32 s{t0}, s{sK}, 1
s_lshl_b32 s{t0}, s{t0}, 3
s_add_u32 s{sLO}, s{sLO}, s{t0}
s_and_b32 s{t0}, s{sK}, 2
s_lshl_b32 s{t0}, s{t0}, 9
s_add_u32 s{sLO}, s{sLO}, s{t0}
s_add_u32 s{sLO}, s{sLO}, {F_TBL}
v_cmp_gt_u32 vcc, {NPROD}, v0
v_mov_b32 v{TC}, 0
s_mul_i32 s{t0}, s2, {EP*16}
s_add_u32 s{t0}, s{t0}, {F_REC}
s_add_u32 s{t2}, s{t0}, 4096
v_mul_u32_u24 v115, {EP*16}, v0
v_add_u32 v115, {F_REC}, v115
""")
    gsync('bS',"KS_y2",mS,8,VZ,2,"s_waitcnt vmcnt(2)")
    tl=f"s_mov_b64 exec, vcc\nbuffer_load_dwordx2 {P2(TC)}, v114, {SR4(sR)}, s{sLO} offen{SC}\ns_mov_b64 exec, -1"
    a(f"""
s_cmp_ge_u32 s2, {NPROD}
s_cbranch_scc0 KS_h0
""")
    gwait("KS_h1",mPD,4,VZ,2)
    a(f"""
{tl}
s_waitcnt vmcnt(0)
s_branch KS_j
KS_h0:
""")
    order=[6,0,1,2,3,4,5]
    if SWW: gwait("KS_ww",mW,4,VZ,2)
    for i in order:
        if i==6: a(Q16)
        a(f"ds_read_b64 {P2(RO+2+4*i)}, v112 offset:{S1+i*512}")
        if i==6: a(FULL)
    for i in order:
        if i==6: a(Q16)
        a(f"s_waitcnt lgkmcnt(6)\nds_read_b64 {P2(RO+4*i)}, v{RO+3+4*i} offset:{ERAW}")
        if i==6: a(FULL)
    for k,i in enumerate(order):
        if k-1==TPOS: a(tl)
        if i==6: a(Q16)
        a(f"s_waitcnt lgkmcnt({6-k})\nv_mov_b32 v{RO+3+4*i}, v1\nbuffer_store_dwordx4 {P4(RO+4*i)}, v110, {SR4(sR)}, s{t0 if i<4 else t2} offen offset:{1024*(i&3)}{SC}")
        if i==6: a(FULL)
    if TPOS==6: a(tl)
    pt('out')
    a(f"""
s_waitcnt vmcnt({6-TPOS})
KS_j:
s_mov_b64 exec, vcc
KT_f:
v_cmp_ne_u32 vcc, s{sNON}, v{TC+1}
s_cbranch_vccz KT_g
s_mov_b64 exec, vcc
s_sub_u32 s{sBUD}, s{sBUD}, 1
s_cbranch_scc1 KT_f2
buffer_load_dwordx2 {P2(TC)}, v114, {SR4(sR)}, s{sLO} offen{SC}
s_waitcnt vmcnt(0)
s_branch KT_f
KT_f2:
s_mov_b32 s{sBUD}, 0
v_mov_b32 v{TC}, 0
KT_g:
s_mov_b64 exec, -1
""")
    pt('tp')
    a(f"""
v_lshrrev_b32 v{TO}, 16, v{TC}
v_add_u32_sdwa v{TD}, v115, v{TC} dst_sel:DWORD dst_unused:UNUSED_PAD src0_sel:DWORD src1_sel:WORD_0
v_mov_b32 v{TC}, v{TO}
""")
    dpp_scan(a,"v_add_u32",[TO])
    a(f"""
v_readlane_b32 s{sTOT}, v{TO}, 63
v_sub_u32 v{TO}, v{TO}, v{TC}
s_mov_b32 s{sLO}, 0
s_movk_i32 s{t3}, 512
v_lshlrev_b32 v1, 4, v{TO}
v_sub_u32 v{TD}, v{TD}, v1
""")
    expand("KT_x")
    a(f"s_mov_b32 s{t1}, s{sTOT}")
    reclist(8)
    arrive(mSL,1)
    for i in range(8): a(f"v_mov_b32 v{RC+4*i}, 0\nv_mov_b32 v{RC+4*i+1}, 0")
    pt('exp')
    gwait("KS_xw",mGX,4,VZ,1)
    a(f"ds_read_b32 v{YA}, v{VZ} offset:{mC3}")
    xfrags([0,1,2]); a("s_waitcnt lgkmcnt(4)"); xfrags([3]); w3rd()
    gwait("KS_rw",mPD,4,VZ,1)
    a("s_waitcnt vmcnt(0)")
    recload(8,"KT_l")
    pt('rl')
    if PFP:
        a(f"""
s_lshr_b32 s{t1}, s2, 3
s_mul_i32 s{t1}, s{t1}, 391
v_lshrrev_b32 v2, 1, v0
v_add_u32 v2, s{t1}, v2
v_and_b32 v3, 1, v0
v_lshlrev_b32 v3, 7, v3
buffer_load_dword v{QA+15}, v[2:3], {SR4(sP)}, 0 idxen offen offset:3072{SC}
""")
    gwait("KS_w2",mPI,4,VZ,1)
    tru(WU1,32768)
    a("s_waitcnt lgkmcnt(0)")
    ugemm()
    pt('ud')
    hist(8,"KT_h",1 if PFP else 0,True)
    pt('hs')
    gwait("KS_b2",mH,16,VZ,1)
    pt('b2')
    scan(False)
    a(f"""
v_cmp_lt_u32 vcc, 0x100, v{QA}
s_add_u32 s{sNT}, s{t0}, 127
s_lshr_b32 s{sNT}, s{sNT}, 7
s_cmp_gt_u32 s{sNT}, {CAPT}
s_cbranch_scc1 KT_j
s_cbranch_vccnz KT_j
""")
    fill("KFz",False,4)
    a(f"v_mov_b32 v1, s{sNT}\nds_write_b32 v{VZ}, v1 offset:{mNT}")
    pt('fil')
    a(f"v_pk_maximum3_f16 v1, v{RC}, v{RC+1}, v{RC+1}\nv_pk_minimum3_f16 v2, v{RC}, v{RC+1}, v{RC+1}")
    for i in range(1,8): a(f"v_pk_maximum3_f16 v1, v1, v{RC+4*i}, v{RC+4*i+1}\nv_pk_minimum3_f16 v2, v2, v{RC+4*i}, v{RC+4*i+1}")
    absmax_fin(a,1,2,3)
    a(f"""
v_mul_f32 v1, v1, v{YA}
s_cmp_gt_u32 s{sTOT}, 512
v_cmp_nge_f32 vcc, 0x41680000, v1       ; !(14.5 >= e*c3)
s_cbranch_scc1 KT_j
s_cbranch_vccz KT_k
KT_j:
ds_write_b32 v{VZ}, v{FA} offset:{mSLOW}
KT_k:
s_mov_b32 s{sWU}, -1
""")
    ranges()
    srd(a,sA,14,256*256)
    if PRIO: a("s_setprio 3")
    bar('b3')
    a("s_branch KF_J")
    a(f"""
KF_T:
""")
    if CPF:
        a(f"""
s_getpc_b64 {S2(t2)}
KF_pc:
s_sub_u32 s{t2}, s{t2}, KF_pc-{name}
s_subb_u32 s{t3}, s{t3}, 0
""")
        if CPF==1:
            a(f"""
s_lshr_b32 s{t0}, s2, 3
s_lshl_b32 s{t0}, s{t0}, 3
s_lshl_b32 s{t1}, s{sW4}, 1
s_add_u32 s{t0}, s{t0}, s{t1}
v_add_u32 v1, s{t0}, v{VL}
v_lshlrev_b32 v1, 7, v1
v_min_u32 v1, KF_CEND-{name}-4, v1
s_mov_b64 exec, 3
global_load_dword v113, v1, {S2(t2)}
s_mov_b64 exec, -1
""")
        else:
            a(f"""
v_and_b32 v1, 255, v0
v_lshlrev_b32 v1, 7, v1
v_min_u32 v1, KF_CEND-{name}-4, v1
global_load_dword v113, v1, {S2(t2)}
""")
    a(f"""
v_and_b32 v108, 255, v0
v_lshlrev_b32 v109, 2, v108
v_mov_b32 v32, 0
v_mov_b32 v33, 0
v_mov_b32 v34, 0
v_mov_b32 v35, 0
ds_write_b32 v109, v32 offset:{HIST}
v_lshlrev_b32 v2, 2, v{VL}
v_lshlrev_b32 v3, 8, v{VL}
ds_write2st64_b32 v2, v3, v32 offset0:0 offset1:1
v_lshlrev_b32 v110, 4, v108
v_lshrrev_b32 v1, 4, v108
v_xor_b32 v37, v1, v0
v_and_b32 v37, 15, v37
v_lshlrev_b32 v37, 4, v37
v_lshl_add_u32 v36, v1, 8, s{sK}
s_waitcnt lgkmcnt(0)
""")
    stamp(a,0,True); stamp(a,1)
    sG=40
    srd(a,sX,4,N,stride=256)
    def xld():
        for j in range(4):
            if j==3: a(f"s_cmp_eq_u32 s{sWV}, 4\ns_cbranch_scc0 KT_c")
            a(f"s_add_u32 m0, s{sW4K}, {AGB+j*4096}\ns_nop 0\nbuffer_load_dwordx4 v[36:37], {SR4(sX)}, 0 idxen offen lds\nv_add_u32 v36, 4096, v36")
        a("KT_c:")
    def warm():
        srd(a,sG,14,256*256)
        a(f"""
s_lshr_b32 s{t0}, s2, 3
s_lshl_b32 s{t0}, s{t0}, 11
s_lshl_b32 s{t1}, s{sW4}, 9
s_add_u32 s{t0}, s{t0}, s{t1}
v_lshlrev_b32 v2, 7, v{VL}
s_mov_b64 exec, 15
buffer_load_dword v111, v2, {SR4(sG)}, s{t0} offen
buffer_load_dword v111, v2, {SR4(sA)}, s{t0} offen
s_mov_b64 exec, -1
v_and_b32 v1, 31, v{VL}
v_lshlrev_b32 v1, 1, v1
s_lshl_b32 s{t0}, s{sW4}, 6
s_add_u32 s{t0}, s{t0}, 65536
""")
        for k in range(4): a(f"buffer_load_ushort v{124+k}, v1, {SR4(sA)}, s{t0} offen offset:{k*256}")
    def zer():
        a(f"v_cmp_le_u32 vcc, 32, v108\ns_mov_b64 exec, vcc\nds_write_b128 v110, v[32:35]\ns_mov_b64 exec, -1")
        for j in range(1,4): a(f"ds_write_b128 v110, v[32:35] offset:{j*4096}")
        a(f"""
s_cmp_eq_u32 s{sWV}, 4
s_cbranch_scc0 KT_b
ds_write_b128 v110, v[32:35] offset:16384
KT_b:
""")
    a(f"s_load_dword s{sNON}, s[20:21], 0")
    a("s_barrier"); srd(a,sA,12,260*256); warm(); vyc()
    if XORD==1: xld()
    zer()
    consts()
    a(f"""
v_lshrrev_b32 v2, 3, v{VL}
v_and_b32 v2, 2, v2
v_xor_b32 v2, v2, v3
v_lshl_add_u32 v{TD}, v2, 4, v{DR}
s_lshl_b32 s{t0}, s{sW4}, 2
v_lshrrev_b32 v2, 4, v{VL}
v_or_b32 v1, s{t0}, v2                  ; 4u+g
v_xor_b32 v3, v1, v{WT}
v_lshlrev_b32 v3, 4, v3
v_lshl_add_u32 v116, v{WT}, 8, v3
v_add_u32 v116, {PSC}, v116
v_add_u32 v117, {PSC}, v110
v_lshl_add_u32 v118, v1, 16, v3
""")
    if XORD==2:
        gwait("KG_x",mS,4,VZ,1); xld()
    sdma(sA,0)
    sdma(sA,32768,-32768)
    arrive(mW,1)
    pt('w1i')
    def w3m():
        w=[124,125,126,127]; u=QA
        for k in range(4): a(f"v_lshlrev_b32 v{w[k]}, 16, v{w[k]}\nv_mul_f32 v{w[k]}, s{sL2E}, v{w[k]}")
        a(f"""
v_cvt_pk_bf16_f32 v{u}, v124, v125
v_cvt_pk_bf16_f32 v{u+1}, v126, v127
v_lshlrev_b32 v{u+2}, 16, v{u}
v_and_b32 v{u+3}, 0xffff0000, v{u}
v_lshlrev_b32 v{u+4}, 16, v{u+1}
v_and_b32 v{u+5}, 0xffff0000, v{u+1}
v_add_f32 v{u+6}, abs(v124), abs(v125)
v_sub_f32 v{u+2}, v124, v{u+2}
v_sub_f32 v{u+3}, v125, v{u+3}
v_sub_f32 v{u+4}, v126, v{u+4}
v_sub_f32 v{u+5}, v127, v{u+5}
v_add_f32 v{u+7}, abs(v126), abs(v127)
s_mov_b32 exec_lo, 0
v_cvt_pk_bf16_f32 v{u}, v{u+2}, v{u+3}
v_cvt_pk_bf16_f32 v{u+1}, v{u+4}, v{u+5}
s_mov_b32 exec_lo, -1
v_add_f32 v{u+6}, v{u+6}, v{u+7}
v_lshlrev_b32 v1, 3, v108
v_and_b32 v{u+6}, 0x7fffffff, v{u+6}
ds_write_b64 v1, {P2(u)} offset:{W3L}
""")
        dpp_scan(a,"v_max_u32",[u+6])
        a(f"""
s_mov_b32 exec_lo, 0
s_brev_b32 exec_hi, 1
ds_max_u32 v{VZ}, v{u+6} offset:{mC3}
s_mov_b64 exec, -1
""")
    e2=8
    a(f"s_waitcnt vmcnt({11+e2})"); w3m()
    tagh()
    a(f"v_mov_b32 v1, {hex(ONE2)}\nds_write2_b32 v{VZ}, v1, v1 offset0:{OH//4} offset1:{OH//4+5}")
    gsync('bX',"KG_y1",mGX,4,VZ,2,f"s_waitcnt vmcnt({8+e2})")
    if GP_: a(f"s_setprio {GP_}")
    xfrags([0])
    a(f"s_waitcnt vmcnt({e2})")
    pt('xl')
    trfrag(WF,TD,32768,2048,256)
    a("s_waitcnt lgkmcnt(7)")
    trfrag(WF+16,TD,32768+8,2048,256)
    def pm(T,i):
        for s in range(4): a(mfma16(GA+8*T+4*i,WF+16*i+4*s,XF+16*T+4*s,None if s==0 else GA+8*T+4*i))
    def pcv(T):
        c=GA+8*T
        L=[f"v_mul_f32 v{c+j}, s{sL2E}, v{c+j}" for j in range(8)]
        L+=[f"v_cvt_pk_bf16_f32 v{c+j}, v{c+2*j}, v{c+2*j+1}" for j in range(4)]
        L+=[f"ds_write_b128 v116, {P4(c)} offset:{T*4096}"]
        return L
    def pmi(T,fillers):
        for i in range(2):
            for s in range(4):
                a(mfma16(GA+8*T+4*i,WF+16*i+4*s,XF+16*T+4*s,None if s==0 else GA+8*T+4*i))
                for _ in range(2):
                    if fillers: a(fillers.pop(0))
    a("s_waitcnt lgkmcnt(8)"); xfrags([1]); pm(0,0)
    a("s_waitcnt lgkmcnt(4)"); xfrags([2,3]); pm(0,1)
    a("s_waitcnt lgkmcnt(8)"); pm(1,0); pm(1,1)
    a("s_waitcnt lgkmcnt(0)"); pmi(2,pcv(0)); pmi(3,pcv(1))
    a(f"s_lshl_b32 s{t2}, s{sK}, 8\ns_nop 2")
    for T in (2,3):
        for x in pcv(T): a(x)
    gsync('pg',"KG_y2",mGP,4,VZ,2)
    for T in range(4): a(f"ds_read_b128 {P4(PO+4*T)}, v117 offset:{T*4096}")
    a("s_waitcnt vmcnt(0)")
    for T in range(3):
        a(f"s_add_u32 s{t1}, s{t2}, {F_P+T*16*65536}\ns_waitcnt lgkmcnt({3-T})")
        a(f"buffer_store_dwordx4 {P4(PO+4*T)}, v118, {SR4(sR)}, s{t1} offen{SC}")
    a(f"""
s_cmp_eq_u32 s{sWV}, 4
s_cbranch_scc0 KG_p
s_add_u32 s{t1}, s{t2}, {F_P+3*16*65536}
s_waitcnt lgkmcnt(0)
s_mov_b64 exec, 0xffff
buffer_store_dwordx4 {P4(PO+12)}, v118, {SR4(sR)}, s{t1} offen{SC}
s_mov_b64 exec, -1
KG_p:
""")
    pt('pst')
    if GP_: a("s_setprio 0")
    srd(a,sA,14,256*256)
    w3rd()
    for T in range(4):
        c=GA+8*T
        if T==3: a("s_mov_b32 exec_lo, 0x10001\ns_mov_b32 exec_hi, 0x10001")
        if T==0: a(f"v_pk_maximum3_f16 v114, v{c}, v{c+1}, v{c+2}\nv_pk_minimum3_f16 v115, v{c}, v{c+1}, v{c+2}\nv_pk_maximum3_f16 v114, v114, v{c+3}, v{c+3}\nv_pk_minimum3_f16 v115, v115, v{c+3}, v{c+3}")
        else: a(f"v_pk_maximum3_f16 v114, v114, v{c}, v{c+1}\nv_pk_minimum3_f16 v115, v115, v{c}, v{c+1}\nv_pk_maximum3_f16 v114, v114, v{c+2}, v{c+3}\nv_pk_minimum3_f16 v115, v115, v{c+2}, v{c+3}")
    a("s_mov_b64 exec, -1")
    absmax_fin(a,114,115,2)
    a(f"""
v_cmp_lt_u32 vcc, 0x40e80000, v114
v_mov_b32 v{TD}, v{VY}
s_cmp_lg_u64 vcc, 0
s_cselect_b32 s{sFLAG}, 0x101, 1
""")
    def pflag(n):
        a(f"""
s_lshl_b32 s{t2}, s2, 4
s_add_u32 s{t2}, s{t2}, {F_FLG}
v_mov_b32 v1, s{sFLAG}
s_waitcnt vmcnt({n})
s_mov_b64 exec, 1
ds_add_rtn_u32 v1, v{VZ}, v1 offset:{mPD}
s_waitcnt lgkmcnt(0)
v_readfirstlane_b32 s{t1}, v1
s_add_u32 s{t1}, s{t1}, s{sFLAG}
s_and_b32 s{t0}, s{t1}, 255
s_cmp_eq_u32 s{t0}, 4
s_cbranch_scc0 KG_f
s_cmp_gt_u32 s{t1}, 255
s_cselect_b32 s{t0}, 2, 0
s_xor_b32 s{t0}, s{sNON}, s{t0}
v_mov_b32 v1, s{t0}
buffer_store_dword v1, v{VZ}, {SR4(sR)}, s{t2} offen{SC}
s_waitcnt vmcnt(1)
s_branch KG_f2
KG_f:
s_waitcnt vmcnt(0)
KG_f2:
s_mov_b64 exec, -1
""")
        pt('pfl')
    def mid():
        sdma(sA,0); pflag(8); arrive(mPI,1)
    qfull("KGq",mid)
    tru(WU1,32768)
    if FLP==1: gwait("KG_b2",mH,16,VZ,1)
    a(f"""
s_mov_b32 s{sLO}, {F_FLG}
buffer_load_dword v116, v110, {SR4(sR)}, s{sLO} offen{SC}
s_waitcnt lgkmcnt(0)
""")
    ugemm()
    a(f"""
s_mov_b32 s{sWU}, 1
s_or_b32 s{t1}, s{sNON}, 2
KS_m:
s_waitcnt vmcnt(0)
v_or_b32 v2, 2, v116
v_cmp_ne_u32 vcc, s{t1}, v2
s_cbranch_vccz KS_n
s_sub_u32 s{sBUD}, s{sBUD}, 1
s_cbranch_scc1 KS_n
s_sleep {FSL}
s_mov_b64 exec, vcc
buffer_load_dword v116, v110, {SR4(sR)}, s{sLO} offen{SC}
s_mov_b64 exec, -1
s_branch KS_m
KS_n:
v_cmp_ne_u32 vcc, s{sNON}, v116
s_cbranch_vccz KS_o
ds_write_b32 v{VZ}, v{FA} offset:{mSLOW}
KS_o:
""")
    pt('flg')
    if PRIO: a("s_setprio 3")
    bar('b3')
    a(f"ds_read_b32 v1, v{VZ} offset:{mNT}\ns_waitcnt lgkmcnt(0)\nv_readfirstlane_b32 s{sNT}, v1")
    ranges()
    a("KF_J:")
    def rd_ga(off): a(f"ds_read_u16 v{GA0}, v{SB} offset:{GL+off}\nds_read_u16 v{GA0+1}, v{SB} offset:{GL+off+8}")
    def rd_gg(off): a(f"ds_read_u16 v{YA}, v{RB} offset:{GL+off}")
    def rd_y(): a(f"v_lshl_add_u32 v{EA}, v{YA}, 1, v{EC}\nv_add_u32 v{YA}, v{YA}, v{M4}\nds_read_u16 v{VY}, v{YA} offset:{WB+2}")
    def rd_idx():
        for i in range(8): a(f"ds_read_u16 v{IDX+2*i}, v{GA0+(i>>2)} offset:{WB+4*(i&3)}")
    def dma1(i):
        L=[]
        if i==0: L.append(f"s_mov_b32 m0, s{sBUF}\ns_nop 0")
        if i==4: L.append(f"s_add_u32 m0, s{sBUF}, 4096\ns_nop 0")
        L.append(f"buffer_load_dwordx4 {P2(IDX+2*i)}, {SR4(sP)}, 0 idxen offen offset:{1024*(i&3)}{GSC} lds")
        return "\n".join(L)
    def dma():
        for i in range(8): a(dma1(i))
    def rd_b3(q): return f"ds_read_addtid_b32 v{B3+4*q} offset:{Q2+q*QS}\nds_read_addtid_b32 v{B3+4*q+1} offset:{Q2+q*QS+256}"
    def rd_a3(): return f"ds_read_b64 {P2(A3)}, v{VY} offset:{OH}\nds_read_b64 {P2(A3+2)}, v{EA}"
    def rd_a(t): return f"ds_read_b128 {P4(A+4*t)}, v{AR+t}"
    rd_s=f"s_mov_b64 exec, {S2(sMA)}\nds_read_b64 {P2(SS)}, v{SA} offset:{STB}\ns_mov_b64 exec, {S2(sMB)}\nds_read_b64 {P2(SS+2)}, v{SA} offset:{STB}\ns_mov_b64 exec, -1"
    rd_ga(0); rd_gg(0)
    a(f"""
ds_read_u16 v{WT}, v1 offset:{GL}
ds_read_b32 v{GP}, v{VZ} offset:{mSLOW}
s_waitcnt lgkmcnt(3)
""")
    rd_idx()
    a("s_waitcnt lgkmcnt(0)")
    dma()
    pt('d0')
    a(f"v_readfirstlane_b32 s{sNF}, v{WT}\nv_readfirstlane_b32 s{t3}, v{GP}")
    rd_y(); rd_ga(16)
    uscale()
    a("s_waitcnt lgkmcnt(0)")
    rd_idx()
    a(f"""
s_cmp_lg_u32 s{t3}, 0
s_cbranch_scc1 KF_SLOW
s_lshr_b32 s{sNF}, s{sNF}, 8
v_subrev_u32 v2, s{sNF}, v{VL}
v_and_b32 v2, 15, v2
v_add_u32 v{DR}, s{sNF}, v2
v_lshlrev_b32 v2, 2, v{DR}
ds_read_b32 v{GP}, v2 offset:{BT}
s_mul_i32 s{sW8}, s{sNF}, -8
s_lshl_b32 m0, s{sNF}, 7
v_add3_u32 v{VY}, v{VY}, v{OHC}, s{sW8}
""")
    for q in range(4): a(rd_b3(q))
    a(rd_a3())
    a(f"""
v_mov_b32 v{SS}, 0
v_mov_b32 v{SS+1}, 0
v_mov_b32 v{SS+2}, 0
v_mov_b32 v{SS+3}, 0
s_add_u32 s{t1}, s{sT0}, s{sCNT}
s_lshl_b32 s{t1}, s{t1}, 7
s_add_u32 s{t2}, s{sWV}, 48
v_mov_b32 v1, s{t2}
{mfma32(ACC+16,SS,SS,None)}
s_waitcnt lgkmcnt(10)
v_cmp_gt_u32 vcc, s{t0}, v{GP}
v_cmp_gt_u32 {S2(t2)}, s{t1}, v{GP}
v_cmp_gt_u32 {S2(t0)}, s{sNN}, v{DR}
v_cndmask_b32 v{DR}, v{DR}, v1, vcc
s_cmp_lg_u64 vcc, 0
s_cselect_b32 s{sHEAD}, 1, 0
s_and_b64 vcc, {S2(t2)}, {S2(t0)}
v_lshrrev_b32 v1, 2, v{VL}
v_cndmask_b32 v{DR}, 63, v{DR}, vcc
v_and_b32 v1, 4, v1
v_xor_b32 v1, v1, v{DR}
v_and_b32 v1, 15, v1
v_lshlrev_b32 v1, 4, v1
v_lshl_add_u32 v{DR}, v{DR}, 8, v1
v_sub_u32 v{DR}, v{DR}, v{OHC}
s_mov_b32 s{sI}, 1
s_sub_u32 s{sCNT}, s{sCNT}, 1
""")
    pt('pre')
    a("s_waitcnt vmcnt(0)")
    pt('g0')
    for t in range(8): a(rd_a(t))
    a("s_waitcnt lgkmcnt(6)")
    a(mfma32(Z[0],A3,B3,None)); a(mfma32(Z[0],A,ID0,Z[0])); a(mfma32(Z[0],A+4,ID1,Z[0]))
    a("s_nop 3\ns_waitcnt lgkmcnt(0)")
    pt('pro')
    def finals(qprev):
        for u in range(2): a(f"v_pk_mul_f32 {P2(NN+2*u)}, {P2(NN+2*u)}, {P2(DD+2*u)}")
        for u in range(2): a(f"v_cvt_pk_bf16_f32 v{GP+2*(qprev&1)+u}, v{NN+2*u}, v{NN+2*u+1}")
    def ex(zc,r): return f"v_exp_f32 v{EE+r}, v{zc+r}"
    def body(first):
        for q in range(4):
            zc=Z[q&1]; zn=Z[(q+1)&1]; qn=(q+1)&3
            ms=[(A3,B3+4*qn),(A+8*qn,ID0),(A+8*qn+4,ID1)]
            if q==3: ms=[ms[1],ms[2],ms[0]]
            pend=[0,1,2,3,8,9,10,11,4,5,12,13,6,7,14,15]
            f0=first and q==0
            if q==0:
                a(f"v_readlane_b32 s{sQ}, v{WT}, s{sI}")
                rd_gg(16); rd_ga(32)
                if first: a("s_nop 1")
            if q==1:
                a("s_waitcnt lgkmcnt(4)"); rd_y(); rd_idx()
            if q==2:
                a("s_waitcnt vmcnt(0)")
                for t in range(6): a(rd_a(t))
            if q==3:
                a(f"s_waitcnt lgkmcnt(0)\ns_cmp_gt_u32 s{sCNT}, 1\ns_cselect_b64 vcc, -1, 0")
            a(mfma32(zn,ms[0][0],ms[0][1],None))
            if not f0:
                for j in range(4): a(f"v_rcp_f32 v{DD+j}, v{DD+j}")
            else:
                for r in range(4): a(ex(zc,pend.pop(0)))
            if q==0:
                a(f"s_lshr_b32 s{sQ}, s{sQ}, 8\ns_lshl_b32 m0, s{sQ}, 7\ns_mul_i32 s{sW8}, s{sQ}, -8")
                a(rd_b3(0)); a(rd_b3(1))
            if q==1:
                if first: a(f"s_lshl_b32 m0, s{sQ}, 7\ns_nop 0")
                a(rd_b3(2))
            if q==2: a(rd_b3(3)); a(rd_a3())
            a(mfma32(zn,ms[1][0],ms[1][1],zn))
            for r in range(4): a(ex(zc,pend.pop(0)))
            a(mfma32(zn,ms[2][0],ms[2][1],zn))
            for r in range(4): a(ex(zc,pend.pop(0)))
            if q&1:
                p=1 if q==1 else 0
                if not (first and q==1):
                    a(mfma32(ACC+16*p,GP,SS,None if first else ACC+16*p))
                    for r in range(4): a(ex(zc,pend.pop(0)))
                if q==1: a(rd_s)
            if q==2: a(rd_a(6)); a(rd_a(7))
            if not f0: finals((q-1)&3)
            seq=[]
            for u in range(2): seq.append(f"v_pk_add_f32 {P2(DD+2*u)}, {P2(EE+8*u)}, 1.0 op_sel_hi:[1,0]")
            for m in range(1,4):
                for u in range(2):
                    src=(zc+8*u) if m==1 else NN+2*u
                    seq.append(f"v_pk_fma_f32 {P2(NN+2*u)}, {P2(src)}, {P2(EE+8*u+2*m)}, {P2(src)}")
                for u in range(2): seq.append(f"v_pk_fma_f32 {P2(NN+2*u)}, {P2(zc+8*u+2*m)}, {P2(DD+2*u)}, {P2(NN+2*u)}")
                for u in range(2): seq.append(f"v_pk_fma_f32 {P2(DD+2*u)}, {P2(DD+2*u)}, {P2(EE+8*u+2*m)}, {P2(DD+2*u)}")
            slots=[0,1,2,3,5,7,9,11] if len(pend)==8 else [1,4,7,10]
            dpos={}
            if (q==3 or f0) and not X&1:
                for i in range(8): dpos.setdefault(DSP[i],[]).append(i)
            for k,x in enumerate(seq):
                if k in dpos:
                    guard=(q==3 and not first)
                    lab=f"KF_l{k}"
                    if guard: a(f"s_cbranch_vccz {lab}")
                    for i in dpos[k]: a(dma1(i))
                    if guard:
                        if k==max(dpos):
                            a(f"s_branch {lab}b\n{lab}:\ns_cmp_eq_u32 s{sCNT}, s{sWU}\ns_cbranch_scc0 {lab}b")
                            sdma(sA,32768,0,TD)
                            a(f"{lab}b:")
                        else: a(f"{lab}:")
                a(x)
                if k in slots: a(ex(zc,pend.pop(0)))
            if q==1: a(f"s_waitcnt lgkmcnt(4)\nv_add3_u32 v{VY}, v{VY}, v{OHC}, s{sW8}\nv_add_u32 v{SA}, 16, v{SA}")
            if q==2: a(f"v_pk_add_f32 {P2(RB)}, {P2(RB)}, {S2(sINC)}")
    body(True)
    a("s_branch KF_LE\n.p2align 6\nKF_LOOP:")
    body(False)
    a("KF_LE:")
    if PRIO:
        for rem,pr in ((5,2),(3,1),(1,0)):
            a(f"s_cmp_eq_u32 s{sCNT}, {rem}\ns_cbranch_scc0 KF_pr{rem}\ns_setprio {pr}\nKF_pr{rem}:")
    a(f"""
s_add_u32 s{sI}, s{sI}, 1
s_sub_u32 s{sCNT}, s{sCNT}, 1
s_cbranch_scc0 KF_LOOP
""")
    for j in range(4): a(f"v_rcp_f32 v{DD+j}, v{DD+j}")
    a("s_nop 0")
    finals(3)
    a("s_nop 1")
    a(mfma32(ACC+16,GP,SS,ACC+16))
    pt('loop')
    for p in range(2):
        if p==1: a("s_nop 0")
        for j in range(4):
            c=ACC+16*p+4*j
            a(f"v_cvt_pk_bf16_f32 v{c}, v{c}, v{c+1}\nv_cvt_pk_bf16_f32 v{c+1}, v{c+2}, v{c+3}")
            if p or j: a(f"v_xor_b32 v1, {(8*p+j)*16}, v{DR}")
            a(f"ds_write_b64 v{1 if (p or j) else DR}, {P2(c)} offset:{AGB}")
    a(f"""
s_and_b32 s{t1}, s{sNF}, 15
s_lshl_b32 s{t1}, s{t1}, 4
s_lshl_b32 s{t0}, s{sNF}, 8
s_or_b32 s{t0}, s{t0}, s{t1}
s_mul_i32 s{t1}, s{sWV}, 272
s_add_u32 s{t1}, s{t1}, {48*256}
v_lshlrev_b32 v3, 2, v{VL}
v_xor_b32 v1, s{t0}, v3
v_xor_b32 v2, s{t1}, v3
s_cmp_eq_u32 s{sHEAD}, 0
s_waitcnt vmcnt(0) lgkmcnt(0)
s_barrier
s_cbranch_scc1 KF_FIN
ds_read_b32 v4, v1 offset:{AGB}
ds_read_b32 v5, v2 offset:{AGB}
s_waitcnt lgkmcnt(0)
v_lshlrev_b32 v6, 16, v4
v_and_b32 v7, 0xffff0000, v4
v_lshlrev_b32 v8, 16, v5
v_and_b32 v9, 0xffff0000, v5
v_pk_add_f32 v[6:7], v[6:7], v[8:9]
v_cvt_pk_bf16_f32 v6, v6, v7
ds_write_b32 v1, v6 offset:{AGB}
KF_FIN:
""")
    OST=GBUF
    tru(WU2,32768)
    srd(a,sX,16,N*256)
    a(f"""
v_and_b32 v1, 15, v{VL}
s_lshl_b32 s{t0}, s{sOT}, 1
v_lshrrev_b32 v2, 5, v{VL}
v_or_b32 v2, s{t0}, v2
v_xor_b32 v2, v2, v1
v_lshlrev_b32 v2, 4, v2
v_lshl_add_u32 v2, v1, 8, v2
v_lshrrev_b32 v3, 1, v{VL}
v_and_or_b32 v2, v3, 8, v2
v_add_u32 v{AR}, {OST}, v2
v_lshlrev_b32 v{AR+1}, 1, v1
""")
    bar('mrg',"s_waitcnt vmcnt(0) lgkmcnt(0)")
    for T in range(4):
        xfrags([T])
        if T==2:
            a("s_waitcnt lgkmcnt(8)")
            for s in range(4): a(mfma16(UA,WU2+4*s,XF+4*s,UA))
    def silu(T):
        c=UA+4*T; e=EE+4*T
        L=[f"v_exp_f32 v{e+i}, v{c+i}" for i in range(4)]
        L+=[f"v_fma_f32 v{e+i}, v{e+i}, s{sL2E}, s{sL2E}" for i in range(4)]
        L+=[f"v_rcp_f32 v{e+i}, v{e+i}" for i in range(4)]
        L+=[f"v_mul_f32 v{e+i}, v{e+i}, v{c+i}" for i in range(4)]
        L+=[f"v_cvt_pk_bf16_f32 v{e}, v{e}, v{e+1}",f"v_cvt_pk_bf16_f32 v{e+1}, v{e+2}, v{e+3}",f"ds_write_b64 v{AR}, {P2(e)} offset:{T*4096}"]
        return L
    for T in range(1,4):
        a(f"s_waitcnt lgkmcnt({4*(3-T)})")
        for s in range(4):
            x,y=(WU2+4*s,XF+16*T+4*s) if T<3 else (XF+16*T+4*s,WU2+4*s)
            a(mfma16(UA+4*T,x,y,UA+4*T))
    for T in range(3):
        for x in silu(T): a(x)
    c=UA+12; e=EE+12
    a(f"""
v_exp_f32 v{e}, v{c}
s_add_u32 s{t0}, s{sK}, {48*256}
v_fma_f32 v{e}, v{e}, s{sL2E}, s{sL2E}
v_rcp_f32 v{e}, v{e}
s_lshl_b32 s{t0}, s{t0}, 8
v_mul_f32 v{e}, v{e}, v{c}
s_lshl_b32 s{t1}, s{sOT}, 5
s_add_u32 s{t0}, s{t0}, s{t1}
v_cvt_pk_bf16_f32 v{e}, v{e}, v{e}
s_mov_b32 exec_lo, 0xffff
s_mov_b32 exec_hi, 0
buffer_store_short v{e}, v{AR+1}, {SR4(sX)}, s{t0} offen{OSC}
s_mov_b64 exec, -1
v_lshlrev_b32 v1, 4, v0
v_add_u32 v1, {OST}, v1
v_lshrrev_b32 v2, 4, v0
v_xor_b32 v3, v2, v0
v_and_b32 v3, 15, v3
v_lshlrev_b32 v3, 4, v3
v_lshl_add_u32 v3, v2, 16, v3
s_lshl_b32 s{t0}, s{sK}, 8
s_add_u32 s{t1}, s{t0}, {32*65536}
s_waitcnt lgkmcnt(0)
s_barrier
ds_read_b128 {P4(A)}, v1
s_cmp_lt_u32 s{sWV}, 4
s_cbranch_scc0 KF_e1
ds_read_b128 {P4(A+4)}, v1 offset:8192
s_waitcnt lgkmcnt(0)
buffer_store_dwordx4 {P4(A+4)}, v3, {SR4(sX)}, s{t1} offen{OSC}
KF_e1:
s_waitcnt lgkmcnt(0)
buffer_store_dwordx4 {P4(A)}, v3, {SR4(sX)}, s{t0} offen{OSC}
""")
    a(f"""
s_or_b32 s{t0}, s2, s{sWV}
s_cbranch_scc1 KF_e2
v_mov_b32 v1, s{sNON}
v_mov_b32 v2, 0
s_mov_b64 exec, 1
buffer_store_dword v1, v2, {SR4(sR)}, 0 offen
KF_e2:
""")
    if PROF: a("s_waitcnt vmcnt(0)")
    stamp(a,10); stamp(a,11,True)
    stamp_out(a,1,sWV)
    a("KF_END:\ns_endpgm")
    a("KF_CEND:")
    hist_retry(8,"KT_h")
    SV=ACC; AGs=SV+8; RS_=SV+16
    a(f"""
KF_SLOW:
s_setprio 0
s_cmp_ge_u32 s{sWV}, 4
s_cselect_b32 s{sTOT}, 0, s{sTOT}
v_mov_b32 v1, s{sTOT}
ds_max_u32 v{VZ}, v1 offset:{mMX}
v_mov_b32 v{SS}, 0
v_mov_b32 v{SS+1}, 0
v_mov_b32 v{SS+2}, 0
v_mov_b32 v{SS+3}, 0
s_mov_b32 s{sLO}, 0
s_mov_b32 s{sLB}, s{sBUF}
s_sub_u32 s{t0}, s{sWV}, s{sT0}
s_lshl_b32 s{t0}, s{t0}, 4
v_add_u32 v{SV+4}, s{t0}, v{RB}
v_add_u32 v{SV+5}, s{t0}, v{SB}
s_lshl_b32 s{t0}, s{sWV}, 4
v_sub_u32 v{SV+6}, s{t0}, v{OHC}
v_and_b32 v{SV+7}, 31, v{VL}
v_lshlrev_b32 v{SV+7}, 2, v{SV+7}
v_lshlrev_b32 v1, 4, v0
""")
    for j in range(3): a(f"ds_write_b128 v1, {P4(SS)} offset:{AGG+j*8192}")
    a(f"""
v_lshlrev_b32 v1, 4, v{VL}
ds_write_b128 v1, {P4(SS)} offset:{AGG+3*8192}
s_waitcnt vmcnt(0) lgkmcnt(0)
s_barrier
ds_read_b32 v1, v{VZ} offset:{mMX}
s_waitcnt lgkmcnt(0)
v_readfirstlane_b32 s{sRND}, v1
KF_SR:
s_cmp_lt_u32 s{sLO}, s{sRND}
s_cbranch_scc0 KF_SE
s_barrier
v_lshlrev_b32 v1, 2, v{VL}
v_lshlrev_b32 v2, 8, v{VL}
ds_write_b32 v1, v2
s_waitcnt lgkmcnt(0)
s_barrier
s_cmp_ge_u32 s{sWV}, 4
s_cbranch_scc1 KF_S1
s_movk_i32 s{t3}, 256
""")
    expand("KF_x")
    a(f"s_sub_u32 s{t1}, s{sTOT}, s{sLO}")
    reclist(4)
    recload(4,"KF_rl")
    hist(4,"KF_h",0,False)
    a("s_waitcnt lgkmcnt(0)")
    for i in range(4):
        a(f"""
v_mov_b32 v{RS_+4*i}, v{RC+4*i}
v_mov_b32 v{RS_+4*i+1}, v{RC+4*i+1}
v_mov_b32 v{RS_+4*i+2}, v{RC+4*i+2}
v_lshlrev_b32 v1, 6, v{RC+4*i+3}
v_sub_u32 v1, v{RK+i}, v1
v_cndmask_b32 v{RS_+4*i+3}, -1, v1, {S2(sM+2*i)}
""")
    a(f"""
KF_S1:
s_mov_b32 s{sHEAD}, 0                    ; 256*k
KF_SK:
s_waitcnt lgkmcnt(0)
s_barrier
s_cmp_ge_u32 s{sWV}, 4
s_cbranch_scc1 KF_S2
s_mov_b32 s{t1}, {EB}
""")
    for i in range(4):
        a(f"""
v_subrev_u32 v1, s{sHEAD}, v{RS_+4*i+3}
v_lshrrev_b32 v2, 19, v{RS_+4*i+2}
v_lshl_add_u32 v2, v2, 8, v1
v_lshl_add_u32 v3, v2, 1, s{t1}
v_cmpx_gt_u32 vcc, 0x100, v1
ds_write_b32 v2, v{RS_+4*i+2} offset:{WB}
ds_write_b64 v3, {P2(RS_+4*i)}
s_mov_b64 exec, -1
""")
    a("KF_S2:")
    scan(True)
    a(f"s_cmp_lg_u64 {S2(t2)}, 0\ns_cselect_b32 s{sFLAG}, 1, 0")
    fill("KFs",True,8)
    a(f"""
s_add_u32 s{sNT}, s{t0}, 127
s_lshr_b32 s{sNT}, s{sNT}, 7
s_waitcnt lgkmcnt(0)
s_barrier
v_mov_b32 v{RB}, v{SV+4}
v_mov_b32 v{SB}, v{SV+5}
v_mov_b32 v{SV+12}, v{SV+6}
s_mov_b32 s{sI}, s{sWV}
KF_SL:
s_cmp_lt_u32 s{sI}, s{sNT}
s_cbranch_scc0 KF_SN
""")
    rd_ga(0); rd_gg(0)
    for j in range(4): a(f"ds_read_u16 v{AGs+j}, v{SV+12} offset:{GL+2*j}")
    a("s_waitcnt lgkmcnt(0)")
    rd_y(); rd_idx()
    a("s_waitcnt lgkmcnt(0)")
    dma()
    for j in range(4): a(f"v_lshrrev_b32 v{AGs+j}, 8, v{AGs+j}")
    a(f"""
v_readfirstlane_b32 s{sQ}, v{AGs}
s_nop 3
s_mul_i32 s{sW8}, s{sQ}, -8
s_lshl_b32 m0, s{sQ}, 7
v_add3_u32 v{VY}, v{VY}, v{OHC}, s{sW8}
""")
    for q in range(4): a(rd_b3(q))
    a(rd_a3())
    for j in range(4): a(f"v_lshl_add_u32 v{AGs+j}, v{AGs+j}, 9, v{SV+7}")
    a("s_waitcnt vmcnt(0) lgkmcnt(0)")
    for t in range(8): a(rd_a(t))
    a("s_waitcnt lgkmcnt(0)")
    for q in range(4):
        z=Z[0]
        a(mfma32(z,A3,B3+4*q,None)); a(mfma32(z,A+8*q,ID0,z)); a(mfma32(z,A+8*q+4,ID1,z))
        a("s_nop 15")
        for r in range(16): a(f"v_exp_f32 v{EE+r}, v{z+r}")
        for r in range(16): a(f"v_add_f32 v{EE+r}, 1.0, v{EE+r}")
        for r in range(16): a(f"v_rcp_f32 v{EE+r}, v{EE+r}")
        for m in range(4):
            for u in range(2):
                for par in range(2):
                    r=8*u+2*m+par; g=GP+2*u+par
                    a(f"v_mul_f32 v{g}, v{z+r}, v{EE+r}" if m==0 else f"v_fmac_f32 v{g}, v{z+r}, v{EE+r}")
        for j in range(4): a(f"ds_add_f32 v{AGs+j}, v{GP+j} offset:{AGG+q*128}")
        a("s_waitcnt lgkmcnt(0)")
    a(f"""
v_add_u32 v{SB}, 128, v{SB}
v_add_u32 v{RB}, 128, v{RB}
v_add_u32 v{SV+12}, 128, v{SV+12}
s_add_u32 s{sI}, s{sI}, 8
s_branch KF_SL
KF_SN:
s_add_u32 s{sHEAD}, s{sHEAD}, 256
s_cmp_lg_u32 s{sFLAG}, 0
s_cbranch_scc1 KF_SK
s_add_u32 s{sLO}, s{sLO}, 256
s_branch KF_SR
KF_SE:
s_cmp_ge_u32 s{sWV}, 4
s_cbranch_scc0 KF_SE2
""")
    sdma(sA,32768,0,TD)
    a(f"""
KF_SE2:
v_lshlrev_b32 v1, 4, v0
v_lshrrev_b32 v2, 5, v0
s_waitcnt vmcnt(0) lgkmcnt(0)
s_barrier
""")
    for j in range(4): a(f"ds_read_b128 {P4(A+4*j)}, v1 offset:{AGG+j*8192}")
    a(f"""
v_bfe_u32 v3, v0, 1, 4
v_xor_b32 v3, v3, v2
v_lshlrev_b32 v3, 4, v3
v_lshl_add_u32 v3, v2, 8, v3
v_and_b32 v1, 1, v0
v_lshl_add_u32 v3, v1, 3, v3
s_waitcnt lgkmcnt(0)
s_barrier
""")
    for j in range(4):
        a(f"v_cvt_pk_bf16_f32 v{A+4*j}, v{A+4*j}, v{A+4*j+1}\nv_cvt_pk_bf16_f32 v{A+4*j+1}, v{A+4*j+2}, v{A+4*j+3}")
        a(f"ds_write_b64 v3, {P2(A+4*j)} offset:{AGB+j*4096}")
    a("s_branch KF_FIN")
    hist_retry(4,"KF_h")
    return a.text()

if __name__=='__main__':
    import sys
    nm='standalone__mpnn_edge_mlp__graph_kernel'
    hdr=open('standalone__mpnn_edge_mlp__graph.s.ref').read().split('; Override')[0]
    out=hdr+(f"; @launch kernel={nm} grid=(256,1,1) block=(512,1,1) lds={KF_LDS}\n" if os.environ.get('LISTF') else f"; @launch grid=(256,1,1) block=(512,1,1) lds={KF_LDS}\n")
    out+='.amdgcn_target "amdgcn-amd-amdhsa--gfx950"\n.text\n'
    out+=f".globl {nm}\n.p2align 8\n.type {nm},@function\n"+gen_kf(nm)
    out+='.section .rodata,"a"\n.p2align 6\n'+kd(nm,256)
    open(sys.argv[1],'w').write(out)
```

```python
from common import *
X=int(os.environ.get('X','0'))
PRIO=int(os.environ.get('PRIO','1'))
DSP=[int(c,36) for c in os.environ.get('DSP','00000000')]
def EV(n,d): return int(os.environ.get(n,d))
TPOS=EV('TPOS',6); PFP=EV('PFP',0); XORD=EV('XORD',1); WUI=EV('WUI',2); FLP=EV('FLP',1); FSL=EV('FSL',8); TE=EV('TE',1); W1N=EV('W1N',5); GP_=EV('GP',1); ORD=EV('ORD',0); CP=EV('CP',0); ES=EV('ES',0); PFH=EV('PFH',0); XP=EV('XP',0); PFI=EV('PFI',0); SWW=EV('SWW',1)
PTS=os.environ.get('PTS','b1,bS,tp,pfl,rl,b2,b3,pro').split(',')
SC=' sc1'
OSC=os.environ.get('OSC',' sc1')
GSC=os.environ.get('GSC',' sc1')
NPROD=250; EP=1600
F_P=0x1000; F_REC=0x400000; F_TBL=0xB00000; F_FLG=0xB90000; F_SIZE=0xBA0000
CNT=0; MISC=256; OH=400; GL=928; BT=1872; STB=2144; RS=944
mSLOW=MISC; mS=MISC+4; mGX=MISC+8; mGP=MISC+12; mC3=MISC+16; mPD=MISC+20; mSL=MISC+24; mMX=MISC+28; mPI=MISC+32; mH=MISC+36; mNT=MISC+40; mW=MISC+44; mE=MISC+48; mW3=MISC+52
AGB=17408
W3L=AGB+56*256
Q2=AGB+16384; QS=52*128
S1=Q2; ERAW=Q2+12800
WB=Q2+4*QS; NULLG=49*256; EB=WB+NULLG+16
HIST=WB; PSC=WB+2048
GBUF=98304
KF_LDS=GBUF+65536
assert EB+2*NULLG+32<=GBUF and STB+16*RS<=AGB
AGG=STB
ONE2=0x3F803F80
NULLW2=0xFFFF|(512<<16)
CAPT=58
ID0=4; ID1=8; B3=12; A=28; Z=[60,76]; A3=92; EE=96; NN=112; DD=116; GP=120; SS=124
IDX=128; AR=144; RB=152; SB=153; SA=154; VY=155; OHC=156; VL=157; WT=158; DR=159
ACC=160; WU2=192; UA=208; WF=160; WU1=176; QA=224; RC=96; XF=28; GA=192
A6=244; QAD=250; QC=251; SA2=224; SI2=226; OH2=228; GA0=232; YA=234; EA=235; M4=236; EC=237; VZ=238; PO=92; TRU=240; TD=241; TC=242; TO=243; RK=244; FA=252
sP=24; sX=28; sA=32; sR=36; sM=40
sWV=56; sK=57; sNN=58; sI=59; sNT=60; sBUF=61; sQ=62; sW8=63; sCNT=64; sT0=65
sL2E=66; sINC=68; sRND=70; sTOT=71; sNON=72; sBUD=73; sW4=74; sLB=75
sWU=3; sW4K=22; sOT=23; sFLAG=76; sLO=77; sMA=78; sQ2=80; sHEAD=82; sNF=83
t0,t1,t2,t3=84,85,86,87
BUDGET=20000

def mfma32(d,x,y,c): return f"v_mfma_f32_32x32x16_bf16 v[{d}:{d+15}], v[{x}:{x+3}], v[{y}:{y+3}], "+("0" if c is None else f"v[{c}:{c+15}]")
def mfma16(d,x,y,c): return f"v_mfma_f32_16x16x32_bf16 v[{d}:{d+3}], v[{x}:{x+3}], v[{y}:{y+3}], "+("0" if c is None else f"v[{c}:{c+3}]")
def P2(r): return f"v[{r}:{r+1}]"
def P4(r): return f"v[{r}:{r+3}]"
def S2(r): return f"s[{r}:{r+1}]"
def SR4(r): return f"s[{r}:{r+3}]"

def gen_kf(name):
    a=Asm()
    def pt(n):
        if PROF and n in PTS: stamp(a,2+PTS.index(n))
    def bar(n,w="s_waitcnt lgkmcnt(0)"):
        a(w+"\ns_barrier"); pt(n)
    def gsync(n,lab,off,target,va,vt,pre=None):
        if pre: a(pre)
        a(f"""
v_mov_b32 v{vt}, 1
s_mov_b64 exec, 1
ds_add_u32 v{va}, v{vt} offset:{off}
s_mov_b64 exec, -1
{lab}:
ds_read_b32 v{vt}, v{va} offset:{off}
s_waitcnt lgkmcnt(0)
v_readfirstlane_b32 s{t1}, v{vt}
s_and_b32 s{t1}, s{t1}, 255
s_cmp_lt_u32 s{t1}, {target}
s_cbranch_scc1 {lab}
""")
        pt(n)
    def gwait(lab,off,target,va,vt):
        a(f"""
{lab}:
ds_read_b32 v{vt}, v{va} offset:{off}
s_waitcnt lgkmcnt(0)
v_readfirstlane_b32 s{t1}, v{vt}
s_and_b32 s{t1}, s{t1}, 255
s_cmp_lt_u32 s{t1}, {target}
s_cbranch_scc1 {lab}
""")
    def consts():
        srd(a,sP,20,N,off=F_P-3072,stride=256)
        srd(a,sR,20,F_SIZE)
        a(f"""
s_cmp_lt_u32 s{sK}, {N-256*48}
s_cselect_b32 s{sNN}, 49, 48
s_mov_b32 s{sL2E}, {hex(LOG2E_NEG)}
s_mov_b32 s{sL2E+1}, {hex(LOG2E_NEG)}
s_mov_b32 s{sINC}, 16
s_mov_b32 s{sINC+1}, 16
s_mov_b32 s{sMA}, 0x0000ffff
s_mov_b32 s{sMA+1}, 0x0000ffff
s_mov_b32 s{sQ2}, {Q2}
s_mov_b32 s{sBUD}, {BUDGET}
v_lshrrev_b32 v2, 5, v{VL}              ; h
; g = 4 b2 + 2 b4 + b0 ; m = 2 b3 + b1 ; slot = 16 b2 + 4 m + (g&3)
v_lshrrev_b32 v1, 3, v{VL}
v_and_b32 v1, 2, v1
v_and_or_b32 v1, v{VL}, 5, v1           ; g
v_lshlrev_b32 v{RB}, 1, v1
v_lshlrev_b32 v3, 1, v{VL}
v_and_b32 v3, 4, v3
v_and_or_b32 v{M4}, v{VL}, 8, v3        ; 4m
v_lshlrev_b32 v{EC}, 1, v{M4}
v_add_u32 v{EC}, {EB}, v{EC}
v_lshlrev_b32 v3, 2, v1
v_and_or_b32 v3, v3, 16, v{M4}
v_and_or_b32 v3, v1, 3, v3              ; slot
v_lshl_add_u32 v3, v3, 8, s{sBUF}
v_and_b32 v{WT}, 15, v{VL}              ; n / c16
v_xor_b32 v1, v2, v{WT}
v_lshl_add_u32 v{AR}, v1, 4, v3
""")
        for t in range(1,8): a(f"v_xor_b32 v{AR+t}, {32*t}, v{AR}")
        a(f"""
v_mul_i32_i24 v{OHC}, -8, v2
v_mul_u32_u24 v{SA}, {RS}, v{WT}
v_and_b32 v1, 1, v{VL}
v_lshlrev_b32 v1, 4, v1
v_mov_b32 v3, 0x3f80
v_lshlrev_b32 v1, v1, v3
""")
        for s in range(2):
            for j in range(4):
                lo=3<<(16*s+2*j); hi=(3<<(16*s+8+2*j))
                a(f"s_mov_b32 vcc_lo, {hex(lo)}\ns_mov_b32 vcc_hi, {hex(hi)}\nv_cndmask_b32 v{ID0+4*s+j}, 0, v1, vcc")
        a(f"""
v_lshrrev_b32 v2, 4, v{VL}              ; a / g
v_lshlrev_b32 v{SB}, 1, v2
v_and_b32 v1, 1, v2
v_xor_b32 v1, v1, v{WT}
v_lshlrev_b32 v1, 4, v1
""")
        for i in range(8): a(f"v_xor_b32 v{IDX+2*i+1}, {(8*((i>>1)&1)+4*(i>>2)+2*(i&1))*16+3072-1024*(i&3)}, v1")
        a(f"v_xor_b32 v3, v2, v{WT}\nv_lshlrev_b32 v3, 4, v3\nv_lshl_add_u32 v3, v{WT}, 8, v3\nv_add_u32 v{FA}, {AGB}, v3")
        for s in range(1,4): a(f"v_xor_b32 v{FA+s}, {64*s}, v{FA}")
        a(f"""
s_lshl_b32 s{t0}, s{sW4}, 13
s_add_u32 s{t0}, s{t0}, {GBUF}
s_lshr_b32 s{t1}, s{sWV}, 2
s_lshl_b32 s{sOT}, s{sW4}, 1
s_or_b32 s{sOT}, s{sOT}, s{t1}
v_lshrrev_b32 v1, 2, v{WT}
v_lshl_add_u32 v1, v2, 3, v1
v_lshl_add_u32 v{DR}, v1, 6, s{t0}
v_xor_b32 v2, s{t1}, v2
v_and_b32 v2, 1, v2
v_and_b32 v3, 3, v{VL}
v_lshl_add_u32 v{TRU}, v2, 5, v{DR}
v_lshl_add_u32 v{TRU}, v3, 3, v{TRU}
""")
    def tagh():
        a(f"""
s_mul_i32 s{sNON}, s{sNON}, 0x9E3779B1
s_add_u32 s{sNON}, s{sNON}, 0x7F4A7C15
s_lshr_b32 s{t1}, s{sNON}, 15
s_xor_b32 s{sNON}, s{sNON}, s{t1}
""")
    def vyc():
        a(f"""
v_lshrrev_b32 v1, 4, v{VL}
v_and_b32 v1, 2, v1
v_xor_b32 v1, v1, v{VL}
v_and_b32 v1, 3, v1
v_lshlrev_b32 v1, 4, v1
v_lshrrev_b32 v2, 2, v{VL}
v_lshl_or_b32 v{VY}, v2, 8, v1
""")
    def trfrag(dst,addr,off,ks,hs):
        for s in range(4):
            a(f"ds_read_b64_tr_b16 {P2(dst+4*s)}, v{addr} offset:{off+s*ks}\nds_read_b64_tr_b16 {P2(dst+4*s+2)}, v{addr} offset:{off+s*ks+hs}")
    def tru(dst,off): trfrag(dst,TRU,off,2048,256)
    def sdma(sr,moff,loff=0,v=VY,js=range(8)):
        a(f"s_lshl_b32 s{t0}, s{sW4}, 6")
        for j in js:
            a(f"s_add_u32 m0, s{sBUF}, {loff+j*1024}\ns_add_u32 s{t1}, s{t0}, {moff+j*4096}\nbuffer_load_dwordx4 v{v}, {SR4(sr)}, s{t1} offen lds")
    def xfrags(Ts):
        for T in Ts:
            for s in range(4): a(f"ds_read_b128 {P4(XF+16*T+4*s)}, v{FA+s} offset:{T*4096}")
    def ugemm():
        for T in range(4):
            for s in range(4):
                x,y=(WU1+4*s,XF+16*T+4*s) if T<3 else (XF+16*T+4*s,WU1+4*s)
                a(mfma16(UA+4*T,x,y,None if s==0 else UA+4*T))
    def uscale():
        for j in range(7): a(f"v_pk_mul_f32 {P2(UA+2*j)}, {P2(UA+2*j)}, {S2(sL2E)}")
    def w3rd():
        a(f"v_lshlrev_b32 v1, 3, v{VL}")
        for q in range(4): a(f"ds_read_b64 {P2(B3+4*q+2*(q&1))}, v1 offset:{W3L+q*512}")
    F=A3
    def scan(slow):
        a(f"""
v_lshlrev_b32 v1, 2, v{VL}
ds_read_b32 v{F}, v1
v_cmp_gt_u32 vcc, s{sNN}, v{VL}
v_lshlrev_b32 v{F+1}, 8, v{VL}
s_waitcnt lgkmcnt(0)
v_sub_u32 v{QA}, v{F}, v{F+1}
""")
        if slow:
            a(f"""
s_movk_i32 s{t1}, 256
v_subrev_u32 v{QA}, s{sHEAD}, v{QA}
v_cmp_lt_i32 {S2(t2)}, s{t1}, v{QA}
v_med3_i32 v{QA}, v{QA}, 0, s{t1}
v_add_u32 v{F}, v{F+1}, v{QA}
""")
        a(f"""
v_add_u32 v3, 12, v{QA}
v_and_b32 v3, -16, v3
v_max_u32 v3, 80, v3
v_cndmask_b32 v3, 0, v3, vcc
v_mov_b32 v2, v3
""")
        dpp_scan(a,"v_add_u32",[2])
        a(f"""
v_readlane_b32 s{t0}, v2, 63
v_sub_u32 v2, v2, v3
""")
    def fill(lab,slow,nw):
        a(f"""
s_lshl_b32 s{t1}, s{sWV}, 4
v_add_u32 v{QA+1}, s{t1}, v2
v_lshrrev_b32 v{QA+1}, 3, v{QA+1}       ; 2*(G0+w)
v_add_u32 v{F+1}, s{t1}, v{F+1}         ; 256n+16w
v_subrev_u32 v{QA+2}, s{t1}, v3         ; g16-16w
""")
        if not slow: a(f"v_add_u32 v{QA+3}, v{QA+1}, v{SA}\nv_mov_b32 v{F+3}, 0x3f80\nds_write_b32 v1, v2 offset:{BT}")
        for k in range(16//nw):
            a(f"v_cmpx_lt_i32 vcc, {16*nw*k}, v{QA+2}\nds_write_b16 v{QA+1}, v{F+1+(k&1)} offset:{GL+2*nw*k}")
            if k+1<16//nw: a(f"v_add_u32 v{F+1+((k+1)&1)}, {16*nw}, v{F+1+(k&1)}")
            if not slow: a(f"ds_write_b16 v{QA+3}, v{F+3} offset:{STB+2*nw*k}")
        a(f"""
s_mov_b64 exec, -1
s_lshl_b32 s{t1}, s{sWV}, 2
v_sub_u32 v{QA+2}, v3, v{QA}
v_add_u32 v{F}, s{t1}, v{F}
v_subrev_u32 v{QA+2}, s{t1}, v{QA+2}    ; pad4 - 4w
s_mov_b32 s{t1}, {EB}
v_mov_b32 v{QA+4}, 0
v_mov_b32 v{QA+5}, 0
v_mov_b32 v{QA+6}, {hex(NULLW2)}
v_lshl_add_u32 v{QA+7}, v{F}, 1, s{t1}
""")
        for k in range(-(-20//nw)):
            a(f"v_cmpx_lt_i32 vcc, {4*nw*k}, v{QA+2}")
            if k==1: a(f"s_cbranch_vccz {lab}p")
            a(f"ds_write_b32 v{F}, v{QA+6} offset:{WB+4*nw*k}\nds_write_b64 v{QA+7}, {P2(QA+4)} offset:{8*nw*k}")
        a(f"""
{lab}p:
s_mov_b64 exec, -1
s_cmp_eq_u32 s{sWV}, 3
s_cbranch_scc0 {lab}q
s_lshr_b32 s{t1}, s{t0}, 3
v_lshl_add_u32 v{QA+1}, v{VL}, 1, s{t1}
v_mov_b32 v{QA+2}, {NULLG}
v_add_u32 v{QA+3}, {NULLG}, v1
v_lshlrev_b32 v{QA+7}, 1, v1
v_add_u32 v{QA+7}, {EB+2*NULLG}, v{QA+7}
s_mov_b64 exec, 0xff
ds_write_b16 v{QA+1}, v{QA+2} offset:{GL}
s_mov_b64 exec, 15
ds_write_b32 v{QA+3}, v{QA+6} offset:{WB}
ds_write_b64 v{QA+7}, {P2(QA+4)}
s_mov_b64 exec, -1
{lab}q:
""")
    def expand(lab):
        a(f"""
v_subrev_u32 v1, s{sLO}, v{TO}
v_add_u32 v2, v1, v{TC}
v_med3_i32 v1, v1, 0, s{t3}
v_med3_i32 v2, v2, 0, s{t3}
v_sub_u32 v2, v2, v1
v_lshl_add_u32 v1, v1, 2, s{sLB}
{lab}:
""")
        for j in range(16):
            a(f"v_cmpx_lt_i32 vcc, {j}, v2\nds_write_b32 v1, v{TD} offset:{4*j}")
        a(f"""
v_add_u32 v2, -16, v2
v_add_u32 v1, 64, v1
v_cmp_lt_i32 vcc, 0, v2
s_cmp_lg_u64 vcc, 0
s_cbranch_scc1 {lab}
s_mov_b64 exec, -1
""")
    def rl1(i): return f"buffer_load_dwordx4 {P4(RC+4*i)}, v{RK+i}, {SR4(sR)}, {'0' if i<4 else 's'+str(sQ)} offen offset:{1024*(i&3)}{SC}"
    def reclist(ns):
        a(f"v_lshl_add_u32 v1, v{VL}, 2, s{sLB}")
        for i in reversed(range(ns)): a(f"ds_read_b32 v{RK+i}, v1 offset:{256*i}")
        a(f"v_add_u32 v2, s{sLO}, v{VL}\nv_lshlrev_b32 v2, 4, v2\ns_movk_i32 s{sQ}, 4096")
        for i in range(ns):
            a(f"v_cmp_gt_i32 {S2(sM+2*i)}, s{t1}, v{VL}\ns_sub_u32 s{t1}, s{t1}, 64")
        a("s_waitcnt lgkmcnt(0)")
        for i in range(ns): a(f"v_add_u32 v{RK+i}, v{RK+i}, v2")
    def recload(ns,lab):
        for i in reversed(range(ns)):
            a(f"s_mov_b64 exec, {S2(sM+2*i)}\ns_cbranch_execz {lab}{i}\n{rl1(i)}\n{lab}{i}:")
        a("s_mov_b64 exec, -1")
    def hist(ns,lab,extra,scat):
        a(f"v_mov_b32 v1, 4\ns_mov_b32 s{sW8}, {EB}\n{lab}p:")
        def gm(i): return S2(t0+2*(i&1))
        def sc(i,n):
            a(f"""
s_mov_b64 exec, {gm(i)}
s_waitcnt lgkmcnt({n})
v_min_u32 v{RK+i}, {NULLG-4}, v{RK+i}
v_lshl_add_u32 v{RC+4*i+3}, v{RK+i}, 1, s{sW8}
ds_write_b32 v{RK+i}, v{RC+4*i+2} offset:{WB}
ds_write_b64 v{RC+4*i+3}, {P2(RC+4*i)}
""")
        for i in reversed(range(ns)):
            a(f"""
s_mov_b64 exec, {S2(sM+2*i)}
s_waitcnt vmcnt({i+extra})
v_cmpx_eq_u32 {gm(i)}, s{sNON}, v{RC+4*i+3}
v_lshrrev_b32 v{RC+4*i+3}, 17, v{RC+4*i+2}
ds_add_rtn_u32 v{RK+i}, v{RC+4*i+3}, v1
s_andn2_b64 {S2(sM+2*i)}, {S2(sM+2*i)}, {gm(i)}
""")
            a(f"s_mov_b64 vcc, {S2(sM+2*i)}" if i==ns-1 else f"s_or_b64 vcc, vcc, {S2(sM+2*i)}")
            if scat and i==0: a(f"s_cselect_b64 exec, 0, 1\nds_add_u32 v{VZ}, v1 offset:{mH}")
            if scat and i<ns-1: sc(i+1,(1 if i==ns-2 else 3)+(1 if i==0 else 0))
        if scat: sc(0,3)
        a(f"s_cbranch_vccnz {lab}r\n{lab}d:\ns_mov_b64 exec, -1")
    def hist_retry(ns,lab,scat):
        a(f"{lab}r:\ns_sub_u32 s{sBUD}, s{sBUD}, 1\ns_cbranch_scc1 {lab}x")
        recload(ns,lab+"l")
        a(f"s_waitcnt vmcnt(0)\ns_branch {lab}p\n{lab}x:\ns_mov_b32 s{sBUD}, 0")
        if scat: a(f"s_mov_b64 exec, 1\nds_add_u32 v{VZ}, v1 offset:{mH}")
        a(f"s_branch {lab}d")
    def qfull(lab,mid):
        H=QA+4; MX=QA+1
        a(f"v_xor_b32 v{TC}, 32, v{TRU}")
        trfrag(WF,TC,0,2048,256)
        a(f"""
s_lshr_b32 s{t0}, s{sW4}, 1
s_lshl_b32 s{t0}, s{t0}, 9
s_and_b32 s{t1}, s{sW4}, 1
s_lshl_b32 s{t1}, s{t1}, 3
s_add_u32 s{t0}, s{t0}, s{t1}
s_add_u32 s{t0}, s{t0}, {Q2}
v_lshl_add_u32 v120, v{SB}, 10, s{t0}
v_lshl_add_u32 v120, v{WT}, 4, v120
v_add_u32 v121, 256, v120
s_waitcnt lgkmcnt(0)
""")
        tru(WF+16,0)
        def cv(i,T,pk):
            c=GA+16*i+4*T
            L=[]
            if pk: L+=[f"v_pk_mul_f32 {P2(c)}, {P2(c)}, {S2(sL2E)}",f"v_pk_mul_f32 {P2(c+2)}, {P2(c+2)}, {S2(sL2E)}"]
            else: L+=[f"v_mul_f32 v{c+k}, s{sL2E}, v{c+k}" for k in range(4)]
            L+=[f"v_and_b32 v{H+k}, 0xffff0000, v{c+k}" for k in range(4)]
            L+=[f"v_maximum3_f32 v{MX}, {'0' if T==0 and i==0 else 'v'+str(MX)}, abs(v{c}), abs(v{c+1})",f"v_maximum3_f32 v{MX}, v{MX}, abs(v{c+2}), abs(v{c+3})"]
            if pk: L+=[f"v_pk_add_f32 {P2(c)}, {P2(c)}, {P2(H)} neg_lo:[0,1] neg_hi:[0,1]",f"v_pk_add_f32 {P2(c+2)}, {P2(c+2)}, {P2(H+2)} neg_lo:[0,1] neg_hi:[0,1]"]
            else: L+=[f"v_sub_f32 v{c+k}, v{c+k}, v{H+k}" for k in range(4)]
            L+=[f"v_cvt_pk_bf16_f32 v{c+k}, v{c+k}, v{H+k}" for k in range(4)]
            return L
        for T in range(4):
            for s in range(4): a(mfma16(GA+4*T,XF+16*T+4*s,WF+4*s,None if s==0 else GA+4*T))
        a("s_waitcnt lgkmcnt(0)")
        fl=cv(0,0,0)+cv(0,1,0)
        for T in range(4):
            for s in range(4):
                a(mfma16(GA+16+4*T,XF+16*T+4*s,WF+16+4*s,None if s==0 else GA+16+4*T))
                for _ in range(2): a(fl.pop(0))
        if PFI==0: mid()
        for x in fl+cv(0,2,1)+cv(1,0,1)+cv(1,1,1)+cv(1,2,1): a(x)
        if PFI==1: mid()
        gwait(lab+"w",mSL,4,VZ,1)
        for i in range(2):
            for T in range(3):
                c=GA+16*i+4*T
                a(f"ds_write2st64_b64 v{120+i}, {P2(c)}, {P2(c+2)} offset0:{16*T} offset1:{16*T+2}")
        a("s_mov_b64 exec, 0xffff")
        for i in range(2):
            c=GA+16*i+12
            a(f"""
v_mul_f32 v{c}, s{sL2E}, v{c}
v_and_b32 v{H}, 0xffff0000, v{c}
v_maximum3_f32 v{MX}, v{MX}, abs(v{c}), abs(v{c})
v_sub_f32 v{c}, v{c}, v{H}
v_cvt_pk_bf16_f32 v{c}, v{c}, v{H}
ds_write2st64_b64 v{120+i}, {P2(c)}, {P2(c+2)} offset0:48 offset1:50
""")
        a(f"""
s_mov_b64 exec, -1
v_cmp_nge_f32 vcc, 0x40e80000, v{MX}
s_cbranch_vccz {lab}q
ds_write_b32 v{VZ}, v{FA} offset:{mSLOW}
{lab}q:
""")
        pt('qd')
    def ranges():
        a(f"""
s_lshr_b32 s{sCNT}, s{sNT}, 3
s_mul_i32 s{sT0}, s{sCNT}, s{sWV}
s_and_b32 s{t2}, s{sNT}, 7
s_min_u32 s{t3}, s{t2}, s{sWV}
s_add_u32 s{sT0}, s{sT0}, s{t3}
s_cmp_lt_u32 s{sWV}, s{t2}
s_addc_u32 s{sCNT}, s{sCNT}, 0
s_lshl_b32 s{t0}, s{sT0}, 7
s_lshl_b32 s{t2}, s{sT0}, 4
v_add_u32 v{SB}, s{t2}, v{SB}
v_add_u32 v{RB}, s{t2}, v{RB}
v_sub_u32 v{SA}, v{SA}, v{OHC}
v_add_u32 v{SA}, s{t2}, v{SA}
s_add_u32 s{t3}, s{sT0}, s{sCNT}
v_min_u32 v1, 8, v{VL}
v_sub_u32 v1, s{t3}, v1
v_lshlrev_b32 v1, 4, v1
v_max_i32 v1, 0, v1
""")
    def epi_consts(): pass
    def arrive(off,vt): a(f"v_mov_b32 v{vt}, 1\ns_mov_b64 exec, 1\nds_add_u32 v{VZ}, v{vt} offset:{off}\ns_mov_b64 exec, -1")

    D=28; SRc=36; K=44; R=52; W2=60; RO=80
    sD=40; sS=44; sE=48
    Q16="s_mov_b64 exec, 0xffff"; FULL="s_mov_b64 exec, -1"
    a(f"""
{name}:
s_getpc_b64 {S2(t2)}
s_cmp_ge_u32 s2, 256
s_cbranch_scc1 KF_END
s_load_dwordx16 s[4:19], s[0:1], 0
s_load_dwordx2 s[20:21], s[0:1], 64
v_lshrrev_b32 v1, 6, v0
s_and_b32 s{t0}, s2, 0xf8
v_add_lshl_u32 v2, v1, s{t0}, 7
v_readfirstlane_b32 s{sWV}, v1
v_min_u32 v2, KF_CEND-{name}-8, v2
s_mov_b64 exec, 1
global_load_dword v{QA+15}, v2, {S2(t2)}
s_mov_b64 exec, -1
v_and_b32 v{VL}, 63, v0
v_mov_b32 v{VZ}, 0
v_lshlrev_b32 v113, 4, v{VL}
s_cmp_ge_u32 s{sWV}, 4
s_cbranch_scc0 KF_S
v_lshlrev_b32 v2, 2, v0
v_lshlrev_b32 v3, 8, v{VL}
ds_write_b32 v2, v{VZ} offset:{HIST-1024}
v_lshlrev_b32 v2, 2, v{VL}
ds_write2st64_b32 v2, v3, v{VZ} offset0:0 offset1:1
s_waitcnt lgkmcnt(0)
""")
    stamp(a,0,True); stamp(a,1); pt('st')
    a(f"""
s_lshr_b32 s{t0}, s{t0}, 1
s_add_u32 s{t0}, s{t0}, s{sWV}
s_sub_u32 s{t0}, s{t0}, 4
s_lshl_b32 s{t0}, s{t0}, 9
v_lshl_add_u32 v2, v{VL}, 7, s{t0}
s_mov_b64 exec, 15
global_load_dword v{QA+15}, v2, s[12:13]
global_load_dword v{QA+15}, v2, s[14:15]
s_mov_b64 exec, -1
s_branch KF_B0
KF_S:
s_min_u32 s{t2}, s2, {NPROD-1}
s_mul_i32 s{t2}, s{t2}, {EP*4}
s_mul_i32 s{t3}, s{sWV}, 400
v_add_u32 v108, s{t3}, v{VL}
v_lshlrev_b32 v109, 2, v108
s_mov_b32 s{sD+2}, {E*4}
s_mov_b32 s{sD+3}, 0x00020000
s_waitcnt lgkmcnt(0)
""")
    stamp(a,0,True); stamp(a,1); pt('st')
    a(f"s_mov_b32 s{sD}, s10\ns_and_b32 s{sD+1}, s11, 0xffff")
    def ld7(dst,sr):
        for i in range(7):
            if i==6: a(Q16)
            a(f"buffer_load_dword v{dst+i}, v109, {SR4(sr)}, s{t2} offen offset:{i*256}")
        a(FULL)
    ld7(D,sD)
    srd(a,sS,8,E*4)
    ld7(SRc,sS)
    a(f"s_lshl_b32 s{sLB}, s{t3}, 3\ns_add_u32 s{sLB}, s{sLB}, {S1}")
    a(f"""
KF_B0:
s_load_dword s{sNON}, s[20:21], 0
s_and_b32 s{sK}, s2, 7
s_lshl_b32 s{sK}, s{sK}, 5
s_lshr_b32 s{t0}, s2, 3
s_or_b32 s{sK}, s{sK}, s{t0}
s_and_b32 s{sW4}, s{sWV}, 3
s_lshl_b32 s{sW4K}, s{sW4}, 10
s_lshl_b32 s{sBUF}, s{sWV}, 13
s_add_u32 s{sBUF}, s{sBUF}, {GBUF}
s_barrier
""")
    def pfp():
        a(f"""
s_lshr_b32 s{t1}, s2, 3
s_mul_i32 s{t1}, s{t1}, 391
v_bfe_u32 v2, v0, 1, 7
v_add_u32 v2, s{t1}, v2
v_and_b32 v3, 1, v0
v_lshlrev_b32 v3, 7, v3
""")
        if PFH: a("s_mov_b32 exec_hi, 0")
        a(f"buffer_load_dword v{QA+15}, v[2:3], {SR4(sP)}, 0 idxen offen offset:3072{SC}\ns_mov_b64 exec, -1")
    a(f"""
s_cmp_ge_u32 s{sWV}, 4
s_cbranch_scc0 KF_SS
v_and_b32 v108, 255, v0
v_lshrrev_b32 v1, 4, v108
v_xor_b32 v37, v1, v0
v_and_b32 v37, 15, v37
v_lshlrev_b32 v37, 4, v37
v_lshl_add_u32 v36, v1, 8, s{sK}
s_min_u32 s{t2}, s2, {NPROD-1}
s_mul_i32 s{t2}, s{t2}, {EP*8}
s_mul_i32 s{t3}, s{sW4}, 3200
s_add_u32 s{sLO}, s{t2}, s{t3}
s_add_u32 s{sLB}, s{t3}, {ERAW}
s_lshl_b32 s{sQ}, s{sW4}, 6
""")
    srd(a,sX,4,N,stride=256); srd(a,sA,12,260*256); srd(a,sE,6,E*8)
    vyc()
    def x1(j): a(f"s_add_u32 m0, s{sW4K}, {AGB+j*4096}\ns_nop 0\nbuffer_load_dwordx4 v[36:37], {SR4(sX)}, 0 idxen offen lds\nv_add_u32 v36, 4096, v36")
    def x3():
        a(f"""
s_cmp_eq_u32 s{sWV}, 4
s_cbranch_scc0 KT_c
v_add_u32 v38, 12288, v36
v_mov_b32 v39, v37
s_mov_b32 m0, {AGB+3*4096}
s_nop 0
buffer_load_dwordx4 v[38:39], {SR4(sX)}, 0 idxen offen lds
KT_c:
""")
    def e1(j):
        a(f"s_mov_b32 m0, s{sLB}")
        a("s_mov_b64 exec, 0xff" if j==3 else "s_nop 0")
        a(f"buffer_load_dwordx4 v113, {SR4(sE)}, s{sLO} offen offset:{1024*j} lds")
        if j==3: a(FULL)
    def w1(m,j): a(f"s_add_u32 m0, s{sBUF}, {-32768*m+j*1024}\ns_add_u32 s{t1}, s{sQ}, {32768*m+j*4096}\nbuffer_load_dwordx4 v{VY}, {SR4(sA)}, s{t1} offen lds")
    def half(kind,m):
        if kind=='x': x3()
        for j in range(4):
            if kind=='e': e1(j)
            elif j<3: x1(j)
            w1(m,2*j); w1(m,2*j+1)
    half('x' if ORD==0 else 'e',0)
    a(f"""
v_mov_b32 v32, 0
v_mov_b32 v33, 0
v_mov_b32 v34, 0
v_mov_b32 v35, 0
v_lshlrev_b32 v110, 4, v108
v_cmp_le_u32 vcc, 32, v108
s_mov_b64 exec, vcc
ds_write_b128 v110, v[32:35]
s_mov_b64 exec, -1
""")
    for j in range(1,4): a(f"ds_write_b128 v110, v[32:35] offset:{j*4096}")
    a(f"""
s_cmp_eq_u32 s{sWV}, 4
s_cbranch_scc0 KT_b
ds_write_b128 v110, v[32:35] offset:16384
KT_b:
""")
    def gc():
        consts()
        a(f"""
v_lshrrev_b32 v2, 3, v{VL}
v_and_b32 v2, 2, v2
v_xor_b32 v2, v2, v3
v_lshl_add_u32 v{TD}, v2, 4, v{DR}
s_lshl_b32 s{t0}, s{sW4}, 2
v_lshrrev_b32 v2, 4, v{VL}
v_or_b32 v1, s{t0}, v2                  ; 4u+g
v_xor_b32 v3, v1, v{WT}
v_lshlrev_b32 v3, 4, v3
v_lshl_add_u32 v116, v{WT}, 8, v3
v_add_u32 v116, {PSC}, v116
v_add_u32 v117, {PSC}, v110
v_lshl_add_u32 v118, v1, 16, v3
""")
    if CP==0: gc()
    a(f"v_and_b32 v1, 31, v{VL}\nv_lshlrev_b32 v1, 1, v1\ns_add_u32 s{t0}, s{sQ}, 65536")
    for k in range(4): a(f"buffer_load_ushort v{124+k}, v1, {SR4(sA)}, s{t0} offen offset:{k*256}")
    half('e' if ORD==0 else 'x',1)
    pt('w1i')
    if ORD==1: a("s_waitcnt vmcnt(17)"); arrive(mW,1)
    if CP==1: gc()
    def w3m():
        w=[124,125,126,127]; u=QA
        for k in range(4): a(f"v_lshlrev_b32 v{w[k]}, 16, v{w[k]}\nv_mul_f32 v{w[k]}, s{sL2E}, v{w[k]}")
        a(f"""
v_cvt_pk_bf16_f32 v{u}, v124, v125
v_cvt_pk_bf16_f32 v{u+1}, v126, v127
v_lshlrev_b32 v{u+2}, 16, v{u}
v_and_b32 v{u+3}, 0xffff0000, v{u}
v_lshlrev_b32 v{u+4}, 16, v{u+1}
v_and_b32 v{u+5}, 0xffff0000, v{u+1}
v_add_f32 v{u+6}, abs(v124), abs(v125)
v_sub_f32 v{u+2}, v124, v{u+2}
v_sub_f32 v{u+3}, v125, v{u+3}
v_sub_f32 v{u+4}, v126, v{u+4}
v_sub_f32 v{u+5}, v127, v{u+5}
v_add_f32 v{u+7}, abs(v126), abs(v127)
s_mov_b32 exec_lo, 0
v_cvt_pk_bf16_f32 v{u}, v{u+2}, v{u+3}
v_cvt_pk_bf16_f32 v{u+1}, v{u+4}, v{u+5}
s_mov_b32 exec_lo, -1
v_add_f32 v{u+6}, v{u+6}, v{u+7}
v_lshlrev_b32 v1, 3, v108
v_and_b32 v{u+6}, 0x7fffffff, v{u+6}
ds_write_b64 v1, {P2(u)} offset:{W3L}
""")
        dpp_scan(a,"v_max_u32",[u+6])
        a(f"""
s_mov_b32 exec_lo, 0
s_brev_b32 exec_hi, 1
ds_max_u32 v{VZ}, v{u+6} offset:{mC3}
s_mov_b64 exec, -1
""")
    if ORD==1: a("s_waitcnt vmcnt(11)"); w3m()
    gsync('bX',"KG_y1",mGX,4,VZ,2,f"s_waitcnt vmcnt({16 if ORD==0 else 4})")
    if GP_: a(f"s_setprio {GP_}")
    xfrags([0])
    pt('xl')
    trfrag(WF,TD,32768,2048,256)
    a("s_waitcnt lgkmcnt(7)")
    trfrag(WF+16,TD,32768+8,2048,256)
    def pm(T,i):
        for s in range(4): a(mfma16(GA+8*T+4*i,WF+16*i+4*s,XF+16*T+4*s,None if s==0 else GA+8*T+4*i))
    def pcv(T):
        c=GA+8*T
        L=[f"v_mul_f32 v{c+j}, s{sL2E}, v{c+j}" for j in range(8)]
        L+=[f"v_cvt_pk_bf16_f32 v{c+j}, v{c+2*j}, v{c+2*j+1}" for j in range(4)]
        L+=[f"ds_write_b128 v116, {P4(c)} offset:{T*4096}"]
        return L
    def pmi(T,fillers):
        for i in range(2):
            for s in range(4):
                a(mfma16(GA+8*T+4*i,WF+16*i+4*s,XF+16*T+4*s,None if s==0 else GA+8*T+4*i))
                for _ in range(2):
                    if fillers: a(fillers.pop(0))
    a("s_waitcnt lgkmcnt(8)"); xfrags([1]); pm(0,0)
    a("s_waitcnt lgkmcnt(4)"); xfrags([2,3]); pm(0,1)
    a("s_waitcnt lgkmcnt(8)"); pm(1,0); pm(1,1)
    a("s_waitcnt lgkmcnt(0)")
    if ORD==0 and ES==0: a("s_waitcnt vmcnt(2)"); arrive(mW,1)
    pmi(2,pcv(0)); pmi(3,pcv(1))
    if ORD==0 and ES==1: a("s_waitcnt vmcnt(2)"); arrive(mW,1)
    a(f"s_lshl_b32 s{t2}, s{sK}, 8\ns_nop 2")
    for T in (2,3):
        for x in pcv(T): a(x)
    gsync('pg',"KG_y2",mGP,4,VZ,2)
    for T in range(4): a(f"ds_read_b128 {P4(PO+4*T)}, v117 offset:{T*4096}")
    a("s_waitcnt vmcnt(0)")
    for T in range(3):
        a(f"s_add_u32 s{t1}, s{t2}, {F_P+T*16*65536}\ns_waitcnt lgkmcnt({3-T})")
        a(f"buffer_store_dwordx4 {P4(PO+4*T)}, v118, {SR4(sR)}, s{t1} offen{SC}")
    a(f"""
s_cmp_eq_u32 s{sWV}, 4
s_cbranch_scc0 KG_p
s_add_u32 s{t1}, s{t2}, {F_P+3*16*65536}
s_waitcnt lgkmcnt(0)
s_mov_b64 exec, 0xffff
buffer_store_dwordx4 {P4(PO+12)}, v118, {SR4(sR)}, s{t1} offen{SC}
s_mov_b64 exec, -1
KG_p:
""")
    pt('pst')
    if GP_: a("s_setprio 0")
    srd(a,sA,14,256*256)
    tagh()
    a(f"v_mov_b32 v1, {hex(ONE2)}\nds_write2_b32 v{VZ}, v1, v1 offset0:{OH//4} offset1:{OH//4+3}")
    if ORD==0: w3m()
    arrive(mW3,1)
    for T in range(4):
        c=GA+8*T
        if T==3: a("s_mov_b32 exec_lo, 0x10001\ns_mov_b32 exec_hi, 0x10001")
        if T==0: a(f"v_pk_maximum3_f16 v114, v{c}, v{c+1}, v{c+2}\nv_pk_minimum3_f16 v115, v{c}, v{c+1}, v{c+2}\nv_pk_maximum3_f16 v114, v114, v{c+3}, v{c+3}\nv_pk_minimum3_f16 v115, v115, v{c+3}, v{c+3}")
        else: a(f"v_pk_maximum3_f16 v114, v114, v{c}, v{c+1}\nv_pk_minimum3_f16 v115, v115, v{c}, v{c+1}\nv_pk_maximum3_f16 v114, v114, v{c+2}, v{c+3}\nv_pk_minimum3_f16 v115, v115, v{c+2}, v{c+3}")
    a("s_mov_b64 exec, -1")
    absmax_fin(a,114,115,2)
    a(f"""
v_cmp_lt_u32 vcc, 0x40e80000, v114
v_mov_b32 v{TD}, v{VY}
s_cmp_lg_u64 vcc, 0
s_cselect_b32 s{sFLAG}, 0x101, 1
""")
    def pflag(n):
        a(f"""
s_lshl_b32 s{t2}, s2, 4
s_add_u32 s{t2}, s{t2}, {F_FLG}
v_mov_b32 v1, s{sFLAG}
s_waitcnt vmcnt({n})
s_mov_b64 exec, 1
ds_add_rtn_u32 v1, v{VZ}, v1 offset:{mPD}
s_waitcnt lgkmcnt(0)
v_readfirstlane_b32 s{t1}, v1
s_add_u32 s{t1}, s{t1}, s{sFLAG}
s_and_b32 s{t0}, s{t1}, 255
s_cmp_eq_u32 s{t0}, 4
s_cbranch_scc0 KG_f
KG_e:
ds_read_b32 v1, v{VZ} offset:{mE}
s_waitcnt lgkmcnt(0)
v_readfirstlane_b32 s{t0}, v1
s_and_b32 s{t3}, s{t0}, 255
s_cmp_lt_u32 s{t3}, 4
s_cbranch_scc1 KG_e
s_or_b32 s{t1}, s{t1}, s{t0}
s_cmp_gt_u32 s{t1}, 255
s_cselect_b32 s{t0}, 2, 0
s_xor_b32 s{t0}, s{sNON}, s{t0}
v_mov_b32 v1, s{t0}
buffer_store_dword v1, v{VZ}, {SR4(sR)}, s{t2} offen{SC}
s_waitcnt vmcnt(1)
s_branch KG_f2
KG_f:
s_waitcnt vmcnt(0)
KG_f2:
s_mov_b64 exec, -1
""")
        pt('pfl')
    def mid():
        sdma(sA,0); pflag(8); arrive(mPI,1)
    qfull("KGq",mid)
    gwait("KG_w3",mW3,4,VZ,1)
    tru(WU1,32768); w3rd()
    a("s_waitcnt lgkmcnt(0)")
    ugemm()
    if FLP==1: gwait("KG_b2",mH,16,VZ,1)
    a(f"""
s_mov_b32 s{sLO}, {F_FLG}
buffer_load_dword v116, v110, {SR4(sR)}, s{sLO} offen{SC}
""")
    if PFP==2: pfp()
    a(f"""
s_mov_b32 s{sWU}, 1
s_or_b32 s{t1}, s{sNON}, 2
s_waitcnt vmcnt({1 if PFP==2 else 0})
KS_m:
v_or_b32 v2, 2, v116
v_cmp_ne_u32 vcc, s{t1}, v2
s_cbranch_vccz KS_n
s_sub_u32 s{sBUD}, s{sBUD}, 1
s_cbranch_scc1 KS_n
s_sleep {FSL}
s_mov_b64 exec, vcc
buffer_load_dword v116, v110, {SR4(sR)}, s{sLO} offen{SC}
s_mov_b64 exec, -1
s_waitcnt vmcnt(0)
s_branch KS_m
KS_n:
v_cmp_ne_u32 vcc, s{sNON}, v116
s_cbranch_vccz KS_o
ds_write_b32 v{VZ}, v{FA} offset:{mSLOW}
KS_o:
""")
    pt('flg')
    if PRIO: a("s_setprio 3")
    bar('b3')
    a(f"ds_read_b32 v1, v{VZ} offset:{mNT}\ns_waitcnt lgkmcnt(0)\nv_readfirstlane_b32 s{sNT}, v1")
    ranges()
    a("s_branch KF_J")
    a("KF_SS:")
    consts()
    a(f"""
v_mov_b32 v111, 8
v_lshlrev_b32 v112, 3, v108
v_lshlrev_b32 v110, 4, v108
""")
    for i in range(7): a(f"v_add_u32 v{W2+1+2*i}, {i*512}, v112")
    a(f"s_cmp_ge_u32 s2, {NPROD}\ns_cbranch_scc1 KS_d\ns_waitcnt vmcnt(7)")
    pt('dst')
    for i in range(7):
        if i==6: a(Q16)
        a(f"v_lshlrev_b32_sdwa v{K+i}, 2, v{D+i} dst_sel:DWORD dst_unused:UNUSED_PAD src0_sel:DWORD src1_sel:BYTE_0\nds_add_rtn_u32 v{R+i}, v{K+i}, v111 offset:{HIST}")
    a(FULL+"\nKS_d:")
    gsync('b1',"KS_y1",mS,4,VZ,2)
    a(f"ds_read_b128 v[116:119], v113 offset:{HIST}")
    tagh()
    for i in range(7): a(f"v_lshrrev_b32 v{D+i}, 8, v{D+i}")
    a(f"""
v_mov_b32 v1, s{sNON}
s_waitcnt lgkmcnt(0)
v_add_u32 v2, v116, v117
v_add3_u32 v2, v2, v118, v119
v_mov_b32 v3, v2
""")
    dpp_scan(a,"v_add_u32",[3])
    a(f"""
v_sub_u32 v120, v3, v2
v_add_u32 v121, v120, v116
v_add_u32 v122, v121, v117
v_add_u32 v123, v122, v118
ds_write_b128 v113, v[120:123] offset:{HIST+1024}
""")
    for i in range(7):
        if i==6: a(Q16)
        a(f"ds_read_b32 v{K+i}, v{K+i} offset:{HIST+1024}")
    a(FULL)
    def tpub():
        for j in range(4): a(f"v_lshlrev_b32 v2, 1, v{120+j}\nv_lshl_or_b32 v{QA+2*j}, v{116+j}, 13, v2\nv_mov_b32 v{QA+2*j+1}, v1")
        a(f"""
s_lshl_b32 s{t2}, s2, 11
s_add_u32 s{t2}, s{t2}, {F_TBL}
s_lshl_b32 s{t3}, s{sWV}, 4
s_lshl_b64 exec, 0xffff, s{t3}
buffer_store_dwordx4 {P4(QA)}, v113, {SR4(sR)}, s{t2} offen{SC}
buffer_store_dwordx4 {P4(QA+4)}, v113, {SR4(sR)}, s{t2} offen offset:1024{SC}
s_mov_b64 exec, -1
""")
    if TE==0: tpub()
    a(f"s_cmp_ge_u32 s2, {NPROD}\ns_cbranch_scc1 KS_e\ns_waitcnt vmcnt({2 if TE==0 else 0})")
    if X&64:
        for i in range(7): a(f"v_and_b32 v{SRc+i}, 0x1ff, v{SRc+i}")
    for i in range(7): a(f"v_lshl_or_b32 v{W2+2*i}, v{D+i}, 19, v{SRc+i}")
    a(f"s_waitcnt lgkmcnt(0)")
    for i in range(7):
        if i==6: a(Q16)
        a(f"v_add_u32 v{K+i}, v{K+i}, v{R+i}\nds_write_b64 v{K+i}, {P2(W2+2*i)} offset:{S1}")
    a(FULL+"\nKS_e:")
    pt('sc1')
    if TE==1: tpub()
    a(f"""
v_lshlrev_b32 v114, 11, v0
s_lshr_b32 s{sLO}, s{sK}, 2
s_lshl_b32 s{sLO}, s{sLO}, 4
s_and_b32 s{t0}, s{sK}, 1
s_lshl_b32 s{t0}, s{t0}, 3
s_add_u32 s{sLO}, s{sLO}, s{t0}
s_and_b32 s{t0}, s{sK}, 2
s_lshl_b32 s{t0}, s{t0}, 9
s_add_u32 s{sLO}, s{sLO}, s{t0}
s_add_u32 s{sLO}, s{sLO}, {F_TBL}
v_cmp_gt_u32 vcc, {NPROD}, v0
v_mov_b32 v{TC}, 0
s_mul_i32 s{t0}, s2, {EP*16}
s_add_u32 s{t0}, s{t0}, {F_REC}
s_add_u32 s{t2}, s{t0}, 4096
v_mul_u32_u24 v115, {EP*16}, v0
v_add_u32 v115, {F_REC}, v115
""")
    gsync('bS',"KS_y2",mS,8,VZ,2)
    tl=f"s_mov_b64 exec, vcc\nbuffer_load_dwordx2 {P2(TC)}, v114, {SR4(sR)}, s{sLO} offen{SC}\ns_mov_b64 exec, -1"
    a(f"""
s_cmp_ge_u32 s2, {NPROD}
s_cbranch_scc0 KS_h0
""")
    gwait("KS_h1",mGP,4,VZ,2)
    a(f"""
{tl}
v_mov_b32 v1, 0
s_branch KS_j
KS_h0:
""")
    order=[6,0,1,2,3,4,5]
    for i in order:
        if i==6: a(Q16)
        a(f"ds_read_b64 {P2(RO+2+4*i)}, v112 offset:{S1+i*512}")
        if i==6: a(FULL)
    gwait("KS_ww",mW,4,VZ,2)
    pt('ew')
    for i in order:
        if i==6: a(Q16)
        a(f"ds_read_b64 {P2(RO+4*i)}, v{RO+3+4*i} offset:{ERAW}")
        if i==6: a(FULL)
    a("s_waitcnt lgkmcnt(0)")
    for k,i in enumerate(order):
        if i==6: a(Q16)
        a(f"v_mov_b32 v{RO+3+4*i}, v1\nbuffer_store_dwordx4 {P4(RO+4*i)}, v110, {SR4(sR)}, s{t0 if i<4 else t2} offen offset:{1024*(i&3)}{SC}")
        if i==6: a(FULL)
    a(tl)
    pt('out')
    a(f"v_pk_maximum3_f16 v1, v{RO}, v{RO+1}, v{RO+1}\nv_pk_minimum3_f16 v2, v{RO}, v{RO+1}, v{RO+1}")
    for i in range(1,7):
        if i==6: a(Q16)
        a(f"v_pk_maximum3_f16 v1, v1, v{RO+4*i}, v{RO+4*i+1}\nv_pk_minimum3_f16 v2, v2, v{RO+4*i}, v{RO+4*i+1}")
    a(FULL)
    absmax_fin(a,1,2,3)
    a("KS_j:")
    gwait("KS_xw",mW3,4,VZ,2)
    a(f"ds_read_b32 v2, v{VZ} offset:{mC3}\ns_mov_b32 s{t1}, 0x41680000")
    xfrags([0,1,2])
    a(f"""
s_waitcnt lgkmcnt(4)
v_mul_f32 v1, v1, v2
v_cmp_nge_f32 {S2(t2)}, s{t1}, v1       ; !(14.5 >= e*c3)
""")
    xfrags([3]); w3rd()
    a(f"""
s_cmp_lg_u64 {S2(t2)}, 0
s_cselect_b32 s{t1}, 0x101, 1
v_mov_b32 v1, s{t1}
s_mov_b64 exec, 1
ds_add_u32 v{VZ}, v1 offset:{mE}
s_waitcnt vmcnt(0)
s_mov_b64 exec, vcc
KT_f:
v_cmp_ne_u32 vcc, s{sNON}, v{TC+1}
s_cbranch_vccz KT_g
s_mov_b64 exec, vcc
s_sub_u32 s{sBUD}, s{sBUD}, 1
s_cbranch_scc1 KT_f2
buffer_load_dwordx2 {P2(TC)}, v114, {SR4(sR)}, s{sLO} offen{SC}
s_waitcnt vmcnt(0)
s_branch KT_f
KT_f2:
s_mov_b32 s{sBUD}, 0
v_mov_b32 v{TC}, 0
KT_g:
s_mov_b64 exec, -1
""")
    pt('tp')
    a(f"""
v_lshrrev_b32 v{TO}, 16, v{TC}
v_add_u32_sdwa v{TD}, v115, v{TC} dst_sel:DWORD dst_unused:UNUSED_PAD src0_sel:DWORD src1_sel:WORD_0
v_mov_b32 v{TC}, v{TO}
""")
    dpp_scan(a,"v_add_u32",[TO])
    a(f"""
v_readlane_b32 s{sTOT}, v{TO}, 63
v_sub_u32 v{TO}, v{TO}, v{TC}
s_mov_b32 s{sLO}, 0
s_movk_i32 s{t3}, 512
v_lshlrev_b32 v1, 4, v{TO}
v_sub_u32 v{TD}, v{TD}, v1
""")
    expand("KT_x")
    a(f"s_mov_b32 s{t1}, s{sTOT}")
    reclist(8)
    arrive(mSL,1)
    pt('exp')
    gwait("KS_rw",mPD,4,VZ,1)
    recload(8,"KT_l")
    pt('rl')
    if PFP==1: pfp()
    gwait("KS_w2",mPI,4,VZ,1)
    tru(WU1,32768)
    a("s_waitcnt lgkmcnt(0)")
    ugemm()
    pt('ud')
    hist(8,"KT_h",1 if PFP==1 else 0,True)
    if PFP==3: pfp()
    pt('hs')
    gwait("KS_b2",mH,16,VZ,1)
    pt('b2')
    scan(False)
    a(f"""
v_cmp_lt_u32 vcc, 0x100, v{QA}
s_add_u32 s{sNT}, s{t0}, 127
s_lshr_b32 s{sNT}, s{sNT}, 7
s_cmp_gt_u32 s{sNT}, {CAPT}
s_cbranch_scc1 KT_j
s_cbranch_vccnz KT_j
""")
    fill("KFz",False,4)
    a(f"v_mov_b32 v1, s{sNT}\nds_write_b32 v{VZ}, v1 offset:{mNT}")
    pt('fil')
    a(f"""
s_cmp_gt_u32 s{sTOT}, 512
s_cbranch_scc0 KT_k
KT_j:
ds_write_b32 v{VZ}, v{FA} offset:{mSLOW}
KT_k:
s_mov_b32 s{sWU}, -1
""")
    ranges()
    srd(a,sA,14,256*256)
    if PRIO: a("s_setprio 3")
    bar('b3')
    a("KF_J:")
    def rd_ga(off): a(f"ds_read_u16 v{GA0}, v{SB} offset:{GL+off}\nds_read_u16 v{GA0+1}, v{SB} offset:{GL+off+8}")
    def rd_gg(off): a(f"ds_read_u16 v{YA}, v{RB} offset:{GL+off}")
    ya=f"v_lshl_add_u32 v{EA}, v{YA}, 1, v{EC}\nv_add_u32 v{YA}, v{YA}, v{M4}"
    ry=f"ds_read_u16 v{VY}, v{YA} offset:{WB+2}"
    def rd_y(): a(ya); a(ry)
    def idx1(i): return f"ds_read_u16 v{IDX+2*i}, v{GA0+(i>>2)} offset:{WB+4*(i&3)}"
    def rd_idx():
        for i in range(8): a(idx1(i))
    def dmai(i): return f"buffer_load_dwordx4 {P2(IDX+2*i)}, {SR4(sP)}, 0 idxen offen offset:{1024*(i&3)}{GSC} lds"
    def dma():
        for i in range(8):
            if i==0: a(f"s_mov_b32 m0, s{sBUF}\ns_nop 0")
            if i==4: a(f"s_add_u32 m0, s{sBUF}, 4096\ns_nop 0")
            a(dmai(i))
    def dma_idx():
        for i in range(4): a(dmai(i))
        a(f"s_add_u32 m0, s{sBUF}, 4096"); a(idx1(0))
        for i in range(4,8): a(dmai(i))
        a(f"s_mov_b32 m0, s{sBUF}")
        for i in range(1,8): a(idx1(i))
    rd_b=f"ds_read_b128 {P4(B3+2)}, v{QAD}\nds_read_b128 {P4(B3+10)}, v{QAD} offset:512"
    rd_a3=f"ds_read_b64 {P2(A6)}, v{EA}\nds_read_b64 {P2(A6+2)}, v{VY} offset:{OH}\nds_read_b64 {P2(A6+4)}, v{EA}"
    def rd_a(t): return f"ds_read_b128 {P4(A+4*t)}, v{AR+t}"
    rd_s=f"ds_read_b64 {P2(SS)}, v{SA2}\nds_read_b64 {P2(SS+2)}, v{SA2+1}"
    def AQ(q): return A6+2*(q&1)
    win=f"v_add3_u32 v{VY}, v{VY}, v{OH2}, s{sW8}\nv_lshl_add_u32 v{QAD}, s{sQ}, 6, v{QC}"
    rd_ga(0); rd_gg(0)
    a(f"""
ds_read_u16 v{WT}, v1 offset:{GL}
ds_read_b32 v{GP}, v{VZ} offset:{mSLOW}
s_waitcnt lgkmcnt(3)
""")
    rd_idx()
    a("s_waitcnt lgkmcnt(0)")
    dma()
    pt('d0')
    a(f"v_readlane_b32 s{sNF}, v{WT}, s{sCNT}\nv_readfirstlane_b32 s{t3}, v{GP}")
    rd_y(); rd_ga(16)
    uscale()
    a(f"""
v_lshlrev_b32 v{OH2}, 1, v{OHC}
v_and_b32 v1, 31, v{VL}
v_lshlrev_b32 v1, 4, v1
v_lshlrev_b32 v2, 5, v{VL}
v_and_b32 v2, 0x400, v2
v_add3_u32 v{QC}, v1, v2, s{sQ2}
s_waitcnt lgkmcnt(0)
""")
    rd_idx()
    a(f"""
s_cmp_lg_u32 s{t3}, 0
s_cbranch_scc1 KF_SLOW
s_lshr_b32 s{sNF}, s{sNF}, 8
v_subrev_u32 v2, s{sNF}, v{VL}
v_and_b32 v2, 15, v2
v_add_u32 v{DR}, s{sNF}, v2
v_lshlrev_b32 v2, 2, v{DR}
ds_read_b32 v{GP}, v2 offset:{BT}
s_and_b32 s{sQ}, s{sNF}, -2
s_lshl_b32 s{sQ}, s{sQ}, 3
s_sub_u32 s{sW8}, 0, s{sQ}
{win}
{rd_b}
{rd_a3}
""")
    rd_gg(16)
    a(f"""
v_lshrrev_b32 v{WT}, 9, v{WT}
v_lshlrev_b32 v{WT}, 4, v{WT}           ; 8*(w&~1)
v_mov_b32 v{SS}, 0
v_mov_b32 v{SS+1}, 0
v_mov_b32 v{SS+2}, 0
v_mov_b32 v{SS+3}, 0
v_add_u32 v{SA}, {STB}, v{SA}
v_mov_b32 v1, {OH+64}
v_cndmask_b32 v{SA2}, v1, v{SA}, {S2(sMA)}
v_cndmask_b32 v{SA2+1}, v{SA}, v1, {S2(sMA)}
v_cndmask_b32 v{SI2}, 0, 16, {S2(sMA)}
v_cndmask_b32 v{SI2+1}, 16, 0, {S2(sMA)}
s_add_u32 s{t1}, s{sT0}, s{sCNT}
s_lshl_b32 s{t1}, s{t1}, 7
s_add_u32 s{t2}, s{sWV}, 48
v_mov_b32 v1, s{t2}
{mfma32(ACC+16,SS,SS,None)}
s_waitcnt lgkmcnt(0)
""")
    rd_y(); rd_ga(32)
    a(f"""
v_cmp_gt_u32 vcc, s{t0}, v{GP}
v_cmp_gt_u32 {S2(t2)}, s{t1}, v{GP}
v_cmp_gt_u32 {S2(t0)}, s{sNN}, v{DR}
v_cndmask_b32 v{DR}, v{DR}, v1, vcc
s_cmp_lg_u64 vcc, 0
s_cselect_b32 s{sHEAD}, 1, 0
s_and_b64 vcc, {S2(t2)}, {S2(t0)}
v_lshrrev_b32 v1, 2, v{VL}
v_cndmask_b32 v{DR}, 63, v{DR}, vcc
v_and_b32 v1, 4, v1
v_xor_b32 v1, v1, v{DR}
v_and_b32 v1, 15, v1
v_lshlrev_b32 v1, 4, v1
v_lshl_add_u32 v{DR}, v{DR}, 8, v1
v_sub_u32 v{DR}, v{DR}, v{OHC}
s_sub_u32 s{sCNT}, s{sCNT}, 1
s_mov_b32 m0, s{sBUF}
""")
    epi_consts()
    pt('pre')
    a("s_waitcnt vmcnt(0)")
    pt('g0')
    for t in range(8): a(rd_a(t))
    a("s_waitcnt lgkmcnt(6)")
    a(mfma32(Z[0],AQ(0),B3,None)); a(mfma32(Z[0],A,ID0,Z[0])); a(mfma32(Z[0],A+4,ID1,Z[0]))
    a("s_nop 8\ns_waitcnt lgkmcnt(0)")
    pt('pro')
    def finals(qprev):
        for u in range(2): a(f"v_pk_mul_f32 {P2(NN+2*u)}, {P2(NN+2*u)}, {P2(DD+2*u)}")
        for u in range(2): a(f"v_cvt_pk_bf16_f32 v{GP+2*(qprev&1)+u}, v{NN+2*u}, v{NN+2*u+1}")
    def ex(zc,r): return f"v_exp_f32 v{EE+r}, v{zc+r}"
    def body(first):
        for q in range(4):
            zc=Z[q&1]; zn=Z[(q+1)&1]; qn=(q+1)&3
            ms=[(AQ(qn),B3+4*qn),(A+8*qn,ID0),(A+8*qn+4,ID1)]
            pend=[0,1,2,3,8,9,10,11,4,5,12,13,6,7,14,15]
            f0=first and q==0
            if q==0: a(f"v_readlane_b32 s{sQ}, v{WT}, s{sCNT}")
            if q==3: a(f"s_waitcnt lgkmcnt(0)")
            a(mfma32(zn,ms[0][0],ms[0][1],None))
            if not f0:
                for j in range(4): a(f"v_rcp_f32 v{DD+j}, v{DD+j}")
            else:
                for r in range(4): a(ex(zc,pend.pop(0)))
            a(mfma32(zn,ms[1][0],ms[1][1],zn))
            for r in range(4): a(ex(zc,pend.pop(0)))
            a(mfma32(zn,ms[2][0],ms[2][1],zn))
            def bx():
                a(f"s_sub_u32 s{sW8}, 0, s{sQ}\ns_waitcnt vmcnt(0) lgkmcnt(0)\n{win}")
                rd_gg(32); rd_ga(48)
                a(rd_b); a(rd_a3); a(rd_s)
                for t in range(8): a(rd_a(t))
            if q==2 and XP==0: a(ex(zc,pend.pop(0))); bx()
            for r in range(4 if not (q==2 and XP==0) else 3): a(ex(zc,pend.pop(0)))
            if q&1:
                p=1 if q==1 else 0
                if not (first and q==1):
                    a(mfma32(ACC+16*p,GP,SS,None if first else ACC+16*p))
                    for r in range(4): a(ex(zc,pend.pop(0)))
            if q==2 and XP==1: bx()
            if f0: dma_idx()
            if q==3:
                a(ya)
                if first: dma_idx(); a(ry)
                else:
                    a(f"s_cmp_gt_u32 s{sCNT}, 1\ns_cbranch_scc0 KF_lt")
                    dma_idx(); a(ry)
                    a("KF_lb:")
            if not f0: finals((q-1)&3)
            seq=[]
            for u in range(2): seq.append(f"v_pk_add_f32 {P2(DD+2*u)}, {P2(EE+8*u)}, 1.0 op_sel_hi:[1,0]")
            for m in range(1,4):
                for u in range(2):
                    src=(zc+8*u) if m==1 else NN+2*u
                    seq.append(f"v_pk_fma_f32 {P2(NN+2*u)}, {P2(src)}, {P2(EE+8*u+2*m)}, {P2(src)}")
                for u in range(2): seq.append(f"v_pk_fma_f32 {P2(NN+2*u)}, {P2(zc+8*u+2*m)}, {P2(DD+2*u)}, {P2(NN+2*u)}")
                for u in range(2): seq.append(f"v_pk_fma_f32 {P2(DD+2*u)}, {P2(DD+2*u)}, {P2(EE+8*u+2*m)}, {P2(DD+2*u)}")
            slots=[0,1,2,3,5,7,9,11] if len(pend)==8 else [1,4,7,10]
            for k,x in enumerate(seq):
                a(x)
                if k in slots: a(ex(zc,pend.pop(0)))
            if q==2: a(f"v_pk_add_f32 {P2(RB)}, {P2(RB)}, {S2(sINC)}\nv_pk_add_f32 {P2(SA2)}, {P2(SA2)}, {P2(SI2)}")
    if PROF and 'dyn' in PTS: stamp(a,8); stamp(a,9,True)
    if PROF and 'clk' in PTS: stamp(a,6,True)
    n0=len(a.l)
    body(True)
    a("s_branch KF_LE\n.p2align 6\nKF_LOOP:")
    body(False)
    def keep(l):
        t=l.strip()
        if X&1 and t.startswith('buffer_load'): return False
        if X&2 and t.startswith('ds_read_b128 v[') and int(t.split('[')[1].split(':')[0])>=28: return False
        if X&8 and t.startswith('v_mfma'): return False
        if X&16 and t.startswith('v_pk_fma'): return False
        if X&32 and t.startswith('v_exp'): return False
        return True
    a.l[n0:]=[l for l in a.l[n0:] if keep(l)]
    import re
    if X&(128|256|512):
        L=[]
        for l in a.l[n0:]:
            m=re.match(r"\s*v_mfma_f32_32x32x16_bf16 v\[(\d+):\d+\], v\[(\d+):\d+\], v\[(\d+):\d+\], (.*)",l)
            if m and int(m.group(1))<ACC:
                d,x,y=int(m.group(1)),int(m.group(2)),int(m.group(3))
                if X&128:
                    if y==ID0: L+=["    "+mfma16(d+4,x,ID0,None),"    "+mfma16(d+8,x,ID1,None)]
                    elif y==ID1: L.append("    "+mfma16(d+12,x,ID0,None))
                    else: L.append("    "+mfma16(d,x,y,None))
                if X&256:
                    if y!=ID1: L.append(l)
                if X&512:
                    if y==ID0: L.append(f"    v_mfma_f32_32x32x64_f8f6f4 v[{d}:{d+15}], v[{x}:{x+7}], v[{ID0}:{ID0+7}], v[{d}:{d+15}]")
                    elif y!=ID1: L.append(l)
            else: L.append(l)
        a.l[n0:]=L
    a("KF_LE:")
    if PRIO: a(f"s_bitcmp1_b32 42, s{sCNT}\ns_cbranch_scc1 KF_pr\nKF_pb:")
    a(f"""
s_sub_u32 s{sCNT}, s{sCNT}, 1
s_cbranch_scc0 KF_LOOP
""")
    def loop_tails():
        a(f"KF_lt:\ns_cmp_eq_u32 s{sCNT}, s{sWU}\ns_cbranch_scc0 KF_lb")
        sdma(sA,32768,0,TD)
        a(f"""
s_branch KF_lb
KF_pr:
""")
        if PROF and 'dyn' in PTS:
            a("s_mov_b32 s90, s92\ns_mov_b32 s91, s93\ns_mov_b32 s92, s94\ns_mov_b32 s93, s95\ns_mov_b32 s94, s96\ns_mov_b32 s95, s97")
            stamp(a,8); stamp(a,9,True)
        a(f"""
s_setprio 2
s_cmp_eq_u32 s{sCNT}, 5
s_cbranch_scc1 KF_pb
s_setprio 1
s_cmp_eq_u32 s{sCNT}, 3
s_cbranch_scc1 KF_pb
s_setprio 0
s_branch KF_pb
""")
    for j in range(4): a(f"v_rcp_f32 v{DD+j}, v{DD+j}")
    a("s_nop 0")
    finals(3)
    a("s_nop 1")
    a(mfma32(ACC+16,GP,SS,ACC+16))
    pt('loop')
    if PROF and 'clk' in PTS: stamp(a,7,True)
    for p in range(2):
        if p==1: a("s_nop 0")
        for j in range(4):
            c=ACC+16*p+4*j
            a(f"v_cvt_pk_bf16_f32 v{c}, v{c}, v{c+1}\nv_cvt_pk_bf16_f32 v{c+1}, v{c+2}, v{c+3}")
            if p or j: a(f"v_xor_b32 v1, {(8*p+j)*16}, v{DR}")
            a(f"ds_write_b64 v{1 if (p or j) else DR}, {P2(c)} offset:{AGB}")
    a(f"""
s_and_b32 s{t1}, s{sNF}, 15
s_lshl_b32 s{t1}, s{t1}, 4
s_lshl_b32 s{t0}, s{sNF}, 8
s_or_b32 s{t0}, s{t0}, s{t1}
s_mul_i32 s{t1}, s{sWV}, 272
s_add_u32 s{t1}, s{t1}, {48*256}
v_lshlrev_b32 v3, 2, v{VL}
v_xor_b32 v1, s{t0}, v3
v_xor_b32 v2, s{t1}, v3
s_cmp_eq_u32 s{sHEAD}, 0
s_waitcnt vmcnt(0) lgkmcnt(0)
s_barrier
s_cbranch_scc1 KF_FIN
ds_read_b32 v4, v1 offset:{AGB}
ds_read_b32 v5, v2 offset:{AGB}
s_waitcnt lgkmcnt(0)
v_lshlrev_b32 v6, 16, v4
v_and_b32 v7, 0xffff0000, v4
v_lshlrev_b32 v8, 16, v5
v_and_b32 v9, 0xffff0000, v5
v_pk_add_f32 v[6:7], v[6:7], v[8:9]
v_cvt_pk_bf16_f32 v6, v6, v7
ds_write_b32 v1, v6 offset:{AGB}
KF_FIN:
""")
    OST=GBUF
    tru(WU2,32768)
    srd(a,sX,16,N*256)
    a(f"""
v_and_b32 v1, 15, v{VL}
s_lshl_b32 s{t0}, s{sOT}, 1
v_lshrrev_b32 v2, 5, v{VL}
v_or_b32 v2, s{t0}, v2
v_xor_b32 v2, v2, v1
v_lshlrev_b32 v2, 4, v2
v_lshl_add_u32 v2, v1, 8, v2
v_lshrrev_b32 v3, 1, v{VL}
v_and_or_b32 v2, v3, 8, v2
v_add_u32 v{AR}, {OST}, v2
v_lshlrev_b32 v{AR+1}, 1, v1
""")
    bar('mrg',"s_waitcnt vmcnt(0) lgkmcnt(0)")
    for T in range(4):
        xfrags([T])
        if T==2:
            a("s_waitcnt lgkmcnt(8)")
            for s in range(4): a(mfma16(UA,WU2+4*s,XF+4*s,UA))
    def silu(T):
        c=UA+4*T; e=EE+4*T
        L=[f"v_exp_f32 v{e+i}, v{c+i}" for i in range(4)]
        L+=[f"v_fma_f32 v{e+i}, v{e+i}, s{sL2E}, s{sL2E}" for i in range(4)]
        L+=[f"v_rcp_f32 v{e+i}, v{e+i}" for i in range(4)]
        L+=[f"v_mul_f32 v{e+i}, v{e+i}, v{c+i}" for i in range(4)]
        L+=[f"v_cvt_pk_bf16_f32 v{e}, v{e}, v{e+1}",f"v_cvt_pk_bf16_f32 v{e+1}, v{e+2}, v{e+3}",f"ds_write_b64 v{AR}, {P2(e)} offset:{T*4096}"]
        return L
    for T in range(1,4):
        a(f"s_waitcnt lgkmcnt({4*(3-T)})")
        for s in range(4):
            x,y=(WU2+4*s,XF+16*T+4*s) if T<3 else (XF+16*T+4*s,WU2+4*s)
            a(mfma16(UA+4*T,x,y,UA+4*T))
    for T in range(3):
        for x in silu(T): a(x)
    c=UA+12; e=EE+12
    a(f"""
v_exp_f32 v{e}, v{c}
s_add_u32 s{t0}, s{sK}, {48*256}
v_fma_f32 v{e}, v{e}, s{sL2E}, s{sL2E}
v_rcp_f32 v{e}, v{e}
s_lshl_b32 s{t0}, s{t0}, 8
v_mul_f32 v{e}, v{e}, v{c}
s_lshl_b32 s{t1}, s{sOT}, 5
s_add_u32 s{t0}, s{t0}, s{t1}
v_cvt_pk_bf16_f32 v{e}, v{e}, v{e}
s_mov_b32 exec_lo, 0xffff
s_mov_b32 exec_hi, 0
buffer_store_short v{e}, v{AR+1}, {SR4(sX)}, s{t0} offen{OSC}
s_mov_b64 exec, -1
v_lshlrev_b32 v1, 4, v0
v_add_u32 v1, {OST}, v1
v_lshrrev_b32 v2, 4, v0
v_xor_b32 v3, v2, v0
v_and_b32 v3, 15, v3
v_lshlrev_b32 v3, 4, v3
v_lshl_add_u32 v3, v2, 16, v3
s_lshl_b32 s{t0}, s{sK}, 8
s_add_u32 s{t1}, s{t0}, {32*65536}
s_waitcnt lgkmcnt(0)
s_barrier
ds_read_b128 {P4(A)}, v1
s_cmp_lt_u32 s{sWV}, 4
s_cbranch_scc0 KF_e1
ds_read_b128 {P4(A+4)}, v1 offset:8192
s_waitcnt lgkmcnt(0)
buffer_store_dwordx4 {P4(A+4)}, v3, {SR4(sX)}, s{t1} offen{OSC}
KF_e1:
s_waitcnt lgkmcnt(0)
buffer_store_dwordx4 {P4(A)}, v3, {SR4(sX)}, s{t0} offen{OSC}
""")
    a(f"""
s_or_b32 s{t0}, s2, s{sWV}
s_cbranch_scc1 KF_e2
v_mov_b32 v1, s{sNON}
v_mov_b32 v2, 0
s_mov_b64 exec, 1
buffer_store_dword v1, v2, {SR4(sR)}, 0 offen
KF_e2:
""")
    if PROF: a("s_waitcnt vmcnt(0)")
    stamp(a,10); stamp(a,11,True)
    stamp_out(a,1,sWV)
    a("KF_END:\ns_endpgm")
    loop_tails()
    hist_retry(8,"KT_h",True)
    a("KF_CEND:")
    SV=ACC; AGs=SV+8; RS_=SV+16
    a(f"""
KF_SLOW:
s_setprio 0
s_cmp_ge_u32 s{sWV}, 4
s_cselect_b32 s{sTOT}, 0, s{sTOT}
v_mov_b32 v1, s{sTOT}
ds_max_u32 v{VZ}, v1 offset:{mMX}
v_mov_b32 v{SS}, 0
v_mov_b32 v{SS+1}, 0
v_mov_b32 v{SS+2}, 0
v_mov_b32 v{SS+3}, 0
s_mov_b32 s{sLO}, 0
s_mov_b32 s{sLB}, s{sBUF}
s_sub_u32 s{t0}, s{sWV}, s{sT0}
s_lshl_b32 s{t0}, s{t0}, 4
v_add_u32 v{SV+4}, s{t0}, v{RB}
v_add_u32 v{SV+5}, s{t0}, v{SB}
s_lshl_b32 s{t0}, s{sWV}, 4
v_sub_u32 v{SV+6}, s{t0}, v{OHC}
v_and_b32 v{SV+7}, 31, v{VL}
v_lshlrev_b32 v{SV+7}, 2, v{SV+7}
v_lshlrev_b32 v1, 4, v0
""")
    for j in range(3): a(f"ds_write_b128 v1, {P4(SS)} offset:{AGG+j*8192}")
    a(f"""
v_lshlrev_b32 v1, 4, v{VL}
ds_write_b128 v1, {P4(SS)} offset:{AGG+3*8192}
s_waitcnt vmcnt(0) lgkmcnt(0)
s_barrier
ds_read_b32 v1, v{VZ} offset:{mMX}
s_waitcnt lgkmcnt(0)
v_readfirstlane_b32 s{sRND}, v1
KF_SR:
s_cmp_lt_u32 s{sLO}, s{sRND}
s_cbranch_scc0 KF_SE
s_barrier
v_lshlrev_b32 v1, 2, v{VL}
v_lshlrev_b32 v2, 8, v{VL}
ds_write_b32 v1, v2
s_waitcnt lgkmcnt(0)
s_barrier
s_cmp_ge_u32 s{sWV}, 4
s_cbranch_scc1 KF_S1
s_movk_i32 s{t3}, 256
""")
    expand("KF_x")
    a(f"s_sub_u32 s{t1}, s{sTOT}, s{sLO}")
    reclist(4)
    recload(4,"KF_rl")
    for i in range(4): a(f"s_mov_b64 {S2(sM+8+2*i)}, {S2(sM+2*i)}")
    hist(4,"KF_h",0,False)
    a("s_waitcnt lgkmcnt(0)")
    for i in range(4):
        a(f"""
v_mov_b32 v{RS_+4*i}, v{RC+4*i}
v_mov_b32 v{RS_+4*i+1}, v{RC+4*i+1}
v_mov_b32 v{RS_+4*i+2}, v{RC+4*i+2}
v_lshlrev_b32 v1, 6, v{RC+4*i+3}
v_sub_u32 v1, v{RK+i}, v1
v_cndmask_b32 v{RS_+4*i+3}, -1, v1, {S2(sM+8+2*i)}
""")
    a(f"""
KF_S1:
s_mov_b32 s{sHEAD}, 0                    ; 256*k
KF_SK:
s_waitcnt lgkmcnt(0)
s_barrier
s_cmp_ge_u32 s{sWV}, 4
s_cbranch_scc1 KF_S2
s_mov_b32 s{t1}, {EB}
""")
    for i in range(4):
        a(f"""
v_subrev_u32 v1, s{sHEAD}, v{RS_+4*i+3}
v_lshrrev_b32 v2, 19, v{RS_+4*i+2}
v_lshl_add_u32 v2, v2, 8, v1
v_lshl_add_u32 v3, v2, 1, s{t1}
v_cmpx_gt_u32 vcc, 0x100, v1
ds_write_b32 v2, v{RS_+4*i+2} offset:{WB}
ds_write_b64 v3, {P2(RS_+4*i)}
s_mov_b64 exec, -1
""")
    a("KF_S2:")
    scan(True)
    a(f"s_cmp_lg_u64 {S2(t2)}, 0\ns_cselect_b32 s{sFLAG}, 1, 0")
    fill("KFs",True,8)
    a(f"""
s_add_u32 s{sNT}, s{t0}, 127
s_lshr_b32 s{sNT}, s{sNT}, 7
s_waitcnt lgkmcnt(0)
s_barrier
v_mov_b32 v{RB}, v{SV+4}
v_mov_b32 v{SB}, v{SV+5}
v_mov_b32 v{SV+12}, v{SV+6}
s_mov_b32 s{sI}, s{sWV}
KF_SL:
s_cmp_lt_u32 s{sI}, s{sNT}
s_cbranch_scc0 KF_SN
""")
    rd_ga(0); rd_gg(0)
    for j in range(4): a(f"ds_read_u16 v{AGs+j}, v{SV+12} offset:{GL+2*j}")
    a("s_waitcnt lgkmcnt(0)")
    rd_y(); rd_idx()
    a("s_waitcnt lgkmcnt(0)")
    dma()
    for j in range(4): a(f"v_lshrrev_b32 v{AGs+j}, 8, v{AGs+j}")
    a(f"""
v_readfirstlane_b32 s{sQ}, v{AGs}
s_nop 3
s_and_b32 s{sQ}, s{sQ}, -2
s_lshl_b32 s{sQ}, s{sQ}, 3
s_sub_u32 s{sW8}, 0, s{sQ}
v_lshlrev_b32 v{OH2}, 1, v{OHC}
{win}
{rd_b}
{rd_a3}
""")
    for j in range(4): a(f"v_lshl_add_u32 v{AGs+j}, v{AGs+j}, 9, v{SV+7}")
    a("s_waitcnt vmcnt(0) lgkmcnt(0)")
    for t in range(8): a(rd_a(t))
    a("s_waitcnt lgkmcnt(0)")
    for q in range(4):
        z=Z[0]
        a(mfma32(z,AQ(q),B3+4*q,None)); a(mfma32(z,A+8*q,ID0,z)); a(mfma32(z,A+8*q+4,ID1,z))
        a("s_nop 15")
        for r in range(16): a(f"v_exp_f32 v{EE+r}, v{z+r}")
        for r in range(16): a(f"v_add_f32 v{EE+r}, 1.0, v{EE+r}")
        for r in range(16): a(f"v_rcp_f32 v{EE+r}, v{EE+r}")
        for m in range(4):
            for u in range(2):
                for par in range(2):
                    r=8*u+2*m+par; g=GP+2*u+par
                    a(f"v_mul_f32 v{g}, v{z+r}, v{EE+r}" if m==0 else f"v_fmac_f32 v{g}, v{z+r}, v{EE+r}")
        for j in range(4): a(f"ds_add_f32 v{AGs+j}, v{GP+j} offset:{AGG+q*128}")
        a("s_waitcnt lgkmcnt(0)")
    a(f"""
v_add_u32 v{SB}, 128, v{SB}
v_add_u32 v{RB}, 128, v{RB}
v_add_u32 v{SV+12}, 128, v{SV+12}
s_add_u32 s{sI}, s{sI}, 8
s_branch KF_SL
KF_SN:
s_add_u32 s{sHEAD}, s{sHEAD}, 256
s_cmp_lg_u32 s{sFLAG}, 0
s_cbranch_scc1 KF_SK
s_add_u32 s{sLO}, s{sLO}, 256
s_branch KF_SR
KF_SE:
s_cmp_ge_u32 s{sWV}, 4
s_cbranch_scc0 KF_SE2
""")
    sdma(sA,32768,0,TD)
    a(f"""
KF_SE2:
v_lshlrev_b32 v1, 4, v0
v_lshrrev_b32 v2, 5, v0
s_waitcnt vmcnt(0) lgkmcnt(0)
s_barrier
""")
    for j in range(4): a(f"ds_read_b128 {P4(A+4*j)}, v1 offset:{AGG+j*8192}")
    a(f"""
v_bfe_u32 v3, v0, 1, 4
v_xor_b32 v3, v3, v2
v_lshlrev_b32 v3, 4, v3
v_lshl_add_u32 v3, v2, 8, v3
v_and_b32 v1, 1, v0
v_lshl_add_u32 v3, v1, 3, v3
s_waitcnt lgkmcnt(0)
s_barrier
""")
    for j in range(4):
        a(f"v_cvt_pk_bf16_f32 v{A+4*j}, v{A+4*j}, v{A+4*j+1}\nv_cvt_pk_bf16_f32 v{A+4*j+1}, v{A+4*j+2}, v{A+4*j+3}")
        a(f"ds_write_b64 v3, {P2(A+4*j)} offset:{AGB+j*4096}")
    a("s_branch KF_FIN")
    hist_retry(4,"KF_h",False)
    return a.text()

if __name__=='__main__':
    import sys
    nm='standalone__mpnn_edge_mlp__graph_kernel'
    hdr=open('standalone__mpnn_edge_mlp__graph.s.ref').read().split('; Override')[0]
    out=hdr+(f"; @launch kernel={nm} grid=(256,1,1) block=(512,1,1) lds={KF_LDS}\n" if os.environ.get('LISTF') else f"; @launch grid=(256,1,1) block=(512,1,1) lds={KF_LDS}\n")
    out+='.amdgcn_target "amdgcn-amd-amdhsa--gfx950"\n.text\n'
    out+=f".globl {nm}\n.p2align 8\n.type {nm},@function\n"+gen_kf(nm)
    out+='.section .rodata,"a"\n.p2align 6\n'+kd(nm,256)
    open(sys.argv[1],'w').write(out)
```

```python
from common import *
X=int(os.environ.get('X','0'))
PRIO=int(os.environ.get('PRIO','1'))
DSP=[int(c,36) for c in os.environ.get('DSP','00000000')]
def EV(n,d): return int(os.environ.get(n,d))
TPOS=EV('TPOS',6); PFP=EV('PFP',0); XORD=EV('XORD',1); WUI=EV('WUI',2); FLP=EV('FLP',1); FSL=EV('FSL',8); TE=EV('TE',1); W1N=EV('W1N',5); GP_=EV('GP',1); PFH=EV('PFH',0); XP=EV('XP',0); PFI=EV('PFI',0); SWW=EV('SWW',1)
PTS=os.environ.get('PTS','b1,bS,tp,pfl,rl,b2,b3,pro').split(',')
SC=' sc1'
OSC=os.environ.get('OSC',' sc1')
GSC=os.environ.get('GSC',' sc1')
NPROD=250; EP=1600
F_P=0x1000; F_REC=0x400000; F_TBL=0xB00000; F_FLG=0xB90000; F_SIZE=0xBA0000
CNT=0; MISC=256; OH=400; GL=928; BT=1872; STB=2144; RS=944
mSLOW=MISC; mS=MISC+4; mGX=MISC+8; mGP=MISC+12; mC3=MISC+16; mPD=MISC+20; mSL=MISC+24; mMX=MISC+28; mPI=MISC+32; mH=MISC+36; mNT=MISC+40; mW=MISC+44; mE=MISC+48
AGB=17408
W3L=AGB+56*256
Q2=AGB+16384; QS=52*128
S1=Q2; ERAW=Q2+12800
WB=Q2+4*QS; NULLG=49*256; EB=WB+NULLG+16
HIST=WB; PSC=WB+2048
GBUF=98304
KF_LDS=GBUF+65536
assert EB+2*NULLG+32<=GBUF and STB+16*RS<=AGB
AGG=STB
ONE2=0x3F803F80
NULLW2=0xFFFF|(512<<16)
CAPT=58
ID0=4; ID1=8; B3=12; A=28; Z=[60,76]; A3=92; EE=96; NN=112; DD=116; GP=120; SS=124
IDX=128; AR=144; RB=152; SB=153; SA=154; VY=155; OHC=156; VL=157; WT=158; DR=159
ACC=160; WU2=192; UA=208; WF=160; WU1=176; QA=224; RC=96; XF=28; GA=192
A6=244; QAD=250; QC=251; SA2=224; SI2=226; OH2=228; GA0=232; YA=234; EA=235; M4=236; EC=237; VZ=238; PO=92; TRU=240; TD=241; TC=242; TO=243; RK=244; FA=252
sP=24; sX=28; sA=32; sR=36; sM=40
sWV=56; sK=57; sNN=58; sI=59; sNT=60; sBUF=61; sQ=62; sW8=63; sCNT=64; sT0=65
sL2E=66; sINC=68; sRND=70; sTOT=71; sNON=72; sBUD=73; sW4=74; sLB=75
sWU=3; sW4K=22; sOT=23; sFLAG=76; sLO=77; sMA=78; sQ2=80; sHEAD=82; sNF=83
t0,t1,t2,t3=84,85,86,87
BUDGET=20000

def mfma32(d,x,y,c): return f"v_mfma_f32_32x32x16_bf16 v[{d}:{d+15}], v[{x}:{x+3}], v[{y}:{y+3}], "+("0" if c is None else f"v[{c}:{c+15}]")
def mfma16(d,x,y,c): return f"v_mfma_f32_16x16x32_bf16 v[{d}:{d+3}], v[{x}:{x+3}], v[{y}:{y+3}], "+("0" if c is None else f"v[{c}:{c+3}]")
def P2(r): return f"v[{r}:{r+1}]"
def P4(r): return f"v[{r}:{r+3}]"
def S2(r): return f"s[{r}:{r+1}]"
def SR4(r): return f"s[{r}:{r+3}]"

def gen_kf(name):
    a=Asm()
    def pt(n):
        if PROF and n in PTS: stamp(a,2+PTS.index(n))
    def bar(n,w="s_waitcnt lgkmcnt(0)"):
        a(w+"\ns_barrier"); pt(n)
    def gsync(n,lab,off,target,va,vt,pre=None):
        if pre: a(pre)
        a(f"""
v_mov_b32 v{vt}, 1
s_mov_b64 exec, 1
ds_add_u32 v{va}, v{vt} offset:{off}
s_mov_b64 exec, -1
{lab}:
ds_read_b32 v{vt}, v{va} offset:{off}
s_waitcnt lgkmcnt(0)
v_readfirstlane_b32 s{t1}, v{vt}
s_and_b32 s{t1}, s{t1}, 255
s_cmp_lt_u32 s{t1}, {target}
s_cbranch_scc1 {lab}
""")
        pt(n)
    def gwait(lab,off,target,va,vt):
        a(f"""
{lab}:
ds_read_b32 v{vt}, v{va} offset:{off}
s_waitcnt lgkmcnt(0)
v_readfirstlane_b32 s{t1}, v{vt}
s_and_b32 s{t1}, s{t1}, 255
s_cmp_lt_u32 s{t1}, {target}
s_cbranch_scc1 {lab}
""")
    def consts():
        srd(a,sP,20,N,off=F_P-3072,stride=256)
        srd(a,sR,20,F_SIZE)
        a(f"""
s_cmp_lt_u32 s{sK}, {N-256*48}
s_cselect_b32 s{sNN}, 49, 48
s_mov_b32 s{sL2E}, {hex(LOG2E_NEG)}
s_mov_b32 s{sL2E+1}, {hex(LOG2E_NEG)}
s_mov_b32 s{sINC}, 16
s_mov_b32 s{sINC+1}, 16
s_mov_b32 s{sMA}, 0x0000ffff
s_mov_b32 s{sMA+1}, 0x0000ffff
s_mov_b32 s{sQ2}, {Q2}
s_mov_b32 s{sBUD}, {BUDGET}
v_lshrrev_b32 v2, 5, v{VL}              ; h
; g = 4 b2 + 2 b4 + b0 ; m = 2 b3 + b1 ; slot = 16 b2 + 4 m + (g&3)
v_lshrrev_b32 v1, 3, v{VL}
v_and_b32 v1, 2, v1
v_and_or_b32 v1, v{VL}, 5, v1           ; g
v_lshlrev_b32 v{RB}, 1, v1
v_lshlrev_b32 v3, 1, v{VL}
v_and_b32 v3, 4, v3
v_and_or_b32 v{M4}, v{VL}, 8, v3        ; 4m
v_lshlrev_b32 v{EC}, 1, v{M4}
v_add_u32 v{EC}, {EB}, v{EC}
v_lshlrev_b32 v3, 2, v1
v_and_or_b32 v3, v3, 16, v{M4}
v_and_or_b32 v3, v1, 3, v3              ; slot
v_lshl_add_u32 v3, v3, 8, s{sBUF}
v_and_b32 v{WT}, 15, v{VL}              ; n / c16
v_xor_b32 v1, v2, v{WT}
v_lshl_add_u32 v{AR}, v1, 4, v3
""")
        for t in range(1,8): a(f"v_xor_b32 v{AR+t}, {32*t}, v{AR}")
        a(f"""
v_mul_i32_i24 v{OHC}, -8, v2
v_mul_u32_u24 v{SA}, {RS}, v{WT}
v_and_b32 v1, 1, v{VL}
v_lshlrev_b32 v1, 4, v1
v_mov_b32 v3, 0x3f80
v_lshlrev_b32 v1, v1, v3
""")
        for s in range(2):
            for j in range(4):
                lo=3<<(16*s+2*j); hi=(3<<(16*s+8+2*j))
                a(f"s_mov_b32 vcc_lo, {hex(lo)}\ns_mov_b32 vcc_hi, {hex(hi)}\nv_cndmask_b32 v{ID0+4*s+j}, 0, v1, vcc")
        a(f"""
v_lshrrev_b32 v2, 4, v{VL}              ; a / g
v_lshlrev_b32 v{SB}, 1, v2
v_and_b32 v1, 1, v2
v_xor_b32 v1, v1, v{WT}
v_lshlrev_b32 v1, 4, v1
""")
        for i in range(8): a(f"v_xor_b32 v{IDX+2*i+1}, {(8*((i>>1)&1)+4*(i>>2)+2*(i&1))*16+3072-1024*(i&3)}, v1")
        a(f"v_xor_b32 v3, v2, v{WT}\nv_lshlrev_b32 v3, 4, v3\nv_lshl_add_u32 v3, v{WT}, 8, v3\nv_add_u32 v{FA}, {AGB}, v3")
        for s in range(1,4): a(f"v_xor_b32 v{FA+s}, {64*s}, v{FA}")
        a(f"""
s_lshl_b32 s{t0}, s{sW4}, 13
s_add_u32 s{t0}, s{t0}, {GBUF}
s_lshr_b32 s{t1}, s{sWV}, 2
s_lshl_b32 s{sOT}, s{sW4}, 1
s_or_b32 s{sOT}, s{sOT}, s{t1}
v_lshrrev_b32 v1, 2, v{WT}
v_lshl_add_u32 v1, v2, 3, v1
v_lshl_add_u32 v{DR}, v1, 6, s{t0}
v_xor_b32 v2, s{t1}, v2
v_and_b32 v2, 1, v2
v_and_b32 v3, 3, v{VL}
v_lshl_add_u32 v{TRU}, v2, 5, v{DR}
v_lshl_add_u32 v{TRU}, v3, 3, v{TRU}
""")
    def tagh():
        a(f"""
s_mul_i32 s{sNON}, s{sNON}, 0x9E3779B1
s_add_u32 s{sNON}, s{sNON}, 0x7F4A7C15
s_lshr_b32 s{t1}, s{sNON}, 15
s_xor_b32 s{sNON}, s{sNON}, s{t1}
""")
    def vyc():
        a(f"""
v_lshrrev_b32 v1, 4, v{VL}
v_and_b32 v1, 2, v1
v_xor_b32 v1, v1, v{VL}
v_and_b32 v1, 3, v1
v_lshlrev_b32 v1, 4, v1
v_lshrrev_b32 v2, 2, v{VL}
v_lshl_or_b32 v{VY}, v2, 8, v1
""")
    def trfrag(dst,addr,off,ks,hs):
        for s in range(4):
            a(f"ds_read_b64_tr_b16 {P2(dst+4*s)}, v{addr} offset:{off+s*ks}\nds_read_b64_tr_b16 {P2(dst+4*s+2)}, v{addr} offset:{off+s*ks+hs}")
    def tru(dst,off): trfrag(dst,TRU,off,2048,256)
    def sdma(sr,moff,loff=0,v=VY,js=range(8)):
        a(f"s_lshl_b32 s{t0}, s{sW4}, 6")
        for j in js:
            a(f"s_add_u32 m0, s{sBUF}, {loff+j*1024}\ns_add_u32 s{t1}, s{t0}, {moff+j*4096}\nbuffer_load_dwordx4 v{v}, {SR4(sr)}, s{t1} offen lds")
    def xfrags(Ts):
        for T in Ts:
            for s in range(4): a(f"ds_read_b128 {P4(XF+16*T+4*s)}, v{FA+s} offset:{T*4096}")
    def ugemm():
        for T in range(4):
            for s in range(4):
                x,y=(WU1+4*s,XF+16*T+4*s) if T<3 else (XF+16*T+4*s,WU1+4*s)
                a(mfma16(UA+4*T,x,y,None if s==0 else UA+4*T))
    def uscale():
        for j in range(7): a(f"v_pk_mul_f32 {P2(UA+2*j)}, {P2(UA+2*j)}, {S2(sL2E)}")
    def w3rd():
        a(f"v_lshlrev_b32 v1, 3, v{VL}")
        for q in range(4): a(f"ds_read_b64 {P2(B3+4*q+2*(q&1))}, v1 offset:{W3L+q*512}")
    F=A3
    def scan(slow):
        a(f"""
v_lshlrev_b32 v1, 2, v{VL}
ds_read_b32 v{F}, v1
v_cmp_gt_u32 vcc, s{sNN}, v{VL}
v_lshlrev_b32 v{F+1}, 8, v{VL}
s_waitcnt lgkmcnt(0)
v_sub_u32 v{QA}, v{F}, v{F+1}
""")
        if slow:
            a(f"""
s_movk_i32 s{t1}, 256
v_subrev_u32 v{QA}, s{sHEAD}, v{QA}
v_cmp_lt_i32 {S2(t2)}, s{t1}, v{QA}
v_med3_i32 v{QA}, v{QA}, 0, s{t1}
v_add_u32 v{F}, v{F+1}, v{QA}
""")
        a(f"""
v_add_u32 v3, 12, v{QA}
v_and_b32 v3, -16, v3
v_max_u32 v3, 80, v3
v_cndmask_b32 v3, 0, v3, vcc
v_mov_b32 v2, v3
""")
        dpp_scan(a,"v_add_u32",[2])
        a(f"""
v_readlane_b32 s{t0}, v2, 63
v_sub_u32 v2, v2, v3
""")
    def fill(lab,slow,nw):
        a(f"""
s_lshl_b32 s{t1}, s{sWV}, 4
v_add_u32 v{QA+1}, s{t1}, v2
v_lshrrev_b32 v{QA+1}, 3, v{QA+1}       ; 2*(G0+w)
v_add_u32 v{F+1}, s{t1}, v{F+1}         ; 256n+16w
v_subrev_u32 v{QA+2}, s{t1}, v3         ; g16-16w
""")
        if not slow: a(f"v_add_u32 v{QA+3}, v{QA+1}, v{SA}\nv_mov_b32 v{F+3}, 0x3f80\nds_write_b32 v1, v2 offset:{BT}")
        for k in range(16//nw):
            a(f"v_cmpx_lt_i32 vcc, {16*nw*k}, v{QA+2}\nds_write_b16 v{QA+1}, v{F+1+(k&1)} offset:{GL+2*nw*k}")
            if k+1<16//nw: a(f"v_add_u32 v{F+1+((k+1)&1)}, {16*nw}, v{F+1+(k&1)}")
            if not slow: a(f"ds_write_b16 v{QA+3}, v{F+3} offset:{STB+2*nw*k}")
        a(f"""
s_mov_b64 exec, -1
s_lshl_b32 s{t1}, s{sWV}, 2
v_sub_u32 v{QA+2}, v3, v{QA}
v_add_u32 v{F}, s{t1}, v{F}
v_subrev_u32 v{QA+2}, s{t1}, v{QA+2}    ; pad4 - 4w
s_mov_b32 s{t1}, {EB}
v_mov_b32 v{QA+4}, 0
v_mov_b32 v{QA+5}, 0
v_mov_b32 v{QA+6}, {hex(NULLW2)}
v_lshl_add_u32 v{QA+7}, v{F}, 1, s{t1}
""")
        for k in range(-(-20//nw)):
            a(f"v_cmpx_lt_i32 vcc, {4*nw*k}, v{QA+2}")
            if k==1: a(f"s_cbranch_vccz {lab}p")
            a(f"ds_write_b32 v{F}, v{QA+6} offset:{WB+4*nw*k}\nds_write_b64 v{QA+7}, {P2(QA+4)} offset:{8*nw*k}")
        a(f"""
{lab}p:
s_mov_b64 exec, -1
s_cmp_eq_u32 s{sWV}, 3
s_cbranch_scc0 {lab}q
s_lshr_b32 s{t1}, s{t0}, 3
v_lshl_add_u32 v{QA+1}, v{VL}, 1, s{t1}
v_mov_b32 v{QA+2}, {NULLG}
v_add_u32 v{QA+3}, {NULLG}, v1
v_lshlrev_b32 v{QA+7}, 1, v1
v_add_u32 v{QA+7}, {EB+2*NULLG}, v{QA+7}
s_mov_b64 exec, 0xff
ds_write_b16 v{QA+1}, v{QA+2} offset:{GL}
s_mov_b64 exec, 15
ds_write_b32 v{QA+3}, v{QA+6} offset:{WB}
ds_write_b64 v{QA+7}, {P2(QA+4)}
s_mov_b64 exec, -1
{lab}q:
""")
    def expand(lab):
        a(f"""
v_subrev_u32 v1, s{sLO}, v{TO}
v_add_u32 v2, v1, v{TC}
v_med3_i32 v1, v1, 0, s{t3}
v_med3_i32 v2, v2, 0, s{t3}
v_sub_u32 v2, v2, v1
v_lshl_add_u32 v1, v1, 2, s{sLB}
{lab}:
""")
        for j in range(16):
            a(f"v_cmpx_lt_i32 vcc, {j}, v2\nds_write_b32 v1, v{TD} offset:{4*j}")
        a(f"""
v_add_u32 v2, -16, v2
v_add_u32 v1, 64, v1
v_cmp_lt_i32 vcc, 0, v2
s_cmp_lg_u64 vcc, 0
s_cbranch_scc1 {lab}
s_mov_b64 exec, -1
""")
    def rl1(i): return f"buffer_load_dwordx4 {P4(RC+4*i)}, v{RK+i}, {SR4(sR)}, {'0' if i<4 else 's'+str(sQ)} offen offset:{1024*(i&3)}{SC}"
    def reclist(ns):
        a(f"v_lshl_add_u32 v1, v{VL}, 2, s{sLB}")
        for i in reversed(range(ns)): a(f"ds_read_b32 v{RK+i}, v1 offset:{256*i}")
        a(f"v_add_u32 v2, s{sLO}, v{VL}\nv_lshlrev_b32 v2, 4, v2\ns_movk_i32 s{sQ}, 4096")
        for i in range(ns):
            a(f"v_cmp_gt_i32 {S2(sM+2*i)}, s{t1}, v{VL}\ns_sub_u32 s{t1}, s{t1}, 64")
        a("s_waitcnt lgkmcnt(0)")
        for i in range(ns): a(f"v_add_u32 v{RK+i}, v{RK+i}, v2")
    def recload(ns,lab):
        for i in reversed(range(ns)):
            a(f"s_mov_b64 exec, {S2(sM+2*i)}\ns_cbranch_execz {lab}{i}\n{rl1(i)}\n{lab}{i}:")
        a("s_mov_b64 exec, -1")
    def hist(ns,lab,extra,scat):
        a(f"v_mov_b32 v1, 4\ns_mov_b32 s{sW8}, {EB}\n{lab}p:")
        def gm(i): return S2(t0+2*(i&1))
        def sc(i,n):
            a(f"""
s_mov_b64 exec, {gm(i)}
s_waitcnt lgkmcnt({n})
v_min_u32 v{RK+i}, {NULLG-4}, v{RK+i}
v_lshl_add_u32 v{RC+4*i+3}, v{RK+i}, 1, s{sW8}
ds_write_b32 v{RK+i}, v{RC+4*i+2} offset:{WB}
ds_write_b64 v{RC+4*i+3}, {P2(RC+4*i)}
""")
        for i in reversed(range(ns)):
            a(f"""
s_mov_b64 exec, {S2(sM+2*i)}
s_waitcnt vmcnt({i+extra})
v_cmpx_eq_u32 {gm(i)}, s{sNON}, v{RC+4*i+3}
v_lshrrev_b32 v{RC+4*i+3}, 17, v{RC+4*i+2}
ds_add_rtn_u32 v{RK+i}, v{RC+4*i+3}, v1
s_andn2_b64 {S2(sM+2*i)}, {S2(sM+2*i)}, {gm(i)}
""")
            a(f"s_mov_b64 vcc, {S2(sM+2*i)}" if i==ns-1 else f"s_or_b64 vcc, vcc, {S2(sM+2*i)}")
            if scat and i==0: a(f"s_cselect_b64 exec, 0, 1\nds_add_u32 v{VZ}, v1 offset:{mH}")
            if scat and i<ns-1: sc(i+1,(1 if i==ns-2 else 3)+(1 if i==0 else 0))
        if scat: sc(0,3)
        a(f"s_cbranch_vccnz {lab}r\n{lab}d:\ns_mov_b64 exec, -1")
    def hist_retry(ns,lab,scat):
        a(f"{lab}r:\ns_sub_u32 s{sBUD}, s{sBUD}, 1\ns_cbranch_scc1 {lab}x")
        recload(ns,lab+"l")
        a(f"s_waitcnt vmcnt(0)\ns_branch {lab}p\n{lab}x:\ns_mov_b32 s{sBUD}, 0")
        if scat: a(f"s_mov_b64 exec, 1\nds_add_u32 v{VZ}, v1 offset:{mH}")
        a(f"s_branch {lab}d")
    def qfull(lab,mid):
        H=QA+4; MX=QA+1
        a(f"v_xor_b32 v{TC}, 32, v{TRU}")
        trfrag(WF,TC,0,2048,256)
        a(f"""
s_lshr_b32 s{t0}, s{sW4}, 1
s_lshl_b32 s{t0}, s{t0}, 9
s_and_b32 s{t1}, s{sW4}, 1
s_lshl_b32 s{t1}, s{t1}, 3
s_add_u32 s{t0}, s{t0}, s{t1}
s_add_u32 s{t0}, s{t0}, {Q2}
v_lshl_add_u32 v120, v{SB}, 10, s{t0}
v_lshl_add_u32 v120, v{WT}, 4, v120
v_add_u32 v121, 256, v120
s_waitcnt lgkmcnt(0)
""")
        tru(WF+16,0)
        def cv(i,T,pk):
            c=GA+16*i+4*T
            L=[]
            if pk: L+=[f"v_pk_mul_f32 {P2(c)}, {P2(c)}, {S2(sL2E)}",f"v_pk_mul_f32 {P2(c+2)}, {P2(c+2)}, {S2(sL2E)}"]
            else: L+=[f"v_mul_f32 v{c+k}, s{sL2E}, v{c+k}" for k in range(4)]
            L+=[f"v_and_b32 v{H+k}, 0xffff0000, v{c+k}" for k in range(4)]
            L+=[f"v_maximum3_f32 v{MX}, {'0' if T==0 and i==0 else 'v'+str(MX)}, abs(v{c}), abs(v{c+1})",f"v_maximum3_f32 v{MX}, v{MX}, abs(v{c+2}), abs(v{c+3})"]
            if pk: L+=[f"v_pk_add_f32 {P2(c)}, {P2(c)}, {P2(H)} neg_lo:[0,1] neg_hi:[0,1]",f"v_pk_add_f32 {P2(c+2)}, {P2(c+2)}, {P2(H+2)} neg_lo:[0,1] neg_hi:[0,1]"]
            else: L+=[f"v_sub_f32 v{c+k}, v{c+k}, v{H+k}" for k in range(4)]
            L+=[f"v_cvt_pk_bf16_f32 v{c+k}, v{c+k}, v{H+k}" for k in range(4)]
            return L
        for T in range(4):
            for s in range(4): a(mfma16(GA+4*T,XF+16*T+4*s,WF+4*s,None if s==0 else GA+4*T))
        a("s_waitcnt lgkmcnt(0)")
        fl=cv(0,0,0)+cv(0,1,0)
        for T in range(4):
            for s in range(4):
                a(mfma16(GA+16+4*T,XF+16*T+4*s,WF+16+4*s,None if s==0 else GA+16+4*T))
                for _ in range(2): a(fl.pop(0))
        if PFI==0: mid()
        for x in fl+cv(0,2,1)+cv(1,0,1)+cv(1,1,1)+cv(1,2,1): a(x)
        if PFI==1: mid()
        gwait(lab+"w",mSL,4,VZ,1)
        for i in range(2):
            for T in range(3):
                c=GA+16*i+4*T
                a(f"ds_write2st64_b64 v{120+i}, {P2(c)}, {P2(c+2)} offset0:{16*T} offset1:{16*T+2}")
        a("s_mov_b64 exec, 0xffff")
        for i in range(2):
            c=GA+16*i+12
            a(f"""
v_mul_f32 v{c}, s{sL2E}, v{c}
v_and_b32 v{H}, 0xffff0000, v{c}
v_maximum3_f32 v{MX}, v{MX}, abs(v{c}), abs(v{c})
v_sub_f32 v{c}, v{c}, v{H}
v_cvt_pk_bf16_f32 v{c}, v{c}, v{H}
ds_write2st64_b64 v{120+i}, {P2(c)}, {P2(c+2)} offset0:48 offset1:50
""")
        a(f"""
s_mov_b64 exec, -1
v_cmp_nge_f32 vcc, 0x40e80000, v{MX}
s_cbranch_vccz {lab}q
ds_write_b32 v{VZ}, v{FA} offset:{mSLOW}
{lab}q:
""")
        pt('qd')
    def ranges():
        a(f"""
s_lshr_b32 s{sCNT}, s{sNT}, 3
s_mul_i32 s{sT0}, s{sCNT}, s{sWV}
s_and_b32 s{t2}, s{sNT}, 7
s_min_u32 s{t3}, s{t2}, s{sWV}
s_add_u32 s{sT0}, s{sT0}, s{t3}
s_cmp_lt_u32 s{sWV}, s{t2}
s_addc_u32 s{sCNT}, s{sCNT}, 0
s_lshl_b32 s{t0}, s{sT0}, 7
s_lshl_b32 s{t2}, s{sT0}, 4
v_add_u32 v{SB}, s{t2}, v{SB}
v_add_u32 v{RB}, s{t2}, v{RB}
v_sub_u32 v{SA}, v{SA}, v{OHC}
v_add_u32 v{SA}, s{t2}, v{SA}
s_add_u32 s{t3}, s{sT0}, s{sCNT}
v_min_u32 v1, 8, v{VL}
v_sub_u32 v1, s{t3}, v1
v_lshlrev_b32 v1, 4, v1
v_max_i32 v1, 0, v1
""")
    def epi_consts(): pass
    def arrive(off,vt): a(f"v_mov_b32 v{vt}, 1\ns_mov_b64 exec, 1\nds_add_u32 v{VZ}, v{vt} offset:{off}\ns_mov_b64 exec, -1")

    D=28; SRc=36; K=44; R=52; W2=60; RO=80
    sD=40; sS=44; sE=48
    Q16="s_mov_b64 exec, 0xffff"; FULL="s_mov_b64 exec, -1"
    a(f"""
{name}:
s_getpc_b64 {S2(t2)}
s_cmp_ge_u32 s2, 256
s_cbranch_scc1 KF_END
s_load_dwordx16 s[4:19], s[0:1], 0
s_load_dwordx2 s[20:21], s[0:1], 64
v_lshrrev_b32 v1, 6, v0
s_and_b32 s{t0}, s2, 0xf8
v_add_lshl_u32 v2, v1, s{t0}, 7
v_readfirstlane_b32 s{sWV}, v1
v_min_u32 v2, KF_CEND-{name}-8, v2
s_mov_b64 exec, 1
global_load_dword v{QA+15}, v2, {S2(t2)}
s_mov_b64 exec, -1
v_and_b32 v{VL}, 63, v0
v_mov_b32 v{VZ}, 0
v_lshlrev_b32 v113, 4, v{VL}
s_cmp_ge_u32 s{sWV}, 4
s_cbranch_scc0 KF_S
v_lshlrev_b32 v2, 2, v0
v_lshlrev_b32 v3, 8, v{VL}
ds_write_b32 v2, v{VZ} offset:{HIST-1024}
v_lshlrev_b32 v2, 2, v{VL}
ds_write2st64_b32 v2, v3, v{VZ} offset0:0 offset1:1
s_waitcnt lgkmcnt(0)
""")
    stamp(a,0,True); stamp(a,1); pt('st')
    a(f"""
s_lshr_b32 s{t0}, s{t0}, 1
s_add_u32 s{t0}, s{t0}, s{sWV}
s_sub_u32 s{t0}, s{t0}, 4
s_lshl_b32 s{t0}, s{t0}, 9
v_lshl_add_u32 v2, v{VL}, 7, s{t0}
s_mov_b64 exec, 15
global_load_dword v{QA+15}, v2, s[12:13]
global_load_dword v{QA+15}, v2, s[14:15]
s_mov_b64 exec, -1
s_branch KF_B0
KF_S:
s_min_u32 s{t2}, s2, {NPROD-1}
s_mul_i32 s{t2}, s{t2}, {EP*4}
s_mul_i32 s{t3}, s{sWV}, 400
v_add_u32 v108, s{t3}, v{VL}
v_lshlrev_b32 v109, 2, v108
s_mov_b32 s{sD+2}, {E*4}
s_mov_b32 s{sD+3}, 0x00020000
s_waitcnt lgkmcnt(0)
""")
    stamp(a,0,True); stamp(a,1); pt('st')
    a(f"s_mov_b32 s{sD}, s10\ns_and_b32 s{sD+1}, s11, 0xffff")
    def ld7(dst,sr):
        for i in range(7):
            if i==6: a(Q16)
            a(f"buffer_load_dword v{dst+i}, v109, {SR4(sr)}, s{t2} offen offset:{i*256}")
        a(FULL)
    ld7(D,sD)
    srd(a,sS,8,E*4); srd(a,sE,6,E*8)
    ld7(SRc,sS)
    a(f"""
s_lshl_b32 s{sLB}, s{t3}, 3
s_lshl_b32 s{t2}, s{t2}, 1
s_add_u32 s{t2}, s{t2}, s{sLB}
s_add_u32 m0, s{sLB}, {ERAW}
s_add_u32 s{sLB}, s{sLB}, {S1}
""")
    for j in range(4):
        if j==3: a("s_mov_b64 exec, 0xff")
        a(f"buffer_load_dwordx4 v113, {SR4(sE)}, s{t2} offen offset:{1024*j} lds")
    a(FULL)
    a(f"""
KF_B0:
s_load_dword s{sNON}, s[20:21], 0
s_and_b32 s{sK}, s2, 7
s_lshl_b32 s{sK}, s{sK}, 5
s_lshr_b32 s{t0}, s2, 3
s_or_b32 s{sK}, s{sK}, s{t0}
s_and_b32 s{sW4}, s{sWV}, 3
s_lshl_b32 s{sW4K}, s{sW4}, 10
s_lshl_b32 s{sBUF}, s{sWV}, 13
s_add_u32 s{sBUF}, s{sBUF}, {GBUF}
s_barrier
""")
    consts()
    a(f"""
s_cmp_ge_u32 s{sWV}, 4
s_cbranch_scc1 KF_T
v_mov_b32 v111, 8
v_lshlrev_b32 v112, 3, v108
v_lshlrev_b32 v110, 4, v108
""")
    for i in range(7): a(f"v_add_u32 v{W2+1+2*i}, {i*512}, v112")
    a(f"s_cmp_ge_u32 s2, {NPROD}\ns_cbranch_scc1 KS_d\ns_waitcnt vmcnt(11)")
    pt('dst')
    for i in range(7):
        if i==6: a(Q16)
        a(f"v_lshlrev_b32_sdwa v{K+i}, 2, v{D+i} dst_sel:DWORD dst_unused:UNUSED_PAD src0_sel:DWORD src1_sel:BYTE_0\nds_add_rtn_u32 v{R+i}, v{K+i}, v111 offset:{HIST}")
    a(FULL+"\nKS_d:")
    gsync('b1',"KS_y1",mS,4,VZ,2)
    a(f"ds_read_b128 v[116:119], v113 offset:{HIST}")
    tagh()
    for i in range(7): a(f"v_lshrrev_b32 v{D+i}, 8, v{D+i}")
    a(f"""
v_mov_b32 v1, s{sNON}
s_waitcnt lgkmcnt(0)
v_add_u32 v2, v116, v117
v_add3_u32 v2, v2, v118, v119
v_mov_b32 v3, v2
""")
    dpp_scan(a,"v_add_u32",[3])
    a(f"""
v_sub_u32 v120, v3, v2
v_add_u32 v121, v120, v116
v_add_u32 v122, v121, v117
v_add_u32 v123, v122, v118
ds_write_b128 v113, v[120:123] offset:{HIST+1024}
""")
    for i in range(7):
        if i==6: a(Q16)
        a(f"ds_read_b32 v{K+i}, v{K+i} offset:{HIST+1024}")
    a(FULL)
    def tpub():
        for j in range(4): a(f"v_lshlrev_b32 v2, 1, v{120+j}\nv_lshl_or_b32 v{QA+2*j}, v{116+j}, 13, v2\nv_mov_b32 v{QA+2*j+1}, v1")
        a(f"""
s_lshl_b32 s{t2}, s2, 11
s_add_u32 s{t2}, s{t2}, {F_TBL}
s_lshl_b32 s{t3}, s{sWV}, 4
s_lshl_b64 exec, 0xffff, s{t3}
buffer_store_dwordx4 {P4(QA)}, v113, {SR4(sR)}, s{t2} offen{SC}
buffer_store_dwordx4 {P4(QA+4)}, v113, {SR4(sR)}, s{t2} offen offset:1024{SC}
s_mov_b64 exec, -1
""")
    if TE==0: tpub()
    a(f"s_cmp_ge_u32 s2, {NPROD}\ns_cbranch_scc1 KS_e\ns_waitcnt vmcnt({6 if TE==0 else 4})")
    if X&64:
        for i in range(7): a(f"v_and_b32 v{SRc+i}, 0x1ff, v{SRc+i}")
    for i in range(7): a(f"v_lshl_or_b32 v{W2+2*i}, v{D+i}, 19, v{SRc+i}")
    a(f"s_waitcnt lgkmcnt(0)")
    for i in range(7):
        if i==6: a(Q16)
        a(f"v_add_u32 v{K+i}, v{K+i}, v{R+i}\nds_write_b64 v{K+i}, {P2(W2+2*i)} offset:{S1}")
    a(FULL+"\nKS_e:")
    pt('sc1')
    if TE==1: tpub()
    a(f"""
v_lshlrev_b32 v114, 11, v0
s_lshr_b32 s{sLO}, s{sK}, 2
s_lshl_b32 s{sLO}, s{sLO}, 4
s_and_b32 s{t0}, s{sK}, 1
s_lshl_b32 s{t0}, s{t0}, 3
s_add_u32 s{sLO}, s{sLO}, s{t0}
s_and_b32 s{t0}, s{sK}, 2
s_lshl_b32 s{t0}, s{t0}, 9
s_add_u32 s{sLO}, s{sLO}, s{t0}
s_add_u32 s{sLO}, s{sLO}, {F_TBL}
v_cmp_gt_u32 vcc, {NPROD}, v0
v_mov_b32 v{TC}, 0
s_mul_i32 s{t0}, s2, {EP*16}
s_add_u32 s{t0}, s{t0}, {F_REC}
s_add_u32 s{t2}, s{t0}, 4096
v_mul_u32_u24 v115, {EP*16}, v0
v_add_u32 v115, {F_REC}, v115
""")
    gsync('bS',"KS_y2",mS,8,VZ,2,"s_waitcnt vmcnt(2)")
    tl=f"s_mov_b64 exec, vcc\nbuffer_load_dwordx2 {P2(TC)}, v114, {SR4(sR)}, s{sLO} offen{SC}\ns_mov_b64 exec, -1"
    a(f"""
s_cmp_ge_u32 s2, {NPROD}
s_cbranch_scc0 KS_h0
""")
    gwait("KS_h1",mGP,4,VZ,2)
    a(f"""
{tl}
v_mov_b32 v1, 0
s_branch KS_j
KS_h0:
""")
    order=[6,0,1,2,3,4,5]
    for i in order:
        if i==6: a(Q16)
        a(f"ds_read_b64 {P2(RO+2+4*i)}, v112 offset:{S1+i*512}")
        if i==6: a(FULL)
    for i in order:
        if i==6: a(Q16)
        a(f"s_waitcnt lgkmcnt(6)\nds_read_b64 {P2(RO+4*i)}, v{RO+3+4*i} offset:{ERAW}")
        if i==6: a(FULL)
    gwait("KS_ww",mW,4,VZ,2)
    for k,i in enumerate(order):
        if i==6: a(Q16)
        a(f"v_mov_b32 v{RO+3+4*i}, v1\nbuffer_store_dwordx4 {P4(RO+4*i)}, v110, {SR4(sR)}, s{t0 if i<4 else t2} offen offset:{1024*(i&3)}{SC}")
        if i==6: a(FULL)
    a(tl)
    pt('out')
    a(f"v_pk_maximum3_f16 v1, v{RO}, v{RO+1}, v{RO+1}\nv_pk_minimum3_f16 v2, v{RO}, v{RO+1}, v{RO+1}")
    for i in range(1,7):
        if i==6: a(Q16)
        a(f"v_pk_maximum3_f16 v1, v1, v{RO+4*i}, v{RO+4*i+1}\nv_pk_minimum3_f16 v2, v2, v{RO+4*i}, v{RO+4*i+1}")
    a(FULL)
    absmax_fin(a,1,2,3)
    a("KS_j:")
    gwait("KS_xw",mGX,4,VZ,2)
    a(f"ds_read_b32 v2, v{VZ} offset:{mC3}\ns_mov_b32 s{t1}, 0x41680000")
    xfrags([0,1,2])
    a(f"""
s_waitcnt lgkmcnt(4)
v_mul_f32 v1, v1, v2
v_cmp_nge_f32 {S2(t2)}, s{t1}, v1       ; !(14.5 >= e*c3)
""")
    xfrags([3]); w3rd()
    a(f"""
s_cmp_lg_u64 {S2(t2)}, 0
s_cselect_b32 s{t1}, 0x101, 1
v_mov_b32 v1, s{t1}
s_mov_b64 exec, 1
ds_add_u32 v{VZ}, v1 offset:{mE}
s_waitcnt vmcnt(0)
s_mov_b64 exec, vcc
KT_f:
v_cmp_ne_u32 vcc, s{sNON}, v{TC+1}
s_cbranch_vccz KT_g
s_mov_b64 exec, vcc
s_sub_u32 s{sBUD}, s{sBUD}, 1
s_cbranch_scc1 KT_f2
buffer_load_dwordx2 {P2(TC)}, v114, {SR4(sR)}, s{sLO} offen{SC}
s_waitcnt vmcnt(0)
s_branch KT_f
KT_f2:
s_mov_b32 s{sBUD}, 0
v_mov_b32 v{TC}, 0
KT_g:
s_mov_b64 exec, -1
""")
    pt('tp')
    a(f"""
v_lshrrev_b32 v{TO}, 16, v{TC}
v_add_u32_sdwa v{TD}, v115, v{TC} dst_sel:DWORD dst_unused:UNUSED_PAD src0_sel:DWORD src1_sel:WORD_0
v_mov_b32 v{TC}, v{TO}
""")
    dpp_scan(a,"v_add_u32",[TO])
    a(f"""
v_readlane_b32 s{sTOT}, v{TO}, 63
v_sub_u32 v{TO}, v{TO}, v{TC}
s_mov_b32 s{sLO}, 0
s_movk_i32 s{t3}, 512
v_lshlrev_b32 v1, 4, v{TO}
v_sub_u32 v{TD}, v{TD}, v1
""")
    expand("KT_x")
    a(f"s_mov_b32 s{t1}, s{sTOT}")
    reclist(8)
    arrive(mSL,1)
    pt('exp')
    gwait("KS_rw",mPD,4,VZ,1)
    recload(8,"KT_l")
    pt('rl')
    def pfp():
        a(f"""
s_lshr_b32 s{t1}, s2, 3
s_mul_i32 s{t1}, s{t1}, 391
v_bfe_u32 v2, v0, 1, 7
v_add_u32 v2, s{t1}, v2
v_and_b32 v3, 1, v0
v_lshlrev_b32 v3, 7, v3
""")
        if PFH: a("s_mov_b32 exec_hi, 0")
        a(f"buffer_load_dword v{QA+15}, v[2:3], {SR4(sP)}, 0 idxen offen offset:3072{SC}\ns_mov_b64 exec, -1")
    if PFP==1: pfp()
    gwait("KS_w2",mPI,4,VZ,1)
    tru(WU1,32768)
    a("s_waitcnt lgkmcnt(0)")
    ugemm()
    pt('ud')
    hist(8,"KT_h",1 if PFP==1 else 0,True)
    if PFP==3: pfp()
    pt('hs')
    gwait("KS_b2",mH,16,VZ,1)
    pt('b2')
    scan(False)
    a(f"""
v_cmp_lt_u32 vcc, 0x100, v{QA}
s_add_u32 s{sNT}, s{t0}, 127
s_lshr_b32 s{sNT}, s{sNT}, 7
s_cmp_gt_u32 s{sNT}, {CAPT}
s_cbranch_scc1 KT_j
s_cbranch_vccnz KT_j
""")
    fill("KFz",False,4)
    a(f"v_mov_b32 v1, s{sNT}\nds_write_b32 v{VZ}, v1 offset:{mNT}")
    pt('fil')
    a(f"""
s_cmp_gt_u32 s{sTOT}, 512
s_cbranch_scc0 KT_k
KT_j:
ds_write_b32 v{VZ}, v{FA} offset:{mSLOW}
KT_k:
s_mov_b32 s{sWU}, -1
""")
    ranges()
    srd(a,sA,14,256*256)
    if PRIO: a("s_setprio 3")
    bar('b3')
    a("s_branch KF_J")
    a(f"""
KF_T:
v_lshrrev_b32 v2, 3, v{VL}
v_and_b32 v2, 2, v2
v_xor_b32 v2, v2, v3
v_lshl_add_u32 v{TD}, v2, 4, v{DR}
v_and_b32 v108, 255, v0
v_mov_b32 v32, 0
v_mov_b32 v33, 0
v_mov_b32 v34, 0
v_mov_b32 v35, 0
v_lshlrev_b32 v110, 4, v108
v_lshrrev_b32 v1, 4, v108
v_xor_b32 v37, v1, v0
v_and_b32 v37, 15, v37
v_lshlrev_b32 v37, 4, v37
v_lshl_add_u32 v36, v1, 8, s{sK}
""")
    sG=40
    srd(a,sX,4,N,stride=256)
    def xld():
        for j in range(4):
            if j==3: a(f"s_cmp_eq_u32 s{sWV}, 4\ns_cbranch_scc0 KT_c")
            a(f"s_add_u32 m0, s{sW4K}, {AGB+j*4096}\ns_nop 0\nbuffer_load_dwordx4 v[36:37], {SR4(sX)}, 0 idxen offen lds\nv_add_u32 v36, 4096, v36")
        a("KT_c:")
    def warm():
        a(f"""
v_and_b32 v1, 31, v{VL}
v_lshlrev_b32 v1, 1, v1
s_lshl_b32 s{t0}, s{sW4}, 6
s_add_u32 s{t0}, s{t0}, 65536
""")
        for k in range(4): a(f"buffer_load_ushort v{124+k}, v1, {SR4(sA)}, s{t0} offen offset:{k*256}")
    def zer():
        a(f"v_cmp_le_u32 vcc, 32, v108\ns_mov_b64 exec, vcc\nds_write_b128 v110, v[32:35]\ns_mov_b64 exec, -1")
        for j in range(1,4): a(f"ds_write_b128 v110, v[32:35] offset:{j*4096}")
        a(f"""
s_cmp_eq_u32 s{sWV}, 4
s_cbranch_scc0 KT_b
ds_write_b128 v110, v[32:35] offset:16384
KT_b:
""")
    srd(a,sA,12,260*256); warm(); vyc()
    if XORD==1: xld()
    zer()
    a(f"""
s_lshl_b32 s{t0}, s{sW4}, 2
v_lshrrev_b32 v2, 4, v{VL}
v_or_b32 v1, s{t0}, v2                  ; 4u+g
v_xor_b32 v3, v1, v{WT}
v_lshlrev_b32 v3, 4, v3
v_lshl_add_u32 v116, v{WT}, 8, v3
v_add_u32 v116, {PSC}, v116
v_add_u32 v117, {PSC}, v110
v_lshl_add_u32 v118, v1, 16, v3
""")
    if XORD==2:
        gwait("KG_x",mS,4,VZ,1); xld()
    sdma(sA,0)
    sdma(sA,32768,-32768)
    arrive(mW,1)
    pt('w1i')
    def w3m():
        w=[124,125,126,127]; u=QA
        for k in range(4): a(f"v_lshlrev_b32 v{w[k]}, 16, v{w[k]}\nv_mul_f32 v{w[k]}, s{sL2E}, v{w[k]}")
        a(f"""
v_cvt_pk_bf16_f32 v{u}, v124, v125
v_cvt_pk_bf16_f32 v{u+1}, v126, v127
v_lshlrev_b32 v{u+2}, 16, v{u}
v_and_b32 v{u+3}, 0xffff0000, v{u}
v_lshlrev_b32 v{u+4}, 16, v{u+1}
v_and_b32 v{u+5}, 0xffff0000, v{u+1}
v_add_f32 v{u+6}, abs(v124), abs(v125)
v_sub_f32 v{u+2}, v124, v{u+2}
v_sub_f32 v{u+3}, v125, v{u+3}
v_sub_f32 v{u+4}, v126, v{u+4}
v_sub_f32 v{u+5}, v127, v{u+5}
v_add_f32 v{u+7}, abs(v126), abs(v127)
s_mov_b32 exec_lo, 0
v_cvt_pk_bf16_f32 v{u}, v{u+2}, v{u+3}
v_cvt_pk_bf16_f32 v{u+1}, v{u+4}, v{u+5}
s_mov_b32 exec_lo, -1
v_add_f32 v{u+6}, v{u+6}, v{u+7}
v_lshlrev_b32 v1, 3, v108
v_and_b32 v{u+6}, 0x7fffffff, v{u+6}
ds_write_b64 v1, {P2(u)} offset:{W3L}
""")
        dpp_scan(a,"v_max_u32",[u+6])
        a(f"""
s_mov_b32 exec_lo, 0
s_brev_b32 exec_hi, 1
ds_max_u32 v{VZ}, v{u+6} offset:{mC3}
s_mov_b64 exec, -1
""")
    e2=8
    a(f"s_waitcnt vmcnt({11+e2})"); w3m()
    tagh()
    a(f"v_mov_b32 v1, {hex(ONE2)}\nds_write2_b32 v{VZ}, v1, v1 offset0:{OH//4} offset1:{OH//4+3}")
    gsync('bX',"KG_y1",mGX,4,VZ,2,f"s_waitcnt vmcnt({8+e2})")
    if GP_: a(f"s_setprio {GP_}")
    xfrags([0])
    a(f"s_waitcnt vmcnt({e2})")
    pt('xl')
    trfrag(WF,TD,32768,2048,256)
    a("s_waitcnt lgkmcnt(7)")
    trfrag(WF+16,TD,32768+8,2048,256)
    def pm(T,i):
        for s in range(4): a(mfma16(GA+8*T+4*i,WF+16*i+4*s,XF+16*T+4*s,None if s==0 else GA+8*T+4*i))
    def pcv(T):
        c=GA+8*T
        L=[f"v_mul_f32 v{c+j}, s{sL2E}, v{c+j}" for j in range(8)]
        L+=[f"v_cvt_pk_bf16_f32 v{c+j}, v{c+2*j}, v{c+2*j+1}" for j in range(4)]
        L+=[f"ds_write_b128 v116, {P4(c)} offset:{T*4096}"]
        return L
    def pmi(T,fillers):
        for i in range(2):
            for s in range(4):
                a(mfma16(GA+8*T+4*i,WF+16*i+4*s,XF+16*T+4*s,None if s==0 else GA+8*T+4*i))
                for _ in range(2):
                    if fillers: a(fillers.pop(0))
    a("s_waitcnt lgkmcnt(8)"); xfrags([1]); pm(0,0)
    a("s_waitcnt lgkmcnt(4)"); xfrags([2,3]); pm(0,1)
    a("s_waitcnt lgkmcnt(8)"); pm(1,0); pm(1,1)
    a("s_waitcnt lgkmcnt(0)"); pmi(2,pcv(0)); pmi(3,pcv(1))
    a(f"s_lshl_b32 s{t2}, s{sK}, 8\ns_nop 2")
    for T in (2,3):
        for x in pcv(T): a(x)
    gsync('pg',"KG_y2",mGP,4,VZ,2)
    for T in range(4): a(f"ds_read_b128 {P4(PO+4*T)}, v117 offset:{T*4096}")
    a("s_waitcnt vmcnt(0)")
    for T in range(3):
        a(f"s_add_u32 s{t1}, s{t2}, {F_P+T*16*65536}\ns_waitcnt lgkmcnt({3-T})")
        a(f"buffer_store_dwordx4 {P4(PO+4*T)}, v118, {SR4(sR)}, s{t1} offen{SC}")
    a(f"""
s_cmp_eq_u32 s{sWV}, 4
s_cbranch_scc0 KG_p
s_add_u32 s{t1}, s{t2}, {F_P+3*16*65536}
s_waitcnt lgkmcnt(0)
s_mov_b64 exec, 0xffff
buffer_store_dwordx4 {P4(PO+12)}, v118, {SR4(sR)}, s{t1} offen{SC}
s_mov_b64 exec, -1
KG_p:
""")
    pt('pst')
    if GP_: a("s_setprio 0")
    srd(a,sA,14,256*256)
    w3rd()
    for T in range(4):
        c=GA+8*T
        if T==3: a("s_mov_b32 exec_lo, 0x10001\ns_mov_b32 exec_hi, 0x10001")
        if T==0: a(f"v_pk_maximum3_f16 v114, v{c}, v{c+1}, v{c+2}\nv_pk_minimum3_f16 v115, v{c}, v{c+1}, v{c+2}\nv_pk_maximum3_f16 v114, v114, v{c+3}, v{c+3}\nv_pk_minimum3_f16 v115, v115, v{c+3}, v{c+3}")
        else: a(f"v_pk_maximum3_f16 v114, v114, v{c}, v{c+1}\nv_pk_minimum3_f16 v115, v115, v{c}, v{c+1}\nv_pk_maximum3_f16 v114, v114, v{c+2}, v{c+3}\nv_pk_minimum3_f16 v115, v115, v{c+2}, v{c+3}")
    a("s_mov_b64 exec, -1")
    absmax_fin(a,114,115,2)
    a(f"""
v_cmp_lt_u32 vcc, 0x40e80000, v114
v_mov_b32 v{TD}, v{VY}
s_cmp_lg_u64 vcc, 0
s_cselect_b32 s{sFLAG}, 0x101, 1
""")
    def pflag(n):
        a(f"""
s_lshl_b32 s{t2}, s2, 4
s_add_u32 s{t2}, s{t2}, {F_FLG}
v_mov_b32 v1, s{sFLAG}
s_waitcnt vmcnt({n})
s_mov_b64 exec, 1
ds_add_rtn_u32 v1, v{VZ}, v1 offset:{mPD}
s_waitcnt lgkmcnt(0)
v_readfirstlane_b32 s{t1}, v1
s_add_u32 s{t1}, s{t1}, s{sFLAG}
s_and_b32 s{t0}, s{t1}, 255
s_cmp_eq_u32 s{t0}, 4
s_cbranch_scc0 KG_f
KG_e:
ds_read_b32 v1, v{VZ} offset:{mE}
s_waitcnt lgkmcnt(0)
v_readfirstlane_b32 s{t0}, v1
s_and_b32 s{t3}, s{t0}, 255
s_cmp_lt_u32 s{t3}, 4
s_cbranch_scc1 KG_e
s_or_b32 s{t1}, s{t1}, s{t0}
s_cmp_gt_u32 s{t1}, 255
s_cselect_b32 s{t0}, 2, 0
s_xor_b32 s{t0}, s{sNON}, s{t0}
v_mov_b32 v1, s{t0}
buffer_store_dword v1, v{VZ}, {SR4(sR)}, s{t2} offen{SC}
s_waitcnt vmcnt(1)
s_branch KG_f2
KG_f:
s_waitcnt vmcnt(0)
KG_f2:
s_mov_b64 exec, -1
""")
        pt('pfl')
    def mid():
        sdma(sA,0); pflag(8); arrive(mPI,1)
    qfull("KGq",mid)
    tru(WU1,32768)
    a("s_waitcnt lgkmcnt(0)")
    ugemm()
    if FLP==1: gwait("KG_b2",mH,16,VZ,1)
    a(f"""
s_mov_b32 s{sLO}, {F_FLG}
buffer_load_dword v116, v110, {SR4(sR)}, s{sLO} offen{SC}
""")
    if PFP==2: pfp()
    a(f"""
s_mov_b32 s{sWU}, 1
s_or_b32 s{t1}, s{sNON}, 2
s_waitcnt vmcnt({1 if PFP==2 else 0})
KS_m:
v_or_b32 v2, 2, v116
v_cmp_ne_u32 vcc, s{t1}, v2
s_cbranch_vccz KS_n
s_sub_u32 s{sBUD}, s{sBUD}, 1
s_cbranch_scc1 KS_n
s_sleep {FSL}
s_mov_b64 exec, vcc
buffer_load_dword v116, v110, {SR4(sR)}, s{sLO} offen{SC}
s_mov_b64 exec, -1
s_waitcnt vmcnt(0)
s_branch KS_m
KS_n:
v_cmp_ne_u32 vcc, s{sNON}, v116
s_cbranch_vccz KS_o
ds_write_b32 v{VZ}, v{FA} offset:{mSLOW}
KS_o:
""")
    pt('flg')
    if PRIO: a("s_setprio 3")
    bar('b3')
    a(f"ds_read_b32 v1, v{VZ} offset:{mNT}\ns_waitcnt lgkmcnt(0)\nv_readfirstlane_b32 s{sNT}, v1")
    ranges()
    a("KF_J:")
    def rd_ga(off): a(f"ds_read_u16 v{GA0}, v{SB} offset:{GL+off}\nds_read_u16 v{GA0+1}, v{SB} offset:{GL+off+8}")
    def rd_gg(off): a(f"ds_read_u16 v{YA}, v{RB} offset:{GL+off}")
    ya=f"v_lshl_add_u32 v{EA}, v{YA}, 1, v{EC}\nv_add_u32 v{YA}, v{YA}, v{M4}"
    ry=f"ds_read_u16 v{VY}, v{YA} offset:{WB+2}"
    def rd_y(): a(ya); a(ry)
    def idx1(i): return f"ds_read_u16 v{IDX+2*i}, v{GA0+(i>>2)} offset:{WB+4*(i&3)}"
    def rd_idx():
        for i in range(8): a(idx1(i))
    def dmai(i): return f"buffer_load_dwordx4 {P2(IDX+2*i)}, {SR4(sP)}, 0 idxen offen offset:{1024*(i&3)}{GSC} lds"
    def dma():
        for i in range(8):
            if i==0: a(f"s_mov_b32 m0, s{sBUF}\ns_nop 0")
            if i==4: a(f"s_add_u32 m0, s{sBUF}, 4096\ns_nop 0")
            a(dmai(i))
    def dma_idx():
        for i in range(4): a(dmai(i))
        a(f"s_add_u32 m0, s{sBUF}, 4096"); a(idx1(0))
        for i in range(4,8): a(dmai(i))
        a(f"s_mov_b32 m0, s{sBUF}")
        for i in range(1,8): a(idx1(i))
    rd_b=f"ds_read_b128 {P4(B3+2)}, v{QAD}\nds_read_b128 {P4(B3+10)}, v{QAD} offset:512"
    rd_a3=f"ds_read_b64 {P2(A6)}, v{EA}\nds_read_b64 {P2(A6+2)}, v{VY} offset:{OH}\nds_read_b64 {P2(A6+4)}, v{EA}"
    def rd_a(t): return f"ds_read_b128 {P4(A+4*t)}, v{AR+t}"
    rd_s=f"ds_read_b64 {P2(SS)}, v{SA2}\nds_read_b64 {P2(SS+2)}, v{SA2+1}"
    def AQ(q): return A6+2*(q&1)
    win=f"v_add3_u32 v{VY}, v{VY}, v{OH2}, s{sW8}\nv_lshl_add_u32 v{QAD}, s{sQ}, 6, v{QC}"
    rd_ga(0); rd_gg(0)
    a(f"""
ds_read_u16 v{WT}, v1 offset:{GL}
ds_read_b32 v{GP}, v{VZ} offset:{mSLOW}
s_waitcnt lgkmcnt(3)
""")
    rd_idx()
    a("s_waitcnt lgkmcnt(0)")
    dma()
    pt('d0')
    a(f"v_readlane_b32 s{sNF}, v{WT}, s{sCNT}\nv_readfirstlane_b32 s{t3}, v{GP}")
    rd_y(); rd_ga(16)
    uscale()
    a(f"""
v_lshlrev_b32 v{OH2}, 1, v{OHC}
v_and_b32 v1, 31, v{VL}
v_lshlrev_b32 v1, 4, v1
v_lshlrev_b32 v2, 5, v{VL}
v_and_b32 v2, 0x400, v2
v_add3_u32 v{QC}, v1, v2, s{sQ2}
s_waitcnt lgkmcnt(0)
""")
    rd_idx()
    a(f"""
s_cmp_lg_u32 s{t3}, 0
s_cbranch_scc1 KF_SLOW
s_lshr_b32 s{sNF}, s{sNF}, 8
v_subrev_u32 v2, s{sNF}, v{VL}
v_and_b32 v2, 15, v2
v_add_u32 v{DR}, s{sNF}, v2
v_lshlrev_b32 v2, 2, v{DR}
ds_read_b32 v{GP}, v2 offset:{BT}
s_and_b32 s{sQ}, s{sNF}, -2
s_lshl_b32 s{sQ}, s{sQ}, 3
s_sub_u32 s{sW8}, 0, s{sQ}
{win}
{rd_b}
{rd_a3}
""")
    rd_gg(16)
    a(f"""
v_lshrrev_b32 v{WT}, 9, v{WT}
v_lshlrev_b32 v{WT}, 4, v{WT}           ; 8*(w&~1)
v_mov_b32 v{SS}, 0
v_mov_b32 v{SS+1}, 0
v_mov_b32 v{SS+2}, 0
v_mov_b32 v{SS+3}, 0
v_add_u32 v{SA}, {STB}, v{SA}
v_mov_b32 v1, {OH+64}
v_cndmask_b32 v{SA2}, v1, v{SA}, {S2(sMA)}
v_cndmask_b32 v{SA2+1}, v{SA}, v1, {S2(sMA)}
v_cndmask_b32 v{SI2}, 0, 16, {S2(sMA)}
v_cndmask_b32 v{SI2+1}, 16, 0, {S2(sMA)}
s_add_u32 s{t1}, s{sT0}, s{sCNT}
s_lshl_b32 s{t1}, s{t1}, 7
s_add_u32 s{t2}, s{sWV}, 48
v_mov_b32 v1, s{t2}
{mfma32(ACC+16,SS,SS,None)}
s_waitcnt lgkmcnt(0)
""")
    rd_y(); rd_ga(32)
    a(f"""
v_cmp_gt_u32 vcc, s{t0}, v{GP}
v_cmp_gt_u32 {S2(t2)}, s{t1}, v{GP}
v_cmp_gt_u32 {S2(t0)}, s{sNN}, v{DR}
v_cndmask_b32 v{DR}, v{DR}, v1, vcc
s_cmp_lg_u64 vcc, 0
s_cselect_b32 s{sHEAD}, 1, 0
s_and_b64 vcc, {S2(t2)}, {S2(t0)}
v_lshrrev_b32 v1, 2, v{VL}
v_cndmask_b32 v{DR}, 63, v{DR}, vcc
v_and_b32 v1, 4, v1
v_xor_b32 v1, v1, v{DR}
v_and_b32 v1, 15, v1
v_lshlrev_b32 v1, 4, v1
v_lshl_add_u32 v{DR}, v{DR}, 8, v1
v_sub_u32 v{DR}, v{DR}, v{OHC}
s_sub_u32 s{sCNT}, s{sCNT}, 1
s_mov_b32 m0, s{sBUF}
""")
    epi_consts()
    pt('pre')
    a("s_waitcnt vmcnt(0)")
    pt('g0')
    for t in range(8): a(rd_a(t))
    a("s_waitcnt lgkmcnt(6)")
    a(mfma32(Z[0],AQ(0),B3,None)); a(mfma32(Z[0],A,ID0,Z[0])); a(mfma32(Z[0],A+4,ID1,Z[0]))
    a("s_nop 8\ns_waitcnt lgkmcnt(0)")
    pt('pro')
    def finals(qprev):
        for u in range(2): a(f"v_pk_mul_f32 {P2(NN+2*u)}, {P2(NN+2*u)}, {P2(DD+2*u)}")
        for u in range(2): a(f"v_cvt_pk_bf16_f32 v{GP+2*(qprev&1)+u}, v{NN+2*u}, v{NN+2*u+1}")
    def ex(zc,r): return f"v_exp_f32 v{EE+r}, v{zc+r}"
    def body(first):
        for q in range(4):
            zc=Z[q&1]; zn=Z[(q+1)&1]; qn=(q+1)&3
            ms=[(AQ(qn),B3+4*qn),(A+8*qn,ID0),(A+8*qn+4,ID1)]
            pend=[0,1,2,3,8,9,10,11,4,5,12,13,6,7,14,15]
            f0=first and q==0
            if q==0: a(f"v_readlane_b32 s{sQ}, v{WT}, s{sCNT}")
            if q==3: a(f"s_waitcnt lgkmcnt(0)")
            a(mfma32(zn,ms[0][0],ms[0][1],None))
            if not f0:
                for j in range(4): a(f"v_rcp_f32 v{DD+j}, v{DD+j}")
            else:
                for r in range(4): a(ex(zc,pend.pop(0)))
            a(mfma32(zn,ms[1][0],ms[1][1],zn))
            for r in range(4): a(ex(zc,pend.pop(0)))
            a(mfma32(zn,ms[2][0],ms[2][1],zn))
            def bx():
                a(f"s_sub_u32 s{sW8}, 0, s{sQ}\ns_waitcnt vmcnt(0) lgkmcnt(0)\n{win}")
                rd_gg(32); rd_ga(48)
                a(rd_b); a(rd_a3); a(rd_s)
                for t in range(8): a(rd_a(t))
            if q==2 and XP==0: a(ex(zc,pend.pop(0))); bx()
            for r in range(4 if not (q==2 and XP==0) else 3): a(ex(zc,pend.pop(0)))
            if q&1:
                p=1 if q==1 else 0
                if not (first and q==1):
                    a(mfma32(ACC+16*p,GP,SS,None if first else ACC+16*p))
                    for r in range(4): a(ex(zc,pend.pop(0)))
            if q==2 and XP==1: bx()
            if f0: dma_idx()
            if q==3:
                a(ya)
                if first: dma_idx(); a(ry)
                else:
                    a(f"s_cmp_gt_u32 s{sCNT}, 1\ns_cbranch_scc0 KF_lt")
                    dma_idx(); a(ry)
                    a("KF_lb:")
            if not f0: finals((q-1)&3)
            seq=[]
            for u in range(2): seq.append(f"v_pk_add_f32 {P2(DD+2*u)}, {P2(EE+8*u)}, 1.0 op_sel_hi:[1,0]")
            for m in range(1,4):
                for u in range(2):
                    src=(zc+8*u) if m==1 else NN+2*u
                    seq.append(f"v_pk_fma_f32 {P2(NN+2*u)}, {P2(src)}, {P2(EE+8*u+2*m)}, {P2(src)}")
                for u in range(2): seq.append(f"v_pk_fma_f32 {P2(NN+2*u)}, {P2(zc+8*u+2*m)}, {P2(DD+2*u)}, {P2(NN+2*u)}")
                for u in range(2): seq.append(f"v_pk_fma_f32 {P2(DD+2*u)}, {P2(DD+2*u)}, {P2(EE+8*u+2*m)}, {P2(DD+2*u)}")
            slots=[0,1,2,3,5,7,9,11] if len(pend)==8 else [1,4,7,10]
            for k,x in enumerate(seq):
                a(x)
                if k in slots: a(ex(zc,pend.pop(0)))
            if q==2: a(f"v_pk_add_f32 {P2(RB)}, {P2(RB)}, {S2(sINC)}\nv_pk_add_f32 {P2(SA2)}, {P2(SA2)}, {P2(SI2)}")
    if PROF and 'dyn' in PTS: stamp(a,8); stamp(a,9,True)
    if PROF and 'clk' in PTS: stamp(a,6,True)
    n0=len(a.l)
    body(True)
    a("s_branch KF_LE\n.p2align 6\nKF_LOOP:")
    body(False)
    def keep(l):
        t=l.strip()
        if X&1 and t.startswith('buffer_load'): return False
        if X&2 and t.startswith('ds_read_b128 v[') and int(t.split('[')[1].split(':')[0])>=28: return False
        if X&8 and t.startswith('v_mfma'): return False
        if X&16 and t.startswith('v_pk_fma'): return False
        if X&32 and t.startswith('v_exp'): return False
        return True
    a.l[n0:]=[l for l in a.l[n0:] if keep(l)]
    import re
    if X&(128|256|512):
        L=[]
        for l in a.l[n0:]:
            m=re.match(r"\s*v_mfma_f32_32x32x16_bf16 v\[(\d+):\d+\], v\[(\d+):\d+\], v\[(\d+):\d+\], (.*)",l)
            if m and int(m.group(1))<ACC:
                d,x,y=int(m.group(1)),int(m.group(2)),int(m.group(3))
                if X&128:
                    if y==ID0: L+=["    "+mfma16(d+4,x,ID0,None),"    "+mfma16(d+8,x,ID1,None)]
                    elif y==ID1: L.append("    "+mfma16(d+12,x,ID0,None))
                    else: L.append("    "+mfma16(d,x,y,None))
                if X&256:
                    if y!=ID1: L.append(l)
                if X&512:
                    if y==ID0: L.append(f"    v_mfma_f32_32x32x64_f8f6f4 v[{d}:{d+15}], v[{x}:{x+7}], v[{ID0}:{ID0+7}], v[{d}:{d+15}]")
                    elif y!=ID1: L.append(l)
            else: L.append(l)
        a.l[n0:]=L
    a("KF_LE:")
    if PRIO: a(f"s_bitcmp1_b32 42, s{sCNT}\ns_cbranch_scc1 KF_pr\nKF_pb:")
    a(f"""
s_sub_u32 s{sCNT}, s{sCNT}, 1
s_cbranch_scc0 KF_LOOP
""")
    def loop_tails():
        a(f"KF_lt:\ns_cmp_eq_u32 s{sCNT}, s{sWU}\ns_cbranch_scc0 KF_lb")
        sdma(sA,32768,0,TD)
        a(f"""
s_branch KF_lb
KF_pr:
""")
        if PROF and 'dyn' in PTS:
            a("s_mov_b32 s90, s92\ns_mov_b32 s91, s93\ns_mov_b32 s92, s94\ns_mov_b32 s93, s95\ns_mov_b32 s94, s96\ns_mov_b32 s95, s97")
            stamp(a,8); stamp(a,9,True)
        a(f"""
s_setprio 2
s_cmp_eq_u32 s{sCNT}, 5
s_cbranch_scc1 KF_pb
s_setprio 1
s_cmp_eq_u32 s{sCNT}, 3
s_cbranch_scc1 KF_pb
s_setprio 0
s_branch KF_pb
""")
    for j in range(4): a(f"v_rcp_f32 v{DD+j}, v{DD+j}")
    a("s_nop 0")
    finals(3)
    a("s_nop 1")
    a(mfma32(ACC+16,GP,SS,ACC+16))
    pt('loop')
    if PROF and 'clk' in PTS: stamp(a,7,True)
    for p in range(2):
        if p==1: a("s_nop 0")
        for j in range(4):
            c=ACC+16*p+4*j
            a(f"v_cvt_pk_bf16_f32 v{c}, v{c}, v{c+1}\nv_cvt_pk_bf16_f32 v{c+1}, v{c+2}, v{c+3}")
            if p or j: a(f"v_xor_b32 v1, {(8*p+j)*16}, v{DR}")
            a(f"ds_write_b64 v{1 if (p or j) else DR}, {P2(c)} offset:{AGB}")
    a(f"""
s_and_b32 s{t1}, s{sNF}, 15
s_lshl_b32 s{t1}, s{t1}, 4
s_lshl_b32 s{t0}, s{sNF}, 8
s_or_b32 s{t0}, s{t0}, s{t1}
s_mul_i32 s{t1}, s{sWV}, 272
s_add_u32 s{t1}, s{t1}, {48*256}
v_lshlrev_b32 v3, 2, v{VL}
v_xor_b32 v1, s{t0}, v3
v_xor_b32 v2, s{t1}, v3
s_cmp_eq_u32 s{sHEAD}, 0
s_waitcnt vmcnt(0) lgkmcnt(0)
s_barrier
s_cbranch_scc1 KF_FIN
ds_read_b32 v4, v1 offset:{AGB}
ds_read_b32 v5, v2 offset:{AGB}
s_waitcnt lgkmcnt(0)
v_lshlrev_b32 v6, 16, v4
v_and_b32 v7, 0xffff0000, v4
v_lshlrev_b32 v8, 16, v5
v_and_b32 v9, 0xffff0000, v5
v_pk_add_f32 v[6:7], v[6:7], v[8:9]
v_cvt_pk_bf16_f32 v6, v6, v7
ds_write_b32 v1, v6 offset:{AGB}
KF_FIN:
""")
    OST=GBUF
    tru(WU2,32768)
    srd(a,sX,16,N*256)
    a(f"""
v_and_b32 v1, 15, v{VL}
s_lshl_b32 s{t0}, s{sOT}, 1
v_lshrrev_b32 v2, 5, v{VL}
v_or_b32 v2, s{t0}, v2
v_xor_b32 v2, v2, v1
v_lshlrev_b32 v2, 4, v2
v_lshl_add_u32 v2, v1, 8, v2
v_lshrrev_b32 v3, 1, v{VL}
v_and_or_b32 v2, v3, 8, v2
v_add_u32 v{AR}, {OST}, v2
v_lshlrev_b32 v{AR+1}, 1, v1
""")
    bar('mrg',"s_waitcnt vmcnt(0) lgkmcnt(0)")
    for T in range(4):
        xfrags([T])
        if T==2:
            a("s_waitcnt lgkmcnt(8)")
            for s in range(4): a(mfma16(UA,WU2+4*s,XF+4*s,UA))
    def silu(T):
        c=UA+4*T; e=EE+4*T
        L=[f"v_exp_f32 v{e+i}, v{c+i}" for i in range(4)]
        L+=[f"v_fma_f32 v{e+i}, v{e+i}, s{sL2E}, s{sL2E}" for i in range(4)]
        L+=[f"v_rcp_f32 v{e+i}, v{e+i}" for i in range(4)]
        L+=[f"v_mul_f32 v{e+i}, v{e+i}, v{c+i}" for i in range(4)]
        L+=[f"v_cvt_pk_bf16_f32 v{e}, v{e}, v{e+1}",f"v_cvt_pk_bf16_f32 v{e+1}, v{e+2}, v{e+3}",f"ds_write_b64 v{AR}, {P2(e)} offset:{T*4096}"]
        return L
    for T in range(1,4):
        a(f"s_waitcnt lgkmcnt({4*(3-T)})")
        for s in range(4):
            x,y=(WU2+4*s,XF+16*T+4*s) if T<3 else (XF+16*T+4*s,WU2+4*s)
            a(mfma16(UA+4*T,x,y,UA+4*T))
    for T in range(3):
        for x in silu(T): a(x)
    c=UA+12; e=EE+12
    a(f"""
v_exp_f32 v{e}, v{c}
s_add_u32 s{t0}, s{sK}, {48*256}
v_fma_f32 v{e}, v{e}, s{sL2E}, s{sL2E}
v_rcp_f32 v{e}, v{e}
s_lshl_b32 s{t0}, s{t0}, 8
v_mul_f32 v{e}, v{e}, v{c}
s_lshl_b32 s{t1}, s{sOT}, 5
s_add_u32 s{t0}, s{t0}, s{t1}
v_cvt_pk_bf16_f32 v{e}, v{e}, v{e}
s_mov_b32 exec_lo, 0xffff
s_mov_b32 exec_hi, 0
buffer_store_short v{e}, v{AR+1}, {SR4(sX)}, s{t0} offen{OSC}
s_mov_b64 exec, -1
v_lshlrev_b32 v1, 4, v0
v_add_u32 v1, {OST}, v1
v_lshrrev_b32 v2, 4, v0
v_xor_b32 v3, v2, v0
v_and_b32 v3, 15, v3
v_lshlrev_b32 v3, 4, v3
v_lshl_add_u32 v3, v2, 16, v3
s_lshl_b32 s{t0}, s{sK}, 8
s_add_u32 s{t1}, s{t0}, {32*65536}
s_waitcnt lgkmcnt(0)
s_barrier
ds_read_b128 {P4(A)}, v1
s_cmp_lt_u32 s{sWV}, 4
s_cbranch_scc0 KF_e1
ds_read_b128 {P4(A+4)}, v1 offset:8192
s_waitcnt lgkmcnt(0)
buffer_store_dwordx4 {P4(A+4)}, v3, {SR4(sX)}, s{t1} offen{OSC}
KF_e1:
s_waitcnt lgkmcnt(0)
buffer_store_dwordx4 {P4(A)}, v3, {SR4(sX)}, s{t0} offen{OSC}
""")
    a(f"""
s_or_b32 s{t0}, s2, s{sWV}
s_cbranch_scc1 KF_e2
v_mov_b32 v1, s{sNON}
v_mov_b32 v2, 0
s_mov_b64 exec, 1
buffer_store_dword v1, v2, {SR4(sR)}, 0 offen
KF_e2:
""")
    if PROF: a("s_waitcnt vmcnt(0)")
    stamp(a,10); stamp(a,11,True)
    stamp_out(a,1,sWV)
    a("KF_END:\ns_endpgm")
    loop_tails()
    hist_retry(8,"KT_h",True)
    a("KF_CEND:")
    SV=ACC; AGs=SV+8; RS_=SV+16
    a(f"""
KF_SLOW:
s_setprio 0
s_cmp_ge_u32 s{sWV}, 4
s_cselect_b32 s{sTOT}, 0, s{sTOT}
v_mov_b32 v1, s{sTOT}
ds_max_u32 v{VZ}, v1 offset:{mMX}
v_mov_b32 v{SS}, 0
v_mov_b32 v{SS+1}, 0
v_mov_b32 v{SS+2}, 0
v_mov_b32 v{SS+3}, 0
s_mov_b32 s{sLO}, 0
s_mov_b32 s{sLB}, s{sBUF}
s_sub_u32 s{t0}, s{sWV}, s{sT0}
s_lshl_b32 s{t0}, s{t0}, 4
v_add_u32 v{SV+4}, s{t0}, v{RB}
v_add_u32 v{SV+5}, s{t0}, v{SB}
s_lshl_b32 s{t0}, s{sWV}, 4
v_sub_u32 v{SV+6}, s{t0}, v{OHC}
v_and_b32 v{SV+7}, 31, v{VL}
v_lshlrev_b32 v{SV+7}, 2, v{SV+7}
v_lshlrev_b32 v1, 4, v0
""")
    for j in range(3): a(f"ds_write_b128 v1, {P4(SS)} offset:{AGG+j*8192}")
    a(f"""
v_lshlrev_b32 v1, 4, v{VL}
ds_write_b128 v1, {P4(SS)} offset:{AGG+3*8192}
s_waitcnt vmcnt(0) lgkmcnt(0)
s_barrier
ds_read_b32 v1, v{VZ} offset:{mMX}
s_waitcnt lgkmcnt(0)
v_readfirstlane_b32 s{sRND}, v1
KF_SR:
s_cmp_lt_u32 s{sLO}, s{sRND}
s_cbranch_scc0 KF_SE
s_barrier
v_lshlrev_b32 v1, 2, v{VL}
v_lshlrev_b32 v2, 8, v{VL}
ds_write_b32 v1, v2
s_waitcnt lgkmcnt(0)
s_barrier
s_cmp_ge_u32 s{sWV}, 4
s_cbranch_scc1 KF_S1
s_movk_i32 s{t3}, 256
""")
    expand("KF_x")
    a(f"s_sub_u32 s{t1}, s{sTOT}, s{sLO}")
    reclist(4)
    recload(4,"KF_rl")
    for i in range(4): a(f"s_mov_b64 {S2(sM+8+2*i)}, {S2(sM+2*i)}")
    hist(4,"KF_h",0,False)
    a("s_waitcnt lgkmcnt(0)")
    for i in range(4):
        a(f"""
v_mov_b32 v{RS_+4*i}, v{RC+4*i}
v_mov_b32 v{RS_+4*i+1}, v{RC+4*i+1}
v_mov_b32 v{RS_+4*i+2}, v{RC+4*i+2}
v_lshlrev_b32 v1, 6, v{RC+4*i+3}
v_sub_u32 v1, v{RK+i}, v1
v_cndmask_b32 v{RS_+4*i+3}, -1, v1, {S2(sM+8+2*i)}
""")
    a(f"""
KF_S1:
s_mov_b32 s{sHEAD}, 0                    ; 256*k
KF_SK:
s_waitcnt lgkmcnt(0)
s_barrier
s_cmp_ge_u32 s{sWV}, 4
s_cbranch_scc1 KF_S2
s_mov_b32 s{t1}, {EB}
""")
    for i in range(4):
        a(f"""
v_subrev_u32 v1, s{sHEAD}, v{RS_+4*i+3}
v_lshrrev_b32 v2, 19, v{RS_+4*i+2}
v_lshl_add_u32 v2, v2, 8, v1
v_lshl_add_u32 v3, v2, 1, s{t1}
v_cmpx_gt_u32 vcc, 0x100, v1
ds_write_b32 v2, v{RS_+4*i+2} offset:{WB}
ds_write_b64 v3, {P2(RS_+4*i)}
s_mov_b64 exec, -1
""")
    a("KF_S2:")
    scan(True)
    a(f"s_cmp_lg_u64 {S2(t2)}, 0\ns_cselect_b32 s{sFLAG}, 1, 0")
    fill("KFs",True,8)
    a(f"""
s_add_u32 s{sNT}, s{t0}, 127
s_lshr_b32 s{sNT}, s{sNT}, 7
s_waitcnt lgkmcnt(0)
s_barrier
v_mov_b32 v{RB}, v{SV+4}
v_mov_b32 v{SB}, v{SV+5}
v_mov_b32 v{SV+12}, v{SV+6}
s_mov_b32 s{sI}, s{sWV}
KF_SL:
s_cmp_lt_u32 s{sI}, s{sNT}
s_cbranch_scc0 KF_SN
""")
    rd_ga(0); rd_gg(0)
    for j in range(4): a(f"ds_read_u16 v{AGs+j}, v{SV+12} offset:{GL+2*j}")
    a("s_waitcnt lgkmcnt(0)")
    rd_y(); rd_idx()
    a("s_waitcnt lgkmcnt(0)")
    dma()
    for j in range(4): a(f"v_lshrrev_b32 v{AGs+j}, 8, v{AGs+j}")
    a(f"""
v_readfirstlane_b32 s{sQ}, v{AGs}
s_nop 3
s_and_b32 s{sQ}, s{sQ}, -2
s_lshl_b32 s{sQ}, s{sQ}, 3
s_sub_u32 s{sW8}, 0, s{sQ}
v_lshlrev_b32 v{OH2}, 1, v{OHC}
{win}
{rd_b}
{rd_a3}
""")
    for j in range(4): a(f"v_lshl_add_u32 v{AGs+j}, v{AGs+j}, 9, v{SV+7}")
    a("s_waitcnt vmcnt(0) lgkmcnt(0)")
    for t in range(8): a(rd_a(t))
    a("s_waitcnt lgkmcnt(0)")
    for q in range(4):
        z=Z[0]
        a(mfma32(z,AQ(q),B3+4*q,None)); a(mfma32(z,A+8*q,ID0,z)); a(mfma32(z,A+8*q+4,ID1,z))
        a("s_nop 15")
        for r in range(16): a(f"v_exp_f32 v{EE+r}, v{z+r}")
        for r in range(16): a(f"v_add_f32 v{EE+r}, 1.0, v{EE+r}")
        for r in range(16): a(f"v_rcp_f32 v{EE+r}, v{EE+r}")
        for m in range(4):
            for u in range(2):
                for par in range(2):
                    r=8*u+2*m+par; g=GP+2*u+par
                    a(f"v_mul_f32 v{g}, v{z+r}, v{EE+r}" if m==0 else f"v_fmac_f32 v{g}, v{z+r}, v{EE+r}")
        for j in range(4): a(f"ds_add_f32 v{AGs+j}, v{GP+j} offset:{AGG+q*128}")
        a("s_waitcnt lgkmcnt(0)")
    a(f"""
v_add_u32 v{SB}, 128, v{SB}
v_add_u32 v{RB}, 128, v{RB}
v_add_u32 v{SV+12}, 128, v{SV+12}
s_add_u32 s{sI}, s{sI}, 8
s_branch KF_SL
KF_SN:
s_add_u32 s{sHEAD}, s{sHEAD}, 256
s_cmp_lg_u32 s{sFLAG}, 0
s_cbranch_scc1 KF_SK
s_add_u32 s{sLO}, s{sLO}, 256
s_branch KF_SR
KF_SE:
s_cmp_ge_u32 s{sWV}, 4
s_cbranch_scc0 KF_SE2
""")
    sdma(sA,32768,0,TD)
    a(f"""
KF_SE2:
v_lshlrev_b32 v1, 4, v0
v_lshrrev_b32 v2, 5, v0
s_waitcnt vmcnt(0) lgkmcnt(0)
s_barrier
""")
    for j in range(4): a(f"ds_read_b128 {P4(A+4*j)}, v1 offset:{AGG+j*8192}")
    a(f"""
v_bfe_u32 v3, v0, 1, 4
v_xor_b32 v3, v3, v2
v_lshlrev_b32 v3, 4, v3
v_lshl_add_u32 v3, v2, 8, v3
v_and_b32 v1, 1, v0
v_lshl_add_u32 v3, v1, 3, v3
s_waitcnt lgkmcnt(0)
s_barrier
""")
    for j in range(4):
        a(f"v_cvt_pk_bf16_f32 v{A+4*j}, v{A+4*j}, v{A+4*j+1}\nv_cvt_pk_bf16_f32 v{A+4*j+1}, v{A+4*j+2}, v{A+4*j+3}")
        a(f"ds_write_b64 v3, {P2(A+4*j)} offset:{AGB+j*4096}")
    a("s_branch KF_FIN")
    hist_retry(4,"KF_h",False)
    return a.text()

if __name__=='__main__':
    import sys
    nm='standalone__mpnn_edge_mlp__graph_kernel'
    hdr=open('standalone__mpnn_edge_mlp__graph.s.ref').read().split('; Override')[0]
    out=hdr+(f"; @launch kernel={nm} grid=(256,1,1) block=(512,1,1) lds={KF_LDS}\n" if os.environ.get('LISTF') else f"; @launch grid=(256,1,1) block=(512,1,1) lds={KF_LDS}\n")
    out+='.amdgcn_target "amdgcn-amd-amdhsa--gfx950"\n.text\n'
    out+=f".globl {nm}\n.p2align 8\n.type {nm},@function\n"+gen_kf(nm)
    out+='.section .rodata,"a"\n.p2align 6\n'+kd(nm,256)
    open(sys.argv[1],'w').write(out)
```

```python
from common import *
X=int(os.environ.get('X','0'))
PRIO=int(os.environ.get('PRIO','1'))
DSP=[int(c,36) for c in os.environ.get('DSP','00000000')]
def EV(n,d): return int(os.environ.get(n,d))
TPOS=EV('TPOS',6); PFP=EV('PFP',0); XORD=EV('XORD',1); WUI=EV('WUI',2); FLP=EV('FLP',1); FSL=EV('FSL',8); TE=EV('TE',1); W1N=EV('W1N',5); GP_=EV('GP',1); TLB=EV('TLB',0); PFH=EV('PFH',0); XP=EV('XP',0); PFI=EV('PFI',0); SWW=EV('SWW',1)
PTS=os.environ.get('PTS','b1,bS,tp,pfl,rl,b2,b3,pro').split(',')
SC=' sc1'
OSC=os.environ.get('OSC',' sc1')
GSC=os.environ.get('GSC',' sc1')
NPROD=250; EP=1600; RST=EP*16+128
F_P=0x1000; F_REC=0x400000; F_TBL=0xB00000; F_FLG=0xB90000; F_SIZE=0xBA0000
CNT=0; MISC=256; OH=400; GL=928; BT=1872; STB=2144; RS=944
mSLOW=MISC; mS=MISC+4; mGX=MISC+8; mGP=MISC+12; mC3=MISC+16; mPD=MISC+20; mSL=MISC+24; mMX=MISC+28; mPI=MISC+32; mH=MISC+36; mNT=MISC+40; mW=MISC+44; mE=MISC+48
AGB=17408
W3L=AGB+56*256
Q2=AGB+16384; QS=52*128
S1=Q2; ERAW=Q2+12800
WB=Q2+4*QS; NULLG=49*256; EB=WB+NULLG+16
HIST=WB; PSC=WB+2048
GBUF=98304
KF_LDS=GBUF+65536
assert EB+2*NULLG+32<=GBUF and STB+16*RS<=AGB
AGG=STB
ONE2=0x3F803F80
NULLW2=0xFFFF|(512<<16)
CAPT=58
ID0=4; ID1=8; B3=12; A=28; Z=[60,76]; A3=92; EE=96; NN=112; DD=116; GP=120; SS=124
IDX=128; AR=144; RB=152; SB=153; SA=154; VY=155; OHC=156; VL=157; WT=158; DR=159
ACC=160; WU2=192; UA=208; WF=160; WU1=176; QA=224; RC=96; XF=28; GA=192
A6=244; QAD=250; QC=251; SA2=224; SI2=226; OH2=228; GA0=232; YA=234; EA=235; M4=236; EC=237; VZ=238; PO=92; TRU=240; TD=241; TC=242; TO=243; RK=244; FA=252
sP=24; sX=28; sA=32; sR=36; sM=40
sWV=56; sK=57; sNN=58; sI=59; sNT=60; sBUF=61; sQ=62; sW8=63; sCNT=64; sT0=65
sL2E=66; sINC=68; sRND=70; sTOT=71; sNON=72; sBUD=73; sW4=74; sLB=75
sWU=3; sW4K=22; sOT=23; sFLAG=76; sLO=77; sMA=78; sQ2=80; sHEAD=82; sNF=83
t0,t1,t2,t3=84,85,86,87
BUDGET=20000

def mfma32(d,x,y,c): return f"v_mfma_f32_32x32x16_bf16 v[{d}:{d+15}], v[{x}:{x+3}], v[{y}:{y+3}], "+("0" if c is None else f"v[{c}:{c+15}]")
def mfma16(d,x,y,c): return f"v_mfma_f32_16x16x32_bf16 v[{d}:{d+3}], v[{x}:{x+3}], v[{y}:{y+3}], "+("0" if c is None else f"v[{c}:{c+3}]")
def P2(r): return f"v[{r}:{r+1}]"
def P4(r): return f"v[{r}:{r+3}]"
def S2(r): return f"s[{r}:{r+1}]"
def SR4(r): return f"s[{r}:{r+3}]"

def gen_kf(name):
    a=Asm()
    def pt(n):
        if PROF and n in PTS: stamp(a,2+PTS.index(n))
    def ret(n):
        if PROF and n in PTS: a(f"s_sub_u32 s{90+PTS.index(n)}, {BUDGET}, s{sBUD}\ns_mul_i32 s{90+PTS.index(n)}, s{90+PTS.index(n)}, 100")
    def bar(n,w="s_waitcnt lgkmcnt(0)"):
        a(w+"\ns_barrier"); pt(n)
    def gsync(n,lab,off,target,va,vt,pre=None):
        if pre: a(pre)
        a(f"""
v_mov_b32 v{vt}, 1
s_mov_b64 exec, 1
ds_add_u32 v{va}, v{vt} offset:{off}
s_mov_b64 exec, -1
{lab}:
ds_read_b32 v{vt}, v{va} offset:{off}
s_waitcnt lgkmcnt(0)
v_readfirstlane_b32 s{t1}, v{vt}
s_and_b32 s{t1}, s{t1}, 255
s_cmp_lt_u32 s{t1}, {target}
s_cbranch_scc1 {lab}
""")
        pt(n)
    def gwait(lab,off,target,va,vt):
        a(f"""
{lab}:
ds_read_b32 v{vt}, v{va} offset:{off}
s_waitcnt lgkmcnt(0)
v_readfirstlane_b32 s{t1}, v{vt}
s_and_b32 s{t1}, s{t1}, 255
s_cmp_lt_u32 s{t1}, {target}
s_cbranch_scc1 {lab}
""")
    def consts():
        srd(a,sP,20,N,off=F_P-3072,stride=256)
        srd(a,sR,20,F_SIZE)
        a(f"""
s_cmp_lt_u32 s{sK}, {N-256*48}
s_cselect_b32 s{sNN}, 49, 48
s_mov_b32 s{sL2E}, {hex(LOG2E_NEG)}
s_mov_b32 s{sL2E+1}, {hex(LOG2E_NEG)}
s_mov_b32 s{sINC}, 16
s_mov_b32 s{sINC+1}, 16
s_mov_b32 s{sMA}, 0x0000ffff
s_mov_b32 s{sMA+1}, 0x0000ffff
s_mov_b32 s{sQ2}, {Q2}
s_mov_b32 s{sBUD}, {BUDGET}
v_lshrrev_b32 v2, 5, v{VL}              ; h
; g = 4 b2 + 2 b4 + b0 ; m = 2 b3 + b1 ; slot = 16 b2 + 4 m + (g&3)
v_lshrrev_b32 v1, 3, v{VL}
v_and_b32 v1, 2, v1
v_and_or_b32 v1, v{VL}, 5, v1           ; g
v_lshlrev_b32 v{RB}, 1, v1
v_lshlrev_b32 v3, 1, v{VL}
v_and_b32 v3, 4, v3
v_and_or_b32 v{M4}, v{VL}, 8, v3        ; 4m
v_lshlrev_b32 v{EC}, 1, v{M4}
v_add_u32 v{EC}, {EB}, v{EC}
v_lshlrev_b32 v3, 2, v1
v_and_or_b32 v3, v3, 16, v{M4}
v_and_or_b32 v3, v1, 3, v3              ; slot
v_lshl_add_u32 v3, v3, 8, s{sBUF}
v_and_b32 v{WT}, 15, v{VL}              ; n / c16
v_xor_b32 v1, v2, v{WT}
v_lshl_add_u32 v{AR}, v1, 4, v3
""")
        for t in range(1,8): a(f"v_xor_b32 v{AR+t}, {32*t}, v{AR}")
        a(f"""
v_mul_i32_i24 v{OHC}, -8, v2
v_mul_u32_u24 v{SA}, {RS}, v{WT}
v_and_b32 v1, 1, v{VL}
v_lshlrev_b32 v1, 4, v1
v_mov_b32 v3, 0x3f80
v_lshlrev_b32 v1, v1, v3
""")
        for s in range(2):
            for j in range(4):
                lo=3<<(16*s+2*j); hi=(3<<(16*s+8+2*j))
                a(f"s_mov_b32 vcc_lo, {hex(lo)}\ns_mov_b32 vcc_hi, {hex(hi)}\nv_cndmask_b32 v{ID0+4*s+j}, 0, v1, vcc")
        a(f"""
v_lshrrev_b32 v2, 4, v{VL}              ; a / g
v_lshlrev_b32 v{SB}, 1, v2
v_and_b32 v1, 1, v2
v_xor_b32 v1, v1, v{WT}
v_lshlrev_b32 v1, 4, v1
""")
        for i in range(8): a(f"v_xor_b32 v{IDX+2*i+1}, {(8*((i>>1)&1)+4*(i>>2)+2*(i&1))*16+3072-1024*(i&3)}, v1")
        a(f"v_xor_b32 v3, v2, v{WT}\nv_lshlrev_b32 v3, 4, v3\nv_lshl_add_u32 v3, v{WT}, 8, v3\nv_add_u32 v{FA}, {AGB}, v3")
        for s in range(1,4): a(f"v_xor_b32 v{FA+s}, {64*s}, v{FA}")
        a(f"""
s_lshl_b32 s{t0}, s{sW4}, 13
s_add_u32 s{t0}, s{t0}, {GBUF}
s_lshr_b32 s{t1}, s{sWV}, 2
s_lshl_b32 s{sOT}, s{sW4}, 1
s_or_b32 s{sOT}, s{sOT}, s{t1}
v_lshrrev_b32 v1, 2, v{WT}
v_lshl_add_u32 v1, v2, 3, v1
v_lshl_add_u32 v{DR}, v1, 6, s{t0}
v_xor_b32 v2, s{t1}, v2
v_and_b32 v2, 1, v2
v_and_b32 v3, 3, v{VL}
v_lshl_add_u32 v{TRU}, v2, 5, v{DR}
v_lshl_add_u32 v{TRU}, v3, 3, v{TRU}
""")
    def tagh():
        a(f"""
s_mul_i32 s{sNON}, s{sNON}, 0x9E3779B1
s_add_u32 s{sNON}, s{sNON}, 0x7F4A7C15
s_lshr_b32 s{t1}, s{sNON}, 15
s_xor_b32 s{sNON}, s{sNON}, s{t1}
""")
    def vyc():
        a(f"""
v_lshrrev_b32 v1, 4, v{VL}
v_and_b32 v1, 2, v1
v_xor_b32 v1, v1, v{VL}
v_and_b32 v1, 3, v1
v_lshlrev_b32 v1, 4, v1
v_lshrrev_b32 v2, 2, v{VL}
v_lshl_or_b32 v{VY}, v2, 8, v1
""")
    def trfrag(dst,addr,off,ks,hs):
        for s in range(4):
            a(f"ds_read_b64_tr_b16 {P2(dst+4*s)}, v{addr} offset:{off+s*ks}\nds_read_b64_tr_b16 {P2(dst+4*s+2)}, v{addr} offset:{off+s*ks+hs}")
    def tru(dst,off): trfrag(dst,TRU,off,2048,256)
    def sdma(sr,moff,loff=0,v=VY,js=range(8)):
        a(f"s_lshl_b32 s{t0}, s{sW4}, 6")
        for j in js:
            a(f"s_add_u32 m0, s{sBUF}, {loff+j*1024}\ns_add_u32 s{t1}, s{t0}, {moff+j*4096}\nbuffer_load_dwordx4 v{v}, {SR4(sr)}, s{t1} offen lds")
    def xfrags(Ts):
        for T in Ts:
            for s in range(4): a(f"ds_read_b128 {P4(XF+16*T+4*s)}, v{FA+s} offset:{T*4096}")
    def ugemm():
        for T in range(4):
            for s in range(4):
                x,y=(WU1+4*s,XF+16*T+4*s) if T<3 else (XF+16*T+4*s,WU1+4*s)
                a(mfma16(UA+4*T,x,y,None if s==0 else UA+4*T))
    def uscale():
        for j in range(7): a(f"v_pk_mul_f32 {P2(UA+2*j)}, {P2(UA+2*j)}, {S2(sL2E)}")
    def w3rd():
        a(f"v_lshlrev_b32 v1, 3, v{VL}")
        for q in range(4): a(f"ds_read_b64 {P2(B3+4*q+2*(q&1))}, v1 offset:{W3L+q*512}")
    F=A3
    def scan(slow):
        a(f"""
v_lshlrev_b32 v1, 2, v{VL}
ds_read_b32 v{F}, v1
v_cmp_gt_u32 vcc, s{sNN}, v{VL}
v_lshlrev_b32 v{F+1}, 8, v{VL}
s_waitcnt lgkmcnt(0)
v_sub_u32 v{QA}, v{F}, v{F+1}
""")
        if slow:
            a(f"""
s_movk_i32 s{t1}, 256
v_subrev_u32 v{QA}, s{sHEAD}, v{QA}
v_cmp_lt_i32 {S2(t2)}, s{t1}, v{QA}
v_med3_i32 v{QA}, v{QA}, 0, s{t1}
v_add_u32 v{F}, v{F+1}, v{QA}
""")
        a(f"""
v_add_u32 v3, 12, v{QA}
v_and_b32 v3, -16, v3
v_max_u32 v3, 80, v3
v_cndmask_b32 v3, 0, v3, vcc
v_mov_b32 v2, v3
""")
        dpp_scan(a,"v_add_u32",[2])
        a(f"""
v_readlane_b32 s{t0}, v2, 63
v_sub_u32 v2, v2, v3
""")
    def fill(lab,slow,nw):
        a(f"""
s_lshl_b32 s{t1}, s{sWV}, 4
v_add_u32 v{QA+1}, s{t1}, v2
v_lshrrev_b32 v{QA+1}, 3, v{QA+1}       ; 2*(G0+w)
v_add_u32 v{F+1}, s{t1}, v{F+1}         ; 256n+16w
v_subrev_u32 v{QA+2}, s{t1}, v3         ; g16-16w
""")
        if not slow: a(f"v_add_u32 v{QA+3}, v{QA+1}, v{SA}\nv_mov_b32 v{F+3}, 0x3f80\nds_write_b32 v1, v2 offset:{BT}")
        for k in range(16//nw):
            a(f"v_cmpx_lt_i32 vcc, {16*nw*k}, v{QA+2}\nds_write_b16 v{QA+1}, v{F+1+(k&1)} offset:{GL+2*nw*k}")
            if k+1<16//nw: a(f"v_add_u32 v{F+1+((k+1)&1)}, {16*nw}, v{F+1+(k&1)}")
            if not slow: a(f"ds_write_b16 v{QA+3}, v{F+3} offset:{STB+2*nw*k}")
        a(f"""
s_mov_b64 exec, -1
s_lshl_b32 s{t1}, s{sWV}, 2
v_sub_u32 v{QA+2}, v3, v{QA}
v_add_u32 v{F}, s{t1}, v{F}
v_subrev_u32 v{QA+2}, s{t1}, v{QA+2}    ; pad4 - 4w
s_mov_b32 s{t1}, {EB}
v_mov_b32 v{QA+4}, 0
v_mov_b32 v{QA+5}, 0
v_mov_b32 v{QA+6}, {hex(NULLW2)}
v_lshl_add_u32 v{QA+7}, v{F}, 1, s{t1}
""")
        for k in range(-(-20//nw)):
            a(f"v_cmpx_lt_i32 vcc, {4*nw*k}, v{QA+2}")
            if k==1: a(f"s_cbranch_vccz {lab}p")
            a(f"ds_write_b32 v{F}, v{QA+6} offset:{WB+4*nw*k}\nds_write_b64 v{QA+7}, {P2(QA+4)} offset:{8*nw*k}")
        a(f"""
{lab}p:
s_mov_b64 exec, -1
s_cmp_eq_u32 s{sWV}, 3
s_cbranch_scc0 {lab}q
s_lshr_b32 s{t1}, s{t0}, 3
v_lshl_add_u32 v{QA+1}, v{VL}, 1, s{t1}
v_mov_b32 v{QA+2}, {NULLG}
v_add_u32 v{QA+3}, {NULLG}, v1
v_lshlrev_b32 v{QA+7}, 1, v1
v_add_u32 v{QA+7}, {EB+2*NULLG}, v{QA+7}
s_mov_b64 exec, 0xff
ds_write_b16 v{QA+1}, v{QA+2} offset:{GL}
s_mov_b64 exec, 15
ds_write_b32 v{QA+3}, v{QA+6} offset:{WB}
ds_write_b64 v{QA+7}, {P2(QA+4)}
s_mov_b64 exec, -1
{lab}q:
""")
    def expand(lab):
        a(f"""
v_subrev_u32 v1, s{sLO}, v{TO}
v_add_u32 v2, v1, v{TC}
v_med3_i32 v1, v1, 0, s{t3}
v_med3_i32 v2, v2, 0, s{t3}
v_sub_u32 v2, v2, v1
v_lshl_add_u32 v1, v1, 2, s{sLB}
{lab}:
""")
        for j in range(16):
            a(f"v_cmpx_lt_i32 vcc, {j}, v2\nds_write_b32 v1, v{TD} offset:{4*j}")
        a(f"""
v_add_u32 v2, -16, v2
v_add_u32 v1, 64, v1
v_cmp_lt_i32 vcc, 0, v2
s_cmp_lg_u64 vcc, 0
s_cbranch_scc1 {lab}
s_mov_b64 exec, -1
""")
    def rl1(i): return f"buffer_load_dwordx4 {P4(RC+4*i)}, v{RK+i}, {SR4(sR)}, {'0' if i<4 else 's'+str(sQ)} offen offset:{1024*(i&3)}{SC}"
    def reclist(ns):
        a(f"v_lshl_add_u32 v1, v{VL}, 2, s{sLB}")
        for i in reversed(range(ns)): a(f"ds_read_b32 v{RK+i}, v1 offset:{256*i}")
        a(f"v_add_u32 v2, s{sLO}, v{VL}\nv_lshlrev_b32 v2, 4, v2\ns_movk_i32 s{sQ}, 4096")
        for i in range(ns):
            a(f"v_cmp_gt_i32 {S2(sM+2*i)}, s{t1}, v{VL}\ns_sub_u32 s{t1}, s{t1}, 64")
        a("s_waitcnt lgkmcnt(0)")
        for i in range(ns): a(f"v_add_u32 v{RK+i}, v{RK+i}, v2")
    def recload(ns,lab):
        for i in reversed(range(ns)):
            a(f"s_mov_b64 exec, {S2(sM+2*i)}\ns_cbranch_execz {lab}{i}\n{rl1(i)}\n{lab}{i}:")
        a("s_mov_b64 exec, -1")
    def hist(ns,lab,extra,scat):
        a(f"v_mov_b32 v1, 4\ns_mov_b32 s{sW8}, {EB}\n{lab}p:")
        def gm(i): return S2(t0+2*(i&1))
        def sc(i,n):
            a(f"""
s_mov_b64 exec, {gm(i)}
s_waitcnt lgkmcnt({n})
v_min_u32 v{RK+i}, {NULLG-4}, v{RK+i}
v_lshl_add_u32 v{RC+4*i+3}, v{RK+i}, 1, s{sW8}
ds_write_b32 v{RK+i}, v{RC+4*i+2} offset:{WB}
ds_write_b64 v{RC+4*i+3}, {P2(RC+4*i)}
""")
        for i in reversed(range(ns)):
            a(f"""
s_mov_b64 exec, {S2(sM+2*i)}
s_waitcnt vmcnt({i+extra})
v_cmpx_eq_u32 {gm(i)}, s{sNON}, v{RC+4*i+3}
v_lshrrev_b32 v{RC+4*i+3}, 17, v{RC+4*i+2}
ds_add_rtn_u32 v{RK+i}, v{RC+4*i+3}, v1
s_andn2_b64 {S2(sM+2*i)}, {S2(sM+2*i)}, {gm(i)}
""")
            a(f"s_mov_b64 vcc, {S2(sM+2*i)}" if i==ns-1 else f"s_or_b64 vcc, vcc, {S2(sM+2*i)}")
            if scat and i==0: a(f"s_cselect_b64 exec, 0, 1\nds_add_u32 v{VZ}, v1 offset:{mH}")
            if scat and i<ns-1: sc(i+1,(1 if i==ns-2 else 3)+(1 if i==0 else 0))
        if scat: sc(0,3)
        a(f"s_cbranch_vccnz {lab}r\n{lab}d:\ns_mov_b64 exec, -1")
    def hist_retry(ns,lab,scat):
        a(f"{lab}r:\ns_sub_u32 s{sBUD}, s{sBUD}, 1\ns_cbranch_scc1 {lab}x")
        recload(ns,lab+"l")
        a(f"s_waitcnt vmcnt(0)\ns_branch {lab}p\n{lab}x:\ns_mov_b32 s{sBUD}, 0")
        if scat: a(f"s_mov_b64 exec, 1\nds_add_u32 v{VZ}, v1 offset:{mH}")
        a(f"s_branch {lab}d")
    def qfull(lab,mid):
        H=QA+4; MX=QA+1
        a(f"v_xor_b32 v{TC}, 32, v{TRU}")
        trfrag(WF,TC,0,2048,256)
        a(f"""
s_lshr_b32 s{t0}, s{sW4}, 1
s_lshl_b32 s{t0}, s{t0}, 9
s_and_b32 s{t1}, s{sW4}, 1
s_lshl_b32 s{t1}, s{t1}, 3
s_add_u32 s{t0}, s{t0}, s{t1}
s_add_u32 s{t0}, s{t0}, {Q2}
v_lshl_add_u32 v120, v{SB}, 10, s{t0}
v_lshl_add_u32 v120, v{WT}, 4, v120
v_add_u32 v121, 256, v120
s_waitcnt lgkmcnt(0)
""")
        tru(WF+16,0)
        def cv(i,T,pk):
            c=GA+16*i+4*T
            L=[]
            if pk: L+=[f"v_pk_mul_f32 {P2(c)}, {P2(c)}, {S2(sL2E)}",f"v_pk_mul_f32 {P2(c+2)}, {P2(c+2)}, {S2(sL2E)}"]
            else: L+=[f"v_mul_f32 v{c+k}, s{sL2E}, v{c+k}" for k in range(4)]
            L+=[f"v_and_b32 v{H+k}, 0xffff0000, v{c+k}" for k in range(4)]
            L+=[f"v_maximum3_f32 v{MX}, {'0' if T==0 and i==0 else 'v'+str(MX)}, abs(v{c}), abs(v{c+1})",f"v_maximum3_f32 v{MX}, v{MX}, abs(v{c+2}), abs(v{c+3})"]
            if pk: L+=[f"v_pk_add_f32 {P2(c)}, {P2(c)}, {P2(H)} neg_lo:[0,1] neg_hi:[0,1]",f"v_pk_add_f32 {P2(c+2)}, {P2(c+2)}, {P2(H+2)} neg_lo:[0,1] neg_hi:[0,1]"]
            else: L+=[f"v_sub_f32 v{c+k}, v{c+k}, v{H+k}" for k in range(4)]
            L+=[f"v_cvt_pk_bf16_f32 v{c+k}, v{c+k}, v{H+k}" for k in range(4)]
            return L
        for T in range(4):
            for s in range(4): a(mfma16(GA+4*T,XF+16*T+4*s,WF+4*s,None if s==0 else GA+4*T))
        a("s_waitcnt lgkmcnt(0)")
        fl=cv(0,0,0)+cv(0,1,0)
        for T in range(4):
            for s in range(4):
                a(mfma16(GA+16+4*T,XF+16*T+4*s,WF+16+4*s,None if s==0 else GA+16+4*T))
                for _ in range(2): a(fl.pop(0))
        if PFI==0: mid()
        for x in fl+cv(0,2,1)+cv(1,0,1)+cv(1,1,1)+cv(1,2,1): a(x)
        if PFI==1: mid()
        gwait(lab+"w",mSL,4,VZ,1)
        for i in range(2):
            for T in range(3):
                c=GA+16*i+4*T
                a(f"ds_write2st64_b64 v{120+i}, {P2(c)}, {P2(c+2)} offset0:{16*T} offset1:{16*T+2}")
        a("s_mov_b64 exec, 0xffff")
        for i in range(2):
            c=GA+16*i+12
            a(f"""
v_mul_f32 v{c}, s{sL2E}, v{c}
v_and_b32 v{H}, 0xffff0000, v{c}
v_maximum3_f32 v{MX}, v{MX}, abs(v{c}), abs(v{c})
v_sub_f32 v{c}, v{c}, v{H}
v_cvt_pk_bf16_f32 v{c}, v{c}, v{H}
ds_write2st64_b64 v{120+i}, {P2(c)}, {P2(c+2)} offset0:48 offset1:50
""")
        a(f"""
s_mov_b64 exec, -1
v_cmp_nge_f32 vcc, 0x40e80000, v{MX}
s_cbranch_vccz {lab}q
ds_write_b32 v{VZ}, v{FA} offset:{mSLOW}
{lab}q:
""")
        pt('qd')
    def ranges():
        a(f"""
s_lshr_b32 s{sCNT}, s{sNT}, 3
s_mul_i32 s{sT0}, s{sCNT}, s{sWV}
s_and_b32 s{t2}, s{sNT}, 7
s_min_u32 s{t3}, s{t2}, s{sWV}
s_add_u32 s{sT0}, s{sT0}, s{t3}
s_cmp_lt_u32 s{sWV}, s{t2}
s_addc_u32 s{sCNT}, s{sCNT}, 0
s_lshl_b32 s{t0}, s{sT0}, 7
s_lshl_b32 s{t2}, s{sT0}, 4
v_add_u32 v{SB}, s{t2}, v{SB}
v_add_u32 v{RB}, s{t2}, v{RB}
v_sub_u32 v{SA}, v{SA}, v{OHC}
v_add_u32 v{SA}, s{t2}, v{SA}
s_add_u32 s{t3}, s{sT0}, s{sCNT}
v_min_u32 v1, 8, v{VL}
v_sub_u32 v1, s{t3}, v1
v_lshlrev_b32 v1, 4, v1
v_max_i32 v1, 0, v1
""")
    def epi_consts(): pass
    def arrive(off,vt): a(f"v_mov_b32 v{vt}, 1\ns_mov_b64 exec, 1\nds_add_u32 v{VZ}, v{vt} offset:{off}\ns_mov_b64 exec, -1")

    D=28; SRc=36; K=44; R=52; W2=60; RO=80
    sD=40; sS=44; sE=48
    Q16="s_mov_b64 exec, 0xffff"; FULL="s_mov_b64 exec, -1"
    a(f"""
{name}:
s_getpc_b64 {S2(t2)}
s_cmp_ge_u32 s2, 256
s_cbranch_scc1 KF_END
s_load_dwordx16 s[4:19], s[0:1], 0
s_load_dwordx2 s[20:21], s[0:1], 64
v_lshrrev_b32 v1, 6, v0
s_and_b32 s{t0}, s2, 0xf8
v_add_lshl_u32 v2, v1, s{t0}, 7
v_readfirstlane_b32 s{sWV}, v1
v_min_u32 v2, KF_CEND-{name}-8, v2
s_mov_b64 exec, 1
global_load_dword v{QA+15}, v2, {S2(t2)}
s_mov_b64 exec, -1
v_and_b32 v{VL}, 63, v0
v_mov_b32 v{VZ}, 0
v_lshlrev_b32 v113, 4, v{VL}
s_cmp_ge_u32 s{sWV}, 4
s_cbranch_scc0 KF_S
v_lshlrev_b32 v2, 2, v0
v_lshlrev_b32 v3, 8, v{VL}
ds_write_b32 v2, v{VZ} offset:{HIST-1024}
v_lshlrev_b32 v2, 2, v{VL}
ds_write2st64_b32 v2, v3, v{VZ} offset0:0 offset1:1
s_waitcnt lgkmcnt(0)
""")
    stamp(a,0,True); stamp(a,1); pt('st')
    a(f"""
s_lshr_b32 s{t0}, s{t0}, 1
s_add_u32 s{t0}, s{t0}, s{sWV}
s_sub_u32 s{t0}, s{t0}, 4
s_lshl_b32 s{t0}, s{t0}, 9
v_lshl_add_u32 v2, v{VL}, 7, s{t0}
s_mov_b64 exec, 15
global_load_dword v{QA+15}, v2, s[12:13]
global_load_dword v{QA+15}, v2, s[14:15]
s_mov_b64 exec, -1
""")
    if TLB:
        a(f"""
s_lshr_b32 s{t0}, s{t0}, 9
s_mul_i32 s{t1}, s{t0}, {2*RST}
s_add_u32 s{t1}, s{t1}, {F_REC+EP*16}
s_add_u32 s52, s20, s{t1}
s_addc_u32 s53, s21, 0
s_load_dword s44, s[52:53], 0
s_load_dword s45, s[52:53], {RST}
""")
    a(f"""
s_branch KF_B0
KF_S:
s_min_u32 s{t2}, s2, {NPROD-1}
s_mul_i32 s{t2}, s{t2}, {EP*4}
s_mul_i32 s{t3}, s{sWV}, 400
v_add_u32 v108, s{t3}, v{VL}
v_lshlrev_b32 v109, 2, v108
s_mov_b32 s{sD+2}, {E*4}
s_mov_b32 s{sD+3}, 0x00020000
s_waitcnt lgkmcnt(0)
""")
    stamp(a,0,True); stamp(a,1); pt('st')
    a(f"s_mov_b32 s{sD}, s10\ns_and_b32 s{sD+1}, s11, 0xffff")
    def ld7(dst,sr):
        for i in range(7):
            if i==6: a(Q16)
            a(f"buffer_load_dword v{dst+i}, v109, {SR4(sr)}, s{t2} offen offset:{i*256}")
        a(FULL)
    ld7(D,sD)
    srd(a,sS,8,E*4); srd(a,sE,6,E*8)
    ld7(SRc,sS)
    a(f"""
s_lshl_b32 s{sLB}, s{t3}, 3
s_lshl_b32 s{t2}, s{t2}, 1
s_add_u32 s{t2}, s{t2}, s{sLB}
s_add_u32 m0, s{sLB}, {ERAW}
s_add_u32 s{sLB}, s{sLB}, {S1}
""")
    for j in range(4):
        if j==3: a("s_mov_b64 exec, 0xff")
        a(f"buffer_load_dwordx4 v113, {SR4(sE)}, s{t2} offen offset:{1024*j} lds")
    a(FULL)
    a(f"""
KF_B0:
s_load_dword s{sNON}, s[20:21], 0
s_and_b32 s{sK}, s2, 7
s_lshl_b32 s{sK}, s{sK}, 5
s_lshr_b32 s{t0}, s2, 3
s_or_b32 s{sK}, s{sK}, s{t0}
s_and_b32 s{sW4}, s{sWV}, 3
s_lshl_b32 s{sW4K}, s{sW4}, 10
s_lshl_b32 s{sBUF}, s{sWV}, 13
s_add_u32 s{sBUF}, s{sBUF}, {GBUF}
s_barrier
""")
    consts()
    a(f"""
s_cmp_ge_u32 s{sWV}, 4
s_cbranch_scc1 KF_T
v_mov_b32 v111, 8
v_lshlrev_b32 v112, 3, v108
v_lshlrev_b32 v110, 4, v108
""")
    for i in range(7): a(f"v_add_u32 v{W2+1+2*i}, {i*512}, v112")
    a(f"s_cmp_ge_u32 s2, {NPROD}\ns_cbranch_scc1 KS_d\ns_waitcnt vmcnt(11)")
    pt('dst')
    for i in range(7):
        if i==6: a(Q16)
        a(f"v_lshlrev_b32_sdwa v{K+i}, 2, v{D+i} dst_sel:DWORD dst_unused:UNUSED_PAD src0_sel:DWORD src1_sel:BYTE_0\nds_add_rtn_u32 v{R+i}, v{K+i}, v111 offset:{HIST}")
    a(FULL+"\nKS_d:")
    gsync('b1',"KS_y1",mS,4,VZ,2)
    a(f"ds_read_b128 v[116:119], v113 offset:{HIST}")
    tagh()
    for i in range(7): a(f"v_lshrrev_b32 v{D+i}, 8, v{D+i}")
    a(f"""
v_mov_b32 v1, s{sNON}
s_waitcnt lgkmcnt(0)
v_add_u32 v2, v116, v117
v_add3_u32 v2, v2, v118, v119
v_mov_b32 v3, v2
""")
    dpp_scan(a,"v_add_u32",[3])
    a(f"""
v_sub_u32 v120, v3, v2
v_add_u32 v121, v120, v116
v_add_u32 v122, v121, v117
v_add_u32 v123, v122, v118
ds_write_b128 v113, v[120:123] offset:{HIST+1024}
""")
    for i in range(7):
        if i==6: a(Q16)
        a(f"ds_read_b32 v{K+i}, v{K+i} offset:{HIST+1024}")
    a(FULL)
    def tpub():
        for j in range(4): a(f"v_lshlrev_b32 v2, 1, v{120+j}\nv_lshl_or_b32 v{QA+2*j}, v{116+j}, 13, v2\nv_mov_b32 v{QA+2*j+1}, v1")
        a(f"""
s_lshl_b32 s{t2}, s2, 11
s_add_u32 s{t2}, s{t2}, {F_TBL}
s_lshl_b32 s{t3}, s{sWV}, 4
s_lshl_b64 exec, 0xffff, s{t3}
buffer_store_dwordx4 {P4(QA)}, v113, {SR4(sR)}, s{t2} offen{SC}
buffer_store_dwordx4 {P4(QA+4)}, v113, {SR4(sR)}, s{t2} offen offset:1024{SC}
s_mov_b64 exec, -1
""")
    if TE==0: tpub()
    a(f"s_cmp_ge_u32 s2, {NPROD}\ns_cbranch_scc1 KS_e\ns_waitcnt vmcnt({6 if TE==0 else 4})")
    if X&64:
        for i in range(7): a(f"v_and_b32 v{SRc+i}, 0x1ff, v{SRc+i}")
    for i in range(7): a(f"v_lshl_or_b32 v{W2+2*i}, v{D+i}, 19, v{SRc+i}")
    a(f"s_waitcnt lgkmcnt(0)")
    for i in range(7):
        if i==6: a(Q16)
        a(f"v_add_u32 v{K+i}, v{K+i}, v{R+i}\nds_write_b64 v{K+i}, {P2(W2+2*i)} offset:{S1}")
    a(FULL+"\nKS_e:")
    pt('sc1')
    if TE==1: tpub()
    a(f"""
v_lshlrev_b32 v114, 11, v0
s_lshr_b32 s{sLO}, s{sK}, 2
s_lshl_b32 s{sLO}, s{sLO}, 4
s_and_b32 s{t0}, s{sK}, 1
s_lshl_b32 s{t0}, s{t0}, 3
s_add_u32 s{sLO}, s{sLO}, s{t0}
s_and_b32 s{t0}, s{sK}, 2
s_lshl_b32 s{t0}, s{t0}, 9
s_add_u32 s{sLO}, s{sLO}, s{t0}
s_add_u32 s{sLO}, s{sLO}, {F_TBL}
v_cmp_gt_u32 vcc, {NPROD}, v0
v_mov_b32 v{TC}, 0
s_mul_i32 s{t0}, s2, {RST}
s_add_u32 s{t0}, s{t0}, {F_REC}
s_add_u32 s{t2}, s{t0}, 4096
v_mul_u32_u24 v115, {RST}, v0
v_add_u32 v115, {F_REC}, v115
""")
    gsync('bS',"KS_y2",mS,8,VZ,2,"s_waitcnt vmcnt(2)")
    tl=f"s_mov_b64 exec, vcc\nbuffer_load_dwordx2 {P2(TC)}, v114, {SR4(sR)}, s{sLO} offen{SC}\ns_mov_b64 exec, -1"
    a(f"""
s_cmp_ge_u32 s2, {NPROD}
s_cbranch_scc0 KS_h0
""")
    gwait("KS_h1",mGP,4,VZ,2)
    a(f"""
{tl}
v_mov_b32 v1, 0
s_branch KS_j
KS_h0:
""")
    order=[6,0,1,2,3,4,5]
    for i in order:
        if i==6: a(Q16)
        a(f"ds_read_b64 {P2(RO+2+4*i)}, v112 offset:{S1+i*512}")
        if i==6: a(FULL)
    for i in order:
        if i==6: a(Q16)
        a(f"s_waitcnt lgkmcnt(6)\nds_read_b64 {P2(RO+4*i)}, v{RO+3+4*i} offset:{ERAW}")
        if i==6: a(FULL)
    gwait("KS_ww",mW,4,VZ,2)
    for k,i in enumerate(order):
        if i==6: a(Q16)
        a(f"v_mov_b32 v{RO+3+4*i}, v1\nbuffer_store_dwordx4 {P4(RO+4*i)}, v110, {SR4(sR)}, s{t0 if i<4 else t2} offen offset:{1024*(i&3)}{SC}")
        if i==6: a(FULL)
    a(tl)
    pt('out')
    a(f"v_pk_maximum3_f16 v1, v{RO}, v{RO+1}, v{RO+1}\nv_pk_minimum3_f16 v2, v{RO}, v{RO+1}, v{RO+1}")
    for i in range(1,7):
        if i==6: a(Q16)
        a(f"v_pk_maximum3_f16 v1, v1, v{RO+4*i}, v{RO+4*i+1}\nv_pk_minimum3_f16 v2, v2, v{RO+4*i}, v{RO+4*i+1}")
    a(FULL)
    absmax_fin(a,1,2,3)
    a("KS_j:")
    gwait("KS_xw",mGX,4,VZ,2)
    a(f"ds_read_b32 v2, v{VZ} offset:{mC3}\ns_mov_b32 s{t1}, 0x41680000")
    xfrags([0,1,2])
    a(f"""
s_waitcnt lgkmcnt(4)
v_mul_f32 v1, v1, v2
v_cmp_nge_f32 {S2(t2)}, s{t1}, v1       ; !(14.5 >= e*c3)
""")
    xfrags([3]); w3rd()
    a(f"""
s_cmp_lg_u64 {S2(t2)}, 0
s_cselect_b32 s{t1}, 0x101, 1
v_mov_b32 v1, s{t1}
s_mov_b64 exec, 1
ds_add_u32 v{VZ}, v1 offset:{mE}
s_waitcnt vmcnt(0)
s_mov_b64 exec, vcc
KT_f:
v_cmp_ne_u32 vcc, s{sNON}, v{TC+1}
s_cbranch_vccz KT_g
s_mov_b64 exec, vcc
s_sub_u32 s{sBUD}, s{sBUD}, 1
s_cbranch_scc1 KT_f2
buffer_load_dwordx2 {P2(TC)}, v114, {SR4(sR)}, s{sLO} offen{SC}
s_waitcnt vmcnt(0)
s_branch KT_f
KT_f2:
s_mov_b32 s{sBUD}, 0
v_mov_b32 v{TC}, 0
KT_g:
s_mov_b64 exec, -1
""")
    pt('tp'); ret('rt1')
    a(f"""
v_lshrrev_b32 v{TO}, 16, v{TC}
v_add_u32_sdwa v{TD}, v115, v{TC} dst_sel:DWORD dst_unused:UNUSED_PAD src0_sel:DWORD src1_sel:WORD_0
v_mov_b32 v{TC}, v{TO}
""")
    dpp_scan(a,"v_add_u32",[TO])
    a(f"""
v_readlane_b32 s{sTOT}, v{TO}, 63
v_sub_u32 v{TO}, v{TO}, v{TC}
s_mov_b32 s{sLO}, 0
s_movk_i32 s{t3}, 512
v_lshlrev_b32 v1, 4, v{TO}
v_sub_u32 v{TD}, v{TD}, v1
""")
    expand("KT_x")
    a(f"s_mov_b32 s{t1}, s{sTOT}")
    reclist(8)
    arrive(mSL,1)
    pt('exp')
    gwait("KS_rw",mPD,4,VZ,1)
    recload(8,"KT_l")
    pt('rl')
    def pfp():
        a(f"""
s_lshr_b32 s{t1}, s2, 3
s_mul_i32 s{t1}, s{t1}, 391
v_bfe_u32 v2, v0, 1, 7
v_add_u32 v2, s{t1}, v2
v_and_b32 v3, 1, v0
v_lshlrev_b32 v3, 7, v3
""")
        if PFH: a("s_mov_b32 exec_hi, 0")
        a(f"buffer_load_dword v{QA+15}, v[2:3], {SR4(sP)}, 0 idxen offen offset:3072{SC}\ns_mov_b64 exec, -1")
    if PFP==1: pfp()
    gwait("KS_w2",mPI,4,VZ,1)
    tru(WU1,32768)
    a("s_waitcnt lgkmcnt(0)")
    ugemm()
    pt('ud')
    hist(8,"KT_h",1 if PFP==1 else 0,True)
    if PFP==3: pfp()
    pt('hs'); ret('rt2')
    gwait("KS_b2",mH,16,VZ,1)
    pt('b2')
    scan(False)
    a(f"""
v_cmp_lt_u32 vcc, 0x100, v{QA}
s_add_u32 s{sNT}, s{t0}, 127
s_lshr_b32 s{sNT}, s{sNT}, 7
s_cmp_gt_u32 s{sNT}, {CAPT}
s_cbranch_scc1 KT_j
s_cbranch_vccnz KT_j
""")
    fill("KFz",False,4)
    a(f"v_mov_b32 v1, s{sNT}\nds_write_b32 v{VZ}, v1 offset:{mNT}")
    pt('fil')
    a(f"""
s_cmp_gt_u32 s{sTOT}, 512
s_cbranch_scc0 KT_k
KT_j:
ds_write_b32 v{VZ}, v{FA} offset:{mSLOW}
KT_k:
s_mov_b32 s{sWU}, -1
""")
    ranges()
    srd(a,sA,14,256*256)
    if PRIO: a("s_setprio 3")
    bar('b3')
    a("s_branch KF_J")
    a(f"""
KF_T:
v_lshrrev_b32 v2, 3, v{VL}
v_and_b32 v2, 2, v2
v_xor_b32 v2, v2, v3
v_lshl_add_u32 v{TD}, v2, 4, v{DR}
v_and_b32 v108, 255, v0
v_mov_b32 v32, 0
v_mov_b32 v33, 0
v_mov_b32 v34, 0
v_mov_b32 v35, 0
v_lshlrev_b32 v110, 4, v108
v_lshrrev_b32 v1, 4, v108
v_xor_b32 v37, v1, v0
v_and_b32 v37, 15, v37
v_lshlrev_b32 v37, 4, v37
v_lshl_add_u32 v36, v1, 8, s{sK}
""")
    sG=40
    srd(a,sX,4,N,stride=256)
    def xld():
        for j in range(4):
            if j==3: a(f"s_cmp_eq_u32 s{sWV}, 4\ns_cbranch_scc0 KT_c")
            a(f"s_add_u32 m0, s{sW4K}, {AGB+j*4096}\ns_nop 0\nbuffer_load_dwordx4 v[36:37], {SR4(sX)}, 0 idxen offen lds\nv_add_u32 v36, 4096, v36")
        a("KT_c:")
    def warm():
        a(f"""
v_and_b32 v1, 31, v{VL}
v_lshlrev_b32 v1, 1, v1
s_lshl_b32 s{t0}, s{sW4}, 6
s_add_u32 s{t0}, s{t0}, 65536
""")
        for k in range(4): a(f"buffer_load_ushort v{124+k}, v1, {SR4(sA)}, s{t0} offen offset:{k*256}")
    def zer():
        a(f"v_cmp_le_u32 vcc, 32, v108\ns_mov_b64 exec, vcc\nds_write_b128 v110, v[32:35]\ns_mov_b64 exec, -1")
        for j in range(1,4): a(f"ds_write_b128 v110, v[32:35] offset:{j*4096}")
        a(f"""
s_cmp_eq_u32 s{sWV}, 4
s_cbranch_scc0 KT_b
ds_write_b128 v110, v[32:35] offset:16384
KT_b:
""")
    srd(a,sA,12,260*256); warm(); vyc()
    if XORD==1: xld()
    zer()
    a(f"""
s_lshl_b32 s{t0}, s{sW4}, 2
v_lshrrev_b32 v2, 4, v{VL}
v_or_b32 v1, s{t0}, v2                  ; 4u+g
v_xor_b32 v3, v1, v{WT}
v_lshlrev_b32 v3, 4, v3
v_lshl_add_u32 v116, v{WT}, 8, v3
v_add_u32 v116, {PSC}, v116
v_add_u32 v117, {PSC}, v110
v_lshl_add_u32 v118, v1, 16, v3
""")
    if XORD==2:
        gwait("KG_x",mS,4,VZ,1); xld()
    sdma(sA,0)
    sdma(sA,32768,-32768)
    arrive(mW,1)
    pt('w1i')
    def w3m():
        w=[124,125,126,127]; u=QA
        for k in range(4): a(f"v_lshlrev_b32 v{w[k]}, 16, v{w[k]}\nv_mul_f32 v{w[k]}, s{sL2E}, v{w[k]}")
        a(f"""
v_cvt_pk_bf16_f32 v{u}, v124, v125
v_cvt_pk_bf16_f32 v{u+1}, v126, v127
v_lshlrev_b32 v{u+2}, 16, v{u}
v_and_b32 v{u+3}, 0xffff0000, v{u}
v_lshlrev_b32 v{u+4}, 16, v{u+1}
v_and_b32 v{u+5}, 0xffff0000, v{u+1}
v_add_f32 v{u+6}, abs(v124), abs(v125)
v_sub_f32 v{u+2}, v124, v{u+2}
v_sub_f32 v{u+3}, v125, v{u+3}
v_sub_f32 v{u+4}, v126, v{u+4}
v_sub_f32 v{u+5}, v127, v{u+5}
v_add_f32 v{u+7}, abs(v126), abs(v127)
s_mov_b32 exec_lo, 0
v_cvt_pk_bf16_f32 v{u}, v{u+2}, v{u+3}
v_cvt_pk_bf16_f32 v{u+1}, v{u+4}, v{u+5}
s_mov_b32 exec_lo, -1
v_add_f32 v{u+6}, v{u+6}, v{u+7}
v_lshlrev_b32 v1, 3, v108
v_and_b32 v{u+6}, 0x7fffffff, v{u+6}
ds_write_b64 v1, {P2(u)} offset:{W3L}
""")
        dpp_scan(a,"v_max_u32",[u+6])
        a(f"""
s_mov_b32 exec_lo, 0
s_brev_b32 exec_hi, 1
ds_max_u32 v{VZ}, v{u+6} offset:{mC3}
s_mov_b64 exec, -1
""")
    e2=8
    a(f"s_waitcnt vmcnt({11+e2})"); w3m()
    tagh()
    a(f"v_mov_b32 v1, {hex(ONE2)}\nds_write2_b32 v{VZ}, v1, v1 offset0:{OH//4} offset1:{OH//4+3}")
    gsync('bX',"KG_y1",mGX,4,VZ,2,f"s_waitcnt vmcnt({8+e2})")
    if GP_: a(f"s_setprio {GP_}")
    xfrags([0])
    a(f"s_waitcnt vmcnt({e2})")
    pt('xl')
    trfrag(WF,TD,32768,2048,256)
    a("s_waitcnt lgkmcnt(7)")
    trfrag(WF+16,TD,32768+8,2048,256)
    def pm(T,i):
        for s in range(4): a(mfma16(GA+8*T+4*i,WF+16*i+4*s,XF+16*T+4*s,None if s==0 else GA+8*T+4*i))
    def pcv(T):
        c=GA+8*T
        L=[f"v_mul_f32 v{c+j}, s{sL2E}, v{c+j}" for j in range(8)]
        L+=[f"v_cvt_pk_bf16_f32 v{c+j}, v{c+2*j}, v{c+2*j+1}" for j in range(4)]
        L+=[f"ds_write_b128 v116, {P4(c)} offset:{T*4096}"]
        return L
    def pmi(T,fillers):
        for i in range(2):
            for s in range(4):
                a(mfma16(GA+8*T+4*i,WF+16*i+4*s,XF+16*T+4*s,None if s==0 else GA+8*T+4*i))
                for _ in range(2):
                    if fillers: a(fillers.pop(0))
    a("s_waitcnt lgkmcnt(8)"); xfrags([1]); pm(0,0)
    a("s_waitcnt lgkmcnt(4)"); xfrags([2,3]); pm(0,1)
    a("s_waitcnt lgkmcnt(8)"); pm(1,0); pm(1,1)
    a("s_waitcnt lgkmcnt(0)"); pmi(2,pcv(0)); pmi(3,pcv(1))
    a(f"s_lshl_b32 s{t2}, s{sK}, 8\ns_nop 2")
    for T in (2,3):
        for x in pcv(T): a(x)
    gsync('pg',"KG_y2",mGP,4,VZ,2)
    for T in range(4): a(f"ds_read_b128 {P4(PO+4*T)}, v117 offset:{T*4096}")
    a("s_waitcnt vmcnt(0)")
    for T in range(3):
        a(f"s_add_u32 s{t1}, s{t2}, {F_P+T*16*65536}\ns_waitcnt lgkmcnt({3-T})")
        a(f"buffer_store_dwordx4 {P4(PO+4*T)}, v118, {SR4(sR)}, s{t1} offen{SC}")
    a(f"""
s_cmp_eq_u32 s{sWV}, 4
s_cbranch_scc0 KG_p
s_add_u32 s{t1}, s{t2}, {F_P+3*16*65536}
s_waitcnt lgkmcnt(0)
s_mov_b64 exec, 0xffff
buffer_store_dwordx4 {P4(PO+12)}, v118, {SR4(sR)}, s{t1} offen{SC}
s_mov_b64 exec, -1
KG_p:
""")
    pt('pst')
    if GP_: a("s_setprio 0")
    srd(a,sA,14,256*256)
    w3rd()
    for T in range(4):
        c=GA+8*T
        if T==3: a("s_mov_b32 exec_lo, 0x10001\ns_mov_b32 exec_hi, 0x10001")
        if T==0: a(f"v_pk_maximum3_f16 v114, v{c}, v{c+1}, v{c+2}\nv_pk_minimum3_f16 v115, v{c}, v{c+1}, v{c+2}\nv_pk_maximum3_f16 v114, v114, v{c+3}, v{c+3}\nv_pk_minimum3_f16 v115, v115, v{c+3}, v{c+3}")
        else: a(f"v_pk_maximum3_f16 v114, v114, v{c}, v{c+1}\nv_pk_minimum3_f16 v115, v115, v{c}, v{c+1}\nv_pk_maximum3_f16 v114, v114, v{c+2}, v{c+3}\nv_pk_minimum3_f16 v115, v115, v{c+2}, v{c+3}")
    a("s_mov_b64 exec, -1")
    absmax_fin(a,114,115,2)
    a(f"""
v_cmp_lt_u32 vcc, 0x40e80000, v114
v_mov_b32 v{TD}, v{VY}
s_cmp_lg_u64 vcc, 0
s_cselect_b32 s{sFLAG}, 0x101, 1
""")
    def pflag(n):
        a(f"""
s_lshl_b32 s{t2}, s2, 4
s_add_u32 s{t2}, s{t2}, {F_FLG}
v_mov_b32 v1, s{sFLAG}
s_waitcnt vmcnt({n})
s_mov_b64 exec, 1
ds_add_rtn_u32 v1, v{VZ}, v1 offset:{mPD}
s_waitcnt lgkmcnt(0)
v_readfirstlane_b32 s{t1}, v1
s_add_u32 s{t1}, s{t1}, s{sFLAG}
s_and_b32 s{t0}, s{t1}, 255
s_cmp_eq_u32 s{t0}, 4
s_cbranch_scc0 KG_f
KG_e:
ds_read_b32 v1, v{VZ} offset:{mE}
s_waitcnt lgkmcnt(0)
v_readfirstlane_b32 s{t0}, v1
s_and_b32 s{t3}, s{t0}, 255
s_cmp_lt_u32 s{t3}, 4
s_cbranch_scc1 KG_e
s_or_b32 s{t1}, s{t1}, s{t0}
s_cmp_gt_u32 s{t1}, 255
s_cselect_b32 s{t0}, 2, 0
s_xor_b32 s{t0}, s{sNON}, s{t0}
v_mov_b32 v1, s{t0}
buffer_store_dword v1, v{VZ}, {SR4(sR)}, s{t2} offen{SC}
s_waitcnt vmcnt(1)
s_branch KG_f2
KG_f:
s_waitcnt vmcnt(0)
KG_f2:
s_mov_b64 exec, -1
""")
        pt('pfl')
    def mid():
        sdma(sA,0); pflag(8); arrive(mPI,1)
    qfull("KGq",mid)
    tru(WU1,32768)
    a("s_waitcnt lgkmcnt(0)")
    ugemm()
    if FLP==1: gwait("KG_b2",mH,16,VZ,1)
    a(f"""
s_mov_b32 s{sLO}, {F_FLG}
buffer_load_dword v116, v110, {SR4(sR)}, s{sLO} offen{SC}
""")
    if PFP==2: pfp()
    a(f"""
s_mov_b32 s{sWU}, 1
s_or_b32 s{t1}, s{sNON}, 2
s_waitcnt vmcnt({1 if PFP==2 else 0})
KS_m:
v_or_b32 v2, 2, v116
v_cmp_ne_u32 vcc, s{t1}, v2
s_cbranch_vccz KS_n
s_sub_u32 s{sBUD}, s{sBUD}, 1
s_cbranch_scc1 KS_n
s_sleep {FSL}
s_mov_b64 exec, vcc
buffer_load_dword v116, v110, {SR4(sR)}, s{sLO} offen{SC}
s_mov_b64 exec, -1
s_waitcnt vmcnt(0)
s_branch KS_m
KS_n:
v_cmp_ne_u32 vcc, s{sNON}, v116
s_cbranch_vccz KS_o
ds_write_b32 v{VZ}, v{FA} offset:{mSLOW}
KS_o:
""")
    pt('flg')
    if PRIO: a("s_setprio 3")
    bar('b3')
    a(f"ds_read_b32 v1, v{VZ} offset:{mNT}\ns_waitcnt lgkmcnt(0)\nv_readfirstlane_b32 s{sNT}, v1")
    ranges()
    a("KF_J:")
    def rd_ga(off): a(f"ds_read_u16 v{GA0}, v{SB} offset:{GL+off}\nds_read_u16 v{GA0+1}, v{SB} offset:{GL+off+8}")
    def rd_gg(off): a(f"ds_read_u16 v{YA}, v{RB} offset:{GL+off}")
    ya=f"v_lshl_add_u32 v{EA}, v{YA}, 1, v{EC}\nv_add_u32 v{YA}, v{YA}, v{M4}"
    ry=f"ds_read_u16 v{VY}, v{YA} offset:{WB+2}"
    def rd_y(): a(ya); a(ry)
    def idx1(i): return f"ds_read_u16 v{IDX+2*i}, v{GA0+(i>>2)} offset:{WB+4*(i&3)}"
    def rd_idx():
        for i in range(8): a(idx1(i))
    def dmai(i): return f"buffer_load_dwordx4 {P2(IDX+2*i)}, {SR4(sP)}, 0 idxen offen offset:{1024*(i&3)}{GSC} lds"
    def dma():
        for i in range(8):
            if i==0: a(f"s_mov_b32 m0, s{sBUF}\ns_nop 0")
            if i==4: a(f"s_add_u32 m0, s{sBUF}, 4096\ns_nop 0")
            a(dmai(i))
    def dma_idx():
        for i in range(4): a(dmai(i))
        a(f"s_add_u32 m0, s{sBUF}, 4096"); a(idx1(0))
        for i in range(4,8): a(dmai(i))
        a(f"s_mov_b32 m0, s{sBUF}")
        for i in range(1,8): a(idx1(i))
    rd_b=f"ds_read_b128 {P4(B3+2)}, v{QAD}\nds_read_b128 {P4(B3+10)}, v{QAD} offset:512"
    rd_a3=f"ds_read_b64 {P2(A6)}, v{EA}\nds_read_b64 {P2(A6+2)}, v{VY} offset:{OH}\nds_read_b64 {P2(A6+4)}, v{EA}"
    def rd_a(t): return f"ds_read_b128 {P4(A+4*t)}, v{AR+t}"
    rd_s=f"ds_read_b64 {P2(SS)}, v{SA2}\nds_read_b64 {P2(SS+2)}, v{SA2+1}"
    def AQ(q): return A6+2*(q&1)
    win=f"v_add3_u32 v{VY}, v{VY}, v{OH2}, s{sW8}\nv_lshl_add_u32 v{QAD}, s{sQ}, 6, v{QC}"
    rd_ga(0); rd_gg(0)
    a(f"""
ds_read_u16 v{WT}, v1 offset:{GL}
ds_read_b32 v{GP}, v{VZ} offset:{mSLOW}
s_waitcnt lgkmcnt(3)
""")
    rd_idx()
    a("s_waitcnt lgkmcnt(0)")
    dma()
    pt('d0')
    a(f"v_readlane_b32 s{sNF}, v{WT}, s{sCNT}\nv_readfirstlane_b32 s{t3}, v{GP}")
    rd_y(); rd_ga(16)
    uscale()
    a(f"""
v_lshlrev_b32 v{OH2}, 1, v{OHC}
v_and_b32 v1, 31, v{VL}
v_lshlrev_b32 v1, 4, v1
v_lshlrev_b32 v2, 5, v{VL}
v_and_b32 v2, 0x400, v2
v_add3_u32 v{QC}, v1, v2, s{sQ2}
s_waitcnt lgkmcnt(0)
""")
    rd_idx()
    a(f"""
s_cmp_lg_u32 s{t3}, 0
s_cbranch_scc1 KF_SLOW
s_lshr_b32 s{sNF}, s{sNF}, 8
v_subrev_u32 v2, s{sNF}, v{VL}
v_and_b32 v2, 15, v2
v_add_u32 v{DR}, s{sNF}, v2
v_lshlrev_b32 v2, 2, v{DR}
ds_read_b32 v{GP}, v2 offset:{BT}
s_and_b32 s{sQ}, s{sNF}, -2
s_lshl_b32 s{sQ}, s{sQ}, 3
s_sub_u32 s{sW8}, 0, s{sQ}
{win}
{rd_b}
{rd_a3}
""")
    rd_gg(16)
    a(f"""
v_lshrrev_b32 v{WT}, 9, v{WT}
v_lshlrev_b32 v{WT}, 4, v{WT}           ; 8*(w&~1)
v_mov_b32 v{SS}, 0
v_mov_b32 v{SS+1}, 0
v_mov_b32 v{SS+2}, 0
v_mov_b32 v{SS+3}, 0
v_add_u32 v{SA}, {STB}, v{SA}
v_mov_b32 v1, {OH+64}
v_cndmask_b32 v{SA2}, v1, v{SA}, {S2(sMA)}
v_cndmask_b32 v{SA2+1}, v{SA}, v1, {S2(sMA)}
v_cndmask_b32 v{SI2}, 0, 16, {S2(sMA)}
v_cndmask_b32 v{SI2+1}, 16, 0, {S2(sMA)}
s_add_u32 s{t1}, s{sT0}, s{sCNT}
s_lshl_b32 s{t1}, s{t1}, 7
s_add_u32 s{t2}, s{sWV}, 48
v_mov_b32 v1, s{t2}
{mfma32(ACC+16,SS,SS,None)}
s_waitcnt lgkmcnt(0)
""")
    rd_y(); rd_ga(32)
    a(f"""
v_cmp_gt_u32 vcc, s{t0}, v{GP}
v_cmp_gt_u32 {S2(t2)}, s{t1}, v{GP}
v_cmp_gt_u32 {S2(t0)}, s{sNN}, v{DR}
v_cndmask_b32 v{DR}, v{DR}, v1, vcc
s_cmp_lg_u64 vcc, 0
s_cselect_b32 s{sHEAD}, 1, 0
s_and_b64 vcc, {S2(t2)}, {S2(t0)}
v_lshrrev_b32 v1, 2, v{VL}
v_cndmask_b32 v{DR}, 63, v{DR}, vcc
v_and_b32 v1, 4, v1
v_xor_b32 v1, v1, v{DR}
v_and_b32 v1, 15, v1
v_lshlrev_b32 v1, 4, v1
v_lshl_add_u32 v{DR}, v{DR}, 8, v1
v_sub_u32 v{DR}, v{DR}, v{OHC}
s_sub_u32 s{sCNT}, s{sCNT}, 1
s_mov_b32 m0, s{sBUF}
""")
    epi_consts()
    pt('pre')
    a("s_waitcnt vmcnt(0)")
    pt('g0')
    for t in range(8): a(rd_a(t))
    a("s_waitcnt lgkmcnt(6)")
    a(mfma32(Z[0],AQ(0),B3,None)); a(mfma32(Z[0],A,ID0,Z[0])); a(mfma32(Z[0],A+4,ID1,Z[0]))
    a("s_nop 8\ns_waitcnt lgkmcnt(0)")
    pt('pro')
    def finals(qprev):
        for u in range(2): a(f"v_pk_mul_f32 {P2(NN+2*u)}, {P2(NN+2*u)}, {P2(DD+2*u)}")
        for u in range(2): a(f"v_cvt_pk_bf16_f32 v{GP+2*(qprev&1)+u}, v{NN+2*u}, v{NN+2*u+1}")
    def ex(zc,r): return f"v_exp_f32 v{EE+r}, v{zc+r}"
    def body(first):
        for q in range(4):
            zc=Z[q&1]; zn=Z[(q+1)&1]; qn=(q+1)&3
            ms=[(AQ(qn),B3+4*qn),(A+8*qn,ID0),(A+8*qn+4,ID1)]
            pend=[0,1,2,3,8,9,10,11,4,5,12,13,6,7,14,15]
            f0=first and q==0
            if q==0: a(f"v_readlane_b32 s{sQ}, v{WT}, s{sCNT}")
            if q==3: a(f"s_waitcnt lgkmcnt(0)")
            a(mfma32(zn,ms[0][0],ms[0][1],None))
            if not f0:
                for j in range(4): a(f"v_rcp_f32 v{DD+j}, v{DD+j}")
            else:
                for r in range(4): a(ex(zc,pend.pop(0)))
            a(mfma32(zn,ms[1][0],ms[1][1],zn))
            for r in range(4): a(ex(zc,pend.pop(0)))
            a(mfma32(zn,ms[2][0],ms[2][1],zn))
            def bx():
                a(f"s_sub_u32 s{sW8}, 0, s{sQ}\ns_waitcnt vmcnt(0) lgkmcnt(0)\n{win}")
                rd_gg(32); rd_ga(48)
                a(rd_b); a(rd_a3); a(rd_s)
                for t in range(8): a(rd_a(t))
            if q==2 and XP==0: a(ex(zc,pend.pop(0))); bx()
            for r in range(4 if not (q==2 and XP==0) else 3): a(ex(zc,pend.pop(0)))
            if q&1:
                p=1 if q==1 else 0
                if not (first and q==1):
                    a(mfma32(ACC+16*p,GP,SS,None if first else ACC+16*p))
                    for r in range(4): a(ex(zc,pend.pop(0)))
            if q==2 and XP==1: bx()
            if f0: dma_idx()
            if q==3:
                a(ya)
                if first: dma_idx(); a(ry)
                else:
                    a(f"s_cmp_gt_u32 s{sCNT}, 1\ns_cbranch_scc0 KF_lt")
                    dma_idx(); a(ry)
                    a("KF_lb:")
            if not f0: finals((q-1)&3)
            seq=[]
            for u in range(2): seq.append(f"v_pk_add_f32 {P2(DD+2*u)}, {P2(EE+8*u)}, 1.0 op_sel_hi:[1,0]")
            for m in range(1,4):
                for u in range(2):
                    src=(zc+8*u) if m==1 else NN+2*u
                    seq.append(f"v_pk_fma_f32 {P2(NN+2*u)}, {P2(src)}, {P2(EE+8*u+2*m)}, {P2(src)}")
                for u in range(2): seq.append(f"v_pk_fma_f32 {P2(NN+2*u)}, {P2(zc+8*u+2*m)}, {P2(DD+2*u)}, {P2(NN+2*u)}")
                for u in range(2): seq.append(f"v_pk_fma_f32 {P2(DD+2*u)}, {P2(DD+2*u)}, {P2(EE+8*u+2*m)}, {P2(DD+2*u)}")
            slots=[0,1,2,3,5,7,9,11] if len(pend)==8 else [1,4,7,10]
            for k,x in enumerate(seq):
                a(x)
                if k in slots: a(ex(zc,pend.pop(0)))
            if q==2: a(f"v_pk_add_f32 {P2(RB)}, {P2(RB)}, {S2(sINC)}\nv_pk_add_f32 {P2(SA2)}, {P2(SA2)}, {P2(SI2)}")
    if PROF and 'dyn' in PTS: stamp(a,8); stamp(a,9,True)
    if PROF and 'clk' in PTS: stamp(a,6,True)
    n0=len(a.l)
    body(True)
    a("s_branch KF_LE\n.p2align 6\nKF_LOOP:")
    body(False)
    def keep(l):
        t=l.strip()
        if X&1 and t.startswith('buffer_load'): return False
        if X&2 and t.startswith('ds_read_b128 v[') and int(t.split('[')[1].split(':')[0])>=28: return False
        if X&8 and t.startswith('v_mfma'): return False
        if X&16 and t.startswith('v_pk_fma'): return False
        if X&32 and t.startswith('v_exp'): return False
        return True
    a.l[n0:]=[l for l in a.l[n0:] if keep(l)]
    import re
    if X&(128|256|512):
        L=[]
        for l in a.l[n0:]:
            m=re.match(r"\s*v_mfma_f32_32x32x16_bf16 v\[(\d+):\d+\], v\[(\d+):\d+\], v\[(\d+):\d+\], (.*)",l)
            if m and int(m.group(1))<ACC:
                d,x,y=int(m.group(1)),int(m.group(2)),int(m.group(3))
                if X&128:
                    if y==ID0: L+=["    "+mfma16(d+4,x,ID0,None),"    "+mfma16(d+8,x,ID1,None)]
                    elif y==ID1: L.append("    "+mfma16(d+12,x,ID0,None))
                    else: L.append("    "+mfma16(d,x,y,None))
                if X&256:
                    if y!=ID1: L.append(l)
                if X&512:
                    if y==ID0: L.append(f"    v_mfma_f32_32x32x64_f8f6f4 v[{d}:{d+15}], v[{x}:{x+7}], v[{ID0}:{ID0+7}], v[{d}:{d+15}]")
                    elif y!=ID1: L.append(l)
            else: L.append(l)
        a.l[n0:]=L
    a("KF_LE:")
    if PRIO: a(f"s_bitcmp1_b32 42, s{sCNT}\ns_cbranch_scc1 KF_pr\nKF_pb:")
    a(f"""
s_sub_u32 s{sCNT}, s{sCNT}, 1
s_cbranch_scc0 KF_LOOP
""")
    def loop_tails():
        a(f"KF_lt:\ns_cmp_eq_u32 s{sCNT}, s{sWU}\ns_cbranch_scc0 KF_lb")
        sdma(sA,32768,0,TD)
        a(f"""
s_branch KF_lb
KF_pr:
""")
        if PROF and 'dyn' in PTS:
            a("s_mov_b32 s90, s92\ns_mov_b32 s91, s93\ns_mov_b32 s92, s94\ns_mov_b32 s93, s95\ns_mov_b32 s94, s96\ns_mov_b32 s95, s97")
            stamp(a,8); stamp(a,9,True)
        a(f"""
s_setprio 2
s_cmp_eq_u32 s{sCNT}, 5
s_cbranch_scc1 KF_pb
s_setprio 1
s_cmp_eq_u32 s{sCNT}, 3
s_cbranch_scc1 KF_pb
s_setprio 0
s_branch KF_pb
""")
    for j in range(4): a(f"v_rcp_f32 v{DD+j}, v{DD+j}")
    a("s_nop 0")
    finals(3)
    a("s_nop 1")
    a(mfma32(ACC+16,GP,SS,ACC+16))
    pt('loop')
    if PROF and 'clk' in PTS: stamp(a,7,True)
    for p in range(2):
        if p==1: a("s_nop 0")
        for j in range(4):
            c=ACC+16*p+4*j
            a(f"v_cvt_pk_bf16_f32 v{c}, v{c}, v{c+1}\nv_cvt_pk_bf16_f32 v{c+1}, v{c+2}, v{c+3}")
            if p or j: a(f"v_xor_b32 v1, {(8*p+j)*16}, v{DR}")
            a(f"ds_write_b64 v{1 if (p or j) else DR}, {P2(c)} offset:{AGB}")
    a(f"""
s_and_b32 s{t1}, s{sNF}, 15
s_lshl_b32 s{t1}, s{t1}, 4
s_lshl_b32 s{t0}, s{sNF}, 8
s_or_b32 s{t0}, s{t0}, s{t1}
s_mul_i32 s{t1}, s{sWV}, 272
s_add_u32 s{t1}, s{t1}, {48*256}
v_lshlrev_b32 v3, 2, v{VL}
v_xor_b32 v1, s{t0}, v3
v_xor_b32 v2, s{t1}, v3
s_cmp_eq_u32 s{sHEAD}, 0
s_waitcnt vmcnt(0) lgkmcnt(0)
s_barrier
s_cbranch_scc1 KF_FIN
ds_read_b32 v4, v1 offset:{AGB}
ds_read_b32 v5, v2 offset:{AGB}
s_waitcnt lgkmcnt(0)
v_lshlrev_b32 v6, 16, v4
v_and_b32 v7, 0xffff0000, v4
v_lshlrev_b32 v8, 16, v5
v_and_b32 v9, 0xffff0000, v5
v_pk_add_f32 v[6:7], v[6:7], v[8:9]
v_cvt_pk_bf16_f32 v6, v6, v7
ds_write_b32 v1, v6 offset:{AGB}
KF_FIN:
""")
    OST=GBUF
    tru(WU2,32768)
    srd(a,sX,16,N*256)
    a(f"""
v_and_b32 v1, 15, v{VL}
s_lshl_b32 s{t0}, s{sOT}, 1
v_lshrrev_b32 v2, 5, v{VL}
v_or_b32 v2, s{t0}, v2
v_xor_b32 v2, v2, v1
v_lshlrev_b32 v2, 4, v2
v_lshl_add_u32 v2, v1, 8, v2
v_lshrrev_b32 v3, 1, v{VL}
v_and_or_b32 v2, v3, 8, v2
v_add_u32 v{AR}, {OST}, v2
v_lshlrev_b32 v{AR+1}, 1, v1
""")
    bar('mrg',"s_waitcnt vmcnt(0) lgkmcnt(0)")
    for T in range(4):
        xfrags([T])
        if T==2:
            a("s_waitcnt lgkmcnt(8)")
            for s in range(4): a(mfma16(UA,WU2+4*s,XF+4*s,UA))
    def silu(T):
        c=UA+4*T; e=EE+4*T
        L=[f"v_exp_f32 v{e+i}, v{c+i}" for i in range(4)]
        L+=[f"v_fma_f32 v{e+i}, v{e+i}, s{sL2E}, s{sL2E}" for i in range(4)]
        L+=[f"v_rcp_f32 v{e+i}, v{e+i}" for i in range(4)]
        L+=[f"v_mul_f32 v{e+i}, v{e+i}, v{c+i}" for i in range(4)]
        L+=[f"v_cvt_pk_bf16_f32 v{e}, v{e}, v{e+1}",f"v_cvt_pk_bf16_f32 v{e+1}, v{e+2}, v{e+3}",f"ds_write_b64 v{AR}, {P2(e)} offset:{T*4096}"]
        return L
    for T in range(1,4):
        a(f"s_waitcnt lgkmcnt({4*(3-T)})")
        for s in range(4):
            x,y=(WU2+4*s,XF+16*T+4*s) if T<3 else (XF+16*T+4*s,WU2+4*s)
            a(mfma16(UA+4*T,x,y,UA+4*T))
    for T in range(3):
        for x in silu(T): a(x)
    c=UA+12; e=EE+12
    a(f"""
v_exp_f32 v{e}, v{c}
s_add_u32 s{t0}, s{sK}, {48*256}
v_fma_f32 v{e}, v{e}, s{sL2E}, s{sL2E}
v_rcp_f32 v{e}, v{e}
s_lshl_b32 s{t0}, s{t0}, 8
v_mul_f32 v{e}, v{e}, v{c}
s_lshl_b32 s{t1}, s{sOT}, 5
s_add_u32 s{t0}, s{t0}, s{t1}
v_cvt_pk_bf16_f32 v{e}, v{e}, v{e}
s_mov_b32 exec_lo, 0xffff
s_mov_b32 exec_hi, 0
buffer_store_short v{e}, v{AR+1}, {SR4(sX)}, s{t0} offen{OSC}
s_mov_b64 exec, -1
v_lshlrev_b32 v1, 4, v0
v_add_u32 v1, {OST}, v1
v_lshrrev_b32 v2, 4, v0
v_xor_b32 v3, v2, v0
v_and_b32 v3, 15, v3
v_lshlrev_b32 v3, 4, v3
v_lshl_add_u32 v3, v2, 16, v3
s_lshl_b32 s{t0}, s{sK}, 8
s_add_u32 s{t1}, s{t0}, {32*65536}
s_waitcnt lgkmcnt(0)
s_barrier
ds_read_b128 {P4(A)}, v1
s_cmp_lt_u32 s{sWV}, 4
s_cbranch_scc0 KF_e1
ds_read_b128 {P4(A+4)}, v1 offset:8192
s_waitcnt lgkmcnt(0)
buffer_store_dwordx4 {P4(A+4)}, v3, {SR4(sX)}, s{t1} offen{OSC}
KF_e1:
s_waitcnt lgkmcnt(0)
buffer_store_dwordx4 {P4(A)}, v3, {SR4(sX)}, s{t0} offen{OSC}
""")
    a(f"""
s_or_b32 s{t0}, s2, s{sWV}
s_cbranch_scc1 KF_e2
v_mov_b32 v1, s{sNON}
v_mov_b32 v2, 0
s_mov_b64 exec, 1
buffer_store_dword v1, v2, {SR4(sR)}, 0 offen
KF_e2:
""")
    if PROF: a("s_waitcnt vmcnt(0)")
    stamp(a,10); stamp(a,11,True)
    stamp_out(a,1,sWV)
    a("KF_END:\ns_endpgm")
    loop_tails()
    hist_retry(8,"KT_h",True)
    a("KF_CEND:")
    SV=ACC; AGs=SV+8; RS_=SV+16
    a(f"""
KF_SLOW:
s_setprio 0
s_cmp_ge_u32 s{sWV}, 4
s_cselect_b32 s{sTOT}, 0, s{sTOT}
v_mov_b32 v1, s{sTOT}
ds_max_u32 v{VZ}, v1 offset:{mMX}
v_mov_b32 v{SS}, 0
v_mov_b32 v{SS+1}, 0
v_mov_b32 v{SS+2}, 0
v_mov_b32 v{SS+3}, 0
s_mov_b32 s{sLO}, 0
s_mov_b32 s{sLB}, s{sBUF}
s_sub_u32 s{t0}, s{sWV}, s{sT0}
s_lshl_b32 s{t0}, s{t0}, 4
v_add_u32 v{SV+4}, s{t0}, v{RB}
v_add_u32 v{SV+5}, s{t0}, v{SB}
s_lshl_b32 s{t0}, s{sWV}, 4
v_sub_u32 v{SV+6}, s{t0}, v{OHC}
v_and_b32 v{SV+7}, 31, v{VL}
v_lshlrev_b32 v{SV+7}, 2, v{SV+7}
v_lshlrev_b32 v1, 4, v0
""")
    for j in range(3): a(f"ds_write_b128 v1, {P4(SS)} offset:{AGG+j*8192}")
    a(f"""
v_lshlrev_b32 v1, 4, v{VL}
ds_write_b128 v1, {P4(SS)} offset:{AGG+3*8192}
s_waitcnt vmcnt(0) lgkmcnt(0)
s_barrier
ds_read_b32 v1, v{VZ} offset:{mMX}
s_waitcnt lgkmcnt(0)
v_readfirstlane_b32 s{sRND}, v1
KF_SR:
s_cmp_lt_u32 s{sLO}, s{sRND}
s_cbranch_scc0 KF_SE
s_barrier
v_lshlrev_b32 v1, 2, v{VL}
v_lshlrev_b32 v2, 8, v{VL}
ds_write_b32 v1, v2
s_waitcnt lgkmcnt(0)
s_barrier
s_cmp_ge_u32 s{sWV}, 4
s_cbranch_scc1 KF_S1
s_movk_i32 s{t3}, 256
""")
    expand("KF_x")
    a(f"s_sub_u32 s{t1}, s{sTOT}, s{sLO}")
    reclist(4)
    recload(4,"KF_rl")
    for i in range(4): a(f"s_mov_b64 {S2(sM+8+2*i)}, {S2(sM+2*i)}")
    hist(4,"KF_h",0,False)
    a("s_waitcnt lgkmcnt(0)")
    for i in range(4):
        a(f"""
v_mov_b32 v{RS_+4*i}, v{RC+4*i}
v_mov_b32 v{RS_+4*i+1}, v{RC+4*i+1}
v_mov_b32 v{RS_+4*i+2}, v{RC+4*i+2}
v_lshlrev_b32 v1, 6, v{RC+4*i+3}
v_sub_u32 v1, v{RK+i}, v1
v_cndmask_b32 v{RS_+4*i+3}, -1, v1, {S2(sM+8+2*i)}
""")
    a(f"""
KF_S1:
s_mov_b32 s{sHEAD}, 0                    ; 256*k
KF_SK:
s_waitcnt lgkmcnt(0)
s_barrier
s_cmp_ge_u32 s{sWV}, 4
s_cbranch_scc1 KF_S2
s_mov_b32 s{t1}, {EB}
""")
    for i in range(4):
        a(f"""
v_subrev_u32 v1, s{sHEAD}, v{RS_+4*i+3}
v_lshrrev_b32 v2, 19, v{RS_+4*i+2}
v_lshl_add_u32 v2, v2, 8, v1
v_lshl_add_u32 v3, v2, 1, s{t1}
v_cmpx_gt_u32 vcc, 0x100, v1
ds_write_b32 v2, v{RS_+4*i+2} offset:{WB}
ds_write_b64 v3, {P2(RS_+4*i)}
s_mov_b64 exec, -1
""")
    a("KF_S2:")
    scan(True)
    a(f"s_cmp_lg_u64 {S2(t2)}, 0\ns_cselect_b32 s{sFLAG}, 1, 0")
    fill("KFs",True,8)
    a(f"""
s_add_u32 s{sNT}, s{t0}, 127
s_lshr_b32 s{sNT}, s{sNT}, 7
s_waitcnt lgkmcnt(0)
s_barrier
v_mov_b32 v{RB}, v{SV+4}
v_mov_b32 v{SB}, v{SV+5}
v_mov_b32 v{SV+12}, v{SV+6}
s_mov_b32 s{sI}, s{sWV}
KF_SL:
s_cmp_lt_u32 s{sI}, s{sNT}
s_cbranch_scc0 KF_SN
""")
    rd_ga(0); rd_gg(0)
    for j in range(4): a(f"ds_read_u16 v{AGs+j}, v{SV+12} offset:{GL+2*j}")
    a("s_waitcnt lgkmcnt(0)")
    rd_y(); rd_idx()
    a("s_waitcnt lgkmcnt(0)")
    dma()
    for j in range(4): a(f"v_lshrrev_b32 v{AGs+j}, 8, v{AGs+j}")
    a(f"""
v_readfirstlane_b32 s{sQ}, v{AGs}
s_nop 3
s_and_b32 s{sQ}, s{sQ}, -2
s_lshl_b32 s{sQ}, s{sQ}, 3
s_sub_u32 s{sW8}, 0, s{sQ}
v_lshlrev_b32 v{OH2}, 1, v{OHC}
{win}
{rd_b}
{rd_a3}
""")
    for j in range(4): a(f"v_lshl_add_u32 v{AGs+j}, v{AGs+j}, 9, v{SV+7}")
    a("s_waitcnt vmcnt(0) lgkmcnt(0)")
    for t in range(8): a(rd_a(t))
    a("s_waitcnt lgkmcnt(0)")
    for q in range(4):
        z=Z[0]
        a(mfma32(z,AQ(q),B3+4*q,None)); a(mfma32(z,A+8*q,ID0,z)); a(mfma32(z,A+8*q+4,ID1,z))
        a("s_nop 15")
        for r in range(16): a(f"v_exp_f32 v{EE+r}, v{z+r}")
        for r in range(16): a(f"v_add_f32 v{EE+r}, 1.0, v{EE+r}")
        for r in range(16): a(f"v_rcp_f32 v{EE+r}, v{EE+r}")
        for m in range(4):
            for u in range(2):
                for par in range(2):
                    r=8*u+2*m+par; g=GP+2*u+par
                    a(f"v_mul_f32 v{g}, v{z+r}, v{EE+r}" if m==0 else f"v_fmac_f32 v{g}, v{z+r}, v{EE+r}")
        for j in range(4): a(f"ds_add_f32 v{AGs+j}, v{GP+j} offset:{AGG+q*128}")
        a("s_waitcnt lgkmcnt(0)")
    a(f"""
v_add_u32 v{SB}, 128, v{SB}
v_add_u32 v{RB}, 128, v{RB}
v_add_u32 v{SV+12}, 128, v{SV+12}
s_add_u32 s{sI}, s{sI}, 8
s_branch KF_SL
KF_SN:
s_add_u32 s{sHEAD}, s{sHEAD}, 256
s_cmp_lg_u32 s{sFLAG}, 0
s_cbranch_scc1 KF_SK
s_add_u32 s{sLO}, s{sLO}, 256
s_branch KF_SR
KF_SE:
s_cmp_ge_u32 s{sWV}, 4
s_cbranch_scc0 KF_SE2
""")
    sdma(sA,32768,0,TD)
    a(f"""
KF_SE2:
v_lshlrev_b32 v1, 4, v0
v_lshrrev_b32 v2, 5, v0
s_waitcnt vmcnt(0) lgkmcnt(0)
s_barrier
""")
    for j in range(4): a(f"ds_read_b128 {P4(A+4*j)}, v1 offset:{AGG+j*8192}")
    a(f"""
v_bfe_u32 v3, v0, 1, 4
v_xor_b32 v3, v3, v2
v_lshlrev_b32 v3, 4, v3
v_lshl_add_u32 v3, v2, 8, v3
v_and_b32 v1, 1, v0
v_lshl_add_u32 v3, v1, 3, v3
s_waitcnt lgkmcnt(0)
s_barrier
""")
    for j in range(4):
        a(f"v_cvt_pk_bf16_f32 v{A+4*j}, v{A+4*j}, v{A+4*j+1}\nv_cvt_pk_bf16_f32 v{A+4*j+1}, v{A+4*j+2}, v{A+4*j+3}")
        a(f"ds_write_b64 v3, {P2(A+4*j)} offset:{AGB+j*4096}")
    a("s_branch KF_FIN")
    hist_retry(4,"KF_h",False)
    return a.text()

if __name__=='__main__':
    import sys
    nm='standalone__mpnn_edge_mlp__graph_kernel'
    hdr=open('standalone__mpnn_edge_mlp__graph.s.ref').read().split('; Override')[0]
    out=hdr+(f"; @launch kernel={nm} grid=(256,1,1) block=(512,1,1) lds={KF_LDS}\n" if os.environ.get('LISTF') else f"; @launch grid=(256,1,1) block=(512,1,1) lds={KF_LDS}\n")
    out+='.amdgcn_target "amdgcn-amd-amdhsa--gfx950"\n.text\n'
    out+=f".globl {nm}\n.p2align 8\n.type {nm},@function\n"+gen_kf(nm)
    out+='.section .rodata,"a"\n.p2align 6\n'+kd(nm,256)
    open(sys.argv[1],'w').write(out)
```

```python
from common import *
X=int(os.environ.get('X','0'))
PRIO=int(os.environ.get('PRIO','1'))
DSP=[int(c,36) for c in os.environ.get('DSP','00000000')]
def EV(n,d): return int(os.environ.get(n,d))
TPOS=EV('TPOS',6); PFP=EV('PFP',0); XORD=EV('XORD',1); WUI=EV('WUI',2); FLP=EV('FLP',1); FSL=EV('FSL',8); TE=EV('TE',1); W1N=EV('W1N',5); GP_=EV('GP',1); TLB=EV('TLB',0); DBGP=EV('DBGP',0); ALN=EV('ALN',4096); PFH=EV('PFH',0); XP=EV('XP',0); PFI=EV('PFI',0); SWW=EV('SWW',1)
PTS=os.environ.get('PTS','b1,bS,tp,pfl,rl,b2,b3,pro').split(',')
SC=' sc1'
OSC=os.environ.get('OSC',' sc1')
GSC=os.environ.get('GSC',' sc1')
NPROD=250; EP=1600; RST=EP*16
F_P=0x1000; F_REC=0x400000; F_TBL=0xB00000; F_FLG=0xB90000; F_SIZE=0xBA0000
CNT=0; MISC=256; OH=400; GL=928; BT=1872; STB=2144; RS=944
mSLOW=MISC; mS=MISC+4; mGX=MISC+8; mGP=MISC+12; mC3=MISC+16; mPD=MISC+20; mSL=MISC+24; mMX=MISC+28; mPI=MISC+32; mH=MISC+36; mNT=MISC+40; mW=MISC+44; mE=MISC+48
AGB=17408
W3L=AGB+56*256
Q2=AGB+16384; QS=52*128
S1=Q2; ERAW=Q2+12800
WB=Q2+4*QS; NULLG=49*256; EB=WB+NULLG+16
HIST=WB; PSC=WB+2048
GBUF=98304
KF_LDS=GBUF+65536
assert EB+2*NULLG+32<=GBUF and STB+16*RS<=AGB
AGG=STB
ONE2=0x3F803F80
NULLW2=0xFFFF|(512<<16)
CAPT=58
ID0=4; ID1=8; B3=12; A=28; Z=[60,76]; A3=92; EE=96; NN=112; DD=116; GP=120; SS=124
IDX=128; AR=144; RB=152; SB=153; SA=154; VY=155; OHC=156; VL=157; WT=158; DR=159
ACC=160; WU2=192; UA=208; WF=160; WU1=176; QA=224; RC=96; XF=28; GA=192
A6=244; QAD=250; QC=251; SA2=224; SI2=226; OH2=228; GA0=232; YA=234; EA=235; M4=236; EC=237; VZ=238; PO=92; TRU=240; TD=241; TC=242; TO=243; RK=244; FA=252
sP=24; sX=28; sA=32; sR=36; sM=40
sWV=56; sK=57; sNN=58; sI=59; sNT=60; sBUF=61; sQ=62; sW8=63; sCNT=64; sT0=65
sL2E=66; sINC=68; sRND=70; sTOT=71; sNON=72; sBUD=73; sW4=74; sLB=75
sWU=3; sW4K=22; sOT=23; sFLAG=76; sLO=77; sMA=78; sQ2=80; sHEAD=82; sNF=83
t0,t1,t2,t3=84,85,86,87
BUDGET=20000

def mfma32(d,x,y,c): return f"v_mfma_f32_32x32x16_bf16 v[{d}:{d+15}], v[{x}:{x+3}], v[{y}:{y+3}], "+("0" if c is None else f"v[{c}:{c+15}]")
def mfma16(d,x,y,c): return f"v_mfma_f32_16x16x32_bf16 v[{d}:{d+3}], v[{x}:{x+3}], v[{y}:{y+3}], "+("0" if c is None else f"v[{c}:{c+3}]")
def P2(r): return f"v[{r}:{r+1}]"
def P4(r): return f"v[{r}:{r+3}]"
def S2(r): return f"s[{r}:{r+1}]"
def SR4(r): return f"s[{r}:{r+3}]"

def gen_kf(name):
    a=Asm()
    def pt(n):
        if PROF and n in PTS: stamp(a,2+PTS.index(n))
    def ret(n):
        if PROF and n in PTS: a(f"s_sub_u32 s{90+PTS.index(n)}, {BUDGET}, s{sBUD}\ns_mul_i32 s{90+PTS.index(n)}, s{90+PTS.index(n)}, 100")
    def bar(n,w="s_waitcnt lgkmcnt(0)"):
        a(w+"\ns_barrier"); pt(n)
    def gsync(n,lab,off,target,va,vt,pre=None):
        if pre: a(pre)
        a(f"""
v_mov_b32 v{vt}, 1
s_mov_b64 exec, 1
ds_add_u32 v{va}, v{vt} offset:{off}
s_mov_b64 exec, -1
{lab}:
ds_read_b32 v{vt}, v{va} offset:{off}
s_waitcnt lgkmcnt(0)
v_readfirstlane_b32 s{t1}, v{vt}
s_and_b32 s{t1}, s{t1}, 255
s_cmp_lt_u32 s{t1}, {target}
s_cbranch_scc1 {lab}
""")
        pt(n)
    def gwait(lab,off,target,va,vt):
        a(f"""
{lab}:
ds_read_b32 v{vt}, v{va} offset:{off}
s_waitcnt lgkmcnt(0)
v_readfirstlane_b32 s{t1}, v{vt}
s_and_b32 s{t1}, s{t1}, 255
s_cmp_lt_u32 s{t1}, {target}
s_cbranch_scc1 {lab}
""")
    def consts():
        srd(a,sP,20,N,off=F_P-3072,stride=256)
        srd(a,sR,20,F_SIZE)
        a(f"""
s_cmp_lt_u32 s{sK}, {N-256*48}
s_cselect_b32 s{sNN}, 49, 48
s_mov_b32 s{sL2E}, {hex(LOG2E_NEG)}
s_mov_b32 s{sL2E+1}, {hex(LOG2E_NEG)}
s_mov_b32 s{sINC}, 16
s_mov_b32 s{sINC+1}, 16
s_mov_b32 s{sMA}, 0x0000ffff
s_mov_b32 s{sMA+1}, 0x0000ffff
s_mov_b32 s{sQ2}, {Q2}
s_mov_b32 s{sBUD}, {BUDGET}
v_lshrrev_b32 v2, 5, v{VL}              ; h
; g = 4 b2 + 2 b4 + b0 ; m = 2 b3 + b1 ; slot = 16 b2 + 4 m + (g&3)
v_lshrrev_b32 v1, 3, v{VL}
v_and_b32 v1, 2, v1
v_and_or_b32 v1, v{VL}, 5, v1           ; g
v_lshlrev_b32 v{RB}, 1, v1
v_lshlrev_b32 v3, 1, v{VL}
v_and_b32 v3, 4, v3
v_and_or_b32 v{M4}, v{VL}, 8, v3        ; 4m
v_lshlrev_b32 v{EC}, 1, v{M4}
v_add_u32 v{EC}, {EB}, v{EC}
v_lshlrev_b32 v3, 2, v1
v_and_or_b32 v3, v3, 16, v{M4}
v_and_or_b32 v3, v1, 3, v3              ; slot
v_lshl_add_u32 v3, v3, 8, s{sBUF}
v_and_b32 v{WT}, 15, v{VL}              ; n / c16
v_xor_b32 v1, v2, v{WT}
v_lshl_add_u32 v{AR}, v1, 4, v3
""")
        for t in range(1,8): a(f"v_xor_b32 v{AR+t}, {32*t}, v{AR}")
        a(f"""
v_mul_i32_i24 v{OHC}, -8, v2
v_mul_u32_u24 v{SA}, {RS}, v{WT}
v_and_b32 v1, 1, v{VL}
v_lshlrev_b32 v1, 4, v1
v_mov_b32 v3, 0x3f80
v_lshlrev_b32 v1, v1, v3
""")
        for s in range(2):
            for j in range(4):
                lo=3<<(16*s+2*j); hi=(3<<(16*s+8+2*j))
                a(f"s_mov_b32 vcc_lo, {hex(lo)}\ns_mov_b32 vcc_hi, {hex(hi)}\nv_cndmask_b32 v{ID0+4*s+j}, 0, v1, vcc")
        a(f"""
v_lshrrev_b32 v2, 4, v{VL}              ; a / g
v_lshlrev_b32 v{SB}, 1, v2
v_and_b32 v1, 1, v2
v_xor_b32 v1, v1, v{WT}
v_lshlrev_b32 v1, 4, v1
""")
        for i in range(8): a(f"v_xor_b32 v{IDX+2*i+1}, {(8*((i>>1)&1)+4*(i>>2)+2*(i&1))*16+3072-1024*(i&3)}, v1")
        a(f"v_xor_b32 v3, v2, v{WT}\nv_lshlrev_b32 v3, 4, v3\nv_lshl_add_u32 v3, v{WT}, 8, v3\nv_add_u32 v{FA}, {AGB}, v3")
        for s in range(1,4): a(f"v_xor_b32 v{FA+s}, {64*s}, v{FA}")
        a(f"""
s_lshl_b32 s{t0}, s{sW4}, 13
s_add_u32 s{t0}, s{t0}, {GBUF}
s_lshr_b32 s{t1}, s{sWV}, 2
s_lshl_b32 s{sOT}, s{sW4}, 1
s_or_b32 s{sOT}, s{sOT}, s{t1}
v_lshrrev_b32 v1, 2, v{WT}
v_lshl_add_u32 v1, v2, 3, v1
v_lshl_add_u32 v{DR}, v1, 6, s{t0}
v_xor_b32 v2, s{t1}, v2
v_and_b32 v2, 1, v2
v_and_b32 v3, 3, v{VL}
v_lshl_add_u32 v{TRU}, v2, 5, v{DR}
v_lshl_add_u32 v{TRU}, v3, 3, v{TRU}
""")
    def tagh():
        a(f"""
s_mul_i32 s{sNON}, s{sNON}, 0x9E3779B1
s_add_u32 s{sNON}, s{sNON}, 0x7F4A7C15
s_lshr_b32 s{t1}, s{sNON}, 15
s_xor_b32 s{sNON}, s{sNON}, s{t1}
""")
    def vyc():
        a(f"""
v_lshrrev_b32 v1, 4, v{VL}
v_and_b32 v1, 2, v1
v_xor_b32 v1, v1, v{VL}
v_and_b32 v1, 3, v1
v_lshlrev_b32 v1, 4, v1
v_lshrrev_b32 v2, 2, v{VL}
v_lshl_or_b32 v{VY}, v2, 8, v1
""")
    def trfrag(dst,addr,off,ks,hs):
        for s in range(4):
            a(f"ds_read_b64_tr_b16 {P2(dst+4*s)}, v{addr} offset:{off+s*ks}\nds_read_b64_tr_b16 {P2(dst+4*s+2)}, v{addr} offset:{off+s*ks+hs}")
    def tru(dst,off): trfrag(dst,TRU,off,2048,256)
    def sdma(sr,moff,loff=0,v=VY,js=range(8)):
        a(f"s_lshl_b32 s{t0}, s{sW4}, 6")
        for j in js:
            a(f"s_add_u32 m0, s{sBUF}, {loff+j*1024}\ns_add_u32 s{t1}, s{t0}, {moff+j*4096}\nbuffer_load_dwordx4 v{v}, {SR4(sr)}, s{t1} offen lds")
    def xfrags(Ts):
        for T in Ts:
            for s in range(4): a(f"ds_read_b128 {P4(XF+16*T+4*s)}, v{FA+s} offset:{T*4096}")
    def ugemm():
        for T in range(4):
            for s in range(4):
                x,y=(WU1+4*s,XF+16*T+4*s) if T<3 else (XF+16*T+4*s,WU1+4*s)
                a(mfma16(UA+4*T,x,y,None if s==0 else UA+4*T))
    def uscale():
        for j in range(7): a(f"v_pk_mul_f32 {P2(UA+2*j)}, {P2(UA+2*j)}, {S2(sL2E)}")
    def w3rd():
        a(f"v_lshlrev_b32 v1, 3, v{VL}")
        for q in range(4): a(f"ds_read_b64 {P2(B3+4*q+2*(q&1))}, v1 offset:{W3L+q*512}")
    F=A3
    def scan(slow):
        a(f"""
v_lshlrev_b32 v1, 2, v{VL}
ds_read_b32 v{F}, v1
v_cmp_gt_u32 vcc, s{sNN}, v{VL}
v_lshlrev_b32 v{F+1}, 8, v{VL}
s_waitcnt lgkmcnt(0)
v_sub_u32 v{QA}, v{F}, v{F+1}
""")
        if slow:
            a(f"""
s_movk_i32 s{t1}, 256
v_subrev_u32 v{QA}, s{sHEAD}, v{QA}
v_cmp_lt_i32 {S2(t2)}, s{t1}, v{QA}
v_med3_i32 v{QA}, v{QA}, 0, s{t1}
v_add_u32 v{F}, v{F+1}, v{QA}
""")
        a(f"""
v_add_u32 v3, 12, v{QA}
v_and_b32 v3, -16, v3
v_max_u32 v3, 80, v3
v_cndmask_b32 v3, 0, v3, vcc
v_mov_b32 v2, v3
""")
        dpp_scan(a,"v_add_u32",[2])
        a(f"""
v_readlane_b32 s{t0}, v2, 63
v_sub_u32 v2, v2, v3
""")
    def fill(lab,slow,nw):
        a(f"""
s_lshl_b32 s{t1}, s{sWV}, 4
v_add_u32 v{QA+1}, s{t1}, v2
v_lshrrev_b32 v{QA+1}, 3, v{QA+1}       ; 2*(G0+w)
v_add_u32 v{F+1}, s{t1}, v{F+1}         ; 256n+16w
v_subrev_u32 v{QA+2}, s{t1}, v3         ; g16-16w
""")
        if not slow: a(f"v_add_u32 v{QA+3}, v{QA+1}, v{SA}\nv_mov_b32 v{F+3}, 0x3f80\nds_write_b32 v1, v2 offset:{BT}")
        for k in range(16//nw):
            a(f"v_cmpx_lt_i32 vcc, {16*nw*k}, v{QA+2}\nds_write_b16 v{QA+1}, v{F+1+(k&1)} offset:{GL+2*nw*k}")
            if k+1<16//nw: a(f"v_add_u32 v{F+1+((k+1)&1)}, {16*nw}, v{F+1+(k&1)}")
            if not slow: a(f"ds_write_b16 v{QA+3}, v{F+3} offset:{STB+2*nw*k}")
        a(f"""
s_mov_b64 exec, -1
s_lshl_b32 s{t1}, s{sWV}, 2
v_sub_u32 v{QA+2}, v3, v{QA}
v_add_u32 v{F}, s{t1}, v{F}
v_subrev_u32 v{QA+2}, s{t1}, v{QA+2}    ; pad4 - 4w
s_mov_b32 s{t1}, {EB}
v_mov_b32 v{QA+4}, 0
v_mov_b32 v{QA+5}, 0
v_mov_b32 v{QA+6}, {hex(NULLW2)}
v_lshl_add_u32 v{QA+7}, v{F}, 1, s{t1}
""")
        for k in range(-(-20//nw)):
            a(f"v_cmpx_lt_i32 vcc, {4*nw*k}, v{QA+2}")
            if k==1: a(f"s_cbranch_vccz {lab}p")
            a(f"ds_write_b32 v{F}, v{QA+6} offset:{WB+4*nw*k}\nds_write_b64 v{QA+7}, {P2(QA+4)} offset:{8*nw*k}")
        a(f"""
{lab}p:
s_mov_b64 exec, -1
s_cmp_eq_u32 s{sWV}, 3
s_cbranch_scc0 {lab}q
s_lshr_b32 s{t1}, s{t0}, 3
v_lshl_add_u32 v{QA+1}, v{VL}, 1, s{t1}
v_mov_b32 v{QA+2}, {NULLG}
v_add_u32 v{QA+3}, {NULLG}, v1
v_lshlrev_b32 v{QA+7}, 1, v1
v_add_u32 v{QA+7}, {EB+2*NULLG}, v{QA+7}
s_mov_b64 exec, 0xff
ds_write_b16 v{QA+1}, v{QA+2} offset:{GL}
s_mov_b64 exec, 15
ds_write_b32 v{QA+3}, v{QA+6} offset:{WB}
ds_write_b64 v{QA+7}, {P2(QA+4)}
s_mov_b64 exec, -1
{lab}q:
""")
    def expand(lab):
        a(f"""
v_subrev_u32 v1, s{sLO}, v{TO}
v_add_u32 v2, v1, v{TC}
v_med3_i32 v1, v1, 0, s{t3}
v_med3_i32 v2, v2, 0, s{t3}
v_sub_u32 v2, v2, v1
v_lshl_add_u32 v1, v1, 2, s{sLB}
{lab}:
""")
        for j in range(16):
            a(f"v_cmpx_lt_i32 vcc, {j}, v2\nds_write_b32 v1, v{TD} offset:{4*j}")
        a(f"""
v_add_u32 v2, -16, v2
v_add_u32 v1, 64, v1
v_cmp_lt_i32 vcc, 0, v2
s_cmp_lg_u64 vcc, 0
s_cbranch_scc1 {lab}
s_mov_b64 exec, -1
""")
    def rl1(i): return f"buffer_load_dwordx4 {P4(RC+4*i)}, v{RK+i}, {SR4(sR)}, {'0' if i<4 else 's'+str(sQ)} offen offset:{1024*(i&3)}{SC}"
    def reclist(ns):
        a(f"v_lshl_add_u32 v1, v{VL}, 2, s{sLB}")
        for i in reversed(range(ns)): a(f"ds_read_b32 v{RK+i}, v1 offset:{256*i}")
        a(f"v_add_u32 v2, s{sLO}, v{VL}\nv_lshlrev_b32 v2, 4, v2\ns_movk_i32 s{sQ}, 4096")
        for i in range(ns):
            a(f"v_cmp_gt_i32 {S2(sM+2*i)}, s{t1}, v{VL}\ns_sub_u32 s{t1}, s{t1}, 64")
        a("s_waitcnt lgkmcnt(0)")
        for i in range(ns): a(f"v_add_u32 v{RK+i}, v{RK+i}, v2")
    def recload(ns,lab):
        for i in reversed(range(ns)):
            a(f"s_mov_b64 exec, {S2(sM+2*i)}\ns_cbranch_execz {lab}{i}\n{rl1(i)}\n{lab}{i}:")
        a("s_mov_b64 exec, -1")
    def hist(ns,lab,extra,scat):
        a(f"v_mov_b32 v1, 4\ns_mov_b32 s{sW8}, {EB}\n{lab}p:")
        def gm(i): return S2(t0+2*(i&1))
        def sc(i,n):
            a(f"""
s_mov_b64 exec, {gm(i)}
s_waitcnt lgkmcnt({n})
v_min_u32 v{RK+i}, {NULLG-4}, v{RK+i}
v_lshl_add_u32 v{RC+4*i+3}, v{RK+i}, 1, s{sW8}
ds_write_b32 v{RK+i}, v{RC+4*i+2} offset:{WB}
ds_write_b64 v{RC+4*i+3}, {P2(RC+4*i)}
""")
        for i in reversed(range(ns)):
            a(f"""
s_mov_b64 exec, {S2(sM+2*i)}
s_waitcnt vmcnt({i+extra})
v_cmpx_eq_u32 {gm(i)}, s{sNON}, v{RC+4*i+3}
v_lshrrev_b32 v{RC+4*i+3}, 17, v{RC+4*i+2}
ds_add_rtn_u32 v{RK+i}, v{RC+4*i+3}, v1
s_andn2_b64 {S2(sM+2*i)}, {S2(sM+2*i)}, {gm(i)}
""")
            a(f"s_mov_b64 vcc, {S2(sM+2*i)}" if i==ns-1 else f"s_or_b64 vcc, vcc, {S2(sM+2*i)}")
            if scat and i==0: a(f"s_cselect_b64 exec, 0, 1\nds_add_u32 v{VZ}, v1 offset:{mH}")
            if scat and i<ns-1: sc(i+1,(1 if i==ns-2 else 3)+(1 if i==0 else 0))
        if scat: sc(0,3)
        a(f"s_cbranch_vccnz {lab}r\n{lab}d:\ns_mov_b64 exec, -1")
    def hist_retry(ns,lab,scat):
        a(f"{lab}r:\ns_sub_u32 s{sBUD}, s{sBUD}, 1\ns_cbranch_scc1 {lab}x")
        recload(ns,lab+"l")
        a(f"s_waitcnt vmcnt(0)\ns_branch {lab}p\n{lab}x:\ns_mov_b32 s{sBUD}, 0")
        if scat: a(f"s_mov_b64 exec, 1\nds_add_u32 v{VZ}, v1 offset:{mH}")
        a(f"s_branch {lab}d")
    def qfull(lab,mid):
        H=QA+4; MX=QA+1
        a(f"v_xor_b32 v{TC}, 32, v{TRU}")
        trfrag(WF,TC,0,2048,256)
        a(f"""
s_lshr_b32 s{t0}, s{sW4}, 1
s_lshl_b32 s{t0}, s{t0}, 9
s_and_b32 s{t1}, s{sW4}, 1
s_lshl_b32 s{t1}, s{t1}, 3
s_add_u32 s{t0}, s{t0}, s{t1}
s_add_u32 s{t0}, s{t0}, {Q2}
v_lshl_add_u32 v120, v{SB}, 10, s{t0}
v_lshl_add_u32 v120, v{WT}, 4, v120
v_add_u32 v121, 256, v120
s_waitcnt lgkmcnt(0)
""")
        tru(WF+16,0)
        def cv(i,T,pk):
            c=GA+16*i+4*T
            L=[]
            if pk: L+=[f"v_pk_mul_f32 {P2(c)}, {P2(c)}, {S2(sL2E)}",f"v_pk_mul_f32 {P2(c+2)}, {P2(c+2)}, {S2(sL2E)}"]
            else: L+=[f"v_mul_f32 v{c+k}, s{sL2E}, v{c+k}" for k in range(4)]
            L+=[f"v_and_b32 v{H+k}, 0xffff0000, v{c+k}" for k in range(4)]
            L+=[f"v_maximum3_f32 v{MX}, {'0' if T==0 and i==0 else 'v'+str(MX)}, abs(v{c}), abs(v{c+1})",f"v_maximum3_f32 v{MX}, v{MX}, abs(v{c+2}), abs(v{c+3})"]
            if pk: L+=[f"v_pk_add_f32 {P2(c)}, {P2(c)}, {P2(H)} neg_lo:[0,1] neg_hi:[0,1]",f"v_pk_add_f32 {P2(c+2)}, {P2(c+2)}, {P2(H+2)} neg_lo:[0,1] neg_hi:[0,1]"]
            else: L+=[f"v_sub_f32 v{c+k}, v{c+k}, v{H+k}" for k in range(4)]
            L+=[f"v_cvt_pk_bf16_f32 v{c+k}, v{c+k}, v{H+k}" for k in range(4)]
            return L
        for T in range(4):
            for s in range(4): a(mfma16(GA+4*T,XF+16*T+4*s,WF+4*s,None if s==0 else GA+4*T))
        a("s_waitcnt lgkmcnt(0)")
        fl=cv(0,0,0)+cv(0,1,0)
        for T in range(4):
            for s in range(4):
                a(mfma16(GA+16+4*T,XF+16*T+4*s,WF+16+4*s,None if s==0 else GA+16+4*T))
                for _ in range(2): a(fl.pop(0))
        if PFI==0: mid()
        for x in fl+cv(0,2,1)+cv(1,0,1)+cv(1,1,1)+cv(1,2,1): a(x)
        if PFI==1: mid()
        gwait(lab+"w",mSL,4,VZ,1)
        for i in range(2):
            for T in range(3):
                c=GA+16*i+4*T
                a(f"ds_write2st64_b64 v{120+i}, {P2(c)}, {P2(c+2)} offset0:{16*T} offset1:{16*T+2}")
        a("s_mov_b64 exec, 0xffff")
        for i in range(2):
            c=GA+16*i+12
            a(f"""
v_mul_f32 v{c}, s{sL2E}, v{c}
v_and_b32 v{H}, 0xffff0000, v{c}
v_maximum3_f32 v{MX}, v{MX}, abs(v{c}), abs(v{c})
v_sub_f32 v{c}, v{c}, v{H}
v_cvt_pk_bf16_f32 v{c}, v{c}, v{H}
ds_write2st64_b64 v{120+i}, {P2(c)}, {P2(c+2)} offset0:48 offset1:50
""")
        a(f"""
s_mov_b64 exec, -1
v_cmp_nge_f32 vcc, 0x40e80000, v{MX}
s_cbranch_vccz {lab}q
ds_write_b32 v{VZ}, v{FA} offset:{mSLOW}
{lab}q:
""")
        pt('qd')
    def ranges():
        a(f"""
s_lshr_b32 s{sCNT}, s{sNT}, 3
s_mul_i32 s{sT0}, s{sCNT}, s{sWV}
s_and_b32 s{t2}, s{sNT}, 7
s_min_u32 s{t3}, s{t2}, s{sWV}
s_add_u32 s{sT0}, s{sT0}, s{t3}
s_cmp_lt_u32 s{sWV}, s{t2}
s_addc_u32 s{sCNT}, s{sCNT}, 0
s_lshl_b32 s{t0}, s{sT0}, 7
s_lshl_b32 s{t2}, s{sT0}, 4
v_add_u32 v{SB}, s{t2}, v{SB}
v_add_u32 v{RB}, s{t2}, v{RB}
v_sub_u32 v{SA}, v{SA}, v{OHC}
v_add_u32 v{SA}, s{t2}, v{SA}
s_add_u32 s{t3}, s{sT0}, s{sCNT}
v_min_u32 v1, 8, v{VL}
v_sub_u32 v1, s{t3}, v1
v_lshlrev_b32 v1, 4, v1
v_max_i32 v1, 0, v1
""")
    def epi_consts(): pass
    def arrive(off,vt): a(f"v_mov_b32 v{vt}, 1\ns_mov_b64 exec, 1\nds_add_u32 v{VZ}, v{vt} offset:{off}\ns_mov_b64 exec, -1")

    D=28; SRc=36; K=44; R=52; W2=60; RO=80
    sD=40; sS=44; sE=48
    Q16="s_mov_b64 exec, 0xffff"; FULL="s_mov_b64 exec, -1"
    a(f"""
{name}:
s_getpc_b64 {S2(t2)}
s_cmp_ge_u32 s2, 256
s_cbranch_scc1 KF_END
s_load_dwordx16 s[4:19], s[0:1], 0
s_load_dwordx2 s[20:21], s[0:1], 64
v_lshrrev_b32 v1, 6, v0
s_and_b32 s{t0}, s2, 0xf8
v_add_lshl_u32 v2, v1, s{t0}, 7
v_readfirstlane_b32 s{sWV}, v1
v_min_u32 v2, KF_CEND-{name}-8, v2
s_mov_b64 exec, 1
global_load_dword v{QA+15}, v2, {S2(t2)}
s_mov_b64 exec, -1
v_and_b32 v{VL}, 63, v0
v_mov_b32 v{VZ}, 0
v_lshlrev_b32 v113, 4, v{VL}
s_cmp_ge_u32 s{sWV}, 4
s_cbranch_scc0 KF_S
v_lshlrev_b32 v2, 2, v0
v_lshlrev_b32 v3, 8, v{VL}
ds_write_b32 v2, v{VZ} offset:{HIST-1024}
v_lshlrev_b32 v2, 2, v{VL}
ds_write2st64_b32 v2, v3, v{VZ} offset0:0 offset1:1
s_waitcnt lgkmcnt(0)
""")
    stamp(a,0,True); stamp(a,1); pt('st')
    a(f"""
s_lshr_b32 s{t0}, s{t0}, 1
s_add_u32 s{t0}, s{t0}, s{sWV}
s_sub_u32 s{t0}, s{t0}, 4
s_lshl_b32 s{t0}, s{t0}, 9
v_lshl_add_u32 v2, v{VL}, 7, s{t0}
s_mov_b64 exec, 15
global_load_dword v{QA+15}, v2, s[12:13]
global_load_dword v{QA+15}, v2, s[14:15]
s_mov_b64 exec, -1
""")
    if TLB:
        a(f"""
s_lshr_b32 s{t0}, s{t0}, 9
s_mul_i32 s{t1}, s{t0}, {2*RST}
s_add_u32 s{t1}, s{t1}, {F_REC+EP*16}
s_add_u32 s52, s20, s{t1}
s_addc_u32 s53, s21, 0
s_load_dword s44, s[52:53], 0
s_load_dword s45, s[52:53], {RST}
""")
    a(f"""
s_branch KF_B0
KF_S:
s_min_u32 s{t2}, s2, {NPROD-1}
s_mul_i32 s{t2}, s{t2}, {EP*4}
s_mul_i32 s{t3}, s{sWV}, 400
v_add_u32 v108, s{t3}, v{VL}
v_lshlrev_b32 v109, 2, v108
s_mov_b32 s{sD+2}, {E*4}
s_mov_b32 s{sD+3}, 0x00020000
s_waitcnt lgkmcnt(0)
""")
    stamp(a,0,True); stamp(a,1); pt('st')
    a(f"s_mov_b32 s{sD}, s10\ns_and_b32 s{sD+1}, s11, 0xffff")
    def ld7(dst,sr):
        for i in range(7):
            if i==6: a(Q16)
            a(f"buffer_load_dword v{dst+i}, v109, {SR4(sr)}, s{t2} offen offset:{i*256}")
        a(FULL)
    ld7(D,sD)
    srd(a,sS,8,E*4); srd(a,sE,6,E*8)
    ld7(SRc,sS)
    a(f"""
s_lshl_b32 s{sLB}, s{t3}, 3
s_lshl_b32 s{t2}, s{t2}, 1
s_add_u32 s{t2}, s{t2}, s{sLB}
s_add_u32 m0, s{sLB}, {ERAW}
s_add_u32 s{sLB}, s{sLB}, {S1}
""")
    for j in range(4):
        if j==3: a("s_mov_b64 exec, 0xff")
        a(f"buffer_load_dwordx4 v113, {SR4(sE)}, s{t2} offen offset:{1024*j} lds")
    a(FULL)
    a(f"""
KF_B0:
""")
    if DBGP:
        a("v_mov_b32 v1, 0")
        for j,r in enumerate((4,6,8,10,12,14,16,18,20)): a(f"v_writelane_b32 v1, s{r}, {j}")
        a(f"v_lshlrev_b32 v2, 2, v{VL}\ns_mov_b64 exec, 0x1ff\nglobal_store_dword v2, v1, s[18:19]\ns_mov_b64 exec, -1\ns_waitcnt vmcnt(0)")
    if ALN: a(f"s_add_u32 s20, s20, {ALN-1}\ns_addc_u32 s21, s21, 0\ns_and_b32 s20, s20, {-ALN}")
    a(f"""
s_load_dword s{sNON}, s[20:21], 0
s_and_b32 s{sK}, s2, 7
s_lshl_b32 s{sK}, s{sK}, 5
s_lshr_b32 s{t0}, s2, 3
s_or_b32 s{sK}, s{sK}, s{t0}
s_and_b32 s{sW4}, s{sWV}, 3
s_lshl_b32 s{sW4K}, s{sW4}, 10
s_lshl_b32 s{sBUF}, s{sWV}, 13
s_add_u32 s{sBUF}, s{sBUF}, {GBUF}
s_barrier
""")
    consts()
    a(f"""
s_cmp_ge_u32 s{sWV}, 4
s_cbranch_scc1 KF_T
v_mov_b32 v111, 8
v_lshlrev_b32 v112, 3, v108
v_lshlrev_b32 v110, 4, v108
""")
    for i in range(7): a(f"v_add_u32 v{W2+1+2*i}, {i*512}, v112")
    a(f"s_cmp_ge_u32 s2, {NPROD}\ns_cbranch_scc1 KS_d\ns_waitcnt vmcnt(11)")
    pt('dst')
    for i in range(7):
        if i==6: a(Q16)
        a(f"v_lshlrev_b32_sdwa v{K+i}, 2, v{D+i} dst_sel:DWORD dst_unused:UNUSED_PAD src0_sel:DWORD src1_sel:BYTE_0\nds_add_rtn_u32 v{R+i}, v{K+i}, v111 offset:{HIST}")
    a(FULL+"\nKS_d:")
    gsync('b1',"KS_y1",mS,4,VZ,2)
    a(f"ds_read_b128 v[116:119], v113 offset:{HIST}")
    tagh()
    for i in range(7): a(f"v_lshrrev_b32 v{D+i}, 8, v{D+i}")
    a(f"""
v_mov_b32 v1, s{sNON}
s_waitcnt lgkmcnt(0)
v_add_u32 v2, v116, v117
v_add3_u32 v2, v2, v118, v119
v_mov_b32 v3, v2
""")
    dpp_scan(a,"v_add_u32",[3])
    a(f"""
v_sub_u32 v120, v3, v2
v_add_u32 v121, v120, v116
v_add_u32 v122, v121, v117
v_add_u32 v123, v122, v118
ds_write_b128 v113, v[120:123] offset:{HIST+1024}
""")
    for i in range(7):
        if i==6: a(Q16)
        a(f"ds_read_b32 v{K+i}, v{K+i} offset:{HIST+1024}")
    a(FULL)
    def tpub():
        for j in range(4): a(f"v_lshlrev_b32 v2, 1, v{120+j}\nv_lshl_or_b32 v{QA+2*j}, v{116+j}, 13, v2\nv_mov_b32 v{QA+2*j+1}, v1")
        a(f"""
s_lshl_b32 s{t2}, s2, 11
s_add_u32 s{t2}, s{t2}, {F_TBL}
s_lshl_b32 s{t3}, s{sWV}, 4
s_lshl_b64 exec, 0xffff, s{t3}
buffer_store_dwordx4 {P4(QA)}, v113, {SR4(sR)}, s{t2} offen{SC}
buffer_store_dwordx4 {P4(QA+4)}, v113, {SR4(sR)}, s{t2} offen offset:1024{SC}
s_mov_b64 exec, -1
""")
    if TE==0: tpub()
    a(f"s_cmp_ge_u32 s2, {NPROD}\ns_cbranch_scc1 KS_e\ns_waitcnt vmcnt({6 if TE==0 else 4})")
    if X&64:
        for i in range(7): a(f"v_and_b32 v{SRc+i}, 0x1ff, v{SRc+i}")
    for i in range(7): a(f"v_lshl_or_b32 v{W2+2*i}, v{D+i}, 19, v{SRc+i}")
    a(f"s_waitcnt lgkmcnt(0)")
    for i in range(7):
        if i==6: a(Q16)
        a(f"v_add_u32 v{K+i}, v{K+i}, v{R+i}\nds_write_b64 v{K+i}, {P2(W2+2*i)} offset:{S1}")
    a(FULL+"\nKS_e:")
    pt('sc1')
    if TE==1: tpub()
    a(f"""
v_lshlrev_b32 v114, 11, v0
s_lshr_b32 s{sLO}, s{sK}, 2
s_lshl_b32 s{sLO}, s{sLO}, 4
s_and_b32 s{t0}, s{sK}, 1
s_lshl_b32 s{t0}, s{t0}, 3
s_add_u32 s{sLO}, s{sLO}, s{t0}
s_and_b32 s{t0}, s{sK}, 2
s_lshl_b32 s{t0}, s{t0}, 9
s_add_u32 s{sLO}, s{sLO}, s{t0}
s_add_u32 s{sLO}, s{sLO}, {F_TBL}
v_cmp_gt_u32 vcc, {NPROD}, v0
v_mov_b32 v{TC}, 0
s_mul_i32 s{t0}, s2, {RST}
s_add_u32 s{t0}, s{t0}, {F_REC}
s_add_u32 s{t2}, s{t0}, 4096
v_mul_u32_u24 v115, {RST}, v0
v_add_u32 v115, {F_REC}, v115
""")
    gsync('bS',"KS_y2",mS,8,VZ,2,"s_waitcnt vmcnt(2)")
    tl=f"s_mov_b64 exec, vcc\nbuffer_load_dwordx2 {P2(TC)}, v114, {SR4(sR)}, s{sLO} offen{SC}\ns_mov_b64 exec, -1"
    a(f"""
s_cmp_ge_u32 s2, {NPROD}
s_cbranch_scc0 KS_h0
""")
    gwait("KS_h1",mGP,4,VZ,2)
    a(f"""
{tl}
v_mov_b32 v1, 0
s_branch KS_j
KS_h0:
""")
    order=[6,0,1,2,3,4,5]
    for i in order:
        if i==6: a(Q16)
        a(f"ds_read_b64 {P2(RO+2+4*i)}, v112 offset:{S1+i*512}")
        if i==6: a(FULL)
    for i in order:
        if i==6: a(Q16)
        a(f"s_waitcnt lgkmcnt(6)\nds_read_b64 {P2(RO+4*i)}, v{RO+3+4*i} offset:{ERAW}")
        if i==6: a(FULL)
    gwait("KS_ww",mW,4,VZ,2)
    for k,i in enumerate(order):
        if i==6: a(Q16)
        a(f"v_mov_b32 v{RO+3+4*i}, v1\nbuffer_store_dwordx4 {P4(RO+4*i)}, v110, {SR4(sR)}, s{t0 if i<4 else t2} offen offset:{1024*(i&3)}{SC}")
        if i==6: a(FULL)
    a(tl)
    pt('out')
    a(f"v_pk_maximum3_f16 v1, v{RO}, v{RO+1}, v{RO+1}\nv_pk_minimum3_f16 v2, v{RO}, v{RO+1}, v{RO+1}")
    for i in range(1,7):
        if i==6: a(Q16)
        a(f"v_pk_maximum3_f16 v1, v1, v{RO+4*i}, v{RO+4*i+1}\nv_pk_minimum3_f16 v2, v2, v{RO+4*i}, v{RO+4*i+1}")
    a(FULL)
    absmax_fin(a,1,2,3)
    a("KS_j:")
    gwait("KS_xw",mGX,4,VZ,2)
    a(f"ds_read_b32 v2, v{VZ} offset:{mC3}\ns_mov_b32 s{t1}, 0x41680000")
    xfrags([0,1,2])
    a(f"""
s_waitcnt lgkmcnt(4)
v_mul_f32 v1, v1, v2
v_cmp_nge_f32 {S2(t2)}, s{t1}, v1       ; !(14.5 >= e*c3)
""")
    xfrags([3]); w3rd()
    a(f"""
s_cmp_lg_u64 {S2(t2)}, 0
s_cselect_b32 s{t1}, 0x101, 1
v_mov_b32 v1, s{t1}
s_mov_b64 exec, 1
ds_add_u32 v{VZ}, v1 offset:{mE}
s_waitcnt vmcnt(0)
s_mov_b64 exec, vcc
KT_f:
v_cmp_ne_u32 vcc, s{sNON}, v{TC+1}
s_cbranch_vccz KT_g
s_mov_b64 exec, vcc
s_sub_u32 s{sBUD}, s{sBUD}, 1
s_cbranch_scc1 KT_f2
buffer_load_dwordx2 {P2(TC)}, v114, {SR4(sR)}, s{sLO} offen{SC}
s_waitcnt vmcnt(0)
s_branch KT_f
KT_f2:
s_mov_b32 s{sBUD}, 0
v_mov_b32 v{TC}, 0
KT_g:
s_mov_b64 exec, -1
""")
    pt('tp'); ret('rt1')
    a(f"""
v_lshrrev_b32 v{TO}, 16, v{TC}
v_add_u32_sdwa v{TD}, v115, v{TC} dst_sel:DWORD dst_unused:UNUSED_PAD src0_sel:DWORD src1_sel:WORD_0
v_mov_b32 v{TC}, v{TO}
""")
    dpp_scan(a,"v_add_u32",[TO])
    a(f"""
v_readlane_b32 s{sTOT}, v{TO}, 63
v_sub_u32 v{TO}, v{TO}, v{TC}
s_mov_b32 s{sLO}, 0
s_movk_i32 s{t3}, 512
v_lshlrev_b32 v1, 4, v{TO}
v_sub_u32 v{TD}, v{TD}, v1
""")
    expand("KT_x")
    a(f"s_mov_b32 s{t1}, s{sTOT}")
    reclist(8)
    arrive(mSL,1)
    pt('exp')
    gwait("KS_rw",mPD,4,VZ,1)
    recload(8,"KT_l")
    pt('rl')
    def pfp():
        a(f"""
s_lshr_b32 s{t1}, s2, 3
s_mul_i32 s{t1}, s{t1}, 391
v_bfe_u32 v2, v0, 1, 7
v_add_u32 v2, s{t1}, v2
v_and_b32 v3, 1, v0
v_lshlrev_b32 v3, 7, v3
""")
        if PFH: a("s_mov_b32 exec_hi, 0")
        a(f"buffer_load_dword v{QA+15}, v[2:3], {SR4(sP)}, 0 idxen offen offset:3072{SC}\ns_mov_b64 exec, -1")
    if PFP==1: pfp()
    gwait("KS_w2",mPI,4,VZ,1)
    tru(WU1,32768)
    a("s_waitcnt lgkmcnt(0)")
    ugemm()
    pt('ud')
    hist(8,"KT_h",1 if PFP==1 else 0,True)
    if PFP==3: pfp()
    pt('hs'); ret('rt2')
    gwait("KS_b2",mH,16,VZ,1)
    pt('b2')
    scan(False)
    a(f"""
v_cmp_lt_u32 vcc, 0x100, v{QA}
s_add_u32 s{sNT}, s{t0}, 127
s_lshr_b32 s{sNT}, s{sNT}, 7
s_cmp_gt_u32 s{sNT}, {CAPT}
s_cbranch_scc1 KT_j
s_cbranch_vccnz KT_j
""")
    fill("KFz",False,4)
    a(f"v_mov_b32 v1, s{sNT}\nds_write_b32 v{VZ}, v1 offset:{mNT}")
    pt('fil')
    a(f"""
s_cmp_gt_u32 s{sTOT}, 512
s_cbranch_scc0 KT_k
KT_j:
ds_write_b32 v{VZ}, v{FA} offset:{mSLOW}
KT_k:
s_mov_b32 s{sWU}, -1
""")
    ranges()
    srd(a,sA,14,256*256)
    if PRIO: a("s_setprio 3")
    bar('b3')
    a("s_branch KF_J")
    a(f"""
KF_T:
v_lshrrev_b32 v2, 3, v{VL}
v_and_b32 v2, 2, v2
v_xor_b32 v2, v2, v3
v_lshl_add_u32 v{TD}, v2, 4, v{DR}
v_and_b32 v108, 255, v0
v_mov_b32 v32, 0
v_mov_b32 v33, 0
v_mov_b32 v34, 0
v_mov_b32 v35, 0
v_lshlrev_b32 v110, 4, v108
v_lshrrev_b32 v1, 4, v108
v_xor_b32 v37, v1, v0
v_and_b32 v37, 15, v37
v_lshlrev_b32 v37, 4, v37
v_lshl_add_u32 v36, v1, 8, s{sK}
""")
    sG=40
    srd(a,sX,4,N,stride=256)
    def xld():
        for j in range(4):
            if j==3: a(f"s_cmp_eq_u32 s{sWV}, 4\ns_cbranch_scc0 KT_c")
            a(f"s_add_u32 m0, s{sW4K}, {AGB+j*4096}\ns_nop 0\nbuffer_load_dwordx4 v[36:37], {SR4(sX)}, 0 idxen offen lds\nv_add_u32 v36, 4096, v36")
        a("KT_c:")
    def warm():
        a(f"""
v_and_b32 v1, 31, v{VL}
v_lshlrev_b32 v1, 1, v1
s_lshl_b32 s{t0}, s{sW4}, 6
s_add_u32 s{t0}, s{t0}, 65536
""")
        for k in range(4): a(f"buffer_load_ushort v{124+k}, v1, {SR4(sA)}, s{t0} offen offset:{k*256}")
    def zer():
        a(f"v_cmp_le_u32 vcc, 32, v108\ns_mov_b64 exec, vcc\nds_write_b128 v110, v[32:35]\ns_mov_b64 exec, -1")
        for j in range(1,4): a(f"ds_write_b128 v110, v[32:35] offset:{j*4096}")
        a(f"""
s_cmp_eq_u32 s{sWV}, 4
s_cbranch_scc0 KT_b
ds_write_b128 v110, v[32:35] offset:16384
KT_b:
""")
    srd(a,sA,12,260*256); warm(); vyc()
    if XORD==1: xld()
    zer()
    a(f"""
s_lshl_b32 s{t0}, s{sW4}, 2
v_lshrrev_b32 v2, 4, v{VL}
v_or_b32 v1, s{t0}, v2                  ; 4u+g
v_xor_b32 v3, v1, v{WT}
v_lshlrev_b32 v3, 4, v3
v_lshl_add_u32 v116, v{WT}, 8, v3
v_add_u32 v116, {PSC}, v116
v_add_u32 v117, {PSC}, v110
v_lshl_add_u32 v118, v1, 16, v3
""")
    if XORD==2:
        gwait("KG_x",mS,4,VZ,1); xld()
    sdma(sA,0)
    sdma(sA,32768,-32768)
    arrive(mW,1)
    pt('w1i')
    def w3m():
        w=[124,125,126,127]; u=QA
        for k in range(4): a(f"v_lshlrev_b32 v{w[k]}, 16, v{w[k]}\nv_mul_f32 v{w[k]}, s{sL2E}, v{w[k]}")
        a(f"""
v_cvt_pk_bf16_f32 v{u}, v124, v125
v_cvt_pk_bf16_f32 v{u+1}, v126, v127
v_lshlrev_b32 v{u+2}, 16, v{u}
v_and_b32 v{u+3}, 0xffff0000, v{u}
v_lshlrev_b32 v{u+4}, 16, v{u+1}
v_and_b32 v{u+5}, 0xffff0000, v{u+1}
v_add_f32 v{u+6}, abs(v124), abs(v125)
v_sub_f32 v{u+2}, v124, v{u+2}
v_sub_f32 v{u+3}, v125, v{u+3}
v_sub_f32 v{u+4}, v126, v{u+4}
v_sub_f32 v{u+5}, v127, v{u+5}
v_add_f32 v{u+7}, abs(v126), abs(v127)
s_mov_b32 exec_lo, 0
v_cvt_pk_bf16_f32 v{u}, v{u+2}, v{u+3}
v_cvt_pk_bf16_f32 v{u+1}, v{u+4}, v{u+5}
s_mov_b32 exec_lo, -1
v_add_f32 v{u+6}, v{u+6}, v{u+7}
v_lshlrev_b32 v1, 3, v108
v_and_b32 v{u+6}, 0x7fffffff, v{u+6}
ds_write_b64 v1, {P2(u)} offset:{W3L}
""")
        dpp_scan(a,"v_max_u32",[u+6])
        a(f"""
s_mov_b32 exec_lo, 0
s_brev_b32 exec_hi, 1
ds_max_u32 v{VZ}, v{u+6} offset:{mC3}
s_mov_b64 exec, -1
""")
    e2=8
    a(f"s_waitcnt vmcnt({11+e2})"); w3m()
    tagh()
    a(f"v_mov_b32 v1, {hex(ONE2)}\nds_write2_b32 v{VZ}, v1, v1 offset0:{OH//4} offset1:{OH//4+3}")
    gsync('bX',"KG_y1",mGX,4,VZ,2,f"s_waitcnt vmcnt({8+e2})")
    if GP_: a(f"s_setprio {GP_}")
    xfrags([0])
    a(f"s_waitcnt vmcnt({e2})")
    pt('xl')
    trfrag(WF,TD,32768,2048,256)
    a("s_waitcnt lgkmcnt(7)")
    trfrag(WF+16,TD,32768+8,2048,256)
    def pm(T,i):
        for s in range(4): a(mfma16(GA+8*T+4*i,WF+16*i+4*s,XF+16*T+4*s,None if s==0 else GA+8*T+4*i))
    def pcv(T):
        c=GA+8*T
        L=[f"v_mul_f32 v{c+j}, s{sL2E}, v{c+j}" for j in range(8)]
        L+=[f"v_cvt_pk_bf16_f32 v{c+j}, v{c+2*j}, v{c+2*j+1}" for j in range(4)]
        L+=[f"ds_write_b128 v116, {P4(c)} offset:{T*4096}"]
        return L
    def pmi(T,fillers):
        for i in range(2):
            for s in range(4):
                a(mfma16(GA+8*T+4*i,WF+16*i+4*s,XF+16*T+4*s,None if s==0 else GA+8*T+4*i))
                for _ in range(2):
                    if fillers: a(fillers.pop(0))
    a("s_waitcnt lgkmcnt(8)"); xfrags([1]); pm(0,0)
    a("s_waitcnt lgkmcnt(4)"); xfrags([2,3]); pm(0,1)
    a("s_waitcnt lgkmcnt(8)"); pm(1,0); pm(1,1)
    a("s_waitcnt lgkmcnt(0)"); pmi(2,pcv(0)); pmi(3,pcv(1))
    a(f"s_lshl_b32 s{t2}, s{sK}, 8\ns_nop 2")
    for T in (2,3):
        for x in pcv(T): a(x)
    gsync('pg',"KG_y2",mGP,4,VZ,2)
    for T in range(4): a(f"ds_read_b128 {P4(PO+4*T)}, v117 offset:{T*4096}")
    a("s_waitcnt vmcnt(0)")
    for T in range(3):
        a(f"s_add_u32 s{t1}, s{t2}, {F_P+T*16*65536}\ns_waitcnt lgkmcnt({3-T})")
        a(f"buffer_store_dwordx4 {P4(PO+4*T)}, v118, {SR4(sR)}, s{t1} offen{SC}")
    a(f"""
s_cmp_eq_u32 s{sWV}, 4
s_cbranch_scc0 KG_p
s_add_u32 s{t1}, s{t2}, {F_P+3*16*65536}
s_waitcnt lgkmcnt(0)
s_mov_b64 exec, 0xffff
buffer_store_dwordx4 {P4(PO+12)}, v118, {SR4(sR)}, s{t1} offen{SC}
s_mov_b64 exec, -1
KG_p:
""")
    pt('pst')
    if GP_: a("s_setprio 0")
    srd(a,sA,14,256*256)
    w3rd()
    for T in range(4):
        c=GA+8*T
        if T==3: a("s_mov_b32 exec_lo, 0x10001\ns_mov_b32 exec_hi, 0x10001")
        if T==0: a(f"v_pk_maximum3_f16 v114, v{c}, v{c+1}, v{c+2}\nv_pk_minimum3_f16 v115, v{c}, v{c+1}, v{c+2}\nv_pk_maximum3_f16 v114, v114, v{c+3}, v{c+3}\nv_pk_minimum3_f16 v115, v115, v{c+3}, v{c+3}")
        else: a(f"v_pk_maximum3_f16 v114, v114, v{c}, v{c+1}\nv_pk_minimum3_f16 v115, v115, v{c}, v{c+1}\nv_pk_maximum3_f16 v114, v114, v{c+2}, v{c+3}\nv_pk_minimum3_f16 v115, v115, v{c+2}, v{c+3}")
    a("s_mov_b64 exec, -1")
    absmax_fin(a,114,115,2)
    a(f"""
v_cmp_lt_u32 vcc, 0x40e80000, v114
v_mov_b32 v{TD}, v{VY}
s_cmp_lg_u64 vcc, 0
s_cselect_b32 s{sFLAG}, 0x101, 1
""")
    def pflag(n):
        a(f"""
s_lshl_b32 s{t2}, s2, 4
s_add_u32 s{t2}, s{t2}, {F_FLG}
v_mov_b32 v1, s{sFLAG}
s_waitcnt vmcnt({n})
s_mov_b64 exec, 1
ds_add_rtn_u32 v1, v{VZ}, v1 offset:{mPD}
s_waitcnt lgkmcnt(0)
v_readfirstlane_b32 s{t1}, v1
s_add_u32 s{t1}, s{t1}, s{sFLAG}
s_and_b32 s{t0}, s{t1}, 255
s_cmp_eq_u32 s{t0}, 4
s_cbranch_scc0 KG_f
KG_e:
ds_read_b32 v1, v{VZ} offset:{mE}
s_waitcnt lgkmcnt(0)
v_readfirstlane_b32 s{t0}, v1
s_and_b32 s{t3}, s{t0}, 255
s_cmp_lt_u32 s{t3}, 4
s_cbranch_scc1 KG_e
s_or_b32 s{t1}, s{t1}, s{t0}
s_cmp_gt_u32 s{t1}, 255
s_cselect_b32 s{t0}, 2, 0
s_xor_b32 s{t0}, s{sNON}, s{t0}
v_mov_b32 v1, s{t0}
buffer_store_dword v1, v{VZ}, {SR4(sR)}, s{t2} offen{SC}
s_waitcnt vmcnt(1)
s_branch KG_f2
KG_f:
s_waitcnt vmcnt(0)
KG_f2:
s_mov_b64 exec, -1
""")
        pt('pfl')
    def mid():
        sdma(sA,0); pflag(8); arrive(mPI,1)
    qfull("KGq",mid)
    tru(WU1,32768)
    a("s_waitcnt lgkmcnt(0)")
    ugemm()
    if FLP==1: gwait("KG_b2",mH,16,VZ,1)
    a(f"""
s_mov_b32 s{sLO}, {F_FLG}
buffer_load_dword v116, v110, {SR4(sR)}, s{sLO} offen{SC}
""")
    if PFP==2: pfp()
    a(f"""
s_mov_b32 s{sWU}, 1
s_or_b32 s{t1}, s{sNON}, 2
s_waitcnt vmcnt({1 if PFP==2 else 0})
KS_m:
v_or_b32 v2, 2, v116
v_cmp_ne_u32 vcc, s{t1}, v2
s_cbranch_vccz KS_n
s_sub_u32 s{sBUD}, s{sBUD}, 1
s_cbranch_scc1 KS_n
s_sleep {FSL}
s_mov_b64 exec, vcc
buffer_load_dword v116, v110, {SR4(sR)}, s{sLO} offen{SC}
s_mov_b64 exec, -1
s_waitcnt vmcnt(0)
s_branch KS_m
KS_n:
v_cmp_ne_u32 vcc, s{sNON}, v116
s_cbranch_vccz KS_o
ds_write_b32 v{VZ}, v{FA} offset:{mSLOW}
KS_o:
""")
    pt('flg')
    if PRIO: a("s_setprio 3")
    bar('b3')
    a(f"ds_read_b32 v1, v{VZ} offset:{mNT}\ns_waitcnt lgkmcnt(0)\nv_readfirstlane_b32 s{sNT}, v1")
    ranges()
    a("KF_J:")
    def rd_ga(off): a(f"ds_read_u16 v{GA0}, v{SB} offset:{GL+off}\nds_read_u16 v{GA0+1}, v{SB} offset:{GL+off+8}")
    def rd_gg(off): a(f"ds_read_u16 v{YA}, v{RB} offset:{GL+off}")
    ya=f"v_lshl_add_u32 v{EA}, v{YA}, 1, v{EC}\nv_add_u32 v{YA}, v{YA}, v{M4}"
    ry=f"ds_read_u16 v{VY}, v{YA} offset:{WB+2}"
    def rd_y(): a(ya); a(ry)
    def idx1(i): return f"ds_read_u16 v{IDX+2*i}, v{GA0+(i>>2)} offset:{WB+4*(i&3)}"
    def rd_idx():
        for i in range(8): a(idx1(i))
    def dmai(i): return f"buffer_load_dwordx4 {P2(IDX+2*i)}, {SR4(sP)}, 0 idxen offen offset:{1024*(i&3)}{GSC} lds"
    def dma():
        for i in range(8):
            if i==0: a(f"s_mov_b32 m0, s{sBUF}\ns_nop 0")
            if i==4: a(f"s_add_u32 m0, s{sBUF}, 4096\ns_nop 0")
            a(dmai(i))
    def dma_idx():
        for i in range(4): a(dmai(i))
        a(f"s_add_u32 m0, s{sBUF}, 4096"); a(idx1(0))
        for i in range(4,8): a(dmai(i))
        a(f"s_mov_b32 m0, s{sBUF}")
        for i in range(1,8): a(idx1(i))
    rd_b=f"ds_read_b128 {P4(B3+2)}, v{QAD}\nds_read_b128 {P4(B3+10)}, v{QAD} offset:512"
    rd_a3=f"ds_read_b64 {P2(A6)}, v{EA}\nds_read_b64 {P2(A6+2)}, v{VY} offset:{OH}\nds_read_b64 {P2(A6+4)}, v{EA}"
    def rd_a(t): return f"ds_read_b128 {P4(A+4*t)}, v{AR+t}"
    rd_s=f"ds_read_b64 {P2(SS)}, v{SA2}\nds_read_b64 {P2(SS+2)}, v{SA2+1}"
    def AQ(q): return A6+2*(q&1)
    win=f"v_add3_u32 v{VY}, v{VY}, v{OH2}, s{sW8}\nv_lshl_add_u32 v{QAD}, s{sQ}, 6, v{QC}"
    rd_ga(0); rd_gg(0)
    a(f"""
ds_read_u16 v{WT}, v1 offset:{GL}
ds_read_b32 v{GP}, v{VZ} offset:{mSLOW}
s_waitcnt lgkmcnt(3)
""")
    rd_idx()
    a("s_waitcnt lgkmcnt(0)")
    dma()
    pt('d0')
    a(f"v_readlane_b32 s{sNF}, v{WT}, s{sCNT}\nv_readfirstlane_b32 s{t3}, v{GP}")
    rd_y(); rd_ga(16)
    uscale()
    a(f"""
v_lshlrev_b32 v{OH2}, 1, v{OHC}
v_and_b32 v1, 31, v{VL}
v_lshlrev_b32 v1, 4, v1
v_lshlrev_b32 v2, 5, v{VL}
v_and_b32 v2, 0x400, v2
v_add3_u32 v{QC}, v1, v2, s{sQ2}
s_waitcnt lgkmcnt(0)
""")
    rd_idx()
    a(f"""
s_cmp_lg_u32 s{t3}, 0
s_cbranch_scc1 KF_SLOW
s_lshr_b32 s{sNF}, s{sNF}, 8
v_subrev_u32 v2, s{sNF}, v{VL}
v_and_b32 v2, 15, v2
v_add_u32 v{DR}, s{sNF}, v2
v_lshlrev_b32 v2, 2, v{DR}
ds_read_b32 v{GP}, v2 offset:{BT}
s_and_b32 s{sQ}, s{sNF}, -2
s_lshl_b32 s{sQ}, s{sQ}, 3
s_sub_u32 s{sW8}, 0, s{sQ}
{win}
{rd_b}
{rd_a3}
""")
    rd_gg(16)
    a(f"""
v_lshrrev_b32 v{WT}, 9, v{WT}
v_lshlrev_b32 v{WT}, 4, v{WT}           ; 8*(w&~1)
v_mov_b32 v{SS}, 0
v_mov_b32 v{SS+1}, 0
v_mov_b32 v{SS+2}, 0
v_mov_b32 v{SS+3}, 0
v_add_u32 v{SA}, {STB}, v{SA}
v_mov_b32 v1, {OH+64}
v_cndmask_b32 v{SA2}, v1, v{SA}, {S2(sMA)}
v_cndmask_b32 v{SA2+1}, v{SA}, v1, {S2(sMA)}
v_cndmask_b32 v{SI2}, 0, 16, {S2(sMA)}
v_cndmask_b32 v{SI2+1}, 16, 0, {S2(sMA)}
s_add_u32 s{t1}, s{sT0}, s{sCNT}
s_lshl_b32 s{t1}, s{t1}, 7
s_add_u32 s{t2}, s{sWV}, 48
v_mov_b32 v1, s{t2}
{mfma32(ACC+16,SS,SS,None)}
s_waitcnt lgkmcnt(0)
""")
    rd_y(); rd_ga(32)
    a(f"""
v_cmp_gt_u32 vcc, s{t0}, v{GP}
v_cmp_gt_u32 {S2(t2)}, s{t1}, v{GP}
v_cmp_gt_u32 {S2(t0)}, s{sNN}, v{DR}
v_cndmask_b32 v{DR}, v{DR}, v1, vcc
s_cmp_lg_u64 vcc, 0
s_cselect_b32 s{sHEAD}, 1, 0
s_and_b64 vcc, {S2(t2)}, {S2(t0)}
v_lshrrev_b32 v1, 2, v{VL}
v_cndmask_b32 v{DR}, 63, v{DR}, vcc
v_and_b32 v1, 4, v1
v_xor_b32 v1, v1, v{DR}
v_and_b32 v1, 15, v1
v_lshlrev_b32 v1, 4, v1
v_lshl_add_u32 v{DR}, v{DR}, 8, v1
v_sub_u32 v{DR}, v{DR}, v{OHC}
s_sub_u32 s{sCNT}, s{sCNT}, 1
s_mov_b32 m0, s{sBUF}
""")
    epi_consts()
    pt('pre')
    a("s_waitcnt vmcnt(0)")
    pt('g0')
    for t in range(8): a(rd_a(t))
    a("s_waitcnt lgkmcnt(6)")
    a(mfma32(Z[0],AQ(0),B3,None)); a(mfma32(Z[0],A,ID0,Z[0])); a(mfma32(Z[0],A+4,ID1,Z[0]))
    a("s_nop 8\ns_waitcnt lgkmcnt(0)")
    pt('pro')
    def finals(qprev):
        for u in range(2): a(f"v_pk_mul_f32 {P2(NN+2*u)}, {P2(NN+2*u)}, {P2(DD+2*u)}")
        for u in range(2): a(f"v_cvt_pk_bf16_f32 v{GP+2*(qprev&1)+u}, v{NN+2*u}, v{NN+2*u+1}")
    def ex(zc,r): return f"v_exp_f32 v{EE+r}, v{zc+r}"
    def body(first):
        for q in range(4):
            zc=Z[q&1]; zn=Z[(q+1)&1]; qn=(q+1)&3
            ms=[(AQ(qn),B3+4*qn),(A+8*qn,ID0),(A+8*qn+4,ID1)]
            pend=[0,1,2,3,8,9,10,11,4,5,12,13,6,7,14,15]
            f0=first and q==0
            if q==0: a(f"v_readlane_b32 s{sQ}, v{WT}, s{sCNT}")
            if q==3: a(f"s_waitcnt lgkmcnt(0)")
            a(mfma32(zn,ms[0][0],ms[0][1],None))
            if not f0:
                for j in range(4): a(f"v_rcp_f32 v{DD+j}, v{DD+j}")
            else:
                for r in range(4): a(ex(zc,pend.pop(0)))
            a(mfma32(zn,ms[1][0],ms[1][1],zn))
            for r in range(4): a(ex(zc,pend.pop(0)))
            a(mfma32(zn,ms[2][0],ms[2][1],zn))
            def bx():
                a(f"s_sub_u32 s{sW8}, 0, s{sQ}\ns_waitcnt vmcnt(0) lgkmcnt(0)\n{win}")
                rd_gg(32); rd_ga(48)
                a(rd_b); a(rd_a3); a(rd_s)
                for t in range(8): a(rd_a(t))
            if q==2 and XP==0: a(ex(zc,pend.pop(0))); bx()
            for r in range(4 if not (q==2 and XP==0) else 3): a(ex(zc,pend.pop(0)))
            if q&1:
                p=1 if q==1 else 0
                if not (first and q==1):
                    a(mfma32(ACC+16*p,GP,SS,None if first else ACC+16*p))
                    for r in range(4): a(ex(zc,pend.pop(0)))
            if q==2 and XP==1: bx()
            if f0: dma_idx()
            if q==3:
                a(ya)
                if first: dma_idx(); a(ry)
                else:
                    a(f"s_cmp_gt_u32 s{sCNT}, 1\ns_cbranch_scc0 KF_lt")
                    dma_idx(); a(ry)
                    a("KF_lb:")
            if not f0: finals((q-1)&3)
            seq=[]
            for u in range(2): seq.append(f"v_pk_add_f32 {P2(DD+2*u)}, {P2(EE+8*u)}, 1.0 op_sel_hi:[1,0]")
            for m in range(1,4):
                for u in range(2):
                    src=(zc+8*u) if m==1 else NN+2*u
                    seq.append(f"v_pk_fma_f32 {P2(NN+2*u)}, {P2(src)}, {P2(EE+8*u+2*m)}, {P2(src)}")
                for u in range(2): seq.append(f"v_pk_fma_f32 {P2(NN+2*u)}, {P2(zc+8*u+2*m)}, {P2(DD+2*u)}, {P2(NN+2*u)}")
                for u in range(2): seq.append(f"v_pk_fma_f32 {P2(DD+2*u)}, {P2(DD+2*u)}, {P2(EE+8*u+2*m)}, {P2(DD+2*u)}")
            slots=[0,1,2,3,5,7,9,11] if len(pend)==8 else [1,4,7,10]
            for k,x in enumerate(seq):
                a(x)
                if k in slots: a(ex(zc,pend.pop(0)))
            if q==2: a(f"v_pk_add_f32 {P2(RB)}, {P2(RB)}, {S2(sINC)}\nv_pk_add_f32 {P2(SA2)}, {P2(SA2)}, {P2(SI2)}")
    if PROF and 'dyn' in PTS: stamp(a,8); stamp(a,9,True)
    if PROF and 'clk' in PTS: stamp(a,6,True)
    n0=len(a.l)
    body(True)
    a("s_branch KF_LE\n.p2align 6\nKF_LOOP:")
    body(False)
    def keep(l):
        t=l.strip()
        if X&1 and t.startswith('buffer_load'): return False
        if X&2 and t.startswith('ds_read_b128 v[') and int(t.split('[')[1].split(':')[0])>=28: return False
        if X&8 and t.startswith('v_mfma'): return False
        if X&16 and t.startswith('v_pk_fma'): return False
        if X&32 and t.startswith('v_exp'): return False
        return True
    a.l[n0:]=[l for l in a.l[n0:] if keep(l)]
    import re
    if X&(128|256|512):
        L=[]
        for l in a.l[n0:]:
            m=re.match(r"\s*v_mfma_f32_32x32x16_bf16 v\[(\d+):\d+\], v\[(\d+):\d+\], v\[(\d+):\d+\], (.*)",l)
            if m and int(m.group(1))<ACC:
                d,x,y=int(m.group(1)),int(m.group(2)),int(m.group(3))
                if X&128:
                    if y==ID0: L+=["    "+mfma16(d+4,x,ID0,None),"    "+mfma16(d+8,x,ID1,None)]
                    elif y==ID1: L.append("    "+mfma16(d+12,x,ID0,None))
                    else: L.append("    "+mfma16(d,x,y,None))
                if X&256:
                    if y!=ID1: L.append(l)
                if X&512:
                    if y==ID0: L.append(f"    v_mfma_f32_32x32x64_f8f6f4 v[{d}:{d+15}], v[{x}:{x+7}], v[{ID0}:{ID0+7}], v[{d}:{d+15}]")
                    elif y!=ID1: L.append(l)
            else: L.append(l)
        a.l[n0:]=L
    a("KF_LE:")
    if PRIO: a(f"s_bitcmp1_b32 42, s{sCNT}\ns_cbranch_scc1 KF_pr\nKF_pb:")
    a(f"""
s_sub_u32 s{sCNT}, s{sCNT}, 1
s_cbranch_scc0 KF_LOOP
""")
    def loop_tails():
        a(f"KF_lt:\ns_cmp_eq_u32 s{sCNT}, s{sWU}\ns_cbranch_scc0 KF_lb")
        sdma(sA,32768,0,TD)
        a(f"""
s_branch KF_lb
KF_pr:
""")
        if PROF and 'dyn' in PTS:
            a("s_mov_b32 s90, s92\ns_mov_b32 s91, s93\ns_mov_b32 s92, s94\ns_mov_b32 s93, s95\ns_mov_b32 s94, s96\ns_mov_b32 s95, s97")
            stamp(a,8); stamp(a,9,True)
        a(f"""
s_setprio 2
s_cmp_eq_u32 s{sCNT}, 5
s_cbranch_scc1 KF_pb
s_setprio 1
s_cmp_eq_u32 s{sCNT}, 3
s_cbranch_scc1 KF_pb
s_setprio 0
s_branch KF_pb
""")
    for j in range(4): a(f"v_rcp_f32 v{DD+j}, v{DD+j}")
    a("s_nop 0")
    finals(3)
    a("s_nop 1")
    a(mfma32(ACC+16,GP,SS,ACC+16))
    pt('loop')
    if PROF and 'clk' in PTS: stamp(a,7,True)
    for p in range(2):
        if p==1: a("s_nop 0")
        for j in range(4):
            c=ACC+16*p+4*j
            a(f"v_cvt_pk_bf16_f32 v{c}, v{c}, v{c+1}\nv_cvt_pk_bf16_f32 v{c+1}, v{c+2}, v{c+3}")
            if p or j: a(f"v_xor_b32 v1, {(8*p+j)*16}, v{DR}")
            a(f"ds_write_b64 v{1 if (p or j) else DR}, {P2(c)} offset:{AGB}")
    a(f"""
s_and_b32 s{t1}, s{sNF}, 15
s_lshl_b32 s{t1}, s{t1}, 4
s_lshl_b32 s{t0}, s{sNF}, 8
s_or_b32 s{t0}, s{t0}, s{t1}
s_mul_i32 s{t1}, s{sWV}, 272
s_add_u32 s{t1}, s{t1}, {48*256}
v_lshlrev_b32 v3, 2, v{VL}
v_xor_b32 v1, s{t0}, v3
v_xor_b32 v2, s{t1}, v3
s_cmp_eq_u32 s{sHEAD}, 0
s_waitcnt vmcnt(0) lgkmcnt(0)
s_barrier
s_cbranch_scc1 KF_FIN
ds_read_b32 v4, v1 offset:{AGB}
ds_read_b32 v5, v2 offset:{AGB}
s_waitcnt lgkmcnt(0)
v_lshlrev_b32 v6, 16, v4
v_and_b32 v7, 0xffff0000, v4
v_lshlrev_b32 v8, 16, v5
v_and_b32 v9, 0xffff0000, v5
v_pk_add_f32 v[6:7], v[6:7], v[8:9]
v_cvt_pk_bf16_f32 v6, v6, v7
ds_write_b32 v1, v6 offset:{AGB}
KF_FIN:
""")
    OST=GBUF
    tru(WU2,32768)
    srd(a,sX,16,N*256)
    a(f"""
v_and_b32 v1, 15, v{VL}
s_lshl_b32 s{t0}, s{sOT}, 1
v_lshrrev_b32 v2, 5, v{VL}
v_or_b32 v2, s{t0}, v2
v_xor_b32 v2, v2, v1
v_lshlrev_b32 v2, 4, v2
v_lshl_add_u32 v2, v1, 8, v2
v_lshrrev_b32 v3, 1, v{VL}
v_and_or_b32 v2, v3, 8, v2
v_add_u32 v{AR}, {OST}, v2
v_lshlrev_b32 v{AR+1}, 1, v1
""")
    bar('mrg',"s_waitcnt vmcnt(0) lgkmcnt(0)")
    for T in range(4):
        xfrags([T])
        if T==2:
            a("s_waitcnt lgkmcnt(8)")
            for s in range(4): a(mfma16(UA,WU2+4*s,XF+4*s,UA))
    def silu(T):
        c=UA+4*T; e=EE+4*T
        L=[f"v_exp_f32 v{e+i}, v{c+i}" for i in range(4)]
        L+=[f"v_fma_f32 v{e+i}, v{e+i}, s{sL2E}, s{sL2E}" for i in range(4)]
        L+=[f"v_rcp_f32 v{e+i}, v{e+i}" for i in range(4)]
        L+=[f"v_mul_f32 v{e+i}, v{e+i}, v{c+i}" for i in range(4)]
        L+=[f"v_cvt_pk_bf16_f32 v{e}, v{e}, v{e+1}",f"v_cvt_pk_bf16_f32 v{e+1}, v{e+2}, v{e+3}",f"ds_write_b64 v{AR}, {P2(e)} offset:{T*4096}"]
        return L
    for T in range(1,4):
        a(f"s_waitcnt lgkmcnt({4*(3-T)})")
        for s in range(4):
            x,y=(WU2+4*s,XF+16*T+4*s) if T<3 else (XF+16*T+4*s,WU2+4*s)
            a(mfma16(UA+4*T,x,y,UA+4*T))
    for T in range(3):
        for x in silu(T): a(x)
    c=UA+12; e=EE+12
    a(f"""
v_exp_f32 v{e}, v{c}
s_add_u32 s{t0}, s{sK}, {48*256}
v_fma_f32 v{e}, v{e}, s{sL2E}, s{sL2E}
v_rcp_f32 v{e}, v{e}
s_lshl_b32 s{t0}, s{t0}, 8
v_mul_f32 v{e}, v{e}, v{c}
s_lshl_b32 s{t1}, s{sOT}, 5
s_add_u32 s{t0}, s{t0}, s{t1}
v_cvt_pk_bf16_f32 v{e}, v{e}, v{e}
s_mov_b32 exec_lo, 0xffff
s_mov_b32 exec_hi, 0
buffer_store_short v{e}, v{AR+1}, {SR4(sX)}, s{t0} offen{OSC}
s_mov_b64 exec, -1
v_lshlrev_b32 v1, 4, v0
v_add_u32 v1, {OST}, v1
v_lshrrev_b32 v2, 4, v0
v_xor_b32 v3, v2, v0
v_and_b32 v3, 15, v3
v_lshlrev_b32 v3, 4, v3
v_lshl_add_u32 v3, v2, 16, v3
s_lshl_b32 s{t0}, s{sK}, 8
s_add_u32 s{t1}, s{t0}, {32*65536}
s_waitcnt lgkmcnt(0)
s_barrier
ds_read_b128 {P4(A)}, v1
s_cmp_lt_u32 s{sWV}, 4
s_cbranch_scc0 KF_e1
ds_read_b128 {P4(A+4)}, v1 offset:8192
s_waitcnt lgkmcnt(0)
buffer_store_dwordx4 {P4(A+4)}, v3, {SR4(sX)}, s{t1} offen{OSC}
KF_e1:
s_waitcnt lgkmcnt(0)
buffer_store_dwordx4 {P4(A)}, v3, {SR4(sX)}, s{t0} offen{OSC}
""")
    a(f"""
s_or_b32 s{t0}, s2, s{sWV}
s_cbranch_scc1 KF_e2
v_mov_b32 v1, s{sNON}
v_mov_b32 v2, 0
s_mov_b64 exec, 1
buffer_store_dword v1, v2, {SR4(sR)}, 0 offen
KF_e2:
""")
    if PROF: a("s_waitcnt vmcnt(0)")
    stamp(a,10); stamp(a,11,True)
    stamp_out(a,1,sWV)
    a("KF_END:\ns_endpgm")
    loop_tails()
    hist_retry(8,"KT_h",True)
    a("KF_CEND:")
    SV=ACC; AGs=SV+8; RS_=SV+16
    a(f"""
KF_SLOW:
s_setprio 0
s_cmp_ge_u32 s{sWV}, 4
s_cselect_b32 s{sTOT}, 0, s{sTOT}
v_mov_b32 v1, s{sTOT}
ds_max_u32 v{VZ}, v1 offset:{mMX}
v_mov_b32 v{SS}, 0
v_mov_b32 v{SS+1}, 0
v_mov_b32 v{SS+2}, 0
v_mov_b32 v{SS+3}, 0
s_mov_b32 s{sLO}, 0
s_mov_b32 s{sLB}, s{sBUF}
s_sub_u32 s{t0}, s{sWV}, s{sT0}
s_lshl_b32 s{t0}, s{t0}, 4
v_add_u32 v{SV+4}, s{t0}, v{RB}
v_add_u32 v{SV+5}, s{t0}, v{SB}
s_lshl_b32 s{t0}, s{sWV}, 4
v_sub_u32 v{SV+6}, s{t0}, v{OHC}
v_and_b32 v{SV+7}, 31, v{VL}
v_lshlrev_b32 v{SV+7}, 2, v{SV+7}
v_lshlrev_b32 v1, 4, v0
""")
    for j in range(3): a(f"ds_write_b128 v1, {P4(SS)} offset:{AGG+j*8192}")
    a(f"""
v_lshlrev_b32 v1, 4, v{VL}
ds_write_b128 v1, {P4(SS)} offset:{AGG+3*8192}
s_waitcnt vmcnt(0) lgkmcnt(0)
s_barrier
ds_read_b32 v1, v{VZ} offset:{mMX}
s_waitcnt lgkmcnt(0)
v_readfirstlane_b32 s{sRND}, v1
KF_SR:
s_cmp_lt_u32 s{sLO}, s{sRND}
s_cbranch_scc0 KF_SE
s_barrier
v_lshlrev_b32 v1, 2, v{VL}
v_lshlrev_b32 v2, 8, v{VL}
ds_write_b32 v1, v2
s_waitcnt lgkmcnt(0)
s_barrier
s_cmp_ge_u32 s{sWV}, 4
s_cbranch_scc1 KF_S1
s_movk_i32 s{t3}, 256
""")
    expand("KF_x")
    a(f"s_sub_u32 s{t1}, s{sTOT}, s{sLO}")
    reclist(4)
    recload(4,"KF_rl")
    for i in range(4): a(f"s_mov_b64 {S2(sM+8+2*i)}, {S2(sM+2*i)}")
    hist(4,"KF_h",0,False)
    a("s_waitcnt lgkmcnt(0)")
    for i in range(4):
        a(f"""
v_mov_b32 v{RS_+4*i}, v{RC+4*i}
v_mov_b32 v{RS_+4*i+1}, v{RC+4*i+1}
v_mov_b32 v{RS_+4*i+2}, v{RC+4*i+2}
v_lshlrev_b32 v1, 6, v{RC+4*i+3}
v_sub_u32 v1, v{RK+i}, v1
v_cndmask_b32 v{RS_+4*i+3}, -1, v1, {S2(sM+8+2*i)}
""")
    a(f"""
KF_S1:
s_mov_b32 s{sHEAD}, 0                    ; 256*k
KF_SK:
s_waitcnt lgkmcnt(0)
s_barrier
s_cmp_ge_u32 s{sWV}, 4
s_cbranch_scc1 KF_S2
s_mov_b32 s{t1}, {EB}
""")
    for i in range(4):
        a(f"""
v_subrev_u32 v1, s{sHEAD}, v{RS_+4*i+3}
v_lshrrev_b32 v2, 19, v{RS_+4*i+2}
v_lshl_add_u32 v2, v2, 8, v1
v_lshl_add_u32 v3, v2, 1, s{t1}
v_cmpx_gt_u32 vcc, 0x100, v1
ds_write_b32 v2, v{RS_+4*i+2} offset:{WB}
ds_write_b64 v3, {P2(RS_+4*i)}
s_mov_b64 exec, -1
""")
    a("KF_S2:")
    scan(True)
    a(f"s_cmp_lg_u64 {S2(t2)}, 0\ns_cselect_b32 s{sFLAG}, 1, 0")
    fill("KFs",True,8)
    a(f"""
s_add_u32 s{sNT}, s{t0}, 127
s_lshr_b32 s{sNT}, s{sNT}, 7
s_waitcnt lgkmcnt(0)
s_barrier
v_mov_b32 v{RB}, v{SV+4}
v_mov_b32 v{SB}, v{SV+5}
v_mov_b32 v{SV+12}, v{SV+6}
s_mov_b32 s{sI}, s{sWV}
KF_SL:
s_cmp_lt_u32 s{sI}, s{sNT}
s_cbranch_scc0 KF_SN
""")
    rd_ga(0); rd_gg(0)
    for j in range(4): a(f"ds_read_u16 v{AGs+j}, v{SV+12} offset:{GL+2*j}")
    a("s_waitcnt lgkmcnt(0)")
    rd_y(); rd_idx()
    a("s_waitcnt lgkmcnt(0)")
    dma()
    for j in range(4): a(f"v_lshrrev_b32 v{AGs+j}, 8, v{AGs+j}")
    a(f"""
v_readfirstlane_b32 s{sQ}, v{AGs}
s_nop 3
s_and_b32 s{sQ}, s{sQ}, -2
s_lshl_b32 s{sQ}, s{sQ}, 3
s_sub_u32 s{sW8}, 0, s{sQ}
v_lshlrev_b32 v{OH2}, 1, v{OHC}
{win}
{rd_b}
{rd_a3}
""")
    for j in range(4): a(f"v_lshl_add_u32 v{AGs+j}, v{AGs+j}, 9, v{SV+7}")
    a("s_waitcnt vmcnt(0) lgkmcnt(0)")
    for t in range(8): a(rd_a(t))
    a("s_waitcnt lgkmcnt(0)")
    for q in range(4):
        z=Z[0]
        a(mfma32(z,AQ(q),B3+4*q,None)); a(mfma32(z,A+8*q,ID0,z)); a(mfma32(z,A+8*q+4,ID1,z))
        a("s_nop 15")
        for r in range(16): a(f"v_exp_f32 v{EE+r}, v{z+r}")
        for r in range(16): a(f"v_add_f32 v{EE+r}, 1.0, v{EE+r}")
        for r in range(16): a(f"v_rcp_f32 v{EE+r}, v{EE+r}")
        for m in range(4):
            for u in range(2):
                for par in range(2):
                    r=8*u+2*m+par; g=GP+2*u+par
                    a(f"v_mul_f32 v{g}, v{z+r}, v{EE+r}" if m==0 else f"v_fmac_f32 v{g}, v{z+r}, v{EE+r}")
        for j in range(4): a(f"ds_add_f32 v{AGs+j}, v{GP+j} offset:{AGG+q*128}")
        a("s_waitcnt lgkmcnt(0)")
    a(f"""
v_add_u32 v{SB}, 128, v{SB}
v_add_u32 v{RB}, 128, v{RB}
v_add_u32 v{SV+12}, 128, v{SV+12}
s_add_u32 s{sI}, s{sI}, 8
s_branch KF_SL
KF_SN:
s_add_u32 s{sHEAD}, s{sHEAD}, 256
s_cmp_lg_u32 s{sFLAG}, 0
s_cbranch_scc1 KF_SK
s_add_u32 s{sLO}, s{sLO}, 256
s_branch KF_SR
KF_SE:
s_cmp_ge_u32 s{sWV}, 4
s_cbranch_scc0 KF_SE2
""")
    sdma(sA,32768,0,TD)
    a(f"""
KF_SE2:
v_lshlrev_b32 v1, 4, v0
v_lshrrev_b32 v2, 5, v0
s_waitcnt vmcnt(0) lgkmcnt(0)
s_barrier
""")
    for j in range(4): a(f"ds_read_b128 {P4(A+4*j)}, v1 offset:{AGG+j*8192}")
    a(f"""
v_bfe_u32 v3, v0, 1, 4
v_xor_b32 v3, v3, v2
v_lshlrev_b32 v3, 4, v3
v_lshl_add_u32 v3, v2, 8, v3
v_and_b32 v1, 1, v0
v_lshl_add_u32 v3, v1, 3, v3
s_waitcnt lgkmcnt(0)
s_barrier
""")
    for j in range(4):
        a(f"v_cvt_pk_bf16_f32 v{A+4*j}, v{A+4*j}, v{A+4*j+1}\nv_cvt_pk_bf16_f32 v{A+4*j+1}, v{A+4*j+2}, v{A+4*j+3}")
        a(f"ds_write_b64 v3, {P2(A+4*j)} offset:{AGB+j*4096}")
    a("s_branch KF_FIN")
    hist_retry(4,"KF_h",False)
    return a.text()

if __name__=='__main__':
    import sys
    nm='standalone__mpnn_edge_mlp__graph_kernel'
    hdr=open('standalone__mpnn_edge_mlp__graph.s.ref').read().split('; Override')[0]
    out=hdr+(f"; @launch kernel={nm} grid=(256,1,1) block=(512,1,1) lds={KF_LDS}\n" if os.environ.get('LISTF') else f"; @launch grid=(256,1,1) block=(512,1,1) lds={KF_LDS}\n")
    out+='.amdgcn_target "amdgcn-amd-amdhsa--gfx950"\n.text\n'
    out+=f".globl {nm}\n.p2align 8\n.type {nm},@function\n"+gen_kf(nm)
    out+='.section .rodata,"a"\n.p2align 6\n'+kd(nm,256)
    open(sys.argv[1],'w').write(out)
```

```python
from common import *
X=int(os.environ.get('X','0'))
PRIO=int(os.environ.get('PRIO','1'))
DSP=[int(c,36) for c in os.environ.get('DSP','00000000')]
def EV(n,d): return int(os.environ.get(n,d))
TPOS=EV('TPOS',6); PFP=EV('PFP',0); XORD=EV('XORD',1); WUI=EV('WUI',2); FLP=EV('FLP',1); FSL=EV('FSL',8); TE=EV('TE',1); W1N=EV('W1N',5); GP_=EV('GP',1); TLB=EV('TLB',0); DBGP=EV('DBGP',0); ALN=EV('ALN',0); PFH=EV('PFH',0); XP=EV('XP',0); PFI=EV('PFI',0); SWW=EV('SWW',1)
PTS=os.environ.get('PTS','b1,bS,tp,pfl,rl,b2,b3,pro').split(',')
SC=' sc1'
OSC=os.environ.get('OSC',' sc1')
GSC=os.environ.get('GSC',' sc1')
NPROD=250; EP=1600; RST=EP*16+128
F_P=0x1000; F_REC=0x400000; F_TBL=0xB00000; F_FLG=0xB90000; F_SIZE=0xBA0000
CNT=0; MISC=256; OH=400; GL=928; BT=1872; STB=2144; RS=944
mSLOW=MISC; mS=MISC+4; mGX=MISC+8; mGP=MISC+12; mC3=MISC+16; mPD=MISC+20; mSL=MISC+24; mMX=MISC+28; mPI=MISC+32; mH=MISC+36; mNT=MISC+40; mW=MISC+44; mE=MISC+48
AGB=17408
W3L=AGB+56*256
Q2=AGB+16384; QS=52*128
S1=Q2; ERAW=Q2+12800
WB=Q2+4*QS; NULLG=49*256; EB=WB+NULLG+16
HIST=WB; PSC=WB+2048
GBUF=98304
KF_LDS=GBUF+65536
assert EB+2*NULLG+32<=GBUF and STB+16*RS<=AGB
AGG=STB
ONE2=0x3F803F80
NULLW2=0xFFFF|(512<<16)
CAPT=58
ID0=4; ID1=8; B3=12; A=28; Z=[60,76]; A3=92; EE=96; NN=112; DD=116; GP=120; SS=124
IDX=128; AR=144; RB=152; SB=153; SA=154; VY=155; OHC=156; VL=157; WT=158; DR=159
ACC=160; WU2=192; UA=208; WF=160; WU1=176; QA=224; RC=96; XF=28; GA=192
A6=244; QAD=250; QC=251; SA2=224; SI2=226; OH2=228; GA0=232; YA=234; EA=235; M4=236; EC=237; VZ=238; PO=92; TRU=240; TD=241; TC=242; TO=243; RK=244; FA=252
sP=24; sX=28; sA=32; sR=36; sM=40
sWV=56; sK=57; sNN=58; sI=59; sNT=60; sBUF=61; sQ=62; sW8=63; sCNT=64; sT0=65
sL2E=66; sINC=68; sRND=70; sTOT=71; sNON=72; sBUD=73; sW4=74; sLB=75
sWU=3; sW4K=22; sOT=23; sFLAG=76; sLO=77; sMA=78; sQ2=80; sHEAD=82; sNF=83
t0,t1,t2,t3=84,85,86,87
BUDGET=20000

def mfma32(d,x,y,c): return f"v_mfma_f32_32x32x16_bf16 v[{d}:{d+15}], v[{x}:{x+3}], v[{y}:{y+3}], "+("0" if c is None else f"v[{c}:{c+15}]")
def mfma16(d,x,y,c): return f"v_mfma_f32_16x16x32_bf16 v[{d}:{d+3}], v[{x}:{x+3}], v[{y}:{y+3}], "+("0" if c is None else f"v[{c}:{c+3}]")
def P2(r): return f"v[{r}:{r+1}]"
def P4(r): return f"v[{r}:{r+3}]"
def S2(r): return f"s[{r}:{r+1}]"
def SR4(r): return f"s[{r}:{r+3}]"

def gen_kf(name):
    a=Asm()
    def pt(n):
        if PROF and n in PTS: stamp(a,2+PTS.index(n))
    def ret(n):
        if PROF and n in PTS: a(f"s_sub_u32 s{90+PTS.index(n)}, {BUDGET}, s{sBUD}\ns_mul_i32 s{90+PTS.index(n)}, s{90+PTS.index(n)}, 100")
    def bar(n,w="s_waitcnt lgkmcnt(0)"):
        a(w+"\ns_barrier"); pt(n)
    def gsync(n,lab,off,target,va,vt,pre=None):
        if pre: a(pre)
        a(f"""
v_mov_b32 v{vt}, 1
s_mov_b64 exec, 1
ds_add_u32 v{va}, v{vt} offset:{off}
s_mov_b64 exec, -1
{lab}:
ds_read_b32 v{vt}, v{va} offset:{off}
s_waitcnt lgkmcnt(0)
v_readfirstlane_b32 s{t1}, v{vt}
s_and_b32 s{t1}, s{t1}, 255
s_cmp_lt_u32 s{t1}, {target}
s_cbranch_scc1 {lab}
""")
        pt(n)
    def gwait(lab,off,target,va,vt):
        a(f"""
{lab}:
ds_read_b32 v{vt}, v{va} offset:{off}
s_waitcnt lgkmcnt(0)
v_readfirstlane_b32 s{t1}, v{vt}
s_and_b32 s{t1}, s{t1}, 255
s_cmp_lt_u32 s{t1}, {target}
s_cbranch_scc1 {lab}
""")
    def consts():
        srd(a,sP,20,N,off=F_P-3072,stride=256)
        srd(a,sR,20,F_SIZE)
        a(f"""
s_cmp_lt_u32 s{sK}, {N-256*48}
s_cselect_b32 s{sNN}, 49, 48
s_mov_b32 s{sL2E}, {hex(LOG2E_NEG)}
s_mov_b32 s{sL2E+1}, {hex(LOG2E_NEG)}
s_mov_b32 s{sINC}, 16
s_mov_b32 s{sINC+1}, 16
s_mov_b32 s{sMA}, 0x0000ffff
s_mov_b32 s{sMA+1}, 0x0000ffff
s_mov_b32 s{sQ2}, {Q2}
s_mov_b32 s{sBUD}, {BUDGET}
v_lshrrev_b32 v2, 5, v{VL}              ; h
; g = 4 b2 + 2 b4 + b0 ; m = 2 b3 + b1 ; slot = 16 b2 + 4 m + (g&3)
v_lshrrev_b32 v1, 3, v{VL}
v_and_b32 v1, 2, v1
v_and_or_b32 v1, v{VL}, 5, v1           ; g
v_lshlrev_b32 v{RB}, 1, v1
v_lshlrev_b32 v3, 1, v{VL}
v_and_b32 v3, 4, v3
v_and_or_b32 v{M4}, v{VL}, 8, v3        ; 4m
v_lshlrev_b32 v{EC}, 1, v{M4}
v_add_u32 v{EC}, {EB}, v{EC}
v_lshlrev_b32 v3, 2, v1
v_and_or_b32 v3, v3, 16, v{M4}
v_and_or_b32 v3, v1, 3, v3              ; slot
v_lshl_add_u32 v3, v3, 8, s{sBUF}
v_and_b32 v{WT}, 15, v{VL}              ; n / c16
v_xor_b32 v1, v2, v{WT}
v_lshl_add_u32 v{AR}, v1, 4, v3
""")
        for t in range(1,8): a(f"v_xor_b32 v{AR+t}, {32*t}, v{AR}")
        a(f"""
v_mul_i32_i24 v{OHC}, -8, v2
v_mul_u32_u24 v{SA}, {RS}, v{WT}
v_and_b32 v1, 1, v{VL}
v_lshlrev_b32 v1, 4, v1
v_mov_b32 v3, 0x3f80
v_lshlrev_b32 v1, v1, v3
""")
        for s in range(2):
            for j in range(4):
                lo=3<<(16*s+2*j); hi=(3<<(16*s+8+2*j))
                a(f"s_mov_b32 vcc_lo, {hex(lo)}\ns_mov_b32 vcc_hi, {hex(hi)}\nv_cndmask_b32 v{ID0+4*s+j}, 0, v1, vcc")
        a(f"""
v_lshrrev_b32 v2, 4, v{VL}              ; a / g
v_lshlrev_b32 v{SB}, 1, v2
v_and_b32 v1, 1, v2
v_xor_b32 v1, v1, v{WT}
v_lshlrev_b32 v1, 4, v1
""")
        for i in range(8): a(f"v_xor_b32 v{IDX+2*i+1}, {(8*((i>>1)&1)+4*(i>>2)+2*(i&1))*16+3072-1024*(i&3)}, v1")
        a(f"v_xor_b32 v3, v2, v{WT}\nv_lshlrev_b32 v3, 4, v3\nv_lshl_add_u32 v3, v{WT}, 8, v3\nv_add_u32 v{FA}, {AGB}, v3")
        for s in range(1,4): a(f"v_xor_b32 v{FA+s}, {64*s}, v{FA}")
        a(f"""
s_lshl_b32 s{t0}, s{sW4}, 13
s_add_u32 s{t0}, s{t0}, {GBUF}
s_lshr_b32 s{t1}, s{sWV}, 2
s_lshl_b32 s{sOT}, s{sW4}, 1
s_or_b32 s{sOT}, s{sOT}, s{t1}
v_lshrrev_b32 v1, 2, v{WT}
v_lshl_add_u32 v1, v2, 3, v1
v_lshl_add_u32 v{DR}, v1, 6, s{t0}
v_xor_b32 v2, s{t1}, v2
v_and_b32 v2, 1, v2
v_and_b32 v3, 3, v{VL}
v_lshl_add_u32 v{TRU}, v2, 5, v{DR}
v_lshl_add_u32 v{TRU}, v3, 3, v{TRU}
""")
    def tagh():
        a(f"""
s_mul_i32 s{sNON}, s{sNON}, 0x9E3779B1
s_add_u32 s{sNON}, s{sNON}, 0x7F4A7C15
s_lshr_b32 s{t1}, s{sNON}, 15
s_xor_b32 s{sNON}, s{sNON}, s{t1}
""")
    def vyc():
        a(f"""
v_lshrrev_b32 v1, 4, v{VL}
v_and_b32 v1, 2, v1
v_xor_b32 v1, v1, v{VL}
v_and_b32 v1, 3, v1
v_lshlrev_b32 v1, 4, v1
v_lshrrev_b32 v2, 2, v{VL}
v_lshl_or_b32 v{VY}, v2, 8, v1
""")
    def trfrag(dst,addr,off,ks,hs):
        for s in range(4):
            a(f"ds_read_b64_tr_b16 {P2(dst+4*s)}, v{addr} offset:{off+s*ks}\nds_read_b64_tr_b16 {P2(dst+4*s+2)}, v{addr} offset:{off+s*ks+hs}")
    def tru(dst,off): trfrag(dst,TRU,off,2048,256)
    def sdma(sr,moff,loff=0,v=VY,js=range(8)):
        a(f"s_lshl_b32 s{t0}, s{sW4}, 6")
        for j in js:
            a(f"s_add_u32 m0, s{sBUF}, {loff+j*1024}\ns_add_u32 s{t1}, s{t0}, {moff+j*4096}\nbuffer_load_dwordx4 v{v}, {SR4(sr)}, s{t1} offen lds")
    def xfrags(Ts):
        for T in Ts:
            for s in range(4): a(f"ds_read_b128 {P4(XF+16*T+4*s)}, v{FA+s} offset:{T*4096}")
    def ugemm():
        for T in range(4):
            for s in range(4):
                x,y=(WU1+4*s,XF+16*T+4*s) if T<3 else (XF+16*T+4*s,WU1+4*s)
                a(mfma16(UA+4*T,x,y,None if s==0 else UA+4*T))
    def uscale():
        for j in range(7): a(f"v_pk_mul_f32 {P2(UA+2*j)}, {P2(UA+2*j)}, {S2(sL2E)}")
    def w3rd():
        a(f"v_lshlrev_b32 v1, 3, v{VL}")
        for q in range(4): a(f"ds_read_b64 {P2(B3+4*q+2*(q&1))}, v1 offset:{W3L+q*512}")
    F=A3
    def scan(slow):
        a(f"""
v_lshlrev_b32 v1, 2, v{VL}
ds_read_b32 v{F}, v1
v_cmp_gt_u32 vcc, s{sNN}, v{VL}
v_lshlrev_b32 v{F+1}, 8, v{VL}
s_waitcnt lgkmcnt(0)
v_sub_u32 v{QA}, v{F}, v{F+1}
""")
        if slow:
            a(f"""
s_movk_i32 s{t1}, 256
v_subrev_u32 v{QA}, s{sHEAD}, v{QA}
v_cmp_lt_i32 {S2(t2)}, s{t1}, v{QA}
v_med3_i32 v{QA}, v{QA}, 0, s{t1}
v_add_u32 v{F}, v{F+1}, v{QA}
""")
        a(f"""
v_add_u32 v3, 12, v{QA}
v_and_b32 v3, -16, v3
v_max_u32 v3, 80, v3
v_cndmask_b32 v3, 0, v3, vcc
v_mov_b32 v2, v3
""")
        dpp_scan(a,"v_add_u32",[2])
        a(f"""
v_readlane_b32 s{t0}, v2, 63
v_sub_u32 v2, v2, v3
""")
    def fill(lab,slow,nw):
        a(f"""
s_lshl_b32 s{t1}, s{sWV}, 4
v_add_u32 v{QA+1}, s{t1}, v2
v_lshrrev_b32 v{QA+1}, 3, v{QA+1}       ; 2*(G0+w)
v_add_u32 v{F+1}, s{t1}, v{F+1}         ; 256n+16w
v_subrev_u32 v{QA+2}, s{t1}, v3         ; g16-16w
""")
        if not slow: a(f"v_add_u32 v{QA+3}, v{QA+1}, v{SA}\nv_mov_b32 v{F+3}, 0x3f80\nds_write_b32 v1, v2 offset:{BT}")
        for k in range(16//nw):
            a(f"v_cmpx_lt_i32 vcc, {16*nw*k}, v{QA+2}\nds_write_b16 v{QA+1}, v{F+1+(k&1)} offset:{GL+2*nw*k}")
            if k+1<16//nw: a(f"v_add_u32 v{F+1+((k+1)&1)}, {16*nw}, v{F+1+(k&1)}")
            if not slow: a(f"ds_write_b16 v{QA+3}, v{F+3} offset:{STB+2*nw*k}")
        a(f"""
s_mov_b64 exec, -1
s_lshl_b32 s{t1}, s{sWV}, 2
v_sub_u32 v{QA+2}, v3, v{QA}
v_add_u32 v{F}, s{t1}, v{F}
v_subrev_u32 v{QA+2}, s{t1}, v{QA+2}    ; pad4 - 4w
s_mov_b32 s{t1}, {EB}
v_mov_b32 v{QA+4}, 0
v_mov_b32 v{QA+5}, 0
v_mov_b32 v{QA+6}, {hex(NULLW2)}
v_lshl_add_u32 v{QA+7}, v{F}, 1, s{t1}
""")
        for k in range(-(-20//nw)):
            a(f"v_cmpx_lt_i32 vcc, {4*nw*k}, v{QA+2}")
            if k==1: a(f"s_cbranch_vccz {lab}p")
            a(f"ds_write_b32 v{F}, v{QA+6} offset:{WB+4*nw*k}\nds_write_b64 v{QA+7}, {P2(QA+4)} offset:{8*nw*k}")
        a(f"""
{lab}p:
s_mov_b64 exec, -1
s_cmp_eq_u32 s{sWV}, 3
s_cbranch_scc0 {lab}q
s_lshr_b32 s{t1}, s{t0}, 3
v_lshl_add_u32 v{QA+1}, v{VL}, 1, s{t1}
v_mov_b32 v{QA+2}, {NULLG}
v_add_u32 v{QA+3}, {NULLG}, v1
v_lshlrev_b32 v{QA+7}, 1, v1
v_add_u32 v{QA+7}, {EB+2*NULLG}, v{QA+7}
s_mov_b64 exec, 0xff
ds_write_b16 v{QA+1}, v{QA+2} offset:{GL}
s_mov_b64 exec, 15
ds_write_b32 v{QA+3}, v{QA+6} offset:{WB}
ds_write_b64 v{QA+7}, {P2(QA+4)}
s_mov_b64 exec, -1
{lab}q:
""")
    def expand(lab):
        a(f"""
v_subrev_u32 v1, s{sLO}, v{TO}
v_add_u32 v2, v1, v{TC}
v_med3_i32 v1, v1, 0, s{t3}
v_med3_i32 v2, v2, 0, s{t3}
v_sub_u32 v2, v2, v1
v_lshl_add_u32 v1, v1, 2, s{sLB}
{lab}:
""")
        for j in range(16):
            a(f"v_cmpx_lt_i32 vcc, {j}, v2\nds_write_b32 v1, v{TD} offset:{4*j}")
        a(f"""
v_add_u32 v2, -16, v2
v_add_u32 v1, 64, v1
v_cmp_lt_i32 vcc, 0, v2
s_cmp_lg_u64 vcc, 0
s_cbranch_scc1 {lab}
s_mov_b64 exec, -1
""")
    def rl1(i): return f"buffer_load_dwordx4 {P4(RC+4*i)}, v{RK+i}, {SR4(sR)}, {'0' if i<4 else 's'+str(sQ)} offen offset:{1024*(i&3)}{SC}"
    def reclist(ns):
        a(f"v_lshl_add_u32 v1, v{VL}, 2, s{sLB}")
        for i in reversed(range(ns)): a(f"ds_read_b32 v{RK+i}, v1 offset:{256*i}")
        a(f"v_add_u32 v2, s{sLO}, v{VL}\nv_lshlrev_b32 v2, 4, v2\ns_movk_i32 s{sQ}, 4096")
        for i in range(ns):
            a(f"v_cmp_gt_i32 {S2(sM+2*i)}, s{t1}, v{VL}\ns_sub_u32 s{t1}, s{t1}, 64")
        a("s_waitcnt lgkmcnt(0)")
        for i in range(ns): a(f"v_add_u32 v{RK+i}, v{RK+i}, v2")
    def recload(ns,lab):
        for i in reversed(range(ns)):
            a(f"s_mov_b64 exec, {S2(sM+2*i)}\ns_cbranch_execz {lab}{i}\n{rl1(i)}\n{lab}{i}:")
        a("s_mov_b64 exec, -1")
    def hist(ns,lab,extra,scat):
        a(f"v_mov_b32 v1, 4\ns_mov_b32 s{sW8}, {EB}\n{lab}p:")
        def gm(i): return S2(t0+2*(i&1))
        def sc(i,n):
            a(f"""
s_mov_b64 exec, {gm(i)}
s_waitcnt lgkmcnt({n})
v_min_u32 v{RK+i}, {NULLG-4}, v{RK+i}
v_lshl_add_u32 v{RC+4*i+3}, v{RK+i}, 1, s{sW8}
ds_write_b32 v{RK+i}, v{RC+4*i+2} offset:{WB}
ds_write_b64 v{RC+4*i+3}, {P2(RC+4*i)}
""")
        for i in reversed(range(ns)):
            a(f"""
s_mov_b64 exec, {S2(sM+2*i)}
s_waitcnt vmcnt({i+extra})
v_cmpx_eq_u32 {gm(i)}, s{sNON}, v{RC+4*i+3}
v_lshrrev_b32 v{RC+4*i+3}, 17, v{RC+4*i+2}
ds_add_rtn_u32 v{RK+i}, v{RC+4*i+3}, v1
s_andn2_b64 {S2(sM+2*i)}, {S2(sM+2*i)}, {gm(i)}
""")
            a(f"s_mov_b64 vcc, {S2(sM+2*i)}" if i==ns-1 else f"s_or_b64 vcc, vcc, {S2(sM+2*i)}")
            if scat and i==0: a(f"s_cselect_b64 exec, 0, 1\nds_add_u32 v{VZ}, v1 offset:{mH}")
            if scat and i<ns-1: sc(i+1,(1 if i==ns-2 else 3)+(1 if i==0 else 0))
        if scat: sc(0,3)
        a(f"s_cbranch_vccnz {lab}r\n{lab}d:\ns_mov_b64 exec, -1")
    def hist_retry(ns,lab,scat):
        a(f"{lab}r:\ns_sub_u32 s{sBUD}, s{sBUD}, 1\ns_cbranch_scc1 {lab}x")
        recload(ns,lab+"l")
        a(f"s_waitcnt vmcnt(0)\ns_branch {lab}p\n{lab}x:\ns_mov_b32 s{sBUD}, 0")
        if scat: a(f"s_mov_b64 exec, 1\nds_add_u32 v{VZ}, v1 offset:{mH}")
        a(f"s_branch {lab}d")
    def qfull(lab,mid):
        H=QA+4; MX=QA+1
        a(f"v_xor_b32 v{TC}, 32, v{TRU}")
        trfrag(WF,TC,0,2048,256)
        a(f"""
s_lshr_b32 s{t0}, s{sW4}, 1
s_lshl_b32 s{t0}, s{t0}, 9
s_and_b32 s{t1}, s{sW4}, 1
s_lshl_b32 s{t1}, s{t1}, 3
s_add_u32 s{t0}, s{t0}, s{t1}
s_add_u32 s{t0}, s{t0}, {Q2}
v_lshl_add_u32 v120, v{SB}, 10, s{t0}
v_lshl_add_u32 v120, v{WT}, 4, v120
v_add_u32 v121, 256, v120
s_waitcnt lgkmcnt(0)
""")
        tru(WF+16,0)
        def cv(i,T,pk):
            c=GA+16*i+4*T
            L=[]
            if pk: L+=[f"v_pk_mul_f32 {P2(c)}, {P2(c)}, {S2(sL2E)}",f"v_pk_mul_f32 {P2(c+2)}, {P2(c+2)}, {S2(sL2E)}"]
            else: L+=[f"v_mul_f32 v{c+k}, s{sL2E}, v{c+k}" for k in range(4)]
            L+=[f"v_and_b32 v{H+k}, 0xffff0000, v{c+k}" for k in range(4)]
            L+=[f"v_maximum3_f32 v{MX}, {'0' if T==0 and i==0 else 'v'+str(MX)}, abs(v{c}), abs(v{c+1})",f"v_maximum3_f32 v{MX}, v{MX}, abs(v{c+2}), abs(v{c+3})"]
            if pk: L+=[f"v_pk_add_f32 {P2(c)}, {P2(c)}, {P2(H)} neg_lo:[0,1] neg_hi:[0,1]",f"v_pk_add_f32 {P2(c+2)}, {P2(c+2)}, {P2(H+2)} neg_lo:[0,1] neg_hi:[0,1]"]
            else: L+=[f"v_sub_f32 v{c+k}, v{c+k}, v{H+k}" for k in range(4)]
            L+=[f"v_cvt_pk_bf16_f32 v{c+k}, v{c+k}, v{H+k}" for k in range(4)]
            return L
        for T in range(4):
            for s in range(4): a(mfma16(GA+4*T,XF+16*T+4*s,WF+4*s,None if s==0 else GA+4*T))
        a("s_waitcnt lgkmcnt(0)")
        fl=cv(0,0,0)+cv(0,1,0)
        for T in range(4):
            for s in range(4):
                a(mfma16(GA+16+4*T,XF+16*T+4*s,WF+16+4*s,None if s==0 else GA+16+4*T))
                for _ in range(2): a(fl.pop(0))
        if PFI==0: mid()
        for x in fl+cv(0,2,1)+cv(1,0,1)+cv(1,1,1)+cv(1,2,1): a(x)
        if PFI==1: mid()
        gwait(lab+"w",mSL,4,VZ,1)
        for i in range(2):
            for T in range(3):
                c=GA+16*i+4*T
                a(f"ds_write2st64_b64 v{120+i}, {P2(c)}, {P2(c+2)} offset0:{16*T} offset1:{16*T+2}")
        a("s_mov_b64 exec, 0xffff")
        for i in range(2):
            c=GA+16*i+12
            a(f"""
v_mul_f32 v{c}, s{sL2E}, v{c}
v_and_b32 v{H}, 0xffff0000, v{c}
v_maximum3_f32 v{MX}, v{MX}, abs(v{c}), abs(v{c})
v_sub_f32 v{c}, v{c}, v{H}
v_cvt_pk_bf16_f32 v{c}, v{c}, v{H}
ds_write2st64_b64 v{120+i}, {P2(c)}, {P2(c+2)} offset0:48 offset1:50
""")
        a(f"""
s_mov_b64 exec, -1
v_cmp_nge_f32 vcc, 0x40e80000, v{MX}
s_cbranch_vccz {lab}q
ds_write_b32 v{VZ}, v{FA} offset:{mSLOW}
{lab}q:
""")
        pt('qd')
    def ranges():
        a(f"""
s_lshr_b32 s{sCNT}, s{sNT}, 3
s_mul_i32 s{sT0}, s{sCNT}, s{sWV}
s_and_b32 s{t2}, s{sNT}, 7
s_min_u32 s{t3}, s{t2}, s{sWV}
s_add_u32 s{sT0}, s{sT0}, s{t3}
s_cmp_lt_u32 s{sWV}, s{t2}
s_addc_u32 s{sCNT}, s{sCNT}, 0
s_lshl_b32 s{t0}, s{sT0}, 7
s_lshl_b32 s{t2}, s{sT0}, 4
v_add_u32 v{SB}, s{t2}, v{SB}
v_add_u32 v{RB}, s{t2}, v{RB}
v_sub_u32 v{SA}, v{SA}, v{OHC}
v_add_u32 v{SA}, s{t2}, v{SA}
s_add_u32 s{t3}, s{sT0}, s{sCNT}
v_min_u32 v1, 8, v{VL}
v_sub_u32 v1, s{t3}, v1
v_lshlrev_b32 v1, 4, v1
v_max_i32 v1, 0, v1
""")
    def epi_consts(): pass
    def arrive(off,vt): a(f"v_mov_b32 v{vt}, 1\ns_mov_b64 exec, 1\nds_add_u32 v{VZ}, v{vt} offset:{off}\ns_mov_b64 exec, -1")

    D=28; SRc=36; K=44; R=52; W2=60; RO=80
    sD=40; sS=44; sE=48
    Q16="s_mov_b64 exec, 0xffff"; FULL="s_mov_b64 exec, -1"
    a(f"""
{name}:
s_getpc_b64 {S2(t2)}
s_cmp_ge_u32 s2, 256
s_cbranch_scc1 KF_END
s_load_dwordx16 s[4:19], s[0:1], 0
s_load_dwordx2 s[20:21], s[0:1], 64
v_lshrrev_b32 v1, 6, v0
s_and_b32 s{t0}, s2, 0xf8
v_add_lshl_u32 v2, v1, s{t0}, 7
v_readfirstlane_b32 s{sWV}, v1
v_min_u32 v2, KF_CEND-{name}-8, v2
s_mov_b64 exec, 1
global_load_dword v{QA+15}, v2, {S2(t2)}
s_mov_b64 exec, -1
v_and_b32 v{VL}, 63, v0
v_mov_b32 v{VZ}, 0
v_lshlrev_b32 v113, 4, v{VL}
s_cmp_ge_u32 s{sWV}, 4
s_cbranch_scc0 KF_S
v_lshlrev_b32 v2, 2, v0
v_lshlrev_b32 v3, 8, v{VL}
ds_write_b32 v2, v{VZ} offset:{HIST-1024}
v_lshlrev_b32 v2, 2, v{VL}
ds_write2st64_b32 v2, v3, v{VZ} offset0:0 offset1:1
s_waitcnt lgkmcnt(0)
""")
    stamp(a,0,True); stamp(a,1); pt('st')
    a(f"""
s_load_dword s{sNON}, s[20:21], 0
s_lshr_b32 s{t0}, s{t0}, 1
s_add_u32 s{t0}, s{t0}, s{sWV}
s_sub_u32 s{t0}, s{t0}, 4
s_lshl_b32 s{t0}, s{t0}, 9
v_lshl_add_u32 v2, v{VL}, 7, s{t0}
s_mov_b64 exec, 15
global_load_dword v{QA+15}, v2, s[12:13]
global_load_dword v{QA+15}, v2, s[14:15]
s_mov_b64 exec, -1
""")
    if TLB:
        a(f"""
s_lshr_b32 s{t0}, s{t0}, 9
s_mul_i32 s{t1}, s{t0}, {2*RST}
s_add_u32 s{t1}, s{t1}, {F_REC+EP*16}
s_add_u32 s52, s20, s{t1}
s_addc_u32 s53, s21, 0
s_load_dword s44, s[52:53], 0
s_load_dword s45, s[52:53], {RST}
""")
    a(f"""
s_branch KF_B0
KF_S:
s_min_u32 s{t2}, s2, {NPROD-1}
s_mul_i32 s{t2}, s{t2}, {EP*4}
s_mul_i32 s{t3}, s{sWV}, 400
v_add_u32 v108, s{t3}, v{VL}
v_lshlrev_b32 v109, 2, v108
s_mov_b32 s{sD+2}, {E*4}
s_mov_b32 s{sD+3}, 0x00020000
s_waitcnt lgkmcnt(0)
""")
    stamp(a,0,True); stamp(a,1); pt('st')
    a(f"s_mov_b32 s{sD}, s10\ns_and_b32 s{sD+1}, s11, 0xffff")
    def ld7(dst,sr):
        for i in range(7):
            if i==6: a(Q16)
            a(f"buffer_load_dword v{dst+i}, v109, {SR4(sr)}, s{t2} offen offset:{i*256}")
        a(FULL)
    ld7(D,sD)
    srd(a,sS,8,E*4); srd(a,sE,6,E*8)
    ld7(SRc,sS)
    a(f"""
s_lshl_b32 s{sLB}, s{t3}, 3
s_lshl_b32 s{t2}, s{t2}, 1
s_add_u32 s{t2}, s{t2}, s{sLB}
s_add_u32 m0, s{sLB}, {ERAW}
s_add_u32 s{sLB}, s{sLB}, {S1}
""")
    for j in range(4):
        if j==3: a("s_mov_b64 exec, 0xff")
        a(f"buffer_load_dwordx4 v113, {SR4(sE)}, s{t2} offen offset:{1024*j} lds")
    a(FULL)
    a(f"""
KF_B0:
""")
    if DBGP:
        a("v_mov_b32 v1, 0")
        for j,r in enumerate((4,6,8,10,12,14,16,18,20)): a(f"v_writelane_b32 v1, s{r}, {j}")
        a(f"v_lshlrev_b32 v2, 2, v{VL}\ns_mov_b64 exec, 0x1ff\nglobal_store_dword v2, v1, s[18:19]\ns_mov_b64 exec, -1\ns_waitcnt vmcnt(0)")
    if ALN: a(f"s_add_u32 s20, s20, {ALN-1}\ns_addc_u32 s21, s21, 0\ns_and_b32 s20, s20, {-ALN}")
    a(f"""
s_and_b32 s{sK}, s2, 7
s_lshl_b32 s{sK}, s{sK}, 5
s_lshr_b32 s{t0}, s2, 3
s_or_b32 s{sK}, s{sK}, s{t0}
s_and_b32 s{sW4}, s{sWV}, 3
s_lshl_b32 s{sW4K}, s{sW4}, 10
s_lshl_b32 s{sBUF}, s{sWV}, 13
s_add_u32 s{sBUF}, s{sBUF}, {GBUF}
s_barrier
""")
    consts()
    a(f"""
s_cmp_ge_u32 s{sWV}, 4
s_cbranch_scc1 KF_T
v_mov_b32 v111, 8
v_lshlrev_b32 v112, 3, v108
v_lshlrev_b32 v110, 4, v108
""")
    for i in range(7): a(f"v_add_u32 v{W2+1+2*i}, {i*512}, v112")
    a(f"s_cmp_ge_u32 s2, {NPROD}\ns_cbranch_scc1 KS_d\ns_waitcnt vmcnt(11)")
    pt('dst')
    for i in range(7):
        if i==6: a(Q16)
        a(f"v_lshlrev_b32_sdwa v{K+i}, 2, v{D+i} dst_sel:DWORD dst_unused:UNUSED_PAD src0_sel:DWORD src1_sel:BYTE_0\nds_add_rtn_u32 v{R+i}, v{K+i}, v111 offset:{HIST}")
    a(FULL+"\nKS_d:")
    gsync('b1',"KS_y1",mS,4,VZ,2)
    a(f"ds_read_b128 v[116:119], v113 offset:{HIST}")
    for i in range(7): a(f"v_lshrrev_b32 v{D+i}, 8, v{D+i}")
    a(f"""
s_waitcnt lgkmcnt(0)
v_add_u32 v2, v116, v117
v_add3_u32 v2, v2, v118, v119
v_mov_b32 v3, v2
""")
    dpp_scan(a,"v_add_u32",[3])
    a(f"""
v_sub_u32 v120, v3, v2
v_add_u32 v121, v120, v116
v_add_u32 v122, v121, v117
v_add_u32 v123, v122, v118
ds_write_b128 v113, v[120:123] offset:{HIST+1024}
""")
    for i in range(7):
        if i==6: a(Q16)
        a(f"ds_read_b32 v{K+i}, v{K+i} offset:{HIST+1024}")
    a(FULL)
    def tpub():
        a(f"s_load_dword s{sNON}, s[20:21], 0")
        for j in range(4): a(f"v_lshlrev_b32 v2, 1, v{120+j}\nv_lshl_or_b32 v{QA+2*j}, v{116+j}, 13, v2")
        a("s_waitcnt lgkmcnt(0)")
        tagh()
        a(f"v_mov_b32 v1, s{sNON}")
        for j in range(4): a(f"v_mov_b32 v{QA+2*j+1}, v1")
        a(f"""
s_lshl_b32 s{t2}, s2, 11
s_add_u32 s{t2}, s{t2}, {F_TBL}
s_lshl_b32 s{t3}, s{sWV}, 4
s_lshl_b64 exec, 0xffff, s{t3}
buffer_store_dwordx4 {P4(QA)}, v113, {SR4(sR)}, s{t2} offen{SC}
buffer_store_dwordx4 {P4(QA+4)}, v113, {SR4(sR)}, s{t2} offen offset:1024{SC}
s_mov_b64 exec, -1
""")
    if TE==0: tpub()
    a(f"s_cmp_ge_u32 s2, {NPROD}\ns_cbranch_scc1 KS_e\ns_waitcnt vmcnt({6 if TE==0 else 4})")
    if X&64:
        for i in range(7): a(f"v_and_b32 v{SRc+i}, 0x1ff, v{SRc+i}")
    for i in range(7): a(f"v_lshl_or_b32 v{W2+2*i}, v{D+i}, 19, v{SRc+i}")
    a(f"s_waitcnt lgkmcnt(0)")
    for i in range(7):
        if i==6: a(Q16)
        a(f"v_add_u32 v{K+i}, v{K+i}, v{R+i}\nds_write_b64 v{K+i}, {P2(W2+2*i)} offset:{S1}")
    a(FULL+"\nKS_e:")
    pt('sc1')
    if TE==1: tpub()
    a(f"""
v_lshlrev_b32 v114, 11, v0
s_lshr_b32 s{sLO}, s{sK}, 2
s_lshl_b32 s{sLO}, s{sLO}, 4
s_and_b32 s{t0}, s{sK}, 1
s_lshl_b32 s{t0}, s{t0}, 3
s_add_u32 s{sLO}, s{sLO}, s{t0}
s_and_b32 s{t0}, s{sK}, 2
s_lshl_b32 s{t0}, s{t0}, 9
s_add_u32 s{sLO}, s{sLO}, s{t0}
s_add_u32 s{sLO}, s{sLO}, {F_TBL}
v_cmp_gt_u32 vcc, {NPROD}, v0
v_mov_b32 v{TC}, 0
s_mul_i32 s{t0}, s2, {RST}
s_add_u32 s{t0}, s{t0}, {F_REC}
s_add_u32 s{t2}, s{t0}, 4096
v_mul_u32_u24 v115, {RST}, v0
v_add_u32 v115, {F_REC}, v115
""")
    gsync('bS',"KS_y2",mS,8,VZ,2,"s_waitcnt vmcnt(2)")
    tl=f"s_mov_b64 exec, vcc\nbuffer_load_dwordx2 {P2(TC)}, v114, {SR4(sR)}, s{sLO} offen{SC}\ns_mov_b64 exec, -1"
    a(f"""
s_cmp_ge_u32 s2, {NPROD}
s_cbranch_scc0 KS_h0
""")
    gwait("KS_h1",mGP,4,VZ,2)
    a(f"""
{tl}
v_mov_b32 v1, 0
s_branch KS_j
KS_h0:
""")
    order=[6,0,1,2,3,4,5]
    for i in order:
        if i==6: a(Q16)
        a(f"ds_read_b64 {P2(RO+2+4*i)}, v112 offset:{S1+i*512}")
        if i==6: a(FULL)
    for i in order:
        if i==6: a(Q16)
        a(f"s_waitcnt lgkmcnt(6)\nds_read_b64 {P2(RO+4*i)}, v{RO+3+4*i} offset:{ERAW}")
        if i==6: a(FULL)
    gwait("KS_ww",mW,4,VZ,2)
    for k,i in enumerate(order):
        if i==6: a(Q16)
        a(f"v_mov_b32 v{RO+3+4*i}, v1\nbuffer_store_dwordx4 {P4(RO+4*i)}, v110, {SR4(sR)}, s{t0 if i<4 else t2} offen offset:{1024*(i&3)}{SC}")
        if i==6: a(FULL)
    a(tl)
    pt('out')
    a(f"v_pk_maximum3_f16 v1, v{RO}, v{RO+1}, v{RO+1}\nv_pk_minimum3_f16 v2, v{RO}, v{RO+1}, v{RO+1}")
    for i in range(1,7):
        if i==6: a(Q16)
        a(f"v_pk_maximum3_f16 v1, v1, v{RO+4*i}, v{RO+4*i+1}\nv_pk_minimum3_f16 v2, v2, v{RO+4*i}, v{RO+4*i+1}")
    a(FULL)
    absmax_fin(a,1,2,3)
    a("KS_j:")
    gwait("KS_xw",mGX,4,VZ,2)
    a(f"ds_read_b32 v2, v{VZ} offset:{mC3}\ns_mov_b32 s{t1}, 0x41680000")
    xfrags([0,1,2])
    a(f"""
s_waitcnt lgkmcnt(4)
v_mul_f32 v1, v1, v2
v_cmp_nge_f32 {S2(t2)}, s{t1}, v1       ; !(14.5 >= e*c3)
""")
    xfrags([3]); w3rd()
    a(f"""
s_cmp_lg_u64 {S2(t2)}, 0
s_cselect_b32 s{t1}, 0x101, 1
v_mov_b32 v1, s{t1}
s_mov_b64 exec, 1
ds_add_u32 v{VZ}, v1 offset:{mE}
s_waitcnt vmcnt(0)
s_mov_b64 exec, vcc
KT_f:
v_cmp_ne_u32 vcc, s{sNON}, v{TC+1}
s_cbranch_vccz KT_g
s_mov_b64 exec, vcc
s_sub_u32 s{sBUD}, s{sBUD}, 1
s_cbranch_scc1 KT_f2
buffer_load_dwordx2 {P2(TC)}, v114, {SR4(sR)}, s{sLO} offen{SC}
s_waitcnt vmcnt(0)
s_branch KT_f
KT_f2:
s_mov_b32 s{sBUD}, 0
v_mov_b32 v{TC}, 0
KT_g:
s_mov_b64 exec, -1
""")
    pt('tp'); ret('rt1')
    a(f"""
v_lshrrev_b32 v{TO}, 16, v{TC}
v_add_u32_sdwa v{TD}, v115, v{TC} dst_sel:DWORD dst_unused:UNUSED_PAD src0_sel:DWORD src1_sel:WORD_0
v_mov_b32 v{TC}, v{TO}
""")
    dpp_scan(a,"v_add_u32",[TO])
    a(f"""
v_readlane_b32 s{sTOT}, v{TO}, 63
v_sub_u32 v{TO}, v{TO}, v{TC}
s_mov_b32 s{sLO}, 0
s_movk_i32 s{t3}, 512
v_lshlrev_b32 v1, 4, v{TO}
v_sub_u32 v{TD}, v{TD}, v1
""")
    expand("KT_x")
    a(f"s_mov_b32 s{t1}, s{sTOT}")
    reclist(8)
    arrive(mSL,1)
    pt('exp')
    gwait("KS_rw",mPD,4,VZ,1)
    recload(8,"KT_l")
    pt('rl')
    def pfp():
        a(f"""
s_lshr_b32 s{t1}, s2, 3
s_mul_i32 s{t1}, s{t1}, 391
v_bfe_u32 v2, v0, 1, 7
v_add_u32 v2, s{t1}, v2
v_and_b32 v3, 1, v0
v_lshlrev_b32 v3, 7, v3
""")
        if PFH: a("s_mov_b32 exec_hi, 0")
        a(f"buffer_load_dword v{QA+15}, v[2:3], {SR4(sP)}, 0 idxen offen offset:3072{SC}\ns_mov_b64 exec, -1")
    if PFP==1: pfp()
    gwait("KS_w2",mPI,4,VZ,1)
    tru(WU1,32768)
    a("s_waitcnt lgkmcnt(0)")
    ugemm()
    pt('ud')
    hist(8,"KT_h",1 if PFP==1 else 0,True)
    if PFP==3: pfp()
    pt('hs'); ret('rt2')
    gwait("KS_b2",mH,16,VZ,1)
    pt('b2')
    scan(False)
    a(f"""
v_cmp_lt_u32 vcc, 0x100, v{QA}
s_add_u32 s{sNT}, s{t0}, 127
s_lshr_b32 s{sNT}, s{sNT}, 7
s_cmp_gt_u32 s{sNT}, {CAPT}
s_cbranch_scc1 KT_j
s_cbranch_vccnz KT_j
""")
    fill("KFz",False,4)
    a(f"v_mov_b32 v1, s{sNT}\nds_write_b32 v{VZ}, v1 offset:{mNT}")
    pt('fil')
    a(f"""
s_cmp_gt_u32 s{sTOT}, 512
s_cbranch_scc0 KT_k
KT_j:
ds_write_b32 v{VZ}, v{FA} offset:{mSLOW}
KT_k:
s_mov_b32 s{sWU}, -1
""")
    ranges()
    srd(a,sA,14,256*256)
    if PRIO: a("s_setprio 3")
    bar('b3')
    a("s_branch KF_J")
    a(f"""
KF_T:
v_lshrrev_b32 v2, 3, v{VL}
v_and_b32 v2, 2, v2
v_xor_b32 v2, v2, v3
v_lshl_add_u32 v{TD}, v2, 4, v{DR}
v_and_b32 v108, 255, v0
v_mov_b32 v32, 0
v_mov_b32 v33, 0
v_mov_b32 v34, 0
v_mov_b32 v35, 0
v_lshlrev_b32 v110, 4, v108
v_lshrrev_b32 v1, 4, v108
v_xor_b32 v37, v1, v0
v_and_b32 v37, 15, v37
v_lshlrev_b32 v37, 4, v37
v_lshl_add_u32 v36, v1, 8, s{sK}
""")
    sG=40
    srd(a,sX,4,N,stride=256)
    def xld():
        for j in range(4):
            if j==3: a(f"s_cmp_eq_u32 s{sWV}, 4\ns_cbranch_scc0 KT_c")
            a(f"s_add_u32 m0, s{sW4K}, {AGB+j*4096}\ns_nop 0\nbuffer_load_dwordx4 v[36:37], {SR4(sX)}, 0 idxen offen lds\nv_add_u32 v36, 4096, v36")
        a("KT_c:")
    def warm():
        a(f"""
v_and_b32 v1, 31, v{VL}
v_lshlrev_b32 v1, 1, v1
s_lshl_b32 s{t0}, s{sW4}, 6
s_add_u32 s{t0}, s{t0}, 65536
""")
        for k in range(4): a(f"buffer_load_ushort v{124+k}, v1, {SR4(sA)}, s{t0} offen offset:{k*256}")
    def zer():
        a(f"v_cmp_le_u32 vcc, 32, v108\ns_mov_b64 exec, vcc\nds_write_b128 v110, v[32:35]\ns_mov_b64 exec, -1")
        for j in range(1,4): a(f"ds_write_b128 v110, v[32:35] offset:{j*4096}")
        a(f"""
s_cmp_eq_u32 s{sWV}, 4
s_cbranch_scc0 KT_b
ds_write_b128 v110, v[32:35] offset:16384
KT_b:
""")
    srd(a,sA,12,260*256); warm(); vyc()
    if XORD==1: xld()
    zer()
    a(f"""
s_lshl_b32 s{t0}, s{sW4}, 2
v_lshrrev_b32 v2, 4, v{VL}
v_or_b32 v1, s{t0}, v2                  ; 4u+g
v_xor_b32 v3, v1, v{WT}
v_lshlrev_b32 v3, 4, v3
v_lshl_add_u32 v116, v{WT}, 8, v3
v_add_u32 v116, {PSC}, v116
v_add_u32 v117, {PSC}, v110
v_lshl_add_u32 v118, v1, 16, v3
""")
    if XORD==2:
        gwait("KG_x",mS,4,VZ,1); xld()
    sdma(sA,0)
    sdma(sA,32768,-32768)
    arrive(mW,1)
    pt('w1i')
    def w3m():
        w=[124,125,126,127]; u=QA
        for k in range(4): a(f"v_lshlrev_b32 v{w[k]}, 16, v{w[k]}\nv_mul_f32 v{w[k]}, s{sL2E}, v{w[k]}")
        a(f"""
v_cvt_pk_bf16_f32 v{u}, v124, v125
v_cvt_pk_bf16_f32 v{u+1}, v126, v127
v_lshlrev_b32 v{u+2}, 16, v{u}
v_and_b32 v{u+3}, 0xffff0000, v{u}
v_lshlrev_b32 v{u+4}, 16, v{u+1}
v_and_b32 v{u+5}, 0xffff0000, v{u+1}
v_add_f32 v{u+6}, abs(v124), abs(v125)
v_sub_f32 v{u+2}, v124, v{u+2}
v_sub_f32 v{u+3}, v125, v{u+3}
v_sub_f32 v{u+4}, v126, v{u+4}
v_sub_f32 v{u+5}, v127, v{u+5}
v_add_f32 v{u+7}, abs(v126), abs(v127)
s_mov_b32 exec_lo, 0
v_cvt_pk_bf16_f32 v{u}, v{u+2}, v{u+3}
v_cvt_pk_bf16_f32 v{u+1}, v{u+4}, v{u+5}
s_mov_b32 exec_lo, -1
v_add_f32 v{u+6}, v{u+6}, v{u+7}
v_lshlrev_b32 v1, 3, v108
v_and_b32 v{u+6}, 0x7fffffff, v{u+6}
ds_write_b64 v1, {P2(u)} offset:{W3L}
""")
        dpp_scan(a,"v_max_u32",[u+6])
        a(f"""
s_mov_b32 exec_lo, 0
s_brev_b32 exec_hi, 1
ds_max_u32 v{VZ}, v{u+6} offset:{mC3}
s_mov_b64 exec, -1
""")
    e2=8
    a(f"s_waitcnt vmcnt({11+e2})"); w3m()
    a(f"v_mov_b32 v1, {hex(ONE2)}\nds_write2_b32 v{VZ}, v1, v1 offset0:{OH//4} offset1:{OH//4+3}")
    gsync('bX',"KG_y1",mGX,4,VZ,2,f"s_waitcnt vmcnt({8+e2})")
    if GP_: a(f"s_setprio {GP_}")
    xfrags([0])
    a(f"s_waitcnt vmcnt({e2})")
    pt('xl')
    trfrag(WF,TD,32768,2048,256)
    a("s_waitcnt lgkmcnt(7)")
    trfrag(WF+16,TD,32768+8,2048,256)
    def pm(T,i):
        for s in range(4): a(mfma16(GA+8*T+4*i,WF+16*i+4*s,XF+16*T+4*s,None if s==0 else GA+8*T+4*i))
    def pcv(T):
        c=GA+8*T
        L=[f"v_mul_f32 v{c+j}, s{sL2E}, v{c+j}" for j in range(8)]
        L+=[f"v_cvt_pk_bf16_f32 v{c+j}, v{c+2*j}, v{c+2*j+1}" for j in range(4)]
        L+=[f"ds_write_b128 v116, {P4(c)} offset:{T*4096}"]
        return L
    def pmi(T,fillers):
        for i in range(2):
            for s in range(4):
                a(mfma16(GA+8*T+4*i,WF+16*i+4*s,XF+16*T+4*s,None if s==0 else GA+8*T+4*i))
                for _ in range(2):
                    if fillers: a(fillers.pop(0))
    a("s_waitcnt lgkmcnt(8)"); xfrags([1]); pm(0,0)
    a("s_waitcnt lgkmcnt(4)"); xfrags([2,3]); pm(0,1)
    a("s_waitcnt lgkmcnt(8)"); pm(1,0); pm(1,1)
    a("s_waitcnt lgkmcnt(0)"); pmi(2,pcv(0)); pmi(3,pcv(1))
    a(f"s_lshl_b32 s{t2}, s{sK}, 8\ns_nop 2")
    for T in (2,3):
        for x in pcv(T): a(x)
    gsync('pg',"KG_y2",mGP,4,VZ,2)
    for T in range(4): a(f"ds_read_b128 {P4(PO+4*T)}, v117 offset:{T*4096}")
    a("s_waitcnt vmcnt(0)")
    for T in range(3):
        a(f"s_add_u32 s{t1}, s{t2}, {F_P+T*16*65536}\ns_waitcnt lgkmcnt({3-T})")
        a(f"buffer_store_dwordx4 {P4(PO+4*T)}, v118, {SR4(sR)}, s{t1} offen{SC}")
    a(f"""
s_cmp_eq_u32 s{sWV}, 4
s_cbranch_scc0 KG_p
s_add_u32 s{t1}, s{t2}, {F_P+3*16*65536}
s_waitcnt lgkmcnt(0)
s_mov_b64 exec, 0xffff
buffer_store_dwordx4 {P4(PO+12)}, v118, {SR4(sR)}, s{t1} offen{SC}
s_mov_b64 exec, -1
KG_p:
""")
    pt('pst')
    if GP_: a("s_setprio 0")
    srd(a,sA,14,256*256)
    tagh()
    w3rd()
    for T in range(4):
        c=GA+8*T
        if T==3: a("s_mov_b32 exec_lo, 0x10001\ns_mov_b32 exec_hi, 0x10001")
        if T==0: a(f"v_pk_maximum3_f16 v114, v{c}, v{c+1}, v{c+2}\nv_pk_minimum3_f16 v115, v{c}, v{c+1}, v{c+2}\nv_pk_maximum3_f16 v114, v114, v{c+3}, v{c+3}\nv_pk_minimum3_f16 v115, v115, v{c+3}, v{c+3}")
        else: a(f"v_pk_maximum3_f16 v114, v114, v{c}, v{c+1}\nv_pk_minimum3_f16 v115, v115, v{c}, v{c+1}\nv_pk_maximum3_f16 v114, v114, v{c+2}, v{c+3}\nv_pk_minimum3_f16 v115, v115, v{c+2}, v{c+3}")
    a("s_mov_b64 exec, -1")
    absmax_fin(a,114,115,2)
    a(f"""
v_cmp_lt_u32 vcc, 0x40e80000, v114
v_mov_b32 v{TD}, v{VY}
s_cmp_lg_u64 vcc, 0
s_cselect_b32 s{sFLAG}, 0x101, 1
""")
    def pflag(n):
        a(f"""
s_lshl_b32 s{t2}, s2, 4
s_add_u32 s{t2}, s{t2}, {F_FLG}
v_mov_b32 v1, s{sFLAG}
s_waitcnt vmcnt({n})
s_mov_b64 exec, 1
ds_add_rtn_u32 v1, v{VZ}, v1 offset:{mPD}
s_waitcnt lgkmcnt(0)
v_readfirstlane_b32 s{t1}, v1
s_add_u32 s{t1}, s{t1}, s{sFLAG}
s_and_b32 s{t0}, s{t1}, 255
s_cmp_eq_u32 s{t0}, 4
s_cbranch_scc0 KG_f
KG_e:
ds_read_b32 v1, v{VZ} offset:{mE}
s_waitcnt lgkmcnt(0)
v_readfirstlane_b32 s{t0}, v1
s_and_b32 s{t3}, s{t0}, 255
s_cmp_lt_u32 s{t3}, 4
s_cbranch_scc1 KG_e
s_or_b32 s{t1}, s{t1}, s{t0}
s_cmp_gt_u32 s{t1}, 255
s_cselect_b32 s{t0}, 2, 0
s_xor_b32 s{t0}, s{sNON}, s{t0}
v_mov_b32 v1, s{t0}
buffer_store_dword v1, v{VZ}, {SR4(sR)}, s{t2} offen{SC}
s_waitcnt vmcnt(1)
s_branch KG_f2
KG_f:
s_waitcnt vmcnt(0)
KG_f2:
s_mov_b64 exec, -1
""")
        pt('pfl')
    def mid():
        sdma(sA,0); pflag(8); arrive(mPI,1)
    qfull("KGq",mid)
    tru(WU1,32768)
    a("s_waitcnt lgkmcnt(0)")
    ugemm()
    if FLP==1: gwait("KG_b2",mH,16,VZ,1)
    a(f"""
s_mov_b32 s{sLO}, {F_FLG}
buffer_load_dword v116, v110, {SR4(sR)}, s{sLO} offen{SC}
""")
    if PFP==2: pfp()
    a(f"""
s_mov_b32 s{sWU}, 1
s_or_b32 s{t1}, s{sNON}, 2
s_waitcnt vmcnt({1 if PFP==2 else 0})
KS_m:
v_or_b32 v2, 2, v116
v_cmp_ne_u32 vcc, s{t1}, v2
s_cbranch_vccz KS_n
s_sub_u32 s{sBUD}, s{sBUD}, 1
s_cbranch_scc1 KS_n
s_sleep {FSL}
s_mov_b64 exec, vcc
buffer_load_dword v116, v110, {SR4(sR)}, s{sLO} offen{SC}
s_mov_b64 exec, -1
s_waitcnt vmcnt(0)
s_branch KS_m
KS_n:
v_cmp_ne_u32 vcc, s{sNON}, v116
s_cbranch_vccz KS_o
ds_write_b32 v{VZ}, v{FA} offset:{mSLOW}
KS_o:
""")
    pt('flg')
    if PRIO: a("s_setprio 3")
    bar('b3')
    a(f"ds_read_b32 v1, v{VZ} offset:{mNT}\ns_waitcnt lgkmcnt(0)\nv_readfirstlane_b32 s{sNT}, v1")
    ranges()
    a("KF_J:")
    def rd_ga(off): a(f"ds_read_u16 v{GA0}, v{SB} offset:{GL+off}\nds_read_u16 v{GA0+1}, v{SB} offset:{GL+off+8}")
    def rd_gg(off): a(f"ds_read_u16 v{YA}, v{RB} offset:{GL+off}")
    ya=f"v_lshl_add_u32 v{EA}, v{YA}, 1, v{EC}\nv_add_u32 v{YA}, v{YA}, v{M4}"
    ry=f"ds_read_u16 v{VY}, v{YA} offset:{WB+2}"
    def rd_y(): a(ya); a(ry)
    def idx1(i): return f"ds_read_u16 v{IDX+2*i}, v{GA0+(i>>2)} offset:{WB+4*(i&3)}"
    def rd_idx():
        for i in range(8): a(idx1(i))
    def dmai(i): return f"buffer_load_dwordx4 {P2(IDX+2*i)}, {SR4(sP)}, 0 idxen offen offset:{1024*(i&3)}{GSC} lds"
    def dma():
        for i in range(8):
            if i==0: a(f"s_mov_b32 m0, s{sBUF}\ns_nop 0")
            if i==4: a(f"s_add_u32 m0, s{sBUF}, 4096\ns_nop 0")
            a(dmai(i))
    def dma_idx():
        for i in range(4): a(dmai(i))
        a(f"s_add_u32 m0, s{sBUF}, 4096"); a(idx1(0))
        for i in range(4,8): a(dmai(i))
        a(f"s_mov_b32 m0, s{sBUF}")
        for i in range(1,8): a(idx1(i))
    rd_b=f"ds_read_b128 {P4(B3+2)}, v{QAD}\nds_read_b128 {P4(B3+10)}, v{QAD} offset:512"
    rd_a3=f"ds_read_b64 {P2(A6)}, v{EA}\nds_read_b64 {P2(A6+2)}, v{VY} offset:{OH}\nds_read_b64 {P2(A6+4)}, v{EA}"
    def rd_a(t): return f"ds_read_b128 {P4(A+4*t)}, v{AR+t}"
    rd_s=f"ds_read_b64 {P2(SS)}, v{SA2}\nds_read_b64 {P2(SS+2)}, v{SA2+1}"
    def AQ(q): return A6+2*(q&1)
    win=f"v_add3_u32 v{VY}, v{VY}, v{OH2}, s{sW8}\nv_lshl_add_u32 v{QAD}, s{sQ}, 6, v{QC}"
    rd_ga(0); rd_gg(0)
    a(f"""
ds_read_u16 v{WT}, v1 offset:{GL}
ds_read_b32 v{GP}, v{VZ} offset:{mSLOW}
s_waitcnt lgkmcnt(3)
""")
    rd_idx()
    a("s_waitcnt lgkmcnt(0)")
    dma()
    pt('d0')
    a(f"v_readlane_b32 s{sNF}, v{WT}, s{sCNT}\nv_readfirstlane_b32 s{t3}, v{GP}")
    rd_y(); rd_ga(16)
    uscale()
    a(f"""
v_lshlrev_b32 v{OH2}, 1, v{OHC}
v_and_b32 v1, 31, v{VL}
v_lshlrev_b32 v1, 4, v1
v_lshlrev_b32 v2, 5, v{VL}
v_and_b32 v2, 0x400, v2
v_add3_u32 v{QC}, v1, v2, s{sQ2}
s_waitcnt lgkmcnt(0)
""")
    rd_idx()
    a(f"""
s_cmp_lg_u32 s{t3}, 0
s_cbranch_scc1 KF_SLOW
s_lshr_b32 s{sNF}, s{sNF}, 8
v_subrev_u32 v2, s{sNF}, v{VL}
v_and_b32 v2, 15, v2
v_add_u32 v{DR}, s{sNF}, v2
v_lshlrev_b32 v2, 2, v{DR}
ds_read_b32 v{GP}, v2 offset:{BT}
s_and_b32 s{sQ}, s{sNF}, -2
s_lshl_b32 s{sQ}, s{sQ}, 3
s_sub_u32 s{sW8}, 0, s{sQ}
{win}
{rd_b}
{rd_a3}
""")
    rd_gg(16)
    a(f"""
v_lshrrev_b32 v{WT}, 9, v{WT}
v_lshlrev_b32 v{WT}, 4, v{WT}           ; 8*(w&~1)
v_mov_b32 v{SS}, 0
v_mov_b32 v{SS+1}, 0
v_mov_b32 v{SS+2}, 0
v_mov_b32 v{SS+3}, 0
v_add_u32 v{SA}, {STB}, v{SA}
v_mov_b32 v1, {OH+64}
v_cndmask_b32 v{SA2}, v1, v{SA}, {S2(sMA)}
v_cndmask_b32 v{SA2+1}, v{SA}, v1, {S2(sMA)}
v_cndmask_b32 v{SI2}, 0, 16, {S2(sMA)}
v_cndmask_b32 v{SI2+1}, 16, 0, {S2(sMA)}
s_add_u32 s{t1}, s{sT0}, s{sCNT}
s_lshl_b32 s{t1}, s{t1}, 7
s_add_u32 s{t2}, s{sWV}, 48
v_mov_b32 v1, s{t2}
{mfma32(ACC+16,SS,SS,None)}
s_waitcnt lgkmcnt(0)
""")
    rd_y(); rd_ga(32)
    a(f"""
v_cmp_gt_u32 vcc, s{t0}, v{GP}
v_cmp_gt_u32 {S2(t2)}, s{t1}, v{GP}
v_cmp_gt_u32 {S2(t0)}, s{sNN}, v{DR}
v_cndmask_b32 v{DR}, v{DR}, v1, vcc
s_cmp_lg_u64 vcc, 0
s_cselect_b32 s{sHEAD}, 1, 0
s_and_b64 vcc, {S2(t2)}, {S2(t0)}
v_lshrrev_b32 v1, 2, v{VL}
v_cndmask_b32 v{DR}, 63, v{DR}, vcc
v_and_b32 v1, 4, v1
v_xor_b32 v1, v1, v{DR}
v_and_b32 v1, 15, v1
v_lshlrev_b32 v1, 4, v1
v_lshl_add_u32 v{DR}, v{DR}, 8, v1
v_sub_u32 v{DR}, v{DR}, v{OHC}
s_sub_u32 s{sCNT}, s{sCNT}, 1
s_mov_b32 m0, s{sBUF}
""")
    epi_consts()
    pt('pre')
    a("s_waitcnt vmcnt(0)")
    pt('g0')
    for t in range(8): a(rd_a(t))
    a("s_waitcnt lgkmcnt(6)")
    a(mfma32(Z[0],AQ(0),B3,None)); a(mfma32(Z[0],A,ID0,Z[0])); a(mfma32(Z[0],A+4,ID1,Z[0]))
    a("s_nop 8\ns_waitcnt lgkmcnt(0)")
    pt('pro')
    def finals(qprev):
        for u in range(2): a(f"v_pk_mul_f32 {P2(NN+2*u)}, {P2(NN+2*u)}, {P2(DD+2*u)}")
        for u in range(2): a(f"v_cvt_pk_bf16_f32 v{GP+2*(qprev&1)+u}, v{NN+2*u}, v{NN+2*u+1}")
    def ex(zc,r): return f"v_exp_f32 v{EE+r}, v{zc+r}"
    def body(first):
        for q in range(4):
            zc=Z[q&1]; zn=Z[(q+1)&1]; qn=(q+1)&3
            ms=[(AQ(qn),B3+4*qn),(A+8*qn,ID0),(A+8*qn+4,ID1)]
            pend=[0,1,2,3,8,9,10,11,4,5,12,13,6,7,14,15]
            f0=first and q==0
            if q==0: a(f"v_readlane_b32 s{sQ}, v{WT}, s{sCNT}")
            if q==3: a(f"s_waitcnt lgkmcnt(0)")
            a(mfma32(zn,ms[0][0],ms[0][1],None))
            if not f0:
                for j in range(4): a(f"v_rcp_f32 v{DD+j}, v{DD+j}")
            else:
                for r in range(4): a(ex(zc,pend.pop(0)))
            a(mfma32(zn,ms[1][0],ms[1][1],zn))
            for r in range(4): a(ex(zc,pend.pop(0)))
            a(mfma32(zn,ms[2][0],ms[2][1],zn))
            def bx():
                a(f"s_sub_u32 s{sW8}, 0, s{sQ}\ns_waitcnt vmcnt(0) lgkmcnt(0)\n{win}")
                rd_gg(32); rd_ga(48)
                a(rd_b); a(rd_a3); a(rd_s)
                for t in range(8): a(rd_a(t))
            if q==2 and XP==0: a(ex(zc,pend.pop(0))); bx()
            for r in range(4 if not (q==2 and XP==0) else 3): a(ex(zc,pend.pop(0)))
            if q&1:
                p=1 if q==1 else 0
                if not (first and q==1):
                    a(mfma32(ACC+16*p,GP,SS,None if first else ACC+16*p))
                    for r in range(4): a(ex(zc,pend.pop(0)))
            if q==2 and XP==1: bx()
            if f0: dma_idx()
            if q==3:
                a(ya)
                if first: dma_idx(); a(ry)
                else:
                    a(f"s_cmp_gt_u32 s{sCNT}, 1\ns_cbranch_scc0 KF_lt")
                    dma_idx(); a(ry)
                    a("KF_lb:")
            if not f0: finals((q-1)&3)
            seq=[]
            for u in range(2): seq.append(f"v_pk_add_f32 {P2(DD+2*u)}, {P2(EE+8*u)}, 1.0 op_sel_hi:[1,0]")
            for m in range(1,4):
                for u in range(2):
                    src=(zc+8*u) if m==1 else NN+2*u
                    seq.append(f"v_pk_fma_f32 {P2(NN+2*u)}, {P2(src)}, {P2(EE+8*u+2*m)}, {P2(src)}")
                for u in range(2): seq.append(f"v_pk_fma_f32 {P2(NN+2*u)}, {P2(zc+8*u+2*m)}, {P2(DD+2*u)}, {P2(NN+2*u)}")
                for u in range(2): seq.append(f"v_pk_fma_f32 {P2(DD+2*u)}, {P2(DD+2*u)}, {P2(EE+8*u+2*m)}, {P2(DD+2*u)}")
            slots=[0,1,2,3,5,7,9,11] if len(pend)==8 else [1,4,7,10]
            for k,x in enumerate(seq):
                a(x)
                if k in slots: a(ex(zc,pend.pop(0)))
            if q==2: a(f"v_pk_add_f32 {P2(RB)}, {P2(RB)}, {S2(sINC)}\nv_pk_add_f32 {P2(SA2)}, {P2(SA2)}, {P2(SI2)}")
    if PROF and 'dyn' in PTS: stamp(a,8); stamp(a,9,True)
    if PROF and 'clk' in PTS: stamp(a,6,True)
    n0=len(a.l)
    body(True)
    a("s_branch KF_LE\n.p2align 6\nKF_LOOP:")
    body(False)
    def keep(l):
        t=l.strip()
        if X&1 and t.startswith('buffer_load'): return False
        if X&2 and t.startswith('ds_read_b128 v[') and int(t.split('[')[1].split(':')[0])>=28: return False
        if X&8 and t.startswith('v_mfma'): return False
        if X&16 and t.startswith('v_pk_fma'): return False
        if X&32 and t.startswith('v_exp'): return False
        return True
    a.l[n0:]=[l for l in a.l[n0:] if keep(l)]
    import re
    if X&(128|256|512):
        L=[]
        for l in a.l[n0:]:
            m=re.match(r"\s*v_mfma_f32_32x32x16_bf16 v\[(\d+):\d+\], v\[(\d+):\d+\], v\[(\d+):\d+\], (.*)",l)
            if m and int(m.group(1))<ACC:
                d,x,y=int(m.group(1)),int(m.group(2)),int(m.group(3))
                if X&128:
                    if y==ID0: L+=["    "+mfma16(d+4,x,ID0,None),"    "+mfma16(d+8,x,ID1,None)]
                    elif y==ID1: L.append("    "+mfma16(d+12,x,ID0,None))
                    else: L.append("    "+mfma16(d,x,y,None))
                if X&256:
                    if y!=ID1: L.append(l)
                if X&512:
                    if y==ID0: L.append(f"    v_mfma_f32_32x32x64_f8f6f4 v[{d}:{d+15}], v[{x}:{x+7}], v[{ID0}:{ID0+7}], v[{d}:{d+15}]")
                    elif y!=ID1: L.append(l)
            else: L.append(l)
        a.l[n0:]=L
    a("KF_LE:")
    if PRIO: a(f"s_bitcmp1_b32 42, s{sCNT}\ns_cbranch_scc1 KF_pr\nKF_pb:")
    a(f"""
s_sub_u32 s{sCNT}, s{sCNT}, 1
s_cbranch_scc0 KF_LOOP
""")
    def loop_tails():
        a(f"KF_lt:\ns_cmp_eq_u32 s{sCNT}, s{sWU}\ns_cbranch_scc0 KF_lb")
        sdma(sA,32768,0,TD)
        a(f"""
s_branch KF_lb
KF_pr:
""")
        if PROF and 'dyn' in PTS:
            a("s_mov_b32 s90, s92\ns_mov_b32 s91, s93\ns_mov_b32 s92, s94\ns_mov_b32 s93, s95\ns_mov_b32 s94, s96\ns_mov_b32 s95, s97")
            stamp(a,8); stamp(a,9,True)
        a(f"""
s_setprio 2
s_cmp_eq_u32 s{sCNT}, 5
s_cbranch_scc1 KF_pb
s_setprio 1
s_cmp_eq_u32 s{sCNT}, 3
s_cbranch_scc1 KF_pb
s_setprio 0
s_branch KF_pb
""")
    for j in range(4): a(f"v_rcp_f32 v{DD+j}, v{DD+j}")
    a("s_nop 0")
    finals(3)
    a("s_nop 1")
    a(mfma32(ACC+16,GP,SS,ACC+16))
    pt('loop')
    if PROF and 'clk' in PTS: stamp(a,7,True)
    for p in range(2):
        if p==1: a("s_nop 0")
        for j in range(4):
            c=ACC+16*p+4*j
            a(f"v_cvt_pk_bf16_f32 v{c}, v{c}, v{c+1}\nv_cvt_pk_bf16_f32 v{c+1}, v{c+2}, v{c+3}")
            if p or j: a(f"v_xor_b32 v1, {(8*p+j)*16}, v{DR}")
            a(f"ds_write_b64 v{1 if (p or j) else DR}, {P2(c)} offset:{AGB}")
    a(f"""
s_and_b32 s{t1}, s{sNF}, 15
s_lshl_b32 s{t1}, s{t1}, 4
s_lshl_b32 s{t0}, s{sNF}, 8
s_or_b32 s{t0}, s{t0}, s{t1}
s_mul_i32 s{t1}, s{sWV}, 272
s_add_u32 s{t1}, s{t1}, {48*256}
v_lshlrev_b32 v3, 2, v{VL}
v_xor_b32 v1, s{t0}, v3
v_xor_b32 v2, s{t1}, v3
s_cmp_eq_u32 s{sHEAD}, 0
s_waitcnt vmcnt(0) lgkmcnt(0)
s_barrier
s_cbranch_scc1 KF_FIN
ds_read_b32 v4, v1 offset:{AGB}
ds_read_b32 v5, v2 offset:{AGB}
s_waitcnt lgkmcnt(0)
v_lshlrev_b32 v6, 16, v4
v_and_b32 v7, 0xffff0000, v4
v_lshlrev_b32 v8, 16, v5
v_and_b32 v9, 0xffff0000, v5
v_pk_add_f32 v[6:7], v[6:7], v[8:9]
v_cvt_pk_bf16_f32 v6, v6, v7
ds_write_b32 v1, v6 offset:{AGB}
KF_FIN:
""")
    OST=GBUF
    tru(WU2,32768)
    srd(a,sX,16,N*256)
    a(f"""
v_and_b32 v1, 15, v{VL}
s_lshl_b32 s{t0}, s{sOT}, 1
v_lshrrev_b32 v2, 5, v{VL}
v_or_b32 v2, s{t0}, v2
v_xor_b32 v2, v2, v1
v_lshlrev_b32 v2, 4, v2
v_lshl_add_u32 v2, v1, 8, v2
v_lshrrev_b32 v3, 1, v{VL}
v_and_or_b32 v2, v3, 8, v2
v_add_u32 v{AR}, {OST}, v2
v_lshlrev_b32 v{AR+1}, 1, v1
""")
    bar('mrg',"s_waitcnt vmcnt(0) lgkmcnt(0)")
    for T in range(4):
        xfrags([T])
        if T==2:
            a("s_waitcnt lgkmcnt(8)")
            for s in range(4): a(mfma16(UA,WU2+4*s,XF+4*s,UA))
    def silu(T):
        c=UA+4*T; e=EE+4*T
        L=[f"v_exp_f32 v{e+i}, v{c+i}" for i in range(4)]
        L+=[f"v_fma_f32 v{e+i}, v{e+i}, s{sL2E}, s{sL2E}" for i in range(4)]
        L+=[f"v_rcp_f32 v{e+i}, v{e+i}" for i in range(4)]
        L+=[f"v_mul_f32 v{e+i}, v{e+i}, v{c+i}" for i in range(4)]
        L+=[f"v_cvt_pk_bf16_f32 v{e}, v{e}, v{e+1}",f"v_cvt_pk_bf16_f32 v{e+1}, v{e+2}, v{e+3}",f"ds_write_b64 v{AR}, {P2(e)} offset:{T*4096}"]
        return L
    for T in range(1,4):
        a(f"s_waitcnt lgkmcnt({4*(3-T)})")
        for s in range(4):
            x,y=(WU2+4*s,XF+16*T+4*s) if T<3 else (XF+16*T+4*s,WU2+4*s)
            a(mfma16(UA+4*T,x,y,UA+4*T))
    for T in range(3):
        for x in silu(T): a(x)
    c=UA+12; e=EE+12
    a(f"""
v_exp_f32 v{e}, v{c}
s_add_u32 s{t0}, s{sK}, {48*256}
v_fma_f32 v{e}, v{e}, s{sL2E}, s{sL2E}
v_rcp_f32 v{e}, v{e}
s_lshl_b32 s{t0}, s{t0}, 8
v_mul_f32 v{e}, v{e}, v{c}
s_lshl_b32 s{t1}, s{sOT}, 5
s_add_u32 s{t0}, s{t0}, s{t1}
v_cvt_pk_bf16_f32 v{e}, v{e}, v{e}
s_mov_b32 exec_lo, 0xffff
s_mov_b32 exec_hi, 0
buffer_store_short v{e}, v{AR+1}, {SR4(sX)}, s{t0} offen{OSC}
s_mov_b64 exec, -1
v_lshlrev_b32 v1, 4, v0
v_add_u32 v1, {OST}, v1
v_lshrrev_b32 v2, 4, v0
v_xor_b32 v3, v2, v0
v_and_b32 v3, 15, v3
v_lshlrev_b32 v3, 4, v3
v_lshl_add_u32 v3, v2, 16, v3
s_lshl_b32 s{t0}, s{sK}, 8
s_add_u32 s{t1}, s{t0}, {32*65536}
s_waitcnt lgkmcnt(0)
s_barrier
ds_read_b128 {P4(A)}, v1
s_cmp_lt_u32 s{sWV}, 4
s_cbranch_scc0 KF_e1
ds_read_b128 {P4(A+4)}, v1 offset:8192
s_waitcnt lgkmcnt(0)
buffer_store_dwordx4 {P4(A+4)}, v3, {SR4(sX)}, s{t1} offen{OSC}
KF_e1:
s_waitcnt lgkmcnt(0)
buffer_store_dwordx4 {P4(A)}, v3, {SR4(sX)}, s{t0} offen{OSC}
""")
    a(f"""
s_or_b32 s{t0}, s2, s{sWV}
s_cbranch_scc1 KF_e2
v_mov_b32 v1, s{sNON}
v_mov_b32 v2, 0
s_mov_b64 exec, 1
buffer_store_dword v1, v2, {SR4(sR)}, 0 offen
KF_e2:
""")
    if PROF: a("s_waitcnt vmcnt(0)")
    stamp(a,10); stamp(a,11,True)
    stamp_out(a,1,sWV)
    a("KF_END:\ns_endpgm")
    loop_tails()
    hist_retry(8,"KT_h",True)
    a("KF_CEND:")
    SV=ACC; AGs=SV+8; RS_=SV+16
    a(f"""
KF_SLOW:
s_setprio 0
s_cmp_ge_u32 s{sWV}, 4
s_cselect_b32 s{sTOT}, 0, s{sTOT}
v_mov_b32 v1, s{sTOT}
ds_max_u32 v{VZ}, v1 offset:{mMX}
v_mov_b32 v{SS}, 0
v_mov_b32 v{SS+1}, 0
v_mov_b32 v{SS+2}, 0
v_mov_b32 v{SS+3}, 0
s_mov_b32 s{sLO}, 0
s_mov_b32 s{sLB}, s{sBUF}
s_sub_u32 s{t0}, s{sWV}, s{sT0}
s_lshl_b32 s{t0}, s{t0}, 4
v_add_u32 v{SV+4}, s{t0}, v{RB}
v_add_u32 v{SV+5}, s{t0}, v{SB}
s_lshl_b32 s{t0}, s{sWV}, 4
v_sub_u32 v{SV+6}, s{t0}, v{OHC}
v_and_b32 v{SV+7}, 31, v{VL}
v_lshlrev_b32 v{SV+7}, 2, v{SV+7}
v_lshlrev_b32 v1, 4, v0
""")
    for j in range(3): a(f"ds_write_b128 v1, {P4(SS)} offset:{AGG+j*8192}")
    a(f"""
v_lshlrev_b32 v1, 4, v{VL}
ds_write_b128 v1, {P4(SS)} offset:{AGG+3*8192}
s_waitcnt vmcnt(0) lgkmcnt(0)
s_barrier
ds_read_b32 v1, v{VZ} offset:{mMX}
s_waitcnt lgkmcnt(0)
v_readfirstlane_b32 s{sRND}, v1
KF_SR:
s_cmp_lt_u32 s{sLO}, s{sRND}
s_cbranch_scc0 KF_SE
s_barrier
v_lshlrev_b32 v1, 2, v{VL}
v_lshlrev_b32 v2, 8, v{VL}
ds_write_b32 v1, v2
s_waitcnt lgkmcnt(0)
s_barrier
s_cmp_ge_u32 s{sWV}, 4
s_cbranch_scc1 KF_S1
s_movk_i32 s{t3}, 256
""")
    expand("KF_x")
    a(f"s_sub_u32 s{t1}, s{sTOT}, s{sLO}")
    reclist(4)
    recload(4,"KF_rl")
    for i in range(4): a(f"s_mov_b64 {S2(sM+8+2*i)}, {S2(sM+2*i)}")
    hist(4,"KF_h",0,False)
    a("s_waitcnt lgkmcnt(0)")
    for i in range(4):
        a(f"""
v_mov_b32 v{RS_+4*i}, v{RC+4*i}
v_mov_b32 v{RS_+4*i+1}, v{RC+4*i+1}
v_mov_b32 v{RS_+4*i+2}, v{RC+4*i+2}
v_lshlrev_b32 v1, 6, v{RC+4*i+3}
v_sub_u32 v1, v{RK+i}, v1
v_cndmask_b32 v{RS_+4*i+3}, -1, v1, {S2(sM+8+2*i)}
""")
    a(f"""
KF_S1:
s_mov_b32 s{sHEAD}, 0                    ; 256*k
KF_SK:
s_waitcnt lgkmcnt(0)
s_barrier
s_cmp_ge_u32 s{sWV}, 4
s_cbranch_scc1 KF_S2
s_mov_b32 s{t1}, {EB}
""")
    for i in range(4):
        a(f"""
v_subrev_u32 v1, s{sHEAD}, v{RS_+4*i+3}
v_lshrrev_b32 v2, 19, v{RS_+4*i+2}
v_lshl_add_u32 v2, v2, 8, v1
v_lshl_add_u32 v3, v2, 1, s{t1}
v_cmpx_gt_u32 vcc, 0x100, v1
ds_write_b32 v2, v{RS_+4*i+2} offset:{WB}
ds_write_b64 v3, {P2(RS_+4*i)}
s_mov_b64 exec, -1
""")
    a("KF_S2:")
    scan(True)
    a(f"s_cmp_lg_u64 {S2(t2)}, 0\ns_cselect_b32 s{sFLAG}, 1, 0")
    fill("KFs",True,8)
    a(f"""
s_add_u32 s{sNT}, s{t0}, 127
s_lshr_b32 s{sNT}, s{sNT}, 7
s_waitcnt lgkmcnt(0)
s_barrier
v_mov_b32 v{RB}, v{SV+4}
v_mov_b32 v{SB}, v{SV+5}
v_mov_b32 v{SV+12}, v{SV+6}
s_mov_b32 s{sI}, s{sWV}
KF_SL:
s_cmp_lt_u32 s{sI}, s{sNT}
s_cbranch_scc0 KF_SN
""")
    rd_ga(0); rd_gg(0)
    for j in range(4): a(f"ds_read_u16 v{AGs+j}, v{SV+12} offset:{GL+2*j}")
    a("s_waitcnt lgkmcnt(0)")
    rd_y(); rd_idx()
    a("s_waitcnt lgkmcnt(0)")
    dma()
    for j in range(4): a(f"v_lshrrev_b32 v{AGs+j}, 8, v{AGs+j}")
    a(f"""
v_readfirstlane_b32 s{sQ}, v{AGs}
s_nop 3
s_and_b32 s{sQ}, s{sQ}, -2
s_lshl_b32 s{sQ}, s{sQ}, 3
s_sub_u32 s{sW8}, 0, s{sQ}
v_lshlrev_b32 v{OH2}, 1, v{OHC}
{win}
{rd_b}
{rd_a3}
""")
    for j in range(4): a(f"v_lshl_add_u32 v{AGs+j}, v{AGs+j}, 9, v{SV+7}")
    a("s_waitcnt vmcnt(0) lgkmcnt(0)")
    for t in range(8): a(rd_a(t))
    a("s_waitcnt lgkmcnt(0)")
    for q in range(4):
        z=Z[0]
        a(mfma32(z,AQ(q),B3+4*q,None)); a(mfma32(z,A+8*q,ID0,z)); a(mfma32(z,A+8*q+4,ID1,z))
        a("s_nop 15")
        for r in range(16): a(f"v_exp_f32 v{EE+r}, v{z+r}")
        for r in range(16): a(f"v_add_f32 v{EE+r}, 1.0, v{EE+r}")
        for r in range(16): a(f"v_rcp_f32 v{EE+r}, v{EE+r}")
        for m in range(4):
            for u in range(2):
                for par in range(2):
                    r=8*u+2*m+par; g=GP+2*u+par
                    a(f"v_mul_f32 v{g}, v{z+r}, v{EE+r}" if m==0 else f"v_fmac_f32 v{g}, v{z+r}, v{EE+r}")
        for j in range(4): a(f"ds_add_f32 v{AGs+j}, v{GP+j} offset:{AGG+q*128}")
        a("s_waitcnt lgkmcnt(0)")
    a(f"""
v_add_u32 v{SB}, 128, v{SB}
v_add_u32 v{RB}, 128, v{RB}
v_add_u32 v{SV+12}, 128, v{SV+12}
s_add_u32 s{sI}, s{sI}, 8
s_branch KF_SL
KF_SN:
s_add_u32 s{sHEAD}, s{sHEAD}, 256
s_cmp_lg_u32 s{sFLAG}, 0
s_cbranch_scc1 KF_SK
s_add_u32 s{sLO}, s{sLO}, 256
s_branch KF_SR
KF_SE:
s_cmp_ge_u32 s{sWV}, 4
s_cbranch_scc0 KF_SE2
""")
    sdma(sA,32768,0,TD)
    a(f"""
KF_SE2:
v_lshlrev_b32 v1, 4, v0
v_lshrrev_b32 v2, 5, v0
s_waitcnt vmcnt(0) lgkmcnt(0)
s_barrier
""")
    for j in range(4): a(f"ds_read_b128 {P4(A+4*j)}, v1 offset:{AGG+j*8192}")
    a(f"""
v_bfe_u32 v3, v0, 1, 4
v_xor_b32 v3, v3, v2
v_lshlrev_b32 v3, 4, v3
v_lshl_add_u32 v3, v2, 8, v3
v_and_b32 v1, 1, v0
v_lshl_add_u32 v3, v1, 3, v3
s_waitcnt lgkmcnt(0)
s_barrier
""")
    for j in range(4):
        a(f"v_cvt_pk_bf16_f32 v{A+4*j}, v{A+4*j}, v{A+4*j+1}\nv_cvt_pk_bf16_f32 v{A+4*j+1}, v{A+4*j+2}, v{A+4*j+3}")
        a(f"ds_write_b64 v3, {P2(A+4*j)} offset:{AGB+j*4096}")
    a("s_branch KF_FIN")
    hist_retry(4,"KF_h",False)
    return a.text()

if __name__=='__main__':
    import sys
    nm='standalone__mpnn_edge_mlp__graph_kernel'
    hdr=open('standalone__mpnn_edge_mlp__graph.s.ref').read().split('; Override')[0]
    out=hdr+(f"; @launch kernel={nm} grid=(256,1,1) block=(512,1,1) lds={KF_LDS}\n" if os.environ.get('LISTF') else f"; @launch grid=(256,1,1) block=(512,1,1) lds={KF_LDS}\n")
    out+='.amdgcn_target "amdgcn-amd-amdhsa--gfx950"\n.text\n'
    out+=f".globl {nm}\n.p2align 8\n.type {nm},@function\n"+gen_kf(nm)
    out+='.section .rodata,"a"\n.p2align 6\n'+kd(nm,256)
    open(sys.argv[1],'w').write(out)
```

```python
from common import *
X=int(os.environ.get('X','0'))
PRIO=int(os.environ.get('PRIO','1'))
DSP=[int(c,36) for c in os.environ.get('DSP','00000000')]
def EV(n,d): return int(os.environ.get(n,d))
TPOS=EV('TPOS',6); PFP=EV('PFP',0); XORD=EV('XORD',1); WUI=EV('WUI',2); FLP=EV('FLP',1); FSL=EV('FSL',8); TE=EV('TE',1); W1N=EV('W1N',5); GP_=EV('GP',1); TLB=EV('TLB',0); DBGP=EV('DBGP',0); ALN=EV('ALN',0); PFH=EV('PFH',0); XP=EV('XP',0); PFI=EV('PFI',0); SWW=EV('SWW',1)
PTS=os.environ.get('PTS','b1,bS,tp,pfl,rl,b2,b3,pro').split(',')
SC=os.environ.get('LSC',' sc1')
SSC=os.environ.get('SSC',' sc1')
OSC=os.environ.get('OSC',' sc1')
GSC=os.environ.get('GSC',' sc1')
NPROD=250; EP=1600; RST=EP*16+128
F_P=0x1000; F_REC=0x400000; F_TBL=0xB00000; F_FLG=0xB90000; F_SIZE=0xBA0000
CNT=0; MISC=256; OH=400; GL=928; BT=1872; STB=2144; RS=944
mSLOW=MISC; mS=MISC+4; mGX=MISC+8; mGP=MISC+12; mC3=MISC+16; mPD=MISC+20; mSL=MISC+24; mMX=MISC+28; mPI=MISC+32; mH=MISC+36; mNT=MISC+40; mW=MISC+44; mE=MISC+48
AGB=17408
W3L=AGB+56*256
Q2=AGB+16384; QS=52*128
S1=Q2; ERAW=Q2+12800
WB=Q2+4*QS; NULLG=49*256; EB=WB+NULLG+16
HIST=WB; PSC=WB+2048
GBUF=98304
KF_LDS=GBUF+65536
assert EB+2*NULLG+32<=GBUF and STB+16*RS<=AGB
AGG=STB
ONE2=0x3F803F80
NULLW2=0xFFFF|(512<<16)
CAPT=58
ID0=4; ID1=8; B3=12; A=28; Z=[60,76]; A3=92; EE=96; NN=112; DD=116; GP=120; SS=124
IDX=128; AR=144; RB=152; SB=153; SA=154; VY=155; OHC=156; VL=157; WT=158; DR=159
ACC=160; WU2=192; UA=208; WF=160; WU1=176; QA=224; RC=96; XF=28; GA=192
A6=244; QAD=250; QC=251; SA2=224; SI2=226; OH2=228; GA0=232; YA=234; EA=235; M4=236; EC=237; VZ=238; PO=92; TRU=240; TD=241; TC=242; TO=243; RK=244; FA=252
sP=24; sX=28; sA=32; sR=36; sM=40
sWV=56; sK=57; sNN=58; sI=59; sNT=60; sBUF=61; sQ=62; sW8=63; sCNT=64; sT0=65
sL2E=66; sINC=68; sRND=70; sTOT=71; sNON=72; sBUD=73; sW4=74; sLB=75
sWU=3; sW4K=22; sOT=23; sFLAG=76; sLO=77; sMA=78; sQ2=80; sHEAD=82; sNF=83
t0,t1,t2,t3=84,85,86,87
BUDGET=20000

def mfma32(d,x,y,c): return f"v_mfma_f32_32x32x16_bf16 v[{d}:{d+15}], v[{x}:{x+3}], v[{y}:{y+3}], "+("0" if c is None else f"v[{c}:{c+15}]")
def mfma16(d,x,y,c): return f"v_mfma_f32_16x16x32_bf16 v[{d}:{d+3}], v[{x}:{x+3}], v[{y}:{y+3}], "+("0" if c is None else f"v[{c}:{c+3}]")
def P2(r): return f"v[{r}:{r+1}]"
def P4(r): return f"v[{r}:{r+3}]"
def S2(r): return f"s[{r}:{r+1}]"
def SR4(r): return f"s[{r}:{r+3}]"

def gen_kf(name):
    a=Asm()
    def pt(n):
        if PROF and n in PTS: stamp(a,2+PTS.index(n))
    def ret(n):
        if PROF and n in PTS: a(f"s_sub_u32 s{90+PTS.index(n)}, {BUDGET}, s{sBUD}\ns_mul_i32 s{90+PTS.index(n)}, s{90+PTS.index(n)}, 100")
    def bar(n,w="s_waitcnt lgkmcnt(0)"):
        a(w+"\ns_barrier"); pt(n)
    def gsync(n,lab,off,target,va,vt,pre=None):
        if pre: a(pre)
        a(f"""
v_mov_b32 v{vt}, 1
s_mov_b64 exec, 1
ds_add_u32 v{va}, v{vt} offset:{off}
s_mov_b64 exec, -1
{lab}:
ds_read_b32 v{vt}, v{va} offset:{off}
s_waitcnt lgkmcnt(0)
v_readfirstlane_b32 s{t1}, v{vt}
s_and_b32 s{t1}, s{t1}, 255
s_cmp_lt_u32 s{t1}, {target}
s_cbranch_scc1 {lab}
""")
        pt(n)
    def gwait(lab,off,target,va,vt):
        a(f"""
{lab}:
ds_read_b32 v{vt}, v{va} offset:{off}
s_waitcnt lgkmcnt(0)
v_readfirstlane_b32 s{t1}, v{vt}
s_and_b32 s{t1}, s{t1}, 255
s_cmp_lt_u32 s{t1}, {target}
s_cbranch_scc1 {lab}
""")
    def consts():
        srd(a,sP,20,N,off=F_P-3072,stride=256)
        srd(a,sR,20,F_SIZE)
        a(f"""
s_cmp_lt_u32 s{sK}, {N-256*48}
s_cselect_b32 s{sNN}, 49, 48
s_mov_b32 s{sL2E}, {hex(LOG2E_NEG)}
s_mov_b32 s{sL2E+1}, {hex(LOG2E_NEG)}
s_mov_b32 s{sINC}, 16
s_mov_b32 s{sINC+1}, 16
s_mov_b32 s{sMA}, 0x0000ffff
s_mov_b32 s{sMA+1}, 0x0000ffff
s_mov_b32 s{sQ2}, {Q2}
s_mov_b32 s{sBUD}, {BUDGET}
v_lshrrev_b32 v2, 5, v{VL}              ; h
; g = 4 b2 + 2 b4 + b0 ; m = 2 b3 + b1 ; slot = 16 b2 + 4 m + (g&3)
v_lshrrev_b32 v1, 3, v{VL}
v_and_b32 v1, 2, v1
v_and_or_b32 v1, v{VL}, 5, v1           ; g
v_lshlrev_b32 v{RB}, 1, v1
v_lshlrev_b32 v3, 1, v{VL}
v_and_b32 v3, 4, v3
v_and_or_b32 v{M4}, v{VL}, 8, v3        ; 4m
v_lshlrev_b32 v{EC}, 1, v{M4}
v_add_u32 v{EC}, {EB}, v{EC}
v_lshlrev_b32 v3, 2, v1
v_and_or_b32 v3, v3, 16, v{M4}
v_and_or_b32 v3, v1, 3, v3              ; slot
v_lshl_add_u32 v3, v3, 8, s{sBUF}
v_and_b32 v{WT}, 15, v{VL}              ; n / c16
v_xor_b32 v1, v2, v{WT}
v_lshl_add_u32 v{AR}, v1, 4, v3
""")
        for t in range(1,8): a(f"v_xor_b32 v{AR+t}, {32*t}, v{AR}")
        a(f"""
v_mul_i32_i24 v{OHC}, -8, v2
v_mul_u32_u24 v{SA}, {RS}, v{WT}
v_and_b32 v1, 1, v{VL}
v_lshlrev_b32 v1, 4, v1
v_mov_b32 v3, 0x3f80
v_lshlrev_b32 v1, v1, v3
""")
        for s in range(2):
            for j in range(4):
                lo=3<<(16*s+2*j); hi=(3<<(16*s+8+2*j))
                a(f"s_mov_b32 vcc_lo, {hex(lo)}\ns_mov_b32 vcc_hi, {hex(hi)}\nv_cndmask_b32 v{ID0+4*s+j}, 0, v1, vcc")
        a(f"""
v_lshrrev_b32 v2, 4, v{VL}              ; a / g
v_lshlrev_b32 v{SB}, 1, v2
v_and_b32 v1, 1, v2
v_xor_b32 v1, v1, v{WT}
v_lshlrev_b32 v1, 4, v1
""")
        for i in range(8): a(f"v_xor_b32 v{IDX+2*i+1}, {(8*((i>>1)&1)+4*(i>>2)+2*(i&1))*16+3072-1024*(i&3)}, v1")
        a(f"v_xor_b32 v3, v2, v{WT}\nv_lshlrev_b32 v3, 4, v3\nv_lshl_add_u32 v3, v{WT}, 8, v3\nv_add_u32 v{FA}, {AGB}, v3")
        for s in range(1,4): a(f"v_xor_b32 v{FA+s}, {64*s}, v{FA}")
        a(f"""
s_lshl_b32 s{t0}, s{sW4}, 13
s_add_u32 s{t0}, s{t0}, {GBUF}
s_lshr_b32 s{t1}, s{sWV}, 2
s_lshl_b32 s{sOT}, s{sW4}, 1
s_or_b32 s{sOT}, s{sOT}, s{t1}
v_lshrrev_b32 v1, 2, v{WT}
v_lshl_add_u32 v1, v2, 3, v1
v_lshl_add_u32 v{DR}, v1, 6, s{t0}
v_xor_b32 v2, s{t1}, v2
v_and_b32 v2, 1, v2
v_and_b32 v3, 3, v{VL}
v_lshl_add_u32 v{TRU}, v2, 5, v{DR}
v_lshl_add_u32 v{TRU}, v3, 3, v{TRU}
""")
    def tagh():
        a(f"""
s_mul_i32 s{sNON}, s{sNON}, 0x9E3779B1
s_add_u32 s{sNON}, s{sNON}, 0x7F4A7C15
s_lshr_b32 s{t1}, s{sNON}, 15
s_xor_b32 s{sNON}, s{sNON}, s{t1}
""")
    def vyc():
        a(f"""
v_lshrrev_b32 v1, 4, v{VL}
v_and_b32 v1, 2, v1
v_xor_b32 v1, v1, v{VL}
v_and_b32 v1, 3, v1
v_lshlrev_b32 v1, 4, v1
v_lshrrev_b32 v2, 2, v{VL}
v_lshl_or_b32 v{VY}, v2, 8, v1
""")
    def trfrag(dst,addr,off,ks,hs):
        for s in range(4):
            a(f"ds_read_b64_tr_b16 {P2(dst+4*s)}, v{addr} offset:{off+s*ks}\nds_read_b64_tr_b16 {P2(dst+4*s+2)}, v{addr} offset:{off+s*ks+hs}")
    def tru(dst,off): trfrag(dst,TRU,off,2048,256)
    def sdma(sr,moff,loff=0,v=VY,js=range(8)):
        a(f"s_lshl_b32 s{t0}, s{sW4}, 6")
        for j in js:
            a(f"s_add_u32 m0, s{sBUF}, {loff+j*1024}\ns_add_u32 s{t1}, s{t0}, {moff+j*4096}\nbuffer_load_dwordx4 v{v}, {SR4(sr)}, s{t1} offen lds")
    def xfrags(Ts):
        for T in Ts:
            for s in range(4): a(f"ds_read_b128 {P4(XF+16*T+4*s)}, v{FA+s} offset:{T*4096}")
    def ugemm():
        for T in range(4):
            for s in range(4):
                x,y=(WU1+4*s,XF+16*T+4*s) if T<3 else (XF+16*T+4*s,WU1+4*s)
                a(mfma16(UA+4*T,x,y,None if s==0 else UA+4*T))
    def uscale():
        for j in range(7): a(f"v_pk_mul_f32 {P2(UA+2*j)}, {P2(UA+2*j)}, {S2(sL2E)}")
    def w3rd():
        a(f"v_lshlrev_b32 v1, 3, v{VL}")
        for q in range(4): a(f"ds_read_b64 {P2(B3+4*q+2*(q&1))}, v1 offset:{W3L+q*512}")
    F=A3
    def scan(slow):
        a(f"""
v_lshlrev_b32 v1, 2, v{VL}
ds_read_b32 v{F}, v1
v_cmp_gt_u32 vcc, s{sNN}, v{VL}
v_lshlrev_b32 v{F+1}, 8, v{VL}
s_waitcnt lgkmcnt(0)
v_sub_u32 v{QA}, v{F}, v{F+1}
""")
        if slow:
            a(f"""
s_movk_i32 s{t1}, 256
v_subrev_u32 v{QA}, s{sHEAD}, v{QA}
v_cmp_lt_i32 {S2(t2)}, s{t1}, v{QA}
v_med3_i32 v{QA}, v{QA}, 0, s{t1}
v_add_u32 v{F}, v{F+1}, v{QA}
""")
        a(f"""
v_add_u32 v3, 12, v{QA}
v_and_b32 v3, -16, v3
v_max_u32 v3, 80, v3
v_cndmask_b32 v3, 0, v3, vcc
v_mov_b32 v2, v3
""")
        dpp_scan(a,"v_add_u32",[2])
        a(f"""
v_readlane_b32 s{t0}, v2, 63
v_sub_u32 v2, v2, v3
""")
    def fill(lab,slow,nw):
        a(f"""
s_lshl_b32 s{t1}, s{sWV}, 4
v_add_u32 v{QA+1}, s{t1}, v2
v_lshrrev_b32 v{QA+1}, 3, v{QA+1}       ; 2*(G0+w)
v_add_u32 v{F+1}, s{t1}, v{F+1}         ; 256n+16w
v_subrev_u32 v{QA+2}, s{t1}, v3         ; g16-16w
""")
        if not slow: a(f"v_add_u32 v{QA+3}, v{QA+1}, v{SA}\nv_mov_b32 v{F+3}, 0x3f80\nds_write_b32 v1, v2 offset:{BT}")
        for k in range(16//nw):
            a(f"v_cmpx_lt_i32 vcc, {16*nw*k}, v{QA+2}\nds_write_b16 v{QA+1}, v{F+1+(k&1)} offset:{GL+2*nw*k}")
            if k+1<16//nw: a(f"v_add_u32 v{F+1+((k+1)&1)}, {16*nw}, v{F+1+(k&1)}")
            if not slow: a(f"ds_write_b16 v{QA+3}, v{F+3} offset:{STB+2*nw*k}")
        a(f"""
s_mov_b64 exec, -1
s_lshl_b32 s{t1}, s{sWV}, 2
v_sub_u32 v{QA+2}, v3, v{QA}
v_add_u32 v{F}, s{t1}, v{F}
v_subrev_u32 v{QA+2}, s{t1}, v{QA+2}    ; pad4 - 4w
s_mov_b32 s{t1}, {EB}
v_mov_b32 v{QA+4}, 0
v_mov_b32 v{QA+5}, 0
v_mov_b32 v{QA+6}, {hex(NULLW2)}
v_lshl_add_u32 v{QA+7}, v{F}, 1, s{t1}
""")
        for k in range(-(-20//nw)):
            a(f"v_cmpx_lt_i32 vcc, {4*nw*k}, v{QA+2}")
            if k==1: a(f"s_cbranch_vccz {lab}p")
            a(f"ds_write_b32 v{F}, v{QA+6} offset:{WB+4*nw*k}\nds_write_b64 v{QA+7}, {P2(QA+4)} offset:{8*nw*k}")
        a(f"""
{lab}p:
s_mov_b64 exec, -1
s_cmp_eq_u32 s{sWV}, 3
s_cbranch_scc0 {lab}q
s_lshr_b32 s{t1}, s{t0}, 3
v_lshl_add_u32 v{QA+1}, v{VL}, 1, s{t1}
v_mov_b32 v{QA+2}, {NULLG}
v_add_u32 v{QA+3}, {NULLG}, v1
v_lshlrev_b32 v{QA+7}, 1, v1
v_add_u32 v{QA+7}, {EB+2*NULLG}, v{QA+7}
s_mov_b64 exec, 0xff
ds_write_b16 v{QA+1}, v{QA+2} offset:{GL}
s_mov_b64 exec, 15
ds_write_b32 v{QA+3}, v{QA+6} offset:{WB}
ds_write_b64 v{QA+7}, {P2(QA+4)}
s_mov_b64 exec, -1
{lab}q:
""")
    def expand(lab):
        a(f"""
v_subrev_u32 v1, s{sLO}, v{TO}
v_add_u32 v2, v1, v{TC}
v_med3_i32 v1, v1, 0, s{t3}
v_med3_i32 v2, v2, 0, s{t3}
v_sub_u32 v2, v2, v1
v_lshl_add_u32 v1, v1, 2, s{sLB}
{lab}:
""")
        for j in range(16):
            a(f"v_cmpx_lt_i32 vcc, {j}, v2\nds_write_b32 v1, v{TD} offset:{4*j}")
        a(f"""
v_add_u32 v2, -16, v2
v_add_u32 v1, 64, v1
v_cmp_lt_i32 vcc, 0, v2
s_cmp_lg_u64 vcc, 0
s_cbranch_scc1 {lab}
s_mov_b64 exec, -1
""")
    def rl1(i): return f"buffer_load_dwordx4 {P4(RC+4*i)}, v{RK+i}, {SR4(sR)}, {'0' if i<4 else 's'+str(sQ)} offen offset:{1024*(i&3)}{SC}"
    def reclist(ns):
        a(f"v_lshl_add_u32 v1, v{VL}, 2, s{sLB}")
        for i in reversed(range(ns)): a(f"ds_read_b32 v{RK+i}, v1 offset:{256*i}")
        a(f"v_add_u32 v2, s{sLO}, v{VL}\nv_lshlrev_b32 v2, 4, v2\ns_movk_i32 s{sQ}, 4096")
        for i in range(ns):
            a(f"v_cmp_gt_i32 {S2(sM+2*i)}, s{t1}, v{VL}\ns_sub_u32 s{t1}, s{t1}, 64")
        a("s_waitcnt lgkmcnt(0)")
        for i in range(ns): a(f"v_add_u32 v{RK+i}, v{RK+i}, v2")
    def recload(ns,lab):
        for i in reversed(range(ns)):
            a(f"s_mov_b64 exec, {S2(sM+2*i)}\ns_cbranch_execz {lab}{i}\n{rl1(i)}\n{lab}{i}:")
        a("s_mov_b64 exec, -1")
    def hist(ns,lab,extra,scat):
        a(f"v_mov_b32 v1, 4\ns_mov_b32 s{sW8}, {EB}\n{lab}p:")
        def gm(i): return S2(t0+2*(i&1))
        def sc(i,n):
            a(f"""
s_mov_b64 exec, {gm(i)}
s_waitcnt lgkmcnt({n})
v_min_u32 v{RK+i}, {NULLG-4}, v{RK+i}
v_lshl_add_u32 v{RC+4*i+3}, v{RK+i}, 1, s{sW8}
ds_write_b32 v{RK+i}, v{RC+4*i+2} offset:{WB}
ds_write_b64 v{RC+4*i+3}, {P2(RC+4*i)}
""")
        for i in reversed(range(ns)):
            a(f"""
s_mov_b64 exec, {S2(sM+2*i)}
s_waitcnt vmcnt({i+extra})
v_cmpx_eq_u32 {gm(i)}, s{sNON}, v{RC+4*i+3}
v_lshrrev_b32 v{RC+4*i+3}, 17, v{RC+4*i+2}
ds_add_rtn_u32 v{RK+i}, v{RC+4*i+3}, v1
s_andn2_b64 {S2(sM+2*i)}, {S2(sM+2*i)}, {gm(i)}
""")
            a(f"s_mov_b64 vcc, {S2(sM+2*i)}" if i==ns-1 else f"s_or_b64 vcc, vcc, {S2(sM+2*i)}")
            if scat and i==0: a(f"s_cselect_b64 exec, 0, 1\nds_add_u32 v{VZ}, v1 offset:{mH}")
            if scat and i<ns-1: sc(i+1,(1 if i==ns-2 else 3)+(1 if i==0 else 0))
        if scat: sc(0,3)
        a(f"s_cbranch_vccnz {lab}r\n{lab}d:\ns_mov_b64 exec, -1")
    def hist_retry(ns,lab,scat):
        a(f"{lab}r:\ns_sub_u32 s{sBUD}, s{sBUD}, 1\ns_cbranch_scc1 {lab}x")
        recload(ns,lab+"l")
        a(f"s_waitcnt vmcnt(0)\ns_branch {lab}p\n{lab}x:\ns_mov_b32 s{sBUD}, 0")
        if scat: a(f"s_mov_b64 exec, 1\nds_add_u32 v{VZ}, v1 offset:{mH}")
        a(f"s_branch {lab}d")
    def qfull(lab,mid):
        H=QA+4; MX=QA+1
        a(f"v_xor_b32 v{TC}, 32, v{TRU}")
        trfrag(WF,TC,0,2048,256)
        a(f"""
s_lshr_b32 s{t0}, s{sW4}, 1
s_lshl_b32 s{t0}, s{t0}, 9
s_and_b32 s{t1}, s{sW4}, 1
s_lshl_b32 s{t1}, s{t1}, 3
s_add_u32 s{t0}, s{t0}, s{t1}
s_add_u32 s{t0}, s{t0}, {Q2}
v_lshl_add_u32 v120, v{SB}, 10, s{t0}
v_lshl_add_u32 v120, v{WT}, 4, v120
v_add_u32 v121, 256, v120
s_waitcnt lgkmcnt(0)
""")
        tru(WF+16,0)
        def cv(i,T,pk):
            c=GA+16*i+4*T
            L=[]
            if pk: L+=[f"v_pk_mul_f32 {P2(c)}, {P2(c)}, {S2(sL2E)}",f"v_pk_mul_f32 {P2(c+2)}, {P2(c+2)}, {S2(sL2E)}"]
            else: L+=[f"v_mul_f32 v{c+k}, s{sL2E}, v{c+k}" for k in range(4)]
            L+=[f"v_and_b32 v{H+k}, 0xffff0000, v{c+k}" for k in range(4)]
            L+=[f"v_maximum3_f32 v{MX}, {'0' if T==0 and i==0 else 'v'+str(MX)}, abs(v{c}), abs(v{c+1})",f"v_maximum3_f32 v{MX}, v{MX}, abs(v{c+2}), abs(v{c+3})"]
            if pk: L+=[f"v_pk_add_f32 {P2(c)}, {P2(c)}, {P2(H)} neg_lo:[0,1] neg_hi:[0,1]",f"v_pk_add_f32 {P2(c+2)}, {P2(c+2)}, {P2(H+2)} neg_lo:[0,1] neg_hi:[0,1]"]
            else: L+=[f"v_sub_f32 v{c+k}, v{c+k}, v{H+k}" for k in range(4)]
            L+=[f"v_cvt_pk_bf16_f32 v{c+k}, v{c+k}, v{H+k}" for k in range(4)]
            return L
        for T in range(4):
            for s in range(4): a(mfma16(GA+4*T,XF+16*T+4*s,WF+4*s,None if s==0 else GA+4*T))
        a("s_waitcnt lgkmcnt(0)")
        fl=cv(0,0,0)+cv(0,1,0)
        for T in range(4):
            for s in range(4):
                a(mfma16(GA+16+4*T,XF+16*T+4*s,WF+16+4*s,None if s==0 else GA+16+4*T))
                for _ in range(2): a(fl.pop(0))
        if PFI==0: mid()
        for x in fl+cv(0,2,1)+cv(1,0,1)+cv(1,1,1)+cv(1,2,1): a(x)
        if PFI==1: mid()
        gwait(lab+"w",mSL,4,VZ,1)
        for i in range(2):
            for T in range(3):
                c=GA+16*i+4*T
                a(f"ds_write2st64_b64 v{120+i}, {P2(c)}, {P2(c+2)} offset0:{16*T} offset1:{16*T+2}")
        a("s_mov_b64 exec, 0xffff")
        for i in range(2):
            c=GA+16*i+12
            a(f"""
v_mul_f32 v{c}, s{sL2E}, v{c}
v_and_b32 v{H}, 0xffff0000, v{c}
v_maximum3_f32 v{MX}, v{MX}, abs(v{c}), abs(v{c})
v_sub_f32 v{c}, v{c}, v{H}
v_cvt_pk_bf16_f32 v{c}, v{c}, v{H}
ds_write2st64_b64 v{120+i}, {P2(c)}, {P2(c+2)} offset0:48 offset1:50
""")
        a(f"""
s_mov_b64 exec, -1
v_cmp_nge_f32 vcc, 0x40e80000, v{MX}
s_cbranch_vccz {lab}q
ds_write_b32 v{VZ}, v{FA} offset:{mSLOW}
{lab}q:
""")
        pt('qd')
    def ranges():
        a(f"""
s_lshr_b32 s{sCNT}, s{sNT}, 3
s_mul_i32 s{sT0}, s{sCNT}, s{sWV}
s_and_b32 s{t2}, s{sNT}, 7
s_min_u32 s{t3}, s{t2}, s{sWV}
s_add_u32 s{sT0}, s{sT0}, s{t3}
s_cmp_lt_u32 s{sWV}, s{t2}
s_addc_u32 s{sCNT}, s{sCNT}, 0
s_lshl_b32 s{t0}, s{sT0}, 7
s_lshl_b32 s{t2}, s{sT0}, 4
v_add_u32 v{SB}, s{t2}, v{SB}
v_add_u32 v{RB}, s{t2}, v{RB}
v_sub_u32 v{SA}, v{SA}, v{OHC}
v_add_u32 v{SA}, s{t2}, v{SA}
s_add_u32 s{t3}, s{sT0}, s{sCNT}
v_min_u32 v1, 8, v{VL}
v_sub_u32 v1, s{t3}, v1
v_lshlrev_b32 v1, 4, v1
v_max_i32 v1, 0, v1
""")
    def epi_consts(): pass
    def arrive(off,vt): a(f"v_mov_b32 v{vt}, 1\ns_mov_b64 exec, 1\nds_add_u32 v{VZ}, v{vt} offset:{off}\ns_mov_b64 exec, -1")

    D=28; SRc=36; K=44; R=52; W2=60; RO=80
    sD=40; sS=44; sE=48
    Q16="s_mov_b64 exec, 0xffff"; FULL="s_mov_b64 exec, -1"
    a(f"""
{name}:
s_getpc_b64 {S2(t2)}
s_cmp_ge_u32 s2, 256
s_cbranch_scc1 KF_END
s_load_dwordx16 s[4:19], s[0:1], 0
s_load_dwordx2 s[20:21], s[0:1], 64
v_lshrrev_b32 v1, 6, v0
s_and_b32 s{t0}, s2, 0xf8
v_add_lshl_u32 v2, v1, s{t0}, 7
v_readfirstlane_b32 s{sWV}, v1
v_min_u32 v2, KF_CEND-{name}-8, v2
s_mov_b64 exec, 1
global_load_dword v{QA+15}, v2, {S2(t2)}
s_mov_b64 exec, -1
v_and_b32 v{VL}, 63, v0
v_mov_b32 v{VZ}, 0
v_lshlrev_b32 v113, 4, v{VL}
s_cmp_ge_u32 s{sWV}, 4
s_cbranch_scc0 KF_S
v_lshlrev_b32 v2, 2, v0
v_lshlrev_b32 v3, 8, v{VL}
ds_write_b32 v2, v{VZ} offset:{HIST-1024}
v_lshlrev_b32 v2, 2, v{VL}
ds_write2st64_b32 v2, v3, v{VZ} offset0:0 offset1:1
s_waitcnt lgkmcnt(0)
""")
    if WSB: a(f"s_add_u32 s20, s20, {hex(WSB)}\ns_addc_u32 s21, s21, 0")
    stamp(a,0,True); stamp(a,1); pt('st')
    a(f"""
s_load_dword s{sNON}, s[20:21], 0
s_lshr_b32 s{t0}, s{t0}, 1
s_add_u32 s{t0}, s{t0}, s{sWV}
s_sub_u32 s{t0}, s{t0}, 4
s_lshl_b32 s{t0}, s{t0}, 9
v_lshl_add_u32 v2, v{VL}, 7, s{t0}
s_mov_b64 exec, 15
global_load_dword v{QA+15}, v2, s[12:13]
global_load_dword v{QA+15}, v2, s[14:15]
s_mov_b64 exec, -1
""")
    if TLB:
        a(f"""
s_lshr_b32 s{t0}, s{t0}, 9
s_mul_i32 s{t1}, s{t0}, {2*RST}
s_add_u32 s{t1}, s{t1}, {F_REC+EP*16}
s_add_u32 s52, s20, s{t1}
s_addc_u32 s53, s21, 0
s_load_dword s44, s[52:53], 0
s_load_dword s45, s[52:53], {RST}
""")
    a(f"""
s_branch KF_B0
KF_S:
s_min_u32 s{t2}, s2, {NPROD-1}
s_mul_i32 s{t2}, s{t2}, {EP*4}
s_mul_i32 s{t3}, s{sWV}, 400
v_add_u32 v108, s{t3}, v{VL}
v_lshlrev_b32 v109, 2, v108
s_mov_b32 s{sD+2}, {E*4}
s_mov_b32 s{sD+3}, 0x00020000
s_waitcnt lgkmcnt(0)
""")
    if WSB: a(f"s_add_u32 s20, s20, {hex(WSB)}\ns_addc_u32 s21, s21, 0")
    stamp(a,0,True); stamp(a,1); pt('st')
    a(f"s_mov_b32 s{sD}, s10\ns_and_b32 s{sD+1}, s11, 0xffff")
    def ld7(dst,sr):
        for i in range(7):
            if i==6: a(Q16)
            a(f"buffer_load_dword v{dst+i}, v109, {SR4(sr)}, s{t2} offen offset:{i*256}")
        a(FULL)
    ld7(D,sD)
    srd(a,sS,8,E*4); srd(a,sE,6,E*8)
    ld7(SRc,sS)
    a(f"""
s_lshl_b32 s{sLB}, s{t3}, 3
s_lshl_b32 s{t2}, s{t2}, 1
s_add_u32 s{t2}, s{t2}, s{sLB}
s_add_u32 m0, s{sLB}, {ERAW}
s_add_u32 s{sLB}, s{sLB}, {S1}
""")
    for j in range(4):
        if j==3: a("s_mov_b64 exec, 0xff")
        a(f"buffer_load_dwordx4 v113, {SR4(sE)}, s{t2} offen offset:{1024*j} lds")
    a(FULL)
    a(f"""
KF_B0:
""")
    if DBGP:
        a("v_mov_b32 v1, 0")
        for j,r in enumerate((4,6,8,10,12,14,16,18,20)): a(f"v_writelane_b32 v1, s{r}, {j}")
        a(f"v_lshlrev_b32 v2, 2, v{VL}\ns_mov_b64 exec, 0x1ff\nglobal_store_dword v2, v1, s[18:19]\ns_mov_b64 exec, -1\ns_waitcnt vmcnt(0)")
    if ALN: a(f"s_add_u32 s20, s20, {ALN-1}\ns_addc_u32 s21, s21, 0\ns_and_b32 s20, s20, {-ALN}")
    a(f"""
s_and_b32 s{sK}, s2, 7
s_lshl_b32 s{sK}, s{sK}, 5
s_lshr_b32 s{t0}, s2, 3
s_or_b32 s{sK}, s{sK}, s{t0}
s_and_b32 s{sW4}, s{sWV}, 3
s_lshl_b32 s{sW4K}, s{sW4}, 10
s_lshl_b32 s{sBUF}, s{sWV}, 13
s_add_u32 s{sBUF}, s{sBUF}, {GBUF}
s_barrier
""")
    consts()
    a(f"""
s_cmp_ge_u32 s{sWV}, 4
s_cbranch_scc1 KF_T
v_mov_b32 v111, 8
v_lshlrev_b32 v112, 3, v108
v_lshlrev_b32 v110, 4, v108
""")
    for i in range(7): a(f"v_add_u32 v{W2+1+2*i}, {i*512}, v112")
    a(f"s_cmp_ge_u32 s2, {NPROD}\ns_cbranch_scc1 KS_d\ns_waitcnt vmcnt(11)")
    pt('dst')
    for i in range(7):
        if i==6: a(Q16)
        a(f"v_lshlrev_b32_sdwa v{K+i}, 2, v{D+i} dst_sel:DWORD dst_unused:UNUSED_PAD src0_sel:DWORD src1_sel:BYTE_0\nds_add_rtn_u32 v{R+i}, v{K+i}, v111 offset:{HIST}")
    a(FULL+"\nKS_d:")
    gsync('b1',"KS_y1",mS,4,VZ,2)
    a(f"ds_read_b128 v[116:119], v113 offset:{HIST}")
    for i in range(7): a(f"v_lshrrev_b32 v{D+i}, 8, v{D+i}")
    a(f"""
s_waitcnt lgkmcnt(0)
v_add_u32 v2, v116, v117
v_add3_u32 v2, v2, v118, v119
v_mov_b32 v3, v2
""")
    dpp_scan(a,"v_add_u32",[3])
    a(f"""
v_sub_u32 v120, v3, v2
v_add_u32 v121, v120, v116
v_add_u32 v122, v121, v117
v_add_u32 v123, v122, v118
ds_write_b128 v113, v[120:123] offset:{HIST+1024}
""")
    for i in range(7):
        if i==6: a(Q16)
        a(f"ds_read_b32 v{K+i}, v{K+i} offset:{HIST+1024}")
    a(FULL)
    def tpub():
        a(f"s_load_dword s{sNON}, s[20:21], 0")
        for j in range(4): a(f"v_lshlrev_b32 v2, 1, v{120+j}\nv_lshl_or_b32 v{QA+2*j}, v{116+j}, 13, v2")
        a("s_waitcnt lgkmcnt(0)")
        tagh()
        a(f"v_mov_b32 v1, s{sNON}")
        for j in range(4): a(f"v_mov_b32 v{QA+2*j+1}, v1")
        a(f"""
s_lshl_b32 s{t2}, s2, 11
s_add_u32 s{t2}, s{t2}, {F_TBL}
s_lshl_b32 s{t3}, s{sWV}, 4
s_lshl_b64 exec, 0xffff, s{t3}
buffer_store_dwordx4 {P4(QA)}, v113, {SR4(sR)}, s{t2} offen{SSC}
buffer_store_dwordx4 {P4(QA+4)}, v113, {SR4(sR)}, s{t2} offen offset:1024{SSC}
s_mov_b64 exec, -1
""")
    if TE==0: tpub()
    a(f"s_cmp_ge_u32 s2, {NPROD}\ns_cbranch_scc1 KS_e\ns_waitcnt vmcnt({6 if TE==0 else 4})")
    if X&64:
        for i in range(7): a(f"v_and_b32 v{SRc+i}, 0x1ff, v{SRc+i}")
    for i in range(7): a(f"v_lshl_or_b32 v{W2+2*i}, v{D+i}, 19, v{SRc+i}")
    a(f"s_waitcnt lgkmcnt(0)")
    for i in range(7):
        if i==6: a(Q16)
        a(f"v_add_u32 v{K+i}, v{K+i}, v{R+i}\nds_write_b64 v{K+i}, {P2(W2+2*i)} offset:{S1}")
    a(FULL+"\nKS_e:")
    pt('sc1')
    if TE==1: tpub()
    a(f"""
v_lshlrev_b32 v114, 11, v0
s_lshr_b32 s{sLO}, s{sK}, 2
s_lshl_b32 s{sLO}, s{sLO}, 4
s_and_b32 s{t0}, s{sK}, 1
s_lshl_b32 s{t0}, s{t0}, 3
s_add_u32 s{sLO}, s{sLO}, s{t0}
s_and_b32 s{t0}, s{sK}, 2
s_lshl_b32 s{t0}, s{t0}, 9
s_add_u32 s{sLO}, s{sLO}, s{t0}
s_add_u32 s{sLO}, s{sLO}, {F_TBL}
v_cmp_gt_u32 vcc, {NPROD}, v0
v_mov_b32 v{TC}, 0
s_mul_i32 s{t0}, s2, {RST}
s_add_u32 s{t0}, s{t0}, {F_REC}
s_add_u32 s{t2}, s{t0}, 4096
v_mul_u32_u24 v115, {RST}, v0
v_add_u32 v115, {F_REC}, v115
""")
    gsync('bS',"KS_y2",mS,8,VZ,2,"s_waitcnt vmcnt(2)")
    tl=f"s_mov_b64 exec, vcc\nbuffer_load_dwordx2 {P2(TC)}, v114, {SR4(sR)}, s{sLO} offen{SC}\ns_mov_b64 exec, -1"
    a(f"""
s_cmp_ge_u32 s2, {NPROD}
s_cbranch_scc0 KS_h0
""")
    gwait("KS_h1",mGP,4,VZ,2)
    a(f"""
{tl}
v_mov_b32 v1, 0
s_branch KS_j
KS_h0:
""")
    order=[6,0,1,2,3,4,5]
    for i in order:
        if i==6: a(Q16)
        a(f"ds_read_b64 {P2(RO+2+4*i)}, v112 offset:{S1+i*512}")
        if i==6: a(FULL)
    for i in order:
        if i==6: a(Q16)
        a(f"s_waitcnt lgkmcnt(6)\nds_read_b64 {P2(RO+4*i)}, v{RO+3+4*i} offset:{ERAW}")
        if i==6: a(FULL)
    gwait("KS_ww",mW,4,VZ,2)
    for k,i in enumerate(order):
        if i==6: a(Q16)
        a(f"v_mov_b32 v{RO+3+4*i}, v1\nbuffer_store_dwordx4 {P4(RO+4*i)}, v110, {SR4(sR)}, s{t0 if i<4 else t2} offen offset:{1024*(i&3)}{SSC}")
        if i==6: a(FULL)
    a(tl)
    pt('out')
    a(f"v_pk_maximum3_f16 v1, v{RO}, v{RO+1}, v{RO+1}\nv_pk_minimum3_f16 v2, v{RO}, v{RO+1}, v{RO+1}")
    for i in range(1,7):
        if i==6: a(Q16)
        a(f"v_pk_maximum3_f16 v1, v1, v{RO+4*i}, v{RO+4*i+1}\nv_pk_minimum3_f16 v2, v2, v{RO+4*i}, v{RO+4*i+1}")
    a(FULL)
    absmax_fin(a,1,2,3)
    a("KS_j:")
    gwait("KS_xw",mGX,4,VZ,2)
    a(f"ds_read_b32 v2, v{VZ} offset:{mC3}\ns_mov_b32 s{t1}, 0x41680000")
    xfrags([0,1,2])
    a(f"""
s_waitcnt lgkmcnt(4)
v_mul_f32 v1, v1, v2
v_cmp_nge_f32 {S2(t2)}, s{t1}, v1       ; !(14.5 >= e*c3)
""")
    xfrags([3]); w3rd()
    a(f"""
s_cmp_lg_u64 {S2(t2)}, 0
s_cselect_b32 s{t1}, 0x101, 1
v_mov_b32 v1, s{t1}
s_mov_b64 exec, 1
ds_add_u32 v{VZ}, v1 offset:{mE}
s_waitcnt vmcnt(0)
s_mov_b64 exec, vcc
KT_f:
v_cmp_ne_u32 vcc, s{sNON}, v{TC+1}
s_cbranch_vccz KT_g
s_mov_b64 exec, vcc
s_sub_u32 s{sBUD}, s{sBUD}, 1
s_cbranch_scc1 KT_f2
buffer_load_dwordx2 {P2(TC)}, v114, {SR4(sR)}, s{sLO} offen{SC}
s_waitcnt vmcnt(0)
s_branch KT_f
KT_f2:
s_mov_b32 s{sBUD}, 0
v_mov_b32 v{TC}, 0
KT_g:
s_mov_b64 exec, -1
""")
    pt('tp'); ret('rt1')
    a(f"""
v_lshrrev_b32 v{TO}, 16, v{TC}
v_add_u32_sdwa v{TD}, v115, v{TC} dst_sel:DWORD dst_unused:UNUSED_PAD src0_sel:DWORD src1_sel:WORD_0
v_mov_b32 v{TC}, v{TO}
""")
    dpp_scan(a,"v_add_u32",[TO])
    a(f"""
v_readlane_b32 s{sTOT}, v{TO}, 63
v_sub_u32 v{TO}, v{TO}, v{TC}
s_mov_b32 s{sLO}, 0
s_movk_i32 s{t3}, 512
v_lshlrev_b32 v1, 4, v{TO}
v_sub_u32 v{TD}, v{TD}, v1
""")
    expand("KT_x")
    a(f"s_mov_b32 s{t1}, s{sTOT}")
    reclist(8)
    arrive(mSL,1)
    pt('exp')
    gwait("KS_rw",mPD,4,VZ,1)
    recload(8,"KT_l")
    pt('rl')
    def pfp():
        a(f"""
s_lshr_b32 s{t1}, s2, 3
s_mul_i32 s{t1}, s{t1}, 391
v_bfe_u32 v2, v0, 1, 7
v_add_u32 v2, s{t1}, v2
v_and_b32 v3, 1, v0
v_lshlrev_b32 v3, 7, v3
""")
        if PFH: a("s_mov_b32 exec_hi, 0")
        a(f"buffer_load_dword v{QA+15}, v[2:3], {SR4(sP)}, 0 idxen offen offset:3072{SC}\ns_mov_b64 exec, -1")
    if PFP==1: pfp()
    gwait("KS_w2",mPI,4,VZ,1)
    tru(WU1,32768)
    a("s_waitcnt lgkmcnt(0)")
    ugemm()
    pt('ud')
    hist(8,"KT_h",1 if PFP==1 else 0,True)
    if PFP==3: pfp()
    pt('hs'); ret('rt2')
    gwait("KS_b2",mH,16,VZ,1)
    pt('b2')
    scan(False)
    a(f"""
v_cmp_lt_u32 vcc, 0x100, v{QA}
s_add_u32 s{sNT}, s{t0}, 127
s_lshr_b32 s{sNT}, s{sNT}, 7
s_cmp_gt_u32 s{sNT}, {CAPT}
s_cbranch_scc1 KT_j
s_cbranch_vccnz KT_j
""")
    fill("KFz",False,4)
    a(f"v_mov_b32 v1, s{sNT}\nds_write_b32 v{VZ}, v1 offset:{mNT}")
    pt('fil')
    a(f"""
s_cmp_gt_u32 s{sTOT}, 512
s_cbranch_scc0 KT_k
KT_j:
ds_write_b32 v{VZ}, v{FA} offset:{mSLOW}
KT_k:
s_mov_b32 s{sWU}, -1
""")
    ranges()
    srd(a,sA,14,256*256)
    if PRIO: a("s_setprio 3")
    bar('b3')
    a("s_branch KF_J")
    a(f"""
KF_T:
v_lshrrev_b32 v2, 3, v{VL}
v_and_b32 v2, 2, v2
v_xor_b32 v2, v2, v3
v_lshl_add_u32 v{TD}, v2, 4, v{DR}
v_and_b32 v108, 255, v0
v_mov_b32 v32, 0
v_mov_b32 v33, 0
v_mov_b32 v34, 0
v_mov_b32 v35, 0
v_lshlrev_b32 v110, 4, v108
v_lshrrev_b32 v1, 4, v108
v_xor_b32 v37, v1, v0
v_and_b32 v37, 15, v37
v_lshlrev_b32 v37, 4, v37
v_lshl_add_u32 v36, v1, 8, s{sK}
""")
    sG=40
    srd(a,sX,4,N,stride=256)
    def xld():
        for j in range(4):
            if j==3: a(f"s_cmp_eq_u32 s{sWV}, 4\ns_cbranch_scc0 KT_c")
            a(f"s_add_u32 m0, s{sW4K}, {AGB+j*4096}\ns_nop 0\nbuffer_load_dwordx4 v[36:37], {SR4(sX)}, 0 idxen offen lds\nv_add_u32 v36, 4096, v36")
        a("KT_c:")
    def warm():
        a(f"""
v_and_b32 v1, 31, v{VL}
v_lshlrev_b32 v1, 1, v1
s_lshl_b32 s{t0}, s{sW4}, 6
s_add_u32 s{t0}, s{t0}, 65536
""")
        for k in range(4): a(f"buffer_load_ushort v{124+k}, v1, {SR4(sA)}, s{t0} offen offset:{k*256}")
    def zer():
        a(f"v_cmp_le_u32 vcc, 32, v108\ns_mov_b64 exec, vcc\nds_write_b128 v110, v[32:35]\ns_mov_b64 exec, -1")
        for j in range(1,4): a(f"ds_write_b128 v110, v[32:35] offset:{j*4096}")
        a(f"""
s_cmp_eq_u32 s{sWV}, 4
s_cbranch_scc0 KT_b
ds_write_b128 v110, v[32:35] offset:16384
KT_b:
""")
    srd(a,sA,12,260*256); warm(); vyc()
    if XORD==1: xld()
    zer()
    a(f"""
s_lshl_b32 s{t0}, s{sW4}, 2
v_lshrrev_b32 v2, 4, v{VL}
v_or_b32 v1, s{t0}, v2                  ; 4u+g
v_xor_b32 v3, v1, v{WT}
v_lshlrev_b32 v3, 4, v3
v_lshl_add_u32 v116, v{WT}, 8, v3
v_add_u32 v116, {PSC}, v116
v_add_u32 v117, {PSC}, v110
v_lshl_add_u32 v118, v1, 16, v3
""")
    if XORD==2:
        gwait("KG_x",mS,4,VZ,1); xld()
    sdma(sA,0)
    sdma(sA,32768,-32768)
    arrive(mW,1)
    pt('w1i')
    def w3m():
        w=[124,125,126,127]; u=QA
        for k in range(4): a(f"v_lshlrev_b32 v{w[k]}, 16, v{w[k]}\nv_mul_f32 v{w[k]}, s{sL2E}, v{w[k]}")
        a(f"""
v_cvt_pk_bf16_f32 v{u}, v124, v125
v_cvt_pk_bf16_f32 v{u+1}, v126, v127
v_lshlrev_b32 v{u+2}, 16, v{u}
v_and_b32 v{u+3}, 0xffff0000, v{u}
v_lshlrev_b32 v{u+4}, 16, v{u+1}
v_and_b32 v{u+5}, 0xffff0000, v{u+1}
v_add_f32 v{u+6}, abs(v124), abs(v125)
v_sub_f32 v{u+2}, v124, v{u+2}
v_sub_f32 v{u+3}, v125, v{u+3}
v_sub_f32 v{u+4}, v126, v{u+4}
v_sub_f32 v{u+5}, v127, v{u+5}
v_add_f32 v{u+7}, abs(v126), abs(v127)
s_mov_b32 exec_lo, 0
v_cvt_pk_bf16_f32 v{u}, v{u+2}, v{u+3}
v_cvt_pk_bf16_f32 v{u+1}, v{u+4}, v{u+5}
s_mov_b32 exec_lo, -1
v_add_f32 v{u+6}, v{u+6}, v{u+7}
v_lshlrev_b32 v1, 3, v108
v_and_b32 v{u+6}, 0x7fffffff, v{u+6}
ds_write_b64 v1, {P2(u)} offset:{W3L}
""")
        dpp_scan(a,"v_max_u32",[u+6])
        a(f"""
s_mov_b32 exec_lo, 0
s_brev_b32 exec_hi, 1
ds_max_u32 v{VZ}, v{u+6} offset:{mC3}
s_mov_b64 exec, -1
""")
    e2=8
    a(f"s_waitcnt vmcnt({11+e2})"); w3m()
    a(f"v_mov_b32 v1, {hex(ONE2)}\nds_write2_b32 v{VZ}, v1, v1 offset0:{OH//4} offset1:{OH//4+3}")
    gsync('bX',"KG_y1",mGX,4,VZ,2,f"s_waitcnt vmcnt({8+e2})")
    if GP_: a(f"s_setprio {GP_}")
    xfrags([0])
    a(f"s_waitcnt vmcnt({e2})")
    pt('xl')
    trfrag(WF,TD,32768,2048,256)
    a("s_waitcnt lgkmcnt(7)")
    trfrag(WF+16,TD,32768+8,2048,256)
    def pm(T,i):
        for s in range(4): a(mfma16(GA+8*T+4*i,WF+16*i+4*s,XF+16*T+4*s,None if s==0 else GA+8*T+4*i))
    def pcv(T):
        c=GA+8*T
        L=[f"v_mul_f32 v{c+j}, s{sL2E}, v{c+j}" for j in range(8)]
        L+=[f"v_cvt_pk_bf16_f32 v{c+j}, v{c+2*j}, v{c+2*j+1}" for j in range(4)]
        L+=[f"ds_write_b128 v116, {P4(c)} offset:{T*4096}"]
        return L
    def pmi(T,fillers):
        for i in range(2):
            for s in range(4):
                a(mfma16(GA+8*T+4*i,WF+16*i+4*s,XF+16*T+4*s,None if s==0 else GA+8*T+4*i))
                for _ in range(2):
                    if fillers: a(fillers.pop(0))
    a("s_waitcnt lgkmcnt(8)"); xfrags([1]); pm(0,0)
    a("s_waitcnt lgkmcnt(4)"); xfrags([2,3]); pm(0,1)
    a("s_waitcnt lgkmcnt(8)"); pm(1,0); pm(1,1)
    a("s_waitcnt lgkmcnt(0)"); pmi(2,pcv(0)); pmi(3,pcv(1))
    a(f"s_lshl_b32 s{t2}, s{sK}, 8\ns_nop 2")
    for T in (2,3):
        for x in pcv(T): a(x)
    gsync('pg',"KG_y2",mGP,4,VZ,2)
    for T in range(4): a(f"ds_read_b128 {P4(PO+4*T)}, v117 offset:{T*4096}")
    a("s_waitcnt vmcnt(0)")
    for T in range(3):
        a(f"s_add_u32 s{t1}, s{t2}, {F_P+T*16*65536}\ns_waitcnt lgkmcnt({3-T})")
        a(f"buffer_store_dwordx4 {P4(PO+4*T)}, v118, {SR4(sR)}, s{t1} offen{SSC}")
    a(f"""
s_cmp_eq_u32 s{sWV}, 4
s_cbranch_scc0 KG_p
s_add_u32 s{t1}, s{t2}, {F_P+3*16*65536}
s_waitcnt lgkmcnt(0)
s_mov_b64 exec, 0xffff
buffer_store_dwordx4 {P4(PO+12)}, v118, {SR4(sR)}, s{t1} offen{SSC}
s_mov_b64 exec, -1
KG_p:
""")
    pt('pst')
    if GP_: a("s_setprio 0")
    srd(a,sA,14,256*256)
    tagh()
    w3rd()
    for T in range(4):
        c=GA+8*T
        if T==3: a("s_mov_b32 exec_lo, 0x10001\ns_mov_b32 exec_hi, 0x10001")
        if T==0: a(f"v_pk_maximum3_f16 v114, v{c}, v{c+1}, v{c+2}\nv_pk_minimum3_f16 v115, v{c}, v{c+1}, v{c+2}\nv_pk_maximum3_f16 v114, v114, v{c+3}, v{c+3}\nv_pk_minimum3_f16 v115, v115, v{c+3}, v{c+3}")
        else: a(f"v_pk_maximum3_f16 v114, v114, v{c}, v{c+1}\nv_pk_minimum3_f16 v115, v115, v{c}, v{c+1}\nv_pk_maximum3_f16 v114, v114, v{c+2}, v{c+3}\nv_pk_minimum3_f16 v115, v115, v{c+2}, v{c+3}")
    a("s_mov_b64 exec, -1")
    absmax_fin(a,114,115,2)
    a(f"""
v_cmp_lt_u32 vcc, 0x40e80000, v114
v_mov_b32 v{TD}, v{VY}
s_cmp_lg_u64 vcc, 0
s_cselect_b32 s{sFLAG}, 0x101, 1
""")
    def pflag(n):
        a(f"""
s_lshl_b32 s{t2}, s2, 4
s_add_u32 s{t2}, s{t2}, {F_FLG}
v_mov_b32 v1, s{sFLAG}
s_waitcnt vmcnt({n})
s_mov_b64 exec, 1
ds_add_rtn_u32 v1, v{VZ}, v1 offset:{mPD}
s_waitcnt lgkmcnt(0)
v_readfirstlane_b32 s{t1}, v1
s_add_u32 s{t1}, s{t1}, s{sFLAG}
s_and_b32 s{t0}, s{t1}, 255
s_cmp_eq_u32 s{t0}, 4
s_cbranch_scc0 KG_f
KG_e:
ds_read_b32 v1, v{VZ} offset:{mE}
s_waitcnt lgkmcnt(0)
v_readfirstlane_b32 s{t0}, v1
s_and_b32 s{t3}, s{t0}, 255
s_cmp_lt_u32 s{t3}, 4
s_cbranch_scc1 KG_e
s_or_b32 s{t1}, s{t1}, s{t0}
s_cmp_gt_u32 s{t1}, 255
s_cselect_b32 s{t0}, 2, 0
s_xor_b32 s{t0}, s{sNON}, s{t0}
v_mov_b32 v1, s{t0}
buffer_store_dword v1, v{VZ}, {SR4(sR)}, s{t2} offen{SSC}
s_waitcnt vmcnt(1)
s_branch KG_f2
KG_f:
s_waitcnt vmcnt(0)
KG_f2:
s_mov_b64 exec, -1
""")
        pt('pfl')
    def mid():
        sdma(sA,0); pflag(8); arrive(mPI,1)
    qfull("KGq",mid)
    tru(WU1,32768)
    a("s_waitcnt lgkmcnt(0)")
    ugemm()
    if FLP==1: gwait("KG_b2",mH,16,VZ,1)
    a(f"""
s_mov_b32 s{sLO}, {F_FLG}
buffer_load_dword v116, v110, {SR4(sR)}, s{sLO} offen{SC}
""")
    if PFP==2: pfp()
    a(f"""
s_mov_b32 s{sWU}, 1
s_or_b32 s{t1}, s{sNON}, 2
s_waitcnt vmcnt({1 if PFP==2 else 0})
KS_m:
v_or_b32 v2, 2, v116
v_cmp_ne_u32 vcc, s{t1}, v2
s_cbranch_vccz KS_n
s_sub_u32 s{sBUD}, s{sBUD}, 1
s_cbranch_scc1 KS_n
s_sleep {FSL}
s_mov_b64 exec, vcc
buffer_load_dword v116, v110, {SR4(sR)}, s{sLO} offen{SC}
s_mov_b64 exec, -1
s_waitcnt vmcnt(0)
s_branch KS_m
KS_n:
v_cmp_ne_u32 vcc, s{sNON}, v116
s_cbranch_vccz KS_o
ds_write_b32 v{VZ}, v{FA} offset:{mSLOW}
KS_o:
""")
    pt('flg')
    if PRIO: a("s_setprio 3")
    bar('b3')
    a(f"ds_read_b32 v1, v{VZ} offset:{mNT}\ns_waitcnt lgkmcnt(0)\nv_readfirstlane_b32 s{sNT}, v1")
    ranges()
    a("KF_J:")
    def rd_ga(off): a(f"ds_read_u16 v{GA0}, v{SB} offset:{GL+off}\nds_read_u16 v{GA0+1}, v{SB} offset:{GL+off+8}")
    def rd_gg(off): a(f"ds_read_u16 v{YA}, v{RB} offset:{GL+off}")
    ya=f"v_lshl_add_u32 v{EA}, v{YA}, 1, v{EC}\nv_add_u32 v{YA}, v{YA}, v{M4}"
    ry=f"ds_read_u16 v{VY}, v{YA} offset:{WB+2}"
    def rd_y(): a(ya); a(ry)
    def idx1(i): return f"ds_read_u16 v{IDX+2*i}, v{GA0+(i>>2)} offset:{WB+4*(i&3)}"
    def rd_idx():
        for i in range(8): a(idx1(i))
    def dmai(i): return f"buffer_load_dwordx4 {P2(IDX+2*i)}, {SR4(sP)}, 0 idxen offen offset:{1024*(i&3)}{GSC} lds"
    def dma():
        for i in range(8):
            if i==0: a(f"s_mov_b32 m0, s{sBUF}\ns_nop 0")
            if i==4: a(f"s_add_u32 m0, s{sBUF}, 4096\ns_nop 0")
            a(dmai(i))
    def dma_idx():
        for i in range(4): a(dmai(i))
        a(f"s_add_u32 m0, s{sBUF}, 4096"); a(idx1(0))
        for i in range(4,8): a(dmai(i))
        a(f"s_mov_b32 m0, s{sBUF}")
        for i in range(1,8): a(idx1(i))
    rd_b=f"ds_read_b128 {P4(B3+2)}, v{QAD}\nds_read_b128 {P4(B3+10)}, v{QAD} offset:512"
    rd_a3=f"ds_read_b64 {P2(A6)}, v{EA}\nds_read_b64 {P2(A6+2)}, v{VY} offset:{OH}\nds_read_b64 {P2(A6+4)}, v{EA}"
    def rd_a(t): return f"ds_read_b128 {P4(A+4*t)}, v{AR+t}"
    rd_s=f"ds_read_b64 {P2(SS)}, v{SA2}\nds_read_b64 {P2(SS+2)}, v{SA2+1}"
    def AQ(q): return A6+2*(q&1)
    win=f"v_add3_u32 v{VY}, v{VY}, v{OH2}, s{sW8}\nv_lshl_add_u32 v{QAD}, s{sQ}, 6, v{QC}"
    rd_ga(0); rd_gg(0)
    a(f"""
ds_read_u16 v{WT}, v1 offset:{GL}
ds_read_b32 v{GP}, v{VZ} offset:{mSLOW}
s_waitcnt lgkmcnt(3)
""")
    rd_idx()
    a("s_waitcnt lgkmcnt(0)")
    dma()
    pt('d0')
    a(f"v_readlane_b32 s{sNF}, v{WT}, s{sCNT}\nv_readfirstlane_b32 s{t3}, v{GP}")
    rd_y(); rd_ga(16)
    uscale()
    a(f"""
v_lshlrev_b32 v{OH2}, 1, v{OHC}
v_and_b32 v1, 31, v{VL}
v_lshlrev_b32 v1, 4, v1
v_lshlrev_b32 v2, 5, v{VL}
v_and_b32 v2, 0x400, v2
v_add3_u32 v{QC}, v1, v2, s{sQ2}
s_waitcnt lgkmcnt(0)
""")
    rd_idx()
    a(f"""
s_cmp_lg_u32 s{t3}, 0
s_cbranch_scc1 KF_SLOW
s_lshr_b32 s{sNF}, s{sNF}, 8
v_subrev_u32 v2, s{sNF}, v{VL}
v_and_b32 v2, 15, v2
v_add_u32 v{DR}, s{sNF}, v2
v_lshlrev_b32 v2, 2, v{DR}
ds_read_b32 v{GP}, v2 offset:{BT}
s_and_b32 s{sQ}, s{sNF}, -2
s_lshl_b32 s{sQ}, s{sQ}, 3
s_sub_u32 s{sW8}, 0, s{sQ}
{win}
{rd_b}
{rd_a3}
""")
    rd_gg(16)
    a(f"""
v_lshrrev_b32 v{WT}, 9, v{WT}
v_lshlrev_b32 v{WT}, 4, v{WT}           ; 8*(w&~1)
v_mov_b32 v{SS}, 0
v_mov_b32 v{SS+1}, 0
v_mov_b32 v{SS+2}, 0
v_mov_b32 v{SS+3}, 0
v_add_u32 v{SA}, {STB}, v{SA}
v_mov_b32 v1, {OH+64}
v_cndmask_b32 v{SA2}, v1, v{SA}, {S2(sMA)}
v_cndmask_b32 v{SA2+1}, v{SA}, v1, {S2(sMA)}
v_cndmask_b32 v{SI2}, 0, 16, {S2(sMA)}
v_cndmask_b32 v{SI2+1}, 16, 0, {S2(sMA)}
s_add_u32 s{t1}, s{sT0}, s{sCNT}
s_lshl_b32 s{t1}, s{t1}, 7
s_add_u32 s{t2}, s{sWV}, 48
v_mov_b32 v1, s{t2}
{mfma32(ACC+16,SS,SS,None)}
s_waitcnt lgkmcnt(0)
""")
    rd_y(); rd_ga(32)
    a(f"""
v_cmp_gt_u32 vcc, s{t0}, v{GP}
v_cmp_gt_u32 {S2(t2)}, s{t1}, v{GP}
v_cmp_gt_u32 {S2(t0)}, s{sNN}, v{DR}
v_cndmask_b32 v{DR}, v{DR}, v1, vcc
s_cmp_lg_u64 vcc, 0
s_cselect_b32 s{sHEAD}, 1, 0
s_and_b64 vcc, {S2(t2)}, {S2(t0)}
v_lshrrev_b32 v1, 2, v{VL}
v_cndmask_b32 v{DR}, 63, v{DR}, vcc
v_and_b32 v1, 4, v1
v_xor_b32 v1, v1, v{DR}
v_and_b32 v1, 15, v1
v_lshlrev_b32 v1, 4, v1
v_lshl_add_u32 v{DR}, v{DR}, 8, v1
v_sub_u32 v{DR}, v{DR}, v{OHC}
s_sub_u32 s{sCNT}, s{sCNT}, 1
s_mov_b32 m0, s{sBUF}
""")
    epi_consts()
    pt('pre')
    a("s_waitcnt vmcnt(0)")
    pt('g0')
    for t in range(8): a(rd_a(t))
    a("s_waitcnt lgkmcnt(6)")
    a(mfma32(Z[0],AQ(0),B3,None)); a(mfma32(Z[0],A,ID0,Z[0])); a(mfma32(Z[0],A+4,ID1,Z[0]))
    a("s_nop 8\ns_waitcnt lgkmcnt(0)")
    pt('pro')
    def finals(qprev):
        for u in range(2): a(f"v_pk_mul_f32 {P2(NN+2*u)}, {P2(NN+2*u)}, {P2(DD+2*u)}")
        for u in range(2): a(f"v_cvt_pk_bf16_f32 v{GP+2*(qprev&1)+u}, v{NN+2*u}, v{NN+2*u+1}")
    def ex(zc,r): return f"v_exp_f32 v{EE+r}, v{zc+r}"
    def body(first):
        for q in range(4):
            zc=Z[q&1]; zn=Z[(q+1)&1]; qn=(q+1)&3
            ms=[(AQ(qn),B3+4*qn),(A+8*qn,ID0),(A+8*qn+4,ID1)]
            pend=[0,1,2,3,8,9,10,11,4,5,12,13,6,7,14,15]
            f0=first and q==0
            if q==0: a(f"v_readlane_b32 s{sQ}, v{WT}, s{sCNT}")
            if q==3: a(f"s_waitcnt lgkmcnt(0)")
            a(mfma32(zn,ms[0][0],ms[0][1],None))
            if not f0:
                for j in range(4): a(f"v_rcp_f32 v{DD+j}, v{DD+j}")
            else:
                for r in range(4): a(ex(zc,pend.pop(0)))
            a(mfma32(zn,ms[1][0],ms[1][1],zn))
            for r in range(4): a(ex(zc,pend.pop(0)))
            a(mfma32(zn,ms[2][0],ms[2][1],zn))
            def bx():
                a(f"s_sub_u32 s{sW8}, 0, s{sQ}\ns_waitcnt vmcnt(0) lgkmcnt(0)\n{win}")
                rd_gg(32); rd_ga(48)
                a(rd_b); a(rd_a3); a(rd_s)
                for t in range(8): a(rd_a(t))
            if q==2 and XP==0: a(ex(zc,pend.pop(0))); bx()
            for r in range(4 if not (q==2 and XP==0) else 3): a(ex(zc,pend.pop(0)))
            if q&1:
                p=1 if q==1 else 0
                if not (first and q==1):
                    a(mfma32(ACC+16*p,GP,SS,None if first else ACC+16*p))
                    for r in range(4): a(ex(zc,pend.pop(0)))
            if q==2 and XP==1: bx()
            if f0: dma_idx()
            if q==3:
                a(ya)
                if first: dma_idx(); a(ry)
                else:
                    a(f"s_cmp_gt_u32 s{sCNT}, 1\ns_cbranch_scc0 KF_lt")
                    dma_idx(); a(ry)
                    a("KF_lb:")
            if not f0: finals((q-1)&3)
            seq=[]
            for u in range(2): seq.append(f"v_pk_add_f32 {P2(DD+2*u)}, {P2(EE+8*u)}, 1.0 op_sel_hi:[1,0]")
            for m in range(1,4):
                for u in range(2):
                    src=(zc+8*u) if m==1 else NN+2*u
                    seq.append(f"v_pk_fma_f32 {P2(NN+2*u)}, {P2(src)}, {P2(EE+8*u+2*m)}, {P2(src)}")
                for u in range(2): seq.append(f"v_pk_fma_f32 {P2(NN+2*u)}, {P2(zc+8*u+2*m)}, {P2(DD+2*u)}, {P2(NN+2*u)}")
                for u in range(2): seq.append(f"v_pk_fma_f32 {P2(DD+2*u)}, {P2(DD+2*u)}, {P2(EE+8*u+2*m)}, {P2(DD+2*u)}")
            slots=[0,1,2,3,5,7,9,11] if len(pend)==8 else [1,4,7,10]
            for k,x in enumerate(seq):
                a(x)
                if k in slots: a(ex(zc,pend.pop(0)))
            if q==2: a(f"v_pk_add_f32 {P2(RB)}, {P2(RB)}, {S2(sINC)}\nv_pk_add_f32 {P2(SA2)}, {P2(SA2)}, {P2(SI2)}")
    if PROF and 'dyn' in PTS: stamp(a,8); stamp(a,9,True)
    if PROF and 'clk' in PTS: stamp(a,6,True)
    n0=len(a.l)
    body(True)
    a("s_branch KF_LE\n.p2align 6\nKF_LOOP:")
    body(False)
    def keep(l):
        t=l.strip()
        if X&1 and t.startswith('buffer_load'): return False
        if X&2 and t.startswith('ds_read_b128 v[') and int(t.split('[')[1].split(':')[0])>=28: return False
        if X&8 and t.startswith('v_mfma'): return False
        if X&16 and t.startswith('v_pk_fma'): return False
        if X&32 and t.startswith('v_exp'): return False
        return True
    a.l[n0:]=[l for l in a.l[n0:] if keep(l)]
    import re
    if X&(128|256|512):
        L=[]
        for l in a.l[n0:]:
            m=re.match(r"\s*v_mfma_f32_32x32x16_bf16 v\[(\d+):\d+\], v\[(\d+):\d+\], v\[(\d+):\d+\], (.*)",l)
            if m and int(m.group(1))<ACC:
                d,x,y=int(m.group(1)),int(m.group(2)),int(m.group(3))
                if X&128:
                    if y==ID0: L+=["    "+mfma16(d+4,x,ID0,None),"    "+mfma16(d+8,x,ID1,None)]
                    elif y==ID1: L.append("    "+mfma16(d+12,x,ID0,None))
                    else: L.append("    "+mfma16(d,x,y,None))
                if X&256:
                    if y!=ID1: L.append(l)
                if X&512:
                    if y==ID0: L.append(f"    v_mfma_f32_32x32x64_f8f6f4 v[{d}:{d+15}], v[{x}:{x+7}], v[{ID0}:{ID0+7}], v[{d}:{d+15}]")
                    elif y!=ID1: L.append(l)
            else: L.append(l)
        a.l[n0:]=L
    a("KF_LE:")
    if PRIO: a(f"s_bitcmp1_b32 42, s{sCNT}\ns_cbranch_scc1 KF_pr\nKF_pb:")
    a(f"""
s_sub_u32 s{sCNT}, s{sCNT}, 1
s_cbranch_scc0 KF_LOOP
""")
    def loop_tails():
        a(f"KF_lt:\ns_cmp_eq_u32 s{sCNT}, s{sWU}\ns_cbranch_scc0 KF_lb")
        sdma(sA,32768,0,TD)
        a(f"""
s_branch KF_lb
KF_pr:
""")
        if PROF and 'dyn' in PTS:
            a("s_mov_b32 s90, s92\ns_mov_b32 s91, s93\ns_mov_b32 s92, s94\ns_mov_b32 s93, s95\ns_mov_b32 s94, s96\ns_mov_b32 s95, s97")
            stamp(a,8); stamp(a,9,True)
        a(f"""
s_setprio 2
s_cmp_eq_u32 s{sCNT}, 5
s_cbranch_scc1 KF_pb
s_setprio 1
s_cmp_eq_u32 s{sCNT}, 3
s_cbranch_scc1 KF_pb
s_setprio 0
s_branch KF_pb
""")
    for j in range(4): a(f"v_rcp_f32 v{DD+j}, v{DD+j}")
    a("s_nop 0")
    finals(3)
    a("s_nop 1")
    a(mfma32(ACC+16,GP,SS,ACC+16))
    pt('loop')
    if PROF and 'clk' in PTS: stamp(a,7,True)
    for p in range(2):
        if p==1: a("s_nop 0")
        for j in range(4):
            c=ACC+16*p+4*j
            a(f"v_cvt_pk_bf16_f32 v{c}, v{c}, v{c+1}\nv_cvt_pk_bf16_f32 v{c+1}, v{c+2}, v{c+3}")
            if p or j: a(f"v_xor_b32 v1, {(8*p+j)*16}, v{DR}")
            a(f"ds_write_b64 v{1 if (p or j) else DR}, {P2(c)} offset:{AGB}")
    a(f"""
s_and_b32 s{t1}, s{sNF}, 15
s_lshl_b32 s{t1}, s{t1}, 4
s_lshl_b32 s{t0}, s{sNF}, 8
s_or_b32 s{t0}, s{t0}, s{t1}
s_mul_i32 s{t1}, s{sWV}, 272
s_add_u32 s{t1}, s{t1}, {48*256}
v_lshlrev_b32 v3, 2, v{VL}
v_xor_b32 v1, s{t0}, v3
v_xor_b32 v2, s{t1}, v3
s_cmp_eq_u32 s{sHEAD}, 0
s_waitcnt vmcnt(0) lgkmcnt(0)
s_barrier
s_cbranch_scc1 KF_FIN
ds_read_b32 v4, v1 offset:{AGB}
ds_read_b32 v5, v2 offset:{AGB}
s_waitcnt lgkmcnt(0)
v_lshlrev_b32 v6, 16, v4
v_and_b32 v7, 0xffff0000, v4
v_lshlrev_b32 v8, 16, v5
v_and_b32 v9, 0xffff0000, v5
v_pk_add_f32 v[6:7], v[6:7], v[8:9]
v_cvt_pk_bf16_f32 v6, v6, v7
ds_write_b32 v1, v6 offset:{AGB}
KF_FIN:
""")
    OST=GBUF
    tru(WU2,32768)
    srd(a,sX,16,N*256)
    a(f"""
v_and_b32 v1, 15, v{VL}
s_lshl_b32 s{t0}, s{sOT}, 1
v_lshrrev_b32 v2, 5, v{VL}
v_or_b32 v2, s{t0}, v2
v_xor_b32 v2, v2, v1
v_lshlrev_b32 v2, 4, v2
v_lshl_add_u32 v2, v1, 8, v2
v_lshrrev_b32 v3, 1, v{VL}
v_and_or_b32 v2, v3, 8, v2
v_add_u32 v{AR}, {OST}, v2
v_lshlrev_b32 v{AR+1}, 1, v1
""")
    bar('mrg',"s_waitcnt vmcnt(0) lgkmcnt(0)")
    for T in range(4):
        xfrags([T])
        if T==2:
            a("s_waitcnt lgkmcnt(8)")
            for s in range(4): a(mfma16(UA,WU2+4*s,XF+4*s,UA))
    def silu(T):
        c=UA+4*T; e=EE+4*T
        L=[f"v_exp_f32 v{e+i}, v{c+i}" for i in range(4)]
        L+=[f"v_fma_f32 v{e+i}, v{e+i}, s{sL2E}, s{sL2E}" for i in range(4)]
        L+=[f"v_rcp_f32 v{e+i}, v{e+i}" for i in range(4)]
        L+=[f"v_mul_f32 v{e+i}, v{e+i}, v{c+i}" for i in range(4)]
        L+=[f"v_cvt_pk_bf16_f32 v{e}, v{e}, v{e+1}",f"v_cvt_pk_bf16_f32 v{e+1}, v{e+2}, v{e+3}",f"ds_write_b64 v{AR}, {P2(e)} offset:{T*4096}"]
        return L
    for T in range(1,4):
        a(f"s_waitcnt lgkmcnt({4*(3-T)})")
        for s in range(4):
            x,y=(WU2+4*s,XF+16*T+4*s) if T<3 else (XF+16*T+4*s,WU2+4*s)
            a(mfma16(UA+4*T,x,y,UA+4*T))
    for T in range(3):
        for x in silu(T): a(x)
    c=UA+12; e=EE+12
    a(f"""
v_exp_f32 v{e}, v{c}
s_add_u32 s{t0}, s{sK}, {48*256}
v_fma_f32 v{e}, v{e}, s{sL2E}, s{sL2E}
v_rcp_f32 v{e}, v{e}
s_lshl_b32 s{t0}, s{t0}, 8
v_mul_f32 v{e}, v{e}, v{c}
s_lshl_b32 s{t1}, s{sOT}, 5
s_add_u32 s{t0}, s{t0}, s{t1}
v_cvt_pk_bf16_f32 v{e}, v{e}, v{e}
s_mov_b32 exec_lo, 0xffff
s_mov_b32 exec_hi, 0
buffer_store_short v{e}, v{AR+1}, {SR4(sX)}, s{t0} offen{OSC}
s_mov_b64 exec, -1
v_lshlrev_b32 v1, 4, v0
v_add_u32 v1, {OST}, v1
v_lshrrev_b32 v2, 4, v0
v_xor_b32 v3, v2, v0
v_and_b32 v3, 15, v3
v_lshlrev_b32 v3, 4, v3
v_lshl_add_u32 v3, v2, 16, v3
s_lshl_b32 s{t0}, s{sK}, 8
s_add_u32 s{t1}, s{t0}, {32*65536}
s_waitcnt lgkmcnt(0)
s_barrier
ds_read_b128 {P4(A)}, v1
s_cmp_lt_u32 s{sWV}, 4
s_cbranch_scc0 KF_e1
ds_read_b128 {P4(A+4)}, v1 offset:8192
s_waitcnt lgkmcnt(0)
buffer_store_dwordx4 {P4(A+4)}, v3, {SR4(sX)}, s{t1} offen{OSC}
KF_e1:
s_waitcnt lgkmcnt(0)
buffer_store_dwordx4 {P4(A)}, v3, {SR4(sX)}, s{t0} offen{OSC}
""")
    a(f"""
s_or_b32 s{t0}, s2, s{sWV}
s_cbranch_scc1 KF_e2
v_mov_b32 v1, s{sNON}
v_mov_b32 v2, 0
s_mov_b64 exec, 1
buffer_store_dword v1, v2, {SR4(sR)}, 0 offen
KF_e2:
""")
    if PROF: a("s_waitcnt vmcnt(0)")
    stamp(a,10); stamp(a,11,True)
    stamp_out(a,1,sWV)
    a("KF_END:\ns_endpgm")
    loop_tails()
    hist_retry(8,"KT_h",True)
    a("KF_CEND:")
    SV=ACC; AGs=SV+8; RS_=SV+16
    a(f"""
KF_SLOW:
s_setprio 0
s_cmp_ge_u32 s{sWV}, 4
s_cselect_b32 s{sTOT}, 0, s{sTOT}
v_mov_b32 v1, s{sTOT}
ds_max_u32 v{VZ}, v1 offset:{mMX}
v_mov_b32 v{SS}, 0
v_mov_b32 v{SS+1}, 0
v_mov_b32 v{SS+2}, 0
v_mov_b32 v{SS+3}, 0
s_mov_b32 s{sLO}, 0
s_mov_b32 s{sLB}, s{sBUF}
s_sub_u32 s{t0}, s{sWV}, s{sT0}
s_lshl_b32 s{t0}, s{t0}, 4
v_add_u32 v{SV+4}, s{t0}, v{RB}
v_add_u32 v{SV+5}, s{t0}, v{SB}
s_lshl_b32 s{t0}, s{sWV}, 4
v_sub_u32 v{SV+6}, s{t0}, v{OHC}
v_and_b32 v{SV+7}, 31, v{VL}
v_lshlrev_b32 v{SV+7}, 2, v{SV+7}
v_lshlrev_b32 v1, 4, v0
""")
    for j in range(3): a(f"ds_write_b128 v1, {P4(SS)} offset:{AGG+j*8192}")
    a(f"""
v_lshlrev_b32 v1, 4, v{VL}
ds_write_b128 v1, {P4(SS)} offset:{AGG+3*8192}
s_waitcnt vmcnt(0) lgkmcnt(0)
s_barrier
ds_read_b32 v1, v{VZ} offset:{mMX}
s_waitcnt lgkmcnt(0)
v_readfirstlane_b32 s{sRND}, v1
KF_SR:
s_cmp_lt_u32 s{sLO}, s{sRND}
s_cbranch_scc0 KF_SE
s_barrier
v_lshlrev_b32 v1, 2, v{VL}
v_lshlrev_b32 v2, 8, v{VL}
ds_write_b32 v1, v2
s_waitcnt lgkmcnt(0)
s_barrier
s_cmp_ge_u32 s{sWV}, 4
s_cbranch_scc1 KF_S1
s_movk_i32 s{t3}, 256
""")
    expand("KF_x")
    a(f"s_sub_u32 s{t1}, s{sTOT}, s{sLO}")
    reclist(4)
    recload(4,"KF_rl")
    for i in range(4): a(f"s_mov_b64 {S2(sM+8+2*i)}, {S2(sM+2*i)}")
    hist(4,"KF_h",0,False)
    a("s_waitcnt lgkmcnt(0)")
    for i in range(4):
        a(f"""
v_mov_b32 v{RS_+4*i}, v{RC+4*i}
v_mov_b32 v{RS_+4*i+1}, v{RC+4*i+1}
v_mov_b32 v{RS_+4*i+2}, v{RC+4*i+2}
v_lshlrev_b32 v1, 6, v{RC+4*i+3}
v_sub_u32 v1, v{RK+i}, v1
v_cndmask_b32 v{RS_+4*i+3}, -1, v1, {S2(sM+8+2*i)}
""")
    a(f"""
KF_S1:
s_mov_b32 s{sHEAD}, 0                    ; 256*k
KF_SK:
s_waitcnt lgkmcnt(0)
s_barrier
s_cmp_ge_u32 s{sWV}, 4
s_cbranch_scc1 KF_S2
s_mov_b32 s{t1}, {EB}
""")
    for i in range(4):
        a(f"""
v_subrev_u32 v1, s{sHEAD}, v{RS_+4*i+3}
v_lshrrev_b32 v2, 19, v{RS_+4*i+2}
v_lshl_add_u32 v2, v2, 8, v1
v_lshl_add_u32 v3, v2, 1, s{t1}
v_cmpx_gt_u32 vcc, 0x100, v1
ds_write_b32 v2, v{RS_+4*i+2} offset:{WB}
ds_write_b64 v3, {P2(RS_+4*i)}
s_mov_b64 exec, -1
""")
    a("KF_S2:")
    scan(True)
    a(f"s_cmp_lg_u64 {S2(t2)}, 0\ns_cselect_b32 s{sFLAG}, 1, 0")
    fill("KFs",True,8)
    a(f"""
s_add_u32 s{sNT}, s{t0}, 127
s_lshr_b32 s{sNT}, s{sNT}, 7
s_waitcnt lgkmcnt(0)
s_barrier
v_mov_b32 v{RB}, v{SV+4}
v_mov_b32 v{SB}, v{SV+5}
v_mov_b32 v{SV+12}, v{SV+6}
s_mov_b32 s{sI}, s{sWV}
KF_SL:
s_cmp_lt_u32 s{sI}, s{sNT}
s_cbranch_scc0 KF_SN
""")
    rd_ga(0); rd_gg(0)
    for j in range(4): a(f"ds_read_u16 v{AGs+j}, v{SV+12} offset:{GL+2*j}")
    a("s_waitcnt lgkmcnt(0)")
    rd_y(); rd_idx()
    a("s_waitcnt lgkmcnt(0)")
    dma()
    for j in range(4): a(f"v_lshrrev_b32 v{AGs+j}, 8, v{AGs+j}")
    a(f"""
v_readfirstlane_b32 s{sQ}, v{AGs}
s_nop 3
s_and_b32 s{sQ}, s{sQ}, -2
s_lshl_b32 s{sQ}, s{sQ}, 3
s_sub_u32 s{sW8}, 0, s{sQ}
v_lshlrev_b32 v{OH2}, 1, v{OHC}
{win}
{rd_b}
{rd_a3}
""")
    for j in range(4): a(f"v_lshl_add_u32 v{AGs+j}, v{AGs+j}, 9, v{SV+7}")
    a("s_waitcnt vmcnt(0) lgkmcnt(0)")
    for t in range(8): a(rd_a(t))
    a("s_waitcnt lgkmcnt(0)")
    for q in range(4):
        z=Z[0]
        a(mfma32(z,AQ(q),B3+4*q,None)); a(mfma32(z,A+8*q,ID0,z)); a(mfma32(z,A+8*q+4,ID1,z))
        a("s_nop 15")
        for r in range(16): a(f"v_exp_f32 v{EE+r}, v{z+r}")
        for r in range(16): a(f"v_add_f32 v{EE+r}, 1.0, v{EE+r}")
        for r in range(16): a(f"v_rcp_f32 v{EE+r}, v{EE+r}")
        for m in range(4):
            for u in range(2):
                for par in range(2):
                    r=8*u+2*m+par; g=GP+2*u+par
                    a(f"v_mul_f32 v{g}, v{z+r}, v{EE+r}" if m==0 else f"v_fmac_f32 v{g}, v{z+r}, v{EE+r}")
        for j in range(4): a(f"ds_add_f32 v{AGs+j}, v{GP+j} offset:{AGG+q*128}")
        a("s_waitcnt lgkmcnt(0)")
    a(f"""
v_add_u32 v{SB}, 128, v{SB}
v_add_u32 v{RB}, 128, v{RB}
v_add_u32 v{SV+12}, 128, v{SV+12}
s_add_u32 s{sI}, s{sI}, 8
s_branch KF_SL
KF_SN:
s_add_u32 s{sHEAD}, s{sHEAD}, 256
s_cmp_lg_u32 s{sFLAG}, 0
s_cbranch_scc1 KF_SK
s_add_u32 s{sLO}, s{sLO}, 256
s_branch KF_SR
KF_SE:
s_cmp_ge_u32 s{sWV}, 4
s_cbranch_scc0 KF_SE2
""")
    sdma(sA,32768,0,TD)
    a(f"""
KF_SE2:
v_lshlrev_b32 v1, 4, v0
v_lshrrev_b32 v2, 5, v0
s_waitcnt vmcnt(0) lgkmcnt(0)
s_barrier
""")
    for j in range(4): a(f"ds_read_b128 {P4(A+4*j)}, v1 offset:{AGG+j*8192}")
    a(f"""
v_bfe_u32 v3, v0, 1, 4
v_xor_b32 v3, v3, v2
v_lshlrev_b32 v3, 4, v3
v_lshl_add_u32 v3, v2, 8, v3
v_and_b32 v1, 1, v0
v_lshl_add_u32 v3, v1, 3, v3
s_waitcnt lgkmcnt(0)
s_barrier
""")
    for j in range(4):
        a(f"v_cvt_pk_bf16_f32 v{A+4*j}, v{A+4*j}, v{A+4*j+1}\nv_cvt_pk_bf16_f32 v{A+4*j+1}, v{A+4*j+2}, v{A+4*j+3}")
        a(f"ds_write_b64 v3, {P2(A+4*j)} offset:{AGB+j*4096}")
    a("s_branch KF_FIN")
    hist_retry(4,"KF_h",False)
    return a.text()

if __name__=='__main__':
    import sys
    nm='standalone__mpnn_edge_mlp__graph_kernel'
    hdr=open('standalone__mpnn_edge_mlp__graph.s.ref').read().split('; Override')[0]
    out=hdr+(f"; @launch kernel={nm} grid=(256,1,1) block=(512,1,1) lds={KF_LDS}\n" if os.environ.get('LISTF') else f"; @launch grid=(256,1,1) block=(512,1,1) lds={KF_LDS}\n")
    out+='.amdgcn_target "amdgcn-amd-amdhsa--gfx950"\n.text\n'
    out+=f".globl {nm}\n.p2align 8\n.type {nm},@function\n"+gen_kf(nm)
    out+='.section .rodata,"a"\n.p2align 6\n'+kd(nm,256)
    open(sys.argv[1],'w').write(out)
```

```python
from common import *
X=int(os.environ.get('X','0'))
PRIO=int(os.environ.get('PRIO','1'))
DSP=[int(c,36) for c in os.environ.get('DSP','00000000')]
def EV(n,d): return int(os.environ.get(n,d))
TPOS=EV('TPOS',6); PFP=EV('PFP',0); XORD=EV('XORD',1); WUI=EV('WUI',2); FLP=EV('FLP',1); FSL=EV('FSL',8); TE=EV('TE',1); W1N=EV('W1N',5); GP_=EV('GP',1); TLB=EV('TLB',0); DBGP=EV('DBGP',0); ALN=EV('ALN',0); PFH=EV('PFH',0); XP=EV('XP',0); PFI=EV('PFI',0); SWW=EV('SWW',1)
PTS=os.environ.get('PTS','b1,bS,tp,pfl,rl,b2,b3,pro').split(',')
SC=os.environ.get('LSC',' sc1')
SSC=os.environ.get('SSC',' sc1')
OSC=os.environ.get('OSC',' sc1')
GSC=os.environ.get('GSC',' sc1')
NPROD=250; EP=1600; RST=EP*16+128
F_P=0x1000; F_REC=0x400000; F_TBL=0xB00000; F_FLG=0xB90000; F_SIZE=0xBA0000
CNT=0; MISC=256; OH=400; GL=928; BT=1872; STB=2144; RS=944
mSLOW=MISC; mS=MISC+4; mGX=MISC+8; mGP=MISC+12; mC3=MISC+16; mPD=MISC+20; mSL=MISC+24; mMX=MISC+28; mPI=MISC+32; mH=MISC+36; mNT=MISC+40; mW=MISC+44; mE=MISC+48
AGB=17408
W3L=AGB+56*256
Q2=AGB+16384; QS=52*128
S1=Q2; ERAW=Q2+12800
WB=Q2+4*QS; NULLG=49*256; EB=WB+NULLG+16
HIST=WB; PSC=WB+2048
GBUF=98304
KF_LDS=GBUF+65536
assert EB+2*NULLG+32<=GBUF and STB+16*RS<=AGB
AGG=STB
ONE2=0x3F803F80
NULLW2=0xFFFF|(512<<16)
CAPT=58
ID0=4; ID1=8; B3=12; A=28; Z=[60,76]; A3=92; EE=96; NN=112; DD=116; GP=120; SS=124
IDX=128; AR=144; RB=152; SB=153; SA=154; VY=155; OHC=156; VL=157; WT=158; DR=159
ACC=160; WU2=192; UA=208; WF=160; WU1=176; QA=224; RC=96; XF=28; GA=192
A6=244; QAD=250; QC=251; SA2=224; SI2=226; OH2=228; GA0=232; YA=234; EA=235; M4=236; EC=237; VZ=238; PO=92; TRU=240; TD=241; TC=242; TO=243; RK=244; FA=252
sP=24; sX=28; sA=32; sR=36; sM=40
sWV=56; sK=57; sNN=58; sI=59; sNT=60; sBUF=61; sQ=62; sW8=63; sCNT=64; sT0=65
sL2E=66; sINC=68; sRND=70; sTOT=71; sNON=72; sBUD=73; sW4=74; sLB=75
sWU=3; sW4K=22; sOT=23; sFLAG=76; sLO=77; sMA=78; sQ2=80; sHEAD=82; sNF=83
t0,t1,t2,t3=84,85,86,87
BUDGET=20000

def mfma32(d,x,y,c): return f"v_mfma_f32_32x32x16_bf16 v[{d}:{d+15}], v[{x}:{x+3}], v[{y}:{y+3}], "+("0" if c is None else f"v[{c}:{c+15}]")
def mfma16(d,x,y,c): return f"v_mfma_f32_16x16x32_bf16 v[{d}:{d+3}], v[{x}:{x+3}], v[{y}:{y+3}], "+("0" if c is None else f"v[{c}:{c+3}]")
def P2(r): return f"v[{r}:{r+1}]"
def P4(r): return f"v[{r}:{r+3}]"
def S2(r): return f"s[{r}:{r+1}]"
def SR4(r): return f"s[{r}:{r+3}]"

def gen_kf(name):
    a=Asm()
    def pt(n):
        if PROF and n in PTS: stamp(a,2+PTS.index(n))
    def ret(n):
        if PROF and n in PTS: a(f"s_sub_u32 s{90+PTS.index(n)}, {BUDGET}, s{sBUD}\ns_mul_i32 s{90+PTS.index(n)}, s{90+PTS.index(n)}, 100")
    def bar(n,w="s_waitcnt lgkmcnt(0)"):
        a(w+"\ns_barrier"); pt(n)
    def gsync(n,lab,off,target,va,vt,pre=None):
        if pre: a(pre)
        a(f"""
v_mov_b32 v{vt}, 1
s_mov_b64 exec, 1
ds_add_u32 v{va}, v{vt} offset:{off}
s_mov_b64 exec, -1
{lab}:
ds_read_b32 v{vt}, v{va} offset:{off}
s_waitcnt lgkmcnt(0)
v_readfirstlane_b32 s{t1}, v{vt}
s_and_b32 s{t1}, s{t1}, 255
s_cmp_lt_u32 s{t1}, {target}
s_cbranch_scc1 {lab}
""")
        pt(n)
    def gwait(lab,off,target,va,vt):
        a(f"""
{lab}:
ds_read_b32 v{vt}, v{va} offset:{off}
s_waitcnt lgkmcnt(0)
v_readfirstlane_b32 s{t1}, v{vt}
s_and_b32 s{t1}, s{t1}, 255
s_cmp_lt_u32 s{t1}, {target}
s_cbranch_scc1 {lab}
""")
    def consts():
        srd(a,sP,20,N,off=F_P-3072,stride=256)
        srd(a,sR,20,F_SIZE)
        a(f"""
s_cmp_lt_u32 s{sK}, {N-256*48}
s_cselect_b32 s{sNN}, 49, 48
s_mov_b32 s{sL2E}, {hex(LOG2E_NEG)}
s_mov_b32 s{sL2E+1}, {hex(LOG2E_NEG)}
s_mov_b32 s{sINC}, 16
s_mov_b32 s{sINC+1}, 16
s_mov_b32 s{sMA}, 0x0000ffff
s_mov_b32 s{sMA+1}, 0x0000ffff
s_mov_b32 s{sQ2}, {Q2}
s_mov_b32 s{sBUD}, {BUDGET}
v_lshrrev_b32 v2, 5, v{VL}              ; h
; g = 4 b2 + 2 b4 + b0 ; m = 2 b3 + b1 ; slot = 16 b2 + 4 m + (g&3)
v_lshrrev_b32 v1, 3, v{VL}
v_and_b32 v1, 2, v1
v_and_or_b32 v1, v{VL}, 5, v1           ; g
v_lshlrev_b32 v{RB}, 1, v1
v_lshlrev_b32 v3, 1, v{VL}
v_and_b32 v3, 4, v3
v_and_or_b32 v{M4}, v{VL}, 8, v3        ; 4m
v_lshlrev_b32 v{EC}, 1, v{M4}
v_add_u32 v{EC}, {EB}, v{EC}
v_lshlrev_b32 v3, 2, v1
v_and_or_b32 v3, v3, 16, v{M4}
v_and_or_b32 v3, v1, 3, v3              ; slot
v_lshl_add_u32 v3, v3, 8, s{sBUF}
v_and_b32 v{WT}, 15, v{VL}              ; n / c16
v_xor_b32 v1, v2, v{WT}
v_lshl_add_u32 v{AR}, v1, 4, v3
""")
        for t in range(1,8): a(f"v_xor_b32 v{AR+t}, {32*t}, v{AR}")
        a(f"""
v_mul_i32_i24 v{OHC}, -8, v2
v_mul_u32_u24 v{SA}, {RS}, v{WT}
v_and_b32 v1, 1, v{VL}
v_lshlrev_b32 v1, 4, v1
v_mov_b32 v3, 0x3f80
v_lshlrev_b32 v1, v1, v3
""")
        for s in range(2):
            for j in range(4):
                lo=3<<(16*s+2*j); hi=(3<<(16*s+8+2*j))
                a(f"s_mov_b32 vcc_lo, {hex(lo)}\ns_mov_b32 vcc_hi, {hex(hi)}\nv_cndmask_b32 v{ID0+4*s+j}, 0, v1, vcc")
        a(f"""
v_lshrrev_b32 v2, 4, v{VL}              ; a / g
v_lshlrev_b32 v{SB}, 1, v2
v_and_b32 v1, 1, v2
v_xor_b32 v1, v1, v{WT}
v_lshlrev_b32 v1, 4, v1
""")
        for i in range(8): a(f"v_xor_b32 v{IDX+2*i+1}, {(8*((i>>1)&1)+4*(i>>2)+2*(i&1))*16+3072-1024*(i&3)}, v1")
        a(f"v_xor_b32 v3, v2, v{WT}\nv_lshlrev_b32 v3, 4, v3\nv_lshl_add_u32 v3, v{WT}, 8, v3\nv_add_u32 v{FA}, {AGB}, v3")
        for s in range(1,4): a(f"v_xor_b32 v{FA+s}, {64*s}, v{FA}")
        a(f"""
s_lshl_b32 s{t0}, s{sW4}, 13
s_add_u32 s{t0}, s{t0}, {GBUF}
s_lshr_b32 s{t1}, s{sWV}, 2
s_lshl_b32 s{sOT}, s{sW4}, 1
s_or_b32 s{sOT}, s{sOT}, s{t1}
v_lshrrev_b32 v1, 2, v{WT}
v_lshl_add_u32 v1, v2, 3, v1
v_lshl_add_u32 v{DR}, v1, 6, s{t0}
v_xor_b32 v2, s{t1}, v2
v_and_b32 v2, 1, v2
v_and_b32 v3, 3, v{VL}
v_lshl_add_u32 v{TRU}, v2, 5, v{DR}
v_lshl_add_u32 v{TRU}, v3, 3, v{TRU}
""")
    def tagh():
        a(f"""
s_mul_i32 s{sNON}, s{sNON}, 0x9E3779B1
s_add_u32 s{sNON}, s{sNON}, 0x7F4A7C15
s_lshr_b32 s{t1}, s{sNON}, 15
s_xor_b32 s{sNON}, s{sNON}, s{t1}
s_and_b32 s{t1}, s{sNON}, 0x07000000
s_add_u32 s{sP}, s{sP}, s{t1}
s_addc_u32 s{sP+1}, s{sP+1}, 0
s_add_u32 s{sR}, s{sR}, s{t1}
s_addc_u32 s{sR+1}, s{sR+1}, 0
""")
    def vyc():
        a(f"""
v_lshrrev_b32 v1, 4, v{VL}
v_and_b32 v1, 2, v1
v_xor_b32 v1, v1, v{VL}
v_and_b32 v1, 3, v1
v_lshlrev_b32 v1, 4, v1
v_lshrrev_b32 v2, 2, v{VL}
v_lshl_or_b32 v{VY}, v2, 8, v1
""")
    def trfrag(dst,addr,off,ks,hs):
        for s in range(4):
            a(f"ds_read_b64_tr_b16 {P2(dst+4*s)}, v{addr} offset:{off+s*ks}\nds_read_b64_tr_b16 {P2(dst+4*s+2)}, v{addr} offset:{off+s*ks+hs}")
    def tru(dst,off): trfrag(dst,TRU,off,2048,256)
    def sdma(sr,moff,loff=0,v=VY,js=range(8)):
        a(f"s_lshl_b32 s{t0}, s{sW4}, 6")
        for j in js:
            a(f"s_add_u32 m0, s{sBUF}, {loff+j*1024}\ns_add_u32 s{t1}, s{t0}, {moff+j*4096}\nbuffer_load_dwordx4 v{v}, {SR4(sr)}, s{t1} offen lds")
    def xfrags(Ts):
        for T in Ts:
            for s in range(4): a(f"ds_read_b128 {P4(XF+16*T+4*s)}, v{FA+s} offset:{T*4096}")
    def ugemm():
        for T in range(4):
            for s in range(4):
                x,y=(WU1+4*s,XF+16*T+4*s) if T<3 else (XF+16*T+4*s,WU1+4*s)
                a(mfma16(UA+4*T,x,y,None if s==0 else UA+4*T))
    def uscale():
        for j in range(7): a(f"v_pk_mul_f32 {P2(UA+2*j)}, {P2(UA+2*j)}, {S2(sL2E)}")
    def w3rd():
        a(f"v_lshlrev_b32 v1, 3, v{VL}")
        for q in range(4): a(f"ds_read_b64 {P2(B3+4*q+2*(q&1))}, v1 offset:{W3L+q*512}")
    F=A3
    def scan(slow):
        a(f"""
v_lshlrev_b32 v1, 2, v{VL}
ds_read_b32 v{F}, v1
v_cmp_gt_u32 vcc, s{sNN}, v{VL}
v_lshlrev_b32 v{F+1}, 8, v{VL}
s_waitcnt lgkmcnt(0)
v_sub_u32 v{QA}, v{F}, v{F+1}
""")
        if slow:
            a(f"""
s_movk_i32 s{t1}, 256
v_subrev_u32 v{QA}, s{sHEAD}, v{QA}
v_cmp_lt_i32 {S2(t2)}, s{t1}, v{QA}
v_med3_i32 v{QA}, v{QA}, 0, s{t1}
v_add_u32 v{F}, v{F+1}, v{QA}
""")
        a(f"""
v_add_u32 v3, 12, v{QA}
v_and_b32 v3, -16, v3
v_max_u32 v3, 80, v3
v_cndmask_b32 v3, 0, v3, vcc
v_mov_b32 v2, v3
""")
        dpp_scan(a,"v_add_u32",[2])
        a(f"""
v_readlane_b32 s{t0}, v2, 63
v_sub_u32 v2, v2, v3
""")
    def fill(lab,slow,nw):
        a(f"""
s_lshl_b32 s{t1}, s{sWV}, 4
v_add_u32 v{QA+1}, s{t1}, v2
v_lshrrev_b32 v{QA+1}, 3, v{QA+1}       ; 2*(G0+w)
v_add_u32 v{F+1}, s{t1}, v{F+1}         ; 256n+16w
v_subrev_u32 v{QA+2}, s{t1}, v3         ; g16-16w
""")
        if not slow: a(f"v_add_u32 v{QA+3}, v{QA+1}, v{SA}\nv_mov_b32 v{F+3}, 0x3f80\nds_write_b32 v1, v2 offset:{BT}")
        for k in range(16//nw):
            a(f"v_cmpx_lt_i32 vcc, {16*nw*k}, v{QA+2}\nds_write_b16 v{QA+1}, v{F+1+(k&1)} offset:{GL+2*nw*k}")
            if k+1<16//nw: a(f"v_add_u32 v{F+1+((k+1)&1)}, {16*nw}, v{F+1+(k&1)}")
            if not slow: a(f"ds_write_b16 v{QA+3}, v{F+3} offset:{STB+2*nw*k}")
        a(f"""
s_mov_b64 exec, -1
s_lshl_b32 s{t1}, s{sWV}, 2
v_sub_u32 v{QA+2}, v3, v{QA}
v_add_u32 v{F}, s{t1}, v{F}
v_subrev_u32 v{QA+2}, s{t1}, v{QA+2}    ; pad4 - 4w
s_mov_b32 s{t1}, {EB}
v_mov_b32 v{QA+4}, 0
v_mov_b32 v{QA+5}, 0
v_mov_b32 v{QA+6}, {hex(NULLW2)}
v_lshl_add_u32 v{QA+7}, v{F}, 1, s{t1}
""")
        for k in range(-(-20//nw)):
            a(f"v_cmpx_lt_i32 vcc, {4*nw*k}, v{QA+2}")
            if k==1: a(f"s_cbranch_vccz {lab}p")
            a(f"ds_write_b32 v{F}, v{QA+6} offset:{WB+4*nw*k}\nds_write_b64 v{QA+7}, {P2(QA+4)} offset:{8*nw*k}")
        a(f"""
{lab}p:
s_mov_b64 exec, -1
s_cmp_eq_u32 s{sWV}, 3
s_cbranch_scc0 {lab}q
s_lshr_b32 s{t1}, s{t0}, 3
v_lshl_add_u32 v{QA+1}, v{VL}, 1, s{t1}
v_mov_b32 v{QA+2}, {NULLG}
v_add_u32 v{QA+3}, {NULLG}, v1
v_lshlrev_b32 v{QA+7}, 1, v1
v_add_u32 v{QA+7}, {EB+2*NULLG}, v{QA+7}
s_mov_b64 exec, 0xff
ds_write_b16 v{QA+1}, v{QA+2} offset:{GL}
s_mov_b64 exec, 15
ds_write_b32 v{QA+3}, v{QA+6} offset:{WB}
ds_write_b64 v{QA+7}, {P2(QA+4)}
s_mov_b64 exec, -1
{lab}q:
""")
    def expand(lab):
        a(f"""
v_subrev_u32 v1, s{sLO}, v{TO}
v_add_u32 v2, v1, v{TC}
v_med3_i32 v1, v1, 0, s{t3}
v_med3_i32 v2, v2, 0, s{t3}
v_sub_u32 v2, v2, v1
v_lshl_add_u32 v1, v1, 2, s{sLB}
{lab}:
""")
        for j in range(16):
            a(f"v_cmpx_lt_i32 vcc, {j}, v2\nds_write_b32 v1, v{TD} offset:{4*j}")
        a(f"""
v_add_u32 v2, -16, v2
v_add_u32 v1, 64, v1
v_cmp_lt_i32 vcc, 0, v2
s_cmp_lg_u64 vcc, 0
s_cbranch_scc1 {lab}
s_mov_b64 exec, -1
""")
    def rl1(i): return f"buffer_load_dwordx4 {P4(RC+4*i)}, v{RK+i}, {SR4(sR)}, {'0' if i<4 else 's'+str(sQ)} offen offset:{1024*(i&3)}{SC}"
    def reclist(ns):
        a(f"v_lshl_add_u32 v1, v{VL}, 2, s{sLB}")
        for i in reversed(range(ns)): a(f"ds_read_b32 v{RK+i}, v1 offset:{256*i}")
        a(f"v_add_u32 v2, s{sLO}, v{VL}\nv_lshlrev_b32 v2, 4, v2\ns_movk_i32 s{sQ}, 4096")
        for i in range(ns):
            a(f"v_cmp_gt_i32 {S2(sM+2*i)}, s{t1}, v{VL}\ns_sub_u32 s{t1}, s{t1}, 64")
        a("s_waitcnt lgkmcnt(0)")
        for i in range(ns): a(f"v_add_u32 v{RK+i}, v{RK+i}, v2")
    def recload(ns,lab):
        for i in reversed(range(ns)):
            a(f"s_mov_b64 exec, {S2(sM+2*i)}\ns_cbranch_execz {lab}{i}\n{rl1(i)}\n{lab}{i}:")
        a("s_mov_b64 exec, -1")
    def hist(ns,lab,extra,scat):
        a(f"v_mov_b32 v1, 4\ns_mov_b32 s{sW8}, {EB}\n{lab}p:")
        def gm(i): return S2(t0+2*(i&1))
        def sc(i,n):
            a(f"""
s_mov_b64 exec, {gm(i)}
s_waitcnt lgkmcnt({n})
v_min_u32 v{RK+i}, {NULLG-4}, v{RK+i}
v_lshl_add_u32 v{RC+4*i+3}, v{RK+i}, 1, s{sW8}
ds_write_b32 v{RK+i}, v{RC+4*i+2} offset:{WB}
ds_write_b64 v{RC+4*i+3}, {P2(RC+4*i)}
""")
        for i in reversed(range(ns)):
            a(f"""
s_mov_b64 exec, {S2(sM+2*i)}
s_waitcnt vmcnt({i+extra})
v_cmpx_eq_u32 {gm(i)}, s{sNON}, v{RC+4*i+3}
v_lshrrev_b32 v{RC+4*i+3}, 17, v{RC+4*i+2}
ds_add_rtn_u32 v{RK+i}, v{RC+4*i+3}, v1
s_andn2_b64 {S2(sM+2*i)}, {S2(sM+2*i)}, {gm(i)}
""")
            a(f"s_mov_b64 vcc, {S2(sM+2*i)}" if i==ns-1 else f"s_or_b64 vcc, vcc, {S2(sM+2*i)}")
            if scat and i==0: a(f"s_cselect_b64 exec, 0, 1\nds_add_u32 v{VZ}, v1 offset:{mH}")
            if scat and i<ns-1: sc(i+1,(1 if i==ns-2 else 3)+(1 if i==0 else 0))
        if scat: sc(0,3)
        a(f"s_cbranch_vccnz {lab}r\n{lab}d:\ns_mov_b64 exec, -1")
    def hist_retry(ns,lab,scat):
        a(f"{lab}r:\ns_sub_u32 s{sBUD}, s{sBUD}, 1\ns_cbranch_scc1 {lab}x")
        recload(ns,lab+"l")
        a(f"s_waitcnt vmcnt(0)\ns_branch {lab}p\n{lab}x:\ns_mov_b32 s{sBUD}, 0")
        if scat: a(f"s_mov_b64 exec, 1\nds_add_u32 v{VZ}, v1 offset:{mH}")
        a(f"s_branch {lab}d")
    def qfull(lab,mid):
        H=QA+4; MX=QA+1
        a(f"v_xor_b32 v{TC}, 32, v{TRU}")
        trfrag(WF,TC,0,2048,256)
        a(f"""
s_lshr_b32 s{t0}, s{sW4}, 1
s_lshl_b32 s{t0}, s{t0}, 9
s_and_b32 s{t1}, s{sW4}, 1
s_lshl_b32 s{t1}, s{t1}, 3
s_add_u32 s{t0}, s{t0}, s{t1}
s_add_u32 s{t0}, s{t0}, {Q2}
v_lshl_add_u32 v120, v{SB}, 10, s{t0}
v_lshl_add_u32 v120, v{WT}, 4, v120
v_add_u32 v121, 256, v120
s_waitcnt lgkmcnt(0)
""")
        tru(WF+16,0)
        def cv(i,T,pk):
            c=GA+16*i+4*T
            L=[]
            if pk: L+=[f"v_pk_mul_f32 {P2(c)}, {P2(c)}, {S2(sL2E)}",f"v_pk_mul_f32 {P2(c+2)}, {P2(c+2)}, {S2(sL2E)}"]
            else: L+=[f"v_mul_f32 v{c+k}, s{sL2E}, v{c+k}" for k in range(4)]
            L+=[f"v_and_b32 v{H+k}, 0xffff0000, v{c+k}" for k in range(4)]
            L+=[f"v_maximum3_f32 v{MX}, {'0' if T==0 and i==0 else 'v'+str(MX)}, abs(v{c}), abs(v{c+1})",f"v_maximum3_f32 v{MX}, v{MX}, abs(v{c+2}), abs(v{c+3})"]
            if pk: L+=[f"v_pk_add_f32 {P2(c)}, {P2(c)}, {P2(H)} neg_lo:[0,1] neg_hi:[0,1]",f"v_pk_add_f32 {P2(c+2)}, {P2(c+2)}, {P2(H+2)} neg_lo:[0,1] neg_hi:[0,1]"]
            else: L+=[f"v_sub_f32 v{c+k}, v{c+k}, v{H+k}" for k in range(4)]
            L+=[f"v_cvt_pk_bf16_f32 v{c+k}, v{c+k}, v{H+k}" for k in range(4)]
            return L
        for T in range(4):
            for s in range(4): a(mfma16(GA+4*T,XF+16*T+4*s,WF+4*s,None if s==0 else GA+4*T))
        a("s_waitcnt lgkmcnt(0)")
        fl=cv(0,0,0)+cv(0,1,0)
        for T in range(4):
            for s in range(4):
                a(mfma16(GA+16+4*T,XF+16*T+4*s,WF+16+4*s,None if s==0 else GA+16+4*T))
                for _ in range(2): a(fl.pop(0))
        if PFI==0: mid()
        for x in fl+cv(0,2,1)+cv(1,0,1)+cv(1,1,1)+cv(1,2,1): a(x)
        if PFI==1: mid()
        gwait(lab+"w",mSL,4,VZ,1)
        for i in range(2):
            for T in range(3):
                c=GA+16*i+4*T
                a(f"ds_write2st64_b64 v{120+i}, {P2(c)}, {P2(c+2)} offset0:{16*T} offset1:{16*T+2}")
        a("s_mov_b64 exec, 0xffff")
        for i in range(2):
            c=GA+16*i+12
            a(f"""
v_mul_f32 v{c}, s{sL2E}, v{c}
v_and_b32 v{H}, 0xffff0000, v{c}
v_maximum3_f32 v{MX}, v{MX}, abs(v{c}), abs(v{c})
v_sub_f32 v{c}, v{c}, v{H}
v_cvt_pk_bf16_f32 v{c}, v{c}, v{H}
ds_write2st64_b64 v{120+i}, {P2(c)}, {P2(c+2)} offset0:48 offset1:50
""")
        a(f"""
s_mov_b64 exec, -1
v_cmp_nge_f32 vcc, 0x40e80000, v{MX}
s_cbranch_vccz {lab}q
ds_write_b32 v{VZ}, v{FA} offset:{mSLOW}
{lab}q:
""")
        pt('qd')
    def ranges():
        a(f"""
s_lshr_b32 s{sCNT}, s{sNT}, 3
s_mul_i32 s{sT0}, s{sCNT}, s{sWV}
s_and_b32 s{t2}, s{sNT}, 7
s_min_u32 s{t3}, s{t2}, s{sWV}
s_add_u32 s{sT0}, s{sT0}, s{t3}
s_cmp_lt_u32 s{sWV}, s{t2}
s_addc_u32 s{sCNT}, s{sCNT}, 0
s_lshl_b32 s{t0}, s{sT0}, 7
s_lshl_b32 s{t2}, s{sT0}, 4
v_add_u32 v{SB}, s{t2}, v{SB}
v_add_u32 v{RB}, s{t2}, v{RB}
v_sub_u32 v{SA}, v{SA}, v{OHC}
v_add_u32 v{SA}, s{t2}, v{SA}
s_add_u32 s{t3}, s{sT0}, s{sCNT}
v_min_u32 v1, 8, v{VL}
v_sub_u32 v1, s{t3}, v1
v_lshlrev_b32 v1, 4, v1
v_max_i32 v1, 0, v1
""")
    def epi_consts(): pass
    def arrive(off,vt): a(f"v_mov_b32 v{vt}, 1\ns_mov_b64 exec, 1\nds_add_u32 v{VZ}, v{vt} offset:{off}\ns_mov_b64 exec, -1")

    D=28; SRc=36; K=44; R=52; W2=60; RO=80
    sD=40; sS=44; sE=48
    Q16="s_mov_b64 exec, 0xffff"; FULL="s_mov_b64 exec, -1"
    a(f"""
{name}:
s_getpc_b64 {S2(t2)}
s_cmp_ge_u32 s2, 256
s_cbranch_scc1 KF_END
s_load_dwordx16 s[4:19], s[0:1], 0
s_load_dwordx2 s[20:21], s[0:1], 64
v_lshrrev_b32 v1, 6, v0
s_and_b32 s{t0}, s2, 0xf8
v_add_lshl_u32 v2, v1, s{t0}, 7
v_readfirstlane_b32 s{sWV}, v1
v_min_u32 v2, KF_CEND-{name}-8, v2
s_mov_b64 exec, 1
global_load_dword v{QA+15}, v2, {S2(t2)}
s_mov_b64 exec, -1
v_and_b32 v{VL}, 63, v0
v_mov_b32 v{VZ}, 0
v_lshlrev_b32 v113, 4, v{VL}
s_cmp_ge_u32 s{sWV}, 4
s_cbranch_scc0 KF_S
v_lshlrev_b32 v2, 2, v0
v_lshlrev_b32 v3, 8, v{VL}
ds_write_b32 v2, v{VZ} offset:{HIST-1024}
v_lshlrev_b32 v2, 2, v{VL}
ds_write2st64_b32 v2, v3, v{VZ} offset0:0 offset1:1
s_waitcnt lgkmcnt(0)
""")
    if WSB: a(f"s_add_u32 s20, s20, {hex(WSB)}\ns_addc_u32 s21, s21, 0")
    stamp(a,0,True); stamp(a,1); pt('st')
    a(f"""
s_load_dword s{sNON}, s[20:21], 0
s_lshr_b32 s{t0}, s{t0}, 1
s_add_u32 s{t0}, s{t0}, s{sWV}
s_sub_u32 s{t0}, s{t0}, 4
s_lshl_b32 s{t0}, s{t0}, 9
v_lshl_add_u32 v2, v{VL}, 7, s{t0}
s_mov_b64 exec, 15
global_load_dword v{QA+15}, v2, s[12:13]
global_load_dword v{QA+15}, v2, s[14:15]
s_mov_b64 exec, -1
""")
    if TLB:
        a(f"""
s_lshr_b32 s{t0}, s{t0}, 9
s_mul_i32 s{t1}, s{t0}, {2*RST}
s_add_u32 s{t1}, s{t1}, {F_REC+EP*16}
s_add_u32 s52, s20, s{t1}
s_addc_u32 s53, s21, 0
s_load_dword s44, s[52:53], 0
s_load_dword s45, s[52:53], {RST}
""")
    a(f"""
s_branch KF_B0
KF_S:
s_min_u32 s{t2}, s2, {NPROD-1}
s_mul_i32 s{t2}, s{t2}, {EP*4}
s_mul_i32 s{t3}, s{sWV}, 400
v_add_u32 v108, s{t3}, v{VL}
v_lshlrev_b32 v109, 2, v108
s_mov_b32 s{sD+2}, {E*4}
s_mov_b32 s{sD+3}, 0x00020000
s_waitcnt lgkmcnt(0)
""")
    if WSB: a(f"s_add_u32 s20, s20, {hex(WSB)}\ns_addc_u32 s21, s21, 0")
    stamp(a,0,True); stamp(a,1); pt('st')
    a(f"s_mov_b32 s{sD}, s10\ns_and_b32 s{sD+1}, s11, 0xffff")
    def ld7(dst,sr):
        for i in range(7):
            if i==6: a(Q16)
            a(f"buffer_load_dword v{dst+i}, v109, {SR4(sr)}, s{t2} offen offset:{i*256}")
        a(FULL)
    ld7(D,sD)
    srd(a,sS,8,E*4); srd(a,sE,6,E*8)
    ld7(SRc,sS)
    a(f"""
s_lshl_b32 s{sLB}, s{t3}, 3
s_lshl_b32 s{t2}, s{t2}, 1
s_add_u32 s{t2}, s{t2}, s{sLB}
s_add_u32 m0, s{sLB}, {ERAW}
s_add_u32 s{sLB}, s{sLB}, {S1}
""")
    for j in range(4):
        if j==3: a("s_mov_b64 exec, 0xff")
        a(f"buffer_load_dwordx4 v113, {SR4(sE)}, s{t2} offen offset:{1024*j} lds")
    a(FULL)
    a(f"""
KF_B0:
""")
    if DBGP:
        a("v_mov_b32 v1, 0")
        for j,r in enumerate((4,6,8,10,12,14,16,18,20)): a(f"v_writelane_b32 v1, s{r}, {j}")
        a(f"v_lshlrev_b32 v2, 2, v{VL}\ns_mov_b64 exec, 0x1ff\nglobal_store_dword v2, v1, s[18:19]\ns_mov_b64 exec, -1\ns_waitcnt vmcnt(0)")
    if ALN: a(f"s_add_u32 s20, s20, {ALN-1}\ns_addc_u32 s21, s21, 0\ns_and_b32 s20, s20, {-ALN}")
    a(f"""
s_and_b32 s{sK}, s2, 7
s_lshl_b32 s{sK}, s{sK}, 5
s_lshr_b32 s{t0}, s2, 3
s_or_b32 s{sK}, s{sK}, s{t0}
s_and_b32 s{sW4}, s{sWV}, 3
s_lshl_b32 s{sW4K}, s{sW4}, 10
s_lshl_b32 s{sBUF}, s{sWV}, 13
s_add_u32 s{sBUF}, s{sBUF}, {GBUF}
s_barrier
""")
    consts()
    a(f"""
s_cmp_ge_u32 s{sWV}, 4
s_cbranch_scc1 KF_T
v_mov_b32 v111, 8
v_lshlrev_b32 v112, 3, v108
v_lshlrev_b32 v110, 4, v108
""")
    for i in range(7): a(f"v_add_u32 v{W2+1+2*i}, {i*512}, v112")
    a(f"s_cmp_ge_u32 s2, {NPROD}\ns_cbranch_scc1 KS_d\ns_waitcnt vmcnt(11)")
    pt('dst')
    for i in range(7):
        if i==6: a(Q16)
        a(f"v_lshlrev_b32_sdwa v{K+i}, 2, v{D+i} dst_sel:DWORD dst_unused:UNUSED_PAD src0_sel:DWORD src1_sel:BYTE_0\nds_add_rtn_u32 v{R+i}, v{K+i}, v111 offset:{HIST}")
    a(FULL+"\nKS_d:")
    gsync('b1',"KS_y1",mS,4,VZ,2)
    a(f"ds_read_b128 v[116:119], v113 offset:{HIST}")
    for i in range(7): a(f"v_lshrrev_b32 v{D+i}, 8, v{D+i}")
    a(f"""
s_waitcnt lgkmcnt(0)
v_add_u32 v2, v116, v117
v_add3_u32 v2, v2, v118, v119
v_mov_b32 v3, v2
""")
    dpp_scan(a,"v_add_u32",[3])
    a(f"""
v_sub_u32 v120, v3, v2
v_add_u32 v121, v120, v116
v_add_u32 v122, v121, v117
v_add_u32 v123, v122, v118
ds_write_b128 v113, v[120:123] offset:{HIST+1024}
""")
    for i in range(7):
        if i==6: a(Q16)
        a(f"ds_read_b32 v{K+i}, v{K+i} offset:{HIST+1024}")
    a(FULL)
    def tpub():
        a(f"s_load_dword s{sNON}, s[20:21], 0")
        for j in range(4): a(f"v_lshlrev_b32 v2, 1, v{120+j}\nv_lshl_or_b32 v{QA+2*j}, v{116+j}, 13, v2")
        a("s_waitcnt lgkmcnt(0)")
        tagh()
        a(f"v_mov_b32 v1, s{sNON}")
        for j in range(4): a(f"v_mov_b32 v{QA+2*j+1}, v1")
        a(f"""
s_lshl_b32 s{t2}, s2, 11
s_add_u32 s{t2}, s{t2}, {F_TBL}
s_lshl_b32 s{t3}, s{sWV}, 4
s_lshl_b64 exec, 0xffff, s{t3}
buffer_store_dwordx4 {P4(QA)}, v113, {SR4(sR)}, s{t2} offen{SSC}
buffer_store_dwordx4 {P4(QA+4)}, v113, {SR4(sR)}, s{t2} offen offset:1024{SSC}
s_mov_b64 exec, -1
""")
    if TE==0: tpub()
    a(f"s_cmp_ge_u32 s2, {NPROD}\ns_cbranch_scc1 KS_e\ns_waitcnt vmcnt({6 if TE==0 else 4})")
    if X&64:
        for i in range(7): a(f"v_and_b32 v{SRc+i}, 0x1ff, v{SRc+i}")
    for i in range(7): a(f"v_lshl_or_b32 v{W2+2*i}, v{D+i}, 19, v{SRc+i}")
    a(f"s_waitcnt lgkmcnt(0)")
    for i in range(7):
        if i==6: a(Q16)
        a(f"v_add_u32 v{K+i}, v{K+i}, v{R+i}\nds_write_b64 v{K+i}, {P2(W2+2*i)} offset:{S1}")
    a(FULL+"\nKS_e:")
    pt('sc1')
    if TE==1: tpub()
    a(f"""
v_lshlrev_b32 v114, 11, v0
s_lshr_b32 s{sLO}, s{sK}, 2
s_lshl_b32 s{sLO}, s{sLO}, 4
s_and_b32 s{t0}, s{sK}, 1
s_lshl_b32 s{t0}, s{t0}, 3
s_add_u32 s{sLO}, s{sLO}, s{t0}
s_and_b32 s{t0}, s{sK}, 2
s_lshl_b32 s{t0}, s{t0}, 9
s_add_u32 s{sLO}, s{sLO}, s{t0}
s_add_u32 s{sLO}, s{sLO}, {F_TBL}
v_cmp_gt_u32 vcc, {NPROD}, v0
v_mov_b32 v{TC}, 0
s_mul_i32 s{t0}, s2, {RST}
s_add_u32 s{t0}, s{t0}, {F_REC}
s_add_u32 s{t2}, s{t0}, 4096
v_mul_u32_u24 v115, {RST}, v0
v_add_u32 v115, {F_REC}, v115
""")
    gsync('bS',"KS_y2",mS,8,VZ,2,"s_waitcnt vmcnt(2)")
    tl=f"s_mov_b64 exec, vcc\nbuffer_load_dwordx2 {P2(TC)}, v114, {SR4(sR)}, s{sLO} offen{SC}\ns_mov_b64 exec, -1"
    a(f"""
s_cmp_ge_u32 s2, {NPROD}
s_cbranch_scc0 KS_h0
""")
    gwait("KS_h1",mGP,4,VZ,2)
    a(f"""
{tl}
v_mov_b32 v1, 0
s_branch KS_j
KS_h0:
""")
    order=[6,0,1,2,3,4,5]
    for i in order:
        if i==6: a(Q16)
        a(f"ds_read_b64 {P2(RO+2+4*i)}, v112 offset:{S1+i*512}")
        if i==6: a(FULL)
    for i in order:
        if i==6: a(Q16)
        a(f"s_waitcnt lgkmcnt(6)\nds_read_b64 {P2(RO+4*i)}, v{RO+3+4*i} offset:{ERAW}")
        if i==6: a(FULL)
    gwait("KS_ww",mW,4,VZ,2)
    for k,i in enumerate(order):
        if i==6: a(Q16)
        a(f"v_mov_b32 v{RO+3+4*i}, v1\nbuffer_store_dwordx4 {P4(RO+4*i)}, v110, {SR4(sR)}, s{t0 if i<4 else t2} offen offset:{1024*(i&3)}{SSC}")
        if i==6: a(FULL)
    a(tl)
    pt('out')
    a(f"v_pk_maximum3_f16 v1, v{RO}, v{RO+1}, v{RO+1}\nv_pk_minimum3_f16 v2, v{RO}, v{RO+1}, v{RO+1}")
    for i in range(1,7):
        if i==6: a(Q16)
        a(f"v_pk_maximum3_f16 v1, v1, v{RO+4*i}, v{RO+4*i+1}\nv_pk_minimum3_f16 v2, v2, v{RO+4*i}, v{RO+4*i+1}")
    a(FULL)
    absmax_fin(a,1,2,3)
    a("KS_j:")
    gwait("KS_xw",mGX,4,VZ,2)
    a(f"ds_read_b32 v2, v{VZ} offset:{mC3}\ns_mov_b32 s{t1}, 0x41680000")
    xfrags([0,1,2])
    a(f"""
s_waitcnt lgkmcnt(4)
v_mul_f32 v1, v1, v2
v_cmp_nge_f32 {S2(t2)}, s{t1}, v1       ; !(14.5 >= e*c3)
""")
    xfrags([3]); w3rd()
    a(f"""
s_cmp_lg_u64 {S2(t2)}, 0
s_cselect_b32 s{t1}, 0x101, 1
v_mov_b32 v1, s{t1}
s_mov_b64 exec, 1
ds_add_u32 v{VZ}, v1 offset:{mE}
s_waitcnt vmcnt(0)
s_mov_b64 exec, vcc
KT_f:
v_cmp_ne_u32 vcc, s{sNON}, v{TC+1}
s_cbranch_vccz KT_g
s_mov_b64 exec, vcc
s_sub_u32 s{sBUD}, s{sBUD}, 1
s_cbranch_scc1 KT_f2
buffer_load_dwordx2 {P2(TC)}, v114, {SR4(sR)}, s{sLO} offen{SC}
s_waitcnt vmcnt(0)
s_branch KT_f
KT_f2:
s_mov_b32 s{sBUD}, 0
v_mov_b32 v{TC}, 0
KT_g:
s_mov_b64 exec, -1
""")
    pt('tp'); ret('rt1')
    a(f"""
v_lshrrev_b32 v{TO}, 16, v{TC}
v_add_u32_sdwa v{TD}, v115, v{TC} dst_sel:DWORD dst_unused:UNUSED_PAD src0_sel:DWORD src1_sel:WORD_0
v_mov_b32 v{TC}, v{TO}
""")
    dpp_scan(a,"v_add_u32",[TO])
    a(f"""
v_readlane_b32 s{sTOT}, v{TO}, 63
v_sub_u32 v{TO}, v{TO}, v{TC}
s_mov_b32 s{sLO}, 0
s_movk_i32 s{t3}, 512
v_lshlrev_b32 v1, 4, v{TO}
v_sub_u32 v{TD}, v{TD}, v1
""")
    expand("KT_x")
    a(f"s_mov_b32 s{t1}, s{sTOT}")
    reclist(8)
    arrive(mSL,1)
    pt('exp')
    gwait("KS_rw",mPD,4,VZ,1)
    recload(8,"KT_l")
    pt('rl')
    def pfp():
        a(f"""
s_lshr_b32 s{t1}, s2, 3
s_mul_i32 s{t1}, s{t1}, 391
v_bfe_u32 v2, v0, 1, 7
v_add_u32 v2, s{t1}, v2
v_and_b32 v3, 1, v0
v_lshlrev_b32 v3, 7, v3
""")
        if PFH: a("s_mov_b32 exec_hi, 0")
        a(f"buffer_load_dword v{QA+15}, v[2:3], {SR4(sP)}, 0 idxen offen offset:3072{SC}\ns_mov_b64 exec, -1")
    if PFP==1: pfp()
    gwait("KS_w2",mPI,4,VZ,1)
    tru(WU1,32768)
    a("s_waitcnt lgkmcnt(0)")
    ugemm()
    pt('ud')
    hist(8,"KT_h",1 if PFP==1 else 0,True)
    if PFP==3: pfp()
    pt('hs'); ret('rt2')
    gwait("KS_b2",mH,16,VZ,1)
    pt('b2')
    scan(False)
    a(f"""
v_cmp_lt_u32 vcc, 0x100, v{QA}
s_add_u32 s{sNT}, s{t0}, 127
s_lshr_b32 s{sNT}, s{sNT}, 7
s_cmp_gt_u32 s{sNT}, {CAPT}
s_cbranch_scc1 KT_j
s_cbranch_vccnz KT_j
""")
    fill("KFz",False,4)
    a(f"v_mov_b32 v1, s{sNT}\nds_write_b32 v{VZ}, v1 offset:{mNT}")
    pt('fil')
    a(f"""
s_cmp_gt_u32 s{sTOT}, 512
s_cbranch_scc0 KT_k
KT_j:
ds_write_b32 v{VZ}, v{FA} offset:{mSLOW}
KT_k:
s_mov_b32 s{sWU}, -1
""")
    ranges()
    srd(a,sA,14,256*256)
    if PRIO: a("s_setprio 3")
    bar('b3')
    a("s_branch KF_J")
    a(f"""
KF_T:
v_lshrrev_b32 v2, 3, v{VL}
v_and_b32 v2, 2, v2
v_xor_b32 v2, v2, v3
v_lshl_add_u32 v{TD}, v2, 4, v{DR}
v_and_b32 v108, 255, v0
v_mov_b32 v32, 0
v_mov_b32 v33, 0
v_mov_b32 v34, 0
v_mov_b32 v35, 0
v_lshlrev_b32 v110, 4, v108
v_lshrrev_b32 v1, 4, v108
v_xor_b32 v37, v1, v0
v_and_b32 v37, 15, v37
v_lshlrev_b32 v37, 4, v37
v_lshl_add_u32 v36, v1, 8, s{sK}
""")
    sG=40
    srd(a,sX,4,N,stride=256)
    def xld():
        for j in range(4):
            if j==3: a(f"s_cmp_eq_u32 s{sWV}, 4\ns_cbranch_scc0 KT_c")
            a(f"s_add_u32 m0, s{sW4K}, {AGB+j*4096}\ns_nop 0\nbuffer_load_dwordx4 v[36:37], {SR4(sX)}, 0 idxen offen lds\nv_add_u32 v36, 4096, v36")
        a("KT_c:")
    def warm():
        a(f"""
v_and_b32 v1, 31, v{VL}
v_lshlrev_b32 v1, 1, v1
s_lshl_b32 s{t0}, s{sW4}, 6
s_add_u32 s{t0}, s{t0}, 65536
""")
        for k in range(4): a(f"buffer_load_ushort v{124+k}, v1, {SR4(sA)}, s{t0} offen offset:{k*256}")
    def zer():
        a(f"v_cmp_le_u32 vcc, 32, v108\ns_mov_b64 exec, vcc\nds_write_b128 v110, v[32:35]\ns_mov_b64 exec, -1")
        for j in range(1,4): a(f"ds_write_b128 v110, v[32:35] offset:{j*4096}")
        a(f"""
s_cmp_eq_u32 s{sWV}, 4
s_cbranch_scc0 KT_b
ds_write_b128 v110, v[32:35] offset:16384
KT_b:
""")
    srd(a,sA,12,260*256); warm(); vyc()
    if XORD==1: xld()
    zer()
    a(f"""
s_lshl_b32 s{t0}, s{sW4}, 2
v_lshrrev_b32 v2, 4, v{VL}
v_or_b32 v1, s{t0}, v2                  ; 4u+g
v_xor_b32 v3, v1, v{WT}
v_lshlrev_b32 v3, 4, v3
v_lshl_add_u32 v116, v{WT}, 8, v3
v_add_u32 v116, {PSC}, v116
v_add_u32 v117, {PSC}, v110
v_lshl_add_u32 v118, v1, 16, v3
""")
    if XORD==2:
        gwait("KG_x",mS,4,VZ,1); xld()
    sdma(sA,0)
    sdma(sA,32768,-32768)
    arrive(mW,1)
    pt('w1i')
    def w3m():
        w=[124,125,126,127]; u=QA
        for k in range(4): a(f"v_lshlrev_b32 v{w[k]}, 16, v{w[k]}\nv_mul_f32 v{w[k]}, s{sL2E}, v{w[k]}")
        a(f"""
v_cvt_pk_bf16_f32 v{u}, v124, v125
v_cvt_pk_bf16_f32 v{u+1}, v126, v127
v_lshlrev_b32 v{u+2}, 16, v{u}
v_and_b32 v{u+3}, 0xffff0000, v{u}
v_lshlrev_b32 v{u+4}, 16, v{u+1}
v_and_b32 v{u+5}, 0xffff0000, v{u+1}
v_add_f32 v{u+6}, abs(v124), abs(v125)
v_sub_f32 v{u+2}, v124, v{u+2}
v_sub_f32 v{u+3}, v125, v{u+3}
v_sub_f32 v{u+4}, v126, v{u+4}
v_sub_f32 v{u+5}, v127, v{u+5}
v_add_f32 v{u+7}, abs(v126), abs(v127)
s_mov_b32 exec_lo, 0
v_cvt_pk_bf16_f32 v{u}, v{u+2}, v{u+3}
v_cvt_pk_bf16_f32 v{u+1}, v{u+4}, v{u+5}
s_mov_b32 exec_lo, -1
v_add_f32 v{u+6}, v{u+6}, v{u+7}
v_lshlrev_b32 v1, 3, v108
v_and_b32 v{u+6}, 0x7fffffff, v{u+6}
ds_write_b64 v1, {P2(u)} offset:{W3L}
""")
        dpp_scan(a,"v_max_u32",[u+6])
        a(f"""
s_mov_b32 exec_lo, 0
s_brev_b32 exec_hi, 1
ds_max_u32 v{VZ}, v{u+6} offset:{mC3}
s_mov_b64 exec, -1
""")
    e2=8
    a(f"s_waitcnt vmcnt({11+e2})"); w3m()
    a(f"v_mov_b32 v1, {hex(ONE2)}\nds_write2_b32 v{VZ}, v1, v1 offset0:{OH//4} offset1:{OH//4+3}")
    gsync('bX',"KG_y1",mGX,4,VZ,2,f"s_waitcnt vmcnt({8+e2})")
    if GP_: a(f"s_setprio {GP_}")
    xfrags([0])
    a(f"s_waitcnt vmcnt({e2})")
    pt('xl')
    trfrag(WF,TD,32768,2048,256)
    a("s_waitcnt lgkmcnt(7)")
    trfrag(WF+16,TD,32768+8,2048,256)
    def pm(T,i):
        for s in range(4): a(mfma16(GA+8*T+4*i,WF+16*i+4*s,XF+16*T+4*s,None if s==0 else GA+8*T+4*i))
    def pcv(T):
        c=GA+8*T
        L=[f"v_mul_f32 v{c+j}, s{sL2E}, v{c+j}" for j in range(8)]
        L+=[f"v_cvt_pk_bf16_f32 v{c+j}, v{c+2*j}, v{c+2*j+1}" for j in range(4)]
        L+=[f"ds_write_b128 v116, {P4(c)} offset:{T*4096}"]
        return L
    def pmi(T,fillers):
        for i in range(2):
            for s in range(4):
                a(mfma16(GA+8*T+4*i,WF+16*i+4*s,XF+16*T+4*s,None if s==0 else GA+8*T+4*i))
                for _ in range(2):
                    if fillers: a(fillers.pop(0))
    a("s_waitcnt lgkmcnt(8)"); xfrags([1]); pm(0,0)
    a("s_waitcnt lgkmcnt(4)"); xfrags([2,3]); pm(0,1)
    a("s_waitcnt lgkmcnt(8)"); pm(1,0); pm(1,1)
    a("s_waitcnt lgkmcnt(0)"); pmi(2,pcv(0)); pmi(3,pcv(1))
    a(f"s_lshl_b32 s{t2}, s{sK}, 8\ns_nop 2")
    for T in (2,3):
        for x in pcv(T): a(x)
    gsync('pg',"KG_y2",mGP,4,VZ,2)
    tagh()
    for T in range(4): a(f"ds_read_b128 {P4(PO+4*T)}, v117 offset:{T*4096}")
    a("s_waitcnt vmcnt(0)")
    for T in range(3):
        a(f"s_add_u32 s{t1}, s{t2}, {F_P+T*16*65536}\ns_waitcnt lgkmcnt({3-T})")
        a(f"buffer_store_dwordx4 {P4(PO+4*T)}, v118, {SR4(sR)}, s{t1} offen{SSC}")
    a(f"""
s_cmp_eq_u32 s{sWV}, 4
s_cbranch_scc0 KG_p
s_add_u32 s{t1}, s{t2}, {F_P+3*16*65536}
s_waitcnt lgkmcnt(0)
s_mov_b64 exec, 0xffff
buffer_store_dwordx4 {P4(PO+12)}, v118, {SR4(sR)}, s{t1} offen{SSC}
s_mov_b64 exec, -1
KG_p:
""")
    pt('pst')
    if GP_: a("s_setprio 0")
    srd(a,sA,14,256*256)
    w3rd()
    for T in range(4):
        c=GA+8*T
        if T==3: a("s_mov_b32 exec_lo, 0x10001\ns_mov_b32 exec_hi, 0x10001")
        if T==0: a(f"v_pk_maximum3_f16 v114, v{c}, v{c+1}, v{c+2}\nv_pk_minimum3_f16 v115, v{c}, v{c+1}, v{c+2}\nv_pk_maximum3_f16 v114, v114, v{c+3}, v{c+3}\nv_pk_minimum3_f16 v115, v115, v{c+3}, v{c+3}")
        else: a(f"v_pk_maximum3_f16 v114, v114, v{c}, v{c+1}\nv_pk_minimum3_f16 v115, v115, v{c}, v{c+1}\nv_pk_maximum3_f16 v114, v114, v{c+2}, v{c+3}\nv_pk_minimum3_f16 v115, v115, v{c+2}, v{c+3}")
    a("s_mov_b64 exec, -1")
    absmax_fin(a,114,115,2)
    a(f"""
v_cmp_lt_u32 vcc, 0x40e80000, v114
v_mov_b32 v{TD}, v{VY}
s_cmp_lg_u64 vcc, 0
s_cselect_b32 s{sFLAG}, 0x101, 1
""")
    def pflag(n):
        a(f"""
s_lshl_b32 s{t2}, s2, 4
s_add_u32 s{t2}, s{t2}, {F_FLG}
v_mov_b32 v1, s{sFLAG}
s_waitcnt vmcnt({n})
s_mov_b64 exec, 1
ds_add_rtn_u32 v1, v{VZ}, v1 offset:{mPD}
s_waitcnt lgkmcnt(0)
v_readfirstlane_b32 s{t1}, v1
s_add_u32 s{t1}, s{t1}, s{sFLAG}
s_and_b32 s{t0}, s{t1}, 255
s_cmp_eq_u32 s{t0}, 4
s_cbranch_scc0 KG_f
KG_e:
ds_read_b32 v1, v{VZ} offset:{mE}
s_waitcnt lgkmcnt(0)
v_readfirstlane_b32 s{t0}, v1
s_and_b32 s{t3}, s{t0}, 255
s_cmp_lt_u32 s{t3}, 4
s_cbranch_scc1 KG_e
s_or_b32 s{t1}, s{t1}, s{t0}
s_cmp_gt_u32 s{t1}, 255
s_cselect_b32 s{t0}, 2, 0
s_xor_b32 s{t0}, s{sNON}, s{t0}
v_mov_b32 v1, s{t0}
buffer_store_dword v1, v{VZ}, {SR4(sR)}, s{t2} offen{SSC}
s_waitcnt vmcnt(1)
s_branch KG_f2
KG_f:
s_waitcnt vmcnt(0)
KG_f2:
s_mov_b64 exec, -1
""")
        pt('pfl')
    def mid():
        sdma(sA,0); pflag(8); arrive(mPI,1)
    qfull("KGq",mid)
    tru(WU1,32768)
    a("s_waitcnt lgkmcnt(0)")
    ugemm()
    if FLP==1: gwait("KG_b2",mH,16,VZ,1)
    a(f"""
s_mov_b32 s{sLO}, {F_FLG}
buffer_load_dword v116, v110, {SR4(sR)}, s{sLO} offen{SC}
""")
    if PFP==2: pfp()
    a(f"""
s_mov_b32 s{sWU}, 1
s_or_b32 s{t1}, s{sNON}, 2
s_waitcnt vmcnt({1 if PFP==2 else 0})
KS_m:
v_or_b32 v2, 2, v116
v_cmp_ne_u32 vcc, s{t1}, v2
s_cbranch_vccz KS_n
s_sub_u32 s{sBUD}, s{sBUD}, 1
s_cbranch_scc1 KS_n
s_sleep {FSL}
s_mov_b64 exec, vcc
buffer_load_dword v116, v110, {SR4(sR)}, s{sLO} offen{SC}
s_mov_b64 exec, -1
s_waitcnt vmcnt(0)
s_branch KS_m
KS_n:
v_cmp_ne_u32 vcc, s{sNON}, v116
s_cbranch_vccz KS_o
ds_write_b32 v{VZ}, v{FA} offset:{mSLOW}
KS_o:
""")
    pt('flg')
    if PRIO: a("s_setprio 3")
    bar('b3')
    a(f"ds_read_b32 v1, v{VZ} offset:{mNT}\ns_waitcnt lgkmcnt(0)\nv_readfirstlane_b32 s{sNT}, v1")
    ranges()
    a("KF_J:")
    def rd_ga(off): a(f"ds_read_u16 v{GA0}, v{SB} offset:{GL+off}\nds_read_u16 v{GA0+1}, v{SB} offset:{GL+off+8}")
    def rd_gg(off): a(f"ds_read_u16 v{YA}, v{RB} offset:{GL+off}")
    ya=f"v_lshl_add_u32 v{EA}, v{YA}, 1, v{EC}\nv_add_u32 v{YA}, v{YA}, v{M4}"
    ry=f"ds_read_u16 v{VY}, v{YA} offset:{WB+2}"
    def rd_y(): a(ya); a(ry)
    def idx1(i): return f"ds_read_u16 v{IDX+2*i}, v{GA0+(i>>2)} offset:{WB+4*(i&3)}"
    def rd_idx():
        for i in range(8): a(idx1(i))
    def dmai(i): return f"buffer_load_dwordx4 {P2(IDX+2*i)}, {SR4(sP)}, 0 idxen offen offset:{1024*(i&3)}{GSC} lds"
    def dma():
        for i in range(8):
            if i==0: a(f"s_mov_b32 m0, s{sBUF}\ns_nop 0")
            if i==4: a(f"s_add_u32 m0, s{sBUF}, 4096\ns_nop 0")
            a(dmai(i))
    def dma_idx():
        for i in range(4): a(dmai(i))
        a(f"s_add_u32 m0, s{sBUF}, 4096"); a(idx1(0))
        for i in range(4,8): a(dmai(i))
        a(f"s_mov_b32 m0, s{sBUF}")
        for i in range(1,8): a(idx1(i))
    rd_b=f"ds_read_b128 {P4(B3+2)}, v{QAD}\nds_read_b128 {P4(B3+10)}, v{QAD} offset:512"
    rd_a3=f"ds_read_b64 {P2(A6)}, v{EA}\nds_read_b64 {P2(A6+2)}, v{VY} offset:{OH}\nds_read_b64 {P2(A6+4)}, v{EA}"
    def rd_a(t): return f"ds_read_b128 {P4(A+4*t)}, v{AR+t}"
    rd_s=f"ds_read_b64 {P2(SS)}, v{SA2}\nds_read_b64 {P2(SS+2)}, v{SA2+1}"
    def AQ(q): return A6+2*(q&1)
    win=f"v_add3_u32 v{VY}, v{VY}, v{OH2}, s{sW8}\nv_lshl_add_u32 v{QAD}, s{sQ}, 6, v{QC}"
    rd_ga(0); rd_gg(0)
    a(f"""
ds_read_u16 v{WT}, v1 offset:{GL}
ds_read_b32 v{GP}, v{VZ} offset:{mSLOW}
s_waitcnt lgkmcnt(3)
""")
    rd_idx()
    a("s_waitcnt lgkmcnt(0)")
    dma()
    pt('d0')
    a(f"v_readlane_b32 s{sNF}, v{WT}, s{sCNT}\nv_readfirstlane_b32 s{t3}, v{GP}")
    rd_y(); rd_ga(16)
    uscale()
    a(f"""
v_lshlrev_b32 v{OH2}, 1, v{OHC}
v_and_b32 v1, 31, v{VL}
v_lshlrev_b32 v1, 4, v1
v_lshlrev_b32 v2, 5, v{VL}
v_and_b32 v2, 0x400, v2
v_add3_u32 v{QC}, v1, v2, s{sQ2}
s_waitcnt lgkmcnt(0)
""")
    rd_idx()
    a(f"""
s_cmp_lg_u32 s{t3}, 0
s_cbranch_scc1 KF_SLOW
s_lshr_b32 s{sNF}, s{sNF}, 8
v_subrev_u32 v2, s{sNF}, v{VL}
v_and_b32 v2, 15, v2
v_add_u32 v{DR}, s{sNF}, v2
v_lshlrev_b32 v2, 2, v{DR}
ds_read_b32 v{GP}, v2 offset:{BT}
s_and_b32 s{sQ}, s{sNF}, -2
s_lshl_b32 s{sQ}, s{sQ}, 3
s_sub_u32 s{sW8}, 0, s{sQ}
{win}
{rd_b}
{rd_a3}
""")
    rd_gg(16)
    a(f"""
v_lshrrev_b32 v{WT}, 9, v{WT}
v_lshlrev_b32 v{WT}, 4, v{WT}           ; 8*(w&~1)
v_mov_b32 v{SS}, 0
v_mov_b32 v{SS+1}, 0
v_mov_b32 v{SS+2}, 0
v_mov_b32 v{SS+3}, 0
v_add_u32 v{SA}, {STB}, v{SA}
v_mov_b32 v1, {OH+64}
v_cndmask_b32 v{SA2}, v1, v{SA}, {S2(sMA)}
v_cndmask_b32 v{SA2+1}, v{SA}, v1, {S2(sMA)}
v_cndmask_b32 v{SI2}, 0, 16, {S2(sMA)}
v_cndmask_b32 v{SI2+1}, 16, 0, {S2(sMA)}
s_add_u32 s{t1}, s{sT0}, s{sCNT}
s_lshl_b32 s{t1}, s{t1}, 7
s_add_u32 s{t2}, s{sWV}, 48
v_mov_b32 v1, s{t2}
{mfma32(ACC+16,SS,SS,None)}
s_waitcnt lgkmcnt(0)
""")
    rd_y(); rd_ga(32)
    a(f"""
v_cmp_gt_u32 vcc, s{t0}, v{GP}
v_cmp_gt_u32 {S2(t2)}, s{t1}, v{GP}
v_cmp_gt_u32 {S2(t0)}, s{sNN}, v{DR}
v_cndmask_b32 v{DR}, v{DR}, v1, vcc
s_cmp_lg_u64 vcc, 0
s_cselect_b32 s{sHEAD}, 1, 0
s_and_b64 vcc, {S2(t2)}, {S2(t0)}
v_lshrrev_b32 v1, 2, v{VL}
v_cndmask_b32 v{DR}, 63, v{DR}, vcc
v_and_b32 v1, 4, v1
v_xor_b32 v1, v1, v{DR}
v_and_b32 v1, 15, v1
v_lshlrev_b32 v1, 4, v1
v_lshl_add_u32 v{DR}, v{DR}, 8, v1
v_sub_u32 v{DR}, v{DR}, v{OHC}
s_sub_u32 s{sCNT}, s{sCNT}, 1
s_mov_b32 m0, s{sBUF}
""")
    epi_consts()
    pt('pre')
    a("s_waitcnt vmcnt(0)")
    pt('g0')
    for t in range(8): a(rd_a(t))
    a("s_waitcnt lgkmcnt(6)")
    a(mfma32(Z[0],AQ(0),B3,None)); a(mfma32(Z[0],A,ID0,Z[0])); a(mfma32(Z[0],A+4,ID1,Z[0]))
    a("s_nop 8\ns_waitcnt lgkmcnt(0)")
    pt('pro')
    def finals(qprev):
        for u in range(2): a(f"v_pk_mul_f32 {P2(NN+2*u)}, {P2(NN+2*u)}, {P2(DD+2*u)}")
        for u in range(2): a(f"v_cvt_pk_bf16_f32 v{GP+2*(qprev&1)+u}, v{NN+2*u}, v{NN+2*u+1}")
    def ex(zc,r): return f"v_exp_f32 v{EE+r}, v{zc+r}"
    def body(first):
        for q in range(4):
            zc=Z[q&1]; zn=Z[(q+1)&1]; qn=(q+1)&3
            ms=[(AQ(qn),B3+4*qn),(A+8*qn,ID0),(A+8*qn+4,ID1)]
            pend=[0,1,2,3,8,9,10,11,4,5,12,13,6,7,14,15]
            f0=first and q==0
            if q==0: a(f"v_readlane_b32 s{sQ}, v{WT}, s{sCNT}")
            if q==3: a(f"s_waitcnt lgkmcnt(0)")
            a(mfma32(zn,ms[0][0],ms[0][1],None))
            if not f0:
                for j in range(4): a(f"v_rcp_f32 v{DD+j}, v{DD+j}")
            else:
                for r in range(4): a(ex(zc,pend.pop(0)))
            a(mfma32(zn,ms[1][0],ms[1][1],zn))
            for r in range(4): a(ex(zc,pend.pop(0)))
            a(mfma32(zn,ms[2][0],ms[2][1],zn))
            def bx():
                a(f"s_sub_u32 s{sW8}, 0, s{sQ}\ns_waitcnt vmcnt(0) lgkmcnt(0)\n{win}")
                rd_gg(32); rd_ga(48)
                a(rd_b); a(rd_a3); a(rd_s)
                for t in range(8): a(rd_a(t))
            if q==2 and XP==0: a(ex(zc,pend.pop(0))); bx()
            for r in range(4 if not (q==2 and XP==0) else 3): a(ex(zc,pend.pop(0)))
            if q&1:
                p=1 if q==1 else 0
                if not (first and q==1):
                    a(mfma32(ACC+16*p,GP,SS,None if first else ACC+16*p))
                    for r in range(4): a(ex(zc,pend.pop(0)))
            if q==2 and XP==1: bx()
            if f0: dma_idx()
            if q==3:
                a(ya)
                if first: dma_idx(); a(ry)
                else:
                    a(f"s_cmp_gt_u32 s{sCNT}, 1\ns_cbranch_scc0 KF_lt")
                    dma_idx(); a(ry)
                    a("KF_lb:")
            if not f0: finals((q-1)&3)
            seq=[]
            for u in range(2): seq.append(f"v_pk_add_f32 {P2(DD+2*u)}, {P2(EE+8*u)}, 1.0 op_sel_hi:[1,0]")
            for m in range(1,4):
                for u in range(2):
                    src=(zc+8*u) if m==1 else NN+2*u
                    seq.append(f"v_pk_fma_f32 {P2(NN+2*u)}, {P2(src)}, {P2(EE+8*u+2*m)}, {P2(src)}")
                for u in range(2): seq.append(f"v_pk_fma_f32 {P2(NN+2*u)}, {P2(zc+8*u+2*m)}, {P2(DD+2*u)}, {P2(NN+2*u)}")
                for u in range(2): seq.append(f"v_pk_fma_f32 {P2(DD+2*u)}, {P2(DD+2*u)}, {P2(EE+8*u+2*m)}, {P2(DD+2*u)}")
            slots=[0,1,2,3,5,7,9,11] if len(pend)==8 else [1,4,7,10]
            for k,x in enumerate(seq):
                a(x)
                if k in slots: a(ex(zc,pend.pop(0)))
            if q==2: a(f"v_pk_add_f32 {P2(RB)}, {P2(RB)}, {S2(sINC)}\nv_pk_add_f32 {P2(SA2)}, {P2(SA2)}, {P2(SI2)}")
    if PROF and 'dyn' in PTS: stamp(a,8); stamp(a,9,True)
    if PROF and 'clk' in PTS: stamp(a,6,True)
    n0=len(a.l)
    body(True)
    a("s_branch KF_LE\n.p2align 6\nKF_LOOP:")
    body(False)
    def keep(l):
        t=l.strip()
        if X&1 and t.startswith('buffer_load'): return False
        if X&2 and t.startswith('ds_read_b128 v[') and int(t.split('[')[1].split(':')[0])>=28: return False
        if X&8 and t.startswith('v_mfma'): return False
        if X&16 and t.startswith('v_pk_fma'): return False
        if X&32 and t.startswith('v_exp'): return False
        return True
    a.l[n0:]=[l for l in a.l[n0:] if keep(l)]
    import re
    if X&(128|256|512):
        L=[]
        for l in a.l[n0:]:
            m=re.match(r"\s*v_mfma_f32_32x32x16_bf16 v\[(\d+):\d+\], v\[(\d+):\d+\], v\[(\d+):\d+\], (.*)",l)
            if m and int(m.group(1))<ACC:
                d,x,y=int(m.group(1)),int(m.group(2)),int(m.group(3))
                if X&128:
                    if y==ID0: L+=["    "+mfma16(d+4,x,ID0,None),"    "+mfma16(d+8,x,ID1,None)]
                    elif y==ID1: L.append("    "+mfma16(d+12,x,ID0,None))
                    else: L.append("    "+mfma16(d,x,y,None))
                if X&256:
                    if y!=ID1: L.append(l)
                if X&512:
                    if y==ID0: L.append(f"    v_mfma_f32_32x32x64_f8f6f4 v[{d}:{d+15}], v[{x}:{x+7}], v[{ID0}:{ID0+7}], v[{d}:{d+15}]")
                    elif y!=ID1: L.append(l)
            else: L.append(l)
        a.l[n0:]=L
    a("KF_LE:")
    if PRIO: a(f"s_bitcmp1_b32 42, s{sCNT}\ns_cbranch_scc1 KF_pr\nKF_pb:")
    a(f"""
s_sub_u32 s{sCNT}, s{sCNT}, 1
s_cbranch_scc0 KF_LOOP
""")
    def loop_tails():
        a(f"KF_lt:\ns_cmp_eq_u32 s{sCNT}, s{sWU}\ns_cbranch_scc0 KF_lb")
        sdma(sA,32768,0,TD)
        a(f"""
s_branch KF_lb
KF_pr:
""")
        if PROF and 'dyn' in PTS:
            a("s_mov_b32 s90, s92\ns_mov_b32 s91, s93\ns_mov_b32 s92, s94\ns_mov_b32 s93, s95\ns_mov_b32 s94, s96\ns_mov_b32 s95, s97")
            stamp(a,8); stamp(a,9,True)
        a(f"""
s_setprio 2
s_cmp_eq_u32 s{sCNT}, 5
s_cbranch_scc1 KF_pb
s_setprio 1
s_cmp_eq_u32 s{sCNT}, 3
s_cbranch_scc1 KF_pb
s_setprio 0
s_branch KF_pb
""")
    for j in range(4): a(f"v_rcp_f32 v{DD+j}, v{DD+j}")
    a("s_nop 0")
    finals(3)
    a("s_nop 1")
    a(mfma32(ACC+16,GP,SS,ACC+16))
    pt('loop')
    if PROF and 'clk' in PTS: stamp(a,7,True)
    for p in range(2):
        if p==1: a("s_nop 0")
        for j in range(4):
            c=ACC+16*p+4*j
            a(f"v_cvt_pk_bf16_f32 v{c}, v{c}, v{c+1}\nv_cvt_pk_bf16_f32 v{c+1}, v{c+2}, v{c+3}")
            if p or j: a(f"v_xor_b32 v1, {(8*p+j)*16}, v{DR}")
            a(f"ds_write_b64 v{1 if (p or j) else DR}, {P2(c)} offset:{AGB}")
    a(f"""
s_and_b32 s{t1}, s{sNF}, 15
s_lshl_b32 s{t1}, s{t1}, 4
s_lshl_b32 s{t0}, s{sNF}, 8
s_or_b32 s{t0}, s{t0}, s{t1}
s_mul_i32 s{t1}, s{sWV}, 272
s_add_u32 s{t1}, s{t1}, {48*256}
v_lshlrev_b32 v3, 2, v{VL}
v_xor_b32 v1, s{t0}, v3
v_xor_b32 v2, s{t1}, v3
s_cmp_eq_u32 s{sHEAD}, 0
s_waitcnt vmcnt(0) lgkmcnt(0)
s_barrier
s_cbranch_scc1 KF_FIN
ds_read_b32 v4, v1 offset:{AGB}
ds_read_b32 v5, v2 offset:{AGB}
s_waitcnt lgkmcnt(0)
v_lshlrev_b32 v6, 16, v4
v_and_b32 v7, 0xffff0000, v4
v_lshlrev_b32 v8, 16, v5
v_and_b32 v9, 0xffff0000, v5
v_pk_add_f32 v[6:7], v[6:7], v[8:9]
v_cvt_pk_bf16_f32 v6, v6, v7
ds_write_b32 v1, v6 offset:{AGB}
KF_FIN:
""")
    OST=GBUF
    tru(WU2,32768)
    srd(a,sX,16,N*256)
    a(f"""
v_and_b32 v1, 15, v{VL}
s_lshl_b32 s{t0}, s{sOT}, 1
v_lshrrev_b32 v2, 5, v{VL}
v_or_b32 v2, s{t0}, v2
v_xor_b32 v2, v2, v1
v_lshlrev_b32 v2, 4, v2
v_lshl_add_u32 v2, v1, 8, v2
v_lshrrev_b32 v3, 1, v{VL}
v_and_or_b32 v2, v3, 8, v2
v_add_u32 v{AR}, {OST}, v2
v_lshlrev_b32 v{AR+1}, 1, v1
""")
    bar('mrg',"s_waitcnt vmcnt(0) lgkmcnt(0)")
    for T in range(4):
        xfrags([T])
        if T==2:
            a("s_waitcnt lgkmcnt(8)")
            for s in range(4): a(mfma16(UA,WU2+4*s,XF+4*s,UA))
    def silu(T):
        c=UA+4*T; e=EE+4*T
        L=[f"v_exp_f32 v{e+i}, v{c+i}" for i in range(4)]
        L+=[f"v_fma_f32 v{e+i}, v{e+i}, s{sL2E}, s{sL2E}" for i in range(4)]
        L+=[f"v_rcp_f32 v{e+i}, v{e+i}" for i in range(4)]
        L+=[f"v_mul_f32 v{e+i}, v{e+i}, v{c+i}" for i in range(4)]
        L+=[f"v_cvt_pk_bf16_f32 v{e}, v{e}, v{e+1}",f"v_cvt_pk_bf16_f32 v{e+1}, v{e+2}, v{e+3}",f"ds_write_b64 v{AR}, {P2(e)} offset:{T*4096}"]
        return L
    for T in range(1,4):
        a(f"s_waitcnt lgkmcnt({4*(3-T)})")
        for s in range(4):
            x,y=(WU2+4*s,XF+16*T+4*s) if T<3 else (XF+16*T+4*s,WU2+4*s)
            a(mfma16(UA+4*T,x,y,UA+4*T))
    for T in range(3):
        for x in silu(T): a(x)
    c=UA+12; e=EE+12
    a(f"""
v_exp_f32 v{e}, v{c}
s_add_u32 s{t0}, s{sK}, {48*256}
v_fma_f32 v{e}, v{e}, s{sL2E}, s{sL2E}
v_rcp_f32 v{e}, v{e}
s_lshl_b32 s{t0}, s{t0}, 8
v_mul_f32 v{e}, v{e}, v{c}
s_lshl_b32 s{t1}, s{sOT}, 5
s_add_u32 s{t0}, s{t0}, s{t1}
v_cvt_pk_bf16_f32 v{e}, v{e}, v{e}
s_mov_b32 exec_lo, 0xffff
s_mov_b32 exec_hi, 0
buffer_store_short v{e}, v{AR+1}, {SR4(sX)}, s{t0} offen{OSC}
s_mov_b64 exec, -1
v_lshlrev_b32 v1, 4, v0
v_add_u32 v1, {OST}, v1
v_lshrrev_b32 v2, 4, v0
v_xor_b32 v3, v2, v0
v_and_b32 v3, 15, v3
v_lshlrev_b32 v3, 4, v3
v_lshl_add_u32 v3, v2, 16, v3
s_lshl_b32 s{t0}, s{sK}, 8
s_add_u32 s{t1}, s{t0}, {32*65536}
s_waitcnt lgkmcnt(0)
s_barrier
ds_read_b128 {P4(A)}, v1
s_cmp_lt_u32 s{sWV}, 4
s_cbranch_scc0 KF_e1
ds_read_b128 {P4(A+4)}, v1 offset:8192
s_waitcnt lgkmcnt(0)
buffer_store_dwordx4 {P4(A+4)}, v3, {SR4(sX)}, s{t1} offen{OSC}
KF_e1:
s_waitcnt lgkmcnt(0)
buffer_store_dwordx4 {P4(A)}, v3, {SR4(sX)}, s{t0} offen{OSC}
""")
    a(f"""
s_or_b32 s{t0}, s2, s{sWV}
s_cbranch_scc1 KF_e2
v_mov_b32 v1, s{sNON}
v_mov_b32 v2, 0
s_mov_b64 exec, 1
global_store_dword v2, v1, s[20:21]
KF_e2:
""")
    if PROF: a("s_waitcnt vmcnt(0)")
    stamp(a,10); stamp(a,11,True)
    stamp_out(a,1,sWV)
    a("KF_END:\ns_endpgm")
    loop_tails()
    hist_retry(8,"KT_h",True)
    a("KF_CEND:")
    SV=ACC; AGs=SV+8; RS_=SV+16
    a(f"""
KF_SLOW:
s_setprio 0
s_cmp_ge_u32 s{sWV}, 4
s_cselect_b32 s{sTOT}, 0, s{sTOT}
v_mov_b32 v1, s{sTOT}
ds_max_u32 v{VZ}, v1 offset:{mMX}
v_mov_b32 v{SS}, 0
v_mov_b32 v{SS+1}, 0
v_mov_b32 v{SS+2}, 0
v_mov_b32 v{SS+3}, 0
s_mov_b32 s{sLO}, 0
s_mov_b32 s{sLB}, s{sBUF}
s_sub_u32 s{t0}, s{sWV}, s{sT0}
s_lshl_b32 s{t0}, s{t0}, 4
v_add_u32 v{SV+4}, s{t0}, v{RB}
v_add_u32 v{SV+5}, s{t0}, v{SB}
s_lshl_b32 s{t0}, s{sWV}, 4
v_sub_u32 v{SV+6}, s{t0}, v{OHC}
v_and_b32 v{SV+7}, 31, v{VL}
v_lshlrev_b32 v{SV+7}, 2, v{SV+7}
v_lshlrev_b32 v1, 4, v0
""")
    for j in range(3): a(f"ds_write_b128 v1, {P4(SS)} offset:{AGG+j*8192}")
    a(f"""
v_lshlrev_b32 v1, 4, v{VL}
ds_write_b128 v1, {P4(SS)} offset:{AGG+3*8192}
s_waitcnt vmcnt(0) lgkmcnt(0)
s_barrier
ds_read_b32 v1, v{VZ} offset:{mMX}
s_waitcnt lgkmcnt(0)
v_readfirstlane_b32 s{sRND}, v1
KF_SR:
s_cmp_lt_u32 s{sLO}, s{sRND}
s_cbranch_scc0 KF_SE
s_barrier
v_lshlrev_b32 v1, 2, v{VL}
v_lshlrev_b32 v2, 8, v{VL}
ds_write_b32 v1, v2
s_waitcnt lgkmcnt(0)
s_barrier
s_cmp_ge_u32 s{sWV}, 4
s_cbranch_scc1 KF_S1
s_movk_i32 s{t3}, 256
""")
    expand("KF_x")
    a(f"s_sub_u32 s{t1}, s{sTOT}, s{sLO}")
    reclist(4)
    recload(4,"KF_rl")
    for i in range(4): a(f"s_mov_b64 {S2(sM+8+2*i)}, {S2(sM+2*i)}")
    hist(4,"KF_h",0,False)
    a("s_waitcnt lgkmcnt(0)")
    for i in range(4):
        a(f"""
v_mov_b32 v{RS_+4*i}, v{RC+4*i}
v_mov_b32 v{RS_+4*i+1}, v{RC+4*i+1}
v_mov_b32 v{RS_+4*i+2}, v{RC+4*i+2}
v_lshlrev_b32 v1, 6, v{RC+4*i+3}
v_sub_u32 v1, v{RK+i}, v1
v_cndmask_b32 v{RS_+4*i+3}, -1, v1, {S2(sM+8+2*i)}
""")
    a(f"""
KF_S1:
s_mov_b32 s{sHEAD}, 0                    ; 256*k
KF_SK:
s_waitcnt lgkmcnt(0)
s_barrier
s_cmp_ge_u32 s{sWV}, 4
s_cbranch_scc1 KF_S2
s_mov_b32 s{t1}, {EB}
""")
    for i in range(4):
        a(f"""
v_subrev_u32 v1, s{sHEAD}, v{RS_+4*i+3}
v_lshrrev_b32 v2, 19, v{RS_+4*i+2}
v_lshl_add_u32 v2, v2, 8, v1
v_lshl_add_u32 v3, v2, 1, s{t1}
v_cmpx_gt_u32 vcc, 0x100, v1
ds_write_b32 v2, v{RS_+4*i+2} offset:{WB}
ds_write_b64 v3, {P2(RS_+4*i)}
s_mov_b64 exec, -1
""")
    a("KF_S2:")
    scan(True)
    a(f"s_cmp_lg_u64 {S2(t2)}, 0\ns_cselect_b32 s{sFLAG}, 1, 0")
    fill("KFs",True,8)
    a(f"""
s_add_u32 s{sNT}, s{t0}, 127
s_lshr_b32 s{sNT}, s{sNT}, 7
s_waitcnt lgkmcnt(0)
s_barrier
v_mov_b32 v{RB}, v{SV+4}
v_mov_b32 v{SB}, v{SV+5}
v_mov_b32 v{SV+12}, v{SV+6}
s_mov_b32 s{sI}, s{sWV}
KF_SL:
s_cmp_lt_u32 s{sI}, s{sNT}
s_cbranch_scc0 KF_SN
""")
    rd_ga(0); rd_gg(0)
    for j in range(4): a(f"ds_read_u16 v{AGs+j}, v{SV+12} offset:{GL+2*j}")
    a("s_waitcnt lgkmcnt(0)")
    rd_y(); rd_idx()
    a("s_waitcnt lgkmcnt(0)")
    dma()
    for j in range(4): a(f"v_lshrrev_b32 v{AGs+j}, 8, v{AGs+j}")
    a(f"""
v_readfirstlane_b32 s{sQ}, v{AGs}
s_nop 3
s_and_b32 s{sQ}, s{sQ}, -2
s_lshl_b32 s{sQ}, s{sQ}, 3
s_sub_u32 s{sW8}, 0, s{sQ}
v_lshlrev_b32 v{OH2}, 1, v{OHC}
{win}
{rd_b}
{rd_a3}
""")
    for j in range(4): a(f"v_lshl_add_u32 v{AGs+j}, v{AGs+j}, 9, v{SV+7}")
    a("s_waitcnt vmcnt(0) lgkmcnt(0)")
    for t in range(8): a(rd_a(t))
    a("s_waitcnt lgkmcnt(0)")
    for q in range(4):
        z=Z[0]
        a(mfma32(z,AQ(q),B3+4*q,None)); a(mfma32(z,A+8*q,ID0,z)); a(mfma32(z,A+8*q+4,ID1,z))
        a("s_nop 15")
        for r in range(16): a(f"v_exp_f32 v{EE+r}, v{z+r}")
        for r in range(16): a(f"v_add_f32 v{EE+r}, 1.0, v{EE+r}")
        for r in range(16): a(f"v_rcp_f32 v{EE+r}, v{EE+r}")
        for m in range(4):
            for u in range(2):
                for par in range(2):
                    r=8*u+2*m+par; g=GP+2*u+par
                    a(f"v_mul_f32 v{g}, v{z+r}, v{EE+r}" if m==0 else f"v_fmac_f32 v{g}, v{z+r}, v{EE+r}")
        for j in range(4): a(f"ds_add_f32 v{AGs+j}, v{GP+j} offset:{AGG+q*128}")
        a("s_waitcnt lgkmcnt(0)")
    a(f"""
v_add_u32 v{SB}, 128, v{SB}
v_add_u32 v{RB}, 128, v{RB}
v_add_u32 v{SV+12}, 128, v{SV+12}
s_add_u32 s{sI}, s{sI}, 8
s_branch KF_SL
KF_SN:
s_add_u32 s{sHEAD}, s{sHEAD}, 256
s_cmp_lg_u32 s{sFLAG}, 0
s_cbranch_scc1 KF_SK
s_add_u32 s{sLO}, s{sLO}, 256
s_branch KF_SR
KF_SE:
s_cmp_ge_u32 s{sWV}, 4
s_cbranch_scc0 KF_SE2
""")
    sdma(sA,32768,0,TD)
    a(f"""
KF_SE2:
v_lshlrev_b32 v1, 4, v0
v_lshrrev_b32 v2, 5, v0
s_waitcnt vmcnt(0) lgkmcnt(0)
s_barrier
""")
    for j in range(4): a(f"ds_read_b128 {P4(A+4*j)}, v1 offset:{AGG+j*8192}")
    a(f"""
v_bfe_u32 v3, v0, 1, 4
v_xor_b32 v3, v3, v2
v_lshlrev_b32 v3, 4, v3
v_lshl_add_u32 v3, v2, 8, v3
v_and_b32 v1, 1, v0
v_lshl_add_u32 v3, v1, 3, v3
s_waitcnt lgkmcnt(0)
s_barrier
""")
    for j in range(4):
        a(f"v_cvt_pk_bf16_f32 v{A+4*j}, v{A+4*j}, v{A+4*j+1}\nv_cvt_pk_bf16_f32 v{A+4*j+1}, v{A+4*j+2}, v{A+4*j+3}")
        a(f"ds_write_b64 v3, {P2(A+4*j)} offset:{AGB+j*4096}")
    a("s_branch KF_FIN")
    hist_retry(4,"KF_h",False)
    return a.text()

if __name__=='__main__':
    import sys
    nm='standalone__mpnn_edge_mlp__graph_kernel'
    hdr=open('standalone__mpnn_edge_mlp__graph.s.ref').read().split('; Override')[0]
    out=hdr+(f"; @launch kernel={nm} grid=(256,1,1) block=(512,1,1) lds={KF_LDS}\n" if os.environ.get('LISTF') else f"; @launch grid=(256,1,1) block=(512,1,1) lds={KF_LDS}\n")
    out+='.amdgcn_target "amdgcn-amd-amdhsa--gfx950"\n.text\n'
    out+=f".globl {nm}\n.p2align 8\n.type {nm},@function\n"+gen_kf(nm)
    out+='.section .rodata,"a"\n.p2align 6\n'+kd(nm,256)
    open(sys.argv[1],'w').write(out)
```

```python
import sys
src=open('o1.s').read()
def kd(n): return f'''.p2align 6
.amdhsa_kernel {n}
  .amdhsa_next_free_vgpr 64
  .amdhsa_next_free_sgpr 48
  .amdhsa_accum_offset 64
  .amdhsa_group_segment_fixed_size 0
  .amdhsa_kernarg_size 72
  .amdhsa_user_sgpr_count 2
  .amdhsa_user_sgpr_kernarg_segment_ptr 1
  .amdhsa_system_sgpr_workgroup_id_x 1
.end_amdhsa_kernel
'''
def mk(name,fl,which,off):
    L=src.split('\n')
    il=[i for i,l in enumerate(L) if l.startswith('; @launch kernel=')][0]
    L.insert(il+1,'; @launch kernel=spin_kernel grid=(1,1,1) block=(64,1,1) lds=0')
    L.insert(il,'; @launch kernel=probe_kernel grid=(256,1,1) block=(256,1,1) lds=131072')
    t='\n'.join(L)
    b=f'''.globl probe_kernel
.p2align 8
.type probe_kernel,@function
probe_kernel:
    s_cmp_ge_u32 s2, 256
    s_cbranch_scc1 PR_END
    s_load_dwordx4 s[4:7], s[0:1], 56
    s_mul_i32 s3, s2, 24576
    s_add_u32 s3, s3, {off}
    v_lshlrev_b32 v1, 4, v0
    v_add_u32 v1, s3, v1
    s_add_u32 s9, s2, 37
    s_and_b32 s9, s9, 255
    s_mul_i32 s9, s9, 24576
    s_add_u32 s9, s9, {off}
    v_lshlrev_b32 v2, 4, v0
    v_add_u32 v2, s9, v2
    s_waitcnt lgkmcnt(0)
    s_memrealtime s[10:11]
    s_waitcnt lgkmcnt(0)
'''
    for j in range(6): b+=f"    global_store_dwordx4 v1, v[4:7], s[6:7]{fl}\n    v_add_u32 v1, 4096, v1\n"
    if fl=='': b+="    s_waitcnt vmcnt(0)\n    buffer_wbl2 sc1\n"
    b+='''    s_waitcnt vmcnt(0)
    s_memrealtime s[12:13]
    s_waitcnt lgkmcnt(0)
PR_W:
    s_memrealtime s[14:15]
    s_waitcnt lgkmcnt(0)
    s_sub_u32 s16, s14, s10
    s_cmp_lt_u32 s16, 600
    s_cbranch_scc1 PR_W
'''
    for j in range(6): b+=f"    global_load_dwordx4 v[{8+4*j}:{11+4*j}], v2, s[6:7] sc1\n    v_add_u32 v2, 4096, v2\n"
    b+=f'''    s_waitcnt vmcnt(0)
    s_memrealtime s[16:17]
    s_waitcnt lgkmcnt(0)
    s_sub_u32 s12, s12, s10
    s_sub_u32 s16, s16, s14
    v_mov_b32 v3, 0
    v_writelane_b32 v3, s10, 0
    v_writelane_b32 v3, s12, 1
    v_writelane_b32 v3, s16, 2
    v_lshlrev_b32 v1, 2, v0
    v_cmp_gt_u32 vcc, 3, v0
    s_and_saveexec_b64 s[20:21], vcc
    s_cbranch_execz PR_END
    global_atomic_umax v1, v3, s[4:5]
PR_END:
    s_endpgm
.globl spin_kernel
.p2align 8
.type spin_kernel,@function
spin_kernel:
    s_cmp_ge_u32 s2, 1
    s_cbranch_scc1 SP_END
    s_load_dwordx2 s[4:5], s[0:1], 56
    s_waitcnt lgkmcnt(0)
    s_sub_u32 s4, s4, 1024
    s_subb_u32 s5, s5, 0
    s_load_dwordx4 s[16:19], s[4:5], 0
    s_waitcnt lgkmcnt(0)
    s_mul_i32 s8, s{16+which}, 10
    s_min_u32 s8, s8, 20000
    s_add_u32 s8, s8, 6000
SP_L:
    s_memrealtime s[10:11]
    s_waitcnt lgkmcnt(0)
    s_sub_u32 s12, s10, s16
    s_cmp_lt_u32 s12, s8
    s_cbranch_scc1 SP_L
SP_END:
    s_endpgm
.section .rodata,"a"'''
    t=t.replace('.section .rodata,"a"',b)+kd('probe_kernel')+kd('spin_kernel')
    open(name,'w').write(t)
mk('q0.s',' sc1',1,0x4000000)
mk('q1.s',' sc1',2,0x4000000)
mk('q2.s','',1,0x4000000)
mk('q3.s','',2,0x4000000)
mk('q4.s',' sc0 sc1',1,0x4000000)
mk('q5.s',' sc1 nt',1,0x4000000)
```

```python
import sys
src=open('o1.s').read()
def kd(n): return f'''.p2align 6
.amdhsa_kernel {n}
  .amdhsa_next_free_vgpr 64
  .amdhsa_next_free_sgpr 48
  .amdhsa_accum_offset 64
  .amdhsa_group_segment_fixed_size 0
  .amdhsa_kernarg_size 72
  .amdhsa_user_sgpr_count 2
  .amdhsa_user_sgpr_kernarg_segment_ptr 1
  .amdhsa_system_sgpr_workgroup_id_x 1
.end_amdhsa_kernel
'''
def mk(name,karg,which,off,stride):
    L=src.split('\n')
    il=[i for i,l in enumerate(L) if l.startswith('; @launch kernel=')][0]
    L.insert(il+1,'; @launch kernel=spin_kernel grid=(1,1,1) block=(64,1,1) lds=0')
    L.insert(il,'; @launch kernel=probe_kernel grid=(256,1,1) block=(256,1,1) lds=131072')
    t='\n'.join(L)
    b=f'''.globl probe_kernel
.p2align 8
.type probe_kernel,@function
probe_kernel:
    s_cmp_ge_u32 s2, 256
    s_cbranch_scc1 PR_END
    s_load_dwordx2 s[4:5], s[0:1], 56
    s_load_dwordx2 s[6:7], s[0:1], {karg}
    s_and_b32 s3, s2, 7
    s_lshl_b32 s3, s3, 5
    s_lshr_b32 s9, s2, 3
    s_or_b32 s3, s3, s9
    s_mul_i32 s3, s3, {stride//256//16*16}
    s_add_u32 s3, s3, {off}
    v_mul_u32_u24 v2, {stride}, v0
    v_add_u32 v2, s3, v2
    s_waitcnt lgkmcnt(0)
    s_memrealtime s[10:11]
    s_waitcnt lgkmcnt(0)
    global_load_dwordx4 v[8:11], v2, s[6:7] sc1
    s_waitcnt vmcnt(0)
    s_memrealtime s[12:13]
    s_waitcnt lgkmcnt(0)
PR_W:
    s_memrealtime s[14:15]
    s_waitcnt lgkmcnt(0)
    s_sub_u32 s16, s14, s10
    s_cmp_lt_u32 s16, 600
    s_cbranch_scc1 PR_W
    global_load_dwordx4 v[8:11], v2, s[6:7] sc1
'''
    b+=f'''    s_waitcnt vmcnt(0)
    s_memrealtime s[16:17]
    s_waitcnt lgkmcnt(0)
    s_sub_u32 s12, s12, s10
    s_sub_u32 s16, s16, s14
    v_mov_b32 v3, 0
    v_writelane_b32 v3, s10, 0
    v_writelane_b32 v3, s12, 1
    v_writelane_b32 v3, s16, 2
    v_lshlrev_b32 v1, 2, v0
    v_cmp_gt_u32 vcc, 3, v0
    s_and_saveexec_b64 s[20:21], vcc
    s_cbranch_execz PR_END
    global_atomic_umax v1, v3, s[4:5]
PR_END:
    s_endpgm
.globl spin_kernel
.p2align 8
.type spin_kernel,@function
spin_kernel:
    s_cmp_ge_u32 s2, 1
    s_cbranch_scc1 SP_END
    s_load_dwordx2 s[4:5], s[0:1], 56
    s_waitcnt lgkmcnt(0)
    s_sub_u32 s4, s4, 1024
    s_subb_u32 s5, s5, 0
    s_load_dwordx4 s[16:19], s[4:5], 0
    s_waitcnt lgkmcnt(0)
    s_mul_i32 s8, s{16+which}, 10
    s_min_u32 s8, s8, 20000
    s_add_u32 s8, s8, 6000
SP_L:
    s_memrealtime s[10:11]
    s_waitcnt lgkmcnt(0)
    s_sub_u32 s12, s10, s16
    s_cmp_lt_u32 s12, s8
    s_cbranch_scc1 SP_L
SP_END:
    s_endpgm
.section .rodata,"a"'''
    t=t.replace('.section .rodata,"a"',b)+kd('probe_kernel')+kd('spin_kernel')
    open(name,'w').write(t)
mk('q0.s',64,1,0x4000000,25600)
mk('q1.s',64,2,0x4000000,25600)
mk('q2.s',64,1,0x4000000,12288)
mk('q3.s',0,1,0,12288)
mk('q4.s',0,2,0,12288)
mk('q5.s',48,1,0,12288)
```

```python
from common import *
X=int(os.environ.get('X','0'))
PRIO=int(os.environ.get('PRIO','1'))
DSP=[int(c,36) for c in os.environ.get('DSP','00000000')]
def EV(n,d): return int(os.environ.get(n,d))
TPOS=EV('TPOS',6); PFP=EV('PFP',0); XORD=EV('XORD',1); WUI=EV('WUI',2); FLP=EV('FLP',1); FSL=EV('FSL',8); TE=EV('TE',0); W1N=EV('W1N',5); GP_=EV('GP',1); W2N=EV('W2N',8); UL=EV('UL',1); WU1L=EV('WU1L',0); W1E=EV('W1E',0); ZL=EV('ZL',0); FST=EV('FST',0); UNP=EV('UNP',0); TLB=EV('TLB',0); DBGP=EV('DBGP',0); ALN=EV('ALN',0); PFH=EV('PFH',0); XP=EV('XP',0); PFI=EV('PFI',0); SWW=EV('SWW',1)
PTS=os.environ.get('PTS','b1,bS,tp,pfl,rl,b2,b3,pro').split(',')
SC=os.environ.get('LSC',' sc1')
SSC=os.environ.get('SSC',' sc1')
OSC=os.environ.get('OSC',' sc1')
GSC=os.environ.get('GSC',' sc1')
NPROD=250; EP=1600; RST=EP*16+128
F_P=0x1000; F_REC=0x400000; F_TBL=0xB00000; F_FLG=0xB90000; F_SIZE=0xBA0000
CNT=0; MISC=256; OH=400; GL=928; BT=1872; STB=2144; RS=944
mSLOW=MISC; mS=MISC+4; mGX=MISC+8; mGP=MISC+12; mC3=MISC+16; mPD=MISC+20; mSL=MISC+24; mMX=MISC+28; mPI=MISC+32; mH=MISC+36; mNT=MISC+40; mW=MISC+44; mE=MISC+48
AGB=17408
W3L=AGB+56*256
Q2=AGB+16384; QS=52*128
S1=Q2; ERAW=Q2+12800
WB=Q2+4*QS; NULLG=49*256; EB=WB+NULLG+16
HIST=WB; PSC=WB+2048
GBUF=98304
KF_LDS=GBUF+65536
assert EB+2*NULLG+32<=GBUF and STB+16*RS<=AGB
AGG=STB
ONE2=0x3F803F80
NULLW2=0xFFFF|(512<<16)
CAPT=58
ID0=4; ID1=8; B3=12; A=28; Z=[60,76]; A3=92; EE=96; NN=112; DD=116; GP=120; SS=124
IDX=128; AR=144; RB=152; SB=153; SA=154; VY=155; OHC=156; VL=157; WT=158; DR=159
ACC=160; WU2=192; UA=208; WF=160; WU1=176; QA=224; RC=96; XF=28; GA=192
A6=244; QAD=250; QC=251; SA2=224; SI2=226; OH2=228; GA0=232; YA=234; EA=235; M4=236; EC=237; VZ=238; PO=92; TRU=240; TD=241; TC=242; TO=243; RK=244; FA=252
sP=24; sX=28; sA=32; sR=36; sM=40
sWV=56; sK=57; sNN=58; sI=59; sNT=60; sBUF=61; sQ=62; sW8=63; sCNT=64; sT0=65
sL2E=66; sINC=68; sRND=70; sTOT=71; sNON=72; sBUD=73; sW4=74; sLB=75
sWU=3; sW4K=22; sOT=23; sFLAG=76; sLO=77; sMA=78; sQ2=80; sHEAD=82; sNF=83
t0,t1,t2,t3=84,85,86,87
BUDGET=100000

def mfma32(d,x,y,c): return f"v_mfma_f32_32x32x16_bf16 v[{d}:{d+15}], v[{x}:{x+3}], v[{y}:{y+3}], "+("0" if c is None else f"v[{c}:{c+15}]")
def mfma16(d,x,y,c): return f"v_mfma_f32_16x16x32_bf16 v[{d}:{d+3}], v[{x}:{x+3}], v[{y}:{y+3}], "+("0" if c is None else f"v[{c}:{c+3}]")
def P2(r): return f"v[{r}:{r+1}]"
def P4(r): return f"v[{r}:{r+3}]"
def S2(r): return f"s[{r}:{r+1}]"
def SR4(r): return f"s[{r}:{r+3}]"

def gen_kf(name):
    a=Asm()
    def pt(n):
        if PROF and n in PTS: stamp(a,2+PTS.index(n))
    def ret(n):
        if PROF and n in PTS: a(f"s_sub_u32 s{90+PTS.index(n)}, {BUDGET}, s{sBUD}\ns_mul_i32 s{90+PTS.index(n)}, s{90+PTS.index(n)}, 100")
    def bar(n,w="s_waitcnt lgkmcnt(0)"):
        a(w+"\ns_barrier"); pt(n)
    def gsync(n,lab,off,target,va,vt,pre=None):
        if pre: a(pre)
        a(f"""
v_mov_b32 v{vt}, 1
s_mov_b64 exec, 1
ds_add_u32 v{va}, v{vt} offset:{off}
s_mov_b64 exec, -1
{lab}:
ds_read_b32 v{vt}, v{va} offset:{off}
s_waitcnt lgkmcnt(0)
v_readfirstlane_b32 s{t1}, v{vt}
s_and_b32 s{t1}, s{t1}, 255
s_cmp_lt_u32 s{t1}, {target}
s_cbranch_scc1 {lab}
""")
        pt(n)
    def gwait(lab,off,target,va,vt):
        a(f"""
{lab}:
ds_read_b32 v{vt}, v{va} offset:{off}
s_waitcnt lgkmcnt(0)
v_readfirstlane_b32 s{t1}, v{vt}
s_and_b32 s{t1}, s{t1}, 255
s_cmp_lt_u32 s{t1}, {target}
s_cbranch_scc1 {lab}
""")
    def consts():
        srd(a,sP,20,N,off=F_P-3072,stride=256)
        srd(a,sR,20,F_SIZE)
        a(f"""
s_cmp_lt_u32 s{sK}, {N-256*48}
s_cselect_b32 s{sNN}, 49, 48
s_mov_b32 s{sL2E}, {hex(LOG2E_NEG)}
s_mov_b32 s{sL2E+1}, {hex(LOG2E_NEG)}
s_mov_b32 s{sINC}, 16
s_mov_b32 s{sINC+1}, 16
s_mov_b32 s{sMA}, 0x0000ffff
s_mov_b32 s{sMA+1}, 0x0000ffff
s_mov_b32 s{sQ2}, {Q2}
s_mov_b32 s{sBUD}, {BUDGET}
v_lshrrev_b32 v2, 5, v{VL}              ; h
; g = 4 b2 + 2 b4 + b0 ; m = 2 b3 + b1 ; slot = 16 b2 + 4 m + (g&3)
v_lshrrev_b32 v1, 3, v{VL}
v_and_b32 v1, 2, v1
v_and_or_b32 v1, v{VL}, 5, v1           ; g
v_lshlrev_b32 v{RB}, 1, v1
v_lshlrev_b32 v3, 1, v{VL}
v_and_b32 v3, 4, v3
v_and_or_b32 v{M4}, v{VL}, 8, v3        ; 4m
v_lshlrev_b32 v{EC}, 1, v{M4}
v_add_u32 v{EC}, {EB}, v{EC}
v_lshlrev_b32 v3, 2, v1
v_and_or_b32 v3, v3, 16, v{M4}
v_and_or_b32 v3, v1, 3, v3              ; slot
v_lshl_add_u32 v3, v3, 8, s{sBUF}
v_and_b32 v{WT}, 15, v{VL}              ; n / c16
v_xor_b32 v1, v2, v{WT}
v_lshl_add_u32 v{AR}, v1, 4, v3
""")
        for t in range(1,8): a(f"v_xor_b32 v{AR+t}, {32*t}, v{AR}")
        a(f"""
v_mul_i32_i24 v{OHC}, -8, v2
v_mul_u32_u24 v{SA}, {RS}, v{WT}
v_and_b32 v1, 1, v{VL}
v_lshlrev_b32 v1, 4, v1
v_mov_b32 v3, 0x3f80
v_lshlrev_b32 v1, v1, v3
""")
        for s in range(2):
            for j in range(4):
                lo=3<<(16*s+2*j); hi=(3<<(16*s+8+2*j))
                a(f"s_mov_b32 vcc_lo, {hex(lo)}\ns_mov_b32 vcc_hi, {hex(hi)}\nv_cndmask_b32 v{ID0+4*s+j}, 0, v1, vcc")
        a(f"""
v_lshrrev_b32 v2, 4, v{VL}              ; a / g
v_lshlrev_b32 v{SB}, 1, v2
v_and_b32 v1, 1, v2
v_xor_b32 v1, v1, v{WT}
v_lshlrev_b32 v1, 4, v1
""")
        for i in range(8): a(f"v_xor_b32 v{IDX+2*i+1}, {(8*((i>>1)&1)+4*(i>>2)+2*(i&1))*16+3072-1024*(i&3)}, v1")
        a(f"v_xor_b32 v3, v2, v{WT}\nv_lshlrev_b32 v3, 4, v3\nv_lshl_add_u32 v3, v{WT}, 8, v3\nv_add_u32 v{FA}, {AGB}, v3")
        for s in range(1,4): a(f"v_xor_b32 v{FA+s}, {64*s}, v{FA}")
        a(f"""
s_lshl_b32 s{t0}, s{sW4}, 13
s_add_u32 s{t0}, s{t0}, {GBUF}
s_lshr_b32 s{t1}, s{sWV}, 2
s_lshl_b32 s{sOT}, s{sW4}, 1
s_or_b32 s{sOT}, s{sOT}, s{t1}
v_lshrrev_b32 v1, 2, v{WT}
v_lshl_add_u32 v1, v2, 3, v1
v_lshl_add_u32 v{DR}, v1, 6, s{t0}
v_xor_b32 v2, s{t1}, v2
v_and_b32 v2, 1, v2
v_and_b32 v3, 3, v{VL}
v_lshl_add_u32 v{TRU}, v2, 5, v{DR}
v_lshl_add_u32 v{TRU}, v3, 3, v{TRU}
""")
    def tagh():
        a(f"""
s_mul_i32 s{sNON}, s{sNON}, 0x9E3779B1
s_add_u32 s{sNON}, s{sNON}, 0x7F4A7C15
s_lshr_b32 s{t1}, s{sNON}, 15
s_xor_b32 s{sNON}, s{sNON}, s{t1}
""")
    def vyc():
        a(f"""
v_lshrrev_b32 v1, 4, v{VL}
v_and_b32 v1, 2, v1
v_xor_b32 v1, v1, v{VL}
v_and_b32 v1, 3, v1
v_lshlrev_b32 v1, 4, v1
v_lshrrev_b32 v2, 2, v{VL}
v_lshl_or_b32 v{VY}, v2, 8, v1
""")
    def trfrag(dst,addr,off,ks,hs):
        for s in range(4):
            a(f"ds_read_b64_tr_b16 {P2(dst+4*s)}, v{addr} offset:{off+s*ks}\nds_read_b64_tr_b16 {P2(dst+4*s+2)}, v{addr} offset:{off+s*ks+hs}")
    def tru(dst,off): trfrag(dst,TRU,off,2048,256)
    def sdma(sr,moff,loff=0,v=VY,js=range(8)):
        a(f"s_lshl_b32 s{t0}, s{sW4}, 6")
        for j in js:
            a(f"s_add_u32 m0, s{sBUF}, {loff+j*1024}\ns_add_u32 s{t1}, s{t0}, {moff+j*4096}\nbuffer_load_dwordx4 v{v}, {SR4(sr)}, s{t1} offen lds")
    def xfrags(Ts):
        for T in Ts:
            for s in range(4): a(f"ds_read_b128 {P4(XF+16*T+4*s)}, v{FA+s} offset:{T*4096}")
    def ugemm():
        for T in range(4):
            for s in range(4):
                x,y=(WU1+4*s,XF+16*T+4*s) if T<3 else (XF+16*T+4*s,WU1+4*s)
                a(mfma16(UA+4*T,x,y,None if s==0 else UA+4*T))
    def uscale():
        for j in range(7): a(f"v_pk_mul_f32 {P2(UA+2*j)}, {P2(UA+2*j)}, {S2(sL2E)}")
    def w3rd():
        a(f"v_lshlrev_b32 v1, 3, v{VL}")
        for q in range(4): a(f"ds_read_b64 {P2(B3+4*q+2*(q&1))}, v1 offset:{W3L+q*512}")
    F=A3
    def scan(slow):
        a(f"""
v_lshlrev_b32 v1, 2, v{VL}
ds_read_b32 v{F}, v1
v_cmp_gt_u32 vcc, s{sNN}, v{VL}
v_lshlrev_b32 v{F+1}, 8, v{VL}
s_waitcnt lgkmcnt(0)
v_sub_u32 v{QA}, v{F}, v{F+1}
""")
        if slow:
            a(f"""
s_movk_i32 s{t1}, 256
v_subrev_u32 v{QA}, s{sHEAD}, v{QA}
v_cmp_lt_i32 {S2(t2)}, s{t1}, v{QA}
v_med3_i32 v{QA}, v{QA}, 0, s{t1}
v_add_u32 v{F}, v{F+1}, v{QA}
""")
        a(f"""
v_add_u32 v3, 12, v{QA}
v_and_b32 v3, -16, v3
v_max_u32 v3, 80, v3
v_cndmask_b32 v3, 0, v3, vcc
v_mov_b32 v2, v3
""")
        dpp_scan(a,"v_add_u32",[2])
        a(f"""
v_readlane_b32 s{t0}, v2, 63
v_sub_u32 v2, v2, v3
""")
    def fill(lab,slow,nw):
        a(f"""
s_lshl_b32 s{t1}, s{sWV}, 4
v_add_u32 v{QA+1}, s{t1}, v2
v_lshrrev_b32 v{QA+1}, 3, v{QA+1}       ; 2*(G0+w)
v_add_u32 v{F+1}, s{t1}, v{F+1}         ; 256n+16w
v_subrev_u32 v{QA+2}, s{t1}, v3         ; g16-16w
""")
        if not slow: a(f"v_add_u32 v{QA+3}, v{QA+1}, v{SA}\nv_mov_b32 v{F+3}, 0x3f80\nds_write_b32 v1, v2 offset:{BT}")
        for k in range(16//nw):
            a(f"v_cmpx_lt_i32 vcc, {16*nw*k}, v{QA+2}\nds_write_b16 v{QA+1}, v{F+1+(k&1)} offset:{GL+2*nw*k}")
            if k+1<16//nw: a(f"v_add_u32 v{F+1+((k+1)&1)}, {16*nw}, v{F+1+(k&1)}")
            if not slow: a(f"ds_write_b16 v{QA+3}, v{F+3} offset:{STB+2*nw*k}")
        a(f"""
s_mov_b64 exec, -1
s_lshl_b32 s{t1}, s{sWV}, 2
v_sub_u32 v{QA+2}, v3, v{QA}
v_add_u32 v{F}, s{t1}, v{F}
v_subrev_u32 v{QA+2}, s{t1}, v{QA+2}    ; pad4 - 4w
s_mov_b32 s{t1}, {EB}
v_mov_b32 v{QA+4}, 0
v_mov_b32 v{QA+5}, 0
v_mov_b32 v{QA+6}, {hex(NULLW2)}
v_lshl_add_u32 v{QA+7}, v{F}, 1, s{t1}
""")
        for k in range(-(-20//nw)):
            a(f"v_cmpx_lt_i32 vcc, {4*nw*k}, v{QA+2}")
            if k==1: a(f"s_cbranch_vccz {lab}p")
            a(f"ds_write_b32 v{F}, v{QA+6} offset:{WB+4*nw*k}\nds_write_b64 v{QA+7}, {P2(QA+4)} offset:{8*nw*k}")
        a(f"""
{lab}p:
s_mov_b64 exec, -1
s_cmp_eq_u32 s{sWV}, 3
s_cbranch_scc0 {lab}q
s_lshr_b32 s{t1}, s{t0}, 3
v_lshl_add_u32 v{QA+1}, v{VL}, 1, s{t1}
v_mov_b32 v{QA+2}, {NULLG}
v_add_u32 v{QA+3}, {NULLG}, v1
v_lshlrev_b32 v{QA+7}, 1, v1
v_add_u32 v{QA+7}, {EB+2*NULLG}, v{QA+7}
s_mov_b64 exec, 0xff
ds_write_b16 v{QA+1}, v{QA+2} offset:{GL}
s_mov_b64 exec, 15
ds_write_b32 v{QA+3}, v{QA+6} offset:{WB}
ds_write_b64 v{QA+7}, {P2(QA+4)}
s_mov_b64 exec, -1
{lab}q:
""")
    def expand(lab):
        a(f"""
v_subrev_u32 v1, s{sLO}, v{TO}
v_add_u32 v2, v1, v{TC}
v_med3_i32 v1, v1, 0, s{t3}
v_med3_i32 v2, v2, 0, s{t3}
v_sub_u32 v2, v2, v1
v_lshl_add_u32 v1, v1, 2, s{sLB}
{lab}:
""")
        for j in range(16):
            a(f"v_cmpx_lt_i32 vcc, {j}, v2\nds_write_b32 v1, v{TD} offset:{4*j}")
        a(f"""
v_add_u32 v2, -16, v2
v_add_u32 v1, 64, v1
v_cmp_lt_i32 vcc, 0, v2
s_cmp_lg_u64 vcc, 0
s_cbranch_scc1 {lab}
s_mov_b64 exec, -1
""")
    def rl1(i): return f"buffer_load_dwordx4 {P4(RC+4*i)}, v{RK+i}, {SR4(sR)}, {'0' if i<4 else 's'+str(sQ)} offen offset:{1024*(i&3)}{SC}"
    def reclist(ns):
        a(f"v_lshl_add_u32 v1, v{VL}, 2, s{sLB}")
        for i in reversed(range(ns)): a(f"ds_read_b32 v{RK+i}, v1 offset:{256*i}")
        a(f"v_add_u32 v2, s{sLO}, v{VL}\nv_lshlrev_b32 v2, 4, v2\ns_movk_i32 s{sQ}, 4096")
        for i in range(ns):
            a(f"v_cmp_gt_i32 {S2(sM+2*i)}, s{t1}, v{VL}\ns_sub_u32 s{t1}, s{t1}, 64")
        a("s_waitcnt lgkmcnt(0)")
        for i in range(ns): a(f"v_add_u32 v{RK+i}, v{RK+i}, v2")
    def recload(ns,lab):
        for i in reversed(range(ns)):
            a(f"s_mov_b64 exec, {S2(sM+2*i)}\ns_cbranch_execz {lab}{i}\n{rl1(i)}\n{lab}{i}:")
        a("s_mov_b64 exec, -1")
    def hist(ns,lab,extra,scat):
        a(f"v_mov_b32 v1, 4\ns_mov_b32 s{sW8}, {EB}\n{lab}p:")
        def gm(i): return S2(t0+2*(i&1))
        def sc(i,n):
            a(f"""
s_mov_b64 exec, {gm(i)}
s_waitcnt lgkmcnt({n})
v_min_u32 v{RK+i}, {NULLG-4}, v{RK+i}
v_lshl_add_u32 v{RC+4*i+3}, v{RK+i}, 1, s{sW8}
ds_write_b32 v{RK+i}, v{RC+4*i+2} offset:{WB}
ds_write_b64 v{RC+4*i+3}, {P2(RC+4*i)}
""")
        for i in reversed(range(ns)):
            a(f"""
s_mov_b64 exec, {S2(sM+2*i)}
s_waitcnt vmcnt({i+extra})
v_cmpx_eq_u32 {gm(i)}, s{sNON}, v{RC+4*i+3}
v_lshrrev_b32 v{RC+4*i+3}, 17, v{RC+4*i+2}
ds_add_rtn_u32 v{RK+i}, v{RC+4*i+3}, v1
s_andn2_b64 {S2(sM+2*i)}, {S2(sM+2*i)}, {gm(i)}
""")
            a(f"s_mov_b64 vcc, {S2(sM+2*i)}" if i==ns-1 else f"s_or_b64 vcc, vcc, {S2(sM+2*i)}")
            if scat and i==0: a(f"s_cselect_b64 exec, 0, 1\nds_add_u32 v{VZ}, v1 offset:{mH}")
            if scat and i<ns-1: sc(i+1,(1 if i==ns-2 else 3)+(1 if i==0 else 0))
        if scat: sc(0,3)
        a(f"s_cbranch_vccnz {lab}r\n{lab}d:\ns_mov_b64 exec, -1")
    def hist_retry(ns,lab,scat):
        a(f"{lab}r:\ns_sub_u32 s{sBUD}, s{sBUD}, 1\ns_cbranch_scc1 {lab}x")
        recload(ns,lab+"l")
        a(f"s_waitcnt vmcnt(0)\ns_branch {lab}p\n{lab}x:\ns_mov_b32 s{sBUD}, 0")
        if scat: a(f"s_mov_b64 exec, 1\nds_add_u32 v{VZ}, v1 offset:{mH}")
        a(f"s_branch {lab}d")
    def qfull(lab,mid):
        H=QA+4; MX=QA+1
        a(f"v_xor_b32 v{TC}, 32, v{TRU}")
        trfrag(WF,TC,0,2048,256)
        a(f"""
s_lshr_b32 s{t0}, s{sW4}, 1
s_lshl_b32 s{t0}, s{t0}, 9
s_and_b32 s{t1}, s{sW4}, 1
s_lshl_b32 s{t1}, s{t1}, 3
s_add_u32 s{t0}, s{t0}, s{t1}
s_add_u32 s{t0}, s{t0}, {Q2}
v_lshl_add_u32 v120, v{SB}, 10, s{t0}
v_lshl_add_u32 v120, v{WT}, 4, v120
v_add_u32 v121, 256, v120
s_waitcnt lgkmcnt(0)
""")
        tru(WF+16,0)
        def cv(i,T,pk):
            c=GA+16*i+4*T
            L=[]
            if pk: L+=[f"v_pk_mul_f32 {P2(c)}, {P2(c)}, {S2(sL2E)}",f"v_pk_mul_f32 {P2(c+2)}, {P2(c+2)}, {S2(sL2E)}"]
            else: L+=[f"v_mul_f32 v{c+k}, s{sL2E}, v{c+k}" for k in range(4)]
            L+=[f"v_and_b32 v{H+k}, 0xffff0000, v{c+k}" for k in range(4)]
            L+=[f"v_maximum3_f32 v{MX}, {'0' if T==0 and i==0 else 'v'+str(MX)}, abs(v{c}), abs(v{c+1})",f"v_maximum3_f32 v{MX}, v{MX}, abs(v{c+2}), abs(v{c+3})"]
            if pk: L+=[f"v_pk_add_f32 {P2(c)}, {P2(c)}, {P2(H)} neg_lo:[0,1] neg_hi:[0,1]",f"v_pk_add_f32 {P2(c+2)}, {P2(c+2)}, {P2(H+2)} neg_lo:[0,1] neg_hi:[0,1]"]
            else: L+=[f"v_sub_f32 v{c+k}, v{c+k}, v{H+k}" for k in range(4)]
            L+=[f"v_cvt_pk_bf16_f32 v{c+k}, v{c+k}, v{H+k}" for k in range(4)]
            return L
        for T in range(4):
            for s in range(4): a(mfma16(GA+4*T,XF+16*T+4*s,WF+4*s,None if s==0 else GA+4*T))
        a("s_waitcnt lgkmcnt(0)")
        fl=cv(0,0,0)+cv(0,1,0)
        for T in range(4):
            for s in range(4):
                a(mfma16(GA+16+4*T,XF+16*T+4*s,WF+16+4*s,None if s==0 else GA+16+4*T))
                for _ in range(2): a(fl.pop(0))
        if PFI==0: mid()
        for x in fl+cv(0,2,1)+cv(1,0,1)+cv(1,1,1)+cv(1,2,1): a(x)
        if PFI==1: mid()
        gwait(lab+"w",mSL,4,VZ,1)
        for i in range(2):
            for T in range(3):
                c=GA+16*i+4*T
                a(f"ds_write2st64_b64 v{120+i}, {P2(c)}, {P2(c+2)} offset0:{16*T} offset1:{16*T+2}")
        a("s_mov_b64 exec, 0xffff")
        for i in range(2):
            c=GA+16*i+12
            a(f"""
v_mul_f32 v{c}, s{sL2E}, v{c}
v_and_b32 v{H}, 0xffff0000, v{c}
v_maximum3_f32 v{MX}, v{MX}, abs(v{c}), abs(v{c})
v_sub_f32 v{c}, v{c}, v{H}
v_cvt_pk_bf16_f32 v{c}, v{c}, v{H}
ds_write2st64_b64 v{120+i}, {P2(c)}, {P2(c+2)} offset0:48 offset1:50
""")
        a(f"""
s_mov_b64 exec, -1
v_cmp_nge_f32 vcc, 0x40e80000, v{MX}
s_cbranch_vccz {lab}q
ds_write_b32 v{VZ}, v{FA} offset:{mSLOW}
{lab}q:
""")
        pt('qd')
    def ranges():
        a(f"""
s_lshr_b32 s{sCNT}, s{sNT}, 3
s_mul_i32 s{sT0}, s{sCNT}, s{sWV}
s_and_b32 s{t2}, s{sNT}, 7
s_min_u32 s{t3}, s{t2}, s{sWV}
s_add_u32 s{sT0}, s{sT0}, s{t3}
s_cmp_lt_u32 s{sWV}, s{t2}
s_addc_u32 s{sCNT}, s{sCNT}, 0
s_lshl_b32 s{t0}, s{sT0}, 7
s_lshl_b32 s{t2}, s{sT0}, 4
v_add_u32 v{SB}, s{t2}, v{SB}
v_add_u32 v{RB}, s{t2}, v{RB}
v_sub_u32 v{SA}, v{SA}, v{OHC}
v_add_u32 v{SA}, s{t2}, v{SA}
s_add_u32 s{t3}, s{sT0}, s{sCNT}
v_min_u32 v1, 8, v{VL}
v_sub_u32 v1, s{t3}, v1
v_lshlrev_b32 v1, 4, v1
v_max_i32 v1, 0, v1
""")
    AS=272; OST=GBUF
    eFA,eOW,eN48,eRD=FA,FA+1,FA+2,FA+3; eST,eM0,eM1=A3,A3+1,A3+2
    sE0,sE1,sE2=44,45,46
    def epi_consts():
        srd(a,sX,16,N*256)
        a(f"""
v_and_b32 v1, 15, v{VL}
v_lshrrev_b32 v2, 4, v{VL}
v_mul_u32_u24 v3, {AS}, v1
v_lshl_add_u32 v{eFA}, v2, 4, v3
s_lshl_b32 s{t0}, s{sOT}, 1
v_lshrrev_b32 v2, 5, v{VL}
v_or_b32 v2, s{t0}, v2
v_xor_b32 v2, v2, v1
v_lshlrev_b32 v2, 4, v2
v_lshl_add_u32 v2, v1, 8, v2
v_lshrrev_b32 v3, 1, v{VL}
v_and_or_b32 v2, v3, 8, v2
v_add_u32 v{eOW}, {OST}, v2
s_lshl_b32 s{t0}, s{sOT}, 5
s_add_u32 s{t0}, s{t0}, {OST+48*256}
v_lshl_add_u32 v{eN48}, v1, 1, s{t0}
v_lshlrev_b32 v1, 4, v0
v_add_u32 v{eRD}, {OST}, v1
v_lshrrev_b32 v2, 4, v0
v_xor_b32 v3, v2, v0
v_and_b32 v3, 15, v3
v_lshlrev_b32 v3, 4, v3
v_lshl_add_u32 v{eST}, v2, 16, v3
s_lshl_b32 s{sE0}, s{sK}, 8
s_add_u32 s{sE1}, s{sE0}, {32*65536}
s_cmp_lt_u32 s{sWV}, 4
s_cselect_b64 {S2(sE2)}, -1, 0xffff
""")
    def arrive(off,vt): a(f"v_mov_b32 v{vt}, 1\ns_mov_b64 exec, 1\nds_add_u32 v{VZ}, v{vt} offset:{off}\ns_mov_b64 exec, -1")

    D=28; SRc=36; K=44; R=52; W2=60; RO=80
    sD=40; sS=44; sE=48
    Q16="s_mov_b64 exec, 0xffff"; FULL="s_mov_b64 exec, -1"
    a(f"""
{name}:
{"s_memrealtime s[88:89]" if PROF and FST else ""}
s_getpc_b64 {S2(t2)}
s_cmp_ge_u32 s2, 256
s_cbranch_scc1 KF_END
s_load_dwordx16 s[4:19], s[0:1], 0
s_load_dwordx2 s[20:21], s[0:1], 64
v_lshrrev_b32 v1, 6, v0
s_and_b32 s{t0}, s2, 0xf8
v_add_lshl_u32 v2, v1, s{t0}, 7
v_readfirstlane_b32 s{sWV}, v1
v_min_u32 v2, KF_CEND-{name}-16, v2
s_mov_b64 exec, 1
global_load_dword v{QA+15}, v2, {S2(t2)}
s_mov_b64 exec, -1
v_and_b32 v{VL}, 63, v0
v_mov_b32 v{VZ}, 0
v_lshlrev_b32 v113, 4, v{VL}
s_and_b32 s{sK}, s2, 7
s_lshl_b32 s{sK}, s{sK}, 5
s_lshr_b32 s{t1}, s2, 3
s_or_b32 s{sK}, s{sK}, s{t1}
s_and_b32 s{sW4}, s{sWV}, 3
s_lshl_b32 s{sW4K}, s{sW4}, 10
s_cmp_ge_u32 s{sWV}, 4
s_cbranch_scc0 KF_S
v_lshlrev_b32 v2, 2, v0
v_lshlrev_b32 v3, 8, v{VL}
ds_write_b32 v2, v{VZ} offset:{HIST-1024}
v_lshlrev_b32 v2, 2, v{VL}
ds_write2st64_b32 v2, v3, v{VZ} offset0:0 offset1:1
v_bfe_u32 v1, v0, 4, 4
v_xor_b32 v37, v1, v0
v_and_b32 v37, 15, v37
v_lshlrev_b32 v37, 4, v37
v_lshl_add_u32 v36, v1, 8, s{sK}
s_waitcnt lgkmcnt(0)
""")
    if WSB: a(f"s_add_u32 s20, s20, {hex(WSB)}\ns_addc_u32 s21, s21, 0")
    (0 if FST else stamp(a,0,True)); stamp(a,1); pt('st')
    a(f"""
""")
    if XORD==0:
        srd(a,sX,4,N,stride=256)
        for j in range(4):
            if j==3: a(f"s_cmp_eq_u32 s{sWV}, 4\ns_cbranch_scc0 KT_c")
            a(f"s_add_u32 m0, s{sW4K}, {AGB+j*4096}\ns_nop 0\nbuffer_load_dwordx4 v[36:37], {SR4(sX)}, 0 idxen offen lds\nv_add_u32 v36, 4096, v36")
        a("KT_c:")
    a(f"""
s_load_dword s{sNON}, s[20:21], 0
s_lshr_b32 s{t0}, s{t0}, 1
s_add_u32 s{t0}, s{t0}, s{sWV}
s_sub_u32 s{t0}, s{t0}, 4
s_lshl_b32 s{t0}, s{t0}, 9
v_lshl_add_u32 v2, v{VL}, 7, s{t0}
s_mov_b64 exec, 15
global_load_dword v{QA+15}, v2, s[12:13]
global_load_dword v{QA+15}, v2, s[14:15]
s_mov_b64 exec, -1
""")
    if TLB:
        a(f"""
s_lshr_b32 s{t0}, s{t0}, 9
s_mul_i32 s{t1}, s{t0}, {2*RST}
s_add_u32 s{t1}, s{t1}, {F_REC+EP*16}
s_add_u32 s52, s20, s{t1}
s_addc_u32 s53, s21, 0
s_load_dword s44, s[52:53], 0
s_load_dword s45, s[52:53], {RST}
""")
    a(f"""
s_branch KF_B0
KF_S:
s_min_u32 s{t2}, s2, {NPROD-1}
s_mul_i32 s{t2}, s{t2}, {EP*4}
s_mul_i32 s{t3}, s{sWV}, 400
v_add_u32 v108, s{t3}, v{VL}
v_lshlrev_b32 v109, 2, v108
s_mov_b32 s{sD+2}, {E*4}
s_mov_b32 s{sD+3}, 0x00020000
s_waitcnt lgkmcnt(0)
""")
    if WSB: a(f"s_add_u32 s20, s20, {hex(WSB)}\ns_addc_u32 s21, s21, 0")
    (0 if FST else stamp(a,0,True)); stamp(a,1); pt('st')
    a(f"s_mov_b32 s{sD}, s10\ns_and_b32 s{sD+1}, s11, 0xffff")
    def ld7(dst,sr):
        for i in range(7):
            if i==6: a(Q16)
            a(f"buffer_load_dword v{dst+i}, v109, {SR4(sr)}, s{t2} offen offset:{i*256}")
        a(FULL)
    ld7(D,sD); pt('dl')
    srd(a,sS,8,E*4); srd(a,sE,6,E*8)
    ld7(SRc,sS)
    a(f"""
s_lshl_b32 s{sLB}, s{t3}, 3
s_lshl_b32 s{t2}, s{t2}, 1
s_add_u32 s{t2}, s{t2}, s{sLB}
s_add_u32 m0, s{sLB}, {ERAW}
s_add_u32 s{sLB}, s{sLB}, {S1}
""")
    for j in range(4):
        if j==3: a("s_mov_b64 exec, 0xff")
        a(f"buffer_load_dwordx4 v113, {SR4(sE)}, s{t2} offen offset:{1024*j} lds")
    a(FULL)
    a(f"""
KF_B0:
""")
    if DBGP:
        a("v_mov_b32 v1, 0")
        for j,r in enumerate((4,6,8,10,12,14,16,18,20)): a(f"v_writelane_b32 v1, s{r}, {j}")
        a(f"v_lshlrev_b32 v2, 2, v{VL}\ns_mov_b64 exec, 0x1ff\nglobal_store_dword v2, v1, s[18:19]\ns_mov_b64 exec, -1\ns_waitcnt vmcnt(0)")
    if ALN: a(f"s_add_u32 s20, s20, {ALN-1}\ns_addc_u32 s21, s21, 0\ns_and_b32 s20, s20, {-ALN}")
    a(f"""
s_lshl_b32 s{sBUF}, s{sWV}, 13
s_add_u32 s{sBUF}, s{sBUF}, {GBUF}
s_barrier
""")
    if W1E:
        a(f"s_cmp_ge_u32 s{sWV}, 4\ns_cbranch_scc0 KF_c0")
        srd(a,sA,12,260*256); vyc(); sdma(sA,0,0,VY,range(W1E))
        a("KF_c0:")
    consts()
    a(f"""
s_cmp_ge_u32 s{sWV}, 4
s_cbranch_scc1 KF_T
v_mov_b32 v111, 8
v_lshlrev_b32 v112, 3, v108
v_lshlrev_b32 v110, 4, v108
""")
    for i in range(7): a(f"v_add_u32 v{W2+1+2*i}, {i*512}, v112")
    a(f"s_cmp_ge_u32 s2, {NPROD}\ns_cbranch_scc1 KS_d\ns_waitcnt vmcnt(11)")
    pt('dst')
    for i in range(7):
        if i==6: a(Q16)
        a(f"v_lshlrev_b32_sdwa v{K+i}, 2, v{D+i} dst_sel:DWORD dst_unused:UNUSED_PAD src0_sel:DWORD src1_sel:BYTE_0\nds_add_rtn_u32 v{R+i}, v{K+i}, v111 offset:{HIST}")
    a(FULL+"\nKS_d:")
    gsync('b1',"KS_y1",mS,4,VZ,2)
    a(f"ds_read_b128 v[116:119], v113 offset:{HIST}")
    for i in range(7): a(f"v_lshrrev_b32 v{D+i}, 8, v{D+i}")
    a(f"""
s_waitcnt lgkmcnt(0)
v_add_u32 v2, v116, v117
v_add3_u32 v2, v2, v118, v119
v_mov_b32 v3, v2
""")
    dpp_scan(a,"v_add_u32",[3])
    a(f"""
v_sub_u32 v120, v3, v2
v_add_u32 v121, v120, v116
v_add_u32 v122, v121, v117
v_add_u32 v123, v122, v118
ds_write_b128 v113, v[120:123] offset:{HIST+1024}
""")
    for i in range(7):
        if i==6: a(Q16)
        a(f"ds_read_b32 v{K+i}, v{K+i} offset:{HIST+1024}")
    a(FULL)
    def tpub():
        a(f"s_load_dword s{sNON}, s[20:21], 0")
        for j in range(4): a(f"v_lshlrev_b32 v2, 1, v{120+j}\nv_lshl_or_b32 v{QA+2*j}, v{116+j}, 13, v2")
        a("s_waitcnt lgkmcnt(0)")
        tagh()
        a(f"v_mov_b32 v1, s{sNON}")
        for j in range(4): a(f"v_mov_b32 v{QA+2*j+1}, v1")
        a(f"""
s_lshl_b32 s{t2}, s2, 11
s_add_u32 s{t2}, s{t2}, {F_TBL}
s_lshl_b32 s{t3}, s{sWV}, 4
s_lshl_b64 exec, 0xffff, s{t3}
buffer_store_dwordx4 {P4(QA)}, v113, {SR4(sR)}, s{t2} offen{SSC}
buffer_store_dwordx4 {P4(QA+4)}, v113, {SR4(sR)}, s{t2} offen offset:1024{SSC}
s_mov_b64 exec, -1
""")
    if TE==0: tpub()
    a(f"s_cmp_ge_u32 s2, {NPROD}\ns_cbranch_scc1 KS_e\ns_waitcnt vmcnt({6 if TE==0 else 4})")
    if X&64:
        for i in range(7): a(f"v_and_b32 v{SRc+i}, 0x1ff, v{SRc+i}")
    for i in range(7): a(f"v_lshl_or_b32 v{W2+2*i}, v{D+i}, 19, v{SRc+i}")
    a(f"s_waitcnt lgkmcnt(0)")
    for i in range(7):
        if i==6: a(Q16)
        a(f"v_add_u32 v{K+i}, v{K+i}, v{R+i}\nds_write_b64 v{K+i}, {P2(W2+2*i)} offset:{S1}")
    a(FULL+"\nKS_e:")
    pt('sc1')
    if TE==1: tpub()
    a(f"""
v_lshlrev_b32 v114, 11, v0
s_lshr_b32 s{sLO}, s{sK}, 2
s_lshl_b32 s{sLO}, s{sLO}, 4
s_and_b32 s{t0}, s{sK}, 1
s_lshl_b32 s{t0}, s{t0}, 3
s_add_u32 s{sLO}, s{sLO}, s{t0}
s_and_b32 s{t0}, s{sK}, 2
s_lshl_b32 s{t0}, s{t0}, 9
s_add_u32 s{sLO}, s{sLO}, s{t0}
s_add_u32 s{sLO}, s{sLO}, {F_TBL}
v_cmp_gt_u32 vcc, {NPROD}, v0
v_mov_b32 v{TC}, 0
s_mul_i32 s{t0}, s2, {RST}
s_add_u32 s{t0}, s{t0}, {F_REC}
s_add_u32 s{t2}, s{t0}, 4096
v_mul_u32_u24 v115, {RST}, v0
v_add_u32 v115, {F_REC}, v115
""")
    gsync('bS',"KS_y2",mS,8,VZ,2,"s_waitcnt vmcnt(2)")
    tl=f"s_mov_b64 exec, vcc\nbuffer_load_dwordx2 {P2(TC)}, v114, {SR4(sR)}, s{sLO} offen{SC}\ns_mov_b64 exec, -1"
    a(f"""
s_cmp_ge_u32 s2, {NPROD}
s_cbranch_scc0 KS_h0
""")
    gwait("KS_h1",mGP,4,VZ,2)
    a(f"""
{tl}
v_mov_b32 v1, 0
s_branch KS_j
KS_h0:
""")
    order=[6,0,1,2,3,4,5]
    for i in order:
        if i==6: a(Q16)
        a(f"ds_read_b64 {P2(RO+2+4*i)}, v112 offset:{S1+i*512}")
        if i==6: a(FULL)
    for i in order:
        if i==6: a(Q16)
        a(f"s_waitcnt lgkmcnt(6)\nds_read_b64 {P2(RO+4*i)}, v{RO+3+4*i} offset:{ERAW}")
        if i==6: a(FULL)
    gwait("KS_ww",mW,4,VZ,2)
    for k,i in enumerate(order):
        if i==6: a(Q16)
        a(f"v_mov_b32 v{RO+3+4*i}, v1\nbuffer_store_dwordx4 {P4(RO+4*i)}, v110, {SR4(sR)}, s{t0 if i<4 else t2} offen offset:{1024*(i&3)}{SSC}")
        if i==6: a(FULL)
    a(tl)
    pt('out')
    a(f"v_pk_maximum3_f16 v1, v{RO}, v{RO+1}, v{RO+1}\nv_pk_minimum3_f16 v2, v{RO}, v{RO+1}, v{RO+1}")
    for i in range(1,7):
        if i==6: a(Q16)
        a(f"v_pk_maximum3_f16 v1, v1, v{RO+4*i}, v{RO+4*i+1}\nv_pk_minimum3_f16 v2, v2, v{RO+4*i}, v{RO+4*i+1}")
    a(FULL)
    absmax_fin(a,1,2,3)
    a("KS_j:")
    gwait("KS_xw",mGX,4,VZ,2)
    a(f"ds_read_b32 v2, v{VZ} offset:{mC3}\ns_mov_b32 s{t1}, 0x41680000")
    xfrags([0,1,2])
    a(f"""
s_waitcnt lgkmcnt(4)
v_mul_f32 v1, v1, v2
v_cmp_nge_f32 {S2(t2)}, s{t1}, v1       ; !(14.5 >= e*c3)
""")
    xfrags([3]); w3rd()
    a(f"""
s_cmp_lg_u64 {S2(t2)}, 0
s_cselect_b32 s{t1}, 0x101, 1
v_mov_b32 v1, s{t1}
s_mov_b64 exec, 1
ds_add_u32 v{VZ}, v1 offset:{mE}
s_waitcnt vmcnt(0)
s_mov_b64 exec, vcc
KT_f:
v_cmp_ne_u32 vcc, s{sNON}, v{TC+1}
s_cbranch_vccz KT_g
s_mov_b64 exec, vcc
s_sub_u32 s{sBUD}, s{sBUD}, 1
s_cbranch_scc1 KT_f2
buffer_load_dwordx2 {P2(TC)}, v114, {SR4(sR)}, s{sLO} offen{SC}
s_waitcnt vmcnt(0)
s_branch KT_f
KT_f2:
s_mov_b32 s{sBUD}, 0
v_mov_b32 v{TC}, 0
KT_g:
s_mov_b64 exec, -1
""")
    pt('tp'); ret('rt1')
    a(f"""
v_lshrrev_b32 v{TO}, 16, v{TC}
v_add_u32_sdwa v{TD}, v115, v{TC} dst_sel:DWORD dst_unused:UNUSED_PAD src0_sel:DWORD src1_sel:WORD_0
v_mov_b32 v{TC}, v{TO}
""")
    dpp_scan(a,"v_add_u32",[TO])
    a(f"""
v_readlane_b32 s{sTOT}, v{TO}, 63
v_sub_u32 v{TO}, v{TO}, v{TC}
s_mov_b32 s{sLO}, 0
s_movk_i32 s{t3}, 512
v_lshlrev_b32 v1, 4, v{TO}
v_sub_u32 v{TD}, v{TD}, v1
""")
    expand("KT_x")
    a(f"s_mov_b32 s{t1}, s{sTOT}")
    reclist(8)
    arrive(mSL,1)
    pt('exp')
    gwait("KS_rw",mPD,4,VZ,1)
    recload(8,"KT_l")
    pt('rl')
    def pfp():
        a(f"""
s_lshr_b32 s{t1}, s2, 3
s_mul_i32 s{t1}, s{t1}, 391
v_bfe_u32 v2, v0, 1, 7
v_add_u32 v2, s{t1}, v2
v_and_b32 v3, 1, v0
v_lshlrev_b32 v3, 7, v3
""")
        if PFH: a("s_mov_b32 exec_hi, 0")
        a(f"buffer_load_dword v{QA+15}, v[2:3], {SR4(sP)}, 0 idxen offen offset:3072{SC}\ns_mov_b64 exec, -1")
    if PFP==1: pfp()
    if not UL:
        gwait("KS_w2",mPI,4,VZ,1)
        tru(WU1,32768)
        a("s_waitcnt lgkmcnt(0)")
        ugemm()
    pt('ud')
    hist(8,"KT_h",1 if PFP==1 else 0,True)
    if PFP==3: pfp()
    pt('hs'); ret('rt2')
    gwait("KS_b2",mH,16,VZ,1)
    pt('b2')
    scan(False)
    a(f"""
v_cmp_lt_u32 vcc, 0x100, v{QA}
s_add_u32 s{sNT}, s{t0}, 127
s_lshr_b32 s{sNT}, s{sNT}, 7
s_cmp_gt_u32 s{sNT}, {CAPT}
s_cbranch_scc1 KT_j
s_cbranch_vccnz KT_j
""")
    fill("KFz",False,4)
    a(f"v_mov_b32 v1, s{sNT}\nds_write_b32 v{VZ}, v1 offset:{mNT}")
    pt('fil')
    a(f"""
s_cmp_gt_u32 s{sTOT}, 512
s_cbranch_scc0 KT_k
KT_j:
ds_write_b32 v{VZ}, v{FA} offset:{mSLOW}
KT_k:
s_mov_b32 s{sWU}, -1
""")
    if UL: gwait("KS_w2",mPI,4,VZ,1); tru(WU1,32768)
    ranges()
    srd(a,sA,14,256*256)
    if PRIO: a("s_setprio 3")
    bar('b3')
    a("s_branch KF_J")
    a(f"""
KF_T:
v_lshrrev_b32 v2, 3, v{VL}
v_and_b32 v2, 2, v2
v_xor_b32 v2, v2, v3
v_lshl_add_u32 v{TD}, v2, 4, v{DR}
v_and_b32 v108, 255, v0
v_mov_b32 v32, 0
v_mov_b32 v33, 0
v_mov_b32 v34, 0
v_mov_b32 v35, 0
v_lshlrev_b32 v110, 4, v108
""")
    sG=40
    srd(a,sX,4,N,stride=256)
    def xld():
        for j in range(4):
            if j==3: a(f"s_cmp_eq_u32 s{sWV}, 4\ns_cbranch_scc0 KT_c")
            a(f"s_add_u32 m0, s{sW4K}, {AGB+j*4096}\ns_nop 0\nbuffer_load_dwordx4 v[36:37], {SR4(sX)}, 0 idxen offen lds\nv_add_u32 v36, 4096, v36")
        a("KT_c:")
    def warm():
        a(f"""
v_and_b32 v1, 31, v{VL}
v_lshlrev_b32 v1, 1, v1
s_lshl_b32 s{t0}, s{sW4}, 6
s_add_u32 s{t0}, s{t0}, 65536
""")
        for k in range(4): a(f"buffer_load_ushort v{124+k}, v1, {SR4(sA)}, s{t0} offen offset:{k*256}")
    def zer():
        a(f"v_cmp_le_u32 vcc, 32, v108\ns_mov_b64 exec, vcc\nds_write_b128 v110, v[32:35]\ns_mov_b64 exec, -1")
        for j in range(1,4): a(f"ds_write_b128 v110, v[32:35] offset:{j*4096}")
        a(f"""
s_cmp_eq_u32 s{sWV}, 4
s_cbranch_scc0 KT_b
ds_write_b128 v110, v[32:35] offset:16384
KT_b:
""")
    srd(a,sA,12,260*256); warm(); vyc()
    if XORD==1: xld()
    if not ZL: zer()
    a(f"""
s_lshl_b32 s{t0}, s{sW4}, 2
v_lshrrev_b32 v2, 4, v{VL}
v_or_b32 v1, s{t0}, v2                  ; 4u+g
v_xor_b32 v3, v1, v{WT}
v_lshlrev_b32 v3, 4, v3
v_lshl_add_u32 v116, v{WT}, 8, v3
v_add_u32 v116, {PSC}, v116
v_add_u32 v117, {PSC}, v110
v_lshl_add_u32 v118, v1, 16, v3
""")
    if XORD==2:
        gwait("KG_x",mS,4,VZ,1); xld()
    sdma(sA,0,0,VY,range(W1E,8))
    sdma(sA,32768,-32768,VY,range(W2N))
    arrive(mW,1)
    if ZL: zer()
    pt('w1i')
    def w3m():
        w=[124,125,126,127]; u=QA
        for k in range(4): a(f"v_lshlrev_b32 v{w[k]}, 16, v{w[k]}\nv_mul_f32 v{w[k]}, s{sL2E}, v{w[k]}")
        a(f"""
v_cvt_pk_bf16_f32 v{u}, v124, v125
v_cvt_pk_bf16_f32 v{u+1}, v126, v127
v_lshlrev_b32 v{u+2}, 16, v{u}
v_and_b32 v{u+3}, 0xffff0000, v{u}
v_lshlrev_b32 v{u+4}, 16, v{u+1}
v_and_b32 v{u+5}, 0xffff0000, v{u+1}
v_add_f32 v{u+6}, abs(v124), abs(v125)
v_sub_f32 v{u+2}, v124, v{u+2}
v_sub_f32 v{u+3}, v125, v{u+3}
v_sub_f32 v{u+4}, v126, v{u+4}
v_sub_f32 v{u+5}, v127, v{u+5}
v_add_f32 v{u+7}, abs(v126), abs(v127)
s_mov_b32 exec_lo, 0
v_cvt_pk_bf16_f32 v{u}, v{u+2}, v{u+3}
v_cvt_pk_bf16_f32 v{u+1}, v{u+4}, v{u+5}
s_mov_b32 exec_lo, -1
v_add_f32 v{u+6}, v{u+6}, v{u+7}
v_lshlrev_b32 v1, 3, v108
v_and_b32 v{u+6}, 0x7fffffff, v{u+6}
ds_write_b64 v1, {P2(u)} offset:{W3L}
""")
        dpp_scan(a,"v_max_u32",[u+6])
        a(f"""
s_mov_b32 exec_lo, 0
s_brev_b32 exec_hi, 1
ds_max_u32 v{VZ}, v{u+6} offset:{mC3}
s_mov_b64 exec, -1
""")
    e2=W2N
    a(f"s_waitcnt vmcnt({(8 if XORD==0 else 11)+e2-W1E})"); w3m()
    a(f"v_mov_b32 v1, {hex(ONE2)}\nds_write2_b32 v{VZ}, v1, v1 offset0:{OH//4} offset1:{OH//4+3}")
    gsync('bX',"KG_y1",mGX,4,VZ,2,f"s_waitcnt vmcnt({8+e2-W1E})")
    if GP_: a(f"s_setprio {GP_}")
    xfrags([0])
    a(f"s_waitcnt vmcnt({e2})")
    pt('xl')
    trfrag(WF,TD,32768,2048,256)
    a("s_waitcnt lgkmcnt(7)")
    trfrag(WF+16,TD,32768+8,2048,256)
    def pm(T,i):
        for s in range(4): a(mfma16(GA+8*T+4*i,WF+16*i+4*s,XF+16*T+4*s,None if s==0 else GA+8*T+4*i))
    def pcv(T):
        c=GA+8*T
        L=[f"v_mul_f32 v{c+j}, s{sL2E}, v{c+j}" for j in range(8)]
        L+=[f"v_cvt_pk_bf16_f32 v{c+j}, v{c+2*j}, v{c+2*j+1}" for j in range(4)]
        L+=[f"ds_write_b128 v116, {P4(c)} offset:{T*4096}"]
        return L
    def pmi(T,fillers):
        for i in range(2):
            for s in range(4):
                a(mfma16(GA+8*T+4*i,WF+16*i+4*s,XF+16*T+4*s,None if s==0 else GA+8*T+4*i))
                for _ in range(2):
                    if fillers: a(fillers.pop(0))
    a("s_waitcnt lgkmcnt(8)"); xfrags([1]); pm(0,0)
    a("s_waitcnt lgkmcnt(4)"); xfrags([2,3]); pm(0,1)
    a("s_waitcnt lgkmcnt(8)"); pm(1,0); pm(1,1)
    a("s_waitcnt lgkmcnt(0)"); pmi(2,pcv(0)); pmi(3,pcv(1))
    a(f"s_lshl_b32 s{t2}, s{sK}, 8\ns_nop 2")
    for T in (2,3):
        for x in pcv(T): a(x)
    gsync('pg',"KG_y2",mGP,4,VZ,2)
    for T in range(4): a(f"ds_read_b128 {P4(PO+4*T)}, v117 offset:{T*4096}")
    a("s_waitcnt vmcnt(0)")
    for T in range(3):
        a(f"s_add_u32 s{t1}, s{t2}, {F_P+T*16*65536}\ns_waitcnt lgkmcnt({3-T})")
        a(f"buffer_store_dwordx4 {P4(PO+4*T)}, v118, {SR4(sR)}, s{t1} offen{SSC}")
    a(f"""
s_cmp_eq_u32 s{sWV}, 4
s_cbranch_scc0 KG_p
s_add_u32 s{t1}, s{t2}, {F_P+3*16*65536}
s_waitcnt lgkmcnt(0)
s_mov_b64 exec, 0xffff
buffer_store_dwordx4 {P4(PO+12)}, v118, {SR4(sR)}, s{t1} offen{SSC}
s_mov_b64 exec, -1
KG_p:
""")
    pt('pst')
    if GP_: a("s_setprio 0")
    if W2N<8: sdma(sA,32768,-32768,VY,range(W2N,8))
    srd(a,sA,14,256*256)
    tagh()
    w3rd()
    for T in range(4):
        c=GA+8*T
        if T==3: a("s_mov_b32 exec_lo, 0x10001\ns_mov_b32 exec_hi, 0x10001")
        if T==0: a(f"v_pk_maximum3_f16 v114, v{c}, v{c+1}, v{c+2}\nv_pk_minimum3_f16 v115, v{c}, v{c+1}, v{c+2}\nv_pk_maximum3_f16 v114, v114, v{c+3}, v{c+3}\nv_pk_minimum3_f16 v115, v115, v{c+3}, v{c+3}")
        else: a(f"v_pk_maximum3_f16 v114, v114, v{c}, v{c+1}\nv_pk_minimum3_f16 v115, v115, v{c}, v{c+1}\nv_pk_maximum3_f16 v114, v114, v{c+2}, v{c+3}\nv_pk_minimum3_f16 v115, v115, v{c+2}, v{c+3}")
    a("s_mov_b64 exec, -1")
    absmax_fin(a,114,115,2)
    a(f"""
v_cmp_lt_u32 vcc, 0x40e80000, v114
v_mov_b32 v{TD}, v{VY}
s_cmp_lg_u64 vcc, 0
s_cselect_b32 s{sFLAG}, 0x101, 1
""")
    def pflag(n):
        a(f"""
s_lshl_b32 s{t2}, s2, 4
s_add_u32 s{t2}, s{t2}, {F_FLG}
v_mov_b32 v1, s{sFLAG}
s_waitcnt vmcnt({n})
s_mov_b64 exec, 1
ds_add_rtn_u32 v1, v{VZ}, v1 offset:{mPD}
s_waitcnt lgkmcnt(0)
v_readfirstlane_b32 s{t1}, v1
s_add_u32 s{t1}, s{t1}, s{sFLAG}
s_and_b32 s{t0}, s{t1}, 255
s_cmp_eq_u32 s{t0}, 4
s_cbranch_scc0 KG_f
KG_e:
ds_read_b32 v1, v{VZ} offset:{mE}
s_waitcnt lgkmcnt(0)
v_readfirstlane_b32 s{t0}, v1
s_and_b32 s{t3}, s{t0}, 255
s_cmp_lt_u32 s{t3}, 4
s_cbranch_scc1 KG_e
s_or_b32 s{t1}, s{t1}, s{t0}
s_cmp_gt_u32 s{t1}, 255
s_cselect_b32 s{t0}, 2, 0
s_xor_b32 s{t0}, s{sNON}, s{t0}
v_mov_b32 v1, s{t0}
buffer_store_dword v1, v{VZ}, {SR4(sR)}, s{t2} offen{SSC}
s_waitcnt vmcnt(1)
s_branch KG_f2
KG_f:
s_waitcnt vmcnt(0)
KG_f2:
s_mov_b64 exec, -1
""")
        pt('pfl')
    def mid():
        sdma(sA,0); pflag(8); arrive(mPI,1)
    if W2N<8:
        if WU1L:
            pflag(8-W2N); qfull("KGq",lambda: sdma(sA,0)); a("s_waitcnt vmcnt(0)"); arrive(mPI,1)
        else:
            sdma(sA,0); pflag(16-W2N); arrive(mPI,1); qfull("KGq",lambda: 0)
    else: qfull("KGq",mid)
    tru(WU1,32768)
    if not UL: a("s_waitcnt lgkmcnt(0)"); ugemm()
    if FLP==1: gwait("KG_b2",mH,16,VZ,1)
    a(f"""
s_mov_b32 s{sLO}, {F_FLG}
buffer_load_dword v116, v110, {SR4(sR)}, s{sLO} offen{SC}
""")
    if PFP==2: pfp()
    a(f"""
s_mov_b32 s{sWU}, 1
s_or_b32 s{t1}, s{sNON}, 2
s_waitcnt vmcnt({1 if PFP==2 else 0})
KS_m:
v_or_b32 v2, 2, v116
v_cmp_ne_u32 vcc, s{t1}, v2
s_cbranch_vccz KS_n
s_sub_u32 s{sBUD}, s{sBUD}, 1
s_cbranch_scc1 KS_n
s_sleep {FSL}
s_mov_b64 exec, vcc
buffer_load_dword v116, v110, {SR4(sR)}, s{sLO} offen{SC}
s_mov_b64 exec, -1
s_waitcnt vmcnt(0)
s_branch KS_m
KS_n:
v_cmp_ne_u32 vcc, s{sNON}, v116
s_cbranch_vccz KS_o
ds_write_b32 v{VZ}, v{FA} offset:{mSLOW}
KS_o:
""")
    pt('flg')
    if PRIO: a("s_setprio 3")
    bar('b3')
    a(f"ds_read_b32 v1, v{VZ} offset:{mNT}\ns_waitcnt lgkmcnt(0)\nv_readfirstlane_b32 s{sNT}, v1")
    ranges()
    a("KF_J:")
    def rd_ga(off): a(f"ds_read_u16 v{GA0}, v{SB} offset:{GL+off}\nds_read_u16 v{GA0+1}, v{SB} offset:{GL+off+8}")
    def rd_gg(off): a(f"ds_read_u16 v{YA}, v{RB} offset:{GL+off}")
    ya=f"v_lshl_add_u32 v{EA}, v{YA}, 1, v{EC}\nv_add_u32 v{YA}, v{YA}, v{M4}"
    ry=f"ds_read_u16 v{VY}, v{YA} offset:{WB+2}"
    def rd_y(): a(ya); a(ry)
    def idx1(i): return f"ds_read_u16 v{IDX+2*i}, v{GA0+(i>>2)} offset:{WB+4*(i&3)}"
    def rd_idx():
        for i in range(8): a(idx1(i))
    def dmai(i): return f"buffer_load_dwordx4 {P2(IDX+2*i)}, {SR4(sP)}, 0 idxen offen offset:{1024*(i&3)}{GSC} lds"
    def dma():
        for i in range(8):
            if i==0: a(f"s_mov_b32 m0, s{sBUF}\ns_nop 0")
            if i==4: a(f"s_add_u32 m0, s{sBUF}, 4096\ns_nop 0")
            a(dmai(i))
    def dma_idx():
        for i in range(4): a(dmai(i))
        a(f"s_add_u32 m0, s{sBUF}, 4096"); a(idx1(0))
        for i in range(4,8): a(dmai(i))
        a(f"s_mov_b32 m0, s{sBUF}")
        for i in range(1,8): a(idx1(i))
    rd_b=f"ds_read_b128 {P4(B3+2)}, v{QAD}\nds_read_b128 {P4(B3+10)}, v{QAD} offset:512"
    rd_a3=f"ds_read_b64 {P2(A6)}, v{EA}\nds_read_b64 {P2(A6+2)}, v{VY} offset:{OH}\nds_read_b64 {P2(A6+4)}, v{EA}"
    def rd_a(t): return f"ds_read_b128 {P4(A+4*t)}, v{AR+t}"
    rd_s=f"ds_read_b64 {P2(SS)}, v{SA2}\nds_read_b64 {P2(SS+2)}, v{SA2+1}"
    def AQ(q): return A6+2*(q&1)
    win=f"v_add3_u32 v{VY}, v{VY}, v{OH2}, s{sW8}\nv_lshl_add_u32 v{QAD}, s{sQ}, 6, v{QC}"
    rd_ga(0); rd_gg(0)
    a(f"""
ds_read_u16 v{WT}, v1 offset:{GL}
ds_read_b32 v{GP}, v{VZ} offset:{mSLOW}
s_waitcnt lgkmcnt(3)
""")
    rd_idx()
    a("s_waitcnt lgkmcnt(0)")
    dma()
    pt('d0')
    a(f"v_readlane_b32 s{sNF}, v{WT}, s{sCNT}\nv_readfirstlane_b32 s{t3}, v{GP}")
    rd_y(); rd_ga(16)
    if UL: ugemm(); a("s_nop 4")
    uscale()
    a(f"""
v_lshlrev_b32 v{OH2}, 1, v{OHC}
v_and_b32 v1, 31, v{VL}
v_lshlrev_b32 v1, 4, v1
v_lshlrev_b32 v2, 5, v{VL}
v_and_b32 v2, 0x400, v2
v_add3_u32 v{QC}, v1, v2, s{sQ2}
s_waitcnt lgkmcnt(0)
""")
    rd_idx()
    a(f"""
s_cmp_lg_u32 s{t3}, 0
s_cbranch_scc1 KF_SLOW
s_lshr_b32 s{sNF}, s{sNF}, 8
v_subrev_u32 v2, s{sNF}, v{VL}
v_and_b32 v2, 15, v2
v_add_u32 v{DR}, s{sNF}, v2
v_lshlrev_b32 v2, 2, v{DR}
ds_read_b32 v{GP}, v2 offset:{BT}
s_and_b32 s{sQ}, s{sNF}, -2
s_lshl_b32 s{sQ}, s{sQ}, 3
s_sub_u32 s{sW8}, 0, s{sQ}
{win}
{rd_b}
{rd_a3}
""")
    rd_gg(16)
    a(f"""
v_lshrrev_b32 v{WT}, 9, v{WT}
v_lshlrev_b32 v{WT}, 4, v{WT}           ; 8*(w&~1)
v_mov_b32 v{SS}, 0
v_mov_b32 v{SS+1}, 0
v_mov_b32 v{SS+2}, 0
v_mov_b32 v{SS+3}, 0
v_add_u32 v{SA}, {STB}, v{SA}
v_mov_b32 v1, {OH+64}
v_cndmask_b32 v{SA2}, v1, v{SA}, {S2(sMA)}
v_cndmask_b32 v{SA2+1}, v{SA}, v1, {S2(sMA)}
v_cndmask_b32 v{SI2}, 0, 16, {S2(sMA)}
v_cndmask_b32 v{SI2+1}, 16, 0, {S2(sMA)}
s_add_u32 s{t1}, s{sT0}, s{sCNT}
s_lshl_b32 s{t1}, s{t1}, 7
s_add_u32 s{t2}, s{sWV}, 48
v_mov_b32 v1, s{t2}
{mfma32(ACC+16,SS,SS,None)}
s_waitcnt lgkmcnt(0)
""")
    rd_y(); rd_ga(32)
    a(f"""
v_cmp_gt_u32 vcc, s{t0}, v{GP}
v_cmp_gt_u32 {S2(t2)}, s{t1}, v{GP}
v_cmp_gt_u32 {S2(t0)}, s{sNN}, v{DR}
v_cndmask_b32 v{DR}, v{DR}, v1, vcc
s_cmp_lg_u64 vcc, 0
s_cselect_b32 s{sHEAD}, 1, 0
s_and_b64 vcc, {S2(t2)}, {S2(t0)}
v_lshlrev_b32 v1, 2, v{VL}
v_cndmask_b32 v{DR}, 56, v{DR}, vcc
v_and_b32 v2, 64, v1
v_mul_u32_u24 v{DR}, {AS}, v{DR}
v_sub_u32 v2, v2, v{OHC}
v_add_u32 v{DR}, v{DR}, v2
s_mul_i32 s{t0}, s{sNF}, {AS}
s_mul_i32 s{t1}, s{sWV}, {AS}
v_add_u32 v{eM0}, s{t0}, v1
v_add_u32 v{eM1}, s{t1}, v1
s_sub_u32 s{sCNT}, s{sCNT}, 1
s_mov_b32 m0, s{sBUF}
""")
    epi_consts()
    pt('pre')
    a("s_waitcnt vmcnt(0)")
    pt('g0')
    for t in range(8): a(rd_a(t))
    a("s_waitcnt lgkmcnt(6)")
    a(mfma32(Z[0],AQ(0),B3,None)); a(mfma32(Z[0],A,ID0,Z[0])); a(mfma32(Z[0],A+4,ID1,Z[0]))
    a("s_nop 8\ns_waitcnt lgkmcnt(0)")
    pt('pro')
    def finals(qprev):
        for u in range(2): a(f"v_pk_mul_f32 {P2(NN+2*u)}, {P2(NN+2*u)}, {P2(DD+2*u)}")
        for u in range(2): a(f"v_cvt_pk_bf16_f32 v{GP+2*(qprev&1)+u}, v{NN+2*u}, v{NN+2*u+1}")
    def ex(zc,r): return f"v_exp_f32 v{EE+r}, v{zc+r}"
    def body(first):
        for q in range(4):
            zc=Z[q&1]; zn=Z[(q+1)&1]; qn=(q+1)&3
            ms=[(AQ(qn),B3+4*qn),(A+8*qn,ID0),(A+8*qn+4,ID1)]
            pend=[0,1,2,3,8,9,10,11,4,5,12,13,6,7,14,15]
            f0=first and q==0
            if q==0: a(f"v_readlane_b32 s{sQ}, v{WT}, s{sCNT}")
            if q==3: a(f"s_waitcnt lgkmcnt(0)")
            a(mfma32(zn,ms[0][0],ms[0][1],None))
            if not f0:
                for j in range(4): a(f"v_rcp_f32 v{DD+j}, v{DD+j}")
            else:
                for r in range(4): a(ex(zc,pend.pop(0)))
            a(mfma32(zn,ms[1][0],ms[1][1],zn))
            for r in range(4): a(ex(zc,pend.pop(0)))
            a(mfma32(zn,ms[2][0],ms[2][1],zn))
            def bx():
                a(f"s_sub_u32 s{sW8}, 0, s{sQ}\ns_waitcnt vmcnt(0) lgkmcnt(0)\n{win}")
                rd_gg(32); rd_ga(48)
                a(rd_b); a(rd_a3); a(rd_s)
                for t in range(8): a(rd_a(t))
            if q==2 and XP==0: a(ex(zc,pend.pop(0))); bx()
            for r in range(4 if not (q==2 and XP==0) else 3): a(ex(zc,pend.pop(0)))
            if q&1:
                p=1 if q==1 else 0
                if not (first and q==1):
                    a(mfma32(ACC+16*p,GP,SS,None if first else ACC+16*p))
                    for r in range(4): a(ex(zc,pend.pop(0)))
            if q==2 and XP==1: bx()
            if f0: dma_idx()
            if q==3:
                a(ya)
                if first: dma_idx(); a(ry)
                else:
                    a(f"s_cmp_gt_u32 s{sCNT}, 1\ns_cbranch_scc0 KF_lt")
                    dma_idx(); a(ry)
                    a("KF_lb:")
            if not f0: finals((q-1)&3)
            seq=[]
            for u in range(2): seq.append(f"v_pk_add_f32 {P2(DD+2*u)}, {P2(EE+8*u)}, 1.0 op_sel_hi:[1,0]")
            for m in range(1,4):
                for u in range(2):
                    src=(zc+8*u) if m==1 else NN+2*u
                    seq.append(f"v_pk_fma_f32 {P2(NN+2*u)}, {P2(src)}, {P2(EE+8*u+2*m)}, {P2(src)}")
                for u in range(2): seq.append(f"v_pk_fma_f32 {P2(NN+2*u)}, {P2(zc+8*u+2*m)}, {P2(DD+2*u)}, {P2(NN+2*u)}")
                for u in range(2): seq.append(f"v_pk_fma_f32 {P2(DD+2*u)}, {P2(DD+2*u)}, {P2(EE+8*u+2*m)}, {P2(DD+2*u)}")
            slots=[0,1,2,3,5,7,9,11] if len(pend)==8 else [1,4,7,10]
            for k,x in enumerate(seq):
                a(x)
                if k in slots: a(ex(zc,pend.pop(0)))
            if q==2: a(f"v_pk_add_f32 {P2(RB)}, {P2(RB)}, {S2(sINC)}\nv_pk_add_f32 {P2(SA2)}, {P2(SA2)}, {P2(SI2)}")
    if PROF and 'dyn' in PTS: stamp(a,8); stamp(a,9,True)
    if PROF and 'clk' in PTS: stamp(a,6,True)
    n0=len(a.l)
    body(True)
    a("s_branch KF_LE\n.p2align 6\nKF_LOOP:")
    body(False)
    def keep(l):
        t=l.strip()
        if X&1 and t.startswith('buffer_load'): return False
        if X&2 and t.startswith('ds_read_b128 v[') and int(t.split('[')[1].split(':')[0])>=28: return False
        if X&8 and t.startswith('v_mfma'): return False
        if X&16 and t.startswith('v_pk_fma'): return False
        if X&32 and t.startswith('v_exp'): return False
        return True
    a.l[n0:]=[l for l in a.l[n0:] if keep(l)]
    import re
    if UNP:
        L=[]; cnt=0
        for l in a.l[n0:]:
            m=re.match(r"\s*v_pk_fma_f32 v\[(\d+):\d+\], v\[(\d+):\d+\], v\[(\d+):\d+\], v\[(\d+):\d+\]",l)
            if m:
                cnt+=1
                d,x,y,z=map(int,m.groups())
                if UNP==1 or (UNP==2 and cnt%2==0) or (UNP==3 and d>=DD):
                    for k in range(2):
                        L.append(f"    v_fmac_f32 v{d+k}, v{x+k}, v{y+k}" if d==z else f"    v_fma_f32 v{d+k}, v{x+k}, v{y+k}, v{z+k}")
                    continue
            L.append(l)
        a.l[n0:]=L
    if X&(128|256|512):
        L=[]
        for l in a.l[n0:]:
            m=re.match(r"\s*v_mfma_f32_32x32x16_bf16 v\[(\d+):\d+\], v\[(\d+):\d+\], v\[(\d+):\d+\], (.*)",l)
            if m and int(m.group(1))<ACC:
                d,x,y=int(m.group(1)),int(m.group(2)),int(m.group(3))
                if X&128:
                    if y==ID0: L+=["    "+mfma16(d+4,x,ID0,None),"    "+mfma16(d+8,x,ID1,None)]
                    elif y==ID1: L.append("    "+mfma16(d+12,x,ID0,None))
                    else: L.append("    "+mfma16(d,x,y,None))
                if X&256:
                    if y!=ID1: L.append(l)
                if X&512:
                    if y==ID0: L.append(f"    v_mfma_f32_32x32x64_f8f6f4 v[{d}:{d+15}], v[{x}:{x+7}], v[{ID0}:{ID0+7}], v[{d}:{d+15}]")
                    elif y!=ID1: L.append(l)
            else: L.append(l)
        a.l[n0:]=L
    a("KF_LE:")
    if PRIO: a(f"s_bitcmp1_b32 42, s{sCNT}\ns_cbranch_scc1 KF_pr\nKF_pb:")
    a(f"""
s_sub_u32 s{sCNT}, s{sCNT}, 1
s_cbranch_scc0 KF_LOOP
""")
    def loop_tails():
        a(f"KF_lt:\ns_cmp_eq_u32 s{sCNT}, s{sWU}\ns_cbranch_scc0 KF_lb")
        sdma(sA,32768,0,TD)
        a(f"""
s_branch KF_lb
KF_pr:
""")
        if PROF and 'dyn' in PTS:
            a("s_mov_b32 s90, s92\ns_mov_b32 s91, s93\ns_mov_b32 s92, s94\ns_mov_b32 s93, s95\ns_mov_b32 s94, s96\ns_mov_b32 s95, s97")
            stamp(a,8); stamp(a,9,True)
        a(f"""
s_setprio 2
s_cmp_eq_u32 s{sCNT}, 5
s_cbranch_scc1 KF_pb
s_setprio 1
s_cmp_eq_u32 s{sCNT}, 3
s_cbranch_scc1 KF_pb
s_setprio 0
s_branch KF_pb
""")
    for j in range(4): a(f"v_rcp_f32 v{DD+j}, v{DD+j}")
    a("s_nop 0")
    finals(3)
    a("s_nop 1")
    a(mfma32(ACC+16,GP,SS,ACC+16))
    pt('loop')
    if PROF and 'clk' in PTS: stamp(a,7,True)
    for p in range(2):
        for j in range(4):
            c=ACC+16*p+4*j
            a(f"v_cvt_pk_bf16_f32 v{c}, v{c}, v{c+1}\nv_cvt_pk_bf16_f32 v{c+1}, v{c+2}, v{c+3}")
        for j in range(4): a(f"ds_write_b64 v{DR}, {P2(ACC+16*p+4*j)} offset:{AGB+128*p+16*j}")
    a(f"""
s_cmp_eq_u32 s{sHEAD}, 0
s_waitcnt vmcnt(0) lgkmcnt(0)
s_barrier
s_cbranch_scc1 KF_FIN
ds_read_b32 v4, v{eM0} offset:{AGB}
ds_read_b32 v5, v{eM1} offset:{AGB+48*AS}
""")
    tru(WU2,32768)
    a(f"""
s_waitcnt lgkmcnt(8)
v_lshlrev_b32 v6, 16, v4
v_and_b32 v7, 0xffff0000, v4
v_lshlrev_b32 v8, 16, v5
v_and_b32 v9, 0xffff0000, v5
v_pk_add_f32 v[6:7], v[6:7], v[8:9]
v_cvt_pk_bf16_f32 v6, v6, v7
ds_write_b32 v{eM0}, v6 offset:{AGB}
s_branch KF_FI2
KF_FIN:
""")
    tru(WU2,32768)
    a("KF_FI2:")
    bar('mrg')
    def afr(T):
        for s in range(4): a(f"ds_read_b128 {P4(XF+16*T+4*s)}, v{eFA} offset:{AGB+T*16*AS+64*s}")
    def fm(T):
        L=[]
        for s in range(4):
            x,y=(WU2+4*s,XF+16*T+4*s) if T<3 else (XF+16*T+4*s,WU2+4*s)
            L.append(mfma16(UA+4*T,x,y,UA+4*T))
        return L
    def EXP(T): return [f"v_exp_f32 v{EE+4*T+i}, v{UA+4*T+i}" for i in range(4 if T<3 else 1)]
    def RCP(T): return [f"v_rcp_f32 v{EE+4*T+i}, v{EE+4*T+i}" for i in range(4 if T<3 else 1)]
    def FMA(T): return [f"v_pk_fma_f32 {P2(EE+4*T+i)}, {P2(EE+4*T+i)}, {S2(sL2E)}, {S2(sL2E)}" for i in ((0,2) if T<3 else (0,))]
    def FIN(T):
        e=EE+4*T; c=UA+4*T
        return [f"v_pk_mul_f32 {P2(e)}, {P2(e)}, {P2(c)}",f"v_pk_mul_f32 {P2(e+2)}, {P2(e+2)}, {P2(c+2)}",
                f"v_cvt_pk_bf16_f32 v{e}, v{e}, v{e+1}",f"v_cvt_pk_bf16_f32 v{e+1}, v{e+2}, v{e+3}"]
    afr(0); afr(1); afr(2)
    a("s_waitcnt lgkmcnt(8)")
    for x in fm(0): a(x)
    afr(3)
    a("s_waitcnt lgkmcnt(8)")
    for x in fm(1): a(x)
    a("s_waitcnt lgkmcnt(4)")
    for x,y in zip(fm(2),EXP(0)): a(x); a(y)
    a("s_waitcnt lgkmcnt(0)")
    for x,y in zip(fm(3),EXP(1)): a(x); a(y)
    c=UA+12; e=EE+12
    for x in EXP(2)+FMA(0)+FMA(1)+EXP(3)+FMA(2)+RCP(0)+FMA(3)+RCP(1)+RCP(2)+RCP(3)+FIN(0)+FIN(1)+FIN(2)+[f"v_mul_f32 v{e}, v{e}, v{c}",f"v_cvt_pk_bf16_f32 v{e}, v{e}, v{e}"]: a(x)
    for T in range(3): a(f"ds_write_b64 v{eOW}, {P2(EE+4*T)} offset:{T*4096}")
    a(f"""
s_mov_b64 exec, 0xffff
ds_write_b16 v{eN48}, v{e}
s_mov_b64 exec, -1
s_cmp_lt_u32 s{sWV}, 5
""")
    bar('sil')
    a(f"""
ds_read_b128 {P4(A)}, v{eRD}
s_cbranch_scc0 KF_e1
ds_read_b128 {P4(A+4)}, v{eRD} offset:8192
s_mov_b64 exec, {S2(sE2)}
s_waitcnt lgkmcnt(0)
buffer_store_dwordx4 {P4(A+4)}, v{eST}, {SR4(sX)}, s{sE1} offen{OSC}
s_mov_b64 exec, -1
KF_e1:
s_waitcnt lgkmcnt(0)
buffer_store_dwordx4 {P4(A)}, v{eST}, {SR4(sX)}, s{sE0} offen{OSC}
""")
    pt('sto')
    a(f"""
s_or_b32 s{t0}, s2, s{sWV}
s_cbranch_scc1 KF_e2
v_mov_b32 v1, s{sNON}
v_mov_b32 v2, 0
s_mov_b64 exec, 1
buffer_store_dword v1, v2, {SR4(sR)}, 0 offen
KF_e2:
""")
    if PROF: a("s_waitcnt vmcnt(0)")
    stamp(a,10); stamp(a,11,True)
    stamp_out(a,1,sWV)
    a("KF_END:\ns_endpgm")
    loop_tails()
    hist_retry(8,"KT_h",True)
    a("KF_CEND:")
    SV=ACC; AGs=SV+8; RS_=SV+16
    a(f"""
KF_SLOW:
s_setprio 0
s_cmp_ge_u32 s{sWV}, 4
s_cselect_b32 s{sTOT}, 0, s{sTOT}
v_mov_b32 v1, s{sTOT}
ds_max_u32 v{VZ}, v1 offset:{mMX}
v_mov_b32 v{SS}, 0
v_mov_b32 v{SS+1}, 0
v_mov_b32 v{SS+2}, 0
v_mov_b32 v{SS+3}, 0
s_mov_b32 s{sLO}, 0
s_mov_b32 s{sLB}, s{sBUF}
s_sub_u32 s{t0}, s{sWV}, s{sT0}
s_lshl_b32 s{t0}, s{t0}, 4
v_add_u32 v{SV+4}, s{t0}, v{RB}
v_add_u32 v{SV+5}, s{t0}, v{SB}
s_lshl_b32 s{t0}, s{sWV}, 4
v_sub_u32 v{SV+6}, s{t0}, v{OHC}
v_and_b32 v{SV+7}, 31, v{VL}
v_lshlrev_b32 v{SV+7}, 2, v{SV+7}
v_lshlrev_b32 v1, 4, v0
""")
    for j in range(3): a(f"ds_write_b128 v1, {P4(SS)} offset:{AGG+j*8192}")
    a(f"""
v_lshlrev_b32 v1, 4, v{VL}
ds_write_b128 v1, {P4(SS)} offset:{AGG+3*8192}
s_waitcnt vmcnt(0) lgkmcnt(0)
s_barrier
ds_read_b32 v1, v{VZ} offset:{mMX}
s_waitcnt lgkmcnt(0)
v_readfirstlane_b32 s{sRND}, v1
KF_SR:
s_cmp_lt_u32 s{sLO}, s{sRND}
s_cbranch_scc0 KF_SE
s_barrier
v_lshlrev_b32 v1, 2, v{VL}
v_lshlrev_b32 v2, 8, v{VL}
ds_write_b32 v1, v2
s_waitcnt lgkmcnt(0)
s_barrier
s_cmp_ge_u32 s{sWV}, 4
s_cbranch_scc1 KF_S1
s_movk_i32 s{t3}, 256
""")
    expand("KF_x")
    a(f"s_sub_u32 s{t1}, s{sTOT}, s{sLO}")
    reclist(4)
    recload(4,"KF_rl")
    for i in range(4): a(f"s_mov_b64 {S2(sM+8+2*i)}, {S2(sM+2*i)}")
    hist(4,"KF_h",0,False)
    a("s_waitcnt lgkmcnt(0)")
    for i in range(4):
        a(f"""
v_mov_b32 v{RS_+4*i}, v{RC+4*i}
v_mov_b32 v{RS_+4*i+1}, v{RC+4*i+1}
v_mov_b32 v{RS_+4*i+2}, v{RC+4*i+2}
v_lshlrev_b32 v1, 6, v{RC+4*i+3}
v_sub_u32 v1, v{RK+i}, v1
v_cndmask_b32 v{RS_+4*i+3}, -1, v1, {S2(sM+8+2*i)}
""")
    a(f"""
KF_S1:
s_mov_b32 s{sHEAD}, 0                    ; 256*k
KF_SK:
s_waitcnt lgkmcnt(0)
s_barrier
s_cmp_ge_u32 s{sWV}, 4
s_cbranch_scc1 KF_S2
s_mov_b32 s{t1}, {EB}
""")
    for i in range(4):
        a(f"""
v_subrev_u32 v1, s{sHEAD}, v{RS_+4*i+3}
v_lshrrev_b32 v2, 19, v{RS_+4*i+2}
v_lshl_add_u32 v2, v2, 8, v1
v_lshl_add_u32 v3, v2, 1, s{t1}
v_cmpx_gt_u32 vcc, 0x100, v1
ds_write_b32 v2, v{RS_+4*i+2} offset:{WB}
ds_write_b64 v3, {P2(RS_+4*i)}
s_mov_b64 exec, -1
""")
    a("KF_S2:")
    scan(True)
    a(f"s_cmp_lg_u64 {S2(t2)}, 0\ns_cselect_b32 s{sFLAG}, 1, 0")
    fill("KFs",True,8)
    a(f"""
s_add_u32 s{sNT}, s{t0}, 127
s_lshr_b32 s{sNT}, s{sNT}, 7
s_waitcnt lgkmcnt(0)
s_barrier
v_mov_b32 v{RB}, v{SV+4}
v_mov_b32 v{SB}, v{SV+5}
v_mov_b32 v{SV+12}, v{SV+6}
s_mov_b32 s{sI}, s{sWV}
KF_SL:
s_cmp_lt_u32 s{sI}, s{sNT}
s_cbranch_scc0 KF_SN
""")
    rd_ga(0); rd_gg(0)
    for j in range(4): a(f"ds_read_u16 v{AGs+j}, v{SV+12} offset:{GL+2*j}")
    a("s_waitcnt lgkmcnt(0)")
    rd_y(); rd_idx()
    a("s_waitcnt lgkmcnt(0)")
    dma()
    for j in range(4): a(f"v_lshrrev_b32 v{AGs+j}, 8, v{AGs+j}")
    a(f"""
v_readfirstlane_b32 s{sQ}, v{AGs}
s_nop 3
s_and_b32 s{sQ}, s{sQ}, -2
s_lshl_b32 s{sQ}, s{sQ}, 3
s_sub_u32 s{sW8}, 0, s{sQ}
v_lshlrev_b32 v{OH2}, 1, v{OHC}
{win}
{rd_b}
{rd_a3}
""")
    for j in range(4): a(f"v_lshl_add_u32 v{AGs+j}, v{AGs+j}, 9, v{SV+7}")
    a("s_waitcnt vmcnt(0) lgkmcnt(0)")
    for t in range(8): a(rd_a(t))
    a("s_waitcnt lgkmcnt(0)")
    for q in range(4):
        z=Z[0]
        a(mfma32(z,AQ(q),B3+4*q,None)); a(mfma32(z,A+8*q,ID0,z)); a(mfma32(z,A+8*q+4,ID1,z))
        a("s_nop 15")
        for r in range(16): a(f"v_exp_f32 v{EE+r}, v{z+r}")
        for r in range(16): a(f"v_add_f32 v{EE+r}, 1.0, v{EE+r}")
        for r in range(16): a(f"v_rcp_f32 v{EE+r}, v{EE+r}")
        for m in range(4):
            for u in range(2):
                for par in range(2):
                    r=8*u+2*m+par; g=GP+2*u+par
                    a(f"v_mul_f32 v{g}, v{z+r}, v{EE+r}" if m==0 else f"v_fmac_f32 v{g}, v{z+r}, v{EE+r}")
        for j in range(4): a(f"ds_add_f32 v{AGs+j}, v{GP+j} offset:{AGG+q*128}")
        a("s_waitcnt lgkmcnt(0)")
    a(f"""
v_add_u32 v{SB}, 128, v{SB}
v_add_u32 v{RB}, 128, v{RB}
v_add_u32 v{SV+12}, 128, v{SV+12}
s_add_u32 s{sI}, s{sI}, 8
s_branch KF_SL
KF_SN:
s_add_u32 s{sHEAD}, s{sHEAD}, 256
s_cmp_lg_u32 s{sFLAG}, 0
s_cbranch_scc1 KF_SK
s_add_u32 s{sLO}, s{sLO}, 256
s_branch KF_SR
KF_SE:
s_cmp_ge_u32 s{sWV}, 4
s_cbranch_scc0 KF_SE2
""")
    sdma(sA,32768,0,TD)
    a(f"""
KF_SE2:
v_lshlrev_b32 v1, 4, v0
v_lshrrev_b32 v2, 5, v0
s_waitcnt vmcnt(0) lgkmcnt(0)
s_barrier
""")
    for j in range(4): a(f"ds_read_b128 {P4(A+4*j)}, v1 offset:{AGG+j*8192}")
    a(f"""
v_mul_u32_u24 v2, {AS}, v2
v_and_b32 v3, 31, v0
v_lshl_add_u32 v4, v3, 3, v2
s_waitcnt lgkmcnt(0)
s_barrier
""")
    for j in range(4):
        a(f"v_cvt_pk_bf16_f32 v{A+4*j}, v{A+4*j}, v{A+4*j+1}\nv_cvt_pk_bf16_f32 v{A+4*j+1}, v{A+4*j+2}, v{A+4*j+3}")
        a(f"ds_write_b64 v4, {P2(A+4*j)} offset:{AGB+j*16*AS}")
    epi_consts()
    a("s_branch KF_FIN")
    hist_retry(4,"KF_h",False)
    return a.text()

if __name__=='__main__':
    import sys
    nm='standalone__mpnn_edge_mlp__graph_kernel'
    hdr=open('standalone__mpnn_edge_mlp__graph.s.ref').read().split('; Override')[0]
    out=hdr+(f"; @launch kernel={nm} grid=(256,1,1) block=(512,1,1) lds={KF_LDS}\n" if os.environ.get('LISTF') else f"; @launch grid=(256,1,1) block=(512,1,1) lds={KF_LDS}\n")
    out+='.amdgcn_target "amdgcn-amd-amdhsa--gfx950"\n.text\n'
    out+=f".globl {nm}\n.p2align 8\n.type {nm},@function\n"+gen_kf(nm)
    out+='.section .rodata,"a"\n.p2align 6\n'+kd(nm,256)
    open(sys.argv[1],'w').write(out)
```

```python
from common import *
X=int(os.environ.get('X','0'))
PRIO=int(os.environ.get('PRIO','1'))
DSP=[int(c,36) for c in os.environ.get('DSP','00000000')]
def EV(n,d): return int(os.environ.get(n,d))
TPOS=EV('TPOS',6); PFP=EV('PFP',3); XORD=EV('XORD',1); WUI=EV('WUI',2); FLP=EV('FLP',1); FSL=EV('FSL',8); TE=EV('TE',0); W1N=EV('W1N',5); GP_=EV('GP',1); NT=os.environ.get('NT',''); SLP=EV('SLP',0); H1P=EV('H1P',10); SH3=EV('SH3',0); EP_=EV('EP',1); ESC=os.environ.get('ESC',''); PERM=EV('PERM',0); W2N=EV('W2N',8); UL=EV('UL',0); WU1L=EV('WU1L',0); W1E=EV('W1E',0); ZL=EV('ZL',0); FST=EV('FST',0); UNP=EV('UNP',0); TLB=EV('TLB',0); DBGP=EV('DBGP',0); ALN=EV('ALN',0); PFT=EV('PFT',1); PFK=EV('PFK',7); PF0=EV('PF0',0); PFN=EV('PFN',16); XP=EV('XP',0); PFI=EV('PFI',0); SWW=EV('SWW',1)
PTS=os.environ.get('PTS','b1,bS,tp,pfl,rl,b2,b3,pro').split(',')
SC=os.environ.get('LSC',' sc1')
SSC=os.environ.get('SSC',' sc1')
OSC=os.environ.get('OSC',' sc1')
GSC=os.environ.get('GSC',' sc1')
NPROD=250; EP=1600; RST=EP*16+128
F_P=0x1000; F_REC=0x400000; F_TBL=0xB00000; F_FLG=0xB90000; F_SIZE=0xBA0000
CNT=0; MISC=256; OH=400; GL=928; BT=1872; STB=2144; RS=944
mSLOW=MISC; mS=MISC+4; mGX=MISC+8; mGP=MISC+12; mC3=MISC+16; mPD=MISC+20; mSL=MISC+24; mMX=MISC+28; mPI=MISC+32; mH=MISC+36; mNT=MISC+40; mW=MISC+44; mE=MISC+48; mEM=MISC+52; mWU=MISC+64
AGB=17408
W3L=AGB+56*256
Q2=AGB+16384; QS=52*128
S1=Q2; ERAW=Q2+12800
WB=Q2+4*QS; NULLG=49*256; EB=WB+NULLG+16
HIST=WB; PSC=WB+2048
GBUF=98304
KF_LDS=GBUF+65536
assert EB+2*NULLG+32<=GBUF and STB+16*RS<=AGB
AGG=STB
ONE2=0x3F803F80
NULLW2=0xFFFF|(512<<16)
CAPT=58
ID0=4; ID1=8; B3=12; A=28; Z=[60,76]; A3=92; EE=96; NN=112; DD=116; GP=120; SS=124
IDX=128; AR=144; RB=152; SB=153; SA=154; VY=155; OHC=156; VL=157; WT=158; DR=159
ACC=160; WU2=192; UA=208; WF=160; WU1=176; QA=224; RC=96; XF=28; GA=192
TP=143; WV=151; A6=244; QAD=250; QC=145; SA2=146; SI2=148; OH2=150; GA0=232; YA=234; EA=235; M4=236; EC=237; VZ=238; PO=92; TRU=240; TD=241; TC=242; TO=243; RK=244; FA=252
sP=24; sX=28; sA=32; sR=36; sM=40
sWV=56; sK=57; sNN=58; sI=59; sNT=60; sBUF=61; sQ=62; sW8=63; sCNT=64; sT0=65
sL2E=66; sINC=68; sRND=70; sTOT=71; sNON=72; sBUD=73; sW4=74; sLB=75
sWU=3; sW4K=22; sOT=23; sFLAG=76; sLO=77; sMA=78; sQ2=80; s128=81; sHEAD=82; sNF=83
t0,t1,t2,t3=84,85,86,87
BUDGET=100000
sNB=2 if PERM else sK

def mfma32(d,x,y,c): return f"v_mfma_f32_32x32x16_bf16 v[{d}:{d+15}], v[{x}:{x+3}], v[{y}:{y+3}], "+("0" if c is None else f"v[{c}:{c+15}]")
def mfma16(d,x,y,c): return f"v_mfma_f32_16x16x32_bf16 v[{d}:{d+3}], v[{x}:{x+3}], v[{y}:{y+3}], "+("0" if c is None else f"v[{c}:{c+3}]")
def mfma4(d,x,c): return f"v_mfma_f32_4x4x4_16b_bf16 v[{d}:{d+3}], v[{x}:{x+1}], v[{ID0}:{ID0+1}], "+("0" if c is None else f"v[{c}:{c+3}]")
def P2(r): return f"v[{r}:{r+1}]"
def P4(r): return f"v[{r}:{r+3}]"
def S2(r): return f"s[{r}:{r+1}]"
def SR4(r): return f"s[{r}:{r+3}]"

def gen_kf(name):
    a=Asm()
    def pt(n):
        if PROF and n in PTS: stamp(a,2+PTS.index(n))
    def ret(n):
        if PROF and n in PTS: a(f"s_sub_u32 s{90+PTS.index(n)}, {BUDGET}, s{sBUD}\ns_mul_i32 s{90+PTS.index(n)}, s{90+PTS.index(n)}, 100")
    def bar(n,w="s_waitcnt lgkmcnt(0)"):
        a(w+"\ns_barrier"); pt(n)
    def gsync(n,lab,off,target,va,vt,pre=None):
        if pre: a(pre)
        a(f"""
v_mov_b32 v{vt}, 1
s_mov_b64 exec, 1
ds_add_u32 v{va}, v{vt} offset:{off}
s_mov_b64 exec, -1
{lab}:
ds_read_b32 v{vt}, v{va} offset:{off}
s_waitcnt lgkmcnt(0)
v_readfirstlane_b32 s{t1}, v{vt}
s_and_b32 s{t1}, s{t1}, 255
s_cmp_lt_u32 s{t1}, {target}
s_cbranch_scc1 {lab}
""")
        pt(n)
    def gwait(lab,off,target,va,vt):
        if SLP: a(f"s_branch {lab}_\n{lab}:\ns_sleep {SLP}\n{lab}_:")
        else: a(f"{lab}:")
        a(f"""
ds_read_b32 v{vt}, v{va} offset:{off}
s_waitcnt lgkmcnt(0)
v_readfirstlane_b32 s{t1}, v{vt}
s_and_b32 s{t1}, s{t1}, 255
s_cmp_lt_u32 s{t1}, {target}
s_cbranch_scc1 {lab}
""")
    def consts():
        srd(a,sP,20,N,off=F_P-3072,stride=256)
        srd(a,sR,20,F_SIZE)
        a(f"""
s_cmp_lt_u32 s{sNB}, {N-256*48}
s_cselect_b32 s{sNN}, 49, 48
s_mov_b32 s{sL2E}, {hex(LOG2E_NEG)}
s_mov_b32 s{sL2E+1}, {hex(LOG2E_NEG)}
s_mov_b32 s{sINC}, 16
s_mov_b32 s{sINC+1}, 16
s_mov_b32 s{sMA}, 0x0000ffff
s_mov_b32 s{sMA+1}, 0x0000ffff
s_mov_b32 s{sQ2}, {Q2}
s_mov_b32 s{sBUD}, {BUDGET}
v_lshrrev_b32 v2, 5, v{VL}              ; h
; g = 4 b2 + 2 b4 + b0 ; m = 2 b3 + b1 ; slot = 16 b2 + 4 m + (g&3)
v_lshrrev_b32 v1, 3, v{VL}
v_and_b32 v1, 2, v1
v_and_or_b32 v1, v{VL}, 5, v1           ; g
v_lshlrev_b32 v{RB}, 1, v1
v_lshlrev_b32 v3, 1, v{VL}
v_and_b32 v3, 4, v3
v_and_or_b32 v{M4}, v{VL}, 8, v3        ; 4m
v_lshlrev_b32 v{EC}, 1, v{M4}
v_add_u32 v{EC}, {EB}, v{EC}
v_and_b32 v{WT}, 15, v{VL}              ; n / c16
v_lshlrev_b32 v3, 1, v3
v_and_or_b32 v3, v{VL}, 1, v3
v_lshl_or_b32 v3, v2, 2, v3
v_lshl_add_u32 v{AR}, v3, 7, s{sBUF}
v_bfe_u32 v1, v{VL}, 1, 1
v_bfe_u32 v3, v{VL}, 2, 3
v_xor_b32 v1, v1, v3
v_lshl_add_u32 v{AR}, v1, 4, v{AR}
v_mul_i32_i24 v{OHC}, -8, v2
v_mul_u32_u24 v{SA}, {RS}, v{WT}
v_and_b32 v1, 1, v{VL}
v_lshlrev_b32 v1, 4, v1
v_mov_b32 v3, 0x3f80
v_lshlrev_b32 v1, v1, v3
""")
        a(f"s_mov_b32 vcc_lo, 0x33333333\ns_mov_b32 vcc_hi, 0x33333333\nv_cndmask_b32 v{ID0}, 0, v1, vcc\nv_sub_u32 v{ID0+1}, v1, v{ID0}")
        a(f"""
v_lshrrev_b32 v2, 4, v{VL}              ; a / g
v_lshrrev_b32 v{SB}, 2, v{VL}
v_and_b32 v{SB}, 14, v{SB}
v_and_b32 v1, 7, v{VL}
v_lshlrev_b32 v1, 4, v1
s_movk_i32 s{s128}, 128
""")
        for i in range(4): a(f"v_xor_b32 v{IDX+2*i+1}, {(i&1)*16+3072-1024*i}, v1")
        a(f"v_xor_b32 v3, v2, v{WT}\nv_lshlrev_b32 v3, 4, v3\nv_lshl_add_u32 v3, v{WT}, 8, v3\nv_add_u32 v{FA}, {AGB}, v3")
        for s in range(1,4): a(f"v_xor_b32 v{FA+s}, {64*s}, v{FA}")
        a(f"""
s_lshl_b32 s{t0}, s{sW4}, 13
s_add_u32 s{t0}, s{t0}, {GBUF}
s_lshr_b32 s{t1}, s{sWV}, 2
v_lshrrev_b32 v1, 2, v{WT}
v_lshl_add_u32 v1, v2, 3, v1
v_lshl_add_u32 v{DR}, v1, 6, s{t0}
v_xor_b32 v2, s{t1}, v2
v_and_b32 v2, 1, v2
v_and_b32 v3, 3, v{VL}
v_lshl_add_u32 v{TRU}, v2, 5, v{DR}
v_lshl_add_u32 v{TRU}, v3, 3, v{TRU}
v_lshrrev_b32 v2, 3, v{VL}
v_and_b32 v2, 2, v2
v_xor_b32 v2, v2, v3
v_lshl_add_u32 v{TP}, v2, 4, v{DR}
""")
    def tagh():
        a(f"""
s_mul_i32 s{sNON}, s{sNON}, 0x9E3779B1
s_add_u32 s{sNON}, s{sNON}, 0x7F4A7C15
s_lshr_b32 s{t1}, s{sNON}, 15
s_xor_b32 s{sNON}, s{sNON}, s{t1}
""")
    def vyc(VY=VY):
        a(f"""
v_lshrrev_b32 v1, 4, v{VL}
v_and_b32 v1, 2, v1
v_xor_b32 v1, v1, v{VL}
v_and_b32 v1, 3, v1
v_lshlrev_b32 v1, 4, v1
v_lshrrev_b32 v2, 2, v{VL}
v_lshl_or_b32 v{VY}, v2, 8, v1
""")
    def trfrag(dst,addr,off,ks,hs):
        for s in range(4):
            a(f"ds_read_b64_tr_b16 {P2(dst+4*s)}, v{addr} offset:{off+s*ks}\nds_read_b64_tr_b16 {P2(dst+4*s+2)}, v{addr} offset:{off+s*ks+hs}")
    def tru(dst,off): trfrag(dst,TRU,off,2048,256)
    def sdma(sr,moff,loff=0,v=VY,js=range(8)):
        a(f"s_lshl_b32 s{t0}, s{sW4}, 6")
        for j in js:
            a(f"s_add_u32 m0, s{sBUF}, {loff+j*1024}\ns_add_u32 s{t1}, s{t0}, {moff+j*4096}\nbuffer_load_dwordx4 v{v}, {SR4(sr)}, s{t1} offen lds")
    def xfrags(Ts):
        for T in Ts:
            for s in range(4): a(f"ds_read_b128 {P4(XF+16*T+4*s)}, v{FA+s} offset:{T*4096}")
    def trw(): trfrag(WF,TP,32768,2048,256); trfrag(WF+16,TP,32768+8,2048,256)
    def um(r,tau,i,xf,acc,WF=WF):
        L=[]
        for s in range(4):
            w,x=WF+16*i+4*s,xf+4*s
            d=UA+8*tau+4*i
            L.append(mfma16(d,*((x,w) if (r,tau)==(1,1) else (w,x)),d if (acc or s) else None))
        return L
    def ugemm(r):
        for tau in range(2):
            for i in range(2):
                for x in um(r,tau,i,XF+16*(2*r+tau),False): a(x)
        a("s_nop 4")
        for j in ((0,2,4,6,8,10,12,14) if r==0 else (0,2,4,6,8,12)): a(f"v_pk_mul_f32 {P2(UA+j)}, {P2(UA+j)}, {S2(sL2E)}")
    def w3rd():
        a(f"v_lshlrev_b32 v1, 3, v{VL}")
        for q in range(4): a(f"ds_read_b64 {P2(B3+4*q+2*(q&1))}, v1 offset:{W3L+q*512}")
    F=A3
    def scan(slow):
        a(f"""
v_lshlrev_b32 v1, 2, v{VL}
ds_read_b32 v{F}, v1
v_cmp_gt_u32 vcc, s{sNN}, v{VL}
v_lshlrev_b32 v{F+1}, 8, v{VL}
s_waitcnt lgkmcnt(0)
v_sub_u32 v{QA}, v{F}, v{F+1}
""")
        if slow:
            a(f"""
s_movk_i32 s{t1}, 256
v_subrev_u32 v{QA}, s{sHEAD}, v{QA}
v_cmp_lt_i32 {S2(t2)}, s{t1}, v{QA}
v_med3_i32 v{QA}, v{QA}, 0, s{t1}
v_add_u32 v{F}, v{F+1}, v{QA}
""")
        a(f"""
v_add_u32 v3, 12, v{QA}
v_and_b32 v3, -16, v3
v_max_u32 v3, 80, v3
v_cndmask_b32 v3, 0, v3, vcc
v_mov_b32 v2, v3
""")
        dpp_scan(a,"v_add_u32",[2])
        a(f"""
v_readlane_b32 s{t0}, v2, 63
v_sub_u32 v2, v2, v3
""")
    def fill(lab,slow,nw):
        a(f"""
s_lshl_b32 s{t1}, s{sWV}, 4
v_add_u32 v{QA+1}, s{t1}, v2
v_lshrrev_b32 v{QA+1}, 3, v{QA+1}       ; 2*(G0+w)
v_add_u32 v{F+1}, s{t1}, v{F+1}         ; 256n+16w
v_subrev_u32 v{QA+2}, s{t1}, v3         ; g16-16w
""")
        if not slow: a(f"v_add_u32 v{QA+3}, v{QA+1}, v{SA}\nv_mov_b32 v{F+3}, 0x3f80\nds_write_b32 v1, v2 offset:{BT}")
        for k in range(16//nw):
            a(f"v_cmpx_lt_i32 vcc, {16*nw*k}, v{QA+2}\nds_write_b16 v{QA+1}, v{F+1+(k&1)} offset:{GL+2*nw*k}")
            if k+1<16//nw: a(f"v_add_u32 v{F+1+((k+1)&1)}, {16*nw}, v{F+1+(k&1)}")
            if not slow: a(f"ds_write_b16 v{QA+3}, v{F+3} offset:{STB+2*nw*k}")
        a(f"""
s_mov_b64 exec, -1
s_lshl_b32 s{t1}, s{sWV}, 2
v_sub_u32 v{QA+2}, v3, v{QA}
v_add_u32 v{F}, s{t1}, v{F}
v_subrev_u32 v{QA+2}, s{t1}, v{QA+2}    ; pad4 - 4w
s_mov_b32 s{t1}, {EB}
v_mov_b32 v{QA+4}, 0
v_mov_b32 v{QA+5}, 0
v_mov_b32 v{QA+6}, {hex(NULLW2)}
v_lshl_add_u32 v{QA+7}, v{F}, 1, s{t1}
""")
        for k in range(-(-20//nw)):
            a(f"v_cmpx_lt_i32 vcc, {4*nw*k}, v{QA+2}")
            if k==1: a(f"s_cbranch_vccz {lab}p")
            a(f"ds_write_b32 v{F}, v{QA+6} offset:{WB+4*nw*k}\nds_write_b64 v{QA+7}, {P2(QA+4)} offset:{8*nw*k}")
        a(f"""
{lab}p:
s_mov_b64 exec, -1
s_cmp_eq_u32 s{sWV}, 3
s_cbranch_scc0 {lab}q
s_lshr_b32 s{t1}, s{t0}, 3
v_lshl_add_u32 v{QA+1}, v{VL}, 1, s{t1}
v_mov_b32 v{QA+2}, {NULLG}
v_add_u32 v{QA+3}, {NULLG}, v1
v_lshlrev_b32 v{QA+7}, 1, v1
v_add_u32 v{QA+7}, {EB+2*NULLG}, v{QA+7}
s_mov_b64 exec, 0xff
ds_write_b16 v{QA+1}, v{QA+2} offset:{GL}
s_mov_b64 exec, 15
ds_write_b32 v{QA+3}, v{QA+6} offset:{WB}
ds_write_b64 v{QA+7}, {P2(QA+4)}
s_mov_b64 exec, -1
{lab}q:
""")
    def expand(lab,win=True):
        if win: a(f"""
v_subrev_u32 v1, s{sLO}, v{TO}
v_add_u32 v2, v1, v{TC}
v_med3_i32 v1, v1, 0, s{t3}
v_med3_i32 v2, v2, 0, s{t3}
v_sub_u32 v2, v2, v1
v_lshl_add_u32 v1, v1, 2, s{sLB}
""")
        a(f"{lab}:")
        for j in range(16):
            a(f"v_cmpx_lt_i32 vcc, {j}, v2")
            if j==13: a(f"s_cbranch_vccz {lab}z")
            a(f"ds_write_b32 v1, v{TD} offset:{4*j}")
        a(f"""
v_add_u32 v2, -16, v2
v_add_u32 v1, 64, v1
v_cmp_lt_i32 vcc, 0, v2
s_cmp_lg_u64 vcc, 0
s_cbranch_scc1 {lab}
{lab}z:
s_mov_b64 exec, -1
""")
    def rl1(i): return f"buffer_load_dwordx4 {P4(RC+4*i)}, v{RK+i}, {SR4(sR)}, {'0' if i<4 else 's'+str(sQ)} offen offset:{1024*(i&3)}{SC}"
    def reclist(ns):
        a(f"v_lshl_add_u32 v1, v{VL}, 2, s{sLB}")
        for i in reversed(range(ns)): a(f"ds_read_b32 v{RK+i}, v1 offset:{256*i}")
        a(f"v_add_u32 v2, s{sLO}, v{VL}\nv_lshlrev_b32 v2, 4, v2\ns_movk_i32 s{sQ}, 4096")
        for i in range(ns):
            a(f"v_cmp_gt_i32 {S2(sM+2*i)}, s{t1}, v{VL}\ns_sub_u32 s{t1}, s{t1}, 64")
        a("s_waitcnt lgkmcnt(0)")
        for i in range(ns): a(f"v_add_u32 v{RK+i}, v{RK+i}, v2")
    def recload(ns,lab):
        for i in reversed(range(ns)):
            a(f"s_mov_b64 exec, {S2(sM+2*i)}\ns_cbranch_execz {lab}{i}\n{rl1(i)}\n{lab}{i}:")
        a("s_mov_b64 exec, -1")
    def hist(ns,lab,extra,scat):
        a(f"v_mov_b32 v1, 4\ns_mov_b32 s{sW8}, {EB}\n{lab}p:")
        def gm(i): return S2(t0+2*(i&1))
        def sc(i,n):
            a(f"""
s_mov_b64 exec, {gm(i)}
s_waitcnt lgkmcnt({n})
v_min_u32 v{RK+i}, {NULLG-4}, v{RK+i}
v_lshl_add_u32 v{RC+4*i+3}, v{RK+i}, 1, s{sW8}
ds_write_b32 v{RK+i}, v{RC+4*i+2} offset:{WB}
ds_write_b64 v{RC+4*i+3}, {P2(RC+4*i)}
""")
        for i in reversed(range(ns)):
            a(f"""
s_mov_b64 exec, {S2(sM+2*i)}
s_waitcnt vmcnt({i+extra})
v_cmpx_eq_u32 {gm(i)}, s{sNON}, v{RC+4*i+3}
v_lshrrev_b32 v{RC+4*i+3}, 17, v{RC+4*i+2}
ds_add_rtn_u32 v{RK+i}, v{RC+4*i+3}, v1
s_andn2_b64 {S2(sM+2*i)}, {S2(sM+2*i)}, {gm(i)}
""")
            a(f"s_mov_b64 vcc, {S2(sM+2*i)}" if i==ns-1 else f"s_or_b64 vcc, vcc, {S2(sM+2*i)}")
            if scat and i==0 and 0: pass
            if scat and i==0: a(f"s_cselect_b64 exec, 0, 1\nds_add_u32 v{VZ}, v1 offset:{mH}")
            if scat and i<ns-1: sc(i+1,(1 if i==ns-2 else 3)+(1 if i==0 else 0))
        if scat: sc(0,3)
        a(f"s_cbranch_vccnz {lab}r\n{lab}d:\ns_mov_b64 exec, -1")
    def hist_retry(ns,lab,scat):
        a(f"{lab}r:\ns_sub_u32 s{sBUD}, s{sBUD}, 1\ns_cbranch_scc1 {lab}x")
        recload(ns,lab+"l")
        a(f"s_waitcnt vmcnt(0)\ns_branch {lab}p\n{lab}x:\ns_mov_b32 s{sBUD}, 0")
        if scat: a(f"s_mov_b64 exec, 1\nds_add_u32 v{VZ}, v1 offset:{mH}")
        a(f"s_branch {lab}d")
    def qfull(lab,mid):
        H=QA+4; MX=QA+1
        a(f"v_xor_b32 v{TC}, 32, v{TRU}")
        trfrag(WF,TC,0,2048,256)
        a(f"""
s_lshl_b32 s{t0}, s{sW4}, 8
s_add_u32 s{t0}, s{t0}, {Q2}
v_lshrrev_b32 v1, 4, v{VL}
v_lshl_add_u32 v120, v1, 11, s{t0}
v_and_b32 v1, 8, v{VL}
v_lshl_add_u32 v120, v1, 3, v120
v_and_b32 v1, 3, v{VL}
v_lshl_add_u32 v120, v1, 4, v120
v_and_b32 v1, 4, v{VL}
v_lshl_add_u32 v120, v1, 1, v120
v_add_u32 v121, 128, v120
s_waitcnt lgkmcnt(0)
""")
        tru(WF+16,0)
        def cv(i,T,pk):
            c=GA+16*i+4*T
            L=[]
            if pk: L+=[f"v_pk_mul_f32 {P2(c)}, {P2(c)}, {S2(sL2E)}",f"v_pk_mul_f32 {P2(c+2)}, {P2(c+2)}, {S2(sL2E)}"]
            else: L+=[f"v_mul_f32 v{c+k}, s{sL2E}, v{c+k}" for k in range(4)]
            L+=[f"v_and_b32 v{H+k}, 0xffff0000, v{c+k}" for k in range(4)]
            L+=[f"v_maximum3_f32 v{MX}, {'0' if T==0 and i==0 else 'v'+str(MX)}, abs(v{c}), abs(v{c+1})",f"v_maximum3_f32 v{MX}, v{MX}, abs(v{c+2}), abs(v{c+3})"]
            if pk: L+=[f"v_pk_add_f32 {P2(c)}, {P2(c)}, {P2(H)} neg_lo:[0,1] neg_hi:[0,1]",f"v_pk_add_f32 {P2(c+2)}, {P2(c+2)}, {P2(H+2)} neg_lo:[0,1] neg_hi:[0,1]"]
            else: L+=[f"v_sub_f32 v{c+k}, v{c+k}, v{H+k}" for k in range(4)]
            L+=[f"v_cvt_pk_bf16_f32 v{c+k}, v{c+k}, v{H+k}" for k in range(4)]
            return L
        for T in range(4):
            for s in range(4): a(mfma16(GA+4*T,XF+16*T+4*s,WF+4*s,None if s==0 else GA+4*T))
        a("s_waitcnt lgkmcnt(0)")
        fl=cv(0,0,0)+cv(0,1,0)
        for T in range(4):
            for s in range(4):
                a(mfma16(GA+16+4*T,XF+16*T+4*s,WF+16+4*s,None if s==0 else GA+16+4*T))
                for _ in range(2): a(fl.pop(0))
        if PFI==0: mid()
        for x in fl+cv(0,2,1)+cv(1,0,1)+cv(1,1,1)+cv(1,2,1): a(x)
        if PFI==1: mid()
        gwait(lab+"w",mSL,4,VZ,1)
        for i in range(2):
            for T in range(3):
                c=GA+16*i+4*T
                a(f"ds_write2st64_b64 v{120+i}, {P2(c)}, {P2(c+2)} offset0:{16*T} offset1:{16*T+2}")
        a("s_mov_b64 exec, 0xffff")
        for i in range(2):
            c=GA+16*i+12
            a(f"""
v_mul_f32 v{c}, s{sL2E}, v{c}
v_and_b32 v{H}, 0xffff0000, v{c}
v_maximum3_f32 v{MX}, v{MX}, abs(v{c}), abs(v{c})
v_sub_f32 v{c}, v{c}, v{H}
v_cvt_pk_bf16_f32 v{c}, v{c}, v{H}
ds_write2st64_b64 v{120+i}, {P2(c)}, {P2(c+2)} offset0:48 offset1:50
""")
        a(f"""
s_mov_b64 exec, -1
v_cmp_nge_f32 vcc, 0x40e80000, v{MX}
s_cbranch_vccz {lab}q
ds_write_b32 v{VZ}, v{FA} offset:{mSLOW}
{lab}q:
""")
        pt('qd')
    def ranges():
        a(f"""
s_lshr_b32 s{sCNT}, s{sNT}, 3
s_mul_i32 s{sT0}, s{sCNT}, s{sWV}
s_and_b32 s{t2}, s{sNT}, 7
s_min_u32 s{t3}, s{t2}, s{sWV}
s_add_u32 s{sT0}, s{sT0}, s{t3}
s_cmp_lt_u32 s{sWV}, s{t2}
s_addc_u32 s{sCNT}, s{sCNT}, 0
s_lshl_b32 s{t0}, s{sT0}, 7
s_lshl_b32 s{t2}, s{sT0}, 4
v_add_u32 v{SB}, s{t2}, v{SB}
v_add_u32 v{RB}, s{t2}, v{RB}
s_add_u32 s{t3}, s{sT0}, s{sCNT}
v_min_u32 v1, 8, v{VL}
v_sub_u32 v1, s{t3}, v1
v_lshlrev_b32 v1, 4, v1
v_max_i32 v1, 0, v1
""")
    AS=272; OST=GBUF+32768
    eFA,eOW,eN48,eRD,eST,eM0,eM1=136,137,138,139,140,141,142
    sE0,sE1,sE2=4,5,6
    def epi_consts():
        srd(a,sX,16,N*256)
        vyc(WV)
        a(f"""
v_and_b32 v1, 15, v{VL}
v_lshrrev_b32 v2, 4, v{VL}
v_mul_u32_u24 v3, {AS}, v1
s_lshr_b32 s{t0}, s{sWV}, 2
s_mul_i32 s{t1}, s{t0}, {32*AS}
v_lshl_add_u32 v3, v2, 4, v3
v_add_u32 v{eFA}, s{t1}, v3
s_lshl_b32 s{t0}, s{t0}, 13
s_add_u32 s{t0}, s{t0}, {OST}
s_lshl_b32 s{t1}, s{sW4}, 2
v_or_b32 v2, s{t1}, v2
v_xor_b32 v2, v2, v1
v_lshl_add_u32 v2, v2, 4, s{t0}
v_lshl_add_u32 v{eOW}, v1, 8, v2
s_lshl_b32 s{t0}, s{sW4}, 6
s_add_u32 s{t0}, s{t0}, {OST+48*256}
v_and_b32 v2, 12, v1
v_lshl_add_u32 v2, v2, 2, s{t0}
v_and_b32 v3, 3, v1
v_lshl_add_u32 v{eN48}, v3, 1, v2
v_lshlrev_b32 v1, 4, v0
v_add_u32 v{eRD}, {OST}, v1
v_lshrrev_b32 v2, 4, v0
v_xor_b32 v3, v2, v0
v_and_b32 v3, 15, v3
v_lshlrev_b32 v3, 4, v3
v_lshl_add_u32 v{eST}, v2, 16, v3
s_lshl_b32 s{sE0}, s{sNB}, 8
s_add_u32 s{sE1}, s{sE0}, {32*65536}
s_cmp_lt_u32 s{sWV}, 4
s_cselect_b64 {S2(sE2)}, -1, 0xffff
s_mul_i32 s{t0}, s{sWV}, {AS}
v_lshl_add_u32 v{eM1}, v{VL}, 2, s{t0}
v_lshlrev_b32 v{OH2}, 1, v{OHC}
v_and_b32 v1, 31, v{VL}
v_lshlrev_b32 v1, 4, v1
v_lshlrev_b32 v2, 5, v{VL}
v_and_b32 v2, 0x400, v2
v_add3_u32 v{QC}, v1, v2, s{sQ2}
v_cndmask_b32 v{SI2}, 0, 16, {S2(sMA)}
v_cndmask_b32 v{SI2+1}, 16, 0, {S2(sMA)}
v_sub_u32 v2, v{SA}, v{OHC}
v_add_u32 v2, {STB}, v2
v_mov_b32 v1, {OH+64}
v_cndmask_b32 v{SA2}, v1, v2, {S2(sMA)}
v_cndmask_b32 v{SA2+1}, v2, v1, {S2(sMA)}
""")
    def arrive(off,vt): a(f"v_mov_b32 v{vt}, 1\ns_mov_b64 exec, 1\nds_add_u32 v{VZ}, v{vt} offset:{off}\ns_mov_b64 exec, -1")

    D=28; SRc=36; K=44; R=52; W2=60; RO=80
    sD=40; sS=44; sE=48
    Q16="s_mov_b64 exec, 0xffff"; FULL="s_mov_b64 exec, -1"
    a(f"""
{name}:
{"s_memrealtime s[88:89]" if PROF and FST else ""}
s_getpc_b64 {S2(t2)}
s_cmp_ge_u32 s2, 256
s_cbranch_scc1 KF_END
s_load_dwordx16 s[4:19], s[0:1], 0
s_load_dwordx2 s[20:21], s[0:1], 64
v_lshrrev_b32 v1, 6, v0
s_and_b32 s{t0}, s2, 0xf8
v_add_lshl_u32 v2, v1, s{t0}, 7
v_readfirstlane_b32 s{sWV}, v1
v_min_u32 v2, KF_CEND-{name}-16, v2
s_mov_b64 exec, 1
global_load_dword v{QA+15}, v2, {S2(t2)}
s_mov_b64 exec, -1
v_and_b32 v{VL}, 63, v0
v_mov_b32 v{VZ}, 0
v_lshlrev_b32 v113, 4, v{VL}
s_and_b32 s{sK}, s2, 7
s_lshl_b32 s{sK}, s{sK}, 5
s_lshr_b32 s{t1}, s2, 3
s_or_b32 s{sK}, s{sK}, s{t1}
s_and_b32 s{sW4}, s{sWV}, 3
s_lshl_b32 s{sW4K}, s{sW4}, 10
s_cmp_ge_u32 s{sWV}, 4
s_cbranch_scc0 KF_S
v_lshlrev_b32 v2, 2, v0
v_lshlrev_b32 v3, 8, v{VL}
ds_write_b32 v2, v{VZ} offset:{HIST-1024}
v_lshlrev_b32 v2, 2, v{VL}
ds_write2st64_b32 v2, v3, v{VZ} offset0:0 offset1:1
v_bfe_u32 v1, v0, 4, 4
v_xor_b32 v37, v1, v0
v_and_b32 v37, 15, v37
v_lshlrev_b32 v37, 4, v37
v_lshl_add_u32 v36, v1, 8, s{sNB}
s_waitcnt lgkmcnt(0)
""")
    if WSB: a(f"s_add_u32 s20, s20, {hex(WSB)}\ns_addc_u32 s21, s21, 0")
    (0 if FST else stamp(a,0,True)); stamp(a,1); pt('st')
    a(f"""
""")
    if XORD==0:
        srd(a,sX,4,N,stride=256)
        for j in range(4):
            if j==3: a(f"s_cmp_eq_u32 s{sWV}, 4\ns_cbranch_scc0 KT_c")
            a(f"s_add_u32 m0, s{sW4K}, {AGB+j*4096}\ns_nop 0\nbuffer_load_dwordx4 v[36:37], {SR4(sX)}, 0 idxen offen{NT} lds\nv_add_u32 v36, 4096, v36")
        a("KT_c:")
    a(f"""
s_load_dword s{sNON}, s[20:21], 0
s_lshr_b32 s{t0}, s{t0}, 1
s_add_u32 s{t0}, s{t0}, s{sWV}
s_sub_u32 s{t0}, s{t0}, 4
s_lshl_b32 s{t0}, s{t0}, 9
v_lshl_add_u32 v2, v{VL}, 7, s{t0}
s_mov_b64 exec, 15
global_load_dword v{QA+15}, v2, s[12:13]
global_load_dword v{QA+15}, v2, s[14:15]
s_mov_b64 exec, -1
""")
    if TLB:
        a(f"""
s_lshr_b32 s{t0}, s{t0}, 9
s_mul_i32 s{t1}, s{t0}, {2*RST}
s_add_u32 s{t1}, s{t1}, {F_REC+EP*16}
s_add_u32 s52, s20, s{t1}
s_addc_u32 s53, s21, 0
s_load_dword s44, s[52:53], 0
s_load_dword s45, s[52:53], {RST}
""")
    a(f"""
s_branch KF_B0
KF_S:
s_min_u32 s{t2}, s2, {NPROD-1}
s_mul_i32 s{t2}, s{t2}, {EP*4}
s_mul_i32 s{t3}, s{sWV}, 400
v_add_u32 v108, s{t3}, v{VL}
v_lshlrev_b32 v109, 2, v108
s_mov_b32 s{sD+2}, {E*4}
s_mov_b32 s{sD+3}, 0x00020000
s_waitcnt lgkmcnt(0)
""")
    if WSB: a(f"s_add_u32 s20, s20, {hex(WSB)}\ns_addc_u32 s21, s21, 0")
    (0 if FST else stamp(a,0,True)); stamp(a,1); pt('st')
    a(f"s_mov_b32 s{sD}, s10\ns_and_b32 s{sD+1}, s11, 0xffff")
    def ld7(dst,sr):
        for i in range(7):
            if i==6: a(Q16)
            a(f"buffer_load_dword v{dst+i}, v109, {SR4(sr)}, s{t2} offen offset:{i*256}{NT}")
        a(FULL)
    ld7(D,sD); pt('dl')
    srd(a,sS,8,E*4); srd(a,sE,6,E*8)
    ld7(SRc,sS)
    a(f"""
s_lshl_b32 s{sLB}, s{t3}, 3
s_lshl_b32 s{t2}, s{t2}, 1
s_add_u32 s{t2}, s{t2}, s{sLB}
s_add_u32 m0, s{sLB}, {ERAW}
s_add_u32 s{sLB}, s{sLB}, {S1}
""")
    for j in range(4):
        if j==3: a("s_mov_b64 exec, 0xff")
        a(f"buffer_load_dwordx4 v113, {SR4(sE)}, s{t2} offen offset:{1024*j}{NT} lds")
    a(FULL)
    a(f"""
KF_B0:
""")
    if DBGP:
        a("v_mov_b32 v1, 0")
        for j,r in enumerate((4,6,8,10,12,14,16,18,20)): a(f"v_writelane_b32 v1, s{r}, {j}")
        a(f"v_lshlrev_b32 v2, 2, v{VL}\ns_mov_b64 exec, 0x1ff\nglobal_store_dword v2, v1, s[18:19]\ns_mov_b64 exec, -1\ns_waitcnt vmcnt(0)")
    if ALN: a(f"s_add_u32 s20, s20, {ALN-1}\ns_addc_u32 s21, s21, 0\ns_and_b32 s20, s20, {-ALN}")
    a(f"""
s_lshl_b32 s{sBUF}, s{sWV}, 13
s_add_u32 s{sBUF}, s{sBUF}, {GBUF}
s_barrier
""")
    if W1E:
        a(f"s_cmp_ge_u32 s{sWV}, 4\ns_cbranch_scc0 KF_c0")
        srd(a,sA,12,260*256); vyc(); sdma(sA,0,0,VY,range(W1E))
        a("KF_c0:")
    consts()
    a(f"""
s_cmp_ge_u32 s{sWV}, 4
s_cbranch_scc1 KF_T
v_mov_b32 v111, 8
v_and_b32 v124, 7, v{VL}
v_lshlrev_b32 v124, 7, v124
v_lshrrev_b32 v125, 3, v{VL}
v_lshl_add_u32 v124, v125, 2, v124
v_add_u32 v124, {HIST}, v124
v_add_u32 v125, 1024, v124
v_lshlrev_b32 v112, 3, v108
v_lshlrev_b32 v110, 4, v108
""")
    for i in range(7): a(f"v_add_u32 v{W2+1+2*i}, {i*512}, v112")
    a(f"s_cmp_ge_u32 s2, {NPROD}\ns_cbranch_scc1 KS_d\ns_waitcnt vmcnt(11)")
    pt('dst')
    for i in range(7):
        if i==6: a(Q16)
        a(f"v_lshlrev_b32_sdwa v{K+i}, 2, v{D+i} dst_sel:DWORD dst_unused:UNUSED_PAD src0_sel:DWORD src1_sel:BYTE_0\nds_add_rtn_u32 v{R+i}, v{K+i}, v111 offset:{HIST}")
    a(FULL+"\nKS_d:")
    gsync('b1',"KS_y1",mS,4,VZ,2)
    if PERM: a(f"ds_read2_b32 v[116:117], v124 offset0:0 offset1:8\nds_read2_b32 v[118:119], v124 offset0:16 offset1:24")
    else: a(f"ds_read_b128 v[116:119], v113 offset:{HIST}")
    for i in range(7): a(f"v_lshrrev_b32 v{D+i}, 8, v{D+i}")
    a(f"""
s_waitcnt lgkmcnt(0)
v_add_u32 v2, v116, v117
v_add3_u32 v2, v2, v118, v119
v_mov_b32 v3, v2
""")
    dpp_scan(a,"v_add_u32",[3])
    a(f"""
v_sub_u32 v120, v3, v2
v_add_u32 v121, v120, v116
v_add_u32 v122, v121, v117
v_add_u32 v123, v122, v118
""")
    if PERM: a(f"ds_write2_b32 v125, v120, v121 offset0:0 offset1:8\nds_write2_b32 v125, v122, v123 offset0:16 offset1:24")
    else: a(f"ds_write_b128 v113, v[120:123] offset:{HIST+1024}")
    for i in range(7):
        if i==6: a(Q16)
        a(f"ds_read_b32 v{K+i}, v{K+i} offset:{HIST+1024}")
    a(FULL)
    def tpub():
        a(f"s_load_dword s{sNON}, s[20:21], 0")
        a(f"""
v_lshl_or_b32 v{QA}, v121, 16, v120
v_lshl_or_b32 v{QA+1}, v123, 16, v122
v_mov_b32 v{QA+2}, v3
s_lshl_b32 s{t2}, s2, 10
s_add_u32 s{t2}, s{t2}, {F_TBL}
s_lshl_b32 s{t3}, s{sWV}, 4
s_waitcnt lgkmcnt(0)
""")
        tagh()
        a(f"""
v_mov_b32 v1, s{sNON}
v_mov_b32 v{QA+3}, v1
s_lshl_b64 exec, 0xffff, s{t3}
buffer_store_dwordx4 {P4(QA)}, v113, {SR4(sR)}, s{t2} offen{SSC}
s_mov_b64 exec, -1
""")
    if TE==0: tpub()
    a(f"s_cmp_ge_u32 s2, {NPROD}\ns_cbranch_scc1 KS_e\ns_waitcnt vmcnt({5 if TE==0 else 4})")
    if X&64:
        for i in range(7): a(f"v_and_b32 v{SRc+i}, 0x1ff, v{SRc+i}")
    for i in range(7): a(f"v_lshl_or_b32 v{W2+2*i}, v{D+i}, 19, v{SRc+i}")
    a(f"s_waitcnt lgkmcnt(0)")
    for i in range(7):
        if i==6: a(Q16)
        a(f"v_add_u32 v{K+i}, v{K+i}, v{R+i}\nds_write_b64 v{K+i}, {P2(W2+2*i)} offset:{S1}")
    a(FULL+"\nKS_e:")
    pt('sc1')
    if TE==1: tpub()
    epi_consts()
    a(f"v_mov_b32 v1, s{sNON}")
    a(f"""
v_lshlrev_b32 v114, 10, v0
s_lshr_b32 s{sLO}, s{sK}, 2
s_lshl_b32 s{sLO}, s{sLO}, 4
s_add_u32 s{sLO}, s{sLO}, {F_TBL}
v_cmp_gt_u32 vcc, {NPROD}, v0
v_mov_b32 v{QA+4}, 0
v_mov_b32 v{QA+5}, 0
v_mov_b32 v{QA+6}, 0
s_mul_i32 s{t0}, s2, {RST}
s_add_u32 s{t0}, s{t0}, {F_REC}
s_add_u32 s{t2}, s{t0}, 4096
v_mul_u32_u24 v115, {RST}, v0
v_add_u32 v115, {F_REC}, v115
""")
    gsync('bS',"KS_y2",mS,8,VZ,2,"s_waitcnt vmcnt(1)")
    tl=f"s_mov_b64 exec, vcc\nbuffer_load_dwordx4 {P4(QA+4)}, v114, {SR4(sR)}, s{sLO} offen{SC}\ns_mov_b64 exec, -1"
    a(f"""
s_cmp_ge_u32 s2, {NPROD}
s_cbranch_scc0 KS_h0
""")
    gwait("KS_h1",mGP,4,VZ,2)
    a(f"""
{tl}
v_mov_b32 v1, 0
s_branch KS_j
KS_h0:
""")
    order=[6,0,1,2,3,4,5]
    for i in order:
        if i==6: a(Q16)
        a(f"ds_read_b64 {P2(RO+2+4*i)}, v112 offset:{S1+i*512}")
        if i==6: a(FULL)
    for i in order:
        if i==6: a(Q16)
        a(f"s_waitcnt lgkmcnt(6)\nds_read_b64 {P2(RO+4*i)}, v{RO+3+4*i} offset:{ERAW}")
        if i==6: a(FULL)
    gwait("KS_ww",mW,4,VZ,2)
    for k,i in enumerate(order):
        if i==6: a(Q16)
        a(f"v_mov_b32 v{RO+3+4*i}, v1\nbuffer_store_dwordx4 {P4(RO+4*i)}, v110, {SR4(sR)}, s{t0 if i<4 else t2} offen offset:{1024*(i&3)}{SSC}")
        if i==6: a(FULL)
    a(tl)
    pt('out')
    a(f"v_pk_maximum3_f16 v1, v{RO}, v{RO+1}, v{RO+1}\nv_pk_minimum3_f16 v2, v{RO}, v{RO+1}, v{RO+1}")
    for i in range(1,7):
        if i==6: a(Q16)
        a(f"v_pk_maximum3_f16 v1, v1, v{RO+4*i}, v{RO+4*i+1}\nv_pk_minimum3_f16 v2, v2, v{RO+4*i}, v{RO+4*i+1}")
    a(FULL)
    absmax_fin(a,1,2,3)
    dpp_scan(a,"v_max_u32",[1])
    a(f"""
KS_j:
v_mov_b32 v2, 1
s_mov_b32 exec_lo, 0
s_brev_b32 exec_hi, 1
ds_max_u32 v{VZ}, v1 offset:{mEM}
ds_add_u32 v{VZ}, v2 offset:{mE}
s_mov_b64 exec, -1
""")
    gwait("KS_xw",mGX,4,VZ,2)
    xfrags([0,1])
    a(f"""
s_bitcmp1_b32 s{sK}, 1
s_cselect_b64 {S2(t2)}, -1, 0
s_lshl_b32 s{t0}, s{sK}, 4
s_and_b32 s{t0}, s{t0}, 16
s_waitcnt vmcnt(0)
s_mov_b64 exec, vcc
KT_f:
v_cmp_ne_u32 vcc, s{sNON}, v{QA+7}
s_cbranch_vccz KT_g
s_mov_b64 exec, vcc
s_sub_u32 s{sBUD}, s{sBUD}, 1
s_cbranch_scc1 KT_f2
buffer_load_dwordx4 {P4(QA+4)}, v114, {SR4(sR)}, s{sLO} offen{SC}
s_waitcnt vmcnt(0)
s_branch KT_f
KT_f2:
s_mov_b32 s{sBUD}, 0
v_mov_b32 v{QA+4}, 0
v_mov_b32 v{QA+5}, 0
v_mov_b32 v{QA+6}, 0
KT_g:
s_mov_b64 exec, -1
""")
    pt('tp'); ret('rt1')
    a(f"""
v_cndmask_b32 v1, v{QA+4}, v{QA+5}, {S2(t2)}
v_cndmask_b32 v2, v{QA+5}, v{QA+6}, {S2(t2)}
v_alignbit_b32 v1, v2, v1, s{t0}
v_sub_u32_sdwa v{TC}, v1, v1 dst_sel:DWORD dst_unused:UNUSED_PAD src0_sel:WORD_1 src1_sel:WORD_0
v_and_b32 v1, 0xffff, v1
v_lshrrev_b32 v{TC}, 3, v{TC}
v_lshl_add_u32 v{TD}, v1, 1, v115
v_mov_b32 v{TO}, v{TC}
""")
    dpp_scan(a,"v_add_u32",[TO])
    a(f"""
v_readlane_b32 s{sTOT}, v{TO}, 63
v_sub_u32 v{TO}, v{TO}, v{TC}
v_mov_b32 v2, v{TC}
v_lshlrev_b32 v1, 4, v{TO}
s_mov_b32 s{sLO}, 0
s_cmp_gt_u32 s{sTOT}, 512
v_sub_u32 v{TD}, v{TD}, v1
v_lshl_add_u32 v1, v{TO}, 2, s{sLB}
s_cselect_b32 s{t1}, 0, s{sTOT}
s_cbranch_scc1 KT_xe
""")
    expand("KT_x",False)
    a("KT_xe:")
    reclist(8)
    arrive(mSL,1)
    pt('exp')
    gwait("KS_rw",mPD,4,VZ,1)
    recload(8,"KT_l")
    pt('rl')
    def pfp():
        a(f"""
s_lshr_b32 s{t1}, s2, 3
s_mul_i32 s{t1}, s{t1}, 391
""")
        if PF0: a(f"v_and_b32 v2, 255, v0\nv_add_u32 v2, s{t1}, v2\nv_mov_b32 v3, 0")
        else: a(f"v_bfe_u32 v2, v0, 1, 7\nv_add_u32 v2, s{t1}, v2\nv_and_b32 v3, 1, v0\nv_lshlrev_b32 v3, 7, v3")
        if PFN<64: a(f"s_bfm_b64 exec, {PFN}, 0")
        a(f"buffer_load_dword v{QA+15}, v[2:3], {SR4(sP)}, 0 idxen offen offset:3072{SC}\ns_mov_b64 exec, -1")
    if PFP==1: pfp()
    gwait("KS_w2",mPI,4,VZ,1)
    trw()
    a("s_waitcnt lgkmcnt(0)")
    w3rd()
    ugemm(0)
    pt('ud')
    hist(8,"KT_h",1 if PFP==1 else 0,True)
    if PFP==3: pfp()
    pt('hs'); ret('rt2')
    gwait("KS_b2",mH,16,VZ,1)
    pt('b2')
    scan(False)
    a(f"""
v_cmp_lt_u32 vcc, 0x100, v{QA}
s_add_u32 s{sNT}, s{t0}, 127
s_lshr_b32 s{sNT}, s{sNT}, 7
s_cmp_gt_u32 s{sNT}, {CAPT}
s_cbranch_scc1 KT_j
s_cbranch_vccnz KT_j
""")
    fill("KFz",False,4)
    a(f"v_mov_b32 v1, s{sNT}\nds_write_b32 v{VZ}, v1 offset:{mNT}")
    pt('fil')
    a(f"""
s_cmp_gt_u32 s{sTOT}, 512
s_cbranch_scc0 KT_k
KT_j:
ds_write_b32 v{VZ}, v{FA} offset:{mSLOW}
KT_k:
s_mov_b32 s{sWU}, 1
""")
    ranges()
    srd(a,sA,14,256*256)
    if PRIO: a("s_setprio 3")
    bar('b3')
    a("s_branch KF_J")
    a(f"""
KF_T:
v_and_b32 v108, 255, v0
v_mov_b32 v32, 0
v_mov_b32 v33, 0
v_mov_b32 v34, 0
v_mov_b32 v35, 0
v_lshlrev_b32 v110, 4, v108
""")
    sG=40
    srd(a,sX,4,N,stride=256)
    def xld():
        for j in range(4):
            if j==3: a(f"s_cmp_eq_u32 s{sWV}, 4\ns_cbranch_scc0 KT_c")
            a(f"s_add_u32 m0, s{sW4K}, {AGB+j*4096}\ns_nop 0\nbuffer_load_dwordx4 v[36:37], {SR4(sX)}, 0 idxen offen{NT} lds\nv_add_u32 v36, 4096, v36")
        a("KT_c:")
    def warm():
        a(f"""
v_and_b32 v1, 28, v{VL}
v_and_b32 v2, 3, v{VL}
v_lshlrev_b32 v2, 1, v2
v_lshl_or_b32 v1, v1, 2, v2
s_lshr_b32 s{t0}, s{sW4}, 1
s_lshl_b32 s{t0}, s{t0}, 7
s_and_b32 s{t1}, s{sW4}, 1
s_lshl_b32 s{t1}, s{t1}, 3
s_add_u32 s{t0}, s{t0}, s{t1}
s_add_u32 s{t0}, s{t0}, 65536
""")
        for k in range(4): a(f"buffer_load_ushort v{124+k}, v1, {SR4(sA)}, s{t0} offen offset:{k*256}")
    def zer():
        a(f"v_cmp_le_u32 vcc, 32, v108\ns_mov_b64 exec, vcc\nds_write_b128 v110, v[32:35]\ns_mov_b64 exec, -1")
        for j in range(1,4): a(f"ds_write_b128 v110, v[32:35] offset:{j*4096}")
        a(f"""
s_cmp_eq_u32 s{sWV}, 4
s_cbranch_scc0 KT_b
ds_write_b128 v110, v[32:35] offset:16384
KT_b:
""")
    srd(a,sA,12,260*256); warm(); vyc()
    if XORD==1: xld()
    if not ZL: zer()
    a(f"""
s_lshl_b32 s{t0}, s{sW4}, 2
v_lshrrev_b32 v2, 4, v{VL}
v_or_b32 v1, s{t0}, v2                  ; 4u+g
v_xor_b32 v3, v1, v{WT}
v_lshlrev_b32 v3, 4, v3
v_lshl_add_u32 v116, v{WT}, 8, v3
v_add_u32 v116, {PSC}, v116
v_add_u32 v117, {PSC}, v110
v_lshl_add_u32 v118, v1, 16, v3
""")
    if XORD==2:
        gwait("KG_x",mS,4,VZ,1); xld()
    sdma(sA,0,0,VY,range(W1E,8))
    sdma(sA,32768,-32768,VY,range(W2N))
    arrive(mW,1)
    if ZL: zer()
    pt('w1i')
    def w3m():
        w=[124,125,126,127]; u=QA
        for k in range(4): a(f"v_lshlrev_b32 v{w[k]}, 16, v{w[k]}\nv_mul_f32 v{w[k]}, s{sL2E}, v{w[k]}")
        a(f"""
v_cvt_pk_bf16_f32 v{u}, v124, v125
v_cvt_pk_bf16_f32 v{u+1}, v126, v127
v_lshlrev_b32 v{u+2}, 16, v{u}
v_and_b32 v{u+3}, 0xffff0000, v{u}
v_lshlrev_b32 v{u+4}, 16, v{u+1}
v_and_b32 v{u+5}, 0xffff0000, v{u+1}
v_add_f32 v{u+6}, abs(v124), abs(v125)
v_sub_f32 v{u+2}, v124, v{u+2}
v_sub_f32 v{u+3}, v125, v{u+3}
v_sub_f32 v{u+4}, v126, v{u+4}
v_sub_f32 v{u+5}, v127, v{u+5}
v_add_f32 v{u+7}, abs(v126), abs(v127)
s_mov_b32 exec_lo, 0
v_cvt_pk_bf16_f32 v{u}, v{u+2}, v{u+3}
v_cvt_pk_bf16_f32 v{u+1}, v{u+4}, v{u+5}
s_mov_b32 exec_lo, -1
v_add_f32 v{u+6}, v{u+6}, v{u+7}
v_lshlrev_b32 v1, 3, v108
v_and_b32 v{u+6}, 0x7fffffff, v{u+6}
ds_write_b64 v1, {P2(u)} offset:{W3L}
""")
        dpp_scan(a,"v_max_u32",[u+6])
        a(f"""
s_mov_b32 exec_lo, 0
s_brev_b32 exec_hi, 1
ds_max_u32 v{VZ}, v{u+6} offset:{mC3}
s_mov_b64 exec, -1
""")
    e2=W2N
    a(f"v_mov_b32 v1, {hex(ONE2)}\nds_write2_b32 v{VZ}, v1, v1 offset0:{OH//4} offset1:{OH//4+3}")
    gsync('bX',"KG_y1",mGX,4,VZ,2,f"s_waitcnt vmcnt({8+e2-W1E})")
    if GP_: a(f"s_setprio {GP_}")
    xfrags([0])
    a(f"s_waitcnt vmcnt({e2})")
    pt('xl')
    trfrag(WF,TP,32768,2048,256)
    a("s_waitcnt lgkmcnt(7)")
    trfrag(WF+16,TP,32768+8,2048,256)
    def pm(T,i):
        for s in range(4): a(mfma16(GA+8*T+4*i,WF+16*i+4*s,XF+16*T+4*s,None if s==0 else GA+8*T+4*i))
    def pcv(T):
        c=GA+8*T
        L=[f"v_mul_f32 v{c+j}, s{sL2E}, v{c+j}" for j in range(8)]
        L+=[f"v_cvt_pk_bf16_f32 v{c+j}, v{c+2*j}, v{c+2*j+1}" for j in range(4)]
        L+=[f"ds_write_b128 v116, {P4(c)} offset:{T*4096}"]
        return L
    def pmi(T,fillers):
        for i in range(2):
            for s in range(4):
                a(mfma16(GA+8*T+4*i,WF+16*i+4*s,XF+16*T+4*s,None if s==0 else GA+8*T+4*i))
                for _ in range(2):
                    if fillers: a(fillers.pop(0))
    a("s_waitcnt lgkmcnt(8)"); xfrags([1]); pm(0,0)
    a("s_waitcnt lgkmcnt(4)"); xfrags([2,3]); pm(0,1)
    a("s_waitcnt lgkmcnt(8)"); pm(1,0); pm(1,1)
    a("s_waitcnt lgkmcnt(0)"); pmi(2,pcv(0)); pmi(3,pcv(1))
    a(f"s_lshl_b32 s{t2}, s{sNB}, 8\ns_nop 2")
    for T in (2,3):
        for x in pcv(T): a(x)
    gsync('pg',"KG_y2",mGP,4,VZ,2)
    for T in range(4): a(f"ds_read_b128 {P4(PO+4*T)}, v117 offset:{T*4096}")
    a("s_waitcnt vmcnt(0)")
    for T in range(3):
        a(f"s_add_u32 s{t1}, s{t2}, {F_P+T*16*65536}\ns_waitcnt lgkmcnt({3-T})")
        a(f"buffer_store_dwordx4 {P4(PO+4*T)}, v118, {SR4(sR)}, s{t1} offen{SSC}")
    a(f"""
s_cmp_eq_u32 s{sWV}, 4
s_cbranch_scc0 KG_p
s_add_u32 s{t1}, s{t2}, {F_P+3*16*65536}
s_waitcnt lgkmcnt(0)
s_mov_b64 exec, 0xffff
buffer_store_dwordx4 {P4(PO+12)}, v118, {SR4(sR)}, s{t1} offen{SSC}
s_mov_b64 exec, -1
KG_p:
""")
    pt('pst')
    if GP_: a("s_setprio 0")
    if W2N<8: sdma(sA,32768,-32768,VY,range(W2N,8))
    srd(a,sA,14,256*256)
    tagh()
    w3m()
    for T in range(4):
        c=GA+8*T
        if T==3: a("s_mov_b32 exec_lo, 0x10001\ns_mov_b32 exec_hi, 0x10001")
        if T==0: a(f"v_pk_maximum3_f16 v114, v{c}, v{c+1}, v{c+2}\nv_pk_minimum3_f16 v115, v{c}, v{c+1}, v{c+2}\nv_pk_maximum3_f16 v114, v114, v{c+3}, v{c+3}\nv_pk_minimum3_f16 v115, v115, v{c+3}, v{c+3}")
        else: a(f"v_pk_maximum3_f16 v114, v114, v{c}, v{c+1}\nv_pk_minimum3_f16 v115, v115, v{c}, v{c+1}\nv_pk_maximum3_f16 v114, v114, v{c+2}, v{c+3}\nv_pk_minimum3_f16 v115, v115, v{c+2}, v{c+3}")
    a("s_mov_b64 exec, -1")
    absmax_fin(a,114,115,2)
    a(f"""
v_cmp_lt_u32 vcc, 0x40e80000, v114
s_cmp_lg_u64 vcc, 0
s_cselect_b32 s{sFLAG}, 0x101, 1
""")
    def pflag(n):
        a(f"""
s_lshl_b32 s{t2}, s2, 4
s_add_u32 s{t2}, s{t2}, {F_FLG}
v_mov_b32 v1, s{sFLAG}
s_waitcnt vmcnt({n})
s_mov_b64 exec, 1
ds_add_rtn_u32 v1, v{VZ}, v1 offset:{mPD}
s_waitcnt lgkmcnt(0)
v_readfirstlane_b32 s{t1}, v1
s_add_u32 s{t1}, s{t1}, s{sFLAG}
s_and_b32 s{t0}, s{t1}, 255
s_cmp_eq_u32 s{t0}, 4
s_cbranch_scc0 KG_f
KG_e:
ds_read_b64 v[2:3], v{VZ} offset:{mE}
ds_read_b32 v1, v{VZ} offset:{mC3}
s_waitcnt lgkmcnt(0)
v_cmp_gt_u32 vcc, 4, v2
v_mul_f32 v1, v1, v3
s_cbranch_vccnz KG_e
v_cmp_nge_f32 vcc, 0x41680000, v1       ; !(14.5 >= e*c3)
s_lshl_b32 s{t0}, vcc_lo, 8
s_or_b32 s{t1}, s{t1}, s{t0}
s_cmp_gt_u32 s{t1}, 255
s_cselect_b32 s{t0}, 2, 0
s_xor_b32 s{t0}, s{sNON}, s{t0}
v_mov_b32 v1, s{t0}
buffer_store_dword v1, v{VZ}, {SR4(sR)}, s{t2} offen{SSC}
s_waitcnt vmcnt(1)
s_branch KG_f2
KG_f:
s_waitcnt vmcnt(0)
KG_f2:
s_mov_b64 exec, -1
""")
        pt('pfl')
    def mid():
        sdma(sA,0); pflag(8); arrive(mPI,1)
    if W2N<8:
        if WU1L:
            pflag(8-W2N); qfull("KGq",lambda: sdma(sA,0)); a("s_waitcnt vmcnt(0)"); arrive(mPI,1)
        else:
            sdma(sA,0); pflag(16-W2N); arrive(mPI,1); qfull("KGq",lambda: 0)
    elif WU1L:
        if PFI==2: pflag(0)
        qfull("KGq",lambda: pflag(0)); sdma(sA,0); epi_consts(); a("s_waitcnt vmcnt(0)"); arrive(mPI,1)
    else: qfull("KGq",mid); epi_consts()
    gwait("KG_w3",mPD,4,VZ,1)
    w3rd(); trw()
    a("s_waitcnt lgkmcnt(0)"); ugemm(1)
    if FLP==1: gwait("KG_b2",mH,16,VZ,1)
    a(f"""
s_mov_b32 s{sLO}, {F_FLG}
buffer_load_dword v116, v110, {SR4(sR)}, s{sLO} offen{SC}
""")
    if PFP==2: pfp()
    if PFT:
        a(f"""
s_mul_i32 s{t1}, s{sW4}, {PFK*4}
v_mov_b32 v1, s{t1}
s_lshl_b32 s{t1}, s{t1}, 6
v_lshl_add_u32 v117, v{VL}, 2, s{t1}
ds_read_b32 v1, v1
ds_read_u16 v2, v117 offset:{WB}
v_mov_b32 v3, 0
s_waitcnt lgkmcnt(0)
v_cmp_lt_u32 vcc, v117, v1
s_or_b64 exec, vcc, 1
""")
        for k in range(PFT): a(f"buffer_load_dword v{QA+15}, v[2:3], {SR4(sP)}, 0 idxen offen offset:{3072+128*k}{SC}")
        a("s_mov_b64 exec, -1")
    a(f"""
s_mov_b32 s{sWU}, -1
s_or_b32 s{t1}, s{sNON}, 2
s_waitcnt vmcnt({(1 if PFP==2 else 0)+PFT})
KS_m:
v_or_b32 v2, 2, v116
v_cmp_ne_u32 vcc, s{t1}, v2
s_cbranch_vccz KS_n
s_sub_u32 s{sBUD}, s{sBUD}, 1
s_cbranch_scc1 KS_n
s_sleep {FSL}
s_mov_b64 exec, vcc
buffer_load_dword v116, v110, {SR4(sR)}, s{sLO} offen{SC}
s_mov_b64 exec, -1
s_waitcnt vmcnt(0)
s_branch KS_m
KS_n:
v_cmp_ne_u32 vcc, s{sNON}, v116
s_cbranch_vccz KS_o
ds_write_b32 v{VZ}, v{FA} offset:{mSLOW}
KS_o:
""")
    pt('flg')
    if PRIO: a("s_setprio 3")
    bar('b3')
    a(f"ds_read_b32 v1, v{VZ} offset:{mNT}\ns_waitcnt lgkmcnt(0)\nv_readfirstlane_b32 s{sNT}, v1")
    ranges()
    a("KF_J:")
    def rd_ga(off): a(f"ds_read_u16 v{GA0}, v{SB} offset:{GL+off}")
    def rd_gg(off): a(f"ds_read_u16 v{YA}, v{RB} offset:{GL+off}")
    ya=f"v_lshl_add_u32 v{EA}, v{YA}, 1, v{EC}\nv_add_u32 v{YA}, v{YA}, v{M4}"
    ry=f"ds_read_u16 v{VY}, v{YA} offset:{WB+2}"
    def rd_y(): a(ya); a(ry)
    def idx1(i): return f"ds_read_u16 v{IDX+2*i}, v{GA0} offset:{WB+4*i}"
    def rd_idx():
        for i in range(4): a(idx1(i))
    def dmai(i): return f"buffer_load_dwordx4 {P2(IDX+2*(i&3))}, {SR4(sP)}, {'0' if i<4 else 's'+str(s128)} idxen offen offset:{1024*(i&3)}{GSC} lds"
    def dma():
        for i in range(8):
            if i==0: a(f"s_mov_b32 m0, s{sBUF}\ns_nop 0")
            if i==4: a(f"s_add_u32 m0, s{sBUF}, 4096\ns_nop 0")
            a(dmai(i))
    def dma_h1(mid):
        a(f"s_add_u32 m0, s{sBUF}, 4096"); a(mid)
        for i in range(4,8): a(dmai(i))
        a(f"s_mov_b32 m0, s{sBUF}")
        rd_idx()
    def dma_idx():
        for i in range(4): a(dmai(i))
        dma_h1(ry)
    rd_b=f"ds_read_b128 {P4(B3+2)}, v{QAD}\nds_read_b128 {P4(B3+10)}, v{QAD} offset:512"
    rd_a3=f"ds_read_b64 {P2(A6)}, v{EA}\nds_read_b64 {P2(A6+2)}, v{VY} offset:{OH}\nds_read_b64 {P2(A6+4)}, v{EA}"
    def rd_a(t): return f"ds_read_b128 {P4(A+4*t)}, v{AR} offset:{4096*(t>>2)+(16*(t&1)+2*((t>>1)&1))*128}"
    def m4(z,q,j): return mfma4(z+4*j,A+16*(q>>1)+4*j+2*(q&1),None)
    rd_s=f"ds_read_b64 {P2(SS)}, v{SA2}\nds_read_b64 {P2(SS+2)}, v{SA2+1}"
    def AQ(q): return A6+2*(q&1)
    win=f"v_add3_u32 v{VY}, v{VY}, v{OH2}, s{sW8}\nv_lshl_add_u32 v{QAD}, s{sQ}, 6, v{QC}"
    rd_ga(0); rd_gg(0)
    a(f"""
ds_read_u16 v{WT}, v1 offset:{GL}
ds_read_b32 v{GP}, v{VZ} offset:{mSLOW}
s_waitcnt lgkmcnt(3)
""")
    rd_idx()
    a("s_waitcnt lgkmcnt(0)")
    dma()
    pt('d0')
    a(f"v_readlane_b32 s{sNF}, v{WT}, s{sCNT}\nv_readfirstlane_b32 s{t3}, v{GP}")
    rd_y(); rd_ga(16)
    a("s_waitcnt lgkmcnt(0)")
    rd_idx()
    a(f"""
s_cmp_lg_u32 s{t3}, 0
s_cbranch_scc1 KF_SLOW
s_lshr_b32 s{sNF}, s{sNF}, 8
v_subrev_u32 v2, s{sNF}, v{VL}
v_and_b32 v2, 15, v2
v_add_u32 v{DR}, s{sNF}, v2
v_lshlrev_b32 v2, 2, v{DR}
ds_read_b32 v{GP}, v2 offset:{BT}
s_and_b32 s{sQ}, s{sNF}, -2
s_lshl_b32 s{sQ}, s{sQ}, 3
s_sub_u32 s{sW8}, 0, s{sQ}
{win}
{rd_b}
{rd_a3}
""")
    rd_gg(16)
    a(f"""
v_lshrrev_b32 v{WT}, 9, v{WT}
v_lshlrev_b32 v{WT}, 4, v{WT}           ; 8*(w&~1)
v_mov_b32 v{SS}, 0
v_mov_b32 v{SS+1}, 0
v_mov_b32 v{SS+2}, 0
v_mov_b32 v{SS+3}, 0
v_mad_u32_u24 v{SA2}, v{SI2}, s{sT0}, v{SA2}
v_mad_u32_u24 v{SA2+1}, v{SI2+1}, s{sT0}, v{SA2+1}
s_add_u32 s{t1}, s{sT0}, s{sCNT}
s_lshl_b32 s{t1}, s{t1}, 7
s_add_u32 s{t2}, s{sWV}, 48
v_mov_b32 v1, s{t2}
{mfma32(ACC+16,SS,SS,None)}
s_waitcnt lgkmcnt(0)
""")
    rd_y(); rd_ga(32)
    a(f"""
v_cmp_gt_u32 vcc, s{t0}, v{GP}
v_cmp_gt_u32 {S2(t2)}, s{t1}, v{GP}
v_cmp_gt_u32 {S2(t0)}, s{sNN}, v{DR}
v_cndmask_b32 v{DR}, v{DR}, v1, vcc
s_cmp_lg_u64 vcc, 0
s_cselect_b32 s{sHEAD}, 1, 0
s_and_b64 vcc, {S2(t2)}, {S2(t0)}
v_lshlrev_b32 v1, 2, v{VL}
v_cndmask_b32 v{DR}, 56, v{DR}, vcc
v_lshrrev_b32 v2, 1, v{VL}
v_mul_u32_u24 v{DR}, {AS}, v{DR}
v_and_b32 v2, 24, v2
v_add_u32 v{DR}, v{DR}, v2
s_mul_i32 s{t0}, s{sNF}, {AS}
v_add_u32 v{eM0}, s{t0}, v1
s_sub_u32 s{sCNT}, s{sCNT}, 1
s_mov_b32 m0, s{sBUF}
""")
    pt('pre')
    a("s_waitcnt vmcnt(4)")
    pt('g0')
    for t in range(4): a(rd_a(t))
    a("s_waitcnt lgkmcnt(0)")
    for j in range(4): a(m4(Z[0],0,j))
    a("s_nop 3")
    a(mfma32(Z[0],AQ(0),B3,Z[0]))
    a("s_nop 9")
    pt('pro')
    def finals(qprev):
        for u in range(2): a(f"v_pk_mul_f32 {P2(NN+2*u)}, {P2(NN+2*u)}, {P2(DD+2*u)}")
        for u in range(2): a(f"v_cvt_pk_bf16_f32 v{GP+2*(qprev&1)+u}, v{NN+2*u}, v{NN+2*u+1}")
    def ex(zc,r): return f"v_exp_f32 v{EE+r}, v{zc+r}"
    def body(first):
        for q in range(4):
            zc=Z[q&1]; zn=Z[(q+1)&1]; qn=(q+1)&3
            pend=[0,1,2,3,8,9,10,11,4,5,12,13,6,7,14,15]
            f0=first and q==0
            if q==0: a(f"v_readlane_b32 s{sQ}, v{WT}, s{sCNT}")
            if q==3 or (first and q==1): a(f"s_waitcnt lgkmcnt(0)")
            for j in range(4):
                a(m4(zn,qn,j))
                a(f"v_rcp_f32 v{DD+j}, v{DD+j}" if not f0 else ex(zc,pend.pop(0)))
            agg=(q&1) and not (first and q==1)
            if agg:
                p=1 if q==1 else 0
                a(mfma32(ACC+16*p,GP,SS,None if first else ACC+16*p))
            for r in range(3 if SH3 else (4 if agg else 3)): a(ex(zc,pend.pop(0)))
            a(mfma32(zn,AQ(qn),B3+4*qn,zn))
            def bx():
                a(f"s_sub_u32 s{sW8}, 0, s{sQ}\ns_waitcnt vmcnt(0) lgkmcnt(0)\n{win}")
                rd_gg(32); rd_ga(48)
                a(rd_b); a(rd_a3); a(rd_s)
                for t in range(8): a(rd_a(t))
            if q==2 and XP==0: a(ex(zc,pend.pop(0))); bx()
            for r in range((4 if not (q==2 and XP==0) else 3)-SH3): a(ex(zc,pend.pop(0)))
            if q==2 and XP==1: bx()
            if f0:
                for i in range(4): a(dmai(i))
            if first and q==1: dma_h1("s_nop 0")
            if q==3:
                a(ya)
                if first: dma_idx()
                else:
                    a(f"s_cmp_gt_u32 s{sCNT}, 1\ns_cbranch_scc0 KF_lt")
                    dma_idx()
                    a("KF_lb:")
            if not f0: finals((q-1)&3)
            seq=[]
            for u in range(2): seq.append(f"v_pk_add_f32 {P2(DD+2*u)}, {P2(EE+8*u)}, 1.0 op_sel_hi:[1,0]")
            for m in range(1,4):
                for u in range(2):
                    src=(zc+8*u) if m==1 else NN+2*u
                    seq.append(f"v_pk_fma_f32 {P2(NN+2*u)}, {P2(src)}, {P2(EE+8*u+2*m)}, {P2(src)}")
                for u in range(2): seq.append(f"v_pk_fma_f32 {P2(NN+2*u)}, {P2(zc+8*u+2*m)}, {P2(DD+2*u)}, {P2(NN+2*u)}")
                for u in range(2): seq.append(f"v_pk_fma_f32 {P2(DD+2*u)}, {P2(DD+2*u)}, {P2(EE+8*u+2*m)}, {P2(DD+2*u)}")
            if len(pend) in (10,6): a(ex(zc,pend.pop(0)))
            slots={9:[0,1,2,3,4,6,8,10,12],8:[0,1,2,3,5,7,9,11],5:[1,4,7,10,12]}[len(pend)]
            for k,x in enumerate(seq):
                if f0 and k==H1P:
                    a("s_waitcnt vmcnt(4)")
                    for t in range(4,8): a(rd_a(t))
                a(x)
                if k in slots: a(ex(zc,pend.pop(0)))
            if q==2: a(f"v_pk_add_f32 {P2(RB)}, {P2(RB)}, {S2(sINC)}\nv_pk_add_f32 {P2(SA2)}, {P2(SA2)}, {P2(SI2)}")
    if PROF and 'dyn' in PTS: stamp(a,8); stamp(a,9,True)
    if PROF and 'clk' in PTS: stamp(a,6,True)
    n0=len(a.l)
    body(True)
    a("s_branch KF_LE\n.p2align 6\nKF_LOOP:")
    body(False)
    def keep(l):
        t=l.strip()
        if X&1 and t.startswith('buffer_load'): return False
        if X&2 and t.startswith('ds_read_b128 v[') and int(t.split('[')[1].split(':')[0])>=28: return False
        if X&8 and t.startswith('v_mfma'): return False
        if X&16 and t.startswith('v_pk_fma'): return False
        if X&32 and t.startswith('v_exp'): return False
        return True
    a.l[n0:]=[l for l in a.l[n0:] if keep(l)]
    import re
    if UNP:
        L=[]; cnt=0
        for l in a.l[n0:]:
            m=re.match(r"\s*v_pk_fma_f32 v\[(\d+):\d+\], v\[(\d+):\d+\], v\[(\d+):\d+\], v\[(\d+):\d+\]",l)
            if m:
                cnt+=1
                d,x,y,z=map(int,m.groups())
                if UNP==1 or (UNP==2 and cnt%2==0) or (UNP==3 and d>=DD):
                    for k in range(2):
                        L.append(f"    v_fmac_f32 v{d+k}, v{x+k}, v{y+k}" if d==z else f"    v_fma_f32 v{d+k}, v{x+k}, v{y+k}, v{z+k}")
                    continue
            L.append(l)
        a.l[n0:]=L
    if X&(128|256|512|1024):
        L=[]
        for l in a.l[n0:]:
            m=re.match(r"\s*v_mfma_f32_32x32x16_bf16 v\[(\d+):\d+\], v\[(\d+):\d+\], v\[(\d+):\d+\], (.*)",l)
            if m and int(m.group(1))<ACC:
                d,x,y=int(m.group(1)),int(m.group(2)),int(m.group(3))
                if X&128:
                    if y==ID0: L+=["    "+mfma16(d+4,x,ID0,None),"    "+mfma16(d+8,x,ID1,None)]
                    elif y==ID1: L.append("    "+mfma16(d+12,x,ID0,None))
                    else: L.append("    "+mfma16(d,x,y,None))
                if X&1024:
                    if y in (ID0,ID1):
                        o=0 if y==ID0 else 8
                        for k in range(2): L.append(f"    v_mfma_f32_4x4x4_16b_bf16 v[{d+o+4*k}:{d+o+4*k+3}], v[{x+2*k}:{x+2*k+1}], v[{ID0}:{ID0+1}], v[{d+o+4*k}:{d+o+4*k+3}]")
                    else: L.append(l)
                if X&256:
                    if y!=ID1: L.append(l)
                if X&512:
                    if y==ID0: L.append(f"    v_mfma_f32_32x32x64_f8f6f4 v[{d}:{d+15}], v[{x}:{x+7}], v[{ID0}:{ID0+7}], v[{d}:{d+15}]")
                    elif y!=ID1: L.append(l)
            else: L.append(l)
        a.l[n0:]=L
    a("KF_LE:")
    if PRIO: a(f"s_bitcmp1_b32 42, s{sCNT}\ns_cbranch_scc1 KF_pr\nKF_pb:")
    a(f"""
s_sub_u32 s{sCNT}, s{sCNT}, 1
s_cbranch_scc0 KF_LOOP
""")
    def loop_tails():
        a(f"KF_lt:\ns_cmp_eq_u32 s{sCNT}, s{sWU}\ns_cbranch_scc0 KF_lb")
        sdma(sA,32768,0,WV)
        a(f"""
s_branch KF_lb
KF_pr:
""")
        if PROF and 'dyn' in PTS:
            a("s_mov_b32 s90, s92\ns_mov_b32 s91, s93\ns_mov_b32 s92, s94\ns_mov_b32 s93, s95\ns_mov_b32 s94, s96\ns_mov_b32 s95, s97")
            stamp(a,8); stamp(a,9,True)
        a(f"""
s_setprio 2
s_cmp_eq_u32 s{sCNT}, 5
s_cbranch_scc1 KF_pb
s_setprio 1
s_cmp_eq_u32 s{sCNT}, 3
s_cbranch_scc1 KF_pb
s_setprio 0
s_branch KF_pb
""")
    a(f"""
s_lshl_b32 s{t0}, s{sW4}, 2
v_mov_b32 v1, s{t0}
s_cmp_ge_u32 s{sWV}, 4
s_cbranch_scc1 KF_w0
ds_write_b32 v1, v{TP} offset:{mWU}
s_branch KF_w1
KF_w0:
ds_read_b32 v2, v1 offset:{mWU}
s_waitcnt lgkmcnt(0)
v_cmp_eq_u32 vcc, 0, v2
s_cbranch_vccnz KF_w0
KF_w1:
""")
    def trw2(): trfrag(A,TP,0,2048,256); trfrag(A+16,TP,8,2048,256)
    trw2()
    for j in range(4): a(f"v_rcp_f32 v{DD+j}, v{DD+j}")
    a("s_nop 0")
    finals(3)
    a("s_nop 1")
    a(mfma32(ACC+16,GP,SS,ACC+16))
    pt('loop')
    if PROF and 'clk' in PTS: stamp(a,7,True)
    def epst():
        a(f"""
s_or_b32 s{t1}, s2, s{sWV}
s_cbranch_scc1 KF_e2
v_mov_b32 v2, s{sNON}
s_mov_b64 exec, 1
buffer_store_dword v2, v{VZ}, {SR4(sR)}, 0 offen{ESC}
s_mov_b64 exec, -1
KF_e2:
""")
    for p in range(2):
        for j in range(4):
            c=ACC+16*p+4*j
            a(f"v_cvt_pk_bf16_f32 v{c}, v{c}, v{c+1}\nv_cvt_pk_bf16_f32 v{c+1}, v{c+2}, v{c+3}")
        for j in range(4): a(f"ds_write_b64 v{DR}, {P2(ACC+16*p+4*j)} offset:{AGB+128*p+32*j}")
    a(f"""
s_cmp_eq_u32 s{sHEAD}, 0
""")
    pt('dmp')
    bar('be',"s_waitcnt vmcnt(0) lgkmcnt(0)")
    a(f"""
s_cbranch_scc1 KF_FIN
ds_read_b32 v4, v{eM0} offset:{AGB}
ds_read_b32 v5, v{eM1} offset:{AGB+48*AS}
""")
    a(f"""
s_waitcnt lgkmcnt(0)
v_lshlrev_b32 v6, 16, v4
v_and_b32 v7, 0xffff0000, v4
v_lshlrev_b32 v8, 16, v5
v_and_b32 v9, 0xffff0000, v5
v_pk_add_f32 v[6:7], v[6:7], v[8:9]
v_cvt_pk_bf16_f32 v6, v6, v7
ds_write_b32 v{eM0}, v6 offset:{AGB}
KF_FIN:
""")
    a(f"s_cmp_ge_u32 s{sWV}, 4")
    if EP_==0: epst()
    bar('mrg')
    def EXP(rs): return [f"v_exp_f32 v{EE+i}, v{UA+i}" for i in rs]
    def RCP(rs): return [f"v_rcp_f32 v{EE+i}, v{EE+i}" for i in rs]
    def FMA(rs): return [f"v_fma_f32 v{EE+i}, v{EE+i}, s{sL2E}, s{sL2E}" for i in rs]
    def FIN(tau):
        e=EE+8*tau; c=UA+8*tau
        return [f"v_pk_mul_f32 {P2(e+2*j)}, {P2(e+2*j)}, {P2(c+2*j)}" for j in range(4)]+[f"v_cvt_pk_bf16_f32 v{e+j}, v{e+2*j}, v{e+2*j+1}" for j in range(4)]+[f"ds_write_b128 v{eOW}, {P4(e)} offset:{tau*4096}"]
    def PFM(rs): return [f"v_pk_fma_f32 {P2(EE+i)}, {P2(EE+i)}, {S2(sL2E)}, {S2(sL2E)}" for i in rs]
    XE=Z[0]
    for tau in range(2):
        for s_ in range(4): a(f"ds_read_b128 {P4(XE+16*tau+4*s_)}, v{eFA} offset:{AGB+tau*16*AS+64*s_}")
    for k,(x,y) in enumerate(zip(um(0,0,0,XE,True,A),um(0,0,1,XE,True,A))): a(f"s_waitcnt lgkmcnt({7-k})"); a(x); a(y)
    a("s_waitcnt lgkmcnt(0)"); pt('e1'); a("s_cbranch_scc1 KF_eg")
    for r in range(2):
        if r==1: a("KF_eg:")
        for x,y in zip(um(r,1,0,XE+16,True,A),um(r,1,1,XE+16,True,A)): a(x); a(y)
        pt('e2')
        if r==0:
            for x in EXP(range(8))+FMA(range(8))+RCP(range(8))+EXP(range(8,16))+FIN(0)+PFM(range(8,16,2))+RCP(range(8,16))+["s_nop 0"]+FIN(1): a(x)
            a("s_branch KF_ej")
        else:
            for x in EXP(list(range(8))+[8,12])+PFM((0,2,4,6,8,12))+RCP(list(range(8))+[8,12])+FIN(0): a(x)
            a(f"""
v_mul_f32 v{EE+8}, v{EE+8}, v{UA+8}
v_mul_f32 v{EE+12}, v{EE+12}, v{UA+12}
s_mov_b64 exec, 0xffff
v_cvt_pk_bf16_f32 v{EE+8}, v{EE+8}, v{EE+12}
ds_write_b16 v{eN48}, v{EE+8}
ds_write_b16_d16_hi v{eN48}, v{EE+8} offset:8
s_mov_b64 exec, -1
""")
    a(f"KF_ej:\ns_cmp_lt_u32 s{sWV}, 5")
    pt('e3')
    bar('sil')
    a(f"""
ds_read_b128 {P4(A)}, v{eRD}
s_cbranch_scc0 KF_e1
ds_read_b128 {P4(A+4)}, v{eRD} offset:8192
s_mov_b64 exec, {S2(sE2)}
s_waitcnt lgkmcnt(0)
buffer_store_dwordx4 {P4(A+4)}, v{eST}, {SR4(sX)}, s{sE1} offen{OSC}
s_mov_b64 exec, -1
KF_e1:
s_waitcnt lgkmcnt(0)
buffer_store_dwordx4 {P4(A)}, v{eST}, {SR4(sX)}, s{sE0} offen{OSC}
""")
    pt('sto')
    if EP_==1: epst()
    a(f"""
""")
    if PROF: a("s_waitcnt vmcnt(0)")
    stamp(a,10); stamp(a,11,True)
    stamp_out(a,1,sWV)
    a("KF_END:\ns_endpgm")
    loop_tails()
    hist_retry(8,"KT_h",True)
    a("KF_CEND:")
    SV=ACC; AGs=SV+8; RS_=SV+16
    a(f"""
KF_SLOW:
s_setprio 0
s_cmp_ge_u32 s{sWV}, 4
s_cselect_b32 s{sTOT}, 0, s{sTOT}
v_mov_b32 v1, s{sTOT}
ds_max_u32 v{VZ}, v1 offset:{mMX}
v_mov_b32 v{SS}, 0
v_mov_b32 v{SS+1}, 0
v_mov_b32 v{SS+2}, 0
v_mov_b32 v{SS+3}, 0
s_mov_b32 s{sLO}, 0
s_mov_b32 s{sLB}, s{sBUF}
s_sub_u32 s{t0}, s{sWV}, s{sT0}
s_lshl_b32 s{t0}, s{t0}, 4
v_add_u32 v{SV+4}, s{t0}, v{RB}
v_add_u32 v{SV+5}, s{t0}, v{SB}
s_lshl_b32 s{t0}, s{sWV}, 4
v_sub_u32 v{SV+6}, s{t0}, v{OHC}
v_and_b32 v{SV+7}, 28, v{VL}
v_and_b32 v1, 3, v{VL}
v_lshlrev_b32 v1, 2, v1
v_lshl_or_b32 v{SV+7}, v{SV+7}, 3, v1
v_lshlrev_b32 v1, 4, v0
""")
    for j in range(3): a(f"ds_write_b128 v1, {P4(SS)} offset:{AGG+j*8192}")
    a(f"""
v_lshlrev_b32 v1, 4, v{VL}
ds_write_b128 v1, {P4(SS)} offset:{AGG+3*8192}
s_waitcnt vmcnt(0) lgkmcnt(0)
s_barrier
ds_read_b32 v1, v{VZ} offset:{mMX}
s_waitcnt lgkmcnt(0)
v_readfirstlane_b32 s{sRND}, v1
KF_SR:
s_cmp_lt_u32 s{sLO}, s{sRND}
s_cbranch_scc0 KF_SE
s_barrier
v_lshlrev_b32 v1, 2, v{VL}
v_lshlrev_b32 v2, 8, v{VL}
ds_write_b32 v1, v2
s_waitcnt lgkmcnt(0)
s_barrier
s_cmp_ge_u32 s{sWV}, 4
s_cbranch_scc1 KF_S1
s_movk_i32 s{t3}, 256
""")
    expand("KF_x")
    a(f"s_sub_u32 s{t1}, s{sTOT}, s{sLO}")
    reclist(4)
    recload(4,"KF_rl")
    for i in range(4): a(f"s_mov_b64 {S2(sM+8+2*i)}, {S2(sM+2*i)}")
    hist(4,"KF_h",0,False)
    a("s_waitcnt lgkmcnt(0)")
    for i in range(4):
        a(f"""
v_mov_b32 v{RS_+4*i}, v{RC+4*i}
v_mov_b32 v{RS_+4*i+1}, v{RC+4*i+1}
v_mov_b32 v{RS_+4*i+2}, v{RC+4*i+2}
v_lshlrev_b32 v1, 6, v{RC+4*i+3}
v_sub_u32 v1, v{RK+i}, v1
v_cndmask_b32 v{RS_+4*i+3}, -1, v1, {S2(sM+8+2*i)}
""")
    a(f"""
KF_S1:
s_mov_b32 s{sHEAD}, 0                    ; 256*k
KF_SK:
s_waitcnt lgkmcnt(0)
s_barrier
s_cmp_ge_u32 s{sWV}, 4
s_cbranch_scc1 KF_S2
s_mov_b32 s{t1}, {EB}
""")
    for i in range(4):
        a(f"""
v_subrev_u32 v1, s{sHEAD}, v{RS_+4*i+3}
v_lshrrev_b32 v2, 19, v{RS_+4*i+2}
v_lshl_add_u32 v2, v2, 8, v1
v_lshl_add_u32 v3, v2, 1, s{t1}
v_cmpx_gt_u32 vcc, 0x100, v1
ds_write_b32 v2, v{RS_+4*i+2} offset:{WB}
ds_write_b64 v3, {P2(RS_+4*i)}
s_mov_b64 exec, -1
""")
    a("KF_S2:")
    scan(True)
    a(f"s_cmp_lg_u64 {S2(t2)}, 0\ns_cselect_b32 s{sFLAG}, 1, 0")
    fill("KFs",True,8)
    a(f"""
s_add_u32 s{sNT}, s{t0}, 127
s_lshr_b32 s{sNT}, s{sNT}, 7
s_waitcnt lgkmcnt(0)
s_barrier
v_mov_b32 v{RB}, v{SV+4}
v_mov_b32 v{SB}, v{SV+5}
v_mov_b32 v{SV+12}, v{SV+6}
s_mov_b32 s{sI}, s{sWV}
KF_SL:
s_cmp_lt_u32 s{sI}, s{sNT}
s_cbranch_scc0 KF_SN
""")
    rd_ga(0); rd_gg(0)
    for j in range(4): a(f"ds_read_u16 v{AGs+j}, v{SV+12} offset:{GL+2*j}")
    a("s_waitcnt lgkmcnt(0)")
    rd_y(); rd_idx()
    a("s_waitcnt lgkmcnt(0)")
    dma()
    for j in range(4): a(f"v_lshrrev_b32 v{AGs+j}, 8, v{AGs+j}")
    a(f"""
v_readfirstlane_b32 s{sQ}, v{AGs}
s_nop 3
s_and_b32 s{sQ}, s{sQ}, -2
s_lshl_b32 s{sQ}, s{sQ}, 3
s_sub_u32 s{sW8}, 0, s{sQ}
{win}
{rd_b}
{rd_a3}
""")
    for j in range(4): a(f"v_lshl_add_u32 v{AGs+j}, v{AGs+j}, 9, v{SV+7}")
    a("s_waitcnt vmcnt(0) lgkmcnt(0)")
    for t in range(8): a(rd_a(t))
    a("s_waitcnt lgkmcnt(0)")
    for q in range(4):
        z=Z[0]
        for j in range(4): a(m4(z,q,j))
        a("s_nop 3"); a(mfma32(z,AQ(q),B3+4*q,z))
        a("s_nop 15")
        for r in range(16): a(f"v_exp_f32 v{EE+r}, v{z+r}")
        for r in range(16): a(f"v_add_f32 v{EE+r}, 1.0, v{EE+r}")
        for r in range(16): a(f"v_rcp_f32 v{EE+r}, v{EE+r}")
        for m in range(4):
            for u in range(2):
                for par in range(2):
                    r=8*u+2*m+par; g=GP+2*u+par
                    a(f"v_mul_f32 v{g}, v{z+r}, v{EE+r}" if m==0 else f"v_fmac_f32 v{g}, v{z+r}, v{EE+r}")
        for j in range(4): a(f"ds_add_f32 v{AGs+j}, v{GP+j} offset:{AGG+256*(q>>1)+16*(q&1)}")
        a("s_waitcnt lgkmcnt(0)")
    a(f"""
v_add_u32 v{SB}, 128, v{SB}
v_add_u32 v{RB}, 128, v{RB}
v_add_u32 v{SV+12}, 128, v{SV+12}
s_add_u32 s{sI}, s{sI}, 8
s_branch KF_SL
KF_SN:
s_add_u32 s{sHEAD}, s{sHEAD}, 256
s_cmp_lg_u32 s{sFLAG}, 0
s_cbranch_scc1 KF_SK
s_add_u32 s{sLO}, s{sLO}, 256
s_branch KF_SR
KF_SE:
s_cmp_ge_u32 s{sWV}, 4
s_cbranch_scc1 KF_SE2
""")
    sdma(sA,32768,0,WV)
    a(f"""
KF_SE2:
v_lshlrev_b32 v1, 4, v0
v_lshrrev_b32 v2, 5, v0
s_waitcnt vmcnt(0) lgkmcnt(0)
s_barrier
""")
    for j in range(4): a(f"ds_read_b128 {P4(A+4*j)}, v1 offset:{AGG+j*8192}")
    a(f"""
v_mul_u32_u24 v2, {AS}, v2
v_and_b32 v3, 31, v0
v_lshl_add_u32 v4, v3, 3, v2
s_waitcnt lgkmcnt(0)
s_barrier
""")
    for j in range(4):
        a(f"v_cvt_pk_bf16_f32 v{A+4*j}, v{A+4*j}, v{A+4*j+1}\nv_cvt_pk_bf16_f32 v{A+4*j+1}, v{A+4*j+2}, v{A+4*j+3}")
        a(f"ds_write_b64 v4, {P2(A+4*j)} offset:{AGB+j*16*AS}")
    trw2()
    a("s_branch KF_FIN")
    hist_retry(4,"KF_h",False)
    return a.text()

if __name__=='__main__':
    import sys
    nm='standalone__mpnn_edge_mlp__graph_kernel'
    hdr=open('standalone__mpnn_edge_mlp__graph.s.ref').read().split('; Override')[0]
    out=hdr+(f"; @launch kernel={nm} grid=(256,1,1) block=(512,1,1) lds={KF_LDS}\n" if os.environ.get('LISTF') else f"; @launch grid=(256,1,1) block=(512,1,1) lds={KF_LDS}\n")
    out+='.amdgcn_target "amdgcn-amd-amdhsa--gfx950"\n.text\n'
    out+=f".globl {nm}\n.p2align 8\n.type {nm},@function\n"+gen_kf(nm)
    out+='.section .rodata,"a"\n.p2align 6\n'+kd(nm,256)
    open(sys.argv[1],'w').write(out)
```

```python
import sys
src=open('h8.s').read()
def kd(n): return f'''.p2align 6
.amdhsa_kernel {n}
  .amdhsa_next_free_vgpr 64
  .amdhsa_next_free_sgpr 48
  .amdhsa_accum_offset 64
  .amdhsa_group_segment_fixed_size 0
  .amdhsa_kernarg_size 72
  .amdhsa_user_sgpr_count 2
  .amdhsa_user_sgpr_kernarg_segment_ptr 1
  .amdhsa_system_sgpr_workgroup_id_x 1
.end_amdhsa_kernel
'''
def mk(name,fl,which,off,dly=600,scat=0):
    L=src.split('\n')
    il=[i for i,l in enumerate(L) if l.startswith('; @launch kernel=')][0]
    L.insert(il+1,'; @launch kernel=spin_kernel grid=(1,1,1) block=(64,1,1) lds=0')
    L.insert(il,'; @launch kernel=probe_kernel grid=(256,1,1) block=(256,1,1) lds=131072')
    t='\n'.join(L)
    b=f'''.globl probe_kernel
.p2align 8
.type probe_kernel,@function
probe_kernel:
    s_cmp_ge_u32 s2, 256
    s_cbranch_scc1 PR_END
    s_load_dwordx4 s[4:7], s[0:1], 56
    s_mul_i32 s3, s2, 24576
    s_add_u32 s3, s3, {off}
    v_lshlrev_b32 v1, 4, v0
    v_add_u32 v1, s3, v1
    s_add_u32 s9, s2, 37
    s_and_b32 s9, s9, 255
    s_mul_i32 s9, s9, 24576
    s_add_u32 s9, s9, {off}
    v_lshlrev_b32 v2, 4, v0
    v_add_u32 v2, s9, v2
    s_waitcnt lgkmcnt(0)
    s_memrealtime s[10:11]
    s_waitcnt lgkmcnt(0)
'''
    for j in range(6): b+=f"    global_store_dwordx4 v1, v[4:7], s[6:7]{fl}\n    v_add_u32 v1, 4096, v1\n"
    if fl=='': b+="    s_waitcnt vmcnt(0)\n    buffer_wbl2 sc1\n"
    b+=f'''    s_waitcnt vmcnt(0)
    s_memrealtime s[12:13]
    s_waitcnt lgkmcnt(0)
PR_W:
    s_memrealtime s[14:15]
    s_waitcnt lgkmcnt(0)
    s_sub_u32 s16, s14, s10
    s_cmp_lt_u32 s16, {dly}
    s_cbranch_scc1 PR_W
'''
    if scat:
        b+=f"""    s_and_b32 s3, s2, 7
    s_lshl_b32 s3, s3, 5
    s_lshr_b32 s9, s2, 3
    s_or_b32 s3, s3, s9
    s_mul_i32 s3, s3, 96
    s_add_u32 s3, s3, {off}
    v_mul_u32_u24 v2, 43, v0
    v_lshrrev_b32 v2, 8, v2
    v_mul_u32_u24 v3, 6, v2
    v_sub_u32 v3, v0, v3
    v_mul_u32_u24 v2, 24576, v2
    v_lshl_add_u32 v2, v3, 4, v2
    v_add_u32 v2, s3, v2
"""
    for j in range(6): b+=f"    global_load_dwordx4 v[{8+4*j}:{11+4*j}], v2, s[6:7] sc1\n    v_add_u32 v2, {42*24576 if scat else 4096}, v2\n"
    b+=f'''    s_waitcnt vmcnt(0)
    s_memrealtime s[16:17]
    s_waitcnt lgkmcnt(0)
    s_sub_u32 s12, s12, s10
    s_sub_u32 s16, s16, s14
    v_mov_b32 v3, 0
    v_writelane_b32 v3, s10, 0
    v_writelane_b32 v3, s12, 1
    v_writelane_b32 v3, s16, 2
    v_lshlrev_b32 v1, 2, v0
    v_cmp_gt_u32 vcc, 3, v0
    s_and_saveexec_b64 s[20:21], vcc
    s_cbranch_execz PR_END
    global_atomic_umax v1, v3, s[4:5]
PR_END:
    s_endpgm
.globl spin_kernel
.p2align 8
.type spin_kernel,@function
spin_kernel:
    s_cmp_ge_u32 s2, 1
    s_cbranch_scc1 SP_END
    s_load_dwordx2 s[4:5], s[0:1], 56
    s_waitcnt lgkmcnt(0)
    s_sub_u32 s4, s4, 1024
    s_subb_u32 s5, s5, 0
    s_load_dwordx4 s[16:19], s[4:5], 0
    s_waitcnt lgkmcnt(0)
    s_mul_i32 s8, s{16+which}, 10
    s_min_u32 s8, s8, 20000
    s_add_u32 s8, s8, 6000
SP_L:
    s_memrealtime s[10:11]
    s_waitcnt lgkmcnt(0)
    s_sub_u32 s12, s10, s16
    s_cmp_lt_u32 s12, s8
    s_cbranch_scc1 SP_L
SP_END:
    s_endpgm
.section .rodata,"a"'''
    t=t.replace('.section .rodata,"a"',b)+kd('probe_kernel')+kd('spin_kernel')
    open(name,'w').write(t)
mk('q0.s',' sc1',2,0x4000000,170,0)
mk('q1.s',' sc1',2,0x4000000,170,1)
mk('q2.s',' sc1',2,0x4000000,600,1)
mk('q3.s',' sc1',2,0x4000000,250,1)
mk('q4.s',' sc1',2,0x400000,170,1)
mk('q5.s',' sc1',1,0x1000,170,1)
```

```python
from common import *
X=int(os.environ.get('X','0'))
PRIO=int(os.environ.get('PRIO','1'))
DSP=[int(c,36) for c in os.environ.get('DSP','00000000')]
def EV(n,d): return int(os.environ.get(n,d))
TPOS=EV('TPOS',6); PFP=EV('PFP',3); XORD=EV('XORD',1); WUI=EV('WUI',2); FLP=EV('FLP',1); FSL=EV('FSL',8); TE=1; RND=EV('RND',1); W1N=EV('W1N',5); GP_=EV('GP',1); NT=os.environ.get('NT',''); CLM=EV('CLM',0); CLW=EV('CLW',1); SLP=EV('SLP',1); H1P=EV('H1P',10); SH3=EV('SH3',0); EP_=EV('EP',1); ESC=os.environ.get('ESC',''); PERM=EV('PERM',0); W2N=EV('W2N',8); UL=EV('UL',0); WU1L=EV('WU1L',0); W1E=EV('W1E',0); ZL=EV('ZL',0); FST=EV('FST',0); UNP=EV('UNP',0); TLB=EV('TLB',0); DBGP=EV('DBGP',0); ALN=EV('ALN',0); PFT=EV('PFT',1); PFK=EV('PFK',7); PF0=EV('PF0',0); PFN=EV('PFN',16); XP=EV('XP',0); PFI=EV('PFI',0); SWW=EV('SWW',1)
PTS=os.environ.get('PTS','b1,bS,tp,pfl,rl,b2,b3,pro').split(',')
SC=os.environ.get('LSC',' sc1')
SSC=os.environ.get('SSC',' sc1')
OSC=os.environ.get('OSC',' sc1')
GSC=os.environ.get('GSC',' sc1')
NPROD=250; EP=1600; RST=EP*16+128
F_REC=0x10000; F_TBL=0x700000; PB0=0x1000000; PSL=0x340000; NSL=73; F_P=PB0+0x1000; F_FLG=PB0+0x320000; F_SIZE=0x10000000
assert PB0+NSL*PSL<=F_SIZE
CNT=0; MISC=256; OH=400; GL=928; BT=1872; STB=2144; RS=944
mSLOW=MISC; mS=MISC+4; mGX=MISC+8; mGP=MISC+12; mC3=MISC+16; mPD=MISC+20; mSL=MISC+24; mMX=MISC+28; mPI=MISC+32; mH=MISC+36; mNT=MISC+40; mW=MISC+44; mE=MISC+48; mEM=MISC+52; mNO=MISC+56; mWU=MISC+64
AGB=17408
W3L=AGB+56*256
Q2=AGB+16384; QS=52*128
S1=Q2; ERAW=Q2+12800
WB=Q2+4*QS; NULLG=49*256; EB=WB+NULLG+16
HIST=WB; PSC=WB+2048
GBUF=98304
KF_LDS=GBUF+65536
assert EB+2*NULLG+32<=GBUF and STB+16*RS<=AGB
AGG=STB
ONE2=0x3F803F80
NULLW2=0xFFFF|(512<<16)
CAPT=58
ID0=4; ID1=8; B3=12; A=28; Z=[60,76]; A3=92; EE=96; NN=112; DD=116; GP=120; SS=124
IDX=128; AR=144; RB=152; SB=153; SA=154; VY=155; OHC=156; VL=157; WT=158; DR=159
ACC=160; WU2=192; UA=208; WF=160; WU1=176; QA=224; RC=96; XF=28; GA=192
TP=143; WV=151; A6=244; QAD=250; QC=145; SA2=146; SI2=148; OH2=150; GA0=232; YA=234; EA=235; M4=236; EC=237; VZ=238; PO=92; TRU=240; TD=241; TC=242; TO=243; RK=244; FA=252
sP=24; sX=28; sA=32; sR=36; sM=40
sWV=56; sK=57; sNN=58; sI=59; sNT=60; sBUF=61; sQ=62; sW8=63; sCNT=64; sT0=65
sL2E=66; sINC=68; sRND=70; sTOT=71; sNON=72; sBUD=73; sW4=74; sLB=75
sWU=3; sW4K=22; sPO=23; sFLAG=76; sLO=77; sMA=78; sQ2=80; s128=81; sHEAD=82; sNF=83
t0,t1,t2,t3=84,85,86,87
BUDGET=100000
sNB=2 if PERM else sK

def mfma32(d,x,y,c): return f"v_mfma_f32_32x32x16_bf16 v[{d}:{d+15}], v[{x}:{x+3}], v[{y}:{y+3}], "+("0" if c is None else f"v[{c}:{c+15}]")
def mfma16(d,x,y,c): return f"v_mfma_f32_16x16x32_bf16 v[{d}:{d+3}], v[{x}:{x+3}], v[{y}:{y+3}], "+("0" if c is None else f"v[{c}:{c+3}]")
def mfma4(d,x,c): return f"v_mfma_f32_4x4x4_16b_bf16 v[{d}:{d+3}], v[{x}:{x+1}], v[{ID0}:{ID0+1}], "+("0" if c is None else f"v[{c}:{c+3}]")
def P2(r): return f"v[{r}:{r+1}]"
def P4(r): return f"v[{r}:{r+3}]"
def S2(r): return f"s[{r}:{r+1}]"
def SR4(r): return f"s[{r}:{r+3}]"

def gen_kf(name):
    a=Asm()
    def pt(n):
        if PROF and n in PTS: stamp(a,2+PTS.index(n))
    def ret(n):
        if PROF and n in PTS: a(f"s_sub_u32 s{90+PTS.index(n)}, {BUDGET}, s{sBUD}\ns_mul_i32 s{90+PTS.index(n)}, s{90+PTS.index(n)}, 100")
    def bar(n,w="s_waitcnt lgkmcnt(0)"):
        a(w+"\ns_barrier"); pt(n)
    def gsync(n,lab,off,target,va,vt,pre=None):
        if pre: a(pre)
        a(f"""
v_mov_b32 v{vt}, 1
s_mov_b64 exec, 1
ds_add_u32 v{va}, v{vt} offset:{off}
s_mov_b64 exec, -1
{lab}:
ds_read_b32 v{vt}, v{va} offset:{off}
s_waitcnt lgkmcnt(0)
v_readfirstlane_b32 s{t1}, v{vt}
s_and_b32 s{t1}, s{t1}, 255
s_cmp_lt_u32 s{t1}, {target}
s_cbranch_scc1 {lab}
""")
        pt(n)
    def gwait(lab,off,target,va,vt):
        if SLP: a(f"s_branch {lab}_\n{lab}:\ns_sleep {SLP}\n{lab}_:")
        else: a(f"{lab}:")
        a(f"""
ds_read_b32 v{vt}, v{va} offset:{off}
s_waitcnt lgkmcnt(0)
v_readfirstlane_b32 s{t1}, v{vt}
s_and_b32 s{t1}, s{t1}, 255
s_cmp_lt_u32 s{t1}, {target}
s_cbranch_scc1 {lab}
""")
    def consts():
        srd(a,sP,20,N,off=F_P-3072,stride=256)
        srd(a,sR,20,F_SIZE)
        a(f"""
s_cmp_lt_u32 s{sNB}, {N-256*48}
s_cselect_b32 s{sNN}, 49, 48
s_mov_b32 s{sL2E}, {hex(LOG2E_NEG)}
s_mov_b32 s{sL2E+1}, {hex(LOG2E_NEG)}
s_mov_b32 s{sINC}, 16
s_mov_b32 s{sINC+1}, 16
s_mov_b32 s{sMA}, 0x0000ffff
s_mov_b32 s{sMA+1}, 0x0000ffff
s_mov_b32 s{sQ2}, {Q2}
s_mov_b32 s{sBUD}, {BUDGET}
v_lshrrev_b32 v2, 5, v{VL}              ; h
; g = 4 b2 + 2 b4 + b0 ; m = 2 b3 + b1 ; slot = 16 b2 + 4 m + (g&3)
v_lshrrev_b32 v1, 3, v{VL}
v_and_b32 v1, 2, v1
v_and_or_b32 v1, v{VL}, 5, v1           ; g
v_lshlrev_b32 v{RB}, 1, v1
v_lshlrev_b32 v3, 1, v{VL}
v_and_b32 v3, 4, v3
v_and_or_b32 v{M4}, v{VL}, 8, v3        ; 4m
v_lshlrev_b32 v{EC}, 1, v{M4}
v_add_u32 v{EC}, {EB}, v{EC}
v_and_b32 v{WT}, 15, v{VL}              ; n / c16
v_lshlrev_b32 v3, 1, v3
v_and_or_b32 v3, v{VL}, 1, v3
v_lshl_or_b32 v3, v2, 2, v3
v_lshl_add_u32 v{AR}, v3, 7, s{sBUF}
v_bfe_u32 v1, v{VL}, 1, 1
v_bfe_u32 v3, v{VL}, 2, 3
v_xor_b32 v1, v1, v3
v_lshl_add_u32 v{AR}, v1, 4, v{AR}
v_mul_i32_i24 v{OHC}, -8, v2
v_mul_u32_u24 v{SA}, {RS}, v{WT}
v_and_b32 v1, 1, v{VL}
v_lshlrev_b32 v1, 4, v1
v_mov_b32 v3, 0x3f80
v_lshlrev_b32 v1, v1, v3
""")
        a(f"s_mov_b32 vcc_lo, 0x33333333\ns_mov_b32 vcc_hi, 0x33333333\nv_cndmask_b32 v{ID0}, 0, v1, vcc\nv_sub_u32 v{ID0+1}, v1, v{ID0}")
        a(f"""
v_lshrrev_b32 v2, 4, v{VL}              ; a / g
v_lshrrev_b32 v{SB}, 2, v{VL}
v_and_b32 v{SB}, 14, v{SB}
v_and_b32 v1, 7, v{VL}
v_lshlrev_b32 v1, 4, v1
s_movk_i32 s{s128}, 128
""")
        for i in range(4): a(f"v_xor_b32 v{IDX+2*i+1}, {(i&1)*16+3072-1024*i}, v1")
        a(f"v_xor_b32 v3, v2, v{WT}\nv_lshlrev_b32 v3, 4, v3\nv_lshl_add_u32 v3, v{WT}, 8, v3\nv_add_u32 v{FA}, {AGB}, v3")
        for s in range(1,4): a(f"v_xor_b32 v{FA+s}, {64*s}, v{FA}")
        a(f"""
s_lshl_b32 s{t0}, s{sW4}, 13
s_add_u32 s{t0}, s{t0}, {GBUF}
s_lshr_b32 s{t1}, s{sWV}, 2
v_lshrrev_b32 v1, 2, v{WT}
v_lshl_add_u32 v1, v2, 3, v1
v_lshl_add_u32 v{DR}, v1, 6, s{t0}
v_xor_b32 v2, s{t1}, v2
v_and_b32 v2, 1, v2
v_and_b32 v3, 3, v{VL}
v_lshl_add_u32 v{TRU}, v2, 5, v{DR}
v_lshl_add_u32 v{TRU}, v3, 3, v{TRU}
v_lshrrev_b32 v2, 3, v{VL}
v_and_b32 v2, 2, v2
v_xor_b32 v2, v2, v3
v_lshl_add_u32 v{TP}, v2, 4, v{DR}
""")
    def slot():
        a(f"""
s_mul_i32 s{sPO}, s{sNON}, 0x9E3779B1
s_mul_hi_u32 s{sPO}, s{sPO}, {NSL if RND else 1}
s_mul_i32 s{sPO}, s{sPO}, {PSL}
s_add_u32 s{sP}, s{sP}, s{sPO}
s_addc_u32 s{sP+1}, s{sP+1}, 0
""")
    def vyc(VY=VY):
        a(f"""
v_lshrrev_b32 v1, 4, v{VL}
v_and_b32 v1, 2, v1
v_xor_b32 v1, v1, v{VL}
v_and_b32 v1, 3, v1
v_lshlrev_b32 v1, 4, v1
v_lshrrev_b32 v2, 2, v{VL}
v_lshl_or_b32 v{VY}, v2, 8, v1
""")
    def trfrag(dst,addr,off,ks,hs):
        for s in range(4):
            a(f"ds_read_b64_tr_b16 {P2(dst+4*s)}, v{addr} offset:{off+s*ks}\nds_read_b64_tr_b16 {P2(dst+4*s+2)}, v{addr} offset:{off+s*ks+hs}")
    def tru(dst,off): trfrag(dst,TRU,off,2048,256)
    def sdma(sr,moff,loff=0,v=VY,js=range(8)):
        a(f"s_lshl_b32 s{t0}, s{sW4}, 6")
        for j in js:
            a(f"s_add_u32 m0, s{sBUF}, {loff+j*1024}\ns_add_u32 s{t1}, s{t0}, {moff+j*4096}\nbuffer_load_dwordx4 v{v}, {SR4(sr)}, s{t1} offen lds")
    def xfrags(Ts):
        for T in Ts:
            for s in range(4): a(f"ds_read_b128 {P4(XF+16*T+4*s)}, v{FA+s} offset:{T*4096}")
    def trw(): trfrag(WF,TP,32768,2048,256); trfrag(WF+16,TP,32768+8,2048,256)
    def um(r,tau,i,xf,acc,WF=WF):
        L=[]
        for s in range(4):
            w,x=WF+16*i+4*s,xf+4*s
            d=UA+8*tau+4*i
            L.append(mfma16(d,*((x,w) if (r,tau)==(1,1) else (w,x)),d if (acc or s) else None))
        return L
    def ugemm(r):
        for tau in range(2):
            for i in range(2):
                for x in um(r,tau,i,XF+16*(2*r+tau),False): a(x)
        a("s_nop 4")
        for j in ((0,2,4,6,8,10,12,14) if r==0 else (0,2,4,6,8,12)): a(f"v_pk_mul_f32 {P2(UA+j)}, {P2(UA+j)}, {S2(sL2E)}")
    def w3rd():
        a(f"v_lshlrev_b32 v1, 3, v{VL}")
        for q in range(4): a(f"ds_read_b64 {P2(B3+4*q+2*(q&1))}, v1 offset:{W3L+q*512}")
    F=A3
    def scan(slow):
        a(f"""
v_lshlrev_b32 v1, 2, v{VL}
ds_read_b32 v{F}, v1
v_cmp_gt_u32 vcc, s{sNN}, v{VL}
v_lshlrev_b32 v{F+1}, 8, v{VL}
s_waitcnt lgkmcnt(0)
v_sub_u32 v{QA}, v{F}, v{F+1}
""")
        if slow:
            a(f"""
s_movk_i32 s{t1}, 256
v_subrev_u32 v{QA}, s{sHEAD}, v{QA}
v_cmp_lt_i32 {S2(t2)}, s{t1}, v{QA}
v_med3_i32 v{QA}, v{QA}, 0, s{t1}
v_add_u32 v{F}, v{F+1}, v{QA}
""")
        a(f"""
v_add_u32 v3, 12, v{QA}
v_and_b32 v3, -16, v3
v_max_u32 v3, 80, v3
v_cndmask_b32 v3, 0, v3, vcc
v_mov_b32 v2, v3
""")
        dpp_scan(a,"v_add_u32",[2])
        a(f"""
v_readlane_b32 s{t0}, v2, 63
v_sub_u32 v2, v2, v3
""")
    def fill(lab,slow,nw):
        a(f"""
s_lshl_b32 s{t1}, s{sWV}, 4
v_add_u32 v{QA+1}, s{t1}, v2
v_lshrrev_b32 v{QA+1}, 3, v{QA+1}       ; 2*(G0+w)
v_add_u32 v{F+1}, s{t1}, v{F+1}         ; 256n+16w
v_subrev_u32 v{QA+2}, s{t1}, v3         ; g16-16w
""")
        if not slow: a(f"v_add_u32 v{QA+3}, v{QA+1}, v{SA}\nv_mov_b32 v{F+3}, 0x3f80\nds_write_b32 v1, v2 offset:{BT}")
        for k in range(16//nw):
            a(f"v_cmpx_lt_i32 vcc, {16*nw*k}, v{QA+2}\nds_write_b16 v{QA+1}, v{F+1+(k&1)} offset:{GL+2*nw*k}")
            if k+1<16//nw: a(f"v_add_u32 v{F+1+((k+1)&1)}, {16*nw}, v{F+1+(k&1)}")
            if not slow: a(f"ds_write_b16 v{QA+3}, v{F+3} offset:{STB+2*nw*k}")
        a(f"""
s_mov_b64 exec, -1
s_lshl_b32 s{t1}, s{sWV}, 2
v_sub_u32 v{QA+2}, v3, v{QA}
v_add_u32 v{F}, s{t1}, v{F}
v_subrev_u32 v{QA+2}, s{t1}, v{QA+2}    ; pad4 - 4w
s_mov_b32 s{t1}, {EB}
v_mov_b32 v{QA+4}, 0
v_mov_b32 v{QA+5}, 0
v_mov_b32 v{QA+6}, {hex(NULLW2)}
v_lshl_add_u32 v{QA+7}, v{F}, 1, s{t1}
""")
        for k in range(-(-20//nw)):
            a(f"v_cmpx_lt_i32 vcc, {4*nw*k}, v{QA+2}")
            if k==1: a(f"s_cbranch_vccz {lab}p")
            a(f"ds_write_b32 v{F}, v{QA+6} offset:{WB+4*nw*k}\nds_write_b64 v{QA+7}, {P2(QA+4)} offset:{8*nw*k}")
        a(f"""
{lab}p:
s_mov_b64 exec, -1
s_cmp_eq_u32 s{sWV}, 3
s_cbranch_scc0 {lab}q
s_lshr_b32 s{t1}, s{t0}, 3
v_lshl_add_u32 v{QA+1}, v{VL}, 1, s{t1}
v_mov_b32 v{QA+2}, {NULLG}
v_add_u32 v{QA+3}, {NULLG}, v1
v_lshlrev_b32 v{QA+7}, 1, v1
v_add_u32 v{QA+7}, {EB+2*NULLG}, v{QA+7}
s_mov_b64 exec, 0xff
ds_write_b16 v{QA+1}, v{QA+2} offset:{GL}
s_mov_b64 exec, 15
ds_write_b32 v{QA+3}, v{QA+6} offset:{WB}
ds_write_b64 v{QA+7}, {P2(QA+4)}
s_mov_b64 exec, -1
{lab}q:
""")
    def expand(lab,win=True):
        if win: a(f"""
v_subrev_u32 v1, s{sLO}, v{TO}
v_add_u32 v2, v1, v{TC}
v_med3_i32 v1, v1, 0, s{t3}
v_med3_i32 v2, v2, 0, s{t3}
v_sub_u32 v2, v2, v1
v_lshl_add_u32 v1, v1, 2, s{sLB}
""")
        a(f"{lab}:")
        for j in range(16):
            a(f"v_cmpx_lt_i32 vcc, {j}, v2")
            if j==13: a(f"s_cbranch_vccz {lab}z")
            a(f"ds_write_b32 v1, v{TD} offset:{4*j}")
        a(f"""
v_add_u32 v2, -16, v2
v_add_u32 v1, 64, v1
v_cmp_lt_i32 vcc, 0, v2
s_cmp_lg_u64 vcc, 0
s_cbranch_scc1 {lab}
{lab}z:
s_mov_b64 exec, -1
""")
    def rl1(i): return f"buffer_load_dwordx4 {P4(RC+4*i)}, v{RK+i}, {SR4(sR)}, {'0' if i<4 else 's'+str(sQ)} offen offset:{1024*(i&3)}{SC}"
    def reclist(ns):
        a(f"v_lshl_add_u32 v1, v{VL}, 2, s{sLB}")
        for i in reversed(range(ns)): a(f"ds_read_b32 v{RK+i}, v1 offset:{256*i}")
        a(f"v_add_u32 v2, s{sLO}, v{VL}\nv_lshlrev_b32 v2, 4, v2\ns_movk_i32 s{sQ}, 4096")
        for i in range(ns):
            a(f"v_cmp_gt_i32 {S2(sM+2*i)}, s{t1}, v{VL}\ns_sub_u32 s{t1}, s{t1}, 64")
        a("s_waitcnt lgkmcnt(0)")
        for i in range(ns): a(f"v_add_u32 v{RK+i}, v{RK+i}, v2")
    def recload(ns,lab):
        for i in reversed(range(ns)):
            a(f"s_mov_b64 exec, {S2(sM+2*i)}\ns_cbranch_execz {lab}{i}\n{rl1(i)}\n{lab}{i}:")
        a("s_mov_b64 exec, -1")
    def hist(ns,lab,extra,scat):
        a(f"v_mov_b32 v1, 4\ns_mov_b32 s{sW8}, {EB}\n{lab}p:")
        def gm(i): return S2(t0+2*(i&1))
        def sc(i,n):
            a(f"""
s_mov_b64 exec, {gm(i)}
s_waitcnt lgkmcnt({n})
v_min_u32 v{RK+i}, {NULLG-4}, v{RK+i}
v_lshl_add_u32 v{RC+4*i+3}, v{RK+i}, 1, s{sW8}
ds_write_b32 v{RK+i}, v{RC+4*i+2} offset:{WB}
ds_write_b64 v{RC+4*i+3}, {P2(RC+4*i)}
""")
        for i in reversed(range(ns)):
            a(f"""
s_mov_b64 exec, {S2(sM+2*i)}
s_waitcnt vmcnt({i+extra})
v_cmpx_eq_u32 {gm(i)}, s{sNON}, v{RC+4*i+3}
v_lshrrev_b32 v{RC+4*i+3}, 17, v{RC+4*i+2}
ds_add_rtn_u32 v{RK+i}, v{RC+4*i+3}, v1
s_andn2_b64 {S2(sM+2*i)}, {S2(sM+2*i)}, {gm(i)}
""")
            a(f"s_mov_b64 vcc, {S2(sM+2*i)}" if i==ns-1 else f"s_or_b64 vcc, vcc, {S2(sM+2*i)}")
            if scat and i==0 and 0: pass
            if scat and i==0: a(f"s_cselect_b64 exec, 0, 1\nds_add_u32 v{VZ}, v1 offset:{mH}")
            if scat and i<ns-1: sc(i+1,(1 if i==ns-2 else 3)+(1 if i==0 else 0))
        if scat: sc(0,3)
        a(f"s_cbranch_vccnz {lab}r\n{lab}d:\ns_mov_b64 exec, -1")
    def hist_retry(ns,lab,scat):
        a(f"{lab}r:\ns_sub_u32 s{sBUD}, s{sBUD}, 1\ns_cbranch_scc1 {lab}x")
        recload(ns,lab+"l")
        a(f"s_waitcnt vmcnt(0)\ns_branch {lab}p\n{lab}x:\ns_mov_b32 s{sBUD}, 0")
        if scat: a(f"s_mov_b64 exec, 1\nds_add_u32 v{VZ}, v1 offset:{mH}")
        a(f"s_branch {lab}d")
    def qfull(lab,mid):
        H=QA+4; MX=QA+1
        a(f"v_xor_b32 v{TC}, 32, v{TRU}")
        trfrag(WF,TC,0,2048,256)
        a(f"""
s_lshl_b32 s{t0}, s{sW4}, 8
s_add_u32 s{t0}, s{t0}, {Q2}
v_lshrrev_b32 v1, 4, v{VL}
v_lshl_add_u32 v120, v1, 11, s{t0}
v_and_b32 v1, 8, v{VL}
v_lshl_add_u32 v120, v1, 3, v120
v_and_b32 v1, 3, v{VL}
v_lshl_add_u32 v120, v1, 4, v120
v_and_b32 v1, 4, v{VL}
v_lshl_add_u32 v120, v1, 1, v120
v_add_u32 v121, 128, v120
s_waitcnt lgkmcnt(0)
""")
        tru(WF+16,0)
        def cv(i,T,pk):
            c=GA+16*i+4*T
            L=[]
            if pk: L+=[f"v_pk_mul_f32 {P2(c)}, {P2(c)}, {S2(sL2E)}",f"v_pk_mul_f32 {P2(c+2)}, {P2(c+2)}, {S2(sL2E)}"]
            else: L+=[f"v_mul_f32 v{c+k}, s{sL2E}, v{c+k}" for k in range(4)]
            L+=[f"v_and_b32 v{H+k}, 0xffff0000, v{c+k}" for k in range(4)]
            L+=[f"v_maximum3_f32 v{MX}, {'0' if T==0 and i==0 else 'v'+str(MX)}, abs(v{c}), abs(v{c+1})",f"v_maximum3_f32 v{MX}, v{MX}, abs(v{c+2}), abs(v{c+3})"]
            if pk: L+=[f"v_pk_add_f32 {P2(c)}, {P2(c)}, {P2(H)} neg_lo:[0,1] neg_hi:[0,1]",f"v_pk_add_f32 {P2(c+2)}, {P2(c+2)}, {P2(H+2)} neg_lo:[0,1] neg_hi:[0,1]"]
            else: L+=[f"v_sub_f32 v{c+k}, v{c+k}, v{H+k}" for k in range(4)]
            L+=[f"v_cvt_pk_bf16_f32 v{c+k}, v{c+k}, v{H+k}" for k in range(4)]
            return L
        for T in range(4):
            for s in range(4): a(mfma16(GA+4*T,XF+16*T+4*s,WF+4*s,None if s==0 else GA+4*T))
        a("s_waitcnt lgkmcnt(0)")
        fl=cv(0,0,0)+cv(0,1,0)
        for T in range(4):
            for s in range(4):
                a(mfma16(GA+16+4*T,XF+16*T+4*s,WF+16+4*s,None if s==0 else GA+16+4*T))
                for _ in range(2): a(fl.pop(0))
        if PFI==0: mid()
        for x in fl+cv(0,2,1)+cv(1,0,1)+cv(1,1,1)+cv(1,2,1): a(x)
        if PFI==1: mid()
        gwait(lab+"w",mSL,4,VZ,1)
        for i in range(2):
            for T in range(3):
                c=GA+16*i+4*T
                a(f"ds_write2st64_b64 v{120+i}, {P2(c)}, {P2(c+2)} offset0:{16*T} offset1:{16*T+2}")
        a("s_mov_b64 exec, 0xffff")
        for i in range(2):
            c=GA+16*i+12
            a(f"""
v_mul_f32 v{c}, s{sL2E}, v{c}
v_and_b32 v{H}, 0xffff0000, v{c}
v_maximum3_f32 v{MX}, v{MX}, abs(v{c}), abs(v{c})
v_sub_f32 v{c}, v{c}, v{H}
v_cvt_pk_bf16_f32 v{c}, v{c}, v{H}
ds_write2st64_b64 v{120+i}, {P2(c)}, {P2(c+2)} offset0:48 offset1:50
""")
        a(f"""
s_mov_b64 exec, -1
v_cmp_nge_f32 vcc, 0x40e80000, v{MX}
s_cbranch_vccz {lab}q
ds_write_b32 v{VZ}, v{FA} offset:{mSLOW}
{lab}q:
""")
        pt('qd')
    def ranges():
        a(f"""
s_lshr_b32 s{sCNT}, s{sNT}, 3
s_mul_i32 s{sT0}, s{sCNT}, s{sWV}
s_and_b32 s{t2}, s{sNT}, 7
s_min_u32 s{t3}, s{t2}, s{sWV}
s_add_u32 s{sT0}, s{sT0}, s{t3}
s_cmp_lt_u32 s{sWV}, s{t2}
s_addc_u32 s{sCNT}, s{sCNT}, 0
s_lshl_b32 s{t0}, s{sT0}, 7
s_lshl_b32 s{t2}, s{sT0}, 4
v_add_u32 v{SB}, s{t2}, v{SB}
v_add_u32 v{RB}, s{t2}, v{RB}
s_add_u32 s{t3}, s{sT0}, s{sCNT}
v_min_u32 v1, 8, v{VL}
v_sub_u32 v1, s{t3}, v1
v_lshlrev_b32 v1, 4, v1
v_max_i32 v1, 0, v1
""")
    AS=272; OST=GBUF+32768
    eFA,eOW,eN48,eRD,eST,eM0,eM1=136,137,138,139,140,141,142
    sE0,sE1,sE2=4,5,6
    def epi_consts():
        srd(a,sX,16,N*256)
        vyc(WV)
        a(f"""
v_and_b32 v1, 15, v{VL}
v_lshrrev_b32 v2, 4, v{VL}
v_mul_u32_u24 v3, {AS}, v1
s_lshr_b32 s{t0}, s{sWV}, 2
s_mul_i32 s{t1}, s{t0}, {32*AS}
v_lshl_add_u32 v3, v2, 4, v3
v_add_u32 v{eFA}, s{t1}, v3
s_lshl_b32 s{t0}, s{t0}, 13
s_add_u32 s{t0}, s{t0}, {OST}
s_lshl_b32 s{t1}, s{sW4}, 2
v_or_b32 v2, s{t1}, v2
v_xor_b32 v2, v2, v1
v_lshl_add_u32 v2, v2, 4, s{t0}
v_lshl_add_u32 v{eOW}, v1, 8, v2
s_lshl_b32 s{t0}, s{sW4}, 6
s_add_u32 s{t0}, s{t0}, {OST+48*256}
v_and_b32 v2, 12, v1
v_lshl_add_u32 v2, v2, 2, s{t0}
v_and_b32 v3, 3, v1
v_lshl_add_u32 v{eN48}, v3, 1, v2
v_lshlrev_b32 v1, 4, v0
v_add_u32 v{eRD}, {OST}, v1
v_lshrrev_b32 v2, 4, v0
v_xor_b32 v3, v2, v0
v_and_b32 v3, 15, v3
v_lshlrev_b32 v3, 4, v3
v_lshl_add_u32 v{eST}, v2, 16, v3
s_lshl_b32 s{sE0}, s{sNB}, 8
s_add_u32 s{sE1}, s{sE0}, {32*65536}
s_cmp_lt_u32 s{sWV}, 4
s_cselect_b64 {S2(sE2)}, -1, 0xffff
s_mul_i32 s{t0}, s{sWV}, {AS}
v_lshl_add_u32 v{eM1}, v{VL}, 2, s{t0}
v_lshlrev_b32 v{OH2}, 1, v{OHC}
v_and_b32 v1, 31, v{VL}
v_lshlrev_b32 v1, 4, v1
v_lshlrev_b32 v2, 5, v{VL}
v_and_b32 v2, 0x400, v2
v_add3_u32 v{QC}, v1, v2, s{sQ2}
v_cndmask_b32 v{SI2}, 0, 16, {S2(sMA)}
v_cndmask_b32 v{SI2+1}, 16, 0, {S2(sMA)}
v_sub_u32 v2, v{SA}, v{OHC}
v_add_u32 v2, {STB}, v2
v_mov_b32 v1, {OH+64}
v_cndmask_b32 v{SA2}, v1, v2, {S2(sMA)}
v_cndmask_b32 v{SA2+1}, v2, v1, {S2(sMA)}
""")
    def arrive(off,vt): a(f"v_mov_b32 v{vt}, 1\ns_mov_b64 exec, 1\nds_add_u32 v{VZ}, v{vt} offset:{off}\ns_mov_b64 exec, -1")

    def claim():
        a(f"""
s_mul_i32 s{t1}, s{sW4}, {13*65536}
s_lshl_b32 s{t2}, s{sNB}, 8
s_add_u32 s{t1}, s{t1}, s{t2}
s_add_u32 s{t1}, s{t1}, {F_P}
""")
        if CLW==1:
            a(f"""
v_lshlrev_b32 v2, 15, v{VL}
v_and_b32 v2, 0xffff0000, v2
v_and_b32 v3, 1, v{VL}
v_lshl_add_u32 v2, v3, 7, v2
v_add_u32 v2, s{t1}, v2
s_mov_b64 exec, 0x3ffffff
global_store_dword v2, v{VZ}, s[20:21] sc1
s_mov_b64 exec, -1
""")
        else:
            a(f"""
v_lshlrev_b32 v2, 14, v{VL}
v_and_b32 v2, 0xffff0000, v2
v_and_b32 v3, 3, v{VL}
v_lshl_add_u32 v2, v3, 6, v2
v_add_u32 v2, s{t1}, v2
s_mov_b32 exec_hi, 0xfffff
global_store_dword v2, v{VZ}, s[20:21] sc1
s_mov_b64 exec, -1
""")
    D=28; SRc=36; K=44; R=52; W2=60; RO=80
    sD=40; sS=44; sE=48
    Q16="s_mov_b64 exec, 0xffff"; FULL="s_mov_b64 exec, -1"
    a(f"""
{name}:
{"s_memrealtime s[88:89]" if PROF and FST else ""}
s_getpc_b64 {S2(t2)}
s_cmp_ge_u32 s2, 256
s_cbranch_scc1 KF_END
s_load_dwordx16 s[4:19], s[0:1], 0
s_load_dwordx2 s[20:21], s[0:1], 64
v_lshrrev_b32 v1, 6, v0
s_and_b32 s{t0}, s2, 0xf8
v_add_lshl_u32 v2, v1, s{t0}, 7
v_readfirstlane_b32 s{sWV}, v1
v_min_u32 v2, KF_CEND-{name}-16, v2
s_mov_b64 exec, 1
global_load_dword v{QA+15}, v2, {S2(t2)}
s_mov_b64 exec, -1
v_and_b32 v{VL}, 63, v0
v_mov_b32 v{VZ}, 0
v_lshlrev_b32 v113, 4, v{VL}
s_and_b32 s{sK}, s2, 7
s_lshl_b32 s{sK}, s{sK}, 5
s_lshr_b32 s{t1}, s2, 3
s_or_b32 s{sK}, s{sK}, s{t1}
s_and_b32 s{sW4}, s{sWV}, 3
s_lshl_b32 s{sW4K}, s{sW4}, 10
s_cmp_ge_u32 s{sWV}, 4
s_cbranch_scc0 KF_S
v_lshlrev_b32 v2, 2, v0
v_lshlrev_b32 v3, 8, v{VL}
ds_write_b32 v2, v{VZ} offset:{HIST-1024}
v_lshlrev_b32 v2, 2, v{VL}
ds_write2st64_b32 v2, v3, v{VZ} offset0:0 offset1:1
s_memrealtime {S2(t2)}
v_bfe_u32 v1, v0, 4, 4
v_xor_b32 v37, v1, v0
v_and_b32 v37, 15, v37
v_lshlrev_b32 v37, 4, v37
v_lshl_add_u32 v36, v1, 8, s{sNB}
s_waitcnt lgkmcnt(0)
""")
    if WSB: a(f"s_add_u32 s20, s20, {hex(WSB)}\ns_addc_u32 s21, s21, 0")
    (0 if FST else stamp(a,0,True)); stamp(a,1); pt('st')
    a(f"""
""")
    a(f"""
s_or_b32 s{t1}, s2, s{sW4}
s_cbranch_scc1 KF_n
s_lshl_b32 s{t1}, s{t2}, 2
s_or_b32 s{t1}, s{t1}, 1
v_mov_b32 v1, s{t1}
v_lshlrev_b32 v2, 6, v{VL}
s_mov_b64 exec, 15
global_store_dword v2, v1, s[18:19] sc1
s_mov_b64 exec, -1
KF_n:
""")
    if XORD==0:
        srd(a,sX,4,N,stride=256)
        for j in range(4):
            if j==3: a(f"s_cmp_eq_u32 s{sWV}, 4\ns_cbranch_scc0 KT_c")
            a(f"s_add_u32 m0, s{sW4K}, {AGB+j*4096}\ns_nop 0\nbuffer_load_dwordx4 v[36:37], {SR4(sX)}, 0 idxen offen{NT} lds\nv_add_u32 v36, 4096, v36")
        a("KT_c:")
    a(f"""
s_lshr_b32 s{t0}, s{t0}, 1
s_add_u32 s{t0}, s{t0}, s{sWV}
s_sub_u32 s{t0}, s{t0}, 4
s_lshl_b32 s{t0}, s{t0}, 9
v_lshl_add_u32 v2, v{VL}, 7, s{t0}
s_mov_b64 exec, 15
global_load_dword v{QA+15}, v2, s[12:13]
global_load_dword v{QA+15}, v2, s[14:15]
s_mov_b64 exec, -1
""")
    if TLB:
        a(f"""
s_lshr_b32 s{t0}, s{t0}, 9
s_mul_i32 s{t1}, s{t0}, {2*RST}
s_add_u32 s{t1}, s{t1}, {F_REC+EP*16}
s_add_u32 s52, s20, s{t1}
s_addc_u32 s53, s21, 0
s_load_dword s44, s[52:53], 0
s_load_dword s45, s[52:53], {RST}
""")
    a(f"""
s_branch KF_B0
KF_S:
s_min_u32 s{t2}, s2, {NPROD-1}
s_mul_i32 s{t2}, s{t2}, {EP*4}
s_mul_i32 s{t3}, s{sWV}, 400
v_add_u32 v108, s{t3}, v{VL}
v_lshlrev_b32 v109, 2, v108
s_mov_b32 s{sD+2}, {E*4}
s_mov_b32 s{sD+3}, 0x00020000
s_waitcnt lgkmcnt(0)
""")
    if WSB: a(f"s_add_u32 s20, s20, {hex(WSB)}\ns_addc_u32 s21, s21, 0")
    (0 if FST else stamp(a,0,True)); stamp(a,1); pt('st')
    a(f"s_mov_b32 s{sD}, s10\ns_and_b32 s{sD+1}, s11, 0xffff")
    def ld7(dst,sr):
        for i in range(7):
            if i==6: a(Q16)
            a(f"buffer_load_dword v{dst+i}, v109, {SR4(sr)}, s{t2} offen offset:{i*256}{NT}")
        a(FULL)
    ld7(D,sD); pt('dl')
    srd(a,sS,8,E*4); srd(a,sE,6,E*8)
    ld7(SRc,sS)
    a(f"""
s_lshl_b32 s{sLB}, s{t3}, 3
s_lshl_b32 s{t2}, s{t2}, 1
s_add_u32 s{t2}, s{t2}, s{sLB}
s_add_u32 m0, s{sLB}, {ERAW}
s_add_u32 s{sLB}, s{sLB}, {S1}
""")
    for j in range(4):
        if j==3: a("s_mov_b64 exec, 0xff")
        a(f"buffer_load_dwordx4 v113, {SR4(sE)}, s{t2} offen offset:{1024*j}{NT} lds")
    a(FULL)
    if CLM==2: claim()
    a(f"""
KF_B0:
""")
    if DBGP:
        a("v_mov_b32 v1, 0")
        for j,r in enumerate((4,6,8,10,12,14,16,18,20)): a(f"v_writelane_b32 v1, s{r}, {j}")
        a(f"v_lshlrev_b32 v2, 2, v{VL}\ns_mov_b64 exec, 0x1ff\nglobal_store_dword v2, v1, s[18:19]\ns_mov_b64 exec, -1\ns_waitcnt vmcnt(0)")
    if ALN: a(f"s_add_u32 s20, s20, {ALN-1}\ns_addc_u32 s21, s21, 0\ns_and_b32 s20, s20, {-ALN}")
    a(f"""
s_lshl_b32 s{sBUF}, s{sWV}, 13
s_add_u32 s{sBUF}, s{sBUF}, {GBUF}
s_barrier
""")
    if W1E:
        a(f"s_cmp_ge_u32 s{sWV}, 4\ns_cbranch_scc0 KF_c0")
        srd(a,sA,12,260*256); vyc(); sdma(sA,0,0,VY,range(W1E))
        a("KF_c0:")
    consts()
    a(f"""
s_cmp_ge_u32 s{sWV}, 4
s_cbranch_scc1 KF_T
v_mov_b32 v111, 8
v_and_b32 v124, 7, v{VL}
v_lshlrev_b32 v124, 7, v124
v_lshrrev_b32 v125, 3, v{VL}
v_lshl_add_u32 v124, v125, 2, v124
v_add_u32 v124, {HIST}, v124
v_add_u32 v125, 1024, v124
v_lshlrev_b32 v112, 3, v108
v_lshlrev_b32 v110, 4, v108
""")
    for i in range(7): a(f"v_add_u32 v{W2+1+2*i}, {i*512}, v112")
    a(f"s_cmp_ge_u32 s2, {NPROD}\ns_cbranch_scc1 KS_d\ns_waitcnt vmcnt({11+(CLM==2)})")
    pt('dst')
    for i in range(7):
        if i==6: a(Q16)
        a(f"v_lshlrev_b32_sdwa v{K+i}, 2, v{D+i} dst_sel:DWORD dst_unused:UNUSED_PAD src0_sel:DWORD src1_sel:BYTE_0\nds_add_rtn_u32 v{R+i}, v{K+i}, v111 offset:{HIST}")
    a(FULL+"\nKS_d:")
    gsync('b1',"KS_y1",mS,4,VZ,2)
    if PERM: a(f"ds_read2_b32 v[116:117], v124 offset0:0 offset1:8\nds_read2_b32 v[118:119], v124 offset0:16 offset1:24")
    else: a(f"ds_read_b128 v[116:119], v113 offset:{HIST}")
    for i in range(7): a(f"v_lshrrev_b32 v{D+i}, 8, v{D+i}")
    a(f"""
s_waitcnt lgkmcnt(0)
v_add_u32 v2, v116, v117
v_add3_u32 v2, v2, v118, v119
v_mov_b32 v3, v2
""")
    dpp_scan(a,"v_add_u32",[3])
    a(f"""
v_sub_u32 v120, v3, v2
v_add_u32 v121, v120, v116
v_add_u32 v122, v121, v117
v_add_u32 v123, v122, v118
""")
    if PERM: a(f"ds_write2_b32 v125, v120, v121 offset0:0 offset1:8\nds_write2_b32 v125, v122, v123 offset0:16 offset1:24")
    else: a(f"ds_write_b128 v113, v[120:123] offset:{HIST+1024}")
    for i in range(7):
        if i==6: a(Q16)
        a(f"ds_read_b32 v{K+i}, v{K+i} offset:{HIST+1024}")
    a(FULL)
    def tpub():
        a(f"""
s_load_dword s{sNON}, s[18:19], 0
v_lshl_or_b32 v{QA}, v121, 16, v120
v_lshl_or_b32 v{QA+1}, v123, 16, v122
s_lshl_b32 s{t2}, s2, 10
s_add_u32 s{t2}, s{t2}, {F_TBL}
s_lshl_b32 s{t3}, s{sWV}, 4
""")
        for k,off in enumerate((128,64,192,None)):
            a(f"s_waitcnt lgkmcnt(0)\ns_cmp_lg_u32 s{sNON}, 0\ns_cbranch_scc1 KS_n1")
            if off is not None: a(f"s_sleep 2\ns_load_dword s{sNON}, s[18:19], {off}")
        a(f"""
KS_n0:
global_load_dword v1, v{VZ}, s[18:19] sc1
s_waitcnt vmcnt(0)
v_readfirstlane_b32 s{sNON}, v1
s_cmp_lg_u32 s{sNON}, 0
s_cbranch_scc1 KS_n1
s_sub_u32 s{sBUD}, s{sBUD}, 1
s_cbranch_scc0 KS_n0
s_mov_b32 s{sBUD}, 0
s_mov_b32 s{sNON}, 1
KS_n1:
v_mov_b32 v1, s{sNON}
ds_write_b32 v{VZ}, v1 offset:{mNO}
v_mov_b32 v{QA+3}, v1
s_lshl_b64 exec, 0xffff, s{t3}
buffer_store_dwordx4 {P4(QA)}, v113, {SR4(sR)}, s{t2} offen{SSC}
s_mov_b64 exec, -1
""")
    a(f"s_cmp_ge_u32 s2, {NPROD}\ns_cbranch_scc1 KS_e\ns_waitcnt vmcnt({(5 if TE==0 else 4)+(CLM==2)})")
    if X&64:
        for i in range(7): a(f"v_and_b32 v{SRc+i}, 0x1ff, v{SRc+i}")
    for i in range(7): a(f"v_lshl_or_b32 v{W2+2*i}, v{D+i}, 19, v{SRc+i}")
    a(f"s_waitcnt lgkmcnt(0)")
    for i in range(7):
        if i==6: a(Q16)
        a(f"v_add_u32 v{K+i}, v{K+i}, v{R+i}\nds_write_b64 v{K+i}, {P2(W2+2*i)} offset:{S1}")
    a(FULL+"\nKS_e:")
    pt('sc1')
    a(f"v_mov_b32 v{QA+2}, v3")
    epi_consts()
    tpub()
    slot()
    a(f"""
v_lshlrev_b32 v114, 10, v0
s_lshr_b32 s{sLO}, s{sK}, 2
s_lshl_b32 s{sLO}, s{sLO}, 4
s_add_u32 s{sLO}, s{sLO}, {F_TBL}
v_cmp_gt_u32 vcc, {NPROD}, v0
v_mov_b32 v{QA+4}, 0
v_mov_b32 v{QA+5}, 0
v_mov_b32 v{QA+6}, 0
s_mul_i32 s{t0}, s2, {RST}
s_add_u32 s{t0}, s{t0}, {F_REC}
s_add_u32 s{t2}, s{t0}, 4096
v_mul_u32_u24 v115, {RST}, v0
v_add_u32 v115, {F_REC}, v115
""")
    gsync('bS',"KS_y2",mS,8,VZ,2,f"s_waitcnt vmcnt({1+(CLM==2)})")
    tl=f"s_mov_b64 exec, vcc\nbuffer_load_dwordx4 {P4(QA+4)}, v114, {SR4(sR)}, s{sLO} offen{SC}\ns_mov_b64 exec, -1"
    a(f"""
s_cmp_ge_u32 s2, {NPROD}
s_cbranch_scc0 KS_h0
""")
    gwait("KS_h1",mGP,4,VZ,2)
    a(f"""
{tl}
v_mov_b32 v1, 0
s_branch KS_j
KS_h0:
""")
    order=[6,0,1,2,3,4,5]
    for i in order:
        if i==6: a(Q16)
        a(f"ds_read_b64 {P2(RO+2+4*i)}, v112 offset:{S1+i*512}")
        if i==6: a(FULL)
    for i in order:
        if i==6: a(Q16)
        a(f"s_waitcnt lgkmcnt(6)\nds_read_b64 {P2(RO+4*i)}, v{RO+3+4*i} offset:{ERAW}")
        if i==6: a(FULL)
    gwait("KS_ww",mW,4,VZ,2)
    for k,i in enumerate(order):
        if i==6: a(Q16)
        a(f"v_mov_b32 v{RO+3+4*i}, v1\nbuffer_store_dwordx4 {P4(RO+4*i)}, v110, {SR4(sR)}, s{t0 if i<4 else t2} offen offset:{1024*(i&3)}{SSC}")
        if i==6: a(FULL)
    a(tl)
    pt('out')
    a(f"v_pk_maximum3_f16 v1, v{RO}, v{RO+1}, v{RO+1}\nv_pk_minimum3_f16 v2, v{RO}, v{RO+1}, v{RO+1}")
    for i in range(1,7):
        if i==6: a(Q16)
        a(f"v_pk_maximum3_f16 v1, v1, v{RO+4*i}, v{RO+4*i+1}\nv_pk_minimum3_f16 v2, v2, v{RO+4*i}, v{RO+4*i+1}")
    a(FULL)
    absmax_fin(a,1,2,3)
    dpp_scan(a,"v_max_u32",[1])
    a(f"""
KS_j:
v_mov_b32 v2, 1
s_mov_b32 exec_lo, 0
s_brev_b32 exec_hi, 1
ds_max_u32 v{VZ}, v1 offset:{mEM}
ds_add_u32 v{VZ}, v2 offset:{mE}
s_mov_b64 exec, -1
""")
    gwait("KS_xw",mGX,4,VZ,2)
    xfrags([0,1])
    a(f"""
s_bitcmp1_b32 s{sK}, 1
s_cselect_b64 {S2(t2)}, -1, 0
s_lshl_b32 s{t0}, s{sK}, 4
s_and_b32 s{t0}, s{t0}, 16
s_waitcnt vmcnt(0)
s_mov_b64 exec, vcc
KT_f:
v_cmp_ne_u32 vcc, s{sNON}, v{QA+7}
s_cbranch_vccz KT_g
s_mov_b64 exec, vcc
s_sub_u32 s{sBUD}, s{sBUD}, 1
s_cbranch_scc1 KT_f2
buffer_load_dwordx4 {P4(QA+4)}, v114, {SR4(sR)}, s{sLO} offen{SC}
s_waitcnt vmcnt(0)
s_branch KT_f
KT_f2:
s_mov_b32 s{sBUD}, 0
v_mov_b32 v{QA+4}, 0
v_mov_b32 v{QA+5}, 0
v_mov_b32 v{QA+6}, 0
KT_g:
s_mov_b64 exec, -1
""")
    pt('tp'); ret('rt1')
    a(f"""
v_cndmask_b32 v1, v{QA+4}, v{QA+5}, {S2(t2)}
v_cndmask_b32 v2, v{QA+5}, v{QA+6}, {S2(t2)}
v_alignbit_b32 v1, v2, v1, s{t0}
v_sub_u32_sdwa v{TC}, v1, v1 dst_sel:DWORD dst_unused:UNUSED_PAD src0_sel:WORD_1 src1_sel:WORD_0
v_and_b32 v1, 0xffff, v1
v_lshrrev_b32 v{TC}, 3, v{TC}
v_lshl_add_u32 v{TD}, v1, 1, v115
v_mov_b32 v{TO}, v{TC}
""")
    dpp_scan(a,"v_add_u32",[TO])
    a(f"""
v_readlane_b32 s{sTOT}, v{TO}, 63
v_sub_u32 v{TO}, v{TO}, v{TC}
v_mov_b32 v2, v{TC}
v_lshlrev_b32 v1, 4, v{TO}
s_mov_b32 s{sLO}, 0
s_cmp_gt_u32 s{sTOT}, 512
v_sub_u32 v{TD}, v{TD}, v1
v_lshl_add_u32 v1, v{TO}, 2, s{sLB}
s_cselect_b32 s{t1}, 0, s{sTOT}
s_cbranch_scc1 KT_xe
""")
    expand("KT_x",False)
    a("KT_xe:")
    reclist(8)
    arrive(mSL,1)
    pt('exp')
    gwait("KS_rw",mPD,4,VZ,1)
    recload(8,"KT_l")
    pt('rl')
    def pfp():
        a(f"""
s_lshr_b32 s{t1}, s2, 3
s_mul_i32 s{t1}, s{t1}, 391
""")
        if PF0: a(f"v_and_b32 v2, 255, v0\nv_add_u32 v2, s{t1}, v2\nv_mov_b32 v3, 0")
        else: a(f"v_bfe_u32 v2, v0, 1, 7\nv_add_u32 v2, s{t1}, v2\nv_and_b32 v3, 1, v0\nv_lshlrev_b32 v3, 7, v3")
        if PFN<64: a(f"s_bfm_b64 exec, {PFN}, 0")
        a(f"buffer_load_dword v{QA+15}, v[2:3], {SR4(sP)}, 0 idxen offen offset:3072{SC}\ns_mov_b64 exec, -1")
    if PFP==1: pfp()
    gwait("KS_w2",mPI,4,VZ,1)
    trw()
    a("s_waitcnt lgkmcnt(0)")
    w3rd()
    ugemm(0)
    pt('ud')
    hist(8,"KT_h",1 if PFP==1 else 0,True)
    if PFP==3: pfp()
    pt('hs'); ret('rt2')
    gwait("KS_b2",mH,16,VZ,1)
    pt('b2')
    scan(False)
    a(f"""
v_cmp_lt_u32 vcc, 0x100, v{QA}
s_add_u32 s{sNT}, s{t0}, 127
s_lshr_b32 s{sNT}, s{sNT}, 7
s_cmp_gt_u32 s{sNT}, {CAPT}
s_cbranch_scc1 KT_j
s_cbranch_vccnz KT_j
""")
    fill("KFz",False,4)
    a(f"v_mov_b32 v1, s{sNT}\nds_write_b32 v{VZ}, v1 offset:{mNT}")
    pt('fil')
    a(f"""
s_cmp_gt_u32 s{sTOT}, 512
s_cbranch_scc0 KT_k
KT_j:
ds_write_b32 v{VZ}, v{FA} offset:{mSLOW}
KT_k:
s_mov_b32 s{sWU}, 1
""")
    ranges()
    srd(a,sA,14,256*256)
    if PRIO: a("s_setprio 3")
    bar('b3')
    a("s_branch KF_J")
    a(f"""
KF_T:
v_and_b32 v108, 255, v0
v_mov_b32 v32, 0
v_mov_b32 v33, 0
v_mov_b32 v34, 0
v_mov_b32 v35, 0
v_lshlrev_b32 v110, 4, v108
""")
    sG=40
    srd(a,sX,4,N,stride=256)
    def xld():
        for j in range(4):
            if j==3: a(f"s_cmp_eq_u32 s{sWV}, 4\ns_cbranch_scc0 KT_c")
            a(f"s_add_u32 m0, s{sW4K}, {AGB+j*4096}\ns_nop 0\nbuffer_load_dwordx4 v[36:37], {SR4(sX)}, 0 idxen offen{NT} lds\nv_add_u32 v36, 4096, v36")
        a("KT_c:")
    def warm():
        a(f"""
v_and_b32 v1, 28, v{VL}
v_and_b32 v2, 3, v{VL}
v_lshlrev_b32 v2, 1, v2
v_lshl_or_b32 v1, v1, 2, v2
s_lshr_b32 s{t0}, s{sW4}, 1
s_lshl_b32 s{t0}, s{t0}, 7
s_and_b32 s{t1}, s{sW4}, 1
s_lshl_b32 s{t1}, s{t1}, 3
s_add_u32 s{t0}, s{t0}, s{t1}
s_add_u32 s{t0}, s{t0}, 65536
""")
        for k in range(4): a(f"buffer_load_ushort v{124+k}, v1, {SR4(sA)}, s{t0} offen offset:{k*256}")
    def zer():
        a(f"v_cmp_le_u32 vcc, 32, v108\ns_mov_b64 exec, vcc\nds_write_b128 v110, v[32:35]\ns_mov_b64 exec, -1")
        for j in range(1,4): a(f"ds_write_b128 v110, v[32:35] offset:{j*4096}")
        a(f"""
s_cmp_eq_u32 s{sWV}, 4
s_cbranch_scc0 KT_b
ds_write_b128 v110, v[32:35] offset:16384
KT_b:
""")
    srd(a,sA,12,260*256); warm(); vyc()
    if XORD==1: xld()
    if not ZL: zer()
    a(f"""
s_lshl_b32 s{t0}, s{sW4}, 2
v_lshrrev_b32 v2, 4, v{VL}
v_or_b32 v1, s{t0}, v2                  ; 4u+g
v_xor_b32 v3, v1, v{WT}
v_lshlrev_b32 v3, 4, v3
v_lshl_add_u32 v116, v{WT}, 8, v3
v_add_u32 v116, {PSC}, v116
v_add_u32 v117, {PSC}, v110
v_lshl_add_u32 v118, v1, 16, v3
""")
    if XORD==2:
        gwait("KG_x",mS,4,VZ,1); xld()
    sdma(sA,0,0,VY,range(W1E,8))
    sdma(sA,32768,-32768,VY,range(W2N))
    arrive(mW,1)
    if ZL: zer()
    pt('w1i')
    def w3m():
        w=[124,125,126,127]; u=QA
        for k in range(4): a(f"v_lshlrev_b32 v{w[k]}, 16, v{w[k]}\nv_mul_f32 v{w[k]}, s{sL2E}, v{w[k]}")
        a(f"""
v_cvt_pk_bf16_f32 v{u}, v124, v125
v_cvt_pk_bf16_f32 v{u+1}, v126, v127
v_lshlrev_b32 v{u+2}, 16, v{u}
v_and_b32 v{u+3}, 0xffff0000, v{u}
v_lshlrev_b32 v{u+4}, 16, v{u+1}
v_and_b32 v{u+5}, 0xffff0000, v{u+1}
v_add_f32 v{u+6}, abs(v124), abs(v125)
v_sub_f32 v{u+2}, v124, v{u+2}
v_sub_f32 v{u+3}, v125, v{u+3}
v_sub_f32 v{u+4}, v126, v{u+4}
v_sub_f32 v{u+5}, v127, v{u+5}
v_add_f32 v{u+7}, abs(v126), abs(v127)
s_mov_b32 exec_lo, 0
v_cvt_pk_bf16_f32 v{u}, v{u+2}, v{u+3}
v_cvt_pk_bf16_f32 v{u+1}, v{u+4}, v{u+5}
s_mov_b32 exec_lo, -1
v_add_f32 v{u+6}, v{u+6}, v{u+7}
v_lshlrev_b32 v1, 3, v108
v_and_b32 v{u+6}, 0x7fffffff, v{u+6}
ds_write_b64 v1, {P2(u)} offset:{W3L}
""")
        dpp_scan(a,"v_max_u32",[u+6])
        a(f"""
s_mov_b32 exec_lo, 0
s_brev_b32 exec_hi, 1
ds_max_u32 v{VZ}, v{u+6} offset:{mC3}
s_mov_b64 exec, -1
""")
    e2=W2N
    a(f"v_mov_b32 v1, {hex(ONE2)}\nds_write2_b32 v{VZ}, v1, v1 offset0:{OH//4} offset1:{OH//4+3}")
    gsync('bX',"KG_y1",mGX,4,VZ,2,f"s_waitcnt vmcnt({8+e2-W1E})")
    if GP_: a(f"s_setprio {GP_}")
    xfrags([0])
    a(f"s_waitcnt vmcnt({e2})")
    pt('xl')
    trfrag(WF,TP,32768,2048,256)
    a("s_waitcnt lgkmcnt(7)")
    trfrag(WF+16,TP,32768+8,2048,256)
    def pm(T,i):
        for s in range(4): a(mfma16(GA+8*T+4*i,WF+16*i+4*s,XF+16*T+4*s,None if s==0 else GA+8*T+4*i))
    def pcv(T):
        c=GA+8*T
        L=[f"v_mul_f32 v{c+j}, s{sL2E}, v{c+j}" for j in range(8)]
        L+=[f"v_cvt_pk_bf16_f32 v{c+j}, v{c+2*j}, v{c+2*j+1}" for j in range(4)]
        L+=[f"ds_write_b128 v116, {P4(c)} offset:{T*4096}"]
        return L
    def pmi(T,fillers):
        for i in range(2):
            for s in range(4):
                a(mfma16(GA+8*T+4*i,WF+16*i+4*s,XF+16*T+4*s,None if s==0 else GA+8*T+4*i))
                for _ in range(2):
                    if fillers: a(fillers.pop(0))
    a("s_waitcnt lgkmcnt(8)"); xfrags([1]); pm(0,0)
    a("s_waitcnt lgkmcnt(4)"); xfrags([2,3]); pm(0,1)
    a("s_waitcnt lgkmcnt(8)"); pm(1,0); pm(1,1)
    a("s_waitcnt lgkmcnt(0)"); pmi(2,pcv(0)); pmi(3,pcv(1))
    a(f"s_lshl_b32 s{t2}, s{sNB}, 8\ns_nop 2")
    for T in (2,3):
        for x in pcv(T): a(x)
    gsync('pg',"KG_y2",mGP,4,VZ,2)
    for T in range(4): a(f"ds_read_b128 {P4(PO+4*T)}, v117 offset:{T*4096}")
    a(f"""
KG_n:
ds_read_b32 v1, v{VZ} offset:{mNO}
s_waitcnt vmcnt(0) lgkmcnt(0)
v_readfirstlane_b32 s{sNON}, v1
s_cmp_eq_u32 s{sNON}, 0
s_cbranch_scc1 KG_n
""")
    slot()
    a(f"s_add_u32 s{t2}, s{t2}, s{sPO}")
    for T in range(3):
        a(f"s_add_u32 s{t1}, s{t2}, {F_P+T*16*65536}")
        a(f"buffer_store_dwordx4 {P4(PO+4*T)}, v118, {SR4(sR)}, s{t1} offen{SSC}")
    a(f"""
s_cmp_eq_u32 s{sWV}, 4
s_cbranch_scc0 KG_p
s_add_u32 s{t1}, s{t2}, {F_P+3*16*65536}
s_waitcnt lgkmcnt(0)
s_mov_b64 exec, 0xffff
buffer_store_dwordx4 {P4(PO+12)}, v118, {SR4(sR)}, s{t1} offen{SSC}
s_mov_b64 exec, -1
KG_p:
""")
    pt('pst')
    if GP_: a("s_setprio 0")
    if W2N<8: sdma(sA,32768,-32768,VY,range(W2N,8))
    srd(a,sA,14,256*256)
    w3m()
    for T in range(4):
        c=GA+8*T
        if T==3: a("s_mov_b32 exec_lo, 0x10001\ns_mov_b32 exec_hi, 0x10001")
        if T==0: a(f"v_pk_maximum3_f16 v114, v{c}, v{c+1}, v{c+2}\nv_pk_minimum3_f16 v115, v{c}, v{c+1}, v{c+2}\nv_pk_maximum3_f16 v114, v114, v{c+3}, v{c+3}\nv_pk_minimum3_f16 v115, v115, v{c+3}, v{c+3}")
        else: a(f"v_pk_maximum3_f16 v114, v114, v{c}, v{c+1}\nv_pk_minimum3_f16 v115, v115, v{c}, v{c+1}\nv_pk_maximum3_f16 v114, v114, v{c+2}, v{c+3}\nv_pk_minimum3_f16 v115, v115, v{c+2}, v{c+3}")
    a("s_mov_b64 exec, -1")
    absmax_fin(a,114,115,2)
    a(f"""
v_cmp_lt_u32 vcc, 0x40e80000, v114
s_cmp_lg_u64 vcc, 0
s_cselect_b32 s{sFLAG}, 0x101, 1
""")
    def pflag(n):
        a(f"""
s_lshl_b32 s{t2}, s2, 4
s_add_u32 s{t2}, s{t2}, {F_FLG}
s_add_u32 s{t2}, s{t2}, s{sPO}
v_mov_b32 v1, s{sFLAG}
s_waitcnt vmcnt({n})
s_mov_b64 exec, 1
ds_add_rtn_u32 v1, v{VZ}, v1 offset:{mPD}
s_waitcnt lgkmcnt(0)
v_readfirstlane_b32 s{t1}, v1
s_add_u32 s{t1}, s{t1}, s{sFLAG}
s_and_b32 s{t0}, s{t1}, 255
s_cmp_eq_u32 s{t0}, 4
s_cbranch_scc0 KG_f
KG_e:
ds_read_b64 v[2:3], v{VZ} offset:{mE}
ds_read_b32 v1, v{VZ} offset:{mC3}
s_waitcnt lgkmcnt(0)
v_cmp_gt_u32 vcc, 4, v2
v_mul_f32 v1, v1, v3
s_cbranch_vccnz KG_e
v_cmp_nge_f32 vcc, 0x41680000, v1       ; !(14.5 >= e*c3)
s_lshl_b32 s{t0}, vcc_lo, 8
s_or_b32 s{t1}, s{t1}, s{t0}
s_cmp_gt_u32 s{t1}, 255
s_cselect_b32 s{t0}, 2, 0
s_xor_b32 s{t0}, s{sNON}, s{t0}
v_mov_b32 v1, s{t0}
buffer_store_dword v1, v{VZ}, {SR4(sR)}, s{t2} offen{SSC}
s_waitcnt vmcnt(1)
s_branch KG_f2
KG_f:
s_waitcnt vmcnt(0)
KG_f2:
s_mov_b64 exec, -1
""")
        pt('pfl')
    def mid():
        sdma(sA,0); pflag(8); arrive(mPI,1)
    if W2N<8:
        if WU1L:
            pflag(8-W2N); qfull("KGq",lambda: sdma(sA,0)); a("s_waitcnt vmcnt(0)"); arrive(mPI,1)
        else:
            sdma(sA,0); epi_consts(); pflag(16-W2N); arrive(mPI,1); qfull("KGq",lambda: 0)
    elif WU1L:
        if PFI==2: pflag(0)
        qfull("KGq",lambda: pflag(0)); sdma(sA,0); epi_consts(); a("s_waitcnt vmcnt(0)"); arrive(mPI,1)
    else: qfull("KGq",mid); epi_consts()
    gwait("KG_w3",mPD,4,VZ,1)
    w3rd(); trw()
    a("s_waitcnt lgkmcnt(0)"); ugemm(1)
    if FLP==1: gwait("KG_b2",mH,16,VZ,1)
    a(f"""
s_add_u32 s{sLO}, s{sPO}, {F_FLG}
buffer_load_dword v116, v110, {SR4(sR)}, s{sLO} offen{SC}
""")
    if PFP==2: pfp()
    if PFT:
        a(f"""
s_mul_i32 s{t1}, s{sW4}, {PFK*4}
v_mov_b32 v1, s{t1}
s_lshl_b32 s{t1}, s{t1}, 6
v_lshl_add_u32 v117, v{VL}, 2, s{t1}
ds_read_b32 v1, v1
ds_read_u16 v2, v117 offset:{WB}
v_mov_b32 v3, 0
s_waitcnt lgkmcnt(0)
v_cmp_lt_u32 vcc, v117, v1
s_or_b64 exec, vcc, 1
""")
        for k in range(PFT): a(f"buffer_load_dword v{QA+15}, v[2:3], {SR4(sP)}, 0 idxen offen offset:{3072+128*k}{SC}")
        a("s_mov_b64 exec, -1")
    a(f"""
s_mov_b32 s{sWU}, -1
s_or_b32 s{t1}, s{sNON}, 2
s_waitcnt vmcnt({(1 if PFP==2 else 0)+PFT})
KS_m:
v_or_b32 v2, 2, v116
v_cmp_ne_u32 vcc, s{t1}, v2
s_cbranch_vccz KS_n
s_sub_u32 s{sBUD}, s{sBUD}, 1
s_cbranch_scc1 KS_n
s_sleep {FSL}
s_mov_b64 exec, vcc
buffer_load_dword v116, v110, {SR4(sR)}, s{sLO} offen{SC}
s_mov_b64 exec, -1
s_waitcnt vmcnt(0)
s_branch KS_m
KS_n:
v_cmp_ne_u32 vcc, s{sNON}, v116
s_cbranch_vccz KS_o
ds_write_b32 v{VZ}, v{FA} offset:{mSLOW}
KS_o:
""")
    pt('flg')
    if PRIO: a("s_setprio 3")
    bar('b3')
    a(f"ds_read_b32 v1, v{VZ} offset:{mNT}\ns_waitcnt lgkmcnt(0)\nv_readfirstlane_b32 s{sNT}, v1")
    ranges()
    a("KF_J:")
    def rd_ga(off): a(f"ds_read_u16 v{GA0}, v{SB} offset:{GL+off}")
    def rd_gg(off): a(f"ds_read_u16 v{YA}, v{RB} offset:{GL+off}")
    ya=f"v_lshl_add_u32 v{EA}, v{YA}, 1, v{EC}\nv_add_u32 v{YA}, v{YA}, v{M4}"
    ry=f"ds_read_u16 v{VY}, v{YA} offset:{WB+2}"
    def rd_y(): a(ya); a(ry)
    def idx1(i): return f"ds_read_u16 v{IDX+2*i}, v{GA0} offset:{WB+4*i}"
    def rd_idx():
        for i in range(4): a(idx1(i))
    def dmai(i): return f"buffer_load_dwordx4 {P2(IDX+2*(i&3))}, {SR4(sP)}, {'0' if i<4 else 's'+str(s128)} idxen offen offset:{1024*(i&3)}{GSC} lds"
    def dma():
        for i in range(8):
            if i==0: a(f"s_mov_b32 m0, s{sBUF}\ns_nop 0")
            if i==4: a(f"s_add_u32 m0, s{sBUF}, 4096\ns_nop 0")
            a(dmai(i))
    def dma_h1(mid):
        a(f"s_add_u32 m0, s{sBUF}, 4096"); a(mid)
        for i in range(4,8): a(dmai(i))
        a(f"s_mov_b32 m0, s{sBUF}")
        rd_idx()
    def dma_idx():
        for i in range(4): a(dmai(i))
        dma_h1(ry)
    rd_b=f"ds_read_b128 {P4(B3+2)}, v{QAD}\nds_read_b128 {P4(B3+10)}, v{QAD} offset:512"
    rd_a3=f"ds_read_b64 {P2(A6)}, v{EA}\nds_read_b64 {P2(A6+2)}, v{VY} offset:{OH}\nds_read_b64 {P2(A6+4)}, v{EA}"
    def rd_a(t): return f"ds_read_b128 {P4(A+4*t)}, v{AR} offset:{4096*(t>>2)+(16*(t&1)+2*((t>>1)&1))*128}"
    def m4(z,q,j): return mfma4(z+4*j,A+16*(q>>1)+4*j+2*(q&1),None)
    rd_s=f"ds_read_b64 {P2(SS)}, v{SA2}\nds_read_b64 {P2(SS+2)}, v{SA2+1}"
    def AQ(q): return A6+2*(q&1)
    win=f"v_add3_u32 v{VY}, v{VY}, v{OH2}, s{sW8}\nv_lshl_add_u32 v{QAD}, s{sQ}, 6, v{QC}"
    rd_ga(0); rd_gg(0)
    a(f"""
ds_read_u16 v{WT}, v1 offset:{GL}
ds_read_b32 v{GP}, v{VZ} offset:{mSLOW}
s_waitcnt lgkmcnt(3)
""")
    rd_idx()
    a("s_waitcnt lgkmcnt(0)")
    dma()
    pt('d0')
    a(f"v_readlane_b32 s{sNF}, v{WT}, s{sCNT}\nv_readfirstlane_b32 s{t3}, v{GP}")
    rd_y(); rd_ga(16)
    a("s_waitcnt lgkmcnt(0)")
    rd_idx()
    a(f"""
s_cmp_lg_u32 s{t3}, 0
s_cbranch_scc1 KF_SLOW
s_lshr_b32 s{sNF}, s{sNF}, 8
v_subrev_u32 v2, s{sNF}, v{VL}
v_and_b32 v2, 15, v2
v_add_u32 v{DR}, s{sNF}, v2
v_lshlrev_b32 v2, 2, v{DR}
ds_read_b32 v{GP}, v2 offset:{BT}
s_and_b32 s{sQ}, s{sNF}, -2
s_lshl_b32 s{sQ}, s{sQ}, 3
s_sub_u32 s{sW8}, 0, s{sQ}
{win}
{rd_b}
{rd_a3}
""")
    rd_gg(16)
    a(f"""
v_lshrrev_b32 v{WT}, 9, v{WT}
v_lshlrev_b32 v{WT}, 4, v{WT}           ; 8*(w&~1)
v_mov_b32 v{SS}, 0
v_mov_b32 v{SS+1}, 0
v_mov_b32 v{SS+2}, 0
v_mov_b32 v{SS+3}, 0
v_mad_u32_u24 v{SA2}, v{SI2}, s{sT0}, v{SA2}
v_mad_u32_u24 v{SA2+1}, v{SI2+1}, s{sT0}, v{SA2+1}
s_add_u32 s{t1}, s{sT0}, s{sCNT}
s_lshl_b32 s{t1}, s{t1}, 7
s_add_u32 s{t2}, s{sWV}, 48
v_mov_b32 v1, s{t2}
{mfma32(ACC+16,SS,SS,None)}
s_waitcnt lgkmcnt(0)
""")
    rd_y(); rd_ga(32)
    a(f"""
v_cmp_gt_u32 vcc, s{t0}, v{GP}
v_cmp_gt_u32 {S2(t2)}, s{t1}, v{GP}
v_cmp_gt_u32 {S2(t0)}, s{sNN}, v{DR}
v_cndmask_b32 v{DR}, v{DR}, v1, vcc
s_cmp_lg_u64 vcc, 0
s_cselect_b32 s{sHEAD}, 1, 0
s_and_b64 vcc, {S2(t2)}, {S2(t0)}
v_lshlrev_b32 v1, 2, v{VL}
v_cndmask_b32 v{DR}, 56, v{DR}, vcc
v_lshrrev_b32 v2, 1, v{VL}
v_mul_u32_u24 v{DR}, {AS}, v{DR}
v_and_b32 v2, 24, v2
v_add_u32 v{DR}, v{DR}, v2
s_mul_i32 s{t0}, s{sNF}, {AS}
v_add_u32 v{eM0}, s{t0}, v1
s_sub_u32 s{sCNT}, s{sCNT}, 1
s_mov_b32 m0, s{sBUF}
""")
    pt('pre')
    a("s_waitcnt vmcnt(4)")
    pt('g0')
    for t in range(4): a(rd_a(t))
    a("s_waitcnt lgkmcnt(0)")
    for j in range(4): a(m4(Z[0],0,j))
    a("s_nop 3")
    a(mfma32(Z[0],AQ(0),B3,Z[0]))
    a("s_nop 9")
    pt('pro')
    def finals(qprev):
        for u in range(2): a(f"v_pk_mul_f32 {P2(NN+2*u)}, {P2(NN+2*u)}, {P2(DD+2*u)}")
        for u in range(2): a(f"v_cvt_pk_bf16_f32 v{GP+2*(qprev&1)+u}, v{NN+2*u}, v{NN+2*u+1}")
    def ex(zc,r): return f"v_exp_f32 v{EE+r}, v{zc+r}"
    def body(first):
        for q in range(4):
            zc=Z[q&1]; zn=Z[(q+1)&1]; qn=(q+1)&3
            pend=[0,1,2,3,8,9,10,11,4,5,12,13,6,7,14,15]
            f0=first and q==0
            if q==0: a(f"v_readlane_b32 s{sQ}, v{WT}, s{sCNT}")
            if q==3 or (first and q==1): a(f"s_waitcnt lgkmcnt(0)")
            for j in range(4):
                a(m4(zn,qn,j))
                a(f"v_rcp_f32 v{DD+j}, v{DD+j}" if not f0 else ex(zc,pend.pop(0)))
            agg=(q&1) and not (first and q==1)
            if agg:
                p=1 if q==1 else 0
                a(mfma32(ACC+16*p,GP,SS,None if first else ACC+16*p))
            for r in range(3 if SH3 else (4 if agg else 3)): a(ex(zc,pend.pop(0)))
            a(mfma32(zn,AQ(qn),B3+4*qn,zn))
            def bx():
                a(f"s_sub_u32 s{sW8}, 0, s{sQ}\ns_waitcnt vmcnt(0) lgkmcnt(0)\n{win}")
                rd_gg(32); rd_ga(48)
                a(rd_b); a(rd_a3); a(rd_s)
                for t in range(8): a(rd_a(t))
            if q==2 and XP==0: a(ex(zc,pend.pop(0))); bx()
            for r in range((4 if not (q==2 and XP==0) else 3)-SH3): a(ex(zc,pend.pop(0)))
            if q==2 and XP==1: bx()
            if f0:
                for i in range(4): a(dmai(i))
            if first and q==1: dma_h1("s_nop 0")
            if q==3:
                a(ya)
                if first: dma_idx()
                else:
                    a(f"s_cmp_gt_u32 s{sCNT}, 1\ns_cbranch_scc0 KF_lt")
                    dma_idx()
                    a("KF_lb:")
            if not f0: finals((q-1)&3)
            seq=[]
            for u in range(2): seq.append(f"v_pk_add_f32 {P2(DD+2*u)}, {P2(EE+8*u)}, 1.0 op_sel_hi:[1,0]")
            for m in range(1,4):
                for u in range(2):
                    src=(zc+8*u) if m==1 else NN+2*u
                    seq.append(f"v_pk_fma_f32 {P2(NN+2*u)}, {P2(src)}, {P2(EE+8*u+2*m)}, {P2(src)}")
                for u in range(2): seq.append(f"v_pk_fma_f32 {P2(NN+2*u)}, {P2(zc+8*u+2*m)}, {P2(DD+2*u)}, {P2(NN+2*u)}")
                for u in range(2): seq.append(f"v_pk_fma_f32 {P2(DD+2*u)}, {P2(DD+2*u)}, {P2(EE+8*u+2*m)}, {P2(DD+2*u)}")
            if len(pend) in (10,6): a(ex(zc,pend.pop(0)))
            slots={9:[0,1,2,3,4,6,8,10,12],8:[0,1,2,3,5,7,9,11],5:[1,4,7,10,12]}[len(pend)]
            for k,x in enumerate(seq):
                if f0 and k==H1P:
                    a("s_waitcnt vmcnt(4)")
                    for t in range(4,8): a(rd_a(t))
                a(x)
                if k in slots: a(ex(zc,pend.pop(0)))
            if q==2: a(f"v_pk_add_f32 {P2(RB)}, {P2(RB)}, {S2(sINC)}\nv_pk_add_f32 {P2(SA2)}, {P2(SA2)}, {P2(SI2)}")
    if PROF and 'dyn' in PTS: stamp(a,8); stamp(a,9,True)
    if PROF and 'clk' in PTS: stamp(a,6,True)
    n0=len(a.l)
    body(True)
    a("s_branch KF_LE\n.p2align 6\nKF_LOOP:")
    body(False)
    def keep(l):
        t=l.strip()
        if X&1 and t.startswith('buffer_load'): return False
        if X&2 and t.startswith('ds_read_b128 v[') and int(t.split('[')[1].split(':')[0])>=28: return False
        if X&8 and t.startswith('v_mfma'): return False
        if X&16 and t.startswith('v_pk_fma'): return False
        if X&32 and t.startswith('v_exp'): return False
        return True
    a.l[n0:]=[l for l in a.l[n0:] if keep(l)]
    import re
    if UNP:
        L=[]; cnt=0
        for l in a.l[n0:]:
            m=re.match(r"\s*v_pk_fma_f32 v\[(\d+):\d+\], v\[(\d+):\d+\], v\[(\d+):\d+\], v\[(\d+):\d+\]",l)
            if m:
                cnt+=1
                d,x,y,z=map(int,m.groups())
                if UNP==1 or (UNP==2 and cnt%2==0) or (UNP==3 and d>=DD):
                    for k in range(2):
                        L.append(f"    v_fmac_f32 v{d+k}, v{x+k}, v{y+k}" if d==z else f"    v_fma_f32 v{d+k}, v{x+k}, v{y+k}, v{z+k}")
                    continue
            L.append(l)
        a.l[n0:]=L
    if X&(128|256|512|1024):
        L=[]
        for l in a.l[n0:]:
            m=re.match(r"\s*v_mfma_f32_32x32x16_bf16 v\[(\d+):\d+\], v\[(\d+):\d+\], v\[(\d+):\d+\], (.*)",l)
            if m and int(m.group(1))<ACC:
                d,x,y=int(m.group(1)),int(m.group(2)),int(m.group(3))
                if X&128:
                    if y==ID0: L+=["    "+mfma16(d+4,x,ID0,None),"    "+mfma16(d+8,x,ID1,None)]
                    elif y==ID1: L.append("    "+mfma16(d+12,x,ID0,None))
                    else: L.append("    "+mfma16(d,x,y,None))
                if X&1024:
                    if y in (ID0,ID1):
                        o=0 if y==ID0 else 8
                        for k in range(2): L.append(f"    v_mfma_f32_4x4x4_16b_bf16 v[{d+o+4*k}:{d+o+4*k+3}], v[{x+2*k}:{x+2*k+1}], v[{ID0}:{ID0+1}], v[{d+o+4*k}:{d+o+4*k+3}]")
                    else: L.append(l)
                if X&256:
                    if y!=ID1: L.append(l)
                if X&512:
                    if y==ID0: L.append(f"    v_mfma_f32_32x32x64_f8f6f4 v[{d}:{d+15}], v[{x}:{x+7}], v[{ID0}:{ID0+7}], v[{d}:{d+15}]")
                    elif y!=ID1: L.append(l)
            else: L.append(l)
        a.l[n0:]=L
    a("KF_LE:")
    if PRIO: a(f"s_bitcmp1_b32 42, s{sCNT}\ns_cbranch_scc1 KF_pr\nKF_pb:")
    a(f"""
s_sub_u32 s{sCNT}, s{sCNT}, 1
s_cbranch_scc0 KF_LOOP
""")
    def loop_tails():
        a(f"KF_lt:\ns_cmp_eq_u32 s{sCNT}, s{sWU}\ns_cbranch_scc0 KF_lb")
        sdma(sA,32768,0,WV)
        a(f"""
s_branch KF_lb
KF_pr:
""")
        if PROF and 'dyn' in PTS:
            a("s_mov_b32 s90, s92\ns_mov_b32 s91, s93\ns_mov_b32 s92, s94\ns_mov_b32 s93, s95\ns_mov_b32 s94, s96\ns_mov_b32 s95, s97")
            stamp(a,8); stamp(a,9,True)
        a(f"""
s_setprio 2
s_cmp_eq_u32 s{sCNT}, 5
s_cbranch_scc1 KF_pb
s_setprio 1
s_cmp_eq_u32 s{sCNT}, 3
s_cbranch_scc1 KF_pb
s_setprio 0
s_branch KF_pb
""")
    a(f"""
s_lshl_b32 s{t0}, s{sW4}, 2
v_mov_b32 v1, s{t0}
s_cmp_ge_u32 s{sWV}, 4
s_cbranch_scc1 KF_w0
ds_write_b32 v1, v{TP} offset:{mWU}
s_branch KF_w1
KF_w0:
ds_read_b32 v2, v1 offset:{mWU}
s_waitcnt lgkmcnt(0)
v_cmp_eq_u32 vcc, 0, v2
s_cbranch_vccnz KF_w0
KF_w1:
""")
    def trw2(): trfrag(A,TP,0,2048,256); trfrag(A+16,TP,8,2048,256)
    trw2()
    for j in range(4): a(f"v_rcp_f32 v{DD+j}, v{DD+j}")
    a("s_nop 0")
    finals(3)
    a("s_nop 1")
    a(mfma32(ACC+16,GP,SS,ACC+16))
    pt('loop')
    if PROF and 'clk' in PTS: stamp(a,7,True)
    def epst():
        a(f"""
s_or_b32 s{t1}, s2, s{sWV}
s_cbranch_scc1 KF_e2
v_mov_b32 v2, s{sNON}
s_mov_b64 exec, 1
buffer_store_dword v2, v{VZ}, {SR4(sR)}, 0 offen{ESC}
s_mov_b64 exec, -1
KF_e2:
""")
    for p in range(2):
        for j in range(4):
            c=ACC+16*p+4*j
            a(f"v_cvt_pk_bf16_f32 v{c}, v{c}, v{c+1}\nv_cvt_pk_bf16_f32 v{c+1}, v{c+2}, v{c+3}")
        for j in range(4): a(f"ds_write_b64 v{DR}, {P2(ACC+16*p+4*j)} offset:{AGB+128*p+32*j}")
    a(f"""
s_cmp_eq_u32 s{sHEAD}, 0
""")
    pt('dmp')
    bar('be',"s_waitcnt vmcnt(0) lgkmcnt(0)")
    a(f"""
s_cbranch_scc1 KF_FIN
ds_read_b32 v4, v{eM0} offset:{AGB}
ds_read_b32 v5, v{eM1} offset:{AGB+48*AS}
""")
    a(f"""
s_waitcnt lgkmcnt(0)
v_lshlrev_b32 v6, 16, v4
v_and_b32 v7, 0xffff0000, v4
v_lshlrev_b32 v8, 16, v5
v_and_b32 v9, 0xffff0000, v5
v_pk_add_f32 v[6:7], v[6:7], v[8:9]
v_cvt_pk_bf16_f32 v6, v6, v7
ds_write_b32 v{eM0}, v6 offset:{AGB}
KF_FIN:
""")
    a(f"s_cmp_ge_u32 s{sWV}, 4")
    if EP_==0: epst()
    bar('mrg')
    def EXP(rs): return [f"v_exp_f32 v{EE+i}, v{UA+i}" for i in rs]
    def RCP(rs): return [f"v_rcp_f32 v{EE+i}, v{EE+i}" for i in rs]
    def FMA(rs): return [f"v_fma_f32 v{EE+i}, v{EE+i}, s{sL2E}, s{sL2E}" for i in rs]
    def FIN(tau):
        e=EE+8*tau; c=UA+8*tau
        return [f"v_pk_mul_f32 {P2(e+2*j)}, {P2(e+2*j)}, {P2(c+2*j)}" for j in range(4)]+[f"v_cvt_pk_bf16_f32 v{e+j}, v{e+2*j}, v{e+2*j+1}" for j in range(4)]+[f"ds_write_b128 v{eOW}, {P4(e)} offset:{tau*4096}"]
    def PFM(rs): return [f"v_pk_fma_f32 {P2(EE+i)}, {P2(EE+i)}, {S2(sL2E)}, {S2(sL2E)}" for i in rs]
    XE=Z[0]
    for tau in range(2):
        for s_ in range(4): a(f"ds_read_b128 {P4(XE+16*tau+4*s_)}, v{eFA} offset:{AGB+tau*16*AS+64*s_}")
    for k,(x,y) in enumerate(zip(um(0,0,0,XE,True,A),um(0,0,1,XE,True,A))): a(f"s_waitcnt lgkmcnt({7-k})"); a(x); a(y)
    a("s_waitcnt lgkmcnt(0)"); pt('e1'); a("s_cbranch_scc1 KF_eg")
    for r in range(2):
        if r==1: a("KF_eg:")
        for x,y in zip(um(r,1,0,XE+16,True,A),um(r,1,1,XE+16,True,A)): a(x); a(y)
        pt('e2')
        if r==0:
            for x in EXP(range(8))+FMA(range(8))+RCP(range(8))+EXP(range(8,16))+FIN(0)+PFM(range(8,16,2))+RCP(range(8,16))+["s_nop 0"]+FIN(1): a(x)
            a("s_branch KF_ej")
        else:
            for x in EXP(list(range(8))+[8,12])+PFM((0,2,4,6,8,12))+RCP(list(range(8))+[8,12])+FIN(0): a(x)
            a(f"""
v_mul_f32 v{EE+8}, v{EE+8}, v{UA+8}
v_mul_f32 v{EE+12}, v{EE+12}, v{UA+12}
s_mov_b64 exec, 0xffff
v_cvt_pk_bf16_f32 v{EE+8}, v{EE+8}, v{EE+12}
ds_write_b16 v{eN48}, v{EE+8}
ds_write_b16_d16_hi v{eN48}, v{EE+8} offset:8
s_mov_b64 exec, -1
""")
    a(f"KF_ej:\ns_cmp_lt_u32 s{sWV}, 5")
    pt('e3')
    bar('sil')
    a(f"""
ds_read_b128 {P4(A)}, v{eRD}
s_cbranch_scc0 KF_e1
ds_read_b128 {P4(A+4)}, v{eRD} offset:8192
s_mov_b64 exec, {S2(sE2)}
s_waitcnt lgkmcnt(0)
buffer_store_dwordx4 {P4(A+4)}, v{eST}, {SR4(sX)}, s{sE1} offen{OSC}
s_mov_b64 exec, -1
KF_e1:
s_waitcnt lgkmcnt(0)
buffer_store_dwordx4 {P4(A)}, v{eST}, {SR4(sX)}, s{sE0} offen{OSC}
""")
    pt('sto')
    a(f"""
""")
    if PROF: a("s_waitcnt vmcnt(0)")
    stamp(a,10); stamp(a,11,True)
    stamp_out(a,1,sWV)
    a("KF_END:\ns_endpgm")
    loop_tails()
    hist_retry(8,"KT_h",True)
    a("KF_CEND:")
    SV=ACC; AGs=SV+8; RS_=SV+16
    a(f"""
KF_SLOW:
s_setprio 0
s_cmp_ge_u32 s{sWV}, 4
s_cselect_b32 s{sTOT}, 0, s{sTOT}
v_mov_b32 v1, s{sTOT}
ds_max_u32 v{VZ}, v1 offset:{mMX}
v_mov_b32 v{SS}, 0
v_mov_b32 v{SS+1}, 0
v_mov_b32 v{SS+2}, 0
v_mov_b32 v{SS+3}, 0
s_mov_b32 s{sLO}, 0
s_mov_b32 s{sLB}, s{sBUF}
s_sub_u32 s{t0}, s{sWV}, s{sT0}
s_lshl_b32 s{t0}, s{t0}, 4
v_add_u32 v{SV+4}, s{t0}, v{RB}
v_add_u32 v{SV+5}, s{t0}, v{SB}
s_lshl_b32 s{t0}, s{sWV}, 4
v_sub_u32 v{SV+6}, s{t0}, v{OHC}
v_and_b32 v{SV+7}, 28, v{VL}
v_and_b32 v1, 3, v{VL}
v_lshlrev_b32 v1, 2, v1
v_lshl_or_b32 v{SV+7}, v{SV+7}, 3, v1
v_lshlrev_b32 v1, 4, v0
""")
    for j in range(3): a(f"ds_write_b128 v1, {P4(SS)} offset:{AGG+j*8192}")
    a(f"""
v_lshlrev_b32 v1, 4, v{VL}
ds_write_b128 v1, {P4(SS)} offset:{AGG+3*8192}
s_waitcnt vmcnt(0) lgkmcnt(0)
s_barrier
ds_read_b32 v1, v{VZ} offset:{mMX}
s_waitcnt lgkmcnt(0)
v_readfirstlane_b32 s{sRND}, v1
KF_SR:
s_cmp_lt_u32 s{sLO}, s{sRND}
s_cbranch_scc0 KF_SE
s_barrier
v_lshlrev_b32 v1, 2, v{VL}
v_lshlrev_b32 v2, 8, v{VL}
ds_write_b32 v1, v2
s_waitcnt lgkmcnt(0)
s_barrier
s_cmp_ge_u32 s{sWV}, 4
s_cbranch_scc1 KF_S1
s_movk_i32 s{t3}, 256
""")
    expand("KF_x")
    a(f"s_sub_u32 s{t1}, s{sTOT}, s{sLO}")
    reclist(4)
    recload(4,"KF_rl")
    for i in range(4): a(f"s_mov_b64 {S2(sM+8+2*i)}, {S2(sM+2*i)}")
    hist(4,"KF_h",0,False)
    a("s_waitcnt lgkmcnt(0)")
    for i in range(4):
        a(f"""
v_mov_b32 v{RS_+4*i}, v{RC+4*i}
v_mov_b32 v{RS_+4*i+1}, v{RC+4*i+1}
v_mov_b32 v{RS_+4*i+2}, v{RC+4*i+2}
v_lshlrev_b32 v1, 6, v{RC+4*i+3}
v_sub_u32 v1, v{RK+i}, v1
v_cndmask_b32 v{RS_+4*i+3}, -1, v1, {S2(sM+8+2*i)}
""")
    a(f"""
KF_S1:
s_mov_b32 s{sHEAD}, 0                    ; 256*k
KF_SK:
s_waitcnt lgkmcnt(0)
s_barrier
s_cmp_ge_u32 s{sWV}, 4
s_cbranch_scc1 KF_S2
s_mov_b32 s{t1}, {EB}
""")
    for i in range(4):
        a(f"""
v_subrev_u32 v1, s{sHEAD}, v{RS_+4*i+3}
v_lshrrev_b32 v2, 19, v{RS_+4*i+2}
v_lshl_add_u32 v2, v2, 8, v1
v_lshl_add_u32 v3, v2, 1, s{t1}
v_cmpx_gt_u32 vcc, 0x100, v1
ds_write_b32 v2, v{RS_+4*i+2} offset:{WB}
ds_write_b64 v3, {P2(RS_+4*i)}
s_mov_b64 exec, -1
""")
    a("KF_S2:")
    scan(True)
    a(f"s_cmp_lg_u64 {S2(t2)}, 0\ns_cselect_b32 s{sFLAG}, 1, 0")
    fill("KFs",True,8)
    a(f"""
s_add_u32 s{sNT}, s{t0}, 127
s_lshr_b32 s{sNT}, s{sNT}, 7
s_waitcnt lgkmcnt(0)
s_barrier
v_mov_b32 v{RB}, v{SV+4}
v_mov_b32 v{SB}, v{SV+5}
v_mov_b32 v{SV+12}, v{SV+6}
s_mov_b32 s{sI}, s{sWV}
KF_SL:
s_cmp_lt_u32 s{sI}, s{sNT}
s_cbranch_scc0 KF_SN
""")
    rd_ga(0); rd_gg(0)
    for j in range(4): a(f"ds_read_u16 v{AGs+j}, v{SV+12} offset:{GL+2*j}")
    a("s_waitcnt lgkmcnt(0)")
    rd_y(); rd_idx()
    a("s_waitcnt lgkmcnt(0)")
    dma()
    for j in range(4): a(f"v_lshrrev_b32 v{AGs+j}, 8, v{AGs+j}")
    a(f"""
v_readfirstlane_b32 s{sQ}, v{AGs}
s_nop 3
s_and_b32 s{sQ}, s{sQ}, -2
s_lshl_b32 s{sQ}, s{sQ}, 3
s_sub_u32 s{sW8}, 0, s{sQ}
{win}
{rd_b}
{rd_a3}
""")
    for j in range(4): a(f"v_lshl_add_u32 v{AGs+j}, v{AGs+j}, 9, v{SV+7}")
    a("s_waitcnt vmcnt(0) lgkmcnt(0)")
    for t in range(8): a(rd_a(t))
    a("s_waitcnt lgkmcnt(0)")
    for q in range(4):
        z=Z[0]
        for j in range(4): a(m4(z,q,j))
        a("s_nop 3"); a(mfma32(z,AQ(q),B3+4*q,z))
        a("s_nop 15")
        for r in range(16): a(f"v_exp_f32 v{EE+r}, v{z+r}")
        for r in range(16): a(f"v_add_f32 v{EE+r}, 1.0, v{EE+r}")
        for r in range(16): a(f"v_rcp_f32 v{EE+r}, v{EE+r}")
        for m in range(4):
            for u in range(2):
                for par in range(2):
                    r=8*u+2*m+par; g=GP+2*u+par
                    a(f"v_mul_f32 v{g}, v{z+r}, v{EE+r}" if m==0 else f"v_fmac_f32 v{g}, v{z+r}, v{EE+r}")
        for j in range(4): a(f"ds_add_f32 v{AGs+j}, v{GP+j} offset:{AGG+256*(q>>1)+16*(q&1)}")
        a("s_waitcnt lgkmcnt(0)")
    a(f"""
v_add_u32 v{SB}, 128, v{SB}
v_add_u32 v{RB}, 128, v{RB}
v_add_u32 v{SV+12}, 128, v{SV+12}
s_add_u32 s{sI}, s{sI}, 8
s_branch KF_SL
KF_SN:
s_add_u32 s{sHEAD}, s{sHEAD}, 256
s_cmp_lg_u32 s{sFLAG}, 0
s_cbranch_scc1 KF_SK
s_add_u32 s{sLO}, s{sLO}, 256
s_branch KF_SR
KF_SE:
s_cmp_ge_u32 s{sWV}, 4
s_cbranch_scc1 KF_SE2
""")
    sdma(sA,32768,0,WV)
    a(f"""
KF_SE2:
v_lshlrev_b32 v1, 4, v0
v_lshrrev_b32 v2, 5, v0
s_waitcnt vmcnt(0) lgkmcnt(0)
s_barrier
""")
    for j in range(4): a(f"ds_read_b128 {P4(A+4*j)}, v1 offset:{AGG+j*8192}")
    a(f"""
v_mul_u32_u24 v2, {AS}, v2
v_and_b32 v3, 31, v0
v_lshl_add_u32 v4, v3, 3, v2
s_waitcnt lgkmcnt(0)
s_barrier
""")
    for j in range(4):
        a(f"v_cvt_pk_bf16_f32 v{A+4*j}, v{A+4*j}, v{A+4*j+1}\nv_cvt_pk_bf16_f32 v{A+4*j+1}, v{A+4*j+2}, v{A+4*j+3}")
        a(f"ds_write_b64 v4, {P2(A+4*j)} offset:{AGB+j*16*AS}")
    trw2()
    a("s_branch KF_FIN")
    hist_retry(4,"KF_h",False)
    return a.text()

if __name__=='__main__':
    import sys
    nm='standalone__mpnn_edge_mlp__graph_kernel'
    hdr=open('standalone__mpnn_edge_mlp__graph.s.ref').read().split('; Override')[0]
    out=hdr+(f"; @launch kernel={nm} grid=(256,1,1) block=(512,1,1) lds={KF_LDS}\n" if os.environ.get('LISTF') else f"; @launch grid=(256,1,1) block=(512,1,1) lds={KF_LDS}\n")
    out+='.amdgcn_target "amdgcn-amd-amdhsa--gfx950"\n.text\n'
    out+=f".globl {nm}\n.p2align 8\n.type {nm},@function\n"+gen_kf(nm)
    out+='.section .rodata,"a"\n.p2align 6\n'+kd(nm,256)
    open(sys.argv[1],'w').write(out)
```

```python
from common import *
X=int(os.environ.get('X','0'))
PRIO=int(os.environ.get('PRIO','1'))
DSP=[int(c,36) for c in os.environ.get('DSP','00000000')]
def EV(n,d): return int(os.environ.get(n,d))
TPOS=EV('TPOS',6); PFP=EV('PFP',3); XORD=EV('XORD',1); WUI=EV('WUI',2); FLP=EV('FLP',1); FSL=EV('FSL',8); TE=1; NE=EV('NE',0); W1N=EV('W1N',5); GP_=EV('GP',1); NT=os.environ.get('NT',''); CLM=EV('CLM',0); CLW=EV('CLW',1); SLP=EV('SLP',1); H1P=EV('H1P',10); SH3=EV('SH3',0); EP_=EV('EP',1); ESC=os.environ.get('ESC',''); PERM=EV('PERM',0); W2N=EV('W2N',8); UL=EV('UL',0); WU1L=EV('WU1L',0); W1E=EV('W1E',0); ZL=EV('ZL',0); FST=EV('FST',0); UNP=EV('UNP',0); TLB=EV('TLB',0); DBGP=EV('DBGP',0); ALN=EV('ALN',0); PFT=EV('PFT',1); PFK=EV('PFK',7); PF0=EV('PF0',0); PFN=EV('PFN',16); XP=EV('XP',0); PFI=EV('PFI',0); SWW=EV('SWW',1)
PTS=os.environ.get('PTS','b1,bS,tp,pfl,rl,b2,b3,pro').split(',')
SC=os.environ.get('LSC',' sc1')
SSC=os.environ.get('SSC',' sc1')
OSC=os.environ.get('OSC',' sc1')
GSC=os.environ.get('GSC',' sc1')
NPROD=250; EP=1600; RST=EP*16
F_P=0x1000; F_FLG=0x320000; F_TBL=0x330000; F_REC=0x380000; F_SIZE=0xA00000
PB0=0x1000000 if PROF else 0; PSL=EV('PSL',0xA00000); NSL=(0x10000000-PB0-F_SIZE)//PSL+1
assert F_REC+256*RST<=F_SIZE and F_TBL+256*1024<=F_REC
CNT=0; MISC=256; OH=400; GL=928; BT=1872; STB=2144; RS=944
mSLOW=MISC; mS=MISC+4; mGX=MISC+8; mGP=MISC+12; mC3=MISC+16; mPD=MISC+20; mSL=MISC+24; mMX=MISC+28; mPI=MISC+32; mH=MISC+36; mNT=MISC+40; mW=MISC+44; mE=MISC+48; mEM=MISC+52; mNO=MISC+56; mWU=MISC+64
AGB=17408
W3L=AGB+56*256
Q2=AGB+16384; QS=52*128
S1=Q2; ERAW=Q2+12800
WB=Q2+4*QS; NULLG=49*256; EB=WB+NULLG+16
HIST=WB; PSC=WB+2048
GBUF=98304
KF_LDS=GBUF+65536
assert EB+2*NULLG+32<=GBUF and STB+16*RS<=AGB
AGG=STB
ONE2=0x3F803F80
NULLW2=0xFFFF|(512<<16)
CAPT=58
ID0=4; ID1=8; B3=12; A=28; Z=[60,76]; A3=92; EE=96; NN=112; DD=116; GP=120; SS=124
IDX=128; AR=144; RB=152; SB=153; SA=154; VY=155; OHC=156; VL=157; WT=158; DR=159
ACC=160; WU2=192; UA=208; WF=160; WU1=176; QA=224; RC=96; XF=28; GA=192
TP=143; WV=151; A6=244; QAD=250; QC=145; SA2=146; SI2=148; OH2=150; GA0=232; YA=234; EA=235; M4=236; EC=237; VZ=238; PO=92; TRU=240; TD=241; TC=242; TO=243; RK=244; FA=252
sP=24; sX=28; sA=32; sR=36; sM=40
sWV=56; sK=57; sNN=58; sI=59; sNT=60; sBUF=61; sQ=62; sW8=63; sCNT=64; sT0=65
sL2E=66; sINC=68; sRND=70; sTOT=71; sNON=72; sBUD=73; sW4=74; sLB=75
sWU=3; sW4K=22; sPO=23; sFLAG=76; sLO=77; sMA=78; sQ2=80; s128=81; sHEAD=82; sNF=83
t0,t1,t2,t3=84,85,86,87
BUDGET=100000
sNB=2 if PERM else sK

def mfma32(d,x,y,c): return f"v_mfma_f32_32x32x16_bf16 v[{d}:{d+15}], v[{x}:{x+3}], v[{y}:{y+3}], "+("0" if c is None else f"v[{c}:{c+15}]")
def mfma16(d,x,y,c): return f"v_mfma_f32_16x16x32_bf16 v[{d}:{d+3}], v[{x}:{x+3}], v[{y}:{y+3}], "+("0" if c is None else f"v[{c}:{c+3}]")
def mfma4(d,x,c): return f"v_mfma_f32_4x4x4_16b_bf16 v[{d}:{d+3}], v[{x}:{x+1}], v[{ID0}:{ID0+1}], "+("0" if c is None else f"v[{c}:{c+3}]")
def P2(r): return f"v[{r}:{r+1}]"
def P4(r): return f"v[{r}:{r+3}]"
def S2(r): return f"s[{r}:{r+1}]"
def SR4(r): return f"s[{r}:{r+3}]"

def gen_kf(name):
    a=Asm()
    def pt(n):
        if PROF and n in PTS: stamp(a,2+PTS.index(n))
    def ret(n):
        if PROF and n in PTS: a(f"s_sub_u32 s{90+PTS.index(n)}, {BUDGET}, s{sBUD}\ns_mul_i32 s{90+PTS.index(n)}, s{90+PTS.index(n)}, 100")
    def bar(n,w="s_waitcnt lgkmcnt(0)"):
        a(w+"\ns_barrier"); pt(n)
    def gsync(n,lab,off,target,va,vt,pre=None):
        if pre: a(pre)
        a(f"""
v_mov_b32 v{vt}, 1
s_mov_b64 exec, 1
ds_add_u32 v{va}, v{vt} offset:{off}
s_mov_b64 exec, -1
{lab}:
ds_read_b32 v{vt}, v{va} offset:{off}
s_waitcnt lgkmcnt(0)
v_readfirstlane_b32 s{t1}, v{vt}
s_and_b32 s{t1}, s{t1}, 255
s_cmp_lt_u32 s{t1}, {target}
s_cbranch_scc1 {lab}
""")
        pt(n)
    def gwait(lab,off,target,va,vt):
        if SLP: a(f"s_branch {lab}_\n{lab}:\ns_sleep {SLP}\n{lab}_:")
        else: a(f"{lab}:")
        a(f"""
ds_read_b32 v{vt}, v{va} offset:{off}
s_waitcnt lgkmcnt(0)
v_readfirstlane_b32 s{t1}, v{vt}
s_and_b32 s{t1}, s{t1}, 255
s_cmp_lt_u32 s{t1}, {target}
s_cbranch_scc1 {lab}
""")
    def consts():
        srd(a,sP,20,N,off=PB0+F_P-3072,stride=256)
        srd(a,sR,20,F_SIZE,off=PB0)
        a(f"""
s_cmp_lt_u32 s{sNB}, {N-256*48}
s_cselect_b32 s{sNN}, 49, 48
s_mov_b32 s{sL2E}, {hex(LOG2E_NEG)}
s_mov_b32 s{sL2E+1}, {hex(LOG2E_NEG)}
s_mov_b32 s{sINC}, 16
s_mov_b32 s{sINC+1}, 16
s_mov_b32 s{sMA}, 0x0000ffff
s_mov_b32 s{sMA+1}, 0x0000ffff
s_mov_b32 s{sQ2}, {Q2}
s_mov_b32 s{sBUD}, {BUDGET}
v_lshrrev_b32 v2, 5, v{VL}              ; h
; g = 4 b2 + 2 b4 + b0 ; m = 2 b3 + b1 ; slot = 16 b2 + 4 m + (g&3)
v_lshrrev_b32 v1, 3, v{VL}
v_and_b32 v1, 2, v1
v_and_or_b32 v1, v{VL}, 5, v1           ; g
v_lshlrev_b32 v{RB}, 1, v1
v_lshlrev_b32 v3, 1, v{VL}
v_and_b32 v3, 4, v3
v_and_or_b32 v{M4}, v{VL}, 8, v3        ; 4m
v_lshlrev_b32 v{EC}, 1, v{M4}
v_add_u32 v{EC}, {EB}, v{EC}
v_and_b32 v{WT}, 15, v{VL}              ; n / c16
v_lshlrev_b32 v3, 1, v3
v_and_or_b32 v3, v{VL}, 1, v3
v_lshl_or_b32 v3, v2, 2, v3
v_lshl_add_u32 v{AR}, v3, 7, s{sBUF}
v_bfe_u32 v1, v{VL}, 1, 1
v_bfe_u32 v3, v{VL}, 2, 3
v_xor_b32 v1, v1, v3
v_lshl_add_u32 v{AR}, v1, 4, v{AR}
v_mul_i32_i24 v{OHC}, -8, v2
v_mul_u32_u24 v{SA}, {RS}, v{WT}
v_and_b32 v1, 1, v{VL}
v_lshlrev_b32 v1, 4, v1
v_mov_b32 v3, 0x3f80
v_lshlrev_b32 v1, v1, v3
""")
        a(f"s_mov_b32 vcc_lo, 0x33333333\ns_mov_b32 vcc_hi, 0x33333333\nv_cndmask_b32 v{ID0}, 0, v1, vcc\nv_sub_u32 v{ID0+1}, v1, v{ID0}")
        a(f"""
v_lshrrev_b32 v2, 4, v{VL}              ; a / g
v_lshrrev_b32 v{SB}, 2, v{VL}
v_and_b32 v{SB}, 14, v{SB}
v_and_b32 v1, 7, v{VL}
v_lshlrev_b32 v1, 4, v1
s_movk_i32 s{s128}, 128
""")
        for i in range(4): a(f"v_xor_b32 v{IDX+2*i+1}, {(i&1)*16+3072-1024*i}, v1")
        a(f"v_xor_b32 v3, v2, v{WT}\nv_lshlrev_b32 v3, 4, v3\nv_lshl_add_u32 v3, v{WT}, 8, v3\nv_add_u32 v{FA}, {AGB}, v3")
        for s in range(1,4): a(f"v_xor_b32 v{FA+s}, {64*s}, v{FA}")
        a(f"""
s_lshl_b32 s{t0}, s{sW4}, 13
s_add_u32 s{t0}, s{t0}, {GBUF}
s_lshr_b32 s{t1}, s{sWV}, 2
v_lshrrev_b32 v1, 2, v{WT}
v_lshl_add_u32 v1, v2, 3, v1
v_lshl_add_u32 v{DR}, v1, 6, s{t0}
v_xor_b32 v2, s{t1}, v2
v_and_b32 v2, 1, v2
v_and_b32 v3, 3, v{VL}
v_lshl_add_u32 v{TRU}, v2, 5, v{DR}
v_lshl_add_u32 v{TRU}, v3, 3, v{TRU}
v_lshrrev_b32 v2, 3, v{VL}
v_and_b32 v2, 2, v2
v_xor_b32 v2, v2, v3
v_lshl_add_u32 v{TP}, v2, 4, v{DR}
""")
    def slot():
        a(f"""
s_mul_i32 s{sPO}, s{sNON}, 0x9E3779B1
s_mul_hi_u32 s{sPO}, s{sPO}, {NSL}
s_mul_i32 s{sPO}, s{sPO}, {PSL}
s_add_u32 s{sP}, s{sP}, s{sPO}
s_addc_u32 s{sP+1}, s{sP+1}, 0
s_add_u32 s{sR}, s{sR}, s{sPO}
s_addc_u32 s{sR+1}, s{sR+1}, 0
""")
    def vyc(VY=VY):
        a(f"""
v_lshrrev_b32 v1, 4, v{VL}
v_and_b32 v1, 2, v1
v_xor_b32 v1, v1, v{VL}
v_and_b32 v1, 3, v1
v_lshlrev_b32 v1, 4, v1
v_lshrrev_b32 v2, 2, v{VL}
v_lshl_or_b32 v{VY}, v2, 8, v1
""")
    def trfrag(dst,addr,off,ks,hs):
        for s in range(4):
            a(f"ds_read_b64_tr_b16 {P2(dst+4*s)}, v{addr} offset:{off+s*ks}\nds_read_b64_tr_b16 {P2(dst+4*s+2)}, v{addr} offset:{off+s*ks+hs}")
    def tru(dst,off): trfrag(dst,TRU,off,2048,256)
    def sdma(sr,moff,loff=0,v=VY,js=range(8)):
        a(f"s_lshl_b32 s{t0}, s{sW4}, 6")
        for j in js:
            a(f"s_add_u32 m0, s{sBUF}, {loff+j*1024}\ns_add_u32 s{t1}, s{t0}, {moff+j*4096}\nbuffer_load_dwordx4 v{v}, {SR4(sr)}, s{t1} offen lds")
    def xfrags(Ts):
        for T in Ts:
            for s in range(4): a(f"ds_read_b128 {P4(XF+16*T+4*s)}, v{FA+s} offset:{T*4096}")
    def trw(): trfrag(WF,TP,32768,2048,256); trfrag(WF+16,TP,32768+8,2048,256)
    def um(r,tau,i,xf,acc,WF=WF):
        L=[]
        for s in range(4):
            w,x=WF+16*i+4*s,xf+4*s
            d=UA+8*tau+4*i
            L.append(mfma16(d,*((x,w) if (r,tau)==(1,1) else (w,x)),d if (acc or s) else None))
        return L
    def ugemm(r):
        for tau in range(2):
            for i in range(2):
                for x in um(r,tau,i,XF+16*(2*r+tau),False): a(x)
        a("s_nop 4")
        for j in ((0,2,4,6,8,10,12,14) if r==0 else (0,2,4,6,8,12)): a(f"v_pk_mul_f32 {P2(UA+j)}, {P2(UA+j)}, {S2(sL2E)}")
    def w3rd():
        a(f"v_lshlrev_b32 v1, 3, v{VL}")
        for q in range(4): a(f"ds_read_b64 {P2(B3+4*q+2*(q&1))}, v1 offset:{W3L+q*512}")
    F=A3
    def scan(slow):
        a(f"""
v_lshlrev_b32 v1, 2, v{VL}
ds_read_b32 v{F}, v1
v_cmp_gt_u32 vcc, s{sNN}, v{VL}
v_lshlrev_b32 v{F+1}, 8, v{VL}
s_waitcnt lgkmcnt(0)
v_sub_u32 v{QA}, v{F}, v{F+1}
""")
        if slow:
            a(f"""
s_movk_i32 s{t1}, 256
v_subrev_u32 v{QA}, s{sHEAD}, v{QA}
v_cmp_lt_i32 {S2(t2)}, s{t1}, v{QA}
v_med3_i32 v{QA}, v{QA}, 0, s{t1}
v_add_u32 v{F}, v{F+1}, v{QA}
""")
        a(f"""
v_add_u32 v3, 12, v{QA}
v_and_b32 v3, -16, v3
v_max_u32 v3, 80, v3
v_cndmask_b32 v3, 0, v3, vcc
v_mov_b32 v2, v3
""")
        dpp_scan(a,"v_add_u32",[2])
        a(f"""
v_readlane_b32 s{t0}, v2, 63
v_sub_u32 v2, v2, v3
""")
    def fill(lab,slow,nw):
        a(f"""
s_lshl_b32 s{t1}, s{sWV}, 4
v_add_u32 v{QA+1}, s{t1}, v2
v_lshrrev_b32 v{QA+1}, 3, v{QA+1}       ; 2*(G0+w)
v_add_u32 v{F+1}, s{t1}, v{F+1}         ; 256n+16w
v_subrev_u32 v{QA+2}, s{t1}, v3         ; g16-16w
""")
        if not slow: a(f"v_add_u32 v{QA+3}, v{QA+1}, v{SA}\nv_mov_b32 v{F+3}, 0x3f80\nds_write_b32 v1, v2 offset:{BT}")
        for k in range(16//nw):
            a(f"v_cmpx_lt_i32 vcc, {16*nw*k}, v{QA+2}\nds_write_b16 v{QA+1}, v{F+1+(k&1)} offset:{GL+2*nw*k}")
            if k+1<16//nw: a(f"v_add_u32 v{F+1+((k+1)&1)}, {16*nw}, v{F+1+(k&1)}")
            if not slow: a(f"ds_write_b16 v{QA+3}, v{F+3} offset:{STB+2*nw*k}")
        a(f"""
s_mov_b64 exec, -1
s_lshl_b32 s{t1}, s{sWV}, 2
v_sub_u32 v{QA+2}, v3, v{QA}
v_add_u32 v{F}, s{t1}, v{F}
v_subrev_u32 v{QA+2}, s{t1}, v{QA+2}    ; pad4 - 4w
s_mov_b32 s{t1}, {EB}
v_mov_b32 v{QA+4}, 0
v_mov_b32 v{QA+5}, 0
v_mov_b32 v{QA+6}, {hex(NULLW2)}
v_lshl_add_u32 v{QA+7}, v{F}, 1, s{t1}
""")
        for k in range(-(-20//nw)):
            a(f"v_cmpx_lt_i32 vcc, {4*nw*k}, v{QA+2}")
            if k==1: a(f"s_cbranch_vccz {lab}p")
            a(f"ds_write_b32 v{F}, v{QA+6} offset:{WB+4*nw*k}\nds_write_b64 v{QA+7}, {P2(QA+4)} offset:{8*nw*k}")
        a(f"""
{lab}p:
s_mov_b64 exec, -1
s_cmp_eq_u32 s{sWV}, 3
s_cbranch_scc0 {lab}q
s_lshr_b32 s{t1}, s{t0}, 3
v_lshl_add_u32 v{QA+1}, v{VL}, 1, s{t1}
v_mov_b32 v{QA+2}, {NULLG}
v_add_u32 v{QA+3}, {NULLG}, v1
v_lshlrev_b32 v{QA+7}, 1, v1
v_add_u32 v{QA+7}, {EB+2*NULLG}, v{QA+7}
s_mov_b64 exec, 0xff
ds_write_b16 v{QA+1}, v{QA+2} offset:{GL}
s_mov_b64 exec, 15
ds_write_b32 v{QA+3}, v{QA+6} offset:{WB}
ds_write_b64 v{QA+7}, {P2(QA+4)}
s_mov_b64 exec, -1
{lab}q:
""")
    def expand(lab,win=True):
        if win: a(f"""
v_subrev_u32 v1, s{sLO}, v{TO}
v_add_u32 v2, v1, v{TC}
v_med3_i32 v1, v1, 0, s{t3}
v_med3_i32 v2, v2, 0, s{t3}
v_sub_u32 v2, v2, v1
v_lshl_add_u32 v1, v1, 2, s{sLB}
""")
        a(f"{lab}:")
        for j in range(16):
            a(f"v_cmpx_lt_i32 vcc, {j}, v2")
            if j==13: a(f"s_cbranch_vccz {lab}z")
            a(f"ds_write_b32 v1, v{TD} offset:{4*j}")
        a(f"""
v_add_u32 v2, -16, v2
v_add_u32 v1, 64, v1
v_cmp_lt_i32 vcc, 0, v2
s_cmp_lg_u64 vcc, 0
s_cbranch_scc1 {lab}
{lab}z:
s_mov_b64 exec, -1
""")
    def rl1(i): return f"buffer_load_dwordx4 {P4(RC+4*i)}, v{RK+i}, {SR4(sR)}, {'0' if i<4 else 's'+str(sQ)} offen offset:{1024*(i&3)}{SC}"
    def reclist(ns):
        a(f"v_lshl_add_u32 v1, v{VL}, 2, s{sLB}")
        for i in reversed(range(ns)): a(f"ds_read_b32 v{RK+i}, v1 offset:{256*i}")
        a(f"v_add_u32 v2, s{sLO}, v{VL}\nv_lshlrev_b32 v2, 4, v2\ns_movk_i32 s{sQ}, 4096")
        for i in range(ns):
            a(f"v_cmp_gt_i32 {S2(sM+2*i)}, s{t1}, v{VL}\ns_sub_u32 s{t1}, s{t1}, 64")
        a("s_waitcnt lgkmcnt(0)")
        for i in range(ns): a(f"v_add_u32 v{RK+i}, v{RK+i}, v2")
    def recload(ns,lab):
        for i in reversed(range(ns)):
            a(f"s_mov_b64 exec, {S2(sM+2*i)}\ns_cbranch_execz {lab}{i}\n{rl1(i)}\n{lab}{i}:")
        a("s_mov_b64 exec, -1")
    def hist(ns,lab,extra,scat):
        a(f"v_mov_b32 v1, 4\ns_mov_b32 s{sW8}, {EB}\n{lab}p:")
        def gm(i): return S2(t0+2*(i&1))
        def sc(i,n):
            a(f"""
s_mov_b64 exec, {gm(i)}
s_waitcnt lgkmcnt({n})
v_min_u32 v{RK+i}, {NULLG-4}, v{RK+i}
v_lshl_add_u32 v{RC+4*i+3}, v{RK+i}, 1, s{sW8}
ds_write_b32 v{RK+i}, v{RC+4*i+2} offset:{WB}
ds_write_b64 v{RC+4*i+3}, {P2(RC+4*i)}
""")
        for i in reversed(range(ns)):
            a(f"""
s_mov_b64 exec, {S2(sM+2*i)}
s_waitcnt vmcnt({i+extra})
v_cmpx_eq_u32 {gm(i)}, s{sNON}, v{RC+4*i+3}
v_lshrrev_b32 v{RC+4*i+3}, 17, v{RC+4*i+2}
ds_add_rtn_u32 v{RK+i}, v{RC+4*i+3}, v1
s_andn2_b64 {S2(sM+2*i)}, {S2(sM+2*i)}, {gm(i)}
""")
            a(f"s_mov_b64 vcc, {S2(sM+2*i)}" if i==ns-1 else f"s_or_b64 vcc, vcc, {S2(sM+2*i)}")
            if scat and i==0 and 0: pass
            if scat and i==0: a(f"s_cselect_b64 exec, 0, 1\nds_add_u32 v{VZ}, v1 offset:{mH}")
            if scat and i<ns-1: sc(i+1,(1 if i==ns-2 else 3)+(1 if i==0 else 0))
        if scat: sc(0,3)
        a(f"s_cbranch_vccnz {lab}r\n{lab}d:\ns_mov_b64 exec, -1")
    def hist_retry(ns,lab,scat):
        a(f"{lab}r:\ns_sub_u32 s{sBUD}, s{sBUD}, 1\ns_cbranch_scc1 {lab}x")
        recload(ns,lab+"l")
        a(f"s_waitcnt vmcnt(0)\ns_branch {lab}p\n{lab}x:\ns_mov_b32 s{sBUD}, 0")
        if scat: a(f"s_mov_b64 exec, 1\nds_add_u32 v{VZ}, v1 offset:{mH}")
        a(f"s_branch {lab}d")
    def qfull(lab,mid):
        H=QA+4; MX=QA+1
        a(f"v_xor_b32 v{TC}, 32, v{TRU}")
        trfrag(WF,TC,0,2048,256)
        a(f"""
s_lshl_b32 s{t0}, s{sW4}, 8
s_add_u32 s{t0}, s{t0}, {Q2}
v_lshrrev_b32 v1, 4, v{VL}
v_lshl_add_u32 v120, v1, 11, s{t0}
v_and_b32 v1, 8, v{VL}
v_lshl_add_u32 v120, v1, 3, v120
v_and_b32 v1, 3, v{VL}
v_lshl_add_u32 v120, v1, 4, v120
v_and_b32 v1, 4, v{VL}
v_lshl_add_u32 v120, v1, 1, v120
v_add_u32 v121, 128, v120
s_waitcnt lgkmcnt(0)
""")
        tru(WF+16,0)
        def cv(i,T,pk):
            c=GA+16*i+4*T
            L=[]
            if pk: L+=[f"v_pk_mul_f32 {P2(c)}, {P2(c)}, {S2(sL2E)}",f"v_pk_mul_f32 {P2(c+2)}, {P2(c+2)}, {S2(sL2E)}"]
            else: L+=[f"v_mul_f32 v{c+k}, s{sL2E}, v{c+k}" for k in range(4)]
            L+=[f"v_and_b32 v{H+k}, 0xffff0000, v{c+k}" for k in range(4)]
            L+=[f"v_maximum3_f32 v{MX}, {'0' if T==0 and i==0 else 'v'+str(MX)}, abs(v{c}), abs(v{c+1})",f"v_maximum3_f32 v{MX}, v{MX}, abs(v{c+2}), abs(v{c+3})"]
            if pk: L+=[f"v_pk_add_f32 {P2(c)}, {P2(c)}, {P2(H)} neg_lo:[0,1] neg_hi:[0,1]",f"v_pk_add_f32 {P2(c+2)}, {P2(c+2)}, {P2(H+2)} neg_lo:[0,1] neg_hi:[0,1]"]
            else: L+=[f"v_sub_f32 v{c+k}, v{c+k}, v{H+k}" for k in range(4)]
            L+=[f"v_cvt_pk_bf16_f32 v{c+k}, v{c+k}, v{H+k}" for k in range(4)]
            return L
        for T in range(4):
            for s in range(4): a(mfma16(GA+4*T,XF+16*T+4*s,WF+4*s,None if s==0 else GA+4*T))
        a("s_waitcnt lgkmcnt(0)")
        fl=cv(0,0,0)+cv(0,1,0)
        for T in range(4):
            for s in range(4):
                a(mfma16(GA+16+4*T,XF+16*T+4*s,WF+16+4*s,None if s==0 else GA+16+4*T))
                for _ in range(2): a(fl.pop(0))
        if PFI==0: mid()
        for x in fl+cv(0,2,1)+cv(1,0,1)+cv(1,1,1)+cv(1,2,1): a(x)
        if PFI==1: mid()
        gwait(lab+"w",mSL,4,VZ,1)
        for i in range(2):
            for T in range(3):
                c=GA+16*i+4*T
                a(f"ds_write2st64_b64 v{120+i}, {P2(c)}, {P2(c+2)} offset0:{16*T} offset1:{16*T+2}")
        a("s_mov_b64 exec, 0xffff")
        for i in range(2):
            c=GA+16*i+12
            a(f"""
v_mul_f32 v{c}, s{sL2E}, v{c}
v_and_b32 v{H}, 0xffff0000, v{c}
v_maximum3_f32 v{MX}, v{MX}, abs(v{c}), abs(v{c})
v_sub_f32 v{c}, v{c}, v{H}
v_cvt_pk_bf16_f32 v{c}, v{c}, v{H}
ds_write2st64_b64 v{120+i}, {P2(c)}, {P2(c+2)} offset0:48 offset1:50
""")
        a(f"""
s_mov_b64 exec, -1
v_cmp_nge_f32 vcc, 0x40e80000, v{MX}
s_cbranch_vccz {lab}q
ds_write_b32 v{VZ}, v{FA} offset:{mSLOW}
{lab}q:
""")
        pt('qd')
    def ranges():
        a(f"""
s_lshr_b32 s{sCNT}, s{sNT}, 3
s_mul_i32 s{sT0}, s{sCNT}, s{sWV}
s_and_b32 s{t2}, s{sNT}, 7
s_min_u32 s{t3}, s{t2}, s{sWV}
s_add_u32 s{sT0}, s{sT0}, s{t3}
s_cmp_lt_u32 s{sWV}, s{t2}
s_addc_u32 s{sCNT}, s{sCNT}, 0
s_lshl_b32 s{t0}, s{sT0}, 7
s_lshl_b32 s{t2}, s{sT0}, 4
v_add_u32 v{SB}, s{t2}, v{SB}
v_add_u32 v{RB}, s{t2}, v{RB}
s_add_u32 s{t3}, s{sT0}, s{sCNT}
v_min_u32 v1, 8, v{VL}
v_sub_u32 v1, s{t3}, v1
v_lshlrev_b32 v1, 4, v1
v_max_i32 v1, 0, v1
""")
    AS=272; OST=GBUF+32768
    eFA,eOW,eN48,eRD,eST,eM0,eM1=136,137,138,139,140,141,142
    sE0,sE1,sE2=4,5,6
    def epi_consts():
        srd(a,sX,16,N*256)
        vyc(WV)
        a(f"""
v_and_b32 v1, 15, v{VL}
v_lshrrev_b32 v2, 4, v{VL}
v_mul_u32_u24 v3, {AS}, v1
s_lshr_b32 s{t0}, s{sWV}, 2
s_mul_i32 s{t1}, s{t0}, {32*AS}
v_lshl_add_u32 v3, v2, 4, v3
v_add_u32 v{eFA}, s{t1}, v3
s_lshl_b32 s{t0}, s{t0}, 13
s_add_u32 s{t0}, s{t0}, {OST}
s_lshl_b32 s{t1}, s{sW4}, 2
v_or_b32 v2, s{t1}, v2
v_xor_b32 v2, v2, v1
v_lshl_add_u32 v2, v2, 4, s{t0}
v_lshl_add_u32 v{eOW}, v1, 8, v2
s_lshl_b32 s{t0}, s{sW4}, 6
s_add_u32 s{t0}, s{t0}, {OST+48*256}
v_and_b32 v2, 12, v1
v_lshl_add_u32 v2, v2, 2, s{t0}
v_and_b32 v3, 3, v1
v_lshl_add_u32 v{eN48}, v3, 1, v2
v_lshlrev_b32 v1, 4, v0
v_add_u32 v{eRD}, {OST}, v1
v_lshrrev_b32 v2, 4, v0
v_xor_b32 v3, v2, v0
v_and_b32 v3, 15, v3
v_lshlrev_b32 v3, 4, v3
v_lshl_add_u32 v{eST}, v2, 16, v3
s_lshl_b32 s{sE0}, s{sNB}, 8
s_add_u32 s{sE1}, s{sE0}, {32*65536}
s_cmp_lt_u32 s{sWV}, 4
s_cselect_b64 {S2(sE2)}, -1, 0xffff
s_mul_i32 s{t0}, s{sWV}, {AS}
v_lshl_add_u32 v{eM1}, v{VL}, 2, s{t0}
v_lshlrev_b32 v{OH2}, 1, v{OHC}
v_and_b32 v1, 31, v{VL}
v_lshlrev_b32 v1, 4, v1
v_lshlrev_b32 v2, 5, v{VL}
v_and_b32 v2, 0x400, v2
v_add3_u32 v{QC}, v1, v2, s{sQ2}
v_cndmask_b32 v{SI2}, 0, 16, {S2(sMA)}
v_cndmask_b32 v{SI2+1}, 16, 0, {S2(sMA)}
v_sub_u32 v2, v{SA}, v{OHC}
v_add_u32 v2, {STB}, v2
v_mov_b32 v1, {OH+64}
v_cndmask_b32 v{SA2}, v1, v2, {S2(sMA)}
v_cndmask_b32 v{SA2+1}, v2, v1, {S2(sMA)}
""")
    def arrive(off,vt): a(f"v_mov_b32 v{vt}, 1\ns_mov_b64 exec, 1\nds_add_u32 v{VZ}, v{vt} offset:{off}\ns_mov_b64 exec, -1")

    def claim():
        a(f"""
s_mul_i32 s{t1}, s{sW4}, {13*65536}
s_lshl_b32 s{t2}, s{sNB}, 8
s_add_u32 s{t1}, s{t1}, s{t2}
s_add_u32 s{t1}, s{t1}, {F_P}
""")
        if CLW==1:
            a(f"""
v_lshlrev_b32 v2, 15, v{VL}
v_and_b32 v2, 0xffff0000, v2
v_and_b32 v3, 1, v{VL}
v_lshl_add_u32 v2, v3, 7, v2
v_add_u32 v2, s{t1}, v2
s_mov_b64 exec, 0x3ffffff
global_store_dword v2, v{VZ}, s[20:21] sc1
s_mov_b64 exec, -1
""")
        else:
            a(f"""
v_lshlrev_b32 v2, 14, v{VL}
v_and_b32 v2, 0xffff0000, v2
v_and_b32 v3, 3, v{VL}
v_lshl_add_u32 v2, v3, 6, v2
v_add_u32 v2, s{t1}, v2
s_mov_b32 exec_hi, 0xfffff
global_store_dword v2, v{VZ}, s[20:21] sc1
s_mov_b64 exec, -1
""")
    D=28; SRc=36; K=44; R=52; W2=60; RO=80
    sD=40; sS=44; sE=48
    Q16="s_mov_b64 exec, 0xffff"; FULL="s_mov_b64 exec, -1"
    a(f"""
{name}:
{"s_memrealtime s[88:89]" if PROF and FST else ""}
s_getpc_b64 {S2(t2)}
s_cmp_ge_u32 s2, 256
s_cbranch_scc1 KF_END
s_load_dwordx16 s[4:19], s[0:1], 0
s_load_dwordx2 s[20:21], s[0:1], 64
v_lshrrev_b32 v1, 6, v0
s_and_b32 s{t0}, s2, 0xf8
v_add_lshl_u32 v2, v1, s{t0}, 7
v_readfirstlane_b32 s{sWV}, v1
v_min_u32 v2, KF_CEND-{name}-16, v2
s_mov_b64 exec, 1
global_load_dword v{QA+15}, v2, {S2(t2)}
s_mov_b64 exec, -1
v_and_b32 v{VL}, 63, v0
v_mov_b32 v{VZ}, 0
v_lshlrev_b32 v113, 4, v{VL}
s_and_b32 s{sK}, s2, 7
s_lshl_b32 s{sK}, s{sK}, 5
s_lshr_b32 s{t1}, s2, 3
s_or_b32 s{sK}, s{sK}, s{t1}
s_and_b32 s{sW4}, s{sWV}, 3
s_lshl_b32 s{sW4K}, s{sW4}, 10
s_cmp_ge_u32 s{sWV}, 4
s_cbranch_scc0 KF_S
v_lshlrev_b32 v2, 2, v0
v_lshlrev_b32 v3, 8, v{VL}
ds_write_b32 v2, v{VZ} offset:{HIST-1024}
v_lshlrev_b32 v2, 2, v{VL}
ds_write2st64_b32 v2, v3, v{VZ} offset0:0 offset1:1
s_memrealtime {S2(t2)}
v_bfe_u32 v1, v0, 4, 4
v_xor_b32 v37, v1, v0
v_and_b32 v37, 15, v37
v_lshlrev_b32 v37, 4, v37
v_lshl_add_u32 v36, v1, 8, s{sNB}
s_waitcnt lgkmcnt(0)
""")
    if WSB: a(f"s_add_u32 s20, s20, {hex(WSB)}\ns_addc_u32 s21, s21, 0")
    (0 if FST else stamp(a,0,True)); stamp(a,1); pt('st')
    a(f"""
""")
    a(f"""
s_or_b32 s{t1}, s2, s{sW4}
s_cbranch_scc1 KF_n
s_lshl_b32 s{t1}, s{t2}, 2
s_or_b32 s{t1}, s{t1}, 1
v_mov_b32 v1, s{t1}
v_lshlrev_b32 v2, 6, v{VL}
s_mov_b64 exec, 15
global_store_dword v2, v1, s[18:19] sc1
s_mov_b64 exec, -1
KF_n:
""")
    if XORD==0:
        srd(a,sX,4,N,stride=256)
        for j in range(4):
            if j==3: a(f"s_cmp_eq_u32 s{sWV}, 4\ns_cbranch_scc0 KT_c")
            a(f"s_add_u32 m0, s{sW4K}, {AGB+j*4096}\ns_nop 0\nbuffer_load_dwordx4 v[36:37], {SR4(sX)}, 0 idxen offen{NT} lds\nv_add_u32 v36, 4096, v36")
        a("KT_c:")
    a(f"""
s_lshr_b32 s{t0}, s{t0}, 1
s_add_u32 s{t0}, s{t0}, s{sWV}
s_sub_u32 s{t0}, s{t0}, 4
s_lshl_b32 s{t0}, s{t0}, 9
v_lshl_add_u32 v2, v{VL}, 7, s{t0}
s_mov_b64 exec, 15
global_load_dword v{QA+15}, v2, s[12:13]
global_load_dword v{QA+15}, v2, s[14:15]
s_mov_b64 exec, -1
""")
    if TLB:
        a(f"""
s_lshr_b32 s{t0}, s{t0}, 9
s_mul_i32 s{t1}, s{t0}, {2*RST}
s_add_u32 s{t1}, s{t1}, {F_REC+EP*16}
s_add_u32 s52, s20, s{t1}
s_addc_u32 s53, s21, 0
s_load_dword s44, s[52:53], 0
s_load_dword s45, s[52:53], {RST}
""")
    a(f"""
s_branch KF_B0
KF_S:
s_min_u32 s{t2}, s2, {NPROD-1}
s_mul_i32 s{t2}, s{t2}, {EP*4}
s_mul_i32 s{t3}, s{sWV}, 400
v_add_u32 v108, s{t3}, v{VL}
v_lshlrev_b32 v109, 2, v108
s_mov_b32 s{sD+2}, {E*4}
s_mov_b32 s{sD+3}, 0x00020000
s_waitcnt lgkmcnt(0)
""")
    if WSB: a(f"s_add_u32 s20, s20, {hex(WSB)}\ns_addc_u32 s21, s21, 0")
    (0 if FST else stamp(a,0,True)); stamp(a,1); pt('st')
    a(f"s_mov_b32 s{sD}, s10\ns_and_b32 s{sD+1}, s11, 0xffff")
    def ld7(dst,sr):
        for i in range(7):
            if i==6: a(Q16)
            a(f"buffer_load_dword v{dst+i}, v109, {SR4(sr)}, s{t2} offen offset:{i*256}{NT}")
        a(FULL)
    ld7(D,sD); pt('dl')
    srd(a,sS,8,E*4); srd(a,sE,6,E*8)
    ld7(SRc,sS)
    a(f"""
s_lshl_b32 s{sLB}, s{t3}, 3
s_lshl_b32 s{t2}, s{t2}, 1
s_add_u32 s{t2}, s{t2}, s{sLB}
s_add_u32 m0, s{sLB}, {ERAW}
s_add_u32 s{sLB}, s{sLB}, {S1}
""")
    for j in range(4):
        if j==3: a("s_mov_b64 exec, 0xff")
        a(f"buffer_load_dwordx4 v113, {SR4(sE)}, s{t2} offen offset:{1024*j}{NT} lds")
    a(FULL)
    if CLM==2: claim()
    a(f"""
KF_B0:
""")
    if DBGP:
        a("v_mov_b32 v1, 0")
        for j,r in enumerate((4,6,8,10,12,14,16,18,20)): a(f"v_writelane_b32 v1, s{r}, {j}")
        a(f"v_lshlrev_b32 v2, 2, v{VL}\ns_mov_b64 exec, 0x1ff\nglobal_store_dword v2, v1, s[18:19]\ns_mov_b64 exec, -1\ns_waitcnt vmcnt(0)")
    if ALN: a(f"s_add_u32 s20, s20, {ALN-1}\ns_addc_u32 s21, s21, 0\ns_and_b32 s20, s20, {-ALN}")
    a(f"""
s_lshl_b32 s{sBUF}, s{sWV}, 13
s_add_u32 s{sBUF}, s{sBUF}, {GBUF}
s_barrier
""")
    if W1E:
        a(f"s_cmp_ge_u32 s{sWV}, 4\ns_cbranch_scc0 KF_c0")
        srd(a,sA,12,260*256); vyc(); sdma(sA,0,0,VY,range(W1E))
        a("KF_c0:")
    consts()
    a(f"""
s_cmp_ge_u32 s{sWV}, 4
s_cbranch_scc1 KF_T
v_mov_b32 v111, 8
v_and_b32 v124, 7, v{VL}
v_lshlrev_b32 v124, 7, v124
v_lshrrev_b32 v125, 3, v{VL}
v_lshl_add_u32 v124, v125, 2, v124
v_add_u32 v124, {HIST}, v124
v_add_u32 v125, 1024, v124
v_lshlrev_b32 v112, 3, v108
v_lshlrev_b32 v110, 4, v108
""")
    for i in range(7): a(f"v_add_u32 v{W2+1+2*i}, {i*512}, v112")
    a(f"s_cmp_ge_u32 s2, {NPROD}\ns_cbranch_scc1 KS_d\ns_waitcnt vmcnt({11+(CLM==2)})")
    pt('dst')
    for i in range(7):
        if i==6: a(Q16)
        a(f"v_lshlrev_b32_sdwa v{K+i}, 2, v{D+i} dst_sel:DWORD dst_unused:UNUSED_PAD src0_sel:DWORD src1_sel:BYTE_0\nds_add_rtn_u32 v{R+i}, v{K+i}, v111 offset:{HIST}")
    a(FULL+"\nKS_d:")
    gsync('b1',"KS_y1",mS,4,VZ,2)
    if PERM: a(f"ds_read2_b32 v[116:117], v124 offset0:0 offset1:8\nds_read2_b32 v[118:119], v124 offset0:16 offset1:24")
    else: a(f"ds_read_b128 v[116:119], v113 offset:{HIST}")
    for i in range(7): a(f"v_lshrrev_b32 v{D+i}, 8, v{D+i}")
    a(f"""
s_waitcnt lgkmcnt(0)
v_add_u32 v2, v116, v117
v_add3_u32 v2, v2, v118, v119
v_mov_b32 v3, v2
""")
    dpp_scan(a,"v_add_u32",[3])
    a(f"""
v_sub_u32 v120, v3, v2
v_add_u32 v121, v120, v116
v_add_u32 v122, v121, v117
v_add_u32 v123, v122, v118
""")
    if PERM: a(f"ds_write2_b32 v125, v120, v121 offset0:0 offset1:8\nds_write2_b32 v125, v122, v123 offset0:16 offset1:24")
    else: a(f"ds_write_b128 v113, v[120:123] offset:{HIST+1024}")
    for i in range(7):
        if i==6: a(Q16)
        a(f"ds_read_b32 v{K+i}, v{K+i} offset:{HIST+1024}")
    a(FULL)
    def tpub():
        if not NE: a(f"s_load_dword s{sNON}, s[18:19], 0")
        a(f"""
v_lshl_or_b32 v{QA}, v121, 16, v120
v_lshl_or_b32 v{QA+1}, v123, 16, v122
s_lshl_b32 s{t2}, s2, 10
s_add_u32 s{t2}, s{t2}, {F_TBL}
s_lshl_b32 s{t3}, s{sWV}, 4
""")
        for k,off in enumerate((128,64,192,None)):
            a(f"s_waitcnt lgkmcnt(0)\ns_cmp_lg_u32 s{sNON}, 0\ns_cbranch_scc1 KS_n1")
            if off is not None: a(f"s_sleep 2\ns_load_dword s{sNON}, s[18:19], {off}")
        a(f"""
KS_n0:
global_load_dword v1, v{VZ}, s[18:19] sc1
s_waitcnt vmcnt(0)
v_readfirstlane_b32 s{sNON}, v1
s_cmp_lg_u32 s{sNON}, 0
s_cbranch_scc1 KS_n1
s_sub_u32 s{sBUD}, s{sBUD}, 1
s_cbranch_scc0 KS_n0
s_mov_b32 s{sBUD}, 0
s_mov_b32 s{sNON}, 1
KS_n1:
v_mov_b32 v1, s{sNON}
ds_write_b32 v{VZ}, v1 offset:{mNO}
""")
        pt('non')
        slot()
        a(f"""
v_mov_b32 v{QA+3}, v1
s_lshl_b64 exec, 0xffff, s{t3}
buffer_store_dwordx4 {P4(QA)}, v113, {SR4(sR)}, s{t2} offen{SSC}
s_mov_b64 exec, -1
""")
    a(f"s_cmp_ge_u32 s2, {NPROD}\ns_cbranch_scc1 KS_e\ns_waitcnt vmcnt({(5 if TE==0 else 4)+(CLM==2)})")
    if X&64:
        for i in range(7): a(f"v_and_b32 v{SRc+i}, 0x1ff, v{SRc+i}")
    for i in range(7): a(f"v_lshl_or_b32 v{W2+2*i}, v{D+i}, 19, v{SRc+i}")
    a(f"s_waitcnt lgkmcnt(0)")
    for i in range(7):
        if i==6: a(Q16)
        a(f"v_add_u32 v{K+i}, v{K+i}, v{R+i}\nds_write_b64 v{K+i}, {P2(W2+2*i)} offset:{S1}")
    a(FULL+"\nKS_e:")
    pt('sc1')
    a(f"v_mov_b32 v{QA+2}, v3")
    if NE: a(f"s_load_dword s{sNON}, s[18:19], 0")
    epi_consts()
    tpub()
    a(f"""
v_lshlrev_b32 v114, 10, v0
s_lshr_b32 s{sLO}, s{sK}, 2
s_lshl_b32 s{sLO}, s{sLO}, 4
s_add_u32 s{sLO}, s{sLO}, {F_TBL}
v_cmp_gt_u32 vcc, {NPROD}, v0
v_mov_b32 v{QA+4}, 0
v_mov_b32 v{QA+5}, 0
v_mov_b32 v{QA+6}, 0
s_mul_i32 s{t0}, s2, {RST}
s_add_u32 s{t0}, s{t0}, {F_REC}
s_add_u32 s{t2}, s{t0}, 4096
v_mul_u32_u24 v115, {RST}, v0
v_add_u32 v115, {F_REC}, v115
""")
    gsync('bS',"KS_y2",mS,8,VZ,2,f"s_waitcnt vmcnt({1+(CLM==2)})")
    tl=f"s_mov_b64 exec, vcc\nbuffer_load_dwordx4 {P4(QA+4)}, v114, {SR4(sR)}, s{sLO} offen{SC}\ns_mov_b64 exec, -1"
    a(f"""
s_cmp_ge_u32 s2, {NPROD}
s_cbranch_scc0 KS_h0
""")
    gwait("KS_h1",mGP,4,VZ,2)
    a(f"""
{tl}
v_mov_b32 v1, 0
s_branch KS_j
KS_h0:
""")
    order=[6,0,1,2,3,4,5]
    for i in order:
        if i==6: a(Q16)
        a(f"ds_read_b64 {P2(RO+2+4*i)}, v112 offset:{S1+i*512}")
        if i==6: a(FULL)
    for i in order:
        if i==6: a(Q16)
        a(f"s_waitcnt lgkmcnt(6)\nds_read_b64 {P2(RO+4*i)}, v{RO+3+4*i} offset:{ERAW}")
        if i==6: a(FULL)
    gwait("KS_ww",mW,4,VZ,2)
    for k,i in enumerate(order):
        if i==6: a(Q16)
        a(f"v_mov_b32 v{RO+3+4*i}, v1\nbuffer_store_dwordx4 {P4(RO+4*i)}, v110, {SR4(sR)}, s{t0 if i<4 else t2} offen offset:{1024*(i&3)}{SSC}")
        if i==6: a(FULL)
    a(tl)
    pt('out')
    a(f"v_pk_maximum3_f16 v1, v{RO}, v{RO+1}, v{RO+1}\nv_pk_minimum3_f16 v2, v{RO}, v{RO+1}, v{RO+1}")
    for i in range(1,7):
        if i==6: a(Q16)
        a(f"v_pk_maximum3_f16 v1, v1, v{RO+4*i}, v{RO+4*i+1}\nv_pk_minimum3_f16 v2, v2, v{RO+4*i}, v{RO+4*i+1}")
    a(FULL)
    absmax_fin(a,1,2,3)
    dpp_scan(a,"v_max_u32",[1])
    a(f"""
KS_j:
v_mov_b32 v2, 1
s_mov_b32 exec_lo, 0
s_brev_b32 exec_hi, 1
ds_max_u32 v{VZ}, v1 offset:{mEM}
ds_add_u32 v{VZ}, v2 offset:{mE}
s_mov_b64 exec, -1
""")
    gwait("KS_xw",mGX,4,VZ,2)
    xfrags([0,1])
    a(f"""
s_bitcmp1_b32 s{sK}, 1
s_cselect_b64 {S2(t2)}, -1, 0
s_lshl_b32 s{t0}, s{sK}, 4
s_and_b32 s{t0}, s{t0}, 16
s_waitcnt vmcnt(0)
s_mov_b64 exec, vcc
KT_f:
v_cmp_ne_u32 vcc, s{sNON}, v{QA+7}
s_cbranch_vccz KT_g
s_mov_b64 exec, vcc
s_sub_u32 s{sBUD}, s{sBUD}, 1
s_cbranch_scc1 KT_f2
buffer_load_dwordx4 {P4(QA+4)}, v114, {SR4(sR)}, s{sLO} offen{SC}
s_waitcnt vmcnt(0)
s_branch KT_f
KT_f2:
s_mov_b32 s{sBUD}, 0
v_mov_b32 v{QA+4}, 0
v_mov_b32 v{QA+5}, 0
v_mov_b32 v{QA+6}, 0
KT_g:
s_mov_b64 exec, -1
""")
    pt('tp'); ret('rt1')
    a(f"""
v_cndmask_b32 v1, v{QA+4}, v{QA+5}, {S2(t2)}
v_cndmask_b32 v2, v{QA+5}, v{QA+6}, {S2(t2)}
v_alignbit_b32 v1, v2, v1, s{t0}
v_sub_u32_sdwa v{TC}, v1, v1 dst_sel:DWORD dst_unused:UNUSED_PAD src0_sel:WORD_1 src1_sel:WORD_0
v_and_b32 v1, 0xffff, v1
v_lshrrev_b32 v{TC}, 3, v{TC}
v_lshl_add_u32 v{TD}, v1, 1, v115
v_mov_b32 v{TO}, v{TC}
""")
    dpp_scan(a,"v_add_u32",[TO])
    a(f"""
v_readlane_b32 s{sTOT}, v{TO}, 63
v_sub_u32 v{TO}, v{TO}, v{TC}
v_mov_b32 v2, v{TC}
v_lshlrev_b32 v1, 4, v{TO}
s_mov_b32 s{sLO}, 0
s_cmp_gt_u32 s{sTOT}, 512
v_sub_u32 v{TD}, v{TD}, v1
v_lshl_add_u32 v1, v{TO}, 2, s{sLB}
s_cselect_b32 s{t1}, 0, s{sTOT}
s_cbranch_scc1 KT_xe
""")
    expand("KT_x",False)
    a("KT_xe:")
    reclist(8)
    arrive(mSL,1)
    pt('exp')
    gwait("KS_rw",mPD,4,VZ,1)
    recload(8,"KT_l")
    pt('rl')
    def pfp():
        a(f"""
s_lshr_b32 s{t1}, s2, 3
s_mul_i32 s{t1}, s{t1}, 391
""")
        if PF0: a(f"v_and_b32 v2, 255, v0\nv_add_u32 v2, s{t1}, v2\nv_mov_b32 v3, 0")
        else: a(f"v_bfe_u32 v2, v0, 1, 7\nv_add_u32 v2, s{t1}, v2\nv_and_b32 v3, 1, v0\nv_lshlrev_b32 v3, 7, v3")
        if PFN<64: a(f"s_bfm_b64 exec, {PFN}, 0")
        a(f"buffer_load_dword v{QA+15}, v[2:3], {SR4(sP)}, 0 idxen offen offset:3072{SC}\ns_mov_b64 exec, -1")
    if PFP==1: pfp()
    gwait("KS_w2",mPI,4,VZ,1)
    trw()
    a("s_waitcnt lgkmcnt(0)")
    w3rd()
    ugemm(0)
    pt('ud')
    hist(8,"KT_h",1 if PFP==1 else 0,True)
    if PFP==3: pfp()
    pt('hs'); ret('rt2')
    gwait("KS_b2",mH,16,VZ,1)
    pt('b2')
    scan(False)
    a(f"""
v_cmp_lt_u32 vcc, 0x100, v{QA}
s_add_u32 s{sNT}, s{t0}, 127
s_lshr_b32 s{sNT}, s{sNT}, 7
s_cmp_gt_u32 s{sNT}, {CAPT}
s_cbranch_scc1 KT_j
s_cbranch_vccnz KT_j
""")
    fill("KFz",False,4)
    a(f"v_mov_b32 v1, s{sNT}\nds_write_b32 v{VZ}, v1 offset:{mNT}")
    pt('fil')
    a(f"""
s_cmp_gt_u32 s{sTOT}, 512
s_cbranch_scc0 KT_k
KT_j:
ds_write_b32 v{VZ}, v{FA} offset:{mSLOW}
KT_k:
s_mov_b32 s{sWU}, 1
""")
    ranges()
    srd(a,sA,14,256*256)
    if PRIO: a("s_setprio 3")
    bar('b3')
    a("s_branch KF_J")
    a(f"""
KF_T:
v_and_b32 v108, 255, v0
v_mov_b32 v32, 0
v_mov_b32 v33, 0
v_mov_b32 v34, 0
v_mov_b32 v35, 0
v_lshlrev_b32 v110, 4, v108
""")
    sG=40
    srd(a,sX,4,N,stride=256)
    def xld():
        for j in range(4):
            if j==3: a(f"s_cmp_eq_u32 s{sWV}, 4\ns_cbranch_scc0 KT_c")
            a(f"s_add_u32 m0, s{sW4K}, {AGB+j*4096}\ns_nop 0\nbuffer_load_dwordx4 v[36:37], {SR4(sX)}, 0 idxen offen{NT} lds\nv_add_u32 v36, 4096, v36")
        a("KT_c:")
    def warm():
        a(f"""
v_and_b32 v1, 28, v{VL}
v_and_b32 v2, 3, v{VL}
v_lshlrev_b32 v2, 1, v2
v_lshl_or_b32 v1, v1, 2, v2
s_lshr_b32 s{t0}, s{sW4}, 1
s_lshl_b32 s{t0}, s{t0}, 7
s_and_b32 s{t1}, s{sW4}, 1
s_lshl_b32 s{t1}, s{t1}, 3
s_add_u32 s{t0}, s{t0}, s{t1}
s_add_u32 s{t0}, s{t0}, 65536
""")
        for k in range(4): a(f"buffer_load_ushort v{124+k}, v1, {SR4(sA)}, s{t0} offen offset:{k*256}")
    def zer():
        a(f"v_cmp_le_u32 vcc, 32, v108\ns_mov_b64 exec, vcc\nds_write_b128 v110, v[32:35]\ns_mov_b64 exec, -1")
        for j in range(1,4): a(f"ds_write_b128 v110, v[32:35] offset:{j*4096}")
        a(f"""
s_cmp_eq_u32 s{sWV}, 4
s_cbranch_scc0 KT_b
ds_write_b128 v110, v[32:35] offset:16384
KT_b:
""")
    srd(a,sA,12,260*256); warm(); vyc()
    if XORD==1: xld()
    if not ZL: zer()
    a(f"""
s_lshl_b32 s{t0}, s{sW4}, 2
v_lshrrev_b32 v2, 4, v{VL}
v_or_b32 v1, s{t0}, v2                  ; 4u+g
v_xor_b32 v3, v1, v{WT}
v_lshlrev_b32 v3, 4, v3
v_lshl_add_u32 v116, v{WT}, 8, v3
v_add_u32 v116, {PSC}, v116
v_add_u32 v117, {PSC}, v110
v_lshl_add_u32 v118, v1, 16, v3
""")
    if XORD==2:
        gwait("KG_x",mS,4,VZ,1); xld()
    sdma(sA,0,0,VY,range(W1E,8))
    sdma(sA,32768,-32768,VY,range(W2N))
    arrive(mW,1)
    if ZL: zer()
    pt('w1i')
    def w3m():
        w=[124,125,126,127]; u=QA
        for k in range(4): a(f"v_lshlrev_b32 v{w[k]}, 16, v{w[k]}\nv_mul_f32 v{w[k]}, s{sL2E}, v{w[k]}")
        a(f"""
v_cvt_pk_bf16_f32 v{u}, v124, v125
v_cvt_pk_bf16_f32 v{u+1}, v126, v127
v_lshlrev_b32 v{u+2}, 16, v{u}
v_and_b32 v{u+3}, 0xffff0000, v{u}
v_lshlrev_b32 v{u+4}, 16, v{u+1}
v_and_b32 v{u+5}, 0xffff0000, v{u+1}
v_add_f32 v{u+6}, abs(v124), abs(v125)
v_sub_f32 v{u+2}, v124, v{u+2}
v_sub_f32 v{u+3}, v125, v{u+3}
v_sub_f32 v{u+4}, v126, v{u+4}
v_sub_f32 v{u+5}, v127, v{u+5}
v_add_f32 v{u+7}, abs(v126), abs(v127)
s_mov_b32 exec_lo, 0
v_cvt_pk_bf16_f32 v{u}, v{u+2}, v{u+3}
v_cvt_pk_bf16_f32 v{u+1}, v{u+4}, v{u+5}
s_mov_b32 exec_lo, -1
v_add_f32 v{u+6}, v{u+6}, v{u+7}
v_lshlrev_b32 v1, 3, v108
v_and_b32 v{u+6}, 0x7fffffff, v{u+6}
ds_write_b64 v1, {P2(u)} offset:{W3L}
""")
        dpp_scan(a,"v_max_u32",[u+6])
        a(f"""
s_mov_b32 exec_lo, 0
s_brev_b32 exec_hi, 1
ds_max_u32 v{VZ}, v{u+6} offset:{mC3}
s_mov_b64 exec, -1
""")
    e2=W2N
    a(f"v_mov_b32 v1, {hex(ONE2)}\nds_write2_b32 v{VZ}, v1, v1 offset0:{OH//4} offset1:{OH//4+3}")
    gsync('bX',"KG_y1",mGX,4,VZ,2,f"s_waitcnt vmcnt({8+e2-W1E})")
    if GP_: a(f"s_setprio {GP_}")
    xfrags([0])
    a(f"s_waitcnt vmcnt({e2})")
    pt('xl')
    trfrag(WF,TP,32768,2048,256)
    a("s_waitcnt lgkmcnt(7)")
    trfrag(WF+16,TP,32768+8,2048,256)
    def pm(T,i):
        for s in range(4): a(mfma16(GA+8*T+4*i,WF+16*i+4*s,XF+16*T+4*s,None if s==0 else GA+8*T+4*i))
    def pcv(T):
        c=GA+8*T
        L=[f"v_mul_f32 v{c+j}, s{sL2E}, v{c+j}" for j in range(8)]
        L+=[f"v_cvt_pk_bf16_f32 v{c+j}, v{c+2*j}, v{c+2*j+1}" for j in range(4)]
        L+=[f"ds_write_b128 v116, {P4(c)} offset:{T*4096}"]
        return L
    def pmi(T,fillers):
        for i in range(2):
            for s in range(4):
                a(mfma16(GA+8*T+4*i,WF+16*i+4*s,XF+16*T+4*s,None if s==0 else GA+8*T+4*i))
                for _ in range(2):
                    if fillers: a(fillers.pop(0))
    a("s_waitcnt lgkmcnt(8)"); xfrags([1]); pm(0,0)
    a("s_waitcnt lgkmcnt(4)"); xfrags([2,3]); pm(0,1)
    a("s_waitcnt lgkmcnt(8)"); pm(1,0); pm(1,1)
    a("s_waitcnt lgkmcnt(0)"); pmi(2,pcv(0)); pmi(3,pcv(1))
    a(f"s_lshl_b32 s{t2}, s{sNB}, 8\ns_nop 2")
    for T in (2,3):
        for x in pcv(T): a(x)
    gsync('pg',"KG_y2",mGP,4,VZ,2)
    for T in range(4): a(f"ds_read_b128 {P4(PO+4*T)}, v117 offset:{T*4096}")
    a(f"""
KG_n:
ds_read_b32 v1, v{VZ} offset:{mNO}
s_waitcnt vmcnt(0) lgkmcnt(0)
v_readfirstlane_b32 s{sNON}, v1
s_cmp_eq_u32 s{sNON}, 0
s_cbranch_scc1 KG_n
""")
    slot()
    for T in range(3):
        a(f"s_add_u32 s{t1}, s{t2}, {F_P+T*16*65536}")
        a(f"buffer_store_dwordx4 {P4(PO+4*T)}, v118, {SR4(sR)}, s{t1} offen{SSC}")
    a(f"""
s_cmp_eq_u32 s{sWV}, 4
s_cbranch_scc0 KG_p
s_add_u32 s{t1}, s{t2}, {F_P+3*16*65536}
s_waitcnt lgkmcnt(0)
s_mov_b64 exec, 0xffff
buffer_store_dwordx4 {P4(PO+12)}, v118, {SR4(sR)}, s{t1} offen{SSC}
s_mov_b64 exec, -1
KG_p:
""")
    pt('pst')
    if GP_: a("s_setprio 0")
    if W2N<8: sdma(sA,32768,-32768,VY,range(W2N,8))
    srd(a,sA,14,256*256)
    w3m()
    for T in range(4):
        c=GA+8*T
        if T==3: a("s_mov_b32 exec_lo, 0x10001\ns_mov_b32 exec_hi, 0x10001")
        if T==0: a(f"v_pk_maximum3_f16 v114, v{c}, v{c+1}, v{c+2}\nv_pk_minimum3_f16 v115, v{c}, v{c+1}, v{c+2}\nv_pk_maximum3_f16 v114, v114, v{c+3}, v{c+3}\nv_pk_minimum3_f16 v115, v115, v{c+3}, v{c+3}")
        else: a(f"v_pk_maximum3_f16 v114, v114, v{c}, v{c+1}\nv_pk_minimum3_f16 v115, v115, v{c}, v{c+1}\nv_pk_maximum3_f16 v114, v114, v{c+2}, v{c+3}\nv_pk_minimum3_f16 v115, v115, v{c+2}, v{c+3}")
    a("s_mov_b64 exec, -1")
    absmax_fin(a,114,115,2)
    a(f"""
v_cmp_lt_u32 vcc, 0x40e80000, v114
s_cmp_lg_u64 vcc, 0
s_cselect_b32 s{sFLAG}, 0x101, 1
""")
    def pflag(n):
        a(f"""
s_lshl_b32 s{t2}, s2, 4
s_add_u32 s{t2}, s{t2}, {F_FLG}
v_mov_b32 v1, s{sFLAG}
s_waitcnt vmcnt({n})
s_mov_b64 exec, 1
ds_add_rtn_u32 v1, v{VZ}, v1 offset:{mPD}
s_waitcnt lgkmcnt(0)
v_readfirstlane_b32 s{t1}, v1
s_add_u32 s{t1}, s{t1}, s{sFLAG}
s_and_b32 s{t0}, s{t1}, 255
s_cmp_eq_u32 s{t0}, 4
s_cbranch_scc0 KG_f
KG_e:
ds_read_b64 v[2:3], v{VZ} offset:{mE}
ds_read_b32 v1, v{VZ} offset:{mC3}
s_waitcnt lgkmcnt(0)
v_cmp_gt_u32 vcc, 4, v2
v_mul_f32 v1, v1, v3
s_cbranch_vccnz KG_e
v_cmp_nge_f32 vcc, 0x41680000, v1       ; !(14.5 >= e*c3)
s_lshl_b32 s{t0}, vcc_lo, 8
s_or_b32 s{t1}, s{t1}, s{t0}
s_cmp_gt_u32 s{t1}, 255
s_cselect_b32 s{t0}, 2, 0
s_xor_b32 s{t0}, s{sNON}, s{t0}
v_mov_b32 v1, s{t0}
buffer_store_dword v1, v{VZ}, {SR4(sR)}, s{t2} offen{SSC}
s_waitcnt vmcnt(1)
s_branch KG_f2
KG_f:
s_waitcnt vmcnt(0)
KG_f2:
s_mov_b64 exec, -1
""")
        pt('pfl')
    def mid():
        sdma(sA,0); pflag(8); arrive(mPI,1)
    if W2N<8:
        if WU1L:
            pflag(8-W2N); qfull("KGq",lambda: sdma(sA,0)); a("s_waitcnt vmcnt(0)"); arrive(mPI,1)
        else:
            sdma(sA,0); epi_consts(); pflag(16-W2N); arrive(mPI,1); qfull("KGq",lambda: 0)
    elif WU1L:
        if PFI==2: pflag(0)
        qfull("KGq",lambda: pflag(0)); sdma(sA,0); epi_consts(); a("s_waitcnt vmcnt(0)"); arrive(mPI,1)
    else: qfull("KGq",mid); epi_consts()
    gwait("KG_w3",mPD,4,VZ,1)
    w3rd(); trw()
    a("s_waitcnt lgkmcnt(0)"); ugemm(1)
    if FLP==1: gwait("KG_b2",mH,16,VZ,1)
    a(f"""
s_mov_b32 s{sLO}, {F_FLG}
buffer_load_dword v116, v110, {SR4(sR)}, s{sLO} offen{SC}
""")
    if PFP==2: pfp()
    if PFT:
        a(f"""
s_mul_i32 s{t1}, s{sW4}, {PFK*4}
v_mov_b32 v1, s{t1}
s_lshl_b32 s{t1}, s{t1}, 6
v_lshl_add_u32 v117, v{VL}, 2, s{t1}
ds_read_b32 v1, v1
ds_read_u16 v2, v117 offset:{WB}
v_mov_b32 v3, 0
s_waitcnt lgkmcnt(0)
v_cmp_lt_u32 vcc, v117, v1
s_or_b64 exec, vcc, 1
""")
        for k in range(PFT): a(f"buffer_load_dword v{QA+15}, v[2:3], {SR4(sP)}, 0 idxen offen offset:{3072+128*k}{SC}")
        a("s_mov_b64 exec, -1")
    a(f"""
s_mov_b32 s{sWU}, -1
s_or_b32 s{t1}, s{sNON}, 2
s_waitcnt vmcnt({(1 if PFP==2 else 0)+PFT})
KS_m:
v_or_b32 v2, 2, v116
v_cmp_ne_u32 vcc, s{t1}, v2
s_cbranch_vccz KS_n
s_sub_u32 s{sBUD}, s{sBUD}, 1
s_cbranch_scc1 KS_n
s_sleep {FSL}
s_mov_b64 exec, vcc
buffer_load_dword v116, v110, {SR4(sR)}, s{sLO} offen{SC}
s_mov_b64 exec, -1
s_waitcnt vmcnt(0)
s_branch KS_m
KS_n:
v_cmp_ne_u32 vcc, s{sNON}, v116
s_cbranch_vccz KS_o
ds_write_b32 v{VZ}, v{FA} offset:{mSLOW}
KS_o:
""")
    pt('flg')
    if PRIO: a("s_setprio 3")
    bar('b3')
    a(f"ds_read_b32 v1, v{VZ} offset:{mNT}\ns_waitcnt lgkmcnt(0)\nv_readfirstlane_b32 s{sNT}, v1")
    ranges()
    a("KF_J:")
    def rd_ga(off): a(f"ds_read_u16 v{GA0}, v{SB} offset:{GL+off}")
    def rd_gg(off): a(f"ds_read_u16 v{YA}, v{RB} offset:{GL+off}")
    ya=f"v_lshl_add_u32 v{EA}, v{YA}, 1, v{EC}\nv_add_u32 v{YA}, v{YA}, v{M4}"
    ry=f"ds_read_u16 v{VY}, v{YA} offset:{WB+2}"
    def rd_y(): a(ya); a(ry)
    def idx1(i): return f"ds_read_u16 v{IDX+2*i}, v{GA0} offset:{WB+4*i}"
    def rd_idx():
        for i in range(4): a(idx1(i))
    def dmai(i): return f"buffer_load_dwordx4 {P2(IDX+2*(i&3))}, {SR4(sP)}, {'0' if i<4 else 's'+str(s128)} idxen offen offset:{1024*(i&3)}{GSC} lds"
    def dma():
        for i in range(8):
            if i==0: a(f"s_mov_b32 m0, s{sBUF}\ns_nop 0")
            if i==4: a(f"s_add_u32 m0, s{sBUF}, 4096\ns_nop 0")
            a(dmai(i))
    def dma_h1(mid):
        a(f"s_add_u32 m0, s{sBUF}, 4096"); a(mid)
        for i in range(4,8): a(dmai(i))
        a(f"s_mov_b32 m0, s{sBUF}")
        rd_idx()
    def dma_idx():
        for i in range(4): a(dmai(i))
        dma_h1(ry)
    rd_b=f"ds_read_b128 {P4(B3+2)}, v{QAD}\nds_read_b128 {P4(B3+10)}, v{QAD} offset:512"
    rd_a3=f"ds_read_b64 {P2(A6)}, v{EA}\nds_read_b64 {P2(A6+2)}, v{VY} offset:{OH}\nds_read_b64 {P2(A6+4)}, v{EA}"
    def rd_a(t): return f"ds_read_b128 {P4(A+4*t)}, v{AR} offset:{4096*(t>>2)+(16*(t&1)+2*((t>>1)&1))*128}"
    def m4(z,q,j): return mfma4(z+4*j,A+16*(q>>1)+4*j+2*(q&1),None)
    rd_s=f"ds_read_b64 {P2(SS)}, v{SA2}\nds_read_b64 {P2(SS+2)}, v{SA2+1}"
    def AQ(q): return A6+2*(q&1)
    win=f"v_add3_u32 v{VY}, v{VY}, v{OH2}, s{sW8}\nv_lshl_add_u32 v{QAD}, s{sQ}, 6, v{QC}"
    rd_ga(0); rd_gg(0)
    a(f"""
ds_read_u16 v{WT}, v1 offset:{GL}
ds_read_b32 v{GP}, v{VZ} offset:{mSLOW}
s_waitcnt lgkmcnt(3)
""")
    rd_idx()
    a("s_waitcnt lgkmcnt(0)")
    dma()
    pt('d0')
    a(f"v_readlane_b32 s{sNF}, v{WT}, s{sCNT}\nv_readfirstlane_b32 s{t3}, v{GP}")
    rd_y(); rd_ga(16)
    a("s_waitcnt lgkmcnt(0)")
    rd_idx()
    a(f"""
s_cmp_lg_u32 s{t3}, 0
s_cbranch_scc1 KF_SLOW
s_lshr_b32 s{sNF}, s{sNF}, 8
v_subrev_u32 v2, s{sNF}, v{VL}
v_and_b32 v2, 15, v2
v_add_u32 v{DR}, s{sNF}, v2
v_lshlrev_b32 v2, 2, v{DR}
ds_read_b32 v{GP}, v2 offset:{BT}
s_and_b32 s{sQ}, s{sNF}, -2
s_lshl_b32 s{sQ}, s{sQ}, 3
s_sub_u32 s{sW8}, 0, s{sQ}
{win}
{rd_b}
{rd_a3}
""")
    rd_gg(16)
    a(f"""
v_lshrrev_b32 v{WT}, 9, v{WT}
v_lshlrev_b32 v{WT}, 4, v{WT}           ; 8*(w&~1)
v_mov_b32 v{SS}, 0
v_mov_b32 v{SS+1}, 0
v_mov_b32 v{SS+2}, 0
v_mov_b32 v{SS+3}, 0
v_mad_u32_u24 v{SA2}, v{SI2}, s{sT0}, v{SA2}
v_mad_u32_u24 v{SA2+1}, v{SI2+1}, s{sT0}, v{SA2+1}
s_add_u32 s{t1}, s{sT0}, s{sCNT}
s_lshl_b32 s{t1}, s{t1}, 7
s_add_u32 s{t2}, s{sWV}, 48
v_mov_b32 v1, s{t2}
{mfma32(ACC+16,SS,SS,None)}
s_waitcnt lgkmcnt(0)
""")
    rd_y(); rd_ga(32)
    a(f"""
v_cmp_gt_u32 vcc, s{t0}, v{GP}
v_cmp_gt_u32 {S2(t2)}, s{t1}, v{GP}
v_cmp_gt_u32 {S2(t0)}, s{sNN}, v{DR}
v_cndmask_b32 v{DR}, v{DR}, v1, vcc
s_cmp_lg_u64 vcc, 0
s_cselect_b32 s{sHEAD}, 1, 0
s_and_b64 vcc, {S2(t2)}, {S2(t0)}
v_lshlrev_b32 v1, 2, v{VL}
v_cndmask_b32 v{DR}, 56, v{DR}, vcc
v_lshrrev_b32 v2, 1, v{VL}
v_mul_u32_u24 v{DR}, {AS}, v{DR}
v_and_b32 v2, 24, v2
v_add_u32 v{DR}, v{DR}, v2
s_mul_i32 s{t0}, s{sNF}, {AS}
v_add_u32 v{eM0}, s{t0}, v1
s_sub_u32 s{sCNT}, s{sCNT}, 1
s_mov_b32 m0, s{sBUF}
""")
    pt('pre')
    a("s_waitcnt vmcnt(4)")
    pt('g0')
    for t in range(4): a(rd_a(t))
    a("s_waitcnt lgkmcnt(0)")
    for j in range(4): a(m4(Z[0],0,j))
    a("s_nop 3")
    a(mfma32(Z[0],AQ(0),B3,Z[0]))
    a("s_nop 9")
    pt('pro')
    def finals(qprev):
        for u in range(2): a(f"v_pk_mul_f32 {P2(NN+2*u)}, {P2(NN+2*u)}, {P2(DD+2*u)}")
        for u in range(2): a(f"v_cvt_pk_bf16_f32 v{GP+2*(qprev&1)+u}, v{NN+2*u}, v{NN+2*u+1}")
    def ex(zc,r): return f"v_exp_f32 v{EE+r}, v{zc+r}"
    def body(first):
        for q in range(4):
            zc=Z[q&1]; zn=Z[(q+1)&1]; qn=(q+1)&3
            pend=[0,1,2,3,8,9,10,11,4,5,12,13,6,7,14,15]
            f0=first and q==0
            if q==0: a(f"v_readlane_b32 s{sQ}, v{WT}, s{sCNT}")
            if q==3 or (first and q==1): a(f"s_waitcnt lgkmcnt(0)")
            for j in range(4):
                a(m4(zn,qn,j))
                a(f"v_rcp_f32 v{DD+j}, v{DD+j}" if not f0 else ex(zc,pend.pop(0)))
            agg=(q&1) and not (first and q==1)
            if agg:
                p=1 if q==1 else 0
                a(mfma32(ACC+16*p,GP,SS,None if first else ACC+16*p))
            for r in range(3 if SH3 else (4 if agg else 3)): a(ex(zc,pend.pop(0)))
            a(mfma32(zn,AQ(qn),B3+4*qn,zn))
            def bx():
                a(f"s_sub_u32 s{sW8}, 0, s{sQ}\ns_waitcnt vmcnt(0) lgkmcnt(0)\n{win}")
                rd_gg(32); rd_ga(48)
                a(rd_b); a(rd_a3); a(rd_s)
                for t in range(8): a(rd_a(t))
            if q==2 and XP==0: a(ex(zc,pend.pop(0))); bx()
            for r in range((4 if not (q==2 and XP==0) else 3)-SH3): a(ex(zc,pend.pop(0)))
            if q==2 and XP==1: bx()
            if f0:
                for i in range(4): a(dmai(i))
            if first and q==1: dma_h1("s_nop 0")
            if q==3:
                a(ya)
                if first: dma_idx()
                else:
                    a(f"s_cmp_gt_u32 s{sCNT}, 1\ns_cbranch_scc0 KF_lt")
                    dma_idx()
                    a("KF_lb:")
            if not f0: finals((q-1)&3)
            seq=[]
            for u in range(2): seq.append(f"v_pk_add_f32 {P2(DD+2*u)}, {P2(EE+8*u)}, 1.0 op_sel_hi:[1,0]")
            for m in range(1,4):
                for u in range(2):
                    src=(zc+8*u) if m==1 else NN+2*u
                    seq.append(f"v_pk_fma_f32 {P2(NN+2*u)}, {P2(src)}, {P2(EE+8*u+2*m)}, {P2(src)}")
                for u in range(2): seq.append(f"v_pk_fma_f32 {P2(NN+2*u)}, {P2(zc+8*u+2*m)}, {P2(DD+2*u)}, {P2(NN+2*u)}")
                for u in range(2): seq.append(f"v_pk_fma_f32 {P2(DD+2*u)}, {P2(DD+2*u)}, {P2(EE+8*u+2*m)}, {P2(DD+2*u)}")
            if len(pend) in (10,6): a(ex(zc,pend.pop(0)))
            slots={9:[0,1,2,3,4,6,8,10,12],8:[0,1,2,3,5,7,9,11],5:[1,4,7,10,12]}[len(pend)]
            for k,x in enumerate(seq):
                if f0 and k==H1P:
                    a("s_waitcnt vmcnt(4)")
                    for t in range(4,8): a(rd_a(t))
                a(x)
                if k in slots: a(ex(zc,pend.pop(0)))
            if q==2: a(f"v_pk_add_f32 {P2(RB)}, {P2(RB)}, {S2(sINC)}\nv_pk_add_f32 {P2(SA2)}, {P2(SA2)}, {P2(SI2)}")
    if PROF and 'dyn' in PTS: stamp(a,8); stamp(a,9,True)
    if PROF and 'clk' in PTS: stamp(a,6,True)
    n0=len(a.l)
    body(True)
    a("s_branch KF_LE\n.p2align 6\nKF_LOOP:")
    body(False)
    def keep(l):
        t=l.strip()
        if X&1 and t.startswith('buffer_load'): return False
        if X&2 and t.startswith('ds_read_b128 v[') and int(t.split('[')[1].split(':')[0])>=28: return False
        if X&8 and t.startswith('v_mfma'): return False
        if X&16 and t.startswith('v_pk_fma'): return False
        if X&32 and t.startswith('v_exp'): return False
        return True
    a.l[n0:]=[l for l in a.l[n0:] if keep(l)]
    import re
    if UNP:
        L=[]; cnt=0
        for l in a.l[n0:]:
            m=re.match(r"\s*v_pk_fma_f32 v\[(\d+):\d+\], v\[(\d+):\d+\], v\[(\d+):\d+\], v\[(\d+):\d+\]",l)
            if m:
                cnt+=1
                d,x,y,z=map(int,m.groups())
                if UNP==1 or (UNP==2 and cnt%2==0) or (UNP==3 and d>=DD):
                    for k in range(2):
                        L.append(f"    v_fmac_f32 v{d+k}, v{x+k}, v{y+k}" if d==z else f"    v_fma_f32 v{d+k}, v{x+k}, v{y+k}, v{z+k}")
                    continue
            L.append(l)
        a.l[n0:]=L
    if X&(128|256|512|1024):
        L=[]
        for l in a.l[n0:]:
            m=re.match(r"\s*v_mfma_f32_32x32x16_bf16 v\[(\d+):\d+\], v\[(\d+):\d+\], v\[(\d+):\d+\], (.*)",l)
            if m and int(m.group(1))<ACC:
                d,x,y=int(m.group(1)),int(m.group(2)),int(m.group(3))
                if X&128:
                    if y==ID0: L+=["    "+mfma16(d+4,x,ID0,None),"    "+mfma16(d+8,x,ID1,None)]
                    elif y==ID1: L.append("    "+mfma16(d+12,x,ID0,None))
                    else: L.append("    "+mfma16(d,x,y,None))
                if X&1024:
                    if y in (ID0,ID1):
                        o=0 if y==ID0 else 8
                        for k in range(2): L.append(f"    v_mfma_f32_4x4x4_16b_bf16 v[{d+o+4*k}:{d+o+4*k+3}], v[{x+2*k}:{x+2*k+1}], v[{ID0}:{ID0+1}], v[{d+o+4*k}:{d+o+4*k+3}]")
                    else: L.append(l)
                if X&256:
                    if y!=ID1: L.append(l)
                if X&512:
                    if y==ID0: L.append(f"    v_mfma_f32_32x32x64_f8f6f4 v[{d}:{d+15}], v[{x}:{x+7}], v[{ID0}:{ID0+7}], v[{d}:{d+15}]")
                    elif y!=ID1: L.append(l)
            else: L.append(l)
        a.l[n0:]=L
    a("KF_LE:")
    if PRIO: a(f"s_bitcmp1_b32 42, s{sCNT}\ns_cbranch_scc1 KF_pr\nKF_pb:")
    a(f"""
s_sub_u32 s{sCNT}, s{sCNT}, 1
s_cbranch_scc0 KF_LOOP
""")
    def loop_tails():
        a(f"KF_lt:\ns_cmp_eq_u32 s{sCNT}, s{sWU}\ns_cbranch_scc0 KF_lb")
        sdma(sA,32768,0,WV)
        a(f"""
s_branch KF_lb
KF_pr:
""")
        if PROF and 'dyn' in PTS:
            a("s_mov_b32 s90, s92\ns_mov_b32 s91, s93\ns_mov_b32 s92, s94\ns_mov_b32 s93, s95\ns_mov_b32 s94, s96\ns_mov_b32 s95, s97")
            stamp(a,8); stamp(a,9,True)
        a(f"""
s_setprio 2
s_cmp_eq_u32 s{sCNT}, 5
s_cbranch_scc1 KF_pb
s_setprio 1
s_cmp_eq_u32 s{sCNT}, 3
s_cbranch_scc1 KF_pb
s_setprio 0
s_branch KF_pb
""")
    a(f"""
s_lshl_b32 s{t0}, s{sW4}, 2
v_mov_b32 v1, s{t0}
s_cmp_ge_u32 s{sWV}, 4
s_cbranch_scc1 KF_w0
ds_write_b32 v1, v{TP} offset:{mWU}
s_branch KF_w1
KF_w0:
ds_read_b32 v2, v1 offset:{mWU}
s_waitcnt lgkmcnt(0)
v_cmp_eq_u32 vcc, 0, v2
s_cbranch_vccnz KF_w0
KF_w1:
""")
    def trw2(): trfrag(A,TP,0,2048,256); trfrag(A+16,TP,8,2048,256)
    trw2()
    for j in range(4): a(f"v_rcp_f32 v{DD+j}, v{DD+j}")
    a("s_nop 0")
    finals(3)
    a("s_nop 1")
    a(mfma32(ACC+16,GP,SS,ACC+16))
    pt('loop')
    if PROF and 'clk' in PTS: stamp(a,7,True)
    def epst():
        a(f"""
s_or_b32 s{t1}, s2, s{sWV}
s_cbranch_scc1 KF_e2
v_mov_b32 v2, s{sNON}
s_mov_b64 exec, 1
buffer_store_dword v2, v{VZ}, {SR4(sR)}, 0 offen{ESC}
s_mov_b64 exec, -1
KF_e2:
""")
    for p in range(2):
        for j in range(4):
            c=ACC+16*p+4*j
            a(f"v_cvt_pk_bf16_f32 v{c}, v{c}, v{c+1}\nv_cvt_pk_bf16_f32 v{c+1}, v{c+2}, v{c+3}")
        for j in range(4): a(f"ds_write_b64 v{DR}, {P2(ACC+16*p+4*j)} offset:{AGB+128*p+32*j}")
    a(f"""
s_cmp_eq_u32 s{sHEAD}, 0
""")
    pt('dmp')
    bar('be',"s_waitcnt vmcnt(0) lgkmcnt(0)")
    a(f"""
s_cbranch_scc1 KF_FIN
ds_read_b32 v4, v{eM0} offset:{AGB}
ds_read_b32 v5, v{eM1} offset:{AGB+48*AS}
""")
    a(f"""
s_waitcnt lgkmcnt(0)
v_lshlrev_b32 v6, 16, v4
v_and_b32 v7, 0xffff0000, v4
v_lshlrev_b32 v8, 16, v5
v_and_b32 v9, 0xffff0000, v5
v_pk_add_f32 v[6:7], v[6:7], v[8:9]
v_cvt_pk_bf16_f32 v6, v6, v7
ds_write_b32 v{eM0}, v6 offset:{AGB}
KF_FIN:
""")
    a(f"s_cmp_ge_u32 s{sWV}, 4")
    if EP_==0: epst()
    bar('mrg')
    def EXP(rs): return [f"v_exp_f32 v{EE+i}, v{UA+i}" for i in rs]
    def RCP(rs): return [f"v_rcp_f32 v{EE+i}, v{EE+i}" for i in rs]
    def FMA(rs): return [f"v_fma_f32 v{EE+i}, v{EE+i}, s{sL2E}, s{sL2E}" for i in rs]
    def FIN(tau):
        e=EE+8*tau; c=UA+8*tau
        return [f"v_pk_mul_f32 {P2(e+2*j)}, {P2(e+2*j)}, {P2(c+2*j)}" for j in range(4)]+[f"v_cvt_pk_bf16_f32 v{e+j}, v{e+2*j}, v{e+2*j+1}" for j in range(4)]+[f"ds_write_b128 v{eOW}, {P4(e)} offset:{tau*4096}"]
    def PFM(rs): return [f"v_pk_fma_f32 {P2(EE+i)}, {P2(EE+i)}, {S2(sL2E)}, {S2(sL2E)}" for i in rs]
    XE=Z[0]
    for tau in range(2):
        for s_ in range(4): a(f"ds_read_b128 {P4(XE+16*tau+4*s_)}, v{eFA} offset:{AGB+tau*16*AS+64*s_}")
    for k,(x,y) in enumerate(zip(um(0,0,0,XE,True,A),um(0,0,1,XE,True,A))): a(f"s_waitcnt lgkmcnt({7-k})"); a(x); a(y)
    a("s_waitcnt lgkmcnt(0)"); pt('e1'); a("s_cbranch_scc1 KF_eg")
    for r in range(2):
        if r==1: a("KF_eg:")
        for x,y in zip(um(r,1,0,XE+16,True,A),um(r,1,1,XE+16,True,A)): a(x); a(y)
        pt('e2')
        if r==0:
            for x in EXP(range(8))+FMA(range(8))+RCP(range(8))+EXP(range(8,16))+FIN(0)+PFM(range(8,16,2))+RCP(range(8,16))+["s_nop 0"]+FIN(1): a(x)
            a("s_branch KF_ej")
        else:
            for x in EXP(list(range(8))+[8,12])+PFM((0,2,4,6,8,12))+RCP(list(range(8))+[8,12])+FIN(0): a(x)
            a(f"""
v_mul_f32 v{EE+8}, v{EE+8}, v{UA+8}
v_mul_f32 v{EE+12}, v{EE+12}, v{UA+12}
s_mov_b64 exec, 0xffff
v_cvt_pk_bf16_f32 v{EE+8}, v{EE+8}, v{EE+12}
ds_write_b16 v{eN48}, v{EE+8}
ds_write_b16_d16_hi v{eN48}, v{EE+8} offset:8
s_mov_b64 exec, -1
""")
    a(f"KF_ej:\ns_cmp_lt_u32 s{sWV}, 5")
    pt('e3')
    bar('sil')
    a(f"""
ds_read_b128 {P4(A)}, v{eRD}
s_cbranch_scc0 KF_e1
ds_read_b128 {P4(A+4)}, v{eRD} offset:8192
s_mov_b64 exec, {S2(sE2)}
s_waitcnt lgkmcnt(0)
buffer_store_dwordx4 {P4(A+4)}, v{eST}, {SR4(sX)}, s{sE1} offen{OSC}
s_mov_b64 exec, -1
KF_e1:
s_waitcnt lgkmcnt(0)
buffer_store_dwordx4 {P4(A)}, v{eST}, {SR4(sX)}, s{sE0} offen{OSC}
""")
    pt('sto')
    a(f"""
""")
    if PROF: a("s_waitcnt vmcnt(0)")
    stamp(a,10); stamp(a,11,True)
    stamp_out(a,1,sWV)
    a("KF_END:\ns_endpgm")
    loop_tails()
    hist_retry(8,"KT_h",True)
    a("KF_CEND:")
    SV=ACC; AGs=SV+8; RS_=SV+16
    a(f"""
KF_SLOW:
s_setprio 0
s_cmp_ge_u32 s{sWV}, 4
s_cselect_b32 s{sTOT}, 0, s{sTOT}
v_mov_b32 v1, s{sTOT}
ds_max_u32 v{VZ}, v1 offset:{mMX}
v_mov_b32 v{SS}, 0
v_mov_b32 v{SS+1}, 0
v_mov_b32 v{SS+2}, 0
v_mov_b32 v{SS+3}, 0
s_mov_b32 s{sLO}, 0
s_mov_b32 s{sLB}, s{sBUF}
s_sub_u32 s{t0}, s{sWV}, s{sT0}
s_lshl_b32 s{t0}, s{t0}, 4
v_add_u32 v{SV+4}, s{t0}, v{RB}
v_add_u32 v{SV+5}, s{t0}, v{SB}
s_lshl_b32 s{t0}, s{sWV}, 4
v_sub_u32 v{SV+6}, s{t0}, v{OHC}
v_and_b32 v{SV+7}, 28, v{VL}
v_and_b32 v1, 3, v{VL}
v_lshlrev_b32 v1, 2, v1
v_lshl_or_b32 v{SV+7}, v{SV+7}, 3, v1
v_lshlrev_b32 v1, 4, v0
""")
    for j in range(3): a(f"ds_write_b128 v1, {P4(SS)} offset:{AGG+j*8192}")
    a(f"""
v_lshlrev_b32 v1, 4, v{VL}
ds_write_b128 v1, {P4(SS)} offset:{AGG+3*8192}
s_waitcnt vmcnt(0) lgkmcnt(0)
s_barrier
ds_read_b32 v1, v{VZ} offset:{mMX}
s_waitcnt lgkmcnt(0)
v_readfirstlane_b32 s{sRND}, v1
KF_SR:
s_cmp_lt_u32 s{sLO}, s{sRND}
s_cbranch_scc0 KF_SE
s_barrier
v_lshlrev_b32 v1, 2, v{VL}
v_lshlrev_b32 v2, 8, v{VL}
ds_write_b32 v1, v2
s_waitcnt lgkmcnt(0)
s_barrier
s_cmp_ge_u32 s{sWV}, 4
s_cbranch_scc1 KF_S1
s_movk_i32 s{t3}, 256
""")
    expand("KF_x")
    a(f"s_sub_u32 s{t1}, s{sTOT}, s{sLO}")
    reclist(4)
    recload(4,"KF_rl")
    for i in range(4): a(f"s_mov_b64 {S2(sM+8+2*i)}, {S2(sM+2*i)}")
    hist(4,"KF_h",0,False)
    a("s_waitcnt lgkmcnt(0)")
    for i in range(4):
        a(f"""
v_mov_b32 v{RS_+4*i}, v{RC+4*i}
v_mov_b32 v{RS_+4*i+1}, v{RC+4*i+1}
v_mov_b32 v{RS_+4*i+2}, v{RC+4*i+2}
v_lshlrev_b32 v1, 6, v{RC+4*i+3}
v_sub_u32 v1, v{RK+i}, v1
v_cndmask_b32 v{RS_+4*i+3}, -1, v1, {S2(sM+8+2*i)}
""")
    a(f"""
KF_S1:
s_mov_b32 s{sHEAD}, 0                    ; 256*k
KF_SK:
s_waitcnt lgkmcnt(0)
s_barrier
s_cmp_ge_u32 s{sWV}, 4
s_cbranch_scc1 KF_S2
s_mov_b32 s{t1}, {EB}
""")
    for i in range(4):
        a(f"""
v_subrev_u32 v1, s{sHEAD}, v{RS_+4*i+3}
v_lshrrev_b32 v2, 19, v{RS_+4*i+2}
v_lshl_add_u32 v2, v2, 8, v1
v_lshl_add_u32 v3, v2, 1, s{t1}
v_cmpx_gt_u32 vcc, 0x100, v1
ds_write_b32 v2, v{RS_+4*i+2} offset:{WB}
ds_write_b64 v3, {P2(RS_+4*i)}
s_mov_b64 exec, -1
""")
    a("KF_S2:")
    scan(True)
    a(f"s_cmp_lg_u64 {S2(t2)}, 0\ns_cselect_b32 s{sFLAG}, 1, 0")
    fill("KFs",True,8)
    a(f"""
s_add_u32 s{sNT}, s{t0}, 127
s_lshr_b32 s{sNT}, s{sNT}, 7
s_waitcnt lgkmcnt(0)
s_barrier
v_mov_b32 v{RB}, v{SV+4}
v_mov_b32 v{SB}, v{SV+5}
v_mov_b32 v{SV+12}, v{SV+6}
s_mov_b32 s{sI}, s{sWV}
KF_SL:
s_cmp_lt_u32 s{sI}, s{sNT}
s_cbranch_scc0 KF_SN
""")
    rd_ga(0); rd_gg(0)
    for j in range(4): a(f"ds_read_u16 v{AGs+j}, v{SV+12} offset:{GL+2*j}")
    a("s_waitcnt lgkmcnt(0)")
    rd_y(); rd_idx()
    a("s_waitcnt lgkmcnt(0)")
    dma()
    for j in range(4): a(f"v_lshrrev_b32 v{AGs+j}, 8, v{AGs+j}")
    a(f"""
v_readfirstlane_b32 s{sQ}, v{AGs}
s_nop 3
s_and_b32 s{sQ}, s{sQ}, -2
s_lshl_b32 s{sQ}, s{sQ}, 3
s_sub_u32 s{sW8}, 0, s{sQ}
{win}
{rd_b}
{rd_a3}
""")
    for j in range(4): a(f"v_lshl_add_u32 v{AGs+j}, v{AGs+j}, 9, v{SV+7}")
    a("s_waitcnt vmcnt(0) lgkmcnt(0)")
    for t in range(8): a(rd_a(t))
    a("s_waitcnt lgkmcnt(0)")
    for q in range(4):
        z=Z[0]
        for j in range(4): a(m4(z,q,j))
        a("s_nop 3"); a(mfma32(z,AQ(q),B3+4*q,z))
        a("s_nop 15")
        for r in range(16): a(f"v_exp_f32 v{EE+r}, v{z+r}")
        for r in range(16): a(f"v_add_f32 v{EE+r}, 1.0, v{EE+r}")
        for r in range(16): a(f"v_rcp_f32 v{EE+r}, v{EE+r}")
        for m in range(4):
            for u in range(2):
                for par in range(2):
                    r=8*u+2*m+par; g=GP+2*u+par
                    a(f"v_mul_f32 v{g}, v{z+r}, v{EE+r}" if m==0 else f"v_fmac_f32 v{g}, v{z+r}, v{EE+r}")
        for j in range(4): a(f"ds_add_f32 v{AGs+j}, v{GP+j} offset:{AGG+256*(q>>1)+16*(q&1)}")
        a("s_waitcnt lgkmcnt(0)")
    a(f"""
v_add_u32 v{SB}, 128, v{SB}
v_add_u32 v{RB}, 128, v{RB}
v_add_u32 v{SV+12}, 128, v{SV+12}
s_add_u32 s{sI}, s{sI}, 8
s_branch KF_SL
KF_SN:
s_add_u32 s{sHEAD}, s{sHEAD}, 256
s_cmp_lg_u32 s{sFLAG}, 0
s_cbranch_scc1 KF_SK
s_add_u32 s{sLO}, s{sLO}, 256
s_branch KF_SR
KF_SE:
s_cmp_ge_u32 s{sWV}, 4
s_cbranch_scc1 KF_SE2
""")
    sdma(sA,32768,0,WV)
    a(f"""
KF_SE2:
v_lshlrev_b32 v1, 4, v0
v_lshrrev_b32 v2, 5, v0
s_waitcnt vmcnt(0) lgkmcnt(0)
s_barrier
""")
    for j in range(4): a(f"ds_read_b128 {P4(A+4*j)}, v1 offset:{AGG+j*8192}")
    a(f"""
v_mul_u32_u24 v2, {AS}, v2
v_and_b32 v3, 31, v0
v_lshl_add_u32 v4, v3, 3, v2
s_waitcnt lgkmcnt(0)
s_barrier
""")
    for j in range(4):
        a(f"v_cvt_pk_bf16_f32 v{A+4*j}, v{A+4*j}, v{A+4*j+1}\nv_cvt_pk_bf16_f32 v{A+4*j+1}, v{A+4*j+2}, v{A+4*j+3}")
        a(f"ds_write_b64 v4, {P2(A+4*j)} offset:{AGB+j*16*AS}")
    trw2()
    a("s_branch KF_FIN")
    hist_retry(4,"KF_h",False)
    return a.text()

if __name__=='__main__':
    import sys
    nm='standalone__mpnn_edge_mlp__graph_kernel'
    hdr=open('standalone__mpnn_edge_mlp__graph.s.ref').read().split('; Override')[0]
    out=hdr+(f"; @launch kernel={nm} grid=(256,1,1) block=(512,1,1) lds={KF_LDS}\n" if os.environ.get('LISTF') else f"; @launch grid=(256,1,1) block=(512,1,1) lds={KF_LDS}\n")
    out+='.amdgcn_target "amdgcn-amd-amdhsa--gfx950"\n.text\n'
    out+=f".globl {nm}\n.p2align 8\n.type {nm},@function\n"+gen_kf(nm)
    out+='.section .rodata,"a"\n.p2align 6\n'+kd(nm,256)
    open(sys.argv[1],'w').write(out)
```

```python
from common import *
X=int(os.environ.get('X','0'))
PRIO=int(os.environ.get('PRIO','1'))
DSP=[int(c,36) for c in os.environ.get('DSP','00000000')]
def EV(n,d): return int(os.environ.get(n,d))
TPOS=EV('TPOS',6); PFP=EV('PFP',3); XORD=EV('XORD',1); WUI=EV('WUI',2); FLP=EV('FLP',1); FSL=EV('FSL',8); TE=1; NW=EV("NW",1); RWI=EV("RWI",0); US=EV("US",0); TP_=EV("TP",7); SWU=EV("SWU",0); EO=EV("EO",0); NS=EV("NS",7); NE=EV("NE",3); FR=EV('FR',8); FS=EV('FS',2); W1N=EV('W1N',5); GP_=EV('GP',1); NT=os.environ.get('NT',''); CLM=EV('CLM',0); CLW=EV('CLW',1); SLP=EV('SLP',1); H1P=EV('H1P',10); SH3=EV('SH3',0); EP_=EV('EP',1); ESC=os.environ.get('ESC',''); PERM=EV('PERM',0); W2N=EV('W2N',8); UL=EV('UL',0); WU1L=EV('WU1L',0); W1E=EV('W1E',0); ZL=EV('ZL',0); FST=EV('FST',0); UNP=EV('UNP',0); TLB=EV('TLB',0); DBGP=EV('DBGP',0); ALN=EV('ALN',0); PFT=EV('PFT',1); PFK=EV('PFK',7); PF0=EV('PF0',0); PFN=EV('PFN',16); XP=EV('XP',0); PFI=EV('PFI',0); SWW=EV('SWW',1)
PTS=os.environ.get('PTS','b1,bS,tp,pfl,rl,b2,b3,pro').split(',')
SC=os.environ.get('LSC',' sc1')
SSC=os.environ.get('SSC',' sc1')
OSC=os.environ.get('OSC',' sc1')
GSC=os.environ.get('GSC',' sc1')
NPROD=250; EP=1600; RST=EP*16
F_P=0x1000; F_FLG=0x9C0000; F_TBL=0x330000; F_REC=0x380000; F_SIZE=0xA00000
PB0=0x1000000 if PROF else 0; PSL=EV('PSL',0xA00000); NSL=(0x10000000-PB0-F_SIZE)//PSL+1
assert F_REC+256*RST<=F_SIZE and F_TBL+256*1024<=F_REC
CNT=0; MISC=256; OH=400; GL=928; BT=1872; STB=2144; RS=944
mSLOW=MISC; mS=MISC+4; mGX=MISC+8; mGP=MISC+12; mC3=MISC+16; mPD=MISC+20; mSL=MISC+24; mMX=MISC+28; mPI=MISC+32; mH=MISC+36; mNT=MISC+40; mW=MISC+44; mE=MISC+48; mEM=MISC+52; mNO=MISC+56; mPS=MISC+60; mWU=MISC+64
AGB=17408
W3L=AGB+56*256
Q2=AGB+16384; QS=52*128
S1=Q2; ERAW=Q2+12800
WB=Q2+4*QS; NULLG=49*256; EB=WB+NULLG+16
HIST=WB; PSC=WB+2048
GBUF=98304
KF_LDS=GBUF+65536
assert EB+2*NULLG+32<=GBUF and STB+16*RS<=AGB
AGG=STB
ONE2=0x3F803F80
NULLW2=0xFFFF|(512<<16)
CAPT=58
ID0=4; ID1=8; B3=12; A=28; Z=[60,76]; A3=92; EE=96; NN=112; DD=116; GP=120; SS=124
IDX=128; AR=144; RB=152; SB=153; SA=154; VY=155; OHC=156; VL=157; WT=158; DR=159
ACC=160; WU2=192; UA=208; WF=160; WU1=176; QA=224; RC=96; XF=28; GA=192
TP=143; WV=151; A6=244; QAD=250; QC=145; SA2=146; SI2=148; OH2=150; GA0=232; YA=234; EA=235; M4=236; EC=237; VZ=238; PO=92; TRU=240; TD=241; TC=242; TO=243; RK=244; FA=252
sP=24; sX=28; sA=32; sR=36; sM=40
sWV=56; sK=57; sNN=58; sI=59; sNT=60; sBUF=61; sQ=62; sW8=63; sCNT=64; sT0=65
sL2E=66; sINC=68; sRND=70; sTOT=71; sNON=72; sBUD=73; sW4=74; sLB=75
sWU=3; sW4K=22; sPO=23; sFLAG=76; sLO=77; sMA=78; sQ2=80; s128=81; sHEAD=82; sNF=83
t0,t1,t2,t3=84,85,86,87
BUDGET=100000
sNB=2 if PERM else sK

def mfma32(d,x,y,c): return f"v_mfma_f32_32x32x16_bf16 v[{d}:{d+15}], v[{x}:{x+3}], v[{y}:{y+3}], "+("0" if c is None else f"v[{c}:{c+15}]")
def mfma16(d,x,y,c): return f"v_mfma_f32_16x16x32_bf16 v[{d}:{d+3}], v[{x}:{x+3}], v[{y}:{y+3}], "+("0" if c is None else f"v[{c}:{c+3}]")
def mfma4(d,x,c): return f"v_mfma_f32_4x4x4_16b_bf16 v[{d}:{d+3}], v[{x}:{x+1}], v[{ID0}:{ID0+1}], "+("0" if c is None else f"v[{c}:{c+3}]")
def P2(r): return f"v[{r}:{r+1}]"
def P4(r): return f"v[{r}:{r+3}]"
def S2(r): return f"s[{r}:{r+1}]"
def SR4(r): return f"s[{r}:{r+3}]"

def gen_kf(name):
    a=Asm()
    def pt(n):
        if PROF and n in PTS: stamp(a,2+PTS.index(n))
    def ret(n):
        if PROF and n in PTS: a(f"s_sub_u32 s{90+PTS.index(n)}, {BUDGET}, s{sBUD}\ns_mul_i32 s{90+PTS.index(n)}, s{90+PTS.index(n)}, 100")
    def bar(n,w="s_waitcnt lgkmcnt(0)"):
        a(w+"\ns_barrier"); pt(n)
    def gsync(n,lab,off,target,va,vt,pre=None):
        if pre: a(pre)
        a(f"""
v_mov_b32 v{vt}, 1
s_mov_b64 exec, 1
ds_add_u32 v{va}, v{vt} offset:{off}
s_mov_b64 exec, -1
{lab}:
ds_read_b32 v{vt}, v{va} offset:{off}
s_waitcnt lgkmcnt(0)
v_readfirstlane_b32 s{t1}, v{vt}
s_and_b32 s{t1}, s{t1}, 255
s_cmp_lt_u32 s{t1}, {target}
s_cbranch_scc1 {lab}
""")
        pt(n)
    def gwait(lab,off,target,va,vt):
        if SLP: a(f"s_branch {lab}_\n{lab}:\ns_sleep {SLP}\n{lab}_:")
        else: a(f"{lab}:")
        a(f"""
ds_read_b32 v{vt}, v{va} offset:{off}
s_waitcnt lgkmcnt(0)
v_readfirstlane_b32 s{t1}, v{vt}
s_and_b32 s{t1}, s{t1}, 255
s_cmp_lt_u32 s{t1}, {target}
s_cbranch_scc1 {lab}
""")
    def consts():
        srd(a,sP,20,N,off=PB0+F_P-3072,stride=256)
        srd(a,sR,20,F_SIZE,off=PB0)
        a(f"""
s_cmp_lt_u32 s{sNB}, {N-256*48}
s_cselect_b32 s{sNN}, 49, 48
s_mov_b32 s{sL2E}, {hex(LOG2E_NEG)}
s_mov_b32 s{sL2E+1}, {hex(LOG2E_NEG)}
s_mov_b32 s{sINC}, 16
s_mov_b32 s{sINC+1}, 16
s_mov_b32 s{sMA}, 0x0000ffff
s_mov_b32 s{sMA+1}, 0x0000ffff
s_mov_b32 s{sQ2}, {Q2}
s_mov_b32 s{sBUD}, {BUDGET}
v_lshrrev_b32 v2, 5, v{VL}              ; h
; g = 4 b2 + 2 b4 + b0 ; m = 2 b3 + b1 ; slot = 16 b2 + 4 m + (g&3)
v_lshrrev_b32 v1, 3, v{VL}
v_and_b32 v1, 2, v1
v_and_or_b32 v1, v{VL}, 5, v1           ; g
v_lshlrev_b32 v{RB}, 1, v1
v_lshlrev_b32 v3, 1, v{VL}
v_and_b32 v3, 4, v3
v_and_or_b32 v{M4}, v{VL}, 8, v3        ; 4m
v_lshlrev_b32 v{EC}, 1, v{M4}
v_add_u32 v{EC}, {EB}, v{EC}
v_and_b32 v{WT}, 15, v{VL}              ; n / c16
v_lshlrev_b32 v3, 1, v3
v_and_or_b32 v3, v{VL}, 1, v3
v_lshl_or_b32 v3, v2, 2, v3
v_lshl_add_u32 v{AR}, v3, 7, s{sBUF}
v_bfe_u32 v1, v{VL}, 1, 1
v_bfe_u32 v3, v{VL}, 2, 3
v_xor_b32 v1, v1, v3
v_lshl_add_u32 v{AR}, v1, 4, v{AR}
v_mul_i32_i24 v{OHC}, -8, v2
v_mul_u32_u24 v{SA}, {RS}, v{WT}
v_and_b32 v1, 1, v{VL}
v_lshlrev_b32 v1, 4, v1
v_mov_b32 v3, 0x3f80
v_lshlrev_b32 v1, v1, v3
""")
        a(f"s_mov_b32 vcc_lo, 0x33333333\ns_mov_b32 vcc_hi, 0x33333333\nv_cndmask_b32 v{ID0}, 0, v1, vcc\nv_sub_u32 v{ID0+1}, v1, v{ID0}")
        a(f"""
v_lshrrev_b32 v2, 4, v{VL}              ; a / g
v_lshrrev_b32 v{SB}, 2, v{VL}
v_and_b32 v{SB}, 14, v{SB}
v_and_b32 v1, 7, v{VL}
v_lshlrev_b32 v1, 4, v1
s_movk_i32 s{s128}, 128
""")
        for i in range(4): a(f"v_xor_b32 v{IDX+2*i+1}, {(i&1)*16+3072-1024*i}, v1")
        a(f"v_xor_b32 v3, v2, v{WT}\nv_lshlrev_b32 v3, 4, v3\nv_lshl_add_u32 v3, v{WT}, 8, v3\nv_add_u32 v{FA}, {AGB}, v3")
        for s in range(1,4): a(f"v_xor_b32 v{FA+s}, {64*s}, v{FA}")
        a(f"""
s_lshl_b32 s{t0}, s{sW4}, 13
s_add_u32 s{t0}, s{t0}, {GBUF}
s_lshr_b32 s{t1}, s{sWV}, 2
v_lshrrev_b32 v1, 2, v{WT}
v_lshl_add_u32 v1, v2, 3, v1
v_lshl_add_u32 v{DR}, v1, 6, s{t0}
v_xor_b32 v2, s{t1}, v2
v_and_b32 v2, 1, v2
v_and_b32 v3, 3, v{VL}
v_lshl_add_u32 v{TRU}, v2, 5, v{DR}
v_lshl_add_u32 v{TRU}, v3, 3, v{TRU}
v_lshrrev_b32 v2, 3, v{VL}
v_and_b32 v2, 2, v2
v_xor_b32 v2, v2, v3
v_lshl_add_u32 v{TP}, v2, 4, v{DR}
""")
    def slot():
        a(f"""
s_mul_i32 s{sPO}, s{sNON}, 0x9E3779B1
s_mul_hi_u32 s{sPO}, s{sPO}, {NSL}
s_mul_i32 s{sPO}, s{sPO}, {PSL}
s_add_u32 s{sP}, s{sP}, s{sPO}
s_addc_u32 s{sP+1}, s{sP+1}, 0
s_add_u32 s{sR}, s{sR}, s{sPO}
s_addc_u32 s{sR+1}, s{sR+1}, 0
""")
    def vyc(VY=VY):
        a(f"""
v_lshrrev_b32 v1, 4, v{VL}
v_and_b32 v1, 2, v1
v_xor_b32 v1, v1, v{VL}
v_and_b32 v1, 3, v1
v_lshlrev_b32 v1, 4, v1
v_lshrrev_b32 v2, 2, v{VL}
v_lshl_or_b32 v{VY}, v2, 8, v1
""")
    def trfrag(dst,addr,off,ks,hs):
        for s in range(4):
            a(f"ds_read_b64_tr_b16 {P2(dst+4*s)}, v{addr} offset:{off+s*ks}\nds_read_b64_tr_b16 {P2(dst+4*s+2)}, v{addr} offset:{off+s*ks+hs}")
    def tru(dst,off): trfrag(dst,TRU,off,2048,256)
    def sdma(sr,moff,loff=0,v=VY,js=range(8)):
        a(f"s_lshl_b32 s{t0}, s{sW4}, 6")
        for j in js:
            a(f"s_add_u32 m0, s{sBUF}, {loff+j*1024}\ns_add_u32 s{t1}, s{t0}, {moff+j*4096}\nbuffer_load_dwordx4 v{v}, {SR4(sr)}, s{t1} offen lds")
    def xfrags(Ts):
        for T in Ts:
            for s in range(4): a(f"ds_read_b128 {P4(XF+16*T+4*s)}, v{FA+s} offset:{T*4096}")
    def trw(): trfrag(WF,TP,32768,2048,256); trfrag(WF+16,TP,32768+8,2048,256)
    def um(r,tau,i,xf,acc,WF=WF):
        L=[]
        for s in range(4):
            w,x=WF+16*i+4*s,xf+4*s
            d=UA+8*tau+4*i
            L.append(mfma16(d,*((x,w) if (r,tau)==(1,1) else (w,x)),d if (acc or s) else None))
        return L
    def ugemm(r):
        for tau in range(2):
            for i in range(2):
                for x in um(r,tau,i,XF+16*(2*r+tau),False): a(x)
        a("s_nop 4")
        for j in ((0,2,4,6,8,10,12,14) if r==0 else (0,2,4,6,8,12)): a(f"v_pk_mul_f32 {P2(UA+j)}, {P2(UA+j)}, {S2(sL2E)}")
    def w3rd():
        a(f"v_lshlrev_b32 v1, 3, v{VL}")
        for q in range(4): a(f"ds_read_b64 {P2(B3+4*q+2*(q&1))}, v1 offset:{W3L+q*512}")
    F=A3
    def scan(slow):
        a(f"""
v_lshlrev_b32 v1, 2, v{VL}
ds_read_b32 v{F}, v1
v_cmp_gt_u32 vcc, s{sNN}, v{VL}
v_lshlrev_b32 v{F+1}, 8, v{VL}
s_waitcnt lgkmcnt(0)
v_sub_u32 v{QA}, v{F}, v{F+1}
""")
        if slow:
            a(f"""
s_movk_i32 s{t1}, 256
v_subrev_u32 v{QA}, s{sHEAD}, v{QA}
v_cmp_lt_i32 {S2(t2)}, s{t1}, v{QA}
v_med3_i32 v{QA}, v{QA}, 0, s{t1}
v_add_u32 v{F}, v{F+1}, v{QA}
""")
        a(f"""
v_add_u32 v3, 12, v{QA}
v_and_b32 v3, -16, v3
v_max_u32 v3, 80, v3
v_cndmask_b32 v3, 0, v3, vcc
v_mov_b32 v2, v3
""")
        dpp_scan(a,"v_add_u32",[2])
        a(f"""
v_readlane_b32 s{t0}, v2, 63
v_sub_u32 v2, v2, v3
""")
    def fill(lab,slow,nw):
        a(f"""
s_lshl_b32 s{t1}, s{sWV}, 4
v_add_u32 v{QA+1}, s{t1}, v2
v_lshrrev_b32 v{QA+1}, 3, v{QA+1}       ; 2*(G0+w)
v_add_u32 v{F+1}, s{t1}, v{F+1}         ; 256n+16w
v_subrev_u32 v{QA+2}, s{t1}, v3         ; g16-16w
""")
        if not slow: a(f"v_add_u32 v{QA+3}, v{QA+1}, v{SA}\nv_mov_b32 v{F+3}, 0x3f80\nds_write_b32 v1, v2 offset:{BT}")
        for k in range(16//nw):
            a(f"v_cmpx_lt_i32 vcc, {16*nw*k}, v{QA+2}\nds_write_b16 v{QA+1}, v{F+1+(k&1)} offset:{GL+2*nw*k}")
            if k+1<16//nw: a(f"v_add_u32 v{F+1+((k+1)&1)}, {16*nw}, v{F+1+(k&1)}")
            if not slow: a(f"ds_write_b16 v{QA+3}, v{F+3} offset:{STB+2*nw*k}")
        a(f"""
s_mov_b64 exec, -1
s_lshl_b32 s{t1}, s{sWV}, 2
v_sub_u32 v{QA+2}, v3, v{QA}
v_add_u32 v{F}, s{t1}, v{F}
v_subrev_u32 v{QA+2}, s{t1}, v{QA+2}    ; pad4 - 4w
s_mov_b32 s{t1}, {EB}
v_mov_b32 v{QA+4}, 0
v_mov_b32 v{QA+5}, 0
v_mov_b32 v{QA+6}, {hex(NULLW2)}
v_lshl_add_u32 v{QA+7}, v{F}, 1, s{t1}
""")
        for k in range(-(-20//nw)):
            a(f"v_cmpx_lt_i32 vcc, {4*nw*k}, v{QA+2}")
            if k==1: a(f"s_cbranch_vccz {lab}p")
            a(f"ds_write_b32 v{F}, v{QA+6} offset:{WB+4*nw*k}\nds_write_b64 v{QA+7}, {P2(QA+4)} offset:{8*nw*k}")
        a(f"""
{lab}p:
s_mov_b64 exec, -1
s_cmp_eq_u32 s{sWV}, 3
s_cbranch_scc0 {lab}q
s_lshr_b32 s{t1}, s{t0}, 3
v_lshl_add_u32 v{QA+1}, v{VL}, 1, s{t1}
v_mov_b32 v{QA+2}, {NULLG}
v_add_u32 v{QA+3}, {NULLG}, v1
v_lshlrev_b32 v{QA+7}, 1, v1
v_add_u32 v{QA+7}, {EB+2*NULLG}, v{QA+7}
s_mov_b64 exec, 0xff
ds_write_b16 v{QA+1}, v{QA+2} offset:{GL}
s_mov_b64 exec, 15
ds_write_b32 v{QA+3}, v{QA+6} offset:{WB}
ds_write_b64 v{QA+7}, {P2(QA+4)}
s_mov_b64 exec, -1
{lab}q:
""")
    def expand(lab,win=True):
        if win: a(f"""
v_subrev_u32 v1, s{sLO}, v{TO}
v_add_u32 v2, v1, v{TC}
v_med3_i32 v1, v1, 0, s{t3}
v_med3_i32 v2, v2, 0, s{t3}
v_sub_u32 v2, v2, v1
v_lshl_add_u32 v1, v1, 2, s{sLB}
""")
        a(f"{lab}:")
        for j in range(16):
            a(f"v_cmpx_lt_i32 vcc, {j}, v2")
            if j==13: a(f"s_cbranch_vccz {lab}z")
            a(f"ds_write_b32 v1, v{TD} offset:{4*j}")
        a(f"""
v_add_u32 v2, -16, v2
v_add_u32 v1, 64, v1
v_cmp_lt_i32 vcc, 0, v2
s_cmp_lg_u64 vcc, 0
s_cbranch_scc1 {lab}
{lab}z:
s_mov_b64 exec, -1
""")
    def rl1(i): return f"buffer_load_dwordx4 {P4(RC+4*i)}, v{RK+i}, {SR4(sR)}, {'0' if i<4 else 's'+str(sQ)} offen offset:{1024*(i&3)}{SC}"
    def reclist(ns):
        a(f"v_lshl_add_u32 v1, v{VL}, 2, s{sLB}")
        for i in reversed(range(ns)): a(f"ds_read_b32 v{RK+i}, v1 offset:{256*i}")
        a(f"v_add_u32 v2, s{sLO}, v{VL}\nv_lshlrev_b32 v2, 4, v2\ns_movk_i32 s{sQ}, 4096")
        for i in range(ns):
            a(f"v_cmp_gt_i32 {S2(sM+2*i)}, s{t1}, v{VL}\ns_sub_u32 s{t1}, s{t1}, 64")
        a("s_waitcnt lgkmcnt(0)")
        for i in range(ns): a(f"v_add_u32 v{RK+i}, v{RK+i}, v2")
    def recload(ns,lab):
        for i in reversed(range(ns)):
            a(f"s_mov_b64 exec, {S2(sM+2*i)}\ns_cbranch_execz {lab}{i}\n{rl1(i)}\n{lab}{i}:")
        a("s_mov_b64 exec, -1")
    def hist(ns,lab,extra,scat):
        a(f"v_mov_b32 v1, 4\ns_mov_b32 s{sW8}, {EB}\n{lab}p:")
        def gm(i): return S2(t0+2*(i&1))
        def sc(i,n):
            a(f"""
s_mov_b64 exec, {gm(i)}
s_waitcnt lgkmcnt({n})
v_min_u32 v{RK+i}, {NULLG-4}, v{RK+i}
v_lshl_add_u32 v{RC+4*i+3}, v{RK+i}, 1, s{sW8}
ds_write_b32 v{RK+i}, v{RC+4*i+2} offset:{WB}
ds_write_b64 v{RC+4*i+3}, {P2(RC+4*i)}
""")
        for i in reversed(range(ns)):
            a(f"""
s_mov_b64 exec, {S2(sM+2*i)}
s_waitcnt vmcnt({i+extra})
v_cmpx_eq_u32 {gm(i)}, s{sNON}, v{RC+4*i+3}
v_lshrrev_b32 v{RC+4*i+3}, 17, v{RC+4*i+2}
ds_add_rtn_u32 v{RK+i}, v{RC+4*i+3}, v1
s_andn2_b64 {S2(sM+2*i)}, {S2(sM+2*i)}, {gm(i)}
""")
            a(f"s_mov_b64 vcc, {S2(sM+2*i)}" if i==ns-1 else f"s_or_b64 vcc, vcc, {S2(sM+2*i)}")
            if scat and i==0 and 0: pass
            if scat and i==0: a(f"s_cselect_b64 exec, 0, 1\nds_add_u32 v{VZ}, v1 offset:{mH}")
            if scat and i<ns-1: sc(i+1,(1 if i==ns-2 else 3)+(1 if i==0 else 0))
        if scat: sc(0,3)
        a(f"s_cbranch_vccnz {lab}r\n{lab}d:\ns_mov_b64 exec, -1")
    def hist_retry(ns,lab,scat):
        a(f"{lab}r:\ns_sub_u32 s{sBUD}, s{sBUD}, 1\ns_cbranch_scc1 {lab}x")
        recload(ns,lab+"l")
        a(f"s_waitcnt vmcnt(0)\ns_branch {lab}p\n{lab}x:\ns_mov_b32 s{sBUD}, 0")
        if scat: a(f"s_mov_b64 exec, 1\nds_add_u32 v{VZ}, v1 offset:{mH}")
        a(f"s_branch {lab}d")
    def qfull(lab,mid):
        H=QA+4; MX=QA+1
        a(f"v_xor_b32 v{TC}, 32, v{TRU}")
        trfrag(WF,TC,0,2048,256)
        a(f"""
s_lshl_b32 s{t0}, s{sW4}, 8
s_add_u32 s{t0}, s{t0}, {Q2}
v_lshrrev_b32 v1, 4, v{VL}
v_lshl_add_u32 v120, v1, 11, s{t0}
v_and_b32 v1, 8, v{VL}
v_lshl_add_u32 v120, v1, 3, v120
v_and_b32 v1, 3, v{VL}
v_lshl_add_u32 v120, v1, 4, v120
v_and_b32 v1, 4, v{VL}
v_lshl_add_u32 v120, v1, 1, v120
v_add_u32 v121, 128, v120
s_waitcnt lgkmcnt(0)
""")
        tru(WF+16,0)
        def cv(i,T,pk):
            c=GA+16*i+4*T
            L=[]
            if pk: L+=[f"v_pk_mul_f32 {P2(c)}, {P2(c)}, {S2(sL2E)}",f"v_pk_mul_f32 {P2(c+2)}, {P2(c+2)}, {S2(sL2E)}"]
            else: L+=[f"v_mul_f32 v{c+k}, s{sL2E}, v{c+k}" for k in range(4)]
            L+=[f"v_and_b32 v{H+k}, 0xffff0000, v{c+k}" for k in range(4)]
            L+=[f"v_maximum3_f32 v{MX}, {'0' if T==0 and i==0 else 'v'+str(MX)}, abs(v{c}), abs(v{c+1})",f"v_maximum3_f32 v{MX}, v{MX}, abs(v{c+2}), abs(v{c+3})"]
            if pk: L+=[f"v_pk_add_f32 {P2(c)}, {P2(c)}, {P2(H)} neg_lo:[0,1] neg_hi:[0,1]",f"v_pk_add_f32 {P2(c+2)}, {P2(c+2)}, {P2(H+2)} neg_lo:[0,1] neg_hi:[0,1]"]
            else: L+=[f"v_sub_f32 v{c+k}, v{c+k}, v{H+k}" for k in range(4)]
            L+=[f"v_cvt_pk_bf16_f32 v{c+k}, v{c+k}, v{H+k}" for k in range(4)]
            return L
        for T in range(4):
            for s in range(4): a(mfma16(GA+4*T,XF+16*T+4*s,WF+4*s,None if s==0 else GA+4*T))
        a("s_waitcnt lgkmcnt(0)")
        fl=cv(0,0,0)+cv(0,1,0)
        for T in range(4):
            for s in range(4):
                a(mfma16(GA+16+4*T,XF+16*T+4*s,WF+16+4*s,None if s==0 else GA+16+4*T))
                for _ in range(2): a(fl.pop(0))
        if PFI==0: mid()
        for x in fl+cv(0,2,1)+cv(1,0,1)+cv(1,1,1)+cv(1,2,1): a(x)
        if PFI==1: mid()
        gwait(lab+"w",mSL,4,VZ,1)
        for i in range(2):
            for T in range(3):
                c=GA+16*i+4*T
                a(f"ds_write2st64_b64 v{120+i}, {P2(c)}, {P2(c+2)} offset0:{16*T} offset1:{16*T+2}")
        a("s_mov_b64 exec, 0xffff")
        for i in range(2):
            c=GA+16*i+12
            a(f"""
v_mul_f32 v{c}, s{sL2E}, v{c}
v_and_b32 v{H}, 0xffff0000, v{c}
v_maximum3_f32 v{MX}, v{MX}, abs(v{c}), abs(v{c})
v_sub_f32 v{c}, v{c}, v{H}
v_cvt_pk_bf16_f32 v{c}, v{c}, v{H}
ds_write2st64_b64 v{120+i}, {P2(c)}, {P2(c+2)} offset0:48 offset1:50
""")
        a(f"""
s_mov_b64 exec, -1
v_cmp_nge_f32 vcc, 0x40e80000, v{MX}
s_cbranch_vccz {lab}q
ds_write_b32 v{VZ}, v{FA} offset:{mSLOW}
{lab}q:
""")
        pt('qd')
    def ranges():
        a(f"""
s_lshr_b32 s{sCNT}, s{sNT}, 3
s_mul_i32 s{sT0}, s{sCNT}, s{sWV}
s_and_b32 s{t2}, s{sNT}, 7
s_min_u32 s{t3}, s{t2}, s{sWV}
s_add_u32 s{sT0}, s{sT0}, s{t3}
s_cmp_lt_u32 s{sWV}, s{t2}
s_addc_u32 s{sCNT}, s{sCNT}, 0
s_lshl_b32 s{t0}, s{sT0}, 7
s_lshl_b32 s{t2}, s{sT0}, 4
v_add_u32 v{SB}, s{t2}, v{SB}
v_add_u32 v{RB}, s{t2}, v{RB}
s_add_u32 s{t3}, s{sT0}, s{sCNT}
v_min_u32 v1, 8, v{VL}
v_sub_u32 v1, s{t3}, v1
v_lshlrev_b32 v1, 4, v1
v_max_i32 v1, 0, v1
""")
    AS=272; OST=GBUF+32768
    eFA,eOW,eN48,eRD,eST,eM0,eM1=136,137,138,139,140,141,142
    sE0,sE1,sE2=4,5,6
    def epi_consts():
        srd(a,sX,16,N*256)
        vyc(WV)
        a(f"""
v_and_b32 v1, 15, v{VL}
v_lshrrev_b32 v2, 4, v{VL}
v_mul_u32_u24 v3, {AS}, v1
s_lshr_b32 s{t0}, s{sWV}, 2
s_mul_i32 s{t1}, s{t0}, {32*AS}
v_lshl_add_u32 v3, v2, 4, v3
v_add_u32 v{eFA}, s{t1}, v3
s_lshl_b32 s{t0}, s{t0}, 13
s_add_u32 s{t0}, s{t0}, {OST}
s_lshl_b32 s{t1}, s{sW4}, 2
v_or_b32 v2, s{t1}, v2
v_xor_b32 v2, v2, v1
v_lshl_add_u32 v2, v2, 4, s{t0}
v_lshl_add_u32 v{eOW}, v1, 8, v2
s_lshl_b32 s{t0}, s{sW4}, 6
s_add_u32 s{t0}, s{t0}, {OST+48*256}
v_and_b32 v2, 12, v1
v_lshl_add_u32 v2, v2, 2, s{t0}
v_and_b32 v3, 3, v1
v_lshl_add_u32 v{eN48}, v3, 1, v2
v_lshlrev_b32 v1, 4, v0
v_add_u32 v{eRD}, {OST}, v1
v_lshrrev_b32 v2, 4, v0
v_xor_b32 v3, v2, v0
v_and_b32 v3, 15, v3
v_lshlrev_b32 v3, 4, v3
v_lshl_add_u32 v{eST}, v2, 16, v3
s_lshl_b32 s{sE0}, s{sNB}, 8
s_add_u32 s{sE1}, s{sE0}, {32*65536}
s_cmp_lt_u32 s{sWV}, 4
s_cselect_b64 {S2(sE2)}, -1, 0xffff
s_mul_i32 s{t0}, s{sWV}, {AS}
v_lshl_add_u32 v{eM1}, v{VL}, 2, s{t0}
v_lshlrev_b32 v{OH2}, 1, v{OHC}
v_and_b32 v1, 31, v{VL}
v_lshlrev_b32 v1, 4, v1
v_lshlrev_b32 v2, 5, v{VL}
v_and_b32 v2, 0x400, v2
v_add3_u32 v{QC}, v1, v2, s{sQ2}
v_cndmask_b32 v{SI2}, 0, 16, {S2(sMA)}
v_cndmask_b32 v{SI2+1}, 16, 0, {S2(sMA)}
v_sub_u32 v2, v{SA}, v{OHC}
v_add_u32 v2, {STB}, v2
v_mov_b32 v1, {OH+64}
v_cndmask_b32 v{SA2}, v1, v2, {S2(sMA)}
v_cndmask_b32 v{SA2+1}, v2, v1, {S2(sMA)}
""")
    def arrive(off,vt): a(f"v_mov_b32 v{vt}, 1\ns_mov_b64 exec, 1\nds_add_u32 v{VZ}, v{vt} offset:{off}\ns_mov_b64 exec, -1")

    def claim():
        a(f"""
s_mul_i32 s{t1}, s{sW4}, {13*65536}
s_lshl_b32 s{t2}, s{sNB}, 8
s_add_u32 s{t1}, s{t1}, s{t2}
s_add_u32 s{t1}, s{t1}, {F_P}
""")
        if CLW==1:
            a(f"""
v_lshlrev_b32 v2, 15, v{VL}
v_and_b32 v2, 0xffff0000, v2
v_and_b32 v3, 1, v{VL}
v_lshl_add_u32 v2, v3, 7, v2
v_add_u32 v2, s{t1}, v2
s_mov_b64 exec, 0x3ffffff
global_store_dword v2, v{VZ}, s[20:21] sc1
s_mov_b64 exec, -1
""")
        else:
            a(f"""
v_lshlrev_b32 v2, 14, v{VL}
v_and_b32 v2, 0xffff0000, v2
v_and_b32 v3, 3, v{VL}
v_lshl_add_u32 v2, v3, 6, v2
v_add_u32 v2, s{t1}, v2
s_mov_b32 exec_hi, 0xfffff
global_store_dword v2, v{VZ}, s[20:21] sc1
s_mov_b64 exec, -1
""")
    D=28; SRc=36; K=44; R=52; W2=60; RO=80
    sD=40; sS=44; sE=48
    Q16="s_mov_b64 exec, 0xffff"; FULL="s_mov_b64 exec, -1"
    a(f"""
{name}:
{"s_memrealtime s[88:89]" if PROF and FST else ""}
s_getpc_b64 {S2(t2)}
s_cmp_ge_u32 s2, 256
s_cbranch_scc1 KF_END
s_load_dwordx16 s[4:19], s[0:1], 0
s_load_dwordx2 s[20:21], s[0:1], 64
v_lshrrev_b32 v1, 6, v0
s_and_b32 s{t0}, s2, 0xf8
v_add_lshl_u32 v2, v1, s{t0}, 7
v_readfirstlane_b32 s{sWV}, v1
v_min_u32 v2, KF_CEND-{name}-16, v2
s_mov_b64 exec, 1
global_load_dword v{QA+15}, v2, {S2(t2)}
s_mov_b64 exec, -1
v_and_b32 v{VL}, 63, v0
v_mov_b32 v{VZ}, 0
v_lshlrev_b32 v113, 4, v{VL}
s_and_b32 s{sK}, s2, 7
s_lshl_b32 s{sK}, s{sK}, 5
s_lshr_b32 s{t1}, s2, 3
s_or_b32 s{sK}, s{sK}, s{t1}
s_and_b32 s{sW4}, s{sWV}, 3
s_lshl_b32 s{sW4K}, s{sW4}, 10
s_cmp_ge_u32 s{sWV}, 4
s_cbranch_scc0 KF_S
v_lshlrev_b32 v2, 2, v0
v_lshlrev_b32 v3, 8, v{VL}
ds_write_b32 v2, v{VZ} offset:{HIST-1024}
v_lshlrev_b32 v2, 2, v{VL}
ds_write2st64_b32 v2, v3, v{VZ} offset0:0 offset1:1
s_memrealtime {S2(t2)}
v_bfe_u32 v1, v0, 4, 4
v_xor_b32 v37, v1, v0
v_and_b32 v37, 15, v37
v_lshlrev_b32 v37, 4, v37
v_lshl_add_u32 v36, v1, 8, s{sNB}
s_waitcnt lgkmcnt(0)
""")
    if WSB: a(f"s_add_u32 s20, s20, {hex(WSB)}\ns_addc_u32 s21, s21, 0")
    (0 if FST else stamp(a,0,True)); stamp(a,1); pt('st')
    a(f"""
""")
    a(f"""
s_or_b32 s{t1}, s2, s{sW4}
s_cbranch_scc1 KF_n
s_lshl_b32 s{t1}, s{t2}, 2
s_or_b32 s{t1}, s{t1}, 1
v_mov_b32 v1, s{t1}
v_lshlrev_b32 v2, {2 if NW else 6}, v{VL}
s_mov_b64 exec, {-1 if NW else 15}
global_store_dword v2, v1, s[18:19] sc1
s_mov_b64 exec, -1
KF_n:
""")
    if XORD==0:
        srd(a,sX,4,N,stride=256)
        for j in range(4):
            if j==3: a(f"s_cmp_eq_u32 s{sWV}, 4\ns_cbranch_scc0 KT_c")
            a(f"s_add_u32 m0, s{sW4K}, {AGB+j*4096}\ns_nop 0\nbuffer_load_dwordx4 v[36:37], {SR4(sX)}, 0 idxen offen{NT} lds\nv_add_u32 v36, 4096, v36")
        a("KT_c:")
    a(f"""
s_lshr_b32 s{t0}, s{t0}, 1
s_add_u32 s{t0}, s{t0}, s{sWV}
s_sub_u32 s{t0}, s{t0}, 4
s_lshl_b32 s{t0}, s{t0}, 9
v_lshl_add_u32 v2, v{VL}, 7, s{t0}
s_mov_b64 exec, 15
global_load_dword v{QA+15}, v2, s[12:13]
global_load_dword v{QA+15}, v2, s[14:15]
s_mov_b64 exec, -1
""")
    if TLB:
        a(f"""
s_lshr_b32 s{t0}, s{t0}, 9
s_mul_i32 s{t1}, s{t0}, {2*RST}
s_add_u32 s{t1}, s{t1}, {F_REC+EP*16}
s_add_u32 s52, s20, s{t1}
s_addc_u32 s53, s21, 0
s_load_dword s44, s[52:53], 0
s_load_dword s45, s[52:53], {RST}
""")
    a(f"""
s_branch KF_B0
KF_S:
s_min_u32 s{t2}, s2, {NPROD-1}
s_mul_i32 s{t2}, s{t2}, {EP*4}
s_mul_i32 s{t3}, s{sWV}, 400
v_add_u32 v108, s{t3}, v{VL}
v_lshlrev_b32 v109, 2, v108
s_mov_b32 s{sD+2}, {E*4}
s_mov_b32 s{sD+3}, 0x00020000
s_waitcnt lgkmcnt(0)
""")
    if WSB: a(f"s_add_u32 s20, s20, {hex(WSB)}\ns_addc_u32 s21, s21, 0")
    (0 if FST else stamp(a,0,True)); stamp(a,1); pt('st')
    a(f"s_mov_b32 s{sD}, s10\ns_and_b32 s{sD+1}, s11, 0xffff")
    def ld7(dst,sr):
        for i in range(7):
            if i==6: a(Q16)
            a(f"buffer_load_dword v{dst+i}, v109, {SR4(sr)}, s{t2} offen offset:{i*256}{NT}")
        a(FULL)
    ld7(D,sD); pt('dl')
    def srcld(): srd(a,sS,8,E*4); ld7(SRc,sS)
    def eld():
        srd(a,sE,6,E*8)
        a(f"""
s_lshl_b32 s{sLB}, s{t3}, 3
s_lshl_b32 s{t2}, s{t2}, 1
s_add_u32 s{t2}, s{t2}, s{sLB}
s_add_u32 m0, s{sLB}, {ERAW}
s_add_u32 s{sLB}, s{sLB}, {S1}
""")
        for j in range(4):
            if j==3: a("s_mov_b64 exec, 0xff")
            a(f"buffer_load_dwordx4 v113, {SR4(sE)}, s{t2} offen offset:{1024*j}{NT} lds")
        a(FULL)
    if EO<2: srcld()
    if EO<1: eld()
    if CLM==2: claim()
    a(f"""
KF_B0:
""")
    if DBGP:
        a("v_mov_b32 v1, 0")
        for j,r in enumerate((4,6,8,10,12,14,16,18,20)): a(f"v_writelane_b32 v1, s{r}, {j}")
        a(f"v_lshlrev_b32 v2, 2, v{VL}\ns_mov_b64 exec, 0x1ff\nglobal_store_dword v2, v1, s[18:19]\ns_mov_b64 exec, -1\ns_waitcnt vmcnt(0)")
    if ALN: a(f"s_add_u32 s20, s20, {ALN-1}\ns_addc_u32 s21, s21, 0\ns_and_b32 s20, s20, {-ALN}")
    a(f"""
s_lshl_b32 s{sBUF}, s{sWV}, 13
s_add_u32 s{sBUF}, s{sBUF}, {GBUF}
s_barrier
""")
    if W1E:
        a(f"s_cmp_ge_u32 s{sWV}, 4\ns_cbranch_scc0 KF_c0")
        srd(a,sA,12,260*256); vyc(); sdma(sA,0,0,VY,range(W1E))
        a("KF_c0:")
    consts()
    a(f"""
s_cmp_ge_u32 s{sWV}, 4
s_cbranch_scc1 KF_T
""")
    if EO>=2: a(f"v_lshlrev_b32 v109, 2, v108"); srcld()
    if EO>=1: eld()
    a(f"""
v_mov_b32 v111, 8
v_and_b32 v124, 7, v{VL}
v_lshlrev_b32 v124, 7, v124
v_lshrrev_b32 v125, 3, v{VL}
v_lshl_add_u32 v124, v125, 2, v124
v_add_u32 v124, {HIST}, v124
v_add_u32 v125, 1024, v124
v_lshlrev_b32 v112, 3, v108
v_lshlrev_b32 v110, 4, v108
""")
    for i in range(7): a(f"v_add_u32 v{W2+1+2*i}, {i*512}, v112")
    a(f"s_cmp_ge_u32 s2, {NPROD}\ns_cbranch_scc1 KS_d\ns_waitcnt vmcnt({11+(CLM==2)})")
    pt('dst')
    for i in range(7):
        if i==6: a(Q16)
        a(f"v_lshlrev_b32_sdwa v{K+i}, 2, v{D+i} dst_sel:DWORD dst_unused:UNUSED_PAD src0_sel:DWORD src1_sel:BYTE_0\nds_add_rtn_u32 v{R+i}, v{K+i}, v111 offset:{HIST}")
    a(FULL+"\nKS_d:")
    gsync('b1',"KS_y1",mS,4,VZ,2)
    if PERM: a(f"ds_read2_b32 v[116:117], v124 offset0:0 offset1:8\nds_read2_b32 v[118:119], v124 offset0:16 offset1:24")
    else: a(f"ds_read_b128 v[116:119], v113 offset:{HIST}")
    if NE==3: a(f"s_load_dword s{sNON}, s[18:19], 0")
    for i in range(7): a(f"v_lshrrev_b32 v{D+i}, 8, v{D+i}")
    a(f"""
s_waitcnt lgkmcnt(0)
v_add_u32 v2, v116, v117
v_add3_u32 v2, v2, v118, v119
v_mov_b32 v3, v2
""")
    dpp_scan(a,"v_add_u32",[3])
    a(f"""
v_sub_u32 v120, v3, v2
v_add_u32 v121, v120, v116
v_add_u32 v122, v121, v117
v_add_u32 v123, v122, v118
""")
    if PERM: a(f"ds_write2_b32 v125, v120, v121 offset0:0 offset1:8\nds_write2_b32 v125, v122, v123 offset0:16 offset1:24")
    else: a(f"ds_write_b128 v113, v[120:123] offset:{HIST+1024}")
    for i in range(7):
        if i==6: a(Q16)
        a(f"ds_read_b32 v{K+i}, v{K+i} offset:{HIST+1024}")
    a(FULL)
    def tpub():
        if not NE: a(f"s_load_dword s{sNON}, s[18:19], 0")
        a(f"""
v_lshl_or_b32 v{QA}, v121, 16, v120
v_lshl_or_b32 v{QA+1}, v123, 16, v122
s_lshl_b32 s{t2}, s2, 10
s_add_u32 s{t2}, s{t2}, {F_TBL}
s_lshl_b32 s{t3}, s{sWV}, 4
""")
        for k,off in enumerate((128,64,192,None)):
            a(f"s_waitcnt lgkmcnt(0)\ns_cmp_lg_u32 s{sNON}, 0\ns_cbranch_scc1 KS_n1")
            if off is not None: a(f"s_sleep {NS}\ns_load_dword s{sNON}, s[18:19], {off}")
        a(f"""
KS_n0:
global_load_dword v1, v{VZ}, s[18:19] sc1
s_waitcnt vmcnt(0)
v_readfirstlane_b32 s{sNON}, v1
s_cmp_lg_u32 s{sNON}, 0
s_cbranch_scc1 KS_n1
s_sub_u32 s{sBUD}, s{sBUD}, 1
s_cbranch_scc0 KS_n0
s_mov_b32 s{sBUD}, 0
s_mov_b32 s{sNON}, 1
KS_n1:
v_mov_b32 v1, s{sNON}
ds_write_b32 v{VZ}, v1 offset:{mNO}
""")
        pt('non')
        slot()
        a(f"""
v_mov_b32 v{QA+3}, v1
s_lshl_b64 exec, 0xffff, s{t3}
buffer_store_dwordx4 {P4(QA)}, v113, {SR4(sR)}, s{t2} offen{SSC}
s_mov_b64 exec, -1
""")
    if NE==3: a(f"v_mov_b32 v{QA+2}, v3"); tpub()
    else: a(f"s_mov_b32 s{sNON}, 0")
    a(f"s_cmp_ge_u32 s2, {NPROD}\ns_cbranch_scc1 KS_e\ns_waitcnt vmcnt({5 if NE==3 else 4})")
    if X&64:
        for i in range(7): a(f"v_and_b32 v{SRc+i}, 0x1ff, v{SRc+i}")
    for i in range(7): a(f"v_lshl_or_b32 v{W2+2*i}, v{D+i}, 19, v{SRc+i}")
    a(f"s_waitcnt lgkmcnt(0)")
    if NE==2: a(f"s_load_dword s{sNON}, s[18:19], 0")
    for i in range(7):
        if i==6: a(Q16)
        a(f"v_add_u32 v{K+i}, v{K+i}, v{R+i}\nds_write_b64 v{K+i}, {P2(W2+2*i)} offset:{S1}")
    a(FULL+"\nKS_e:")
    pt('sc1')
    if NE<3: a(f"v_mov_b32 v{QA+2}, v3")
    if NE==1: a(f"s_load_dword s{sNON}, s[18:19], 0")
    if NE<2: epi_consts(); tpub()
    else:
        if NE==2: tpub()
        pass
    a(f"""
v_lshlrev_b32 v114, 10, v0
s_lshr_b32 s{sLO}, s{sK}, 2
s_lshl_b32 s{sLO}, s{sLO}, 4
s_add_u32 s{sLO}, s{sLO}, {F_TBL}
v_cmp_gt_u32 vcc, {NPROD}, v0
v_mov_b32 v{QA+4}, 0
v_mov_b32 v{QA+5}, 0
v_mov_b32 v{QA+6}, 0
s_mul_i32 s{t0}, s2, {RST}
s_add_u32 s{t0}, s{t0}, {F_REC}
s_add_u32 s{t2}, s{t0}, 4096
v_mul_u32_u24 v115, {RST}, v0
v_add_u32 v115, {F_REC}, v115
""")
    gsync('bS',"KS_y2",mS,8,VZ,2,f"s_waitcnt vmcnt({1+(CLM==2)})")
    tl=f"s_mov_b64 exec, vcc\nbuffer_load_dwordx4 {P4(QA+4)}, v114, {SR4(sR)}, s{sLO} offen{SC}\ns_mov_b64 exec, -1"
    a(f"""
s_cmp_ge_u32 s2, {NPROD}
s_cbranch_scc0 KS_h0
""")
    gwait("KS_h1",mGP,4,VZ,2)
    a(f"""
{tl}
s_waitcnt vmcnt(0)
v_mov_b32 v1, 0
s_branch KS_j
KS_h0:
""")
    order=[6,0,1,2,3,4,5]
    for i in order:
        if i==6: a(Q16)
        a(f"ds_read_b64 {P2(RO+2+4*i)}, v112 offset:{S1+i*512}")
        if i==6: a(FULL)
    for i in order:
        if i==6: a(Q16)
        a(f"s_waitcnt lgkmcnt(6)\nds_read_b64 {P2(RO+4*i)}, v{RO+3+4*i} offset:{ERAW}")
        if i==6: a(FULL)
    gwait("KS_ww",mW,4,VZ,2)
    for k,i in enumerate(order):
        if k==TP_: a(tl)
        if i==6: a(Q16)
        a(f"v_mov_b32 v{RO+3+4*i}, v1\nbuffer_store_dwordx4 {P4(RO+4*i)}, v110, {SR4(sR)}, s{t0 if i<4 else t2} offen offset:{1024*(i&3)}{SSC}")
        if i==6: a(FULL)
    if TP_==7: a(tl)
    pt('out')
    a(f"v_pk_maximum3_f16 v1, v{RO}, v{RO+1}, v{RO+1}\nv_pk_minimum3_f16 v2, v{RO}, v{RO+1}, v{RO+1}")
    for i in range(1,7):
        if i==6: a(Q16)
        a(f"v_pk_maximum3_f16 v1, v1, v{RO+4*i}, v{RO+4*i+1}\nv_pk_minimum3_f16 v2, v2, v{RO+4*i}, v{RO+4*i+1}")
    a(FULL)
    absmax_fin(a,1,2,3)
    dpp_scan(a,"v_max_u32",[1])
    a(f"""
KS_j:
v_mov_b32 v2, 1
s_mov_b32 exec_lo, 0
s_brev_b32 exec_hi, 1
ds_max_u32 v{VZ}, v1 offset:{mEM}
ds_add_u32 v{VZ}, v2 offset:{mE}
s_mov_b64 exec, -1
""")
    if NE>=2: epi_consts()
    gwait("KS_xw",mGX,4,VZ,2)
    xfrags([0,1])
    a(f"""
s_bitcmp1_b32 s{sK}, 1
s_cselect_b64 {S2(t2)}, -1, 0
s_lshl_b32 s{t0}, s{sK}, 4
s_and_b32 s{t0}, s{t0}, 16
s_waitcnt vmcnt({7-TP_})
s_mov_b64 exec, vcc
KT_f:
v_cmp_ne_u32 vcc, s{sNON}, v{QA+7}
s_cbranch_vccz KT_g
s_mov_b64 exec, vcc
s_sub_u32 s{sBUD}, s{sBUD}, 1
s_cbranch_scc1 KT_f2
buffer_load_dwordx4 {P4(QA+4)}, v114, {SR4(sR)}, s{sLO} offen{SC}
s_waitcnt vmcnt(0)
s_branch KT_f
KT_f2:
s_mov_b32 s{sBUD}, 0
v_mov_b32 v{QA+4}, 0
v_mov_b32 v{QA+5}, 0
v_mov_b32 v{QA+6}, 0
KT_g:
s_mov_b64 exec, -1
""")
    pt('tp'); ret('rt1')
    a(f"""
v_cndmask_b32 v1, v{QA+4}, v{QA+5}, {S2(t2)}
v_cndmask_b32 v2, v{QA+5}, v{QA+6}, {S2(t2)}
v_alignbit_b32 v1, v2, v1, s{t0}
v_sub_u32_sdwa v{TC}, v1, v1 dst_sel:DWORD dst_unused:UNUSED_PAD src0_sel:WORD_1 src1_sel:WORD_0
v_and_b32 v1, 0xffff, v1
v_lshrrev_b32 v{TC}, 3, v{TC}
v_lshl_add_u32 v{TD}, v1, 1, v115
v_mov_b32 v{TO}, v{TC}
""")
    dpp_scan(a,"v_add_u32",[TO])
    a(f"""
v_readlane_b32 s{sTOT}, v{TO}, 63
v_sub_u32 v{TO}, v{TO}, v{TC}
v_mov_b32 v2, v{TC}
v_lshlrev_b32 v1, 4, v{TO}
s_mov_b32 s{sLO}, 0
s_cmp_gt_u32 s{sTOT}, 512
v_sub_u32 v{TD}, v{TD}, v1
v_lshl_add_u32 v1, v{TO}, 2, s{sLB}
s_cselect_b32 s{t1}, 0, s{sTOT}
s_cbranch_scc1 KT_xe
""")
    expand("KT_x",False)
    a("KT_xe:")
    reclist(8)
    arrive(mSL,1)
    pt('exp')
    if SWU:
        gwait("KS_gp",mGP,4,VZ,1); srd(a,sA,14,256*256); sdma(sA,0,32768,WV)
    gwait("KS_rw",{0:mPD,1:mPS,2:mPS}[RWI],4,VZ,1)
    if SWU==2: a("s_waitcnt vmcnt(0)"); arrive(mPI,1)
    if TP_<7: a("s_waitcnt vmcnt(0)")
    recload(8,"KT_l")
    pt('rl')
    def pfp():
        a(f"""
s_lshr_b32 s{t1}, s2, 3
s_mul_i32 s{t1}, s{t1}, 391
""")
        if PF0: a(f"v_and_b32 v2, 255, v0\nv_add_u32 v2, s{t1}, v2\nv_mov_b32 v3, 0")
        else: a(f"v_bfe_u32 v2, v0, 1, 7\nv_add_u32 v2, s{t1}, v2\nv_and_b32 v3, 1, v0\nv_lshlrev_b32 v3, 7, v3")
        if PFN<64: a(f"s_bfm_b64 exec, {PFN}, 0")
        a(f"buffer_load_dword v{QA+15}, v[2:3], {SR4(sP)}, 0 idxen offen offset:3072{SC}\ns_mov_b64 exec, -1")
    if PFP==1: pfp()
    if SWU==1:
        a(f"s_add_u32 s{t1}, s{sTOT}, 63\ns_lshr_b32 s{t1}, s{t1}, 6\ns_cmp_ge_u32 s{t1}, 6\ns_cbranch_scc1 KS_v6\ns_waitcnt vmcnt(0)\nKS_v6:\ns_cmp_gt_u32 s{sTOT}, 512\ns_cbranch_scc0 KS_v7\ns_waitcnt vmcnt(0)\nKS_v7:\ns_waitcnt vmcnt(6)")
        arrive(mPI,1)
    if not US:
        if not SWU: gwait("KS_w2",mPI,4,VZ,1)
        trw()
        a("s_waitcnt lgkmcnt(0)")
        w3rd()
        ugemm(0)
    pt('ud')
    hist(8,"KT_h",1 if PFP==1 else 0,True)
    if PFP==3: pfp()
    pt('hs'); ret('rt2')
    gwait("KS_b2",mH,16,VZ,1)
    pt('b2')
    scan(False)
    a(f"""
v_cmp_lt_u32 vcc, 0x100, v{QA}
s_add_u32 s{sNT}, s{t0}, 127
s_lshr_b32 s{sNT}, s{sNT}, 7
s_cmp_gt_u32 s{sNT}, {CAPT}
s_cbranch_scc1 KT_j
s_cbranch_vccnz KT_j
""")
    fill("KFz",False,4)
    a(f"v_mov_b32 v1, s{sNT}\nds_write_b32 v{VZ}, v1 offset:{mNT}")
    pt('fil')
    a(f"""
s_cmp_gt_u32 s{sTOT}, 512
s_cbranch_scc0 KT_k
KT_j:
ds_write_b32 v{VZ}, v{FA} offset:{mSLOW}
KT_k:
s_mov_b32 s{sWU}, 1
""")
    if US: gwait("KS_w2",mPI,4,VZ,1); trw(); w3rd()
    ranges()
    srd(a,sA,14,256*256)
    if PRIO: a("s_setprio 3")
    bar('b3')
    a("s_branch KF_J")
    a(f"""
KF_T:
v_and_b32 v108, 255, v0
v_mov_b32 v32, 0
v_mov_b32 v33, 0
v_mov_b32 v34, 0
v_mov_b32 v35, 0
v_lshlrev_b32 v110, 4, v108
""")
    sG=40
    srd(a,sX,4,N,stride=256)
    def xld():
        for j in range(4):
            if j==3: a(f"s_cmp_eq_u32 s{sWV}, 4\ns_cbranch_scc0 KT_c")
            a(f"s_add_u32 m0, s{sW4K}, {AGB+j*4096}\ns_nop 0\nbuffer_load_dwordx4 v[36:37], {SR4(sX)}, 0 idxen offen{NT} lds\nv_add_u32 v36, 4096, v36")
        a("KT_c:")
    def warm():
        a(f"""
v_and_b32 v1, 28, v{VL}
v_and_b32 v2, 3, v{VL}
v_lshlrev_b32 v2, 1, v2
v_lshl_or_b32 v1, v1, 2, v2
s_lshr_b32 s{t0}, s{sW4}, 1
s_lshl_b32 s{t0}, s{t0}, 7
s_and_b32 s{t1}, s{sW4}, 1
s_lshl_b32 s{t1}, s{t1}, 3
s_add_u32 s{t0}, s{t0}, s{t1}
s_add_u32 s{t0}, s{t0}, 65536
""")
        for k in range(4): a(f"buffer_load_ushort v{124+k}, v1, {SR4(sA)}, s{t0} offen offset:{k*256}")
    def zer():
        a(f"v_cmp_le_u32 vcc, 32, v108\ns_mov_b64 exec, vcc\nds_write_b128 v110, v[32:35]\ns_mov_b64 exec, -1")
        for j in range(1,4): a(f"ds_write_b128 v110, v[32:35] offset:{j*4096}")
        a(f"""
s_cmp_eq_u32 s{sWV}, 4
s_cbranch_scc0 KT_b
ds_write_b128 v110, v[32:35] offset:16384
KT_b:
""")
    srd(a,sA,12,260*256); warm(); vyc()
    if XORD==1: xld()
    if not ZL: zer()
    a(f"""
s_lshl_b32 s{t0}, s{sW4}, 2
v_lshrrev_b32 v2, 4, v{VL}
v_or_b32 v1, s{t0}, v2                  ; 4u+g
v_xor_b32 v3, v1, v{WT}
v_lshlrev_b32 v3, 4, v3
v_lshl_add_u32 v116, v{WT}, 8, v3
v_add_u32 v116, {PSC}, v116
v_add_u32 v117, {PSC}, v110
v_lshl_add_u32 v118, v1, 16, v3
""")
    if XORD==2:
        gwait("KG_x",mS,4,VZ,1); xld()
    sdma(sA,0,0,VY,range(W1E,8))
    sdma(sA,32768,-32768,VY,range(W2N))
    arrive(mW,1)
    if ZL: zer()
    pt('w1i')
    def w3m():
        w=[124,125,126,127]; u=QA
        for k in range(4): a(f"v_lshlrev_b32 v{w[k]}, 16, v{w[k]}\nv_mul_f32 v{w[k]}, s{sL2E}, v{w[k]}")
        a(f"""
v_cvt_pk_bf16_f32 v{u}, v124, v125
v_cvt_pk_bf16_f32 v{u+1}, v126, v127
v_lshlrev_b32 v{u+2}, 16, v{u}
v_and_b32 v{u+3}, 0xffff0000, v{u}
v_lshlrev_b32 v{u+4}, 16, v{u+1}
v_and_b32 v{u+5}, 0xffff0000, v{u+1}
v_add_f32 v{u+6}, abs(v124), abs(v125)
v_sub_f32 v{u+2}, v124, v{u+2}
v_sub_f32 v{u+3}, v125, v{u+3}
v_sub_f32 v{u+4}, v126, v{u+4}
v_sub_f32 v{u+5}, v127, v{u+5}
v_add_f32 v{u+7}, abs(v126), abs(v127)
s_mov_b32 exec_lo, 0
v_cvt_pk_bf16_f32 v{u}, v{u+2}, v{u+3}
v_cvt_pk_bf16_f32 v{u+1}, v{u+4}, v{u+5}
s_mov_b32 exec_lo, -1
v_add_f32 v{u+6}, v{u+6}, v{u+7}
v_lshlrev_b32 v1, 3, v108
v_and_b32 v{u+6}, 0x7fffffff, v{u+6}
ds_write_b64 v1, {P2(u)} offset:{W3L}
""")
        dpp_scan(a,"v_max_u32",[u+6])
        a(f"""
s_mov_b32 exec_lo, 0
s_brev_b32 exec_hi, 1
ds_max_u32 v{VZ}, v{u+6} offset:{mC3}
s_mov_b64 exec, -1
""")
    e2=W2N
    a(f"v_mov_b32 v1, {hex(ONE2)}\nds_write2_b32 v{VZ}, v1, v1 offset0:{OH//4} offset1:{OH//4+3}")
    gsync('bX',"KG_y1",mGX,4,VZ,2,f"s_waitcnt vmcnt({8+e2-W1E})")
    if GP_: a(f"s_setprio {GP_}")
    xfrags([0])
    a(f"s_waitcnt vmcnt({e2})")
    pt('xl')
    trfrag(WF,TP,32768,2048,256)
    a("s_waitcnt lgkmcnt(7)")
    trfrag(WF+16,TP,32768+8,2048,256)
    def pm(T,i):
        for s in range(4): a(mfma16(GA+8*T+4*i,WF+16*i+4*s,XF+16*T+4*s,None if s==0 else GA+8*T+4*i))
    def pcv(T):
        c=GA+8*T
        L=[f"v_mul_f32 v{c+j}, s{sL2E}, v{c+j}" for j in range(8)]
        L+=[f"v_cvt_pk_bf16_f32 v{c+j}, v{c+2*j}, v{c+2*j+1}" for j in range(4)]
        L+=[f"ds_write_b128 v116, {P4(c)} offset:{T*4096}"]
        return L
    def pmi(T,fillers):
        for i in range(2):
            for s in range(4):
                a(mfma16(GA+8*T+4*i,WF+16*i+4*s,XF+16*T+4*s,None if s==0 else GA+8*T+4*i))
                for _ in range(2):
                    if fillers: a(fillers.pop(0))
    a("s_waitcnt lgkmcnt(8)"); xfrags([1]); pm(0,0)
    a("s_waitcnt lgkmcnt(4)"); xfrags([2,3]); pm(0,1)
    a("s_waitcnt lgkmcnt(8)"); pm(1,0); pm(1,1)
    a("s_waitcnt lgkmcnt(0)"); pmi(2,pcv(0)); pmi(3,pcv(1))
    a(f"s_lshl_b32 s{t2}, s{sNB}, 8\ns_nop 2")
    for T in (2,3):
        for x in pcv(T): a(x)
    gsync('pg',"KG_y2",mGP,4,VZ,2)
    for T in range(4): a(f"ds_read_b128 {P4(PO+4*T)}, v117 offset:{T*4096}")
    a(f"""
KG_n:
ds_read_b32 v1, v{VZ} offset:{mNO}
s_waitcnt vmcnt(0) lgkmcnt(0)
v_readfirstlane_b32 s{sNON}, v1
s_cmp_eq_u32 s{sNON}, 0
s_cbranch_scc1 KG_n
""")
    slot()
    for T in range(3):
        a(f"s_add_u32 s{t1}, s{t2}, {F_P+T*16*65536}")
        a(f"buffer_store_dwordx4 {P4(PO+4*T)}, v118, {SR4(sR)}, s{t1} offen{SSC}")
    a(f"""
s_cmp_eq_u32 s{sWV}, 4
s_cbranch_scc0 KG_p
s_add_u32 s{t1}, s{t2}, {F_P+3*16*65536}
s_waitcnt lgkmcnt(0)
s_mov_b64 exec, 0xffff
buffer_store_dwordx4 {P4(PO+12)}, v118, {SR4(sR)}, s{t1} offen{SSC}
s_mov_b64 exec, -1
KG_p:
""")
    pt('pst')
    if RWI==1: arrive(mPS,1)
    if GP_: a("s_setprio 0")
    if W2N<8: sdma(sA,32768,-32768,VY,range(W2N,8))
    srd(a,sA,14,256*256)
    w3m()
    for T in range(4):
        c=GA+8*T
        if T==3: a("s_mov_b32 exec_lo, 0x10001\ns_mov_b32 exec_hi, 0x10001")
        if T==0: a(f"v_pk_maximum3_f16 v114, v{c}, v{c+1}, v{c+2}\nv_pk_minimum3_f16 v115, v{c}, v{c+1}, v{c+2}\nv_pk_maximum3_f16 v114, v114, v{c+3}, v{c+3}\nv_pk_minimum3_f16 v115, v115, v{c+3}, v{c+3}")
        else: a(f"v_pk_maximum3_f16 v114, v114, v{c}, v{c+1}\nv_pk_minimum3_f16 v115, v115, v{c}, v{c+1}\nv_pk_maximum3_f16 v114, v114, v{c+2}, v{c+3}\nv_pk_minimum3_f16 v115, v115, v{c+2}, v{c+3}")
    a("s_mov_b64 exec, -1")
    absmax_fin(a,114,115,2)
    a(f"""
v_cmp_lt_u32 vcc, 0x40e80000, v114
s_cmp_lg_u64 vcc, 0
s_cselect_b32 s{sFLAG}, 0x101, 1
""")
    def pflag(n):
        a(f"""
s_lshl_b32 s{t2}, s2, {FS}
s_add_u32 s{t2}, s{t2}, {F_FLG}
v_mov_b32 v1, s{sFLAG}
s_waitcnt vmcnt({n})
s_mov_b64 exec, 1
ds_add_rtn_u32 v1, v{VZ}, v1 offset:{mPD}
s_waitcnt lgkmcnt(0)
v_readfirstlane_b32 s{t1}, v1
s_add_u32 s{t1}, s{t1}, s{sFLAG}
s_and_b32 s{t0}, s{t1}, 255
s_cmp_eq_u32 s{t0}, 4
s_cbranch_scc0 KG_f
KG_e:
ds_read_b64 v[2:3], v{VZ} offset:{mE}
ds_read_b32 v1, v{VZ} offset:{mC3}
s_waitcnt lgkmcnt(0)
v_cmp_gt_u32 vcc, 4, v2
v_mul_f32 v1, v1, v3
s_cbranch_vccnz KG_e
v_cmp_nge_f32 vcc, 0x41680000, v1       ; !(14.5 >= e*c3)
s_lshl_b32 s{t0}, vcc_lo, 8
s_or_b32 s{t1}, s{t1}, s{t0}
s_cmp_gt_u32 s{t1}, 255
s_cselect_b32 s{t0}, 2, 0
s_xor_b32 s{t0}, s{sNON}, s{t0}
s_mov_b64 exec, {(1<<FR)-1}
v_mov_b32 v1, s{t0}
v_lshlrev_b32 v2, {8+FS}, v{VL}
buffer_store_dword v1, v2, {SR4(sR)}, s{t2} offen{SSC}
s_waitcnt vmcnt(1)
s_branch KG_f2
KG_f:
s_waitcnt vmcnt(0)
KG_f2:
s_mov_b64 exec, -1
""")
        pt('pfl')
    def mid():
        sdma(sA,0)
        if RWI==2: arrive(mPS,1)
        pflag(8); arrive(mPI,1)
    if W2N<8:
        if WU1L:
            pflag(8-W2N); qfull("KGq",lambda: sdma(sA,0)); a("s_waitcnt vmcnt(0)"); arrive(mPI,1)
        else:
            sdma(sA,0); epi_consts(); pflag(16-W2N); arrive(mPI,1); qfull("KGq",lambda: 0)
    elif WU1L:
        if PFI==2: pflag(0)
        qfull("KGq",lambda: pflag(0)); sdma(sA,0); epi_consts(); a("s_waitcnt vmcnt(0)"); arrive(mPI,1)
    elif SWU:
        if PFI==2: pflag(0)
        qfull("KGq",lambda: pflag(0)); epi_consts(); gwait("KG_pi",mPI,4,VZ,1)
    else: qfull("KGq",mid); epi_consts()
    gwait("KG_w3",mPD,4,VZ,1)
    w3rd(); trw()
    a("s_waitcnt lgkmcnt(0)"); ugemm(1)
    if FLP==1: gwait("KG_b2",mH,16,VZ,1)
    a(f"""
s_and_b32 s{sLO}, s2, {FR-1}
s_lshl_b32 s{sLO}, s{sLO}, {8+FS}
s_add_u32 s{sLO}, s{sLO}, {F_FLG}
v_lshlrev_b32 v110, {FS}, v108
buffer_load_dword v116, v110, {SR4(sR)}, s{sLO} offen{SC}
""")
    if PFP==2: pfp()
    if PFT:
        a(f"""
s_mul_i32 s{t1}, s{sW4}, {PFK*4}
v_mov_b32 v1, s{t1}
s_lshl_b32 s{t1}, s{t1}, 6
v_lshl_add_u32 v117, v{VL}, 2, s{t1}
ds_read_b32 v1, v1
ds_read_u16 v2, v117 offset:{WB}
v_mov_b32 v3, 0
s_waitcnt lgkmcnt(0)
v_cmp_lt_u32 vcc, v117, v1
s_or_b64 exec, vcc, 1
""")
        for k in range(PFT): a(f"buffer_load_dword v{QA+15}, v[2:3], {SR4(sP)}, 0 idxen offen offset:{3072+128*k}{SC}")
        a("s_mov_b64 exec, -1")
    a(f"""
s_mov_b32 s{sWU}, -1
s_or_b32 s{t1}, s{sNON}, 2
s_waitcnt vmcnt({(1 if PFP==2 else 0)+PFT})
KS_m:
v_or_b32 v2, 2, v116
v_cmp_ne_u32 vcc, s{t1}, v2
s_cbranch_vccz KS_n
s_sub_u32 s{sBUD}, s{sBUD}, 1
s_cbranch_scc1 KS_n
s_sleep {FSL}
s_mov_b64 exec, vcc
buffer_load_dword v116, v110, {SR4(sR)}, s{sLO} offen{SC}
s_mov_b64 exec, -1
s_waitcnt vmcnt(0)
s_branch KS_m
KS_n:
v_cmp_ne_u32 vcc, s{sNON}, v116
s_cbranch_vccz KS_o
ds_write_b32 v{VZ}, v{FA} offset:{mSLOW}
KS_o:
""")
    pt('flg')
    if PRIO: a("s_setprio 3")
    bar('b3')
    a(f"ds_read_b32 v1, v{VZ} offset:{mNT}\ns_waitcnt lgkmcnt(0)\nv_readfirstlane_b32 s{sNT}, v1")
    ranges()
    a("KF_J:")
    def rd_ga(off): a(f"ds_read_u16 v{GA0}, v{SB} offset:{GL+off}")
    def rd_gg(off): a(f"ds_read_u16 v{YA}, v{RB} offset:{GL+off}")
    ya=f"v_lshl_add_u32 v{EA}, v{YA}, 1, v{EC}\nv_add_u32 v{YA}, v{YA}, v{M4}"
    ry=f"ds_read_u16 v{VY}, v{YA} offset:{WB+2}"
    def rd_y(): a(ya); a(ry)
    def idx1(i): return f"ds_read_u16 v{IDX+2*i}, v{GA0} offset:{WB+4*i}"
    def rd_idx():
        for i in range(4): a(idx1(i))
    def dmai(i): return f"buffer_load_dwordx4 {P2(IDX+2*(i&3))}, {SR4(sP)}, {'0' if i<4 else 's'+str(s128)} idxen offen offset:{1024*(i&3)}{GSC} lds"
    def dma():
        for i in range(8):
            if i==0: a(f"s_mov_b32 m0, s{sBUF}\ns_nop 0")
            if i==4: a(f"s_add_u32 m0, s{sBUF}, 4096\ns_nop 0")
            a(dmai(i))
    def dma_h1(mid):
        a(f"s_add_u32 m0, s{sBUF}, 4096"); a(mid)
        for i in range(4,8): a(dmai(i))
        a(f"s_mov_b32 m0, s{sBUF}")
        rd_idx()
    def dma_idx():
        for i in range(4): a(dmai(i))
        dma_h1(ry)
    rd_b=f"ds_read_b128 {P4(B3+2)}, v{QAD}\nds_read_b128 {P4(B3+10)}, v{QAD} offset:512"
    rd_a3=f"ds_read_b64 {P2(A6)}, v{EA}\nds_read_b64 {P2(A6+2)}, v{VY} offset:{OH}\nds_read_b64 {P2(A6+4)}, v{EA}"
    def rd_a(t): return f"ds_read_b128 {P4(A+4*t)}, v{AR} offset:{4096*(t>>2)+(16*(t&1)+2*((t>>1)&1))*128}"
    def m4(z,q,j): return mfma4(z+4*j,A+16*(q>>1)+4*j+2*(q&1),None)
    rd_s=f"ds_read_b64 {P2(SS)}, v{SA2}\nds_read_b64 {P2(SS+2)}, v{SA2+1}"
    def AQ(q): return A6+2*(q&1)
    win=f"v_add3_u32 v{VY}, v{VY}, v{OH2}, s{sW8}\nv_lshl_add_u32 v{QAD}, s{sQ}, 6, v{QC}"
    rd_ga(0); rd_gg(0)
    a(f"""
ds_read_u16 v{WT}, v1 offset:{GL}
ds_read_b32 v{GP}, v{VZ} offset:{mSLOW}
s_waitcnt lgkmcnt(3)
""")
    rd_idx()
    a("s_waitcnt lgkmcnt(0)")
    dma()
    pt('d0')
    a(f"v_readlane_b32 s{sNF}, v{WT}, s{sCNT}\nv_readfirstlane_b32 s{t3}, v{GP}")
    rd_y(); rd_ga(16)
    if US: a(f"s_cmp_ge_u32 s{sWV}, 4\ns_cbranch_scc1 KF_u"); ugemm(0); a("KF_u:")
    a("s_waitcnt lgkmcnt(0)")
    rd_idx()
    a(f"""
s_cmp_lg_u32 s{t3}, 0
s_cbranch_scc1 KF_SLOW
s_lshr_b32 s{sNF}, s{sNF}, 8
v_subrev_u32 v2, s{sNF}, v{VL}
v_and_b32 v2, 15, v2
v_add_u32 v{DR}, s{sNF}, v2
v_lshlrev_b32 v2, 2, v{DR}
ds_read_b32 v{GP}, v2 offset:{BT}
s_and_b32 s{sQ}, s{sNF}, -2
s_lshl_b32 s{sQ}, s{sQ}, 3
s_sub_u32 s{sW8}, 0, s{sQ}
{win}
{rd_b}
{rd_a3}
""")
    rd_gg(16)
    a(f"""
v_lshrrev_b32 v{WT}, 9, v{WT}
v_lshlrev_b32 v{WT}, 4, v{WT}           ; 8*(w&~1)
v_mov_b32 v{SS}, 0
v_mov_b32 v{SS+1}, 0
v_mov_b32 v{SS+2}, 0
v_mov_b32 v{SS+3}, 0
v_mad_u32_u24 v{SA2}, v{SI2}, s{sT0}, v{SA2}
v_mad_u32_u24 v{SA2+1}, v{SI2+1}, s{sT0}, v{SA2+1}
s_add_u32 s{t1}, s{sT0}, s{sCNT}
s_lshl_b32 s{t1}, s{t1}, 7
s_add_u32 s{t2}, s{sWV}, 48
v_mov_b32 v1, s{t2}
{mfma32(ACC+16,SS,SS,None)}
s_waitcnt lgkmcnt(0)
""")
    rd_y(); rd_ga(32)
    a(f"""
v_cmp_gt_u32 vcc, s{t0}, v{GP}
v_cmp_gt_u32 {S2(t2)}, s{t1}, v{GP}
v_cmp_gt_u32 {S2(t0)}, s{sNN}, v{DR}
v_cndmask_b32 v{DR}, v{DR}, v1, vcc
s_cmp_lg_u64 vcc, 0
s_cselect_b32 s{sHEAD}, 1, 0
s_and_b64 vcc, {S2(t2)}, {S2(t0)}
v_lshlrev_b32 v1, 2, v{VL}
v_cndmask_b32 v{DR}, 56, v{DR}, vcc
v_lshrrev_b32 v2, 1, v{VL}
v_mul_u32_u24 v{DR}, {AS}, v{DR}
v_and_b32 v2, 24, v2
v_add_u32 v{DR}, v{DR}, v2
s_mul_i32 s{t0}, s{sNF}, {AS}
v_add_u32 v{eM0}, s{t0}, v1
s_sub_u32 s{sCNT}, s{sCNT}, 1
s_mov_b32 m0, s{sBUF}
""")
    pt('pre')
    a("s_waitcnt vmcnt(4)")
    pt('g0')
    for t in range(4): a(rd_a(t))
    a("s_waitcnt lgkmcnt(0)")
    for j in range(4): a(m4(Z[0],0,j))
    a("s_nop 3")
    a(mfma32(Z[0],AQ(0),B3,Z[0]))
    a("s_nop 9")
    pt('pro')
    def finals(qprev):
        for u in range(2): a(f"v_pk_mul_f32 {P2(NN+2*u)}, {P2(NN+2*u)}, {P2(DD+2*u)}")
        for u in range(2): a(f"v_cvt_pk_bf16_f32 v{GP+2*(qprev&1)+u}, v{NN+2*u}, v{NN+2*u+1}")
    def ex(zc,r): return f"v_exp_f32 v{EE+r}, v{zc+r}"
    def body(first):
        for q in range(4):
            zc=Z[q&1]; zn=Z[(q+1)&1]; qn=(q+1)&3
            pend=[0,1,2,3,8,9,10,11,4,5,12,13,6,7,14,15]
            f0=first and q==0
            if q==0: a(f"v_readlane_b32 s{sQ}, v{WT}, s{sCNT}")
            if q==3 or (first and q==1): a(f"s_waitcnt lgkmcnt(0)")
            for j in range(4):
                a(m4(zn,qn,j))
                a(f"v_rcp_f32 v{DD+j}, v{DD+j}" if not f0 else ex(zc,pend.pop(0)))
            agg=(q&1) and not (first and q==1)
            if agg:
                p=1 if q==1 else 0
                a(mfma32(ACC+16*p,GP,SS,None if first else ACC+16*p))
            for r in range(3 if SH3 else (4 if agg else 3)): a(ex(zc,pend.pop(0)))
            a(mfma32(zn,AQ(qn),B3+4*qn,zn))
            def bx():
                a(f"s_sub_u32 s{sW8}, 0, s{sQ}\ns_waitcnt vmcnt(0) lgkmcnt(0)\n{win}")
                rd_gg(32); rd_ga(48)
                a(rd_b); a(rd_a3); a(rd_s)
                for t in range(8): a(rd_a(t))
            if q==2 and XP==0: a(ex(zc,pend.pop(0))); bx()
            for r in range((4 if not (q==2 and XP==0) else 3)-SH3): a(ex(zc,pend.pop(0)))
            if q==2 and XP==1: bx()
            if f0:
                for i in range(4): a(dmai(i))
            if first and q==1: dma_h1("s_nop 0")
            if q==3:
                a(ya)
                if first: dma_idx()
                else:
                    a(f"s_cmp_gt_u32 s{sCNT}, 1\ns_cbranch_scc0 KF_lt")
                    dma_idx()
                    a("KF_lb:")
            if not f0: finals((q-1)&3)
            seq=[]
            for u in range(2): seq.append(f"v_pk_add_f32 {P2(DD+2*u)}, {P2(EE+8*u)}, 1.0 op_sel_hi:[1,0]")
            for m in range(1,4):
                for u in range(2):
                    src=(zc+8*u) if m==1 else NN+2*u
                    seq.append(f"v_pk_fma_f32 {P2(NN+2*u)}, {P2(src)}, {P2(EE+8*u+2*m)}, {P2(src)}")
                for u in range(2): seq.append(f"v_pk_fma_f32 {P2(NN+2*u)}, {P2(zc+8*u+2*m)}, {P2(DD+2*u)}, {P2(NN+2*u)}")
                for u in range(2): seq.append(f"v_pk_fma_f32 {P2(DD+2*u)}, {P2(DD+2*u)}, {P2(EE+8*u+2*m)}, {P2(DD+2*u)}")
            if len(pend) in (10,6): a(ex(zc,pend.pop(0)))
            slots={9:[0,1,2,3,4,6,8,10,12],8:[0,1,2,3,5,7,9,11],5:[1,4,7,10,12]}[len(pend)]
            for k,x in enumerate(seq):
                if f0 and k==H1P:
                    a("s_waitcnt vmcnt(4)")
                    for t in range(4,8): a(rd_a(t))
                a(x)
                if k in slots: a(ex(zc,pend.pop(0)))
            if q==2: a(f"v_pk_add_f32 {P2(RB)}, {P2(RB)}, {S2(sINC)}\nv_pk_add_f32 {P2(SA2)}, {P2(SA2)}, {P2(SI2)}")
    if PROF and 'dyn' in PTS: stamp(a,8); stamp(a,9,True)
    if PROF and 'clk' in PTS: stamp(a,6,True)
    n0=len(a.l)
    body(True)
    a("s_branch KF_LE\n.p2align 6\nKF_LOOP:")
    body(False)
    def keep(l):
        t=l.strip()
        if X&1 and t.startswith('buffer_load'): return False
        if X&2 and t.startswith('ds_read_b128 v[') and int(t.split('[')[1].split(':')[0])>=28: return False
        if X&8 and t.startswith('v_mfma'): return False
        if X&16 and t.startswith('v_pk_fma'): return False
        if X&32 and t.startswith('v_exp'): return False
        return True
    a.l[n0:]=[l for l in a.l[n0:] if keep(l)]
    import re
    if UNP:
        L=[]; cnt=0
        for l in a.l[n0:]:
            m=re.match(r"\s*v_pk_fma_f32 v\[(\d+):\d+\], v\[(\d+):\d+\], v\[(\d+):\d+\], v\[(\d+):\d+\]",l)
            if m:
                cnt+=1
                d,x,y,z=map(int,m.groups())
                if UNP==1 or (UNP==2 and cnt%2==0) or (UNP==3 and d>=DD):
                    for k in range(2):
                        L.append(f"    v_fmac_f32 v{d+k}, v{x+k}, v{y+k}" if d==z else f"    v_fma_f32 v{d+k}, v{x+k}, v{y+k}, v{z+k}")
                    continue
            L.append(l)
        a.l[n0:]=L
    if X&(128|256|512|1024):
        L=[]
        for l in a.l[n0:]:
            m=re.match(r"\s*v_mfma_f32_32x32x16_bf16 v\[(\d+):\d+\], v\[(\d+):\d+\], v\[(\d+):\d+\], (.*)",l)
            if m and int(m.group(1))<ACC:
                d,x,y=int(m.group(1)),int(m.group(2)),int(m.group(3))
                if X&128:
                    if y==ID0: L+=["    "+mfma16(d+4,x,ID0,None),"    "+mfma16(d+8,x,ID1,None)]
                    elif y==ID1: L.append("    "+mfma16(d+12,x,ID0,None))
                    else: L.append("    "+mfma16(d,x,y,None))
                if X&1024:
                    if y in (ID0,ID1):
                        o=0 if y==ID0 else 8
                        for k in range(2): L.append(f"    v_mfma_f32_4x4x4_16b_bf16 v[{d+o+4*k}:{d+o+4*k+3}], v[{x+2*k}:{x+2*k+1}], v[{ID0}:{ID0+1}], v[{d+o+4*k}:{d+o+4*k+3}]")
                    else: L.append(l)
                if X&256:
                    if y!=ID1: L.append(l)
                if X&512:
                    if y==ID0: L.append(f"    v_mfma_f32_32x32x64_f8f6f4 v[{d}:{d+15}], v[{x}:{x+7}], v[{ID0}:{ID0+7}], v[{d}:{d+15}]")
                    elif y!=ID1: L.append(l)
            else: L.append(l)
        a.l[n0:]=L
    a("KF_LE:")
    if PRIO: a(f"s_bitcmp1_b32 42, s{sCNT}\ns_cbranch_scc1 KF_pr\nKF_pb:")
    a(f"""
s_sub_u32 s{sCNT}, s{sCNT}, 1
s_cbranch_scc0 KF_LOOP
""")
    def loop_tails():
        a(f"KF_lt:\ns_cmp_eq_u32 s{sCNT}, s{sWU}\ns_cbranch_scc0 KF_lb")
        sdma(sA,32768,0,WV)
        a(f"""
s_branch KF_lb
KF_pr:
""")
        if PROF and 'dyn' in PTS:
            a("s_mov_b32 s90, s92\ns_mov_b32 s91, s93\ns_mov_b32 s92, s94\ns_mov_b32 s93, s95\ns_mov_b32 s94, s96\ns_mov_b32 s95, s97")
            stamp(a,8); stamp(a,9,True)
        a(f"""
s_setprio 2
s_cmp_eq_u32 s{sCNT}, 5
s_cbranch_scc1 KF_pb
s_setprio 1
s_cmp_eq_u32 s{sCNT}, 3
s_cbranch_scc1 KF_pb
s_setprio 0
s_branch KF_pb
""")
    a(f"""
s_lshl_b32 s{t0}, s{sW4}, 2
v_mov_b32 v1, s{t0}
s_cmp_ge_u32 s{sWV}, 4
s_cbranch_scc1 KF_w0
ds_write_b32 v1, v{TP} offset:{mWU}
s_branch KF_w1
KF_w0:
ds_read_b32 v2, v1 offset:{mWU}
s_waitcnt lgkmcnt(0)
v_cmp_eq_u32 vcc, 0, v2
s_cbranch_vccnz KF_w0
KF_w1:
""")
    def trw2(): trfrag(A,TP,0,2048,256); trfrag(A+16,TP,8,2048,256)
    trw2()
    for j in range(4): a(f"v_rcp_f32 v{DD+j}, v{DD+j}")
    a("s_nop 0")
    finals(3)
    a("s_nop 1")
    a(mfma32(ACC+16,GP,SS,ACC+16))
    pt('loop')
    if PROF and 'clk' in PTS: stamp(a,7,True)
    def epst():
        a(f"""
s_or_b32 s{t1}, s2, s{sWV}
s_cbranch_scc1 KF_e2
v_mov_b32 v2, s{sNON}
s_mov_b64 exec, 1
buffer_store_dword v2, v{VZ}, {SR4(sR)}, 0 offen{ESC}
s_mov_b64 exec, -1
KF_e2:
""")
    for p in range(2):
        for j in range(4):
            c=ACC+16*p+4*j
            a(f"v_cvt_pk_bf16_f32 v{c}, v{c}, v{c+1}\nv_cvt_pk_bf16_f32 v{c+1}, v{c+2}, v{c+3}")
        for j in range(4): a(f"ds_write_b64 v{DR}, {P2(ACC+16*p+4*j)} offset:{AGB+128*p+32*j}")
    a(f"""
s_cmp_eq_u32 s{sHEAD}, 0
""")
    pt('dmp')
    bar('be',"s_waitcnt vmcnt(0) lgkmcnt(0)")
    a(f"""
s_cbranch_scc1 KF_FIN
ds_read_b32 v4, v{eM0} offset:{AGB}
ds_read_b32 v5, v{eM1} offset:{AGB+48*AS}
""")
    a(f"""
s_waitcnt lgkmcnt(0)
v_lshlrev_b32 v6, 16, v4
v_and_b32 v7, 0xffff0000, v4
v_lshlrev_b32 v8, 16, v5
v_and_b32 v9, 0xffff0000, v5
v_pk_add_f32 v[6:7], v[6:7], v[8:9]
v_cvt_pk_bf16_f32 v6, v6, v7
ds_write_b32 v{eM0}, v6 offset:{AGB}
KF_FIN:
""")
    a(f"s_cmp_ge_u32 s{sWV}, 4")
    if EP_==0: epst()
    bar('mrg')
    def EXP(rs): return [f"v_exp_f32 v{EE+i}, v{UA+i}" for i in rs]
    def RCP(rs): return [f"v_rcp_f32 v{EE+i}, v{EE+i}" for i in rs]
    def FMA(rs): return [f"v_fma_f32 v{EE+i}, v{EE+i}, s{sL2E}, s{sL2E}" for i in rs]
    def FIN(tau):
        e=EE+8*tau; c=UA+8*tau
        return [f"v_pk_mul_f32 {P2(e+2*j)}, {P2(e+2*j)}, {P2(c+2*j)}" for j in range(4)]+[f"v_cvt_pk_bf16_f32 v{e+j}, v{e+2*j}, v{e+2*j+1}" for j in range(4)]+[f"ds_write_b128 v{eOW}, {P4(e)} offset:{tau*4096}"]
    def PFM(rs): return [f"v_pk_fma_f32 {P2(EE+i)}, {P2(EE+i)}, {S2(sL2E)}, {S2(sL2E)}" for i in rs]
    XE=Z[0]
    for tau in range(2):
        for s_ in range(4): a(f"ds_read_b128 {P4(XE+16*tau+4*s_)}, v{eFA} offset:{AGB+tau*16*AS+64*s_}")
    for k,(x,y) in enumerate(zip(um(0,0,0,XE,True,A),um(0,0,1,XE,True,A))): a(f"s_waitcnt lgkmcnt({7-k})"); a(x); a(y)
    a("s_waitcnt lgkmcnt(0)"); pt('e1'); a("s_cbranch_scc1 KF_eg")
    for r in range(2):
        if r==1: a("KF_eg:")
        for x,y in zip(um(r,1,0,XE+16,True,A),um(r,1,1,XE+16,True,A)): a(x); a(y)
        pt('e2')
        if r==0:
            for x in EXP(range(8))+FMA(range(8))+RCP(range(8))+EXP(range(8,16))+FIN(0)+PFM(range(8,16,2))+RCP(range(8,16))+["s_nop 0"]+FIN(1): a(x)
            a("s_branch KF_ej")
        else:
            for x in EXP(list(range(8))+[8,12])+PFM((0,2,4,6,8,12))+RCP(list(range(8))+[8,12])+FIN(0): a(x)
            a(f"""
v_mul_f32 v{EE+8}, v{EE+8}, v{UA+8}
v_mul_f32 v{EE+12}, v{EE+12}, v{UA+12}
s_mov_b64 exec, 0xffff
v_cvt_pk_bf16_f32 v{EE+8}, v{EE+8}, v{EE+12}
ds_write_b16 v{eN48}, v{EE+8}
ds_write_b16_d16_hi v{eN48}, v{EE+8} offset:8
s_mov_b64 exec, -1
""")
    a(f"KF_ej:\ns_cmp_lt_u32 s{sWV}, 5")
    pt('e3')
    bar('sil')
    a(f"""
ds_read_b128 {P4(A)}, v{eRD}
s_cbranch_scc0 KF_e1
ds_read_b128 {P4(A+4)}, v{eRD} offset:8192
s_mov_b64 exec, {S2(sE2)}
s_waitcnt lgkmcnt(0)
buffer_store_dwordx4 {P4(A+4)}, v{eST}, {SR4(sX)}, s{sE1} offen{OSC}
s_mov_b64 exec, -1
KF_e1:
s_waitcnt lgkmcnt(0)
buffer_store_dwordx4 {P4(A)}, v{eST}, {SR4(sX)}, s{sE0} offen{OSC}
""")
    pt('sto')
    a(f"""
""")
    if PROF: a("s_waitcnt vmcnt(0)")
    stamp(a,10); stamp(a,11,True)
    stamp_out(a,1,sWV)
    a("KF_END:\ns_endpgm")
    loop_tails()
    hist_retry(8,"KT_h",True)
    a("KF_CEND:")
    SV=ACC; AGs=SV+8; RS_=SV+16
    a(f"""
KF_SLOW:
s_setprio 0
s_cmp_ge_u32 s{sWV}, 4
s_cselect_b32 s{sTOT}, 0, s{sTOT}
v_mov_b32 v1, s{sTOT}
ds_max_u32 v{VZ}, v1 offset:{mMX}
v_mov_b32 v{SS}, 0
v_mov_b32 v{SS+1}, 0
v_mov_b32 v{SS+2}, 0
v_mov_b32 v{SS+3}, 0
s_mov_b32 s{sLO}, 0
s_mov_b32 s{sLB}, s{sBUF}
s_sub_u32 s{t0}, s{sWV}, s{sT0}
s_lshl_b32 s{t0}, s{t0}, 4
v_add_u32 v{SV+4}, s{t0}, v{RB}
v_add_u32 v{SV+5}, s{t0}, v{SB}
s_lshl_b32 s{t0}, s{sWV}, 4
v_sub_u32 v{SV+6}, s{t0}, v{OHC}
v_and_b32 v{SV+7}, 28, v{VL}
v_and_b32 v1, 3, v{VL}
v_lshlrev_b32 v1, 2, v1
v_lshl_or_b32 v{SV+7}, v{SV+7}, 3, v1
v_lshlrev_b32 v1, 4, v0
""")
    for j in range(3): a(f"ds_write_b128 v1, {P4(SS)} offset:{AGG+j*8192}")
    a(f"""
v_lshlrev_b32 v1, 4, v{VL}
ds_write_b128 v1, {P4(SS)} offset:{AGG+3*8192}
s_waitcnt vmcnt(0) lgkmcnt(0)
s_barrier
ds_read_b32 v1, v{VZ} offset:{mMX}
s_waitcnt lgkmcnt(0)
v_readfirstlane_b32 s{sRND}, v1
KF_SR:
s_cmp_lt_u32 s{sLO}, s{sRND}
s_cbranch_scc0 KF_SE
s_barrier
v_lshlrev_b32 v1, 2, v{VL}
v_lshlrev_b32 v2, 8, v{VL}
ds_write_b32 v1, v2
s_waitcnt lgkmcnt(0)
s_barrier
s_cmp_ge_u32 s{sWV}, 4
s_cbranch_scc1 KF_S1
s_movk_i32 s{t3}, 256
""")
    expand("KF_x")
    a(f"s_sub_u32 s{t1}, s{sTOT}, s{sLO}")
    reclist(4)
    recload(4,"KF_rl")
    for i in range(4): a(f"s_mov_b64 {S2(sM+8+2*i)}, {S2(sM+2*i)}")
    hist(4,"KF_h",0,False)
    a("s_waitcnt lgkmcnt(0)")
    for i in range(4):
        a(f"""
v_mov_b32 v{RS_+4*i}, v{RC+4*i}
v_mov_b32 v{RS_+4*i+1}, v{RC+4*i+1}
v_mov_b32 v{RS_+4*i+2}, v{RC+4*i+2}
v_lshlrev_b32 v1, 6, v{RC+4*i+3}
v_sub_u32 v1, v{RK+i}, v1
v_cndmask_b32 v{RS_+4*i+3}, -1, v1, {S2(sM+8+2*i)}
""")
    a(f"""
KF_S1:
s_mov_b32 s{sHEAD}, 0                    ; 256*k
KF_SK:
s_waitcnt lgkmcnt(0)
s_barrier
s_cmp_ge_u32 s{sWV}, 4
s_cbranch_scc1 KF_S2
s_mov_b32 s{t1}, {EB}
""")
    for i in range(4):
        a(f"""
v_subrev_u32 v1, s{sHEAD}, v{RS_+4*i+3}
v_lshrrev_b32 v2, 19, v{RS_+4*i+2}
v_lshl_add_u32 v2, v2, 8, v1
v_lshl_add_u32 v3, v2, 1, s{t1}
v_cmpx_gt_u32 vcc, 0x100, v1
ds_write_b32 v2, v{RS_+4*i+2} offset:{WB}
ds_write_b64 v3, {P2(RS_+4*i)}
s_mov_b64 exec, -1
""")
    a("KF_S2:")
    scan(True)
    a(f"s_cmp_lg_u64 {S2(t2)}, 0\ns_cselect_b32 s{sFLAG}, 1, 0")
    fill("KFs",True,8)
    a(f"""
s_add_u32 s{sNT}, s{t0}, 127
s_lshr_b32 s{sNT}, s{sNT}, 7
s_waitcnt lgkmcnt(0)
s_barrier
v_mov_b32 v{RB}, v{SV+4}
v_mov_b32 v{SB}, v{SV+5}
v_mov_b32 v{SV+12}, v{SV+6}
s_mov_b32 s{sI}, s{sWV}
KF_SL:
s_cmp_lt_u32 s{sI}, s{sNT}
s_cbranch_scc0 KF_SN
""")
    rd_ga(0); rd_gg(0)
    for j in range(4): a(f"ds_read_u16 v{AGs+j}, v{SV+12} offset:{GL+2*j}")
    a("s_waitcnt lgkmcnt(0)")
    rd_y(); rd_idx()
    a("s_waitcnt lgkmcnt(0)")
    dma()
    for j in range(4): a(f"v_lshrrev_b32 v{AGs+j}, 8, v{AGs+j}")
    a(f"""
v_readfirstlane_b32 s{sQ}, v{AGs}
s_nop 3
s_and_b32 s{sQ}, s{sQ}, -2
s_lshl_b32 s{sQ}, s{sQ}, 3
s_sub_u32 s{sW8}, 0, s{sQ}
{win}
{rd_b}
{rd_a3}
""")
    for j in range(4): a(f"v_lshl_add_u32 v{AGs+j}, v{AGs+j}, 9, v{SV+7}")
    a("s_waitcnt vmcnt(0) lgkmcnt(0)")
    for t in range(8): a(rd_a(t))
    a("s_waitcnt lgkmcnt(0)")
    for q in range(4):
        z=Z[0]
        for j in range(4): a(m4(z,q,j))
        a("s_nop 3"); a(mfma32(z,AQ(q),B3+4*q,z))
        a("s_nop 15")
        for r in range(16): a(f"v_exp_f32 v{EE+r}, v{z+r}")
        for r in range(16): a(f"v_add_f32 v{EE+r}, 1.0, v{EE+r}")
        for r in range(16): a(f"v_rcp_f32 v{EE+r}, v{EE+r}")
        for m in range(4):
            for u in range(2):
                for par in range(2):
                    r=8*u+2*m+par; g=GP+2*u+par
                    a(f"v_mul_f32 v{g}, v{z+r}, v{EE+r}" if m==0 else f"v_fmac_f32 v{g}, v{z+r}, v{EE+r}")
        for j in range(4): a(f"ds_add_f32 v{AGs+j}, v{GP+j} offset:{AGG+256*(q>>1)+16*(q&1)}")
        a("s_waitcnt lgkmcnt(0)")
    a(f"""
v_add_u32 v{SB}, 128, v{SB}
v_add_u32 v{RB}, 128, v{RB}
v_add_u32 v{SV+12}, 128, v{SV+12}
s_add_u32 s{sI}, s{sI}, 8
s_branch KF_SL
KF_SN:
s_add_u32 s{sHEAD}, s{sHEAD}, 256
s_cmp_lg_u32 s{sFLAG}, 0
s_cbranch_scc1 KF_SK
s_add_u32 s{sLO}, s{sLO}, 256
s_branch KF_SR
KF_SE:
s_cmp_ge_u32 s{sWV}, 4
s_cbranch_scc1 KF_SE2
""")
    sdma(sA,32768,0,WV)
    a(f"""
KF_SE2:
v_lshlrev_b32 v1, 4, v0
v_lshrrev_b32 v2, 5, v0
s_waitcnt vmcnt(0) lgkmcnt(0)
s_barrier
""")
    for j in range(4): a(f"ds_read_b128 {P4(A+4*j)}, v1 offset:{AGG+j*8192}")
    a(f"""
v_mul_u32_u24 v2, {AS}, v2
v_and_b32 v3, 31, v0
v_lshl_add_u32 v4, v3, 3, v2
s_waitcnt lgkmcnt(0)
s_barrier
""")
    for j in range(4):
        a(f"v_cvt_pk_bf16_f32 v{A+4*j}, v{A+4*j}, v{A+4*j+1}\nv_cvt_pk_bf16_f32 v{A+4*j+1}, v{A+4*j+2}, v{A+4*j+3}")
        a(f"ds_write_b64 v4, {P2(A+4*j)} offset:{AGB+j*16*AS}")
    trw2()
    a("s_branch KF_FIN")
    hist_retry(4,"KF_h",False)
    return a.text()

if __name__=='__main__':
    import sys
    nm='standalone__mpnn_edge_mlp__graph_kernel'
    hdr=open('standalone__mpnn_edge_mlp__graph.s.ref').read().split('; Override')[0]
    out=hdr+(f"; @launch kernel={nm} grid=(256,1,1) block=(512,1,1) lds={KF_LDS}\n" if os.environ.get('LISTF') else f"; @launch grid=(256,1,1) block=(512,1,1) lds={KF_LDS}\n")
    out+='.amdgcn_target "amdgcn-amd-amdhsa--gfx950"\n.text\n'
    out+=f".globl {nm}\n.p2align 8\n.type {nm},@function\n"+gen_kf(nm)
    out+='.section .rodata,"a"\n.p2align 6\n'+kd(nm,256)
    open(sys.argv[1],'w').write(out)
```

```python
from common import *
X=int(os.environ.get('X','0'))
PRIO=int(os.environ.get('PRIO','1'))
DSP=[int(c,36) for c in os.environ.get('DSP','00000000')]
def EV(n,d): return int(os.environ.get(n,d))
TPOS=EV('TPOS',6); PFP=EV('PFP',3); XORD=EV('XORD',1); WUI=EV('WUI',2); FLP=EV('FLP',1); FSL=EV('FSL',8); TE=1; GPN=EV("GPN",0); N4=EV("N4",0); NW=EV("NW",1); RWI=EV("RWI",0); US=EV("US",0); TP_=EV("TP",7); SWU=EV("SWU",0); EO=EV("EO",0); NS=EV("NS",7); NE=EV("NE",3); FR=EV('FR',8); FS=EV('FS',2); W1N=EV('W1N',5); GP_=EV('GP',1); NT=os.environ.get('NT',''); CLM=EV('CLM',0); CLW=EV('CLW',1); SLP=EV('SLP',1); H1P=EV('H1P',10); SH3=EV('SH3',0); EP_=EV('EP',1); ESC=os.environ.get('ESC',''); PERM=EV('PERM',0); W2N=EV('W2N',8); UL=EV('UL',0); WU1L=EV('WU1L',0); W1E=EV('W1E',0); ZL=EV('ZL',0); FST=EV('FST',0); UNP=EV('UNP',0); TLB=EV('TLB',0); DBGP=EV('DBGP',0); ALN=EV('ALN',0); PFT=EV('PFT',1); PFK=EV('PFK',7); PF0=EV('PF0',0); PFN=EV('PFN',16); XP=EV('XP',0); PFI=EV('PFI',0); SWW=EV('SWW',1)
PTS=os.environ.get('PTS','b1,bS,tp,pfl,rl,b2,b3,pro').split(',')
SC=os.environ.get('LSC',' sc1')
SSC=os.environ.get('SSC',' sc1')
OSC=os.environ.get('OSC',' sc1')
GSC=os.environ.get('GSC',' sc1')
NPROD=250; EP=1600; RST=EP*16
F_P=0x1000; F_FLG=0x9C0000; F_TBL=0x330000; F_REC=0x380000; F_SIZE=0xA00000
PB0=0x1000000 if PROF else 0; PSL=EV('PSL',0xA00000); NSL=(0x10000000-PB0-F_SIZE)//PSL+1
assert F_REC+256*RST<=F_SIZE and F_TBL+256*1024<=F_REC
CNT=0; MISC=256; OH=400; GL=928; BT=1872; STB=2144; RS=944
mSLOW=MISC; mS=MISC+4; mGX=MISC+8; mGP=MISC+12; mC3=MISC+16; mPD=MISC+20; mSL=MISC+24; mMX=MISC+28; mPI=MISC+32; mH=MISC+36; mNT=MISC+40; mW=MISC+44; mE=MISC+48; mEM=MISC+52; mNO=MISC+56; mPS=MISC+60; mWU=MISC+64
AGB=17408
W3L=AGB+56*256
Q2=AGB+16384; QS=52*128
S1=Q2; ERAW=Q2+12800
WB=Q2+4*QS; NULLG=49*256; EB=WB+NULLG+16
HIST=WB; PSC=WB+2048
GBUF=98304
KF_LDS=GBUF+65536
assert EB+2*NULLG+32<=GBUF and STB+16*RS<=AGB
AGG=STB
ONE2=0x3F803F80
NULLW2=0xFFFF|(512<<16)
CAPT=58
ID0=4; ID1=8; B3=12; A=28; Z=[60,76]; A3=92; EE=96; NN=112; DD=116; GP=120; SS=124
IDX=128; AR=144; RB=152; SB=153; SA=154; VY=155; OHC=156; VL=157; WT=158; DR=159
ACC=160; WU2=192; UA=208; WF=160; WU1=176; QA=224; RC=96; XF=28; GA=192
TP=143; WV=151; A6=244; QAD=250; QC=145; SA2=146; SI2=148; OH2=150; GA0=232; YA=234; EA=235; M4=236; EC=237; VZ=238; PO=92; TRU=240; TD=241; TC=242; TO=243; RK=244; FA=252
sP=24; sX=28; sA=32; sR=36; sM=40
sWV=56; sK=57; sNN=58; sI=59; sNT=60; sBUF=61; sQ=62; sW8=63; sCNT=64; sT0=65
sL2E=66; sINC=68; sRND=70; sTOT=71; sNON=72; sBUD=73; sW4=74; sLB=75
sWU=3; sW4K=22; sPO=23; sFLAG=76; sLO=77; sMA=78; sQ2=80; s128=81; sHEAD=82; sNF=83
t0,t1,t2,t3=84,85,86,87
BUDGET=100000
sNB=2 if PERM else sK

def mfma32(d,x,y,c): return f"v_mfma_f32_32x32x16_bf16 v[{d}:{d+15}], v[{x}:{x+3}], v[{y}:{y+3}], "+("0" if c is None else f"v[{c}:{c+15}]")
def mfma16(d,x,y,c): return f"v_mfma_f32_16x16x32_bf16 v[{d}:{d+3}], v[{x}:{x+3}], v[{y}:{y+3}], "+("0" if c is None else f"v[{c}:{c+3}]")
def mfma4(d,x,c): return f"v_mfma_f32_4x4x4_16b_bf16 v[{d}:{d+3}], v[{x}:{x+1}], v[{ID0}:{ID0+1}], "+("0" if c is None else f"v[{c}:{c+3}]")
def P2(r): return f"v[{r}:{r+1}]"
def P4(r): return f"v[{r}:{r+3}]"
def S2(r): return f"s[{r}:{r+1}]"
def SR4(r): return f"s[{r}:{r+3}]"

def gen_kf(name):
    a=Asm()
    def pt(n):
        if PROF and n in PTS: stamp(a,2+PTS.index(n))
    def ret(n):
        if PROF and n in PTS: a(f"s_sub_u32 s{90+PTS.index(n)}, {BUDGET}, s{sBUD}\ns_mul_i32 s{90+PTS.index(n)}, s{90+PTS.index(n)}, 100")
    def bar(n,w="s_waitcnt lgkmcnt(0)"):
        a(w+"\ns_barrier"); pt(n)
    def gsync(n,lab,off,target,va,vt,pre=None):
        if pre: a(pre)
        a(f"""
v_mov_b32 v{vt}, 1
s_mov_b64 exec, 1
ds_add_u32 v{va}, v{vt} offset:{off}
s_mov_b64 exec, -1
{lab}:
ds_read_b32 v{vt}, v{va} offset:{off}
s_waitcnt lgkmcnt(0)
v_readfirstlane_b32 s{t1}, v{vt}
s_and_b32 s{t1}, s{t1}, 255
s_cmp_lt_u32 s{t1}, {target}
s_cbranch_scc1 {lab}
""")
        pt(n)
    def gwait(lab,off,target,va,vt):
        if SLP: a(f"s_branch {lab}_\n{lab}:\ns_sleep {SLP}\n{lab}_:")
        else: a(f"{lab}:")
        a(f"""
ds_read_b32 v{vt}, v{va} offset:{off}
s_waitcnt lgkmcnt(0)
v_readfirstlane_b32 s{t1}, v{vt}
s_and_b32 s{t1}, s{t1}, 255
s_cmp_lt_u32 s{t1}, {target}
s_cbranch_scc1 {lab}
""")
    def consts():
        srd(a,sP,20,N,off=PB0+F_P-3072,stride=256)
        srd(a,sR,20,F_SIZE,off=PB0)
        a(f"""
s_cmp_lt_u32 s{sNB}, {N-256*48}
s_cselect_b32 s{sNN}, 49, 48
s_mov_b32 s{sL2E}, {hex(LOG2E_NEG)}
s_mov_b32 s{sL2E+1}, {hex(LOG2E_NEG)}
s_mov_b32 s{sINC}, 16
s_mov_b32 s{sINC+1}, 16
s_mov_b32 s{sMA}, 0x0000ffff
s_mov_b32 s{sMA+1}, 0x0000ffff
s_mov_b32 s{sQ2}, {Q2}
s_mov_b32 s{sBUD}, {BUDGET}
v_lshrrev_b32 v2, 5, v{VL}              ; h
; g = 4 b2 + 2 b4 + b0 ; m = 2 b3 + b1 ; slot = 16 b2 + 4 m + (g&3)
v_lshrrev_b32 v1, 3, v{VL}
v_and_b32 v1, 2, v1
v_and_or_b32 v1, v{VL}, 5, v1           ; g
v_lshlrev_b32 v{RB}, 1, v1
v_lshlrev_b32 v3, 1, v{VL}
v_and_b32 v3, 4, v3
v_and_or_b32 v{M4}, v{VL}, 8, v3        ; 4m
v_lshlrev_b32 v{EC}, 1, v{M4}
v_add_u32 v{EC}, {EB}, v{EC}
v_and_b32 v{WT}, 15, v{VL}              ; n / c16
v_lshlrev_b32 v3, 1, v3
v_and_or_b32 v3, v{VL}, 1, v3
v_lshl_or_b32 v3, v2, 2, v3
v_lshl_add_u32 v{AR}, v3, 7, s{sBUF}
v_bfe_u32 v1, v{VL}, 1, 1
v_bfe_u32 v3, v{VL}, 2, 3
v_xor_b32 v1, v1, v3
v_lshl_add_u32 v{AR}, v1, 4, v{AR}
v_mul_i32_i24 v{OHC}, -8, v2
v_mul_u32_u24 v{SA}, {RS}, v{WT}
v_and_b32 v1, 1, v{VL}
v_lshlrev_b32 v1, 4, v1
v_mov_b32 v3, 0x3f80
v_lshlrev_b32 v1, v1, v3
""")
        a(f"s_mov_b32 vcc_lo, 0x33333333\ns_mov_b32 vcc_hi, 0x33333333\nv_cndmask_b32 v{ID0}, 0, v1, vcc\nv_sub_u32 v{ID0+1}, v1, v{ID0}")
        a(f"""
v_lshrrev_b32 v2, 4, v{VL}              ; a / g
v_lshrrev_b32 v{SB}, 2, v{VL}
v_and_b32 v{SB}, 14, v{SB}
v_and_b32 v1, 7, v{VL}
v_lshlrev_b32 v1, 4, v1
s_movk_i32 s{s128}, 128
""")
        for i in range(4): a(f"v_xor_b32 v{IDX+2*i+1}, {(i&1)*16+3072-1024*i}, v1")
        a(f"v_xor_b32 v3, v2, v{WT}\nv_lshlrev_b32 v3, 4, v3\nv_lshl_add_u32 v3, v{WT}, 8, v3\nv_add_u32 v{FA}, {AGB}, v3")
        for s in range(1,4): a(f"v_xor_b32 v{FA+s}, {64*s}, v{FA}")
        a(f"""
s_lshl_b32 s{t0}, s{sW4}, 13
s_add_u32 s{t0}, s{t0}, {GBUF}
s_lshr_b32 s{t1}, s{sWV}, 2
v_lshrrev_b32 v1, 2, v{WT}
v_lshl_add_u32 v1, v2, 3, v1
v_lshl_add_u32 v{DR}, v1, 6, s{t0}
v_xor_b32 v2, s{t1}, v2
v_and_b32 v2, 1, v2
v_and_b32 v3, 3, v{VL}
v_lshl_add_u32 v{TRU}, v2, 5, v{DR}
v_lshl_add_u32 v{TRU}, v3, 3, v{TRU}
v_lshrrev_b32 v2, 3, v{VL}
v_and_b32 v2, 2, v2
v_xor_b32 v2, v2, v3
v_lshl_add_u32 v{TP}, v2, 4, v{DR}
""")
    def slot():
        a(f"""
s_mul_i32 s{sPO}, s{sNON}, 0x9E3779B1
s_mul_hi_u32 s{sPO}, s{sPO}, {NSL}
s_mul_i32 s{sPO}, s{sPO}, {PSL}
s_add_u32 s{sP}, s{sP}, s{sPO}
s_addc_u32 s{sP+1}, s{sP+1}, 0
s_add_u32 s{sR}, s{sR}, s{sPO}
s_addc_u32 s{sR+1}, s{sR+1}, 0
""")
    def vyc(VY=VY):
        a(f"""
v_lshrrev_b32 v1, 4, v{VL}
v_and_b32 v1, 2, v1
v_xor_b32 v1, v1, v{VL}
v_and_b32 v1, 3, v1
v_lshlrev_b32 v1, 4, v1
v_lshrrev_b32 v2, 2, v{VL}
v_lshl_or_b32 v{VY}, v2, 8, v1
""")
    def trfrag(dst,addr,off,ks,hs):
        for s in range(4):
            a(f"ds_read_b64_tr_b16 {P2(dst+4*s)}, v{addr} offset:{off+s*ks}\nds_read_b64_tr_b16 {P2(dst+4*s+2)}, v{addr} offset:{off+s*ks+hs}")
    def tru(dst,off): trfrag(dst,TRU,off,2048,256)
    def sdma(sr,moff,loff=0,v=VY,js=range(8)):
        a(f"s_lshl_b32 s{t0}, s{sW4}, 6")
        for j in js:
            a(f"s_add_u32 m0, s{sBUF}, {loff+j*1024}\ns_add_u32 s{t1}, s{t0}, {moff+j*4096}\nbuffer_load_dwordx4 v{v}, {SR4(sr)}, s{t1} offen lds")
    def xfrags(Ts):
        for T in Ts:
            for s in range(4): a(f"ds_read_b128 {P4(XF+16*T+4*s)}, v{FA+s} offset:{T*4096}")
    def trw(): trfrag(WF,TP,32768,2048,256); trfrag(WF+16,TP,32768+8,2048,256)
    def um(r,tau,i,xf,acc,WF=WF):
        L=[]
        for s in range(4):
            w,x=WF+16*i+4*s,xf+4*s
            d=UA+8*tau+4*i
            L.append(mfma16(d,*((x,w) if (r,tau)==(1,1) else (w,x)),d if (acc or s) else None))
        return L
    def ugemm(r):
        for tau in range(2):
            for i in range(2):
                for x in um(r,tau,i,XF+16*(2*r+tau),False): a(x)
        a("s_nop 4")
        for j in ((0,2,4,6,8,10,12,14) if r==0 else (0,2,4,6,8,12)): a(f"v_pk_mul_f32 {P2(UA+j)}, {P2(UA+j)}, {S2(sL2E)}")
    def w3rd():
        a(f"v_lshlrev_b32 v1, 3, v{VL}")
        for q in range(4): a(f"ds_read_b64 {P2(B3+4*q+2*(q&1))}, v1 offset:{W3L+q*512}")
    F=A3
    def scan(slow):
        a(f"""
v_lshlrev_b32 v1, 2, v{VL}
ds_read_b32 v{F}, v1
v_cmp_gt_u32 vcc, s{sNN}, v{VL}
v_lshlrev_b32 v{F+1}, 8, v{VL}
s_waitcnt lgkmcnt(0)
v_sub_u32 v{QA}, v{F}, v{F+1}
""")
        if slow:
            a(f"""
s_movk_i32 s{t1}, 256
v_subrev_u32 v{QA}, s{sHEAD}, v{QA}
v_cmp_lt_i32 {S2(t2)}, s{t1}, v{QA}
v_med3_i32 v{QA}, v{QA}, 0, s{t1}
v_add_u32 v{F}, v{F+1}, v{QA}
""")
        a(f"""
v_add_u32 v3, 12, v{QA}
v_and_b32 v3, -16, v3
v_max_u32 v3, 80, v3
v_cndmask_b32 v3, 0, v3, vcc
v_mov_b32 v2, v3
""")
        dpp_scan(a,"v_add_u32",[2])
        a(f"""
v_readlane_b32 s{t0}, v2, 63
v_sub_u32 v2, v2, v3
""")
    def fill(lab,slow,nw):
        a(f"""
s_lshl_b32 s{t1}, s{sWV}, 4
v_add_u32 v{QA+1}, s{t1}, v2
v_lshrrev_b32 v{QA+1}, 3, v{QA+1}       ; 2*(G0+w)
v_add_u32 v{F+1}, s{t1}, v{F+1}         ; 256n+16w
v_subrev_u32 v{QA+2}, s{t1}, v3         ; g16-16w
""")
        if not slow: a(f"v_add_u32 v{QA+3}, v{QA+1}, v{SA}\nv_mov_b32 v{F+3}, 0x3f80\nds_write_b32 v1, v2 offset:{BT}")
        for k in range(16//nw):
            a(f"v_cmpx_lt_i32 vcc, {16*nw*k}, v{QA+2}\nds_write_b16 v{QA+1}, v{F+1+(k&1)} offset:{GL+2*nw*k}")
            if k+1<16//nw: a(f"v_add_u32 v{F+1+((k+1)&1)}, {16*nw}, v{F+1+(k&1)}")
            if not slow: a(f"ds_write_b16 v{QA+3}, v{F+3} offset:{STB+2*nw*k}")
        a(f"""
s_mov_b64 exec, -1
s_lshl_b32 s{t1}, s{sWV}, 2
v_sub_u32 v{QA+2}, v3, v{QA}
v_add_u32 v{F}, s{t1}, v{F}
v_subrev_u32 v{QA+2}, s{t1}, v{QA+2}    ; pad4 - 4w
s_mov_b32 s{t1}, {EB}
v_mov_b32 v{QA+4}, 0
v_mov_b32 v{QA+5}, 0
v_mov_b32 v{QA+6}, {hex(NULLW2)}
v_lshl_add_u32 v{QA+7}, v{F}, 1, s{t1}
""")
        for k in range(-(-20//nw)):
            a(f"v_cmpx_lt_i32 vcc, {4*nw*k}, v{QA+2}")
            if k==1: a(f"s_cbranch_vccz {lab}p")
            a(f"ds_write_b32 v{F}, v{QA+6} offset:{WB+4*nw*k}\nds_write_b64 v{QA+7}, {P2(QA+4)} offset:{8*nw*k}")
        a(f"""
{lab}p:
s_mov_b64 exec, -1
s_cmp_eq_u32 s{sWV}, 3
s_cbranch_scc0 {lab}q
s_lshr_b32 s{t1}, s{t0}, 3
v_lshl_add_u32 v{QA+1}, v{VL}, 1, s{t1}
v_mov_b32 v{QA+2}, {NULLG}
v_add_u32 v{QA+3}, {NULLG}, v1
v_lshlrev_b32 v{QA+7}, 1, v1
v_add_u32 v{QA+7}, {EB+2*NULLG}, v{QA+7}
s_mov_b64 exec, 0xff
ds_write_b16 v{QA+1}, v{QA+2} offset:{GL}
s_mov_b64 exec, 15
ds_write_b32 v{QA+3}, v{QA+6} offset:{WB}
ds_write_b64 v{QA+7}, {P2(QA+4)}
s_mov_b64 exec, -1
{lab}q:
""")
    def expand(lab,win=True):
        if win: a(f"""
v_subrev_u32 v1, s{sLO}, v{TO}
v_add_u32 v2, v1, v{TC}
v_med3_i32 v1, v1, 0, s{t3}
v_med3_i32 v2, v2, 0, s{t3}
v_sub_u32 v2, v2, v1
v_lshl_add_u32 v1, v1, 2, s{sLB}
""")
        a(f"{lab}:")
        for j in range(16):
            a(f"v_cmpx_lt_i32 vcc, {j}, v2")
            if j==13: a(f"s_cbranch_vccz {lab}z")
            a(f"ds_write_b32 v1, v{TD} offset:{4*j}")
        a(f"""
v_add_u32 v2, -16, v2
v_add_u32 v1, 64, v1
v_cmp_lt_i32 vcc, 0, v2
s_cmp_lg_u64 vcc, 0
s_cbranch_scc1 {lab}
{lab}z:
s_mov_b64 exec, -1
""")
    def rl1(i): return f"buffer_load_dwordx4 {P4(RC+4*i)}, v{RK+i}, {SR4(sR)}, {'0' if i<4 else 's'+str(sQ)} offen offset:{1024*(i&3)}{SC}"
    def reclist(ns):
        a(f"v_lshl_add_u32 v1, v{VL}, 2, s{sLB}")
        for i in reversed(range(ns)): a(f"ds_read_b32 v{RK+i}, v1 offset:{256*i}")
        a(f"v_add_u32 v2, s{sLO}, v{VL}\nv_lshlrev_b32 v2, 4, v2\ns_movk_i32 s{sQ}, 4096")
        for i in range(ns):
            a(f"v_cmp_gt_i32 {S2(sM+2*i)}, s{t1}, v{VL}\ns_sub_u32 s{t1}, s{t1}, 64")
        a("s_waitcnt lgkmcnt(0)")
        for i in range(ns): a(f"v_add_u32 v{RK+i}, v{RK+i}, v2")
    def recload(ns,lab):
        for i in reversed(range(ns)):
            a(f"s_mov_b64 exec, {S2(sM+2*i)}\ns_cbranch_execz {lab}{i}\n{rl1(i)}\n{lab}{i}:")
        a("s_mov_b64 exec, -1")
    def hist(ns,lab,extra,scat):
        a(f"v_mov_b32 v1, 4\ns_mov_b32 s{sW8}, {EB}\n{lab}p:")
        def gm(i): return S2(t0+2*(i&1))
        def sc(i,n):
            a(f"""
s_mov_b64 exec, {gm(i)}
s_waitcnt lgkmcnt({n})
v_min_u32 v{RK+i}, {NULLG-4}, v{RK+i}
v_lshl_add_u32 v{RC+4*i+3}, v{RK+i}, 1, s{sW8}
ds_write_b32 v{RK+i}, v{RC+4*i+2} offset:{WB}
ds_write_b64 v{RC+4*i+3}, {P2(RC+4*i)}
""")
        for i in reversed(range(ns)):
            a(f"""
s_mov_b64 exec, {S2(sM+2*i)}
s_waitcnt vmcnt({i+extra})
v_cmpx_eq_u32 {gm(i)}, s{sNON}, v{RC+4*i+3}
v_lshrrev_b32 v{RC+4*i+3}, 17, v{RC+4*i+2}
ds_add_rtn_u32 v{RK+i}, v{RC+4*i+3}, v1
s_andn2_b64 {S2(sM+2*i)}, {S2(sM+2*i)}, {gm(i)}
""")
            a(f"s_mov_b64 vcc, {S2(sM+2*i)}" if i==ns-1 else f"s_or_b64 vcc, vcc, {S2(sM+2*i)}")
            if scat and i==0 and 0: pass
            if scat and i==0: a(f"s_cselect_b64 exec, 0, 1\nds_add_u32 v{VZ}, v1 offset:{mH}")
            if scat and i<ns-1: sc(i+1,(1 if i==ns-2 else 3)+(1 if i==0 else 0))
        if scat: sc(0,3)
        a(f"s_cbranch_vccnz {lab}r\n{lab}d:\ns_mov_b64 exec, -1")
    def hist_retry(ns,lab,scat):
        a(f"{lab}r:\ns_sub_u32 s{sBUD}, s{sBUD}, 1\ns_cbranch_scc1 {lab}x")
        recload(ns,lab+"l")
        a(f"s_waitcnt vmcnt(0)\ns_branch {lab}p\n{lab}x:\ns_mov_b32 s{sBUD}, 0")
        if scat: a(f"s_mov_b64 exec, 1\nds_add_u32 v{VZ}, v1 offset:{mH}")
        a(f"s_branch {lab}d")
    def qfull(lab,mid):
        H=QA+4; MX=QA+1
        a(f"v_xor_b32 v{TC}, 32, v{TRU}")
        trfrag(WF,TC,0,2048,256)
        a(f"""
s_lshl_b32 s{t0}, s{sW4}, 8
s_add_u32 s{t0}, s{t0}, {Q2}
v_lshrrev_b32 v1, 4, v{VL}
v_lshl_add_u32 v120, v1, 11, s{t0}
v_and_b32 v1, 8, v{VL}
v_lshl_add_u32 v120, v1, 3, v120
v_and_b32 v1, 3, v{VL}
v_lshl_add_u32 v120, v1, 4, v120
v_and_b32 v1, 4, v{VL}
v_lshl_add_u32 v120, v1, 1, v120
v_add_u32 v121, 128, v120
s_waitcnt lgkmcnt(0)
""")
        tru(WF+16,0)
        def cv(i,T,pk):
            c=GA+16*i+4*T
            L=[]
            if pk: L+=[f"v_pk_mul_f32 {P2(c)}, {P2(c)}, {S2(sL2E)}",f"v_pk_mul_f32 {P2(c+2)}, {P2(c+2)}, {S2(sL2E)}"]
            else: L+=[f"v_mul_f32 v{c+k}, s{sL2E}, v{c+k}" for k in range(4)]
            L+=[f"v_and_b32 v{H+k}, 0xffff0000, v{c+k}" for k in range(4)]
            L+=[f"v_maximum3_f32 v{MX}, {'0' if T==0 and i==0 else 'v'+str(MX)}, abs(v{c}), abs(v{c+1})",f"v_maximum3_f32 v{MX}, v{MX}, abs(v{c+2}), abs(v{c+3})"]
            if pk: L+=[f"v_pk_add_f32 {P2(c)}, {P2(c)}, {P2(H)} neg_lo:[0,1] neg_hi:[0,1]",f"v_pk_add_f32 {P2(c+2)}, {P2(c+2)}, {P2(H+2)} neg_lo:[0,1] neg_hi:[0,1]"]
            else: L+=[f"v_sub_f32 v{c+k}, v{c+k}, v{H+k}" for k in range(4)]
            L+=[f"v_cvt_pk_bf16_f32 v{c+k}, v{c+k}, v{H+k}" for k in range(4)]
            return L
        for T in range(4):
            for s in range(4): a(mfma16(GA+4*T,XF+16*T+4*s,WF+4*s,None if s==0 else GA+4*T))
        a("s_waitcnt lgkmcnt(0)")
        fl=cv(0,0,0)+cv(0,1,0)
        for T in range(4):
            for s in range(4):
                a(mfma16(GA+16+4*T,XF+16*T+4*s,WF+16+4*s,None if s==0 else GA+16+4*T))
                for _ in range(2): a(fl.pop(0))
        if PFI==0: mid()
        for x in fl+cv(0,2,1)+cv(1,0,1)+cv(1,1,1)+cv(1,2,1): a(x)
        if PFI==1: mid()
        gwait(lab+"w",mSL,4,VZ,1)
        for i in range(2):
            for T in range(3):
                c=GA+16*i+4*T
                a(f"ds_write2st64_b64 v{120+i}, {P2(c)}, {P2(c+2)} offset0:{16*T} offset1:{16*T+2}")
        a("s_mov_b64 exec, 0xffff")
        for i in range(2):
            c=GA+16*i+12
            a(f"""
v_mul_f32 v{c}, s{sL2E}, v{c}
v_and_b32 v{H}, 0xffff0000, v{c}
v_maximum3_f32 v{MX}, v{MX}, abs(v{c}), abs(v{c})
v_sub_f32 v{c}, v{c}, v{H}
v_cvt_pk_bf16_f32 v{c}, v{c}, v{H}
ds_write2st64_b64 v{120+i}, {P2(c)}, {P2(c+2)} offset0:48 offset1:50
""")
        a(f"""
s_mov_b64 exec, -1
v_cmp_nge_f32 vcc, 0x40e80000, v{MX}
s_cbranch_vccz {lab}q
ds_write_b32 v{VZ}, v{FA} offset:{mSLOW}
{lab}q:
""")
        pt('qd')
    def ranges():
        a(f"""
s_lshr_b32 s{sCNT}, s{sNT}, 3
s_mul_i32 s{sT0}, s{sCNT}, s{sWV}
s_and_b32 s{t2}, s{sNT}, 7
s_min_u32 s{t3}, s{t2}, s{sWV}
s_add_u32 s{sT0}, s{sT0}, s{t3}
s_cmp_lt_u32 s{sWV}, s{t2}
s_addc_u32 s{sCNT}, s{sCNT}, 0
s_lshl_b32 s{t0}, s{sT0}, 7
s_lshl_b32 s{t2}, s{sT0}, 4
v_add_u32 v{SB}, s{t2}, v{SB}
v_add_u32 v{RB}, s{t2}, v{RB}
s_add_u32 s{t3}, s{sT0}, s{sCNT}
v_min_u32 v1, 8, v{VL}
v_sub_u32 v1, s{t3}, v1
v_lshlrev_b32 v1, 4, v1
v_max_i32 v1, 0, v1
""")
    AS=272; OST=GBUF+32768
    eFA,eOW,eN48,eRD,eST,eM0,eM1=136,137,138,139,140,141,142
    sE0,sE1,sE2=4,5,6
    def epi_consts():
        srd(a,sX,16,N*256)
        vyc(WV)
        a(f"""
v_and_b32 v1, 15, v{VL}
v_lshrrev_b32 v2, 4, v{VL}
v_mul_u32_u24 v3, {AS}, v1
s_lshr_b32 s{t0}, s{sWV}, 2
s_mul_i32 s{t1}, s{t0}, {32*AS}
v_lshl_add_u32 v3, v2, 4, v3
v_add_u32 v{eFA}, s{t1}, v3
s_lshl_b32 s{t0}, s{t0}, 13
s_add_u32 s{t0}, s{t0}, {OST}
s_lshl_b32 s{t1}, s{sW4}, 2
v_or_b32 v2, s{t1}, v2
v_xor_b32 v2, v2, v1
v_lshl_add_u32 v2, v2, 4, s{t0}
v_lshl_add_u32 v{eOW}, v1, 8, v2
s_lshl_b32 s{t0}, s{sW4}, 6
s_add_u32 s{t0}, s{t0}, {OST+48*256}
v_and_b32 v2, 12, v1
v_lshl_add_u32 v2, v2, 2, s{t0}
v_and_b32 v3, 3, v1
v_lshl_add_u32 v{eN48}, v3, 1, v2
v_lshlrev_b32 v1, 4, v0
v_add_u32 v{eRD}, {OST}, v1
v_lshrrev_b32 v2, 4, v0
v_xor_b32 v3, v2, v0
v_and_b32 v3, 15, v3
v_lshlrev_b32 v3, 4, v3
v_lshl_add_u32 v{eST}, v2, 16, v3
s_lshl_b32 s{sE0}, s{sNB}, 8
s_add_u32 s{sE1}, s{sE0}, {32*65536}
s_cmp_lt_u32 s{sWV}, 4
s_cselect_b64 {S2(sE2)}, -1, 0xffff
s_mul_i32 s{t0}, s{sWV}, {AS}
v_lshl_add_u32 v{eM1}, v{VL}, 2, s{t0}
v_lshlrev_b32 v{OH2}, 1, v{OHC}
v_and_b32 v1, 31, v{VL}
v_lshlrev_b32 v1, 4, v1
v_lshlrev_b32 v2, 5, v{VL}
v_and_b32 v2, 0x400, v2
v_add3_u32 v{QC}, v1, v2, s{sQ2}
v_cndmask_b32 v{SI2}, 0, 16, {S2(sMA)}
v_cndmask_b32 v{SI2+1}, 16, 0, {S2(sMA)}
v_sub_u32 v2, v{SA}, v{OHC}
v_add_u32 v2, {STB}, v2
v_mov_b32 v1, {OH+64}
v_cndmask_b32 v{SA2}, v1, v2, {S2(sMA)}
v_cndmask_b32 v{SA2+1}, v2, v1, {S2(sMA)}
""")
    def arrive(off,vt): a(f"v_mov_b32 v{vt}, 1\ns_mov_b64 exec, 1\nds_add_u32 v{VZ}, v{vt} offset:{off}\ns_mov_b64 exec, -1")

    def claim():
        a(f"""
s_mul_i32 s{t1}, s{sW4}, {13*65536}
s_lshl_b32 s{t2}, s{sNB}, 8
s_add_u32 s{t1}, s{t1}, s{t2}
s_add_u32 s{t1}, s{t1}, {F_P}
""")
        if CLW==1:
            a(f"""
v_lshlrev_b32 v2, 15, v{VL}
v_and_b32 v2, 0xffff0000, v2
v_and_b32 v3, 1, v{VL}
v_lshl_add_u32 v2, v3, 7, v2
v_add_u32 v2, s{t1}, v2
s_mov_b64 exec, 0x3ffffff
global_store_dword v2, v{VZ}, s[20:21] sc1
s_mov_b64 exec, -1
""")
        else:
            a(f"""
v_lshlrev_b32 v2, 14, v{VL}
v_and_b32 v2, 0xffff0000, v2
v_and_b32 v3, 3, v{VL}
v_lshl_add_u32 v2, v3, 6, v2
v_add_u32 v2, s{t1}, v2
s_mov_b32 exec_hi, 0xfffff
global_store_dword v2, v{VZ}, s[20:21] sc1
s_mov_b64 exec, -1
""")
    D=28; SRc=36; K=44; R=52; W2=60; RO=80
    sD=40; sS=44; sE=48
    Q16="s_mov_b64 exec, 0xffff"; FULL="s_mov_b64 exec, -1"
    a(f"""
{name}:
{"s_memrealtime s[88:89]" if PROF and FST else ""}
s_getpc_b64 {S2(t2)}
s_cmp_ge_u32 s2, 256
s_cbranch_scc1 KF_END
s_load_dwordx16 s[4:19], s[0:1], 0
s_load_dwordx2 s[20:21], s[0:1], 64
v_lshrrev_b32 v1, 6, v0
s_and_b32 s{t0}, s2, 0xf8
v_add_lshl_u32 v2, v1, s{t0}, 7
v_readfirstlane_b32 s{sWV}, v1
v_min_u32 v2, KF_CEND-{name}-16, v2
s_cmp_eq_u32 s2, 0
s_cbranch_scc1 KF_n0
s_mov_b64 exec, 1
global_load_dword v{QA+15}, v2, {S2(t2)}
s_mov_b64 exec, -1
KF_n1:
v_and_b32 v{VL}, 63, v0
v_mov_b32 v{VZ}, 0
v_lshlrev_b32 v113, 4, v{VL}
s_and_b32 s{sK}, s2, 7
s_lshl_b32 s{sK}, s{sK}, 5
s_lshr_b32 s{t1}, s2, 3
s_or_b32 s{sK}, s{sK}, s{t1}
s_and_b32 s{sW4}, s{sWV}, 3
s_lshl_b32 s{sW4K}, s{sW4}, 10
s_cmp_ge_u32 s{sWV}, 4
s_cbranch_scc0 KF_S
v_lshlrev_b32 v2, 2, v0
v_lshlrev_b32 v3, 8, v{VL}
ds_write_b32 v2, v{VZ} offset:{HIST-1024}
v_lshlrev_b32 v2, 2, v{VL}
ds_write2st64_b32 v2, v3, v{VZ} offset0:0 offset1:1
v_bfe_u32 v1, v0, 4, 4
v_xor_b32 v37, v1, v0
v_and_b32 v37, 15, v37
v_lshlrev_b32 v37, 4, v37
v_lshl_add_u32 v36, v1, 8, s{sNB}
s_waitcnt lgkmcnt(0)
""")
    if WSB: a(f"s_add_u32 s20, s20, {hex(WSB)}\ns_addc_u32 s21, s21, 0")
    (0 if FST else stamp(a,0,True)); stamp(a,1); pt('st')
    a(f"""
""")
    if XORD==0:
        srd(a,sX,4,N,stride=256)
        for j in range(4):
            if j==3: a(f"s_cmp_eq_u32 s{sWV}, 4\ns_cbranch_scc0 KT_c")
            a(f"s_add_u32 m0, s{sW4K}, {AGB+j*4096}\ns_nop 0\nbuffer_load_dwordx4 v[36:37], {SR4(sX)}, 0 idxen offen{NT} lds\nv_add_u32 v36, 4096, v36")
        a("KT_c:")
    a(f"""
s_lshr_b32 s{t0}, s{t0}, 1
s_add_u32 s{t0}, s{t0}, s{sWV}
s_sub_u32 s{t0}, s{t0}, 4
s_lshl_b32 s{t0}, s{t0}, 9
v_lshl_add_u32 v2, v{VL}, 7, s{t0}
s_mov_b64 exec, 15
global_load_dword v{QA+15}, v2, s[12:13]
global_load_dword v{QA+15}, v2, s[14:15]
s_mov_b64 exec, -1
""")
    if TLB:
        a(f"""
s_lshr_b32 s{t0}, s{t0}, 9
s_mul_i32 s{t1}, s{t0}, {2*RST}
s_add_u32 s{t1}, s{t1}, {F_REC+EP*16}
s_add_u32 s52, s20, s{t1}
s_addc_u32 s53, s21, 0
s_load_dword s44, s[52:53], 0
s_load_dword s45, s[52:53], {RST}
""")
    a(f"""
s_branch KF_B0
KF_n0:                                  ; workgroup 0: wave 0 publishes the launch nonce before anything else
s_memrealtime s[44:45]
v_lshlrev_b32 v2, {2 if NW else 6}, v0
s_cmp_eq_u32 s{sWV}, 0
s_waitcnt lgkmcnt(0)
s_cbranch_scc0 KF_n1
s_lshl_b32 s46, s44, 2
s_or_b32 s46, s46, 1
v_mov_b32 v3, s46
s_mov_b64 exec, {-1 if NW else 15}
global_store_dword v2, v3, s[18:19] sc1
s_mov_b64 exec, -1
s_branch KF_n1
KF_S:
s_min_u32 s{t2}, s2, {NPROD-1}
s_mul_i32 s{t2}, s{t2}, {EP*4}
s_mul_i32 s{t3}, s{sWV}, 400
v_add_u32 v108, s{t3}, v{VL}
v_lshlrev_b32 v109, 2, v108
s_mov_b32 s{sD+2}, {E*4}
s_mov_b32 s{sD+3}, 0x00020000
s_waitcnt lgkmcnt(0)
""")
    if WSB: a(f"s_add_u32 s20, s20, {hex(WSB)}\ns_addc_u32 s21, s21, 0")
    (0 if FST else stamp(a,0,True)); stamp(a,1); pt('st')
    a(f"s_mov_b32 s{sD}, s10\ns_and_b32 s{sD+1}, s11, 0xffff")
    def ld7(dst,sr):
        for i in range(7):
            if i==6: a(Q16)
            a(f"buffer_load_dword v{dst+i}, v109, {SR4(sr)}, s{t2} offen offset:{i*256}{NT}")
        a(FULL)
    ld7(D,sD); pt('dl')
    def srcld(): srd(a,sS,8,E*4); ld7(SRc,sS)
    def eld():
        srd(a,sE,6,E*8)
        a(f"""
s_lshl_b32 s{sLB}, s{t3}, 3
s_lshl_b32 s{t2}, s{t2}, 1
s_add_u32 s{t2}, s{t2}, s{sLB}
s_add_u32 m0, s{sLB}, {ERAW}
s_add_u32 s{sLB}, s{sLB}, {S1}
""")
        for j in range(4):
            if j==3: a("s_mov_b64 exec, 0xff")
            a(f"buffer_load_dwordx4 v113, {SR4(sE)}, s{t2} offen offset:{1024*j}{NT} lds")
        a(FULL)
    if EO<2: srcld()
    if EO<1: eld()
    if CLM==2: claim()
    a(f"""
KF_B0:
""")
    if DBGP:
        a("v_mov_b32 v1, 0")
        for j,r in enumerate((4,6,8,10,12,14,16,18,20)): a(f"v_writelane_b32 v1, s{r}, {j}")
        a(f"v_lshlrev_b32 v2, 2, v{VL}\ns_mov_b64 exec, 0x1ff\nglobal_store_dword v2, v1, s[18:19]\ns_mov_b64 exec, -1\ns_waitcnt vmcnt(0)")
    if ALN: a(f"s_add_u32 s20, s20, {ALN-1}\ns_addc_u32 s21, s21, 0\ns_and_b32 s20, s20, {-ALN}")
    a(f"""
s_lshl_b32 s{sBUF}, s{sWV}, 13
s_add_u32 s{sBUF}, s{sBUF}, {GBUF}
s_barrier
""")
    if W1E:
        a(f"s_cmp_ge_u32 s{sWV}, 4\ns_cbranch_scc0 KF_c0")
        srd(a,sA,12,260*256); vyc(); sdma(sA,0,0,VY,range(W1E))
        a("KF_c0:")
    consts()
    a(f"""
s_cmp_ge_u32 s{sWV}, 4
s_cbranch_scc1 KF_T
""")
    if EO>=2: a(f"v_lshlrev_b32 v109, 2, v108"); srcld()
    if EO>=1: eld()
    a(f"""
v_mov_b32 v111, 8
v_and_b32 v124, 7, v{VL}
v_lshlrev_b32 v124, 7, v124
v_lshrrev_b32 v125, 3, v{VL}
v_lshl_add_u32 v124, v125, 2, v124
v_add_u32 v124, {HIST}, v124
v_add_u32 v125, 1024, v124
v_lshlrev_b32 v112, 3, v108
v_lshlrev_b32 v110, 4, v108
""")
    for i in range(7): a(f"v_add_u32 v{W2+1+2*i}, {i*512}, v112")
    if N4==1: a(f"s_load_dword s{sNON}, s[18:19], 0")
    if N4==2: a(f"s_mov_b32 s{sNON}, 0")
    a(f"s_cmp_ge_u32 s2, {NPROD}\ns_cbranch_scc1 KS_d\ns_waitcnt vmcnt({11+(CLM==2)})")
    pt('dst')
    if N4==2: a(f"s_load_dword s{sNON}, s[18:19], 0")
    for i in range(7):
        if i==6: a(Q16)
        a(f"v_lshlrev_b32_sdwa v{K+i}, 2, v{D+i} dst_sel:DWORD dst_unused:UNUSED_PAD src0_sel:DWORD src1_sel:BYTE_0\nds_add_rtn_u32 v{R+i}, v{K+i}, v111 offset:{HIST}")
    a(FULL+"\nKS_d:")
    gsync('b1',"KS_y1",mS,4,VZ,2)
    if PERM: a(f"ds_read2_b32 v[116:117], v124 offset0:0 offset1:8\nds_read2_b32 v[118:119], v124 offset0:16 offset1:24")
    else: a(f"ds_read_b128 v[116:119], v113 offset:{HIST}")
    if NE==3 and not N4: a(f"s_load_dword s{sNON}, s[18:19], 0")
    if N4: a(f"s_cmp_lg_u32 s{sNON}, 0\ns_cbranch_scc1 KS_na\ns_load_dword s{sNON}, s[18:19], 128\nKS_na:")
    for i in range(7): a(f"v_lshrrev_b32 v{D+i}, 8, v{D+i}")
    a(f"""
s_waitcnt lgkmcnt(0)
v_add_u32 v2, v116, v117
v_add3_u32 v2, v2, v118, v119
v_mov_b32 v3, v2
""")
    dpp_scan(a,"v_add_u32",[3])
    a(f"""
v_sub_u32 v120, v3, v2
v_add_u32 v121, v120, v116
v_add_u32 v122, v121, v117
v_add_u32 v123, v122, v118
""")
    if PERM: a(f"ds_write2_b32 v125, v120, v121 offset0:0 offset1:8\nds_write2_b32 v125, v122, v123 offset0:16 offset1:24")
    else: a(f"ds_write_b128 v113, v[120:123] offset:{HIST+1024}")
    for i in range(7):
        if i==6: a(Q16)
        a(f"ds_read_b32 v{K+i}, v{K+i} offset:{HIST+1024}")
    a(FULL)
    def tpub():
        if not NE: a(f"s_load_dword s{sNON}, s[18:19], 0")
        a(f"""
v_lshl_or_b32 v{QA}, v121, 16, v120
v_lshl_or_b32 v{QA+1}, v123, 16, v122
s_lshl_b32 s{t2}, s2, 10
s_add_u32 s{t2}, s{t2}, {F_TBL}
s_lshl_b32 s{t3}, s{sWV}, 4
""")
        for k,off in enumerate((64,192,None) if N4 else (128,64,192,None)):
            a(f"s_waitcnt lgkmcnt(0)\ns_cmp_lg_u32 s{sNON}, 0\ns_cbranch_scc1 KS_n1")
            if off is not None: a(f"s_sleep {NS}\ns_load_dword s{sNON}, s[18:19], {off}")
        a(f"""
KS_n0:
global_load_dword v1, v{VZ}, s[18:19] sc1
s_waitcnt vmcnt(0)
v_readfirstlane_b32 s{sNON}, v1
s_cmp_lg_u32 s{sNON}, 0
s_cbranch_scc1 KS_n1
s_sub_u32 s{sBUD}, s{sBUD}, 1
s_cbranch_scc0 KS_n0
s_mov_b32 s{sBUD}, 0
s_mov_b32 s{sNON}, 1
KS_n1:
v_mov_b32 v1, s{sNON}
ds_write_b32 v{VZ}, v1 offset:{mNO}
""")
        pt('non')
        slot()
        a(f"""
v_mov_b32 v{QA+3}, v1
s_lshl_b64 exec, 0xffff, s{t3}
buffer_store_dwordx4 {P4(QA)}, v113, {SR4(sR)}, s{t2} offen{SSC}
s_mov_b64 exec, -1
""")
    if NE==3: a(f"v_mov_b32 v{QA+2}, v3"); tpub()
    else: a(f"s_mov_b32 s{sNON}, 0")
    a(f"s_cmp_ge_u32 s2, {NPROD}\ns_cbranch_scc1 KS_e\ns_waitcnt vmcnt({5 if NE==3 else 4})")
    if X&64:
        for i in range(7): a(f"v_and_b32 v{SRc+i}, 0x1ff, v{SRc+i}")
    for i in range(7): a(f"v_lshl_or_b32 v{W2+2*i}, v{D+i}, 19, v{SRc+i}")
    a(f"s_waitcnt lgkmcnt(0)")
    if NE==2: a(f"s_load_dword s{sNON}, s[18:19], 0")
    for i in range(7):
        if i==6: a(Q16)
        a(f"v_add_u32 v{K+i}, v{K+i}, v{R+i}\nds_write_b64 v{K+i}, {P2(W2+2*i)} offset:{S1}")
    a(FULL+"\nKS_e:")
    pt('sc1')
    if NE<3: a(f"v_mov_b32 v{QA+2}, v3")
    if NE==1: a(f"s_load_dword s{sNON}, s[18:19], 0")
    if NE<2: epi_consts(); tpub()
    else:
        if NE==2: tpub()
        pass
    a(f"""
v_lshlrev_b32 v114, 10, v0
s_lshr_b32 s{sLO}, s{sK}, 2
s_lshl_b32 s{sLO}, s{sLO}, 4
s_add_u32 s{sLO}, s{sLO}, {F_TBL}
v_cmp_gt_u32 vcc, {NPROD}, v0
v_mov_b32 v{QA+4}, 0
v_mov_b32 v{QA+5}, 0
v_mov_b32 v{QA+6}, 0
s_mul_i32 s{t0}, s2, {RST}
s_add_u32 s{t0}, s{t0}, {F_REC}
s_add_u32 s{t2}, s{t0}, 4096
v_mul_u32_u24 v115, {RST}, v0
v_add_u32 v115, {F_REC}, v115
""")
    gsync('bS',"KS_y2",mS,8,VZ,2,f"s_waitcnt vmcnt({1+(CLM==2)})")
    tl=f"s_mov_b64 exec, vcc\nbuffer_load_dwordx4 {P4(QA+4)}, v114, {SR4(sR)}, s{sLO} offen{SC}\ns_mov_b64 exec, -1"
    a(f"""
s_cmp_ge_u32 s2, {NPROD}
s_cbranch_scc0 KS_h0
""")
    gwait("KS_h1",mGP,4,VZ,2)
    a(f"""
{tl}
s_waitcnt vmcnt(0)
v_mov_b32 v1, 0
s_branch KS_j
KS_h0:
""")
    order=[6,0,1,2,3,4,5]
    for i in order:
        if i==6: a(Q16)
        a(f"ds_read_b64 {P2(RO+2+4*i)}, v112 offset:{S1+i*512}")
        if i==6: a(FULL)
    for i in order:
        if i==6: a(Q16)
        a(f"s_waitcnt lgkmcnt(6)\nds_read_b64 {P2(RO+4*i)}, v{RO+3+4*i} offset:{ERAW}")
        if i==6: a(FULL)
    gwait("KS_ww",mW,4,VZ,2)
    for k,i in enumerate(order):
        if k==TP_: a(tl)
        if i==6: a(Q16)
        a(f"v_mov_b32 v{RO+3+4*i}, v1\nbuffer_store_dwordx4 {P4(RO+4*i)}, v110, {SR4(sR)}, s{t0 if i<4 else t2} offen offset:{1024*(i&3)}{SSC}")
        if i==6: a(FULL)
    if TP_==7: a(tl)
    pt('out')
    a(f"v_pk_maximum3_f16 v1, v{RO}, v{RO+1}, v{RO+1}\nv_pk_minimum3_f16 v2, v{RO}, v{RO+1}, v{RO+1}")
    for i in range(1,7):
        if i==6: a(Q16)
        a(f"v_pk_maximum3_f16 v1, v1, v{RO+4*i}, v{RO+4*i+1}\nv_pk_minimum3_f16 v2, v2, v{RO+4*i}, v{RO+4*i+1}")
    a(FULL)
    absmax_fin(a,1,2,3)
    dpp_scan(a,"v_max_u32",[1])
    a(f"""
KS_j:
v_mov_b32 v2, 1
s_mov_b32 exec_lo, 0
s_brev_b32 exec_hi, 1
ds_max_u32 v{VZ}, v1 offset:{mEM}
ds_add_u32 v{VZ}, v2 offset:{mE}
s_mov_b64 exec, -1
""")
    if NE>=2: epi_consts()
    gwait("KS_xw",mGX,4,VZ,2)
    xfrags([0,1])
    a(f"""
s_bitcmp1_b32 s{sK}, 1
s_cselect_b64 {S2(t2)}, -1, 0
s_lshl_b32 s{t0}, s{sK}, 4
s_and_b32 s{t0}, s{t0}, 16
s_waitcnt vmcnt({7-TP_})
s_mov_b64 exec, vcc
KT_f:
v_cmp_ne_u32 vcc, s{sNON}, v{QA+7}
s_cbranch_vccz KT_g
s_mov_b64 exec, vcc
s_sub_u32 s{sBUD}, s{sBUD}, 1
s_cbranch_scc1 KT_f2
buffer_load_dwordx4 {P4(QA+4)}, v114, {SR4(sR)}, s{sLO} offen{SC}
s_waitcnt vmcnt(0)
s_branch KT_f
KT_f2:
s_mov_b32 s{sBUD}, 0
v_mov_b32 v{QA+4}, 0
v_mov_b32 v{QA+5}, 0
v_mov_b32 v{QA+6}, 0
KT_g:
s_mov_b64 exec, -1
""")
    pt('tp'); ret('rt1')
    a(f"""
v_cndmask_b32 v1, v{QA+4}, v{QA+5}, {S2(t2)}
v_cndmask_b32 v2, v{QA+5}, v{QA+6}, {S2(t2)}
v_alignbit_b32 v1, v2, v1, s{t0}
v_sub_u32_sdwa v{TC}, v1, v1 dst_sel:DWORD dst_unused:UNUSED_PAD src0_sel:WORD_1 src1_sel:WORD_0
v_and_b32 v1, 0xffff, v1
v_lshrrev_b32 v{TC}, 3, v{TC}
v_lshl_add_u32 v{TD}, v1, 1, v115
v_mov_b32 v{TO}, v{TC}
""")
    dpp_scan(a,"v_add_u32",[TO])
    a(f"""
v_readlane_b32 s{sTOT}, v{TO}, 63
v_sub_u32 v{TO}, v{TO}, v{TC}
v_mov_b32 v2, v{TC}
v_lshlrev_b32 v1, 4, v{TO}
s_mov_b32 s{sLO}, 0
s_cmp_gt_u32 s{sTOT}, 512
v_sub_u32 v{TD}, v{TD}, v1
v_lshl_add_u32 v1, v{TO}, 2, s{sLB}
s_cselect_b32 s{t1}, 0, s{sTOT}
s_cbranch_scc1 KT_xe
""")
    expand("KT_x",False)
    a("KT_xe:")
    reclist(8)
    arrive(mSL,1)
    pt('exp')
    if SWU:
        gwait("KS_gp",mGP,4,VZ,1); srd(a,sA,14,256*256); sdma(sA,0,32768,WV)
    gwait("KS_rw",{0:mPD,1:mPS,2:mPS}[RWI],4,VZ,1)
    if SWU==2: a("s_waitcnt vmcnt(0)"); arrive(mPI,1)
    if TP_<7: a("s_waitcnt vmcnt(0)")
    recload(8,"KT_l")
    pt('rl')
    def pfp():
        a(f"""
s_lshr_b32 s{t1}, s2, 3
s_mul_i32 s{t1}, s{t1}, 391
""")
        if PF0: a(f"v_and_b32 v2, 255, v0\nv_add_u32 v2, s{t1}, v2\nv_mov_b32 v3, 0")
        else: a(f"v_bfe_u32 v2, v0, 1, 7\nv_add_u32 v2, s{t1}, v2\nv_and_b32 v3, 1, v0\nv_lshlrev_b32 v3, 7, v3")
        if PFN<64: a(f"s_bfm_b64 exec, {PFN}, 0")
        a(f"buffer_load_dword v{QA+15}, v[2:3], {SR4(sP)}, 0 idxen offen offset:3072{SC}\ns_mov_b64 exec, -1")
    if PFP==1: pfp()
    if SWU==1:
        a(f"s_add_u32 s{t1}, s{sTOT}, 63\ns_lshr_b32 s{t1}, s{t1}, 6\ns_cmp_ge_u32 s{t1}, 6\ns_cbranch_scc1 KS_v6\ns_waitcnt vmcnt(0)\nKS_v6:\ns_cmp_gt_u32 s{sTOT}, 512\ns_cbranch_scc0 KS_v7\ns_waitcnt vmcnt(0)\nKS_v7:\ns_waitcnt vmcnt(6)")
        arrive(mPI,1)
    if not US:
        if not SWU: gwait("KS_w2",mPI,4,VZ,1)
        trw()
        a("s_waitcnt lgkmcnt(0)")
        w3rd()
        ugemm(0)
    pt('ud')
    hist(8,"KT_h",1 if PFP==1 else 0,True)
    if PFP==3: pfp()
    pt('hs'); ret('rt2')
    gwait("KS_b2",mH,16,VZ,1)
    pt('b2')
    scan(False)
    a(f"""
v_cmp_lt_u32 vcc, 0x100, v{QA}
s_add_u32 s{sNT}, s{t0}, 127
s_lshr_b32 s{sNT}, s{sNT}, 7
s_cmp_gt_u32 s{sNT}, {CAPT}
s_cbranch_scc1 KT_j
s_cbranch_vccnz KT_j
""")
    fill("KFz",False,4)
    a(f"v_mov_b32 v1, s{sNT}\nds_write_b32 v{VZ}, v1 offset:{mNT}")
    pt('fil')
    a(f"""
s_cmp_gt_u32 s{sTOT}, 512
s_cbranch_scc0 KT_k
KT_j:
ds_write_b32 v{VZ}, v{FA} offset:{mSLOW}
KT_k:
s_mov_b32 s{sWU}, 1
""")
    if US: gwait("KS_w2",mPI,4,VZ,1); trw(); w3rd()
    ranges()
    srd(a,sA,14,256*256)
    if PRIO: a("s_setprio 3")
    bar('b3')
    a("s_branch KF_J")
    a(f"""
KF_T:
{"s_load_dword s47, s[18:19], 0" if GPN else ""}
v_and_b32 v108, 255, v0
v_mov_b32 v32, 0
v_mov_b32 v33, 0
v_mov_b32 v34, 0
v_mov_b32 v35, 0
v_lshlrev_b32 v110, 4, v108
""")
    sG=40
    srd(a,sX,4,N,stride=256)
    def xld():
        for j in range(4):
            if j==3: a(f"s_cmp_eq_u32 s{sWV}, 4\ns_cbranch_scc0 KT_c")
            a(f"s_add_u32 m0, s{sW4K}, {AGB+j*4096}\ns_nop 0\nbuffer_load_dwordx4 v[36:37], {SR4(sX)}, 0 idxen offen{NT} lds\nv_add_u32 v36, 4096, v36")
        a("KT_c:")
    def warm():
        a(f"""
v_and_b32 v1, 28, v{VL}
v_and_b32 v2, 3, v{VL}
v_lshlrev_b32 v2, 1, v2
v_lshl_or_b32 v1, v1, 2, v2
s_lshr_b32 s{t0}, s{sW4}, 1
s_lshl_b32 s{t0}, s{t0}, 7
s_and_b32 s{t1}, s{sW4}, 1
s_lshl_b32 s{t1}, s{t1}, 3
s_add_u32 s{t0}, s{t0}, s{t1}
s_add_u32 s{t0}, s{t0}, 65536
""")
        for k in range(4): a(f"buffer_load_ushort v{124+k}, v1, {SR4(sA)}, s{t0} offen offset:{k*256}")
    def zer():
        a(f"v_cmp_le_u32 vcc, 32, v108\ns_mov_b64 exec, vcc\nds_write_b128 v110, v[32:35]\ns_mov_b64 exec, -1")
        for j in range(1,4): a(f"ds_write_b128 v110, v[32:35] offset:{j*4096}")
        a(f"""
s_cmp_eq_u32 s{sWV}, 4
s_cbranch_scc0 KT_b
ds_write_b128 v110, v[32:35] offset:16384
KT_b:
""")
    srd(a,sA,12,260*256); warm(); vyc()
    if XORD==1: xld()
    if not ZL: zer()
    a(f"""
s_lshl_b32 s{t0}, s{sW4}, 2
v_lshrrev_b32 v2, 4, v{VL}
v_or_b32 v1, s{t0}, v2                  ; 4u+g
v_xor_b32 v3, v1, v{WT}
v_lshlrev_b32 v3, 4, v3
v_lshl_add_u32 v116, v{WT}, 8, v3
v_add_u32 v116, {PSC}, v116
v_add_u32 v117, {PSC}, v110
v_lshl_add_u32 v118, v1, 16, v3
""")
    if XORD==2:
        gwait("KG_x",mS,4,VZ,1); xld()
    sdma(sA,0,0,VY,range(W1E,8))
    sdma(sA,32768,-32768,VY,range(W2N))
    arrive(mW,1)
    if ZL: zer()
    pt('w1i')
    def w3m():
        w=[124,125,126,127]; u=QA
        for k in range(4): a(f"v_lshlrev_b32 v{w[k]}, 16, v{w[k]}\nv_mul_f32 v{w[k]}, s{sL2E}, v{w[k]}")
        a(f"""
v_cvt_pk_bf16_f32 v{u}, v124, v125
v_cvt_pk_bf16_f32 v{u+1}, v126, v127
v_lshlrev_b32 v{u+2}, 16, v{u}
v_and_b32 v{u+3}, 0xffff0000, v{u}
v_lshlrev_b32 v{u+4}, 16, v{u+1}
v_and_b32 v{u+5}, 0xffff0000, v{u+1}
v_add_f32 v{u+6}, abs(v124), abs(v125)
v_sub_f32 v{u+2}, v124, v{u+2}
v_sub_f32 v{u+3}, v125, v{u+3}
v_sub_f32 v{u+4}, v126, v{u+4}
v_sub_f32 v{u+5}, v127, v{u+5}
v_add_f32 v{u+7}, abs(v126), abs(v127)
s_mov_b32 exec_lo, 0
v_cvt_pk_bf16_f32 v{u}, v{u+2}, v{u+3}
v_cvt_pk_bf16_f32 v{u+1}, v{u+4}, v{u+5}
s_mov_b32 exec_lo, -1
v_add_f32 v{u+6}, v{u+6}, v{u+7}
v_lshlrev_b32 v1, 3, v108
v_and_b32 v{u+6}, 0x7fffffff, v{u+6}
ds_write_b64 v1, {P2(u)} offset:{W3L}
""")
        dpp_scan(a,"v_max_u32",[u+6])
        a(f"""
s_mov_b32 exec_lo, 0
s_brev_b32 exec_hi, 1
ds_max_u32 v{VZ}, v{u+6} offset:{mC3}
s_mov_b64 exec, -1
""")
    e2=W2N
    a(f"v_mov_b32 v1, {hex(ONE2)}\nds_write2_b32 v{VZ}, v1, v1 offset0:{OH//4} offset1:{OH//4+3}")
    gsync('bX',"KG_y1",mGX,4,VZ,2,f"s_waitcnt vmcnt({8+e2-W1E})")
    if GP_: a(f"s_setprio {GP_}")
    xfrags([0])
    a(f"s_waitcnt vmcnt({e2})")
    pt('xl')
    trfrag(WF,TP,32768,2048,256)
    a("s_waitcnt lgkmcnt(7)")
    trfrag(WF+16,TP,32768+8,2048,256)
    def pm(T,i):
        for s in range(4): a(mfma16(GA+8*T+4*i,WF+16*i+4*s,XF+16*T+4*s,None if s==0 else GA+8*T+4*i))
    def pcv(T):
        c=GA+8*T
        L=[f"v_mul_f32 v{c+j}, s{sL2E}, v{c+j}" for j in range(8)]
        L+=[f"v_cvt_pk_bf16_f32 v{c+j}, v{c+2*j}, v{c+2*j+1}" for j in range(4)]
        L+=[f"ds_write_b128 v116, {P4(c)} offset:{T*4096}"]
        return L
    def pmi(T,fillers):
        for i in range(2):
            for s in range(4):
                a(mfma16(GA+8*T+4*i,WF+16*i+4*s,XF+16*T+4*s,None if s==0 else GA+8*T+4*i))
                for _ in range(2):
                    if fillers: a(fillers.pop(0))
    a("s_waitcnt lgkmcnt(8)"); xfrags([1]); pm(0,0)
    a("s_waitcnt lgkmcnt(4)"); xfrags([2,3]); pm(0,1)
    a("s_waitcnt lgkmcnt(8)"); pm(1,0); pm(1,1)
    a("s_waitcnt lgkmcnt(0)"); pmi(2,pcv(0)); pmi(3,pcv(1))
    a(f"s_lshl_b32 s{t2}, s{sNB}, 8\ns_nop 2")
    for T in (2,3):
        for x in pcv(T): a(x)
    gsync('pg',"KG_y2",mGP,4,VZ,2)
    for T in range(4): a(f"ds_read_b128 {P4(PO+4*T)}, v117 offset:{T*4096}")
    a(f"""
KG_n:
ds_read_b32 v1, v{VZ} offset:{mNO}
s_waitcnt vmcnt(0) lgkmcnt(0)
v_readfirstlane_b32 s{sNON}, v1
s_cmp_eq_u32 s{sNON}, 0
s_cbranch_scc1 KG_n
""")
    slot()
    for T in range(3):
        a(f"s_add_u32 s{t1}, s{t2}, {F_P+T*16*65536}")
        a(f"buffer_store_dwordx4 {P4(PO+4*T)}, v118, {SR4(sR)}, s{t1} offen{SSC}")
    a(f"""
s_cmp_eq_u32 s{sWV}, 4
s_cbranch_scc0 KG_p
s_add_u32 s{t1}, s{t2}, {F_P+3*16*65536}
s_waitcnt lgkmcnt(0)
s_mov_b64 exec, 0xffff
buffer_store_dwordx4 {P4(PO+12)}, v118, {SR4(sR)}, s{t1} offen{SSC}
s_mov_b64 exec, -1
KG_p:
""")
    pt('pst')
    if RWI==1: arrive(mPS,1)
    if GP_: a("s_setprio 0")
    if W2N<8: sdma(sA,32768,-32768,VY,range(W2N,8))
    srd(a,sA,14,256*256)
    w3m()
    for T in range(4):
        c=GA+8*T
        if T==3: a("s_mov_b32 exec_lo, 0x10001\ns_mov_b32 exec_hi, 0x10001")
        if T==0: a(f"v_pk_maximum3_f16 v114, v{c}, v{c+1}, v{c+2}\nv_pk_minimum3_f16 v115, v{c}, v{c+1}, v{c+2}\nv_pk_maximum3_f16 v114, v114, v{c+3}, v{c+3}\nv_pk_minimum3_f16 v115, v115, v{c+3}, v{c+3}")
        else: a(f"v_pk_maximum3_f16 v114, v114, v{c}, v{c+1}\nv_pk_minimum3_f16 v115, v115, v{c}, v{c+1}\nv_pk_maximum3_f16 v114, v114, v{c+2}, v{c+3}\nv_pk_minimum3_f16 v115, v115, v{c+2}, v{c+3}")
    a("s_mov_b64 exec, -1")
    absmax_fin(a,114,115,2)
    a(f"""
v_cmp_lt_u32 vcc, 0x40e80000, v114
s_cmp_lg_u64 vcc, 0
s_cselect_b32 s{sFLAG}, 0x101, 1
""")
    def pflag(n):
        a(f"""
s_lshl_b32 s{t2}, s2, {FS}
s_add_u32 s{t2}, s{t2}, {F_FLG}
v_mov_b32 v1, s{sFLAG}
s_waitcnt vmcnt({n})
s_mov_b64 exec, 1
ds_add_rtn_u32 v1, v{VZ}, v1 offset:{mPD}
s_waitcnt lgkmcnt(0)
v_readfirstlane_b32 s{t1}, v1
s_add_u32 s{t1}, s{t1}, s{sFLAG}
s_and_b32 s{t0}, s{t1}, 255
s_cmp_eq_u32 s{t0}, 4
s_cbranch_scc0 KG_f
KG_e:
ds_read_b64 v[2:3], v{VZ} offset:{mE}
ds_read_b32 v1, v{VZ} offset:{mC3}
s_waitcnt lgkmcnt(0)
v_cmp_gt_u32 vcc, 4, v2
v_mul_f32 v1, v1, v3
s_cbranch_vccnz KG_e
v_cmp_nge_f32 vcc, 0x41680000, v1       ; !(14.5 >= e*c3)
s_lshl_b32 s{t0}, vcc_lo, 8
s_or_b32 s{t1}, s{t1}, s{t0}
s_cmp_gt_u32 s{t1}, 255
s_cselect_b32 s{t0}, 2, 0
s_xor_b32 s{t0}, s{sNON}, s{t0}
s_mov_b64 exec, {(1<<FR)-1}
v_mov_b32 v1, s{t0}
v_lshlrev_b32 v2, {8+FS}, v{VL}
buffer_store_dword v1, v2, {SR4(sR)}, s{t2} offen{SSC}
s_waitcnt vmcnt(1)
s_branch KG_f2
KG_f:
s_waitcnt vmcnt(0)
KG_f2:
s_mov_b64 exec, -1
""")
        pt('pfl')
    def mid():
        sdma(sA,0)
        if RWI==2: arrive(mPS,1)
        pflag(8); arrive(mPI,1)
    if W2N<8:
        if WU1L:
            pflag(8-W2N); qfull("KGq",lambda: sdma(sA,0)); a("s_waitcnt vmcnt(0)"); arrive(mPI,1)
        else:
            sdma(sA,0); epi_consts(); pflag(16-W2N); arrive(mPI,1); qfull("KGq",lambda: 0)
    elif WU1L:
        if PFI==2: pflag(0)
        qfull("KGq",lambda: pflag(0)); sdma(sA,0); epi_consts(); a("s_waitcnt vmcnt(0)"); arrive(mPI,1)
    elif SWU:
        if PFI==2: pflag(0)
        qfull("KGq",lambda: pflag(0)); epi_consts(); gwait("KG_pi",mPI,4,VZ,1)
    else: qfull("KGq",mid); epi_consts()
    gwait("KG_w3",mPD,4,VZ,1)
    w3rd(); trw()
    a("s_waitcnt lgkmcnt(0)"); ugemm(1)
    if FLP==1: gwait("KG_b2",mH,16,VZ,1)
    a(f"""
s_and_b32 s{sLO}, s2, {FR-1}
s_lshl_b32 s{sLO}, s{sLO}, {8+FS}
s_add_u32 s{sLO}, s{sLO}, {F_FLG}
v_lshlrev_b32 v110, {FS}, v108
buffer_load_dword v116, v110, {SR4(sR)}, s{sLO} offen{SC}
""")
    if PFP==2: pfp()
    if PFT:
        a(f"""
s_mul_i32 s{t1}, s{sW4}, {PFK*4}
v_mov_b32 v1, s{t1}
s_lshl_b32 s{t1}, s{t1}, 6
v_lshl_add_u32 v117, v{VL}, 2, s{t1}
ds_read_b32 v1, v1
ds_read_u16 v2, v117 offset:{WB}
v_mov_b32 v3, 0
s_waitcnt lgkmcnt(0)
v_cmp_lt_u32 vcc, v117, v1
s_or_b64 exec, vcc, 1
""")
        for k in range(PFT): a(f"buffer_load_dword v{QA+15}, v[2:3], {SR4(sP)}, 0 idxen offen offset:{3072+128*k}{SC}")
        a("s_mov_b64 exec, -1")
    a(f"""
s_mov_b32 s{sWU}, -1
s_or_b32 s{t1}, s{sNON}, 2
s_waitcnt vmcnt({(1 if PFP==2 else 0)+PFT})
KS_m:
v_or_b32 v2, 2, v116
v_cmp_ne_u32 vcc, s{t1}, v2
s_cbranch_vccz KS_n
s_sub_u32 s{sBUD}, s{sBUD}, 1
s_cbranch_scc1 KS_n
s_sleep {FSL}
s_mov_b64 exec, vcc
buffer_load_dword v116, v110, {SR4(sR)}, s{sLO} offen{SC}
s_mov_b64 exec, -1
s_waitcnt vmcnt(0)
s_branch KS_m
KS_n:
v_cmp_ne_u32 vcc, s{sNON}, v116
s_cbranch_vccz KS_o
ds_write_b32 v{VZ}, v{FA} offset:{mSLOW}
KS_o:
""")
    pt('flg')
    if PRIO: a("s_setprio 3")
    bar('b3')
    a(f"ds_read_b32 v1, v{VZ} offset:{mNT}\ns_waitcnt lgkmcnt(0)\nv_readfirstlane_b32 s{sNT}, v1")
    ranges()
    a("KF_J:")
    def rd_ga(off): a(f"ds_read_u16 v{GA0}, v{SB} offset:{GL+off}")
    def rd_gg(off): a(f"ds_read_u16 v{YA}, v{RB} offset:{GL+off}")
    ya=f"v_lshl_add_u32 v{EA}, v{YA}, 1, v{EC}\nv_add_u32 v{YA}, v{YA}, v{M4}"
    ry=f"ds_read_u16 v{VY}, v{YA} offset:{WB+2}"
    def rd_y(): a(ya); a(ry)
    def idx1(i): return f"ds_read_u16 v{IDX+2*i}, v{GA0} offset:{WB+4*i}"
    def rd_idx():
        for i in range(4): a(idx1(i))
    def dmai(i): return f"buffer_load_dwordx4 {P2(IDX+2*(i&3))}, {SR4(sP)}, {'0' if i<4 else 's'+str(s128)} idxen offen offset:{1024*(i&3)}{GSC} lds"
    def dma():
        for i in range(8):
            if i==0: a(f"s_mov_b32 m0, s{sBUF}\ns_nop 0")
            if i==4: a(f"s_add_u32 m0, s{sBUF}, 4096\ns_nop 0")
            a(dmai(i))
    def dma_h1(mid):
        a(f"s_add_u32 m0, s{sBUF}, 4096"); a(mid)
        for i in range(4,8): a(dmai(i))
        a(f"s_mov_b32 m0, s{sBUF}")
        rd_idx()
    def dma_idx():
        for i in range(4): a(dmai(i))
        dma_h1(ry)
    rd_b=f"ds_read_b128 {P4(B3+2)}, v{QAD}\nds_read_b128 {P4(B3+10)}, v{QAD} offset:512"
    rd_a3=f"ds_read_b64 {P2(A6)}, v{EA}\nds_read_b64 {P2(A6+2)}, v{VY} offset:{OH}\nds_read_b64 {P2(A6+4)}, v{EA}"
    def rd_a(t): return f"ds_read_b128 {P4(A+4*t)}, v{AR} offset:{4096*(t>>2)+(16*(t&1)+2*((t>>1)&1))*128}"
    def m4(z,q,j): return mfma4(z+4*j,A+16*(q>>1)+4*j+2*(q&1),None)
    rd_s=f"ds_read_b64 {P2(SS)}, v{SA2}\nds_read_b64 {P2(SS+2)}, v{SA2+1}"
    def AQ(q): return A6+2*(q&1)
    win=f"v_add3_u32 v{VY}, v{VY}, v{OH2}, s{sW8}\nv_lshl_add_u32 v{QAD}, s{sQ}, 6, v{QC}"
    rd_ga(0); rd_gg(0)
    a(f"""
ds_read_u16 v{WT}, v1 offset:{GL}
ds_read_b32 v{GP}, v{VZ} offset:{mSLOW}
s_waitcnt lgkmcnt(3)
""")
    rd_idx()
    a("s_waitcnt lgkmcnt(0)")
    dma()
    pt('d0')
    a(f"v_readlane_b32 s{sNF}, v{WT}, s{sCNT}\nv_readfirstlane_b32 s{t3}, v{GP}")
    rd_y(); rd_ga(16)
    if US: a(f"s_cmp_ge_u32 s{sWV}, 4\ns_cbranch_scc1 KF_u"); ugemm(0); a("KF_u:")
    a("s_waitcnt lgkmcnt(0)")
    rd_idx()
    a(f"""
s_cmp_lg_u32 s{t3}, 0
s_cbranch_scc1 KF_SLOW
s_lshr_b32 s{sNF}, s{sNF}, 8
v_subrev_u32 v2, s{sNF}, v{VL}
v_and_b32 v2, 15, v2
v_add_u32 v{DR}, s{sNF}, v2
v_lshlrev_b32 v2, 2, v{DR}
ds_read_b32 v{GP}, v2 offset:{BT}
s_and_b32 s{sQ}, s{sNF}, -2
s_lshl_b32 s{sQ}, s{sQ}, 3
s_sub_u32 s{sW8}, 0, s{sQ}
{win}
{rd_b}
{rd_a3}
""")
    rd_gg(16)
    a(f"""
v_lshrrev_b32 v{WT}, 9, v{WT}
v_lshlrev_b32 v{WT}, 4, v{WT}           ; 8*(w&~1)
v_mov_b32 v{SS}, 0
v_mov_b32 v{SS+1}, 0
v_mov_b32 v{SS+2}, 0
v_mov_b32 v{SS+3}, 0
v_mad_u32_u24 v{SA2}, v{SI2}, s{sT0}, v{SA2}
v_mad_u32_u24 v{SA2+1}, v{SI2+1}, s{sT0}, v{SA2+1}
s_add_u32 s{t1}, s{sT0}, s{sCNT}
s_lshl_b32 s{t1}, s{t1}, 7
s_add_u32 s{t2}, s{sWV}, 48
v_mov_b32 v1, s{t2}
{mfma32(ACC+16,SS,SS,None)}
s_waitcnt lgkmcnt(0)
""")
    rd_y(); rd_ga(32)
    a(f"""
v_cmp_gt_u32 vcc, s{t0}, v{GP}
v_cmp_gt_u32 {S2(t2)}, s{t1}, v{GP}
v_cmp_gt_u32 {S2(t0)}, s{sNN}, v{DR}
v_cndmask_b32 v{DR}, v{DR}, v1, vcc
s_cmp_lg_u64 vcc, 0
s_cselect_b32 s{sHEAD}, 1, 0
s_and_b64 vcc, {S2(t2)}, {S2(t0)}
v_lshlrev_b32 v1, 2, v{VL}
v_cndmask_b32 v{DR}, 56, v{DR}, vcc
v_lshrrev_b32 v2, 1, v{VL}
v_mul_u32_u24 v{DR}, {AS}, v{DR}
v_and_b32 v2, 24, v2
v_add_u32 v{DR}, v{DR}, v2
s_mul_i32 s{t0}, s{sNF}, {AS}
v_add_u32 v{eM0}, s{t0}, v1
s_sub_u32 s{sCNT}, s{sCNT}, 1
s_mov_b32 m0, s{sBUF}
""")
    pt('pre')
    a("s_waitcnt vmcnt(4)")
    pt('g0')
    for t in range(4): a(rd_a(t))
    a("s_waitcnt lgkmcnt(0)")
    for j in range(4): a(m4(Z[0],0,j))
    a("s_nop 3")
    a(mfma32(Z[0],AQ(0),B3,Z[0]))
    a("s_nop 9")
    pt('pro')
    def finals(qprev):
        for u in range(2): a(f"v_pk_mul_f32 {P2(NN+2*u)}, {P2(NN+2*u)}, {P2(DD+2*u)}")
        for u in range(2): a(f"v_cvt_pk_bf16_f32 v{GP+2*(qprev&1)+u}, v{NN+2*u}, v{NN+2*u+1}")
    def ex(zc,r): return f"v_exp_f32 v{EE+r}, v{zc+r}"
    def body(first):
        for q in range(4):
            zc=Z[q&1]; zn=Z[(q+1)&1]; qn=(q+1)&3
            pend=[0,1,2,3,8,9,10,11,4,5,12,13,6,7,14,15]
            f0=first and q==0
            if q==0: a(f"v_readlane_b32 s{sQ}, v{WT}, s{sCNT}")
            if q==3 or (first and q==1): a(f"s_waitcnt lgkmcnt(0)")
            for j in range(4):
                a(m4(zn,qn,j))
                a(f"v_rcp_f32 v{DD+j}, v{DD+j}" if not f0 else ex(zc,pend.pop(0)))
            agg=(q&1) and not (first and q==1)
            if agg:
                p=1 if q==1 else 0
                a(mfma32(ACC+16*p,GP,SS,None if first else ACC+16*p))
            for r in range(3 if SH3 else (4 if agg else 3)): a(ex(zc,pend.pop(0)))
            a(mfma32(zn,AQ(qn),B3+4*qn,zn))
            def bx():
                a(f"s_sub_u32 s{sW8}, 0, s{sQ}\ns_waitcnt vmcnt(0) lgkmcnt(0)\n{win}")
                rd_gg(32); rd_ga(48)
                a(rd_b); a(rd_a3); a(rd_s)
                for t in range(8): a(rd_a(t))
            if q==2 and XP==0: a(ex(zc,pend.pop(0))); bx()
            for r in range((4 if not (q==2 and XP==0) else 3)-SH3): a(ex(zc,pend.pop(0)))
            if q==2 and XP==1: bx()
            if f0:
                for i in range(4): a(dmai(i))
            if first and q==1: dma_h1("s_nop 0")
            if q==3:
                a(ya)
                if first: dma_idx()
                else:
                    a(f"s_cmp_gt_u32 s{sCNT}, 1\ns_cbranch_scc0 KF_lt")
                    dma_idx()
                    a("KF_lb:")
            if not f0: finals((q-1)&3)
            seq=[]
            for u in range(2): seq.append(f"v_pk_add_f32 {P2(DD+2*u)}, {P2(EE+8*u)}, 1.0 op_sel_hi:[1,0]")
            for m in range(1,4):
                for u in range(2):
                    src=(zc+8*u) if m==1 else NN+2*u
                    seq.append(f"v_pk_fma_f32 {P2(NN+2*u)}, {P2(src)}, {P2(EE+8*u+2*m)}, {P2(src)}")
                for u in range(2): seq.append(f"v_pk_fma_f32 {P2(NN+2*u)}, {P2(zc+8*u+2*m)}, {P2(DD+2*u)}, {P2(NN+2*u)}")
                for u in range(2): seq.append(f"v_pk_fma_f32 {P2(DD+2*u)}, {P2(DD+2*u)}, {P2(EE+8*u+2*m)}, {P2(DD+2*u)}")
            if len(pend) in (10,6): a(ex(zc,pend.pop(0)))
            slots={9:[0,1,2,3,4,6,8,10,12],8:[0,1,2,3,5,7,9,11],5:[1,4,7,10,12]}[len(pend)]
            for k,x in enumerate(seq):
                if f0 and k==H1P:
                    a("s_waitcnt vmcnt(4)")
                    for t in range(4,8): a(rd_a(t))
                a(x)
                if k in slots: a(ex(zc,pend.pop(0)))
            if q==2: a(f"v_pk_add_f32 {P2(RB)}, {P2(RB)}, {S2(sINC)}\nv_pk_add_f32 {P2(SA2)}, {P2(SA2)}, {P2(SI2)}")
    if PROF and 'dyn' in PTS: stamp(a,8); stamp(a,9,True)
    if PROF and 'clk' in PTS: stamp(a,6,True)
    n0=len(a.l)
    body(True)
    a("s_branch KF_LE\n.p2align 6\nKF_LOOP:")
    body(False)
    def keep(l):
        t=l.strip()
        if X&1 and t.startswith('buffer_load'): return False
        if X&2 and t.startswith('ds_read_b128 v[') and int(t.split('[')[1].split(':')[0])>=28: return False
        if X&8 and t.startswith('v_mfma'): return False
        if X&16 and t.startswith('v_pk_fma'): return False
        if X&32 and t.startswith('v_exp'): return False
        return True
    a.l[n0:]=[l for l in a.l[n0:] if keep(l)]
    import re
    if UNP:
        L=[]; cnt=0
        for l in a.l[n0:]:
            m=re.match(r"\s*v_pk_fma_f32 v\[(\d+):\d+\], v\[(\d+):\d+\], v\[(\d+):\d+\], v\[(\d+):\d+\]",l)
            if m:
                cnt+=1
                d,x,y,z=map(int,m.groups())
                if UNP==1 or (UNP==2 and cnt%2==0) or (UNP==3 and d>=DD):
                    for k in range(2):
                        L.append(f"    v_fmac_f32 v{d+k}, v{x+k}, v{y+k}" if d==z else f"    v_fma_f32 v{d+k}, v{x+k}, v{y+k}, v{z+k}")
                    continue
            L.append(l)
        a.l[n0:]=L
    if X&(128|256|512|1024):
        L=[]
        for l in a.l[n0:]:
            m=re.match(r"\s*v_mfma_f32_32x32x16_bf16 v\[(\d+):\d+\], v\[(\d+):\d+\], v\[(\d+):\d+\], (.*)",l)
            if m and int(m.group(1))<ACC:
                d,x,y=int(m.group(1)),int(m.group(2)),int(m.group(3))
                if X&128:
                    if y==ID0: L+=["    "+mfma16(d+4,x,ID0,None),"    "+mfma16(d+8,x,ID1,None)]
                    elif y==ID1: L.append("    "+mfma16(d+12,x,ID0,None))
                    else: L.append("    "+mfma16(d,x,y,None))
                if X&1024:
                    if y in (ID0,ID1):
                        o=0 if y==ID0 else 8
                        for k in range(2): L.append(f"    v_mfma_f32_4x4x4_16b_bf16 v[{d+o+4*k}:{d+o+4*k+3}], v[{x+2*k}:{x+2*k+1}], v[{ID0}:{ID0+1}], v[{d+o+4*k}:{d+o+4*k+3}]")
                    else: L.append(l)
                if X&256:
                    if y!=ID1: L.append(l)
                if X&512:
                    if y==ID0: L.append(f"    v_mfma_f32_32x32x64_f8f6f4 v[{d}:{d+15}], v[{x}:{x+7}], v[{ID0}:{ID0+7}], v[{d}:{d+15}]")
                    elif y!=ID1: L.append(l)
            else: L.append(l)
        a.l[n0:]=L
    a("KF_LE:")
    if PRIO: a(f"s_bitcmp1_b32 42, s{sCNT}\ns_cbranch_scc1 KF_pr\nKF_pb:")
    a(f"""
s_sub_u32 s{sCNT}, s{sCNT}, 1
s_cbranch_scc0 KF_LOOP
""")
    def loop_tails():
        a(f"KF_lt:\ns_cmp_eq_u32 s{sCNT}, s{sWU}\ns_cbranch_scc0 KF_lb")
        sdma(sA,32768,0,WV)
        a(f"""
s_branch KF_lb
KF_pr:
""")
        if PROF and 'dyn' in PTS:
            a("s_mov_b32 s90, s92\ns_mov_b32 s91, s93\ns_mov_b32 s92, s94\ns_mov_b32 s93, s95\ns_mov_b32 s94, s96\ns_mov_b32 s95, s97")
            stamp(a,8); stamp(a,9,True)
        a(f"""
s_setprio 2
s_cmp_eq_u32 s{sCNT}, 5
s_cbranch_scc1 KF_pb
s_setprio 1
s_cmp_eq_u32 s{sCNT}, 3
s_cbranch_scc1 KF_pb
s_setprio 0
s_branch KF_pb
""")
    a(f"""
s_lshl_b32 s{t0}, s{sW4}, 2
v_mov_b32 v1, s{t0}
s_cmp_ge_u32 s{sWV}, 4
s_cbranch_scc1 KF_w0
ds_write_b32 v1, v{TP} offset:{mWU}
s_branch KF_w1
KF_w0:
ds_read_b32 v2, v1 offset:{mWU}
s_waitcnt lgkmcnt(0)
v_cmp_eq_u32 vcc, 0, v2
s_cbranch_vccnz KF_w0
KF_w1:
""")
    def trw2(): trfrag(A,TP,0,2048,256); trfrag(A+16,TP,8,2048,256)
    trw2()
    for j in range(4): a(f"v_rcp_f32 v{DD+j}, v{DD+j}")
    a("s_nop 0")
    finals(3)
    a("s_nop 1")
    a(mfma32(ACC+16,GP,SS,ACC+16))
    pt('loop')
    if PROF and 'clk' in PTS: stamp(a,7,True)
    def epst():
        a(f"""
s_or_b32 s{t1}, s2, s{sWV}
s_cbranch_scc1 KF_e2
v_mov_b32 v2, s{sNON}
s_mov_b64 exec, 1
buffer_store_dword v2, v{VZ}, {SR4(sR)}, 0 offen{ESC}
s_mov_b64 exec, -1
KF_e2:
""")
    for p in range(2):
        for j in range(4):
            c=ACC+16*p+4*j
            a(f"v_cvt_pk_bf16_f32 v{c}, v{c}, v{c+1}\nv_cvt_pk_bf16_f32 v{c+1}, v{c+2}, v{c+3}")
        for j in range(4): a(f"ds_write_b64 v{DR}, {P2(ACC+16*p+4*j)} offset:{AGB+128*p+32*j}")
    a(f"""
s_cmp_eq_u32 s{sHEAD}, 0
""")
    pt('dmp')
    bar('be',"s_waitcnt vmcnt(0) lgkmcnt(0)")
    a(f"""
s_cbranch_scc1 KF_FIN
ds_read_b32 v4, v{eM0} offset:{AGB}
ds_read_b32 v5, v{eM1} offset:{AGB+48*AS}
""")
    a(f"""
s_waitcnt lgkmcnt(0)
v_lshlrev_b32 v6, 16, v4
v_and_b32 v7, 0xffff0000, v4
v_lshlrev_b32 v8, 16, v5
v_and_b32 v9, 0xffff0000, v5
v_pk_add_f32 v[6:7], v[6:7], v[8:9]
v_cvt_pk_bf16_f32 v6, v6, v7
ds_write_b32 v{eM0}, v6 offset:{AGB}
KF_FIN:
""")
    a(f"s_cmp_ge_u32 s{sWV}, 4")
    if EP_==0: epst()
    bar('mrg')
    def EXP(rs): return [f"v_exp_f32 v{EE+i}, v{UA+i}" for i in rs]
    def RCP(rs): return [f"v_rcp_f32 v{EE+i}, v{EE+i}" for i in rs]
    def FMA(rs): return [f"v_fma_f32 v{EE+i}, v{EE+i}, s{sL2E}, s{sL2E}" for i in rs]
    def FIN(tau):
        e=EE+8*tau; c=UA+8*tau
        return [f"v_pk_mul_f32 {P2(e+2*j)}, {P2(e+2*j)}, {P2(c+2*j)}" for j in range(4)]+[f"v_cvt_pk_bf16_f32 v{e+j}, v{e+2*j}, v{e+2*j+1}" for j in range(4)]+[f"ds_write_b128 v{eOW}, {P4(e)} offset:{tau*4096}"]
    def PFM(rs): return [f"v_pk_fma_f32 {P2(EE+i)}, {P2(EE+i)}, {S2(sL2E)}, {S2(sL2E)}" for i in rs]
    XE=Z[0]
    for tau in range(2):
        for s_ in range(4): a(f"ds_read_b128 {P4(XE+16*tau+4*s_)}, v{eFA} offset:{AGB+tau*16*AS+64*s_}")
    for k,(x,y) in enumerate(zip(um(0,0,0,XE,True,A),um(0,0,1,XE,True,A))): a(f"s_waitcnt lgkmcnt({7-k})"); a(x); a(y)
    a("s_waitcnt lgkmcnt(0)"); pt('e1'); a("s_cbranch_scc1 KF_eg")
    for r in range(2):
        if r==1: a("KF_eg:")
        for x,y in zip(um(r,1,0,XE+16,True,A),um(r,1,1,XE+16,True,A)): a(x); a(y)
        pt('e2')
        if r==0:
            for x in EXP(range(8))+FMA(range(8))+RCP(range(8))+EXP(range(8,16))+FIN(0)+PFM(range(8,16,2))+RCP(range(8,16))+["s_nop 0"]+FIN(1): a(x)
            a("s_branch KF_ej")
        else:
            for x in EXP(list(range(8))+[8,12])+PFM((0,2,4,6,8,12))+RCP(list(range(8))+[8,12])+FIN(0): a(x)
            a(f"""
v_mul_f32 v{EE+8}, v{EE+8}, v{UA+8}
v_mul_f32 v{EE+12}, v{EE+12}, v{UA+12}
s_mov_b64 exec, 0xffff
v_cvt_pk_bf16_f32 v{EE+8}, v{EE+8}, v{EE+12}
ds_write_b16 v{eN48}, v{EE+8}
ds_write_b16_d16_hi v{eN48}, v{EE+8} offset:8
s_mov_b64 exec, -1
""")
    a(f"KF_ej:\ns_cmp_lt_u32 s{sWV}, 5")
    pt('e3')
    bar('sil')
    a(f"""
ds_read_b128 {P4(A)}, v{eRD}
s_cbranch_scc0 KF_e1
ds_read_b128 {P4(A+4)}, v{eRD} offset:8192
s_mov_b64 exec, {S2(sE2)}
s_waitcnt lgkmcnt(0)
buffer_store_dwordx4 {P4(A+4)}, v{eST}, {SR4(sX)}, s{sE1} offen{OSC}
s_mov_b64 exec, -1
KF_e1:
s_waitcnt lgkmcnt(0)
buffer_store_dwordx4 {P4(A)}, v{eST}, {SR4(sX)}, s{sE0} offen{OSC}
""")
    pt('sto')
    a(f"""
""")
    if PROF: a("s_waitcnt vmcnt(0)")
    stamp(a,10); stamp(a,11,True)
    stamp_out(a,1,sWV)
    a("KF_END:\ns_endpgm")
    loop_tails()
    hist_retry(8,"KT_h",True)
    a("KF_CEND:")
    SV=ACC; AGs=SV+8; RS_=SV+16
    a(f"""
KF_SLOW:
s_setprio 0
s_cmp_ge_u32 s{sWV}, 4
s_cselect_b32 s{sTOT}, 0, s{sTOT}
v_mov_b32 v1, s{sTOT}
ds_max_u32 v{VZ}, v1 offset:{mMX}
v_mov_b32 v{SS}, 0
v_mov_b32 v{SS+1}, 0
v_mov_b32 v{SS+2}, 0
v_mov_b32 v{SS+3}, 0
s_mov_b32 s{sLO}, 0
s_mov_b32 s{sLB}, s{sBUF}
s_sub_u32 s{t0}, s{sWV}, s{sT0}
s_lshl_b32 s{t0}, s{t0}, 4
v_add_u32 v{SV+4}, s{t0}, v{RB}
v_add_u32 v{SV+5}, s{t0}, v{SB}
s_lshl_b32 s{t0}, s{sWV}, 4
v_sub_u32 v{SV+6}, s{t0}, v{OHC}
v_and_b32 v{SV+7}, 28, v{VL}
v_and_b32 v1, 3, v{VL}
v_lshlrev_b32 v1, 2, v1
v_lshl_or_b32 v{SV+7}, v{SV+7}, 3, v1
v_lshlrev_b32 v1, 4, v0
""")
    for j in range(3): a(f"ds_write_b128 v1, {P4(SS)} offset:{AGG+j*8192}")
    a(f"""
v_lshlrev_b32 v1, 4, v{VL}
ds_write_b128 v1, {P4(SS)} offset:{AGG+3*8192}
s_waitcnt vmcnt(0) lgkmcnt(0)
s_barrier
ds_read_b32 v1, v{VZ} offset:{mMX}
s_waitcnt lgkmcnt(0)
v_readfirstlane_b32 s{sRND}, v1
KF_SR:
s_cmp_lt_u32 s{sLO}, s{sRND}
s_cbranch_scc0 KF_SE
s_barrier
v_lshlrev_b32 v1, 2, v{VL}
v_lshlrev_b32 v2, 8, v{VL}
ds_write_b32 v1, v2
s_waitcnt lgkmcnt(0)
s_barrier
s_cmp_ge_u32 s{sWV}, 4
s_cbranch_scc1 KF_S1
s_movk_i32 s{t3}, 256
""")
    expand("KF_x")
    a(f"s_sub_u32 s{t1}, s{sTOT}, s{sLO}")
    reclist(4)
    recload(4,"KF_rl")
    for i in range(4): a(f"s_mov_b64 {S2(sM+8+2*i)}, {S2(sM+2*i)}")
    hist(4,"KF_h",0,False)
    a("s_waitcnt lgkmcnt(0)")
    for i in range(4):
        a(f"""
v_mov_b32 v{RS_+4*i}, v{RC+4*i}
v_mov_b32 v{RS_+4*i+1}, v{RC+4*i+1}
v_mov_b32 v{RS_+4*i+2}, v{RC+4*i+2}
v_lshlrev_b32 v1, 6, v{RC+4*i+3}
v_sub_u32 v1, v{RK+i}, v1
v_cndmask_b32 v{RS_+4*i+3}, -1, v1, {S2(sM+8+2*i)}
""")
    a(f"""
KF_S1:
s_mov_b32 s{sHEAD}, 0                    ; 256*k
KF_SK:
s_waitcnt lgkmcnt(0)
s_barrier
s_cmp_ge_u32 s{sWV}, 4
s_cbranch_scc1 KF_S2
s_mov_b32 s{t1}, {EB}
""")
    for i in range(4):
        a(f"""
v_subrev_u32 v1, s{sHEAD}, v{RS_+4*i+3}
v_lshrrev_b32 v2, 19, v{RS_+4*i+2}
v_lshl_add_u32 v2, v2, 8, v1
v_lshl_add_u32 v3, v2, 1, s{t1}
v_cmpx_gt_u32 vcc, 0x100, v1
ds_write_b32 v2, v{RS_+4*i+2} offset:{WB}
ds_write_b64 v3, {P2(RS_+4*i)}
s_mov_b64 exec, -1
""")
    a("KF_S2:")
    scan(True)
    a(f"s_cmp_lg_u64 {S2(t2)}, 0\ns_cselect_b32 s{sFLAG}, 1, 0")
    fill("KFs",True,8)
    a(f"""
s_add_u32 s{sNT}, s{t0}, 127
s_lshr_b32 s{sNT}, s{sNT}, 7
s_waitcnt lgkmcnt(0)
s_barrier
v_mov_b32 v{RB}, v{SV+4}
v_mov_b32 v{SB}, v{SV+5}
v_mov_b32 v{SV+12}, v{SV+6}
s_mov_b32 s{sI}, s{sWV}
KF_SL:
s_cmp_lt_u32 s{sI}, s{sNT}
s_cbranch_scc0 KF_SN
""")
    rd_ga(0); rd_gg(0)
    for j in range(4): a(f"ds_read_u16 v{AGs+j}, v{SV+12} offset:{GL+2*j}")
    a("s_waitcnt lgkmcnt(0)")
    rd_y(); rd_idx()
    a("s_waitcnt lgkmcnt(0)")
    dma()
    for j in range(4): a(f"v_lshrrev_b32 v{AGs+j}, 8, v{AGs+j}")
    a(f"""
v_readfirstlane_b32 s{sQ}, v{AGs}
s_nop 3
s_and_b32 s{sQ}, s{sQ}, -2
s_lshl_b32 s{sQ}, s{sQ}, 3
s_sub_u32 s{sW8}, 0, s{sQ}
{win}
{rd_b}
{rd_a3}
""")
    for j in range(4): a(f"v_lshl_add_u32 v{AGs+j}, v{AGs+j}, 9, v{SV+7}")
    a("s_waitcnt vmcnt(0) lgkmcnt(0)")
    for t in range(8): a(rd_a(t))
    a("s_waitcnt lgkmcnt(0)")
    for q in range(4):
        z=Z[0]
        for j in range(4): a(m4(z,q,j))
        a("s_nop 3"); a(mfma32(z,AQ(q),B3+4*q,z))
        a("s_nop 15")
        for r in range(16): a(f"v_exp_f32 v{EE+r}, v{z+r}")
        for r in range(16): a(f"v_add_f32 v{EE+r}, 1.0, v{EE+r}")
        for r in range(16): a(f"v_rcp_f32 v{EE+r}, v{EE+r}")
        for m in range(4):
            for u in range(2):
                for par in range(2):
                    r=8*u+2*m+par; g=GP+2*u+par
                    a(f"v_mul_f32 v{g}, v{z+r}, v{EE+r}" if m==0 else f"v_fmac_f32 v{g}, v{z+r}, v{EE+r}")
        for j in range(4): a(f"ds_add_f32 v{AGs+j}, v{GP+j} offset:{AGG+256*(q>>1)+16*(q&1)}")
        a("s_waitcnt lgkmcnt(0)")
    a(f"""
v_add_u32 v{SB}, 128, v{SB}
v_add_u32 v{RB}, 128, v{RB}
v_add_u32 v{SV+12}, 128, v{SV+12}
s_add_u32 s{sI}, s{sI}, 8
s_branch KF_SL
KF_SN:
s_add_u32 s{sHEAD}, s{sHEAD}, 256
s_cmp_lg_u32 s{sFLAG}, 0
s_cbranch_scc1 KF_SK
s_add_u32 s{sLO}, s{sLO}, 256
s_branch KF_SR
KF_SE:
s_cmp_ge_u32 s{sWV}, 4
s_cbranch_scc1 KF_SE2
""")
    sdma(sA,32768,0,WV)
    a(f"""
KF_SE2:
v_lshlrev_b32 v1, 4, v0
v_lshrrev_b32 v2, 5, v0
s_waitcnt vmcnt(0) lgkmcnt(0)
s_barrier
""")
    for j in range(4): a(f"ds_read_b128 {P4(A+4*j)}, v1 offset:{AGG+j*8192}")
    a(f"""
v_mul_u32_u24 v2, {AS}, v2
v_and_b32 v3, 31, v0
v_lshl_add_u32 v4, v3, 3, v2
s_waitcnt lgkmcnt(0)
s_barrier
""")
    for j in range(4):
        a(f"v_cvt_pk_bf16_f32 v{A+4*j}, v{A+4*j}, v{A+4*j+1}\nv_cvt_pk_bf16_f32 v{A+4*j+1}, v{A+4*j+2}, v{A+4*j+3}")
        a(f"ds_write_b64 v4, {P2(A+4*j)} offset:{AGB+j*16*AS}")
    trw2()
    a("s_branch KF_FIN")
    hist_retry(4,"KF_h",False)
    return a.text()

if __name__=='__main__':
    import sys
    nm='standalone__mpnn_edge_mlp__graph_kernel'
    hdr=open('standalone__mpnn_edge_mlp__graph.s.ref').read().split('; Override')[0]
    out=hdr+(f"; @launch kernel={nm} grid=(256,1,1) block=(512,1,1) lds={KF_LDS}\n" if os.environ.get('LISTF') else f"; @launch grid=(256,1,1) block=(512,1,1) lds={KF_LDS}\n")
    out+='.amdgcn_target "amdgcn-amd-amdhsa--gfx950"\n.text\n'
    out+=f".globl {nm}\n.p2align 8\n.type {nm},@function\n"+gen_kf(nm)
    out+='.section .rodata,"a"\n.p2align 6\n'+kd(nm,256)
    open(sys.argv[1],'w').write(out)
```

```python
from common import *
X=int(os.environ.get('X','0'))
PRIO=int(os.environ.get('PRIO','1'))
DSP=[int(c,36) for c in os.environ.get('DSP','00000000')]
def EV(n,d): return int(os.environ.get(n,d))
TPOS=EV('TPOS',6); PFP=EV('PFP',3); XORD=EV('XORD',1); WUI=EV('WUI',2); FLP=EV('FLP',1); FSL=EV('FSL',8); TE=1; WG_=EV("WG",0); GPN=EV("GPN",1); N4=EV("N4",0); NW=EV("NW",1); RWI=EV("RWI",0); US=EV("US",0); TP_=EV("TP",7); SWU=EV("SWU",0); EO=EV("EO",0); NS=EV("NS",5); NE=EV("NE",3); FR=EV('FR',8); FS=EV('FS',2); W1N=EV('W1N',5); GP_=EV('GP',1); NT=os.environ.get('NT',''); CLM=EV('CLM',0); CLW=EV('CLW',1); SLP=EV('SLP',1); H1P=EV('H1P',10); SH3=EV('SH3',0); EP_=EV('EP',1); ESC=os.environ.get('ESC',''); PERM=EV('PERM',0); W2N=EV('W2N',8); UL=EV('UL',0); WU1L=EV('WU1L',0); W1E=EV('W1E',0); ZL=EV('ZL',0); FST=EV('FST',0); UNP=EV('UNP',0); TLB=EV('TLB',0); DBGP=EV('DBGP',0); ALN=EV('ALN',0); PFT=EV('PFT',1); PFK=EV('PFK',7); PF0=EV('PF0',0); PFN=EV('PFN',16); XP=EV('XP',0); PFI=EV('PFI',0); SWW=EV('SWW',1)
PTS=os.environ.get('PTS','b1,bS,tp,pfl,rl,b2,b3,pro').split(',')
SC=os.environ.get('LSC',' sc1')
SSC=os.environ.get('SSC',' sc1')
OSC=os.environ.get('OSC',' sc1')
GSC=os.environ.get('GSC',' sc1')
NPROD=250; EP=1600; RST=EP*16
F_P=0x1000; F_FLG=0x9C0000; F_TBL=0x330000; F_REC=0x380000; F_SIZE=0xA00000
PB0=0x1000000 if PROF else 0; PSL=EV('PSL',0xA00000); NSL=(0x10000000-PB0-F_SIZE)//PSL+1
assert F_REC+256*RST<=F_SIZE and F_TBL+256*1024<=F_REC
CNT=0; MISC=256; OH=400; GL=928; BT=1872; STB=2144; RS=944
mSLOW=MISC; mS=MISC+4; mGX=MISC+8; mGP=MISC+12; mC3=MISC+16; mPD=MISC+20; mSL=MISC+24; mMX=MISC+28; mPI=MISC+32; mH=MISC+36; mNT=MISC+40; mW=MISC+44; mE=MISC+48; mEM=MISC+52; mNO=MISC+56; mPS=MISC+60; mWU=MISC+64
AGB=17408
W3L=AGB+56*256
Q2=AGB+16384; QS=52*128
S1=Q2; ERAW=Q2+12800
WB=Q2+4*QS; NULLG=49*256; EB=WB+NULLG+16
HIST=WB; PSC=WB+2048
GBUF=98304
KF_LDS=GBUF+65536
assert EB+2*NULLG+32<=GBUF and STB+16*RS<=AGB
AGG=STB
ONE2=0x3F803F80
NULLW2=0xFFFF|(512<<16)
CAPT=58
ID0=4; ID1=8; B3=12; A=28; Z=[60,76]; A3=92; EE=96; NN=112; DD=116; GP=120; SS=124
IDX=128; AR=144; RB=152; SB=153; SA=154; VY=155; OHC=156; VL=157; WT=158; DR=159
ACC=160; WU2=192; UA=208; WF=160; WU1=176; QA=224; RC=96; XF=28; GA=192
TP=143; WV=151; A6=244; QAD=250; QC=145; SA2=146; SI2=148; OH2=150; GA0=232; YA=234; EA=235; M4=236; EC=237; VZ=238; PO=92; TRU=240; TD=241; TC=242; TO=243; RK=244; FA=252
sP=24; sX=28; sA=32; sR=36; sM=40
sWV=56; sK=57; sNN=58; sI=59; sNT=60; sBUF=61; sQ=62; sW8=63; sCNT=64; sT0=65
sL2E=66; sINC=68; sRND=70; sTOT=71; sNON=72; sBUD=73; sW4=74; sLB=75
sWU=3; sW4K=22; sPO=23; sFLAG=76; sLO=77; sMA=78; sQ2=80; s128=81; sHEAD=82; sNF=83
t0,t1,t2,t3=84,85,86,87
BUDGET=100000
sNB=2 if PERM else sK

def mfma32(d,x,y,c): return f"v_mfma_f32_32x32x16_bf16 v[{d}:{d+15}], v[{x}:{x+3}], v[{y}:{y+3}], "+("0" if c is None else f"v[{c}:{c+15}]")
def mfma16(d,x,y,c): return f"v_mfma_f32_16x16x32_bf16 v[{d}:{d+3}], v[{x}:{x+3}], v[{y}:{y+3}], "+("0" if c is None else f"v[{c}:{c+3}]")
def mfma4(d,x,c): return f"v_mfma_f32_4x4x4_16b_bf16 v[{d}:{d+3}], v[{x}:{x+1}], v[{ID0}:{ID0+1}], "+("0" if c is None else f"v[{c}:{c+3}]")
def P2(r): return f"v[{r}:{r+1}]"
def P4(r): return f"v[{r}:{r+3}]"
def S2(r): return f"s[{r}:{r+1}]"
def SR4(r): return f"s[{r}:{r+3}]"

def gen_kf(name):
    a=Asm()
    def pt(n):
        if PROF and n in PTS: stamp(a,2+PTS.index(n))
    def ret(n):
        if PROF and n in PTS: a(f"s_sub_u32 s{90+PTS.index(n)}, {BUDGET}, s{sBUD}\ns_mul_i32 s{90+PTS.index(n)}, s{90+PTS.index(n)}, 100")
    def bar(n,w="s_waitcnt lgkmcnt(0)"):
        a(w+"\ns_barrier"); pt(n)
    def gsync(n,lab,off,target,va,vt,pre=None):
        if pre: a(pre)
        a(f"""
v_mov_b32 v{vt}, 1
s_mov_b64 exec, 1
ds_add_u32 v{va}, v{vt} offset:{off}
s_mov_b64 exec, -1
{lab}:
ds_read_b32 v{vt}, v{va} offset:{off}
s_waitcnt lgkmcnt(0)
v_readfirstlane_b32 s{t1}, v{vt}
s_and_b32 s{t1}, s{t1}, 255
s_cmp_lt_u32 s{t1}, {target}
s_cbranch_scc1 {lab}
""")
        pt(n)
    def gwait(lab,off,target,va,vt):
        if SLP: a(f"s_branch {lab}_\n{lab}:\ns_sleep {SLP}\n{lab}_:")
        else: a(f"{lab}:")
        a(f"""
ds_read_b32 v{vt}, v{va} offset:{off}
s_waitcnt lgkmcnt(0)
v_readfirstlane_b32 s{t1}, v{vt}
s_and_b32 s{t1}, s{t1}, 255
s_cmp_lt_u32 s{t1}, {target}
s_cbranch_scc1 {lab}
""")
    def consts():
        srd(a,sP,20,N,off=PB0+F_P-3072,stride=256)
        srd(a,sR,20,F_SIZE,off=PB0)
        a(f"""
s_cmp_lt_u32 s{sNB}, {N-256*48}
s_cselect_b32 s{sNN}, 49, 48
s_mov_b32 s{sL2E}, {hex(LOG2E_NEG)}
s_mov_b32 s{sL2E+1}, {hex(LOG2E_NEG)}
s_mov_b32 s{sINC}, 16
s_mov_b32 s{sINC+1}, 16
s_mov_b32 s{sMA}, 0x0000ffff
s_mov_b32 s{sMA+1}, 0x0000ffff
s_mov_b32 s{sQ2}, {Q2}
s_mov_b32 s{sBUD}, {BUDGET}
v_lshrrev_b32 v2, 5, v{VL}              ; h
; g = 4 b2 + 2 b4 + b0 ; m = 2 b3 + b1 ; slot = 16 b2 + 4 m + (g&3)
v_lshrrev_b32 v1, 3, v{VL}
v_and_b32 v1, 2, v1
v_and_or_b32 v1, v{VL}, 5, v1           ; g
v_lshlrev_b32 v{RB}, 1, v1
v_lshlrev_b32 v3, 1, v{VL}
v_and_b32 v3, 4, v3
v_and_or_b32 v{M4}, v{VL}, 8, v3        ; 4m
v_lshlrev_b32 v{EC}, 1, v{M4}
v_add_u32 v{EC}, {EB}, v{EC}
v_and_b32 v{WT}, 15, v{VL}              ; n / c16
v_lshlrev_b32 v3, 1, v3
v_and_or_b32 v3, v{VL}, 1, v3
v_lshl_or_b32 v3, v2, 2, v3
v_lshl_add_u32 v{AR}, v3, 7, s{sBUF}
v_bfe_u32 v1, v{VL}, 1, 1
v_bfe_u32 v3, v{VL}, 2, 3
v_xor_b32 v1, v1, v3
v_lshl_add_u32 v{AR}, v1, 4, v{AR}
v_mul_i32_i24 v{OHC}, -8, v2
v_mul_u32_u24 v{SA}, {RS}, v{WT}
v_and_b32 v1, 1, v{VL}
v_lshlrev_b32 v1, 4, v1
v_mov_b32 v3, 0x3f80
v_lshlrev_b32 v1, v1, v3
""")
        a(f"s_mov_b32 vcc_lo, 0x33333333\ns_mov_b32 vcc_hi, 0x33333333\nv_cndmask_b32 v{ID0}, 0, v1, vcc\nv_sub_u32 v{ID0+1}, v1, v{ID0}")
        a(f"""
v_lshrrev_b32 v2, 4, v{VL}              ; a / g
v_lshrrev_b32 v{SB}, 2, v{VL}
v_and_b32 v{SB}, 14, v{SB}
v_and_b32 v1, 7, v{VL}
v_lshlrev_b32 v1, 4, v1
s_movk_i32 s{s128}, 128
""")
        for i in range(4): a(f"v_xor_b32 v{IDX+2*i+1}, {(i&1)*16+3072-1024*i}, v1")
        a(f"v_xor_b32 v3, v2, v{WT}\nv_lshlrev_b32 v3, 4, v3\nv_lshl_add_u32 v3, v{WT}, 8, v3\nv_add_u32 v{FA}, {AGB}, v3")
        for s in range(1,4): a(f"v_xor_b32 v{FA+s}, {64*s}, v{FA}")
        a(f"""
s_lshl_b32 s{t0}, s{sW4}, 13
s_add_u32 s{t0}, s{t0}, {GBUF}
s_lshr_b32 s{t1}, s{sWV}, 2
v_lshrrev_b32 v1, 2, v{WT}
v_lshl_add_u32 v1, v2, 3, v1
v_lshl_add_u32 v{DR}, v1, 6, s{t0}
v_xor_b32 v2, s{t1}, v2
v_and_b32 v2, 1, v2
v_and_b32 v3, 3, v{VL}
v_lshl_add_u32 v{TRU}, v2, 5, v{DR}
v_lshl_add_u32 v{TRU}, v3, 3, v{TRU}
v_lshrrev_b32 v2, 3, v{VL}
v_and_b32 v2, 2, v2
v_xor_b32 v2, v2, v3
v_lshl_add_u32 v{TP}, v2, 4, v{DR}
""")
    def slot():
        a(f"""
s_mul_i32 s{sPO}, s{sNON}, 0x9E3779B1
s_mul_hi_u32 s{sPO}, s{sPO}, {NSL}
s_mul_i32 s{sPO}, s{sPO}, {PSL}
s_add_u32 s{sP}, s{sP}, s{sPO}
s_addc_u32 s{sP+1}, s{sP+1}, 0
s_add_u32 s{sR}, s{sR}, s{sPO}
s_addc_u32 s{sR+1}, s{sR+1}, 0
""")
    def vyc(VY=VY):
        a(f"""
v_lshrrev_b32 v1, 4, v{VL}
v_and_b32 v1, 2, v1
v_xor_b32 v1, v1, v{VL}
v_and_b32 v1, 3, v1
v_lshlrev_b32 v1, 4, v1
v_lshrrev_b32 v2, 2, v{VL}
v_lshl_or_b32 v{VY}, v2, 8, v1
""")
    def trfrag(dst,addr,off,ks,hs):
        for s in range(4):
            a(f"ds_read_b64_tr_b16 {P2(dst+4*s)}, v{addr} offset:{off+s*ks}\nds_read_b64_tr_b16 {P2(dst+4*s+2)}, v{addr} offset:{off+s*ks+hs}")
    def tru(dst,off): trfrag(dst,TRU,off,2048,256)
    def sdma(sr,moff,loff=0,v=VY,js=range(8)):
        a(f"s_lshl_b32 s{t0}, s{sW4}, 6")
        for j in js:
            a(f"s_add_u32 m0, s{sBUF}, {loff+j*1024}\ns_add_u32 s{t1}, s{t0}, {moff+j*4096}\nbuffer_load_dwordx4 v{v}, {SR4(sr)}, s{t1} offen lds")
    def xfrags(Ts):
        for T in Ts:
            for s in range(4): a(f"ds_read_b128 {P4(XF+16*T+4*s)}, v{FA+s} offset:{T*4096}")
    def trw(): trfrag(WF,TP,32768,2048,256); trfrag(WF+16,TP,32768+8,2048,256)
    def um(r,tau,i,xf,acc,WF=WF):
        L=[]
        for s in range(4):
            w,x=WF+16*i+4*s,xf+4*s
            d=UA+8*tau+4*i
            L.append(mfma16(d,*((x,w) if (r,tau)==(1,1) else (w,x)),d if (acc or s) else None))
        return L
    def ugemm(r):
        for tau in range(2):
            for i in range(2):
                for x in um(r,tau,i,XF+16*(2*r+tau),False): a(x)
        a("s_nop 4")
        for j in ((0,2,4,6,8,10,12,14) if r==0 else (0,2,4,6,8,12)): a(f"v_pk_mul_f32 {P2(UA+j)}, {P2(UA+j)}, {S2(sL2E)}")
    def w3rd():
        a(f"v_lshlrev_b32 v1, 3, v{VL}")
        for q in range(4): a(f"ds_read_b64 {P2(B3+4*q+2*(q&1))}, v1 offset:{W3L+q*512}")
    F=A3
    def scan(slow):
        a(f"""
v_lshlrev_b32 v1, 2, v{VL}
ds_read_b32 v{F}, v1
v_cmp_gt_u32 vcc, s{sNN}, v{VL}
v_lshlrev_b32 v{F+1}, 8, v{VL}
s_waitcnt lgkmcnt(0)
v_sub_u32 v{QA}, v{F}, v{F+1}
""")
        if slow:
            a(f"""
s_movk_i32 s{t1}, 256
v_subrev_u32 v{QA}, s{sHEAD}, v{QA}
v_cmp_lt_i32 {S2(t2)}, s{t1}, v{QA}
v_med3_i32 v{QA}, v{QA}, 0, s{t1}
v_add_u32 v{F}, v{F+1}, v{QA}
""")
        a(f"""
v_add_u32 v3, 12, v{QA}
v_and_b32 v3, -16, v3
v_max_u32 v3, 80, v3
v_cndmask_b32 v3, 0, v3, vcc
v_mov_b32 v2, v3
""")
        dpp_scan(a,"v_add_u32",[2])
        a(f"""
v_readlane_b32 s{t0}, v2, 63
v_sub_u32 v2, v2, v3
""")
    def fill(lab,slow,nw):
        a(f"""
s_lshl_b32 s{t1}, s{sWV}, 4
v_add_u32 v{QA+1}, s{t1}, v2
v_lshrrev_b32 v{QA+1}, 3, v{QA+1}       ; 2*(G0+w)
v_add_u32 v{F+1}, s{t1}, v{F+1}         ; 256n+16w
v_subrev_u32 v{QA+2}, s{t1}, v3         ; g16-16w
""")
        if not slow: a(f"v_add_u32 v{QA+3}, v{QA+1}, v{SA}\nv_mov_b32 v{F+3}, 0x3f80\nds_write_b32 v1, v2 offset:{BT}")
        for k in range(16//nw):
            a(f"v_cmpx_lt_i32 vcc, {16*nw*k}, v{QA+2}\nds_write_b16 v{QA+1}, v{F+1+(k&1)} offset:{GL+2*nw*k}")
            if k+1<16//nw: a(f"v_add_u32 v{F+1+((k+1)&1)}, {16*nw}, v{F+1+(k&1)}")
            if not slow: a(f"ds_write_b16 v{QA+3}, v{F+3} offset:{STB+2*nw*k}")
        a(f"""
s_mov_b64 exec, -1
s_lshl_b32 s{t1}, s{sWV}, 2
v_sub_u32 v{QA+2}, v3, v{QA}
v_add_u32 v{F}, s{t1}, v{F}
v_subrev_u32 v{QA+2}, s{t1}, v{QA+2}    ; pad4 - 4w
s_mov_b32 s{t1}, {EB}
v_mov_b32 v{QA+4}, 0
v_mov_b32 v{QA+5}, 0
v_mov_b32 v{QA+6}, {hex(NULLW2)}
v_lshl_add_u32 v{QA+7}, v{F}, 1, s{t1}
""")
        for k in range(-(-20//nw)):
            a(f"v_cmpx_lt_i32 vcc, {4*nw*k}, v{QA+2}")
            if k==1: a(f"s_cbranch_vccz {lab}p")
            a(f"ds_write_b32 v{F}, v{QA+6} offset:{WB+4*nw*k}\nds_write_b64 v{QA+7}, {P2(QA+4)} offset:{8*nw*k}")
        a(f"""
{lab}p:
s_mov_b64 exec, -1
s_cmp_eq_u32 s{sWV}, 3
s_cbranch_scc0 {lab}q
s_lshr_b32 s{t1}, s{t0}, 3
v_lshl_add_u32 v{QA+1}, v{VL}, 1, s{t1}
v_mov_b32 v{QA+2}, {NULLG}
v_add_u32 v{QA+3}, {NULLG}, v1
v_lshlrev_b32 v{QA+7}, 1, v1
v_add_u32 v{QA+7}, {EB+2*NULLG}, v{QA+7}
s_mov_b64 exec, 0xff
ds_write_b16 v{QA+1}, v{QA+2} offset:{GL}
s_mov_b64 exec, 15
ds_write_b32 v{QA+3}, v{QA+6} offset:{WB}
ds_write_b64 v{QA+7}, {P2(QA+4)}
s_mov_b64 exec, -1
{lab}q:
""")
    def expand(lab,win=True):
        if win: a(f"""
v_subrev_u32 v1, s{sLO}, v{TO}
v_add_u32 v2, v1, v{TC}
v_med3_i32 v1, v1, 0, s{t3}
v_med3_i32 v2, v2, 0, s{t3}
v_sub_u32 v2, v2, v1
v_lshl_add_u32 v1, v1, 2, s{sLB}
""")
        a(f"{lab}:")
        for j in range(16):
            a(f"v_cmpx_lt_i32 vcc, {j}, v2")
            if j==13: a(f"s_cbranch_vccz {lab}z")
            a(f"ds_write_b32 v1, v{TD} offset:{4*j}")
        a(f"""
v_add_u32 v2, -16, v2
v_add_u32 v1, 64, v1
v_cmp_lt_i32 vcc, 0, v2
s_cmp_lg_u64 vcc, 0
s_cbranch_scc1 {lab}
{lab}z:
s_mov_b64 exec, -1
""")
    def rl1(i): return f"buffer_load_dwordx4 {P4(RC+4*i)}, v{RK+i}, {SR4(sR)}, {'0' if i<4 else 's'+str(sQ)} offen offset:{1024*(i&3)}{SC}"
    def reclist(ns):
        a(f"v_lshl_add_u32 v1, v{VL}, 2, s{sLB}")
        for i in reversed(range(ns)): a(f"ds_read_b32 v{RK+i}, v1 offset:{256*i}")
        a(f"v_add_u32 v2, s{sLO}, v{VL}\nv_lshlrev_b32 v2, 4, v2\ns_movk_i32 s{sQ}, 4096")
        for i in range(ns):
            a(f"v_cmp_gt_i32 {S2(sM+2*i)}, s{t1}, v{VL}\ns_sub_u32 s{t1}, s{t1}, 64")
        a("s_waitcnt lgkmcnt(0)")
        for i in range(ns): a(f"v_add_u32 v{RK+i}, v{RK+i}, v2")
    def recload(ns,lab):
        for i in reversed(range(ns)):
            a(f"s_mov_b64 exec, {S2(sM+2*i)}\ns_cbranch_execz {lab}{i}\n{rl1(i)}\n{lab}{i}:")
        a("s_mov_b64 exec, -1")
    def hist(ns,lab,extra,scat):
        a(f"v_mov_b32 v1, 4\ns_mov_b32 s{sW8}, {EB}\n{lab}p:")
        def gm(i): return S2(t0+2*(i&1))
        def sc(i,n):
            a(f"""
s_mov_b64 exec, {gm(i)}
s_waitcnt lgkmcnt({n})
v_min_u32 v{RK+i}, {NULLG-4}, v{RK+i}
v_lshl_add_u32 v{RC+4*i+3}, v{RK+i}, 1, s{sW8}
ds_write_b32 v{RK+i}, v{RC+4*i+2} offset:{WB}
ds_write_b64 v{RC+4*i+3}, {P2(RC+4*i)}
""")
        for i in reversed(range(ns)):
            a(f"""
s_mov_b64 exec, {S2(sM+2*i)}
s_waitcnt vmcnt({i+extra})
v_cmpx_eq_u32 {gm(i)}, s{sNON}, v{RC+4*i+3}
v_lshrrev_b32 v{RC+4*i+3}, 17, v{RC+4*i+2}
ds_add_rtn_u32 v{RK+i}, v{RC+4*i+3}, v1
s_andn2_b64 {S2(sM+2*i)}, {S2(sM+2*i)}, {gm(i)}
""")
            a(f"s_mov_b64 vcc, {S2(sM+2*i)}" if i==ns-1 else f"s_or_b64 vcc, vcc, {S2(sM+2*i)}")
            if scat and i==0 and 0: pass
            if scat and i==0: a(f"s_cselect_b64 exec, 0, 1\nds_add_u32 v{VZ}, v1 offset:{mH}")
            if scat and i<ns-1: sc(i+1,(1 if i==ns-2 else 3)+(1 if i==0 else 0))
        if scat: sc(0,3)
        a(f"s_cbranch_vccnz {lab}r\n{lab}d:\ns_mov_b64 exec, -1")
    def hist_retry(ns,lab,scat):
        a(f"{lab}r:\ns_sub_u32 s{sBUD}, s{sBUD}, 1\ns_cbranch_scc1 {lab}x")
        recload(ns,lab+"l")
        a(f"s_waitcnt vmcnt(0)\ns_branch {lab}p\n{lab}x:\ns_mov_b32 s{sBUD}, 0")
        if scat: a(f"s_mov_b64 exec, 1\nds_add_u32 v{VZ}, v1 offset:{mH}")
        a(f"s_branch {lab}d")
    def qfull(lab,mid):
        H=QA+4; MX=QA+1
        a(f"v_xor_b32 v{TC}, 32, v{TRU}")
        trfrag(WF,TC,0,2048,256)
        a(f"""
s_lshl_b32 s{t0}, s{sW4}, 8
s_add_u32 s{t0}, s{t0}, {Q2}
v_lshrrev_b32 v1, 4, v{VL}
v_lshl_add_u32 v120, v1, 11, s{t0}
v_and_b32 v1, 8, v{VL}
v_lshl_add_u32 v120, v1, 3, v120
v_and_b32 v1, 3, v{VL}
v_lshl_add_u32 v120, v1, 4, v120
v_and_b32 v1, 4, v{VL}
v_lshl_add_u32 v120, v1, 1, v120
v_add_u32 v121, 128, v120
s_waitcnt lgkmcnt(0)
""")
        tru(WF+16,0)
        def cv(i,T,pk):
            c=GA+16*i+4*T
            L=[]
            if pk: L+=[f"v_pk_mul_f32 {P2(c)}, {P2(c)}, {S2(sL2E)}",f"v_pk_mul_f32 {P2(c+2)}, {P2(c+2)}, {S2(sL2E)}"]
            else: L+=[f"v_mul_f32 v{c+k}, s{sL2E}, v{c+k}" for k in range(4)]
            L+=[f"v_and_b32 v{H+k}, 0xffff0000, v{c+k}" for k in range(4)]
            L+=[f"v_maximum3_f32 v{MX}, {'0' if T==0 and i==0 else 'v'+str(MX)}, abs(v{c}), abs(v{c+1})",f"v_maximum3_f32 v{MX}, v{MX}, abs(v{c+2}), abs(v{c+3})"]
            if pk: L+=[f"v_pk_add_f32 {P2(c)}, {P2(c)}, {P2(H)} neg_lo:[0,1] neg_hi:[0,1]",f"v_pk_add_f32 {P2(c+2)}, {P2(c+2)}, {P2(H+2)} neg_lo:[0,1] neg_hi:[0,1]"]
            else: L+=[f"v_sub_f32 v{c+k}, v{c+k}, v{H+k}" for k in range(4)]
            L+=[f"v_cvt_pk_bf16_f32 v{c+k}, v{c+k}, v{H+k}" for k in range(4)]
            return L
        for T in range(4):
            for s in range(4): a(mfma16(GA+4*T,XF+16*T+4*s,WF+4*s,None if s==0 else GA+4*T))
        a("s_waitcnt lgkmcnt(0)")
        fl=cv(0,0,0)+cv(0,1,0)
        for T in range(4):
            for s in range(4):
                a(mfma16(GA+16+4*T,XF+16*T+4*s,WF+16+4*s,None if s==0 else GA+16+4*T))
                for _ in range(2): a(fl.pop(0))
        if PFI==0: mid()
        for x in fl+cv(0,2,1)+cv(1,0,1)+cv(1,1,1)+cv(1,2,1): a(x)
        if PFI==1: mid()
        gwait(lab+"w",mSL,4,VZ,1)
        for i in range(2):
            for T in range(3):
                c=GA+16*i+4*T
                a(f"ds_write2st64_b64 v{120+i}, {P2(c)}, {P2(c+2)} offset0:{16*T} offset1:{16*T+2}")
        a("s_mov_b64 exec, 0xffff")
        for i in range(2):
            c=GA+16*i+12
            a(f"""
v_mul_f32 v{c}, s{sL2E}, v{c}
v_and_b32 v{H}, 0xffff0000, v{c}
v_maximum3_f32 v{MX}, v{MX}, abs(v{c}), abs(v{c})
v_sub_f32 v{c}, v{c}, v{H}
v_cvt_pk_bf16_f32 v{c}, v{c}, v{H}
ds_write2st64_b64 v{120+i}, {P2(c)}, {P2(c+2)} offset0:48 offset1:50
""")
        a(f"""
s_mov_b64 exec, -1
v_cmp_nge_f32 vcc, 0x40e80000, v{MX}
s_cbranch_vccz {lab}q
ds_write_b32 v{VZ}, v{FA} offset:{mSLOW}
{lab}q:
""")
        pt('qd')
    def ranges():
        a(f"""
s_lshr_b32 s{sCNT}, s{sNT}, 3
s_mul_i32 s{sT0}, s{sCNT}, s{sWV}
s_and_b32 s{t2}, s{sNT}, 7
s_min_u32 s{t3}, s{t2}, s{sWV}
s_add_u32 s{sT0}, s{sT0}, s{t3}
s_cmp_lt_u32 s{sWV}, s{t2}
s_addc_u32 s{sCNT}, s{sCNT}, 0
s_lshl_b32 s{t0}, s{sT0}, 7
s_lshl_b32 s{t2}, s{sT0}, 4
v_add_u32 v{SB}, s{t2}, v{SB}
v_add_u32 v{RB}, s{t2}, v{RB}
s_add_u32 s{t3}, s{sT0}, s{sCNT}
v_min_u32 v1, 8, v{VL}
v_sub_u32 v1, s{t3}, v1
v_lshlrev_b32 v1, 4, v1
v_max_i32 v1, 0, v1
""")
    AS=272; OST=GBUF+32768
    eFA,eOW,eN48,eRD,eST,eM0,eM1=136,137,138,139,140,141,142
    sE0,sE1,sE2=4,5,8
    def epi_consts():
        srd(a,sX,16,N*256)
        vyc(WV)
        a(f"""
v_and_b32 v1, 15, v{VL}
v_lshrrev_b32 v2, 4, v{VL}
v_mul_u32_u24 v3, {AS}, v1
s_lshr_b32 s{t0}, s{sWV}, 2
s_mul_i32 s{t1}, s{t0}, {32*AS}
v_lshl_add_u32 v3, v2, 4, v3
v_add_u32 v{eFA}, s{t1}, v3
s_lshl_b32 s{t0}, s{t0}, 13
s_add_u32 s{t0}, s{t0}, {OST}
s_lshl_b32 s{t1}, s{sW4}, 2
v_or_b32 v2, s{t1}, v2
v_xor_b32 v2, v2, v1
v_lshl_add_u32 v2, v2, 4, s{t0}
v_lshl_add_u32 v{eOW}, v1, 8, v2
s_lshl_b32 s{t0}, s{sW4}, 6
s_add_u32 s{t0}, s{t0}, {OST+48*256}
v_and_b32 v2, 12, v1
v_lshl_add_u32 v2, v2, 2, s{t0}
v_and_b32 v3, 3, v1
v_lshl_add_u32 v{eN48}, v3, 1, v2
v_lshlrev_b32 v1, 4, v0
v_add_u32 v{eRD}, {OST}, v1
v_lshrrev_b32 v2, 4, v0
v_xor_b32 v3, v2, v0
v_and_b32 v3, 15, v3
v_lshlrev_b32 v3, 4, v3
v_lshl_add_u32 v{eST}, v2, 16, v3
s_lshl_b32 s{sE0}, s{sNB}, 8
s_add_u32 s{sE1}, s{sE0}, {32*65536}
s_cmp_lt_u32 s{sWV}, 4
s_cselect_b64 {S2(sE2)}, -1, 0xffff
s_mul_i32 s{t0}, s{sWV}, {AS}
v_lshl_add_u32 v{eM1}, v{VL}, 2, s{t0}
v_lshlrev_b32 v{OH2}, 1, v{OHC}
v_and_b32 v1, 31, v{VL}
v_lshlrev_b32 v1, 4, v1
v_lshlrev_b32 v2, 5, v{VL}
v_and_b32 v2, 0x400, v2
v_add3_u32 v{QC}, v1, v2, s{sQ2}
v_cndmask_b32 v{SI2}, 0, 16, {S2(sMA)}
v_cndmask_b32 v{SI2+1}, 16, 0, {S2(sMA)}
v_sub_u32 v2, v{SA}, v{OHC}
v_add_u32 v2, {STB}, v2
v_mov_b32 v1, {OH+64}
v_cndmask_b32 v{SA2}, v1, v2, {S2(sMA)}
v_cndmask_b32 v{SA2+1}, v2, v1, {S2(sMA)}
""")
    def arrive(off,vt): a(f"v_mov_b32 v{vt}, 1\ns_mov_b64 exec, 1\nds_add_u32 v{VZ}, v{vt} offset:{off}\ns_mov_b64 exec, -1")

    def claim():
        a(f"""
s_mul_i32 s{t1}, s{sW4}, {13*65536}
s_lshl_b32 s{t2}, s{sNB}, 8
s_add_u32 s{t1}, s{t1}, s{t2}
s_add_u32 s{t1}, s{t1}, {F_P}
""")
        if CLW==1:
            a(f"""
v_lshlrev_b32 v2, 15, v{VL}
v_and_b32 v2, 0xffff0000, v2
v_and_b32 v3, 1, v{VL}
v_lshl_add_u32 v2, v3, 7, v2
v_add_u32 v2, s{t1}, v2
s_mov_b64 exec, 0x3ffffff
global_store_dword v2, v{VZ}, s[20:21] sc1
s_mov_b64 exec, -1
""")
        else:
            a(f"""
v_lshlrev_b32 v2, 14, v{VL}
v_and_b32 v2, 0xffff0000, v2
v_and_b32 v3, 3, v{VL}
v_lshl_add_u32 v2, v3, 6, v2
v_add_u32 v2, s{t1}, v2
s_mov_b32 exec_hi, 0xfffff
global_store_dword v2, v{VZ}, s[20:21] sc1
s_mov_b64 exec, -1
""")
    D=28; SRc=36; K=44; R=52; W2=60; RO=80
    sD=40; sS=44; sE=48
    Q16="s_mov_b64 exec, 0xffff"; FULL="s_mov_b64 exec, -1"
    a(f"""
{name}:
{"s_memrealtime s[88:89]" if PROF and FST else ""}
s_getpc_b64 {S2(t2)}
s_cmp_ge_u32 s2, 256
s_cbranch_scc1 KF_END
s_load_dwordx16 s[4:19], s[0:1], 0
s_load_dwordx2 s[20:21], s[0:1], 64
v_lshrrev_b32 v1, 6, v0
s_and_b32 s{t0}, s2, 0xf8
s_sub_u32 s{t1}, s{t0}, 136
s_cselect_b32 s{t1}, s{t0}, s{t1}
v_add_lshl_u32 v2, v1, s{t1}, 7
v_readfirstlane_b32 s{sWV}, v1
v_min_u32 v2, KF_CEND-{name}-16, v2
s_cmp_eq_u32 s2, 0
s_cbranch_scc1 KF_n0
s_mov_b64 exec, 1
global_load_dword v{QA+15}, v2, {S2(t2)}
s_mov_b64 exec, -1
KF_n1:
v_and_b32 v{VL}, 63, v0
v_mov_b32 v{VZ}, 0
v_lshlrev_b32 v113, 4, v{VL}
s_and_b32 s{sK}, s2, 7
s_lshl_b32 s{sK}, s{sK}, 5
s_lshr_b32 s{t1}, s2, 3
s_or_b32 s{sK}, s{sK}, s{t1}
s_and_b32 s{sW4}, s{sWV}, 3
s_lshl_b32 s{sW4K}, s{sW4}, 10
s_cmp_ge_u32 s{sWV}, 4
s_cbranch_scc0 KF_S
v_lshlrev_b32 v2, 2, v0
v_lshlrev_b32 v3, 8, v{VL}
ds_write_b32 v2, v{VZ} offset:{HIST-1024}
v_lshlrev_b32 v2, 2, v{VL}
ds_write2st64_b32 v2, v3, v{VZ} offset0:0 offset1:1
v_bfe_u32 v1, v0, 4, 4
v_xor_b32 v37, v1, v0
v_and_b32 v37, 15, v37
v_lshlrev_b32 v37, 4, v37
v_lshl_add_u32 v36, v1, 8, s{sNB}
s_waitcnt lgkmcnt(0)
""")
    if WSB: a(f"s_add_u32 s20, s20, {hex(WSB)}\ns_addc_u32 s21, s21, 0")
    (0 if FST else stamp(a,0,True)); stamp(a,1); pt('st')
    a(f"""
""")
    if XORD==0:
        srd(a,sX,4,N,stride=256)
        for j in range(4):
            if j==3: a(f"s_cmp_eq_u32 s{sWV}, 4\ns_cbranch_scc0 KT_c")
            a(f"s_add_u32 m0, s{sW4K}, {AGB+j*4096}\ns_nop 0\nbuffer_load_dwordx4 v[36:37], {SR4(sX)}, 0 idxen offen{NT} lds\nv_add_u32 v36, 4096, v36")
        a("KT_c:")
    a(f"""
s_lshr_b32 s{t0}, s{t0}, 1
s_add_u32 s{t0}, s{t0}, s{sWV}
s_sub_u32 s{t0}, s{t0}, 4
s_lshl_b32 s{t0}, s{t0}, 9
v_lshl_add_u32 v2, v{VL}, 7, s{t0}
s_mov_b64 exec, 15
global_load_dword v{QA+15}, v2, s[12:13]
global_load_dword v{QA+15}, v2, s[14:15]
s_mov_b64 exec, -1
""")
    if TLB:
        a(f"""
s_lshr_b32 s{t0}, s{t0}, 9
s_mul_i32 s{t1}, s{t0}, {2*RST}
s_add_u32 s{t1}, s{t1}, {F_REC+EP*16}
s_add_u32 s52, s20, s{t1}
s_addc_u32 s53, s21, 0
s_load_dword s44, s[52:53], 0
s_load_dword s45, s[52:53], {RST}
""")
    a(f"""
s_branch KF_B0
KF_n0:                                  ; workgroup 0: wave 0 publishes the launch nonce before anything else
s_memrealtime s[44:45]
v_lshlrev_b32 v2, {2 if NW else 6}, v0
s_cmp_eq_u32 s{sWV}, 0
s_waitcnt lgkmcnt(0)
s_cbranch_scc0 KF_n1
s_lshl_b32 s46, s44, 2
s_or_b32 s46, s46, 1
v_mov_b32 v3, s46
s_mov_b64 exec, {-1 if NW else 15}
global_store_dword v2, v3, s[18:19] sc1
s_mov_b64 exec, -1
s_branch KF_n1
KF_S:
s_min_u32 s{t2}, s2, {NPROD-1}
s_mul_i32 s{t2}, s{t2}, {EP*4}
s_mul_i32 s{t3}, s{sWV}, 400
v_add_u32 v108, s{t3}, v{VL}
v_lshlrev_b32 v109, 2, v108
s_mov_b32 s{sD+2}, {E*4}
s_mov_b32 s{sD+3}, 0x00020000
s_waitcnt lgkmcnt(0)
""")
    if WSB: a(f"s_add_u32 s20, s20, {hex(WSB)}\ns_addc_u32 s21, s21, 0")
    (0 if FST else stamp(a,0,True)); stamp(a,1); pt('st')
    a(f"s_mov_b32 s{sD}, s10\ns_and_b32 s{sD+1}, s11, 0xffff")
    def ld7(dst,sr):
        for i in range(7):
            if i==6: a(Q16)
            a(f"buffer_load_dword v{dst+i}, v109, {SR4(sr)}, s{t2} offen offset:{i*256}{NT}")
        a(FULL)
    ld7(D,sD); pt('dl')
    a(f"s_add_u32 s52, s20, 0xFFF0000\ns_addc_u32 s53, s21, 0\ns_load_dword s{sI}, s[52:53], 0")
    def srcld(): srd(a,sS,8,E*4); ld7(SRc,sS)
    def eld():
        srd(a,sE,6,E*8)
        a(f"""
s_lshl_b32 s{sLB}, s{t3}, 3
s_lshl_b32 s{t2}, s{t2}, 1
s_add_u32 s{t2}, s{t2}, s{sLB}
s_add_u32 m0, s{sLB}, {ERAW}
s_add_u32 s{sLB}, s{sLB}, {S1}
""")
        for j in range(4):
            if j==3: a("s_mov_b64 exec, 0xff")
            a(f"buffer_load_dwordx4 v113, {SR4(sE)}, s{t2} offen offset:{1024*j}{NT} lds")
        a(FULL)
    if EO<2: srcld()
    if EO<1: eld()
    if CLM==2: claim()
    a(f"""
KF_B0:
""")
    if DBGP:
        a("v_mov_b32 v1, 0")
        for j,r in enumerate((4,6,8,10,12,14,16,18,20)): a(f"v_writelane_b32 v1, s{r}, {j}")
        a(f"v_lshlrev_b32 v2, 2, v{VL}\ns_mov_b64 exec, 0x1ff\nglobal_store_dword v2, v1, s[18:19]\ns_mov_b64 exec, -1\ns_waitcnt vmcnt(0)")
    if ALN: a(f"s_add_u32 s20, s20, {ALN-1}\ns_addc_u32 s21, s21, 0\ns_and_b32 s20, s20, {-ALN}")
    a(f"""
s_lshl_b32 s{sBUF}, s{sWV}, 13
s_add_u32 s{sBUF}, s{sBUF}, {GBUF}
s_barrier
""")
    if W1E:
        a(f"s_cmp_ge_u32 s{sWV}, 4\ns_cbranch_scc0 KF_c0")
        srd(a,sA,12,260*256); vyc(); sdma(sA,0,0,VY,range(W1E))
        a("KF_c0:")
    consts()
    a(f"""
s_cmp_ge_u32 s{sWV}, 4
s_cbranch_scc1 KF_T
""")
    if EO>=2: a(f"v_lshlrev_b32 v109, 2, v108"); srcld()
    if EO>=1: eld()
    a(f"""
v_mov_b32 v111, 8
v_and_b32 v124, 7, v{VL}
v_lshlrev_b32 v124, 7, v124
v_lshrrev_b32 v125, 3, v{VL}
v_lshl_add_u32 v124, v125, 2, v124
v_add_u32 v124, {HIST}, v124
v_add_u32 v125, 1024, v124
v_lshlrev_b32 v112, 3, v108
v_lshlrev_b32 v110, 4, v108
""")
    for i in range(7): a(f"v_add_u32 v{W2+1+2*i}, {i*512}, v112")
    if N4==1: a(f"s_load_dword s{sNON}, s[18:19], 0")
    if N4==2: a(f"s_mov_b32 s{sNON}, 0")
    a(f"s_cmp_ge_u32 s2, {NPROD}\ns_cbranch_scc1 KS_d\ns_waitcnt vmcnt({11+(CLM==2)})")
    pt('dst')
    if N4==2: a(f"s_load_dword s{sNON}, s[18:19], 0")
    for i in range(7):
        if i==6: a(Q16)
        a(f"v_lshlrev_b32_sdwa v{K+i}, 2, v{D+i} dst_sel:DWORD dst_unused:UNUSED_PAD src0_sel:DWORD src1_sel:BYTE_0\nds_add_rtn_u32 v{R+i}, v{K+i}, v111 offset:{HIST}")
    a(FULL+"\nKS_d:")
    gsync('b1',"KS_y1",mS,4,VZ,2)
    if PERM: a(f"ds_read2_b32 v[116:117], v124 offset0:0 offset1:8\nds_read2_b32 v[118:119], v124 offset0:16 offset1:24")
    else: a(f"ds_read_b128 v[116:119], v113 offset:{HIST}")
    srd(a,sD,20,256*1024,off=0xFF00000)
    if N4: a(f"s_cmp_lg_u32 s{sNON}, 0\ns_cbranch_scc1 KS_na\ns_load_dword s{sNON}, s[18:19], 128\nKS_na:")
    for i in range(7): a(f"v_lshrrev_b32 v{D+i}, 8, v{D+i}")
    a(f"""
s_waitcnt lgkmcnt(0)
v_add_u32 v2, v116, v117
v_add3_u32 v2, v2, v118, v119
v_mov_b32 v3, v2
""")
    dpp_scan(a,"v_add_u32",[3])
    a(f"""
v_sub_u32 v120, v3, v2
v_add_u32 v121, v120, v116
v_add_u32 v122, v121, v117
v_add_u32 v123, v122, v118
""")
    if PERM: a(f"ds_write2_b32 v125, v120, v121 offset0:0 offset1:8\nds_write2_b32 v125, v122, v123 offset0:16 offset1:24")
    else: a(f"ds_write_b128 v113, v[120:123] offset:{HIST+1024}")
    for i in range(7):
        if i==6: a(Q16)
        a(f"ds_read_b32 v{K+i}, v{K+i} offset:{HIST+1024}")
    a(FULL)
    def tpub():
        a(f"""
v_lshl_or_b32 v{QA}, v121, 16, v120
v_lshl_or_b32 v{QA+1}, v123, 16, v122
s_mul_i32 s{sI}, s{sI}, 0x9E3779B1
s_add_u32 s{sI}, s{sI}, 0x7F4A7C15
s_lshr_b32 s{t1}, s{sI}, 15
s_xor_b32 s{sI}, s{sI}, s{t1}
s_lshl_b32 s{t2}, s2, 10
s_lshl_b32 s{t3}, s{sWV}, 4
v_mov_b32 v{QA+3}, s{sI}
s_lshl_b64 exec, 0xffff, s{t3}
buffer_store_dwordx4 {P4(QA)}, v113, {SR4(sD)}, s{t2} offen{SSC}
s_mov_b64 exec, -1
""")
    def getn():
        for k,off in enumerate((128,64,192,None)):
            a(f"s_waitcnt lgkmcnt(0)\ns_cmp_lg_u32 s{sNON}, 0\ns_cbranch_scc1 KS_n1")
            if off is not None: a(f"s_sleep {NS}\ns_load_dword s{sNON}, s[18:19], {off}")
        a(f"""
KS_n0:
global_load_dword v1, v{VZ}, s[18:19] sc1
s_waitcnt vmcnt(0)
v_readfirstlane_b32 s{sNON}, v1
s_cmp_lg_u32 s{sNON}, 0
s_cbranch_scc1 KS_n1
s_sub_u32 s{sBUD}, s{sBUD}, 1
s_cbranch_scc0 KS_n0
s_mov_b32 s{sBUD}, 0
s_mov_b32 s{sNON}, 1
KS_n1:
v_mov_b32 v1, s{sNON}
ds_write_b32 v{VZ}, v1 offset:{mNO}
""")
        pt('non')
        slot()
    if NE==3:
        a(f"v_mov_b32 v{QA+2}, v3"); tpub()
        if WG_: arrive(mPS,2)
    else: a(f"s_mov_b32 s{sNON}, 0")
    a(f"s_cmp_ge_u32 s2, {NPROD}\ns_cbranch_scc1 KS_e\ns_waitcnt vmcnt({5 if NE==3 else 4})")
    if X&64:
        for i in range(7): a(f"v_and_b32 v{SRc+i}, 0x1ff, v{SRc+i}")
    for i in range(7): a(f"v_lshl_or_b32 v{W2+2*i}, v{D+i}, 19, v{SRc+i}")
    a(f"s_waitcnt lgkmcnt(0)")
    if NE==2: a(f"s_load_dword s{sNON}, s[18:19], 0")
    for i in range(7):
        if i==6: a(Q16)
        a(f"v_add_u32 v{K+i}, v{K+i}, v{R+i}\nds_write_b64 v{K+i}, {P2(W2+2*i)} offset:{S1}")
    a(FULL+"\nKS_e:")
    pt('sc1')
    a(f"s_load_dword s{sNON}, s[18:19], 0")
    epi_consts(); getn()
    if NE<3: a(f"v_mov_b32 v{QA+2}, v3")
    if NE==1: a(f"s_load_dword s{sNON}, s[18:19], 0")
    if NE<2: epi_consts(); tpub()
    else:
        if NE==2: tpub()
        pass
    a(f"""
v_lshlrev_b32 v114, 10, v0
s_lshr_b32 s{sLO}, s{sK}, 2
s_lshl_b32 s{sLO}, s{sLO}, 4
v_cmp_gt_u32 vcc, {NPROD}, v0
v_mov_b32 v{QA+4}, 0
v_mov_b32 v{QA+5}, 0
v_mov_b32 v{QA+6}, 0
s_mul_i32 s{t0}, s2, {RST}
s_add_u32 s{t0}, s{t0}, {F_REC}
s_add_u32 s{t2}, s{t0}, 4096
v_mul_u32_u24 v115, {RST}, v0
v_add_u32 v115, {F_REC}, v115
""")
    gsync('bS',"KS_y2",mS,8,VZ,2,f"s_waitcnt vmcnt({1+(CLM==2)})")
    tl=f"s_mov_b64 exec, vcc\nbuffer_load_dwordx4 {P4(QA+4)}, v114, {SR4(sD)}, s{sLO} offen{SC}\ns_mov_b64 exec, -1"
    a(f"""
s_cmp_ge_u32 s2, {NPROD}
s_cbranch_scc0 KS_h0
""")
    gwait("KS_h1",mGP,4,VZ,2)
    a(f"""
{tl}
s_waitcnt vmcnt(0)
v_mov_b32 v1, 0
s_branch KS_j
KS_h0:
""")
    order=[6,0,1,2,3,4,5]
    for i in order:
        if i==6: a(Q16)
        a(f"ds_read_b64 {P2(RO+2+4*i)}, v112 offset:{S1+i*512}")
        if i==6: a(FULL)
    for i in order:
        if i==6: a(Q16)
        a(f"s_waitcnt lgkmcnt(6)\nds_read_b64 {P2(RO+4*i)}, v{RO+3+4*i} offset:{ERAW}")
        if i==6: a(FULL)
    gwait("KS_ww",mW,4,VZ,2)
    for k,i in enumerate(order):
        if k==TP_: a(tl)
        if i==6: a(Q16)
        a(f"v_mov_b32 v{RO+3+4*i}, v1\nbuffer_store_dwordx4 {P4(RO+4*i)}, v110, {SR4(sR)}, s{t0 if i<4 else t2} offen offset:{1024*(i&3)}{SSC}")
        if i==6: a(FULL)
    if TP_==7: a(tl)
    pt('out')
    a(f"v_pk_maximum3_f16 v1, v{RO}, v{RO+1}, v{RO+1}\nv_pk_minimum3_f16 v2, v{RO}, v{RO+1}, v{RO+1}")
    for i in range(1,7):
        if i==6: a(Q16)
        a(f"v_pk_maximum3_f16 v1, v1, v{RO+4*i}, v{RO+4*i+1}\nv_pk_minimum3_f16 v2, v2, v{RO+4*i}, v{RO+4*i+1}")
    a(FULL)
    absmax_fin(a,1,2,3)
    dpp_scan(a,"v_max_u32",[1])
    a(f"""
KS_j:
v_mov_b32 v2, 1
s_mov_b32 exec_lo, 0
s_brev_b32 exec_hi, 1
ds_max_u32 v{VZ}, v1 offset:{mEM}
ds_add_u32 v{VZ}, v2 offset:{mE}
s_mov_b64 exec, -1
""")
    gwait("KS_xw",mGX,4,VZ,2)
    xfrags([0,1])
    a(f"""
s_bitcmp1_b32 s{sK}, 1
s_cselect_b64 {S2(t2)}, -1, 0
s_lshl_b32 s{t0}, s{sK}, 4
s_and_b32 s{t0}, s{t0}, 16
s_waitcnt vmcnt({7-TP_})
s_mov_b64 exec, vcc
KT_f:
v_cmp_ne_u32 vcc, s{sI}, v{QA+7}
s_cbranch_vccz KT_g
s_mov_b64 exec, vcc
s_sub_u32 s{sBUD}, s{sBUD}, 1
s_cbranch_scc1 KT_f2
buffer_load_dwordx4 {P4(QA+4)}, v114, {SR4(sD)}, s{sLO} offen{SC}
s_waitcnt vmcnt(0)
s_branch KT_f
KT_f2:
s_mov_b32 s{sBUD}, 0
v_mov_b32 v{QA+4}, 0
v_mov_b32 v{QA+5}, 0
v_mov_b32 v{QA+6}, 0
KT_g:
s_mov_b64 exec, -1
""")
    pt('tp'); ret('rt1')
    a(f"""
v_cndmask_b32 v1, v{QA+4}, v{QA+5}, {S2(t2)}
v_cndmask_b32 v2, v{QA+5}, v{QA+6}, {S2(t2)}
v_alignbit_b32 v1, v2, v1, s{t0}
v_sub_u32_sdwa v{TC}, v1, v1 dst_sel:DWORD dst_unused:UNUSED_PAD src0_sel:WORD_1 src1_sel:WORD_0
v_and_b32 v1, 0xffff, v1
v_lshrrev_b32 v{TC}, 3, v{TC}
v_lshl_add_u32 v{TD}, v1, 1, v115
v_mov_b32 v{TO}, v{TC}
""")
    dpp_scan(a,"v_add_u32",[TO])
    a(f"""
v_readlane_b32 s{sTOT}, v{TO}, 63
v_sub_u32 v{TO}, v{TO}, v{TC}
v_mov_b32 v2, v{TC}
v_lshlrev_b32 v1, 4, v{TO}
s_mov_b32 s{sLO}, 0
s_cmp_gt_u32 s{sTOT}, 512
v_sub_u32 v{TD}, v{TD}, v1
v_lshl_add_u32 v1, v{TO}, 2, s{sLB}
s_cselect_b32 s{t1}, 0, s{sTOT}
s_cbranch_scc1 KT_xe
""")
    expand("KT_x",False)
    a("KT_xe:")
    reclist(8)
    arrive(mSL,1)
    pt('exp')
    a(f"s_mov_b32 s7, s{sI}")
    if SWU:
        gwait("KS_gp",mGP,4,VZ,1); srd(a,sA,14,256*256); sdma(sA,0,32768,WV)
    gwait("KS_rw",{0:mPD,1:mPS,2:mPS}[RWI],4,VZ,1)
    if SWU==2: a("s_waitcnt vmcnt(0)"); arrive(mPI,1)
    if TP_<7: a("s_waitcnt vmcnt(0)")
    recload(8,"KT_l")
    pt('rl')
    def pfp():
        a(f"""
s_lshr_b32 s{t1}, s2, 3
s_mul_i32 s{t1}, s{t1}, 391
""")
        if PF0: a(f"v_and_b32 v2, 255, v0\nv_add_u32 v2, s{t1}, v2\nv_mov_b32 v3, 0")
        else: a(f"v_bfe_u32 v2, v0, 1, 7\nv_add_u32 v2, s{t1}, v2\nv_and_b32 v3, 1, v0\nv_lshlrev_b32 v3, 7, v3")
        if PFN<64: a(f"s_bfm_b64 exec, {PFN}, 0")
        a(f"buffer_load_dword v{QA+15}, v[2:3], {SR4(sP)}, 0 idxen offen offset:3072{SC}\ns_mov_b64 exec, -1")
    if PFP==1: pfp()
    if SWU==1:
        a(f"s_add_u32 s{t1}, s{sTOT}, 63\ns_lshr_b32 s{t1}, s{t1}, 6\ns_cmp_ge_u32 s{t1}, 6\ns_cbranch_scc1 KS_v6\ns_waitcnt vmcnt(0)\nKS_v6:\ns_cmp_gt_u32 s{sTOT}, 512\ns_cbranch_scc0 KS_v7\ns_waitcnt vmcnt(0)\nKS_v7:\ns_waitcnt vmcnt(6)")
        arrive(mPI,1)
    if not US:
        if not SWU: gwait("KS_w2",mPI,4,VZ,1)
        trw()
        a("s_waitcnt lgkmcnt(0)")
        w3rd()
        ugemm(0)
    pt('ud')
    hist(8,"KT_h",1 if PFP==1 else 0,True)
    if PFP==3: pfp()
    pt('hs'); ret('rt2')
    gwait("KS_b2",mH,16,VZ,1)
    pt('b2')
    scan(False)
    a(f"""
v_cmp_lt_u32 vcc, 0x100, v{QA}
s_add_u32 s{sNT}, s{t0}, 127
s_lshr_b32 s{sNT}, s{sNT}, 7
s_cmp_gt_u32 s{sNT}, {CAPT}
s_cbranch_scc1 KT_j
s_cbranch_vccnz KT_j
""")
    fill("KFz",False,4)
    a(f"v_mov_b32 v1, s{sNT}\nds_write_b32 v{VZ}, v1 offset:{mNT}")
    pt('fil')
    a(f"""
s_cmp_gt_u32 s{sTOT}, 512
s_cbranch_scc0 KT_k
KT_j:
ds_write_b32 v{VZ}, v{FA} offset:{mSLOW}
KT_k:
s_mov_b32 s{sWU}, 1
""")
    if US: gwait("KS_w2",mPI,4,VZ,1); trw(); w3rd()
    ranges()
    srd(a,sA,14,256*256)
    if PRIO: a("s_setprio 3")
    bar('b3')
    a("s_branch KF_J")
    a(f"""
KF_T:
{"s_load_dword s47, s[18:19], 0" if GPN else ""}
v_and_b32 v108, 255, v0
v_mov_b32 v32, 0
v_mov_b32 v33, 0
v_mov_b32 v34, 0
v_mov_b32 v35, 0
v_lshlrev_b32 v110, 4, v108
""")
    sG=40
    srd(a,sX,4,N,stride=256)
    def xld():
        for j in range(4):
            if j==3: a(f"s_cmp_eq_u32 s{sWV}, 4\ns_cbranch_scc0 KT_c")
            a(f"s_add_u32 m0, s{sW4K}, {AGB+j*4096}\ns_nop 0\nbuffer_load_dwordx4 v[36:37], {SR4(sX)}, 0 idxen offen{NT} lds\nv_add_u32 v36, 4096, v36")
        a("KT_c:")
    def warm():
        a(f"""
v_and_b32 v1, 28, v{VL}
v_and_b32 v2, 3, v{VL}
v_lshlrev_b32 v2, 1, v2
v_lshl_or_b32 v1, v1, 2, v2
s_lshr_b32 s{t0}, s{sW4}, 1
s_lshl_b32 s{t0}, s{t0}, 7
s_and_b32 s{t1}, s{sW4}, 1
s_lshl_b32 s{t1}, s{t1}, 3
s_add_u32 s{t0}, s{t0}, s{t1}
s_add_u32 s{t0}, s{t0}, 65536
""")
        for k in range(4): a(f"buffer_load_ushort v{124+k}, v1, {SR4(sA)}, s{t0} offen offset:{k*256}")
    def zer():
        a(f"v_cmp_le_u32 vcc, 32, v108\ns_mov_b64 exec, vcc\nds_write_b128 v110, v[32:35]\ns_mov_b64 exec, -1")
        for j in range(1,4): a(f"ds_write_b128 v110, v[32:35] offset:{j*4096}")
        a(f"""
s_cmp_eq_u32 s{sWV}, 4
s_cbranch_scc0 KT_b
ds_write_b128 v110, v[32:35] offset:16384
KT_b:
""")
    srd(a,sA,12,260*256); warm(); vyc()
    if XORD==1: xld()
    if not ZL: zer()
    a(f"""
s_lshl_b32 s{t0}, s{sW4}, 2
v_lshrrev_b32 v2, 4, v{VL}
v_or_b32 v1, s{t0}, v2                  ; 4u+g
v_xor_b32 v3, v1, v{WT}
v_lshlrev_b32 v3, 4, v3
v_lshl_add_u32 v116, v{WT}, 8, v3
v_add_u32 v116, {PSC}, v116
v_add_u32 v117, {PSC}, v110
v_lshl_add_u32 v118, v1, 16, v3
""")
    if XORD==2:
        gwait("KG_x",mS,4,VZ,1); xld()
    if WG_: sdma(sA,0,0,VY,range(WG_-1)); gwait("KG_tw",mPS,4,VZ,1)
    sdma(sA,0,0,VY,range(max(W1E,WG_-1),8))
    sdma(sA,32768,-32768,VY,range(W2N))
    arrive(mW,1)
    if ZL: zer()
    pt('w1i')
    def w3m():
        w=[124,125,126,127]; u=QA
        for k in range(4): a(f"v_lshlrev_b32 v{w[k]}, 16, v{w[k]}\nv_mul_f32 v{w[k]}, s{sL2E}, v{w[k]}")
        a(f"""
v_cvt_pk_bf16_f32 v{u}, v124, v125
v_cvt_pk_bf16_f32 v{u+1}, v126, v127
v_lshlrev_b32 v{u+2}, 16, v{u}
v_and_b32 v{u+3}, 0xffff0000, v{u}
v_lshlrev_b32 v{u+4}, 16, v{u+1}
v_and_b32 v{u+5}, 0xffff0000, v{u+1}
v_add_f32 v{u+6}, abs(v124), abs(v125)
v_sub_f32 v{u+2}, v124, v{u+2}
v_sub_f32 v{u+3}, v125, v{u+3}
v_sub_f32 v{u+4}, v126, v{u+4}
v_sub_f32 v{u+5}, v127, v{u+5}
v_add_f32 v{u+7}, abs(v126), abs(v127)
s_mov_b32 exec_lo, 0
v_cvt_pk_bf16_f32 v{u}, v{u+2}, v{u+3}
v_cvt_pk_bf16_f32 v{u+1}, v{u+4}, v{u+5}
s_mov_b32 exec_lo, -1
v_add_f32 v{u+6}, v{u+6}, v{u+7}
v_lshlrev_b32 v1, 3, v108
v_and_b32 v{u+6}, 0x7fffffff, v{u+6}
ds_write_b64 v1, {P2(u)} offset:{W3L}
""")
        dpp_scan(a,"v_max_u32",[u+6])
        a(f"""
s_mov_b32 exec_lo, 0
s_brev_b32 exec_hi, 1
ds_max_u32 v{VZ}, v{u+6} offset:{mC3}
s_mov_b64 exec, -1
""")
    e2=W2N
    a(f"v_mov_b32 v1, {hex(ONE2)}\nds_write2_b32 v{VZ}, v1, v1 offset0:{OH//4} offset1:{OH//4+3}")
    gsync('bX',"KG_y1",mGX,4,VZ,2,f"s_waitcnt vmcnt({8+e2-W1E})")
    if GP_: a(f"s_setprio {GP_}")
    xfrags([0])
    a(f"s_waitcnt vmcnt({e2})")
    pt('xl')
    trfrag(WF,TP,32768,2048,256)
    a("s_waitcnt lgkmcnt(7)")
    trfrag(WF+16,TP,32768+8,2048,256)
    def pm(T,i):
        for s in range(4): a(mfma16(GA+8*T+4*i,WF+16*i+4*s,XF+16*T+4*s,None if s==0 else GA+8*T+4*i))
    def pcv(T):
        c=GA+8*T
        L=[f"v_mul_f32 v{c+j}, s{sL2E}, v{c+j}" for j in range(8)]
        L+=[f"v_cvt_pk_bf16_f32 v{c+j}, v{c+2*j}, v{c+2*j+1}" for j in range(4)]
        L+=[f"ds_write_b128 v116, {P4(c)} offset:{T*4096}"]
        return L
    def pmi(T,fillers):
        for i in range(2):
            for s in range(4):
                a(mfma16(GA+8*T+4*i,WF+16*i+4*s,XF+16*T+4*s,None if s==0 else GA+8*T+4*i))
                for _ in range(2):
                    if fillers: a(fillers.pop(0))
    a("s_waitcnt lgkmcnt(8)"); xfrags([1]); pm(0,0)
    a("s_waitcnt lgkmcnt(4)"); xfrags([2,3]); pm(0,1)
    a("s_waitcnt lgkmcnt(8)"); pm(1,0); pm(1,1)
    a("s_waitcnt lgkmcnt(0)"); pmi(2,pcv(0)); pmi(3,pcv(1))
    a(f"s_lshl_b32 s{t2}, s{sNB}, 8\ns_nop 2")
    for T in (2,3):
        for x in pcv(T): a(x)
    gsync('pg',"KG_y2",mGP,4,VZ,2)
    for T in range(4): a(f"ds_read_b128 {P4(PO+4*T)}, v117 offset:{T*4096}")
    a(f"""
KG_n:
ds_read_b32 v1, v{VZ} offset:{mNO}
s_waitcnt vmcnt(0) lgkmcnt(0)
v_readfirstlane_b32 s{sNON}, v1
s_cmp_eq_u32 s{sNON}, 0
s_cbranch_scc1 KG_n
""")
    slot()
    for T in range(3):
        a(f"s_add_u32 s{t1}, s{t2}, {F_P+T*16*65536}")
        a(f"buffer_store_dwordx4 {P4(PO+4*T)}, v118, {SR4(sR)}, s{t1} offen{SSC}")
    a(f"""
s_cmp_eq_u32 s{sWV}, 4
s_cbranch_scc0 KG_p
s_add_u32 s{t1}, s{t2}, {F_P+3*16*65536}
s_waitcnt lgkmcnt(0)
s_mov_b64 exec, 0xffff
buffer_store_dwordx4 {P4(PO+12)}, v118, {SR4(sR)}, s{t1} offen{SSC}
s_mov_b64 exec, -1
KG_p:
""")
    pt('pst')
    if RWI==1: arrive(mPS,1)
    if GP_: a("s_setprio 0")
    if W2N<8: sdma(sA,32768,-32768,VY,range(W2N,8))
    srd(a,sA,14,256*256)
    w3m()
    for T in range(4):
        c=GA+8*T
        if T==3: a("s_mov_b32 exec_lo, 0x10001\ns_mov_b32 exec_hi, 0x10001")
        if T==0: a(f"v_pk_maximum3_f16 v114, v{c}, v{c+1}, v{c+2}\nv_pk_minimum3_f16 v115, v{c}, v{c+1}, v{c+2}\nv_pk_maximum3_f16 v114, v114, v{c+3}, v{c+3}\nv_pk_minimum3_f16 v115, v115, v{c+3}, v{c+3}")
        else: a(f"v_pk_maximum3_f16 v114, v114, v{c}, v{c+1}\nv_pk_minimum3_f16 v115, v115, v{c}, v{c+1}\nv_pk_maximum3_f16 v114, v114, v{c+2}, v{c+3}\nv_pk_minimum3_f16 v115, v115, v{c+2}, v{c+3}")
    a("s_mov_b64 exec, -1")
    absmax_fin(a,114,115,2)
    a(f"""
v_cmp_lt_u32 vcc, 0x40e80000, v114
s_cmp_lg_u64 vcc, 0
s_cselect_b32 s{sFLAG}, 0x101, 1
""")
    def pflag(n):
        a(f"""
s_lshl_b32 s{t2}, s2, {FS}
s_add_u32 s{t2}, s{t2}, {F_FLG}
v_mov_b32 v1, s{sFLAG}
s_waitcnt vmcnt({n})
s_mov_b64 exec, 1
ds_add_rtn_u32 v1, v{VZ}, v1 offset:{mPD}
s_waitcnt lgkmcnt(0)
v_readfirstlane_b32 s{t1}, v1
s_add_u32 s{t1}, s{t1}, s{sFLAG}
s_and_b32 s{t0}, s{t1}, 255
s_cmp_eq_u32 s{t0}, 4
s_cbranch_scc0 KG_f
KG_e:
ds_read_b64 v[2:3], v{VZ} offset:{mE}
ds_read_b32 v1, v{VZ} offset:{mC3}
s_waitcnt lgkmcnt(0)
v_cmp_gt_u32 vcc, 4, v2
v_mul_f32 v1, v1, v3
s_cbranch_vccnz KG_e
v_cmp_nge_f32 vcc, 0x41680000, v1       ; !(14.5 >= e*c3)
s_lshl_b32 s{t0}, vcc_lo, 8
s_or_b32 s{t1}, s{t1}, s{t0}
s_cmp_gt_u32 s{t1}, 255
s_cselect_b32 s{t0}, 2, 0
s_xor_b32 s{t0}, s{sNON}, s{t0}
s_mov_b64 exec, {(1<<FR)-1}
v_mov_b32 v1, s{t0}
v_lshlrev_b32 v2, {8+FS}, v{VL}
buffer_store_dword v1, v2, {SR4(sR)}, s{t2} offen{SSC}
s_waitcnt vmcnt(1)
s_branch KG_f2
KG_f:
s_waitcnt vmcnt(0)
KG_f2:
s_mov_b64 exec, -1
""")
        pt('pfl')
    def mid():
        sdma(sA,0)
        if RWI==2: arrive(mPS,1)
        pflag(8); arrive(mPI,1)
    if W2N<8:
        if WU1L:
            pflag(8-W2N); qfull("KGq",lambda: sdma(sA,0)); a("s_waitcnt vmcnt(0)"); arrive(mPI,1)
        else:
            sdma(sA,0); epi_consts(); pflag(16-W2N); arrive(mPI,1); qfull("KGq",lambda: 0)
    elif WU1L:
        if PFI==2: pflag(0)
        qfull("KGq",lambda: pflag(0)); sdma(sA,0); epi_consts(); a("s_waitcnt vmcnt(0)"); arrive(mPI,1)
    elif SWU:
        if PFI==2: pflag(0)
        qfull("KGq",lambda: pflag(0)); epi_consts(); gwait("KG_pi",mPI,4,VZ,1)
    else: qfull("KGq",mid); epi_consts()
    gwait("KG_w3",mPD,4,VZ,1)
    w3rd(); trw()
    a("s_waitcnt lgkmcnt(0)"); ugemm(1)
    if FLP==1: gwait("KG_b2",mH,16,VZ,1)
    a(f"""
s_and_b32 s{sLO}, s2, {FR-1}
s_lshl_b32 s{sLO}, s{sLO}, {8+FS}
s_add_u32 s{sLO}, s{sLO}, {F_FLG}
v_lshlrev_b32 v110, {FS}, v108
buffer_load_dword v116, v110, {SR4(sR)}, s{sLO} offen{SC}
""")
    if PFP==2: pfp()
    if PFT:
        a(f"""
s_mul_i32 s{t1}, s{sW4}, {PFK*4}
v_mov_b32 v1, s{t1}
s_lshl_b32 s{t1}, s{t1}, 6
v_lshl_add_u32 v117, v{VL}, 2, s{t1}
ds_read_b32 v1, v1
ds_read_u16 v2, v117 offset:{WB}
v_mov_b32 v3, 0
s_waitcnt lgkmcnt(0)
v_cmp_lt_u32 vcc, v117, v1
s_or_b64 exec, vcc, 1
""")
        for k in range(PFT): a(f"buffer_load_dword v{QA+15}, v[2:3], {SR4(sP)}, 0 idxen offen offset:{3072+128*k}{SC}")
        a("s_mov_b64 exec, -1")
    a(f"""
s_mov_b32 s{sWU}, -1
s_or_b32 s{t1}, s{sNON}, 2
s_waitcnt vmcnt({(1 if PFP==2 else 0)+PFT})
KS_m:
v_or_b32 v2, 2, v116
v_cmp_ne_u32 vcc, s{t1}, v2
s_cbranch_vccz KS_n
s_sub_u32 s{sBUD}, s{sBUD}, 1
s_cbranch_scc1 KS_n
s_sleep {FSL}
s_mov_b64 exec, vcc
buffer_load_dword v116, v110, {SR4(sR)}, s{sLO} offen{SC}
s_mov_b64 exec, -1
s_waitcnt vmcnt(0)
s_branch KS_m
KS_n:
v_cmp_ne_u32 vcc, s{sNON}, v116
s_cbranch_vccz KS_o
ds_write_b32 v{VZ}, v{FA} offset:{mSLOW}
KS_o:
""")
    pt('flg')
    if PRIO: a("s_setprio 3")
    bar('b3')
    a(f"ds_read_b32 v1, v{VZ} offset:{mNT}\ns_waitcnt lgkmcnt(0)\nv_readfirstlane_b32 s{sNT}, v1")
    ranges()
    a("KF_J:")
    def rd_ga(off): a(f"ds_read_u16 v{GA0}, v{SB} offset:{GL+off}")
    def rd_gg(off): a(f"ds_read_u16 v{YA}, v{RB} offset:{GL+off}")
    ya=f"v_lshl_add_u32 v{EA}, v{YA}, 1, v{EC}\nv_add_u32 v{YA}, v{YA}, v{M4}"
    ry=f"ds_read_u16 v{VY}, v{YA} offset:{WB+2}"
    def rd_y(): a(ya); a(ry)
    def idx1(i): return f"ds_read_u16 v{IDX+2*i}, v{GA0} offset:{WB+4*i}"
    def rd_idx():
        for i in range(4): a(idx1(i))
    def dmai(i): return f"buffer_load_dwordx4 {P2(IDX+2*(i&3))}, {SR4(sP)}, {'0' if i<4 else 's'+str(s128)} idxen offen offset:{1024*(i&3)}{GSC} lds"
    def dma():
        for i in range(8):
            if i==0: a(f"s_mov_b32 m0, s{sBUF}\ns_nop 0")
            if i==4: a(f"s_add_u32 m0, s{sBUF}, 4096\ns_nop 0")
            a(dmai(i))
    def dma_h1(mid):
        a(f"s_add_u32 m0, s{sBUF}, 4096"); a(mid)
        for i in range(4,8): a(dmai(i))
        a(f"s_mov_b32 m0, s{sBUF}")
        rd_idx()
    def dma_idx():
        for i in range(4): a(dmai(i))
        dma_h1(ry)
    rd_b=f"ds_read_b128 {P4(B3+2)}, v{QAD}\nds_read_b128 {P4(B3+10)}, v{QAD} offset:512"
    rd_a3=f"ds_read_b64 {P2(A6)}, v{EA}\nds_read_b64 {P2(A6+2)}, v{VY} offset:{OH}\nds_read_b64 {P2(A6+4)}, v{EA}"
    def rd_a(t): return f"ds_read_b128 {P4(A+4*t)}, v{AR} offset:{4096*(t>>2)+(16*(t&1)+2*((t>>1)&1))*128}"
    def m4(z,q,j): return mfma4(z+4*j,A+16*(q>>1)+4*j+2*(q&1),None)
    rd_s=f"ds_read_b64 {P2(SS)}, v{SA2}\nds_read_b64 {P2(SS+2)}, v{SA2+1}"
    def AQ(q): return A6+2*(q&1)
    win=f"v_add3_u32 v{VY}, v{VY}, v{OH2}, s{sW8}\nv_lshl_add_u32 v{QAD}, s{sQ}, 6, v{QC}"
    rd_ga(0); rd_gg(0)
    a(f"""
ds_read_u16 v{WT}, v1 offset:{GL}
ds_read_b32 v{GP}, v{VZ} offset:{mSLOW}
s_waitcnt lgkmcnt(3)
""")
    rd_idx()
    a("s_waitcnt lgkmcnt(0)")
    dma()
    pt('d0')
    a(f"v_readlane_b32 s{sNF}, v{WT}, s{sCNT}\nv_readfirstlane_b32 s{t3}, v{GP}")
    rd_y(); rd_ga(16)
    if US: a(f"s_cmp_ge_u32 s{sWV}, 4\ns_cbranch_scc1 KF_u"); ugemm(0); a("KF_u:")
    a("s_waitcnt lgkmcnt(0)")
    rd_idx()
    a(f"""
s_cmp_lg_u32 s{t3}, 0
s_cbranch_scc1 KF_SLOW
s_lshr_b32 s{sNF}, s{sNF}, 8
v_subrev_u32 v2, s{sNF}, v{VL}
v_and_b32 v2, 15, v2
v_add_u32 v{DR}, s{sNF}, v2
v_lshlrev_b32 v2, 2, v{DR}
ds_read_b32 v{GP}, v2 offset:{BT}
s_and_b32 s{sQ}, s{sNF}, -2
s_lshl_b32 s{sQ}, s{sQ}, 3
s_sub_u32 s{sW8}, 0, s{sQ}
{win}
{rd_b}
{rd_a3}
""")
    rd_gg(16)
    a(f"""
v_lshrrev_b32 v{WT}, 9, v{WT}
v_lshlrev_b32 v{WT}, 4, v{WT}           ; 8*(w&~1)
v_mov_b32 v{SS}, 0
v_mov_b32 v{SS+1}, 0
v_mov_b32 v{SS+2}, 0
v_mov_b32 v{SS+3}, 0
v_mad_u32_u24 v{SA2}, v{SI2}, s{sT0}, v{SA2}
v_mad_u32_u24 v{SA2+1}, v{SI2+1}, s{sT0}, v{SA2+1}
s_add_u32 s{t1}, s{sT0}, s{sCNT}
s_lshl_b32 s{t1}, s{t1}, 7
s_add_u32 s{t2}, s{sWV}, 48
v_mov_b32 v1, s{t2}
{mfma32(ACC+16,SS,SS,None)}
s_waitcnt lgkmcnt(0)
""")
    rd_y(); rd_ga(32)
    a(f"""
v_cmp_gt_u32 vcc, s{t0}, v{GP}
v_cmp_gt_u32 {S2(t2)}, s{t1}, v{GP}
v_cmp_gt_u32 {S2(t0)}, s{sNN}, v{DR}
v_cndmask_b32 v{DR}, v{DR}, v1, vcc
s_cmp_lg_u64 vcc, 0
s_cselect_b32 s{sHEAD}, 1, 0
s_and_b64 vcc, {S2(t2)}, {S2(t0)}
v_lshlrev_b32 v1, 2, v{VL}
v_cndmask_b32 v{DR}, 56, v{DR}, vcc
v_lshrrev_b32 v2, 1, v{VL}
v_mul_u32_u24 v{DR}, {AS}, v{DR}
v_and_b32 v2, 24, v2
v_add_u32 v{DR}, v{DR}, v2
s_mul_i32 s{t0}, s{sNF}, {AS}
v_add_u32 v{eM0}, s{t0}, v1
s_sub_u32 s{sCNT}, s{sCNT}, 1
s_mov_b32 m0, s{sBUF}
""")
    pt('pre')
    a("s_waitcnt vmcnt(4)")
    pt('g0')
    for t in range(4): a(rd_a(t))
    a("s_waitcnt lgkmcnt(0)")
    for j in range(4): a(m4(Z[0],0,j))
    a("s_nop 3")
    a(mfma32(Z[0],AQ(0),B3,Z[0]))
    a("s_nop 9")
    pt('pro')
    def finals(qprev):
        for u in range(2): a(f"v_pk_mul_f32 {P2(NN+2*u)}, {P2(NN+2*u)}, {P2(DD+2*u)}")
        for u in range(2): a(f"v_cvt_pk_bf16_f32 v{GP+2*(qprev&1)+u}, v{NN+2*u}, v{NN+2*u+1}")
    def ex(zc,r): return f"v_exp_f32 v{EE+r}, v{zc+r}"
    def body(first):
        for q in range(4):
            zc=Z[q&1]; zn=Z[(q+1)&1]; qn=(q+1)&3
            pend=[0,1,2,3,8,9,10,11,4,5,12,13,6,7,14,15]
            f0=first and q==0
            if q==0: a(f"v_readlane_b32 s{sQ}, v{WT}, s{sCNT}")
            if q==3 or (first and q==1): a(f"s_waitcnt lgkmcnt(0)")
            for j in range(4):
                a(m4(zn,qn,j))
                a(f"v_rcp_f32 v{DD+j}, v{DD+j}" if not f0 else ex(zc,pend.pop(0)))
            agg=(q&1) and not (first and q==1)
            if agg:
                p=1 if q==1 else 0
                a(mfma32(ACC+16*p,GP,SS,None if first else ACC+16*p))
            for r in range(3 if SH3 else (4 if agg else 3)): a(ex(zc,pend.pop(0)))
            a(mfma32(zn,AQ(qn),B3+4*qn,zn))
            def bx():
                a(f"s_sub_u32 s{sW8}, 0, s{sQ}\ns_waitcnt vmcnt(0) lgkmcnt(0)\n{win}")
                rd_gg(32); rd_ga(48)
                a(rd_b); a(rd_a3); a(rd_s)
                for t in range(8): a(rd_a(t))
            if q==2 and XP==0: a(ex(zc,pend.pop(0))); bx()
            for r in range((4 if not (q==2 and XP==0) else 3)-SH3): a(ex(zc,pend.pop(0)))
            if q==2 and XP==1: bx()
            if f0:
                for i in range(4): a(dmai(i))
            if first and q==1: dma_h1("s_nop 0")
            if q==3:
                a(ya)
                if first: dma_idx()
                else:
                    a(f"s_cmp_gt_u32 s{sCNT}, 1\ns_cbranch_scc0 KF_lt")
                    dma_idx()
                    a("KF_lb:")
            if not f0: finals((q-1)&3)
            seq=[]
            for u in range(2): seq.append(f"v_pk_add_f32 {P2(DD+2*u)}, {P2(EE+8*u)}, 1.0 op_sel_hi:[1,0]")
            for m in range(1,4):
                for u in range(2):
                    src=(zc+8*u) if m==1 else NN+2*u
                    seq.append(f"v_pk_fma_f32 {P2(NN+2*u)}, {P2(src)}, {P2(EE+8*u+2*m)}, {P2(src)}")
                for u in range(2): seq.append(f"v_pk_fma_f32 {P2(NN+2*u)}, {P2(zc+8*u+2*m)}, {P2(DD+2*u)}, {P2(NN+2*u)}")
                for u in range(2): seq.append(f"v_pk_fma_f32 {P2(DD+2*u)}, {P2(DD+2*u)}, {P2(EE+8*u+2*m)}, {P2(DD+2*u)}")
            if len(pend) in (10,6): a(ex(zc,pend.pop(0)))
            slots={9:[0,1,2,3,4,6,8,10,12],8:[0,1,2,3,5,7,9,11],5:[1,4,7,10,12]}[len(pend)]
            for k,x in enumerate(seq):
                if f0 and k==H1P:
                    a("s_waitcnt vmcnt(4)")
                    for t in range(4,8): a(rd_a(t))
                a(x)
                if k in slots: a(ex(zc,pend.pop(0)))
            if q==2: a(f"v_pk_add_f32 {P2(RB)}, {P2(RB)}, {S2(sINC)}\nv_pk_add_f32 {P2(SA2)}, {P2(SA2)}, {P2(SI2)}")
    if PROF and 'dyn' in PTS: stamp(a,8); stamp(a,9,True)
    if PROF and 'clk' in PTS: stamp(a,6,True)
    n0=len(a.l)
    body(True)
    a("s_branch KF_LE\n.p2align 6\nKF_LOOP:")
    body(False)
    def keep(l):
        t=l.strip()
        if X&1 and t.startswith('buffer_load'): return False
        if X&2 and t.startswith('ds_read_b128 v[') and int(t.split('[')[1].split(':')[0])>=28: return False
        if X&8 and t.startswith('v_mfma'): return False
        if X&16 and t.startswith('v_pk_fma'): return False
        if X&32 and t.startswith('v_exp'): return False
        return True
    a.l[n0:]=[l for l in a.l[n0:] if keep(l)]
    import re
    if UNP:
        L=[]; cnt=0
        for l in a.l[n0:]:
            m=re.match(r"\s*v_pk_fma_f32 v\[(\d+):\d+\], v\[(\d+):\d+\], v\[(\d+):\d+\], v\[(\d+):\d+\]",l)
            if m:
                cnt+=1
                d,x,y,z=map(int,m.groups())
                if UNP==1 or (UNP==2 and cnt%2==0) or (UNP==3 and d>=DD):
                    for k in range(2):
                        L.append(f"    v_fmac_f32 v{d+k}, v{x+k}, v{y+k}" if d==z else f"    v_fma_f32 v{d+k}, v{x+k}, v{y+k}, v{z+k}")
                    continue
            L.append(l)
        a.l[n0:]=L
    if X&(128|256|512|1024):
        L=[]
        for l in a.l[n0:]:
            m=re.match(r"\s*v_mfma_f32_32x32x16_bf16 v\[(\d+):\d+\], v\[(\d+):\d+\], v\[(\d+):\d+\], (.*)",l)
            if m and int(m.group(1))<ACC:
                d,x,y=int(m.group(1)),int(m.group(2)),int(m.group(3))
                if X&128:
                    if y==ID0: L+=["    "+mfma16(d+4,x,ID0,None),"    "+mfma16(d+8,x,ID1,None)]
                    elif y==ID1: L.append("    "+mfma16(d+12,x,ID0,None))
                    else: L.append("    "+mfma16(d,x,y,None))
                if X&1024:
                    if y in (ID0,ID1):
                        o=0 if y==ID0 else 8
                        for k in range(2): L.append(f"    v_mfma_f32_4x4x4_16b_bf16 v[{d+o+4*k}:{d+o+4*k+3}], v[{x+2*k}:{x+2*k+1}], v[{ID0}:{ID0+1}], v[{d+o+4*k}:{d+o+4*k+3}]")
                    else: L.append(l)
                if X&256:
                    if y!=ID1: L.append(l)
                if X&512:
                    if y==ID0: L.append(f"    v_mfma_f32_32x32x64_f8f6f4 v[{d}:{d+15}], v[{x}:{x+7}], v[{ID0}:{ID0+7}], v[{d}:{d+15}]")
                    elif y!=ID1: L.append(l)
            else: L.append(l)
        a.l[n0:]=L
    a("KF_LE:")
    if PRIO: a(f"s_bitcmp1_b32 42, s{sCNT}\ns_cbranch_scc1 KF_pr\nKF_pb:")
    a(f"""
s_sub_u32 s{sCNT}, s{sCNT}, 1
s_cbranch_scc0 KF_LOOP
""")
    def loop_tails():
        a(f"KF_lt:\ns_cmp_eq_u32 s{sCNT}, s{sWU}\ns_cbranch_scc0 KF_lb")
        sdma(sA,32768,0,WV)
        a(f"""
s_branch KF_lb
KF_pr:
""")
        if PROF and 'dyn' in PTS:
            a("s_mov_b32 s90, s92\ns_mov_b32 s91, s93\ns_mov_b32 s92, s94\ns_mov_b32 s93, s95\ns_mov_b32 s94, s96\ns_mov_b32 s95, s97")
            stamp(a,8); stamp(a,9,True)
        a(f"""
s_setprio 2
s_cmp_eq_u32 s{sCNT}, 5
s_cbranch_scc1 KF_pb
s_setprio 1
s_cmp_eq_u32 s{sCNT}, 3
s_cbranch_scc1 KF_pb
s_setprio 0
s_branch KF_pb
""")
    a(f"""
s_lshl_b32 s{t0}, s{sW4}, 2
v_mov_b32 v1, s{t0}
s_cmp_ge_u32 s{sWV}, 4
s_cbranch_scc1 KF_w0
ds_write_b32 v1, v{TP} offset:{mWU}
s_branch KF_w1
KF_w0:
ds_read_b32 v2, v1 offset:{mWU}
s_waitcnt lgkmcnt(0)
v_cmp_eq_u32 vcc, 0, v2
s_cbranch_vccnz KF_w0
KF_w1:
""")
    def trw2(): trfrag(A,TP,0,2048,256); trfrag(A+16,TP,8,2048,256)
    trw2()
    for j in range(4): a(f"v_rcp_f32 v{DD+j}, v{DD+j}")
    a("s_nop 0")
    finals(3)
    a("s_nop 1")
    a(mfma32(ACC+16,GP,SS,ACC+16))
    pt('loop')
    if PROF and 'clk' in PTS: stamp(a,7,True)
    def epst():
        a(f"""
s_or_b32 s{t1}, s2, s{sWV}
s_cbranch_scc1 KF_e2
v_mov_b32 v2, s{sNON}
s_mov_b64 exec, 1
buffer_store_dword v2, v{VZ}, {SR4(sR)}, 0 offen{ESC}
s_mov_b64 exec, -1
KF_e2:
""")
    for p in range(2):
        for j in range(4):
            c=ACC+16*p+4*j
            a(f"v_cvt_pk_bf16_f32 v{c}, v{c}, v{c+1}\nv_cvt_pk_bf16_f32 v{c+1}, v{c+2}, v{c+3}")
        for j in range(4): a(f"ds_write_b64 v{DR}, {P2(ACC+16*p+4*j)} offset:{AGB+128*p+32*j}")
    a(f"""
s_cmp_eq_u32 s{sHEAD}, 0
""")
    pt('dmp')
    bar('be',"s_waitcnt vmcnt(0) lgkmcnt(0)")
    a(f"""
s_cbranch_scc1 KF_FIN
ds_read_b32 v4, v{eM0} offset:{AGB}
ds_read_b32 v5, v{eM1} offset:{AGB+48*AS}
""")
    a(f"""
s_waitcnt lgkmcnt(0)
v_lshlrev_b32 v6, 16, v4
v_and_b32 v7, 0xffff0000, v4
v_lshlrev_b32 v8, 16, v5
v_and_b32 v9, 0xffff0000, v5
v_pk_add_f32 v[6:7], v[6:7], v[8:9]
v_cvt_pk_bf16_f32 v6, v6, v7
ds_write_b32 v{eM0}, v6 offset:{AGB}
KF_FIN:
""")
    a(f"s_cmp_ge_u32 s{sWV}, 4")
    if EP_==0: epst()
    bar('mrg')
    def EXP(rs): return [f"v_exp_f32 v{EE+i}, v{UA+i}" for i in rs]
    def RCP(rs): return [f"v_rcp_f32 v{EE+i}, v{EE+i}" for i in rs]
    def FMA(rs): return [f"v_fma_f32 v{EE+i}, v{EE+i}, s{sL2E}, s{sL2E}" for i in rs]
    def FIN(tau):
        e=EE+8*tau; c=UA+8*tau
        return [f"v_pk_mul_f32 {P2(e+2*j)}, {P2(e+2*j)}, {P2(c+2*j)}" for j in range(4)]+[f"v_cvt_pk_bf16_f32 v{e+j}, v{e+2*j}, v{e+2*j+1}" for j in range(4)]+[f"ds_write_b128 v{eOW}, {P4(e)} offset:{tau*4096}"]
    def PFM(rs): return [f"v_pk_fma_f32 {P2(EE+i)}, {P2(EE+i)}, {S2(sL2E)}, {S2(sL2E)}" for i in rs]
    XE=Z[0]
    for tau in range(2):
        for s_ in range(4): a(f"ds_read_b128 {P4(XE+16*tau+4*s_)}, v{eFA} offset:{AGB+tau*16*AS+64*s_}")
    for k,(x,y) in enumerate(zip(um(0,0,0,XE,True,A),um(0,0,1,XE,True,A))): a(f"s_waitcnt lgkmcnt({7-k})"); a(x); a(y)
    a("s_waitcnt lgkmcnt(0)"); pt('e1'); a("s_cbranch_scc1 KF_eg")
    for r in range(2):
        if r==1: a("KF_eg:")
        for x,y in zip(um(r,1,0,XE+16,True,A),um(r,1,1,XE+16,True,A)): a(x); a(y)
        pt('e2')
        if r==0:
            for x in EXP(range(8))+FMA(range(8))+RCP(range(8))+EXP(range(8,16))+FIN(0)+PFM(range(8,16,2))+RCP(range(8,16))+["s_nop 0"]+FIN(1): a(x)
            a("s_branch KF_ej")
        else:
            for x in EXP(list(range(8))+[8,12])+PFM((0,2,4,6,8,12))+RCP(list(range(8))+[8,12])+FIN(0): a(x)
            a(f"""
v_mul_f32 v{EE+8}, v{EE+8}, v{UA+8}
v_mul_f32 v{EE+12}, v{EE+12}, v{UA+12}
s_mov_b64 exec, 0xffff
v_cvt_pk_bf16_f32 v{EE+8}, v{EE+8}, v{EE+12}
ds_write_b16 v{eN48}, v{EE+8}
ds_write_b16_d16_hi v{eN48}, v{EE+8} offset:8
s_mov_b64 exec, -1
""")
    a(f"KF_ej:\ns_cmp_lt_u32 s{sWV}, 5")
    pt('e3')
    bar('sil')
    a(f"""
ds_read_b128 {P4(A)}, v{eRD}
s_cbranch_scc0 KF_e1
ds_read_b128 {P4(A+4)}, v{eRD} offset:8192
s_mov_b64 exec, {S2(sE2)}
s_waitcnt lgkmcnt(0)
buffer_store_dwordx4 {P4(A+4)}, v{eST}, {SR4(sX)}, s{sE1} offen{OSC}
s_mov_b64 exec, -1
KF_e1:
s_waitcnt lgkmcnt(0)
buffer_store_dwordx4 {P4(A)}, v{eST}, {SR4(sX)}, s{sE0} offen{OSC}
""")
    pt('sto')
    a(f"""
s_or_b32 s{t1}, s2, s{sWV}
s_cbranch_scc1 KF_e2
v_mov_b32 v2, s7
v_mov_b32 v3, 0xFFF0000
s_mov_b64 exec, 1
global_store_dword v3, v2, s[20:21]
KF_e2:
""")
    a(f"""
""")
    if PROF: a("s_waitcnt vmcnt(0)")
    stamp(a,10); stamp(a,11,True)
    stamp_out(a,1,sWV)
    a("KF_END:\ns_endpgm")
    loop_tails()
    hist_retry(8,"KT_h",True)
    a("KF_CEND:")
    SV=ACC; AGs=SV+8; RS_=SV+16
    a(f"""
KF_SLOW:
s_setprio 0
s_cmp_ge_u32 s{sWV}, 4
s_cselect_b32 s{sTOT}, 0, s{sTOT}
v_mov_b32 v1, s{sTOT}
ds_max_u32 v{VZ}, v1 offset:{mMX}
v_mov_b32 v{SS}, 0
v_mov_b32 v{SS+1}, 0
v_mov_b32 v{SS+2}, 0
v_mov_b32 v{SS+3}, 0
s_mov_b32 s{sLO}, 0
s_mov_b32 s{sLB}, s{sBUF}
s_sub_u32 s{t0}, s{sWV}, s{sT0}
s_lshl_b32 s{t0}, s{t0}, 4
v_add_u32 v{SV+4}, s{t0}, v{RB}
v_add_u32 v{SV+5}, s{t0}, v{SB}
s_lshl_b32 s{t0}, s{sWV}, 4
v_sub_u32 v{SV+6}, s{t0}, v{OHC}
v_and_b32 v{SV+7}, 28, v{VL}
v_and_b32 v1, 3, v{VL}
v_lshlrev_b32 v1, 2, v1
v_lshl_or_b32 v{SV+7}, v{SV+7}, 3, v1
v_lshlrev_b32 v1, 4, v0
""")
    for j in range(3): a(f"ds_write_b128 v1, {P4(SS)} offset:{AGG+j*8192}")
    a(f"""
v_lshlrev_b32 v1, 4, v{VL}
ds_write_b128 v1, {P4(SS)} offset:{AGG+3*8192}
s_waitcnt vmcnt(0) lgkmcnt(0)
s_barrier
ds_read_b32 v1, v{VZ} offset:{mMX}
s_waitcnt lgkmcnt(0)
v_readfirstlane_b32 s{sRND}, v1
KF_SR:
s_cmp_lt_u32 s{sLO}, s{sRND}
s_cbranch_scc0 KF_SE
s_barrier
v_lshlrev_b32 v1, 2, v{VL}
v_lshlrev_b32 v2, 8, v{VL}
ds_write_b32 v1, v2
s_waitcnt lgkmcnt(0)
s_barrier
s_cmp_ge_u32 s{sWV}, 4
s_cbranch_scc1 KF_S1
s_movk_i32 s{t3}, 256
""")
    expand("KF_x")
    a(f"s_sub_u32 s{t1}, s{sTOT}, s{sLO}")
    reclist(4)
    recload(4,"KF_rl")
    for i in range(4): a(f"s_mov_b64 {S2(sM+8+2*i)}, {S2(sM+2*i)}")
    hist(4,"KF_h",0,False)
    a("s_waitcnt lgkmcnt(0)")
    for i in range(4):
        a(f"""
v_mov_b32 v{RS_+4*i}, v{RC+4*i}
v_mov_b32 v{RS_+4*i+1}, v{RC+4*i+1}
v_mov_b32 v{RS_+4*i+2}, v{RC+4*i+2}
v_lshlrev_b32 v1, 6, v{RC+4*i+3}
v_sub_u32 v1, v{RK+i}, v1
v_cndmask_b32 v{RS_+4*i+3}, -1, v1, {S2(sM+8+2*i)}
""")
    a(f"""
KF_S1:
s_mov_b32 s{sHEAD}, 0                    ; 256*k
KF_SK:
s_waitcnt lgkmcnt(0)
s_barrier
s_cmp_ge_u32 s{sWV}, 4
s_cbranch_scc1 KF_S2
s_mov_b32 s{t1}, {EB}
""")
    for i in range(4):
        a(f"""
v_subrev_u32 v1, s{sHEAD}, v{RS_+4*i+3}
v_lshrrev_b32 v2, 19, v{RS_+4*i+2}
v_lshl_add_u32 v2, v2, 8, v1
v_lshl_add_u32 v3, v2, 1, s{t1}
v_cmpx_gt_u32 vcc, 0x100, v1
ds_write_b32 v2, v{RS_+4*i+2} offset:{WB}
ds_write_b64 v3, {P2(RS_+4*i)}
s_mov_b64 exec, -1
""")
    a("KF_S2:")
    scan(True)
    a(f"s_cmp_lg_u64 {S2(t2)}, 0\ns_cselect_b32 s{sFLAG}, 1, 0")
    fill("KFs",True,8)
    a(f"""
s_add_u32 s{sNT}, s{t0}, 127
s_lshr_b32 s{sNT}, s{sNT}, 7
s_waitcnt lgkmcnt(0)
s_barrier
v_mov_b32 v{RB}, v{SV+4}
v_mov_b32 v{SB}, v{SV+5}
v_mov_b32 v{SV+12}, v{SV+6}
s_mov_b32 s{sI}, s{sWV}
KF_SL:
s_cmp_lt_u32 s{sI}, s{sNT}
s_cbranch_scc0 KF_SN
""")
    rd_ga(0); rd_gg(0)
    for j in range(4): a(f"ds_read_u16 v{AGs+j}, v{SV+12} offset:{GL+2*j}")
    a("s_waitcnt lgkmcnt(0)")
    rd_y(); rd_idx()
    a("s_waitcnt lgkmcnt(0)")
    dma()
    for j in range(4): a(f"v_lshrrev_b32 v{AGs+j}, 8, v{AGs+j}")
    a(f"""
v_readfirstlane_b32 s{sQ}, v{AGs}
s_nop 3
s_and_b32 s{sQ}, s{sQ}, -2
s_lshl_b32 s{sQ}, s{sQ}, 3
s_sub_u32 s{sW8}, 0, s{sQ}
{win}
{rd_b}
{rd_a3}
""")
    for j in range(4): a(f"v_lshl_add_u32 v{AGs+j}, v{AGs+j}, 9, v{SV+7}")
    a("s_waitcnt vmcnt(0) lgkmcnt(0)")
    for t in range(8): a(rd_a(t))
    a("s_waitcnt lgkmcnt(0)")
    for q in range(4):
        z=Z[0]
        for j in range(4): a(m4(z,q,j))
        a("s_nop 3"); a(mfma32(z,AQ(q),B3+4*q,z))
        a("s_nop 15")
        for r in range(16): a(f"v_exp_f32 v{EE+r}, v{z+r}")
        for r in range(16): a(f"v_add_f32 v{EE+r}, 1.0, v{EE+r}")
        for r in range(16): a(f"v_rcp_f32 v{EE+r}, v{EE+r}")
        for m in range(4):
            for u in range(2):
                for par in range(2):
                    r=8*u+2*m+par; g=GP+2*u+par
                    a(f"v_mul_f32 v{g}, v{z+r}, v{EE+r}" if m==0 else f"v_fmac_f32 v{g}, v{z+r}, v{EE+r}")
        for j in range(4): a(f"ds_add_f32 v{AGs+j}, v{GP+j} offset:{AGG+256*(q>>1)+16*(q&1)}")
        a("s_waitcnt lgkmcnt(0)")
    a(f"""
v_add_u32 v{SB}, 128, v{SB}
v_add_u32 v{RB}, 128, v{RB}
v_add_u32 v{SV+12}, 128, v{SV+12}
s_add_u32 s{sI}, s{sI}, 8
s_branch KF_SL
KF_SN:
s_add_u32 s{sHEAD}, s{sHEAD}, 256
s_cmp_lg_u32 s{sFLAG}, 0
s_cbranch_scc1 KF_SK
s_add_u32 s{sLO}, s{sLO}, 256
s_branch KF_SR
KF_SE:
s_cmp_ge_u32 s{sWV}, 4
s_cbranch_scc1 KF_SE2
""")
    sdma(sA,32768,0,WV)
    a(f"""
KF_SE2:
v_lshlrev_b32 v1, 4, v0
v_lshrrev_b32 v2, 5, v0
s_waitcnt vmcnt(0) lgkmcnt(0)
s_barrier
""")
    for j in range(4): a(f"ds_read_b128 {P4(A+4*j)}, v1 offset:{AGG+j*8192}")
    a(f"""
v_mul_u32_u24 v2, {AS}, v2
v_and_b32 v3, 31, v0
v_lshl_add_u32 v4, v3, 3, v2
s_waitcnt lgkmcnt(0)
s_barrier
""")
    for j in range(4):
        a(f"v_cvt_pk_bf16_f32 v{A+4*j}, v{A+4*j}, v{A+4*j+1}\nv_cvt_pk_bf16_f32 v{A+4*j+1}, v{A+4*j+2}, v{A+4*j+3}")
        a(f"ds_write_b64 v4, {P2(A+4*j)} offset:{AGB+j*16*AS}")
    trw2()
    a("s_branch KF_FIN")
    hist_retry(4,"KF_h",False)
    return a.text()

if __name__=='__main__':
    import sys
    nm='standalone__mpnn_edge_mlp__graph_kernel'
    hdr=open('standalone__mpnn_edge_mlp__graph.s.ref').read().split('; Override')[0]
    out=hdr+(f"; @launch kernel={nm} grid=(256,1,1) block=(512,1,1) lds={KF_LDS}\n" if os.environ.get('LISTF') else f"; @launch grid=(256,1,1) block=(512,1,1) lds={KF_LDS}\n")
    out+='.amdgcn_target "amdgcn-amd-amdhsa--gfx950"\n.text\n'
    out+=f".globl {nm}\n.p2align 8\n.type {nm},@function\n"+gen_kf(nm)
    out+='.section .rodata,"a"\n.p2align 6\n'+kd(nm,256)
    open(sys.argv[1],'w').write(out)
```

```python
from common import *
X=int(os.environ.get('X','0'))
PRIO=int(os.environ.get('PRIO','1'))
DSP=[int(c,36) for c in os.environ.get('DSP','00000000')]
def EV(n,d): return int(os.environ.get(n,d))
TPOS=EV('TPOS',6); PFP=EV('PFP',3); XORD=EV('XORD',1); WUI=EV('WUI',2); FLP=EV('FLP',1); FSL=EV('FSL',8); TE=1; WG_=EV("WG",0); GPN=EV("GPN",1); N4=EV("N4",0); NW=EV("NW",1); RWI=EV("RWI",0); US=EV("US",0); TP_=EV("TP",7); SWU=EV("SWU",0); EO=EV("EO",0); NS=EV("NS",5); NE=EV("NE",3); FR=EV('FR',8); FS=EV('FS',2); W1N=EV('W1N',5); GP_=EV('GP',1); NT=os.environ.get('NT',''); CLM=EV('CLM',0); CLW=EV('CLW',1); SLP=EV('SLP',1); H1P=EV('H1P',10); SH3=EV('SH3',0); EP_=EV('EP',1); ESC=os.environ.get('ESC',''); PERM=EV('PERM',0); W2N=EV('W2N',8); UL=EV('UL',0); WU1L=EV('WU1L',0); W1E=EV('W1E',0); ZL=EV('ZL',0); FST=EV('FST',0); UNP=EV('UNP',0); TLB=EV('TLB',0); DBGP=EV('DBGP',0); ALN=EV('ALN',0); PFT=EV('PFT',1); PFK=EV('PFK',7); PF0=EV('PF0',0); PFN=EV('PFN',16); XP=EV('XP',0); PFI=EV('PFI',0); SWW=EV('SWW',1)
PTS=os.environ.get('PTS','b1,bS,tp,pfl,rl,b2,b3,pro').split(',')
SC=os.environ.get('LSC',' sc1')
SSC=os.environ.get('SSC',' sc1')
OSC=os.environ.get('OSC',' sc1')
GSC=os.environ.get('GSC',' sc1')
NPROD=250; EP=1600; RST=EP*16
F_P=0x1000; F_FLG=0x9C0000; F_TBL=0x330000; F_REC=0x380000; F_SIZE=0xA00000
PB0=0x1000000 if PROF else 0; PSL=EV('PSL',0xA00000); NSL=(0x10000000-PB0-F_SIZE)//PSL+1
assert F_REC+256*RST<=F_SIZE and F_TBL+256*1024<=F_REC
CNT=0; MISC=256; OH=400; GL=928; BT=1872; STB=2144; RS=944
mSLOW=MISC; mS=MISC+4; mGX=MISC+8; mGP=MISC+12; mC3=MISC+16; mPD=MISC+20; mSL=MISC+24; mMX=MISC+28; mPI=MISC+32; mH=MISC+36; mNT=MISC+40; mW=MISC+44; mE=MISC+48; mEM=MISC+52; mNO=MISC+56; mPS=MISC+60; mWU=MISC+64
AGB=17408
W3L=AGB+56*256
Q2=AGB+16384; QS=52*128
S1=Q2; ERAW=Q2+12800
WB=Q2+4*QS; NULLG=49*256; EB=WB+NULLG+16
HIST=WB; PSC=WB+2048
GBUF=98304
KF_LDS=GBUF+65536
assert EB+2*NULLG+32<=GBUF and STB+16*RS<=AGB
AGG=STB
ONE2=0x3F803F80
NULLW2=0xFFFF|(512<<16)
CAPT=58
ID0=4; ID1=8; B3=12; A=28; Z=[60,76]; A3=92; EE=96; NN=112; DD=116; GP=120; SS=124
IDX=128; AR=144; RB=152; SB=153; SA=154; VY=155; OHC=156; VL=157; WT=158; DR=159
ACC=160; WU2=192; UA=208; WF=160; WU1=176; QA=224; RC=96; XF=28; GA=192
TP=143; WV=151; A6=244; QAD=250; QC=145; SA2=146; SI2=148; OH2=150; GA0=232; YA=234; EA=235; M4=236; EC=237; VZ=238; PO=92; TRU=240; TD=241; TC=242; TO=243; RK=244; FA=252
sP=24; sX=28; sA=32; sR=36; sM=40
sWV=56; sK=57; sNN=58; sI=59; sNT=60; sBUF=61; sQ=62; sW8=63; sCNT=64; sT0=65
sL2E=66; sINC=68; sRND=70; sTOT=71; sNON=72; sBUD=73; sW4=74; sLB=75
sWU=3; sW4K=22; sPO=23; sFLAG=76; sLO=77; sMA=78; sQ2=80; s128=81; sHEAD=82; sNF=83
t0,t1,t2,t3=84,85,86,87
BUDGET=100000
sNB=2 if PERM else sK

def mfma32(d,x,y,c): return f"v_mfma_f32_32x32x16_bf16 v[{d}:{d+15}], v[{x}:{x+3}], v[{y}:{y+3}], "+("0" if c is None else f"v[{c}:{c+15}]")
def mfma16(d,x,y,c): return f"v_mfma_f32_16x16x32_bf16 v[{d}:{d+3}], v[{x}:{x+3}], v[{y}:{y+3}], "+("0" if c is None else f"v[{c}:{c+3}]")
def mfma4(d,x,c): return f"v_mfma_f32_4x4x4_16b_bf16 v[{d}:{d+3}], v[{x}:{x+1}], v[{ID0}:{ID0+1}], "+("0" if c is None else f"v[{c}:{c+3}]")
def P2(r): return f"v[{r}:{r+1}]"
def P4(r): return f"v[{r}:{r+3}]"
def S2(r): return f"s[{r}:{r+1}]"
def SR4(r): return f"s[{r}:{r+3}]"

def gen_kf(name):
    a=Asm()
    def pt(n):
        if PROF and n in PTS: stamp(a,2+PTS.index(n))
    def ret(n):
        if PROF and n in PTS: a(f"s_sub_u32 s{90+PTS.index(n)}, {BUDGET}, s{sBUD}\ns_mul_i32 s{90+PTS.index(n)}, s{90+PTS.index(n)}, 100")
    def bar(n,w="s_waitcnt lgkmcnt(0)"):
        a(w+"\ns_barrier"); pt(n)
    def gsync(n,lab,off,target,va,vt,pre=None):
        if pre: a(pre)
        a(f"""
v_mov_b32 v{vt}, 1
s_mov_b64 exec, 1
ds_add_u32 v{va}, v{vt} offset:{off}
s_mov_b64 exec, -1
{lab}:
ds_read_b32 v{vt}, v{va} offset:{off}
s_waitcnt lgkmcnt(0)
v_readfirstlane_b32 s{t1}, v{vt}
s_and_b32 s{t1}, s{t1}, 255
s_cmp_lt_u32 s{t1}, {target}
s_cbranch_scc1 {lab}
""")
        pt(n)
    def gwait(lab,off,target,va,vt):
        if SLP: a(f"s_branch {lab}_\n{lab}:\ns_sleep {SLP}\n{lab}_:")
        else: a(f"{lab}:")
        a(f"""
ds_read_b32 v{vt}, v{va} offset:{off}
s_waitcnt lgkmcnt(0)
v_readfirstlane_b32 s{t1}, v{vt}
s_and_b32 s{t1}, s{t1}, 255
s_cmp_lt_u32 s{t1}, {target}
s_cbranch_scc1 {lab}
""")
    def consts():
        srd(a,sP,20,N,off=PB0+F_P-3072,stride=256)
        srd(a,sR,20,F_SIZE,off=PB0)
        a(f"""
s_cmp_lt_u32 s{sNB}, {N-256*48}
s_cselect_b32 s{sNN}, 49, 48
s_mov_b32 s{sL2E}, {hex(LOG2E_NEG)}
s_mov_b32 s{sL2E+1}, {hex(LOG2E_NEG)}
s_mov_b32 s{sINC}, 16
s_mov_b32 s{sINC+1}, 16
s_mov_b32 s{sMA}, 0x0000ffff
s_mov_b32 s{sMA+1}, 0x0000ffff
s_mov_b32 s{sQ2}, {Q2}
s_mov_b32 s{sBUD}, {BUDGET}
v_lshrrev_b32 v2, 5, v{VL}              ; h
; g = 4 b2 + 2 b4 + b0 ; m = 2 b3 + b1 ; slot = 16 b2 + 4 m + (g&3)
v_lshrrev_b32 v1, 3, v{VL}
v_and_b32 v1, 2, v1
v_and_or_b32 v1, v{VL}, 5, v1           ; g
v_lshlrev_b32 v{RB}, 1, v1
v_lshlrev_b32 v3, 1, v{VL}
v_and_b32 v3, 4, v3
v_and_or_b32 v{M4}, v{VL}, 8, v3        ; 4m
v_lshlrev_b32 v{EC}, 1, v{M4}
v_add_u32 v{EC}, {EB}, v{EC}
v_and_b32 v{WT}, 15, v{VL}              ; n / c16
v_lshlrev_b32 v3, 1, v3
v_and_or_b32 v3, v{VL}, 1, v3
v_lshl_or_b32 v3, v2, 2, v3
v_lshl_add_u32 v{AR}, v3, 7, s{sBUF}
v_bfe_u32 v1, v{VL}, 1, 1
v_bfe_u32 v3, v{VL}, 2, 3
v_xor_b32 v1, v1, v3
v_lshl_add_u32 v{AR}, v1, 4, v{AR}
v_mul_i32_i24 v{OHC}, -8, v2
v_mul_u32_u24 v{SA}, {RS}, v{WT}
v_and_b32 v1, 1, v{VL}
v_lshlrev_b32 v1, 4, v1
v_mov_b32 v3, 0x3f80
v_lshlrev_b32 v1, v1, v3
""")
        a(f"s_mov_b32 vcc_lo, 0x33333333\ns_mov_b32 vcc_hi, 0x33333333\nv_cndmask_b32 v{ID0}, 0, v1, vcc\nv_sub_u32 v{ID0+1}, v1, v{ID0}")
        a(f"""
v_lshrrev_b32 v2, 4, v{VL}              ; a / g
v_lshrrev_b32 v{SB}, 2, v{VL}
v_and_b32 v{SB}, 14, v{SB}
v_and_b32 v1, 7, v{VL}
v_lshlrev_b32 v1, 4, v1
s_movk_i32 s{s128}, 128
""")
        for i in range(4): a(f"v_xor_b32 v{IDX+2*i+1}, {(i&1)*16+3072-1024*i}, v1")
        a(f"v_xor_b32 v3, v2, v{WT}\nv_lshlrev_b32 v3, 4, v3\nv_lshl_add_u32 v3, v{WT}, 8, v3\nv_add_u32 v{FA}, {AGB}, v3")
        for s in range(1,4): a(f"v_xor_b32 v{FA+s}, {64*s}, v{FA}")
        a(f"""
s_lshl_b32 s{t0}, s{sW4}, 13
s_add_u32 s{t0}, s{t0}, {GBUF}
s_lshr_b32 s{t1}, s{sWV}, 2
v_lshrrev_b32 v1, 2, v{WT}
v_lshl_add_u32 v1, v2, 3, v1
v_lshl_add_u32 v{DR}, v1, 6, s{t0}
v_xor_b32 v2, s{t1}, v2
v_and_b32 v2, 1, v2
v_and_b32 v3, 3, v{VL}
v_lshl_add_u32 v{TRU}, v2, 5, v{DR}
v_lshl_add_u32 v{TRU}, v3, 3, v{TRU}
v_lshrrev_b32 v2, 3, v{VL}
v_and_b32 v2, 2, v2
v_xor_b32 v2, v2, v3
v_lshl_add_u32 v{TP}, v2, 4, v{DR}
""")
    def slot():
        a(f"""
s_mul_i32 s{sPO}, s{sNON}, 0x9E3779B1
s_mul_hi_u32 s{sPO}, s{sPO}, {NSL}
s_mul_i32 s{sPO}, s{sPO}, {PSL}
s_add_u32 s{sP}, s{sP}, s{sPO}
s_addc_u32 s{sP+1}, s{sP+1}, 0
s_add_u32 s{sR}, s{sR}, s{sPO}
s_addc_u32 s{sR+1}, s{sR+1}, 0
""")
    def vyc(VY=VY):
        a(f"""
v_lshrrev_b32 v1, 4, v{VL}
v_and_b32 v1, 2, v1
v_xor_b32 v1, v1, v{VL}
v_and_b32 v1, 3, v1
v_lshlrev_b32 v1, 4, v1
v_lshrrev_b32 v2, 2, v{VL}
v_lshl_or_b32 v{VY}, v2, 8, v1
""")
    def trfrag(dst,addr,off,ks,hs):
        for s in range(4):
            a(f"ds_read_b64_tr_b16 {P2(dst+4*s)}, v{addr} offset:{off+s*ks}\nds_read_b64_tr_b16 {P2(dst+4*s+2)}, v{addr} offset:{off+s*ks+hs}")
    def tru(dst,off): trfrag(dst,TRU,off,2048,256)
    def sdma(sr,moff,loff=0,v=VY,js=range(8)):
        a(f"s_lshl_b32 s{t0}, s{sW4}, 6")
        for j in js:
            a(f"s_add_u32 m0, s{sBUF}, {loff+j*1024}\ns_add_u32 s{t1}, s{t0}, {moff+j*4096}\nbuffer_load_dwordx4 v{v}, {SR4(sr)}, s{t1} offen lds")
    def xfrags(Ts):
        for T in Ts:
            for s in range(4): a(f"ds_read_b128 {P4(XF+16*T+4*s)}, v{FA+s} offset:{T*4096}")
    def trw(): trfrag(WF,TP,32768,2048,256); trfrag(WF+16,TP,32768+8,2048,256)
    def um(r,tau,i,xf,acc,WF=WF):
        L=[]
        for s in range(4):
            w,x=WF+16*i+4*s,xf+4*s
            d=UA+8*tau+4*i
            L.append(mfma16(d,*((x,w) if (r,tau)==(1,1) else (w,x)),d if (acc or s) else None))
        return L
    def ugemm(r):
        for tau in range(2):
            for i in range(2):
                for x in um(r,tau,i,XF+16*(2*r+tau),False): a(x)
        a("s_nop 4")
        for j in ((0,2,4,6,8,10,12,14) if r==0 else (0,2,4,6,8,12)): a(f"v_pk_mul_f32 {P2(UA+j)}, {P2(UA+j)}, {S2(sL2E)}")
    def w3rd():
        a(f"v_lshlrev_b32 v1, 3, v{VL}")
        for q in range(4): a(f"ds_read_b64 {P2(B3+4*q+2*(q&1))}, v1 offset:{W3L+q*512}")
    F=A3
    def scan(slow):
        a(f"""
v_lshlrev_b32 v1, 2, v{VL}
ds_read_b32 v{F}, v1
v_cmp_gt_u32 vcc, s{sNN}, v{VL}
v_lshlrev_b32 v{F+1}, 8, v{VL}
s_waitcnt lgkmcnt(0)
v_sub_u32 v{QA}, v{F}, v{F+1}
""")
        if slow:
            a(f"""
s_movk_i32 s{t1}, 256
v_subrev_u32 v{QA}, s{sHEAD}, v{QA}
v_cmp_lt_i32 {S2(t2)}, s{t1}, v{QA}
v_med3_i32 v{QA}, v{QA}, 0, s{t1}
v_add_u32 v{F}, v{F+1}, v{QA}
""")
        a(f"""
v_add_u32 v3, 12, v{QA}
v_and_b32 v3, -16, v3
v_max_u32 v3, 80, v3
v_cndmask_b32 v3, 0, v3, vcc
v_mov_b32 v2, v3
""")
        dpp_scan(a,"v_add_u32",[2])
        a(f"""
v_readlane_b32 s{t0}, v2, 63
v_sub_u32 v2, v2, v3
""")
    def fill(lab,slow,nw):
        a(f"""
s_lshl_b32 s{t1}, s{sWV}, 4
v_add_u32 v{QA+1}, s{t1}, v2
v_lshrrev_b32 v{QA+1}, 3, v{QA+1}       ; 2*(G0+w)
v_add_u32 v{F+1}, s{t1}, v{F+1}         ; 256n+16w
v_subrev_u32 v{QA+2}, s{t1}, v3         ; g16-16w
""")
        if not slow: a(f"v_add_u32 v{QA+3}, v{QA+1}, v{SA}\nv_mov_b32 v{F+3}, 0x3f80\nds_write_b32 v1, v2 offset:{BT}")
        for k in range(16//nw):
            a(f"v_cmpx_lt_i32 vcc, {16*nw*k}, v{QA+2}\nds_write_b16 v{QA+1}, v{F+1+(k&1)} offset:{GL+2*nw*k}")
            if k+1<16//nw: a(f"v_add_u32 v{F+1+((k+1)&1)}, {16*nw}, v{F+1+(k&1)}")
            if not slow: a(f"ds_write_b16 v{QA+3}, v{F+3} offset:{STB+2*nw*k}")
        a(f"""
s_mov_b64 exec, -1
s_lshl_b32 s{t1}, s{sWV}, 2
v_sub_u32 v{QA+2}, v3, v{QA}
v_add_u32 v{F}, s{t1}, v{F}
v_subrev_u32 v{QA+2}, s{t1}, v{QA+2}    ; pad4 - 4w
s_mov_b32 s{t1}, {EB}
v_mov_b32 v{QA+4}, 0
v_mov_b32 v{QA+5}, 0
v_mov_b32 v{QA+6}, {hex(NULLW2)}
v_lshl_add_u32 v{QA+7}, v{F}, 1, s{t1}
""")
        for k in range(-(-20//nw)):
            a(f"v_cmpx_lt_i32 vcc, {4*nw*k}, v{QA+2}")
            if k==1: a(f"s_cbranch_vccz {lab}p")
            a(f"ds_write_b32 v{F}, v{QA+6} offset:{WB+4*nw*k}\nds_write_b64 v{QA+7}, {P2(QA+4)} offset:{8*nw*k}")
        a(f"""
{lab}p:
s_mov_b64 exec, -1
s_cmp_eq_u32 s{sWV}, 3
s_cbranch_scc0 {lab}q
s_lshr_b32 s{t1}, s{t0}, 3
v_lshl_add_u32 v{QA+1}, v{VL}, 1, s{t1}
v_mov_b32 v{QA+2}, {NULLG}
v_add_u32 v{QA+3}, {NULLG}, v1
v_lshlrev_b32 v{QA+7}, 1, v1
v_add_u32 v{QA+7}, {EB+2*NULLG}, v{QA+7}
s_mov_b64 exec, 0xff
ds_write_b16 v{QA+1}, v{QA+2} offset:{GL}
s_mov_b64 exec, 15
ds_write_b32 v{QA+3}, v{QA+6} offset:{WB}
ds_write_b64 v{QA+7}, {P2(QA+4)}
s_mov_b64 exec, -1
{lab}q:
""")
    def expand(lab,win=True):
        if win: a(f"""
v_subrev_u32 v1, s{sLO}, v{TO}
v_add_u32 v2, v1, v{TC}
v_med3_i32 v1, v1, 0, s{t3}
v_med3_i32 v2, v2, 0, s{t3}
v_sub_u32 v2, v2, v1
v_lshl_add_u32 v1, v1, 2, s{sLB}
""")
        a(f"{lab}:")
        for j in range(16):
            a(f"v_cmpx_lt_i32 vcc, {j}, v2")
            if j==13: a(f"s_cbranch_vccz {lab}z")
            a(f"ds_write_b32 v1, v{TD} offset:{4*j}")
        a(f"""
v_add_u32 v2, -16, v2
v_add_u32 v1, 64, v1
v_cmp_lt_i32 vcc, 0, v2
s_cmp_lg_u64 vcc, 0
s_cbranch_scc1 {lab}
{lab}z:
s_mov_b64 exec, -1
""")
    def rl1(i): return f"buffer_load_dwordx4 {P4(RC+4*i)}, v{RK+i}, {SR4(sR)}, {'0' if i<4 else 's'+str(sQ)} offen offset:{1024*(i&3)}{SC}"
    def reclist(ns):
        a(f"v_lshl_add_u32 v1, v{VL}, 2, s{sLB}")
        for i in reversed(range(ns)): a(f"ds_read_b32 v{RK+i}, v1 offset:{256*i}")
        a(f"v_add_u32 v2, s{sLO}, v{VL}\nv_lshlrev_b32 v2, 4, v2\ns_movk_i32 s{sQ}, 4096")
        for i in range(ns):
            a(f"v_cmp_gt_i32 {S2(sM+2*i)}, s{t1}, v{VL}\ns_sub_u32 s{t1}, s{t1}, 64")
        a("s_waitcnt lgkmcnt(0)")
        for i in range(ns): a(f"v_add_u32 v{RK+i}, v{RK+i}, v2")
    def recload(ns,lab):
        for i in reversed(range(ns)):
            a(f"s_mov_b64 exec, {S2(sM+2*i)}\ns_cbranch_execz {lab}{i}\n{rl1(i)}\n{lab}{i}:")
        a("s_mov_b64 exec, -1")
    def hist(ns,lab,extra,scat):
        a(f"v_mov_b32 v1, 4\ns_mov_b32 s{sW8}, {EB}\n{lab}p:")
        def gm(i): return S2(t0+2*(i&1))
        def sc(i,n):
            a(f"""
s_mov_b64 exec, {gm(i)}
s_waitcnt lgkmcnt({n})
v_min_u32 v{RK+i}, {NULLG-4}, v{RK+i}
v_lshl_add_u32 v{RC+4*i+3}, v{RK+i}, 1, s{sW8}
ds_write_b32 v{RK+i}, v{RC+4*i+2} offset:{WB}
ds_write_b64 v{RC+4*i+3}, {P2(RC+4*i)}
""")
        for i in reversed(range(ns)):
            a(f"""
s_mov_b64 exec, {S2(sM+2*i)}
s_waitcnt vmcnt({i+extra})
v_cmpx_eq_u32 {gm(i)}, s{sNON}, v{RC+4*i+3}
v_lshrrev_b32 v{RC+4*i+3}, 17, v{RC+4*i+2}
ds_add_rtn_u32 v{RK+i}, v{RC+4*i+3}, v1
s_andn2_b64 {S2(sM+2*i)}, {S2(sM+2*i)}, {gm(i)}
""")
            a(f"s_mov_b64 vcc, {S2(sM+2*i)}" if i==ns-1 else f"s_or_b64 vcc, vcc, {S2(sM+2*i)}")
            if scat and i==0 and 0: pass
            if scat and i==0: a(f"s_cselect_b64 exec, 0, 1\nds_add_u32 v{VZ}, v1 offset:{mH}")
            if scat and i<ns-1: sc(i+1,(1 if i==ns-2 else 3)+(1 if i==0 else 0))
        if scat: sc(0,3)
        a(f"s_cbranch_vccnz {lab}r\n{lab}d:\ns_mov_b64 exec, -1")
    def hist_retry(ns,lab,scat):
        a(f"{lab}r:\ns_sub_u32 s{sBUD}, s{sBUD}, 1\ns_cbranch_scc1 {lab}x")
        recload(ns,lab+"l")
        a(f"s_waitcnt vmcnt(0)\ns_branch {lab}p\n{lab}x:\ns_mov_b32 s{sBUD}, 0")
        if scat: a(f"s_mov_b64 exec, 1\nds_add_u32 v{VZ}, v1 offset:{mH}")
        a(f"s_branch {lab}d")
    def qfull(lab,mid):
        H=QA+4; MX=QA+1
        a(f"v_xor_b32 v{TC}, 32, v{TRU}")
        trfrag(WF,TC,0,2048,256)
        a(f"""
s_lshl_b32 s{t0}, s{sW4}, 8
s_add_u32 s{t0}, s{t0}, {Q2}
v_lshrrev_b32 v1, 4, v{VL}
v_lshl_add_u32 v120, v1, 11, s{t0}
v_and_b32 v1, 8, v{VL}
v_lshl_add_u32 v120, v1, 3, v120
v_and_b32 v1, 3, v{VL}
v_lshl_add_u32 v120, v1, 4, v120
v_and_b32 v1, 4, v{VL}
v_lshl_add_u32 v120, v1, 1, v120
v_add_u32 v121, 128, v120
s_waitcnt lgkmcnt(0)
""")
        tru(WF+16,0)
        def cv(i,T,pk):
            c=GA+16*i+4*T
            L=[]
            if pk: L+=[f"v_pk_mul_f32 {P2(c)}, {P2(c)}, {S2(sL2E)}",f"v_pk_mul_f32 {P2(c+2)}, {P2(c+2)}, {S2(sL2E)}"]
            else: L+=[f"v_mul_f32 v{c+k}, s{sL2E}, v{c+k}" for k in range(4)]
            L+=[f"v_and_b32 v{H+k}, 0xffff0000, v{c+k}" for k in range(4)]
            L+=[f"v_maximum3_f32 v{MX}, {'0' if T==0 and i==0 else 'v'+str(MX)}, abs(v{c}), abs(v{c+1})",f"v_maximum3_f32 v{MX}, v{MX}, abs(v{c+2}), abs(v{c+3})"]
            if pk: L+=[f"v_pk_add_f32 {P2(c)}, {P2(c)}, {P2(H)} neg_lo:[0,1] neg_hi:[0,1]",f"v_pk_add_f32 {P2(c+2)}, {P2(c+2)}, {P2(H+2)} neg_lo:[0,1] neg_hi:[0,1]"]
            else: L+=[f"v_sub_f32 v{c+k}, v{c+k}, v{H+k}" for k in range(4)]
            L+=[f"v_cvt_pk_bf16_f32 v{c+k}, v{c+k}, v{H+k}" for k in range(4)]
            return L
        for T in range(4):
            for s in range(4): a(mfma16(GA+4*T,XF+16*T+4*s,WF+4*s,None if s==0 else GA+4*T))
        a("s_waitcnt lgkmcnt(0)")
        fl=cv(0,0,0)+cv(0,1,0)
        for T in range(4):
            for s in range(4):
                a(mfma16(GA+16+4*T,XF+16*T+4*s,WF+16+4*s,None if s==0 else GA+16+4*T))
                for _ in range(2): a(fl.pop(0))
        if PFI==0: mid()
        for x in fl+cv(0,2,1)+cv(1,0,1)+cv(1,1,1)+cv(1,2,1): a(x)
        if PFI==1: mid()
        gwait(lab+"w",mSL,4,VZ,1)
        for i in range(2):
            for T in range(3):
                c=GA+16*i+4*T
                a(f"ds_write2st64_b64 v{120+i}, {P2(c)}, {P2(c+2)} offset0:{16*T} offset1:{16*T+2}")
        a("s_mov_b64 exec, 0xffff")
        for i in range(2):
            c=GA+16*i+12
            a(f"""
v_mul_f32 v{c}, s{sL2E}, v{c}
v_and_b32 v{H}, 0xffff0000, v{c}
v_maximum3_f32 v{MX}, v{MX}, abs(v{c}), abs(v{c})
v_sub_f32 v{c}, v{c}, v{H}
v_cvt_pk_bf16_f32 v{c}, v{c}, v{H}
ds_write2st64_b64 v{120+i}, {P2(c)}, {P2(c+2)} offset0:48 offset1:50
""")
        a(f"""
s_mov_b64 exec, -1
v_cmp_nge_f32 vcc, 0x40e80000, v{MX}
s_cbranch_vccz {lab}q
ds_write_b32 v{VZ}, v{FA} offset:{mSLOW}
{lab}q:
""")
        pt('qd')
    def ranges():
        a(f"""
s_lshr_b32 s{sCNT}, s{sNT}, 3
s_mul_i32 s{sT0}, s{sCNT}, s{sWV}
s_and_b32 s{t2}, s{sNT}, 7
s_min_u32 s{t3}, s{t2}, s{sWV}
s_add_u32 s{sT0}, s{sT0}, s{t3}
s_cmp_lt_u32 s{sWV}, s{t2}
s_addc_u32 s{sCNT}, s{sCNT}, 0
s_lshl_b32 s{t0}, s{sT0}, 7
s_lshl_b32 s{t2}, s{sT0}, 4
v_add_u32 v{SB}, s{t2}, v{SB}
v_add_u32 v{RB}, s{t2}, v{RB}
s_add_u32 s{t3}, s{sT0}, s{sCNT}
v_min_u32 v1, 8, v{VL}
v_sub_u32 v1, s{t3}, v1
v_lshlrev_b32 v1, 4, v1
v_max_i32 v1, 0, v1
""")
    AS=272; OST=GBUF+32768
    eFA,eOW,eN48,eRD,eST,eM0,eM1=136,137,138,139,140,141,142
    sE0,sE1,sE2=4,5,6
    def epi_consts():
        srd(a,sX,16,N*256)
        vyc(WV)
        a(f"""
v_and_b32 v1, 15, v{VL}
v_lshrrev_b32 v2, 4, v{VL}
v_mul_u32_u24 v3, {AS}, v1
s_lshr_b32 s{t0}, s{sWV}, 2
s_mul_i32 s{t1}, s{t0}, {32*AS}
v_lshl_add_u32 v3, v2, 4, v3
v_add_u32 v{eFA}, s{t1}, v3
s_lshl_b32 s{t0}, s{t0}, 13
s_add_u32 s{t0}, s{t0}, {OST}
s_lshl_b32 s{t1}, s{sW4}, 2
v_or_b32 v2, s{t1}, v2
v_xor_b32 v2, v2, v1
v_lshl_add_u32 v2, v2, 4, s{t0}
v_lshl_add_u32 v{eOW}, v1, 8, v2
s_lshl_b32 s{t0}, s{sW4}, 6
s_add_u32 s{t0}, s{t0}, {OST+48*256}
v_and_b32 v2, 12, v1
v_lshl_add_u32 v2, v2, 2, s{t0}
v_and_b32 v3, 3, v1
v_lshl_add_u32 v{eN48}, v3, 1, v2
v_lshlrev_b32 v1, 4, v0
v_add_u32 v{eRD}, {OST}, v1
v_lshrrev_b32 v2, 4, v0
v_xor_b32 v3, v2, v0
v_and_b32 v3, 15, v3
v_lshlrev_b32 v3, 4, v3
v_lshl_add_u32 v{eST}, v2, 16, v3
s_lshl_b32 s{sE0}, s{sNB}, 8
s_add_u32 s{sE1}, s{sE0}, {32*65536}
s_cmp_lt_u32 s{sWV}, 4
s_cselect_b64 {S2(sE2)}, -1, 0xffff
s_mul_i32 s{t0}, s{sWV}, {AS}
v_lshl_add_u32 v{eM1}, v{VL}, 2, s{t0}
v_lshlrev_b32 v{OH2}, 1, v{OHC}
v_and_b32 v1, 31, v{VL}
v_lshlrev_b32 v1, 4, v1
v_lshlrev_b32 v2, 5, v{VL}
v_and_b32 v2, 0x400, v2
v_add3_u32 v{QC}, v1, v2, s{sQ2}
v_cndmask_b32 v{SI2}, 0, 16, {S2(sMA)}
v_cndmask_b32 v{SI2+1}, 16, 0, {S2(sMA)}
v_sub_u32 v2, v{SA}, v{OHC}
v_add_u32 v2, {STB}, v2
v_mov_b32 v1, {OH+64}
v_cndmask_b32 v{SA2}, v1, v2, {S2(sMA)}
v_cndmask_b32 v{SA2+1}, v2, v1, {S2(sMA)}
""")
    def arrive(off,vt): a(f"v_mov_b32 v{vt}, 1\ns_mov_b64 exec, 1\nds_add_u32 v{VZ}, v{vt} offset:{off}\ns_mov_b64 exec, -1")

    def claim():
        a(f"""
s_mul_i32 s{t1}, s{sW4}, {13*65536}
s_lshl_b32 s{t2}, s{sNB}, 8
s_add_u32 s{t1}, s{t1}, s{t2}
s_add_u32 s{t1}, s{t1}, {F_P}
""")
        if CLW==1:
            a(f"""
v_lshlrev_b32 v2, 15, v{VL}
v_and_b32 v2, 0xffff0000, v2
v_and_b32 v3, 1, v{VL}
v_lshl_add_u32 v2, v3, 7, v2
v_add_u32 v2, s{t1}, v2
s_mov_b64 exec, 0x3ffffff
global_store_dword v2, v{VZ}, s[20:21] sc1
s_mov_b64 exec, -1
""")
        else:
            a(f"""
v_lshlrev_b32 v2, 14, v{VL}
v_and_b32 v2, 0xffff0000, v2
v_and_b32 v3, 3, v{VL}
v_lshl_add_u32 v2, v3, 6, v2
v_add_u32 v2, s{t1}, v2
s_mov_b32 exec_hi, 0xfffff
global_store_dword v2, v{VZ}, s[20:21] sc1
s_mov_b64 exec, -1
""")
    D=28; SRc=36; K=44; R=52; W2=60; RO=80
    sD=40; sS=44; sE=48
    Q16="s_mov_b64 exec, 0xffff"; FULL="s_mov_b64 exec, -1"
    a(f"""
{name}:
{"s_memrealtime s[88:89]" if PROF and FST else ""}
s_getpc_b64 {S2(t2)}
s_cmp_ge_u32 s2, 256
s_cbranch_scc1 KF_END
s_load_dwordx16 s[4:19], s[0:1], 0
s_load_dwordx2 s[20:21], s[0:1], 64
v_lshrrev_b32 v1, 6, v0
s_and_b32 s{t0}, s2, 0xf8
s_sub_u32 s{t1}, s{t0}, 136
s_cselect_b32 s{t1}, s{t0}, s{t1}
v_add_lshl_u32 v2, v1, s{t1}, 7
v_readfirstlane_b32 s{sWV}, v1
v_min_u32 v2, KF_CEND-{name}-16, v2
s_cmp_eq_u32 s2, 0
s_cbranch_scc1 KF_n0
s_mov_b64 exec, 1
global_load_dword v{QA+15}, v2, {S2(t2)}
s_mov_b64 exec, -1
KF_n1:
v_and_b32 v{VL}, 63, v0
v_mov_b32 v{VZ}, 0
v_lshlrev_b32 v113, 4, v{VL}
s_and_b32 s{sK}, s2, 7
s_lshl_b32 s{sK}, s{sK}, 5
s_lshr_b32 s{t1}, s2, 3
s_or_b32 s{sK}, s{sK}, s{t1}
s_and_b32 s{sW4}, s{sWV}, 3
s_lshl_b32 s{sW4K}, s{sW4}, 10
s_cmp_ge_u32 s{sWV}, 4
s_cbranch_scc0 KF_S
v_lshlrev_b32 v2, 2, v0
v_lshlrev_b32 v3, 8, v{VL}
ds_write_b32 v2, v{VZ} offset:{HIST-1024}
v_lshlrev_b32 v2, 2, v{VL}
ds_write2st64_b32 v2, v3, v{VZ} offset0:0 offset1:1
v_bfe_u32 v1, v0, 4, 4
v_xor_b32 v37, v1, v0
v_and_b32 v37, 15, v37
v_lshlrev_b32 v37, 4, v37
v_lshl_add_u32 v36, v1, 8, s{sNB}
s_waitcnt lgkmcnt(0)
""")
    if WSB: a(f"s_add_u32 s20, s20, {hex(WSB)}\ns_addc_u32 s21, s21, 0")
    (0 if FST else stamp(a,0,True)); stamp(a,1); pt('st')
    a(f"""
""")
    if XORD==0:
        srd(a,sX,4,N,stride=256)
        for j in range(4):
            if j==3: a(f"s_cmp_eq_u32 s{sWV}, 4\ns_cbranch_scc0 KT_c")
            a(f"s_add_u32 m0, s{sW4K}, {AGB+j*4096}\ns_nop 0\nbuffer_load_dwordx4 v[36:37], {SR4(sX)}, 0 idxen offen{NT} lds\nv_add_u32 v36, 4096, v36")
        a("KT_c:")
    a(f"""
s_lshr_b32 s{t0}, s{t0}, 1
s_add_u32 s{t0}, s{t0}, s{sWV}
s_sub_u32 s{t0}, s{t0}, 4
s_lshl_b32 s{t0}, s{t0}, 9
v_lshl_add_u32 v2, v{VL}, 7, s{t0}
s_mov_b64 exec, 15
global_load_dword v{QA+15}, v2, s[12:13]
global_load_dword v{QA+15}, v2, s[14:15]
s_mov_b64 exec, -1
""")
    if TLB:
        a(f"""
s_lshr_b32 s{t0}, s{t0}, 9
s_mul_i32 s{t1}, s{t0}, {2*RST}
s_add_u32 s{t1}, s{t1}, {F_REC+EP*16}
s_add_u32 s52, s20, s{t1}
s_addc_u32 s53, s21, 0
s_load_dword s44, s[52:53], 0
s_load_dword s45, s[52:53], {RST}
""")
    a(f"""
s_branch KF_B0
KF_n0:                                  ; workgroup 0: wave 0 publishes the launch nonce before anything else
s_memrealtime s[44:45]
v_lshlrev_b32 v2, {2 if NW else 6}, v0
s_cmp_eq_u32 s{sWV}, 0
s_waitcnt lgkmcnt(0)
s_cbranch_scc0 KF_n1
s_lshl_b32 s46, s44, 2
s_or_b32 s46, s46, 1
v_mov_b32 v3, s46
s_mov_b64 exec, {-1 if NW else 15}
global_store_dword v2, v3, s[18:19] sc1
s_mov_b64 exec, -1
s_branch KF_n1
KF_S:
s_min_u32 s{t2}, s2, {NPROD-1}
s_mul_i32 s{t2}, s{t2}, {EP*4}
s_mul_i32 s{t3}, s{sWV}, 400
v_add_u32 v108, s{t3}, v{VL}
v_lshlrev_b32 v109, 2, v108
s_mov_b32 s{sD+2}, {E*4}
s_mov_b32 s{sD+3}, 0x00020000
s_waitcnt lgkmcnt(0)
""")
    if WSB: a(f"s_add_u32 s20, s20, {hex(WSB)}\ns_addc_u32 s21, s21, 0")
    (0 if FST else stamp(a,0,True)); stamp(a,1); pt('st')
    a(f"s_mov_b32 s{sD}, s10\ns_and_b32 s{sD+1}, s11, 0xffff")
    def ld7(dst,sr):
        for i in range(7):
            if i==6: a(Q16)
            a(f"buffer_load_dword v{dst+i}, v109, {SR4(sr)}, s{t2} offen offset:{i*256}{NT}")
        a(FULL)
    ld7(D,sD); pt('dl')
    def srcld(): srd(a,sS,8,E*4); ld7(SRc,sS)
    def eld():
        srd(a,sE,6,E*8)
        a(f"""
s_lshl_b32 s{sLB}, s{t3}, 3
s_lshl_b32 s{t2}, s{t2}, 1
s_add_u32 s{t2}, s{t2}, s{sLB}
s_add_u32 m0, s{sLB}, {ERAW}
s_add_u32 s{sLB}, s{sLB}, {S1}
""")
        for j in range(4):
            if j==3: a("s_mov_b64 exec, 0xff")
            a(f"buffer_load_dwordx4 v113, {SR4(sE)}, s{t2} offen offset:{1024*j}{NT} lds")
        a(FULL)
    if EO<2: srcld()
    if EO<1: eld()
    if CLM==2: claim()
    a(f"""
KF_B0:
""")
    if DBGP:
        a("v_mov_b32 v1, 0")
        for j,r in enumerate((4,6,8,10,12,14,16,18,20)): a(f"v_writelane_b32 v1, s{r}, {j}")
        a(f"v_lshlrev_b32 v2, 2, v{VL}\ns_mov_b64 exec, 0x1ff\nglobal_store_dword v2, v1, s[18:19]\ns_mov_b64 exec, -1\ns_waitcnt vmcnt(0)")
    if ALN: a(f"s_add_u32 s20, s20, {ALN-1}\ns_addc_u32 s21, s21, 0\ns_and_b32 s20, s20, {-ALN}")
    a(f"""
s_lshl_b32 s{sBUF}, s{sWV}, 13
s_add_u32 s{sBUF}, s{sBUF}, {GBUF}
s_barrier
""")
    if W1E:
        a(f"s_cmp_ge_u32 s{sWV}, 4\ns_cbranch_scc0 KF_c0")
        srd(a,sA,12,260*256); vyc(); sdma(sA,0,0,VY,range(W1E))
        a("KF_c0:")
    consts()
    a(f"""
s_cmp_ge_u32 s{sWV}, 4
s_cbranch_scc1 KF_T
""")
    if EO>=2: a(f"v_lshlrev_b32 v109, 2, v108"); srcld()
    if EO>=1: eld()
    a(f"""
v_mov_b32 v111, 8
v_and_b32 v124, 7, v{VL}
v_lshlrev_b32 v124, 7, v124
v_lshrrev_b32 v125, 3, v{VL}
v_lshl_add_u32 v124, v125, 2, v124
v_add_u32 v124, {HIST}, v124
v_add_u32 v125, 1024, v124
v_lshlrev_b32 v112, 3, v108
v_lshlrev_b32 v110, 4, v108
""")
    for i in range(7): a(f"v_add_u32 v{W2+1+2*i}, {i*512}, v112")
    if N4==1: a(f"s_load_dword s{sNON}, s[18:19], 0")
    if N4==2: a(f"s_mov_b32 s{sNON}, 0")
    a(f"s_cmp_ge_u32 s2, {NPROD}\ns_cbranch_scc1 KS_d\ns_waitcnt vmcnt({11+(CLM==2)})")
    pt('dst')
    if N4==2: a(f"s_load_dword s{sNON}, s[18:19], 0")
    for i in range(7):
        if i==6: a(Q16)
        a(f"v_lshlrev_b32_sdwa v{K+i}, 2, v{D+i} dst_sel:DWORD dst_unused:UNUSED_PAD src0_sel:DWORD src1_sel:BYTE_0\nds_add_rtn_u32 v{R+i}, v{K+i}, v111 offset:{HIST}")
    a(FULL+"\nKS_d:")
    gsync('b1',"KS_y1",mS,4,VZ,2)
    if PERM: a(f"ds_read2_b32 v[116:117], v124 offset0:0 offset1:8\nds_read2_b32 v[118:119], v124 offset0:16 offset1:24")
    else: a(f"ds_read_b128 v[116:119], v113 offset:{HIST}")
    if NE==3 and not N4: a(f"s_load_dword s{sNON}, s[18:19], 0")
    if N4: a(f"s_cmp_lg_u32 s{sNON}, 0\ns_cbranch_scc1 KS_na\ns_load_dword s{sNON}, s[18:19], 128\nKS_na:")
    for i in range(7): a(f"v_lshrrev_b32 v{D+i}, 8, v{D+i}")
    a(f"""
s_waitcnt lgkmcnt(0)
v_add_u32 v2, v116, v117
v_add3_u32 v2, v2, v118, v119
v_mov_b32 v3, v2
""")
    dpp_scan(a,"v_add_u32",[3])
    a(f"""
v_sub_u32 v120, v3, v2
v_add_u32 v121, v120, v116
v_add_u32 v122, v121, v117
v_add_u32 v123, v122, v118
""")
    if PERM: a(f"ds_write2_b32 v125, v120, v121 offset0:0 offset1:8\nds_write2_b32 v125, v122, v123 offset0:16 offset1:24")
    else: a(f"ds_write_b128 v113, v[120:123] offset:{HIST+1024}")
    for i in range(7):
        if i==6: a(Q16)
        a(f"ds_read_b32 v{K+i}, v{K+i} offset:{HIST+1024}")
    a(FULL)
    def tpub():
        if not NE: a(f"s_load_dword s{sNON}, s[18:19], 0")
        a(f"""
v_lshl_or_b32 v{QA}, v121, 16, v120
v_lshl_or_b32 v{QA+1}, v123, 16, v122
s_lshl_b32 s{t2}, s2, 10
s_add_u32 s{t2}, s{t2}, {F_TBL}
s_lshl_b32 s{t3}, s{sWV}, 4
""")
        for k,off in enumerate((64,192,None) if N4 else (128,64,192,None)):
            a(f"s_waitcnt lgkmcnt(0)\ns_cmp_lg_u32 s{sNON}, 0\ns_cbranch_scc1 KS_n1")
            if off is not None: a(f"s_sleep {NS}\ns_load_dword s{sNON}, s[18:19], {off}")
        a(f"""
KS_n0:
global_load_dword v1, v{VZ}, s[18:19] sc1
s_waitcnt vmcnt(0)
v_readfirstlane_b32 s{sNON}, v1
s_cmp_lg_u32 s{sNON}, 0
s_cbranch_scc1 KS_n1
s_sub_u32 s{sBUD}, s{sBUD}, 1
s_cbranch_scc0 KS_n0
s_mov_b32 s{sBUD}, 0
s_mov_b32 s{sNON}, 1
KS_n1:
v_mov_b32 v1, s{sNON}
ds_write_b32 v{VZ}, v1 offset:{mNO}
""")
        pt('non')
        slot()
        a(f"""
v_mov_b32 v{QA+3}, v1
s_lshl_b64 exec, 0xffff, s{t3}
buffer_store_dwordx4 {P4(QA)}, v113, {SR4(sR)}, s{t2} offen{SSC}
s_mov_b64 exec, -1
""")
    if NE==3:
        a(f"v_mov_b32 v{QA+2}, v3"); tpub()
        if WG_: arrive(mPS,2)
    else: a(f"s_mov_b32 s{sNON}, 0")
    a(f"s_cmp_ge_u32 s2, {NPROD}\ns_cbranch_scc1 KS_e\ns_waitcnt vmcnt({5 if NE==3 else 4})")
    if X&64:
        for i in range(7): a(f"v_and_b32 v{SRc+i}, 0x1ff, v{SRc+i}")
    for i in range(7): a(f"v_lshl_or_b32 v{W2+2*i}, v{D+i}, 19, v{SRc+i}")
    a(f"s_waitcnt lgkmcnt(0)")
    if NE==2: a(f"s_load_dword s{sNON}, s[18:19], 0")
    for i in range(7):
        if i==6: a(Q16)
        a(f"v_add_u32 v{K+i}, v{K+i}, v{R+i}\nds_write_b64 v{K+i}, {P2(W2+2*i)} offset:{S1}")
    a(FULL+"\nKS_e:")
    pt('sc1')
    if NE<3: a(f"v_mov_b32 v{QA+2}, v3")
    if NE==1: a(f"s_load_dword s{sNON}, s[18:19], 0")
    if NE<2: epi_consts(); tpub()
    else:
        if NE==2: tpub()
        pass
    a(f"""
v_lshlrev_b32 v114, 10, v0
s_lshr_b32 s{sLO}, s{sK}, 2
s_lshl_b32 s{sLO}, s{sLO}, 4
s_add_u32 s{sLO}, s{sLO}, {F_TBL}
v_cmp_gt_u32 vcc, {NPROD}, v0
v_mov_b32 v{QA+4}, 0
v_mov_b32 v{QA+5}, 0
v_mov_b32 v{QA+6}, 0
s_mul_i32 s{t0}, s2, {RST}
s_add_u32 s{t0}, s{t0}, {F_REC}
s_add_u32 s{t2}, s{t0}, 4096
v_mul_u32_u24 v115, {RST}, v0
v_add_u32 v115, {F_REC}, v115
""")
    gsync('bS',"KS_y2",mS,8,VZ,2,f"s_waitcnt vmcnt({1+(CLM==2)})")
    tl=f"s_mov_b64 exec, vcc\nbuffer_load_dwordx4 {P4(QA+4)}, v114, {SR4(sR)}, s{sLO} offen{SC}\ns_mov_b64 exec, -1"
    a(f"""
s_cmp_ge_u32 s2, {NPROD}
s_cbranch_scc0 KS_h0
""")
    gwait("KS_h1",mGP,4,VZ,2)
    a(f"""
{tl}
s_waitcnt vmcnt(0)
v_mov_b32 v1, 0
s_branch KS_j
KS_h0:
""")
    order=[6,0,1,2,3,4,5]
    for i in order:
        if i==6: a(Q16)
        a(f"ds_read_b64 {P2(RO+2+4*i)}, v112 offset:{S1+i*512}")
        if i==6: a(FULL)
    for i in order:
        if i==6: a(Q16)
        a(f"s_waitcnt lgkmcnt(6)\nds_read_b64 {P2(RO+4*i)}, v{RO+3+4*i} offset:{ERAW}")
        if i==6: a(FULL)
    gwait("KS_ww",mW,4,VZ,2)
    for k,i in enumerate(order):
        if k==TP_: a(tl)
        if i==6: a(Q16)
        a(f"v_mov_b32 v{RO+3+4*i}, v1\nbuffer_store_dwordx4 {P4(RO+4*i)}, v110, {SR4(sR)}, s{t0 if i<4 else t2} offen offset:{1024*(i&3)}{SSC}")
        if i==6: a(FULL)
    if TP_==7: a(tl)
    pt('out')
    a(f"v_pk_maximum3_f16 v1, v{RO}, v{RO+1}, v{RO+1}\nv_pk_minimum3_f16 v2, v{RO}, v{RO+1}, v{RO+1}")
    for i in range(1,7):
        if i==6: a(Q16)
        a(f"v_pk_maximum3_f16 v1, v1, v{RO+4*i}, v{RO+4*i+1}\nv_pk_minimum3_f16 v2, v2, v{RO+4*i}, v{RO+4*i+1}")
    a(FULL)
    absmax_fin(a,1,2,3)
    dpp_scan(a,"v_max_u32",[1])
    a(f"""
KS_j:
v_mov_b32 v2, 1
s_mov_b32 exec_lo, 0
s_brev_b32 exec_hi, 1
ds_max_u32 v{VZ}, v1 offset:{mEM}
ds_add_u32 v{VZ}, v2 offset:{mE}
s_mov_b64 exec, -1
""")
    if NE>=2: epi_consts()
    gwait("KS_xw",mGX,4,VZ,2)
    xfrags([0,1])
    a(f"""
s_bitcmp1_b32 s{sK}, 1
s_cselect_b64 {S2(t2)}, -1, 0
s_lshl_b32 s{t0}, s{sK}, 4
s_and_b32 s{t0}, s{t0}, 16
s_waitcnt vmcnt({7-TP_})
s_mov_b64 exec, vcc
KT_f:
v_cmp_ne_u32 vcc, s{sNON}, v{QA+7}
s_cbranch_vccz KT_g
s_mov_b64 exec, vcc
s_sub_u32 s{sBUD}, s{sBUD}, 1
s_cbranch_scc1 KT_f2
buffer_load_dwordx4 {P4(QA+4)}, v114, {SR4(sR)}, s{sLO} offen{SC}
s_waitcnt vmcnt(0)
s_branch KT_f
KT_f2:
s_mov_b32 s{sBUD}, 0
v_mov_b32 v{QA+4}, 0
v_mov_b32 v{QA+5}, 0
v_mov_b32 v{QA+6}, 0
KT_g:
s_mov_b64 exec, -1
""")
    pt('tp'); ret('rt1')
    a(f"""
v_cndmask_b32 v1, v{QA+4}, v{QA+5}, {S2(t2)}
v_cndmask_b32 v2, v{QA+5}, v{QA+6}, {S2(t2)}
v_alignbit_b32 v1, v2, v1, s{t0}
v_sub_u32_sdwa v{TC}, v1, v1 dst_sel:DWORD dst_unused:UNUSED_PAD src0_sel:WORD_1 src1_sel:WORD_0
v_and_b32 v1, 0xffff, v1
v_lshrrev_b32 v{TC}, 3, v{TC}
v_lshl_add_u32 v{TD}, v1, 1, v115
v_mov_b32 v{TO}, v{TC}
""")
    dpp_scan(a,"v_add_u32",[TO])
    a(f"""
v_readlane_b32 s{sTOT}, v{TO}, 63
v_sub_u32 v{TO}, v{TO}, v{TC}
v_mov_b32 v2, v{TC}
v_lshlrev_b32 v1, 4, v{TO}
s_mov_b32 s{sLO}, 0
s_cmp_gt_u32 s{sTOT}, 512
v_sub_u32 v{TD}, v{TD}, v1
v_lshl_add_u32 v1, v{TO}, 2, s{sLB}
s_cselect_b32 s{t1}, 0, s{sTOT}
s_cbranch_scc1 KT_xe
""")
    expand("KT_x",False)
    a("KT_xe:")
    reclist(8)
    arrive(mSL,1)
    pt('exp')
    if SWU:
        gwait("KS_gp",mGP,4,VZ,1); srd(a,sA,14,256*256); sdma(sA,0,32768,WV)
    gwait("KS_rw",{0:mPD,1:mPS,2:mPS}[RWI],4,VZ,1)
    if SWU==2: a("s_waitcnt vmcnt(0)"); arrive(mPI,1)
    if TP_<7: a("s_waitcnt vmcnt(0)")
    recload(8,"KT_l")
    pt('rl')
    def pfp():
        a(f"""
s_lshr_b32 s{t1}, s2, 3
s_mul_i32 s{t1}, s{t1}, 391
""")
        if PF0: a(f"v_and_b32 v2, 255, v0\nv_add_u32 v2, s{t1}, v2\nv_mov_b32 v3, 0")
        else: a(f"v_bfe_u32 v2, v0, 1, 7\nv_add_u32 v2, s{t1}, v2\nv_and_b32 v3, 1, v0\nv_lshlrev_b32 v3, 7, v3")
        if PFN<64: a(f"s_bfm_b64 exec, {PFN}, 0")
        a(f"buffer_load_dword v{QA+15}, v[2:3], {SR4(sP)}, 0 idxen offen offset:3072{SC}\ns_mov_b64 exec, -1")
    if PFP==1: pfp()
    if SWU==1:
        a(f"s_add_u32 s{t1}, s{sTOT}, 63\ns_lshr_b32 s{t1}, s{t1}, 6\ns_cmp_ge_u32 s{t1}, 6\ns_cbranch_scc1 KS_v6\ns_waitcnt vmcnt(0)\nKS_v6:\ns_cmp_gt_u32 s{sTOT}, 512\ns_cbranch_scc0 KS_v7\ns_waitcnt vmcnt(0)\nKS_v7:\ns_waitcnt vmcnt(6)")
        arrive(mPI,1)
    if not US:
        if not SWU: gwait("KS_w2",mPI,4,VZ,1)
        trw()
        a("s_waitcnt lgkmcnt(0)")
        w3rd()
        ugemm(0)
    pt('ud')
    hist(8,"KT_h",1 if PFP==1 else 0,True)
    if PFP==3: pfp()
    pt('hs'); ret('rt2')
    gwait("KS_b2",mH,16,VZ,1)
    pt('b2')
    scan(False)
    a(f"""
v_cmp_lt_u32 vcc, 0x100, v{QA}
s_add_u32 s{sNT}, s{t0}, 127
s_lshr_b32 s{sNT}, s{sNT}, 7
s_cmp_gt_u32 s{sNT}, {CAPT}
s_cbranch_scc1 KT_j
s_cbranch_vccnz KT_j
""")
    fill("KFz",False,4)
    a(f"v_mov_b32 v1, s{sNT}\nds_write_b32 v{VZ}, v1 offset:{mNT}")
    pt('fil')
    a(f"""
s_cmp_gt_u32 s{sTOT}, 512
s_cbranch_scc0 KT_k
KT_j:
ds_write_b32 v{VZ}, v{FA} offset:{mSLOW}
KT_k:
s_mov_b32 s{sWU}, 1
""")
    if US: gwait("KS_w2",mPI,4,VZ,1); trw(); w3rd()
    ranges()
    srd(a,sA,14,256*256)
    if PRIO: a("s_setprio 3")
    bar('b3')
    a("s_branch KF_J")
    a(f"""
KF_T:
{"s_load_dword s47, s[18:19], 0" if GPN else ""}
v_and_b32 v108, 255, v0
v_mov_b32 v32, 0
v_mov_b32 v33, 0
v_mov_b32 v34, 0
v_mov_b32 v35, 0
v_lshlrev_b32 v110, 4, v108
""")
    sG=40
    srd(a,sX,4,N,stride=256)
    def xld():
        for j in range(4):
            if j==3: a(f"s_cmp_eq_u32 s{sWV}, 4\ns_cbranch_scc0 KT_c")
            a(f"s_add_u32 m0, s{sW4K}, {AGB+j*4096}\ns_nop 0\nbuffer_load_dwordx4 v[36:37], {SR4(sX)}, 0 idxen offen{NT} lds\nv_add_u32 v36, 4096, v36")
        a("KT_c:")
    def warm():
        a(f"""
v_and_b32 v1, 28, v{VL}
v_and_b32 v2, 3, v{VL}
v_lshlrev_b32 v2, 1, v2
v_lshl_or_b32 v1, v1, 2, v2
s_lshr_b32 s{t0}, s{sW4}, 1
s_lshl_b32 s{t0}, s{t0}, 7
s_and_b32 s{t1}, s{sW4}, 1
s_lshl_b32 s{t1}, s{t1}, 3
s_add_u32 s{t0}, s{t0}, s{t1}
s_add_u32 s{t0}, s{t0}, 65536
""")
        for k in range(4): a(f"buffer_load_ushort v{124+k}, v1, {SR4(sA)}, s{t0} offen offset:{k*256}")
    def zer():
        a(f"v_cmp_le_u32 vcc, 32, v108\ns_mov_b64 exec, vcc\nds_write_b128 v110, v[32:35]\ns_mov_b64 exec, -1")
        for j in range(1,4): a(f"ds_write_b128 v110, v[32:35] offset:{j*4096}")
        a(f"""
s_cmp_eq_u32 s{sWV}, 4
s_cbranch_scc0 KT_b
ds_write_b128 v110, v[32:35] offset:16384
KT_b:
""")
    srd(a,sA,12,260*256); warm(); vyc()
    if XORD==1: xld()
    if not ZL: zer()
    a(f"""
s_lshl_b32 s{t0}, s{sW4}, 2
v_lshrrev_b32 v2, 4, v{VL}
v_or_b32 v1, s{t0}, v2                  ; 4u+g
v_xor_b32 v3, v1, v{WT}
v_lshlrev_b32 v3, 4, v3
v_lshl_add_u32 v116, v{WT}, 8, v3
v_add_u32 v116, {PSC}, v116
v_add_u32 v117, {PSC}, v110
v_lshl_add_u32 v118, v1, 16, v3
""")
    if XORD==2:
        gwait("KG_x",mS,4,VZ,1); xld()
    if WG_: sdma(sA,0,0,VY,range(WG_-1)); gwait("KG_tw",mPS,4,VZ,1)
    sdma(sA,0,0,VY,range(max(W1E,WG_-1),8))
    sdma(sA,32768,-32768,VY,range(W2N))
    arrive(mW,1)
    if ZL: zer()
    pt('w1i')
    def w3m():
        w=[124,125,126,127]; u=QA
        for k in range(4): a(f"v_lshlrev_b32 v{w[k]}, 16, v{w[k]}\nv_mul_f32 v{w[k]}, s{sL2E}, v{w[k]}")
        a(f"""
v_cvt_pk_bf16_f32 v{u}, v124, v125
v_cvt_pk_bf16_f32 v{u+1}, v126, v127
v_lshlrev_b32 v{u+2}, 16, v{u}
v_and_b32 v{u+3}, 0xffff0000, v{u}
v_lshlrev_b32 v{u+4}, 16, v{u+1}
v_and_b32 v{u+5}, 0xffff0000, v{u+1}
v_add_f32 v{u+6}, abs(v124), abs(v125)
v_sub_f32 v{u+2}, v124, v{u+2}
v_sub_f32 v{u+3}, v125, v{u+3}
v_sub_f32 v{u+4}, v126, v{u+4}
v_sub_f32 v{u+5}, v127, v{u+5}
v_add_f32 v{u+7}, abs(v126), abs(v127)
s_mov_b32 exec_lo, 0
v_cvt_pk_bf16_f32 v{u}, v{u+2}, v{u+3}
v_cvt_pk_bf16_f32 v{u+1}, v{u+4}, v{u+5}
s_mov_b32 exec_lo, -1
v_add_f32 v{u+6}, v{u+6}, v{u+7}
v_lshlrev_b32 v1, 3, v108
v_and_b32 v{u+6}, 0x7fffffff, v{u+6}
ds_write_b64 v1, {P2(u)} offset:{W3L}
""")
        dpp_scan(a,"v_max_u32",[u+6])
        a(f"""
s_mov_b32 exec_lo, 0
s_brev_b32 exec_hi, 1
ds_max_u32 v{VZ}, v{u+6} offset:{mC3}
s_mov_b64 exec, -1
""")
    e2=W2N
    a(f"v_mov_b32 v1, {hex(ONE2)}\nds_write2_b32 v{VZ}, v1, v1 offset0:{OH//4} offset1:{OH//4+3}")
    gsync('bX',"KG_y1",mGX,4,VZ,2,f"s_waitcnt vmcnt({8+e2-W1E})")
    if GP_: a(f"s_setprio {GP_}")
    xfrags([0])
    a(f"s_waitcnt vmcnt({e2})")
    pt('xl')
    trfrag(WF,TP,32768,2048,256)
    a("s_waitcnt lgkmcnt(7)")
    trfrag(WF+16,TP,32768+8,2048,256)
    def pm(T,i):
        for s in range(4): a(mfma16(GA+8*T+4*i,WF+16*i+4*s,XF+16*T+4*s,None if s==0 else GA+8*T+4*i))
    def pcv(T):
        c=GA+8*T
        L=[f"v_mul_f32 v{c+j}, s{sL2E}, v{c+j}" for j in range(8)]
        L+=[f"v_cvt_pk_bf16_f32 v{c+j}, v{c+2*j}, v{c+2*j+1}" for j in range(4)]
        L+=[f"ds_write_b128 v116, {P4(c)} offset:{T*4096}"]
        return L
    def pmi(T,fillers):
        for i in range(2):
            for s in range(4):
                a(mfma16(GA+8*T+4*i,WF+16*i+4*s,XF+16*T+4*s,None if s==0 else GA+8*T+4*i))
                for _ in range(2):
                    if fillers: a(fillers.pop(0))
    a("s_waitcnt lgkmcnt(8)"); xfrags([1]); pm(0,0)
    a("s_waitcnt lgkmcnt(4)"); xfrags([2,3]); pm(0,1)
    a("s_waitcnt lgkmcnt(8)"); pm(1,0); pm(1,1)
    a("s_waitcnt lgkmcnt(0)"); pmi(2,pcv(0)); pmi(3,pcv(1))
    a(f"s_lshl_b32 s{t2}, s{sNB}, 8\ns_nop 2")
    for T in (2,3):
        for x in pcv(T): a(x)
    gsync('pg',"KG_y2",mGP,4,VZ,2)
    for T in range(4): a(f"ds_read_b128 {P4(PO+4*T)}, v117 offset:{T*4096}")
    a(f"""
KG_n:
ds_read_b32 v1, v{VZ} offset:{mNO}
s_waitcnt vmcnt(0) lgkmcnt(0)
v_readfirstlane_b32 s{sNON}, v1
s_cmp_eq_u32 s{sNON}, 0
s_cbranch_scc1 KG_n
""")
    slot()
    for T in range(3):
        a(f"s_add_u32 s{t1}, s{t2}, {F_P+T*16*65536}")
        a(f"buffer_store_dwordx4 {P4(PO+4*T)}, v118, {SR4(sR)}, s{t1} offen{SSC}")
    a(f"""
s_cmp_eq_u32 s{sWV}, 4
s_cbranch_scc0 KG_p
s_add_u32 s{t1}, s{t2}, {F_P+3*16*65536}
s_waitcnt lgkmcnt(0)
s_mov_b64 exec, 0xffff
buffer_store_dwordx4 {P4(PO+12)}, v118, {SR4(sR)}, s{t1} offen{SSC}
s_mov_b64 exec, -1
KG_p:
""")
    pt('pst')
    if RWI==1: arrive(mPS,1)
    if GP_: a("s_setprio 0")
    if W2N<8: sdma(sA,32768,-32768,VY,range(W2N,8))
    srd(a,sA,14,256*256)
    w3m()
    for T in range(4):
        c=GA+8*T
        if T==3: a("s_mov_b32 exec_lo, 0x10001\ns_mov_b32 exec_hi, 0x10001")
        if T==0: a(f"v_pk_maximum3_f16 v114, v{c}, v{c+1}, v{c+2}\nv_pk_minimum3_f16 v115, v{c}, v{c+1}, v{c+2}\nv_pk_maximum3_f16 v114, v114, v{c+3}, v{c+3}\nv_pk_minimum3_f16 v115, v115, v{c+3}, v{c+3}")
        else: a(f"v_pk_maximum3_f16 v114, v114, v{c}, v{c+1}\nv_pk_minimum3_f16 v115, v115, v{c}, v{c+1}\nv_pk_maximum3_f16 v114, v114, v{c+2}, v{c+3}\nv_pk_minimum3_f16 v115, v115, v{c+2}, v{c+3}")
    a("s_mov_b64 exec, -1")
    absmax_fin(a,114,115,2)
    a(f"""
v_cmp_lt_u32 vcc, 0x40e80000, v114
s_cmp_lg_u64 vcc, 0
s_cselect_b32 s{sFLAG}, 0x101, 1
""")
    def pflag(n):
        a(f"""
s_lshl_b32 s{t2}, s2, {FS}
s_add_u32 s{t2}, s{t2}, {F_FLG}
v_mov_b32 v1, s{sFLAG}
s_waitcnt vmcnt({n})
s_mov_b64 exec, 1
ds_add_rtn_u32 v1, v{VZ}, v1 offset:{mPD}
s_waitcnt lgkmcnt(0)
v_readfirstlane_b32 s{t1}, v1
s_add_u32 s{t1}, s{t1}, s{sFLAG}
s_and_b32 s{t0}, s{t1}, 255
s_cmp_eq_u32 s{t0}, 4
s_cbranch_scc0 KG_f
KG_e:
ds_read_b64 v[2:3], v{VZ} offset:{mE}
ds_read_b32 v1, v{VZ} offset:{mC3}
s_waitcnt lgkmcnt(0)
v_cmp_gt_u32 vcc, 4, v2
v_mul_f32 v1, v1, v3
s_cbranch_vccnz KG_e
v_cmp_nge_f32 vcc, 0x41680000, v1       ; !(14.5 >= e*c3)
s_lshl_b32 s{t0}, vcc_lo, 8
s_or_b32 s{t1}, s{t1}, s{t0}
s_cmp_gt_u32 s{t1}, 255
s_cselect_b32 s{t0}, 2, 0
s_xor_b32 s{t0}, s{sNON}, s{t0}
s_mov_b64 exec, {(1<<FR)-1}
v_mov_b32 v1, s{t0}
v_lshlrev_b32 v2, {8+FS}, v{VL}
buffer_store_dword v1, v2, {SR4(sR)}, s{t2} offen{SSC}
s_waitcnt vmcnt(1)
s_branch KG_f2
KG_f:
s_waitcnt vmcnt(0)
KG_f2:
s_mov_b64 exec, -1
""")
        pt('pfl')
    def mid():
        sdma(sA,0)
        if RWI==2: arrive(mPS,1)
        pflag(8); arrive(mPI,1)
    if W2N<8:
        if WU1L:
            pflag(8-W2N); qfull("KGq",lambda: sdma(sA,0)); a("s_waitcnt vmcnt(0)"); arrive(mPI,1)
        else:
            sdma(sA,0); epi_consts(); pflag(16-W2N); arrive(mPI,1); qfull("KGq",lambda: 0)
    elif WU1L:
        if PFI==2: pflag(0)
        qfull("KGq",lambda: pflag(0)); sdma(sA,0); epi_consts(); a("s_waitcnt vmcnt(0)"); arrive(mPI,1)
    elif SWU:
        if PFI==2: pflag(0)
        qfull("KGq",lambda: pflag(0)); epi_consts(); gwait("KG_pi",mPI,4,VZ,1)
    else: qfull("KGq",mid); epi_consts()
    gwait("KG_w3",mPD,4,VZ,1)
    w3rd(); trw()
    a("s_waitcnt lgkmcnt(0)"); ugemm(1)
    if FLP==1: gwait("KG_b2",mH,16,VZ,1)
    a(f"""
s_and_b32 s{sLO}, s2, {FR-1}
s_lshl_b32 s{sLO}, s{sLO}, {8+FS}
s_add_u32 s{sLO}, s{sLO}, {F_FLG}
v_lshlrev_b32 v110, {FS}, v108
buffer_load_dword v116, v110, {SR4(sR)}, s{sLO} offen{SC}
""")
    if PFP==2: pfp()
    if PFT:
        a(f"""
s_mul_i32 s{t1}, s{sW4}, {PFK*4}
v_mov_b32 v1, s{t1}
s_lshl_b32 s{t1}, s{t1}, 6
v_lshl_add_u32 v117, v{VL}, 2, s{t1}
ds_read_b32 v1, v1
ds_read_u16 v2, v117 offset:{WB}
v_mov_b32 v3, 0
s_waitcnt lgkmcnt(0)
v_cmp_lt_u32 vcc, v117, v1
s_or_b64 exec, vcc, 1
""")
        for k in range(PFT): a(f"buffer_load_dword v{QA+15}, v[2:3], {SR4(sP)}, 0 idxen offen offset:{3072+128*k}{SC}")
        a("s_mov_b64 exec, -1")
    a(f"""
s_mov_b32 s{sWU}, -1
s_or_b32 s{t1}, s{sNON}, 2
s_waitcnt vmcnt({(1 if PFP==2 else 0)+PFT})
KS_m:
v_or_b32 v2, 2, v116
v_cmp_ne_u32 vcc, s{t1}, v2
s_cbranch_vccz KS_n
s_sub_u32 s{sBUD}, s{sBUD}, 1
s_cbranch_scc1 KS_n
s_sleep {FSL}
s_mov_b64 exec, vcc
buffer_load_dword v116, v110, {SR4(sR)}, s{sLO} offen{SC}
s_mov_b64 exec, -1
s_waitcnt vmcnt(0)
s_branch KS_m
KS_n:
v_cmp_ne_u32 vcc, s{sNON}, v116
s_cbranch_vccz KS_o
ds_write_b32 v{VZ}, v{FA} offset:{mSLOW}
KS_o:
""")
    pt('flg')
    if PRIO: a("s_setprio 3")
    bar('b3')
    a(f"ds_read_b32 v1, v{VZ} offset:{mNT}\ns_waitcnt lgkmcnt(0)\nv_readfirstlane_b32 s{sNT}, v1")
    ranges()
    a("KF_J:")
    def rd_ga(off): a(f"ds_read_u16 v{GA0}, v{SB} offset:{GL+off}")
    def rd_gg(off): a(f"ds_read_u16 v{YA}, v{RB} offset:{GL+off}")
    ya=f"v_lshl_add_u32 v{EA}, v{YA}, 1, v{EC}\nv_add_u32 v{YA}, v{YA}, v{M4}"
    ry=f"ds_read_u16 v{VY}, v{YA} offset:{WB+2}"
    def rd_y(): a(ya); a(ry)
    def idx1(i): return f"ds_read_u16 v{IDX+2*i}, v{GA0} offset:{WB+4*i}"
    def rd_idx():
        for i in range(4): a(idx1(i))
    def dmai(i): return f"buffer_load_dwordx4 {P2(IDX+2*(i&3))}, {SR4(sP)}, {'0' if i<4 else 's'+str(s128)} idxen offen offset:{1024*(i&3)}{GSC} lds"
    def dma():
        for i in range(8):
            if i==0: a(f"s_mov_b32 m0, s{sBUF}\ns_nop 0")
            if i==4: a(f"s_add_u32 m0, s{sBUF}, 4096\ns_nop 0")
            a(dmai(i))
    def dma_h1(mid):
        a(f"s_add_u32 m0, s{sBUF}, 4096"); a(mid)
        for i in range(4,8): a(dmai(i))
        a(f"s_mov_b32 m0, s{sBUF}")
        rd_idx()
    def dma_idx():
        for i in range(4): a(dmai(i))
        dma_h1(ry)
    rd_b=f"ds_read_b128 {P4(B3+2)}, v{QAD}\nds_read_b128 {P4(B3+10)}, v{QAD} offset:512"
    rd_a3=f"ds_read_b64 {P2(A6)}, v{EA}\nds_read_b64 {P2(A6+2)}, v{VY} offset:{OH}\nds_read_b64 {P2(A6+4)}, v{EA}"
    def rd_a(t): return f"ds_read_b128 {P4(A+4*t)}, v{AR} offset:{4096*(t>>2)+(16*(t&1)+2*((t>>1)&1))*128}"
    def m4(z,q,j): return mfma4(z+4*j,A+16*(q>>1)+4*j+2*(q&1),None)
    rd_s=f"ds_read_b64 {P2(SS)}, v{SA2}\nds_read_b64 {P2(SS+2)}, v{SA2+1}"
    def AQ(q): return A6+2*(q&1)
    win=f"v_add3_u32 v{VY}, v{VY}, v{OH2}, s{sW8}\nv_lshl_add_u32 v{QAD}, s{sQ}, 6, v{QC}"
    rd_ga(0); rd_gg(0)
    a(f"""
ds_read_u16 v{WT}, v1 offset:{GL}
ds_read_b32 v{GP}, v{VZ} offset:{mSLOW}
s_waitcnt lgkmcnt(3)
""")
    rd_idx()
    a("s_waitcnt lgkmcnt(0)")
    dma()
    pt('d0')
    a(f"v_readlane_b32 s{sNF}, v{WT}, s{sCNT}\nv_readfirstlane_b32 s{t3}, v{GP}")
    rd_y(); rd_ga(16)
    if US: a(f"s_cmp_ge_u32 s{sWV}, 4\ns_cbranch_scc1 KF_u"); ugemm(0); a("KF_u:")
    a("s_waitcnt lgkmcnt(0)")
    rd_idx()
    a(f"""
s_cmp_lg_u32 s{t3}, 0
s_cbranch_scc1 KF_SLOW
s_lshr_b32 s{sNF}, s{sNF}, 8
v_subrev_u32 v2, s{sNF}, v{VL}
v_and_b32 v2, 15, v2
v_add_u32 v{DR}, s{sNF}, v2
v_lshlrev_b32 v2, 2, v{DR}
ds_read_b32 v{GP}, v2 offset:{BT}
s_and_b32 s{sQ}, s{sNF}, -2
s_lshl_b32 s{sQ}, s{sQ}, 3
s_sub_u32 s{sW8}, 0, s{sQ}
{win}
{rd_b}
{rd_a3}
""")
    rd_gg(16)
    a(f"""
v_lshrrev_b32 v{WT}, 9, v{WT}
v_lshlrev_b32 v{WT}, 4, v{WT}           ; 8*(w&~1)
v_mov_b32 v{SS}, 0
v_mov_b32 v{SS+1}, 0
v_mov_b32 v{SS+2}, 0
v_mov_b32 v{SS+3}, 0
v_mad_u32_u24 v{SA2}, v{SI2}, s{sT0}, v{SA2}
v_mad_u32_u24 v{SA2+1}, v{SI2+1}, s{sT0}, v{SA2+1}
s_add_u32 s{t1}, s{sT0}, s{sCNT}
s_lshl_b32 s{t1}, s{t1}, 7
s_add_u32 s{t2}, s{sWV}, 48
v_mov_b32 v1, s{t2}
{mfma32(ACC+16,SS,SS,None)}
s_waitcnt lgkmcnt(0)
""")
    rd_y(); rd_ga(32)
    a(f"""
v_cmp_gt_u32 vcc, s{t0}, v{GP}
v_cmp_gt_u32 {S2(t2)}, s{t1}, v{GP}
v_cmp_gt_u32 {S2(t0)}, s{sNN}, v{DR}
v_cndmask_b32 v{DR}, v{DR}, v1, vcc
s_cmp_lg_u64 vcc, 0
s_cselect_b32 s{sHEAD}, 1, 0
s_and_b64 vcc, {S2(t2)}, {S2(t0)}
v_lshlrev_b32 v1, 2, v{VL}
v_cndmask_b32 v{DR}, 56, v{DR}, vcc
v_lshrrev_b32 v2, 1, v{VL}
v_mul_u32_u24 v{DR}, {AS}, v{DR}
v_and_b32 v2, 24, v2
v_add_u32 v{DR}, v{DR}, v2
s_mul_i32 s{t0}, s{sNF}, {AS}
v_add_u32 v{eM0}, s{t0}, v1
s_sub_u32 s{sCNT}, s{sCNT}, 1
s_mov_b32 m0, s{sBUF}
""")
    pt('pre')
    a("s_waitcnt vmcnt(4)")
    pt('g0')
    for t in range(4): a(rd_a(t))
    a("s_waitcnt lgkmcnt(0)")
    for j in range(4): a(m4(Z[0],0,j))
    a("s_nop 3")
    a(mfma32(Z[0],AQ(0),B3,Z[0]))
    a("s_nop 9")
    pt('pro')
    def finals(qprev):
        for u in range(2): a(f"v_pk_mul_f32 {P2(NN+2*u)}, {P2(NN+2*u)}, {P2(DD+2*u)}")
        for u in range(2): a(f"v_cvt_pk_bf16_f32 v{GP+2*(qprev&1)+u}, v{NN+2*u}, v{NN+2*u+1}")
    def ex(zc,r): return f"v_exp_f32 v{EE+r}, v{zc+r}"
    def body(first):
        for q in range(4):
            zc=Z[q&1]; zn=Z[(q+1)&1]; qn=(q+1)&3
            pend=[0,1,2,3,8,9,10,11,4,5,12,13,6,7,14,15]
            f0=first and q==0
            if q==0: a(f"v_readlane_b32 s{sQ}, v{WT}, s{sCNT}")
            if q==3 or (first and q==1): a(f"s_waitcnt lgkmcnt(0)")
            for j in range(4):
                a(m4(zn,qn,j))
                a(f"v_rcp_f32 v{DD+j}, v{DD+j}" if not f0 else ex(zc,pend.pop(0)))
            agg=(q&1) and not (first and q==1)
            if agg:
                p=1 if q==1 else 0
                a(mfma32(ACC+16*p,GP,SS,None if first else ACC+16*p))
            for r in range(3 if SH3 else (4 if agg else 3)): a(ex(zc,pend.pop(0)))
            a(mfma32(zn,AQ(qn),B3+4*qn,zn))
            def bx():
                a(f"s_sub_u32 s{sW8}, 0, s{sQ}\ns_waitcnt vmcnt(0) lgkmcnt(0)\n{win}")
                rd_gg(32); rd_ga(48)
                a(rd_b); a(rd_a3); a(rd_s)
                for t in range(8): a(rd_a(t))
            if q==2 and XP==0: a(ex(zc,pend.pop(0))); bx()
            for r in range((4 if not (q==2 and XP==0) else 3)-SH3): a(ex(zc,pend.pop(0)))
            if q==2 and XP==1: bx()
            if f0:
                for i in range(4): a(dmai(i))
            if first and q==1: dma_h1("s_nop 0")
            if q==3:
                a(ya)
                if first: dma_idx()
                else:
                    a(f"s_cmp_gt_u32 s{sCNT}, 1\ns_cbranch_scc0 KF_lt")
                    dma_idx()
                    a("KF_lb:")
            if not f0: finals((q-1)&3)
            seq=[]
            for u in range(2): seq.append(f"v_pk_add_f32 {P2(DD+2*u)}, {P2(EE+8*u)}, 1.0 op_sel_hi:[1,0]")
            for m in range(1,4):
                for u in range(2):
                    src=(zc+8*u) if m==1 else NN+2*u
                    seq.append(f"v_pk_fma_f32 {P2(NN+2*u)}, {P2(src)}, {P2(EE+8*u+2*m)}, {P2(src)}")
                for u in range(2): seq.append(f"v_pk_fma_f32 {P2(NN+2*u)}, {P2(zc+8*u+2*m)}, {P2(DD+2*u)}, {P2(NN+2*u)}")
                for u in range(2): seq.append(f"v_pk_fma_f32 {P2(DD+2*u)}, {P2(DD+2*u)}, {P2(EE+8*u+2*m)}, {P2(DD+2*u)}")
            if len(pend) in (10,6): a(ex(zc,pend.pop(0)))
            slots={9:[0,1,2,3,4,6,8,10,12],8:[0,1,2,3,5,7,9,11],5:[1,4,7,10,12]}[len(pend)]
            for k,x in enumerate(seq):
                if f0 and k==H1P:
                    a("s_waitcnt vmcnt(4)")
                    for t in range(4,8): a(rd_a(t))
                a(x)
                if k in slots: a(ex(zc,pend.pop(0)))
            if q==2: a(f"v_pk_add_f32 {P2(RB)}, {P2(RB)}, {S2(sINC)}\nv_pk_add_f32 {P2(SA2)}, {P2(SA2)}, {P2(SI2)}")
    if PROF and 'dyn' in PTS: stamp(a,8); stamp(a,9,True)
    if PROF and 'clk' in PTS: stamp(a,6,True)
    n0=len(a.l)
    body(True)
    a("s_branch KF_LE\n.p2align 6\nKF_LOOP:")
    body(False)
    def keep(l):
        t=l.strip()
        if X&1 and t.startswith('buffer_load'): return False
        if X&2 and t.startswith('ds_read_b128 v[') and int(t.split('[')[1].split(':')[0])>=28: return False
        if X&8 and t.startswith('v_mfma'): return False
        if X&16 and t.startswith('v_pk_fma'): return False
        if X&32 and t.startswith('v_exp'): return False
        return True
    a.l[n0:]=[l for l in a.l[n0:] if keep(l)]
    import re
    if UNP:
        L=[]; cnt=0
        for l in a.l[n0:]:
            m=re.match(r"\s*v_pk_fma_f32 v\[(\d+):\d+\], v\[(\d+):\d+\], v\[(\d+):\d+\], v\[(\d+):\d+\]",l)
            if m:
                cnt+=1
                d,x,y,z=map(int,m.groups())
                if UNP==1 or (UNP==2 and cnt%2==0) or (UNP==3 and d>=DD):
                    for k in range(2):
                        L.append(f"    v_fmac_f32 v{d+k}, v{x+k}, v{y+k}" if d==z else f"    v_fma_f32 v{d+k}, v{x+k}, v{y+k}, v{z+k}")
                    continue
            L.append(l)
        a.l[n0:]=L
    if X&(128|256|512|1024):
        L=[]
        for l in a.l[n0:]:
            m=re.match(r"\s*v_mfma_f32_32x32x16_bf16 v\[(\d+):\d+\], v\[(\d+):\d+\], v\[(\d+):\d+\], (.*)",l)
            if m and int(m.group(1))<ACC:
                d,x,y=int(m.group(1)),int(m.group(2)),int(m.group(3))
                if X&128:
                    if y==ID0: L+=["    "+mfma16(d+4,x,ID0,None),"    "+mfma16(d+8,x,ID1,None)]
                    elif y==ID1: L.append("    "+mfma16(d+12,x,ID0,None))
                    else: L.append("    "+mfma16(d,x,y,None))
                if X&1024:
                    if y in (ID0,ID1):
                        o=0 if y==ID0 else 8
                        for k in range(2): L.append(f"    v_mfma_f32_4x4x4_16b_bf16 v[{d+o+4*k}:{d+o+4*k+3}], v[{x+2*k}:{x+2*k+1}], v[{ID0}:{ID0+1}], v[{d+o+4*k}:{d+o+4*k+3}]")
                    else: L.append(l)
                if X&256:
                    if y!=ID1: L.append(l)
                if X&512:
                    if y==ID0: L.append(f"    v_mfma_f32_32x32x64_f8f6f4 v[{d}:{d+15}], v[{x}:{x+7}], v[{ID0}:{ID0+7}], v[{d}:{d+15}]")
                    elif y!=ID1: L.append(l)
            else: L.append(l)
        a.l[n0:]=L
    a("KF_LE:")
    if PRIO: a(f"s_bitcmp1_b32 42, s{sCNT}\ns_cbranch_scc1 KF_pr\nKF_pb:")
    a(f"""
s_sub_u32 s{sCNT}, s{sCNT}, 1
s_cbranch_scc0 KF_LOOP
""")
    def loop_tails():
        a(f"KF_lt:\ns_cmp_eq_u32 s{sCNT}, s{sWU}\ns_cbranch_scc0 KF_lb")
        sdma(sA,32768,0,WV)
        a(f"""
s_branch KF_lb
KF_pr:
""")
        if PROF and 'dyn' in PTS:
            a("s_mov_b32 s90, s92\ns_mov_b32 s91, s93\ns_mov_b32 s92, s94\ns_mov_b32 s93, s95\ns_mov_b32 s94, s96\ns_mov_b32 s95, s97")
            stamp(a,8); stamp(a,9,True)
        a(f"""
s_setprio 2
s_cmp_eq_u32 s{sCNT}, 5
s_cbranch_scc1 KF_pb
s_setprio 1
s_cmp_eq_u32 s{sCNT}, 3
s_cbranch_scc1 KF_pb
s_setprio 0
s_branch KF_pb
""")
    a(f"""
s_lshl_b32 s{t0}, s{sW4}, 2
v_mov_b32 v1, s{t0}
s_cmp_ge_u32 s{sWV}, 4
s_cbranch_scc1 KF_w0
ds_write_b32 v1, v{TP} offset:{mWU}
s_branch KF_w1
KF_w0:
ds_read_b32 v2, v1 offset:{mWU}
s_waitcnt lgkmcnt(0)
v_cmp_eq_u32 vcc, 0, v2
s_cbranch_vccnz KF_w0
KF_w1:
""")
    def trw2(): trfrag(A,TP,0,2048,256); trfrag(A+16,TP,8,2048,256)
    trw2()
    for j in range(4): a(f"v_rcp_f32 v{DD+j}, v{DD+j}")
    a("s_nop 0")
    finals(3)
    a("s_nop 1")
    a(mfma32(ACC+16,GP,SS,ACC+16))
    pt('loop')
    if PROF and 'clk' in PTS: stamp(a,7,True)
    def epst():
        a(f"""
s_or_b32 s{t1}, s2, s{sWV}
s_cbranch_scc1 KF_e2
v_mov_b32 v2, s{sNON}
s_mov_b64 exec, 1
buffer_store_dword v2, v{VZ}, {SR4(sR)}, 0 offen{ESC}
s_mov_b64 exec, -1
KF_e2:
""")
    for p in range(2):
        for j in range(4):
            c=ACC+16*p+4*j
            a(f"v_cvt_pk_bf16_f32 v{c}, v{c}, v{c+1}\nv_cvt_pk_bf16_f32 v{c+1}, v{c+2}, v{c+3}")
        for j in range(4): a(f"ds_write_b64 v{DR}, {P2(ACC+16*p+4*j)} offset:{AGB+128*p+32*j}")
    a(f"""
s_cmp_eq_u32 s{sHEAD}, 0
""")
    pt('dmp')
    bar('be',"s_waitcnt vmcnt(0) lgkmcnt(0)")
    a(f"""
s_cbranch_scc1 KF_FIN
ds_read_b32 v4, v{eM0} offset:{AGB}
ds_read_b32 v5, v{eM1} offset:{AGB+48*AS}
""")
    a(f"""
s_waitcnt lgkmcnt(0)
v_lshlrev_b32 v6, 16, v4
v_and_b32 v7, 0xffff0000, v4
v_lshlrev_b32 v8, 16, v5
v_and_b32 v9, 0xffff0000, v5
v_pk_add_f32 v[6:7], v[6:7], v[8:9]
v_cvt_pk_bf16_f32 v6, v6, v7
ds_write_b32 v{eM0}, v6 offset:{AGB}
KF_FIN:
""")
    a(f"s_cmp_ge_u32 s{sWV}, 4")
    if EP_==0: epst()
    bar('mrg')
    def EXP(rs): return [f"v_exp_f32 v{EE+i}, v{UA+i}" for i in rs]
    def RCP(rs): return [f"v_rcp_f32 v{EE+i}, v{EE+i}" for i in rs]
    def FMA(rs): return [f"v_fma_f32 v{EE+i}, v{EE+i}, s{sL2E}, s{sL2E}" for i in rs]
    def FIN(tau):
        e=EE+8*tau; c=UA+8*tau
        return [f"v_pk_mul_f32 {P2(e+2*j)}, {P2(e+2*j)}, {P2(c+2*j)}" for j in range(4)]+[f"v_cvt_pk_bf16_f32 v{e+j}, v{e+2*j}, v{e+2*j+1}" for j in range(4)]+[f"ds_write_b128 v{eOW}, {P4(e)} offset:{tau*4096}"]
    def PFM(rs): return [f"v_pk_fma_f32 {P2(EE+i)}, {P2(EE+i)}, {S2(sL2E)}, {S2(sL2E)}" for i in rs]
    XE=Z[0]
    for tau in range(2):
        for s_ in range(4): a(f"ds_read_b128 {P4(XE+16*tau+4*s_)}, v{eFA} offset:{AGB+tau*16*AS+64*s_}")
    for k,(x,y) in enumerate(zip(um(0,0,0,XE,True,A),um(0,0,1,XE,True,A))): a(f"s_waitcnt lgkmcnt({7-k})"); a(x); a(y)
    a("s_waitcnt lgkmcnt(0)"); pt('e1'); a("s_cbranch_scc1 KF_eg")
    for r in range(2):
        if r==1: a("KF_eg:")
        for x,y in zip(um(r,1,0,XE+16,True,A),um(r,1,1,XE+16,True,A)): a(x); a(y)
        pt('e2')
        if r==0:
            for x in EXP(range(8))+FMA(range(8))+RCP(range(8))+EXP(range(8,16))+FIN(0)+PFM(range(8,16,2))+RCP(range(8,16))+["s_nop 0"]+FIN(1): a(x)
            a("s_branch KF_ej")
        else:
            for x in EXP(list(range(8))+[8,12])+PFM((0,2,4,6,8,12))+RCP(list(range(8))+[8,12])+FIN(0): a(x)
            a(f"""
v_mul_f32 v{EE+8}, v{EE+8}, v{UA+8}
v_mul_f32 v{EE+12}, v{EE+12}, v{UA+12}
s_mov_b64 exec, 0xffff
v_cvt_pk_bf16_f32 v{EE+8}, v{EE+8}, v{EE+12}
ds_write_b16 v{eN48}, v{EE+8}
ds_write_b16_d16_hi v{eN48}, v{EE+8} offset:8
s_mov_b64 exec, -1
""")
    a(f"KF_ej:\ns_cmp_lt_u32 s{sWV}, 5")
    pt('e3')
    bar('sil')
    a(f"""
ds_read_b128 {P4(A)}, v{eRD}
s_cbranch_scc0 KF_e1
ds_read_b128 {P4(A+4)}, v{eRD} offset:8192
s_mov_b64 exec, {S2(sE2)}
s_waitcnt lgkmcnt(0)
buffer_store_dwordx4 {P4(A+4)}, v{eST}, {SR4(sX)}, s{sE1} offen{OSC}
s_mov_b64 exec, -1
KF_e1:
s_waitcnt lgkmcnt(0)
buffer_store_dwordx4 {P4(A)}, v{eST}, {SR4(sX)}, s{sE0} offen{OSC}
""")
    pt('sto')
    a(f"""
""")
    if PROF: a("s_waitcnt vmcnt(0)")
    stamp(a,10); stamp(a,11,True)
    stamp_out(a,1,sWV)
    a("KF_END:\ns_endpgm")
    loop_tails()
    hist_retry(8,"KT_h",True)
    a("KF_CEND:")
    SV=ACC; AGs=SV+8; RS_=SV+16
    a(f"""
KF_SLOW:
s_setprio 0
s_cmp_ge_u32 s{sWV}, 4
s_cselect_b32 s{sTOT}, 0, s{sTOT}
v_mov_b32 v1, s{sTOT}
ds_max_u32 v{VZ}, v1 offset:{mMX}
v_mov_b32 v{SS}, 0
v_mov_b32 v{SS+1}, 0
v_mov_b32 v{SS+2}, 0
v_mov_b32 v{SS+3}, 0
s_mov_b32 s{sLO}, 0
s_mov_b32 s{sLB}, s{sBUF}
s_sub_u32 s{t0}, s{sWV}, s{sT0}
s_lshl_b32 s{t0}, s{t0}, 4
v_add_u32 v{SV+4}, s{t0}, v{RB}
v_add_u32 v{SV+5}, s{t0}, v{SB}
s_lshl_b32 s{t0}, s{sWV}, 4
v_sub_u32 v{SV+6}, s{t0}, v{OHC}
v_and_b32 v{SV+7}, 28, v{VL}
v_and_b32 v1, 3, v{VL}
v_lshlrev_b32 v1, 2, v1
v_lshl_or_b32 v{SV+7}, v{SV+7}, 3, v1
v_lshlrev_b32 v1, 4, v0
""")
    for j in range(3): a(f"ds_write_b128 v1, {P4(SS)} offset:{AGG+j*8192}")
    a(f"""
v_lshlrev_b32 v1, 4, v{VL}
ds_write_b128 v1, {P4(SS)} offset:{AGG+3*8192}
s_waitcnt vmcnt(0) lgkmcnt(0)
s_barrier
ds_read_b32 v1, v{VZ} offset:{mMX}
s_waitcnt lgkmcnt(0)
v_readfirstlane_b32 s{sRND}, v1
KF_SR:
s_cmp_lt_u32 s{sLO}, s{sRND}
s_cbranch_scc0 KF_SE
s_barrier
v_lshlrev_b32 v1, 2, v{VL}
v_lshlrev_b32 v2, 8, v{VL}
ds_write_b32 v1, v2
s_waitcnt lgkmcnt(0)
s_barrier
s_cmp_ge_u32 s{sWV}, 4
s_cbranch_scc1 KF_S1
s_movk_i32 s{t3}, 256
""")
    expand("KF_x")
    a(f"s_sub_u32 s{t1}, s{sTOT}, s{sLO}")
    reclist(4)
    recload(4,"KF_rl")
    for i in range(4): a(f"s_mov_b64 {S2(sM+8+2*i)}, {S2(sM+2*i)}")
    hist(4,"KF_h",0,False)
    a("s_waitcnt lgkmcnt(0)")
    for i in range(4):
        a(f"""
v_mov_b32 v{RS_+4*i}, v{RC+4*i}
v_mov_b32 v{RS_+4*i+1}, v{RC+4*i+1}
v_mov_b32 v{RS_+4*i+2}, v{RC+4*i+2}
v_lshlrev_b32 v1, 6, v{RC+4*i+3}
v_sub_u32 v1, v{RK+i}, v1
v_cndmask_b32 v{RS_+4*i+3}, -1, v1, {S2(sM+8+2*i)}
""")
    a(f"""
KF_S1:
s_mov_b32 s{sHEAD}, 0                    ; 256*k
KF_SK:
s_waitcnt lgkmcnt(0)
s_barrier
s_cmp_ge_u32 s{sWV}, 4
s_cbranch_scc1 KF_S2
s_mov_b32 s{t1}, {EB}
""")
    for i in range(4):
        a(f"""
v_subrev_u32 v1, s{sHEAD}, v{RS_+4*i+3}
v_lshrrev_b32 v2, 19, v{RS_+4*i+2}
v_lshl_add_u32 v2, v2, 8, v1
v_lshl_add_u32 v3, v2, 1, s{t1}
v_cmpx_gt_u32 vcc, 0x100, v1
ds_write_b32 v2, v{RS_+4*i+2} offset:{WB}
ds_write_b64 v3, {P2(RS_+4*i)}
s_mov_b64 exec, -1
""")
    a("KF_S2:")
    scan(True)
    a(f"s_cmp_lg_u64 {S2(t2)}, 0\ns_cselect_b32 s{sFLAG}, 1, 0")
    fill("KFs",True,8)
    a(f"""
s_add_u32 s{sNT}, s{t0}, 127
s_lshr_b32 s{sNT}, s{sNT}, 7
s_waitcnt lgkmcnt(0)
s_barrier
v_mov_b32 v{RB}, v{SV+4}
v_mov_b32 v{SB}, v{SV+5}
v_mov_b32 v{SV+12}, v{SV+6}
s_mov_b32 s{sI}, s{sWV}
KF_SL:
s_cmp_lt_u32 s{sI}, s{sNT}
s_cbranch_scc0 KF_SN
""")
    rd_ga(0); rd_gg(0)
    for j in range(4): a(f"ds_read_u16 v{AGs+j}, v{SV+12} offset:{GL+2*j}")
    a("s_waitcnt lgkmcnt(0)")
    rd_y(); rd_idx()
    a("s_waitcnt lgkmcnt(0)")
    dma()
    for j in range(4): a(f"v_lshrrev_b32 v{AGs+j}, 8, v{AGs+j}")
    a(f"""
v_readfirstlane_b32 s{sQ}, v{AGs}
s_nop 3
s_and_b32 s{sQ}, s{sQ}, -2
s_lshl_b32 s{sQ}, s{sQ}, 3
s_sub_u32 s{sW8}, 0, s{sQ}
{win}
{rd_b}
{rd_a3}
""")
    for j in range(4): a(f"v_lshl_add_u32 v{AGs+j}, v{AGs+j}, 9, v{SV+7}")
    a("s_waitcnt vmcnt(0) lgkmcnt(0)")
    for t in range(8): a(rd_a(t))
    a("s_waitcnt lgkmcnt(0)")
    for q in range(4):
        z=Z[0]
        for j in range(4): a(m4(z,q,j))
        a("s_nop 3"); a(mfma32(z,AQ(q),B3+4*q,z))
        a("s_nop 15")
        for r in range(16): a(f"v_exp_f32 v{EE+r}, v{z+r}")
        for r in range(16): a(f"v_add_f32 v{EE+r}, 1.0, v{EE+r}")
        for r in range(16): a(f"v_rcp_f32 v{EE+r}, v{EE+r}")
        for m in range(4):
            for u in range(2):
                for par in range(2):
                    r=8*u+2*m+par; g=GP+2*u+par
                    a(f"v_mul_f32 v{g}, v{z+r}, v{EE+r}" if m==0 else f"v_fmac_f32 v{g}, v{z+r}, v{EE+r}")
        for j in range(4): a(f"ds_add_f32 v{AGs+j}, v{GP+j} offset:{AGG+256*(q>>1)+16*(q&1)}")
        a("s_waitcnt lgkmcnt(0)")
    a(f"""
v_add_u32 v{SB}, 128, v{SB}
v_add_u32 v{RB}, 128, v{RB}
v_add_u32 v{SV+12}, 128, v{SV+12}
s_add_u32 s{sI}, s{sI}, 8
s_branch KF_SL
KF_SN:
s_add_u32 s{sHEAD}, s{sHEAD}, 256
s_cmp_lg_u32 s{sFLAG}, 0
s_cbranch_scc1 KF_SK
s_add_u32 s{sLO}, s{sLO}, 256
s_branch KF_SR
KF_SE:
s_cmp_ge_u32 s{sWV}, 4
s_cbranch_scc1 KF_SE2
""")
    sdma(sA,32768,0,WV)
    a(f"""
KF_SE2:
v_lshlrev_b32 v1, 4, v0
v_lshrrev_b32 v2, 5, v0
s_waitcnt vmcnt(0) lgkmcnt(0)
s_barrier
""")
    for j in range(4): a(f"ds_read_b128 {P4(A+4*j)}, v1 offset:{AGG+j*8192}")
    a(f"""
v_mul_u32_u24 v2, {AS}, v2
v_and_b32 v3, 31, v0
v_lshl_add_u32 v4, v3, 3, v2
s_waitcnt lgkmcnt(0)
s_barrier
""")
    for j in range(4):
        a(f"v_cvt_pk_bf16_f32 v{A+4*j}, v{A+4*j}, v{A+4*j+1}\nv_cvt_pk_bf16_f32 v{A+4*j+1}, v{A+4*j+2}, v{A+4*j+3}")
        a(f"ds_write_b64 v4, {P2(A+4*j)} offset:{AGB+j*16*AS}")
    trw2()
    a("s_branch KF_FIN")
    hist_retry(4,"KF_h",False)
    return a.text()

if __name__=='__main__':
    import sys
    nm='standalone__mpnn_edge_mlp__graph_kernel'
    hdr=open('standalone__mpnn_edge_mlp__graph.s.ref').read().split('; Override')[0]
    out=hdr+(f"; @launch kernel={nm} grid=(256,1,1) block=(512,1,1) lds={KF_LDS}\n" if os.environ.get('LISTF') else f"; @launch grid=(256,1,1) block=(512,1,1) lds={KF_LDS}\n")
    out+='.amdgcn_target "amdgcn-amd-amdhsa--gfx950"\n.text\n'
    out+=f".globl {nm}\n.p2align 8\n.type {nm},@function\n"+gen_kf(nm)
    out+='.section .rodata,"a"\n.p2align 6\n'+kd(nm,256)
    open(sys.argv[1],'w').write(out)
```

```python
from common import *
X=int(os.environ.get('X','0'))
PRIO=int(os.environ.get('PRIO','1'))
DSP=[int(c,36) for c in os.environ.get('DSP','00000000')]
def EV(n,d): return int(os.environ.get(n,d))
TPOS=EV('TPOS',6); PFP=EV('PFP',3); XORD=EV('XORD',1); WUI=EV('WUI',2); FLP=EV('FLP',1); FSL=EV('FSL',8); TE=1; WG_=EV("WG",3); GPN=EV("GPN",1); N4=EV("N4",0); NW=EV("NW",1); RWI=EV("RWI",0); US=EV("US",0); TP_=EV("TP",7); SWU=EV("SWU",0); EO=EV("EO",1); NS=EV("NS",5); NE=EV("NE",3); FR=EV('FR',8); FS=EV('FS',2); W1N=EV('W1N',5); GP_=EV('GP',1); NT=os.environ.get('NT',''); CLM=EV('CLM',0); CLW=EV('CLW',1); SLP=EV('SLP',1); H1P=EV('H1P',10); SH3=EV('SH3',0); EP_=EV('EP',1); ESC=os.environ.get('ESC',''); PERM=EV('PERM',0); W2N=EV('W2N',8); UL=EV('UL',0); WU1L=EV('WU1L',0); W1E=EV('W1E',0); ZL=EV('ZL',0); FST=EV('FST',0); UNP=EV('UNP',0); TLB=EV('TLB',0); DBGP=EV('DBGP',0); ALN=EV('ALN',0); PFT=EV('PFT',1); PFK=EV('PFK',7); PF0=EV('PF0',0); PFN=EV('PFN',16); XP=EV('XP',0); PFI=EV('PFI',0); SWW=EV('SWW',1)
PTS=os.environ.get('PTS','b1,bS,tp,pfl,rl,b2,b3,pro').split(',')
SC=os.environ.get('LSC',' sc1')
SSC=os.environ.get('SSC',' sc1')
OSC=os.environ.get('OSC',' sc1')
GSC=os.environ.get('GSC',' sc1')
NPROD=250; EP=1600; RST=EP*16
PB0=0x1000000 if PROF else 0
RSL=0x690000; NRS=EV('NRS',8); F_TBL=PB0; F_REC=PB0+0x40000
PSL=0x320000; F_P=PB0+NRS*RSL+0x1000; F_FLG=F_P-0x1000+0x312000; F_SIZE=0x10000000
NSL=(F_SIZE-F_P+0x1000)//PSL
assert 0x40000+256*RST<=RSL
CNT=0; MISC=256; OH=400; GL=928; BT=1872; STB=2144; RS=944
mSLOW=MISC; mS=MISC+4; mGX=MISC+8; mGP=MISC+12; mC3=MISC+16; mPD=MISC+20; mSL=MISC+24; mMX=MISC+28; mPI=MISC+32; mH=MISC+36; mNT=MISC+40; mW=MISC+44; mE=MISC+48; mEM=MISC+52; mNO=MISC+56; mPS=MISC+60; mWU=MISC+64
AGB=17408
W3L=AGB+56*256
Q2=AGB+16384; QS=52*128
S1=Q2; ERAW=Q2+12800
WB=Q2+4*QS; NULLG=49*256; EB=WB+NULLG+16
HIST=WB; PSC=WB+2048
GBUF=98304
KF_LDS=GBUF+65536
assert EB+2*NULLG+32<=GBUF and STB+16*RS<=AGB
AGG=STB
ONE2=0x3F803F80
NULLW2=0xFFFF|(512<<16)
CAPT=58
ID0=4; ID1=8; B3=12; A=28; Z=[60,76]; A3=92; EE=96; NN=112; DD=116; GP=120; SS=124
IDX=128; AR=144; RB=152; SB=153; SA=154; VY=155; OHC=156; VL=157; WT=158; DR=159
ACC=160; WU2=192; UA=208; WF=160; WU1=176; QA=224; RC=96; XF=28; GA=192
TP=143; WV=151; A6=244; QAD=250; QC=145; SA2=146; SI2=148; OH2=150; GA0=232; YA=234; EA=235; M4=236; EC=237; VZ=238; PO=92; TRU=240; TD=241; TC=242; TO=243; RK=244; FA=252
sP=24; sX=28; sA=32; sR=36; sM=40
sWV=56; sK=57; sNN=58; sI=59; sNT=60; sBUF=61; sQ=62; sW8=63; sCNT=64; sT0=65
sL2E=66; sINC=68; sRND=70; sTOT=71; sNON=72; sBUD=73; sW4=74; sLB=75
sWU=3; sW4K=22; sPO=23; sRO=59; sFLAG=76; sLO=77; sMA=78; sQ2=80; s128=81; sHEAD=82; sNF=83
t0,t1,t2,t3=84,85,86,87
BUDGET=100000
sNB=2 if PERM else sK

def mfma32(d,x,y,c): return f"v_mfma_f32_32x32x16_bf16 v[{d}:{d+15}], v[{x}:{x+3}], v[{y}:{y+3}], "+("0" if c is None else f"v[{c}:{c+15}]")
def mfma16(d,x,y,c): return f"v_mfma_f32_16x16x32_bf16 v[{d}:{d+3}], v[{x}:{x+3}], v[{y}:{y+3}], "+("0" if c is None else f"v[{c}:{c+3}]")
def mfma4(d,x,c): return f"v_mfma_f32_4x4x4_16b_bf16 v[{d}:{d+3}], v[{x}:{x+1}], v[{ID0}:{ID0+1}], "+("0" if c is None else f"v[{c}:{c+3}]")
def P2(r): return f"v[{r}:{r+1}]"
def P4(r): return f"v[{r}:{r+3}]"
def S2(r): return f"s[{r}:{r+1}]"
def SR4(r): return f"s[{r}:{r+3}]"

def gen_kf(name):
    a=Asm()
    def pt(n):
        if PROF and n in PTS: stamp(a,2+PTS.index(n))
    def ret(n):
        if PROF and n in PTS: a(f"s_sub_u32 s{90+PTS.index(n)}, {BUDGET}, s{sBUD}\ns_mul_i32 s{90+PTS.index(n)}, s{90+PTS.index(n)}, 100")
    def bar(n,w="s_waitcnt lgkmcnt(0)"):
        a(w+"\ns_barrier"); pt(n)
    def gsync(n,lab,off,target,va,vt,pre=None):
        if pre: a(pre)
        a(f"""
v_mov_b32 v{vt}, 1
s_mov_b64 exec, 1
ds_add_u32 v{va}, v{vt} offset:{off}
s_mov_b64 exec, -1
{lab}:
ds_read_b32 v{vt}, v{va} offset:{off}
s_waitcnt lgkmcnt(0)
v_readfirstlane_b32 s{t1}, v{vt}
s_and_b32 s{t1}, s{t1}, 255
s_cmp_lt_u32 s{t1}, {target}
s_cbranch_scc1 {lab}
""")
        pt(n)
    def gwait(lab,off,target,va,vt):
        if SLP: a(f"s_branch {lab}_\n{lab}:\ns_sleep {SLP}\n{lab}_:")
        else: a(f"{lab}:")
        a(f"""
ds_read_b32 v{vt}, v{va} offset:{off}
s_waitcnt lgkmcnt(0)
v_readfirstlane_b32 s{t1}, v{vt}
s_and_b32 s{t1}, s{t1}, 255
s_cmp_lt_u32 s{t1}, {target}
s_cbranch_scc1 {lab}
""")
    def consts():
        srd(a,sP,20,N,off=F_P-3072,stride=256)
        srd(a,sR,20,F_SIZE)
        a(f"""
s_cmp_lt_u32 s{sNB}, {N-256*48}
s_cselect_b32 s{sNN}, 49, 48
s_mov_b32 s{sL2E}, {hex(LOG2E_NEG)}
s_mov_b32 s{sL2E+1}, {hex(LOG2E_NEG)}
s_mov_b32 s{sINC}, 16
s_mov_b32 s{sINC+1}, 16
s_mov_b32 s{sMA}, 0x0000ffff
s_mov_b32 s{sMA+1}, 0x0000ffff
s_mov_b32 s{sQ2}, {Q2}
s_mov_b32 s{sBUD}, {BUDGET}
v_lshrrev_b32 v2, 5, v{VL}              ; h
; g = 4 b2 + 2 b4 + b0 ; m = 2 b3 + b1 ; slot = 16 b2 + 4 m + (g&3)
v_lshrrev_b32 v1, 3, v{VL}
v_and_b32 v1, 2, v1
v_and_or_b32 v1, v{VL}, 5, v1           ; g
v_lshlrev_b32 v{RB}, 1, v1
v_lshlrev_b32 v3, 1, v{VL}
v_and_b32 v3, 4, v3
v_and_or_b32 v{M4}, v{VL}, 8, v3        ; 4m
v_lshlrev_b32 v{EC}, 1, v{M4}
v_add_u32 v{EC}, {EB}, v{EC}
v_and_b32 v{WT}, 15, v{VL}              ; n / c16
v_lshlrev_b32 v3, 1, v3
v_and_or_b32 v3, v{VL}, 1, v3
v_lshl_or_b32 v3, v2, 2, v3
v_lshl_add_u32 v{AR}, v3, 7, s{sBUF}
v_bfe_u32 v1, v{VL}, 1, 1
v_bfe_u32 v3, v{VL}, 2, 3
v_xor_b32 v1, v1, v3
v_lshl_add_u32 v{AR}, v1, 4, v{AR}
v_mul_i32_i24 v{OHC}, -8, v2
v_mul_u32_u24 v{SA}, {RS}, v{WT}
v_and_b32 v1, 1, v{VL}
v_lshlrev_b32 v1, 4, v1
v_mov_b32 v3, 0x3f80
v_lshlrev_b32 v1, v1, v3
""")
        a(f"s_mov_b32 vcc_lo, 0x33333333\ns_mov_b32 vcc_hi, 0x33333333\nv_cndmask_b32 v{ID0}, 0, v1, vcc\nv_sub_u32 v{ID0+1}, v1, v{ID0}")
        a(f"""
v_lshrrev_b32 v2, 4, v{VL}              ; a / g
v_lshrrev_b32 v{SB}, 2, v{VL}
v_and_b32 v{SB}, 14, v{SB}
v_and_b32 v1, 7, v{VL}
v_lshlrev_b32 v1, 4, v1
s_movk_i32 s{s128}, 128
""")
        for i in range(4): a(f"v_xor_b32 v{IDX+2*i+1}, {(i&1)*16+3072-1024*i}, v1")
        a(f"v_xor_b32 v3, v2, v{WT}\nv_lshlrev_b32 v3, 4, v3\nv_lshl_add_u32 v3, v{WT}, 8, v3\nv_add_u32 v{FA}, {AGB}, v3")
        for s in range(1,4): a(f"v_xor_b32 v{FA+s}, {64*s}, v{FA}")
        a(f"""
s_lshl_b32 s{t0}, s{sW4}, 13
s_add_u32 s{t0}, s{t0}, {GBUF}
s_lshr_b32 s{t1}, s{sWV}, 2
v_lshrrev_b32 v1, 2, v{WT}
v_lshl_add_u32 v1, v2, 3, v1
v_lshl_add_u32 v{DR}, v1, 6, s{t0}
v_xor_b32 v2, s{t1}, v2
v_and_b32 v2, 1, v2
v_and_b32 v3, 3, v{VL}
v_lshl_add_u32 v{TRU}, v2, 5, v{DR}
v_lshl_add_u32 v{TRU}, v3, 3, v{TRU}
v_lshrrev_b32 v2, 3, v{VL}
v_and_b32 v2, 2, v2
v_xor_b32 v2, v2, v3
v_lshl_add_u32 v{TP}, v2, 4, v{DR}
""")
    def slot():
        a(f"""
s_mul_i32 s{sPO}, s{sNON}, 0x9E3779B1
s_mul_i32 s{sRO}, s{sPO}, 0x85EBCA6B
s_mul_hi_u32 s{sPO}, s{sPO}, {NSL}
s_mul_hi_u32 s{sRO}, s{sRO}, {NRS}
s_mul_i32 s{sPO}, s{sPO}, {PSL}
s_mul_i32 s{sRO}, s{sRO}, {RSL}
s_add_u32 s{sP}, s{sP}, s{sPO}
s_addc_u32 s{sP+1}, s{sP+1}, 0
""")
    def vyc(VY=VY):
        a(f"""
v_lshrrev_b32 v1, 4, v{VL}
v_and_b32 v1, 2, v1
v_xor_b32 v1, v1, v{VL}
v_and_b32 v1, 3, v1
v_lshlrev_b32 v1, 4, v1
v_lshrrev_b32 v2, 2, v{VL}
v_lshl_or_b32 v{VY}, v2, 8, v1
""")
    def trfrag(dst,addr,off,ks,hs):
        for s in range(4):
            a(f"ds_read_b64_tr_b16 {P2(dst+4*s)}, v{addr} offset:{off+s*ks}\nds_read_b64_tr_b16 {P2(dst+4*s+2)}, v{addr} offset:{off+s*ks+hs}")
    def tru(dst,off): trfrag(dst,TRU,off,2048,256)
    def sdma(sr,moff,loff=0,v=VY,js=range(8)):
        a(f"s_lshl_b32 s{t0}, s{sW4}, 6")
        for j in js:
            a(f"s_add_u32 m0, s{sBUF}, {loff+j*1024}\ns_add_u32 s{t1}, s{t0}, {moff+j*4096}\nbuffer_load_dwordx4 v{v}, {SR4(sr)}, s{t1} offen lds")
    def xfrags(Ts):
        for T in Ts:
            for s in range(4): a(f"ds_read_b128 {P4(XF+16*T+4*s)}, v{FA+s} offset:{T*4096}")
    def trw(): trfrag(WF,TP,32768,2048,256); trfrag(WF+16,TP,32768+8,2048,256)
    def um(r,tau,i,xf,acc,WF=WF):
        L=[]
        for s in range(4):
            w,x=WF+16*i+4*s,xf+4*s
            d=UA+8*tau+4*i
            L.append(mfma16(d,*((x,w) if (r,tau)==(1,1) else (w,x)),d if (acc or s) else None))
        return L
    def ugemm(r):
        for tau in range(2):
            for i in range(2):
                for x in um(r,tau,i,XF+16*(2*r+tau),False): a(x)
        a("s_nop 4")
        for j in ((0,2,4,6,8,10,12,14) if r==0 else (0,2,4,6,8,12)): a(f"v_pk_mul_f32 {P2(UA+j)}, {P2(UA+j)}, {S2(sL2E)}")
    def w3rd():
        a(f"v_lshlrev_b32 v1, 3, v{VL}")
        for q in range(4): a(f"ds_read_b64 {P2(B3+4*q+2*(q&1))}, v1 offset:{W3L+q*512}")
    F=A3
    def scan(slow):
        a(f"""
v_lshlrev_b32 v1, 2, v{VL}
ds_read_b32 v{F}, v1
v_cmp_gt_u32 vcc, s{sNN}, v{VL}
v_lshlrev_b32 v{F+1}, 8, v{VL}
s_waitcnt lgkmcnt(0)
v_sub_u32 v{QA}, v{F}, v{F+1}
""")
        if slow:
            a(f"""
s_movk_i32 s{t1}, 256
v_subrev_u32 v{QA}, s{sHEAD}, v{QA}
v_cmp_lt_i32 {S2(t2)}, s{t1}, v{QA}
v_med3_i32 v{QA}, v{QA}, 0, s{t1}
v_add_u32 v{F}, v{F+1}, v{QA}
""")
        a(f"""
v_add_u32 v3, 12, v{QA}
v_and_b32 v3, -16, v3
v_max_u32 v3, 80, v3
v_cndmask_b32 v3, 0, v3, vcc
v_mov_b32 v2, v3
""")
        dpp_scan(a,"v_add_u32",[2])
        a(f"""
v_readlane_b32 s{t0}, v2, 63
v_sub_u32 v2, v2, v3
""")
    def fill(lab,slow,nw):
        a(f"""
s_lshl_b32 s{t1}, s{sWV}, 4
v_add_u32 v{QA+1}, s{t1}, v2
v_lshrrev_b32 v{QA+1}, 3, v{QA+1}       ; 2*(G0+w)
v_add_u32 v{F+1}, s{t1}, v{F+1}         ; 256n+16w
v_subrev_u32 v{QA+2}, s{t1}, v3         ; g16-16w
""")
        if not slow: a(f"v_add_u32 v{QA+3}, v{QA+1}, v{SA}\nv_mov_b32 v{F+3}, 0x3f80\nds_write_b32 v1, v2 offset:{BT}")
        for k in range(16//nw):
            a(f"v_cmpx_lt_i32 vcc, {16*nw*k}, v{QA+2}\nds_write_b16 v{QA+1}, v{F+1+(k&1)} offset:{GL+2*nw*k}")
            if k+1<16//nw: a(f"v_add_u32 v{F+1+((k+1)&1)}, {16*nw}, v{F+1+(k&1)}")
            if not slow: a(f"ds_write_b16 v{QA+3}, v{F+3} offset:{STB+2*nw*k}")
        a(f"""
s_mov_b64 exec, -1
s_lshl_b32 s{t1}, s{sWV}, 2
v_sub_u32 v{QA+2}, v3, v{QA}
v_add_u32 v{F}, s{t1}, v{F}
v_subrev_u32 v{QA+2}, s{t1}, v{QA+2}    ; pad4 - 4w
s_mov_b32 s{t1}, {EB}
v_mov_b32 v{QA+4}, 0
v_mov_b32 v{QA+5}, 0
v_mov_b32 v{QA+6}, {hex(NULLW2)}
v_lshl_add_u32 v{QA+7}, v{F}, 1, s{t1}
""")
        for k in range(-(-20//nw)):
            a(f"v_cmpx_lt_i32 vcc, {4*nw*k}, v{QA+2}")
            if k==1: a(f"s_cbranch_vccz {lab}p")
            a(f"ds_write_b32 v{F}, v{QA+6} offset:{WB+4*nw*k}\nds_write_b64 v{QA+7}, {P2(QA+4)} offset:{8*nw*k}")
        a(f"""
{lab}p:
s_mov_b64 exec, -1
s_cmp_eq_u32 s{sWV}, 3
s_cbranch_scc0 {lab}q
s_lshr_b32 s{t1}, s{t0}, 3
v_lshl_add_u32 v{QA+1}, v{VL}, 1, s{t1}
v_mov_b32 v{QA+2}, {NULLG}
v_add_u32 v{QA+3}, {NULLG}, v1
v_lshlrev_b32 v{QA+7}, 1, v1
v_add_u32 v{QA+7}, {EB+2*NULLG}, v{QA+7}
s_mov_b64 exec, 0xff
ds_write_b16 v{QA+1}, v{QA+2} offset:{GL}
s_mov_b64 exec, 15
ds_write_b32 v{QA+3}, v{QA+6} offset:{WB}
ds_write_b64 v{QA+7}, {P2(QA+4)}
s_mov_b64 exec, -1
{lab}q:
""")
    def expand(lab,win=True):
        if win: a(f"""
v_subrev_u32 v1, s{sLO}, v{TO}
v_add_u32 v2, v1, v{TC}
v_med3_i32 v1, v1, 0, s{t3}
v_med3_i32 v2, v2, 0, s{t3}
v_sub_u32 v2, v2, v1
v_lshl_add_u32 v1, v1, 2, s{sLB}
""")
        a(f"{lab}:")
        for j in range(16):
            a(f"v_cmpx_lt_i32 vcc, {j}, v2")
            if j==13: a(f"s_cbranch_vccz {lab}z")
            a(f"ds_write_b32 v1, v{TD} offset:{4*j}")
        a(f"""
v_add_u32 v2, -16, v2
v_add_u32 v1, 64, v1
v_cmp_lt_i32 vcc, 0, v2
s_cmp_lg_u64 vcc, 0
s_cbranch_scc1 {lab}
{lab}z:
s_mov_b64 exec, -1
""")
    def rl1(i): return f"buffer_load_dwordx4 {P4(RC+4*i)}, v{RK+i}, {SR4(sR)}, {'0' if i<4 else 's'+str(sQ)} offen offset:{1024*(i&3)}{SC}"
    def reclist(ns):
        a(f"v_lshl_add_u32 v1, v{VL}, 2, s{sLB}")
        for i in reversed(range(ns)): a(f"ds_read_b32 v{RK+i}, v1 offset:{256*i}")
        a(f"v_add_u32 v2, s{sLO}, v{VL}\nv_lshlrev_b32 v2, 4, v2\ns_movk_i32 s{sQ}, 4096")
        for i in range(ns):
            a(f"v_cmp_gt_i32 {S2(sM+2*i)}, s{t1}, v{VL}\ns_sub_u32 s{t1}, s{t1}, 64")
        a("s_waitcnt lgkmcnt(0)")
        for i in range(ns): a(f"v_add_u32 v{RK+i}, v{RK+i}, v2")
    def recload(ns,lab):
        for i in reversed(range(ns)):
            a(f"s_mov_b64 exec, {S2(sM+2*i)}\ns_cbranch_execz {lab}{i}\n{rl1(i)}\n{lab}{i}:")
        a("s_mov_b64 exec, -1")
    def hist(ns,lab,extra,scat):
        a(f"v_mov_b32 v1, 4\ns_mov_b32 s{sW8}, {EB}\n{lab}p:")
        def gm(i): return S2(t0+2*(i&1))
        def sc(i,n):
            a(f"""
s_mov_b64 exec, {gm(i)}
s_waitcnt lgkmcnt({n})
v_min_u32 v{RK+i}, {NULLG-4}, v{RK+i}
v_lshl_add_u32 v{RC+4*i+3}, v{RK+i}, 1, s{sW8}
ds_write_b32 v{RK+i}, v{RC+4*i+2} offset:{WB}
ds_write_b64 v{RC+4*i+3}, {P2(RC+4*i)}
""")
        for i in reversed(range(ns)):
            a(f"""
s_mov_b64 exec, {S2(sM+2*i)}
s_waitcnt vmcnt({i+extra})
v_cmpx_eq_u32 {gm(i)}, s{sNON}, v{RC+4*i+3}
v_lshrrev_b32 v{RC+4*i+3}, 17, v{RC+4*i+2}
ds_add_rtn_u32 v{RK+i}, v{RC+4*i+3}, v1
s_andn2_b64 {S2(sM+2*i)}, {S2(sM+2*i)}, {gm(i)}
""")
            a(f"s_mov_b64 vcc, {S2(sM+2*i)}" if i==ns-1 else f"s_or_b64 vcc, vcc, {S2(sM+2*i)}")
            if scat and i==0 and 0: pass
            if scat and i==0: a(f"s_cselect_b64 exec, 0, 1\nds_add_u32 v{VZ}, v1 offset:{mH}")
            if scat and i<ns-1: sc(i+1,(1 if i==ns-2 else 3)+(1 if i==0 else 0))
        if scat: sc(0,3)
        a(f"s_cbranch_vccnz {lab}r\n{lab}d:\ns_mov_b64 exec, -1")
    def hist_retry(ns,lab,scat):
        a(f"{lab}r:\ns_sub_u32 s{sBUD}, s{sBUD}, 1\ns_cbranch_scc1 {lab}x")
        recload(ns,lab+"l")
        a(f"s_waitcnt vmcnt(0)\ns_branch {lab}p\n{lab}x:\ns_mov_b32 s{sBUD}, 0")
        if scat: a(f"s_mov_b64 exec, 1\nds_add_u32 v{VZ}, v1 offset:{mH}")
        a(f"s_branch {lab}d")
    def qfull(lab,mid):
        H=QA+4; MX=QA+1
        a(f"v_xor_b32 v{TC}, 32, v{TRU}")
        trfrag(WF,TC,0,2048,256)
        a(f"""
s_lshl_b32 s{t0}, s{sW4}, 8
s_add_u32 s{t0}, s{t0}, {Q2}
v_lshrrev_b32 v1, 4, v{VL}
v_lshl_add_u32 v120, v1, 11, s{t0}
v_and_b32 v1, 8, v{VL}
v_lshl_add_u32 v120, v1, 3, v120
v_and_b32 v1, 3, v{VL}
v_lshl_add_u32 v120, v1, 4, v120
v_and_b32 v1, 4, v{VL}
v_lshl_add_u32 v120, v1, 1, v120
v_add_u32 v121, 128, v120
s_waitcnt lgkmcnt(0)
""")
        tru(WF+16,0)
        def cv(i,T,pk):
            c=GA+16*i+4*T
            L=[]
            if pk: L+=[f"v_pk_mul_f32 {P2(c)}, {P2(c)}, {S2(sL2E)}",f"v_pk_mul_f32 {P2(c+2)}, {P2(c+2)}, {S2(sL2E)}"]
            else: L+=[f"v_mul_f32 v{c+k}, s{sL2E}, v{c+k}" for k in range(4)]
            L+=[f"v_and_b32 v{H+k}, 0xffff0000, v{c+k}" for k in range(4)]
            L+=[f"v_maximum3_f32 v{MX}, {'0' if T==0 and i==0 else 'v'+str(MX)}, abs(v{c}), abs(v{c+1})",f"v_maximum3_f32 v{MX}, v{MX}, abs(v{c+2}), abs(v{c+3})"]
            if pk: L+=[f"v_pk_add_f32 {P2(c)}, {P2(c)}, {P2(H)} neg_lo:[0,1] neg_hi:[0,1]",f"v_pk_add_f32 {P2(c+2)}, {P2(c+2)}, {P2(H+2)} neg_lo:[0,1] neg_hi:[0,1]"]
            else: L+=[f"v_sub_f32 v{c+k}, v{c+k}, v{H+k}" for k in range(4)]
            L+=[f"v_cvt_pk_bf16_f32 v{c+k}, v{c+k}, v{H+k}" for k in range(4)]
            return L
        for T in range(4):
            for s in range(4): a(mfma16(GA+4*T,XF+16*T+4*s,WF+4*s,None if s==0 else GA+4*T))
        a("s_waitcnt lgkmcnt(0)")
        fl=cv(0,0,0)+cv(0,1,0)
        for T in range(4):
            for s in range(4):
                a(mfma16(GA+16+4*T,XF+16*T+4*s,WF+16+4*s,None if s==0 else GA+16+4*T))
                for _ in range(2): a(fl.pop(0))
        if PFI==0: mid()
        for x in fl+cv(0,2,1)+cv(1,0,1)+cv(1,1,1)+cv(1,2,1): a(x)
        if PFI==1: mid()
        gwait(lab+"w",mSL,4,VZ,1)
        for i in range(2):
            for T in range(3):
                c=GA+16*i+4*T
                a(f"ds_write2st64_b64 v{120+i}, {P2(c)}, {P2(c+2)} offset0:{16*T} offset1:{16*T+2}")
        a("s_mov_b64 exec, 0xffff")
        for i in range(2):
            c=GA+16*i+12
            a(f"""
v_mul_f32 v{c}, s{sL2E}, v{c}
v_and_b32 v{H}, 0xffff0000, v{c}
v_maximum3_f32 v{MX}, v{MX}, abs(v{c}), abs(v{c})
v_sub_f32 v{c}, v{c}, v{H}
v_cvt_pk_bf16_f32 v{c}, v{c}, v{H}
ds_write2st64_b64 v{120+i}, {P2(c)}, {P2(c+2)} offset0:48 offset1:50
""")
        a(f"""
s_mov_b64 exec, -1
v_cmp_nge_f32 vcc, 0x40e80000, v{MX}
s_cbranch_vccz {lab}q
ds_write_b32 v{VZ}, v{FA} offset:{mSLOW}
{lab}q:
""")
        pt('qd')
    def ranges():
        a(f"""
s_lshr_b32 s{sCNT}, s{sNT}, 3
s_mul_i32 s{sT0}, s{sCNT}, s{sWV}
s_and_b32 s{t2}, s{sNT}, 7
s_min_u32 s{t3}, s{t2}, s{sWV}
s_add_u32 s{sT0}, s{sT0}, s{t3}
s_cmp_lt_u32 s{sWV}, s{t2}
s_addc_u32 s{sCNT}, s{sCNT}, 0
s_lshl_b32 s{t0}, s{sT0}, 7
s_lshl_b32 s{t2}, s{sT0}, 4
v_add_u32 v{SB}, s{t2}, v{SB}
v_add_u32 v{RB}, s{t2}, v{RB}
s_add_u32 s{t3}, s{sT0}, s{sCNT}
v_min_u32 v1, 8, v{VL}
v_sub_u32 v1, s{t3}, v1
v_lshlrev_b32 v1, 4, v1
v_max_i32 v1, 0, v1
""")
    AS=272; OST=GBUF+32768
    eFA,eOW,eN48,eRD,eST,eM0,eM1=136,137,138,139,140,141,142
    sE0,sE1,sE2=4,5,6
    def epi_consts():
        srd(a,sX,16,N*256)
        vyc(WV)
        a(f"""
v_and_b32 v1, 15, v{VL}
v_lshrrev_b32 v2, 4, v{VL}
v_mul_u32_u24 v3, {AS}, v1
s_lshr_b32 s{t0}, s{sWV}, 2
s_mul_i32 s{t1}, s{t0}, {32*AS}
v_lshl_add_u32 v3, v2, 4, v3
v_add_u32 v{eFA}, s{t1}, v3
s_lshl_b32 s{t0}, s{t0}, 13
s_add_u32 s{t0}, s{t0}, {OST}
s_lshl_b32 s{t1}, s{sW4}, 2
v_or_b32 v2, s{t1}, v2
v_xor_b32 v2, v2, v1
v_lshl_add_u32 v2, v2, 4, s{t0}
v_lshl_add_u32 v{eOW}, v1, 8, v2
s_lshl_b32 s{t0}, s{sW4}, 6
s_add_u32 s{t0}, s{t0}, {OST+48*256}
v_and_b32 v2, 12, v1
v_lshl_add_u32 v2, v2, 2, s{t0}
v_and_b32 v3, 3, v1
v_lshl_add_u32 v{eN48}, v3, 1, v2
v_lshlrev_b32 v1, 4, v0
v_add_u32 v{eRD}, {OST}, v1
v_lshrrev_b32 v2, 4, v0
v_xor_b32 v3, v2, v0
v_and_b32 v3, 15, v3
v_lshlrev_b32 v3, 4, v3
v_lshl_add_u32 v{eST}, v2, 16, v3
s_lshl_b32 s{sE0}, s{sNB}, 8
s_add_u32 s{sE1}, s{sE0}, {32*65536}
s_cmp_lt_u32 s{sWV}, 4
s_cselect_b64 {S2(sE2)}, -1, 0xffff
s_mul_i32 s{t0}, s{sWV}, {AS}
v_lshl_add_u32 v{eM1}, v{VL}, 2, s{t0}
v_lshlrev_b32 v{OH2}, 1, v{OHC}
v_and_b32 v1, 31, v{VL}
v_lshlrev_b32 v1, 4, v1
v_lshlrev_b32 v2, 5, v{VL}
v_and_b32 v2, 0x400, v2
v_add3_u32 v{QC}, v1, v2, s{sQ2}
v_cndmask_b32 v{SI2}, 0, 16, {S2(sMA)}
v_cndmask_b32 v{SI2+1}, 16, 0, {S2(sMA)}
v_sub_u32 v2, v{SA}, v{OHC}
v_add_u32 v2, {STB}, v2
v_mov_b32 v1, {OH+64}
v_cndmask_b32 v{SA2}, v1, v2, {S2(sMA)}
v_cndmask_b32 v{SA2+1}, v2, v1, {S2(sMA)}
""")
    def arrive(off,vt): a(f"v_mov_b32 v{vt}, 1\ns_mov_b64 exec, 1\nds_add_u32 v{VZ}, v{vt} offset:{off}\ns_mov_b64 exec, -1")

    def claim():
        a(f"""
s_mul_i32 s{t1}, s{sW4}, {13*65536}
s_lshl_b32 s{t2}, s{sNB}, 8
s_add_u32 s{t1}, s{t1}, s{t2}
s_add_u32 s{t1}, s{t1}, {F_P}
""")
        if CLW==1:
            a(f"""
v_lshlrev_b32 v2, 15, v{VL}
v_and_b32 v2, 0xffff0000, v2
v_and_b32 v3, 1, v{VL}
v_lshl_add_u32 v2, v3, 7, v2
v_add_u32 v2, s{t1}, v2
s_mov_b64 exec, 0x3ffffff
global_store_dword v2, v{VZ}, s[20:21] sc1
s_mov_b64 exec, -1
""")
        else:
            a(f"""
v_lshlrev_b32 v2, 14, v{VL}
v_and_b32 v2, 0xffff0000, v2
v_and_b32 v3, 3, v{VL}
v_lshl_add_u32 v2, v3, 6, v2
v_add_u32 v2, s{t1}, v2
s_mov_b32 exec_hi, 0xfffff
global_store_dword v2, v{VZ}, s[20:21] sc1
s_mov_b64 exec, -1
""")
    D=28; SRc=36; K=44; R=52; W2=60; RO=80
    sD=40; sS=44; sE=48
    Q16="s_mov_b64 exec, 0xffff"; FULL="s_mov_b64 exec, -1"
    a(f"""
{name}:
{"s_memrealtime s[88:89]" if PROF and FST else ""}
s_getpc_b64 {S2(t2)}
s_cmp_ge_u32 s2, 256
s_cbranch_scc1 KF_END
s_load_dwordx16 s[4:19], s[0:1], 0
s_load_dwordx2 s[20:21], s[0:1], 64
v_lshrrev_b32 v1, 6, v0
s_and_b32 s{t0}, s2, 0xf8
s_sub_u32 s{t1}, s{t0}, 136
s_cselect_b32 s{t1}, s{t0}, s{t1}
v_add_lshl_u32 v2, v1, s{t1}, 7
v_readfirstlane_b32 s{sWV}, v1
v_min_u32 v2, KF_CEND-{name}-16, v2
s_cmp_eq_u32 s2, 0
s_cbranch_scc1 KF_n0
s_mov_b64 exec, 1
global_load_dword v{QA+15}, v2, {S2(t2)}
s_mov_b64 exec, -1
KF_n1:
v_and_b32 v{VL}, 63, v0
v_mov_b32 v{VZ}, 0
v_lshlrev_b32 v113, 4, v{VL}
s_and_b32 s{sK}, s2, 7
s_lshl_b32 s{sK}, s{sK}, 5
s_lshr_b32 s{t1}, s2, 3
s_or_b32 s{sK}, s{sK}, s{t1}
s_and_b32 s{sW4}, s{sWV}, 3
s_lshl_b32 s{sW4K}, s{sW4}, 10
s_cmp_ge_u32 s{sWV}, 4
s_cbranch_scc0 KF_S
v_lshlrev_b32 v2, 2, v0
v_lshlrev_b32 v3, 8, v{VL}
ds_write_b32 v2, v{VZ} offset:{HIST-1024}
v_lshlrev_b32 v2, 2, v{VL}
ds_write2st64_b32 v2, v3, v{VZ} offset0:0 offset1:1
v_bfe_u32 v1, v0, 4, 4
v_xor_b32 v37, v1, v0
v_and_b32 v37, 15, v37
v_lshlrev_b32 v37, 4, v37
v_lshl_add_u32 v36, v1, 8, s{sNB}
s_waitcnt lgkmcnt(0)
""")
    if WSB: a(f"s_add_u32 s20, s20, {hex(WSB)}\ns_addc_u32 s21, s21, 0")
    (0 if FST else stamp(a,0,True)); stamp(a,1); pt('st')
    a(f"""
""")
    if XORD==0:
        srd(a,sX,4,N,stride=256)
        for j in range(4):
            if j==3: a(f"s_cmp_eq_u32 s{sWV}, 4\ns_cbranch_scc0 KT_c")
            a(f"s_add_u32 m0, s{sW4K}, {AGB+j*4096}\ns_nop 0\nbuffer_load_dwordx4 v[36:37], {SR4(sX)}, 0 idxen offen{NT} lds\nv_add_u32 v36, 4096, v36")
        a("KT_c:")
    a(f"""
s_lshr_b32 s{t0}, s{t0}, 1
s_add_u32 s{t0}, s{t0}, s{sWV}
s_sub_u32 s{t0}, s{t0}, 4
s_lshl_b32 s{t0}, s{t0}, 9
v_lshl_add_u32 v2, v{VL}, 7, s{t0}
s_mov_b64 exec, 15
global_load_dword v{QA+15}, v2, s[12:13]
global_load_dword v{QA+15}, v2, s[14:15]
s_mov_b64 exec, -1
""")
    if TLB:
        a(f"""
s_lshr_b32 s{t0}, s{t0}, 9
s_mul_i32 s{t1}, s{t0}, {2*RST}
s_add_u32 s{t1}, s{t1}, {F_REC+EP*16}
s_add_u32 s52, s20, s{t1}
s_addc_u32 s53, s21, 0
s_load_dword s44, s[52:53], 0
s_load_dword s45, s[52:53], {RST}
""")
    a(f"""
s_branch KF_B0
KF_n0:                                  ; workgroup 0: wave 0 publishes the launch nonce before anything else
s_memrealtime s[44:45]
v_lshlrev_b32 v2, {2 if NW else 6}, v0
s_cmp_eq_u32 s{sWV}, 0
s_waitcnt lgkmcnt(0)
s_cbranch_scc0 KF_n1
s_lshl_b32 s46, s44, 2
s_or_b32 s46, s46, 1
v_mov_b32 v3, s46
s_mov_b64 exec, {-1 if NW else 15}
global_store_dword v2, v3, s[18:19] sc1
s_mov_b64 exec, -1
s_branch KF_n1
KF_S:
s_min_u32 s{t2}, s2, {NPROD-1}
s_mul_i32 s{t2}, s{t2}, {EP*4}
s_mul_i32 s{t3}, s{sWV}, 400
v_add_u32 v108, s{t3}, v{VL}
v_lshlrev_b32 v109, 2, v108
s_mov_b32 s{sD+2}, {E*4}
s_mov_b32 s{sD+3}, 0x00020000
s_waitcnt lgkmcnt(0)
""")
    if WSB: a(f"s_add_u32 s20, s20, {hex(WSB)}\ns_addc_u32 s21, s21, 0")
    (0 if FST else stamp(a,0,True)); stamp(a,1); pt('st')
    a(f"s_mov_b32 s{sD}, s10\ns_and_b32 s{sD+1}, s11, 0xffff")
    def ld7(dst,sr):
        for i in range(7):
            if i==6: a(Q16)
            a(f"buffer_load_dword v{dst+i}, v109, {SR4(sr)}, s{t2} offen offset:{i*256}{NT}")
        a(FULL)
    ld7(D,sD); pt('dl')
    def srcld(): srd(a,sS,8,E*4); ld7(SRc,sS)
    def eld():
        srd(a,sE,6,E*8)
        a(f"""
s_lshl_b32 s{sLB}, s{t3}, 3
s_lshl_b32 s{t2}, s{t2}, 1
s_add_u32 s{t2}, s{t2}, s{sLB}
s_add_u32 m0, s{sLB}, {ERAW}
s_add_u32 s{sLB}, s{sLB}, {S1}
""")
        for j in range(4):
            if j==3: a("s_mov_b64 exec, 0xff")
            a(f"buffer_load_dwordx4 v113, {SR4(sE)}, s{t2} offen offset:{1024*j}{NT} lds")
        a(FULL)
    if EO<2: srcld()
    if EO<1: eld()
    if CLM==2: claim()
    a(f"""
KF_B0:
""")
    if DBGP:
        a("v_mov_b32 v1, 0")
        for j,r in enumerate((4,6,8,10,12,14,16,18,20)): a(f"v_writelane_b32 v1, s{r}, {j}")
        a(f"v_lshlrev_b32 v2, 2, v{VL}\ns_mov_b64 exec, 0x1ff\nglobal_store_dword v2, v1, s[18:19]\ns_mov_b64 exec, -1\ns_waitcnt vmcnt(0)")
    if ALN: a(f"s_add_u32 s20, s20, {ALN-1}\ns_addc_u32 s21, s21, 0\ns_and_b32 s20, s20, {-ALN}")
    a(f"""
s_lshl_b32 s{sBUF}, s{sWV}, 13
s_add_u32 s{sBUF}, s{sBUF}, {GBUF}
s_barrier
""")
    if W1E:
        a(f"s_cmp_ge_u32 s{sWV}, 4\ns_cbranch_scc0 KF_c0")
        srd(a,sA,12,260*256); vyc(); sdma(sA,0,0,VY,range(W1E))
        a("KF_c0:")
    consts()
    a(f"""
s_cmp_ge_u32 s{sWV}, 4
s_cbranch_scc1 KF_T
""")
    if EO>=2: a(f"v_lshlrev_b32 v109, 2, v108"); srcld()
    if EO>=1: eld()
    a(f"""
v_mov_b32 v111, 8
v_and_b32 v124, 7, v{VL}
v_lshlrev_b32 v124, 7, v124
v_lshrrev_b32 v125, 3, v{VL}
v_lshl_add_u32 v124, v125, 2, v124
v_add_u32 v124, {HIST}, v124
v_add_u32 v125, 1024, v124
v_lshlrev_b32 v112, 3, v108
v_lshlrev_b32 v110, 4, v108
""")
    for i in range(7): a(f"v_add_u32 v{W2+1+2*i}, {i*512}, v112")
    if N4==1: a(f"s_load_dword s{sNON}, s[18:19], 0")
    if N4==2: a(f"s_mov_b32 s{sNON}, 0")
    a(f"s_cmp_ge_u32 s2, {NPROD}\ns_cbranch_scc1 KS_d\ns_waitcnt vmcnt({11+(CLM==2)})")
    pt('dst')
    if N4==2: a(f"s_load_dword s{sNON}, s[18:19], 0")
    for i in range(7):
        if i==6: a(Q16)
        a(f"v_lshlrev_b32_sdwa v{K+i}, 2, v{D+i} dst_sel:DWORD dst_unused:UNUSED_PAD src0_sel:DWORD src1_sel:BYTE_0\nds_add_rtn_u32 v{R+i}, v{K+i}, v111 offset:{HIST}")
    a(FULL+"\nKS_d:")
    gsync('b1',"KS_y1",mS,4,VZ,2)
    if PERM: a(f"ds_read2_b32 v[116:117], v124 offset0:0 offset1:8\nds_read2_b32 v[118:119], v124 offset0:16 offset1:24")
    else: a(f"ds_read_b128 v[116:119], v113 offset:{HIST}")
    if NE==3 and not N4: a(f"s_load_dword s{sNON}, s[18:19], 0")
    if N4: a(f"s_cmp_lg_u32 s{sNON}, 0\ns_cbranch_scc1 KS_na\ns_load_dword s{sNON}, s[18:19], 128\nKS_na:")
    for i in range(7): a(f"v_lshrrev_b32 v{D+i}, 8, v{D+i}")
    a(f"""
s_waitcnt lgkmcnt(0)
v_add_u32 v2, v116, v117
v_add3_u32 v2, v2, v118, v119
v_mov_b32 v3, v2
""")
    dpp_scan(a,"v_add_u32",[3])
    a(f"""
v_sub_u32 v120, v3, v2
v_add_u32 v121, v120, v116
v_add_u32 v122, v121, v117
v_add_u32 v123, v122, v118
""")
    if PERM: a(f"ds_write2_b32 v125, v120, v121 offset0:0 offset1:8\nds_write2_b32 v125, v122, v123 offset0:16 offset1:24")
    else: a(f"ds_write_b128 v113, v[120:123] offset:{HIST+1024}")
    for i in range(7):
        if i==6: a(Q16)
        a(f"ds_read_b32 v{K+i}, v{K+i} offset:{HIST+1024}")
    a(FULL)
    def tpub():
        if not NE: a(f"s_load_dword s{sNON}, s[18:19], 0")
        a(f"""
v_lshl_or_b32 v{QA}, v121, 16, v120
v_lshl_or_b32 v{QA+1}, v123, 16, v122
s_lshl_b32 s{t2}, s2, 10
s_add_u32 s{t2}, s{t2}, {F_TBL}
s_lshl_b32 s{t3}, s{sWV}, 4
""")
        for k,off in enumerate((64,192,None) if N4 else (128,64,192,None)):
            a(f"s_waitcnt lgkmcnt(0)\ns_cmp_lg_u32 s{sNON}, 0\ns_cbranch_scc1 KS_n1")
            if off is not None: a(f"s_sleep {NS}\ns_load_dword s{sNON}, s[18:19], {off}")
        a(f"""
KS_n0:
global_load_dword v1, v{VZ}, s[18:19] sc1
s_waitcnt vmcnt(0)
v_readfirstlane_b32 s{sNON}, v1
s_cmp_lg_u32 s{sNON}, 0
s_cbranch_scc1 KS_n1
s_sub_u32 s{sBUD}, s{sBUD}, 1
s_cbranch_scc0 KS_n0
s_mov_b32 s{sBUD}, 0
s_mov_b32 s{sNON}, 1
KS_n1:
v_mov_b32 v1, s{sNON}
ds_write_b32 v{VZ}, v1 offset:{mNO}
""")
        pt('non')
        slot()
        a(f"""
v_mov_b32 v{QA+3}, v1
s_add_u32 s{t2}, s{t2}, s{sRO}
s_lshl_b64 exec, 0xffff, s{t3}
buffer_store_dwordx4 {P4(QA)}, v113, {SR4(sR)}, s{t2} offen{SSC}
s_mov_b64 exec, -1
""")
    if NE==3:
        a(f"v_mov_b32 v{QA+2}, v3"); tpub()
        if WG_: arrive(mPS,2)
    else: a(f"s_mov_b32 s{sNON}, 0")
    a(f"s_cmp_ge_u32 s2, {NPROD}\ns_cbranch_scc1 KS_e\ns_waitcnt vmcnt({5 if NE==3 else 4})")
    if X&64:
        for i in range(7): a(f"v_and_b32 v{SRc+i}, 0x1ff, v{SRc+i}")
    for i in range(7): a(f"v_lshl_or_b32 v{W2+2*i}, v{D+i}, 19, v{SRc+i}")
    a(f"s_waitcnt lgkmcnt(0)")
    if NE==2: a(f"s_load_dword s{sNON}, s[18:19], 0")
    for i in range(7):
        if i==6: a(Q16)
        a(f"v_add_u32 v{K+i}, v{K+i}, v{R+i}\nds_write_b64 v{K+i}, {P2(W2+2*i)} offset:{S1}")
    a(FULL+"\nKS_e:")
    pt('sc1')
    if NE<3: a(f"v_mov_b32 v{QA+2}, v3")
    if NE==1: a(f"s_load_dword s{sNON}, s[18:19], 0")
    if NE<2: epi_consts(); tpub()
    else:
        if NE==2: tpub()
        pass
    a(f"""
v_lshlrev_b32 v114, 10, v0
s_lshr_b32 s{sLO}, s{sK}, 2
s_lshl_b32 s{sLO}, s{sLO}, 4
s_add_u32 s{sLO}, s{sLO}, {F_TBL}
s_add_u32 s{sLO}, s{sLO}, s{sRO}
s_add_u32 s{sRO}, s{sRO}, {F_REC}
v_cmp_gt_u32 vcc, {NPROD}, v0
v_mov_b32 v{QA+4}, 0
v_mov_b32 v{QA+5}, 0
v_mov_b32 v{QA+6}, 0
s_mul_i32 s{t0}, s2, {RST}
s_add_u32 s{t0}, s{t0}, s{sRO}
s_add_u32 s{t2}, s{t0}, 4096
v_mul_u32_u24 v115, {RST}, v0
v_add_u32 v115, s{sRO}, v115
""")
    gsync('bS',"KS_y2",mS,8,VZ,2,f"s_waitcnt vmcnt({1+(CLM==2)})")
    tl=f"s_mov_b64 exec, vcc\nbuffer_load_dwordx4 {P4(QA+4)}, v114, {SR4(sR)}, s{sLO} offen{SC}\ns_mov_b64 exec, -1"
    a(f"""
s_cmp_ge_u32 s2, {NPROD}
s_cbranch_scc0 KS_h0
""")
    gwait("KS_h1",mGP,4,VZ,2)
    a(f"""
{tl}
s_waitcnt vmcnt(0)
v_mov_b32 v1, 0
s_branch KS_j
KS_h0:
""")
    order=[6,0,1,2,3,4,5]
    for i in order:
        if i==6: a(Q16)
        a(f"ds_read_b64 {P2(RO+2+4*i)}, v112 offset:{S1+i*512}")
        if i==6: a(FULL)
    for i in order:
        if i==6: a(Q16)
        a(f"s_waitcnt lgkmcnt(6)\nds_read_b64 {P2(RO+4*i)}, v{RO+3+4*i} offset:{ERAW}")
        if i==6: a(FULL)
    gwait("KS_ww",mW,4,VZ,2)
    for k,i in enumerate(order):
        if k==TP_: a(tl)
        if i==6: a(Q16)
        a(f"v_mov_b32 v{RO+3+4*i}, v1\nbuffer_store_dwordx4 {P4(RO+4*i)}, v110, {SR4(sR)}, s{t0 if i<4 else t2} offen offset:{1024*(i&3)}{SSC}")
        if i==6: a(FULL)
    if TP_==7: a(tl)
    pt('out')
    a(f"v_pk_maximum3_f16 v1, v{RO}, v{RO+1}, v{RO+1}\nv_pk_minimum3_f16 v2, v{RO}, v{RO+1}, v{RO+1}")
    for i in range(1,7):
        if i==6: a(Q16)
        a(f"v_pk_maximum3_f16 v1, v1, v{RO+4*i}, v{RO+4*i+1}\nv_pk_minimum3_f16 v2, v2, v{RO+4*i}, v{RO+4*i+1}")
    a(FULL)
    absmax_fin(a,1,2,3)
    dpp_scan(a,"v_max_u32",[1])
    a(f"""
KS_j:
v_mov_b32 v2, 1
s_mov_b32 exec_lo, 0
s_brev_b32 exec_hi, 1
ds_max_u32 v{VZ}, v1 offset:{mEM}
ds_add_u32 v{VZ}, v2 offset:{mE}
s_mov_b64 exec, -1
""")
    if NE>=2: epi_consts()
    gwait("KS_xw",mGX,4,VZ,2)
    xfrags([0,1])
    a(f"""
s_bitcmp1_b32 s{sK}, 1
s_cselect_b64 {S2(t2)}, -1, 0
s_lshl_b32 s{t0}, s{sK}, 4
s_and_b32 s{t0}, s{t0}, 16
s_waitcnt vmcnt({7-TP_})
s_mov_b64 exec, vcc
KT_f:
v_cmp_ne_u32 vcc, s{sNON}, v{QA+7}
s_cbranch_vccz KT_g
s_mov_b64 exec, vcc
s_sub_u32 s{sBUD}, s{sBUD}, 1
s_cbranch_scc1 KT_f2
buffer_load_dwordx4 {P4(QA+4)}, v114, {SR4(sR)}, s{sLO} offen{SC}
s_waitcnt vmcnt(0)
s_branch KT_f
KT_f2:
s_mov_b32 s{sBUD}, 0
v_mov_b32 v{QA+4}, 0
v_mov_b32 v{QA+5}, 0
v_mov_b32 v{QA+6}, 0
KT_g:
s_mov_b64 exec, -1
""")
    pt('tp'); ret('rt1')
    a(f"""
v_cndmask_b32 v1, v{QA+4}, v{QA+5}, {S2(t2)}
v_cndmask_b32 v2, v{QA+5}, v{QA+6}, {S2(t2)}
v_alignbit_b32 v1, v2, v1, s{t0}
v_sub_u32_sdwa v{TC}, v1, v1 dst_sel:DWORD dst_unused:UNUSED_PAD src0_sel:WORD_1 src1_sel:WORD_0
v_and_b32 v1, 0xffff, v1
v_lshrrev_b32 v{TC}, 3, v{TC}
v_lshl_add_u32 v{TD}, v1, 1, v115
v_mov_b32 v{TO}, v{TC}
""")
    dpp_scan(a,"v_add_u32",[TO])
    a(f"""
v_readlane_b32 s{sTOT}, v{TO}, 63
v_sub_u32 v{TO}, v{TO}, v{TC}
v_mov_b32 v2, v{TC}
v_lshlrev_b32 v1, 4, v{TO}
s_mov_b32 s{sLO}, 0
s_cmp_gt_u32 s{sTOT}, 512
v_sub_u32 v{TD}, v{TD}, v1
v_lshl_add_u32 v1, v{TO}, 2, s{sLB}
s_cselect_b32 s{t1}, 0, s{sTOT}
s_cbranch_scc1 KT_xe
""")
    expand("KT_x",False)
    a("KT_xe:")
    reclist(8)
    arrive(mSL,1)
    pt('exp')
    if SWU:
        gwait("KS_gp",mGP,4,VZ,1); srd(a,sA,14,256*256); sdma(sA,0,32768,WV)
    gwait("KS_rw",{0:mPD,1:mPS,2:mPS}[RWI],4,VZ,1)
    if SWU==2: a("s_waitcnt vmcnt(0)"); arrive(mPI,1)
    if TP_<7: a("s_waitcnt vmcnt(0)")
    recload(8,"KT_l")
    pt('rl')
    def pfp():
        a(f"""
s_lshr_b32 s{t1}, s2, 3
s_mul_i32 s{t1}, s{t1}, 391
""")
        if PF0: a(f"v_and_b32 v2, 255, v0\nv_add_u32 v2, s{t1}, v2\nv_mov_b32 v3, 0")
        else: a(f"v_bfe_u32 v2, v0, 1, 7\nv_add_u32 v2, s{t1}, v2\nv_and_b32 v3, 1, v0\nv_lshlrev_b32 v3, 7, v3")
        if PFN<64: a(f"s_bfm_b64 exec, {PFN}, 0")
        a(f"buffer_load_dword v{QA+15}, v[2:3], {SR4(sP)}, 0 idxen offen offset:3072{SC}\ns_mov_b64 exec, -1")
    if PFP==1: pfp()
    if SWU==1:
        a(f"s_add_u32 s{t1}, s{sTOT}, 63\ns_lshr_b32 s{t1}, s{t1}, 6\ns_cmp_ge_u32 s{t1}, 6\ns_cbranch_scc1 KS_v6\ns_waitcnt vmcnt(0)\nKS_v6:\ns_cmp_gt_u32 s{sTOT}, 512\ns_cbranch_scc0 KS_v7\ns_waitcnt vmcnt(0)\nKS_v7:\ns_waitcnt vmcnt(6)")
        arrive(mPI,1)
    if not US:
        if not SWU: gwait("KS_w2",mPI,4,VZ,1)
        trw()
        a("s_waitcnt lgkmcnt(0)")
        w3rd()
        ugemm(0)
    pt('ud')
    hist(8,"KT_h",1 if PFP==1 else 0,True)
    if PFP==3: pfp()
    pt('hs'); ret('rt2')
    gwait("KS_b2",mH,16,VZ,1)
    pt('b2')
    scan(False)
    a(f"""
v_cmp_lt_u32 vcc, 0x100, v{QA}
s_add_u32 s{sNT}, s{t0}, 127
s_lshr_b32 s{sNT}, s{sNT}, 7
s_cmp_gt_u32 s{sNT}, {CAPT}
s_cbranch_scc1 KT_j
s_cbranch_vccnz KT_j
""")
    fill("KFz",False,4)
    a(f"v_mov_b32 v1, s{sNT}\nds_write_b32 v{VZ}, v1 offset:{mNT}")
    pt('fil')
    a(f"""
s_cmp_gt_u32 s{sTOT}, 512
s_cbranch_scc0 KT_k
KT_j:
ds_write_b32 v{VZ}, v{FA} offset:{mSLOW}
KT_k:
s_mov_b32 s{sWU}, 1
""")
    if US: gwait("KS_w2",mPI,4,VZ,1); trw(); w3rd()
    ranges()
    srd(a,sA,14,256*256)
    if PRIO: a("s_setprio 3")
    bar('b3')
    a("s_branch KF_J")
    a(f"""
KF_T:
{"s_load_dword s47, s[18:19], 0" if GPN else ""}
v_and_b32 v108, 255, v0
v_mov_b32 v32, 0
v_mov_b32 v33, 0
v_mov_b32 v34, 0
v_mov_b32 v35, 0
v_lshlrev_b32 v110, 4, v108
""")
    sG=40
    srd(a,sX,4,N,stride=256)
    def xld():
        for j in range(4):
            if j==3: a(f"s_cmp_eq_u32 s{sWV}, 4\ns_cbranch_scc0 KT_c")
            a(f"s_add_u32 m0, s{sW4K}, {AGB+j*4096}\ns_nop 0\nbuffer_load_dwordx4 v[36:37], {SR4(sX)}, 0 idxen offen{NT} lds\nv_add_u32 v36, 4096, v36")
        a("KT_c:")
    def warm():
        a(f"""
v_and_b32 v1, 28, v{VL}
v_and_b32 v2, 3, v{VL}
v_lshlrev_b32 v2, 1, v2
v_lshl_or_b32 v1, v1, 2, v2
s_lshr_b32 s{t0}, s{sW4}, 1
s_lshl_b32 s{t0}, s{t0}, 7
s_and_b32 s{t1}, s{sW4}, 1
s_lshl_b32 s{t1}, s{t1}, 3
s_add_u32 s{t0}, s{t0}, s{t1}
s_add_u32 s{t0}, s{t0}, 65536
""")
        for k in range(4): a(f"buffer_load_ushort v{124+k}, v1, {SR4(sA)}, s{t0} offen offset:{k*256}")
    def zer():
        a(f"v_cmp_le_u32 vcc, 32, v108\ns_mov_b64 exec, vcc\nds_write_b128 v110, v[32:35]\ns_mov_b64 exec, -1")
        for j in range(1,4): a(f"ds_write_b128 v110, v[32:35] offset:{j*4096}")
        a(f"""
s_cmp_eq_u32 s{sWV}, 4
s_cbranch_scc0 KT_b
ds_write_b128 v110, v[32:35] offset:16384
KT_b:
""")
    srd(a,sA,12,260*256); warm(); vyc()
    if XORD==1: xld()
    if not ZL: zer()
    a(f"""
s_lshl_b32 s{t0}, s{sW4}, 2
v_lshrrev_b32 v2, 4, v{VL}
v_or_b32 v1, s{t0}, v2                  ; 4u+g
v_xor_b32 v3, v1, v{WT}
v_lshlrev_b32 v3, 4, v3
v_lshl_add_u32 v116, v{WT}, 8, v3
v_add_u32 v116, {PSC}, v116
v_add_u32 v117, {PSC}, v110
v_lshl_add_u32 v118, v1, 16, v3
""")
    if XORD==2:
        gwait("KG_x",mS,4,VZ,1); xld()
    if WG_: sdma(sA,0,0,VY,range(WG_-1)); gwait("KG_tw",mPS,4,VZ,1)
    sdma(sA,0,0,VY,range(max(W1E,WG_-1),8))
    sdma(sA,32768,-32768,VY,range(W2N))
    arrive(mW,1)
    if ZL: zer()
    pt('w1i')
    def w3m():
        w=[124,125,126,127]; u=QA
        for k in range(4): a(f"v_lshlrev_b32 v{w[k]}, 16, v{w[k]}\nv_mul_f32 v{w[k]}, s{sL2E}, v{w[k]}")
        a(f"""
v_cvt_pk_bf16_f32 v{u}, v124, v125
v_cvt_pk_bf16_f32 v{u+1}, v126, v127
v_lshlrev_b32 v{u+2}, 16, v{u}
v_and_b32 v{u+3}, 0xffff0000, v{u}
v_lshlrev_b32 v{u+4}, 16, v{u+1}
v_and_b32 v{u+5}, 0xffff0000, v{u+1}
v_add_f32 v{u+6}, abs(v124), abs(v125)
v_sub_f32 v{u+2}, v124, v{u+2}
v_sub_f32 v{u+3}, v125, v{u+3}
v_sub_f32 v{u+4}, v126, v{u+4}
v_sub_f32 v{u+5}, v127, v{u+5}
v_add_f32 v{u+7}, abs(v126), abs(v127)
s_mov_b32 exec_lo, 0
v_cvt_pk_bf16_f32 v{u}, v{u+2}, v{u+3}
v_cvt_pk_bf16_f32 v{u+1}, v{u+4}, v{u+5}
s_mov_b32 exec_lo, -1
v_add_f32 v{u+6}, v{u+6}, v{u+7}
v_lshlrev_b32 v1, 3, v108
v_and_b32 v{u+6}, 0x7fffffff, v{u+6}
ds_write_b64 v1, {P2(u)} offset:{W3L}
""")
        dpp_scan(a,"v_max_u32",[u+6])
        a(f"""
s_mov_b32 exec_lo, 0
s_brev_b32 exec_hi, 1
ds_max_u32 v{VZ}, v{u+6} offset:{mC3}
s_mov_b64 exec, -1
""")
    e2=W2N
    a(f"v_mov_b32 v1, {hex(ONE2)}\nds_write2_b32 v{VZ}, v1, v1 offset0:{OH//4} offset1:{OH//4+3}")
    gsync('bX',"KG_y1",mGX,4,VZ,2,f"s_waitcnt vmcnt({8+e2-W1E})")
    if GP_: a(f"s_setprio {GP_}")
    xfrags([0])
    a(f"s_waitcnt vmcnt({e2})")
    pt('xl')
    trfrag(WF,TP,32768,2048,256)
    a("s_waitcnt lgkmcnt(7)")
    trfrag(WF+16,TP,32768+8,2048,256)
    def pm(T,i):
        for s in range(4): a(mfma16(GA+8*T+4*i,WF+16*i+4*s,XF+16*T+4*s,None if s==0 else GA+8*T+4*i))
    def pcv(T):
        c=GA+8*T
        L=[f"v_mul_f32 v{c+j}, s{sL2E}, v{c+j}" for j in range(8)]
        L+=[f"v_cvt_pk_bf16_f32 v{c+j}, v{c+2*j}, v{c+2*j+1}" for j in range(4)]
        L+=[f"ds_write_b128 v116, {P4(c)} offset:{T*4096}"]
        return L
    def pmi(T,fillers):
        for i in range(2):
            for s in range(4):
                a(mfma16(GA+8*T+4*i,WF+16*i+4*s,XF+16*T+4*s,None if s==0 else GA+8*T+4*i))
                for _ in range(2):
                    if fillers: a(fillers.pop(0))
    a("s_waitcnt lgkmcnt(8)"); xfrags([1]); pm(0,0)
    a("s_waitcnt lgkmcnt(4)"); xfrags([2,3]); pm(0,1)
    a("s_waitcnt lgkmcnt(8)"); pm(1,0); pm(1,1)
    a("s_waitcnt lgkmcnt(0)"); pmi(2,pcv(0)); pmi(3,pcv(1))
    a(f"s_lshl_b32 s{t2}, s{sNB}, 8\ns_nop 2")
    for T in (2,3):
        for x in pcv(T): a(x)
    gsync('pg',"KG_y2",mGP,4,VZ,2)
    for T in range(4): a(f"ds_read_b128 {P4(PO+4*T)}, v117 offset:{T*4096}")
    a(f"""
KG_n:
ds_read_b32 v1, v{VZ} offset:{mNO}
s_waitcnt vmcnt(0) lgkmcnt(0)
v_readfirstlane_b32 s{sNON}, v1
s_cmp_eq_u32 s{sNON}, 0
s_cbranch_scc1 KG_n
""")
    slot()
    a(f"s_add_u32 s{t2}, s{t2}, s{sPO}")
    for T in range(3):
        a(f"s_add_u32 s{t1}, s{t2}, {F_P+T*16*65536}")
        a(f"buffer_store_dwordx4 {P4(PO+4*T)}, v118, {SR4(sR)}, s{t1} offen{SSC}")
    a(f"""
s_cmp_eq_u32 s{sWV}, 4
s_cbranch_scc0 KG_p
s_add_u32 s{t1}, s{t2}, {F_P+3*16*65536}
s_waitcnt lgkmcnt(0)
s_mov_b64 exec, 0xffff
buffer_store_dwordx4 {P4(PO+12)}, v118, {SR4(sR)}, s{t1} offen{SSC}
s_mov_b64 exec, -1
KG_p:
""")
    pt('pst')
    if RWI==1: arrive(mPS,1)
    if GP_: a("s_setprio 0")
    if W2N<8: sdma(sA,32768,-32768,VY,range(W2N,8))
    srd(a,sA,14,256*256)
    w3m()
    for T in range(4):
        c=GA+8*T
        if T==3: a("s_mov_b32 exec_lo, 0x10001\ns_mov_b32 exec_hi, 0x10001")
        if T==0: a(f"v_pk_maximum3_f16 v114, v{c}, v{c+1}, v{c+2}\nv_pk_minimum3_f16 v115, v{c}, v{c+1}, v{c+2}\nv_pk_maximum3_f16 v114, v114, v{c+3}, v{c+3}\nv_pk_minimum3_f16 v115, v115, v{c+3}, v{c+3}")
        else: a(f"v_pk_maximum3_f16 v114, v114, v{c}, v{c+1}\nv_pk_minimum3_f16 v115, v115, v{c}, v{c+1}\nv_pk_maximum3_f16 v114, v114, v{c+2}, v{c+3}\nv_pk_minimum3_f16 v115, v115, v{c+2}, v{c+3}")
    a("s_mov_b64 exec, -1")
    absmax_fin(a,114,115,2)
    a(f"""
v_cmp_lt_u32 vcc, 0x40e80000, v114
s_cmp_lg_u64 vcc, 0
s_cselect_b32 s{sFLAG}, 0x101, 1
""")
    def pflag(n):
        a(f"""
s_lshl_b32 s{t2}, s2, {FS}
s_add_u32 s{t2}, s{t2}, {F_FLG}
s_add_u32 s{t2}, s{t2}, s{sPO}
v_mov_b32 v1, s{sFLAG}
s_waitcnt vmcnt({n})
s_mov_b64 exec, 1
ds_add_rtn_u32 v1, v{VZ}, v1 offset:{mPD}
s_waitcnt lgkmcnt(0)
v_readfirstlane_b32 s{t1}, v1
s_add_u32 s{t1}, s{t1}, s{sFLAG}
s_and_b32 s{t0}, s{t1}, 255
s_cmp_eq_u32 s{t0}, 4
s_cbranch_scc0 KG_f
KG_e:
ds_read_b64 v[2:3], v{VZ} offset:{mE}
ds_read_b32 v1, v{VZ} offset:{mC3}
s_waitcnt lgkmcnt(0)
v_cmp_gt_u32 vcc, 4, v2
v_mul_f32 v1, v1, v3
s_cbranch_vccnz KG_e
v_cmp_nge_f32 vcc, 0x41680000, v1       ; !(14.5 >= e*c3)
s_lshl_b32 s{t0}, vcc_lo, 8
s_or_b32 s{t1}, s{t1}, s{t0}
s_cmp_gt_u32 s{t1}, 255
s_cselect_b32 s{t0}, 2, 0
s_xor_b32 s{t0}, s{sNON}, s{t0}
s_mov_b64 exec, {(1<<FR)-1}
v_mov_b32 v1, s{t0}
v_lshlrev_b32 v2, {8+FS}, v{VL}
buffer_store_dword v1, v2, {SR4(sR)}, s{t2} offen{SSC}
s_waitcnt vmcnt(1)
s_branch KG_f2
KG_f:
s_waitcnt vmcnt(0)
KG_f2:
s_mov_b64 exec, -1
""")
        pt('pfl')
    def mid():
        sdma(sA,0)
        if RWI==2: arrive(mPS,1)
        pflag(8); arrive(mPI,1)
    if W2N<8:
        if WU1L:
            pflag(8-W2N); qfull("KGq",lambda: sdma(sA,0)); a("s_waitcnt vmcnt(0)"); arrive(mPI,1)
        else:
            sdma(sA,0); epi_consts(); pflag(16-W2N); arrive(mPI,1); qfull("KGq",lambda: 0)
    elif WU1L:
        if PFI==2: pflag(0)
        qfull("KGq",lambda: pflag(0)); sdma(sA,0); epi_consts(); a("s_waitcnt vmcnt(0)"); arrive(mPI,1)
    elif SWU:
        if PFI==2: pflag(0)
        qfull("KGq",lambda: pflag(0)); epi_consts(); gwait("KG_pi",mPI,4,VZ,1)
    else: qfull("KGq",mid); epi_consts()
    gwait("KG_w3",mPD,4,VZ,1)
    w3rd(); trw()
    a("s_waitcnt lgkmcnt(0)"); ugemm(1)
    if FLP==1: gwait("KG_b2",mH,16,VZ,1)
    a(f"""
s_and_b32 s{sLO}, s2, {FR-1}
s_lshl_b32 s{sLO}, s{sLO}, {8+FS}
s_add_u32 s{sLO}, s{sLO}, {F_FLG}
s_add_u32 s{sLO}, s{sLO}, s{sPO}
v_lshlrev_b32 v110, {FS}, v108
buffer_load_dword v116, v110, {SR4(sR)}, s{sLO} offen{SC}
""")
    if PFP==2: pfp()
    if PFT:
        a(f"""
s_mul_i32 s{t1}, s{sW4}, {PFK*4}
v_mov_b32 v1, s{t1}
s_lshl_b32 s{t1}, s{t1}, 6
v_lshl_add_u32 v117, v{VL}, 2, s{t1}
ds_read_b32 v1, v1
ds_read_u16 v2, v117 offset:{WB}
v_mov_b32 v3, 0
s_waitcnt lgkmcnt(0)
v_cmp_lt_u32 vcc, v117, v1
s_or_b64 exec, vcc, 1
""")
        for k in range(PFT): a(f"buffer_load_dword v{QA+15}, v[2:3], {SR4(sP)}, 0 idxen offen offset:{3072+128*k}{SC}")
        a("s_mov_b64 exec, -1")
    a(f"""
s_mov_b32 s{sWU}, -1
s_or_b32 s{t1}, s{sNON}, 2
s_waitcnt vmcnt({(1 if PFP==2 else 0)+PFT})
KS_m:
v_or_b32 v2, 2, v116
v_cmp_ne_u32 vcc, s{t1}, v2
s_cbranch_vccz KS_n
s_sub_u32 s{sBUD}, s{sBUD}, 1
s_cbranch_scc1 KS_n
s_sleep {FSL}
s_mov_b64 exec, vcc
buffer_load_dword v116, v110, {SR4(sR)}, s{sLO} offen{SC}
s_mov_b64 exec, -1
s_waitcnt vmcnt(0)
s_branch KS_m
KS_n:
v_cmp_ne_u32 vcc, s{sNON}, v116
s_cbranch_vccz KS_o
ds_write_b32 v{VZ}, v{FA} offset:{mSLOW}
KS_o:
""")
    pt('flg')
    if PRIO: a("s_setprio 3")
    bar('b3')
    a(f"ds_read_b32 v1, v{VZ} offset:{mNT}\ns_waitcnt lgkmcnt(0)\nv_readfirstlane_b32 s{sNT}, v1")
    ranges()
    a("KF_J:")
    def rd_ga(off): a(f"ds_read_u16 v{GA0}, v{SB} offset:{GL+off}")
    def rd_gg(off): a(f"ds_read_u16 v{YA}, v{RB} offset:{GL+off}")
    ya=f"v_lshl_add_u32 v{EA}, v{YA}, 1, v{EC}\nv_add_u32 v{YA}, v{YA}, v{M4}"
    ry=f"ds_read_u16 v{VY}, v{YA} offset:{WB+2}"
    def rd_y(): a(ya); a(ry)
    def idx1(i): return f"ds_read_u16 v{IDX+2*i}, v{GA0} offset:{WB+4*i}"
    def rd_idx():
        for i in range(4): a(idx1(i))
    def dmai(i): return f"buffer_load_dwordx4 {P2(IDX+2*(i&3))}, {SR4(sP)}, {'0' if i<4 else 's'+str(s128)} idxen offen offset:{1024*(i&3)}{GSC} lds"
    def dma():
        for i in range(8):
            if i==0: a(f"s_mov_b32 m0, s{sBUF}\ns_nop 0")
            if i==4: a(f"s_add_u32 m0, s{sBUF}, 4096\ns_nop 0")
            a(dmai(i))
    def dma_h1(mid):
        a(f"s_add_u32 m0, s{sBUF}, 4096"); a(mid)
        for i in range(4,8): a(dmai(i))
        a(f"s_mov_b32 m0, s{sBUF}")
        rd_idx()
    def dma_idx():
        for i in range(4): a(dmai(i))
        dma_h1(ry)
    rd_b=f"ds_read_b128 {P4(B3+2)}, v{QAD}\nds_read_b128 {P4(B3+10)}, v{QAD} offset:512"
    rd_a3=f"ds_read_b64 {P2(A6)}, v{EA}\nds_read_b64 {P2(A6+2)}, v{VY} offset:{OH}\nds_read_b64 {P2(A6+4)}, v{EA}"
    def rd_a(t): return f"ds_read_b128 {P4(A+4*t)}, v{AR} offset:{4096*(t>>2)+(16*(t&1)+2*((t>>1)&1))*128}"
    def m4(z,q,j): return mfma4(z+4*j,A+16*(q>>1)+4*j+2*(q&1),None)
    rd_s=f"ds_read_b64 {P2(SS)}, v{SA2}\nds_read_b64 {P2(SS+2)}, v{SA2+1}"
    def AQ(q): return A6+2*(q&1)
    win=f"v_add3_u32 v{VY}, v{VY}, v{OH2}, s{sW8}\nv_lshl_add_u32 v{QAD}, s{sQ}, 6, v{QC}"
    rd_ga(0); rd_gg(0)
    a(f"""
ds_read_u16 v{WT}, v1 offset:{GL}
ds_read_b32 v{GP}, v{VZ} offset:{mSLOW}
s_waitcnt lgkmcnt(3)
""")
    rd_idx()
    a("s_waitcnt lgkmcnt(0)")
    dma()
    pt('d0')
    a(f"v_readlane_b32 s{sNF}, v{WT}, s{sCNT}\nv_readfirstlane_b32 s{t3}, v{GP}")
    rd_y(); rd_ga(16)
    if US: a(f"s_cmp_ge_u32 s{sWV}, 4\ns_cbranch_scc1 KF_u"); ugemm(0); a("KF_u:")
    a("s_waitcnt lgkmcnt(0)")
    rd_idx()
    a(f"""
s_cmp_lg_u32 s{t3}, 0
s_cbranch_scc1 KF_SLOW
s_lshr_b32 s{sNF}, s{sNF}, 8
v_subrev_u32 v2, s{sNF}, v{VL}
v_and_b32 v2, 15, v2
v_add_u32 v{DR}, s{sNF}, v2
v_lshlrev_b32 v2, 2, v{DR}
ds_read_b32 v{GP}, v2 offset:{BT}
s_and_b32 s{sQ}, s{sNF}, -2
s_lshl_b32 s{sQ}, s{sQ}, 3
s_sub_u32 s{sW8}, 0, s{sQ}
{win}
{rd_b}
{rd_a3}
""")
    rd_gg(16)
    a(f"""
v_lshrrev_b32 v{WT}, 9, v{WT}
v_lshlrev_b32 v{WT}, 4, v{WT}           ; 8*(w&~1)
v_mov_b32 v{SS}, 0
v_mov_b32 v{SS+1}, 0
v_mov_b32 v{SS+2}, 0
v_mov_b32 v{SS+3}, 0
v_mad_u32_u24 v{SA2}, v{SI2}, s{sT0}, v{SA2}
v_mad_u32_u24 v{SA2+1}, v{SI2+1}, s{sT0}, v{SA2+1}
s_add_u32 s{t1}, s{sT0}, s{sCNT}
s_lshl_b32 s{t1}, s{t1}, 7
s_add_u32 s{t2}, s{sWV}, 48
v_mov_b32 v1, s{t2}
{mfma32(ACC+16,SS,SS,None)}
s_waitcnt lgkmcnt(0)
""")
    rd_y(); rd_ga(32)
    a(f"""
v_cmp_gt_u32 vcc, s{t0}, v{GP}
v_cmp_gt_u32 {S2(t2)}, s{t1}, v{GP}
v_cmp_gt_u32 {S2(t0)}, s{sNN}, v{DR}
v_cndmask_b32 v{DR}, v{DR}, v1, vcc
s_cmp_lg_u64 vcc, 0
s_cselect_b32 s{sHEAD}, 1, 0
s_and_b64 vcc, {S2(t2)}, {S2(t0)}
v_lshlrev_b32 v1, 2, v{VL}
v_cndmask_b32 v{DR}, 56, v{DR}, vcc
v_lshrrev_b32 v2, 1, v{VL}
v_mul_u32_u24 v{DR}, {AS}, v{DR}
v_and_b32 v2, 24, v2
v_add_u32 v{DR}, v{DR}, v2
s_mul_i32 s{t0}, s{sNF}, {AS}
v_add_u32 v{eM0}, s{t0}, v1
s_sub_u32 s{sCNT}, s{sCNT}, 1
s_mov_b32 m0, s{sBUF}
""")
    pt('pre')
    a("s_waitcnt vmcnt(4)")
    pt('g0')
    for t in range(4): a(rd_a(t))
    a("s_waitcnt lgkmcnt(0)")
    for j in range(4): a(m4(Z[0],0,j))
    a("s_nop 3")
    a(mfma32(Z[0],AQ(0),B3,Z[0]))
    a("s_nop 9")
    pt('pro')
    def finals(qprev):
        for u in range(2): a(f"v_pk_mul_f32 {P2(NN+2*u)}, {P2(NN+2*u)}, {P2(DD+2*u)}")
        for u in range(2): a(f"v_cvt_pk_bf16_f32 v{GP+2*(qprev&1)+u}, v{NN+2*u}, v{NN+2*u+1}")
    def ex(zc,r): return f"v_exp_f32 v{EE+r}, v{zc+r}"
    def body(first):
        for q in range(4):
            zc=Z[q&1]; zn=Z[(q+1)&1]; qn=(q+1)&3
            pend=[0,1,2,3,8,9,10,11,4,5,12,13,6,7,14,15]
            f0=first and q==0
            if q==0: a(f"v_readlane_b32 s{sQ}, v{WT}, s{sCNT}")
            if q==3 or (first and q==1): a(f"s_waitcnt lgkmcnt(0)")
            for j in range(4):
                a(m4(zn,qn,j))
                a(f"v_rcp_f32 v{DD+j}, v{DD+j}" if not f0 else ex(zc,pend.pop(0)))
            agg=(q&1) and not (first and q==1)
            if agg:
                p=1 if q==1 else 0
                a(mfma32(ACC+16*p,GP,SS,None if first else ACC+16*p))
            for r in range(3 if SH3 else (4 if agg else 3)): a(ex(zc,pend.pop(0)))
            a(mfma32(zn,AQ(qn),B3+4*qn,zn))
            def bx():
                a(f"s_sub_u32 s{sW8}, 0, s{sQ}\ns_waitcnt vmcnt(0) lgkmcnt(0)\n{win}")
                rd_gg(32); rd_ga(48)
                a(rd_b); a(rd_a3); a(rd_s)
                for t in range(8): a(rd_a(t))
            if q==2 and XP==0: a(ex(zc,pend.pop(0))); bx()
            for r in range((4 if not (q==2 and XP==0) else 3)-SH3): a(ex(zc,pend.pop(0)))
            if q==2 and XP==1: bx()
            if f0:
                for i in range(4): a(dmai(i))
            if first and q==1: dma_h1("s_nop 0")
            if q==3:
                a(ya)
                if first: dma_idx()
                else:
                    a(f"s_cmp_gt_u32 s{sCNT}, 1\ns_cbranch_scc0 KF_lt")
                    dma_idx()
                    a("KF_lb:")
            if not f0: finals((q-1)&3)
            seq=[]
            for u in range(2): seq.append(f"v_pk_add_f32 {P2(DD+2*u)}, {P2(EE+8*u)}, 1.0 op_sel_hi:[1,0]")
            for m in range(1,4):
                for u in range(2):
                    src=(zc+8*u) if m==1 else NN+2*u
                    seq.append(f"v_pk_fma_f32 {P2(NN+2*u)}, {P2(src)}, {P2(EE+8*u+2*m)}, {P2(src)}")
                for u in range(2): seq.append(f"v_pk_fma_f32 {P2(NN+2*u)}, {P2(zc+8*u+2*m)}, {P2(DD+2*u)}, {P2(NN+2*u)}")
                for u in range(2): seq.append(f"v_pk_fma_f32 {P2(DD+2*u)}, {P2(DD+2*u)}, {P2(EE+8*u+2*m)}, {P2(DD+2*u)}")
            if len(pend) in (10,6): a(ex(zc,pend.pop(0)))
            slots={9:[0,1,2,3,4,6,8,10,12],8:[0,1,2,3,5,7,9,11],5:[1,4,7,10,12]}[len(pend)]
            for k,x in enumerate(seq):
                if f0 and k==H1P:
                    a("s_waitcnt vmcnt(4)")
                    for t in range(4,8): a(rd_a(t))
                a(x)
                if k in slots: a(ex(zc,pend.pop(0)))
            if q==2: a(f"v_pk_add_f32 {P2(RB)}, {P2(RB)}, {S2(sINC)}\nv_pk_add_f32 {P2(SA2)}, {P2(SA2)}, {P2(SI2)}")
    if PROF and 'dyn' in PTS: stamp(a,8); stamp(a,9,True)
    if PROF and 'clk' in PTS: stamp(a,6,True)
    n0=len(a.l)
    body(True)
    a("s_branch KF_LE\n.p2align 6\nKF_LOOP:")
    body(False)
    def keep(l):
        t=l.strip()
        if X&1 and t.startswith('buffer_load'): return False
        if X&2 and t.startswith('ds_read_b128 v[') and int(t.split('[')[1].split(':')[0])>=28: return False
        if X&8 and t.startswith('v_mfma'): return False
        if X&16 and t.startswith('v_pk_fma'): return False
        if X&32 and t.startswith('v_exp'): return False
        return True
    a.l[n0:]=[l for l in a.l[n0:] if keep(l)]
    import re
    if UNP:
        L=[]; cnt=0
        for l in a.l[n0:]:
            m=re.match(r"\s*v_pk_fma_f32 v\[(\d+):\d+\], v\[(\d+):\d+\], v\[(\d+):\d+\], v\[(\d+):\d+\]",l)
            if m:
                cnt+=1
                d,x,y,z=map(int,m.groups())
                if UNP==1 or (UNP==2 and cnt%2==0) or (UNP==3 and d>=DD):
                    for k in range(2):
                        L.append(f"    v_fmac_f32 v{d+k}, v{x+k}, v{y+k}" if d==z else f"    v_fma_f32 v{d+k}, v{x+k}, v{y+k}, v{z+k}")
                    continue
            L.append(l)
        a.l[n0:]=L
    if X&(128|256|512|1024):
        L=[]
        for l in a.l[n0:]:
            m=re.match(r"\s*v_mfma_f32_32x32x16_bf16 v\[(\d+):\d+\], v\[(\d+):\d+\], v\[(\d+):\d+\], (.*)",l)
            if m and int(m.group(1))<ACC:
                d,x,y=int(m.group(1)),int(m.group(2)),int(m.group(3))
                if X&128:
                    if y==ID0: L+=["    "+mfma16(d+4,x,ID0,None),"    "+mfma16(d+8,x,ID1,None)]
                    elif y==ID1: L.append("    "+mfma16(d+12,x,ID0,None))
                    else: L.append("    "+mfma16(d,x,y,None))
                if X&1024:
                    if y in (ID0,ID1):
                        o=0 if y==ID0 else 8
                        for k in range(2): L.append(f"    v_mfma_f32_4x4x4_16b_bf16 v[{d+o+4*k}:{d+o+4*k+3}], v[{x+2*k}:{x+2*k+1}], v[{ID0}:{ID0+1}], v[{d+o+4*k}:{d+o+4*k+3}]")
                    else: L.append(l)
                if X&256:
                    if y!=ID1: L.append(l)
                if X&512:
                    if y==ID0: L.append(f"    v_mfma_f32_32x32x64_f8f6f4 v[{d}:{d+15}], v[{x}:{x+7}], v[{ID0}:{ID0+7}], v[{d}:{d+15}]")
                    elif y!=ID1: L.append(l)
            else: L.append(l)
        a.l[n0:]=L
    a("KF_LE:")
    if PRIO: a(f"s_bitcmp1_b32 42, s{sCNT}\ns_cbranch_scc1 KF_pr\nKF_pb:")
    a(f"""
s_sub_u32 s{sCNT}, s{sCNT}, 1
s_cbranch_scc0 KF_LOOP
""")
    def loop_tails():
        a(f"KF_lt:\ns_cmp_eq_u32 s{sCNT}, s{sWU}\ns_cbranch_scc0 KF_lb")
        sdma(sA,32768,0,WV)
        a(f"""
s_branch KF_lb
KF_pr:
""")
        if PROF and 'dyn' in PTS:
            a("s_mov_b32 s90, s92\ns_mov_b32 s91, s93\ns_mov_b32 s92, s94\ns_mov_b32 s93, s95\ns_mov_b32 s94, s96\ns_mov_b32 s95, s97")
            stamp(a,8); stamp(a,9,True)
        a(f"""
s_setprio 2
s_cmp_eq_u32 s{sCNT}, 5
s_cbranch_scc1 KF_pb
s_setprio 1
s_cmp_eq_u32 s{sCNT}, 3
s_cbranch_scc1 KF_pb
s_setprio 0
s_branch KF_pb
""")
    a(f"""
s_lshl_b32 s{t0}, s{sW4}, 2
v_mov_b32 v1, s{t0}
s_cmp_ge_u32 s{sWV}, 4
s_cbranch_scc1 KF_w0
ds_write_b32 v1, v{TP} offset:{mWU}
s_branch KF_w1
KF_w0:
ds_read_b32 v2, v1 offset:{mWU}
s_waitcnt lgkmcnt(0)
v_cmp_eq_u32 vcc, 0, v2
s_cbranch_vccnz KF_w0
KF_w1:
""")
    def trw2(): trfrag(A,TP,0,2048,256); trfrag(A+16,TP,8,2048,256)
    trw2()
    for j in range(4): a(f"v_rcp_f32 v{DD+j}, v{DD+j}")
    a("s_nop 0")
    finals(3)
    a("s_nop 1")
    a(mfma32(ACC+16,GP,SS,ACC+16))
    pt('loop')
    if PROF and 'clk' in PTS: stamp(a,7,True)
    def epst():
        a(f"""
s_or_b32 s{t1}, s2, s{sWV}
s_cbranch_scc1 KF_e2
v_mov_b32 v2, s{sNON}
s_mov_b64 exec, 1
buffer_store_dword v2, v{VZ}, {SR4(sR)}, 0 offen{ESC}
s_mov_b64 exec, -1
KF_e2:
""")
    for p in range(2):
        for j in range(4):
            c=ACC+16*p+4*j
            a(f"v_cvt_pk_bf16_f32 v{c}, v{c}, v{c+1}\nv_cvt_pk_bf16_f32 v{c+1}, v{c+2}, v{c+3}")
        for j in range(4): a(f"ds_write_b64 v{DR}, {P2(ACC+16*p+4*j)} offset:{AGB+128*p+32*j}")
    a(f"""
s_cmp_eq_u32 s{sHEAD}, 0
""")
    pt('dmp')
    bar('be',"s_waitcnt vmcnt(0) lgkmcnt(0)")
    a(f"""
s_cbranch_scc1 KF_FIN
ds_read_b32 v4, v{eM0} offset:{AGB}
ds_read_b32 v5, v{eM1} offset:{AGB+48*AS}
""")
    a(f"""
s_waitcnt lgkmcnt(0)
v_lshlrev_b32 v6, 16, v4
v_and_b32 v7, 0xffff0000, v4
v_lshlrev_b32 v8, 16, v5
v_and_b32 v9, 0xffff0000, v5
v_pk_add_f32 v[6:7], v[6:7], v[8:9]
v_cvt_pk_bf16_f32 v6, v6, v7
ds_write_b32 v{eM0}, v6 offset:{AGB}
KF_FIN:
""")
    a(f"s_cmp_ge_u32 s{sWV}, 4")
    if EP_==0: epst()
    bar('mrg')
    def EXP(rs): return [f"v_exp_f32 v{EE+i}, v{UA+i}" for i in rs]
    def RCP(rs): return [f"v_rcp_f32 v{EE+i}, v{EE+i}" for i in rs]
    def FMA(rs): return [f"v_fma_f32 v{EE+i}, v{EE+i}, s{sL2E}, s{sL2E}" for i in rs]
    def FIN(tau):
        e=EE+8*tau; c=UA+8*tau
        return [f"v_pk_mul_f32 {P2(e+2*j)}, {P2(e+2*j)}, {P2(c+2*j)}" for j in range(4)]+[f"v_cvt_pk_bf16_f32 v{e+j}, v{e+2*j}, v{e+2*j+1}" for j in range(4)]+[f"ds_write_b128 v{eOW}, {P4(e)} offset:{tau*4096}"]
    def PFM(rs): return [f"v_pk_fma_f32 {P2(EE+i)}, {P2(EE+i)}, {S2(sL2E)}, {S2(sL2E)}" for i in rs]
    XE=Z[0]
    for tau in range(2):
        for s_ in range(4): a(f"ds_read_b128 {P4(XE+16*tau+4*s_)}, v{eFA} offset:{AGB+tau*16*AS+64*s_}")
    for k,(x,y) in enumerate(zip(um(0,0,0,XE,True,A),um(0,0,1,XE,True,A))): a(f"s_waitcnt lgkmcnt({7-k})"); a(x); a(y)
    a("s_waitcnt lgkmcnt(0)"); pt('e1'); a("s_cbranch_scc1 KF_eg")
    for r in range(2):
        if r==1: a("KF_eg:")
        for x,y in zip(um(r,1,0,XE+16,True,A),um(r,1,1,XE+16,True,A)): a(x); a(y)
        pt('e2')
        if r==0:
            for x in EXP(range(8))+FMA(range(8))+RCP(range(8))+EXP(range(8,16))+FIN(0)+PFM(range(8,16,2))+RCP(range(8,16))+["s_nop 0"]+FIN(1): a(x)
            a("s_branch KF_ej")
        else:
            for x in EXP(list(range(8))+[8,12])+PFM((0,2,4,6,8,12))+RCP(list(range(8))+[8,12])+FIN(0): a(x)
            a(f"""
v_mul_f32 v{EE+8}, v{EE+8}, v{UA+8}
v_mul_f32 v{EE+12}, v{EE+12}, v{UA+12}
s_mov_b64 exec, 0xffff
v_cvt_pk_bf16_f32 v{EE+8}, v{EE+8}, v{EE+12}
ds_write_b16 v{eN48}, v{EE+8}
ds_write_b16_d16_hi v{eN48}, v{EE+8} offset:8
s_mov_b64 exec, -1
""")
    a(f"KF_ej:\ns_cmp_lt_u32 s{sWV}, 5")
    pt('e3')
    bar('sil')
    a(f"""
ds_read_b128 {P4(A)}, v{eRD}
s_cbranch_scc0 KF_e1
ds_read_b128 {P4(A+4)}, v{eRD} offset:8192
s_mov_b64 exec, {S2(sE2)}
s_waitcnt lgkmcnt(0)
buffer_store_dwordx4 {P4(A+4)}, v{eST}, {SR4(sX)}, s{sE1} offen{OSC}
s_mov_b64 exec, -1
KF_e1:
s_waitcnt lgkmcnt(0)
buffer_store_dwordx4 {P4(A)}, v{eST}, {SR4(sX)}, s{sE0} offen{OSC}
""")
    pt('sto')
    a(f"""
""")
    if PROF: a("s_waitcnt vmcnt(0)")
    stamp(a,10); stamp(a,11,True)
    stamp_out(a,1,sWV)
    a("KF_END:\ns_endpgm")
    loop_tails()
    hist_retry(8,"KT_h",True)
    a("KF_CEND:")
    SV=ACC; AGs=SV+8; RS_=SV+16
    a(f"""
KF_SLOW:
s_setprio 0
s_cmp_ge_u32 s{sWV}, 4
s_cselect_b32 s{sTOT}, 0, s{sTOT}
v_mov_b32 v1, s{sTOT}
ds_max_u32 v{VZ}, v1 offset:{mMX}
v_mov_b32 v{SS}, 0
v_mov_b32 v{SS+1}, 0
v_mov_b32 v{SS+2}, 0
v_mov_b32 v{SS+3}, 0
s_mov_b32 s{sLO}, 0
s_mov_b32 s{sLB}, s{sBUF}
s_sub_u32 s{t0}, s{sWV}, s{sT0}
s_lshl_b32 s{t0}, s{t0}, 4
v_add_u32 v{SV+4}, s{t0}, v{RB}
v_add_u32 v{SV+5}, s{t0}, v{SB}
s_lshl_b32 s{t0}, s{sWV}, 4
v_sub_u32 v{SV+6}, s{t0}, v{OHC}
v_and_b32 v{SV+7}, 28, v{VL}
v_and_b32 v1, 3, v{VL}
v_lshlrev_b32 v1, 2, v1
v_lshl_or_b32 v{SV+7}, v{SV+7}, 3, v1
v_lshlrev_b32 v1, 4, v0
""")
    for j in range(3): a(f"ds_write_b128 v1, {P4(SS)} offset:{AGG+j*8192}")
    a(f"""
v_lshlrev_b32 v1, 4, v{VL}
ds_write_b128 v1, {P4(SS)} offset:{AGG+3*8192}
s_waitcnt vmcnt(0) lgkmcnt(0)
s_barrier
ds_read_b32 v1, v{VZ} offset:{mMX}
s_waitcnt lgkmcnt(0)
v_readfirstlane_b32 s{sRND}, v1
KF_SR:
s_cmp_lt_u32 s{sLO}, s{sRND}
s_cbranch_scc0 KF_SE
s_barrier
v_lshlrev_b32 v1, 2, v{VL}
v_lshlrev_b32 v2, 8, v{VL}
ds_write_b32 v1, v2
s_waitcnt lgkmcnt(0)
s_barrier
s_cmp_ge_u32 s{sWV}, 4
s_cbranch_scc1 KF_S1
s_movk_i32 s{t3}, 256
""")
    expand("KF_x")
    a(f"s_sub_u32 s{t1}, s{sTOT}, s{sLO}")
    reclist(4)
    recload(4,"KF_rl")
    for i in range(4): a(f"s_mov_b64 {S2(sM+8+2*i)}, {S2(sM+2*i)}")
    hist(4,"KF_h",0,False)
    a("s_waitcnt lgkmcnt(0)")
    for i in range(4):
        a(f"""
v_mov_b32 v{RS_+4*i}, v{RC+4*i}
v_mov_b32 v{RS_+4*i+1}, v{RC+4*i+1}
v_mov_b32 v{RS_+4*i+2}, v{RC+4*i+2}
v_lshlrev_b32 v1, 6, v{RC+4*i+3}
v_sub_u32 v1, v{RK+i}, v1
v_cndmask_b32 v{RS_+4*i+3}, -1, v1, {S2(sM+8+2*i)}
""")
    a(f"""
KF_S1:
s_mov_b32 s{sHEAD}, 0                    ; 256*k
KF_SK:
s_waitcnt lgkmcnt(0)
s_barrier
s_cmp_ge_u32 s{sWV}, 4
s_cbranch_scc1 KF_S2
s_mov_b32 s{t1}, {EB}
""")
    for i in range(4):
        a(f"""
v_subrev_u32 v1, s{sHEAD}, v{RS_+4*i+3}
v_lshrrev_b32 v2, 19, v{RS_+4*i+2}
v_lshl_add_u32 v2, v2, 8, v1
v_lshl_add_u32 v3, v2, 1, s{t1}
v_cmpx_gt_u32 vcc, 0x100, v1
ds_write_b32 v2, v{RS_+4*i+2} offset:{WB}
ds_write_b64 v3, {P2(RS_+4*i)}
s_mov_b64 exec, -1
""")
    a("KF_S2:")
    scan(True)
    a(f"s_cmp_lg_u64 {S2(t2)}, 0\ns_cselect_b32 s{sFLAG}, 1, 0")
    fill("KFs",True,8)
    a(f"""
s_add_u32 s{sNT}, s{t0}, 127
s_lshr_b32 s{sNT}, s{sNT}, 7
s_waitcnt lgkmcnt(0)
s_barrier
v_mov_b32 v{RB}, v{SV+4}
v_mov_b32 v{SB}, v{SV+5}
v_mov_b32 v{SV+12}, v{SV+6}
s_mov_b32 s{sI}, s{sWV}
KF_SL:
s_cmp_lt_u32 s{sI}, s{sNT}
s_cbranch_scc0 KF_SN
""")
    rd_ga(0); rd_gg(0)
    for j in range(4): a(f"ds_read_u16 v{AGs+j}, v{SV+12} offset:{GL+2*j}")
    a("s_waitcnt lgkmcnt(0)")
    rd_y(); rd_idx()
    a("s_waitcnt lgkmcnt(0)")
    dma()
    for j in range(4): a(f"v_lshrrev_b32 v{AGs+j}, 8, v{AGs+j}")
    a(f"""
v_readfirstlane_b32 s{sQ}, v{AGs}
s_nop 3
s_and_b32 s{sQ}, s{sQ}, -2
s_lshl_b32 s{sQ}, s{sQ}, 3
s_sub_u32 s{sW8}, 0, s{sQ}
{win}
{rd_b}
{rd_a3}
""")
    for j in range(4): a(f"v_lshl_add_u32 v{AGs+j}, v{AGs+j}, 9, v{SV+7}")
    a("s_waitcnt vmcnt(0) lgkmcnt(0)")
    for t in range(8): a(rd_a(t))
    a("s_waitcnt lgkmcnt(0)")
    for q in range(4):
        z=Z[0]
        for j in range(4): a(m4(z,q,j))
        a("s_nop 3"); a(mfma32(z,AQ(q),B3+4*q,z))
        a("s_nop 15")
        for r in range(16): a(f"v_exp_f32 v{EE+r}, v{z+r}")
        for r in range(16): a(f"v_add_f32 v{EE+r}, 1.0, v{EE+r}")
        for r in range(16): a(f"v_rcp_f32 v{EE+r}, v{EE+r}")
        for m in range(4):
            for u in range(2):
                for par in range(2):
                    r=8*u+2*m+par; g=GP+2*u+par
                    a(f"v_mul_f32 v{g}, v{z+r}, v{EE+r}" if m==0 else f"v_fmac_f32 v{g}, v{z+r}, v{EE+r}")
        for j in range(4): a(f"ds_add_f32 v{AGs+j}, v{GP+j} offset:{AGG+256*(q>>1)+16*(q&1)}")
        a("s_waitcnt lgkmcnt(0)")
    a(f"""
v_add_u32 v{SB}, 128, v{SB}
v_add_u32 v{RB}, 128, v{RB}
v_add_u32 v{SV+12}, 128, v{SV+12}
s_add_u32 s{sI}, s{sI}, 8
s_branch KF_SL
KF_SN:
s_add_u32 s{sHEAD}, s{sHEAD}, 256
s_cmp_lg_u32 s{sFLAG}, 0
s_cbranch_scc1 KF_SK
s_add_u32 s{sLO}, s{sLO}, 256
s_branch KF_SR
KF_SE:
s_cmp_ge_u32 s{sWV}, 4
s_cbranch_scc1 KF_SE2
""")
    sdma(sA,32768,0,WV)
    a(f"""
KF_SE2:
v_lshlrev_b32 v1, 4, v0
v_lshrrev_b32 v2, 5, v0
s_waitcnt vmcnt(0) lgkmcnt(0)
s_barrier
""")
    for j in range(4): a(f"ds_read_b128 {P4(A+4*j)}, v1 offset:{AGG+j*8192}")
    a(f"""
v_mul_u32_u24 v2, {AS}, v2
v_and_b32 v3, 31, v0
v_lshl_add_u32 v4, v3, 3, v2
s_waitcnt lgkmcnt(0)
s_barrier
""")
    for j in range(4):
        a(f"v_cvt_pk_bf16_f32 v{A+4*j}, v{A+4*j}, v{A+4*j+1}\nv_cvt_pk_bf16_f32 v{A+4*j+1}, v{A+4*j+2}, v{A+4*j+3}")
        a(f"ds_write_b64 v4, {P2(A+4*j)} offset:{AGB+j*16*AS}")
    trw2()
    a("s_branch KF_FIN")
    hist_retry(4,"KF_h",False)
    return a.text()

DOC='''; ---------------------------------------------------------------------------------------------
; ---------------------------------------------------------------------------------------------
'''
if __name__=='__main__':
    import sys
    nm='standalone__mpnn_edge_mlp__graph_kernel'
    hdr=open('standalone__mpnn_edge_mlp__graph.s.ref').read().split('; Override')[0]
    out=hdr+(f"; @launch kernel={nm} grid=(256,1,1) block=(512,1,1) lds={KF_LDS}\n" if os.environ.get('LISTF') else f"; @launch grid=(256,1,1) block=(512,1,1) lds={KF_LDS}\n")
    out+=DOC+'.amdgcn_target "amdgcn-amd-amdhsa--gfx950"\n.text\n'
    out+=f".globl {nm}\n.p2align 8\n.type {nm},@function\n"+gen_kf(nm)
    out+='.section .rodata,"a"\n.p2align 6\n'+kd(nm,256)
    open(sys.argv[1],'w').write(out)
```

```python
from common import *
X=int(os.environ.get('X','0'))
PRIO=int(os.environ.get('PRIO','1'))
DSP=[int(c,36) for c in os.environ.get('DSP','00000000')]
def EV(n,d): return int(os.environ.get(n,d))
TPOS=EV('TPOS',6); PFP=EV('PFP',3); XORD=EV('XORD',1); WUI=EV('WUI',2); FLP=EV('FLP',1); FSL=EV('FSL',8); TE=1; MO=EV("MO",0); Y=EV("Y",0); GU=EV("GU",0); GQP=EV("GQP",0); PL=EV("PL",8); PT=[int(c) for c in os.environ.get("PT","531")]; WG_=EV("WG",3); GPN=EV("GPN",1); N4=EV("N4",0); NW=EV("NW",1); RWI=EV("RWI",0); US=EV("US",0); TP_=EV("TP",7); SWU=EV("SWU",0); EO=EV("EO",1); NS=EV("NS",5); NE=EV("NE",3); FR=EV('FR',8); FS=EV('FS',2); W1N=EV('W1N',5); GP_=EV('GP',1); NT=os.environ.get('NT',''); CLM=EV('CLM',0); CLW=EV('CLW',1); SLP=EV('SLP',1); H1P=EV('H1P',10); SH3=EV('SH3',0); EP_=EV('EP',1); ESC=os.environ.get('ESC',''); PERM=EV('PERM',0); W2N=EV('W2N',8); UL=EV('UL',0); WU1L=EV('WU1L',0); W1E=EV('W1E',0); ZL=EV('ZL',0); FST=EV('FST',0); UNP=EV('UNP',0); TLB=EV('TLB',0); DBGP=EV('DBGP',0); ALN=EV('ALN',0); PFT=EV('PFT',1); PFK=EV('PFK',7); PF0=EV('PF0',0); PFN=EV('PFN',16); XP=EV('XP',0); PFI=EV('PFI',0); SWW=EV('SWW',1)
PTS=os.environ.get('PTS','b1,bS,tp,pfl,rl,b2,b3,pro').split(',')
SC=os.environ.get('LSC',' sc1')
SSC=os.environ.get('SSC',' sc1')
OSC=os.environ.get('OSC',' sc1')
GSC=os.environ.get('GSC',' sc1')
NPROD=250; EP=1600; RST=EP*16
PB0=0x1000000 if PROF else 0
RSL=0x690000; NRS=EV('NRS',8); F_TBL=PB0; F_REC=PB0+0x40000
PSL=0x320000; F_P=PB0+NRS*RSL+0x1000; F_FLG=F_P-0x1000+0x312000; F_SIZE=0x10000000
NSL=(F_SIZE-F_P+0x1000)//PSL
assert 0x40000+256*RST<=RSL
CNT=0; MISC=256; OH=400; GL=928; BT=1872; STB=2144; RS=944
mSLOW=MISC; mS=MISC+4; mGX=MISC+8; mGP=MISC+12; mC3=MISC+16; mPD=MISC+20; mSL=MISC+24; mMX=MISC+28; mPI=MISC+32; mH=MISC+36; mNT=MISC+40; mW=MISC+44; mE=MISC+48; mEM=MISC+52; mNO=MISC+56; mPS=MISC+60; mWU=MISC+64
AGB=17408
W3L=AGB+56*256
Q2=AGB+16384; QS=52*128
S1=Q2; ERAW=Q2+12800
WB=Q2+4*QS; NULLG=49*256; EB=WB+NULLG+16
HIST=WB; PSC=WB+2048
GBUF=98304
KF_LDS=GBUF+65536
assert EB+2*NULLG+32<=GBUF and STB+16*RS<=AGB
AGG=STB
ONE2=0x3F803F80
NULLW2=0xFFFF|(512<<16)
CAPT=58
ID0=4; ID1=8; B3=12; A=28; Z=[60,76]; A3=92; EE=96; NN=112; DD=116; GP=120; SS=124
IDX=128; AR=144; RB=152; SB=153; SA=154; VY=155; OHC=156; VL=157; WT=158; DR=159
ACC=160; WU2=192; UA=208; WF=160; WU1=176; QA=224; RC=96; XF=28; GA=192
TP=143; WV=151; A6=244; QAD=250; QC=145; SA2=146; SI2=148; OH2=150; GA0=232; YA=234; EA=235; M4=236; EC=237; VZ=238; PO=92; TRU=240; TD=241; TC=242; TO=243; RK=244; FA=252
sP=24; sX=28; sA=32; sR=36; sM=40
sWV=56; sK=57; sNN=58; sI=59; sNT=60; sBUF=61; sQ=62; sW8=63; sCNT=64; sT0=65
sL2E=66; sINC=68; sRND=70; sTOT=71; sNON=72; sBUD=73; sW4=74; sLB=75
sWU=3; sW4K=22; sPO=23; sRO=59; sFLAG=76; sLO=77; sMA=78; sQ2=80; s128=81; sHEAD=82; sNF=83
t0,t1,t2,t3=84,85,86,87
BUDGET=400000
sNB=2 if PERM else sK

def mfma32(d,x,y,c): return f"v_mfma_f32_32x32x16_bf16 v[{d}:{d+15}], v[{x}:{x+3}], v[{y}:{y+3}], "+("0" if c is None else f"v[{c}:{c+15}]")
def mfma16(d,x,y,c): return f"v_mfma_f32_16x16x32_bf16 v[{d}:{d+3}], v[{x}:{x+3}], v[{y}:{y+3}], "+("0" if c is None else f"v[{c}:{c+3}]")
def mfma4(d,x,c): return f"v_mfma_f32_4x4x4_16b_bf16 v[{d}:{d+3}], v[{x}:{x+1}], v[{ID0}:{ID0+1}], "+("0" if c is None else f"v[{c}:{c+3}]")
def P2(r): return f"v[{r}:{r+1}]"
def P4(r): return f"v[{r}:{r+3}]"
def S2(r): return f"s[{r}:{r+1}]"
def SR4(r): return f"s[{r}:{r+3}]"

def gen_kf(name):
    a=Asm()
    def pt(n):
        if PROF and n in PTS: stamp(a,2+PTS.index(n))
    def ret(n):
        if PROF and n in PTS: a(f"s_sub_u32 s{90+PTS.index(n)}, {BUDGET}, s{sBUD}\ns_mul_i32 s{90+PTS.index(n)}, s{90+PTS.index(n)}, 100")
    def bar(n,w="s_waitcnt lgkmcnt(0)"):
        a(w+"\ns_barrier"); pt(n)
    def gsync(n,lab,off,target,va,vt,pre=None):
        if pre: a(pre)
        a(f"""
v_mov_b32 v{vt}, 1
s_mov_b64 exec, 1
ds_add_u32 v{va}, v{vt} offset:{off}
s_mov_b64 exec, -1
{lab}:
ds_read_b32 v{vt}, v{va} offset:{off}
s_waitcnt lgkmcnt(0)
v_readfirstlane_b32 s{t1}, v{vt}
s_and_b32 s{t1}, s{t1}, 255
s_cmp_lt_u32 s{t1}, {target}
s_cbranch_scc1 {lab}
""")
        pt(n)
    def gwait(lab,off,target,va,vt):
        if SLP: a(f"s_branch {lab}_\n{lab}:\ns_sleep {SLP}\n{lab}_:")
        else: a(f"{lab}:")
        a(f"""
ds_read_b32 v{vt}, v{va} offset:{off}
s_waitcnt lgkmcnt(0)
v_readfirstlane_b32 s{t1}, v{vt}
s_and_b32 s{t1}, s{t1}, 255
s_cmp_lt_u32 s{t1}, {target}
s_cbranch_scc1 {lab}
""")
    def consts():
        srd(a,sP,20,N,off=F_P-3072,stride=256)
        srd(a,sR,20,F_SIZE)
        a(f"""
s_cmp_lt_u32 s{sNB}, {N-256*48}
s_cselect_b32 s{sNN}, 49, 48
s_mov_b32 s{sL2E}, {hex(LOG2E_NEG)}
s_mov_b32 s{sL2E+1}, {hex(LOG2E_NEG)}
s_mov_b32 s{sINC}, 16
s_mov_b32 s{sINC+1}, 16
s_mov_b32 s{sMA}, 0x0000ffff
s_mov_b32 s{sMA+1}, 0x0000ffff
s_mov_b32 s{sQ2}, {Q2}
s_mov_b32 s{sBUD}, {BUDGET}
v_lshrrev_b32 v2, 5, v{VL}              ; h
; g = 4 b2 + 2 b4 + b0 ; m = 2 b3 + b1 ; slot = 16 b2 + 4 m + (g&3)
v_lshrrev_b32 v1, 3, v{VL}
v_and_b32 v1, 2, v1
v_and_or_b32 v1, v{VL}, 5, v1           ; g
v_lshlrev_b32 v{RB}, 1, v1
v_lshlrev_b32 v3, 1, v{VL}
v_and_b32 v3, 4, v3
v_and_or_b32 v{M4}, v{VL}, 8, v3        ; 4m
v_lshlrev_b32 v{EC}, 1, v{M4}
v_add_u32 v{EC}, {EB}, v{EC}
v_and_b32 v{WT}, 15, v{VL}              ; n / c16
v_lshlrev_b32 v3, 1, v3
v_and_or_b32 v3, v{VL}, 1, v3
v_lshl_or_b32 v3, v2, 2, v3
v_lshl_add_u32 v{AR}, v3, 7, s{sBUF}
v_bfe_u32 v1, v{VL}, 1, 1
v_bfe_u32 v3, v{VL}, 2, 3
v_xor_b32 v1, v1, v3
v_lshl_add_u32 v{AR}, v1, 4, v{AR}
v_mul_i32_i24 v{OHC}, -8, v2
v_mul_u32_u24 v{SA}, {RS}, v{WT}
v_and_b32 v1, 1, v{VL}
v_lshlrev_b32 v1, 4, v1
v_mov_b32 v3, 0x3f80
v_lshlrev_b32 v1, v1, v3
""")
        a(f"s_mov_b32 vcc_lo, 0x33333333\ns_mov_b32 vcc_hi, 0x33333333\nv_cndmask_b32 v{ID0}, 0, v1, vcc\nv_sub_u32 v{ID0+1}, v1, v{ID0}")
        a(f"""
v_lshrrev_b32 v2, 4, v{VL}              ; a / g
v_lshrrev_b32 v{SB}, 2, v{VL}
v_and_b32 v{SB}, 14, v{SB}
v_and_b32 v1, 7, v{VL}
v_lshlrev_b32 v1, 4, v1
s_movk_i32 s{s128}, 128
""")
        for i in range(4): a(f"v_xor_b32 v{IDX+2*i+1}, {(i&1)*16+3072-1024*i}, v1")
        a(f"v_xor_b32 v3, v2, v{WT}\nv_lshlrev_b32 v3, 4, v3\nv_lshl_add_u32 v3, v{WT}, 8, v3\nv_add_u32 v{FA}, {AGB}, v3")
        for s in range(1,4): a(f"v_xor_b32 v{FA+s}, {64*s}, v{FA}")
        a(f"""
s_lshl_b32 s{t0}, s{sW4}, 13
s_add_u32 s{t0}, s{t0}, {GBUF}
s_lshr_b32 s{t1}, s{sWV}, 2
v_lshrrev_b32 v1, 2, v{WT}
v_lshl_add_u32 v1, v2, 3, v1
v_lshl_add_u32 v{DR}, v1, 6, s{t0}
v_xor_b32 v2, s{t1}, v2
v_and_b32 v2, 1, v2
v_and_b32 v3, 3, v{VL}
v_lshl_add_u32 v{TRU}, v2, 5, v{DR}
v_lshl_add_u32 v{TRU}, v3, 3, v{TRU}
v_lshrrev_b32 v2, 3, v{VL}
v_and_b32 v2, 2, v2
v_xor_b32 v2, v2, v3
v_lshl_add_u32 v{TP}, v2, 4, v{DR}
""")
    def slot():
        a(f"""
s_mul_i32 s{sPO}, s{sNON}, 0x9E3779B1
s_mul_i32 s{sRO}, s{sPO}, 0x85EBCA6B
s_mul_hi_u32 s{sPO}, s{sPO}, {NSL}
s_mul_hi_u32 s{sRO}, s{sRO}, {NRS}
s_mul_i32 s{sPO}, s{sPO}, {PSL}
s_mul_i32 s{sRO}, s{sRO}, {RSL}
s_add_u32 s{sP}, s{sP}, s{sPO}
s_addc_u32 s{sP+1}, s{sP+1}, 0
""")
    def vyc(VY=VY):
        a(f"""
v_lshrrev_b32 v1, 4, v{VL}
v_and_b32 v1, 2, v1
v_xor_b32 v1, v1, v{VL}
v_and_b32 v1, 3, v1
v_lshlrev_b32 v1, 4, v1
v_lshrrev_b32 v2, 2, v{VL}
v_lshl_or_b32 v{VY}, v2, 8, v1
""")
    def trfrag(dst,addr,off,ks,hs):
        for s in range(4):
            a(f"ds_read_b64_tr_b16 {P2(dst+4*s)}, v{addr} offset:{off+s*ks}\nds_read_b64_tr_b16 {P2(dst+4*s+2)}, v{addr} offset:{off+s*ks+hs}")
    def tru(dst,off): trfrag(dst,TRU,off,2048,256)
    def sdma(sr,moff,loff=0,v=VY,js=range(8)):
        a(f"s_lshl_b32 s{t0}, s{sW4}, 6")
        for j in js:
            a(f"s_add_u32 m0, s{sBUF}, {loff+j*1024}\ns_add_u32 s{t1}, s{t0}, {moff+j*4096}\nbuffer_load_dwordx4 v{v}, {SR4(sr)}, s{t1} offen lds")
    def xfrags(Ts):
        for T in Ts:
            for s in range(4): a(f"ds_read_b128 {P4(XF+16*T+4*s)}, v{FA+s} offset:{T*4096}")
    def trw(): trfrag(WF,TP,32768,2048,256); trfrag(WF+16,TP,32768+8,2048,256)
    def um(r,tau,i,xf,acc,WF=WF):
        L=[]
        for s in range(4):
            w,x=WF+16*i+4*s,xf+4*s
            d=UA+8*tau+4*i
            L.append(mfma16(d,*((x,w) if (r,tau)==(1,1) else (w,x)),d if (acc or s) else None))
        return L
    def ugemm(r):
        for tau in range(2):
            for i in range(2):
                for x in um(r,tau,i,XF+16*(2*r+tau),False): a(x)
        a("s_nop 4")
        for j in ((0,2,4,6,8,10,12,14) if r==0 else (0,2,4,6,8,12)): a(f"v_pk_mul_f32 {P2(UA+j)}, {P2(UA+j)}, {S2(sL2E)}")
    def w3rd():
        a(f"v_lshlrev_b32 v1, 3, v{VL}")
        for q in range(4): a(f"ds_read_b64 {P2(B3+4*q+2*(q&1))}, v1 offset:{W3L+q*512}")
    F=A3
    def scan(slow):
        a(f"""
v_lshlrev_b32 v1, 2, v{VL}
ds_read_b32 v{F}, v1
v_cmp_gt_u32 vcc, s{sNN}, v{VL}
v_lshlrev_b32 v{F+1}, 8, v{VL}
s_waitcnt lgkmcnt(0)
v_sub_u32 v{QA}, v{F}, v{F+1}
""")
        if slow:
            a(f"""
s_movk_i32 s{t1}, 256
v_subrev_u32 v{QA}, s{sHEAD}, v{QA}
v_cmp_lt_i32 {S2(t2)}, s{t1}, v{QA}
v_med3_i32 v{QA}, v{QA}, 0, s{t1}
v_add_u32 v{F}, v{F+1}, v{QA}
""")
        a(f"""
v_add_u32 v3, 12, v{QA}
v_and_b32 v3, -16, v3
v_max_u32 v3, 80, v3
v_cndmask_b32 v3, 0, v3, vcc
v_mov_b32 v2, v3
""")
        dpp_scan(a,"v_add_u32",[2])
        a(f"""
v_readlane_b32 s{t0}, v2, 63
v_sub_u32 v2, v2, v3
""")
    def fill(lab,slow,nw):
        a(f"""
s_lshl_b32 s{t1}, s{sWV}, 4
v_add_u32 v{QA+1}, s{t1}, v2
v_lshrrev_b32 v{QA+1}, 3, v{QA+1}       ; 2*(G0+w)
v_add_u32 v{F+1}, s{t1}, v{F+1}         ; 256n+16w
v_subrev_u32 v{QA+2}, s{t1}, v3         ; g16-16w
""")
        if not slow: a(f"v_add_u32 v{QA+3}, v{QA+1}, v{SA}\nv_mov_b32 v{F+3}, 0x3f80\nds_write_b32 v1, v2 offset:{BT}")
        for k in range(16//nw):
            a(f"v_cmpx_lt_i32 vcc, {16*nw*k}, v{QA+2}\nds_write_b16 v{QA+1}, v{F+1+(k&1)} offset:{GL+2*nw*k}")
            if k+1<16//nw: a(f"v_add_u32 v{F+1+((k+1)&1)}, {16*nw}, v{F+1+(k&1)}")
            if not slow: a(f"ds_write_b16 v{QA+3}, v{F+3} offset:{STB+2*nw*k}")
        a(f"""
s_mov_b64 exec, -1
s_lshl_b32 s{t1}, s{sWV}, 2
v_sub_u32 v{QA+2}, v3, v{QA}
v_add_u32 v{F}, s{t1}, v{F}
v_subrev_u32 v{QA+2}, s{t1}, v{QA+2}    ; pad4 - 4w
s_mov_b32 s{t1}, {EB}
v_mov_b32 v{QA+4}, 0
v_mov_b32 v{QA+5}, 0
v_mov_b32 v{QA+6}, {hex(NULLW2)}
v_lshl_add_u32 v{QA+7}, v{F}, 1, s{t1}
""")
        for k in range(-(-20//nw)):
            a(f"v_cmpx_lt_i32 vcc, {4*nw*k}, v{QA+2}")
            if k==1: a(f"s_cbranch_vccz {lab}p")
            a(f"ds_write_b32 v{F}, v{QA+6} offset:{WB+4*nw*k}\nds_write_b64 v{QA+7}, {P2(QA+4)} offset:{8*nw*k}")
        a(f"""
{lab}p:
s_mov_b64 exec, -1
s_cmp_eq_u32 s{sWV}, 3
s_cbranch_scc0 {lab}q
s_lshr_b32 s{t1}, s{t0}, 3
v_lshl_add_u32 v{QA+1}, v{VL}, 1, s{t1}
v_mov_b32 v{QA+2}, {NULLG}
v_add_u32 v{QA+3}, {NULLG}, v1
v_lshlrev_b32 v{QA+7}, 1, v1
v_add_u32 v{QA+7}, {EB+2*NULLG}, v{QA+7}
s_mov_b64 exec, 0xff
ds_write_b16 v{QA+1}, v{QA+2} offset:{GL}
s_mov_b64 exec, 15
ds_write_b32 v{QA+3}, v{QA+6} offset:{WB}
ds_write_b64 v{QA+7}, {P2(QA+4)}
s_mov_b64 exec, -1
{lab}q:
""")
    def expand(lab,win=True):
        if win: a(f"""
v_subrev_u32 v1, s{sLO}, v{TO}
v_add_u32 v2, v1, v{TC}
v_med3_i32 v1, v1, 0, s{t3}
v_med3_i32 v2, v2, 0, s{t3}
v_sub_u32 v2, v2, v1
v_lshl_add_u32 v1, v1, 2, s{sLB}
""")
        a(f"{lab}:")
        for j in range(16):
            a(f"v_cmpx_lt_i32 vcc, {j}, v2")
            if j==13: a(f"s_cbranch_vccz {lab}z")
            a(f"ds_write_b32 v1, v{TD} offset:{4*j}")
        a(f"""
v_add_u32 v2, -16, v2
v_add_u32 v1, 64, v1
v_cmp_lt_i32 vcc, 0, v2
s_cmp_lg_u64 vcc, 0
s_cbranch_scc1 {lab}
{lab}z:
s_mov_b64 exec, -1
""")
    def rl1(i): return f"buffer_load_dwordx4 {P4(RC+4*i)}, v{RK+i}, {SR4(sR)}, {'0' if i<4 else 's'+str(sQ)} offen offset:{1024*(i&3)}{SC}"
    def reclist(ns):
        a(f"v_lshl_add_u32 v1, v{VL}, 2, s{sLB}")
        for i in reversed(range(ns)): a(f"ds_read_b32 v{RK+i}, v1 offset:{256*i}")
        a(f"v_add_u32 v2, s{sLO}, v{VL}\nv_lshlrev_b32 v2, 4, v2\ns_movk_i32 s{sQ}, 4096")
        for i in range(ns):
            a(f"v_cmp_gt_i32 {S2(sM+2*i)}, s{t1}, v{VL}\ns_sub_u32 s{t1}, s{t1}, 64")
        a("s_waitcnt lgkmcnt(0)")
        for i in range(ns): a(f"v_add_u32 v{RK+i}, v{RK+i}, v2")
    def recload(ns,lab):
        for i in reversed(range(ns)):
            a(f"s_mov_b64 exec, {S2(sM+2*i)}\ns_cbranch_execz {lab}{i}\n{rl1(i)}\n{lab}{i}:")
        a("s_mov_b64 exec, -1")
    def hist(ns,lab,extra,scat):
        a(f"v_mov_b32 v1, 4\ns_mov_b32 s{sW8}, {EB}\n{lab}p:")
        def gm(i): return S2(t0+2*(i&1))
        def sc(i,n):
            a(f"""
s_mov_b64 exec, {gm(i)}
s_waitcnt lgkmcnt({n})
v_min_u32 v{RK+i}, {NULLG-4}, v{RK+i}
v_lshl_add_u32 v{RC+4*i+3}, v{RK+i}, 1, s{sW8}
ds_write_b32 v{RK+i}, v{RC+4*i+2} offset:{WB}
ds_write_b64 v{RC+4*i+3}, {P2(RC+4*i)}
""")
        for i in reversed(range(ns)):
            a(f"""
s_mov_b64 exec, {S2(sM+2*i)}
s_waitcnt vmcnt({i+extra})
v_cmpx_eq_u32 {gm(i)}, s{sNON}, v{RC+4*i+3}
v_lshrrev_b32 v{RC+4*i+3}, 17, v{RC+4*i+2}
ds_add_rtn_u32 v{RK+i}, v{RC+4*i+3}, v1
s_andn2_b64 {S2(sM+2*i)}, {S2(sM+2*i)}, {gm(i)}
""")
            a(f"s_mov_b64 vcc, {S2(sM+2*i)}" if i==ns-1 else f"s_or_b64 vcc, vcc, {S2(sM+2*i)}")
            if scat and i==0 and 0: pass
            if scat and i==0: a(f"s_cselect_b64 exec, 0, 1\nds_add_u32 v{VZ}, v1 offset:{mH}")
            if scat and i<ns-1: sc(i+1,(1 if i==ns-2 else 3)+(1 if i==0 else 0))
        if scat: sc(0,3)
        a(f"s_cbranch_vccnz {lab}r\n{lab}d:\ns_mov_b64 exec, -1")
    def hist_retry(ns,lab,scat):
        a(f"{lab}r:\ns_sub_u32 s{sBUD}, s{sBUD}, 1\ns_cbranch_scc1 {lab}x")
        recload(ns,lab+"l")
        a(f"s_waitcnt vmcnt(0)\ns_branch {lab}p\n{lab}x:\ns_mov_b32 s{sBUD}, 0")
        if scat: a(f"s_mov_b64 exec, 1\nds_add_u32 v{VZ}, v1 offset:{mH}")
        a(f"s_branch {lab}d")
    def qfull(lab,mid):
        H=QA+4; MX=QA+1
        a(f"v_xor_b32 v{TC}, 32, v{TRU}")
        trfrag(WF,TC,0,2048,256)
        a(f"""
s_lshl_b32 s{t0}, s{sW4}, 8
s_add_u32 s{t0}, s{t0}, {Q2}
v_lshrrev_b32 v1, 4, v{VL}
v_lshl_add_u32 v120, v1, 11, s{t0}
v_and_b32 v1, 8, v{VL}
v_lshl_add_u32 v120, v1, 3, v120
v_and_b32 v1, 3, v{VL}
v_lshl_add_u32 v120, v1, 4, v120
v_and_b32 v1, 4, v{VL}
v_lshl_add_u32 v120, v1, 1, v120
v_add_u32 v121, 128, v120
s_waitcnt lgkmcnt(0)
""")
        tru(WF+16,0)
        def cv(i,T,pk):
            c=GA+16*i+4*T
            L=[]
            if pk: L+=[f"v_pk_mul_f32 {P2(c)}, {P2(c)}, {S2(sL2E)}",f"v_pk_mul_f32 {P2(c+2)}, {P2(c+2)}, {S2(sL2E)}"]
            else: L+=[f"v_mul_f32 v{c+k}, s{sL2E}, v{c+k}" for k in range(4)]
            L+=[f"v_and_b32 v{H+k}, 0xffff0000, v{c+k}" for k in range(4)]
            L+=[f"v_maximum3_f32 v{MX}, {'0' if T==0 and i==0 else 'v'+str(MX)}, abs(v{c}), abs(v{c+1})",f"v_maximum3_f32 v{MX}, v{MX}, abs(v{c+2}), abs(v{c+3})"]
            if pk: L+=[f"v_pk_add_f32 {P2(c)}, {P2(c)}, {P2(H)} neg_lo:[0,1] neg_hi:[0,1]",f"v_pk_add_f32 {P2(c+2)}, {P2(c+2)}, {P2(H+2)} neg_lo:[0,1] neg_hi:[0,1]"]
            else: L+=[f"v_sub_f32 v{c+k}, v{c+k}, v{H+k}" for k in range(4)]
            L+=[f"v_cvt_pk_bf16_f32 v{c+k}, v{c+k}, v{H+k}" for k in range(4)]
            return L
        for T in range(4):
            for s in range(4): a(mfma16(GA+4*T,XF+16*T+4*s,WF+4*s,None if s==0 else GA+4*T))
        a("s_waitcnt lgkmcnt(0)")
        fl=cv(0,0,0)+cv(0,1,0)
        for T in range(4):
            for s in range(4):
                a(mfma16(GA+16+4*T,XF+16*T+4*s,WF+16+4*s,None if s==0 else GA+16+4*T))
                for _ in range(2): a(fl.pop(0))
        if PFI==0: mid()
        for x in fl+cv(0,2,1)+cv(1,0,1)+cv(1,1,1)+cv(1,2,1): a(x)
        if PFI==1: mid()
        gwait(lab+"w",mSL,4,VZ,1)
        for i in range(2):
            for T in range(3):
                c=GA+16*i+4*T
                a(f"ds_write2st64_b64 v{120+i}, {P2(c)}, {P2(c+2)} offset0:{16*T} offset1:{16*T+2}")
        a("s_mov_b64 exec, 0xffff")
        for i in range(2):
            c=GA+16*i+12
            a(f"""
v_mul_f32 v{c}, s{sL2E}, v{c}
v_and_b32 v{H}, 0xffff0000, v{c}
v_maximum3_f32 v{MX}, v{MX}, abs(v{c}), abs(v{c})
v_sub_f32 v{c}, v{c}, v{H}
v_cvt_pk_bf16_f32 v{c}, v{c}, v{H}
ds_write2st64_b64 v{120+i}, {P2(c)}, {P2(c+2)} offset0:48 offset1:50
""")
        a(f"""
s_mov_b64 exec, -1
v_cmp_nge_f32 vcc, 0x40e80000, v{MX}
s_cbranch_vccz {lab}q
ds_write_b32 v{VZ}, v{FA} offset:{mSLOW}
{lab}q:
""")
        pt('qd')
    def ranges():
        a(f"""
s_lshr_b32 s{sCNT}, s{sNT}, 3
s_mul_i32 s{sT0}, s{sCNT}, s{sWV}
s_and_b32 s{t2}, s{sNT}, 7
s_min_u32 s{t3}, s{t2}, s{sWV}
s_add_u32 s{sT0}, s{sT0}, s{t3}
s_cmp_lt_u32 s{sWV}, s{t2}
s_addc_u32 s{sCNT}, s{sCNT}, 0
s_lshl_b32 s{t0}, s{sT0}, 7
s_lshl_b32 s{t2}, s{sT0}, 4
v_add_u32 v{SB}, s{t2}, v{SB}
v_add_u32 v{RB}, s{t2}, v{RB}
s_add_u32 s{t3}, s{sT0}, s{sCNT}
v_min_u32 v1, 8, v{VL}
v_sub_u32 v1, s{t3}, v1
v_lshlrev_b32 v1, 4, v1
v_max_i32 v1, 0, v1
""")
    AS=272; OST=GBUF+32768
    eFA,eOW,eN48,eRD,eST,eM0,eM1=136,137,138,139,140,141,142
    sE0,sE1,sE2=4,5,6
    def epi_consts():
        srd(a,sX,16,N*256)
        vyc(WV)
        a(f"""
v_and_b32 v1, 15, v{VL}
v_lshrrev_b32 v2, 4, v{VL}
v_mul_u32_u24 v3, {AS}, v1
s_lshr_b32 s{t0}, s{sWV}, 2
s_mul_i32 s{t1}, s{t0}, {32*AS}
v_lshl_add_u32 v3, v2, 4, v3
v_add_u32 v{eFA}, s{t1}, v3
s_lshl_b32 s{t0}, s{t0}, 13
s_add_u32 s{t0}, s{t0}, {OST}
s_lshl_b32 s{t1}, s{sW4}, 2
v_or_b32 v2, s{t1}, v2
v_xor_b32 v2, v2, v1
v_lshl_add_u32 v2, v2, 4, s{t0}
v_lshl_add_u32 v{eOW}, v1, 8, v2
s_lshl_b32 s{t0}, s{sW4}, 6
s_add_u32 s{t0}, s{t0}, {OST+48*256}
v_and_b32 v2, 12, v1
v_lshl_add_u32 v2, v2, 2, s{t0}
v_and_b32 v3, 3, v1
v_lshl_add_u32 v{eN48}, v3, 1, v2
v_lshlrev_b32 v1, 4, v0
v_add_u32 v{eRD}, {OST}, v1
v_lshrrev_b32 v2, 4, v0
v_xor_b32 v3, v2, v0
v_and_b32 v3, 15, v3
v_lshlrev_b32 v3, 4, v3
v_lshl_add_u32 v{eST}, v2, 16, v3
s_lshl_b32 s{sE0}, s{sNB}, 8
s_add_u32 s{sE1}, s{sE0}, {32*65536}
s_cmp_lt_u32 s{sWV}, 4
s_cselect_b64 {S2(sE2)}, -1, 0xffff
s_mul_i32 s{t0}, s{sWV}, {AS}
v_lshl_add_u32 v{eM1}, v{VL}, 2, s{t0}
v_lshlrev_b32 v{OH2}, 1, v{OHC}
v_and_b32 v1, 31, v{VL}
v_lshlrev_b32 v1, 4, v1
v_lshlrev_b32 v2, 5, v{VL}
v_and_b32 v2, 0x400, v2
v_add3_u32 v{QC}, v1, v2, s{sQ2}
v_cndmask_b32 v{SI2}, 0, 16, {S2(sMA)}
v_cndmask_b32 v{SI2+1}, 16, 0, {S2(sMA)}
v_sub_u32 v2, v{SA}, v{OHC}
v_add_u32 v2, {STB}, v2
v_mov_b32 v1, {OH+64}
v_cndmask_b32 v{SA2}, v1, v2, {S2(sMA)}
v_cndmask_b32 v{SA2+1}, v2, v1, {S2(sMA)}
""")
    def arrive(off,vt): a(f"v_mov_b32 v{vt}, 1\ns_mov_b64 exec, 1\nds_add_u32 v{VZ}, v{vt} offset:{off}\ns_mov_b64 exec, -1")

    def claim():
        a(f"""
s_mul_i32 s{t1}, s{sW4}, {13*65536}
s_lshl_b32 s{t2}, s{sNB}, 8
s_add_u32 s{t1}, s{t1}, s{t2}
s_add_u32 s{t1}, s{t1}, {F_P}
""")
        if CLW==1:
            a(f"""
v_lshlrev_b32 v2, 15, v{VL}
v_and_b32 v2, 0xffff0000, v2
v_and_b32 v3, 1, v{VL}
v_lshl_add_u32 v2, v3, 7, v2
v_add_u32 v2, s{t1}, v2
s_mov_b64 exec, 0x3ffffff
global_store_dword v2, v{VZ}, s[20:21] sc1
s_mov_b64 exec, -1
""")
        else:
            a(f"""
v_lshlrev_b32 v2, 14, v{VL}
v_and_b32 v2, 0xffff0000, v2
v_and_b32 v3, 3, v{VL}
v_lshl_add_u32 v2, v3, 6, v2
v_add_u32 v2, s{t1}, v2
s_mov_b32 exec_hi, 0xfffff
global_store_dword v2, v{VZ}, s[20:21] sc1
s_mov_b64 exec, -1
""")
    D=28; SRc=36; K=44; R=52; W2=60; RO=80
    sD=40; sS=44; sE=48
    Q16="s_mov_b64 exec, 0xffff"; FULL="s_mov_b64 exec, -1"
    a(f"""
{name}:
{"s_memrealtime s[88:89]" if PROF and FST else ""}
s_getpc_b64 {S2(t2)}
s_cmp_ge_u32 s2, 256
s_cbranch_scc1 KF_END
s_load_dwordx16 s[4:19], s[0:1], 0
s_load_dwordx2 s[20:21], s[0:1], 64
v_lshrrev_b32 v1, 6, v0
s_and_b32 s{t0}, s2, 0xf8
s_sub_u32 s{t1}, s{t0}, 136
s_cselect_b32 s{t1}, s{t0}, s{t1}
v_add_lshl_u32 v2, v1, s{t1}, 7
v_readfirstlane_b32 s{sWV}, v1
v_min_u32 v2, KF_CEND-{name}-16, v2
s_cmp_eq_u32 s2, 0
s_cbranch_scc1 KF_n0
s_mov_b64 exec, 1
global_load_dword v{QA+15}, v2, {S2(t2)}
s_mov_b64 exec, -1
KF_n1:
v_and_b32 v{VL}, 63, v0
v_mov_b32 v{VZ}, 0
v_lshlrev_b32 v113, 4, v{VL}
s_and_b32 s{sK}, s2, 7
s_lshl_b32 s{sK}, s{sK}, 5
s_lshr_b32 s{t1}, s2, 3
s_or_b32 s{sK}, s{sK}, s{t1}
s_and_b32 s{sW4}, s{sWV}, 3
s_lshl_b32 s{sW4K}, s{sW4}, 10
s_cmp_ge_u32 s{sWV}, 4
s_cbranch_scc0 KF_S
v_lshlrev_b32 v2, 2, v0
v_lshlrev_b32 v3, 8, v{VL}
ds_write_b32 v2, v{VZ} offset:{HIST-1024}
v_lshlrev_b32 v2, 2, v{VL}
ds_write2st64_b32 v2, v3, v{VZ} offset0:0 offset1:1
v_bfe_u32 v1, v0, 4, 4
v_xor_b32 v37, v1, v0
v_and_b32 v37, 15, v37
v_lshlrev_b32 v37, 4, v37
v_lshl_add_u32 v36, v1, 8, s{sNB}
s_waitcnt lgkmcnt(0)
""")
    if WSB: a(f"s_add_u32 s20, s20, {hex(WSB)}\ns_addc_u32 s21, s21, 0")
    (0 if FST else stamp(a,0,True)); stamp(a,1); pt('st')
    a(f"""
""")
    if XORD==0:
        srd(a,sX,4,N,stride=256)
        for j in range(4):
            if j==3: a(f"s_cmp_eq_u32 s{sWV}, 4\ns_cbranch_scc0 KT_c")
            a(f"s_add_u32 m0, s{sW4K}, {AGB+j*4096}\ns_nop 0\nbuffer_load_dwordx4 v[36:37], {SR4(sX)}, 0 idxen offen{NT} lds\nv_add_u32 v36, 4096, v36")
        a("KT_c:")
    a(f"""
s_lshr_b32 s{t0}, s{t0}, 1
s_add_u32 s{t0}, s{t0}, s{sWV}
s_sub_u32 s{t0}, s{t0}, 4
s_lshl_b32 s{t0}, s{t0}, 9
v_lshl_add_u32 v2, v{VL}, 7, s{t0}
s_mov_b64 exec, 15
global_load_dword v{QA+15}, v2, s[12:13]
global_load_dword v{QA+15}, v2, s[14:15]
s_mov_b64 exec, -1
""")
    if TLB:
        a(f"""
s_lshr_b32 s{t0}, s{t0}, 9
s_mul_i32 s{t1}, s{t0}, {2*RST}
s_add_u32 s{t1}, s{t1}, {F_REC+EP*16}
s_add_u32 s52, s20, s{t1}
s_addc_u32 s53, s21, 0
s_load_dword s44, s[52:53], 0
s_load_dword s45, s[52:53], {RST}
""")
    a(f"""
s_branch KF_B0
KF_n0:                                  ; workgroup 0: wave 0 publishes the launch nonce before anything else
s_memrealtime s[44:45]
v_lshlrev_b32 v2, {2 if NW else 6}, v0
s_cmp_eq_u32 s{sWV}, 0
s_waitcnt lgkmcnt(0)
s_cbranch_scc0 KF_n1
s_lshl_b32 s46, s44, 2
s_or_b32 s46, s46, 1
v_mov_b32 v3, s46
s_mov_b64 exec, {-1 if NW else 15}
global_store_dword v2, v3, s[18:19] sc1
s_mov_b64 exec, -1
s_branch KF_n1
KF_S:
s_min_u32 s{t2}, s2, {NPROD-1}
s_mul_i32 s{t2}, s{t2}, {EP*4}
s_mul_i32 s{t3}, s{sWV}, 400
v_add_u32 v108, s{t3}, v{VL}
v_lshlrev_b32 v109, 2, v108
s_mov_b32 s{sD+2}, {E*4}
s_mov_b32 s{sD+3}, 0x00020000
s_waitcnt lgkmcnt(0)
""")
    if WSB: a(f"s_add_u32 s20, s20, {hex(WSB)}\ns_addc_u32 s21, s21, 0")
    (0 if FST else stamp(a,0,True)); stamp(a,1); pt('st')
    a(f"s_mov_b32 s{sD}, s10\ns_and_b32 s{sD+1}, s11, 0xffff")
    def ld7(dst,sr):
        for i in range(7):
            if i==6: a(Q16)
            a(f"buffer_load_dword v{dst+i}, v109, {SR4(sr)}, s{t2} offen offset:{i*256}{NT}")
        a(FULL)
    ld7(D,sD); pt('dl')
    def srcld(): srd(a,sS,8,E*4); ld7(SRc,sS)
    def eld():
        srd(a,sE,6,E*8)
        a(f"""
s_lshl_b32 s{sLB}, s{t3}, 3
s_lshl_b32 s{t2}, s{t2}, 1
s_add_u32 s{t2}, s{t2}, s{sLB}
s_add_u32 m0, s{sLB}, {ERAW}
s_add_u32 s{sLB}, s{sLB}, {S1}
""")
        for j in range(4):
            if j==3: a("s_mov_b64 exec, 0xff")
            a(f"buffer_load_dwordx4 v113, {SR4(sE)}, s{t2} offen offset:{1024*j}{NT} lds")
        a(FULL)
    if EO<2: srcld()
    if EO<1: eld()
    if CLM==2: claim()
    a(f"""
KF_B0:
""")
    if DBGP:
        a("v_mov_b32 v1, 0")
        for j,r in enumerate((4,6,8,10,12,14,16,18,20)): a(f"v_writelane_b32 v1, s{r}, {j}")
        a(f"v_lshlrev_b32 v2, 2, v{VL}\ns_mov_b64 exec, 0x1ff\nglobal_store_dword v2, v1, s[18:19]\ns_mov_b64 exec, -1\ns_waitcnt vmcnt(0)")
    if ALN: a(f"s_add_u32 s20, s20, {ALN-1}\ns_addc_u32 s21, s21, 0\ns_and_b32 s20, s20, {-ALN}")
    a(f"""
s_lshl_b32 s{sBUF}, s{sWV}, 13
s_add_u32 s{sBUF}, s{sBUF}, {GBUF}
s_barrier
""")
    if W1E:
        a(f"s_cmp_ge_u32 s{sWV}, 4\ns_cbranch_scc0 KF_c0")
        srd(a,sA,12,260*256); vyc(); sdma(sA,0,0,VY,range(W1E))
        a("KF_c0:")
    consts()
    a(f"""
s_cmp_ge_u32 s{sWV}, 4
s_cbranch_scc1 KF_T
""")
    if EO>=2: a(f"v_lshlrev_b32 v109, 2, v108"); srcld()
    if EO>=1: eld()
    a(f"""
v_mov_b32 v111, 8
v_and_b32 v124, 7, v{VL}
v_lshlrev_b32 v124, 7, v124
v_lshrrev_b32 v125, 3, v{VL}
v_lshl_add_u32 v124, v125, 2, v124
v_add_u32 v124, {HIST}, v124
v_add_u32 v125, 1024, v124
v_lshlrev_b32 v112, 3, v108
v_lshlrev_b32 v110, 4, v108
""")
    for i in range(7): a(f"v_add_u32 v{W2+1+2*i}, {i*512}, v112")
    if N4==1: a(f"s_load_dword s{sNON}, s[18:19], 0")
    if N4==2: a(f"s_mov_b32 s{sNON}, 0")
    a(f"s_cmp_ge_u32 s2, {NPROD}\ns_cbranch_scc1 KS_d\ns_waitcnt vmcnt({11+(CLM==2)})")
    pt('dst')
    if N4==2: a(f"s_load_dword s{sNON}, s[18:19], 0")
    for i in range(7):
        if i==6: a(Q16)
        a(f"v_lshlrev_b32_sdwa v{K+i}, 2, v{D+i} dst_sel:DWORD dst_unused:UNUSED_PAD src0_sel:DWORD src1_sel:BYTE_0\nds_add_rtn_u32 v{R+i}, v{K+i}, v111 offset:{HIST}")
    a(FULL+"\nKS_d:")
    gsync('b1',"KS_y1",mS,4,VZ,2)
    if PERM: a(f"ds_read2_b32 v[116:117], v124 offset0:0 offset1:8\nds_read2_b32 v[118:119], v124 offset0:16 offset1:24")
    else: a(f"ds_read_b128 v[116:119], v113 offset:{HIST}")
    if NE==3 and not N4: a(f"s_load_dword s{sNON}, s[18:19], 0")
    if N4: a(f"s_cmp_lg_u32 s{sNON}, 0\ns_cbranch_scc1 KS_na\ns_load_dword s{sNON}, s[18:19], 128\nKS_na:")
    for i in range(7): a(f"v_lshrrev_b32 v{D+i}, 8, v{D+i}")
    a(f"""
s_waitcnt lgkmcnt(0)
v_add_u32 v2, v116, v117
v_add3_u32 v2, v2, v118, v119
v_mov_b32 v3, v2
""")
    dpp_scan(a,"v_add_u32",[3])
    a(f"""
v_sub_u32 v120, v3, v2
v_add_u32 v121, v120, v116
v_add_u32 v122, v121, v117
v_add_u32 v123, v122, v118
""")
    if PERM: a(f"ds_write2_b32 v125, v120, v121 offset0:0 offset1:8\nds_write2_b32 v125, v122, v123 offset0:16 offset1:24")
    else: a(f"ds_write_b128 v113, v[120:123] offset:{HIST+1024}")
    for i in range(7):
        if i==6: a(Q16)
        a(f"ds_read_b32 v{K+i}, v{K+i} offset:{HIST+1024}")
    a(FULL)
    def tpub():
        if not NE: a(f"s_load_dword s{sNON}, s[18:19], 0")
        a(f"""
v_lshl_or_b32 v{QA}, v121, 16, v120
v_lshl_or_b32 v{QA+1}, v123, 16, v122
s_lshl_b32 s{t2}, s2, 10
s_add_u32 s{t2}, s{t2}, {F_TBL}
s_lshl_b32 s{t3}, s{sWV}, 4
""")
        for k,off in enumerate((64,192,None) if N4 else (128,64,192,None)):
            a(f"s_waitcnt lgkmcnt(0)\ns_cmp_lg_u32 s{sNON}, 0\ns_cbranch_scc1 KS_n1")
            if off is not None: a(f"s_sleep {NS}\ns_load_dword s{sNON}, s[18:19], {off}")
        a(f"""
KS_n0:
global_load_dword v1, v{VZ}, s[18:19] sc1
s_waitcnt vmcnt(0)
v_readfirstlane_b32 s{sNON}, v1
s_cmp_lg_u32 s{sNON}, 0
s_cbranch_scc1 KS_n1
s_sub_u32 s{sBUD}, s{sBUD}, 1
s_cbranch_scc0 KS_n0
s_mov_b32 s{sBUD}, 0
s_mov_b32 s{sNON}, 1
KS_n1:
v_mov_b32 v1, s{sNON}
ds_write_b32 v{VZ}, v1 offset:{mNO}
""")
        pt('non')
        slot()
        a(f"""
v_mov_b32 v{QA+3}, v1
s_add_u32 s{t2}, s{t2}, s{sRO}
s_lshl_b64 exec, 0xffff, s{t3}
buffer_store_dwordx4 {P4(QA)}, v113, {SR4(sR)}, s{t2} offen{SSC}
s_mov_b64 exec, -1
""")
    if NE==3:
        a(f"v_mov_b32 v{QA+2}, v3"); tpub()
        if WG_: arrive(mPS,2)
    else: a(f"s_mov_b32 s{sNON}, 0")
    a(f"s_cmp_ge_u32 s2, {NPROD}\ns_cbranch_scc1 KS_e\ns_waitcnt vmcnt({5 if NE==3 else 4})")
    if X&64:
        for i in range(7): a(f"v_and_b32 v{SRc+i}, 0x1ff, v{SRc+i}")
    for i in range(7): a(f"v_lshl_or_b32 v{W2+2*i}, v{D+i}, 19, v{SRc+i}")
    a(f"s_waitcnt lgkmcnt(0)")
    if NE==2: a(f"s_load_dword s{sNON}, s[18:19], 0")
    for i in range(7):
        if i==6: a(Q16)
        a(f"v_add_u32 v{K+i}, v{K+i}, v{R+i}\nds_write_b64 v{K+i}, {P2(W2+2*i)} offset:{S1}")
    a(FULL+"\nKS_e:")
    pt('sc1')
    if NE<3: a(f"v_mov_b32 v{QA+2}, v3")
    if NE==1: a(f"s_load_dword s{sNON}, s[18:19], 0")
    if NE<2: epi_consts(); tpub()
    else:
        if NE==2: tpub()
        pass
    a(f"""
v_lshlrev_b32 v114, 10, v0
s_lshr_b32 s{sLO}, s{sK}, 2
s_lshl_b32 s{sLO}, s{sLO}, 4
s_add_u32 s{sLO}, s{sLO}, {F_TBL}
s_add_u32 s{sLO}, s{sLO}, s{sRO}
s_add_u32 s{sRO}, s{sRO}, {F_REC}
v_cmp_gt_u32 vcc, {NPROD}, v0
v_mov_b32 v{QA+4}, 0
v_mov_b32 v{QA+5}, 0
v_mov_b32 v{QA+6}, 0
s_mul_i32 s{t0}, s2, {RST}
s_add_u32 s{t0}, s{t0}, s{sRO}
s_add_u32 s{t2}, s{t0}, 4096
v_mul_u32_u24 v115, {RST}, v0
v_add_u32 v115, s{sRO}, v115
""")
    gsync('bS',"KS_y2",mS,8,VZ,2,f"s_waitcnt vmcnt({1+(CLM==2)})")
    tl=f"s_mov_b64 exec, vcc\nbuffer_load_dwordx4 {P4(QA+4)}, v114, {SR4(sR)}, s{sLO} offen{SC}\ns_mov_b64 exec, -1"
    a(f"""
s_cmp_ge_u32 s2, {NPROD}
s_cbranch_scc0 KS_h0
""")
    gwait("KS_h1",mGP,4,VZ,2)
    a(f"""
{tl}
s_waitcnt vmcnt(0)
v_mov_b32 v1, 0
s_branch KS_j
KS_h0:
""")
    order=[6,0,1,2,3,4,5]
    for i in order:
        if i==6: a(Q16)
        a(f"ds_read_b64 {P2(RO+2+4*i)}, v112 offset:{S1+i*512}")
        if i==6: a(FULL)
    for i in order:
        if i==6: a(Q16)
        a(f"s_waitcnt lgkmcnt(6)\nds_read_b64 {P2(RO+4*i)}, v{RO+3+4*i} offset:{ERAW}")
        if i==6: a(FULL)
    gwait("KS_ww",mW,4,VZ,2)
    for k,i in enumerate(order):
        if k==TP_: a(tl)
        if i==6: a(Q16)
        a(f"v_mov_b32 v{RO+3+4*i}, v1\nbuffer_store_dwordx4 {P4(RO+4*i)}, v110, {SR4(sR)}, s{t0 if i<4 else t2} offen offset:{1024*(i&3)}{SSC}")
        if i==6: a(FULL)
    if TP_==7: a(tl)
    pt('out')
    a(f"v_pk_maximum3_f16 v1, v{RO}, v{RO+1}, v{RO+1}\nv_pk_minimum3_f16 v2, v{RO}, v{RO+1}, v{RO+1}")
    for i in range(1,7):
        if i==6: a(Q16)
        a(f"v_pk_maximum3_f16 v1, v1, v{RO+4*i}, v{RO+4*i+1}\nv_pk_minimum3_f16 v2, v2, v{RO+4*i}, v{RO+4*i+1}")
    a(FULL)
    absmax_fin(a,1,2,3)
    dpp_scan(a,"v_max_u32",[1])
    a(f"""
KS_j:
v_mov_b32 v2, 1
s_mov_b32 exec_lo, 0
s_brev_b32 exec_hi, 1
ds_max_u32 v{VZ}, v1 offset:{mEM}
ds_add_u32 v{VZ}, v2 offset:{mE}
s_mov_b64 exec, -1
""")
    if NE>=2: epi_consts()
    gwait("KS_xw",mGX,4,VZ,2)
    xfrags([0,1])
    a(f"""
s_bitcmp1_b32 s{sK}, 1
s_cselect_b64 {S2(t2)}, -1, 0
s_lshl_b32 s{t0}, s{sK}, 4
s_and_b32 s{t0}, s{t0}, 16
s_waitcnt vmcnt({7-TP_})
s_mov_b64 exec, vcc
KT_f:
v_cmp_ne_u32 vcc, s{sNON}, v{QA+7}
s_cbranch_vccz KT_g
s_mov_b64 exec, vcc
s_sub_u32 s{sBUD}, s{sBUD}, 1
s_cbranch_scc1 KT_f2
buffer_load_dwordx4 {P4(QA+4)}, v114, {SR4(sR)}, s{sLO} offen{SC}
s_waitcnt vmcnt(0)
s_branch KT_f
KT_f2:
s_mov_b32 s{sBUD}, 0
v_mov_b32 v{QA+4}, 0
v_mov_b32 v{QA+5}, 0
v_mov_b32 v{QA+6}, 0
KT_g:
s_mov_b64 exec, -1
""")
    pt('tp'); ret('rt1')
    a(f"""
v_cndmask_b32 v1, v{QA+4}, v{QA+5}, {S2(t2)}
v_cndmask_b32 v2, v{QA+5}, v{QA+6}, {S2(t2)}
v_alignbit_b32 v1, v2, v1, s{t0}
v_sub_u32_sdwa v{TC}, v1, v1 dst_sel:DWORD dst_unused:UNUSED_PAD src0_sel:WORD_1 src1_sel:WORD_0
v_and_b32 v1, 0xffff, v1
v_lshrrev_b32 v{TC}, 3, v{TC}
v_lshl_add_u32 v{TD}, v1, 1, v115
v_mov_b32 v{TO}, v{TC}
""")
    dpp_scan(a,"v_add_u32",[TO])
    a(f"""
v_readlane_b32 s{sTOT}, v{TO}, 63
v_sub_u32 v{TO}, v{TO}, v{TC}
v_mov_b32 v2, v{TC}
v_lshlrev_b32 v1, 4, v{TO}
s_mov_b32 s{sLO}, 0
s_cmp_gt_u32 s{sTOT}, 512
v_sub_u32 v{TD}, v{TD}, v1
v_lshl_add_u32 v1, v{TO}, 2, s{sLB}
s_cselect_b32 s{t1}, 0, s{sTOT}
s_cbranch_scc1 KT_xe
""")
    expand("KT_x",False)
    a("KT_xe:")
    reclist(8)
    arrive(mSL,1)
    pt('exp')
    if SWU:
        gwait("KS_gp",mGP,4,VZ,1); srd(a,sA,14,256*256); sdma(sA,0,32768,WV)
    gwait("KS_rw",{0:mPD,1:mPS,2:mPS}[RWI],4,VZ,1)
    if SWU==2: a("s_waitcnt vmcnt(0)"); arrive(mPI,1)
    if TP_<7: a("s_waitcnt vmcnt(0)")
    recload(8,"KT_l")
    pt('rl')
    def pfp():
        a(f"""
s_lshr_b32 s{t1}, s2, 3
s_mul_i32 s{t1}, s{t1}, 391
""")
        if PF0: a(f"v_and_b32 v2, 255, v0\nv_add_u32 v2, s{t1}, v2\nv_mov_b32 v3, 0")
        else: a(f"v_bfe_u32 v2, v0, 1, 7\nv_add_u32 v2, s{t1}, v2\nv_and_b32 v3, 1, v0\nv_lshlrev_b32 v3, 7, v3")
        if PFN<64: a(f"s_bfm_b64 exec, {PFN}, 0")
        a(f"buffer_load_dword v{QA+15}, v[2:3], {SR4(sP)}, 0 idxen offen offset:3072{SC}\ns_mov_b64 exec, -1")
    if PFP==1: pfp()
    if SWU==1:
        a(f"s_add_u32 s{t1}, s{sTOT}, 63\ns_lshr_b32 s{t1}, s{t1}, 6\ns_cmp_ge_u32 s{t1}, 6\ns_cbranch_scc1 KS_v6\ns_waitcnt vmcnt(0)\nKS_v6:\ns_cmp_gt_u32 s{sTOT}, 512\ns_cbranch_scc0 KS_v7\ns_waitcnt vmcnt(0)\nKS_v7:\ns_waitcnt vmcnt(6)")
        arrive(mPI,1)
    if not US:
        if not SWU: gwait("KS_w2",mPI,4,VZ,1)
        trw()
        a("s_waitcnt lgkmcnt(0)")
        w3rd()
        ugemm(0)
    pt('ud')
    hist(8,"KT_h",1 if PFP==1 else 0,True)
    if PFP==3: pfp()
    pt('hs'); ret('rt2')
    gwait("KS_b2",mH,16,VZ,1)
    pt('b2')
    scan(False)
    a(f"""
v_cmp_lt_u32 vcc, 0x100, v{QA}
s_add_u32 s{sNT}, s{t0}, 127
s_lshr_b32 s{sNT}, s{sNT}, 7
s_cmp_gt_u32 s{sNT}, {CAPT}
s_cbranch_scc1 KT_j
s_cbranch_vccnz KT_j
""")
    fill("KFz",False,4)
    a(f"v_mov_b32 v1, s{sNT}\nds_write_b32 v{VZ}, v1 offset:{mNT}")
    pt('fil')
    a(f"""
s_cmp_gt_u32 s{sTOT}, 512
s_cbranch_scc0 KT_k
KT_j:
ds_write_b32 v{VZ}, v{FA} offset:{mSLOW}
KT_k:
s_mov_b32 s{sWU}, 1
""")
    if US: gwait("KS_w2",mPI,4,VZ,1); trw(); w3rd()
    ranges()
    srd(a,sA,14,256*256)
    if PRIO: a("s_setprio 3")
    bar('b3')
    a("s_branch KF_J")
    a(f"""
KF_T:
{"s_load_dword s47, s[18:19], 0" if GPN else ""}
v_and_b32 v108, 255, v0
v_mov_b32 v32, 0
v_mov_b32 v33, 0
v_mov_b32 v34, 0
v_mov_b32 v35, 0
v_lshlrev_b32 v110, 4, v108
""")
    sG=40
    srd(a,sX,4,N,stride=256)
    def xld():
        for j in range(4):
            if j==3: a(f"s_cmp_eq_u32 s{sWV}, 4\ns_cbranch_scc0 KT_c")
            a(f"s_add_u32 m0, s{sW4K}, {AGB+j*4096}\ns_nop 0\nbuffer_load_dwordx4 v[36:37], {SR4(sX)}, 0 idxen offen{NT} lds\nv_add_u32 v36, 4096, v36")
        a("KT_c:")
    def warm():
        a(f"""
v_and_b32 v1, 28, v{VL}
v_and_b32 v2, 3, v{VL}
v_lshlrev_b32 v2, 1, v2
v_lshl_or_b32 v1, v1, 2, v2
s_lshr_b32 s{t0}, s{sW4}, 1
s_lshl_b32 s{t0}, s{t0}, 7
s_and_b32 s{t1}, s{sW4}, 1
s_lshl_b32 s{t1}, s{t1}, 3
s_add_u32 s{t0}, s{t0}, s{t1}
s_add_u32 s{t0}, s{t0}, 65536
""")
        for k in range(4): a(f"buffer_load_ushort v{124+k}, v1, {SR4(sA)}, s{t0} offen offset:{k*256}")
    def zer():
        a(f"v_cmp_le_u32 vcc, 32, v108\ns_mov_b64 exec, vcc\nds_write_b128 v110, v[32:35]\ns_mov_b64 exec, -1")
        for j in range(1,4): a(f"ds_write_b128 v110, v[32:35] offset:{j*4096}")
        a(f"""
s_cmp_eq_u32 s{sWV}, 4
s_cbranch_scc0 KT_b
ds_write_b128 v110, v[32:35] offset:16384
KT_b:
""")
    srd(a,sA,12,260*256); warm(); vyc()
    if XORD==1: xld()
    if not ZL: zer()
    a(f"""
s_lshl_b32 s{t0}, s{sW4}, 2
v_lshrrev_b32 v2, 4, v{VL}
v_or_b32 v1, s{t0}, v2                  ; 4u+g
v_xor_b32 v3, v1, v{WT}
v_lshlrev_b32 v3, 4, v3
v_lshl_add_u32 v116, v{WT}, 8, v3
v_add_u32 v116, {PSC}, v116
v_add_u32 v117, {PSC}, v110
v_lshl_add_u32 v118, v1, 16, v3
""")
    if XORD==2:
        gwait("KG_x",mS,4,VZ,1); xld()
    if WG_: sdma(sA,0,0,VY,range(WG_-1)); gwait("KG_tw",mPS,4,VZ,1)
    sdma(sA,0,0,VY,range(max(W1E,WG_-1),8))
    sdma(sA,32768,-32768,VY,range(W2N))
    arrive(mW,1)
    if ZL: zer()
    pt('w1i')
    def w3m():
        w=[124,125,126,127]; u=QA
        for k in range(4): a(f"v_lshlrev_b32 v{w[k]}, 16, v{w[k]}\nv_mul_f32 v{w[k]}, s{sL2E}, v{w[k]}")
        a(f"""
v_cvt_pk_bf16_f32 v{u}, v124, v125
v_cvt_pk_bf16_f32 v{u+1}, v126, v127
v_lshlrev_b32 v{u+2}, 16, v{u}
v_and_b32 v{u+3}, 0xffff0000, v{u}
v_lshlrev_b32 v{u+4}, 16, v{u+1}
v_and_b32 v{u+5}, 0xffff0000, v{u+1}
v_add_f32 v{u+6}, abs(v124), abs(v125)
v_sub_f32 v{u+2}, v124, v{u+2}
v_sub_f32 v{u+3}, v125, v{u+3}
v_sub_f32 v{u+4}, v126, v{u+4}
v_sub_f32 v{u+5}, v127, v{u+5}
v_add_f32 v{u+7}, abs(v126), abs(v127)
s_mov_b32 exec_lo, 0
v_cvt_pk_bf16_f32 v{u}, v{u+2}, v{u+3}
v_cvt_pk_bf16_f32 v{u+1}, v{u+4}, v{u+5}
s_mov_b32 exec_lo, -1
v_add_f32 v{u+6}, v{u+6}, v{u+7}
v_lshlrev_b32 v1, 3, v108
v_and_b32 v{u+6}, 0x7fffffff, v{u+6}
ds_write_b64 v1, {P2(u)} offset:{W3L}
""")
        dpp_scan(a,"v_max_u32",[u+6])
        a(f"""
s_mov_b32 exec_lo, 0
s_brev_b32 exec_hi, 1
ds_max_u32 v{VZ}, v{u+6} offset:{mC3}
s_mov_b64 exec, -1
""")
    e2=W2N
    a(f"v_mov_b32 v1, {hex(ONE2)}\nds_write2_b32 v{VZ}, v1, v1 offset0:{OH//4} offset1:{OH//4+3}")
    gsync('bX',"KG_y1",mGX,4,VZ,2,f"s_waitcnt vmcnt({8+e2-W1E})")
    if GP_: a(f"s_setprio {GP_}")
    xfrags([0])
    a(f"s_waitcnt vmcnt({e2})")
    pt('xl')
    trfrag(WF,TP,32768,2048,256)
    a("s_waitcnt lgkmcnt(7)")
    trfrag(WF+16,TP,32768+8,2048,256)
    def pm(T,i):
        for s in range(4): a(mfma16(GA+8*T+4*i,WF+16*i+4*s,XF+16*T+4*s,None if s==0 else GA+8*T+4*i))
    def pcv(T):
        c=GA+8*T
        L=[f"v_mul_f32 v{c+j}, s{sL2E}, v{c+j}" for j in range(8)]
        L+=[f"v_cvt_pk_bf16_f32 v{c+j}, v{c+2*j}, v{c+2*j+1}" for j in range(4)]
        L+=[f"ds_write_b128 v116, {P4(c)} offset:{T*4096}"]
        return L
    def pmi(T,fillers):
        for i in range(2):
            for s in range(4):
                a(mfma16(GA+8*T+4*i,WF+16*i+4*s,XF+16*T+4*s,None if s==0 else GA+8*T+4*i))
                for _ in range(2):
                    if fillers: a(fillers.pop(0))
    a("s_waitcnt lgkmcnt(8)"); xfrags([1]); pm(0,0)
    a("s_waitcnt lgkmcnt(4)"); xfrags([2,3]); pm(0,1)
    a("s_waitcnt lgkmcnt(8)"); pm(1,0); pm(1,1)
    a("s_waitcnt lgkmcnt(0)"); pmi(2,pcv(0)); pmi(3,pcv(1))
    a(f"s_lshl_b32 s{t2}, s{sNB}, 8\ns_nop 2")
    for T in (2,3):
        for x in pcv(T): a(x)
    gsync('pg',"KG_y2",mGP,4,VZ,2)
    for T in range(4): a(f"ds_read_b128 {P4(PO+4*T)}, v117 offset:{T*4096}")
    a(f"""
KG_n:
ds_read_b32 v1, v{VZ} offset:{mNO}
s_waitcnt vmcnt(0) lgkmcnt(0)
v_readfirstlane_b32 s{sNON}, v1
s_cmp_eq_u32 s{sNON}, 0
s_cbranch_scc1 KG_n
""")
    slot()
    a(f"s_add_u32 s{t2}, s{t2}, s{sPO}")
    for T in range(3):
        a(f"s_add_u32 s{t1}, s{t2}, {F_P+T*16*65536}")
        a(f"buffer_store_dwordx4 {P4(PO+4*T)}, v118, {SR4(sR)}, s{t1} offen{SSC}")
    a(f"""
s_cmp_eq_u32 s{sWV}, 4
s_cbranch_scc0 KG_p
s_add_u32 s{t1}, s{t2}, {F_P+3*16*65536}
s_waitcnt lgkmcnt(0)
s_mov_b64 exec, 0xffff
buffer_store_dwordx4 {P4(PO+12)}, v118, {SR4(sR)}, s{t1} offen{SSC}
s_mov_b64 exec, -1
KG_p:
""")
    pt('pst')
    if RWI==1: arrive(mPS,1)
    if GP_: a("s_setprio 0")
    if W2N<8: sdma(sA,32768,-32768,VY,range(W2N,8))
    srd(a,sA,14,256*256)
    w3m()
    for T in range(4):
        c=GA+8*T
        if T==3: a("s_mov_b32 exec_lo, 0x10001\ns_mov_b32 exec_hi, 0x10001")
        if T==0: a(f"v_pk_maximum3_f16 v114, v{c}, v{c+1}, v{c+2}\nv_pk_minimum3_f16 v115, v{c}, v{c+1}, v{c+2}\nv_pk_maximum3_f16 v114, v114, v{c+3}, v{c+3}\nv_pk_minimum3_f16 v115, v115, v{c+3}, v{c+3}")
        else: a(f"v_pk_maximum3_f16 v114, v114, v{c}, v{c+1}\nv_pk_minimum3_f16 v115, v115, v{c}, v{c+1}\nv_pk_maximum3_f16 v114, v114, v{c+2}, v{c+3}\nv_pk_minimum3_f16 v115, v115, v{c+2}, v{c+3}")
    a("s_mov_b64 exec, -1")
    absmax_fin(a,114,115,2)
    a(f"""
v_cmp_lt_u32 vcc, 0x40e80000, v114
s_cmp_lg_u64 vcc, 0
s_cselect_b32 s{sFLAG}, 0x101, 1
""")
    def pflag(n):
        a(f"""
s_lshl_b32 s{t2}, s2, {FS}
s_add_u32 s{t2}, s{t2}, {F_FLG}
s_add_u32 s{t2}, s{t2}, s{sPO}
v_mov_b32 v1, s{sFLAG}
s_waitcnt vmcnt({n})
s_mov_b64 exec, 1
ds_add_rtn_u32 v1, v{VZ}, v1 offset:{mPD}
s_waitcnt lgkmcnt(0)
v_readfirstlane_b32 s{t1}, v1
s_add_u32 s{t1}, s{t1}, s{sFLAG}
s_and_b32 s{t0}, s{t1}, 255
s_cmp_eq_u32 s{t0}, 4
s_cbranch_scc0 KG_f
KG_e:
ds_read_b64 v[2:3], v{VZ} offset:{mE}
ds_read_b32 v1, v{VZ} offset:{mC3}
s_waitcnt lgkmcnt(0)
v_cmp_gt_u32 vcc, 4, v2
v_mul_f32 v1, v1, v3
s_cbranch_vccnz KG_e
v_cmp_nge_f32 vcc, 0x41680000, v1       ; !(14.5 >= e*c3)
s_lshl_b32 s{t0}, vcc_lo, 8
s_or_b32 s{t1}, s{t1}, s{t0}
s_cmp_gt_u32 s{t1}, 255
s_cselect_b32 s{t0}, 2, 0
s_xor_b32 s{t0}, s{sNON}, s{t0}
s_mov_b64 exec, {(1<<FR)-1}
v_mov_b32 v1, s{t0}
v_lshlrev_b32 v2, {8+FS}, v{VL}
buffer_store_dword v1, v2, {SR4(sR)}, s{t2} offen{SSC}
s_waitcnt vmcnt(1)
s_branch KG_f2
KG_f:
s_waitcnt vmcnt(0)
KG_f2:
s_mov_b64 exec, -1
""")
        pt('pfl')
    def mid():
        sdma(sA,0)
        if RWI==2: arrive(mPS,1)
        pflag(8); arrive(mPI,1)
    if W2N<8:
        if WU1L:
            epi_consts(); pflag(8-W2N)
            if GQP: a(f"s_setprio {GQP}")
            qfull("KGq",lambda: sdma(sA,0))
            if PFI==2: sdma(sA,0)
            if GQP: a("s_setprio 0")
            a("s_waitcnt vmcnt(0)"); arrive(mPI,1)
        else:
            sdma(sA,0); epi_consts(); pflag(16-W2N); arrive(mPI,1); qfull("KGq",lambda: 0)
    elif WU1L:
        if PFI==2: pflag(0)
        qfull("KGq",lambda: pflag(0)); sdma(sA,0); epi_consts(); a("s_waitcnt vmcnt(0)"); arrive(mPI,1)
    elif SWU:
        if PFI==2: pflag(0)
        qfull("KGq",lambda: pflag(0)); epi_consts(); gwait("KG_pi",mPI,4,VZ,1)
    else: qfull("KGq",mid); epi_consts()
    gwait("KG_w3",mPD,4,VZ,1)
    w3rd(); trw()
    if not GU: a("s_waitcnt lgkmcnt(0)"); ugemm(1)
    if FLP==1: gwait("KG_b2",mH,16,VZ,1)
    a(f"""
s_and_b32 s{sLO}, s2, {FR-1}
s_lshl_b32 s{sLO}, s{sLO}, {8+FS}
s_add_u32 s{sLO}, s{sLO}, {F_FLG}
s_add_u32 s{sLO}, s{sLO}, s{sPO}
v_lshlrev_b32 v110, {FS}, v108
buffer_load_dword v116, v110, {SR4(sR)}, s{sLO} offen{SC}
""")
    if PFP==2: pfp()
    if PFT:
        a(f"""
s_mul_i32 s{t1}, s{sW4}, {PFK*4}
v_mov_b32 v1, s{t1}
s_lshl_b32 s{t1}, s{t1}, 6
v_lshl_add_u32 v117, v{VL}, 2, s{t1}
ds_read_b32 v1, v1
ds_read_u16 v2, v117 offset:{WB}
v_mov_b32 v3, 0
s_waitcnt lgkmcnt(0)
v_cmp_lt_u32 vcc, v117, v1
s_or_b64 exec, vcc, 1
""")
        for k in range(PFT): a(f"buffer_load_dword v{QA+15}, v[2:3], {SR4(sP)}, 0 idxen offen offset:{3072+128*k}{SC}")
        a("s_mov_b64 exec, -1")
    a(f"""
s_mov_b32 s{sWU}, -1
s_or_b32 s{t1}, s{sNON}, 2
s_waitcnt vmcnt({(1 if PFP==2 else 0)+PFT})
KS_m:
v_or_b32 v2, 2, v116
v_cmp_ne_u32 vcc, s{t1}, v2
s_cbranch_vccz KS_n
s_sub_u32 s{sBUD}, s{sBUD}, 1
s_cbranch_scc1 KS_n
s_sleep {FSL}
s_mov_b64 exec, vcc
buffer_load_dword v116, v110, {SR4(sR)}, s{sLO} offen{SC}
s_mov_b64 exec, -1
s_waitcnt vmcnt(0)
s_branch KS_m
KS_n:
v_cmp_ne_u32 vcc, s{sNON}, v116
s_cbranch_vccz KS_o
ds_write_b32 v{VZ}, v{FA} offset:{mSLOW}
KS_o:
""")
    pt('flg')
    if PRIO: a("s_setprio 3")
    bar('b3')
    a(f"ds_read_b32 v1, v{VZ} offset:{mNT}\ns_waitcnt lgkmcnt(0)\nv_readfirstlane_b32 s{sNT}, v1")
    ranges()
    a("KF_J:")
    def rd_ga(off): a(f"ds_read_u16 v{GA0}, v{SB} offset:{GL+off}")
    def rd_gg(off): a(f"ds_read_u16 v{YA}, v{RB} offset:{GL+off}")
    ya=f"v_lshl_add_u32 v{EA}, v{YA}, 1, v{EC}\nv_add_u32 v{YA}, v{YA}, v{M4}"
    ry=f"ds_read_u16 v{VY}, v{YA} offset:{WB+2}"
    def rd_y(): a(ya); a(ry)
    def idx1(i): return f"ds_read_u16 v{IDX+2*i}, v{GA0} offset:{WB+4*i}"
    def rd_idx():
        for i in range(4): a(idx1(i))
    def dmai(i): return f"buffer_load_dwordx4 {P2(IDX+2*(i&3))}, {SR4(sP)}, {'0' if i<4 else 's'+str(s128)} idxen offen offset:{1024*(i&3)}{GSC} lds"
    def dma():
        for i in range(8):
            if i==0: a(f"s_mov_b32 m0, s{sBUF}\ns_nop 0")
            if i==4: a(f"s_add_u32 m0, s{sBUF}, 4096\ns_nop 0")
            a(dmai(i))
    def dma_h1(mid):
        a(f"s_add_u32 m0, s{sBUF}, 4096"); a(mid)
        for i in range(4,8): a(dmai(i))
        a(f"s_mov_b32 m0, s{sBUF}")
        rd_idx()
    def dma_idx():
        for i in range(4): a(dmai(i))
        dma_h1(ry)
    rd_b=f"ds_read_b128 {P4(B3+2)}, v{QAD}\nds_read_b128 {P4(B3+10)}, v{QAD} offset:512"
    rd_a3=f"ds_read_b64 {P2(A6)}, v{EA}\nds_read_b64 {P2(A6+2)}, v{VY} offset:{OH}\nds_read_b64 {P2(A6+4)}, v{EA}"
    def rd_a(t): return f"ds_read_b128 {P4(A+4*t)}, v{AR} offset:{4096*(t>>2)+(16*(t&1)+2*((t>>1)&1))*128}"
    def m4(z,q,j,c=False): return mfma4(z+4*j,A+16*(q>>1)+4*j+2*(q&1),z+4*j if c else None)
    rd_s=f"ds_read_b64 {P2(SS)}, v{SA2}\nds_read_b64 {P2(SS+2)}, v{SA2+1}"
    def AQ(q): return A6+2*(q&1)
    win=f"v_add3_u32 v{VY}, v{VY}, v{OH2}, s{sW8}\nv_lshl_add_u32 v{QAD}, s{sQ}, 6, v{QC}"
    rd_ga(0); rd_gg(0)
    a(f"""
ds_read_u16 v{WT}, v1 offset:{GL}
ds_read_b32 v{GP}, v{VZ} offset:{mSLOW}
s_waitcnt lgkmcnt(3)
""")
    rd_idx()
    a("s_waitcnt lgkmcnt(0)")
    dma()
    pt('d0')
    a(f"v_readlane_b32 s{sNF}, v{WT}, s{sCNT}\nv_readfirstlane_b32 s{t3}, v{GP}")
    rd_y(); rd_ga(16)
    if US:
        a(f"s_cmp_ge_u32 s{sWV}, 4\ns_cbranch_scc1 KF_u"); ugemm(0)
        if GU: a("s_branch KF_u2\nKF_u:"); ugemm(1); a("KF_u2:")
        else: a("KF_u:")
    a("s_waitcnt lgkmcnt(0)")
    rd_idx()
    a(f"""
s_cmp_lg_u32 s{t3}, 0
s_cbranch_scc1 KF_SLOW
s_lshr_b32 s{sNF}, s{sNF}, 8
v_subrev_u32 v2, s{sNF}, v{VL}
v_and_b32 v2, 15, v2
v_add_u32 v{DR}, s{sNF}, v2
v_lshlrev_b32 v2, 2, v{DR}
ds_read_b32 v{GP}, v2 offset:{BT}
s_and_b32 s{sQ}, s{sNF}, -2
s_lshl_b32 s{sQ}, s{sQ}, 3
s_sub_u32 s{sW8}, 0, s{sQ}
{win}
{rd_b}
{rd_a3}
""")
    rd_gg(16)
    a(f"""
v_lshrrev_b32 v{WT}, 9, v{WT}
v_lshlrev_b32 v{WT}, 4, v{WT}           ; 8*(w&~1)
v_mov_b32 v{SS}, 0
v_mov_b32 v{SS+1}, 0
v_mov_b32 v{SS+2}, 0
v_mov_b32 v{SS+3}, 0
v_mad_u32_u24 v{SA2}, v{SI2}, s{sT0}, v{SA2}
v_mad_u32_u24 v{SA2+1}, v{SI2+1}, s{sT0}, v{SA2+1}
s_add_u32 s{t1}, s{sT0}, s{sCNT}
s_lshl_b32 s{t1}, s{t1}, 7
s_add_u32 s{t2}, s{sWV}, 48
v_mov_b32 v1, s{t2}
{mfma32(ACC+16,SS,SS,None)}
s_waitcnt lgkmcnt(0)
""")
    rd_y(); rd_ga(32)
    a(f"""
v_cmp_gt_u32 vcc, s{t0}, v{GP}
v_cmp_gt_u32 {S2(t2)}, s{t1}, v{GP}
v_cmp_gt_u32 {S2(t0)}, s{sNN}, v{DR}
v_cndmask_b32 v{DR}, v{DR}, v1, vcc
s_cmp_lg_u64 vcc, 0
s_cselect_b32 s{sHEAD}, 1, 0
s_and_b64 vcc, {S2(t2)}, {S2(t0)}
v_lshlrev_b32 v1, 2, v{VL}
v_cndmask_b32 v{DR}, 56, v{DR}, vcc
v_lshrrev_b32 v2, 1, v{VL}
v_mul_u32_u24 v{DR}, {AS}, v{DR}
v_and_b32 v2, 24, v2
v_add_u32 v{DR}, v{DR}, v2
s_mul_i32 s{t0}, s{sNF}, {AS}
v_add_u32 v{eM0}, s{t0}, v1
s_sub_u32 s{sCNT}, s{sCNT}, 1
s_mov_b32 m0, s{sBUF}
""")
    pt('pre')
    a("s_waitcnt vmcnt(4)")
    pt('g0')
    for t in range(4): a(rd_a(t))
    a("s_waitcnt lgkmcnt(0)")
    for j in range(4): a(m4(Z[0],0,j))
    a("s_nop 3")
    a(mfma32(Z[0],AQ(0),B3,Z[0]))
    a("s_nop 9")
    pt('pro')
    def finals(qprev):
        for u in range(2): a(f"v_pk_mul_f32 {P2(NN+2*u)}, {P2(NN+2*u)}, {P2(DD+2*u)}")
        for u in range(2): a(f"v_cvt_pk_bf16_f32 v{GP+2*(qprev&1)+u}, v{NN+2*u}, v{NN+2*u+1}")
    def ex(zc,r): return f"v_exp_f32 v{EE+r}, v{zc+r}"
    def body(first):
        for q in range(4):
            zc=Z[q&1]; zn=Z[(q+1)&1]; qn=(q+1)&3
            pend=[0,1,2,3,8,9,10,11,4,5,12,13,6,7,14,15]
            f0=first and q==0
            if q==0: a(f"v_readlane_b32 s{sQ}, v{WT}, s{sCNT}")
            if q==3 or (first and q==1): a(f"s_waitcnt lgkmcnt(0)")
            agg=(q&1) and not (first and q==1)
            p=1 if q==1 else 0
            if MO:
                a(mfma32(zn,AQ(qn),B3+4*qn,None))
                for j in range(4): a(f"v_rcp_f32 v{DD+j}, v{DD+j}" if not f0 else ex(zc,pend.pop(0)))
                if agg: a(mfma32(ACC+16*p,GP,SS,None if first else ACC+16*p))
                for r in range(5 if agg else 6): a(ex(zc,pend.pop(0)))
                for j in range(4):
                    a(m4(zn,qn,j,True))
                    if j<3: a(ex(zc,pend.pop(0)))
            else:
                for j in range(4):
                    a(m4(zn,qn,j))
                    a(f"v_rcp_f32 v{DD+j}, v{DD+j}" if not f0 else ex(zc,pend.pop(0)))
                if agg: a(mfma32(ACC+16*p,GP,SS,None if first else ACC+16*p))
                for r in range(4 if agg else 3): a(ex(zc,pend.pop(0)))
                a(mfma32(zn,AQ(qn),B3+4*qn,zn))
            def bx():
                a(f"s_sub_u32 s{sW8}, 0, s{sQ}\ns_waitcnt vmcnt(0) lgkmcnt(0)\n{win}")
                rd_gg(32); rd_ga(48)
                a(rd_b); a(rd_a3); a(rd_s)
                for t in range(8): a(rd_a(t))
            if q==2 and XP==0: a(ex(zc,pend.pop(0))); bx()
            for r in range((4 if not (q==2 and XP==0) else 3)-(3 if MO else 0)): a(ex(zc,pend.pop(0)))
            if q==2 and XP==1: bx()
            if f0:
                for i in range(4): a(dmai(i))
            if first and q==1: dma_h1("s_nop 0")
            if q==3:
                a(ya)
                if first: dma_idx()
                else:
                    a(f"s_cmp_gt_u32 s{sCNT}, 1\ns_cbranch_scc0 KF_lt")
                    dma_idx()
                    a("KF_lb:")
            if not f0: finals((q-1)&3)
            seq=[]
            for u in range(2): seq.append(f"v_pk_add_f32 {P2(DD+2*u)}, {P2(EE+8*u)}, 1.0 op_sel_hi:[1,0]")
            for m in range(1,4):
                for u in range(2):
                    src=(zc+8*u) if m==1 else NN+2*u
                    seq.append(f"v_pk_fma_f32 {P2(NN+2*u)}, {P2(src)}, {P2(EE+8*u+2*m)}, {P2(src)}")
                for u in range(2): seq.append(f"v_pk_fma_f32 {P2(NN+2*u)}, {P2(zc+8*u+2*m)}, {P2(DD+2*u)}, {P2(NN+2*u)}")
                for u in range(2): seq.append(f"v_pk_fma_f32 {P2(DD+2*u)}, {P2(DD+2*u)}, {P2(EE+8*u+2*m)}, {P2(DD+2*u)}")
            slots={7:[0,2,4,6,8,10,12],6:[1,3,6,8,10,12],2:[4,10],9:[0,1,2,3,4,6,8,10,12],8:[0,1,2,3,5,7,9,11],5:[1,4,7,10,12]}[len(pend)]
            for k,x in enumerate(seq):
                if f0 and k==H1P:
                    a("s_waitcnt vmcnt(4)")
                    for t in range(4,8): a(rd_a(t))
                a(x)
                if k in slots: a(ex(zc,pend.pop(0)))
            if q==2: a(f"v_pk_add_f32 {P2(RB)}, {P2(RB)}, {S2(sINC)}\nv_pk_add_f32 {P2(SA2)}, {P2(SA2)}, {P2(SI2)}")
    if PROF and 'dyn' in PTS: stamp(a,8); stamp(a,9,True)
    if PROF and 'clk' in PTS: stamp(a,6,True)
    n0=len(a.l)
    body(True)
    a("s_branch KF_LE\n.p2align 6\nKF_LOOP:")
    body(False)
    def keep(l):
        t=l.strip()
        if X&1 and t.startswith('buffer_load'): return False
        if X&2 and t.startswith('ds_read_b128 v[') and int(t.split('[')[1].split(':')[0])>=28: return False
        if X&8 and t.startswith('v_mfma'): return False
        if X&16 and t.startswith('v_pk_fma'): return False
        if X&32 and t.startswith('v_exp'): return False
        if Y&1 and t.startswith('v_mfma_f32_4x4'): return False
        if Y&2 and t.startswith('v_mfma_f32_32x32') and int(t.split('[')[1].split(':')[0])<ACC: return False
        if Y&4 and t.startswith('v_mfma_f32_32x32') and int(t.split('[')[1].split(':')[0])>=ACC: return False
        if Y&8 and t.startswith('v_rcp'): return False
        if Y&16 and t.startswith(('v_cvt_pk','v_pk_mul')): return False
        if Y&32 and t.startswith(('ds_read_b64','ds_read_b128 v[14','ds_read_b128 v[22')): return False
        return True
    a.l[n0:]=[l for l in a.l[n0:] if keep(l)]
    import re
    if UNP:
        L=[]; cnt=0
        for l in a.l[n0:]:
            m=re.match(r"\s*v_pk_fma_f32 v\[(\d+):\d+\], v\[(\d+):\d+\], v\[(\d+):\d+\], v\[(\d+):\d+\]",l)
            if m:
                cnt+=1
                d,x,y,z=map(int,m.groups())
                if UNP==1 or (UNP==2 and cnt%2==0) or (UNP==3 and d>=DD):
                    for k in range(2):
                        L.append(f"    v_fmac_f32 v{d+k}, v{x+k}, v{y+k}" if d==z else f"    v_fma_f32 v{d+k}, v{x+k}, v{y+k}, v{z+k}")
                    continue
            L.append(l)
        a.l[n0:]=L
    if X&(128|256|512|1024):
        L=[]
        for l in a.l[n0:]:
            m=re.match(r"\s*v_mfma_f32_32x32x16_bf16 v\[(\d+):\d+\], v\[(\d+):\d+\], v\[(\d+):\d+\], (.*)",l)
            if m and int(m.group(1))<ACC:
                d,x,y=int(m.group(1)),int(m.group(2)),int(m.group(3))
                if X&128:
                    if y==ID0: L+=["    "+mfma16(d+4,x,ID0,None),"    "+mfma16(d+8,x,ID1,None)]
                    elif y==ID1: L.append("    "+mfma16(d+12,x,ID0,None))
                    else: L.append("    "+mfma16(d,x,y,None))
                if X&1024:
                    if y in (ID0,ID1):
                        o=0 if y==ID0 else 8
                        for k in range(2): L.append(f"    v_mfma_f32_4x4x4_16b_bf16 v[{d+o+4*k}:{d+o+4*k+3}], v[{x+2*k}:{x+2*k+1}], v[{ID0}:{ID0+1}], v[{d+o+4*k}:{d+o+4*k+3}]")
                    else: L.append(l)
                if X&256:
                    if y!=ID1: L.append(l)
                if X&512:
                    if y==ID0: L.append(f"    v_mfma_f32_32x32x64_f8f6f4 v[{d}:{d+15}], v[{x}:{x+7}], v[{ID0}:{ID0+7}], v[{d}:{d+15}]")
                    elif y!=ID1: L.append(l)
            else: L.append(l)
        a.l[n0:]=L
    a("KF_LE:")
    if PRIO: a(f"s_bitcmp1_b32 {(1<<PT[0])|(1<<PT[1])|(1<<PT[2])}, s{sCNT}\ns_cbranch_scc1 KF_pr\nKF_pb:")
    a(f"""
s_sub_u32 s{sCNT}, s{sCNT}, 1
s_cbranch_scc0 KF_LOOP
""")
    def loop_tails():
        a(f"KF_lt:\ns_cmp_eq_u32 s{sCNT}, s{sWU}\ns_cbranch_scc0 KF_lb")
        sdma(sA,32768,0,WV)
        a(f"""
s_branch KF_lb
KF_pr:
""")
        if PROF and 'dyn' in PTS:
            a("s_mov_b32 s90, s92\ns_mov_b32 s91, s93\ns_mov_b32 s92, s94\ns_mov_b32 s93, s95\ns_mov_b32 s94, s96\ns_mov_b32 s95, s97")
            stamp(a,8); stamp(a,9,True)
        a(f"""
s_setprio 2
s_cmp_eq_u32 s{sCNT}, {PT[0]}
s_cbranch_scc1 KF_pb
s_setprio 1
s_cmp_eq_u32 s{sCNT}, {PT[1]}
s_cbranch_scc1 KF_pb
s_cmp_ge_u32 s{sWV}, {PL}
s_cbranch_scc1 KF_pb
s_setprio 0
s_branch KF_pb
""")
    a(f"""
s_lshl_b32 s{t0}, s{sW4}, 2
v_mov_b32 v1, s{t0}
s_cmp_ge_u32 s{sWV}, 4
s_cbranch_scc1 KF_w0
ds_write_b32 v1, v{TP} offset:{mWU}
s_branch KF_w1
KF_w0:
ds_read_b32 v2, v1 offset:{mWU}
s_waitcnt lgkmcnt(0)
v_cmp_eq_u32 vcc, 0, v2
s_cbranch_vccnz KF_w0
KF_w1:
""")
    def trw2(): trfrag(A,TP,0,2048,256); trfrag(A+16,TP,8,2048,256)
    trw2()
    for j in range(4): a(f"v_rcp_f32 v{DD+j}, v{DD+j}")
    a("s_nop 0")
    finals(3)
    a("s_nop 1")
    a(mfma32(ACC+16,GP,SS,ACC+16))
    pt('loop')
    if PROF and 'clk' in PTS: stamp(a,7,True)
    def epst():
        a(f"""
s_or_b32 s{t1}, s2, s{sWV}
s_cbranch_scc1 KF_e2
v_mov_b32 v2, s{sNON}
s_mov_b64 exec, 1
buffer_store_dword v2, v{VZ}, {SR4(sR)}, 0 offen{ESC}
s_mov_b64 exec, -1
KF_e2:
""")
    for p in range(2):
        for j in range(4):
            c=ACC+16*p+4*j
            a(f"v_cvt_pk_bf16_f32 v{c}, v{c}, v{c+1}\nv_cvt_pk_bf16_f32 v{c+1}, v{c+2}, v{c+3}")
        for j in range(4): a(f"ds_write_b64 v{DR}, {P2(ACC+16*p+4*j)} offset:{AGB+128*p+32*j}")
    a(f"""
s_cmp_eq_u32 s{sHEAD}, 0
""")
    pt('dmp')
    bar('be',"s_waitcnt vmcnt(0) lgkmcnt(0)")
    a(f"""
s_cbranch_scc1 KF_FIN
ds_read_b32 v4, v{eM0} offset:{AGB}
ds_read_b32 v5, v{eM1} offset:{AGB+48*AS}
""")
    a(f"""
s_waitcnt lgkmcnt(0)
v_lshlrev_b32 v6, 16, v4
v_and_b32 v7, 0xffff0000, v4
v_lshlrev_b32 v8, 16, v5
v_and_b32 v9, 0xffff0000, v5
v_pk_add_f32 v[6:7], v[6:7], v[8:9]
v_cvt_pk_bf16_f32 v6, v6, v7
ds_write_b32 v{eM0}, v6 offset:{AGB}
KF_FIN:
""")
    a(f"s_cmp_ge_u32 s{sWV}, 4")
    if EP_==0: epst()
    bar('mrg')
    def EXP(rs): return [f"v_exp_f32 v{EE+i}, v{UA+i}" for i in rs]
    def RCP(rs): return [f"v_rcp_f32 v{EE+i}, v{EE+i}" for i in rs]
    def FMA(rs): return [f"v_fma_f32 v{EE+i}, v{EE+i}, s{sL2E}, s{sL2E}" for i in rs]
    def FIN(tau):
        e=EE+8*tau; c=UA+8*tau
        return [f"v_pk_mul_f32 {P2(e+2*j)}, {P2(e+2*j)}, {P2(c+2*j)}" for j in range(4)]+[f"v_cvt_pk_bf16_f32 v{e+j}, v{e+2*j}, v{e+2*j+1}" for j in range(4)]+[f"ds_write_b128 v{eOW}, {P4(e)} offset:{tau*4096}"]
    def PFM(rs): return [f"v_pk_fma_f32 {P2(EE+i)}, {P2(EE+i)}, {S2(sL2E)}, {S2(sL2E)}" for i in rs]
    XE=Z[0]
    for tau in range(2):
        for s_ in range(4): a(f"ds_read_b128 {P4(XE+16*tau+4*s_)}, v{eFA} offset:{AGB+tau*16*AS+64*s_}")
    for k,(x,y) in enumerate(zip(um(0,0,0,XE,True,A),um(0,0,1,XE,True,A))): a(f"s_waitcnt lgkmcnt({7-k})"); a(x); a(y)
    a("s_waitcnt lgkmcnt(0)"); pt('e1'); a("s_cbranch_scc1 KF_eg")
    for r in range(2):
        if r==1: a("KF_eg:")
        for x,y in zip(um(r,1,0,XE+16,True,A),um(r,1,1,XE+16,True,A)): a(x); a(y)
        pt('e2')
        if r==0:
            for x in EXP(range(8))+FMA(range(8))+RCP(range(8))+EXP(range(8,16))+FIN(0)+PFM(range(8,16,2))+RCP(range(8,16))+["s_nop 0"]+FIN(1): a(x)
            a("s_branch KF_ej")
        else:
            for x in EXP(list(range(8))+[8,12])+PFM((0,2,4,6,8,12))+RCP(list(range(8))+[8,12])+FIN(0): a(x)
            a(f"""
v_mul_f32 v{EE+8}, v{EE+8}, v{UA+8}
v_mul_f32 v{EE+12}, v{EE+12}, v{UA+12}
s_mov_b64 exec, 0xffff
v_cvt_pk_bf16_f32 v{EE+8}, v{EE+8}, v{EE+12}
ds_write_b16 v{eN48}, v{EE+8}
ds_write_b16_d16_hi v{eN48}, v{EE+8} offset:8
s_mov_b64 exec, -1
""")
    a(f"KF_ej:\ns_cmp_lt_u32 s{sWV}, 5")
    pt('e3')
    bar('sil')
    a(f"""
ds_read_b128 {P4(A)}, v{eRD}
s_cbranch_scc0 KF_e1
ds_read_b128 {P4(A+4)}, v{eRD} offset:8192
s_mov_b64 exec, {S2(sE2)}
s_waitcnt lgkmcnt(0)
buffer_store_dwordx4 {P4(A+4)}, v{eST}, {SR4(sX)}, s{sE1} offen{OSC}
s_mov_b64 exec, -1
KF_e1:
s_waitcnt lgkmcnt(0)
buffer_store_dwordx4 {P4(A)}, v{eST}, {SR4(sX)}, s{sE0} offen{OSC}
""")
    pt('sto')
    a(f"""
""")
    if PROF: a("s_waitcnt vmcnt(0)")
    stamp(a,10); stamp(a,11,True)
    stamp_out(a,1,sWV)
    a("KF_END:\ns_endpgm")
    loop_tails()
    hist_retry(8,"KT_h",True)
    a("KF_CEND:")
    SV=ACC; AGs=SV+8; RS_=SV+16
    a(f"""
KF_SLOW:
s_setprio 0
s_cmp_ge_u32 s{sWV}, 4
s_cselect_b32 s{sTOT}, 0, s{sTOT}
v_mov_b32 v1, s{sTOT}
ds_max_u32 v{VZ}, v1 offset:{mMX}
v_mov_b32 v{SS}, 0
v_mov_b32 v{SS+1}, 0
v_mov_b32 v{SS+2}, 0
v_mov_b32 v{SS+3}, 0
s_mov_b32 s{sLO}, 0
s_mov_b32 s{sLB}, s{sBUF}
s_sub_u32 s{t0}, s{sWV}, s{sT0}
s_lshl_b32 s{t0}, s{t0}, 4
v_add_u32 v{SV+4}, s{t0}, v{RB}
v_add_u32 v{SV+5}, s{t0}, v{SB}
s_lshl_b32 s{t0}, s{sWV}, 4
v_sub_u32 v{SV+6}, s{t0}, v{OHC}
v_and_b32 v{SV+7}, 28, v{VL}
v_and_b32 v1, 3, v{VL}
v_lshlrev_b32 v1, 2, v1
v_lshl_or_b32 v{SV+7}, v{SV+7}, 3, v1
v_lshlrev_b32 v1, 4, v0
""")
    for j in range(3): a(f"ds_write_b128 v1, {P4(SS)} offset:{AGG+j*8192}")
    a(f"""
v_lshlrev_b32 v1, 4, v{VL}
ds_write_b128 v1, {P4(SS)} offset:{AGG+3*8192}
s_waitcnt vmcnt(0) lgkmcnt(0)
s_barrier
ds_read_b32 v1, v{VZ} offset:{mMX}
s_waitcnt lgkmcnt(0)
v_readfirstlane_b32 s{sRND}, v1
KF_SR:
s_cmp_lt_u32 s{sLO}, s{sRND}
s_cbranch_scc0 KF_SE
s_barrier
v_lshlrev_b32 v1, 2, v{VL}
v_lshlrev_b32 v2, 8, v{VL}
ds_write_b32 v1, v2
s_waitcnt lgkmcnt(0)
s_barrier
s_cmp_ge_u32 s{sWV}, 4
s_cbranch_scc1 KF_S1
s_movk_i32 s{t3}, 256
""")
    expand("KF_x")
    a(f"s_sub_u32 s{t1}, s{sTOT}, s{sLO}")
    reclist(4)
    recload(4,"KF_rl")
    for i in range(4): a(f"s_mov_b64 {S2(sM+8+2*i)}, {S2(sM+2*i)}")
    hist(4,"KF_h",0,False)
    a("s_waitcnt lgkmcnt(0)")
    for i in range(4):
        a(f"""
v_mov_b32 v{RS_+4*i}, v{RC+4*i}
v_mov_b32 v{RS_+4*i+1}, v{RC+4*i+1}
v_mov_b32 v{RS_+4*i+2}, v{RC+4*i+2}
v_lshlrev_b32 v1, 6, v{RC+4*i+3}
v_sub_u32 v1, v{RK+i}, v1
v_cndmask_b32 v{RS_+4*i+3}, -1, v1, {S2(sM+8+2*i)}
""")
    a(f"""
KF_S1:
s_mov_b32 s{sHEAD}, 0                    ; 256*k
KF_SK:
s_waitcnt lgkmcnt(0)
s_barrier
s_cmp_ge_u32 s{sWV}, 4
s_cbranch_scc1 KF_S2
s_mov_b32 s{t1}, {EB}
""")
    for i in range(4):
        a(f"""
v_subrev_u32 v1, s{sHEAD}, v{RS_+4*i+3}
v_lshrrev_b32 v2, 19, v{RS_+4*i+2}
v_lshl_add_u32 v2, v2, 8, v1
v_lshl_add_u32 v3, v2, 1, s{t1}
v_cmpx_gt_u32 vcc, 0x100, v1
ds_write_b32 v2, v{RS_+4*i+2} offset:{WB}
ds_write_b64 v3, {P2(RS_+4*i)}
s_mov_b64 exec, -1
""")
    a("KF_S2:")
    scan(True)
    a(f"s_cmp_lg_u64 {S2(t2)}, 0\ns_cselect_b32 s{sFLAG}, 1, 0")
    fill("KFs",True,8)
    a(f"""
s_add_u32 s{sNT}, s{t0}, 127
s_lshr_b32 s{sNT}, s{sNT}, 7
s_waitcnt lgkmcnt(0)
s_barrier
v_mov_b32 v{RB}, v{SV+4}
v_mov_b32 v{SB}, v{SV+5}
v_mov_b32 v{SV+12}, v{SV+6}
s_mov_b32 s{sI}, s{sWV}
KF_SL:
s_cmp_lt_u32 s{sI}, s{sNT}
s_cbranch_scc0 KF_SN
""")
    rd_ga(0); rd_gg(0)
    for j in range(4): a(f"ds_read_u16 v{AGs+j}, v{SV+12} offset:{GL+2*j}")
    a("s_waitcnt lgkmcnt(0)")
    rd_y(); rd_idx()
    a(f"s_waitcnt lgkmcnt(0)\nv_cmp_ne_u32 vcc, 0xffff, v{IDX}\ns_cbranch_vccz KF_SM")
    dma()
    for j in range(4): a(f"v_lshrrev_b32 v{AGs+j}, 8, v{AGs+j}")
    a(f"""
v_readfirstlane_b32 s{sQ}, v{AGs}
s_nop 3
s_and_b32 s{sQ}, s{sQ}, -2
s_lshl_b32 s{sQ}, s{sQ}, 3
s_sub_u32 s{sW8}, 0, s{sQ}
{win}
{rd_b}
{rd_a3}
""")
    for j in range(4): a(f"v_lshl_add_u32 v{AGs+j}, v{AGs+j}, 9, v{SV+7}")
    a("s_waitcnt vmcnt(0) lgkmcnt(0)")
    for t in range(8): a(rd_a(t))
    a("s_waitcnt lgkmcnt(0)")
    for q in range(4):
        z=Z[0]
        for j in range(4): a(m4(z,q,j))
        a("s_nop 3"); a(mfma32(z,AQ(q),B3+4*q,z))
        a("s_nop 15")
        for r in range(16): a(f"v_exp_f32 v{EE+r}, v{z+r}")
        for r in range(16): a(f"v_add_f32 v{EE+r}, 1.0, v{EE+r}")
        for r in range(16): a(f"v_rcp_f32 v{EE+r}, v{EE+r}")
        for m in range(4):
            for u in range(2):
                for par in range(2):
                    r=8*u+2*m+par; g=GP+2*u+par
                    a(f"v_mul_f32 v{g}, v{z+r}, v{EE+r}" if m==0 else f"v_fmac_f32 v{g}, v{z+r}, v{EE+r}")
        for j in range(4): a(f"ds_add_f32 v{AGs+j}, v{GP+j} offset:{AGG+256*(q>>1)+16*(q&1)}")
        a("s_waitcnt lgkmcnt(0)")
    a(f"""
KF_SM:
v_add_u32 v{SB}, 128, v{SB}
v_add_u32 v{RB}, 128, v{RB}
v_add_u32 v{SV+12}, 128, v{SV+12}
s_add_u32 s{sI}, s{sI}, 8
s_branch KF_SL
KF_SN:
s_add_u32 s{sHEAD}, s{sHEAD}, 256
s_cmp_lg_u32 s{sFLAG}, 0
s_cbranch_scc1 KF_SK
s_add_u32 s{sLO}, s{sLO}, 256
s_branch KF_SR
KF_SE:
s_cmp_ge_u32 s{sWV}, 4
s_cbranch_scc1 KF_SE2
""")
    sdma(sA,32768,0,WV)
    a(f"""
KF_SE2:
v_lshlrev_b32 v1, 4, v0
v_lshrrev_b32 v2, 5, v0
s_waitcnt vmcnt(0) lgkmcnt(0)
s_barrier
""")
    for j in range(4): a(f"ds_read_b128 {P4(A+4*j)}, v1 offset:{AGG+j*8192}")
    a(f"""
v_mul_u32_u24 v2, {AS}, v2
v_and_b32 v3, 31, v0
v_lshl_add_u32 v4, v3, 3, v2
s_waitcnt lgkmcnt(0)
s_barrier
""")
    for j in range(4):
        a(f"v_cvt_pk_bf16_f32 v{A+4*j}, v{A+4*j}, v{A+4*j+1}\nv_cvt_pk_bf16_f32 v{A+4*j+1}, v{A+4*j+2}, v{A+4*j+3}")
        a(f"ds_write_b64 v4, {P2(A+4*j)} offset:{AGB+j*16*AS}")
    trw2()
    a("s_branch KF_FIN")
    hist_retry(4,"KF_h",False)
    return a.text()

DOC='''; ---------------------------------------------------------------------------------------------
; ---------------------------------------------------------------------------------------------
'''
if __name__=='__main__':
    import sys
    nm='standalone__mpnn_edge_mlp__graph_kernel'
    hdr=open('standalone__mpnn_edge_mlp__graph.s.ref').read().split('; Override')[0]
    out=hdr+(f"; @launch kernel={nm} grid=(256,1,1) block=(512,1,1) lds={KF_LDS}\n" if os.environ.get('LISTF') else f"; @launch grid=(256,1,1) block=(512,1,1) lds={KF_LDS}\n")
    out+=DOC+'.amdgcn_target "amdgcn-amd-amdhsa--gfx950"\n.text\n'
    out+=f".globl {nm}\n.p2align 8\n.type {nm},@function\n"+gen_kf(nm)
    out+='.section .rodata,"a"\n.p2align 6\n'+kd(nm,256)
    open(sys.argv[1],'w').write(out)
```

```python
from common import *
X=int(os.environ.get('X','0'))
PRIO=int(os.environ.get('PRIO','1'))
DSP=[int(c,36) for c in os.environ.get('DSP','00000000')]
def EV(n,d): return int(os.environ.get(n,d))
TPOS=EV('TPOS',6); PFP=EV('PFP',3); XORD=EV('XORD',1); WUI=EV('WUI',2); FLP=EV('FLP',1); FSL=EV('FSL',8); TE=1; MO=EV("MO",0); Y=EV("Y",0); GU=EV("GU",0); GQP=EV("GQP",0); PL=EV("PL",8); PT=[int(c) for c in os.environ.get("PT","531")]; WG_=EV("WG",3); GPN=EV("GPN",1); N4=EV("N4",0); NW=EV("NW",1); RWI=EV("RWI",0); US=EV("US",0); TP_=EV("TP",7); SWU=EV("SWU",0); EO=EV("EO",1); NS=EV("NS",5); NE=EV("NE",3); FR=EV('FR',8); FS=EV('FS',2); W1N=EV('W1N',5); GP_=EV('GP',1); NT=os.environ.get('NT',''); CLM=EV('CLM',0); CLW=EV('CLW',1); SLP=EV('SLP',1); H1P=EV('H1P',10); SH3=EV('SH3',0); EP_=EV('EP',1); ESC=os.environ.get('ESC',''); PERM=EV('PERM',0); W2N=EV('W2N',8); UL=EV('UL',0); WU1L=EV('WU1L',0); W1E=EV('W1E',0); ZL=EV('ZL',0); FST=EV('FST',0); UNP=EV('UNP',0); TLB=EV('TLB',0); DBGP=EV('DBGP',0); ALN=EV('ALN',0); PFT=EV('PFT',1); PFK=EV('PFK',7); PF0=EV('PF0',0); PFN=EV('PFN',16); XP=EV('XP',0); PFI=EV('PFI',0); SWW=EV('SWW',1)
PTS=os.environ.get('PTS','b1,bS,tp,pfl,rl,b2,b3,pro').split(',')
SC=os.environ.get('LSC',' sc1')
SSC=os.environ.get('SSC',' sc1')
OSC=os.environ.get('OSC',' sc1')
GSC=os.environ.get('GSC',' sc1')
NPROD=250; EP=1600; RST=EP*16
PB0=0x1000000 if PROF else 0
RSL=0x690000; NRS=EV('NRS',8); F_TBL=PB0; F_REC=PB0+0x40000
PSL=0x320000; F_P=PB0+NRS*RSL+0x1000; F_FLG=F_P-0x1000+0x312000; F_SIZE=0x10000000
NSL=(F_SIZE-F_P+0x1000)//PSL
assert 0x40000+256*RST<=RSL
CNT=0; MISC=256; OH=400; GL=928; BT=1872; STB=2144; RS=944
mSLOW=MISC; mS=MISC+4; mGX=MISC+8; mGP=MISC+12; mC3=MISC+16; mPD=MISC+20; mSL=MISC+24; mMX=MISC+28; mPI=MISC+32; mH=MISC+36; mNT=MISC+40; mW=MISC+44; mE=MISC+48; mEM=MISC+52; mNO=MISC+56; mPS=MISC+60; mWU=MISC+64
AGB=17408
W3L=AGB+56*256
Q2=AGB+16384; QS=52*128
S1=Q2; ERAW=Q2+12800
WB=Q2+4*QS; NULLG=49*256; EB=WB+NULLG+16
HIST=WB; PSC=WB+2048
GBUF=98304
KF_LDS=GBUF+65536
assert EB+2*NULLG+32<=GBUF and STB+16*RS<=AGB
AGG=STB
ONE2=0x3F803F80
NULLW2=0xFFFF|(512<<16)
CAPT=58
ID0=4; ID1=8; B3=12; A=28; Z=[60,76]; A3=92; EE=96; NN=112; DD=116; GP=120; SS=124
IDX=128; AR=144; RB=152; SB=153; SA=154; VY=155; OHC=156; VL=157; WT=158; DR=159
ACC=160; WU2=192; UA=208; WF=160; WU1=176; QA=224; RC=96; XF=28; GA=192
TP=143; WV=151; A6=244; QAD=250; QC=145; SA2=146; SI2=148; OH2=150; GA0=232; YA=234; EA=235; M4=236; EC=237; VZ=238; PO=92; TRU=240; TD=241; TC=242; TO=243; RK=244; FA=252
sP=24; sX=28; sA=32; sR=36; sM=40
sWV=56; sK=57; sNN=58; sI=59; sNT=60; sBUF=61; sQ=62; sW8=63; sCNT=64; sT0=65
sL2E=66; sINC=68; sRND=70; sTOT=71; sNON=72; sBUD=73; sW4=74; sLB=75
sWU=3; sW4K=22; sPO=23; sRO=59; sFLAG=76; sLO=77; sMA=78; sQ2=80; s128=81; sHEAD=82; sNF=83
t0,t1,t2,t3=84,85,86,87
BUDGET=400000
sNB=2 if PERM else sK

def mfma32(d,x,y,c): return f"v_mfma_f32_32x32x16_bf16 v[{d}:{d+15}], v[{x}:{x+3}], v[{y}:{y+3}], "+("0" if c is None else f"v[{c}:{c+15}]")
def mfma16(d,x,y,c): return f"v_mfma_f32_16x16x32_bf16 v[{d}:{d+3}], v[{x}:{x+3}], v[{y}:{y+3}], "+("0" if c is None else f"v[{c}:{c+3}]")
def mfma4(d,x,c): return f"v_mfma_f32_4x4x4_16b_bf16 v[{d}:{d+3}], v[{x}:{x+1}], v[{ID0}:{ID0+1}], "+("0" if c is None else f"v[{c}:{c+3}]")
def P2(r): return f"v[{r}:{r+1}]"
def P4(r): return f"v[{r}:{r+3}]"
def S2(r): return f"s[{r}:{r+1}]"
def SR4(r): return f"s[{r}:{r+3}]"

def gen_kf(name):
    a=Asm()
    def pt(n):
        if PROF and n in PTS: stamp(a,2+PTS.index(n))
    def ret(n):
        if PROF and n in PTS: a(f"s_sub_u32 s{90+PTS.index(n)}, {BUDGET}, s{sBUD}\ns_mul_i32 s{90+PTS.index(n)}, s{90+PTS.index(n)}, 100")
    def bar(n,w="s_waitcnt lgkmcnt(0)"):
        a(w+"\ns_barrier"); pt(n)
    def gsync(n,lab,off,target,va,vt,pre=None):
        if pre: a(pre)
        a(f"""
v_mov_b32 v{vt}, 1
s_mov_b64 exec, 1
ds_add_u32 v{va}, v{vt} offset:{off}
s_mov_b64 exec, -1
{lab}:
ds_read_b32 v{vt}, v{va} offset:{off}
s_waitcnt lgkmcnt(0)
v_readfirstlane_b32 s{t1}, v{vt}
s_and_b32 s{t1}, s{t1}, 255
s_cmp_lt_u32 s{t1}, {target}
s_cbranch_scc1 {lab}
""")
        pt(n)
    def gwait(lab,off,target,va,vt):
        if SLP: a(f"s_branch {lab}_\n{lab}:\ns_sleep {SLP}\n{lab}_:")
        else: a(f"{lab}:")
        a(f"""
ds_read_b32 v{vt}, v{va} offset:{off}
s_waitcnt lgkmcnt(0)
v_readfirstlane_b32 s{t1}, v{vt}
s_and_b32 s{t1}, s{t1}, 255
s_cmp_lt_u32 s{t1}, {target}
s_cbranch_scc1 {lab}
""")
    def consts():
        srd(a,sP,20,N,off=F_P-3072,stride=256)
        srd(a,sR,20,F_SIZE)
        a(f"""
s_cmp_lt_u32 s{sNB}, {N-256*48}
s_cselect_b32 s{sNN}, 49, 48
s_mov_b32 s{sL2E}, {hex(LOG2E_NEG)}
s_mov_b32 s{sL2E+1}, {hex(LOG2E_NEG)}
s_mov_b32 s{sINC}, 16
s_mov_b32 s{sINC+1}, 16
s_mov_b32 s{sMA}, 0x0000ffff
s_mov_b32 s{sMA+1}, 0x0000ffff
s_mov_b32 s{sQ2}, {Q2}
s_mov_b32 s{sBUD}, {BUDGET}
v_lshrrev_b32 v2, 5, v{VL}              ; h
; g = 4 b2 + 2 b4 + b0 ; m = 2 b3 + b1 ; slot = 16 b2 + 4 m + (g&3)
v_lshrrev_b32 v1, 3, v{VL}
v_and_b32 v1, 2, v1
v_and_or_b32 v1, v{VL}, 5, v1           ; g
v_lshlrev_b32 v{RB}, 1, v1
v_lshlrev_b32 v3, 1, v{VL}
v_and_b32 v3, 4, v3
v_and_or_b32 v{M4}, v{VL}, 8, v3        ; 4m
v_lshlrev_b32 v{EC}, 1, v{M4}
v_add_u32 v{EC}, {EB}, v{EC}
v_and_b32 v{WT}, 15, v{VL}              ; n / c16
v_lshlrev_b32 v3, 1, v3
v_and_or_b32 v3, v{VL}, 1, v3
v_lshl_or_b32 v3, v2, 2, v3
v_lshl_add_u32 v{AR}, v3, 7, s{sBUF}
v_bfe_u32 v1, v{VL}, 1, 1
v_bfe_u32 v3, v{VL}, 2, 3
v_xor_b32 v1, v1, v3
v_lshl_add_u32 v{AR}, v1, 4, v{AR}
v_mul_i32_i24 v{OHC}, -8, v2
v_mul_u32_u24 v{SA}, {RS}, v{WT}
v_and_b32 v1, 1, v{VL}
v_lshlrev_b32 v1, 4, v1
v_mov_b32 v3, 0x3f80
v_lshlrev_b32 v1, v1, v3
""")
        a(f"s_mov_b32 vcc_lo, 0x33333333\ns_mov_b32 vcc_hi, 0x33333333\nv_cndmask_b32 v{ID0}, 0, v1, vcc\nv_sub_u32 v{ID0+1}, v1, v{ID0}")
        a(f"""
v_lshrrev_b32 v2, 4, v{VL}              ; a / g
v_lshrrev_b32 v{SB}, 2, v{VL}
v_and_b32 v{SB}, 14, v{SB}
v_and_b32 v1, 7, v{VL}
v_lshlrev_b32 v1, 4, v1
s_movk_i32 s{s128}, 128
""")
        for i in range(4): a(f"v_xor_b32 v{IDX+2*i+1}, {(i&1)*16+3072-1024*i}, v1")
        a(f"v_xor_b32 v3, v2, v{WT}\nv_lshlrev_b32 v3, 4, v3\nv_lshl_add_u32 v3, v{WT}, 8, v3\nv_add_u32 v{FA}, {AGB}, v3")
        for s in range(1,4): a(f"v_xor_b32 v{FA+s}, {64*s}, v{FA}")
        a(f"""
s_lshl_b32 s{t0}, s{sW4}, 13
s_add_u32 s{t0}, s{t0}, {GBUF}
s_lshr_b32 s{t1}, s{sWV}, 2
v_lshrrev_b32 v1, 2, v{WT}
v_lshl_add_u32 v1, v2, 3, v1
v_lshl_add_u32 v{DR}, v1, 6, s{t0}
v_xor_b32 v2, s{t1}, v2
v_and_b32 v2, 1, v2
v_and_b32 v3, 3, v{VL}
v_lshl_add_u32 v{TRU}, v2, 5, v{DR}
v_lshl_add_u32 v{TRU}, v3, 3, v{TRU}
v_lshrrev_b32 v2, 3, v{VL}
v_and_b32 v2, 2, v2
v_xor_b32 v2, v2, v3
v_lshl_add_u32 v{TP}, v2, 4, v{DR}
""")
    def slot():
        a(f"""
s_mul_i32 s{sPO}, s{sNON}, 0x9E3779B1
s_mul_i32 s{sRO}, s{sPO}, 0x85EBCA6B
s_mul_hi_u32 s{sPO}, s{sPO}, {NSL}
s_mul_hi_u32 s{sRO}, s{sRO}, {NRS}
s_mul_i32 s{sPO}, s{sPO}, {PSL}
s_mul_i32 s{sRO}, s{sRO}, {RSL}
s_add_u32 s{sP}, s{sP}, s{sPO}
s_addc_u32 s{sP+1}, s{sP+1}, 0
""")
    def vyc(VY=VY):
        a(f"""
v_lshrrev_b32 v1, 4, v{VL}
v_and_b32 v1, 2, v1
v_xor_b32 v1, v1, v{VL}
v_and_b32 v1, 3, v1
v_lshlrev_b32 v1, 4, v1
v_lshrrev_b32 v2, 2, v{VL}
v_lshl_or_b32 v{VY}, v2, 8, v1
""")
    def trfrag(dst,addr,off,ks,hs):
        for s in range(4):
            a(f"ds_read_b64_tr_b16 {P2(dst+4*s)}, v{addr} offset:{off+s*ks}\nds_read_b64_tr_b16 {P2(dst+4*s+2)}, v{addr} offset:{off+s*ks+hs}")
    def tru(dst,off): trfrag(dst,TRU,off,2048,256)
    def sdma(sr,moff,loff=0,v=VY,js=range(8)):
        a(f"s_lshl_b32 s{t0}, s{sW4}, 6")
        for j in js:
            a(f"s_add_u32 m0, s{sBUF}, {loff+j*1024}\ns_add_u32 s{t1}, s{t0}, {moff+j*4096}\nbuffer_load_dwordx4 v{v}, {SR4(sr)}, s{t1} offen lds")
    def xfrags(Ts):
        for T in Ts:
            for s in range(4): a(f"ds_read_b128 {P4(XF+16*T+4*s)}, v{FA+s} offset:{T*4096}")
    def trw(): trfrag(WF,TP,32768,2048,256); trfrag(WF+16,TP,32768+8,2048,256)
    def um(r,tau,i,xf,acc,WF=WF):
        L=[]
        for s in range(4):
            w,x=WF+16*i+4*s,xf+4*s
            d=UA+8*tau+4*i
            L.append(mfma16(d,*((x,w) if (r,tau)==(1,1) else (w,x)),d if (acc or s) else None))
        return L
    def ugemm(r):
        for tau in range(2):
            for i in range(2):
                for x in um(r,tau,i,XF+16*(2*r+tau),False): a(x)
        a("s_nop 4")
        for j in ((0,2,4,6,8,10,12,14) if r==0 else (0,2,4,6,8,12)): a(f"v_pk_mul_f32 {P2(UA+j)}, {P2(UA+j)}, {S2(sL2E)}")
    def w3rd():
        a(f"v_lshlrev_b32 v1, 3, v{VL}")
        for q in range(4): a(f"ds_read_b64 {P2(B3+4*q+2*(q&1))}, v1 offset:{W3L+q*512}")
    F=A3
    def scan(slow):
        a(f"""
v_lshlrev_b32 v1, 2, v{VL}
ds_read_b32 v{F}, v1
v_cmp_gt_u32 vcc, s{sNN}, v{VL}
v_lshlrev_b32 v{F+1}, 8, v{VL}
s_waitcnt lgkmcnt(0)
v_sub_u32 v{QA}, v{F}, v{F+1}
""")
        if slow:
            a(f"""
s_movk_i32 s{t1}, 256
v_subrev_u32 v{QA}, s{sHEAD}, v{QA}
v_cmp_lt_i32 {S2(t2)}, s{t1}, v{QA}
v_med3_i32 v{QA}, v{QA}, 0, s{t1}
v_add_u32 v{F}, v{F+1}, v{QA}
""")
        a(f"""
v_add_u32 v3, 12, v{QA}
v_and_b32 v3, -16, v3
v_max_u32 v3, 80, v3
v_cndmask_b32 v3, 0, v3, vcc
v_mov_b32 v2, v3
""")
        dpp_scan(a,"v_add_u32",[2])
        a(f"""
v_readlane_b32 s{t0}, v2, 63
v_sub_u32 v2, v2, v3
""")
    def fill(lab,slow,nw):
        a(f"""
s_lshl_b32 s{t1}, s{sWV}, 4
v_add_u32 v{QA+1}, s{t1}, v2
v_lshrrev_b32 v{QA+1}, 3, v{QA+1}       ; 2*(G0+w)
v_add_u32 v{F+1}, s{t1}, v{F+1}         ; 256n+16w
v_subrev_u32 v{QA+2}, s{t1}, v3         ; g16-16w
""")
        if not slow: a(f"v_add_u32 v{QA+3}, v{QA+1}, v{SA}\nv_mov_b32 v{F+3}, 0x3f80\nds_write_b32 v1, v2 offset:{BT}")
        for k in range(16//nw):
            a(f"v_cmpx_lt_i32 vcc, {16*nw*k}, v{QA+2}\nds_write_b16 v{QA+1}, v{F+1+(k&1)} offset:{GL+2*nw*k}")
            if k+1<16//nw: a(f"v_add_u32 v{F+1+((k+1)&1)}, {16*nw}, v{F+1+(k&1)}")
            if not slow: a(f"ds_write_b16 v{QA+3}, v{F+3} offset:{STB+2*nw*k}")
        a(f"""
s_mov_b64 exec, -1
s_lshl_b32 s{t1}, s{sWV}, 2
v_sub_u32 v{QA+2}, v3, v{QA}
v_add_u32 v{F}, s{t1}, v{F}
v_subrev_u32 v{QA+2}, s{t1}, v{QA+2}    ; pad4 - 4w
s_mov_b32 s{t1}, {EB}
v_mov_b32 v{QA+4}, 0
v_mov_b32 v{QA+5}, 0
v_mov_b32 v{QA+6}, {hex(NULLW2)}
v_lshl_add_u32 v{QA+7}, v{F}, 1, s{t1}
""")
        for k in range(-(-20//nw)):
            a(f"v_cmpx_lt_i32 vcc, {4*nw*k}, v{QA+2}")
            if k==1: a(f"s_cbranch_vccz {lab}p")
            a(f"ds_write_b32 v{F}, v{QA+6} offset:{WB+4*nw*k}\nds_write_b64 v{QA+7}, {P2(QA+4)} offset:{8*nw*k}")
        a(f"""
{lab}p:
s_mov_b64 exec, -1
s_cmp_eq_u32 s{sWV}, 3
s_cbranch_scc0 {lab}q
s_lshr_b32 s{t1}, s{t0}, 3
v_lshl_add_u32 v{QA+1}, v{VL}, 1, s{t1}
v_mov_b32 v{QA+2}, {NULLG}
v_add_u32 v{QA+3}, {NULLG}, v1
v_lshlrev_b32 v{QA+7}, 1, v1
v_add_u32 v{QA+7}, {EB+2*NULLG}, v{QA+7}
s_mov_b64 exec, 0xff
ds_write_b16 v{QA+1}, v{QA+2} offset:{GL}
s_mov_b64 exec, 15
ds_write_b32 v{QA+3}, v{QA+6} offset:{WB}
ds_write_b64 v{QA+7}, {P2(QA+4)}
s_mov_b64 exec, -1
{lab}q:
""")
    def expand(lab,win=True):
        if win: a(f"""
v_subrev_u32 v1, s{sLO}, v{TO}
v_add_u32 v2, v1, v{TC}
v_med3_i32 v1, v1, 0, s{t3}
v_med3_i32 v2, v2, 0, s{t3}
v_sub_u32 v2, v2, v1
v_lshl_add_u32 v1, v1, 2, s{sLB}
""")
        a(f"{lab}:")
        for j in range(16):
            a(f"v_cmpx_lt_i32 vcc, {j}, v2")
            if j==13: a(f"s_cbranch_vccz {lab}z")
            a(f"ds_write_b32 v1, v{TD} offset:{4*j}")
        a(f"""
v_add_u32 v2, -16, v2
v_add_u32 v1, 64, v1
v_cmp_lt_i32 vcc, 0, v2
s_cmp_lg_u64 vcc, 0
s_cbranch_scc1 {lab}
{lab}z:
s_mov_b64 exec, -1
""")
    def rl1(i): return f"buffer_load_dwordx4 {P4(RC+4*i)}, v{RK+i}, {SR4(sR)}, {'0' if i<4 else 's'+str(sQ)} offen offset:{1024*(i&3)}{SC}"
    def reclist(ns):
        a(f"v_lshl_add_u32 v1, v{VL}, 2, s{sLB}")
        for i in reversed(range(ns)): a(f"ds_read_b32 v{RK+i}, v1 offset:{256*i}")
        a(f"v_add_u32 v2, s{sLO}, v{VL}\nv_lshlrev_b32 v2, 4, v2\ns_movk_i32 s{sQ}, 4096")
        for i in range(ns):
            a(f"v_cmp_gt_i32 {S2(sM+2*i)}, s{t1}, v{VL}\ns_sub_u32 s{t1}, s{t1}, 64")
        a("s_waitcnt lgkmcnt(0)")
        for i in range(ns): a(f"v_add_u32 v{RK+i}, v{RK+i}, v2")
    def recload(ns,lab):
        for i in reversed(range(ns)):
            a(f"s_mov_b64 exec, {S2(sM+2*i)}\ns_cbranch_execz {lab}{i}\n{rl1(i)}\n{lab}{i}:")
        a("s_mov_b64 exec, -1")
    def hist(ns,lab,extra,scat):
        a(f"v_mov_b32 v1, 4\ns_mov_b32 s{sW8}, {EB}\n{lab}p:")
        def gm(i): return S2(t0+2*(i&1))
        def sc(i,n):
            a(f"""
s_mov_b64 exec, {gm(i)}
s_waitcnt lgkmcnt({n})
v_min_u32 v{RK+i}, {NULLG-4}, v{RK+i}
v_lshl_add_u32 v{RC+4*i+3}, v{RK+i}, 1, s{sW8}
ds_write_b32 v{RK+i}, v{RC+4*i+2} offset:{WB}
ds_write_b64 v{RC+4*i+3}, {P2(RC+4*i)}
""")
        for i in reversed(range(ns)):
            a(f"""
s_mov_b64 exec, {S2(sM+2*i)}
s_waitcnt vmcnt({i+extra})
v_cmpx_eq_u32 {gm(i)}, s{sNON}, v{RC+4*i+3}
v_lshrrev_b32 v{RC+4*i+3}, 17, v{RC+4*i+2}
ds_add_rtn_u32 v{RK+i}, v{RC+4*i+3}, v1
s_andn2_b64 {S2(sM+2*i)}, {S2(sM+2*i)}, {gm(i)}
""")
            a(f"s_mov_b64 vcc, {S2(sM+2*i)}" if i==ns-1 else f"s_or_b64 vcc, vcc, {S2(sM+2*i)}")
            if scat and i==0 and 0: pass
            if scat and i==0: a(f"s_cselect_b64 exec, 0, 1\nds_add_u32 v{VZ}, v1 offset:{mH}")
            if scat and i<ns-1: sc(i+1,(1 if i==ns-2 else 3)+(1 if i==0 else 0))
        if scat: sc(0,3)
        a(f"s_cbranch_vccnz {lab}r\n{lab}d:\ns_mov_b64 exec, -1")
    def hist_retry(ns,lab,scat):
        a(f"{lab}r:\ns_sub_u32 s{sBUD}, s{sBUD}, 1\ns_cbranch_scc1 {lab}x")
        recload(ns,lab+"l")
        a(f"s_waitcnt vmcnt(0)\ns_branch {lab}p\n{lab}x:\ns_mov_b32 s{sBUD}, 0")
        if scat: a(f"s_mov_b64 exec, 1\nds_add_u32 v{VZ}, v1 offset:{mH}")
        a(f"s_branch {lab}d")
    def qfull(lab,mid):
        H=QA+4; MX=QA+1
        a(f"v_xor_b32 v{TC}, 32, v{TRU}")
        trfrag(WF,TC,0,2048,256)
        a(f"""
s_lshl_b32 s{t0}, s{sW4}, 8
s_add_u32 s{t0}, s{t0}, {Q2}
v_lshrrev_b32 v1, 4, v{VL}
v_lshl_add_u32 v120, v1, 11, s{t0}
v_and_b32 v1, 8, v{VL}
v_lshl_add_u32 v120, v1, 3, v120
v_and_b32 v1, 3, v{VL}
v_lshl_add_u32 v120, v1, 4, v120
v_and_b32 v1, 4, v{VL}
v_lshl_add_u32 v120, v1, 1, v120
v_add_u32 v121, 128, v120
s_waitcnt lgkmcnt(0)
""")
        tru(WF+16,0)
        def cv(i,T,pk):
            c=GA+16*i+4*T
            L=[]
            if pk: L+=[f"v_pk_mul_f32 {P2(c)}, {P2(c)}, {S2(sL2E)}",f"v_pk_mul_f32 {P2(c+2)}, {P2(c+2)}, {S2(sL2E)}"]
            else: L+=[f"v_mul_f32 v{c+k}, s{sL2E}, v{c+k}" for k in range(4)]
            L+=[f"v_and_b32 v{H+k}, 0xffff0000, v{c+k}" for k in range(4)]
            L+=[f"v_maximum3_f32 v{MX}, {'0' if T==0 and i==0 else 'v'+str(MX)}, abs(v{c}), abs(v{c+1})",f"v_maximum3_f32 v{MX}, v{MX}, abs(v{c+2}), abs(v{c+3})"]
            if pk: L+=[f"v_pk_add_f32 {P2(c)}, {P2(c)}, {P2(H)} neg_lo:[0,1] neg_hi:[0,1]",f"v_pk_add_f32 {P2(c+2)}, {P2(c+2)}, {P2(H+2)} neg_lo:[0,1] neg_hi:[0,1]"]
            else: L+=[f"v_sub_f32 v{c+k}, v{c+k}, v{H+k}" for k in range(4)]
            L+=[f"v_cvt_pk_bf16_f32 v{c+k}, v{c+k}, v{H+k}" for k in range(4)]
            return L
        for T in range(4):
            for s in range(4): a(mfma16(GA+4*T,XF+16*T+4*s,WF+4*s,None if s==0 else GA+4*T))
        a("s_waitcnt lgkmcnt(0)")
        fl=cv(0,0,0)+cv(0,1,0)
        for T in range(4):
            for s in range(4):
                a(mfma16(GA+16+4*T,XF+16*T+4*s,WF+16+4*s,None if s==0 else GA+16+4*T))
                for _ in range(2): a(fl.pop(0))
        if PFI==0: mid()
        for x in fl+cv(0,2,1)+cv(1,0,1)+cv(1,1,1)+cv(1,2,1): a(x)
        if PFI==1: mid()
        gwait(lab+"w",mSL,4,VZ,1)
        for i in range(2):
            for T in range(3):
                c=GA+16*i+4*T
                a(f"ds_write2st64_b64 v{120+i}, {P2(c)}, {P2(c+2)} offset0:{16*T} offset1:{16*T+2}")
        a("s_mov_b64 exec, 0xffff")
        for i in range(2):
            c=GA+16*i+12
            a(f"""
v_mul_f32 v{c}, s{sL2E}, v{c}
v_and_b32 v{H}, 0xffff0000, v{c}
v_maximum3_f32 v{MX}, v{MX}, abs(v{c}), abs(v{c})
v_sub_f32 v{c}, v{c}, v{H}
v_cvt_pk_bf16_f32 v{c}, v{c}, v{H}
ds_write2st64_b64 v{120+i}, {P2(c)}, {P2(c+2)} offset0:48 offset1:50
""")
        a(f"""
s_mov_b64 exec, -1
v_cmp_nge_f32 vcc, 0x40e80000, v{MX}
s_cbranch_vccz {lab}q
ds_write_b32 v{VZ}, v{FA} offset:{mSLOW}
{lab}q:
""")
        pt('qd')
    def ranges():
        a(f"""
s_lshr_b32 s{sCNT}, s{sNT}, 3
s_mul_i32 s{sT0}, s{sCNT}, s{sWV}
s_and_b32 s{t2}, s{sNT}, 7
s_min_u32 s{t3}, s{t2}, s{sWV}
s_add_u32 s{sT0}, s{sT0}, s{t3}
s_cmp_lt_u32 s{sWV}, s{t2}
s_addc_u32 s{sCNT}, s{sCNT}, 0
s_lshl_b32 s{t0}, s{sT0}, 7
s_lshl_b32 s{t2}, s{sT0}, 4
v_add_u32 v{SB}, s{t2}, v{SB}
v_add_u32 v{RB}, s{t2}, v{RB}
s_add_u32 s{t3}, s{sT0}, s{sCNT}
v_min_u32 v1, 8, v{VL}
v_sub_u32 v1, s{t3}, v1
v_lshlrev_b32 v1, 4, v1
v_max_i32 v1, 0, v1
""")
    AS=272; OST=GBUF+32768
    eFA,eOW,eN48,eRD,eST,eM0,eM1=136,137,138,139,140,141,142
    sE0,sE1,sE2=4,5,6
    def epi_consts():
        srd(a,sX,16,N*256)
        vyc(WV)
        a(f"""
v_and_b32 v1, 15, v{VL}
v_lshrrev_b32 v2, 4, v{VL}
v_mul_u32_u24 v3, {AS}, v1
s_lshr_b32 s{t0}, s{sWV}, 2
s_mul_i32 s{t1}, s{t0}, {32*AS}
v_lshl_add_u32 v3, v2, 4, v3
v_add_u32 v{eFA}, s{t1}, v3
s_lshl_b32 s{t0}, s{t0}, 13
s_add_u32 s{t0}, s{t0}, {OST}
s_lshl_b32 s{t1}, s{sW4}, 2
v_or_b32 v2, s{t1}, v2
v_xor_b32 v2, v2, v1
v_lshl_add_u32 v2, v2, 4, s{t0}
v_lshl_add_u32 v{eOW}, v1, 8, v2
s_lshl_b32 s{t0}, s{sW4}, 6
s_add_u32 s{t0}, s{t0}, {OST+48*256}
v_and_b32 v2, 12, v1
v_lshl_add_u32 v2, v2, 2, s{t0}
v_and_b32 v3, 3, v1
v_lshl_add_u32 v{eN48}, v3, 1, v2
v_lshlrev_b32 v1, 4, v0
v_add_u32 v{eRD}, {OST}, v1
v_lshrrev_b32 v2, 4, v0
v_xor_b32 v3, v2, v0
v_and_b32 v3, 15, v3
v_lshlrev_b32 v3, 4, v3
v_lshl_add_u32 v{eST}, v2, 16, v3
s_lshl_b32 s{sE0}, s{sNB}, 8
s_add_u32 s{sE1}, s{sE0}, {32*65536}
s_cmp_lt_u32 s{sWV}, 4
s_cselect_b64 {S2(sE2)}, -1, 0xffff
s_mul_i32 s{t0}, s{sWV}, {AS}
v_lshl_add_u32 v{eM1}, v{VL}, 2, s{t0}
v_lshlrev_b32 v{OH2}, 1, v{OHC}
v_and_b32 v1, 31, v{VL}
v_lshlrev_b32 v1, 4, v1
v_lshlrev_b32 v2, 5, v{VL}
v_and_b32 v2, 0x400, v2
v_add3_u32 v{QC}, v1, v2, s{sQ2}
v_cndmask_b32 v{SI2}, 0, 16, {S2(sMA)}
v_cndmask_b32 v{SI2+1}, 16, 0, {S2(sMA)}
v_sub_u32 v2, v{SA}, v{OHC}
v_add_u32 v2, {STB}, v2
v_mov_b32 v1, {OH+64}
v_cndmask_b32 v{SA2}, v1, v2, {S2(sMA)}
v_cndmask_b32 v{SA2+1}, v2, v1, {S2(sMA)}
""")
    def arrive(off,vt): a(f"v_mov_b32 v{vt}, 1\ns_mov_b64 exec, 1\nds_add_u32 v{VZ}, v{vt} offset:{off}\ns_mov_b64 exec, -1")

    def claim():
        a(f"""
s_mul_i32 s{t1}, s{sW4}, {13*65536}
s_lshl_b32 s{t2}, s{sNB}, 8
s_add_u32 s{t1}, s{t1}, s{t2}
s_add_u32 s{t1}, s{t1}, {F_P}
""")
        if CLW==1:
            a(f"""
v_lshlrev_b32 v2, 15, v{VL}
v_and_b32 v2, 0xffff0000, v2
v_and_b32 v3, 1, v{VL}
v_lshl_add_u32 v2, v3, 7, v2
v_add_u32 v2, s{t1}, v2
s_mov_b64 exec, 0x3ffffff
global_store_dword v2, v{VZ}, s[20:21] sc1
s_mov_b64 exec, -1
""")
        else:
            a(f"""
v_lshlrev_b32 v2, 14, v{VL}
v_and_b32 v2, 0xffff0000, v2
v_and_b32 v3, 3, v{VL}
v_lshl_add_u32 v2, v3, 6, v2
v_add_u32 v2, s{t1}, v2
s_mov_b32 exec_hi, 0xfffff
global_store_dword v2, v{VZ}, s[20:21] sc1
s_mov_b64 exec, -1
""")
    D=28; SRc=36; K=44; R=52; W2=60; RO=80
    sD=40; sS=44; sE=48
    Q16="s_mov_b64 exec, 0xffff"; FULL="s_mov_b64 exec, -1"
    a(f"""
{name}:
{"s_memrealtime s[88:89]" if PROF and FST else ""}
s_getpc_b64 {S2(t2)}
s_cmp_ge_u32 s2, 256
s_cbranch_scc1 KF_END
s_load_dwordx16 s[4:19], s[0:1], 0
s_load_dwordx2 s[20:21], s[0:1], 64
v_lshrrev_b32 v1, 6, v0
s_and_b32 s{t0}, s2, 0xf8
s_sub_u32 s{t1}, s{t0}, 136
s_cselect_b32 s{t1}, s{t0}, s{t1}
v_add_lshl_u32 v2, v1, s{t1}, 7
v_readfirstlane_b32 s{sWV}, v1
v_min_u32 v2, KF_CEND-{name}-16, v2
s_cmp_eq_u32 s2, 0
s_cbranch_scc1 KF_n0
s_mov_b64 exec, 1
global_load_dword v{QA+15}, v2, {S2(t2)}
s_mov_b64 exec, -1
KF_n1:
v_and_b32 v{VL}, 63, v0
v_mov_b32 v{VZ}, 0
v_lshlrev_b32 v113, 4, v{VL}
s_and_b32 s{sK}, s2, 7
s_lshl_b32 s{sK}, s{sK}, 5
s_lshr_b32 s{t1}, s2, 3
s_or_b32 s{sK}, s{sK}, s{t1}
s_and_b32 s{sW4}, s{sWV}, 3
s_lshl_b32 s{sW4K}, s{sW4}, 10
s_cmp_ge_u32 s{sWV}, 4
s_cbranch_scc0 KF_S
v_lshlrev_b32 v2, 2, v0
v_lshlrev_b32 v3, 8, v{VL}
ds_write_b32 v2, v{VZ} offset:{HIST-1024}
v_lshlrev_b32 v2, 2, v{VL}
ds_write2st64_b32 v2, v3, v{VZ} offset0:0 offset1:1
v_bfe_u32 v1, v0, 4, 4
v_xor_b32 v37, v1, v0
v_and_b32 v37, 15, v37
v_lshlrev_b32 v37, 4, v37
v_lshl_add_u32 v36, v1, 8, s{sNB}
s_waitcnt lgkmcnt(0)
""")
    if WSB: a(f"s_add_u32 s20, s20, {hex(WSB)}\ns_addc_u32 s21, s21, 0")
    (0 if FST else stamp(a,0,True)); stamp(a,1); pt('st')
    a(f"""
""")
    if XORD==0:
        srd(a,sX,4,N,stride=256)
        for j in range(4):
            if j==3: a(f"s_cmp_eq_u32 s{sWV}, 4\ns_cbranch_scc0 KT_c")
            a(f"s_add_u32 m0, s{sW4K}, {AGB+j*4096}\ns_nop 0\nbuffer_load_dwordx4 v[36:37], {SR4(sX)}, 0 idxen offen{NT} lds\nv_add_u32 v36, 4096, v36")
        a("KT_c:")
    a(f"""
s_lshr_b32 s{t0}, s{t0}, 1
s_add_u32 s{t0}, s{t0}, s{sWV}
s_sub_u32 s{t0}, s{t0}, 4
s_lshl_b32 s{t0}, s{t0}, 9
v_lshl_add_u32 v2, v{VL}, 7, s{t0}
s_mov_b64 exec, 15
global_load_dword v{QA+15}, v2, s[12:13]
global_load_dword v{QA+15}, v2, s[14:15]
s_mov_b64 exec, -1
""")
    if TLB:
        a(f"""
s_lshr_b32 s{t0}, s{t0}, 9
s_mul_i32 s{t1}, s{t0}, {2*RST}
s_add_u32 s{t1}, s{t1}, {F_REC+EP*16}
s_add_u32 s52, s20, s{t1}
s_addc_u32 s53, s21, 0
s_load_dword s44, s[52:53], 0
s_load_dword s45, s[52:53], {RST}
""")
    a(f"""
s_branch KF_B0
KF_n0:
s_memrealtime s[44:45]
v_and_b32 v2, 63, v0
v_lshlrev_b32 v2, {2 if NW else 6}, v2
s_cmp_eq_u32 s{sWV}, 4
s_waitcnt lgkmcnt(0)
s_cbranch_scc0 KF_n1
s_lshl_b32 s46, s44, 2
s_or_b32 s46, s46, 1
v_mov_b32 v3, s46
s_mov_b64 exec, {-1 if NW else 15}
global_store_dword v2, v3, s[18:19] sc1
s_mov_b64 exec, -1
s_branch KF_n1
KF_S:
s_min_u32 s{t2}, s2, {NPROD-1}
s_mul_i32 s{t2}, s{t2}, {EP*4}
s_mul_i32 s{t3}, s{sWV}, 400
v_add_u32 v108, s{t3}, v{VL}
v_lshlrev_b32 v109, 2, v108
s_mov_b32 s{sD+2}, {E*4}
s_mov_b32 s{sD+3}, 0x00020000
s_waitcnt lgkmcnt(0)
""")
    if WSB: a(f"s_add_u32 s20, s20, {hex(WSB)}\ns_addc_u32 s21, s21, 0")
    (0 if FST else stamp(a,0,True)); stamp(a,1); pt('st')
    a(f"s_mov_b32 s{sD}, s10\ns_and_b32 s{sD+1}, s11, 0xffff")
    def ld7(dst,sr):
        for i in range(7):
            if i==6: a(Q16)
            a(f"buffer_load_dword v{dst+i}, v109, {SR4(sr)}, s{t2} offen offset:{i*256}{NT}")
        a(FULL)
    ld7(D,sD); pt('dl')
    def srcld(): srd(a,sS,8,E*4); ld7(SRc,sS)
    def eld():
        srd(a,sE,6,E*8)
        a(f"""
s_lshl_b32 s{sLB}, s{t3}, 3
s_lshl_b32 s{t2}, s{t2}, 1
s_add_u32 s{t2}, s{t2}, s{sLB}
s_add_u32 m0, s{sLB}, {ERAW}
s_add_u32 s{sLB}, s{sLB}, {S1}
""")
        for j in range(4):
            if j==3: a("s_mov_b64 exec, 0xff")
            a(f"buffer_load_dwordx4 v113, {SR4(sE)}, s{t2} offen offset:{1024*j}{NT} lds")
        a(FULL)
    if EO<2: srcld()
    if EO<1: eld()
    if CLM==2: claim()
    a(f"""
KF_B0:
""")
    if DBGP:
        a("v_mov_b32 v1, 0")
        for j,r in enumerate((4,6,8,10,12,14,16,18,20)): a(f"v_writelane_b32 v1, s{r}, {j}")
        a(f"v_lshlrev_b32 v2, 2, v{VL}\ns_mov_b64 exec, 0x1ff\nglobal_store_dword v2, v1, s[18:19]\ns_mov_b64 exec, -1\ns_waitcnt vmcnt(0)")
    if ALN: a(f"s_add_u32 s20, s20, {ALN-1}\ns_addc_u32 s21, s21, 0\ns_and_b32 s20, s20, {-ALN}")
    a(f"""
s_lshl_b32 s{sBUF}, s{sWV}, 13
s_add_u32 s{sBUF}, s{sBUF}, {GBUF}
s_barrier
""")
    if W1E:
        a(f"s_cmp_ge_u32 s{sWV}, 4\ns_cbranch_scc0 KF_c0")
        srd(a,sA,12,260*256); vyc(); sdma(sA,0,0,VY,range(W1E))
        a("KF_c0:")
    consts()
    a(f"""
s_cmp_ge_u32 s{sWV}, 4
s_cbranch_scc1 KF_T
""")
    if EO>=2: a(f"v_lshlrev_b32 v109, 2, v108"); srcld()
    if EO>=1: eld()
    a(f"""
v_mov_b32 v111, 8
v_and_b32 v124, 7, v{VL}
v_lshlrev_b32 v124, 7, v124
v_lshrrev_b32 v125, 3, v{VL}
v_lshl_add_u32 v124, v125, 2, v124
v_add_u32 v124, {HIST}, v124
v_add_u32 v125, 1024, v124
v_lshlrev_b32 v112, 3, v108
v_lshlrev_b32 v110, 4, v108
""")
    for i in range(7): a(f"v_add_u32 v{W2+1+2*i}, {i*512}, v112")
    if N4==1: a(f"s_load_dword s{sNON}, s[18:19], 0")
    if N4==2: a(f"s_mov_b32 s{sNON}, 0")
    a(f"s_cmp_ge_u32 s2, {NPROD}\ns_cbranch_scc1 KS_d\ns_waitcnt vmcnt({11+(CLM==2)})")
    pt('dst')
    if N4==2: a(f"s_load_dword s{sNON}, s[18:19], 0")
    for i in range(7):
        if i==6: a(Q16)
        a(f"v_lshlrev_b32_sdwa v{K+i}, 2, v{D+i} dst_sel:DWORD dst_unused:UNUSED_PAD src0_sel:DWORD src1_sel:BYTE_0\nds_add_rtn_u32 v{R+i}, v{K+i}, v111 offset:{HIST}")
    a(FULL+"\nKS_d:")
    gsync('b1',"KS_y1",mS,4,VZ,2)
    if PERM: a(f"ds_read2_b32 v[116:117], v124 offset0:0 offset1:8\nds_read2_b32 v[118:119], v124 offset0:16 offset1:24")
    else: a(f"ds_read_b128 v[116:119], v113 offset:{HIST}")
    if NE==3 and not N4: a(f"s_load_dword s{sNON}, s[18:19], 0")
    if N4: a(f"s_cmp_lg_u32 s{sNON}, 0\ns_cbranch_scc1 KS_na\ns_load_dword s{sNON}, s[18:19], 128\nKS_na:")
    for i in range(7): a(f"v_lshrrev_b32 v{D+i}, 8, v{D+i}")
    a(f"""
s_waitcnt lgkmcnt(0)
v_add_u32 v2, v116, v117
v_add3_u32 v2, v2, v118, v119
v_mov_b32 v3, v2
""")
    dpp_scan(a,"v_add_u32",[3])
    a(f"""
v_sub_u32 v120, v3, v2
v_add_u32 v121, v120, v116
v_add_u32 v122, v121, v117
v_add_u32 v123, v122, v118
""")
    if PERM: a(f"ds_write2_b32 v125, v120, v121 offset0:0 offset1:8\nds_write2_b32 v125, v122, v123 offset0:16 offset1:24")
    else: a(f"ds_write_b128 v113, v[120:123] offset:{HIST+1024}")
    for i in range(7):
        if i==6: a(Q16)
        a(f"ds_read_b32 v{K+i}, v{K+i} offset:{HIST+1024}")
    a(FULL)
    def tpub():
        if not NE: a(f"s_load_dword s{sNON}, s[18:19], 0")
        a(f"""
v_lshl_or_b32 v{QA}, v121, 16, v120
v_lshl_or_b32 v{QA+1}, v123, 16, v122
s_lshl_b32 s{t2}, s2, 10
s_add_u32 s{t2}, s{t2}, {F_TBL}
s_lshl_b32 s{t3}, s{sWV}, 4
""")
        for k,off in enumerate((64,192,None) if N4 else (128,64,192,None)):
            a(f"s_waitcnt lgkmcnt(0)\ns_cmp_lg_u32 s{sNON}, 0\ns_cbranch_scc1 KS_n1")
            if off is not None: a(f"s_sleep {NS}\ns_load_dword s{sNON}, s[18:19], {off}")
        a(f"""
KS_n0:
global_load_dword v1, v{VZ}, s[18:19] sc1
s_waitcnt vmcnt(0)
v_readfirstlane_b32 s{sNON}, v1
s_cmp_lg_u32 s{sNON}, 0
s_cbranch_scc1 KS_n1
s_sub_u32 s{sBUD}, s{sBUD}, 1
s_cbranch_scc0 KS_n0
s_mov_b32 s{sBUD}, 0
s_mov_b32 s{sNON}, 1
KS_n1:
v_mov_b32 v1, s{sNON}
ds_write_b32 v{VZ}, v1 offset:{mNO}
""")
        pt('non')
        slot()
        a(f"""
v_mov_b32 v{QA+3}, v1
s_add_u32 s{t2}, s{t2}, s{sRO}
s_lshl_b64 exec, 0xffff, s{t3}
buffer_store_dwordx4 {P4(QA)}, v113, {SR4(sR)}, s{t2} offen{SSC}
s_mov_b64 exec, -1
""")
    if NE==3:
        a(f"v_mov_b32 v{QA+2}, v3"); tpub()
        if WG_: arrive(mPS,2)
    else: a(f"s_mov_b32 s{sNON}, 0")
    a(f"s_cmp_ge_u32 s2, {NPROD}\ns_cbranch_scc1 KS_e\ns_waitcnt vmcnt({5 if NE==3 else 4})")
    if X&64:
        for i in range(7): a(f"v_and_b32 v{SRc+i}, 0x1ff, v{SRc+i}")
    for i in range(7): a(f"v_lshl_or_b32 v{W2+2*i}, v{D+i}, 19, v{SRc+i}")
    a(f"s_waitcnt lgkmcnt(0)")
    if NE==2: a(f"s_load_dword s{sNON}, s[18:19], 0")
    for i in range(7):
        if i==6: a(Q16)
        a(f"v_add_u32 v{K+i}, v{K+i}, v{R+i}\nds_write_b64 v{K+i}, {P2(W2+2*i)} offset:{S1}")
    a(FULL+"\nKS_e:")
    pt('sc1')
    if NE<3: a(f"v_mov_b32 v{QA+2}, v3")
    if NE==1: a(f"s_load_dword s{sNON}, s[18:19], 0")
    if NE<2: epi_consts(); tpub()
    else:
        if NE==2: tpub()
        pass
    a(f"""
v_lshlrev_b32 v114, 10, v0
s_lshr_b32 s{sLO}, s{sK}, 2
s_lshl_b32 s{sLO}, s{sLO}, 4
s_add_u32 s{sLO}, s{sLO}, {F_TBL}
s_add_u32 s{sLO}, s{sLO}, s{sRO}
s_add_u32 s{sRO}, s{sRO}, {F_REC}
v_cmp_gt_u32 vcc, {NPROD}, v0
v_mov_b32 v{QA+4}, 0
v_mov_b32 v{QA+5}, 0
v_mov_b32 v{QA+6}, 0
s_mul_i32 s{t0}, s2, {RST}
s_add_u32 s{t0}, s{t0}, s{sRO}
s_add_u32 s{t2}, s{t0}, 4096
v_mul_u32_u24 v115, {RST}, v0
v_add_u32 v115, s{sRO}, v115
""")
    gsync('bS',"KS_y2",mS,8,VZ,2,f"s_waitcnt vmcnt({1+(CLM==2)})")
    tl=f"s_mov_b64 exec, vcc\nbuffer_load_dwordx4 {P4(QA+4)}, v114, {SR4(sR)}, s{sLO} offen{SC}\ns_mov_b64 exec, -1"
    a(f"""
s_cmp_ge_u32 s2, {NPROD}
s_cbranch_scc0 KS_h0
""")
    gwait("KS_h1",mGP,4,VZ,2)
    a(f"""
{tl}
s_waitcnt vmcnt(0)
v_mov_b32 v1, 0
s_branch KS_j
KS_h0:
""")
    order=[6,0,1,2,3,4,5]
    for i in order:
        if i==6: a(Q16)
        a(f"ds_read_b64 {P2(RO+2+4*i)}, v112 offset:{S1+i*512}")
        if i==6: a(FULL)
    for i in order:
        if i==6: a(Q16)
        a(f"s_waitcnt lgkmcnt(6)\nds_read_b64 {P2(RO+4*i)}, v{RO+3+4*i} offset:{ERAW}")
        if i==6: a(FULL)
    gwait("KS_ww",mW,4,VZ,2)
    for k,i in enumerate(order):
        if k==TP_: a(tl)
        if i==6: a(Q16)
        a(f"v_mov_b32 v{RO+3+4*i}, v1\nbuffer_store_dwordx4 {P4(RO+4*i)}, v110, {SR4(sR)}, s{t0 if i<4 else t2} offen offset:{1024*(i&3)}{SSC}")
        if i==6: a(FULL)
    if TP_==7: a(tl)
    pt('out')
    a(f"v_pk_maximum3_f16 v1, v{RO}, v{RO+1}, v{RO+1}\nv_pk_minimum3_f16 v2, v{RO}, v{RO+1}, v{RO+1}")
    for i in range(1,7):
        if i==6: a(Q16)
        a(f"v_pk_maximum3_f16 v1, v1, v{RO+4*i}, v{RO+4*i+1}\nv_pk_minimum3_f16 v2, v2, v{RO+4*i}, v{RO+4*i+1}")
    a(FULL)
    absmax_fin(a,1,2,3)
    dpp_scan(a,"v_max_u32",[1])
    a(f"""
KS_j:
v_mov_b32 v2, 1
s_mov_b32 exec_lo, 0
s_brev_b32 exec_hi, 1
ds_max_u32 v{VZ}, v1 offset:{mEM}
ds_add_u32 v{VZ}, v2 offset:{mE}
s_mov_b64 exec, -1
""")
    if NE>=2: epi_consts()
    gwait("KS_xw",mGX,4,VZ,2)
    xfrags([0,1])
    a(f"""
s_bitcmp1_b32 s{sK}, 1
s_cselect_b64 {S2(t2)}, -1, 0
s_lshl_b32 s{t0}, s{sK}, 4
s_and_b32 s{t0}, s{t0}, 16
s_waitcnt vmcnt({7-TP_})
s_mov_b64 exec, vcc
KT_f:
v_cmp_ne_u32 vcc, s{sNON}, v{QA+7}
s_cbranch_vccz KT_g
s_mov_b64 exec, vcc
s_sub_u32 s{sBUD}, s{sBUD}, 1
s_cbranch_scc1 KT_f2
buffer_load_dwordx4 {P4(QA+4)}, v114, {SR4(sR)}, s{sLO} offen{SC}
s_waitcnt vmcnt(0)
s_branch KT_f
KT_f2:
s_mov_b32 s{sBUD}, 0
v_mov_b32 v{QA+4}, 0
v_mov_b32 v{QA+5}, 0
v_mov_b32 v{QA+6}, 0
KT_g:
s_mov_b64 exec, -1
""")
    pt('tp'); ret('rt1')
    a(f"""
v_cndmask_b32 v1, v{QA+4}, v{QA+5}, {S2(t2)}
v_cndmask_b32 v2, v{QA+5}, v{QA+6}, {S2(t2)}
v_alignbit_b32 v1, v2, v1, s{t0}
v_sub_u32_sdwa v{TC}, v1, v1 dst_sel:DWORD dst_unused:UNUSED_PAD src0_sel:WORD_1 src1_sel:WORD_0
v_and_b32 v1, 0xffff, v1
v_lshrrev_b32 v{TC}, 3, v{TC}
v_lshl_add_u32 v{TD}, v1, 1, v115
v_mov_b32 v{TO}, v{TC}
""")
    dpp_scan(a,"v_add_u32",[TO])
    a(f"""
v_readlane_b32 s{sTOT}, v{TO}, 63
v_sub_u32 v{TO}, v{TO}, v{TC}
v_mov_b32 v2, v{TC}
v_lshlrev_b32 v1, 4, v{TO}
s_mov_b32 s{sLO}, 0
s_cmp_gt_u32 s{sTOT}, 512
v_sub_u32 v{TD}, v{TD}, v1
v_lshl_add_u32 v1, v{TO}, 2, s{sLB}
s_cselect_b32 s{t1}, 0, s{sTOT}
s_cbranch_scc1 KT_xe
""")
    expand("KT_x",False)
    a("KT_xe:")
    reclist(8)
    arrive(mSL,1)
    pt('exp')
    if SWU:
        gwait("KS_gp",mGP,4,VZ,1); srd(a,sA,14,256*256); sdma(sA,0,32768,WV)
    gwait("KS_rw",{0:mPD,1:mPS,2:mPS}[RWI],4,VZ,1)
    if SWU==2: a("s_waitcnt vmcnt(0)"); arrive(mPI,1)
    if TP_<7: a("s_waitcnt vmcnt(0)")
    recload(8,"KT_l")
    pt('rl')
    def pfp():
        a(f"""
s_lshr_b32 s{t1}, s2, 3
s_mul_i32 s{t1}, s{t1}, 391
""")
        if PF0: a(f"v_and_b32 v2, 255, v0\nv_add_u32 v2, s{t1}, v2\nv_mov_b32 v3, 0")
        else: a(f"v_bfe_u32 v2, v0, 1, 7\nv_add_u32 v2, s{t1}, v2\nv_and_b32 v3, 1, v0\nv_lshlrev_b32 v3, 7, v3")
        if PFN<64: a(f"s_bfm_b64 exec, {PFN}, 0")
        a(f"buffer_load_dword v{QA+15}, v[2:3], {SR4(sP)}, 0 idxen offen offset:3072{SC}\ns_mov_b64 exec, -1")
    if PFP==1: pfp()
    if SWU==1:
        a(f"s_add_u32 s{t1}, s{sTOT}, 63\ns_lshr_b32 s{t1}, s{t1}, 6\ns_cmp_ge_u32 s{t1}, 6\ns_cbranch_scc1 KS_v6\ns_waitcnt vmcnt(0)\nKS_v6:\ns_cmp_gt_u32 s{sTOT}, 512\ns_cbranch_scc0 KS_v7\ns_waitcnt vmcnt(0)\nKS_v7:\ns_waitcnt vmcnt(6)")
        arrive(mPI,1)
    if not US:
        if not SWU: gwait("KS_w2",mPI,4,VZ,1)
        trw()
        a("s_waitcnt lgkmcnt(0)")
        w3rd()
        ugemm(0)
    pt('ud')
    hist(8,"KT_h",1 if PFP==1 else 0,True)
    if PFP==3: pfp()
    pt('hs'); ret('rt2')
    gwait("KS_b2",mH,16,VZ,1)
    pt('b2')
    scan(False)
    a(f"""
v_cmp_lt_u32 vcc, 0x100, v{QA}
s_add_u32 s{sNT}, s{t0}, 127
s_lshr_b32 s{sNT}, s{sNT}, 7
s_cmp_gt_u32 s{sNT}, {CAPT}
s_cbranch_scc1 KT_j
s_cbranch_vccnz KT_j
""")
    fill("KFz",False,4)
    a(f"v_mov_b32 v1, s{sNT}\nds_write_b32 v{VZ}, v1 offset:{mNT}")
    pt('fil')
    a(f"""
s_cmp_gt_u32 s{sTOT}, 512
s_cbranch_scc0 KT_k
KT_j:
ds_write_b32 v{VZ}, v{FA} offset:{mSLOW}
KT_k:
s_mov_b32 s{sWU}, 1
""")
    if US: gwait("KS_w2",mPI,4,VZ,1); trw(); w3rd()
    ranges()
    srd(a,sA,14,256*256)
    if PRIO: a("s_setprio 3")
    bar('b3')
    a("s_branch KF_J")
    a(f"""
KF_T:
{"s_load_dword s47, s[18:19], 0" if GPN else ""}
v_and_b32 v108, 255, v0
v_mov_b32 v32, 0
v_mov_b32 v33, 0
v_mov_b32 v34, 0
v_mov_b32 v35, 0
v_lshlrev_b32 v110, 4, v108
""")
    sG=40
    srd(a,sX,4,N,stride=256)
    def xld():
        for j in range(4):
            if j==3: a(f"s_cmp_eq_u32 s{sWV}, 4\ns_cbranch_scc0 KT_c")
            a(f"s_add_u32 m0, s{sW4K}, {AGB+j*4096}\ns_nop 0\nbuffer_load_dwordx4 v[36:37], {SR4(sX)}, 0 idxen offen{NT} lds\nv_add_u32 v36, 4096, v36")
        a("KT_c:")
    def warm():
        a(f"""
v_and_b32 v1, 28, v{VL}
v_and_b32 v2, 3, v{VL}
v_lshlrev_b32 v2, 1, v2
v_lshl_or_b32 v1, v1, 2, v2
s_lshr_b32 s{t0}, s{sW4}, 1
s_lshl_b32 s{t0}, s{t0}, 7
s_and_b32 s{t1}, s{sW4}, 1
s_lshl_b32 s{t1}, s{t1}, 3
s_add_u32 s{t0}, s{t0}, s{t1}
s_add_u32 s{t0}, s{t0}, 65536
""")
        for k in range(4): a(f"buffer_load_ushort v{124+k}, v1, {SR4(sA)}, s{t0} offen offset:{k*256}")
    def zer():
        a(f"v_cmp_le_u32 vcc, 32, v108\ns_mov_b64 exec, vcc\nds_write_b128 v110, v[32:35]\ns_mov_b64 exec, -1")
        for j in range(1,4): a(f"ds_write_b128 v110, v[32:35] offset:{j*4096}")
        a(f"""
s_cmp_eq_u32 s{sWV}, 4
s_cbranch_scc0 KT_b
ds_write_b128 v110, v[32:35] offset:16384
KT_b:
""")
    srd(a,sA,12,260*256); warm(); vyc()
    if XORD==1: xld()
    if not ZL: zer()
    a(f"""
s_lshl_b32 s{t0}, s{sW4}, 2
v_lshrrev_b32 v2, 4, v{VL}
v_or_b32 v1, s{t0}, v2                  ; 4u+g
v_xor_b32 v3, v1, v{WT}
v_lshlrev_b32 v3, 4, v3
v_lshl_add_u32 v116, v{WT}, 8, v3
v_add_u32 v116, {PSC}, v116
v_add_u32 v117, {PSC}, v110
v_lshl_add_u32 v118, v1, 16, v3
""")
    if XORD==2:
        gwait("KG_x",mS,4,VZ,1); xld()
    if WG_: sdma(sA,0,0,VY,range(WG_-1)); gwait("KG_tw",mPS,4,VZ,1)
    sdma(sA,0,0,VY,range(max(W1E,WG_-1),8))
    sdma(sA,32768,-32768,VY,range(W2N))
    arrive(mW,1)
    if ZL: zer()
    pt('w1i')
    def w3m():
        w=[124,125,126,127]; u=QA
        for k in range(4): a(f"v_lshlrev_b32 v{w[k]}, 16, v{w[k]}\nv_mul_f32 v{w[k]}, s{sL2E}, v{w[k]}")
        a(f"""
v_cvt_pk_bf16_f32 v{u}, v124, v125
v_cvt_pk_bf16_f32 v{u+1}, v126, v127
v_lshlrev_b32 v{u+2}, 16, v{u}
v_and_b32 v{u+3}, 0xffff0000, v{u}
v_lshlrev_b32 v{u+4}, 16, v{u+1}
v_and_b32 v{u+5}, 0xffff0000, v{u+1}
v_add_f32 v{u+6}, abs(v124), abs(v125)
v_sub_f32 v{u+2}, v124, v{u+2}
v_sub_f32 v{u+3}, v125, v{u+3}
v_sub_f32 v{u+4}, v126, v{u+4}
v_sub_f32 v{u+5}, v127, v{u+5}
v_add_f32 v{u+7}, abs(v126), abs(v127)
s_mov_b32 exec_lo, 0
v_cvt_pk_bf16_f32 v{u}, v{u+2}, v{u+3}
v_cvt_pk_bf16_f32 v{u+1}, v{u+4}, v{u+5}
s_mov_b32 exec_lo, -1
v_add_f32 v{u+6}, v{u+6}, v{u+7}
v_lshlrev_b32 v1, 3, v108
v_and_b32 v{u+6}, 0x7fffffff, v{u+6}
ds_write_b64 v1, {P2(u)} offset:{W3L}
""")
        dpp_scan(a,"v_max_u32",[u+6])
        a(f"""
s_mov_b32 exec_lo, 0
s_brev_b32 exec_hi, 1
ds_max_u32 v{VZ}, v{u+6} offset:{mC3}
s_mov_b64 exec, -1
""")
    e2=W2N
    a(f"v_mov_b32 v1, {hex(ONE2)}\nds_write2_b32 v{VZ}, v1, v1 offset0:{OH//4} offset1:{OH//4+3}")
    gsync('bX',"KG_y1",mGX,4,VZ,2,f"s_waitcnt vmcnt({8+e2-W1E})")
    if GP_: a(f"s_setprio {GP_}")
    xfrags([0])
    a(f"s_waitcnt vmcnt({e2})")
    pt('xl')
    trfrag(WF,TP,32768,2048,256)
    a("s_waitcnt lgkmcnt(7)")
    trfrag(WF+16,TP,32768+8,2048,256)
    def pm(T,i):
        for s in range(4): a(mfma16(GA+8*T+4*i,WF+16*i+4*s,XF+16*T+4*s,None if s==0 else GA+8*T+4*i))
    def pcv(T):
        c=GA+8*T
        L=[f"v_mul_f32 v{c+j}, s{sL2E}, v{c+j}" for j in range(8)]
        L+=[f"v_cvt_pk_bf16_f32 v{c+j}, v{c+2*j}, v{c+2*j+1}" for j in range(4)]
        L+=[f"ds_write_b128 v116, {P4(c)} offset:{T*4096}"]
        return L
    def pmi(T,fillers):
        for i in range(2):
            for s in range(4):
                a(mfma16(GA+8*T+4*i,WF+16*i+4*s,XF+16*T+4*s,None if s==0 else GA+8*T+4*i))
                for _ in range(2):
                    if fillers: a(fillers.pop(0))
    a("s_waitcnt lgkmcnt(8)"); xfrags([1]); pm(0,0)
    a("s_waitcnt lgkmcnt(4)"); xfrags([2,3]); pm(0,1)
    a("s_waitcnt lgkmcnt(8)"); pm(1,0); pm(1,1)
    a("s_waitcnt lgkmcnt(0)"); pmi(2,pcv(0)); pmi(3,pcv(1))
    a(f"s_lshl_b32 s{t2}, s{sNB}, 8\ns_nop 2")
    for T in (2,3):
        for x in pcv(T): a(x)
    gsync('pg',"KG_y2",mGP,4,VZ,2)
    for T in range(4): a(f"ds_read_b128 {P4(PO+4*T)}, v117 offset:{T*4096}")
    a(f"""
KG_n:
ds_read_b32 v1, v{VZ} offset:{mNO}
s_waitcnt vmcnt(0) lgkmcnt(0)
v_readfirstlane_b32 s{sNON}, v1
s_cmp_eq_u32 s{sNON}, 0
s_cbranch_scc1 KG_n
""")
    slot()
    a(f"s_add_u32 s{t2}, s{t2}, s{sPO}")
    for T in range(3):
        a(f"s_add_u32 s{t1}, s{t2}, {F_P+T*16*65536}")
        a(f"buffer_store_dwordx4 {P4(PO+4*T)}, v118, {SR4(sR)}, s{t1} offen{SSC}")
    a(f"""
s_cmp_eq_u32 s{sWV}, 4
s_cbranch_scc0 KG_p
s_add_u32 s{t1}, s{t2}, {F_P+3*16*65536}
s_waitcnt lgkmcnt(0)
s_mov_b64 exec, 0xffff
buffer_store_dwordx4 {P4(PO+12)}, v118, {SR4(sR)}, s{t1} offen{SSC}
s_mov_b64 exec, -1
KG_p:
""")
    pt('pst')
    if RWI==1: arrive(mPS,1)
    if GP_: a("s_setprio 0")
    if W2N<8: sdma(sA,32768,-32768,VY,range(W2N,8))
    srd(a,sA,14,256*256)
    w3m()
    for T in range(4):
        c=GA+8*T
        if T==3: a("s_mov_b32 exec_lo, 0x10001\ns_mov_b32 exec_hi, 0x10001")
        if T==0: a(f"v_pk_maximum3_f16 v114, v{c}, v{c+1}, v{c+2}\nv_pk_minimum3_f16 v115, v{c}, v{c+1}, v{c+2}\nv_pk_maximum3_f16 v114, v114, v{c+3}, v{c+3}\nv_pk_minimum3_f16 v115, v115, v{c+3}, v{c+3}")
        else: a(f"v_pk_maximum3_f16 v114, v114, v{c}, v{c+1}\nv_pk_minimum3_f16 v115, v115, v{c}, v{c+1}\nv_pk_maximum3_f16 v114, v114, v{c+2}, v{c+3}\nv_pk_minimum3_f16 v115, v115, v{c+2}, v{c+3}")
    a("s_mov_b64 exec, -1")
    absmax_fin(a,114,115,2)
    a(f"""
v_cmp_lt_u32 vcc, 0x40e80000, v114
s_cmp_lg_u64 vcc, 0
s_cselect_b32 s{sFLAG}, 0x101, 1
""")
    def pflag(n):
        a(f"""
s_lshl_b32 s{t2}, s2, {FS}
s_add_u32 s{t2}, s{t2}, {F_FLG}
s_add_u32 s{t2}, s{t2}, s{sPO}
v_mov_b32 v1, s{sFLAG}
s_waitcnt vmcnt({n})
s_mov_b64 exec, 1
ds_add_rtn_u32 v1, v{VZ}, v1 offset:{mPD}
s_waitcnt lgkmcnt(0)
v_readfirstlane_b32 s{t1}, v1
s_add_u32 s{t1}, s{t1}, s{sFLAG}
s_and_b32 s{t0}, s{t1}, 255
s_cmp_eq_u32 s{t0}, 4
s_cbranch_scc0 KG_f
KG_e:
ds_read_b64 v[2:3], v{VZ} offset:{mE}
ds_read_b32 v1, v{VZ} offset:{mC3}
s_waitcnt lgkmcnt(0)
v_cmp_gt_u32 vcc, 4, v2
v_mul_f32 v1, v1, v3
s_cbranch_vccnz KG_e
v_cmp_nge_f32 vcc, 0x41680000, v1       ; !(14.5 >= e*c3)
s_lshl_b32 s{t0}, vcc_lo, 8
s_or_b32 s{t1}, s{t1}, s{t0}
s_cmp_gt_u32 s{t1}, 255
s_cselect_b32 s{t0}, 2, 0
s_xor_b32 s{t0}, s{sNON}, s{t0}
s_mov_b64 exec, {(1<<FR)-1}
v_mov_b32 v1, s{t0}
v_lshlrev_b32 v2, {8+FS}, v{VL}
buffer_store_dword v1, v2, {SR4(sR)}, s{t2} offen{SSC}
s_waitcnt vmcnt(1)
s_branch KG_f2
KG_f:
s_waitcnt vmcnt(0)
KG_f2:
s_mov_b64 exec, -1
""")
        pt('pfl')
    def mid():
        sdma(sA,0)
        if RWI==2: arrive(mPS,1)
        pflag(8); arrive(mPI,1)
    if W2N<8:
        if WU1L:
            epi_consts(); pflag(8-W2N)
            if GQP: a(f"s_setprio {GQP}")
            qfull("KGq",lambda: sdma(sA,0))
            if PFI==2: sdma(sA,0)
            if GQP: a("s_setprio 0")
            a("s_waitcnt vmcnt(0)"); arrive(mPI,1)
        else:
            sdma(sA,0); epi_consts(); pflag(16-W2N); arrive(mPI,1); qfull("KGq",lambda: 0)
    elif WU1L:
        if PFI==2: pflag(0)
        qfull("KGq",lambda: pflag(0)); sdma(sA,0); epi_consts(); a("s_waitcnt vmcnt(0)"); arrive(mPI,1)
    elif SWU:
        if PFI==2: pflag(0)
        qfull("KGq",lambda: pflag(0)); epi_consts(); gwait("KG_pi",mPI,4,VZ,1)
    else: qfull("KGq",mid); epi_consts()
    gwait("KG_w3",mPD,4,VZ,1)
    w3rd(); trw()
    if not GU: a("s_waitcnt lgkmcnt(0)"); ugemm(1)
    if FLP==1: gwait("KG_b2",mH,16,VZ,1)
    a(f"""
s_and_b32 s{sLO}, s2, {FR-1}
s_lshl_b32 s{sLO}, s{sLO}, {8+FS}
s_add_u32 s{sLO}, s{sLO}, {F_FLG}
s_add_u32 s{sLO}, s{sLO}, s{sPO}
v_lshlrev_b32 v110, {FS}, v108
buffer_load_dword v116, v110, {SR4(sR)}, s{sLO} offen{SC}
""")
    if PFP==2: pfp()
    if PFT:
        a(f"""
s_mul_i32 s{t1}, s{sW4}, {PFK*4}
v_mov_b32 v1, s{t1}
s_lshl_b32 s{t1}, s{t1}, 6
v_lshl_add_u32 v117, v{VL}, 2, s{t1}
ds_read_b32 v1, v1
ds_read_u16 v2, v117 offset:{WB}
v_mov_b32 v3, 0
s_waitcnt lgkmcnt(0)
v_cmp_lt_u32 vcc, v117, v1
s_or_b64 exec, vcc, 1
""")
        for k in range(PFT): a(f"buffer_load_dword v{QA+15}, v[2:3], {SR4(sP)}, 0 idxen offen offset:{3072+128*k}{SC}")
        a("s_mov_b64 exec, -1")
    a(f"""
s_mov_b32 s{sWU}, -1
s_or_b32 s{t1}, s{sNON}, 2
s_waitcnt vmcnt({(1 if PFP==2 else 0)+PFT})
KS_m:
v_or_b32 v2, 2, v116
v_cmp_ne_u32 vcc, s{t1}, v2
s_cbranch_vccz KS_n
s_sub_u32 s{sBUD}, s{sBUD}, 1
s_cbranch_scc1 KS_n
s_sleep {FSL}
s_mov_b64 exec, vcc
buffer_load_dword v116, v110, {SR4(sR)}, s{sLO} offen{SC}
s_mov_b64 exec, -1
s_waitcnt vmcnt(0)
s_branch KS_m
KS_n:
v_cmp_ne_u32 vcc, s{sNON}, v116
s_cbranch_vccz KS_o
ds_write_b32 v{VZ}, v{FA} offset:{mSLOW}
KS_o:
""")
    pt('flg')
    if PRIO: a("s_setprio 3")
    bar('b3')
    a(f"ds_read_b32 v1, v{VZ} offset:{mNT}\ns_waitcnt lgkmcnt(0)\nv_readfirstlane_b32 s{sNT}, v1")
    ranges()
    a("KF_J:")
    def rd_ga(off): a(f"ds_read_u16 v{GA0}, v{SB} offset:{GL+off}")
    def rd_gg(off): a(f"ds_read_u16 v{YA}, v{RB} offset:{GL+off}")
    ya=f"v_lshl_add_u32 v{EA}, v{YA}, 1, v{EC}\nv_add_u32 v{YA}, v{YA}, v{M4}"
    ry=f"ds_read_u16 v{VY}, v{YA} offset:{WB+2}"
    def rd_y(): a(ya); a(ry)
    def idx1(i): return f"ds_read_u16 v{IDX+2*i}, v{GA0} offset:{WB+4*i}"
    def rd_idx():
        for i in range(4): a(idx1(i))
    def dmai(i): return f"buffer_load_dwordx4 {P2(IDX+2*(i&3))}, {SR4(sP)}, {'0' if i<4 else 's'+str(s128)} idxen offen offset:{1024*(i&3)}{GSC} lds"
    def dma():
        for i in range(8):
            if i==0: a(f"s_mov_b32 m0, s{sBUF}\ns_nop 0")
            if i==4: a(f"s_add_u32 m0, s{sBUF}, 4096\ns_nop 0")
            a(dmai(i))
    def dma_h1(mid):
        a(f"s_add_u32 m0, s{sBUF}, 4096"); a(mid)
        for i in range(4,8): a(dmai(i))
        a(f"s_mov_b32 m0, s{sBUF}")
        rd_idx()
    def dma_idx():
        for i in range(4): a(dmai(i))
        dma_h1(ry)
    rd_b=f"ds_read_b128 {P4(B3+2)}, v{QAD}\nds_read_b128 {P4(B3+10)}, v{QAD} offset:512"
    rd_a3=f"ds_read_b64 {P2(A6)}, v{EA}\nds_read_b64 {P2(A6+2)}, v{VY} offset:{OH}\nds_read_b64 {P2(A6+4)}, v{EA}"
    def rd_a(t): return f"ds_read_b128 {P4(A+4*t)}, v{AR} offset:{4096*(t>>2)+(16*(t&1)+2*((t>>1)&1))*128}"
    def m4(z,q,j,c=False): return mfma4(z+4*j,A+16*(q>>1)+4*j+2*(q&1),z+4*j if c else None)
    rd_s=f"ds_read_b64 {P2(SS)}, v{SA2}\nds_read_b64 {P2(SS+2)}, v{SA2+1}"
    def AQ(q): return A6+2*(q&1)
    win=f"v_add3_u32 v{VY}, v{VY}, v{OH2}, s{sW8}\nv_lshl_add_u32 v{QAD}, s{sQ}, 6, v{QC}"
    rd_ga(0); rd_gg(0)
    a(f"""
ds_read_u16 v{WT}, v1 offset:{GL}
ds_read_b32 v{GP}, v{VZ} offset:{mSLOW}
s_waitcnt lgkmcnt(3)
""")
    rd_idx()
    a("s_waitcnt lgkmcnt(0)")
    dma()
    pt('d0')
    a(f"v_readlane_b32 s{sNF}, v{WT}, s{sCNT}\nv_readfirstlane_b32 s{t3}, v{GP}")
    rd_y(); rd_ga(16)
    if US:
        a(f"s_cmp_ge_u32 s{sWV}, 4\ns_cbranch_scc1 KF_u"); ugemm(0)
        if GU: a("s_branch KF_u2\nKF_u:"); ugemm(1); a("KF_u2:")
        else: a("KF_u:")
    a("s_waitcnt lgkmcnt(0)")
    rd_idx()
    a(f"""
s_cmp_lg_u32 s{t3}, 0
s_cbranch_scc1 KF_SLOW
s_lshr_b32 s{sNF}, s{sNF}, 8
v_subrev_u32 v2, s{sNF}, v{VL}
v_and_b32 v2, 15, v2
v_add_u32 v{DR}, s{sNF}, v2
v_lshlrev_b32 v2, 2, v{DR}
ds_read_b32 v{GP}, v2 offset:{BT}
s_and_b32 s{sQ}, s{sNF}, -2
s_lshl_b32 s{sQ}, s{sQ}, 3
s_sub_u32 s{sW8}, 0, s{sQ}
{win}
{rd_b}
{rd_a3}
""")
    rd_gg(16)
    a(f"""
v_lshrrev_b32 v{WT}, 9, v{WT}
v_lshlrev_b32 v{WT}, 4, v{WT}           ; 8*(w&~1)
v_mov_b32 v{SS}, 0
v_mov_b32 v{SS+1}, 0
v_mov_b32 v{SS+2}, 0
v_mov_b32 v{SS+3}, 0
v_mad_u32_u24 v{SA2}, v{SI2}, s{sT0}, v{SA2}
v_mad_u32_u24 v{SA2+1}, v{SI2+1}, s{sT0}, v{SA2+1}
s_add_u32 s{t1}, s{sT0}, s{sCNT}
s_lshl_b32 s{t1}, s{t1}, 7
s_add_u32 s{t2}, s{sWV}, 48
v_mov_b32 v1, s{t2}
{mfma32(ACC+16,SS,SS,None)}
s_waitcnt lgkmcnt(0)
""")
    rd_y(); rd_ga(32)
    a(f"""
v_cmp_gt_u32 vcc, s{t0}, v{GP}
v_cmp_gt_u32 {S2(t2)}, s{t1}, v{GP}
v_cmp_gt_u32 {S2(t0)}, s{sNN}, v{DR}
v_cndmask_b32 v{DR}, v{DR}, v1, vcc
s_cmp_lg_u64 vcc, 0
s_cselect_b32 s{sHEAD}, 1, 0
s_and_b64 vcc, {S2(t2)}, {S2(t0)}
v_lshlrev_b32 v1, 2, v{VL}
v_cndmask_b32 v{DR}, 56, v{DR}, vcc
v_lshrrev_b32 v2, 1, v{VL}
v_mul_u32_u24 v{DR}, {AS}, v{DR}
v_and_b32 v2, 24, v2
v_add_u32 v{DR}, v{DR}, v2
s_mul_i32 s{t0}, s{sNF}, {AS}
v_add_u32 v{eM0}, s{t0}, v1
s_sub_u32 s{sCNT}, s{sCNT}, 1
s_mov_b32 m0, s{sBUF}
""")
    pt('pre')
    a("s_waitcnt vmcnt(4)")
    pt('g0')
    for t in range(4): a(rd_a(t))
    a("s_waitcnt lgkmcnt(0)")
    for j in range(4): a(m4(Z[0],0,j))
    a("s_nop 3")
    a(mfma32(Z[0],AQ(0),B3,Z[0]))
    a("s_nop 9")
    pt('pro')
    def finals(qprev):
        for u in range(2): a(f"v_pk_mul_f32 {P2(NN+2*u)}, {P2(NN+2*u)}, {P2(DD+2*u)}")
        for u in range(2): a(f"v_cvt_pk_bf16_f32 v{GP+2*(qprev&1)+u}, v{NN+2*u}, v{NN+2*u+1}")
    def ex(zc,r): return f"v_exp_f32 v{EE+r}, v{zc+r}"
    def body(first):
        for q in range(4):
            zc=Z[q&1]; zn=Z[(q+1)&1]; qn=(q+1)&3
            pend=[0,1,2,3,8,9,10,11,4,5,12,13,6,7,14,15]
            f0=first and q==0
            if q==0: a(f"v_readlane_b32 s{sQ}, v{WT}, s{sCNT}")
            if q==3 or (first and q==1): a(f"s_waitcnt lgkmcnt(0)")
            agg=(q&1) and not (first and q==1)
            p=1 if q==1 else 0
            if MO:
                a(mfma32(zn,AQ(qn),B3+4*qn,None))
                for j in range(4): a(f"v_rcp_f32 v{DD+j}, v{DD+j}" if not f0 else ex(zc,pend.pop(0)))
                if agg: a(mfma32(ACC+16*p,GP,SS,None if first else ACC+16*p))
                for r in range(5 if agg else 6): a(ex(zc,pend.pop(0)))
                for j in range(4):
                    a(m4(zn,qn,j,True))
                    if j<3: a(ex(zc,pend.pop(0)))
            else:
                for j in range(4):
                    a(m4(zn,qn,j))
                    a(f"v_rcp_f32 v{DD+j}, v{DD+j}" if not f0 else ex(zc,pend.pop(0)))
                if agg: a(mfma32(ACC+16*p,GP,SS,None if first else ACC+16*p))
                for r in range(4 if agg else 3): a(ex(zc,pend.pop(0)))
                a(mfma32(zn,AQ(qn),B3+4*qn,zn))
            def bx():
                a(f"s_sub_u32 s{sW8}, 0, s{sQ}\ns_waitcnt vmcnt(0) lgkmcnt(0)\n{win}")
                rd_gg(32); rd_ga(48)
                a(rd_b); a(rd_a3); a(rd_s)
                for t in range(8): a(rd_a(t))
            if q==2 and XP==0: a(ex(zc,pend.pop(0))); bx()
            for r in range((4 if not (q==2 and XP==0) else 3)-(3 if MO else 0)): a(ex(zc,pend.pop(0)))
            if q==2 and XP==1: bx()
            if f0:
                for i in range(4): a(dmai(i))
            if first and q==1: dma_h1("s_nop 0")
            if q==3:
                a(ya)
                if first: dma_idx()
                else:
                    a(f"s_cmp_gt_u32 s{sCNT}, 1\ns_cbranch_scc0 KF_lt")
                    dma_idx()
                    a("KF_lb:")
            if not f0: finals((q-1)&3)
            seq=[]
            for u in range(2): seq.append(f"v_pk_add_f32 {P2(DD+2*u)}, {P2(EE+8*u)}, 1.0 op_sel_hi:[1,0]")
            for m in range(1,4):
                for u in range(2):
                    src=(zc+8*u) if m==1 else NN+2*u
                    seq.append(f"v_pk_fma_f32 {P2(NN+2*u)}, {P2(src)}, {P2(EE+8*u+2*m)}, {P2(src)}")
                for u in range(2): seq.append(f"v_pk_fma_f32 {P2(NN+2*u)}, {P2(zc+8*u+2*m)}, {P2(DD+2*u)}, {P2(NN+2*u)}")
                for u in range(2): seq.append(f"v_pk_fma_f32 {P2(DD+2*u)}, {P2(DD+2*u)}, {P2(EE+8*u+2*m)}, {P2(DD+2*u)}")
            slots={7:[0,2,4,6,8,10,12],6:[1,3,6,8,10,12],2:[4,10],9:[0,1,2,3,4,6,8,10,12],8:[0,1,2,3,5,7,9,11],5:[1,4,7,10,12]}[len(pend)]
            for k,x in enumerate(seq):
                if f0 and k==H1P:
                    a("s_waitcnt vmcnt(4)")
                    for t in range(4,8): a(rd_a(t))
                a(x)
                if k in slots: a(ex(zc,pend.pop(0)))
            if q==2: a(f"v_pk_add_f32 {P2(RB)}, {P2(RB)}, {S2(sINC)}\nv_pk_add_f32 {P2(SA2)}, {P2(SA2)}, {P2(SI2)}")
    if PROF and 'dyn' in PTS: stamp(a,8); stamp(a,9,True)
    if PROF and 'clk' in PTS: stamp(a,6,True)
    n0=len(a.l)
    body(True)
    a("s_branch KF_LE\n.p2align 6\nKF_LOOP:")
    body(False)
    def keep(l):
        t=l.strip()
        if X&1 and t.startswith('buffer_load'): return False
        if X&2 and t.startswith('ds_read_b128 v[') and int(t.split('[')[1].split(':')[0])>=28: return False
        if X&8 and t.startswith('v_mfma'): return False
        if X&16 and t.startswith('v_pk_fma'): return False
        if X&32 and t.startswith('v_exp'): return False
        if Y&1 and t.startswith('v_mfma_f32_4x4'): return False
        if Y&2 and t.startswith('v_mfma_f32_32x32') and int(t.split('[')[1].split(':')[0])<ACC: return False
        if Y&4 and t.startswith('v_mfma_f32_32x32') and int(t.split('[')[1].split(':')[0])>=ACC: return False
        if Y&8 and t.startswith('v_rcp'): return False
        if Y&16 and t.startswith(('v_cvt_pk','v_pk_mul')): return False
        if Y&32 and t.startswith(('ds_read_b64','ds_read_b128 v[14','ds_read_b128 v[22')): return False
        return True
    a.l[n0:]=[l for l in a.l[n0:] if keep(l)]
    import re
    if UNP:
        L=[]; cnt=0
        for l in a.l[n0:]:
            m=re.match(r"\s*v_pk_fma_f32 v\[(\d+):\d+\], v\[(\d+):\d+\], v\[(\d+):\d+\], v\[(\d+):\d+\]",l)
            if m:
                cnt+=1
                d,x,y,z=map(int,m.groups())
                if UNP==1 or (UNP==2 and cnt%2==0) or (UNP==3 and d>=DD):
                    for k in range(2):
                        L.append(f"    v_fmac_f32 v{d+k}, v{x+k}, v{y+k}" if d==z else f"    v_fma_f32 v{d+k}, v{x+k}, v{y+k}, v{z+k}")
                    continue
            L.append(l)
        a.l[n0:]=L
    if X&(128|256|512|1024):
        L=[]
        for l in a.l[n0:]:
            m=re.match(r"\s*v_mfma_f32_32x32x16_bf16 v\[(\d+):\d+\], v\[(\d+):\d+\], v\[(\d+):\d+\], (.*)",l)
            if m and int(m.group(1))<ACC:
                d,x,y=int(m.group(1)),int(m.group(2)),int(m.group(3))
                if X&128:
                    if y==ID0: L+=["    "+mfma16(d+4,x,ID0,None),"    "+mfma16(d+8,x,ID1,None)]
                    elif y==ID1: L.append("    "+mfma16(d+12,x,ID0,None))
                    else: L.append("    "+mfma16(d,x,y,None))
                if X&1024:
                    if y in (ID0,ID1):
                        o=0 if y==ID0 else 8
                        for k in range(2): L.append(f"    v_mfma_f32_4x4x4_16b_bf16 v[{d+o+4*k}:{d+o+4*k+3}], v[{x+2*k}:{x+2*k+1}], v[{ID0}:{ID0+1}], v[{d+o+4*k}:{d+o+4*k+3}]")
                    else: L.append(l)
                if X&256:
                    if y!=ID1: L.append(l)
                if X&512:
                    if y==ID0: L.append(f"    v_mfma_f32_32x32x64_f8f6f4 v[{d}:{d+15}], v[{x}:{x+7}], v[{ID0}:{ID0+7}], v[{d}:{d+15}]")
                    elif y!=ID1: L.append(l)
            else: L.append(l)
        a.l[n0:]=L
    a("KF_LE:")
    if PRIO: a(f"s_bitcmp1_b32 {(1<<PT[0])|(1<<PT[1])|(1<<PT[2])}, s{sCNT}\ns_cbranch_scc1 KF_pr\nKF_pb:")
    a(f"""
s_sub_u32 s{sCNT}, s{sCNT}, 1
s_cbranch_scc0 KF_LOOP
""")
    def loop_tails():
        a(f"KF_lt:\ns_cmp_eq_u32 s{sCNT}, s{sWU}\ns_cbranch_scc0 KF_lb")
        sdma(sA,32768,0,WV)
        a(f"""
s_branch KF_lb
KF_pr:
""")
        if PROF and 'dyn' in PTS:
            a("s_mov_b32 s90, s92\ns_mov_b32 s91, s93\ns_mov_b32 s92, s94\ns_mov_b32 s93, s95\ns_mov_b32 s94, s96\ns_mov_b32 s95, s97")
            stamp(a,8); stamp(a,9,True)
        a(f"""
s_setprio 2
s_cmp_eq_u32 s{sCNT}, {PT[0]}
s_cbranch_scc1 KF_pb
s_setprio 1
s_cmp_eq_u32 s{sCNT}, {PT[1]}
s_cbranch_scc1 KF_pb
s_cmp_ge_u32 s{sWV}, {PL}
s_cbranch_scc1 KF_pb
s_setprio 0
s_branch KF_pb
""")
    a(f"""
s_lshl_b32 s{t0}, s{sW4}, 2
v_mov_b32 v1, s{t0}
s_cmp_ge_u32 s{sWV}, 4
s_cbranch_scc1 KF_w0
ds_write_b32 v1, v{TP} offset:{mWU}
s_branch KF_w1
KF_w0:
ds_read_b32 v2, v1 offset:{mWU}
s_waitcnt lgkmcnt(0)
v_cmp_eq_u32 vcc, 0, v2
s_cbranch_vccnz KF_w0
KF_w1:
""")
    def trw2(): trfrag(A,TP,0,2048,256); trfrag(A+16,TP,8,2048,256)
    trw2()
    for j in range(4): a(f"v_rcp_f32 v{DD+j}, v{DD+j}")
    a("s_nop 0")
    finals(3)
    a("s_nop 1")
    a(mfma32(ACC+16,GP,SS,ACC+16))
    pt('loop')
    if PROF and 'clk' in PTS: stamp(a,7,True)
    def epst():
        a(f"""
s_or_b32 s{t1}, s2, s{sWV}
s_cbranch_scc1 KF_e2
v_mov_b32 v2, s{sNON}
s_mov_b64 exec, 1
buffer_store_dword v2, v{VZ}, {SR4(sR)}, 0 offen{ESC}
s_mov_b64 exec, -1
KF_e2:
""")
    for p in range(2):
        for j in range(4):
            c=ACC+16*p+4*j
            a(f"v_cvt_pk_bf16_f32 v{c}, v{c}, v{c+1}\nv_cvt_pk_bf16_f32 v{c+1}, v{c+2}, v{c+3}")
        for j in range(4): a(f"ds_write_b64 v{DR}, {P2(ACC+16*p+4*j)} offset:{AGB+128*p+32*j}")
    a(f"""
s_cmp_eq_u32 s{sHEAD}, 0
""")
    pt('dmp')
    bar('be',"s_waitcnt vmcnt(0) lgkmcnt(0)")
    a(f"""
s_cbranch_scc1 KF_FIN
ds_read_b32 v4, v{eM0} offset:{AGB}
ds_read_b32 v5, v{eM1} offset:{AGB+48*AS}
""")
    a(f"""
s_waitcnt lgkmcnt(0)
v_lshlrev_b32 v6, 16, v4
v_and_b32 v7, 0xffff0000, v4
v_lshlrev_b32 v8, 16, v5
v_and_b32 v9, 0xffff0000, v5
v_pk_add_f32 v[6:7], v[6:7], v[8:9]
v_cvt_pk_bf16_f32 v6, v6, v7
ds_write_b32 v{eM0}, v6 offset:{AGB}
KF_FIN:
""")
    a(f"s_cmp_ge_u32 s{sWV}, 4")
    if EP_==0: epst()
    bar('mrg')
    def EXP(rs): return [f"v_exp_f32 v{EE+i}, v{UA+i}" for i in rs]
    def RCP(rs): return [f"v_rcp_f32 v{EE+i}, v{EE+i}" for i in rs]
    def FMA(rs): return [f"v_fma_f32 v{EE+i}, v{EE+i}, s{sL2E}, s{sL2E}" for i in rs]
    def FIN(tau):
        e=EE+8*tau; c=UA+8*tau
        return [f"v_pk_mul_f32 {P2(e+2*j)}, {P2(e+2*j)}, {P2(c+2*j)}" for j in range(4)]+[f"v_cvt_pk_bf16_f32 v{e+j}, v{e+2*j}, v{e+2*j+1}" for j in range(4)]+[f"ds_write_b128 v{eOW}, {P4(e)} offset:{tau*4096}"]
    def PFM(rs): return [f"v_pk_fma_f32 {P2(EE+i)}, {P2(EE+i)}, {S2(sL2E)}, {S2(sL2E)}" for i in rs]
    XE=Z[0]
    for tau in range(2):
        for s_ in range(4): a(f"ds_read_b128 {P4(XE+16*tau+4*s_)}, v{eFA} offset:{AGB+tau*16*AS+64*s_}")
    for k,(x,y) in enumerate(zip(um(0,0,0,XE,True,A),um(0,0,1,XE,True,A))): a(f"s_waitcnt lgkmcnt({7-k})"); a(x); a(y)
    a("s_waitcnt lgkmcnt(0)"); pt('e1'); a("s_cbranch_scc1 KF_eg")
    for r in range(2):
        if r==1: a("KF_eg:")
        for x,y in zip(um(r,1,0,XE+16,True,A),um(r,1,1,XE+16,True,A)): a(x); a(y)
        pt('e2')
        if r==0:
            for x in EXP(range(8))+FMA(range(8))+RCP(range(8))+EXP(range(8,16))+FIN(0)+PFM(range(8,16,2))+RCP(range(8,16))+["s_nop 0"]+FIN(1): a(x)
            a("s_branch KF_ej")
        else:
            for x in EXP(list(range(8))+[8,12])+PFM((0,2,4,6,8,12))+RCP(list(range(8))+[8,12])+FIN(0): a(x)
            a(f"""
v_mul_f32 v{EE+8}, v{EE+8}, v{UA+8}
v_mul_f32 v{EE+12}, v{EE+12}, v{UA+12}
s_mov_b64 exec, 0xffff
v_cvt_pk_bf16_f32 v{EE+8}, v{EE+8}, v{EE+12}
ds_write_b16 v{eN48}, v{EE+8}
ds_write_b16_d16_hi v{eN48}, v{EE+8} offset:8
s_mov_b64 exec, -1
""")
    a(f"KF_ej:\ns_cmp_lt_u32 s{sWV}, 5")
    pt('e3')
    bar('sil')
    a(f"""
ds_read_b128 {P4(A)}, v{eRD}
s_cbranch_scc0 KF_e1
ds_read_b128 {P4(A+4)}, v{eRD} offset:8192
s_mov_b64 exec, {S2(sE2)}
s_waitcnt lgkmcnt(0)
buffer_store_dwordx4 {P4(A+4)}, v{eST}, {SR4(sX)}, s{sE1} offen{OSC}
s_mov_b64 exec, -1
KF_e1:
s_waitcnt lgkmcnt(0)
buffer_store_dwordx4 {P4(A)}, v{eST}, {SR4(sX)}, s{sE0} offen{OSC}
""")
    pt('sto')
    a(f"""
""")
    if PROF: a("s_waitcnt vmcnt(0)")
    stamp(a,10); stamp(a,11,True)
    stamp_out(a,1,sWV)
    a("KF_END:\ns_endpgm")
    loop_tails()
    hist_retry(8,"KT_h",True)
    a("KF_CEND:")
    SV=ACC; AGs=SV+8; RS_=SV+16
    a(f"""
KF_SLOW:
s_setprio 0
s_cmp_ge_u32 s{sWV}, 4
s_cselect_b32 s{sTOT}, 0, s{sTOT}
v_mov_b32 v1, s{sTOT}
ds_max_u32 v{VZ}, v1 offset:{mMX}
v_mov_b32 v{SS}, 0
v_mov_b32 v{SS+1}, 0
v_mov_b32 v{SS+2}, 0
v_mov_b32 v{SS+3}, 0
s_mov_b32 s{sLO}, 0
s_mov_b32 s{sLB}, s{sBUF}
s_sub_u32 s{t0}, s{sWV}, s{sT0}
s_lshl_b32 s{t0}, s{t0}, 4
v_add_u32 v{SV+4}, s{t0}, v{RB}
v_add_u32 v{SV+5}, s{t0}, v{SB}
s_lshl_b32 s{t0}, s{sWV}, 4
v_sub_u32 v{SV+6}, s{t0}, v{OHC}
v_and_b32 v{SV+7}, 28, v{VL}
v_and_b32 v1, 3, v{VL}
v_lshlrev_b32 v1, 2, v1
v_lshl_or_b32 v{SV+7}, v{SV+7}, 3, v1
v_lshlrev_b32 v1, 4, v0
""")
    for j in range(3): a(f"ds_write_b128 v1, {P4(SS)} offset:{AGG+j*8192}")
    a(f"""
v_lshlrev_b32 v1, 4, v{VL}
ds_write_b128 v1, {P4(SS)} offset:{AGG+3*8192}
s_waitcnt vmcnt(0) lgkmcnt(0)
s_barrier
ds_read_b32 v1, v{VZ} offset:{mMX}
s_waitcnt lgkmcnt(0)
v_readfirstlane_b32 s{sRND}, v1
KF_SR:
s_cmp_lt_u32 s{sLO}, s{sRND}
s_cbranch_scc0 KF_SE
s_barrier
v_lshlrev_b32 v1, 2, v{VL}
v_lshlrev_b32 v2, 8, v{VL}
ds_write_b32 v1, v2
s_waitcnt lgkmcnt(0)
s_barrier
s_cmp_ge_u32 s{sWV}, 4
s_cbranch_scc1 KF_S1
s_movk_i32 s{t3}, 256
""")
    expand("KF_x")
    a(f"s_sub_u32 s{t1}, s{sTOT}, s{sLO}")
    reclist(4)
    recload(4,"KF_rl")
    for i in range(4): a(f"s_mov_b64 {S2(sM+8+2*i)}, {S2(sM+2*i)}")
    hist(4,"KF_h",0,False)
    a("s_waitcnt lgkmcnt(0)")
    for i in range(4):
        a(f"""
v_mov_b32 v{RS_+4*i}, v{RC+4*i}
v_mov_b32 v{RS_+4*i+1}, v{RC+4*i+1}
v_mov_b32 v{RS_+4*i+2}, v{RC+4*i+2}
v_lshlrev_b32 v1, 6, v{RC+4*i+3}
v_sub_u32 v1, v{RK+i}, v1
v_cndmask_b32 v{RS_+4*i+3}, -1, v1, {S2(sM+8+2*i)}
""")
    a(f"""
KF_S1:
s_mov_b32 s{sHEAD}, 0                    ; 256*k
KF_SK:
s_waitcnt lgkmcnt(0)
s_barrier
s_cmp_ge_u32 s{sWV}, 4
s_cbranch_scc1 KF_S2
s_mov_b32 s{t1}, {EB}
""")
    for i in range(4):
        a(f"""
v_subrev_u32 v1, s{sHEAD}, v{RS_+4*i+3}
v_lshrrev_b32 v2, 19, v{RS_+4*i+2}
v_lshl_add_u32 v2, v2, 8, v1
v_lshl_add_u32 v3, v2, 1, s{t1}
v_cmpx_gt_u32 vcc, 0x100, v1
ds_write_b32 v2, v{RS_+4*i+2} offset:{WB}
ds_write_b64 v3, {P2(RS_+4*i)}
s_mov_b64 exec, -1
""")
    a("KF_S2:")
    scan(True)
    a(f"s_cmp_lg_u64 {S2(t2)}, 0\ns_cselect_b32 s{sFLAG}, 1, 0")
    fill("KFs",True,8)
    a(f"""
s_add_u32 s{sNT}, s{t0}, 127
s_lshr_b32 s{sNT}, s{sNT}, 7
s_waitcnt lgkmcnt(0)
s_barrier
v_mov_b32 v{RB}, v{SV+4}
v_mov_b32 v{SB}, v{SV+5}
v_mov_b32 v{SV+12}, v{SV+6}
s_mov_b32 s{sI}, s{sWV}
KF_SL:
s_cmp_lt_u32 s{sI}, s{sNT}
s_cbranch_scc0 KF_SN
""")
    rd_ga(0); rd_gg(0)
    for j in range(4): a(f"ds_read_u16 v{AGs+j}, v{SV+12} offset:{GL+2*j}")
    a("s_waitcnt lgkmcnt(0)")
    rd_y(); rd_idx()
    a(f"s_waitcnt lgkmcnt(0)\nv_cmp_ne_u32 vcc, 0xffff, v{IDX}\ns_cbranch_vccz KF_SM")
    dma()
    for j in range(4): a(f"v_lshrrev_b32 v{AGs+j}, 8, v{AGs+j}")
    a(f"""
v_readfirstlane_b32 s{sQ}, v{AGs}
s_nop 3
s_and_b32 s{sQ}, s{sQ}, -2
s_lshl_b32 s{sQ}, s{sQ}, 3
s_sub_u32 s{sW8}, 0, s{sQ}
{win}
{rd_b}
{rd_a3}
""")
    for j in range(4): a(f"v_lshl_add_u32 v{AGs+j}, v{AGs+j}, 9, v{SV+7}")
    a("s_waitcnt vmcnt(0) lgkmcnt(0)")
    for t in range(8): a(rd_a(t))
    a("s_waitcnt lgkmcnt(0)")
    for q in range(4):
        z=Z[0]
        for j in range(4): a(m4(z,q,j))
        a("s_nop 3"); a(mfma32(z,AQ(q),B3+4*q,z))
        a("s_nop 15")
        for r in range(16): a(f"v_exp_f32 v{EE+r}, v{z+r}")
        for r in range(16): a(f"v_add_f32 v{EE+r}, 1.0, v{EE+r}")
        for r in range(16): a(f"v_rcp_f32 v{EE+r}, v{EE+r}")
        for m in range(4):
            for u in range(2):
                for par in range(2):
                    r=8*u+2*m+par; g=GP+2*u+par
                    a(f"v_mul_f32 v{g}, v{z+r}, v{EE+r}" if m==0 else f"v_fmac_f32 v{g}, v{z+r}, v{EE+r}")
        for j in range(4): a(f"ds_add_f32 v{AGs+j}, v{GP+j} offset:{AGG+256*(q>>1)+16*(q&1)}")
        a("s_waitcnt lgkmcnt(0)")
    a(f"""
KF_SM:
v_add_u32 v{SB}, 128, v{SB}
v_add_u32 v{RB}, 128, v{RB}
v_add_u32 v{SV+12}, 128, v{SV+12}
s_add_u32 s{sI}, s{sI}, 8
s_branch KF_SL
KF_SN:
s_add_u32 s{sHEAD}, s{sHEAD}, 256
s_cmp_lg_u32 s{sFLAG}, 0
s_cbranch_scc1 KF_SK
s_add_u32 s{sLO}, s{sLO}, 256
s_branch KF_SR
KF_SE:
s_cmp_ge_u32 s{sWV}, 4
s_cbranch_scc1 KF_SE2
""")
    sdma(sA,32768,0,WV)
    a(f"""
KF_SE2:
v_lshlrev_b32 v1, 4, v0
v_lshrrev_b32 v2, 5, v0
s_waitcnt vmcnt(0) lgkmcnt(0)
s_barrier
""")
    for j in range(4): a(f"ds_read_b128 {P4(A+4*j)}, v1 offset:{AGG+j*8192}")
    a(f"""
v_mul_u32_u24 v2, {AS}, v2
v_and_b32 v3, 31, v0
v_lshl_add_u32 v4, v3, 3, v2
s_waitcnt lgkmcnt(0)
s_barrier
""")
    for j in range(4):
        a(f"v_cvt_pk_bf16_f32 v{A+4*j}, v{A+4*j}, v{A+4*j+1}\nv_cvt_pk_bf16_f32 v{A+4*j+1}, v{A+4*j+2}, v{A+4*j+3}")
        a(f"ds_write_b64 v4, {P2(A+4*j)} offset:{AGB+j*16*AS}")
    trw2()
    a("s_branch KF_FIN")
    hist_retry(4,"KF_h",False)
    return a.text()

DOC='''; ---------------------------------------------------------------------------------------------
; ---------------------------------------------------------------------------------------------
'''
if __name__=='__main__':
    import sys
    nm='standalone__mpnn_edge_mlp__graph_kernel'
    hdr=open('standalone__mpnn_edge_mlp__graph.s.ref').read().split('; Override')[0]
    out=hdr+(f"; @launch kernel={nm} grid=(256,1,1) block=(512,1,1) lds={KF_LDS}\n" if os.environ.get('LISTF') else f"; @launch grid=(256,1,1) block=(512,1,1) lds={KF_LDS}\n")
    out+=DOC+'.amdgcn_target "amdgcn-amd-amdhsa--gfx950"\n.text\n'
    out+=f".globl {nm}\n.p2align 8\n.type {nm},@function\n"+gen_kf(nm)
    out+='.section .rodata,"a"\n.p2align 6\n'+kd(nm,256)
    open(sys.argv[1],'w').write(out)
```

```python
from common import *
X=int(os.environ.get('X','0'))
PRIO=int(os.environ.get('PRIO','1'))
DSP=[int(c,36) for c in os.environ.get('DSP','00000000')]
def EV(n,d): return int(os.environ.get(n,d))
TPOS=EV('TPOS',6); PFP=EV('PFP',3); XORD=EV('XORD',1); WUI=EV('WUI',2); FLP=EV('FLP',1); FSL=EV('FSL',8); TE=1; MO=EV("MO",0); Y=EV("Y",0); GU=EV("GU",0); GQP=EV("GQP",0); PL=EV("PL",8); PT=[int(c) for c in os.environ.get("PT","531")]; WG_=EV("WG",3); GPN=EV("GPN",1); N4=EV("N4",0); NW=EV("NW",1); RWI=EV("RWI",0); US=EV("US",0); TP_=EV("TP",7); SWU=EV("SWU",0); EO=EV("EO",1); NS=EV("NS",5); NE=EV("NE",3); FR=EV('FR',8); FS=EV('FS',2); W1N=EV('W1N',5); GP_=EV('GP',1); NT=os.environ.get('NT',''); CLM=EV('CLM',0); CLW=EV('CLW',1); SLP=EV('SLP',1); H1P=EV('H1P',10); SH3=EV('SH3',0); EP_=EV('EP',1); ESC=os.environ.get('ESC',''); PERM=EV('PERM',0); W2N=EV('W2N',8); UL=EV('UL',0); WU1L=EV('WU1L',0); W1E=EV('W1E',0); ZL=EV('ZL',0); FST=EV('FST',0); UNP=EV('UNP',0); TLB=EV('TLB',0); DBGP=EV('DBGP',0); ALN=EV('ALN',0); PFT=EV('PFT',1); PFK=EV('PFK',7); PF0=EV('PF0',0); PFN=EV('PFN',16); XP=EV('XP',0); PFI=EV('PFI',0); SWW=EV('SWW',1)
PTS=os.environ.get('PTS','b1,bS,tp,pfl,rl,b2,b3,pro').split(',')
SC=os.environ.get('LSC',' sc1')
SSC=os.environ.get('SSC',' sc1')
OSC=os.environ.get('OSC',' sc1')
GSC=os.environ.get('GSC',' sc1')
NPROD=250; EP=1600; RST=EP*16
PB0=0x1000000 if PROF else 0
RSL=0x690000; NRS=EV('NRS',8); F_TBL=PB0; F_REC=PB0+0x40000
PSL=0x320000; F_P=PB0+NRS*RSL+0x1000; F_FLG=F_P-0x1000+0x312000; F_SIZE=0x10000000
NSL=(F_SIZE-F_P+0x1000)//PSL
assert 0x40000+256*RST<=RSL
CNT=0; MISC=256; OH=400; GL=928; BT=1872; STB=2144; RS=944
mSLOW=MISC; mS=MISC+4; mGX=MISC+8; mGP=MISC+12; mC3=MISC+16; mPD=MISC+20; mSL=MISC+24; mMX=MISC+28; mPI=MISC+32; mH=MISC+36; mNT=MISC+40; mW=MISC+44; mE=MISC+48; mEM=MISC+52; mNO=MISC+56; mPS=MISC+60; mWU=MISC+64
AGB=17408
W3L=AGB+56*256
Q2=AGB+16384; QS=52*128
S1=Q2; ERAW=Q2+12800
WB=Q2+4*QS; NULLG=49*256; EB=WB+NULLG+16
HIST=WB; PSC=WB+2048
GBUF=98304
KF_LDS=GBUF+65536
assert EB+2*NULLG+32<=GBUF and STB+16*RS<=AGB
AGG=STB
ONE2=0x3F803F80
NULLW2=0xFFFF|(512<<16)
CAPT=58
ID0=4; ID1=8; B3=12; A=28; Z=[60,76]; A3=92; EE=96; NN=112; DD=116; GP=120; SS=124
IDX=128; AR=144; RB=152; SB=153; SA=154; VY=155; OHC=156; VL=157; WT=158; DR=159
ACC=160; WU2=192; UA=208; WF=160; WU1=176; QA=224; RC=96; XF=28; GA=192
TP=143; WV=151; A6=244; QAD=250; QC=145; SA2=146; SI2=148; OH2=150; GA0=232; YA=234; EA=235; M4=236; EC=237; VZ=238; PO=92; TRU=240; TD=241; TC=242; TO=243; RK=244; FA=252
sP=24; sX=28; sA=32; sR=36; sM=40
sWV=56; sK=57; sNN=58; sI=59; sNT=60; sBUF=61; sQ=62; sW8=63; sCNT=64; sT0=65
sL2E=66; sINC=68; sRND=70; sTOT=71; sNON=72; sBUD=73; sW4=74; sLB=75
sWU=3; sW4K=22; sPO=23; sRO=59; sFLAG=76; sLO=77; sMA=78; sQ2=80; s128=81; sHEAD=82; sNF=83
t0,t1,t2,t3=84,85,86,87
BUDGET=400000
sNB=2 if PERM else sK

def mfma32(d,x,y,c): return f"v_mfma_f32_32x32x16_bf16 v[{d}:{d+15}], v[{x}:{x+3}], v[{y}:{y+3}], "+("0" if c is None else f"v[{c}:{c+15}]")
def mfma16(d,x,y,c): return f"v_mfma_f32_16x16x32_bf16 v[{d}:{d+3}], v[{x}:{x+3}], v[{y}:{y+3}], "+("0" if c is None else f"v[{c}:{c+3}]")
def mfma4(d,x,c): return f"v_mfma_f32_4x4x4_16b_bf16 v[{d}:{d+3}], v[{x}:{x+1}], v[{ID0}:{ID0+1}], "+("0" if c is None else f"v[{c}:{c+3}]")
def P2(r): return f"v[{r}:{r+1}]"
def P4(r): return f"v[{r}:{r+3}]"
def S2(r): return f"s[{r}:{r+1}]"
def SR4(r): return f"s[{r}:{r+3}]"

def gen_kf(name):
    a=Asm()
    def pt(n):
        if PROF and n in PTS: stamp(a,2+PTS.index(n))
    def ret(n):
        if PROF and n in PTS: a(f"s_sub_u32 s{90+PTS.index(n)}, {BUDGET}, s{sBUD}\ns_mul_i32 s{90+PTS.index(n)}, s{90+PTS.index(n)}, 100")
    def bar(n,w="s_waitcnt lgkmcnt(0)"):
        a(w+"\ns_barrier"); pt(n)
    def gsync(n,lab,off,target,va,vt,pre=None):
        if pre: a(pre)
        a(f"""
v_mov_b32 v{vt}, 1
s_mov_b64 exec, 1
ds_add_u32 v{va}, v{vt} offset:{off}
s_mov_b64 exec, -1
{lab}:
ds_read_b32 v{vt}, v{va} offset:{off}
s_waitcnt lgkmcnt(0)
v_readfirstlane_b32 s{t1}, v{vt}
s_and_b32 s{t1}, s{t1}, 255
s_cmp_lt_u32 s{t1}, {target}
s_cbranch_scc1 {lab}
""")
        pt(n)
    def gwait(lab,off,target,va,vt):
        if SLP: a(f"s_branch {lab}_\n{lab}:\ns_sleep {SLP}\n{lab}_:")
        else: a(f"{lab}:")
        a(f"""
ds_read_b32 v{vt}, v{va} offset:{off}
s_waitcnt lgkmcnt(0)
v_readfirstlane_b32 s{t1}, v{vt}
s_and_b32 s{t1}, s{t1}, 255
s_cmp_lt_u32 s{t1}, {target}
s_cbranch_scc1 {lab}
""")
    def consts():
        srd(a,sP,20,N,off=F_P-3072,stride=256)
        srd(a,sR,20,F_SIZE)
        a(f"""
s_cmp_lt_u32 s{sNB}, {N-256*48}
s_cselect_b32 s{sNN}, 49, 48
s_mov_b32 s{sL2E}, {hex(LOG2E_NEG)}
s_mov_b32 s{sL2E+1}, {hex(LOG2E_NEG)}
s_mov_b32 s{sINC}, 16
s_mov_b32 s{sINC+1}, 16
s_mov_b32 s{sMA}, 0x0000ffff
s_mov_b32 s{sMA+1}, 0x0000ffff
s_mov_b32 s{sQ2}, {Q2}
s_mov_b32 s{sBUD}, {BUDGET}
v_lshrrev_b32 v2, 5, v{VL}              ; h
; g = 4 b2 + 2 b4 + b0 ; m = 2 b3 + b1 ; slot = 16 b2 + 4 m + (g&3)
v_lshrrev_b32 v1, 3, v{VL}
v_and_b32 v1, 2, v1
v_and_or_b32 v1, v{VL}, 5, v1           ; g
v_lshlrev_b32 v{RB}, 1, v1
v_lshlrev_b32 v3, 1, v{VL}
v_and_b32 v3, 4, v3
v_and_or_b32 v{M4}, v{VL}, 8, v3        ; 4m
v_lshlrev_b32 v{EC}, 1, v{M4}
v_add_u32 v{EC}, {EB}, v{EC}
v_and_b32 v{WT}, 15, v{VL}              ; n / c16
v_lshlrev_b32 v3, 1, v3
v_and_or_b32 v3, v{VL}, 1, v3
v_lshl_or_b32 v3, v2, 2, v3
v_lshl_add_u32 v{AR}, v3, 7, s{sBUF}
v_bfe_u32 v1, v{VL}, 1, 1
v_bfe_u32 v3, v{VL}, 2, 3
v_xor_b32 v1, v1, v3
v_lshl_add_u32 v{AR}, v1, 4, v{AR}
v_mul_i32_i24 v{OHC}, -8, v2
v_mul_u32_u24 v{SA}, {RS}, v{WT}
v_and_b32 v1, 1, v{VL}
v_lshlrev_b32 v1, 4, v1
v_mov_b32 v3, 0x3f80
v_lshlrev_b32 v1, v1, v3
""")
        a(f"s_mov_b32 vcc_lo, 0x33333333\ns_mov_b32 vcc_hi, 0x33333333\nv_cndmask_b32 v{ID0}, 0, v1, vcc\nv_sub_u32 v{ID0+1}, v1, v{ID0}")
        a(f"""
v_lshrrev_b32 v2, 4, v{VL}              ; a / g
v_lshrrev_b32 v{SB}, 2, v{VL}
v_and_b32 v{SB}, 14, v{SB}
v_and_b32 v1, 7, v{VL}
v_lshlrev_b32 v1, 4, v1
s_movk_i32 s{s128}, 128
""")
        for i in range(4): a(f"v_xor_b32 v{IDX+2*i+1}, {(i&1)*16+3072-1024*i}, v1")
        a(f"v_xor_b32 v3, v2, v{WT}\nv_lshlrev_b32 v3, 4, v3\nv_lshl_add_u32 v3, v{WT}, 8, v3\nv_add_u32 v{FA}, {AGB}, v3")
        for s in range(1,4): a(f"v_xor_b32 v{FA+s}, {64*s}, v{FA}")
        a(f"""
s_lshl_b32 s{t0}, s{sW4}, 13
s_add_u32 s{t0}, s{t0}, {GBUF}
s_lshr_b32 s{t1}, s{sWV}, 2
v_lshrrev_b32 v1, 2, v{WT}
v_lshl_add_u32 v1, v2, 3, v1
v_lshl_add_u32 v{DR}, v1, 6, s{t0}
v_xor_b32 v2, s{t1}, v2
v_and_b32 v2, 1, v2
v_and_b32 v3, 3, v{VL}
v_lshl_add_u32 v{TRU}, v2, 5, v{DR}
v_lshl_add_u32 v{TRU}, v3, 3, v{TRU}
v_lshrrev_b32 v2, 3, v{VL}
v_and_b32 v2, 2, v2
v_xor_b32 v2, v2, v3
v_lshl_add_u32 v{TP}, v2, 4, v{DR}
""")
    def slot(sNON=sNON):
        a(f"""
s_mul_i32 s{sPO}, s{sNON}, 0x9E3779B1
s_mul_i32 s{sRO}, s{sPO}, 0x85EBCA6B
s_mul_hi_u32 s{sPO}, s{sPO}, {NSL}
s_mul_hi_u32 s{sRO}, s{sRO}, {NRS}
s_mul_i32 s{sPO}, s{sPO}, {PSL}
s_mul_i32 s{sRO}, s{sRO}, {RSL}
s_add_u32 s{sP}, s{sP}, s{sPO}
s_addc_u32 s{sP+1}, s{sP+1}, 0
""")
    def vyc(VY=VY):
        a(f"""
v_lshrrev_b32 v1, 4, v{VL}
v_and_b32 v1, 2, v1
v_xor_b32 v1, v1, v{VL}
v_and_b32 v1, 3, v1
v_lshlrev_b32 v1, 4, v1
v_lshrrev_b32 v2, 2, v{VL}
v_lshl_or_b32 v{VY}, v2, 8, v1
""")
    def trfrag(dst,addr,off,ks,hs):
        for s in range(4):
            a(f"ds_read_b64_tr_b16 {P2(dst+4*s)}, v{addr} offset:{off+s*ks}\nds_read_b64_tr_b16 {P2(dst+4*s+2)}, v{addr} offset:{off+s*ks+hs}")
    def tru(dst,off): trfrag(dst,TRU,off,2048,256)
    def sdma(sr,moff,loff=0,v=VY,js=range(8)):
        a(f"s_lshl_b32 s{t0}, s{sW4}, 6")
        for j in js:
            a(f"s_add_u32 m0, s{sBUF}, {loff+j*1024}\ns_add_u32 s{t1}, s{t0}, {moff+j*4096}\nbuffer_load_dwordx4 v{v}, {SR4(sr)}, s{t1} offen lds")
    def xfrags(Ts):
        for T in Ts:
            for s in range(4): a(f"ds_read_b128 {P4(XF+16*T+4*s)}, v{FA+s} offset:{T*4096}")
    def trw(): trfrag(WF,TP,32768,2048,256); trfrag(WF+16,TP,32768+8,2048,256)
    def um(r,tau,i,xf,acc,WF=WF):
        L=[]
        for s in range(4):
            w,x=WF+16*i+4*s,xf+4*s
            d=UA+8*tau+4*i
            L.append(mfma16(d,*((x,w) if (r,tau)==(1,1) else (w,x)),d if (acc or s) else None))
        return L
    def ugemm(r):
        for tau in range(2):
            for i in range(2):
                for x in um(r,tau,i,XF+16*(2*r+tau),False): a(x)
        a("s_nop 4")
        for j in ((0,2,4,6,8,10,12,14) if r==0 else (0,2,4,6,8,12)): a(f"v_pk_mul_f32 {P2(UA+j)}, {P2(UA+j)}, {S2(sL2E)}")
    def w3rd():
        a(f"v_lshlrev_b32 v1, 3, v{VL}")
        for q in range(4): a(f"ds_read_b64 {P2(B3+4*q+2*(q&1))}, v1 offset:{W3L+q*512}")
    F=A3
    def scan(slow):
        a(f"""
v_lshlrev_b32 v1, 2, v{VL}
ds_read_b32 v{F}, v1
v_cmp_gt_u32 vcc, s{sNN}, v{VL}
v_lshlrev_b32 v{F+1}, 8, v{VL}
s_waitcnt lgkmcnt(0)
v_sub_u32 v{QA}, v{F}, v{F+1}
""")
        if slow:
            a(f"""
s_movk_i32 s{t1}, 256
v_subrev_u32 v{QA}, s{sHEAD}, v{QA}
v_cmp_lt_i32 {S2(t2)}, s{t1}, v{QA}
v_med3_i32 v{QA}, v{QA}, 0, s{t1}
v_add_u32 v{F}, v{F+1}, v{QA}
""")
        a(f"""
v_add_u32 v3, 12, v{QA}
v_and_b32 v3, -16, v3
v_max_u32 v3, 80, v3
v_cndmask_b32 v3, 0, v3, vcc
v_mov_b32 v2, v3
""")
        dpp_scan(a,"v_add_u32",[2])
        a(f"""
v_readlane_b32 s{t0}, v2, 63
v_sub_u32 v2, v2, v3
""")
    def fill(lab,slow,nw):
        a(f"""
s_lshl_b32 s{t1}, s{sWV}, 4
v_add_u32 v{QA+1}, s{t1}, v2
v_lshrrev_b32 v{QA+1}, 3, v{QA+1}       ; 2*(G0+w)
v_add_u32 v{F+1}, s{t1}, v{F+1}         ; 256n+16w
v_subrev_u32 v{QA+2}, s{t1}, v3         ; g16-16w
""")
        if not slow: a(f"v_add_u32 v{QA+3}, v{QA+1}, v{SA}\nv_mov_b32 v{F+3}, 0x3f80\nds_write_b32 v1, v2 offset:{BT}")
        for k in range(16//nw):
            a(f"v_cmpx_lt_i32 vcc, {16*nw*k}, v{QA+2}\nds_write_b16 v{QA+1}, v{F+1+(k&1)} offset:{GL+2*nw*k}")
            if k+1<16//nw: a(f"v_add_u32 v{F+1+((k+1)&1)}, {16*nw}, v{F+1+(k&1)}")
            if not slow: a(f"ds_write_b16 v{QA+3}, v{F+3} offset:{STB+2*nw*k}")
        a(f"""
s_mov_b64 exec, -1
s_lshl_b32 s{t1}, s{sWV}, 2
v_sub_u32 v{QA+2}, v3, v{QA}
v_add_u32 v{F}, s{t1}, v{F}
v_subrev_u32 v{QA+2}, s{t1}, v{QA+2}    ; pad4 - 4w
s_mov_b32 s{t1}, {EB}
v_mov_b32 v{QA+4}, 0
v_mov_b32 v{QA+5}, 0
v_mov_b32 v{QA+6}, {hex(NULLW2)}
v_lshl_add_u32 v{QA+7}, v{F}, 1, s{t1}
""")
        for k in range(-(-20//nw)):
            a(f"v_cmpx_lt_i32 vcc, {4*nw*k}, v{QA+2}")
            if k==1: a(f"s_cbranch_vccz {lab}p")
            a(f"ds_write_b32 v{F}, v{QA+6} offset:{WB+4*nw*k}\nds_write_b64 v{QA+7}, {P2(QA+4)} offset:{8*nw*k}")
        a(f"""
{lab}p:
s_mov_b64 exec, -1
s_cmp_eq_u32 s{sWV}, 3
s_cbranch_scc0 {lab}q
s_lshr_b32 s{t1}, s{t0}, 3
v_lshl_add_u32 v{QA+1}, v{VL}, 1, s{t1}
v_mov_b32 v{QA+2}, {NULLG}
v_add_u32 v{QA+3}, {NULLG}, v1
v_lshlrev_b32 v{QA+7}, 1, v1
v_add_u32 v{QA+7}, {EB+2*NULLG}, v{QA+7}
s_mov_b64 exec, 0xff
ds_write_b16 v{QA+1}, v{QA+2} offset:{GL}
s_mov_b64 exec, 15
ds_write_b32 v{QA+3}, v{QA+6} offset:{WB}
ds_write_b64 v{QA+7}, {P2(QA+4)}
s_mov_b64 exec, -1
{lab}q:
""")
    def expand(lab,win=True):
        if win: a(f"""
v_subrev_u32 v1, s{sLO}, v{TO}
v_add_u32 v2, v1, v{TC}
v_med3_i32 v1, v1, 0, s{t3}
v_med3_i32 v2, v2, 0, s{t3}
v_sub_u32 v2, v2, v1
v_lshl_add_u32 v1, v1, 2, s{sLB}
""")
        a(f"{lab}:")
        for j in range(16):
            a(f"v_cmpx_lt_i32 vcc, {j}, v2")
            if j==13: a(f"s_cbranch_vccz {lab}z")
            a(f"ds_write_b32 v1, v{TD} offset:{4*j}")
        a(f"""
v_add_u32 v2, -16, v2
v_add_u32 v1, 64, v1
v_cmp_lt_i32 vcc, 0, v2
s_cmp_lg_u64 vcc, 0
s_cbranch_scc1 {lab}
{lab}z:
s_mov_b64 exec, -1
""")
    def rl1(i): return f"buffer_load_dwordx4 {P4(RC+4*i)}, v{RK+i}, {SR4(sR)}, {'0' if i<4 else 's'+str(sQ)} offen offset:{1024*(i&3)}{SC}"
    def reclist(ns):
        a(f"v_lshl_add_u32 v1, v{VL}, 2, s{sLB}")
        for i in reversed(range(ns)): a(f"ds_read_b32 v{RK+i}, v1 offset:{256*i}")
        a(f"v_add_u32 v2, s{sLO}, v{VL}\nv_lshlrev_b32 v2, 4, v2\ns_movk_i32 s{sQ}, 4096")
        for i in range(ns):
            a(f"v_cmp_gt_i32 {S2(sM+2*i)}, s{t1}, v{VL}\ns_sub_u32 s{t1}, s{t1}, 64")
        a("s_waitcnt lgkmcnt(0)")
        for i in range(ns): a(f"v_add_u32 v{RK+i}, v{RK+i}, v2")
    def recload(ns,lab):
        for i in reversed(range(ns)):
            a(f"s_mov_b64 exec, {S2(sM+2*i)}\ns_cbranch_execz {lab}{i}\n{rl1(i)}\n{lab}{i}:")
        a("s_mov_b64 exec, -1")
    def hist(ns,lab,extra,scat):
        a(f"v_mov_b32 v1, 4\ns_mov_b32 s{sW8}, {EB}\n{lab}p:")
        def gm(i): return S2(t0+2*(i&1))
        def sc(i,n):
            a(f"""
s_mov_b64 exec, {gm(i)}
s_waitcnt lgkmcnt({n})
v_min_u32 v{RK+i}, {NULLG-4}, v{RK+i}
v_lshl_add_u32 v{RC+4*i+3}, v{RK+i}, 1, s{sW8}
ds_write_b32 v{RK+i}, v{RC+4*i+2} offset:{WB}
ds_write_b64 v{RC+4*i+3}, {P2(RC+4*i)}
""")
        for i in reversed(range(ns)):
            a(f"""
s_mov_b64 exec, {S2(sM+2*i)}
s_waitcnt vmcnt({i+extra})
v_cmpx_eq_u32 {gm(i)}, s{sNON}, v{RC+4*i+3}
v_lshrrev_b32 v{RC+4*i+3}, 17, v{RC+4*i+2}
ds_add_rtn_u32 v{RK+i}, v{RC+4*i+3}, v1
s_andn2_b64 {S2(sM+2*i)}, {S2(sM+2*i)}, {gm(i)}
""")
            a(f"s_mov_b64 vcc, {S2(sM+2*i)}" if i==ns-1 else f"s_or_b64 vcc, vcc, {S2(sM+2*i)}")
            if scat and i==0 and 0: pass
            if scat and i==0: a(f"s_cselect_b64 exec, 0, 1\nds_add_u32 v{VZ}, v1 offset:{mH}")
            if scat and i<ns-1: sc(i+1,(1 if i==ns-2 else 3)+(1 if i==0 else 0))
        if scat: sc(0,3)
        a(f"s_cbranch_vccnz {lab}r\n{lab}d:\ns_mov_b64 exec, -1")
    def hist_retry(ns,lab,scat):
        a(f"{lab}r:\ns_sub_u32 s{sBUD}, s{sBUD}, 1\ns_cbranch_scc1 {lab}x")
        recload(ns,lab+"l")
        a(f"s_waitcnt vmcnt(0)\ns_branch {lab}p\n{lab}x:\ns_mov_b32 s{sBUD}, 0")
        if scat: a(f"s_mov_b64 exec, 1\nds_add_u32 v{VZ}, v1 offset:{mH}")
        a(f"s_branch {lab}d")
    def qfull(lab,mid):
        H=QA+4; MX=QA+1
        a(f"v_xor_b32 v{TC}, 32, v{TRU}")
        trfrag(WF,TC,0,2048,256)
        a(f"""
s_lshl_b32 s{t0}, s{sW4}, 8
s_add_u32 s{t0}, s{t0}, {Q2}
v_lshrrev_b32 v1, 4, v{VL}
v_lshl_add_u32 v120, v1, 11, s{t0}
v_and_b32 v1, 8, v{VL}
v_lshl_add_u32 v120, v1, 3, v120
v_and_b32 v1, 3, v{VL}
v_lshl_add_u32 v120, v1, 4, v120
v_and_b32 v1, 4, v{VL}
v_lshl_add_u32 v120, v1, 1, v120
v_add_u32 v121, 128, v120
s_waitcnt lgkmcnt(0)
""")
        tru(WF+16,0)
        def cv(i,T,pk):
            c=GA+16*i+4*T
            L=[]
            if pk: L+=[f"v_pk_mul_f32 {P2(c)}, {P2(c)}, {S2(sL2E)}",f"v_pk_mul_f32 {P2(c+2)}, {P2(c+2)}, {S2(sL2E)}"]
            else: L+=[f"v_mul_f32 v{c+k}, s{sL2E}, v{c+k}" for k in range(4)]
            L+=[f"v_and_b32 v{H+k}, 0xffff0000, v{c+k}" for k in range(4)]
            L+=[f"v_maximum3_f32 v{MX}, {'0' if T==0 and i==0 else 'v'+str(MX)}, abs(v{c}), abs(v{c+1})",f"v_maximum3_f32 v{MX}, v{MX}, abs(v{c+2}), abs(v{c+3})"]
            if pk: L+=[f"v_pk_add_f32 {P2(c)}, {P2(c)}, {P2(H)} neg_lo:[0,1] neg_hi:[0,1]",f"v_pk_add_f32 {P2(c+2)}, {P2(c+2)}, {P2(H+2)} neg_lo:[0,1] neg_hi:[0,1]"]
            else: L+=[f"v_sub_f32 v{c+k}, v{c+k}, v{H+k}" for k in range(4)]
            L+=[f"v_cvt_pk_bf16_f32 v{c+k}, v{c+k}, v{H+k}" for k in range(4)]
            return L
        for T in range(4):
            for s in range(4): a(mfma16(GA+4*T,XF+16*T+4*s,WF+4*s,None if s==0 else GA+4*T))
        a("s_waitcnt lgkmcnt(0)")
        fl=cv(0,0,0)+cv(0,1,0)
        for T in range(4):
            for s in range(4):
                a(mfma16(GA+16+4*T,XF+16*T+4*s,WF+16+4*s,None if s==0 else GA+16+4*T))
                for _ in range(2): a(fl.pop(0))
        if PFI==0: mid()
        for x in fl+cv(0,2,1)+cv(1,0,1)+cv(1,1,1)+cv(1,2,1): a(x)
        if PFI==1: mid()
        gwait(lab+"w",mSL,4,VZ,1)
        for i in range(2):
            for T in range(3):
                c=GA+16*i+4*T
                a(f"ds_write2st64_b64 v{120+i}, {P2(c)}, {P2(c+2)} offset0:{16*T} offset1:{16*T+2}")
        a("s_mov_b64 exec, 0xffff")
        for i in range(2):
            c=GA+16*i+12
            a(f"""
v_mul_f32 v{c}, s{sL2E}, v{c}
v_and_b32 v{H}, 0xffff0000, v{c}
v_maximum3_f32 v{MX}, v{MX}, abs(v{c}), abs(v{c})
v_sub_f32 v{c}, v{c}, v{H}
v_cvt_pk_bf16_f32 v{c}, v{c}, v{H}
ds_write2st64_b64 v{120+i}, {P2(c)}, {P2(c+2)} offset0:48 offset1:50
""")
        a(f"""
s_mov_b64 exec, -1
v_cmp_nge_f32 vcc, 0x40e80000, v{MX}
s_cbranch_vccz {lab}q
ds_write_b32 v{VZ}, v{FA} offset:{mSLOW}
{lab}q:
""")
        pt('qd')
    def ranges():
        a(f"""
s_lshr_b32 s{sCNT}, s{sNT}, 3
s_mul_i32 s{sT0}, s{sCNT}, s{sWV}
s_and_b32 s{t2}, s{sNT}, 7
s_min_u32 s{t3}, s{t2}, s{sWV}
s_add_u32 s{sT0}, s{sT0}, s{t3}
s_cmp_lt_u32 s{sWV}, s{t2}
s_addc_u32 s{sCNT}, s{sCNT}, 0
s_lshl_b32 s{t0}, s{sT0}, 7
s_lshl_b32 s{t2}, s{sT0}, 4
v_add_u32 v{SB}, s{t2}, v{SB}
v_add_u32 v{RB}, s{t2}, v{RB}
s_add_u32 s{t3}, s{sT0}, s{sCNT}
v_min_u32 v1, 8, v{VL}
v_sub_u32 v1, s{t3}, v1
v_lshlrev_b32 v1, 4, v1
v_max_i32 v1, 0, v1
""")
    AS=272; OST=GBUF+32768
    eFA,eOW,eN48,eRD,eST,eM0,eM1=136,137,138,139,140,141,142
    sE0,sE1,sE2=4,5,6
    def epi_consts():
        srd(a,sX,16,N*256)
        vyc(WV)
        a(f"""
v_and_b32 v1, 15, v{VL}
v_lshrrev_b32 v2, 4, v{VL}
v_mul_u32_u24 v3, {AS}, v1
s_lshr_b32 s{t0}, s{sWV}, 2
s_mul_i32 s{t1}, s{t0}, {32*AS}
v_lshl_add_u32 v3, v2, 4, v3
v_add_u32 v{eFA}, s{t1}, v3
s_lshl_b32 s{t0}, s{t0}, 13
s_add_u32 s{t0}, s{t0}, {OST}
s_lshl_b32 s{t1}, s{sW4}, 2
v_or_b32 v2, s{t1}, v2
v_xor_b32 v2, v2, v1
v_lshl_add_u32 v2, v2, 4, s{t0}
v_lshl_add_u32 v{eOW}, v1, 8, v2
s_lshl_b32 s{t0}, s{sW4}, 6
s_add_u32 s{t0}, s{t0}, {OST+48*256}
v_and_b32 v2, 12, v1
v_lshl_add_u32 v2, v2, 2, s{t0}
v_and_b32 v3, 3, v1
v_lshl_add_u32 v{eN48}, v3, 1, v2
v_lshlrev_b32 v1, 4, v0
v_add_u32 v{eRD}, {OST}, v1
v_lshrrev_b32 v2, 4, v0
v_xor_b32 v3, v2, v0
v_and_b32 v3, 15, v3
v_lshlrev_b32 v3, 4, v3
v_lshl_add_u32 v{eST}, v2, 16, v3
s_lshl_b32 s{sE0}, s{sNB}, 8
s_add_u32 s{sE1}, s{sE0}, {32*65536}
s_cmp_lt_u32 s{sWV}, 4
s_cselect_b64 {S2(sE2)}, -1, 0xffff
s_mul_i32 s{t0}, s{sWV}, {AS}
v_lshl_add_u32 v{eM1}, v{VL}, 2, s{t0}
v_lshlrev_b32 v{OH2}, 1, v{OHC}
v_and_b32 v1, 31, v{VL}
v_lshlrev_b32 v1, 4, v1
v_lshlrev_b32 v2, 5, v{VL}
v_and_b32 v2, 0x400, v2
v_add3_u32 v{QC}, v1, v2, s{sQ2}
v_cndmask_b32 v{SI2}, 0, 16, {S2(sMA)}
v_cndmask_b32 v{SI2+1}, 16, 0, {S2(sMA)}
v_sub_u32 v2, v{SA}, v{OHC}
v_add_u32 v2, {STB}, v2
v_mov_b32 v1, {OH+64}
v_cndmask_b32 v{SA2}, v1, v2, {S2(sMA)}
v_cndmask_b32 v{SA2+1}, v2, v1, {S2(sMA)}
""")
    def arrive(off,vt): a(f"v_mov_b32 v{vt}, 1\ns_mov_b64 exec, 1\nds_add_u32 v{VZ}, v{vt} offset:{off}\ns_mov_b64 exec, -1")

    def claim():
        a(f"""
s_mul_i32 s{t1}, s{sW4}, {13*65536}
s_lshl_b32 s{t2}, s{sNB}, 8
s_add_u32 s{t1}, s{t1}, s{t2}
s_add_u32 s{t1}, s{t1}, {F_P}
""")
        if CLW==1:
            a(f"""
v_lshlrev_b32 v2, 15, v{VL}
v_and_b32 v2, 0xffff0000, v2
v_and_b32 v3, 1, v{VL}
v_lshl_add_u32 v2, v3, 7, v2
v_add_u32 v2, s{t1}, v2
s_mov_b64 exec, 0x3ffffff
global_store_dword v2, v{VZ}, s[20:21] sc1
s_mov_b64 exec, -1
""")
        else:
            a(f"""
v_lshlrev_b32 v2, 14, v{VL}
v_and_b32 v2, 0xffff0000, v2
v_and_b32 v3, 3, v{VL}
v_lshl_add_u32 v2, v3, 6, v2
v_add_u32 v2, s{t1}, v2
s_mov_b32 exec_hi, 0xfffff
global_store_dword v2, v{VZ}, s[20:21] sc1
s_mov_b64 exec, -1
""")
    D=28; SRc=36; K=44; R=52; W2=60; RO=80
    sD=40; sS=44; sE=48
    Q16="s_mov_b64 exec, 0xffff"; FULL="s_mov_b64 exec, -1"
    a(f"""
{name}:
{"s_memrealtime s[88:89]" if PROF and FST else ""}
s_getpc_b64 {S2(t2)}
s_cmp_ge_u32 s2, 256
s_cbranch_scc1 KF_END
s_load_dwordx16 s[4:19], s[0:1], 0
s_load_dwordx2 s[20:21], s[0:1], 64
v_lshrrev_b32 v1, 6, v0
s_and_b32 s{t0}, s2, 0xf8
s_sub_u32 s{t1}, s{t0}, 136
s_cselect_b32 s{t1}, s{t0}, s{t1}
v_add_lshl_u32 v2, v1, s{t1}, 7
v_readfirstlane_b32 s{sWV}, v1
v_min_u32 v2, KF_CEND-{name}-16, v2
s_cmp_eq_u32 s2, 0
s_cbranch_scc1 KF_n0
s_mov_b64 exec, 1
global_load_dword v{QA+15}, v2, {S2(t2)}
s_mov_b64 exec, -1
KF_n1:
v_and_b32 v{VL}, 63, v0
v_mov_b32 v{VZ}, 0
v_lshlrev_b32 v113, 4, v{VL}
s_and_b32 s{sK}, s2, 7
s_lshl_b32 s{sK}, s{sK}, 5
s_lshr_b32 s{t1}, s2, 3
s_or_b32 s{sK}, s{sK}, s{t1}
s_and_b32 s{sW4}, s{sWV}, 3
s_lshl_b32 s{sW4K}, s{sW4}, 10
s_cmp_ge_u32 s{sWV}, 4
s_cbranch_scc0 KF_S
v_lshlrev_b32 v2, 2, v0
v_lshlrev_b32 v3, 8, v{VL}
ds_write_b32 v2, v{VZ} offset:{HIST-1024}
v_lshlrev_b32 v2, 2, v{VL}
ds_write2st64_b32 v2, v3, v{VZ} offset0:0 offset1:1
v_bfe_u32 v1, v0, 4, 4
v_xor_b32 v37, v1, v0
v_and_b32 v37, 15, v37
v_lshlrev_b32 v37, 4, v37
v_lshl_add_u32 v36, v1, 8, s{sNB}
s_waitcnt lgkmcnt(0)
""")
    if WSB: a(f"s_add_u32 s20, s20, {hex(WSB)}\ns_addc_u32 s21, s21, 0")
    (0 if FST else stamp(a,0,True)); stamp(a,1); pt('st')
    a(f"""
""")
    if XORD==0:
        srd(a,sX,4,N,stride=256)
        for j in range(4):
            if j==3: a(f"s_cmp_eq_u32 s{sWV}, 4\ns_cbranch_scc0 KT_c")
            a(f"s_add_u32 m0, s{sW4K}, {AGB+j*4096}\ns_nop 0\nbuffer_load_dwordx4 v[36:37], {SR4(sX)}, 0 idxen offen{NT} lds\nv_add_u32 v36, 4096, v36")
        a("KT_c:")
    a(f"""
s_lshr_b32 s{t0}, s{t0}, 1
s_add_u32 s{t0}, s{t0}, s{sWV}
s_sub_u32 s{t0}, s{t0}, 4
s_lshl_b32 s{t0}, s{t0}, 9
v_lshl_add_u32 v2, v{VL}, 7, s{t0}
s_mov_b64 exec, 15
global_load_dword v{QA+15}, v2, s[12:13]
global_load_dword v{QA+15}, v2, s[14:15]
s_mov_b64 exec, -1
""")
    if TLB:
        a(f"""
s_lshr_b32 s{t0}, s{t0}, 9
s_mul_i32 s{t1}, s{t0}, {2*RST}
s_add_u32 s{t1}, s{t1}, {F_REC+EP*16}
s_add_u32 s52, s20, s{t1}
s_addc_u32 s53, s21, 0
s_load_dword s44, s[52:53], 0
s_load_dword s45, s[52:53], {RST}
""")
    a(f"""
s_branch KF_B0
KF_n0:
s_memrealtime s[44:45]
v_and_b32 v2, 63, v0
v_lshlrev_b32 v2, {2 if NW else 6}, v2
s_cmp_eq_u32 s{sWV}, 4
s_waitcnt lgkmcnt(0)
s_cbranch_scc0 KF_n1
s_lshl_b32 s46, s44, 2
s_or_b32 s46, s46, 1
v_mov_b32 v3, s46
s_mov_b64 exec, {-1 if NW else 15}
global_store_dword v2, v3, s[18:19] sc1
s_mov_b64 exec, -1
s_branch KF_n1
KF_S:
s_min_u32 s{t2}, s2, {NPROD-1}
s_mul_i32 s{t2}, s{t2}, {EP*4}
s_mul_i32 s{t3}, s{sWV}, 400
v_add_u32 v108, s{t3}, v{VL}
v_lshlrev_b32 v109, 2, v108
s_mov_b32 s{sD+2}, {E*4}
s_mov_b32 s{sD+3}, 0x00020000
s_waitcnt lgkmcnt(0)
""")
    if WSB: a(f"s_add_u32 s20, s20, {hex(WSB)}\ns_addc_u32 s21, s21, 0")
    (0 if FST else stamp(a,0,True)); stamp(a,1); pt('st')
    a(f"s_mov_b32 s{sD}, s10\ns_and_b32 s{sD+1}, s11, 0xffff")
    def ld7(dst,sr):
        for i in range(7):
            if i==6: a(Q16)
            a(f"buffer_load_dword v{dst+i}, v109, {SR4(sr)}, s{t2} offen offset:{i*256}{NT}")
        a(FULL)
    ld7(D,sD); pt('dl')
    a(f"s_add_u32 s52, s20, {PB0+0x688000}\ns_addc_u32 s53, s21, 0\ns_load_dword s{sNON}, s[52:53], 0")
    def srcld(): srd(a,sS,8,E*4); ld7(SRc,sS)
    def eld():
        srd(a,sE,6,E*8)
        a(f"""
s_lshl_b32 s{sLB}, s{t3}, 3
s_lshl_b32 s{t2}, s{t2}, 1
s_add_u32 s{t2}, s{t2}, s{sLB}
s_add_u32 m0, s{sLB}, {ERAW}
s_add_u32 s{sLB}, s{sLB}, {S1}
""")
        for j in range(4):
            if j==3: a("s_mov_b64 exec, 0xff")
            a(f"buffer_load_dwordx4 v113, {SR4(sE)}, s{t2} offen offset:{1024*j}{NT} lds")
        a(FULL)
    if EO<2: srcld()
    if EO<1: eld()
    if CLM==2: claim()
    a(f"""
KF_B0:
""")
    if DBGP:
        a("v_mov_b32 v1, 0")
        for j,r in enumerate((4,6,8,10,12,14,16,18,20)): a(f"v_writelane_b32 v1, s{r}, {j}")
        a(f"v_lshlrev_b32 v2, 2, v{VL}\ns_mov_b64 exec, 0x1ff\nglobal_store_dword v2, v1, s[18:19]\ns_mov_b64 exec, -1\ns_waitcnt vmcnt(0)")
    if ALN: a(f"s_add_u32 s20, s20, {ALN-1}\ns_addc_u32 s21, s21, 0\ns_and_b32 s20, s20, {-ALN}")
    a(f"""
s_lshl_b32 s{sBUF}, s{sWV}, 13
s_add_u32 s{sBUF}, s{sBUF}, {GBUF}
s_barrier
""")
    if W1E:
        a(f"s_cmp_ge_u32 s{sWV}, 4\ns_cbranch_scc0 KF_c0")
        srd(a,sA,12,260*256); vyc(); sdma(sA,0,0,VY,range(W1E))
        a("KF_c0:")
    consts()
    a(f"""
s_cmp_ge_u32 s{sWV}, 4
s_cbranch_scc1 KF_T
""")
    if EO>=2: a(f"v_lshlrev_b32 v109, 2, v108"); srcld()
    if EO>=1: eld()
    a(f"""
v_mov_b32 v111, 8
v_and_b32 v124, 7, v{VL}
v_lshlrev_b32 v124, 7, v124
v_lshrrev_b32 v125, 3, v{VL}
v_lshl_add_u32 v124, v125, 2, v124
v_add_u32 v124, {HIST}, v124
v_add_u32 v125, 1024, v124
v_lshlrev_b32 v112, 3, v108
v_lshlrev_b32 v110, 4, v108
""")
    for i in range(7): a(f"v_add_u32 v{W2+1+2*i}, {i*512}, v112")
    if N4==1: a(f"s_load_dword s{sNON}, s[18:19], 0")
    if N4==2: a(f"s_mov_b32 s{sNON}, 0")
    a(f"s_cmp_ge_u32 s2, {NPROD}\ns_cbranch_scc1 KS_d\ns_waitcnt vmcnt({11+(CLM==2)})")
    pt('dst')
    if N4==2: a(f"s_load_dword s{sNON}, s[18:19], 0")
    for i in range(7):
        if i==6: a(Q16)
        a(f"v_lshlrev_b32_sdwa v{K+i}, 2, v{D+i} dst_sel:DWORD dst_unused:UNUSED_PAD src0_sel:DWORD src1_sel:BYTE_0\nds_add_rtn_u32 v{R+i}, v{K+i}, v111 offset:{HIST}")
    a(FULL+"\nKS_d:")
    gsync('b1',"KS_y1",mS,4,VZ,2)
    if PERM: a(f"ds_read2_b32 v[116:117], v124 offset0:0 offset1:8\nds_read2_b32 v[118:119], v124 offset0:16 offset1:24")
    else: a(f"ds_read_b128 v[116:119], v113 offset:{HIST}")

    if N4: a(f"s_cmp_lg_u32 s{sNON}, 0\ns_cbranch_scc1 KS_na\ns_load_dword s{sNON}, s[18:19], 128\nKS_na:")
    for i in range(7): a(f"v_lshrrev_b32 v{D+i}, 8, v{D+i}")
    a(f"""
s_waitcnt lgkmcnt(0)
v_add_u32 v2, v116, v117
v_add3_u32 v2, v2, v118, v119
v_mov_b32 v3, v2
""")
    dpp_scan(a,"v_add_u32",[3])
    a(f"""
v_sub_u32 v120, v3, v2
v_add_u32 v121, v120, v116
v_add_u32 v122, v121, v117
v_add_u32 v123, v122, v118
""")
    if PERM: a(f"ds_write2_b32 v125, v120, v121 offset0:0 offset1:8\nds_write2_b32 v125, v122, v123 offset0:16 offset1:24")
    else: a(f"ds_write_b128 v113, v[120:123] offset:{HIST+1024}")
    for i in range(7):
        if i==6: a(Q16)
        a(f"ds_read_b32 v{K+i}, v{K+i} offset:{HIST+1024}")
    a(FULL)
    def tpub():
        a(f"""
v_lshl_or_b32 v{QA}, v121, 16, v120
v_lshl_or_b32 v{QA+1}, v123, 16, v122
s_mul_i32 s{sNON}, s{sNON}, 0x9E3779B1
s_add_u32 s{sNON}, s{sNON}, 0x7F4A7C15
s_lshr_b32 s{t1}, s{sNON}, 15
s_xor_b32 s{sNON}, s{sNON}, s{t1}
s_lshl_b32 s{t2}, s2, 10
s_add_u32 s{t2}, s{t2}, {F_TBL}
s_lshl_b32 s{t3}, s{sWV}, 4
v_mov_b32 v1, s{sNON}
v_mov_b32 v{QA+3}, v1
s_mov_b32 s{sRO}, 0
s_lshl_b64 exec, 0xffff, s{t3}
buffer_store_dwordx4 {P4(QA)}, v113, {SR4(sR)}, s{t2} offen{SSC}
s_mov_b64 exec, -1
""")
    if NE==3:
        a(f"v_mov_b32 v{QA+2}, v3"); tpub()
        if WG_: arrive(mPS,2)
    else: a(f"s_mov_b32 s{sNON}, 0")
    a(f"s_cmp_ge_u32 s2, {NPROD}\ns_cbranch_scc1 KS_e\ns_waitcnt vmcnt({5 if NE==3 else 4})")
    if X&64:
        for i in range(7): a(f"v_and_b32 v{SRc+i}, 0x1ff, v{SRc+i}")
    for i in range(7): a(f"v_lshl_or_b32 v{W2+2*i}, v{D+i}, 19, v{SRc+i}")
    a(f"s_waitcnt lgkmcnt(0)")
    if NE==2: a(f"s_load_dword s{sNON}, s[18:19], 0")
    for i in range(7):
        if i==6: a(Q16)
        a(f"v_add_u32 v{K+i}, v{K+i}, v{R+i}\nds_write_b64 v{K+i}, {P2(W2+2*i)} offset:{S1}")
    a(FULL+"\nKS_e:")
    pt('sc1')
    if NE<3: a(f"v_mov_b32 v{QA+2}, v3")
    if NE==1: a(f"s_load_dword s{sNON}, s[18:19], 0")
    if NE<2: epi_consts(); tpub()
    else:
        if NE==2: tpub()
        pass
    a(f"""
v_lshlrev_b32 v114, 10, v0
s_lshr_b32 s{sLO}, s{sK}, 2
s_lshl_b32 s{sLO}, s{sLO}, 4
s_add_u32 s{sLO}, s{sLO}, {F_TBL}
s_add_u32 s{sLO}, s{sLO}, s{sRO}
s_add_u32 s{sRO}, s{sRO}, {F_REC}
v_cmp_gt_u32 vcc, {NPROD}, v0
v_mov_b32 v{QA+4}, 0
v_mov_b32 v{QA+5}, 0
v_mov_b32 v{QA+6}, 0
s_mul_i32 s{t0}, s2, {RST}
s_add_u32 s{t0}, s{t0}, s{sRO}
s_add_u32 s{t2}, s{t0}, 4096
v_mul_u32_u24 v115, {RST}, v0
v_add_u32 v115, s{sRO}, v115
""")
    gsync('bS',"KS_y2",mS,8,VZ,2,f"s_waitcnt vmcnt({1+(CLM==2)})")
    tl=f"s_mov_b64 exec, vcc\nbuffer_load_dwordx4 {P4(QA+4)}, v114, {SR4(sR)}, s{sLO} offen{SC}\ns_mov_b64 exec, -1"
    a(f"""
s_cmp_ge_u32 s2, {NPROD}
s_cbranch_scc0 KS_h0
""")
    gwait("KS_h1",mGP,4,VZ,2)
    a(f"""
{tl}
s_waitcnt vmcnt(0)
v_mov_b32 v1, 0
s_branch KS_j
KS_h0:
""")
    order=[6,0,1,2,3,4,5]
    for i in order:
        if i==6: a(Q16)
        a(f"ds_read_b64 {P2(RO+2+4*i)}, v112 offset:{S1+i*512}")
        if i==6: a(FULL)
    for i in order:
        if i==6: a(Q16)
        a(f"s_waitcnt lgkmcnt(6)\nds_read_b64 {P2(RO+4*i)}, v{RO+3+4*i} offset:{ERAW}")
        if i==6: a(FULL)
    gwait("KS_ww",mW,4,VZ,2)
    for k,i in enumerate(order):
        if k==TP_: a(tl)
        if i==6: a(Q16)
        a(f"v_mov_b32 v{RO+3+4*i}, v1\nbuffer_store_dwordx4 {P4(RO+4*i)}, v110, {SR4(sR)}, s{t0 if i<4 else t2} offen offset:{1024*(i&3)}{SSC}")
        if i==6: a(FULL)
    if TP_==7: a(tl)
    pt('out')
    a(f"v_pk_maximum3_f16 v1, v{RO}, v{RO+1}, v{RO+1}\nv_pk_minimum3_f16 v2, v{RO}, v{RO+1}, v{RO+1}")
    for i in range(1,7):
        if i==6: a(Q16)
        a(f"v_pk_maximum3_f16 v1, v1, v{RO+4*i}, v{RO+4*i+1}\nv_pk_minimum3_f16 v2, v2, v{RO+4*i}, v{RO+4*i+1}")
    a(FULL)
    absmax_fin(a,1,2,3)
    dpp_scan(a,"v_max_u32",[1])
    a(f"""
KS_j:
v_mov_b32 v2, 1
s_mov_b32 exec_lo, 0
s_brev_b32 exec_hi, 1
ds_max_u32 v{VZ}, v1 offset:{mEM}
ds_add_u32 v{VZ}, v2 offset:{mE}
s_mov_b64 exec, -1
""")
    if NE>=2: epi_consts()
    gwait("KS_xw",mGX,4,VZ,2)
    xfrags([0,1])
    a(f"""
s_bitcmp1_b32 s{sK}, 1
s_cselect_b64 {S2(t2)}, -1, 0
s_lshl_b32 s{t0}, s{sK}, 4
s_and_b32 s{t0}, s{t0}, 16
s_waitcnt vmcnt({7-TP_})
s_mov_b64 exec, vcc
KT_f:
v_cmp_ne_u32 vcc, s{sNON}, v{QA+7}
s_cbranch_vccz KT_g
s_mov_b64 exec, vcc
s_sub_u32 s{sBUD}, s{sBUD}, 1
s_cbranch_scc1 KT_f2
buffer_load_dwordx4 {P4(QA+4)}, v114, {SR4(sR)}, s{sLO} offen{SC}
s_waitcnt vmcnt(0)
s_branch KT_f
KT_f2:
s_mov_b32 s{sBUD}, 0
v_mov_b32 v{QA+4}, 0
v_mov_b32 v{QA+5}, 0
v_mov_b32 v{QA+6}, 0
KT_g:
s_mov_b64 exec, -1
""")
    pt('tp'); ret('rt1')
    a(f"""
v_cndmask_b32 v1, v{QA+4}, v{QA+5}, {S2(t2)}
v_cndmask_b32 v2, v{QA+5}, v{QA+6}, {S2(t2)}
v_alignbit_b32 v1, v2, v1, s{t0}
v_sub_u32_sdwa v{TC}, v1, v1 dst_sel:DWORD dst_unused:UNUSED_PAD src0_sel:WORD_1 src1_sel:WORD_0
v_and_b32 v1, 0xffff, v1
v_lshrrev_b32 v{TC}, 3, v{TC}
v_lshl_add_u32 v{TD}, v1, 1, v115
v_mov_b32 v{TO}, v{TC}
""")
    dpp_scan(a,"v_add_u32",[TO])
    a(f"""
v_readlane_b32 s{sTOT}, v{TO}, 63
v_sub_u32 v{TO}, v{TO}, v{TC}
v_mov_b32 v2, v{TC}
v_lshlrev_b32 v1, 4, v{TO}
s_mov_b32 s{sLO}, 0
s_cmp_gt_u32 s{sTOT}, 512
v_sub_u32 v{TD}, v{TD}, v1
v_lshl_add_u32 v1, v{TO}, 2, s{sLB}
s_cselect_b32 s{t1}, 0, s{sTOT}
s_cbranch_scc1 KT_xe
""")
    expand("KT_x",False)
    a("KT_xe:")
    reclist(8)
    arrive(mSL,1)
    pt('exp')
    if SWU:
        gwait("KS_gp",mGP,4,VZ,1); srd(a,sA,14,256*256); sdma(sA,0,32768,WV)
    gwait("KS_rw",{0:mPD,1:mPS,2:mPS}[RWI],4,VZ,1)
    if SWU==2: a("s_waitcnt vmcnt(0)"); arrive(mPI,1)
    if TP_<7: a("s_waitcnt vmcnt(0)")
    recload(8,"KT_l")
    a(f"ds_read_b32 v1, v{VZ} offset:{mNO}\ns_waitcnt lgkmcnt(0)\nv_readfirstlane_b32 s{t1}, v1")
    slot(t1)
    pt('rl')
    def pfp():
        a(f"""
s_lshr_b32 s{t1}, s2, 3
s_mul_i32 s{t1}, s{t1}, 391
""")
        if PF0: a(f"v_and_b32 v2, 255, v0\nv_add_u32 v2, s{t1}, v2\nv_mov_b32 v3, 0")
        else: a(f"v_bfe_u32 v2, v0, 1, 7\nv_add_u32 v2, s{t1}, v2\nv_and_b32 v3, 1, v0\nv_lshlrev_b32 v3, 7, v3")
        if PFN<64: a(f"s_bfm_b64 exec, {PFN}, 0")
        a(f"buffer_load_dword v{QA+15}, v[2:3], {SR4(sP)}, 0 idxen offen offset:3072{SC}\ns_mov_b64 exec, -1")
    if PFP==1: pfp()
    if SWU==1:
        a(f"s_add_u32 s{t1}, s{sTOT}, 63\ns_lshr_b32 s{t1}, s{t1}, 6\ns_cmp_ge_u32 s{t1}, 6\ns_cbranch_scc1 KS_v6\ns_waitcnt vmcnt(0)\nKS_v6:\ns_cmp_gt_u32 s{sTOT}, 512\ns_cbranch_scc0 KS_v7\ns_waitcnt vmcnt(0)\nKS_v7:\ns_waitcnt vmcnt(6)")
        arrive(mPI,1)
    if not US:
        if not SWU: gwait("KS_w2",mPI,4,VZ,1)
        trw()
        a("s_waitcnt lgkmcnt(0)")
        w3rd()
        ugemm(0)
    pt('ud')
    hist(8,"KT_h",1 if PFP==1 else 0,True)
    if PFP==3: pfp()
    pt('hs'); ret('rt2')
    gwait("KS_b2",mH,16,VZ,1)
    pt('b2')
    scan(False)
    a(f"""
v_cmp_lt_u32 vcc, 0x100, v{QA}
s_add_u32 s{sNT}, s{t0}, 127
s_lshr_b32 s{sNT}, s{sNT}, 7
s_cmp_gt_u32 s{sNT}, {CAPT}
s_cbranch_scc1 KT_j
s_cbranch_vccnz KT_j
""")
    fill("KFz",False,4)
    a(f"v_mov_b32 v1, s{sNT}\nds_write_b32 v{VZ}, v1 offset:{mNT}")
    pt('fil')
    a(f"""
s_cmp_gt_u32 s{sTOT}, 512
s_cbranch_scc0 KT_k
KT_j:
ds_write_b32 v{VZ}, v{FA} offset:{mSLOW}
KT_k:
s_mov_b32 s{sWU}, 1
""")
    if US: gwait("KS_w2",mPI,4,VZ,1); trw(); w3rd()
    ranges()
    srd(a,sA,14,256*256)
    if PRIO: a("s_setprio 3")
    bar('b3')
    a("s_branch KF_J")
    a(f"""
KF_T:
{"s_load_dword s47, s[18:19], 0" if GPN else ""}
v_and_b32 v108, 255, v0
v_mov_b32 v32, 0
v_mov_b32 v33, 0
v_mov_b32 v34, 0
v_mov_b32 v35, 0
v_lshlrev_b32 v110, 4, v108
""")
    sG=40
    srd(a,sX,4,N,stride=256)
    def xld():
        for j in range(4):
            if j==3: a(f"s_cmp_eq_u32 s{sWV}, 4\ns_cbranch_scc0 KT_c")
            a(f"s_add_u32 m0, s{sW4K}, {AGB+j*4096}\ns_nop 0\nbuffer_load_dwordx4 v[36:37], {SR4(sX)}, 0 idxen offen{NT} lds\nv_add_u32 v36, 4096, v36")
        a("KT_c:")
    def warm():
        a(f"""
v_and_b32 v1, 28, v{VL}
v_and_b32 v2, 3, v{VL}
v_lshlrev_b32 v2, 1, v2
v_lshl_or_b32 v1, v1, 2, v2
s_lshr_b32 s{t0}, s{sW4}, 1
s_lshl_b32 s{t0}, s{t0}, 7
s_and_b32 s{t1}, s{sW4}, 1
s_lshl_b32 s{t1}, s{t1}, 3
s_add_u32 s{t0}, s{t0}, s{t1}
s_add_u32 s{t0}, s{t0}, 65536
""")
        for k in range(4): a(f"buffer_load_ushort v{124+k}, v1, {SR4(sA)}, s{t0} offen offset:{k*256}")
    def zer():
        a(f"v_cmp_le_u32 vcc, 32, v108\ns_mov_b64 exec, vcc\nds_write_b128 v110, v[32:35]\ns_mov_b64 exec, -1")
        for j in range(1,4): a(f"ds_write_b128 v110, v[32:35] offset:{j*4096}")
        a(f"""
s_cmp_eq_u32 s{sWV}, 4
s_cbranch_scc0 KT_b
ds_write_b128 v110, v[32:35] offset:16384
KT_b:
""")
    srd(a,sA,12,260*256); warm(); vyc()
    if XORD==1: xld()
    if not ZL: zer()
    a(f"""
s_lshl_b32 s{t0}, s{sW4}, 2
v_lshrrev_b32 v2, 4, v{VL}
v_or_b32 v1, s{t0}, v2                  ; 4u+g
v_xor_b32 v3, v1, v{WT}
v_lshlrev_b32 v3, 4, v3
v_lshl_add_u32 v116, v{WT}, 8, v3
v_add_u32 v116, {PSC}, v116
v_add_u32 v117, {PSC}, v110
v_lshl_add_u32 v118, v1, 16, v3
""")
    if XORD==2:
        gwait("KG_x",mS,4,VZ,1); xld()
    if WG_: sdma(sA,0,0,VY,range(WG_-1)); gwait("KG_tw",mPS,4,VZ,1)
    sdma(sA,0,0,VY,range(max(W1E,WG_-1),8))
    sdma(sA,32768,-32768,VY,range(W2N))
    arrive(mW,1)
    a(f"s_load_dword s{sNON}, s[18:19], 0")
    pt('w1i')
    def w3m():
        w=[124,125,126,127]; u=QA
        for k in range(4): a(f"v_lshlrev_b32 v{w[k]}, 16, v{w[k]}\nv_mul_f32 v{w[k]}, s{sL2E}, v{w[k]}")
        a(f"""
v_cvt_pk_bf16_f32 v{u}, v124, v125
v_cvt_pk_bf16_f32 v{u+1}, v126, v127
v_lshlrev_b32 v{u+2}, 16, v{u}
v_and_b32 v{u+3}, 0xffff0000, v{u}
v_lshlrev_b32 v{u+4}, 16, v{u+1}
v_and_b32 v{u+5}, 0xffff0000, v{u+1}
v_add_f32 v{u+6}, abs(v124), abs(v125)
v_sub_f32 v{u+2}, v124, v{u+2}
v_sub_f32 v{u+3}, v125, v{u+3}
v_sub_f32 v{u+4}, v126, v{u+4}
v_sub_f32 v{u+5}, v127, v{u+5}
v_add_f32 v{u+7}, abs(v126), abs(v127)
s_mov_b32 exec_lo, 0
v_cvt_pk_bf16_f32 v{u}, v{u+2}, v{u+3}
v_cvt_pk_bf16_f32 v{u+1}, v{u+4}, v{u+5}
s_mov_b32 exec_lo, -1
v_add_f32 v{u+6}, v{u+6}, v{u+7}
v_lshlrev_b32 v1, 3, v108
v_and_b32 v{u+6}, 0x7fffffff, v{u+6}
ds_write_b64 v1, {P2(u)} offset:{W3L}
""")
        dpp_scan(a,"v_max_u32",[u+6])
        a(f"""
s_mov_b32 exec_lo, 0
s_brev_b32 exec_hi, 1
ds_max_u32 v{VZ}, v{u+6} offset:{mC3}
s_mov_b64 exec, -1
""")
    e2=W2N
    a(f"v_mov_b32 v1, {hex(ONE2)}\nds_write2_b32 v{VZ}, v1, v1 offset0:{OH//4} offset1:{OH//4+3}")
    gsync('bX',"KG_y1",mGX,4,VZ,2,f"s_waitcnt vmcnt({8+e2-W1E})")
    if GP_: a(f"s_setprio {GP_}")
    xfrags([0])
    a(f"s_waitcnt vmcnt({e2})")
    pt('xl')
    trfrag(WF,TP,32768,2048,256)
    a("s_waitcnt lgkmcnt(7)")
    trfrag(WF+16,TP,32768+8,2048,256)
    def pm(T,i):
        for s in range(4): a(mfma16(GA+8*T+4*i,WF+16*i+4*s,XF+16*T+4*s,None if s==0 else GA+8*T+4*i))
    def pcv(T):
        c=GA+8*T
        L=[f"v_mul_f32 v{c+j}, s{sL2E}, v{c+j}" for j in range(8)]
        L+=[f"v_cvt_pk_bf16_f32 v{c+j}, v{c+2*j}, v{c+2*j+1}" for j in range(4)]
        L+=[f"ds_write_b128 v116, {P4(c)} offset:{T*4096}"]
        return L
    def pmi(T,fillers):
        for i in range(2):
            for s in range(4):
                a(mfma16(GA+8*T+4*i,WF+16*i+4*s,XF+16*T+4*s,None if s==0 else GA+8*T+4*i))
                for _ in range(2):
                    if fillers: a(fillers.pop(0))
    a("s_waitcnt lgkmcnt(8)"); xfrags([1]); pm(0,0)
    a("s_waitcnt lgkmcnt(4)"); xfrags([2,3]); pm(0,1)
    a("s_waitcnt lgkmcnt(8)"); pm(1,0); pm(1,1)
    a("s_waitcnt lgkmcnt(0)"); pmi(2,pcv(0)); pmi(3,pcv(1))
    a(f"s_lshl_b32 s{t2}, s{sNB}, 8\ns_nop 2")
    for T in (2,3):
        for x in pcv(T): a(x)
    gsync('pg',"KG_y2",mGP,4,VZ,2)
    for T in range(4): a(f"ds_read_b128 {P4(PO+4*T)}, v117 offset:{T*4096}")
    a(f"""
s_waitcnt vmcnt(0)
""")
    for k,off in enumerate((128,64,192,None)):
        a(f"s_waitcnt lgkmcnt(0)\ns_cmp_lg_u32 s{sNON}, 0\ns_cbranch_scc1 KS_n1")
        if off is not None: a(f"s_sleep {NS}\ns_load_dword s{sNON}, s[18:19], {off}")
    a(f"""
KS_n0:
global_load_dword v1, v{VZ}, s[18:19] sc1
s_waitcnt vmcnt(0)
v_readfirstlane_b32 s{sNON}, v1
s_cmp_lg_u32 s{sNON}, 0
s_cbranch_scc1 KS_n1
s_sub_u32 s{sBUD}, s{sBUD}, 1
s_cbranch_scc0 KS_n0
s_mov_b32 s{sBUD}, 0
s_mov_b32 s{sNON}, 1
KS_n1:
v_mov_b32 v1, s{sNON}
ds_write_b32 v{VZ}, v1 offset:{mNO}
""")
    slot()
    a(f"s_add_u32 s{t2}, s{t2}, s{sPO}")
    for T in range(3):
        a(f"s_add_u32 s{t1}, s{t2}, {F_P+T*16*65536}")
        a(f"buffer_store_dwordx4 {P4(PO+4*T)}, v118, {SR4(sR)}, s{t1} offen{SSC}")
    a(f"""
s_cmp_eq_u32 s{sWV}, 4
s_cbranch_scc0 KG_p
s_add_u32 s{t1}, s{t2}, {F_P+3*16*65536}
s_waitcnt lgkmcnt(0)
s_mov_b64 exec, 0xffff
buffer_store_dwordx4 {P4(PO+12)}, v118, {SR4(sR)}, s{t1} offen{SSC}
s_mov_b64 exec, -1
KG_p:
""")
    pt('pst')
    if RWI==1: arrive(mPS,1)
    if GP_: a("s_setprio 0")
    if W2N<8: sdma(sA,32768,-32768,VY,range(W2N,8))
    srd(a,sA,14,256*256)
    w3m()
    for T in range(4):
        c=GA+8*T
        if T==3: a("s_mov_b32 exec_lo, 0x10001\ns_mov_b32 exec_hi, 0x10001")
        if T==0: a(f"v_pk_maximum3_f16 v114, v{c}, v{c+1}, v{c+2}\nv_pk_minimum3_f16 v115, v{c}, v{c+1}, v{c+2}\nv_pk_maximum3_f16 v114, v114, v{c+3}, v{c+3}\nv_pk_minimum3_f16 v115, v115, v{c+3}, v{c+3}")
        else: a(f"v_pk_maximum3_f16 v114, v114, v{c}, v{c+1}\nv_pk_minimum3_f16 v115, v115, v{c}, v{c+1}\nv_pk_maximum3_f16 v114, v114, v{c+2}, v{c+3}\nv_pk_minimum3_f16 v115, v115, v{c+2}, v{c+3}")
    a("s_mov_b64 exec, -1")
    absmax_fin(a,114,115,2)
    a(f"""
v_cmp_lt_u32 vcc, 0x40e80000, v114
s_cmp_lg_u64 vcc, 0
s_cselect_b32 s{sFLAG}, 0x101, 1
""")
    def pflag(n):
        a(f"""
s_lshl_b32 s{t2}, s2, {FS}
s_add_u32 s{t2}, s{t2}, {F_FLG}
s_add_u32 s{t2}, s{t2}, s{sPO}
v_mov_b32 v1, s{sFLAG}
s_waitcnt vmcnt({n})
s_mov_b64 exec, 1
ds_add_rtn_u32 v1, v{VZ}, v1 offset:{mPD}
s_waitcnt lgkmcnt(0)
v_readfirstlane_b32 s{t1}, v1
s_add_u32 s{t1}, s{t1}, s{sFLAG}
s_and_b32 s{t0}, s{t1}, 255
s_cmp_eq_u32 s{t0}, 4
s_cbranch_scc0 KG_f
KG_e:
ds_read_b64 v[2:3], v{VZ} offset:{mE}
ds_read_b32 v1, v{VZ} offset:{mC3}
s_waitcnt lgkmcnt(0)
v_cmp_gt_u32 vcc, 4, v2
v_mul_f32 v1, v1, v3
s_cbranch_vccnz KG_e
v_cmp_nge_f32 vcc, 0x41680000, v1       ; !(14.5 >= e*c3)
s_lshl_b32 s{t0}, vcc_lo, 8
s_or_b32 s{t1}, s{t1}, s{t0}
s_cmp_gt_u32 s{t1}, 255
s_cselect_b32 s{t0}, 2, 0
s_xor_b32 s{t0}, s{sNON}, s{t0}
s_mov_b64 exec, {(1<<FR)-1}
v_mov_b32 v1, s{t0}
v_lshlrev_b32 v2, {8+FS}, v{VL}
buffer_store_dword v1, v2, {SR4(sR)}, s{t2} offen{SSC}
s_waitcnt vmcnt(1)
s_branch KG_f2
KG_f:
s_waitcnt vmcnt(0)
KG_f2:
s_mov_b64 exec, -1
""")
        pt('pfl')
    def mid():
        sdma(sA,0)
        if RWI==2: arrive(mPS,1)
        pflag(8); arrive(mPI,1)
    if W2N<8:
        if WU1L:
            epi_consts(); pflag(8-W2N)
            if GQP: a(f"s_setprio {GQP}")
            qfull("KGq",lambda: sdma(sA,0))
            if PFI==2: sdma(sA,0)
            if GQP: a("s_setprio 0")
            a("s_waitcnt vmcnt(0)"); arrive(mPI,1)
        else:
            sdma(sA,0); epi_consts(); pflag(16-W2N); arrive(mPI,1); qfull("KGq",lambda: 0)
    elif WU1L:
        if PFI==2: pflag(0)
        qfull("KGq",lambda: pflag(0)); sdma(sA,0); epi_consts(); a("s_waitcnt vmcnt(0)"); arrive(mPI,1)
    elif SWU:
        if PFI==2: pflag(0)
        qfull("KGq",lambda: pflag(0)); epi_consts(); gwait("KG_pi",mPI,4,VZ,1)
    else: qfull("KGq",mid); epi_consts()
    gwait("KG_w3",mPD,4,VZ,1)
    w3rd(); trw()
    if not GU: a("s_waitcnt lgkmcnt(0)"); ugemm(1)
    if FLP==1: gwait("KG_b2",mH,16,VZ,1)
    a(f"""
s_and_b32 s{sLO}, s2, {FR-1}
s_lshl_b32 s{sLO}, s{sLO}, {8+FS}
s_add_u32 s{sLO}, s{sLO}, {F_FLG}
s_add_u32 s{sLO}, s{sLO}, s{sPO}
v_lshlrev_b32 v110, {FS}, v108
buffer_load_dword v116, v110, {SR4(sR)}, s{sLO} offen{SC}
""")
    if PFP==2: pfp()
    if PFT:
        a(f"""
s_mul_i32 s{t1}, s{sW4}, {PFK*4}
v_mov_b32 v1, s{t1}
s_lshl_b32 s{t1}, s{t1}, 6
v_lshl_add_u32 v117, v{VL}, 2, s{t1}
ds_read_b32 v1, v1
ds_read_u16 v2, v117 offset:{WB}
v_mov_b32 v3, 0
s_waitcnt lgkmcnt(0)
v_cmp_lt_u32 vcc, v117, v1
s_or_b64 exec, vcc, 1
""")
        for k in range(PFT): a(f"buffer_load_dword v{QA+15}, v[2:3], {SR4(sP)}, 0 idxen offen offset:{3072+128*k}{SC}")
        a("s_mov_b64 exec, -1")
    a(f"""
s_mov_b32 s{sWU}, -1
s_or_b32 s{t1}, s{sNON}, 2
s_waitcnt vmcnt({(1 if PFP==2 else 0)+PFT})
KS_m:
v_or_b32 v2, 2, v116
v_cmp_ne_u32 vcc, s{t1}, v2
s_cbranch_vccz KS_n
s_sub_u32 s{sBUD}, s{sBUD}, 1
s_cbranch_scc1 KS_n
s_sleep {FSL}
s_mov_b64 exec, vcc
buffer_load_dword v116, v110, {SR4(sR)}, s{sLO} offen{SC}
s_mov_b64 exec, -1
s_waitcnt vmcnt(0)
s_branch KS_m
KS_n:
v_cmp_ne_u32 vcc, s{sNON}, v116
s_cbranch_vccz KS_o
ds_write_b32 v{VZ}, v{FA} offset:{mSLOW}
KS_o:
""")
    pt('flg')
    if PRIO: a("s_setprio 3")
    bar('b3')
    a(f"ds_read_b32 v1, v{VZ} offset:{mNT}\ns_waitcnt lgkmcnt(0)\nv_readfirstlane_b32 s{sNT}, v1")
    ranges()
    a("KF_J:")
    def rd_ga(off): a(f"ds_read_u16 v{GA0}, v{SB} offset:{GL+off}")
    def rd_gg(off): a(f"ds_read_u16 v{YA}, v{RB} offset:{GL+off}")
    ya=f"v_lshl_add_u32 v{EA}, v{YA}, 1, v{EC}\nv_add_u32 v{YA}, v{YA}, v{M4}"
    ry=f"ds_read_u16 v{VY}, v{YA} offset:{WB+2}"
    def rd_y(): a(ya); a(ry)
    def idx1(i): return f"ds_read_u16 v{IDX+2*i}, v{GA0} offset:{WB+4*i}"
    def rd_idx():
        for i in range(4): a(idx1(i))
    def dmai(i): return f"buffer_load_dwordx4 {P2(IDX+2*(i&3))}, {SR4(sP)}, {'0' if i<4 else 's'+str(s128)} idxen offen offset:{1024*(i&3)}{GSC} lds"
    def dma():
        for i in range(8):
            if i==0: a(f"s_mov_b32 m0, s{sBUF}\ns_nop 0")
            if i==4: a(f"s_add_u32 m0, s{sBUF}, 4096\ns_nop 0")
            a(dmai(i))
    def dma_h1(mid):
        a(f"s_add_u32 m0, s{sBUF}, 4096"); a(mid)
        for i in range(4,8): a(dmai(i))
        a(f"s_mov_b32 m0, s{sBUF}")
        rd_idx()
    def dma_idx():
        for i in range(4): a(dmai(i))
        dma_h1(ry)
    rd_b=f"ds_read_b128 {P4(B3+2)}, v{QAD}\nds_read_b128 {P4(B3+10)}, v{QAD} offset:512"
    rd_a3=f"ds_read_b64 {P2(A6)}, v{EA}\nds_read_b64 {P2(A6+2)}, v{VY} offset:{OH}\nds_read_b64 {P2(A6+4)}, v{EA}"
    def rd_a(t): return f"ds_read_b128 {P4(A+4*t)}, v{AR} offset:{4096*(t>>2)+(16*(t&1)+2*((t>>1)&1))*128}"
    def m4(z,q,j,c=False): return mfma4(z+4*j,A+16*(q>>1)+4*j+2*(q&1),z+4*j if c else None)
    rd_s=f"ds_read_b64 {P2(SS)}, v{SA2}\nds_read_b64 {P2(SS+2)}, v{SA2+1}"
    def AQ(q): return A6+2*(q&1)
    win=f"v_add3_u32 v{VY}, v{VY}, v{OH2}, s{sW8}\nv_lshl_add_u32 v{QAD}, s{sQ}, 6, v{QC}"
    rd_ga(0); rd_gg(0)
    a(f"""
ds_read_u16 v{WT}, v1 offset:{GL}
ds_read_b32 v{GP}, v{VZ} offset:{mSLOW}
s_waitcnt lgkmcnt(3)
""")
    rd_idx()
    a("s_waitcnt lgkmcnt(0)")
    dma()
    pt('d0')
    a(f"v_readlane_b32 s{sNF}, v{WT}, s{sCNT}\nv_readfirstlane_b32 s{t3}, v{GP}")
    rd_y(); rd_ga(16)
    if US:
        a(f"s_cmp_ge_u32 s{sWV}, 4\ns_cbranch_scc1 KF_u"); ugemm(0)
        if GU: a("s_branch KF_u2\nKF_u:"); ugemm(1); a("KF_u2:")
        else: a("KF_u:")
    a("s_waitcnt lgkmcnt(0)")
    rd_idx()
    a(f"""
s_cmp_lg_u32 s{t3}, 0
s_cbranch_scc1 KF_SLOW
s_lshr_b32 s{sNF}, s{sNF}, 8
v_subrev_u32 v2, s{sNF}, v{VL}
v_and_b32 v2, 15, v2
v_add_u32 v{DR}, s{sNF}, v2
v_lshlrev_b32 v2, 2, v{DR}
ds_read_b32 v{GP}, v2 offset:{BT}
s_and_b32 s{sQ}, s{sNF}, -2
s_lshl_b32 s{sQ}, s{sQ}, 3
s_sub_u32 s{sW8}, 0, s{sQ}
{win}
{rd_b}
{rd_a3}
""")
    rd_gg(16)
    a(f"""
v_lshrrev_b32 v{WT}, 9, v{WT}
v_lshlrev_b32 v{WT}, 4, v{WT}           ; 8*(w&~1)
v_mov_b32 v{SS}, 0
v_mov_b32 v{SS+1}, 0
v_mov_b32 v{SS+2}, 0
v_mov_b32 v{SS+3}, 0
v_mad_u32_u24 v{SA2}, v{SI2}, s{sT0}, v{SA2}
v_mad_u32_u24 v{SA2+1}, v{SI2+1}, s{sT0}, v{SA2+1}
s_add_u32 s{t1}, s{sT0}, s{sCNT}
s_lshl_b32 s{t1}, s{t1}, 7
s_add_u32 s{t2}, s{sWV}, 48
v_mov_b32 v1, s{t2}
{mfma32(ACC+16,SS,SS,None)}
s_waitcnt lgkmcnt(0)
""")
    rd_y(); rd_ga(32)
    a(f"""
v_cmp_gt_u32 vcc, s{t0}, v{GP}
v_cmp_gt_u32 {S2(t2)}, s{t1}, v{GP}
v_cmp_gt_u32 {S2(t0)}, s{sNN}, v{DR}
v_cndmask_b32 v{DR}, v{DR}, v1, vcc
s_cmp_lg_u64 vcc, 0
s_cselect_b32 s{sHEAD}, 1, 0
s_and_b64 vcc, {S2(t2)}, {S2(t0)}
v_lshlrev_b32 v1, 2, v{VL}
v_cndmask_b32 v{DR}, 56, v{DR}, vcc
v_lshrrev_b32 v2, 1, v{VL}
v_mul_u32_u24 v{DR}, {AS}, v{DR}
v_and_b32 v2, 24, v2
v_add_u32 v{DR}, v{DR}, v2
s_mul_i32 s{t0}, s{sNF}, {AS}
v_add_u32 v{eM0}, s{t0}, v1
s_sub_u32 s{sCNT}, s{sCNT}, 1
s_mov_b32 m0, s{sBUF}
""")
    pt('pre')
    a("s_waitcnt vmcnt(4)")
    pt('g0')
    for t in range(4): a(rd_a(t))
    a("s_waitcnt lgkmcnt(0)")
    for j in range(4): a(m4(Z[0],0,j))
    a("s_nop 3")
    a(mfma32(Z[0],AQ(0),B3,Z[0]))
    a("s_nop 9")
    pt('pro')
    def finals(qprev):
        for u in range(2): a(f"v_pk_mul_f32 {P2(NN+2*u)}, {P2(NN+2*u)}, {P2(DD+2*u)}")
        for u in range(2): a(f"v_cvt_pk_bf16_f32 v{GP+2*(qprev&1)+u}, v{NN+2*u}, v{NN+2*u+1}")
    def ex(zc,r): return f"v_exp_f32 v{EE+r}, v{zc+r}"
    def body(first):
        for q in range(4):
            zc=Z[q&1]; zn=Z[(q+1)&1]; qn=(q+1)&3
            pend=[0,1,2,3,8,9,10,11,4,5,12,13,6,7,14,15]
            f0=first and q==0
            if q==0: a(f"v_readlane_b32 s{sQ}, v{WT}, s{sCNT}")
            if q==3 or (first and q==1): a(f"s_waitcnt lgkmcnt(0)")
            agg=(q&1) and not (first and q==1)
            p=1 if q==1 else 0
            if MO:
                a(mfma32(zn,AQ(qn),B3+4*qn,None))
                for j in range(4): a(f"v_rcp_f32 v{DD+j}, v{DD+j}" if not f0 else ex(zc,pend.pop(0)))
                if agg: a(mfma32(ACC+16*p,GP,SS,None if first else ACC+16*p))
                for r in range(5 if agg else 6): a(ex(zc,pend.pop(0)))
                for j in range(4):
                    a(m4(zn,qn,j,True))
                    if j<3: a(ex(zc,pend.pop(0)))
            else:
                for j in range(4):
                    a(m4(zn,qn,j))
                    a(f"v_rcp_f32 v{DD+j}, v{DD+j}" if not f0 else ex(zc,pend.pop(0)))
                if agg: a(mfma32(ACC+16*p,GP,SS,None if first else ACC+16*p))
                for r in range(4 if agg else 3): a(ex(zc,pend.pop(0)))
                a(mfma32(zn,AQ(qn),B3+4*qn,zn))
            def bx():
                a(f"s_sub_u32 s{sW8}, 0, s{sQ}\ns_waitcnt vmcnt(0) lgkmcnt(0)\n{win}")
                rd_gg(32); rd_ga(48)
                a(rd_b); a(rd_a3); a(rd_s)
                for t in range(8): a(rd_a(t))
            if q==2 and XP==0: a(ex(zc,pend.pop(0))); bx()
            for r in range((4 if not (q==2 and XP==0) else 3)-(3 if MO else 0)): a(ex(zc,pend.pop(0)))
            if q==2 and XP==1: bx()
            if f0:
                for i in range(4): a(dmai(i))
            if first and q==1: dma_h1("s_nop 0")
            if q==3:
                a(ya)
                if first: dma_idx()
                else:
                    a(f"s_cmp_gt_u32 s{sCNT}, 1\ns_cbranch_scc0 KF_lt")
                    dma_idx()
                    a("KF_lb:")
            if not f0: finals((q-1)&3)
            seq=[]
            for u in range(2): seq.append(f"v_pk_add_f32 {P2(DD+2*u)}, {P2(EE+8*u)}, 1.0 op_sel_hi:[1,0]")
            for m in range(1,4):
                for u in range(2):
                    src=(zc+8*u) if m==1 else NN+2*u
                    seq.append(f"v_pk_fma_f32 {P2(NN+2*u)}, {P2(src)}, {P2(EE+8*u+2*m)}, {P2(src)}")
                for u in range(2): seq.append(f"v_pk_fma_f32 {P2(NN+2*u)}, {P2(zc+8*u+2*m)}, {P2(DD+2*u)}, {P2(NN+2*u)}")
                for u in range(2): seq.append(f"v_pk_fma_f32 {P2(DD+2*u)}, {P2(DD+2*u)}, {P2(EE+8*u+2*m)}, {P2(DD+2*u)}")
            slots={7:[0,2,4,6,8,10,12],6:[1,3,6,8,10,12],2:[4,10],9:[0,1,2,3,4,6,8,10,12],8:[0,1,2,3,5,7,9,11],5:[1,4,7,10,12]}[len(pend)]
            for k,x in enumerate(seq):
                if f0 and k==H1P:
                    a("s_waitcnt vmcnt(4)")
                    for t in range(4,8): a(rd_a(t))
                a(x)
                if k in slots: a(ex(zc,pend.pop(0)))
            if q==2: a(f"v_pk_add_f32 {P2(RB)}, {P2(RB)}, {S2(sINC)}\nv_pk_add_f32 {P2(SA2)}, {P2(SA2)}, {P2(SI2)}")
    if PROF and 'dyn' in PTS: stamp(a,8); stamp(a,9,True)
    if PROF and 'clk' in PTS: stamp(a,6,True)
    n0=len(a.l)
    body(True)
    a("s_branch KF_LE\n.p2align 6\nKF_LOOP:")
    body(False)
    def keep(l):
        t=l.strip()
        if X&1 and t.startswith('buffer_load'): return False
        if X&2 and t.startswith('ds_read_b128 v[') and int(t.split('[')[1].split(':')[0])>=28: return False
        if X&8 and t.startswith('v_mfma'): return False
        if X&16 and t.startswith('v_pk_fma'): return False
        if X&32 and t.startswith('v_exp'): return False
        if Y&1 and t.startswith('v_mfma_f32_4x4'): return False
        if Y&2 and t.startswith('v_mfma_f32_32x32') and int(t.split('[')[1].split(':')[0])<ACC: return False
        if Y&4 and t.startswith('v_mfma_f32_32x32') and int(t.split('[')[1].split(':')[0])>=ACC: return False
        if Y&8 and t.startswith('v_rcp'): return False
        if Y&16 and t.startswith(('v_cvt_pk','v_pk_mul')): return False
        if Y&32 and t.startswith(('ds_read_b64','ds_read_b128 v[14','ds_read_b128 v[22')): return False
        return True
    a.l[n0:]=[l for l in a.l[n0:] if keep(l)]
    import re
    if UNP:
        L=[]; cnt=0
        for l in a.l[n0:]:
            m=re.match(r"\s*v_pk_fma_f32 v\[(\d+):\d+\], v\[(\d+):\d+\], v\[(\d+):\d+\], v\[(\d+):\d+\]",l)
            if m:
                cnt+=1
                d,x,y,z=map(int,m.groups())
                if UNP==1 or (UNP==2 and cnt%2==0) or (UNP==3 and d>=DD):
                    for k in range(2):
                        L.append(f"    v_fmac_f32 v{d+k}, v{x+k}, v{y+k}" if d==z else f"    v_fma_f32 v{d+k}, v{x+k}, v{y+k}, v{z+k}")
                    continue
            L.append(l)
        a.l[n0:]=L
    if X&(128|256|512|1024):
        L=[]
        for l in a.l[n0:]:
            m=re.match(r"\s*v_mfma_f32_32x32x16_bf16 v\[(\d+):\d+\], v\[(\d+):\d+\], v\[(\d+):\d+\], (.*)",l)
            if m and int(m.group(1))<ACC:
                d,x,y=int(m.group(1)),int(m.group(2)),int(m.group(3))
                if X&128:
                    if y==ID0: L+=["    "+mfma16(d+4,x,ID0,None),"    "+mfma16(d+8,x,ID1,None)]
                    elif y==ID1: L.append("    "+mfma16(d+12,x,ID0,None))
                    else: L.append("    "+mfma16(d,x,y,None))
                if X&1024:
                    if y in (ID0,ID1):
                        o=0 if y==ID0 else 8
                        for k in range(2): L.append(f"    v_mfma_f32_4x4x4_16b_bf16 v[{d+o+4*k}:{d+o+4*k+3}], v[{x+2*k}:{x+2*k+1}], v[{ID0}:{ID0+1}], v[{d+o+4*k}:{d+o+4*k+3}]")
                    else: L.append(l)
                if X&256:
                    if y!=ID1: L.append(l)
                if X&512:
                    if y==ID0: L.append(f"    v_mfma_f32_32x32x64_f8f6f4 v[{d}:{d+15}], v[{x}:{x+7}], v[{ID0}:{ID0+7}], v[{d}:{d+15}]")
                    elif y!=ID1: L.append(l)
            else: L.append(l)
        a.l[n0:]=L
    a("KF_LE:")
    if PRIO: a(f"s_bitcmp1_b32 {(1<<PT[0])|(1<<PT[1])|(1<<PT[2])}, s{sCNT}\ns_cbranch_scc1 KF_pr\nKF_pb:")
    a(f"""
s_sub_u32 s{sCNT}, s{sCNT}, 1
s_cbranch_scc0 KF_LOOP
""")
    def loop_tails():
        a(f"KF_lt:\ns_cmp_eq_u32 s{sCNT}, s{sWU}\ns_cbranch_scc0 KF_lb")
        sdma(sA,32768,0,WV)
        a(f"""
s_branch KF_lb
KF_pr:
""")
        if PROF and 'dyn' in PTS:
            a("s_mov_b32 s90, s92\ns_mov_b32 s91, s93\ns_mov_b32 s92, s94\ns_mov_b32 s93, s95\ns_mov_b32 s94, s96\ns_mov_b32 s95, s97")
            stamp(a,8); stamp(a,9,True)
        a(f"""
s_setprio 2
s_cmp_eq_u32 s{sCNT}, {PT[0]}
s_cbranch_scc1 KF_pb
s_setprio 1
s_cmp_eq_u32 s{sCNT}, {PT[1]}
s_cbranch_scc1 KF_pb
s_cmp_ge_u32 s{sWV}, {PL}
s_cbranch_scc1 KF_pb
s_setprio 0
s_branch KF_pb
""")
    a(f"""
s_lshl_b32 s{t0}, s{sW4}, 2
v_mov_b32 v1, s{t0}
s_cmp_ge_u32 s{sWV}, 4
s_cbranch_scc1 KF_w0
ds_write_b32 v1, v{TP} offset:{mWU}
s_branch KF_w1
KF_w0:
ds_read_b32 v2, v1 offset:{mWU}
s_waitcnt lgkmcnt(0)
v_cmp_eq_u32 vcc, 0, v2
s_cbranch_vccnz KF_w0
KF_w1:
""")
    def trw2(): trfrag(A,TP,0,2048,256); trfrag(A+16,TP,8,2048,256)
    trw2()
    for j in range(4): a(f"v_rcp_f32 v{DD+j}, v{DD+j}")
    a("s_nop 0")
    finals(3)
    a("s_nop 1")
    a(mfma32(ACC+16,GP,SS,ACC+16))
    pt('loop')
    if PROF and 'clk' in PTS: stamp(a,7,True)
    def epst():
        a(f"""
s_or_b32 s{t1}, s2, s{sWV}
s_cbranch_scc1 KF_e2
v_mov_b32 v2, s{sNON}
s_mov_b64 exec, 1
buffer_store_dword v2, v{VZ}, {SR4(sR)}, 0 offen{ESC}
s_mov_b64 exec, -1
KF_e2:
""")
    for p in range(2):
        for j in range(4):
            c=ACC+16*p+4*j
            a(f"v_cvt_pk_bf16_f32 v{c}, v{c}, v{c+1}\nv_cvt_pk_bf16_f32 v{c+1}, v{c+2}, v{c+3}")
        for j in range(4): a(f"ds_write_b64 v{DR}, {P2(ACC+16*p+4*j)} offset:{AGB+128*p+32*j}")
    a(f"""
s_cmp_eq_u32 s{sHEAD}, 0
""")
    pt('dmp')
    bar('be',"s_waitcnt vmcnt(0) lgkmcnt(0)")
    a(f"""
s_cbranch_scc1 KF_FIN
ds_read_b32 v4, v{eM0} offset:{AGB}
ds_read_b32 v5, v{eM1} offset:{AGB+48*AS}
""")
    a(f"""
s_waitcnt lgkmcnt(0)
v_lshlrev_b32 v6, 16, v4
v_and_b32 v7, 0xffff0000, v4
v_lshlrev_b32 v8, 16, v5
v_and_b32 v9, 0xffff0000, v5
v_pk_add_f32 v[6:7], v[6:7], v[8:9]
v_cvt_pk_bf16_f32 v6, v6, v7
ds_write_b32 v{eM0}, v6 offset:{AGB}
KF_FIN:
""")
    a(f"s_cmp_ge_u32 s{sWV}, 4")
    if EP_==0: epst()
    bar('mrg')
    def EXP(rs): return [f"v_exp_f32 v{EE+i}, v{UA+i}" for i in rs]
    def RCP(rs): return [f"v_rcp_f32 v{EE+i}, v{EE+i}" for i in rs]
    def FMA(rs): return [f"v_fma_f32 v{EE+i}, v{EE+i}, s{sL2E}, s{sL2E}" for i in rs]
    def FIN(tau):
        e=EE+8*tau; c=UA+8*tau
        return [f"v_pk_mul_f32 {P2(e+2*j)}, {P2(e+2*j)}, {P2(c+2*j)}" for j in range(4)]+[f"v_cvt_pk_bf16_f32 v{e+j}, v{e+2*j}, v{e+2*j+1}" for j in range(4)]+[f"ds_write_b128 v{eOW}, {P4(e)} offset:{tau*4096}"]
    def PFM(rs): return [f"v_pk_fma_f32 {P2(EE+i)}, {P2(EE+i)}, {S2(sL2E)}, {S2(sL2E)}" for i in rs]
    XE=Z[0]
    for tau in range(2):
        for s_ in range(4): a(f"ds_read_b128 {P4(XE+16*tau+4*s_)}, v{eFA} offset:{AGB+tau*16*AS+64*s_}")
    for k,(x,y) in enumerate(zip(um(0,0,0,XE,True,A),um(0,0,1,XE,True,A))): a(f"s_waitcnt lgkmcnt({7-k})"); a(x); a(y)
    a("s_waitcnt lgkmcnt(0)"); pt('e1'); a("s_cbranch_scc1 KF_eg")
    for r in range(2):
        if r==1: a("KF_eg:")
        for x,y in zip(um(r,1,0,XE+16,True,A),um(r,1,1,XE+16,True,A)): a(x); a(y)
        pt('e2')
        if r==0:
            for x in EXP(range(8))+FMA(range(8))+RCP(range(8))+EXP(range(8,16))+FIN(0)+PFM(range(8,16,2))+RCP(range(8,16))+["s_nop 0"]+FIN(1): a(x)
            a("s_branch KF_ej")
        else:
            for x in EXP(list(range(8))+[8,12])+PFM((0,2,4,6,8,12))+RCP(list(range(8))+[8,12])+FIN(0): a(x)
            a(f"""
v_mul_f32 v{EE+8}, v{EE+8}, v{UA+8}
v_mul_f32 v{EE+12}, v{EE+12}, v{UA+12}
s_mov_b64 exec, 0xffff
v_cvt_pk_bf16_f32 v{EE+8}, v{EE+8}, v{EE+12}
ds_write_b16 v{eN48}, v{EE+8}
ds_write_b16_d16_hi v{eN48}, v{EE+8} offset:8
s_mov_b64 exec, -1
""")
    a(f"KF_ej:\ns_cmp_lt_u32 s{sWV}, 5")
    pt('e3')
    bar('sil')
    a(f"""
ds_read_b128 {P4(A)}, v{eRD}
s_cbranch_scc0 KF_e1
ds_read_b128 {P4(A+4)}, v{eRD} offset:8192
s_mov_b64 exec, {S2(sE2)}
s_waitcnt lgkmcnt(0)
buffer_store_dwordx4 {P4(A+4)}, v{eST}, {SR4(sX)}, s{sE1} offen{OSC}
s_mov_b64 exec, -1
KF_e1:
s_waitcnt lgkmcnt(0)
buffer_store_dwordx4 {P4(A)}, v{eST}, {SR4(sX)}, s{sE0} offen{OSC}
""")
    pt('sto')
    a(f"""
s_or_b32 s{t1}, s2, s{sWV}
s_cbranch_scc1 KF_e2
v_mov_b32 v2, s{sNON}
v_mov_b32 v3, {PB0+0x688000}
s_mov_b64 exec, 1
global_store_dword v3, v2, s[20:21]
KF_e2:
""")
    a(f"""
""")
    if PROF: a("s_waitcnt vmcnt(0)")
    stamp(a,10); stamp(a,11,True)
    stamp_out(a,1,sWV)
    a("KF_END:\ns_endpgm")
    loop_tails()
    hist_retry(8,"KT_h",True)
    a("KF_CEND:")
    SV=ACC; AGs=SV+8; RS_=SV+16
    a(f"""
KF_SLOW:
s_setprio 0
s_cmp_ge_u32 s{sWV}, 4
s_cselect_b32 s{sTOT}, 0, s{sTOT}
v_mov_b32 v1, s{sTOT}
ds_max_u32 v{VZ}, v1 offset:{mMX}
v_mov_b32 v{SS}, 0
v_mov_b32 v{SS+1}, 0
v_mov_b32 v{SS+2}, 0
v_mov_b32 v{SS+3}, 0
s_mov_b32 s{sLO}, 0
s_mov_b32 s{sLB}, s{sBUF}
s_sub_u32 s{t0}, s{sWV}, s{sT0}
s_lshl_b32 s{t0}, s{t0}, 4
v_add_u32 v{SV+4}, s{t0}, v{RB}
v_add_u32 v{SV+5}, s{t0}, v{SB}
s_lshl_b32 s{t0}, s{sWV}, 4
v_sub_u32 v{SV+6}, s{t0}, v{OHC}
v_and_b32 v{SV+7}, 28, v{VL}
v_and_b32 v1, 3, v{VL}
v_lshlrev_b32 v1, 2, v1
v_lshl_or_b32 v{SV+7}, v{SV+7}, 3, v1
v_lshlrev_b32 v1, 4, v0
""")
    for j in range(3): a(f"ds_write_b128 v1, {P4(SS)} offset:{AGG+j*8192}")
    a(f"""
v_lshlrev_b32 v1, 4, v{VL}
ds_write_b128 v1, {P4(SS)} offset:{AGG+3*8192}
s_waitcnt vmcnt(0) lgkmcnt(0)
s_barrier
ds_read_b32 v1, v{VZ} offset:{mMX}
s_waitcnt lgkmcnt(0)
v_readfirstlane_b32 s{sRND}, v1
KF_SR:
s_cmp_lt_u32 s{sLO}, s{sRND}
s_cbranch_scc0 KF_SE
s_barrier
v_lshlrev_b32 v1, 2, v{VL}
v_lshlrev_b32 v2, 8, v{VL}
ds_write_b32 v1, v2
s_waitcnt lgkmcnt(0)
s_barrier
s_cmp_ge_u32 s{sWV}, 4
s_cbranch_scc1 KF_S1
s_movk_i32 s{t3}, 256
""")
    expand("KF_x")
    a(f"s_sub_u32 s{t1}, s{sTOT}, s{sLO}")
    reclist(4)
    recload(4,"KF_rl")
    for i in range(4): a(f"s_mov_b64 {S2(sM+8+2*i)}, {S2(sM+2*i)}")
    hist(4,"KF_h",0,False)
    a("s_waitcnt lgkmcnt(0)")
    for i in range(4):
        a(f"""
v_mov_b32 v{RS_+4*i}, v{RC+4*i}
v_mov_b32 v{RS_+4*i+1}, v{RC+4*i+1}
v_mov_b32 v{RS_+4*i+2}, v{RC+4*i+2}
v_lshlrev_b32 v1, 6, v{RC+4*i+3}
v_sub_u32 v1, v{RK+i}, v1
v_cndmask_b32 v{RS_+4*i+3}, -1, v1, {S2(sM+8+2*i)}
""")
    a(f"""
KF_S1:
s_mov_b32 s{sHEAD}, 0                    ; 256*k
KF_SK:
s_waitcnt lgkmcnt(0)
s_barrier
s_cmp_ge_u32 s{sWV}, 4
s_cbranch_scc1 KF_S2
s_mov_b32 s{t1}, {EB}
""")
    for i in range(4):
        a(f"""
v_subrev_u32 v1, s{sHEAD}, v{RS_+4*i+3}
v_lshrrev_b32 v2, 19, v{RS_+4*i+2}
v_lshl_add_u32 v2, v2, 8, v1
v_lshl_add_u32 v3, v2, 1, s{t1}
v_cmpx_gt_u32 vcc, 0x100, v1
ds_write_b32 v2, v{RS_+4*i+2} offset:{WB}
ds_write_b64 v3, {P2(RS_+4*i)}
s_mov_b64 exec, -1
""")
    a("KF_S2:")
    scan(True)
    a(f"s_cmp_lg_u64 {S2(t2)}, 0\ns_cselect_b32 s{sFLAG}, 1, 0")
    fill("KFs",True,8)
    a(f"""
s_add_u32 s{sNT}, s{t0}, 127
s_lshr_b32 s{sNT}, s{sNT}, 7
s_waitcnt lgkmcnt(0)
s_barrier
v_mov_b32 v{RB}, v{SV+4}
v_mov_b32 v{SB}, v{SV+5}
v_mov_b32 v{SV+12}, v{SV+6}
s_mov_b32 s{sI}, s{sWV}
KF_SL:
s_cmp_lt_u32 s{sI}, s{sNT}
s_cbranch_scc0 KF_SN
""")
    rd_ga(0); rd_gg(0)
    for j in range(4): a(f"ds_read_u16 v{AGs+j}, v{SV+12} offset:{GL+2*j}")
    a("s_waitcnt lgkmcnt(0)")
    rd_y(); rd_idx()
    a(f"s_waitcnt lgkmcnt(0)\nv_cmp_ne_u32 vcc, 0xffff, v{IDX}\ns_cbranch_vccz KF_SM")
    dma()
    for j in range(4): a(f"v_lshrrev_b32 v{AGs+j}, 8, v{AGs+j}")
    a(f"""
v_readfirstlane_b32 s{sQ}, v{AGs}
s_nop 3
s_and_b32 s{sQ}, s{sQ}, -2
s_lshl_b32 s{sQ}, s{sQ}, 3
s_sub_u32 s{sW8}, 0, s{sQ}
{win}
{rd_b}
{rd_a3}
""")
    for j in range(4): a(f"v_lshl_add_u32 v{AGs+j}, v{AGs+j}, 9, v{SV+7}")
    a("s_waitcnt vmcnt(0) lgkmcnt(0)")
    for t in range(8): a(rd_a(t))
    a("s_waitcnt lgkmcnt(0)")
    for q in range(4):
        z=Z[0]
        for j in range(4): a(m4(z,q,j))
        a("s_nop 3"); a(mfma32(z,AQ(q),B3+4*q,z))
        a("s_nop 15")
        for r in range(16): a(f"v_exp_f32 v{EE+r}, v{z+r}")
        for r in range(16): a(f"v_add_f32 v{EE+r}, 1.0, v{EE+r}")
        for r in range(16): a(f"v_rcp_f32 v{EE+r}, v{EE+r}")
        for m in range(4):
            for u in range(2):
                for par in range(2):
                    r=8*u+2*m+par; g=GP+2*u+par
                    a(f"v_mul_f32 v{g}, v{z+r}, v{EE+r}" if m==0 else f"v_fmac_f32 v{g}, v{z+r}, v{EE+r}")
        for j in range(4): a(f"ds_add_f32 v{AGs+j}, v{GP+j} offset:{AGG+256*(q>>1)+16*(q&1)}")
        a("s_waitcnt lgkmcnt(0)")
    a(f"""
KF_SM:
v_add_u32 v{SB}, 128, v{SB}
v_add_u32 v{RB}, 128, v{RB}
v_add_u32 v{SV+12}, 128, v{SV+12}
s_add_u32 s{sI}, s{sI}, 8
s_branch KF_SL
KF_SN:
s_add_u32 s{sHEAD}, s{sHEAD}, 256
s_cmp_lg_u32 s{sFLAG}, 0
s_cbranch_scc1 KF_SK
s_add_u32 s{sLO}, s{sLO}, 256
s_branch KF_SR
KF_SE:
s_cmp_ge_u32 s{sWV}, 4
s_cbranch_scc1 KF_SE2
""")
    sdma(sA,32768,0,WV)
    a(f"""
KF_SE2:
v_lshlrev_b32 v1, 4, v0
v_lshrrev_b32 v2, 5, v0
s_waitcnt vmcnt(0) lgkmcnt(0)
s_barrier
""")
    for j in range(4): a(f"ds_read_b128 {P4(A+4*j)}, v1 offset:{AGG+j*8192}")
    a(f"""
v_mul_u32_u24 v2, {AS}, v2
v_and_b32 v3, 31, v0
v_lshl_add_u32 v4, v3, 3, v2
s_waitcnt lgkmcnt(0)
s_barrier
""")
    for j in range(4):
        a(f"v_cvt_pk_bf16_f32 v{A+4*j}, v{A+4*j}, v{A+4*j+1}\nv_cvt_pk_bf16_f32 v{A+4*j+1}, v{A+4*j+2}, v{A+4*j+3}")
        a(f"ds_write_b64 v4, {P2(A+4*j)} offset:{AGB+j*16*AS}")
    trw2()
    a("s_branch KF_FIN")
    hist_retry(4,"KF_h",False)
    return a.text()

DOC='''; ---------------------------------------------------------------------------------------------
; ---------------------------------------------------------------------------------------------
'''
if __name__=='__main__':
    import sys
    nm='standalone__mpnn_edge_mlp__graph_kernel'
    hdr=open('standalone__mpnn_edge_mlp__graph.s.ref').read().split('; Override')[0]
    out=hdr+(f"; @launch kernel={nm} grid=(256,1,1) block=(512,1,1) lds={KF_LDS}\n" if os.environ.get('LISTF') else f"; @launch grid=(256,1,1) block=(512,1,1) lds={KF_LDS}\n")
    out+=DOC+'.amdgcn_target "amdgcn-amd-amdhsa--gfx950"\n.text\n'
    out+=f".globl {nm}\n.p2align 8\n.type {nm},@function\n"+gen_kf(nm)
    out+='.section .rodata,"a"\n.p2align 6\n'+kd(nm,256)
    open(sys.argv[1],'w').write(out)
```

```python
from common import *
X=int(os.environ.get('X','0'))
PRIO=int(os.environ.get('PRIO','1'))
DSP=[int(c,36) for c in os.environ.get('DSP','00000000')]
def EV(n,d): return int(os.environ.get(n,d))
TPOS=EV('TPOS',6); PFP=EV('PFP',3); XORD=EV('XORD',1); WUI=EV('WUI',2); FLP=EV('FLP',1); FSL=EV('FSL',8); TE=1; RS1=EV("RS1",0); H1=EV("H1",0); NWG=EV("NWG",0); MO=EV("MO",0); Y=EV("Y",0); GU=EV("GU",0); GQP=EV("GQP",0); PL=EV("PL",8); PT=[int(c) for c in os.environ.get("PT","531")]; WG_=EV("WG",3); GPN=EV("GPN",1); N4=EV("N4",0); NW=EV("NW",1); RWI=EV("RWI",0); US=EV("US",0); TP_=EV("TP",7); SWU=EV("SWU",0); EO=EV("EO",1); NS=EV("NS",5); NE=EV("NE",3); FR=EV('FR',8); FS=EV('FS',2); W1N=EV('W1N',5); GP_=EV('GP',1); NT=os.environ.get('NT',''); CLM=EV('CLM',0); CLW=EV('CLW',1); SLP=EV('SLP',1); H1P=EV('H1P',10); SH3=EV('SH3',0); EP_=EV('EP',1); ESC=os.environ.get('ESC',''); PERM=EV('PERM',0); W2N=EV('W2N',8); UL=EV('UL',0); WU1L=EV('WU1L',0); W1E=EV('W1E',0); ZL=EV('ZL',0); FST=EV('FST',0); UNP=EV('UNP',0); TLB=EV('TLB',0); DBGP=EV('DBGP',0); ALN=EV('ALN',0); PFT=EV('PFT',1); PFK=EV('PFK',7); PF0=EV('PF0',0); PFN=EV('PFN',16); XP=EV('XP',0); PFI=EV('PFI',0); SWW=EV('SWW',1)
PTS=os.environ.get('PTS','b1,bS,tp,pfl,rl,b2,b3,pro').split(',')
SC=os.environ.get('LSC',' sc1')
SSC=os.environ.get('SSC',' sc1')
OSC=os.environ.get('OSC',' sc1')
GSC=os.environ.get('GSC',' sc1')
NPROD=250; EP=1600; RST=EP*16
PB0=0x1000000 if PROF else 0
RSL=0x690000; NRS=EV('NRS',8); F_TBL=PB0; F_REC=PB0+0x40000
PSL=0x320000; F_P=PB0+NRS*RSL+0x1000; F_FLG=F_P-0x1000+0x312000; F_SIZE=0x10000000
NSL=(F_SIZE-F_P+0x1000)//PSL
assert 0x40000+256*RST<=RSL
CNT=0; MISC=256; OH=400; GL=928; BT=1872; STB=2144; RS=944
mSLOW=MISC; mS=MISC+4; mGX=MISC+8; mGP=MISC+12; mC3=MISC+16; mPD=MISC+20; mSL=MISC+24; mMX=MISC+28; mPI=MISC+32; mH=MISC+36; mNT=MISC+40; mW=MISC+44; mE=MISC+48; mEM=MISC+52; mNO=MISC+56; mPS=MISC+60; mWU=MISC+64
AGB=17408
W3L=AGB+56*256
Q2=AGB+16384; QS=52*128
S1=Q2; ERAW=Q2+12800
WB=Q2+4*QS; NULLG=49*256; EB=WB+NULLG+16
HIST=WB; PSC=WB+2048
GBUF=98304
KF_LDS=GBUF+65536
assert EB+2*NULLG+32<=GBUF and STB+16*RS<=AGB
AGG=STB
ONE2=0x3F803F80
NULLW2=0xFFFF|(512<<16)
CAPT=58
ID0=4; ID1=8; B3=12; A=28; Z=[60,76]; A3=92; EE=96; NN=112; DD=116; GP=120; SS=124
IDX=128; AR=144; RB=152; SB=153; SA=154; VY=155; OHC=156; VL=157; WT=158; DR=159
ACC=160; WU2=192; UA=208; WF=160; WU1=176; QA=224; RC=96; XF=28; GA=192
TP=143; WV=151; A6=244; QAD=250; QC=145; SA2=146; SI2=148; OH2=150; GA0=232; YA=234; EA=235; M4=236; EC=237; VZ=238; PO=92; TRU=240; TD=241; TC=242; TO=243; RK=244; FA=252
sP=24; sX=28; sA=32; sR=36; sM=40
sWV=56; sK=57; sNN=58; sI=59; sNT=60; sBUF=61; sQ=62; sW8=63; sCNT=64; sT0=65
sL2E=66; sINC=68; sRND=70; sTOT=71; sNON=72; sBUD=73; sW4=74; sLB=75
sWU=3; sW4K=22; sPO=23; sRO=59; sFLAG=76; sLO=77; sMA=78; sQ2=80; s128=81; sHEAD=82; sNF=83
t0,t1,t2,t3=84,85,86,87
BUDGET=400000
sNB=2 if PERM else sK

def mfma32(d,x,y,c): return f"v_mfma_f32_32x32x16_bf16 v[{d}:{d+15}], v[{x}:{x+3}], v[{y}:{y+3}], "+("0" if c is None else f"v[{c}:{c+15}]")
def mfma16(d,x,y,c): return f"v_mfma_f32_16x16x32_bf16 v[{d}:{d+3}], v[{x}:{x+3}], v[{y}:{y+3}], "+("0" if c is None else f"v[{c}:{c+3}]")
def mfma4(d,x,c): return f"v_mfma_f32_4x4x4_16b_bf16 v[{d}:{d+3}], v[{x}:{x+1}], v[{ID0}:{ID0+1}], "+("0" if c is None else f"v[{c}:{c+3}]")
def P2(r): return f"v[{r}:{r+1}]"
def P4(r): return f"v[{r}:{r+3}]"
def S2(r): return f"s[{r}:{r+1}]"
def SR4(r): return f"s[{r}:{r+3}]"

def gen_kf(name):
    a=Asm()
    def pt(n):
        if PROF and n in PTS: stamp(a,2+PTS.index(n))
    def ret(n):
        if PROF and n in PTS: a(f"s_sub_u32 s{90+PTS.index(n)}, {BUDGET}, s{sBUD}\ns_mul_i32 s{90+PTS.index(n)}, s{90+PTS.index(n)}, 100")
    def bar(n,w="s_waitcnt lgkmcnt(0)"):
        a(w+"\ns_barrier"); pt(n)
    def gsync(n,lab,off,target,va,vt,pre=None):
        if pre: a(pre)
        a(f"""
v_mov_b32 v{vt}, 1
s_mov_b64 exec, 1
ds_add_u32 v{va}, v{vt} offset:{off}
s_mov_b64 exec, -1
{lab}:
ds_read_b32 v{vt}, v{va} offset:{off}
s_waitcnt lgkmcnt(0)
v_readfirstlane_b32 s{t1}, v{vt}
s_and_b32 s{t1}, s{t1}, 255
s_cmp_lt_u32 s{t1}, {target}
s_cbranch_scc1 {lab}
""")
        pt(n)
    def gwait(lab,off,target,va,vt):
        if SLP: a(f"s_branch {lab}_\n{lab}:\ns_sleep {SLP}\n{lab}_:")
        else: a(f"{lab}:")
        a(f"""
ds_read_b32 v{vt}, v{va} offset:{off}
s_waitcnt lgkmcnt(0)
v_readfirstlane_b32 s{t1}, v{vt}
s_and_b32 s{t1}, s{t1}, 255
s_cmp_lt_u32 s{t1}, {target}
s_cbranch_scc1 {lab}
""")
    def consts():
        srd(a,sP,20,N,off=F_P-3072,stride=256)
        srd(a,sR,20,F_SIZE)
        a(f"""
s_cmp_lt_u32 s{sNB}, {N-256*48}
s_cselect_b32 s{sNN}, 49, 48
s_mov_b32 s{sL2E}, {hex(LOG2E_NEG)}
s_mov_b32 s{sL2E+1}, {hex(LOG2E_NEG)}
s_mov_b32 s{sINC}, 16
s_mov_b32 s{sINC+1}, 16
s_mov_b32 s{sMA}, 0x0000ffff
s_mov_b32 s{sMA+1}, 0x0000ffff
s_mov_b32 s{sQ2}, {Q2}
s_mov_b32 s{sBUD}, {BUDGET}
v_lshrrev_b32 v2, 5, v{VL}              ; h
; g = 4 b2 + 2 b4 + b0 ; m = 2 b3 + b1 ; slot = 16 b2 + 4 m + (g&3)
v_lshrrev_b32 v1, 3, v{VL}
v_and_b32 v1, 2, v1
v_and_or_b32 v1, v{VL}, 5, v1           ; g
v_lshlrev_b32 v{RB}, 1, v1
v_lshlrev_b32 v3, 1, v{VL}
v_and_b32 v3, 4, v3
v_and_or_b32 v{M4}, v{VL}, 8, v3        ; 4m
v_lshlrev_b32 v{EC}, 1, v{M4}
v_add_u32 v{EC}, {EB}, v{EC}
v_and_b32 v{WT}, 15, v{VL}              ; n / c16
v_lshlrev_b32 v3, 1, v3
v_and_or_b32 v3, v{VL}, 1, v3
v_lshl_or_b32 v3, v2, 2, v3
v_lshl_add_u32 v{AR}, v3, 7, s{sBUF}
v_bfe_u32 v1, v{VL}, 1, 1
v_bfe_u32 v3, v{VL}, 2, 3
v_xor_b32 v1, v1, v3
v_lshl_add_u32 v{AR}, v1, 4, v{AR}
v_mul_i32_i24 v{OHC}, -8, v2
v_mul_u32_u24 v{SA}, {RS}, v{WT}
v_and_b32 v1, 1, v{VL}
v_lshlrev_b32 v1, 4, v1
v_mov_b32 v3, 0x3f80
v_lshlrev_b32 v1, v1, v3
""")
        a(f"s_mov_b32 vcc_lo, 0x33333333\ns_mov_b32 vcc_hi, 0x33333333\nv_cndmask_b32 v{ID0}, 0, v1, vcc\nv_sub_u32 v{ID0+1}, v1, v{ID0}")
        a(f"""
v_lshrrev_b32 v2, 4, v{VL}              ; a / g
v_lshrrev_b32 v{SB}, 2, v{VL}
v_and_b32 v{SB}, 14, v{SB}
v_and_b32 v1, 7, v{VL}
v_lshlrev_b32 v1, 4, v1
s_movk_i32 s{s128}, 128
""")
        for i in range(4): a(f"v_xor_b32 v{IDX+2*i+1}, {(i&1)*16+3072-1024*i}, v1")
        a(f"v_xor_b32 v3, v2, v{WT}\nv_lshlrev_b32 v3, 4, v3\nv_lshl_add_u32 v3, v{WT}, 8, v3\nv_add_u32 v{FA}, {AGB}, v3")
        for s in range(1,4): a(f"v_xor_b32 v{FA+s}, {64*s}, v{FA}")
        a(f"""
s_lshl_b32 s{t0}, s{sW4}, 13
s_add_u32 s{t0}, s{t0}, {GBUF}
s_lshr_b32 s{t1}, s{sWV}, 2
v_lshrrev_b32 v1, 2, v{WT}
v_lshl_add_u32 v1, v2, 3, v1
v_lshl_add_u32 v{DR}, v1, 6, s{t0}
v_xor_b32 v2, s{t1}, v2
v_and_b32 v2, 1, v2
v_and_b32 v3, 3, v{VL}
v_lshl_add_u32 v{TRU}, v2, 5, v{DR}
v_lshl_add_u32 v{TRU}, v3, 3, v{TRU}
v_lshrrev_b32 v2, 3, v{VL}
v_and_b32 v2, 2, v2
v_xor_b32 v2, v2, v3
v_lshl_add_u32 v{TP}, v2, 4, v{DR}
""")
    def slot():
        a(f"""
s_mul_i32 s{sPO}, s{sNON}, 0x9E3779B1
s_mul_i32 s{sRO}, s{sPO}, 0x85EBCA6B
s_mul_hi_u32 s{sPO}, s{sPO}, {NSL}
s_mul_hi_u32 s{sRO}, s{sRO}, {NRS}
s_mul_i32 s{sPO}, s{sPO}, {PSL}
s_mul_i32 s{sRO}, s{sRO}, {RSL}
s_add_u32 s{sP}, s{sP}, s{sPO}
s_addc_u32 s{sP+1}, s{sP+1}, 0
""")
    def vyc(VY=VY):
        a(f"""
v_lshrrev_b32 v1, 4, v{VL}
v_and_b32 v1, 2, v1
v_xor_b32 v1, v1, v{VL}
v_and_b32 v1, 3, v1
v_lshlrev_b32 v1, 4, v1
v_lshrrev_b32 v2, 2, v{VL}
v_lshl_or_b32 v{VY}, v2, 8, v1
""")
    def trfrag(dst,addr,off,ks,hs):
        for s in range(4):
            a(f"ds_read_b64_tr_b16 {P2(dst+4*s)}, v{addr} offset:{off+s*ks}\nds_read_b64_tr_b16 {P2(dst+4*s+2)}, v{addr} offset:{off+s*ks+hs}")
    def tru(dst,off): trfrag(dst,TRU,off,2048,256)
    def sdma(sr,moff,loff=0,v=VY,js=range(8)):
        a(f"s_lshl_b32 s{t0}, s{sW4}, 6")
        for j in js:
            a(f"s_add_u32 m0, s{sBUF}, {loff+j*1024}\ns_add_u32 s{t1}, s{t0}, {moff+j*4096}\nbuffer_load_dwordx4 v{v}, {SR4(sr)}, s{t1} offen lds")
    def xfrags(Ts):
        for T in Ts:
            for s in range(4): a(f"ds_read_b128 {P4(XF+16*T+4*s)}, v{FA+s} offset:{T*4096}")
    def trw(): trfrag(WF,TP,32768,2048,256); trfrag(WF+16,TP,32768+8,2048,256)
    def um(r,tau,i,xf,acc,WF=WF):
        L=[]
        for s in range(4):
            w,x=WF+16*i+4*s,xf+4*s
            d=UA+8*tau+4*i
            L.append(mfma16(d,*((x,w) if (r,tau)==(1,1) else (w,x)),d if (acc or s) else None))
        return L
    def ugemm(r):
        for tau in range(2):
            for i in range(2):
                for x in um(r,tau,i,XF+16*(2*r+tau),False): a(x)
        a("s_nop 4")
        for j in ((0,2,4,6,8,10,12,14) if r==0 else (0,2,4,6,8,12)): a(f"v_pk_mul_f32 {P2(UA+j)}, {P2(UA+j)}, {S2(sL2E)}")
    def w3rd():
        a(f"v_lshlrev_b32 v1, 3, v{VL}")
        for q in range(4): a(f"ds_read_b64 {P2(B3+4*q+2*(q&1))}, v1 offset:{W3L+q*512}")
    F=A3
    def scan(slow):
        a(f"""
v_lshlrev_b32 v1, 2, v{VL}
ds_read_b32 v{F}, v1
v_cmp_gt_u32 vcc, s{sNN}, v{VL}
v_lshlrev_b32 v{F+1}, 8, v{VL}
s_waitcnt lgkmcnt(0)
v_sub_u32 v{QA}, v{F}, v{F+1}
""")
        if slow:
            a(f"""
s_movk_i32 s{t1}, 256
v_subrev_u32 v{QA}, s{sHEAD}, v{QA}
v_cmp_lt_i32 {S2(t2)}, s{t1}, v{QA}
v_med3_i32 v{QA}, v{QA}, 0, s{t1}
v_add_u32 v{F}, v{F+1}, v{QA}
""")
        a(f"""
v_add_u32 v3, 12, v{QA}
v_and_b32 v3, -16, v3
v_max_u32 v3, 80, v3
v_cndmask_b32 v3, 0, v3, vcc
v_mov_b32 v2, v3
""")
        dpp_scan(a,"v_add_u32",[2])
        a(f"""
v_readlane_b32 s{t0}, v2, 63
v_sub_u32 v2, v2, v3
""")
    def fill(lab,slow,nw):
        a(f"""
s_lshl_b32 s{t1}, s{sWV}, 4
v_add_u32 v{QA+1}, s{t1}, v2
v_lshrrev_b32 v{QA+1}, 3, v{QA+1}       ; 2*(G0+w)
v_add_u32 v{F+1}, s{t1}, v{F+1}         ; 256n+16w
v_subrev_u32 v{QA+2}, s{t1}, v3         ; g16-16w
""")
        if not slow: a(f"v_add_u32 v{QA+3}, v{QA+1}, v{SA}\nv_mov_b32 v{F+3}, 0x3f80\nds_write_b32 v1, v2 offset:{BT}")
        for k in range(16//nw):
            a(f"v_cmpx_lt_i32 vcc, {16*nw*k}, v{QA+2}\nds_write_b16 v{QA+1}, v{F+1+(k&1)} offset:{GL+2*nw*k}")
            if k+1<16//nw: a(f"v_add_u32 v{F+1+((k+1)&1)}, {16*nw}, v{F+1+(k&1)}")
            if not slow: a(f"ds_write_b16 v{QA+3}, v{F+3} offset:{STB+2*nw*k}")
        a(f"""
s_mov_b64 exec, -1
s_lshl_b32 s{t1}, s{sWV}, 2
v_sub_u32 v{QA+2}, v3, v{QA}
v_add_u32 v{F}, s{t1}, v{F}
v_subrev_u32 v{QA+2}, s{t1}, v{QA+2}    ; pad4 - 4w
s_mov_b32 s{t1}, {EB}
v_mov_b32 v{QA+4}, 0
v_mov_b32 v{QA+5}, 0
v_mov_b32 v{QA+6}, {hex(NULLW2)}
v_lshl_add_u32 v{QA+7}, v{F}, 1, s{t1}
""")
        for k in range(-(-20//nw)):
            a(f"v_cmpx_lt_i32 vcc, {4*nw*k}, v{QA+2}")
            if k==1: a(f"s_cbranch_vccz {lab}p")
            a(f"ds_write_b32 v{F}, v{QA+6} offset:{WB+4*nw*k}\nds_write_b64 v{QA+7}, {P2(QA+4)} offset:{8*nw*k}")
        a(f"""
{lab}p:
s_mov_b64 exec, -1
s_cmp_eq_u32 s{sWV}, 3
s_cbranch_scc0 {lab}q
s_lshr_b32 s{t1}, s{t0}, 3
v_lshl_add_u32 v{QA+1}, v{VL}, 1, s{t1}
v_mov_b32 v{QA+2}, {NULLG}
v_add_u32 v{QA+3}, {NULLG}, v1
v_lshlrev_b32 v{QA+7}, 1, v1
v_add_u32 v{QA+7}, {EB+2*NULLG}, v{QA+7}
s_mov_b64 exec, 0xff
ds_write_b16 v{QA+1}, v{QA+2} offset:{GL}
s_mov_b64 exec, 15
ds_write_b32 v{QA+3}, v{QA+6} offset:{WB}
ds_write_b64 v{QA+7}, {P2(QA+4)}
s_mov_b64 exec, -1
{lab}q:
""")
    def expand(lab,win=True):
        if win: a(f"""
v_subrev_u32 v1, s{sLO}, v{TO}
v_add_u32 v2, v1, v{TC}
v_med3_i32 v1, v1, 0, s{t3}
v_med3_i32 v2, v2, 0, s{t3}
v_sub_u32 v2, v2, v1
v_lshl_add_u32 v1, v1, 2, s{sLB}
""")
        a(f"{lab}:")
        for j in range(16):
            a(f"v_cmpx_lt_i32 vcc, {j}, v2")
            if j==13: a(f"s_cbranch_vccz {lab}z")
            a(f"ds_write_b32 v1, v{TD} offset:{4*j}")
        a(f"""
v_add_u32 v2, -16, v2
v_add_u32 v1, 64, v1
v_cmp_lt_i32 vcc, 0, v2
s_cmp_lg_u64 vcc, 0
s_cbranch_scc1 {lab}
{lab}z:
s_mov_b64 exec, -1
""")
    def rl1(i): return f"buffer_load_dwordx4 {P4(RC+4*i)}, v{RK+i}, {SR4(sR)}, {'0' if i<4 else 's'+str(sQ)} offen offset:{1024*(i&3)}{SC}"
    def reclist(ns):
        a(f"v_lshl_add_u32 v1, v{VL}, 2, s{sLB}")
        for i in reversed(range(ns)): a(f"ds_read_b32 v{RK+i}, v1 offset:{256*i}")
        a(f"v_add_u32 v2, s{sLO}, v{VL}\nv_lshlrev_b32 v2, 4, v2\ns_movk_i32 s{sQ}, 4096")
        for i in range(ns):
            a(f"v_cmp_gt_i32 {S2(sM+2*i)}, s{t1}, v{VL}\ns_sub_u32 s{t1}, s{t1}, 64")
        a("s_waitcnt lgkmcnt(0)")
        for i in range(ns): a(f"v_add_u32 v{RK+i}, v{RK+i}, v2")
    def recload(ns,lab):
        for i in reversed(range(ns)):
            a(f"s_mov_b64 exec, {S2(sM+2*i)}\ns_cbranch_execz {lab}{i}\n{rl1(i)}\n{lab}{i}:")
        a("s_mov_b64 exec, -1")
    def hist(ns,lab,extra,scat):
        a(f"v_mov_b32 v1, 4\ns_mov_b32 s{sW8}, {EB}\n{lab}p:")
        def gm(i): return S2(t0+2*(i&1))
        def sc(i,n):
            a(f"""
s_mov_b64 exec, {gm(i)}
s_waitcnt lgkmcnt({n})
v_min_u32 v{RK+i}, {NULLG-4}, v{RK+i}
v_lshl_add_u32 v{RC+4*i+3}, v{RK+i}, 1, s{sW8}
ds_write_b32 v{RK+i}, v{RC+4*i+2} offset:{WB}
ds_write_b64 v{RC+4*i+3}, {P2(RC+4*i)}
""")
        for i in reversed(range(ns)):
            a(f"""
s_mov_b64 exec, {S2(sM+2*i)}
s_waitcnt vmcnt({i+extra})
v_cmpx_eq_u32 {gm(i)}, s{sNON}, v{RC+4*i+3}
v_lshrrev_b32 v{RC+4*i+3}, 17, v{RC+4*i+2}
ds_add_rtn_u32 v{RK+i}, v{RC+4*i+3}, v1
s_andn2_b64 {S2(sM+2*i)}, {S2(sM+2*i)}, {gm(i)}
""")
            a(f"s_mov_b64 vcc, {S2(sM+2*i)}" if i==ns-1 else f"s_or_b64 vcc, vcc, {S2(sM+2*i)}")
            if scat and i==0 and 0: pass
            if scat and i==0: a(f"s_cselect_b64 exec, 0, 1\nds_add_u32 v{VZ}, v1 offset:{mH}")
            if scat and i<ns-1: sc(i+1,(1 if i==ns-2 else 3)+(1 if i==0 else 0))
        if scat: sc(0,3)
        a(f"s_cbranch_vccnz {lab}r\n{lab}d:\ns_mov_b64 exec, -1")
    def hist_retry(ns,lab,scat):
        a(f"{lab}r:\ns_sub_u32 s{sBUD}, s{sBUD}, 1\ns_cbranch_scc1 {lab}x")
        if RS1: a(f"s_sleep {RS1}")
        recload(ns,lab+"l")
        a(f"s_waitcnt vmcnt(0)\ns_branch {lab}p\n{lab}x:\ns_mov_b32 s{sBUD}, 0")
        if scat: a(f"s_mov_b64 exec, 1\nds_add_u32 v{VZ}, v1 offset:{mH}")
        a(f"s_branch {lab}d")
    def qfull(lab,mid):
        H=QA+4; MX=QA+1
        a(f"v_xor_b32 v{TC}, 32, v{TRU}")
        trfrag(WF,TC,0,2048,256)
        a(f"""
s_lshl_b32 s{t0}, s{sW4}, 8
s_add_u32 s{t0}, s{t0}, {Q2}
v_lshrrev_b32 v1, 4, v{VL}
v_lshl_add_u32 v120, v1, 11, s{t0}
v_and_b32 v1, 8, v{VL}
v_lshl_add_u32 v120, v1, 3, v120
v_and_b32 v1, 3, v{VL}
v_lshl_add_u32 v120, v1, 4, v120
v_and_b32 v1, 4, v{VL}
v_lshl_add_u32 v120, v1, 1, v120
v_add_u32 v121, 128, v120
s_waitcnt lgkmcnt(0)
""")
        tru(WF+16,0)
        def cv(i,T,pk):
            c=GA+16*i+4*T
            L=[]
            if pk: L+=[f"v_pk_mul_f32 {P2(c)}, {P2(c)}, {S2(sL2E)}",f"v_pk_mul_f32 {P2(c+2)}, {P2(c+2)}, {S2(sL2E)}"]
            else: L+=[f"v_mul_f32 v{c+k}, s{sL2E}, v{c+k}" for k in range(4)]
            L+=[f"v_and_b32 v{H+k}, 0xffff0000, v{c+k}" for k in range(4)]
            L+=[f"v_maximum3_f32 v{MX}, {'0' if T==0 and i==0 else 'v'+str(MX)}, abs(v{c}), abs(v{c+1})",f"v_maximum3_f32 v{MX}, v{MX}, abs(v{c+2}), abs(v{c+3})"]
            if pk: L+=[f"v_pk_add_f32 {P2(c)}, {P2(c)}, {P2(H)} neg_lo:[0,1] neg_hi:[0,1]",f"v_pk_add_f32 {P2(c+2)}, {P2(c+2)}, {P2(H+2)} neg_lo:[0,1] neg_hi:[0,1]"]
            else: L+=[f"v_sub_f32 v{c+k}, v{c+k}, v{H+k}" for k in range(4)]
            L+=[f"v_cvt_pk_bf16_f32 v{c+k}, v{c+k}, v{H+k}" for k in range(4)]
            return L
        for T in range(4):
            for s in range(4): a(mfma16(GA+4*T,XF+16*T+4*s,WF+4*s,None if s==0 else GA+4*T))
        a("s_waitcnt lgkmcnt(0)")
        fl=cv(0,0,0)+cv(0,1,0)
        for T in range(4):
            for s in range(4):
                a(mfma16(GA+16+4*T,XF+16*T+4*s,WF+16+4*s,None if s==0 else GA+16+4*T))
                for _ in range(2): a(fl.pop(0))
        if PFI==0: mid()
        for x in fl+cv(0,2,1)+cv(1,0,1)+cv(1,1,1)+cv(1,2,1): a(x)
        if PFI==1: mid()
        gwait(lab+"w",mSL,4,VZ,1)
        for i in range(2):
            for T in range(3):
                c=GA+16*i+4*T
                a(f"ds_write2st64_b64 v{120+i}, {P2(c)}, {P2(c+2)} offset0:{16*T} offset1:{16*T+2}")
        a("s_mov_b64 exec, 0xffff")
        for i in range(2):
            c=GA+16*i+12
            a(f"""
v_mul_f32 v{c}, s{sL2E}, v{c}
v_and_b32 v{H}, 0xffff0000, v{c}
v_maximum3_f32 v{MX}, v{MX}, abs(v{c}), abs(v{c})
v_sub_f32 v{c}, v{c}, v{H}
v_cvt_pk_bf16_f32 v{c}, v{c}, v{H}
ds_write2st64_b64 v{120+i}, {P2(c)}, {P2(c+2)} offset0:48 offset1:50
""")
        a(f"""
s_mov_b64 exec, -1
v_cmp_nge_f32 vcc, 0x40e80000, v{MX}
s_cbranch_vccz {lab}q
ds_write_b32 v{VZ}, v{FA} offset:{mSLOW}
{lab}q:
""")
        pt('qd')
    def ranges():
        a(f"""
s_lshr_b32 s{sCNT}, s{sNT}, 3
s_mul_i32 s{sT0}, s{sCNT}, s{sWV}
s_and_b32 s{t2}, s{sNT}, 7
s_min_u32 s{t3}, s{t2}, s{sWV}
s_add_u32 s{sT0}, s{sT0}, s{t3}
s_cmp_lt_u32 s{sWV}, s{t2}
s_addc_u32 s{sCNT}, s{sCNT}, 0
s_lshl_b32 s{t0}, s{sT0}, 7
s_lshl_b32 s{t2}, s{sT0}, 4
v_add_u32 v{SB}, s{t2}, v{SB}
v_add_u32 v{RB}, s{t2}, v{RB}
s_add_u32 s{t3}, s{sT0}, s{sCNT}
v_min_u32 v1, 8, v{VL}
v_sub_u32 v1, s{t3}, v1
v_lshlrev_b32 v1, 4, v1
v_max_i32 v1, 0, v1
""")
    AS=272; OST=GBUF+32768
    eFA,eOW,eN48,eRD,eST,eM0,eM1=136,137,138,139,140,141,142
    sE0,sE1,sE2=4,5,6
    def epi_consts():
        srd(a,sX,16,N*256)
        vyc(WV)
        a(f"""
v_and_b32 v1, 15, v{VL}
v_lshrrev_b32 v2, 4, v{VL}
v_mul_u32_u24 v3, {AS}, v1
s_lshr_b32 s{t0}, s{sWV}, 2
s_mul_i32 s{t1}, s{t0}, {32*AS}
v_lshl_add_u32 v3, v2, 4, v3
v_add_u32 v{eFA}, s{t1}, v3
s_lshl_b32 s{t0}, s{t0}, 13
s_add_u32 s{t0}, s{t0}, {OST}
s_lshl_b32 s{t1}, s{sW4}, 2
v_or_b32 v2, s{t1}, v2
v_xor_b32 v2, v2, v1
v_lshl_add_u32 v2, v2, 4, s{t0}
v_lshl_add_u32 v{eOW}, v1, 8, v2
s_lshl_b32 s{t0}, s{sW4}, 6
s_add_u32 s{t0}, s{t0}, {OST+48*256}
v_and_b32 v2, 12, v1
v_lshl_add_u32 v2, v2, 2, s{t0}
v_and_b32 v3, 3, v1
v_lshl_add_u32 v{eN48}, v3, 1, v2
v_lshlrev_b32 v1, 4, v0
v_add_u32 v{eRD}, {OST}, v1
v_lshrrev_b32 v2, 4, v0
v_xor_b32 v3, v2, v0
v_and_b32 v3, 15, v3
v_lshlrev_b32 v3, 4, v3
v_lshl_add_u32 v{eST}, v2, 16, v3
s_lshl_b32 s{sE0}, s{sNB}, 8
s_add_u32 s{sE1}, s{sE0}, {32*65536}
s_cmp_lt_u32 s{sWV}, 4
s_cselect_b64 {S2(sE2)}, -1, 0xffff
s_mul_i32 s{t0}, s{sWV}, {AS}
v_lshl_add_u32 v{eM1}, v{VL}, 2, s{t0}
v_lshlrev_b32 v{OH2}, 1, v{OHC}
v_and_b32 v1, 31, v{VL}
v_lshlrev_b32 v1, 4, v1
v_lshlrev_b32 v2, 5, v{VL}
v_and_b32 v2, 0x400, v2
v_add3_u32 v{QC}, v1, v2, s{sQ2}
v_cndmask_b32 v{SI2}, 0, 16, {S2(sMA)}
v_cndmask_b32 v{SI2+1}, 16, 0, {S2(sMA)}
v_sub_u32 v2, v{SA}, v{OHC}
v_add_u32 v2, {STB}, v2
v_mov_b32 v1, {OH+64}
v_cndmask_b32 v{SA2}, v1, v2, {S2(sMA)}
v_cndmask_b32 v{SA2+1}, v2, v1, {S2(sMA)}
""")
    def arrive(off,vt): a(f"v_mov_b32 v{vt}, 1\ns_mov_b64 exec, 1\nds_add_u32 v{VZ}, v{vt} offset:{off}\ns_mov_b64 exec, -1")

    def claim():
        a(f"""
s_mul_i32 s{t1}, s{sW4}, {13*65536}
s_lshl_b32 s{t2}, s{sNB}, 8
s_add_u32 s{t1}, s{t1}, s{t2}
s_add_u32 s{t1}, s{t1}, {F_P}
""")
        if CLW==1:
            a(f"""
v_lshlrev_b32 v2, 15, v{VL}
v_and_b32 v2, 0xffff0000, v2
v_and_b32 v3, 1, v{VL}
v_lshl_add_u32 v2, v3, 7, v2
v_add_u32 v2, s{t1}, v2
s_mov_b64 exec, 0x3ffffff
global_store_dword v2, v{VZ}, s[20:21] sc1
s_mov_b64 exec, -1
""")
        else:
            a(f"""
v_lshlrev_b32 v2, 14, v{VL}
v_and_b32 v2, 0xffff0000, v2
v_and_b32 v3, 3, v{VL}
v_lshl_add_u32 v2, v3, 6, v2
v_add_u32 v2, s{t1}, v2
s_mov_b32 exec_hi, 0xfffff
global_store_dword v2, v{VZ}, s[20:21] sc1
s_mov_b64 exec, -1
""")
    D=28; SRc=36; K=44; R=52; W2=60; RO=80
    sD=40; sS=44; sE=48
    Q16="s_mov_b64 exec, 0xffff"; FULL="s_mov_b64 exec, -1"
    a(f"""
{name}:
{"s_memrealtime s[88:89]" if PROF and FST else ""}
s_getpc_b64 {S2(t2)}
s_cmp_ge_u32 s2, 256
s_cbranch_scc1 KF_END
s_load_dwordx16 s[4:19], s[0:1], 0
s_load_dwordx2 s[20:21], s[0:1], 64
v_lshrrev_b32 v1, 6, v0
s_and_b32 s{t0}, s2, 0xf8
s_sub_u32 s{t1}, s{t0}, 136
s_cselect_b32 s{t1}, s{t0}, s{t1}
v_add_lshl_u32 v2, v1, s{t1}, 7
v_readfirstlane_b32 s{sWV}, v1
v_min_u32 v2, KF_CEND-{name}-16, v2
s_cmpk_eq_u32 s2, {NWG}
s_cbranch_scc1 KF_n0
s_mov_b64 exec, 1
global_load_dword v{QA+15}, v2, {S2(t2)}
s_mov_b64 exec, -1
KF_n1:
v_and_b32 v{VL}, 63, v0
v_mov_b32 v{VZ}, 0
v_lshlrev_b32 v113, 4, v{VL}
s_and_b32 s{sK}, s2, 7
s_lshl_b32 s{sK}, s{sK}, 5
s_lshr_b32 s{t1}, s2, 3
s_or_b32 s{sK}, s{sK}, s{t1}
s_and_b32 s{sW4}, s{sWV}, 3
s_lshl_b32 s{sW4K}, s{sW4}, 10
s_cmp_ge_u32 s{sWV}, 4
s_cbranch_scc0 KF_S
v_lshlrev_b32 v2, 2, v0
v_lshlrev_b32 v3, 8, v{VL}
ds_write_b32 v2, v{VZ} offset:{HIST-1024}
v_lshlrev_b32 v2, 2, v{VL}
ds_write2st64_b32 v2, v3, v{VZ} offset0:0 offset1:1
v_bfe_u32 v1, v0, 4, 4
v_xor_b32 v37, v1, v0
v_and_b32 v37, 15, v37
v_lshlrev_b32 v37, 4, v37
v_lshl_add_u32 v36, v1, 8, s{sNB}
s_waitcnt lgkmcnt(0)
""")
    if WSB: a(f"s_add_u32 s20, s20, {hex(WSB)}\ns_addc_u32 s21, s21, 0")
    (0 if FST else stamp(a,0,True)); stamp(a,1); pt('st')
    a(f"""
""")
    if XORD==0:
        srd(a,sX,4,N,stride=256)
        for j in range(4):
            if j==3: a(f"s_cmp_eq_u32 s{sWV}, 4\ns_cbranch_scc0 KT_c")
            a(f"s_add_u32 m0, s{sW4K}, {AGB+j*4096}\ns_nop 0\nbuffer_load_dwordx4 v[36:37], {SR4(sX)}, 0 idxen offen{NT} lds\nv_add_u32 v36, 4096, v36")
        a("KT_c:")
    a(f"""
s_lshr_b32 s{t0}, s{t0}, 1
s_add_u32 s{t0}, s{t0}, s{sWV}
s_sub_u32 s{t0}, s{t0}, 4
s_lshl_b32 s{t0}, s{t0}, 9
v_lshl_add_u32 v2, v{VL}, 7, s{t0}
s_mov_b64 exec, 15
global_load_dword v{QA+15}, v2, s[12:13]
global_load_dword v{QA+15}, v2, s[14:15]
s_mov_b64 exec, -1
""")
    if TLB:
        a(f"""
s_lshr_b32 s{t0}, s{t0}, 9
s_mul_i32 s{t1}, s{t0}, {2*RST}
s_add_u32 s{t1}, s{t1}, {F_REC+EP*16}
s_add_u32 s52, s20, s{t1}
s_addc_u32 s53, s21, 0
s_load_dword s44, s[52:53], 0
s_load_dword s45, s[52:53], {RST}
""")
    a(f"""
s_branch KF_B0
KF_n0:
s_memrealtime s[44:45]
v_and_b32 v2, 63, v0
v_lshlrev_b32 v2, {2 if NW else 6}, v2
s_cmp_eq_u32 s{sWV}, {0 if NWG else 4}
s_waitcnt lgkmcnt(0)
s_cbranch_scc0 KF_n1
s_lshl_b32 s46, s44, 2
s_or_b32 s46, s46, 1
v_mov_b32 v3, s46
s_mov_b64 exec, {-1 if NW else 15}
global_store_dword v2, v3, s[18:19] sc1
s_mov_b64 exec, -1
s_branch KF_n1
KF_S:
s_min_u32 s{t2}, s2, {NPROD-1}
s_mul_i32 s{t2}, s{t2}, {EP*4}
s_mul_i32 s{t3}, s{sWV}, 400
v_add_u32 v108, s{t3}, v{VL}
v_lshlrev_b32 v109, 2, v108
s_mov_b32 s{sD+2}, {E*4}
s_mov_b32 s{sD+3}, 0x00020000
s_waitcnt lgkmcnt(0)
""")
    if WSB: a(f"s_add_u32 s20, s20, {hex(WSB)}\ns_addc_u32 s21, s21, 0")
    (0 if FST else stamp(a,0,True)); stamp(a,1); pt('st')
    a(f"s_mov_b32 s{sD}, s10\ns_and_b32 s{sD+1}, s11, 0xffff")
    def ld7(dst,sr):
        for i in range(7):
            if i==6: a(Q16)
            a(f"buffer_load_dword v{dst+i}, v109, {SR4(sr)}, s{t2} offen offset:{i*256}{NT}")
        a(FULL)
    ld7(D,sD); pt('dl')
    def srcld(): srd(a,sS,8,E*4); ld7(SRc,sS)
    def eld():
        srd(a,sE,6,E*8)
        a(f"""
s_lshl_b32 s{sLB}, s{t3}, 3
s_lshl_b32 s{t2}, s{t2}, 1
s_add_u32 s{t2}, s{t2}, s{sLB}
s_add_u32 m0, s{sLB}, {ERAW}
s_add_u32 s{sLB}, s{sLB}, {S1}
""")
        for j in range(4):
            if j==3: a("s_mov_b64 exec, 0xff")
            a(f"buffer_load_dwordx4 v113, {SR4(sE)}, s{t2} offen offset:{1024*j}{NT} lds")
        a(FULL)
    if EO<2: srcld()
    if EO<1: eld()
    if CLM==2: claim()
    a(f"""
KF_B0:
""")
    if DBGP:
        a("v_mov_b32 v1, 0")
        for j,r in enumerate((4,6,8,10,12,14,16,18,20)): a(f"v_writelane_b32 v1, s{r}, {j}")
        a(f"v_lshlrev_b32 v2, 2, v{VL}\ns_mov_b64 exec, 0x1ff\nglobal_store_dword v2, v1, s[18:19]\ns_mov_b64 exec, -1\ns_waitcnt vmcnt(0)")
    if ALN: a(f"s_add_u32 s20, s20, {ALN-1}\ns_addc_u32 s21, s21, 0\ns_and_b32 s20, s20, {-ALN}")
    a(f"""
s_lshl_b32 s{sBUF}, s{sWV}, 13
s_add_u32 s{sBUF}, s{sBUF}, {GBUF}
s_barrier
""")
    if W1E:
        a(f"s_cmp_ge_u32 s{sWV}, 4\ns_cbranch_scc0 KF_c0")
        srd(a,sA,12,260*256); vyc(); sdma(sA,0,0,VY,range(W1E))
        a("KF_c0:")
    consts()
    a(f"""
s_cmp_ge_u32 s{sWV}, 4
s_cbranch_scc1 KF_T
""")
    if EO>=2: a(f"v_lshlrev_b32 v109, 2, v108"); srcld()
    if EO>=1: eld()
    a(f"""
v_mov_b32 v111, 8
v_and_b32 v124, 7, v{VL}
v_lshlrev_b32 v124, 7, v124
v_lshrrev_b32 v125, 3, v{VL}
v_lshl_add_u32 v124, v125, 2, v124
v_add_u32 v124, {HIST}, v124
v_add_u32 v125, 1024, v124
v_lshlrev_b32 v112, 3, v108
v_lshlrev_b32 v110, 4, v108
""")
    for i in range(7): a(f"v_add_u32 v{W2+1+2*i}, {i*512}, v112")
    if N4==1: a(f"s_load_dword s{sNON}, s[18:19], 0")
    if N4==2: a(f"s_mov_b32 s{sNON}, 0")
    a(f"s_cmp_ge_u32 s2, {NPROD}\ns_cbranch_scc1 KS_d\ns_waitcnt vmcnt({11+(CLM==2)})")
    pt('dst')
    if N4==2: a(f"s_load_dword s{sNON}, s[18:19], 0")
    for i in range(7):
        if i==6: a(Q16)
        a(f"v_lshlrev_b32_sdwa v{K+i}, 2, v{D+i} dst_sel:DWORD dst_unused:UNUSED_PAD src0_sel:DWORD src1_sel:BYTE_0\nds_add_rtn_u32 v{R+i}, v{K+i}, v111 offset:{HIST}")
    a(FULL+"\nKS_d:")
    gsync('b1',"KS_y1",mS,4,VZ,2)
    if PERM: a(f"ds_read2_b32 v[116:117], v124 offset0:0 offset1:8\nds_read2_b32 v[118:119], v124 offset0:16 offset1:24")
    else: a(f"ds_read_b128 v[116:119], v113 offset:{HIST}")
    if NE==3 and not N4: a(f"s_load_dword s{sNON}, s[18:19], 0")
    if N4: a(f"s_cmp_lg_u32 s{sNON}, 0\ns_cbranch_scc1 KS_na\ns_load_dword s{sNON}, s[18:19], 128\nKS_na:")
    for i in range(7): a(f"v_lshrrev_b32 v{D+i}, 8, v{D+i}")
    a(f"""
s_waitcnt lgkmcnt(0)
v_add_u32 v2, v116, v117
v_add3_u32 v2, v2, v118, v119
v_mov_b32 v3, v2
""")
    dpp_scan(a,"v_add_u32",[3])
    a(f"""
v_sub_u32 v120, v3, v2
v_add_u32 v121, v120, v116
v_add_u32 v122, v121, v117
v_add_u32 v123, v122, v118
""")
    if PERM: a(f"ds_write2_b32 v125, v120, v121 offset0:0 offset1:8\nds_write2_b32 v125, v122, v123 offset0:16 offset1:24")
    else: a(f"ds_write_b128 v113, v[120:123] offset:{HIST+1024}")
    for i in range(7):
        if i==6: a(Q16)
        a(f"ds_read_b32 v{K+i}, v{K+i} offset:{HIST+1024}")
    a(FULL)
    def tpub():
        if not NE: a(f"s_load_dword s{sNON}, s[18:19], 0")
        a(f"""
v_lshl_or_b32 v{QA}, v121, 16, v120
v_lshl_or_b32 v{QA+1}, v123, 16, v122
s_lshl_b32 s{t2}, s2, 10
s_add_u32 s{t2}, s{t2}, {F_TBL}
s_lshl_b32 s{t3}, s{sWV}, 4
""")
        for k,off in enumerate((64,192,None) if N4 else (128,64,192,None)):
            a(f"s_waitcnt lgkmcnt(0)\ns_cmp_lg_u32 s{sNON}, 0\ns_cbranch_scc1 KS_n1")
            if off is not None: a(f"s_sleep {NS}\ns_load_dword s{sNON}, s[18:19], {off}")
        a(f"""
KS_n0:
global_load_dword v1, v{VZ}, s[18:19] sc1
s_waitcnt vmcnt(0)
v_readfirstlane_b32 s{sNON}, v1
s_cmp_lg_u32 s{sNON}, 0
s_cbranch_scc1 KS_n1
s_sub_u32 s{sBUD}, s{sBUD}, 1
s_cbranch_scc0 KS_n0
s_mov_b32 s{sBUD}, 0
s_mov_b32 s{sNON}, 1
KS_n1:
v_mov_b32 v1, s{sNON}
ds_write_b32 v{VZ}, v1 offset:{mNO}
""")
        pt('non')
        slot()
        a(f"""
v_mov_b32 v{QA+3}, v1
s_add_u32 s{t2}, s{t2}, s{sRO}
s_lshl_b64 exec, 0xffff, s{t3}
buffer_store_dwordx4 {P4(QA)}, v113, {SR4(sR)}, s{t2} offen{SSC}
s_mov_b64 exec, -1
""")
    if NE==3:
        a(f"v_mov_b32 v{QA+2}, v3"); tpub()
        if WG_: arrive(mPS,2)
    else: a(f"s_mov_b32 s{sNON}, 0")
    a(f"s_cmp_ge_u32 s2, {NPROD}\ns_cbranch_scc1 KS_e\ns_waitcnt vmcnt({5 if NE==3 else 4})")
    if X&64:
        for i in range(7): a(f"v_and_b32 v{SRc+i}, 0x1ff, v{SRc+i}")
    for i in range(7): a(f"v_lshl_or_b32 v{W2+2*i}, v{D+i}, 19, v{SRc+i}")
    a(f"s_waitcnt lgkmcnt(0)")
    if NE==2: a(f"s_load_dword s{sNON}, s[18:19], 0")
    for i in range(7):
        if i==6: a(Q16)
        a(f"v_add_u32 v{K+i}, v{K+i}, v{R+i}\nds_write_b64 v{K+i}, {P2(W2+2*i)} offset:{S1}")
    a(FULL+"\nKS_e:")
    pt('sc1')
    if NE<3: a(f"v_mov_b32 v{QA+2}, v3")
    if NE==1: a(f"s_load_dword s{sNON}, s[18:19], 0")
    if NE<2: epi_consts(); tpub()
    else:
        if NE==2: tpub()
        pass
    a(f"""
v_lshlrev_b32 v114, 10, v0
s_lshr_b32 s{sLO}, s{sK}, 2
s_lshl_b32 s{sLO}, s{sLO}, 4
s_add_u32 s{sLO}, s{sLO}, {F_TBL}
s_add_u32 s{sLO}, s{sLO}, s{sRO}
s_add_u32 s{sRO}, s{sRO}, {F_REC}
v_cmp_gt_u32 vcc, {NPROD}, v0
v_mov_b32 v{QA+4}, 0
v_mov_b32 v{QA+5}, 0
v_mov_b32 v{QA+6}, 0
s_mul_i32 s{t0}, s2, {RST}
s_add_u32 s{t0}, s{t0}, s{sRO}
s_add_u32 s{t2}, s{t0}, 4096
v_mul_u32_u24 v115, {RST}, v0
v_add_u32 v115, s{sRO}, v115
""")
    gsync('bS',"KS_y2",mS,8,VZ,2,f"s_waitcnt vmcnt({1+(CLM==2)})")
    tl=f"s_mov_b64 exec, vcc\nbuffer_load_dwordx4 {P4(QA+4)}, v114, {SR4(sR)}, s{sLO} offen{SC}\ns_mov_b64 exec, -1"
    a(f"""
s_cmp_ge_u32 s2, {NPROD}
s_cbranch_scc0 KS_h0
""")
    if H1: arrive(mE,2); gwait("KS_h1",mPI,4,VZ,2)
    else: gwait("KS_h1",mGP,4,VZ,2)
    a(f"""
{tl}
s_waitcnt vmcnt(0)
v_mov_b32 v1, 0
s_branch KS_j
KS_h0:
""")
    order=[6,0,1,2,3,4,5]
    for i in order:
        if i==6: a(Q16)
        a(f"ds_read_b64 {P2(RO+2+4*i)}, v112 offset:{S1+i*512}")
        if i==6: a(FULL)
    for i in order:
        if i==6: a(Q16)
        a(f"s_waitcnt lgkmcnt(6)\nds_read_b64 {P2(RO+4*i)}, v{RO+3+4*i} offset:{ERAW}")
        if i==6: a(FULL)
    gwait("KS_ww",mW,4,VZ,2)
    for k,i in enumerate(order):
        if k==TP_: a(tl)
        if i==6: a(Q16)
        a(f"v_mov_b32 v{RO+3+4*i}, v1\nbuffer_store_dwordx4 {P4(RO+4*i)}, v110, {SR4(sR)}, s{t0 if i<4 else t2} offen offset:{1024*(i&3)}{SSC}")
        if i==6: a(FULL)
    if TP_==7: a(tl)
    pt('out')
    a(f"v_pk_maximum3_f16 v1, v{RO}, v{RO+1}, v{RO+1}\nv_pk_minimum3_f16 v2, v{RO}, v{RO+1}, v{RO+1}")
    for i in range(1,7):
        if i==6: a(Q16)
        a(f"v_pk_maximum3_f16 v1, v1, v{RO+4*i}, v{RO+4*i+1}\nv_pk_minimum3_f16 v2, v2, v{RO+4*i}, v{RO+4*i+1}")
    a(FULL)
    absmax_fin(a,1,2,3)
    dpp_scan(a,"v_max_u32",[1])
    a(f"""
KS_j:
v_mov_b32 v2, 1
s_mov_b32 exec_lo, 0
s_brev_b32 exec_hi, 1
ds_max_u32 v{VZ}, v1 offset:{mEM}
ds_add_u32 v{VZ}, v2 offset:{mE}
s_mov_b64 exec, -1
""")
    if NE>=2: epi_consts()
    gwait("KS_xw",mGX,4,VZ,2)
    xfrags([0,1])
    a(f"""
s_bitcmp1_b32 s{sK}, 1
s_cselect_b64 {S2(t2)}, -1, 0
s_lshl_b32 s{t0}, s{sK}, 4
s_and_b32 s{t0}, s{t0}, 16
s_waitcnt vmcnt({7-TP_})
s_mov_b64 exec, vcc
KT_f:
v_cmp_ne_u32 vcc, s{sNON}, v{QA+7}
s_cbranch_vccz KT_g
s_mov_b64 exec, vcc
s_sub_u32 s{sBUD}, s{sBUD}, 1
s_cbranch_scc1 KT_f2
{'s_sleep '+str(RS1) if RS1 else ''}
buffer_load_dwordx4 {P4(QA+4)}, v114, {SR4(sR)}, s{sLO} offen{SC}
s_waitcnt vmcnt(0)
s_branch KT_f
KT_f2:
s_mov_b32 s{sBUD}, 0
v_mov_b32 v{QA+4}, 0
v_mov_b32 v{QA+5}, 0
v_mov_b32 v{QA+6}, 0
KT_g:
s_mov_b64 exec, -1
""")
    pt('tp'); ret('rt1')
    a(f"""
v_cndmask_b32 v1, v{QA+4}, v{QA+5}, {S2(t2)}
v_cndmask_b32 v2, v{QA+5}, v{QA+6}, {S2(t2)}
v_alignbit_b32 v1, v2, v1, s{t0}
v_sub_u32_sdwa v{TC}, v1, v1 dst_sel:DWORD dst_unused:UNUSED_PAD src0_sel:WORD_1 src1_sel:WORD_0
v_and_b32 v1, 0xffff, v1
v_lshrrev_b32 v{TC}, 3, v{TC}
v_lshl_add_u32 v{TD}, v1, 1, v115
v_mov_b32 v{TO}, v{TC}
""")
    dpp_scan(a,"v_add_u32",[TO])
    a(f"""
v_readlane_b32 s{sTOT}, v{TO}, 63
v_sub_u32 v{TO}, v{TO}, v{TC}
v_mov_b32 v2, v{TC}
v_lshlrev_b32 v1, 4, v{TO}
s_mov_b32 s{sLO}, 0
s_cmp_gt_u32 s{sTOT}, 512
v_sub_u32 v{TD}, v{TD}, v1
v_lshl_add_u32 v1, v{TO}, 2, s{sLB}
s_cselect_b32 s{t1}, 0, s{sTOT}
s_cbranch_scc1 KT_xe
""")
    expand("KT_x",False)
    a("KT_xe:")
    reclist(8)
    arrive(mSL,1)
    pt('exp')
    if SWU:
        gwait("KS_gp",mGP,4,VZ,1); srd(a,sA,14,256*256); sdma(sA,0,32768,WV)
    gwait("KS_rw",{0:mPD,1:mPS,2:mPS}[RWI],4,VZ,1)
    if SWU==2: a("s_waitcnt vmcnt(0)"); arrive(mPI,1)
    if TP_<7: a("s_waitcnt vmcnt(0)")
    recload(8,"KT_l")
    pt('rl')
    def pfp():
        a(f"""
s_lshr_b32 s{t1}, s2, 3
s_mul_i32 s{t1}, s{t1}, 391
""")
        if PF0: a(f"v_and_b32 v2, 255, v0\nv_add_u32 v2, s{t1}, v2\nv_mov_b32 v3, 0")
        else: a(f"v_bfe_u32 v2, v0, 1, 7\nv_add_u32 v2, s{t1}, v2\nv_and_b32 v3, 1, v0\nv_lshlrev_b32 v3, 7, v3")
        if PFN<64: a(f"s_bfm_b64 exec, {PFN}, 0")
        a(f"buffer_load_dword v{QA+15}, v[2:3], {SR4(sP)}, 0 idxen offen offset:3072{SC}\ns_mov_b64 exec, -1")
    if PFP==1: pfp()
    if SWU==1:
        a(f"s_add_u32 s{t1}, s{sTOT}, 63\ns_lshr_b32 s{t1}, s{t1}, 6\ns_cmp_ge_u32 s{t1}, 6\ns_cbranch_scc1 KS_v6\ns_waitcnt vmcnt(0)\nKS_v6:\ns_cmp_gt_u32 s{sTOT}, 512\ns_cbranch_scc0 KS_v7\ns_waitcnt vmcnt(0)\nKS_v7:\ns_waitcnt vmcnt(6)")
        arrive(mPI,1)
    if not US:
        if not SWU: gwait("KS_w2",mPI,4,VZ,1)
        trw()
        a("s_waitcnt lgkmcnt(0)")
        w3rd()
        ugemm(0)
    pt('ud')
    hist(8,"KT_h",1 if PFP==1 else 0,True)
    if PFP==3: pfp()
    pt('hs'); ret('rt2')
    gwait("KS_b2",mH,16,VZ,1)
    pt('b2')
    scan(False)
    a(f"""
v_cmp_lt_u32 vcc, 0x100, v{QA}
s_add_u32 s{sNT}, s{t0}, 127
s_lshr_b32 s{sNT}, s{sNT}, 7
s_cmp_gt_u32 s{sNT}, {CAPT}
s_cbranch_scc1 KT_j
s_cbranch_vccnz KT_j
""")
    fill("KFz",False,4)
    a(f"v_mov_b32 v1, s{sNT}\nds_write_b32 v{VZ}, v1 offset:{mNT}")
    pt('fil')
    a(f"""
s_cmp_gt_u32 s{sTOT}, 512
s_cbranch_scc0 KT_k
KT_j:
ds_write_b32 v{VZ}, v{FA} offset:{mSLOW}
KT_k:
s_mov_b32 s{sWU}, 1
""")
    if US: gwait("KS_w2",mPI,4,VZ,1); trw(); w3rd()
    ranges()
    srd(a,sA,14,256*256)
    if PRIO: a("s_setprio 3")
    bar('b3')
    a("s_branch KF_J")
    a(f"""
KF_T:
{"s_load_dword s47, s[18:19], 0" if GPN else ""}
v_and_b32 v108, 255, v0
v_mov_b32 v32, 0
v_mov_b32 v33, 0
v_mov_b32 v34, 0
v_mov_b32 v35, 0
v_lshlrev_b32 v110, 4, v108
""")
    sG=40
    srd(a,sX,4,N,stride=256)
    def xld():
        for j in range(4):
            if j==3: a(f"s_cmp_eq_u32 s{sWV}, 4\ns_cbranch_scc0 KT_c")
            a(f"s_add_u32 m0, s{sW4K}, {AGB+j*4096}\ns_nop 0\nbuffer_load_dwordx4 v[36:37], {SR4(sX)}, 0 idxen offen{NT} lds\nv_add_u32 v36, 4096, v36")
        a("KT_c:")
    def warm():
        a(f"""
v_and_b32 v1, 28, v{VL}
v_and_b32 v2, 3, v{VL}
v_lshlrev_b32 v2, 1, v2
v_lshl_or_b32 v1, v1, 2, v2
s_lshr_b32 s{t0}, s{sW4}, 1
s_lshl_b32 s{t0}, s{t0}, 7
s_and_b32 s{t1}, s{sW4}, 1
s_lshl_b32 s{t1}, s{t1}, 3
s_add_u32 s{t0}, s{t0}, s{t1}
s_add_u32 s{t0}, s{t0}, 65536
""")
        for k in range(4): a(f"buffer_load_ushort v{124+k}, v1, {SR4(sA)}, s{t0} offen offset:{k*256}")
    def zer():
        a(f"v_cmp_le_u32 vcc, 32, v108\ns_mov_b64 exec, vcc\nds_write_b128 v110, v[32:35]\ns_mov_b64 exec, -1")
        for j in range(1,4): a(f"ds_write_b128 v110, v[32:35] offset:{j*4096}")
        a(f"""
s_cmp_eq_u32 s{sWV}, 4
s_cbranch_scc0 KT_b
ds_write_b128 v110, v[32:35] offset:16384
KT_b:
""")
    srd(a,sA,12,260*256); warm(); vyc()
    if XORD==1: xld()
    if not ZL: zer()
    a(f"""
s_lshl_b32 s{t0}, s{sW4}, 2
v_lshrrev_b32 v2, 4, v{VL}
v_or_b32 v1, s{t0}, v2                  ; 4u+g
v_xor_b32 v3, v1, v{WT}
v_lshlrev_b32 v3, 4, v3
v_lshl_add_u32 v116, v{WT}, 8, v3
v_add_u32 v116, {PSC}, v116
v_add_u32 v117, {PSC}, v110
v_lshl_add_u32 v118, v1, 16, v3
""")
    if XORD==2:
        gwait("KG_x",mS,4,VZ,1); xld()
    if WG_: sdma(sA,0,0,VY,range(WG_-1)); gwait("KG_tw",mPS,4,VZ,1)
    sdma(sA,0,0,VY,range(max(W1E,WG_-1),8))
    sdma(sA,32768,-32768,VY,range(W2N))
    arrive(mW,1)
    if ZL: zer()
    pt('w1i')
    def w3m():
        w=[124,125,126,127]; u=QA
        for k in range(4): a(f"v_lshlrev_b32 v{w[k]}, 16, v{w[k]}\nv_mul_f32 v{w[k]}, s{sL2E}, v{w[k]}")
        a(f"""
v_cvt_pk_bf16_f32 v{u}, v124, v125
v_cvt_pk_bf16_f32 v{u+1}, v126, v127
v_lshlrev_b32 v{u+2}, 16, v{u}
v_and_b32 v{u+3}, 0xffff0000, v{u}
v_lshlrev_b32 v{u+4}, 16, v{u+1}
v_and_b32 v{u+5}, 0xffff0000, v{u+1}
v_add_f32 v{u+6}, abs(v124), abs(v125)
v_sub_f32 v{u+2}, v124, v{u+2}
v_sub_f32 v{u+3}, v125, v{u+3}
v_sub_f32 v{u+4}, v126, v{u+4}
v_sub_f32 v{u+5}, v127, v{u+5}
v_add_f32 v{u+7}, abs(v126), abs(v127)
s_mov_b32 exec_lo, 0
v_cvt_pk_bf16_f32 v{u}, v{u+2}, v{u+3}
v_cvt_pk_bf16_f32 v{u+1}, v{u+4}, v{u+5}
s_mov_b32 exec_lo, -1
v_add_f32 v{u+6}, v{u+6}, v{u+7}
v_lshlrev_b32 v1, 3, v108
v_and_b32 v{u+6}, 0x7fffffff, v{u+6}
ds_write_b64 v1, {P2(u)} offset:{W3L}
""")
        dpp_scan(a,"v_max_u32",[u+6])
        a(f"""
s_mov_b32 exec_lo, 0
s_brev_b32 exec_hi, 1
ds_max_u32 v{VZ}, v{u+6} offset:{mC3}
s_mov_b64 exec, -1
""")
    e2=W2N
    a(f"v_mov_b32 v1, {hex(ONE2)}\nds_write2_b32 v{VZ}, v1, v1 offset0:{OH//4} offset1:{OH//4+3}")
    gsync('bX',"KG_y1",mGX,4,VZ,2,f"s_waitcnt vmcnt({8+e2-W1E})")
    if GP_: a(f"s_setprio {GP_}")
    xfrags([0])
    a(f"s_waitcnt vmcnt({e2})")
    pt('xl')
    trfrag(WF,TP,32768,2048,256)
    a("s_waitcnt lgkmcnt(7)")
    trfrag(WF+16,TP,32768+8,2048,256)
    def pm(T,i):
        for s in range(4): a(mfma16(GA+8*T+4*i,WF+16*i+4*s,XF+16*T+4*s,None if s==0 else GA+8*T+4*i))
    def pcv(T):
        c=GA+8*T
        L=[f"v_mul_f32 v{c+j}, s{sL2E}, v{c+j}" for j in range(8)]
        L+=[f"v_cvt_pk_bf16_f32 v{c+j}, v{c+2*j}, v{c+2*j+1}" for j in range(4)]
        L+=[f"ds_write_b128 v116, {P4(c)} offset:{T*4096}"]
        return L
    def pmi(T,fillers):
        for i in range(2):
            for s in range(4):
                a(mfma16(GA+8*T+4*i,WF+16*i+4*s,XF+16*T+4*s,None if s==0 else GA+8*T+4*i))
                for _ in range(2):
                    if fillers: a(fillers.pop(0))
    a("s_waitcnt lgkmcnt(8)"); xfrags([1]); pm(0,0)
    a("s_waitcnt lgkmcnt(4)"); xfrags([2,3]); pm(0,1)
    a("s_waitcnt lgkmcnt(8)"); pm(1,0); pm(1,1)
    a("s_waitcnt lgkmcnt(0)"); pmi(2,pcv(0)); pmi(3,pcv(1))
    a(f"s_lshl_b32 s{t2}, s{sNB}, 8\ns_nop 2")
    for T in (2,3):
        for x in pcv(T): a(x)
    gsync('pg',"KG_y2",mGP,4,VZ,2)
    for T in range(4): a(f"ds_read_b128 {P4(PO+4*T)}, v117 offset:{T*4096}")
    a(f"""
KG_n:
ds_read_b32 v1, v{VZ} offset:{mNO}
s_waitcnt vmcnt(0) lgkmcnt(0)
v_readfirstlane_b32 s{sNON}, v1
s_cmp_eq_u32 s{sNON}, 0
s_cbranch_scc1 KG_n
""")
    slot()
    a(f"s_add_u32 s{t2}, s{t2}, s{sPO}")
    for T in range(3):
        a(f"s_add_u32 s{t1}, s{t2}, {F_P+T*16*65536}")
        a(f"buffer_store_dwordx4 {P4(PO+4*T)}, v118, {SR4(sR)}, s{t1} offen{SSC}")
    a(f"""
s_cmp_eq_u32 s{sWV}, 4
s_cbranch_scc0 KG_p
s_add_u32 s{t1}, s{t2}, {F_P+3*16*65536}
s_waitcnt lgkmcnt(0)
s_mov_b64 exec, 0xffff
buffer_store_dwordx4 {P4(PO+12)}, v118, {SR4(sR)}, s{t1} offen{SSC}
s_mov_b64 exec, -1
KG_p:
""")
    pt('pst')
    if RWI==1: arrive(mPS,1)
    if GP_: a("s_setprio 0")
    if W2N<8: sdma(sA,32768,-32768,VY,range(W2N,8))
    srd(a,sA,14,256*256)
    w3m()
    for T in range(4):
        c=GA+8*T
        if T==3: a("s_mov_b32 exec_lo, 0x10001\ns_mov_b32 exec_hi, 0x10001")
        if T==0: a(f"v_pk_maximum3_f16 v114, v{c}, v{c+1}, v{c+2}\nv_pk_minimum3_f16 v115, v{c}, v{c+1}, v{c+2}\nv_pk_maximum3_f16 v114, v114, v{c+3}, v{c+3}\nv_pk_minimum3_f16 v115, v115, v{c+3}, v{c+3}")
        else: a(f"v_pk_maximum3_f16 v114, v114, v{c}, v{c+1}\nv_pk_minimum3_f16 v115, v115, v{c}, v{c+1}\nv_pk_maximum3_f16 v114, v114, v{c+2}, v{c+3}\nv_pk_minimum3_f16 v115, v115, v{c+2}, v{c+3}")
    a("s_mov_b64 exec, -1")
    absmax_fin(a,114,115,2)
    a(f"""
v_cmp_lt_u32 vcc, 0x40e80000, v114
s_cmp_lg_u64 vcc, 0
s_cselect_b32 s{sFLAG}, 0x101, 1
""")
    def pflag(n):
        a(f"""
s_lshl_b32 s{t2}, s2, {FS}
s_add_u32 s{t2}, s{t2}, {F_FLG}
s_add_u32 s{t2}, s{t2}, s{sPO}
v_mov_b32 v1, s{sFLAG}
s_waitcnt vmcnt({n})
s_mov_b64 exec, 1
ds_add_rtn_u32 v1, v{VZ}, v1 offset:{mPD}
s_waitcnt lgkmcnt(0)
v_readfirstlane_b32 s{t1}, v1
s_add_u32 s{t1}, s{t1}, s{sFLAG}
s_and_b32 s{t0}, s{t1}, 255
s_cmp_eq_u32 s{t0}, 4
s_cbranch_scc0 KG_f
KG_e:
ds_read_b64 v[2:3], v{VZ} offset:{mE}
ds_read_b32 v1, v{VZ} offset:{mC3}
s_waitcnt lgkmcnt(0)
v_cmp_gt_u32 vcc, 4, v2
v_mul_f32 v1, v1, v3
s_cbranch_vccnz KG_e
v_cmp_nge_f32 vcc, 0x41680000, v1       ; !(14.5 >= e*c3)
s_lshl_b32 s{t0}, vcc_lo, 8
s_or_b32 s{t1}, s{t1}, s{t0}
s_cmp_gt_u32 s{t1}, 255
s_cselect_b32 s{t0}, 2, 0
s_xor_b32 s{t0}, s{sNON}, s{t0}
s_mov_b64 exec, {(1<<FR)-1}
v_mov_b32 v1, s{t0}
v_lshlrev_b32 v2, {8+FS}, v{VL}
buffer_store_dword v1, v2, {SR4(sR)}, s{t2} offen{SSC}
s_waitcnt vmcnt(1)
s_branch KG_f2
KG_f:
s_waitcnt vmcnt(0)
KG_f2:
s_mov_b64 exec, -1
""")
        pt('pfl')
    def mid():
        sdma(sA,0)
        if RWI==2: arrive(mPS,1)
        pflag(8); arrive(mPI,1)
    if W2N<8:
        if WU1L:
            epi_consts(); pflag(8-W2N)
            if GQP: a(f"s_setprio {GQP}")
            qfull("KGq",lambda: sdma(sA,0))
            if PFI==2: sdma(sA,0)
            if GQP: a("s_setprio 0")
            a("s_waitcnt vmcnt(0)"); arrive(mPI,1)
        else:
            sdma(sA,0); epi_consts(); pflag(16-W2N); arrive(mPI,1); qfull("KGq",lambda: 0)
    elif WU1L:
        if PFI==2: pflag(0)
        qfull("KGq",lambda: pflag(0)); sdma(sA,0); epi_consts(); a("s_waitcnt vmcnt(0)"); arrive(mPI,1)
    elif SWU:
        if PFI==2: pflag(0)
        qfull("KGq",lambda: pflag(0)); epi_consts(); gwait("KG_pi",mPI,4,VZ,1)
    else: qfull("KGq",mid); epi_consts()
    gwait("KG_w3",mPD,4,VZ,1)
    w3rd(); trw()
    if not GU: a("s_waitcnt lgkmcnt(0)"); ugemm(1)
    if FLP==1: gwait("KG_b2",mH,16,VZ,1)
    a(f"""
s_and_b32 s{sLO}, s2, {FR-1}
s_lshl_b32 s{sLO}, s{sLO}, {8+FS}
s_add_u32 s{sLO}, s{sLO}, {F_FLG}
s_add_u32 s{sLO}, s{sLO}, s{sPO}
v_lshlrev_b32 v110, {FS}, v108
buffer_load_dword v116, v110, {SR4(sR)}, s{sLO} offen{SC}
""")
    if PFP==2: pfp()
    if PFT:
        a(f"""
s_mul_i32 s{t1}, s{sW4}, {PFK*4}
v_mov_b32 v1, s{t1}
s_lshl_b32 s{t1}, s{t1}, 6
v_lshl_add_u32 v117, v{VL}, 2, s{t1}
ds_read_b32 v1, v1
ds_read_u16 v2, v117 offset:{WB}
v_mov_b32 v3, 0
s_waitcnt lgkmcnt(0)
v_cmp_lt_u32 vcc, v117, v1
s_or_b64 exec, vcc, 1
""")
        for k in range(PFT): a(f"buffer_load_dword v{QA+15}, v[2:3], {SR4(sP)}, 0 idxen offen offset:{3072+128*k}{SC}")
        a("s_mov_b64 exec, -1")
    a(f"""
s_mov_b32 s{sWU}, -1
s_or_b32 s{t1}, s{sNON}, 2
s_waitcnt vmcnt({(1 if PFP==2 else 0)+PFT})
KS_m:
v_or_b32 v2, 2, v116
v_cmp_ne_u32 vcc, s{t1}, v2
s_cbranch_vccz KS_n
s_sub_u32 s{sBUD}, s{sBUD}, 1
s_cbranch_scc1 KS_n
s_sleep {FSL}
s_mov_b64 exec, vcc
buffer_load_dword v116, v110, {SR4(sR)}, s{sLO} offen{SC}
s_mov_b64 exec, -1
s_waitcnt vmcnt(0)
s_branch KS_m
KS_n:
v_cmp_ne_u32 vcc, s{sNON}, v116
s_cbranch_vccz KS_o
ds_write_b32 v{VZ}, v{FA} offset:{mSLOW}
KS_o:
""")
    pt('flg')
    if PRIO: a("s_setprio 3")
    bar('b3')
    a(f"ds_read_b32 v1, v{VZ} offset:{mNT}\ns_waitcnt lgkmcnt(0)\nv_readfirstlane_b32 s{sNT}, v1")
    ranges()
    a("KF_J:")
    def rd_ga(off): a(f"ds_read_u16 v{GA0}, v{SB} offset:{GL+off}")
    def rd_gg(off): a(f"ds_read_u16 v{YA}, v{RB} offset:{GL+off}")
    ya=f"v_lshl_add_u32 v{EA}, v{YA}, 1, v{EC}\nv_add_u32 v{YA}, v{YA}, v{M4}"
    ry=f"ds_read_u16 v{VY}, v{YA} offset:{WB+2}"
    def rd_y(): a(ya); a(ry)
    def idx1(i): return f"ds_read_u16 v{IDX+2*i}, v{GA0} offset:{WB+4*i}"
    def rd_idx():
        for i in range(4): a(idx1(i))
    def dmai(i): return f"buffer_load_dwordx4 {P2(IDX+2*(i&3))}, {SR4(sP)}, {'0' if i<4 else 's'+str(s128)} idxen offen offset:{1024*(i&3)}{GSC} lds"
    def dma():
        for i in range(8):
            if i==0: a(f"s_mov_b32 m0, s{sBUF}\ns_nop 0")
            if i==4: a(f"s_add_u32 m0, s{sBUF}, 4096\ns_nop 0")
            a(dmai(i))
    def dma_h1(mid):
        a(f"s_add_u32 m0, s{sBUF}, 4096"); a(mid)
        for i in range(4,8): a(dmai(i))
        a(f"s_mov_b32 m0, s{sBUF}")
        rd_idx()
    def dma_idx():
        for i in range(4): a(dmai(i))
        dma_h1(ry)
    rd_b=f"ds_read_b128 {P4(B3+2)}, v{QAD}\nds_read_b128 {P4(B3+10)}, v{QAD} offset:512"
    rd_a3=f"ds_read_b64 {P2(A6)}, v{EA}\nds_read_b64 {P2(A6+2)}, v{VY} offset:{OH}\nds_read_b64 {P2(A6+4)}, v{EA}"
    def rd_a(t): return f"ds_read_b128 {P4(A+4*t)}, v{AR} offset:{4096*(t>>2)+(16*(t&1)+2*((t>>1)&1))*128}"
    def m4(z,q,j,c=False): return mfma4(z+4*j,A+16*(q>>1)+4*j+2*(q&1),z+4*j if c else None)
    rd_s=f"ds_read_b64 {P2(SS)}, v{SA2}\nds_read_b64 {P2(SS+2)}, v{SA2+1}"
    def AQ(q): return A6+2*(q&1)
    win=f"v_add3_u32 v{VY}, v{VY}, v{OH2}, s{sW8}\nv_lshl_add_u32 v{QAD}, s{sQ}, 6, v{QC}"
    rd_ga(0); rd_gg(0)
    a(f"""
ds_read_u16 v{WT}, v1 offset:{GL}
ds_read_b32 v{GP}, v{VZ} offset:{mSLOW}
s_waitcnt lgkmcnt(3)
""")
    rd_idx()
    a("s_waitcnt lgkmcnt(0)")
    dma()
    pt('d0')
    a(f"v_readlane_b32 s{sNF}, v{WT}, s{sCNT}\nv_readfirstlane_b32 s{t3}, v{GP}")
    rd_y(); rd_ga(16)
    if US:
        a(f"s_cmp_ge_u32 s{sWV}, 4\ns_cbranch_scc1 KF_u"); ugemm(0)
        if GU: a("s_branch KF_u2\nKF_u:"); ugemm(1); a("KF_u2:")
        else: a("KF_u:")
    a("s_waitcnt lgkmcnt(0)")
    rd_idx()
    a(f"""
s_cmp_lg_u32 s{t3}, 0
s_cbranch_scc1 KF_SLOW
s_lshr_b32 s{sNF}, s{sNF}, 8
v_subrev_u32 v2, s{sNF}, v{VL}
v_and_b32 v2, 15, v2
v_add_u32 v{DR}, s{sNF}, v2
v_lshlrev_b32 v2, 2, v{DR}
ds_read_b32 v{GP}, v2 offset:{BT}
s_and_b32 s{sQ}, s{sNF}, -2
s_lshl_b32 s{sQ}, s{sQ}, 3
s_sub_u32 s{sW8}, 0, s{sQ}
{win}
{rd_b}
{rd_a3}
""")
    rd_gg(16)
    a(f"""
v_lshrrev_b32 v{WT}, 9, v{WT}
v_lshlrev_b32 v{WT}, 4, v{WT}           ; 8*(w&~1)
v_mov_b32 v{SS}, 0
v_mov_b32 v{SS+1}, 0
v_mov_b32 v{SS+2}, 0
v_mov_b32 v{SS+3}, 0
v_mad_u32_u24 v{SA2}, v{SI2}, s{sT0}, v{SA2}
v_mad_u32_u24 v{SA2+1}, v{SI2+1}, s{sT0}, v{SA2+1}
s_add_u32 s{t1}, s{sT0}, s{sCNT}
s_lshl_b32 s{t1}, s{t1}, 7
s_add_u32 s{t2}, s{sWV}, 48
v_mov_b32 v1, s{t2}
{mfma32(ACC+16,SS,SS,None)}
s_waitcnt lgkmcnt(0)
""")
    rd_y(); rd_ga(32)
    a(f"""
v_cmp_gt_u32 vcc, s{t0}, v{GP}
v_cmp_gt_u32 {S2(t2)}, s{t1}, v{GP}
v_cmp_gt_u32 {S2(t0)}, s{sNN}, v{DR}
v_cndmask_b32 v{DR}, v{DR}, v1, vcc
s_cmp_lg_u64 vcc, 0
s_cselect_b32 s{sHEAD}, 1, 0
s_and_b64 vcc, {S2(t2)}, {S2(t0)}
v_lshlrev_b32 v1, 2, v{VL}
v_cndmask_b32 v{DR}, 56, v{DR}, vcc
v_lshrrev_b32 v2, 1, v{VL}
v_mul_u32_u24 v{DR}, {AS}, v{DR}
v_and_b32 v2, 24, v2
v_add_u32 v{DR}, v{DR}, v2
s_mul_i32 s{t0}, s{sNF}, {AS}
v_add_u32 v{eM0}, s{t0}, v1
s_sub_u32 s{sCNT}, s{sCNT}, 1
s_mov_b32 m0, s{sBUF}
""")
    pt('pre')
    a("s_waitcnt vmcnt(4)")
    pt('g0')
    for t in range(4): a(rd_a(t))
    a("s_waitcnt lgkmcnt(0)")
    for j in range(4): a(m4(Z[0],0,j))
    a("s_nop 3")
    a(mfma32(Z[0],AQ(0),B3,Z[0]))
    a("s_nop 9")
    pt('pro')
    def finals(qprev):
        for u in range(2): a(f"v_pk_mul_f32 {P2(NN+2*u)}, {P2(NN+2*u)}, {P2(DD+2*u)}")
        for u in range(2): a(f"v_cvt_pk_bf16_f32 v{GP+2*(qprev&1)+u}, v{NN+2*u}, v{NN+2*u+1}")
    def ex(zc,r): return f"v_exp_f32 v{EE+r}, v{zc+r}"
    def body(first):
        for q in range(4):
            zc=Z[q&1]; zn=Z[(q+1)&1]; qn=(q+1)&3
            pend=[0,1,2,3,8,9,10,11,4,5,12,13,6,7,14,15]
            f0=first and q==0
            if q==0: a(f"v_readlane_b32 s{sQ}, v{WT}, s{sCNT}")
            if q==3 or (first and q==1): a(f"s_waitcnt lgkmcnt(0)")
            agg=(q&1) and not (first and q==1)
            p=1 if q==1 else 0
            if MO:
                a(mfma32(zn,AQ(qn),B3+4*qn,None))
                for j in range(4): a(f"v_rcp_f32 v{DD+j}, v{DD+j}" if not f0 else ex(zc,pend.pop(0)))
                if agg: a(mfma32(ACC+16*p,GP,SS,None if first else ACC+16*p))
                for r in range(5 if agg else 6): a(ex(zc,pend.pop(0)))
                for j in range(4):
                    a(m4(zn,qn,j,True))
                    if j<3: a(ex(zc,pend.pop(0)))
            else:
                for j in range(4):
                    a(m4(zn,qn,j))
                    a(f"v_rcp_f32 v{DD+j}, v{DD+j}" if not f0 else ex(zc,pend.pop(0)))
                if agg: a(mfma32(ACC+16*p,GP,SS,None if first else ACC+16*p))
                for r in range(4 if agg else 3): a(ex(zc,pend.pop(0)))
                a(mfma32(zn,AQ(qn),B3+4*qn,zn))
            def bx():
                a(f"s_sub_u32 s{sW8}, 0, s{sQ}\ns_waitcnt vmcnt(0) lgkmcnt(0)\n{win}")
                rd_gg(32); rd_ga(48)
                a(rd_b); a(rd_a3); a(rd_s)
                for t in range(8): a(rd_a(t))
            if q==2 and XP==0: a(ex(zc,pend.pop(0))); bx()
            for r in range((4 if not (q==2 and XP==0) else 3)-(3 if MO else 0)): a(ex(zc,pend.pop(0)))
            if q==2 and XP==1: bx()
            if f0:
                for i in range(4): a(dmai(i))
            if first and q==1: dma_h1("s_nop 0")
            if q==3:
                a(ya)
                if first: dma_idx()
                else:
                    a(f"s_cmp_gt_u32 s{sCNT}, 1\ns_cbranch_scc0 KF_lt")
                    dma_idx()
                    a("KF_lb:")
            if not f0: finals((q-1)&3)
            seq=[]
            for u in range(2): seq.append(f"v_pk_add_f32 {P2(DD+2*u)}, {P2(EE+8*u)}, 1.0 op_sel_hi:[1,0]")
            for m in range(1,4):
                for u in range(2):
                    src=(zc+8*u) if m==1 else NN+2*u
                    seq.append(f"v_pk_fma_f32 {P2(NN+2*u)}, {P2(src)}, {P2(EE+8*u+2*m)}, {P2(src)}")
                for u in range(2): seq.append(f"v_pk_fma_f32 {P2(NN+2*u)}, {P2(zc+8*u+2*m)}, {P2(DD+2*u)}, {P2(NN+2*u)}")
                for u in range(2): seq.append(f"v_pk_fma_f32 {P2(DD+2*u)}, {P2(DD+2*u)}, {P2(EE+8*u+2*m)}, {P2(DD+2*u)}")
            slots={7:[0,2,4,6,8,10,12],6:[1,3,6,8,10,12],2:[4,10],9:[0,1,2,3,4,6,8,10,12],8:[0,1,2,3,5,7,9,11],5:[1,4,7,10,12]}[len(pend)]
            for k,x in enumerate(seq):
                if f0 and k==H1P:
                    a("s_waitcnt vmcnt(4)")
                    for t in range(4,8): a(rd_a(t))
                a(x)
                if k in slots: a(ex(zc,pend.pop(0)))
            if q==2: a(f"v_pk_add_f32 {P2(RB)}, {P2(RB)}, {S2(sINC)}\nv_pk_add_f32 {P2(SA2)}, {P2(SA2)}, {P2(SI2)}")
    if PROF and 'dyn' in PTS: stamp(a,8); stamp(a,9,True)
    if PROF and 'clk' in PTS: stamp(a,6,True)
    n0=len(a.l)
    body(True)
    a("s_branch KF_LE\n.p2align 6\nKF_LOOP:")
    body(False)
    def keep(l):
        t=l.strip()
        if X&1 and t.startswith('buffer_load'): return False
        if X&2 and t.startswith('ds_read_b128 v[') and int(t.split('[')[1].split(':')[0])>=28: return False
        if X&8 and t.startswith('v_mfma'): return False
        if X&16 and t.startswith('v_pk_fma'): return False
        if X&32 and t.startswith('v_exp'): return False
        if Y&1 and t.startswith('v_mfma_f32_4x4'): return False
        if Y&2 and t.startswith('v_mfma_f32_32x32') and int(t.split('[')[1].split(':')[0])<ACC: return False
        if Y&4 and t.startswith('v_mfma_f32_32x32') and int(t.split('[')[1].split(':')[0])>=ACC: return False
        if Y&8 and t.startswith('v_rcp'): return False
        if Y&16 and t.startswith(('v_cvt_pk','v_pk_mul')): return False
        if Y&32 and t.startswith(('ds_read_b64','ds_read_b128 v[14','ds_read_b128 v[22')): return False
        return True
    a.l[n0:]=[l for l in a.l[n0:] if keep(l)]
    import re
    if UNP:
        L=[]; cnt=0
        for l in a.l[n0:]:
            m=re.match(r"\s*v_pk_fma_f32 v\[(\d+):\d+\], v\[(\d+):\d+\], v\[(\d+):\d+\], v\[(\d+):\d+\]",l)
            if m:
                cnt+=1
                d,x,y,z=map(int,m.groups())
                if UNP==1 or (UNP==2 and cnt%2==0) or (UNP==3 and d>=DD):
                    for k in range(2):
                        L.append(f"    v_fmac_f32 v{d+k}, v{x+k}, v{y+k}" if d==z else f"    v_fma_f32 v{d+k}, v{x+k}, v{y+k}, v{z+k}")
                    continue
            L.append(l)
        a.l[n0:]=L
    if X&(128|256|512|1024):
        L=[]
        for l in a.l[n0:]:
            m=re.match(r"\s*v_mfma_f32_32x32x16_bf16 v\[(\d+):\d+\], v\[(\d+):\d+\], v\[(\d+):\d+\], (.*)",l)
            if m and int(m.group(1))<ACC:
                d,x,y=int(m.group(1)),int(m.group(2)),int(m.group(3))
                if X&128:
                    if y==ID0: L+=["    "+mfma16(d+4,x,ID0,None),"    "+mfma16(d+8,x,ID1,None)]
                    elif y==ID1: L.append("    "+mfma16(d+12,x,ID0,None))
                    else: L.append("    "+mfma16(d,x,y,None))
                if X&1024:
                    if y in (ID0,ID1):
                        o=0 if y==ID0 else 8
                        for k in range(2): L.append(f"    v_mfma_f32_4x4x4_16b_bf16 v[{d+o+4*k}:{d+o+4*k+3}], v[{x+2*k}:{x+2*k+1}], v[{ID0}:{ID0+1}], v[{d+o+4*k}:{d+o+4*k+3}]")
                    else: L.append(l)
                if X&256:
                    if y!=ID1: L.append(l)
                if X&512:
                    if y==ID0: L.append(f"    v_mfma_f32_32x32x64_f8f6f4 v[{d}:{d+15}], v[{x}:{x+7}], v[{ID0}:{ID0+7}], v[{d}:{d+15}]")
                    elif y!=ID1: L.append(l)
            else: L.append(l)
        a.l[n0:]=L
    a("KF_LE:")
    if PRIO: a(f"s_bitcmp1_b32 {(1<<PT[0])|(1<<PT[1])|(1<<PT[2])}, s{sCNT}\ns_cbranch_scc1 KF_pr\nKF_pb:")
    a(f"""
s_sub_u32 s{sCNT}, s{sCNT}, 1
s_cbranch_scc0 KF_LOOP
""")
    def loop_tails():
        a(f"KF_lt:\ns_cmp_eq_u32 s{sCNT}, s{sWU}\ns_cbranch_scc0 KF_lb")
        sdma(sA,32768,0,WV)
        a(f"""
s_branch KF_lb
KF_pr:
""")
        if PROF and 'dyn' in PTS:
            a("s_mov_b32 s90, s92\ns_mov_b32 s91, s93\ns_mov_b32 s92, s94\ns_mov_b32 s93, s95\ns_mov_b32 s94, s96\ns_mov_b32 s95, s97")
            stamp(a,8); stamp(a,9,True)
        a(f"""
s_setprio 2
s_cmp_eq_u32 s{sCNT}, {PT[0]}
s_cbranch_scc1 KF_pb
s_setprio 1
s_cmp_eq_u32 s{sCNT}, {PT[1]}
s_cbranch_scc1 KF_pb
s_cmp_ge_u32 s{sWV}, {PL}
s_cbranch_scc1 KF_pb
s_setprio 0
s_branch KF_pb
""")
    a(f"""
s_lshl_b32 s{t0}, s{sW4}, 2
v_mov_b32 v1, s{t0}
s_cmp_ge_u32 s{sWV}, 4
s_cbranch_scc1 KF_w0
ds_write_b32 v1, v{TP} offset:{mWU}
s_branch KF_w1
KF_w0:
ds_read_b32 v2, v1 offset:{mWU}
s_waitcnt lgkmcnt(0)
v_cmp_eq_u32 vcc, 0, v2
s_cbranch_vccnz KF_w0
KF_w1:
""")
    def trw2(): trfrag(A,TP,0,2048,256); trfrag(A+16,TP,8,2048,256)
    trw2()
    for j in range(4): a(f"v_rcp_f32 v{DD+j}, v{DD+j}")
    a("s_nop 0")
    finals(3)
    a("s_nop 1")
    a(mfma32(ACC+16,GP,SS,ACC+16))
    pt('loop')
    if PROF and 'clk' in PTS: stamp(a,7,True)
    def epst():
        a(f"""
s_or_b32 s{t1}, s2, s{sWV}
s_cbranch_scc1 KF_e2
v_mov_b32 v2, s{sNON}
s_mov_b64 exec, 1
buffer_store_dword v2, v{VZ}, {SR4(sR)}, 0 offen{ESC}
s_mov_b64 exec, -1
KF_e2:
""")
    for p in range(2):
        for j in range(4):
            c=ACC+16*p+4*j
            a(f"v_cvt_pk_bf16_f32 v{c}, v{c}, v{c+1}\nv_cvt_pk_bf16_f32 v{c+1}, v{c+2}, v{c+3}")
        for j in range(4): a(f"ds_write_b64 v{DR}, {P2(ACC+16*p+4*j)} offset:{AGB+128*p+32*j}")
    a(f"""
s_cmp_eq_u32 s{sHEAD}, 0
""")
    pt('dmp')
    bar('be',"s_waitcnt vmcnt(0) lgkmcnt(0)")
    a(f"""
s_cbranch_scc1 KF_FIN
ds_read_b32 v4, v{eM0} offset:{AGB}
ds_read_b32 v5, v{eM1} offset:{AGB+48*AS}
""")
    a(f"""
s_waitcnt lgkmcnt(0)
v_lshlrev_b32 v6, 16, v4
v_and_b32 v7, 0xffff0000, v4
v_lshlrev_b32 v8, 16, v5
v_and_b32 v9, 0xffff0000, v5
v_pk_add_f32 v[6:7], v[6:7], v[8:9]
v_cvt_pk_bf16_f32 v6, v6, v7
ds_write_b32 v{eM0}, v6 offset:{AGB}
KF_FIN:
""")
    a(f"s_cmp_ge_u32 s{sWV}, 4")
    if EP_==0: epst()
    bar('mrg')
    def EXP(rs): return [f"v_exp_f32 v{EE+i}, v{UA+i}" for i in rs]
    def RCP(rs): return [f"v_rcp_f32 v{EE+i}, v{EE+i}" for i in rs]
    def FMA(rs): return [f"v_fma_f32 v{EE+i}, v{EE+i}, s{sL2E}, s{sL2E}" for i in rs]
    def FIN(tau):
        e=EE+8*tau; c=UA+8*tau
        return [f"v_pk_mul_f32 {P2(e+2*j)}, {P2(e+2*j)}, {P2(c+2*j)}" for j in range(4)]+[f"v_cvt_pk_bf16_f32 v{e+j}, v{e+2*j}, v{e+2*j+1}" for j in range(4)]+[f"ds_write_b128 v{eOW}, {P4(e)} offset:{tau*4096}"]
    def PFM(rs): return [f"v_pk_fma_f32 {P2(EE+i)}, {P2(EE+i)}, {S2(sL2E)}, {S2(sL2E)}" for i in rs]
    XE=Z[0]
    for tau in range(2):
        for s_ in range(4): a(f"ds_read_b128 {P4(XE+16*tau+4*s_)}, v{eFA} offset:{AGB+tau*16*AS+64*s_}")
    for k,(x,y) in enumerate(zip(um(0,0,0,XE,True,A),um(0,0,1,XE,True,A))): a(f"s_waitcnt lgkmcnt({7-k})"); a(x); a(y)
    a("s_waitcnt lgkmcnt(0)"); pt('e1'); a("s_cbranch_scc1 KF_eg")
    for r in range(2):
        if r==1: a("KF_eg:")
        for x,y in zip(um(r,1,0,XE+16,True,A),um(r,1,1,XE+16,True,A)): a(x); a(y)
        pt('e2')
        if r==0:
            for x in EXP(range(8))+FMA(range(8))+RCP(range(8))+EXP(range(8,16))+FIN(0)+PFM(range(8,16,2))+RCP(range(8,16))+["s_nop 0"]+FIN(1): a(x)
            a("s_branch KF_ej")
        else:
            for x in EXP(list(range(8))+[8,12])+PFM((0,2,4,6,8,12))+RCP(list(range(8))+[8,12])+FIN(0): a(x)
            a(f"""
v_mul_f32 v{EE+8}, v{EE+8}, v{UA+8}
v_mul_f32 v{EE+12}, v{EE+12}, v{UA+12}
s_mov_b64 exec, 0xffff
v_cvt_pk_bf16_f32 v{EE+8}, v{EE+8}, v{EE+12}
ds_write_b16 v{eN48}, v{EE+8}
ds_write_b16_d16_hi v{eN48}, v{EE+8} offset:8
s_mov_b64 exec, -1
""")
    a(f"KF_ej:\ns_cmp_lt_u32 s{sWV}, 5")
    pt('e3')
    bar('sil')
    a(f"""
ds_read_b128 {P4(A)}, v{eRD}
s_cbranch_scc0 KF_e1
ds_read_b128 {P4(A+4)}, v{eRD} offset:8192
s_mov_b64 exec, {S2(sE2)}
s_waitcnt lgkmcnt(0)
buffer_store_dwordx4 {P4(A+4)}, v{eST}, {SR4(sX)}, s{sE1} offen{OSC}
s_mov_b64 exec, -1
KF_e1:
s_waitcnt lgkmcnt(0)
buffer_store_dwordx4 {P4(A)}, v{eST}, {SR4(sX)}, s{sE0} offen{OSC}
""")
    pt('sto')
    a(f"""
""")
    if PROF: a("s_waitcnt vmcnt(0)")
    stamp(a,10); stamp(a,11,True)
    stamp_out(a,1,sWV)
    a("KF_END:\ns_endpgm")
    loop_tails()
    hist_retry(8,"KT_h",True)
    a("KF_CEND:")
    SV=ACC; AGs=SV+8; RS_=SV+16
    a(f"""
KF_SLOW:
s_setprio 0
s_cmp_ge_u32 s{sWV}, 4
s_cselect_b32 s{sTOT}, 0, s{sTOT}
v_mov_b32 v1, s{sTOT}
ds_max_u32 v{VZ}, v1 offset:{mMX}
v_mov_b32 v{SS}, 0
v_mov_b32 v{SS+1}, 0
v_mov_b32 v{SS+2}, 0
v_mov_b32 v{SS+3}, 0
s_mov_b32 s{sLO}, 0
s_mov_b32 s{sLB}, s{sBUF}
s_sub_u32 s{t0}, s{sWV}, s{sT0}
s_lshl_b32 s{t0}, s{t0}, 4
v_add_u32 v{SV+4}, s{t0}, v{RB}
v_add_u32 v{SV+5}, s{t0}, v{SB}
s_lshl_b32 s{t0}, s{sWV}, 4
v_sub_u32 v{SV+6}, s{t0}, v{OHC}
v_and_b32 v{SV+7}, 28, v{VL}
v_and_b32 v1, 3, v{VL}
v_lshlrev_b32 v1, 2, v1
v_lshl_or_b32 v{SV+7}, v{SV+7}, 3, v1
v_lshlrev_b32 v1, 4, v0
""")
    for j in range(3): a(f"ds_write_b128 v1, {P4(SS)} offset:{AGG+j*8192}")
    a(f"""
v_lshlrev_b32 v1, 4, v{VL}
ds_write_b128 v1, {P4(SS)} offset:{AGG+3*8192}
s_waitcnt vmcnt(0) lgkmcnt(0)
s_barrier
ds_read_b32 v1, v{VZ} offset:{mMX}
s_waitcnt lgkmcnt(0)
v_readfirstlane_b32 s{sRND}, v1
KF_SR:
s_cmp_lt_u32 s{sLO}, s{sRND}
s_cbranch_scc0 KF_SE
s_barrier
v_lshlrev_b32 v1, 2, v{VL}
v_lshlrev_b32 v2, 8, v{VL}
ds_write_b32 v1, v2
s_waitcnt lgkmcnt(0)
s_barrier
s_cmp_ge_u32 s{sWV}, 4
s_cbranch_scc1 KF_S1
s_movk_i32 s{t3}, 256
""")
    expand("KF_x")
    a(f"s_sub_u32 s{t1}, s{sTOT}, s{sLO}")
    reclist(4)
    recload(4,"KF_rl")
    for i in range(4): a(f"s_mov_b64 {S2(sM+8+2*i)}, {S2(sM+2*i)}")
    hist(4,"KF_h",0,False)
    a("s_waitcnt lgkmcnt(0)")
    for i in range(4):
        a(f"""
v_mov_b32 v{RS_+4*i}, v{RC+4*i}
v_mov_b32 v{RS_+4*i+1}, v{RC+4*i+1}
v_mov_b32 v{RS_+4*i+2}, v{RC+4*i+2}
v_lshlrev_b32 v1, 6, v{RC+4*i+3}
v_sub_u32 v1, v{RK+i}, v1
v_cndmask_b32 v{RS_+4*i+3}, -1, v1, {S2(sM+8+2*i)}
""")
    a(f"""
KF_S1:
s_mov_b32 s{sHEAD}, 0                    ; 256*k
KF_SK:
s_waitcnt lgkmcnt(0)
s_barrier
s_cmp_ge_u32 s{sWV}, 4
s_cbranch_scc1 KF_S2
s_mov_b32 s{t1}, {EB}
""")
    for i in range(4):
        a(f"""
v_subrev_u32 v1, s{sHEAD}, v{RS_+4*i+3}
v_lshrrev_b32 v2, 19, v{RS_+4*i+2}
v_lshl_add_u32 v2, v2, 8, v1
v_lshl_add_u32 v3, v2, 1, s{t1}
v_cmpx_gt_u32 vcc, 0x100, v1
ds_write_b32 v2, v{RS_+4*i+2} offset:{WB}
ds_write_b64 v3, {P2(RS_+4*i)}
s_mov_b64 exec, -1
""")
    a("KF_S2:")
    scan(True)
    a(f"s_cmp_lg_u64 {S2(t2)}, 0\ns_cselect_b32 s{sFLAG}, 1, 0")
    fill("KFs",True,8)
    a(f"""
s_add_u32 s{sNT}, s{t0}, 127
s_lshr_b32 s{sNT}, s{sNT}, 7
s_waitcnt lgkmcnt(0)
s_barrier
v_mov_b32 v{RB}, v{SV+4}
v_mov_b32 v{SB}, v{SV+5}
v_mov_b32 v{SV+12}, v{SV+6}
s_mov_b32 s{sI}, s{sWV}
KF_SL:
s_cmp_lt_u32 s{sI}, s{sNT}
s_cbranch_scc0 KF_SN
""")
    rd_ga(0); rd_gg(0)
    for j in range(4): a(f"ds_read_u16 v{AGs+j}, v{SV+12} offset:{GL+2*j}")
    a("s_waitcnt lgkmcnt(0)")
    rd_y(); rd_idx()
    a(f"s_waitcnt lgkmcnt(0)\nv_cmp_ne_u32 vcc, 0xffff, v{IDX}\ns_cbranch_vccz KF_SM")
    dma()
    for j in range(4): a(f"v_lshrrev_b32 v{AGs+j}, 8, v{AGs+j}")
    a(f"""
v_readfirstlane_b32 s{sQ}, v{AGs}
s_nop 3
s_and_b32 s{sQ}, s{sQ}, -2
s_lshl_b32 s{sQ}, s{sQ}, 3
s_sub_u32 s{sW8}, 0, s{sQ}
{win}
{rd_b}
{rd_a3}
""")
    for j in range(4): a(f"v_lshl_add_u32 v{AGs+j}, v{AGs+j}, 9, v{SV+7}")
    a("s_waitcnt vmcnt(0) lgkmcnt(0)")
    for t in range(8): a(rd_a(t))
    a("s_waitcnt lgkmcnt(0)")
    for q in range(4):
        z=Z[0]
        for j in range(4): a(m4(z,q,j))
        a("s_nop 3"); a(mfma32(z,AQ(q),B3+4*q,z))
        a("s_nop 15")
        for r in range(16): a(f"v_exp_f32 v{EE+r}, v{z+r}")
        for r in range(16): a(f"v_add_f32 v{EE+r}, 1.0, v{EE+r}")
        for r in range(16): a(f"v_rcp_f32 v{EE+r}, v{EE+r}")
        for m in range(4):
            for u in range(2):
                for par in range(2):
                    r=8*u+2*m+par; g=GP+2*u+par
                    a(f"v_mul_f32 v{g}, v{z+r}, v{EE+r}" if m==0 else f"v_fmac_f32 v{g}, v{z+r}, v{EE+r}")
        for j in range(4): a(f"ds_add_f32 v{AGs+j}, v{GP+j} offset:{AGG+256*(q>>1)+16*(q&1)}")
        a("s_waitcnt lgkmcnt(0)")
    a(f"""
KF_SM:
v_add_u32 v{SB}, 128, v{SB}
v_add_u32 v{RB}, 128, v{RB}
v_add_u32 v{SV+12}, 128, v{SV+12}
s_add_u32 s{sI}, s{sI}, 8
s_branch KF_SL
KF_SN:
s_add_u32 s{sHEAD}, s{sHEAD}, 256
s_cmp_lg_u32 s{sFLAG}, 0
s_cbranch_scc1 KF_SK
s_add_u32 s{sLO}, s{sLO}, 256
s_branch KF_SR
KF_SE:
s_cmp_ge_u32 s{sWV}, 4
s_cbranch_scc1 KF_SE2
""")
    sdma(sA,32768,0,WV)
    a(f"""
KF_SE2:
v_lshlrev_b32 v1, 4, v0
v_lshrrev_b32 v2, 5, v0
s_waitcnt vmcnt(0) lgkmcnt(0)
s_barrier
""")
    for j in range(4): a(f"ds_read_b128 {P4(A+4*j)}, v1 offset:{AGG+j*8192}")
    a(f"""
v_mul_u32_u24 v2, {AS}, v2
v_and_b32 v3, 31, v0
v_lshl_add_u32 v4, v3, 3, v2
s_waitcnt lgkmcnt(0)
s_barrier
""")
    for j in range(4):
        a(f"v_cvt_pk_bf16_f32 v{A+4*j}, v{A+4*j}, v{A+4*j+1}\nv_cvt_pk_bf16_f32 v{A+4*j+1}, v{A+4*j+2}, v{A+4*j+3}")
        a(f"ds_write_b64 v4, {P2(A+4*j)} offset:{AGB+j*16*AS}")
    trw2()
    a("s_branch KF_FIN")
    hist_retry(4,"KF_h",False)
    return a.text()

DOC='''; ---------------------------------------------------------------------------------------------
; ---------------------------------------------------------------------------------------------
'''
if __name__=='__main__':
    import sys
    nm='standalone__mpnn_edge_mlp__graph_kernel'
    hdr=open('standalone__mpnn_edge_mlp__graph.s.ref').read().split('; Override')[0]
    out=hdr+(f"; @launch kernel={nm} grid=(256,1,1) block=(512,1,1) lds={KF_LDS}\n" if os.environ.get('LISTF') else f"; @launch grid=(256,1,1) block=(512,1,1) lds={KF_LDS}\n")
    out+=DOC+'.amdgcn_target "amdgcn-amd-amdhsa--gfx950"\n.text\n'
    out+=f".globl {nm}\n.p2align 8\n.type {nm},@function\n"+gen_kf(nm)
    out+='.section .rodata,"a"\n.p2align 6\n'+kd(nm,256)
    open(sys.argv[1],'w').write(out)
```

```python
from common import *
X=int(os.environ.get('X','0'))
PRIO=int(os.environ.get('PRIO','1'))
DSP=[int(c,36) for c in os.environ.get('DSP','00000000')]
def EV(n,d): return int(os.environ.get(n,d))
TPOS=EV('TPOS',6); PFP=EV('PFP',3); XORD=EV('XORD',1); WUI=EV('WUI',2); FLP=EV('FLP',1); FSL=EV('FSL',8); TE=1; MR=EV("MR",0); RS1=EV("RS1",4); H1=EV("H1",0); NWG=EV("NWG",0); MO=EV("MO",0); Y=EV("Y",0); GU=EV("GU",0); GQP=EV("GQP",0); PL=EV("PL",8); PT=[int(c) for c in os.environ.get("PT","531")]; WG_=EV("WG",3); GPN=EV("GPN",1); N4=EV("N4",0); NW=EV("NW",1); RWI=EV("RWI",0); US=EV("US",0); TP_=EV("TP",7); SWU=EV("SWU",0); EO=EV("EO",1); NS=EV("NS",5); NE=EV("NE",3); FR=EV('FR',8); FS=EV('FS',2); W1N=EV('W1N',5); GP_=EV('GP',1); NT=os.environ.get('NT',''); CLM=EV('CLM',0); CLW=EV('CLW',1); SLP=EV('SLP',1); H1P=EV('H1P',10); SH3=EV('SH3',0); EP_=EV('EP',1); ESC=os.environ.get('ESC',''); PERM=EV('PERM',0); W2N=EV('W2N',8); UL=EV('UL',0); WU1L=EV('WU1L',0); W1E=EV('W1E',0); ZL=EV('ZL',0); FST=EV('FST',0); UNP=EV('UNP',0); TLB=EV('TLB',0); DBGP=EV('DBGP',0); ALN=EV('ALN',0); PFT=EV('PFT',1); PFK=EV('PFK',7); PF0=EV('PF0',0); PFN=EV('PFN',16); XP=EV('XP',0); PFI=EV('PFI',0); SWW=EV('SWW',1)
PTS=os.environ.get('PTS','b1,bS,tp,pfl,rl,b2,b3,pro').split(',')
SC=os.environ.get('LSC',' sc1')
SSC=os.environ.get('SSC',' sc1')
OSC=os.environ.get('OSC',' sc1')
GSC=os.environ.get('GSC',' sc1')
NPROD=250; EP=1600; RST=EP*16
PB0=0x1000000 if PROF else 0
RSL=0x690000; NRS=EV('NRS',8); F_TBL=PB0; F_REC=PB0+0x40000
PSL=0x320000; F_P=PB0+NRS*RSL+0x1000; F_FLG=F_P-0x1000+0x312000; F_SIZE=0x10000000
NSL=(F_SIZE-F_P+0x1000)//PSL
assert 0x40000+256*RST<=RSL
CNT=0; MISC=256; OH=400; GL=928; BT=1872; STB=2144; RS=944
mSLOW=MISC; mS=MISC+4; mGX=MISC+8; mGP=MISC+12; mC3=MISC+16; mPD=MISC+20; mSL=MISC+24; mMX=MISC+28; mPI=MISC+32; mH=MISC+36; mNT=MISC+40; mW=MISC+44; mE=MISC+48; mEM=MISC+52; mNO=MISC+56; mPS=MISC+60; mWU=MISC+64
AGB=17408
W3L=AGB+56*256
Q2=AGB+16384; QS=52*128
S1=Q2; ERAW=Q2+12800
WB=Q2+4*QS; NULLG=49*256; EB=WB+NULLG+16
HIST=WB; PSC=WB+2048
GBUF=98304
KF_LDS=GBUF+65536
assert EB+2*NULLG+32<=GBUF and STB+16*RS<=AGB
AGG=STB
ONE2=0x3F803F80
NULLW2=0xFFFF|(512<<16)
CAPT=58
ID0=4; ID1=8; B3=12; A=28; Z=[60,76]; A3=92; EE=96; NN=112; DD=116; GP=120; SS=124
IDX=128; AR=144; RB=152; SB=153; SA=154; VY=155; OHC=156; VL=157; WT=158; DR=159
ACC=160; WU2=192; UA=208; WF=160; WU1=176; QA=224; RC=96; XF=28; GA=192
TP=143; WV=151; A6=244; QAD=250; QC=145; SA2=146; SI2=148; OH2=150; GA0=232; YA=234; EA=235; M4=236; EC=237; VZ=238; PO=92; TRU=240; TD=241; TC=242; TO=243; RK=244; FA=252
sP=24; sX=28; sA=32; sR=36; sM=40
sWV=56; sK=57; sNN=58; sI=59; sNT=60; sBUF=61; sQ=62; sW8=63; sCNT=64; sT0=65
sL2E=66; sINC=68; sRND=70; sTOT=71; sNON=72; sBUD=73; sW4=74; sLB=75
sWU=3; sW4K=22; sPO=23; sRO=59; sFLAG=76; sLO=77; sMA=78; sQ2=80; s128=81; sLN=10; sHEAD=82; sNF=83
t0,t1,t2,t3=84,85,86,87
BUDGET=400000
sNB=2 if PERM else sK

def mfma32(d,x,y,c): return f"v_mfma_f32_32x32x16_bf16 v[{d}:{d+15}], v[{x}:{x+3}], v[{y}:{y+3}], "+("0" if c is None else f"v[{c}:{c+15}]")
def mfma16(d,x,y,c): return f"v_mfma_f32_16x16x32_bf16 v[{d}:{d+3}], v[{x}:{x+3}], v[{y}:{y+3}], "+("0" if c is None else f"v[{c}:{c+3}]")
def mfma4(d,x,c): return f"v_mfma_f32_4x4x4_16b_bf16 v[{d}:{d+3}], v[{x}:{x+1}], v[{ID0}:{ID0+1}], "+("0" if c is None else f"v[{c}:{c+3}]")
def P2(r): return f"v[{r}:{r+1}]"
def P4(r): return f"v[{r}:{r+3}]"
def S2(r): return f"s[{r}:{r+1}]"
def SR4(r): return f"s[{r}:{r+3}]"

def gen_kf(name):
    a=Asm()
    def pt(n):
        if PROF and n in PTS: stamp(a,2+PTS.index(n))
    def ret(n):
        if PROF and n in PTS: a(f"s_sub_u32 s{90+PTS.index(n)}, {BUDGET}, s{sBUD}\ns_mul_i32 s{90+PTS.index(n)}, s{90+PTS.index(n)}, 100")
    def bar(n,w="s_waitcnt lgkmcnt(0)"):
        a(w+"\ns_barrier"); pt(n)
    def gsync(n,lab,off,target,va,vt,pre=None):
        if pre: a(pre)
        a(f"""
v_mov_b32 v{vt}, 1
s_mov_b64 exec, 1
ds_add_u32 v{va}, v{vt} offset:{off}
s_mov_b64 exec, -1
{lab}:
ds_read_b32 v{vt}, v{va} offset:{off}
s_waitcnt lgkmcnt(0)
v_readfirstlane_b32 s{t1}, v{vt}
s_and_b32 s{t1}, s{t1}, 255
s_cmp_lt_u32 s{t1}, {target}
s_cbranch_scc1 {lab}
""")
        pt(n)
    def gwait(lab,off,target,va,vt):
        if SLP: a(f"s_branch {lab}_\n{lab}:\ns_sleep {SLP}\n{lab}_:")
        else: a(f"{lab}:")
        a(f"""
ds_read_b32 v{vt}, v{va} offset:{off}
s_waitcnt lgkmcnt(0)
v_readfirstlane_b32 s{t1}, v{vt}
s_and_b32 s{t1}, s{t1}, 255
s_cmp_lt_u32 s{t1}, {target}
s_cbranch_scc1 {lab}
""")
    def consts():
        srd(a,sP,20,N,off=F_P-3072,stride=256)
        srd(a,sR,20,F_SIZE)
        a(f"""
s_cmp_lt_u32 s{sNB}, {N-256*48}
s_cselect_b32 s{sNN}, 49, 48
s_mov_b32 s{sL2E}, {hex(LOG2E_NEG)}
s_mov_b32 s{sL2E+1}, {hex(LOG2E_NEG)}
s_mov_b32 s{sINC}, 16
s_mov_b32 s{sINC+1}, 16
s_mov_b32 s{sMA}, 0x0000ffff
s_mov_b32 s{sMA+1}, 0x0000ffff
s_mov_b32 s{sQ2}, {Q2}
s_mov_b32 s{sBUD}, {BUDGET}
v_lshrrev_b32 v2, 5, v{VL}              ; h
; g = 4 b2 + 2 b4 + b0 ; m = 2 b3 + b1 ; slot = 16 b2 + 4 m + (g&3)
v_lshrrev_b32 v1, 3, v{VL}
v_and_b32 v1, 2, v1
v_and_or_b32 v1, v{VL}, 5, v1           ; g
v_lshlrev_b32 v{RB}, 1, v1
v_lshlrev_b32 v3, 1, v{VL}
v_and_b32 v3, 4, v3
v_and_or_b32 v{M4}, v{VL}, 8, v3        ; 4m
v_lshlrev_b32 v{EC}, 1, v{M4}
v_add_u32 v{EC}, {EB}, v{EC}
v_and_b32 v{WT}, 15, v{VL}              ; n / c16
v_lshlrev_b32 v3, 1, v3
v_and_or_b32 v3, v{VL}, 1, v3
v_lshl_or_b32 v3, v2, 2, v3
v_lshl_add_u32 v{AR}, v3, 7, s{sBUF}
v_bfe_u32 v1, v{VL}, 1, 1
v_bfe_u32 v3, v{VL}, 2, 3
v_xor_b32 v1, v1, v3
v_lshl_add_u32 v{AR}, v1, 4, v{AR}
v_mul_i32_i24 v{OHC}, -8, v2
v_mul_u32_u24 v{SA}, {RS}, v{WT}
v_and_b32 v1, 1, v{VL}
v_lshlrev_b32 v1, 4, v1
v_mov_b32 v3, 0x3f80
v_lshlrev_b32 v1, v1, v3
""")
        a(f"s_mov_b32 vcc_lo, 0x33333333\ns_mov_b32 vcc_hi, 0x33333333\nv_cndmask_b32 v{ID0}, 0, v1, vcc\nv_sub_u32 v{ID0+1}, v1, v{ID0}")
        a(f"""
v_lshrrev_b32 v2, 4, v{VL}              ; a / g
v_lshrrev_b32 v{SB}, 2, v{VL}
v_and_b32 v{SB}, 14, v{SB}
v_and_b32 v1, 7, v{VL}
v_lshlrev_b32 v1, 4, v1
s_movk_i32 s{s128}, 128
""")
        for i in range(4): a(f"v_xor_b32 v{IDX+2*i+1}, {(i&1)*16+3072-1024*i}, v1")
        a(f"v_xor_b32 v3, v2, v{WT}\nv_lshlrev_b32 v3, 4, v3\nv_lshl_add_u32 v3, v{WT}, 8, v3\nv_add_u32 v{FA}, {AGB}, v3")
        for s in range(1,4): a(f"v_xor_b32 v{FA+s}, {64*s}, v{FA}")
        a(f"""
s_lshl_b32 s{t0}, s{sW4}, 13
s_add_u32 s{t0}, s{t0}, {GBUF}
s_lshr_b32 s{t1}, s{sWV}, 2
v_lshrrev_b32 v1, 2, v{WT}
v_lshl_add_u32 v1, v2, 3, v1
v_lshl_add_u32 v{DR}, v1, 6, s{t0}
v_xor_b32 v2, s{t1}, v2
v_and_b32 v2, 1, v2
v_and_b32 v3, 3, v{VL}
v_lshl_add_u32 v{TRU}, v2, 5, v{DR}
v_lshl_add_u32 v{TRU}, v3, 3, v{TRU}
v_lshrrev_b32 v2, 3, v{VL}
v_and_b32 v2, 2, v2
v_xor_b32 v2, v2, v3
v_lshl_add_u32 v{TP}, v2, 4, v{DR}
""")
    def slot():
        a(f"""
s_mul_i32 s{sPO}, s{sNON}, 0x9E3779B1
s_mul_i32 s{sRO}, s{sPO}, 0x85EBCA6B
s_mul_hi_u32 s{sPO}, s{sPO}, {NSL}
s_mul_hi_u32 s{sRO}, s{sRO}, {NRS}
s_mul_i32 s{sPO}, s{sPO}, {PSL}
s_mul_i32 s{sRO}, s{sRO}, {RSL}
s_add_u32 s{sP}, s{sP}, s{sPO}
s_addc_u32 s{sP+1}, s{sP+1}, 0
""")
    def vyc(VY=VY):
        a(f"""
v_lshrrev_b32 v1, 4, v{VL}
v_and_b32 v1, 2, v1
v_xor_b32 v1, v1, v{VL}
v_and_b32 v1, 3, v1
v_lshlrev_b32 v1, 4, v1
v_lshrrev_b32 v2, 2, v{VL}
v_lshl_or_b32 v{VY}, v2, 8, v1
""")
    def trfrag(dst,addr,off,ks,hs):
        for s in range(4):
            a(f"ds_read_b64_tr_b16 {P2(dst+4*s)}, v{addr} offset:{off+s*ks}\nds_read_b64_tr_b16 {P2(dst+4*s+2)}, v{addr} offset:{off+s*ks+hs}")
    def tru(dst,off): trfrag(dst,TRU,off,2048,256)
    def sdma(sr,moff,loff=0,v=VY,js=range(8)):
        a(f"s_lshl_b32 s{t0}, s{sW4}, 6")
        for j in js:
            a(f"s_add_u32 m0, s{sBUF}, {loff+j*1024}\ns_add_u32 s{t1}, s{t0}, {moff+j*4096}\nbuffer_load_dwordx4 v{v}, {SR4(sr)}, s{t1} offen lds")
    def xfrags(Ts):
        for T in Ts:
            for s in range(4): a(f"ds_read_b128 {P4(XF+16*T+4*s)}, v{FA+s} offset:{T*4096}")
    def trw(): trfrag(WF,TP,32768,2048,256); trfrag(WF+16,TP,32768+8,2048,256)
    def um(r,tau,i,xf,acc,WF=WF):
        L=[]
        for s in range(4):
            w,x=WF+16*i+4*s,xf+4*s
            d=UA+8*tau+4*i
            L.append(mfma16(d,*((x,w) if (r,tau)==(1,1) else (w,x)),d if (acc or s) else None))
        return L
    def ugemm(r):
        for tau in range(2):
            for i in range(2):
                for x in um(r,tau,i,XF+16*(2*r+tau),False): a(x)
        if MR: return
        a("s_nop 4")
        for j in ((0,2,4,6,8,10,12,14) if r==0 else (0,2,4,6,8,12)): a(f"v_pk_mul_f32 {P2(UA+j)}, {P2(UA+j)}, {S2(sL2E)}")
    def w3rd():
        a(f"v_lshlrev_b32 v1, 3, v{VL}")
        for q in range(4): a(f"ds_read_b64 {P2(B3+4*q+2*(q&1))}, v1 offset:{W3L+q*512}")
    F=A3
    def scan(slow):
        a(f"""
v_lshlrev_b32 v1, 2, v{VL}
ds_read_b32 v{F}, v1
v_cmp_gt_u32 vcc, s{sNN}, v{VL}
v_lshlrev_b32 v{F+1}, 8, v{VL}
s_waitcnt lgkmcnt(0)
v_sub_u32 v{QA}, v{F}, v{F+1}
""")
        if slow:
            a(f"""
s_movk_i32 s{t1}, 256
v_subrev_u32 v{QA}, s{sHEAD}, v{QA}
v_cmp_lt_i32 {S2(t2)}, s{t1}, v{QA}
v_med3_i32 v{QA}, v{QA}, 0, s{t1}
v_add_u32 v{F}, v{F+1}, v{QA}
""")
        a(f"""
v_add_u32 v3, 12, v{QA}
v_and_b32 v3, -16, v3
v_max_u32 v3, 80, v3
v_cndmask_b32 v3, 0, v3, vcc
v_mov_b32 v2, v3
""")
        dpp_scan(a,"v_add_u32",[2])
        a(f"""
v_readlane_b32 s{t0}, v2, 63
v_sub_u32 v2, v2, v3
""")
    def fill(lab,slow,nw):
        a(f"""
s_lshl_b32 s{t1}, s{sWV}, 4
v_add_u32 v{QA+1}, s{t1}, v2
v_lshrrev_b32 v{QA+1}, 3, v{QA+1}       ; 2*(G0+w)
v_add_u32 v{F+1}, s{t1}, v{F+1}         ; 256n+16w
v_subrev_u32 v{QA+2}, s{t1}, v3         ; g16-16w
""")
        if not slow: a(f"v_add_u32 v{QA+3}, v{QA+1}, v{SA}\nv_mov_b32 v{F+3}, 0x3f80\nds_write_b32 v1, v2 offset:{BT}")
        for k in range(16//nw):
            a(f"v_cmpx_lt_i32 vcc, {16*nw*k}, v{QA+2}\nds_write_b16 v{QA+1}, v{F+1+(k&1)} offset:{GL+2*nw*k}")
            if k+1<16//nw: a(f"v_add_u32 v{F+1+((k+1)&1)}, {16*nw}, v{F+1+(k&1)}")
            if not slow: a(f"ds_write_b16 v{QA+3}, v{F+3} offset:{STB+2*nw*k}")
        a(f"""
s_mov_b64 exec, -1
s_lshl_b32 s{t1}, s{sWV}, 2
v_sub_u32 v{QA+2}, v3, v{QA}
v_add_u32 v{F}, s{t1}, v{F}
v_subrev_u32 v{QA+2}, s{t1}, v{QA+2}    ; pad4 - 4w
s_mov_b32 s{t1}, {EB}
v_mov_b32 v{QA+4}, 0
v_mov_b32 v{QA+5}, 0
v_mov_b32 v{QA+6}, {hex(NULLW2)}
v_lshl_add_u32 v{QA+7}, v{F}, 1, s{t1}
""")
        for k in range(-(-20//nw)):
            a(f"v_cmpx_lt_i32 vcc, {4*nw*k}, v{QA+2}")
            if k==1: a(f"s_cbranch_vccz {lab}p")
            a(f"ds_write_b32 v{F}, v{QA+6} offset:{WB+4*nw*k}\nds_write_b64 v{QA+7}, {P2(QA+4)} offset:{8*nw*k}")
        a(f"""
{lab}p:
s_mov_b64 exec, -1
s_cmp_eq_u32 s{sWV}, 3
s_cbranch_scc0 {lab}q
s_lshr_b32 s{t1}, s{t0}, 3
v_lshl_add_u32 v{QA+1}, v{VL}, 1, s{t1}
v_mov_b32 v{QA+2}, {NULLG}
v_add_u32 v{QA+3}, {NULLG}, v1
v_lshlrev_b32 v{QA+7}, 1, v1
v_add_u32 v{QA+7}, {EB+2*NULLG}, v{QA+7}
s_mov_b64 exec, 0xff
ds_write_b16 v{QA+1}, v{QA+2} offset:{GL}
s_mov_b64 exec, 15
ds_write_b32 v{QA+3}, v{QA+6} offset:{WB}
ds_write_b64 v{QA+7}, {P2(QA+4)}
s_mov_b64 exec, -1
{lab}q:
""")
    def expand(lab,win=True):
        if win: a(f"""
v_subrev_u32 v1, s{sLO}, v{TO}
v_add_u32 v2, v1, v{TC}
v_med3_i32 v1, v1, 0, s{t3}
v_med3_i32 v2, v2, 0, s{t3}
v_sub_u32 v2, v2, v1
v_lshl_add_u32 v1, v1, 2, s{sLB}
""")
        a(f"{lab}:")
        for j in range(16):
            a(f"v_cmpx_lt_i32 vcc, {j}, v2")
            if j==13: a(f"s_cbranch_vccz {lab}z")
            a(f"ds_write_b32 v1, v{TD} offset:{4*j}")
        a(f"""
v_add_u32 v2, -16, v2
v_add_u32 v1, 64, v1
v_cmp_lt_i32 vcc, 0, v2
s_cmp_lg_u64 vcc, 0
s_cbranch_scc1 {lab}
{lab}z:
s_mov_b64 exec, -1
""")
    def rl1(i): return f"buffer_load_dwordx4 {P4(RC+4*i)}, v{RK+i}, {SR4(sR)}, {'0' if i<4 else 's'+str(sQ)} offen offset:{1024*(i&3)}{SC}"
    def reclist(ns):
        a(f"v_lshl_add_u32 v1, v{VL}, 2, s{sLB}")
        for i in reversed(range(ns)): a(f"ds_read_b32 v{RK+i}, v1 offset:{256*i}")
        a(f"v_add_u32 v2, s{sLO}, v{VL}\nv_lshlrev_b32 v2, 4, v2\ns_movk_i32 s{sQ}, 4096")
        for i in range(ns):
            a(f"v_cmp_gt_i32 {S2(sM+2*i)}, s{t1}, v{VL}\ns_sub_u32 s{t1}, s{t1}, 64")
        a("s_waitcnt lgkmcnt(0)")
        for i in range(ns): a(f"v_add_u32 v{RK+i}, v{RK+i}, v2")
    def recload(ns,lab):
        for i in reversed(range(ns)):
            a(f"s_mov_b64 exec, {S2(sM+2*i)}\ns_cbranch_execz {lab}{i}\n{rl1(i)}\n{lab}{i}:")
        a("s_mov_b64 exec, -1")
    def hist(ns,lab,extra,scat):
        a(f"v_mov_b32 v1, 4\ns_mov_b32 s{sW8}, {EB}\n{lab}p:")
        def gm(i): return S2(t0+2*(i&1))
        def sc(i,n):
            a(f"""
s_mov_b64 exec, {gm(i)}
s_waitcnt lgkmcnt({n})
v_min_u32 v{RK+i}, {NULLG-4}, v{RK+i}
v_lshl_add_u32 v{RC+4*i+3}, v{RK+i}, 1, s{sW8}
ds_write_b32 v{RK+i}, v{RC+4*i+2} offset:{WB}
ds_write_b64 v{RC+4*i+3}, {P2(RC+4*i)}
""")
        for i in reversed(range(ns)):
            a(f"""
s_mov_b64 exec, {S2(sM+2*i)}
s_waitcnt vmcnt({i+extra})
v_cmpx_eq_u32 {gm(i)}, s{sNON}, v{RC+4*i+3}
v_lshrrev_b32 v{RC+4*i+3}, 17, v{RC+4*i+2}
ds_add_rtn_u32 v{RK+i}, v{RC+4*i+3}, v1
s_andn2_b64 {S2(sM+2*i)}, {S2(sM+2*i)}, {gm(i)}
""")
            a(f"s_mov_b64 vcc, {S2(sM+2*i)}" if i==ns-1 else f"s_or_b64 vcc, vcc, {S2(sM+2*i)}")
            if scat and i==0 and 0: pass
            if scat and i==0: a(f"s_cselect_b64 exec, 0, 1\nds_add_u32 v{VZ}, v1 offset:{mH}")
            if scat and i<ns-1: sc(i+1,(1 if i==ns-2 else 3)+(1 if i==0 else 0))
        if scat: sc(0,3)
        a(f"s_cbranch_vccnz {lab}r\n{lab}d:\ns_mov_b64 exec, -1")
    def hist_retry(ns,lab,scat):
        a(f"{lab}r:\ns_sub_u32 s{sBUD}, s{sBUD}, 1\ns_cbranch_scc1 {lab}x")
        if RS1: a(f"s_sleep {RS1}")
        recload(ns,lab+"l")
        a(f"s_waitcnt vmcnt(0)\ns_branch {lab}p\n{lab}x:\ns_mov_b32 s{sBUD}, 0")
        if scat: a(f"s_mov_b64 exec, 1\nds_add_u32 v{VZ}, v1 offset:{mH}")
        a(f"s_branch {lab}d")
    def qfull(lab,mid):
        H=QA+4; MX=QA+1
        a(f"v_xor_b32 v{TC}, 32, v{TRU}")
        trfrag(WF,TC,0,2048,256)
        a(f"""
s_lshl_b32 s{t0}, s{sW4}, 8
s_add_u32 s{t0}, s{t0}, {Q2}
v_lshrrev_b32 v1, 4, v{VL}
v_lshl_add_u32 v120, v1, 11, s{t0}
v_and_b32 v1, 8, v{VL}
v_lshl_add_u32 v120, v1, 3, v120
v_and_b32 v1, 3, v{VL}
v_lshl_add_u32 v120, v1, 4, v120
v_and_b32 v1, 4, v{VL}
v_lshl_add_u32 v120, v1, 1, v120
v_add_u32 v121, 128, v120
s_waitcnt lgkmcnt(0)
""")
        tru(WF+16,0)
        def cv(i,T,pk):
            c=GA+16*i+4*T
            L=[]
            if pk: L+=[f"v_pk_mul_f32 {P2(c)}, {P2(c)}, {S2(sL2E)}",f"v_pk_mul_f32 {P2(c+2)}, {P2(c+2)}, {S2(sL2E)}"]
            else: L+=[f"v_mul_f32 v{c+k}, s{sL2E}, v{c+k}" for k in range(4)]
            L+=[f"v_and_b32 v{H+k}, 0xffff0000, v{c+k}" for k in range(4)]
            L+=[f"v_maximum3_f32 v{MX}, {'0' if T==0 and i==0 else 'v'+str(MX)}, abs(v{c}), abs(v{c+1})",f"v_maximum3_f32 v{MX}, v{MX}, abs(v{c+2}), abs(v{c+3})"]
            if pk: L+=[f"v_pk_add_f32 {P2(c)}, {P2(c)}, {P2(H)} neg_lo:[0,1] neg_hi:[0,1]",f"v_pk_add_f32 {P2(c+2)}, {P2(c+2)}, {P2(H+2)} neg_lo:[0,1] neg_hi:[0,1]"]
            else: L+=[f"v_sub_f32 v{c+k}, v{c+k}, v{H+k}" for k in range(4)]
            L+=[f"v_cvt_pk_bf16_f32 v{c+k}, v{c+k}, v{H+k}" for k in range(4)]
            return L
        for T in range(4):
            for s in range(4): a(mfma16(GA+4*T,XF+16*T+4*s,WF+4*s,None if s==0 else GA+4*T))
        a("s_waitcnt lgkmcnt(0)")
        fl=cv(0,0,0)+cv(0,1,0)
        for T in range(4):
            for s in range(4):
                a(mfma16(GA+16+4*T,XF+16*T+4*s,WF+16+4*s,None if s==0 else GA+16+4*T))
                for _ in range(2): a(fl.pop(0))
        if PFI==0: mid()
        for x in fl+cv(0,2,1)+cv(1,0,1)+cv(1,1,1)+cv(1,2,1): a(x)
        if PFI==1: mid()
        gwait(lab+"w",mSL,4,VZ,1)
        for i in range(2):
            for T in range(3):
                c=GA+16*i+4*T
                a(f"ds_write2st64_b64 v{120+i}, {P2(c)}, {P2(c+2)} offset0:{16*T} offset1:{16*T+2}")
        a("s_mov_b64 exec, 0xffff")
        for i in range(2):
            c=GA+16*i+12
            a(f"""
v_mul_f32 v{c}, s{sL2E}, v{c}
v_and_b32 v{H}, 0xffff0000, v{c}
v_maximum3_f32 v{MX}, v{MX}, abs(v{c}), abs(v{c})
v_sub_f32 v{c}, v{c}, v{H}
v_cvt_pk_bf16_f32 v{c}, v{c}, v{H}
ds_write2st64_b64 v{120+i}, {P2(c)}, {P2(c+2)} offset0:48 offset1:50
""")
        a(f"""
s_mov_b64 exec, -1
v_cmp_nge_f32 vcc, 0x40e80000, v{MX}
s_cbranch_vccz {lab}q
ds_write_b32 v{VZ}, v{FA} offset:{mSLOW}
{lab}q:
""")
        pt('qd')
    def ranges():
        a(f"""
s_lshr_b32 s{sCNT}, s{sNT}, 3
s_mul_i32 s{sT0}, s{sCNT}, s{sWV}
s_and_b32 s{t2}, s{sNT}, 7
s_min_u32 s{t3}, s{t2}, s{sWV}
s_add_u32 s{sT0}, s{sT0}, s{t3}
s_cmp_lt_u32 s{sWV}, s{t2}
s_addc_u32 s{sCNT}, s{sCNT}, 0
s_lshl_b32 s{t0}, s{sT0}, 7
s_lshl_b32 s{t2}, s{sT0}, 4
v_add_u32 v{SB}, s{t2}, v{SB}
v_add_u32 v{RB}, s{t2}, v{RB}
s_add_u32 s{t3}, s{sT0}, s{sCNT}
v_min_u32 v1, 8, v{VL}
v_sub_u32 v1, s{t3}, v1
v_lshlrev_b32 v1, 4, v1
v_max_i32 v1, 0, v1
""")
    AS=272; OST=GBUF+32768
    eFA,eOW,eN48,eRD,eST,eM0,eM1=136,137,138,139,140,141,142
    sE0,sE1,sE2=4,5,6
    def epi_consts():
        srd(a,sX,16,N*256)
        vyc(WV)
        a(f"""
v_and_b32 v1, 15, v{VL}
v_lshrrev_b32 v2, 4, v{VL}
v_mul_u32_u24 v3, {AS}, v1
s_lshr_b32 s{t0}, s{sWV}, 2
s_mul_i32 s{t1}, s{t0}, {32*AS}
v_lshl_add_u32 v3, v2, 4, v3
v_add_u32 v{eFA}, s{t1}, v3
s_lshl_b32 s{sE0}, s{t0}, 21
s_lshl_b32 s{t0}, s{sWV}, 11
s_add_u32 s{t0}, s{t0}, {OST}
v_lshrrev_b32 v3, 1, v{VL}
v_xor_b32 v2, v2, v3
v_and_b32 v2, 3, v2
v_lshl_add_u32 v2, v2, 4, s{t0}
v_lshl_add_u32 v{eOW}, v1, 6, v2
v_and_b32 v2, 12, v1
v_lshl_add_u32 v2, v2, 2, s{t0}
v_and_b32 v3, 3, v1
v_lshl_add_u32 v{eN48}, v3, 1, v2
v_lshl_add_u32 v{eRD}, v{VL}, 4, s{t0}
v_lshrrev_b32 v2, 3, v{VL}
v_xor_b32 v2, v2, v{VL}
v_and_b32 v2, 3, v2
v_lshlrev_b32 v2, 4, v2
v_lshrrev_b32 v3, 2, v{VL}
v_lshl_add_u32 v{eST}, v3, 16, v2
s_lshl_b32 s{t0}, s{sNB}, 8
s_add_u32 s{sE0}, s{sE0}, s{t0}
s_lshl_b32 s{t0}, s{sW4}, 6
s_add_u32 s{sE0}, s{sE0}, s{t0}
s_add_u32 s{sE1}, s{sE0}, {16*65536}
s_mul_i32 s{t0}, s{sWV}, {AS}
v_lshl_add_u32 v{eM1}, v{VL}, 2, s{t0}
v_lshlrev_b32 v{OH2}, 1, v{OHC}
v_and_b32 v1, 31, v{VL}
v_lshlrev_b32 v1, 4, v1
v_lshlrev_b32 v2, 5, v{VL}
v_and_b32 v2, 0x400, v2
v_add3_u32 v{QC}, v1, v2, s{sQ2}
v_cndmask_b32 v{SI2}, 0, 16, {S2(sMA)}
v_cndmask_b32 v{SI2+1}, 16, 0, {S2(sMA)}
v_sub_u32 v2, v{SA}, v{OHC}
v_add_u32 v2, {STB}, v2
v_mov_b32 v1, {OH+64}
v_cndmask_b32 v{SA2}, v1, v2, {S2(sMA)}
v_cndmask_b32 v{SA2+1}, v2, v1, {S2(sMA)}
""")
    def arrive(off,vt): a(f"v_mov_b32 v{vt}, 1\ns_mov_b64 exec, 1\nds_add_u32 v{VZ}, v{vt} offset:{off}\ns_mov_b64 exec, -1")

    def claim():
        a(f"""
s_mul_i32 s{t1}, s{sW4}, {13*65536}
s_lshl_b32 s{t2}, s{sNB}, 8
s_add_u32 s{t1}, s{t1}, s{t2}
s_add_u32 s{t1}, s{t1}, {F_P}
""")
        if CLW==1:
            a(f"""
v_lshlrev_b32 v2, 15, v{VL}
v_and_b32 v2, 0xffff0000, v2
v_and_b32 v3, 1, v{VL}
v_lshl_add_u32 v2, v3, 7, v2
v_add_u32 v2, s{t1}, v2
s_mov_b64 exec, 0x3ffffff
global_store_dword v2, v{VZ}, s[20:21] sc1
s_mov_b64 exec, -1
""")
        else:
            a(f"""
v_lshlrev_b32 v2, 14, v{VL}
v_and_b32 v2, 0xffff0000, v2
v_and_b32 v3, 3, v{VL}
v_lshl_add_u32 v2, v3, 6, v2
v_add_u32 v2, s{t1}, v2
s_mov_b32 exec_hi, 0xfffff
global_store_dword v2, v{VZ}, s[20:21] sc1
s_mov_b64 exec, -1
""")
    D=28; SRc=36; K=44; R=52; W2=60; RO=80
    sD=40; sS=44; sE=48
    Q16="s_mov_b64 exec, 0xffff"; FULL="s_mov_b64 exec, -1"
    a(f"""
{name}:
{"s_memrealtime s[88:89]" if PROF and FST else ""}
s_getpc_b64 {S2(t2)}
s_cmp_ge_u32 s2, 256
s_cbranch_scc1 KF_END
s_load_dwordx16 s[4:19], s[0:1], 0
s_load_dwordx2 s[20:21], s[0:1], 64
v_lshrrev_b32 v1, 6, v0
s_and_b32 s{t0}, s2, 0xf8
s_sub_u32 s{t1}, s{t0}, 144
s_cselect_b32 s{t1}, s{t0}, s{t1}
v_add_lshl_u32 v2, v1, s{t1}, 7
v_readfirstlane_b32 s{sWV}, v1
v_min_u32 v2, KF_CEND-{name}-16, v2
s_cmpk_eq_u32 s2, {NWG}
s_cbranch_scc1 KF_n0
s_mov_b64 exec, 1
global_load_dword v{QA+15}, v2, {S2(t2)}
s_mov_b64 exec, -1
KF_n1:
v_and_b32 v{VL}, 63, v0
v_mov_b32 v{VZ}, 0
v_lshlrev_b32 v113, 4, v{VL}
s_and_b32 s{sK}, s2, 7
s_lshl_b32 s{sK}, s{sK}, 5
s_lshr_b32 s{t1}, s2, 3
s_or_b32 s{sK}, s{sK}, s{t1}
s_and_b32 s{sW4}, s{sWV}, 3
s_lshl_b32 s{sW4K}, s{sW4}, 10
s_cmp_ge_u32 s{sWV}, 4
s_cbranch_scc0 KF_S
v_lshlrev_b32 v2, 2, v0
v_lshlrev_b32 v3, 8, v{VL}
ds_write_b32 v2, v{VZ} offset:{HIST-1024}
v_lshlrev_b32 v2, 2, v{VL}
ds_write2st64_b32 v2, v3, v{VZ} offset0:0 offset1:1
v_bfe_u32 v1, v0, 4, 4
v_xor_b32 v37, v1, v0
v_and_b32 v37, 15, v37
v_lshlrev_b32 v37, 4, v37
v_lshl_add_u32 v36, v1, 8, s{sNB}
s_waitcnt lgkmcnt(0)
""")
    if WSB: a(f"s_add_u32 s20, s20, {hex(WSB)}\ns_addc_u32 s21, s21, 0")
    (0 if FST else stamp(a,0,True)); stamp(a,1); pt('st')
    a(f"""
""")
    if XORD==0:
        srd(a,sX,4,N,stride=256)
        for j in range(4):
            if j==3: a(f"s_cmp_eq_u32 s{sWV}, 4\ns_cbranch_scc0 KT_c")
            a(f"s_add_u32 m0, s{sW4K}, {AGB+j*4096}\ns_nop 0\nbuffer_load_dwordx4 v[36:37], {SR4(sX)}, 0 idxen offen{NT} lds\nv_add_u32 v36, 4096, v36")
        a("KT_c:")
    a(f"""
s_lshr_b32 s{t0}, s{t0}, 1
s_add_u32 s{t0}, s{t0}, s{sWV}
s_sub_u32 s{t0}, s{t0}, 4
s_lshl_b32 s{t0}, s{t0}, 9
v_lshl_add_u32 v2, v{VL}, 7, s{t0}
s_mov_b64 exec, 15
global_load_dword v{QA+15}, v2, s[12:13]
global_load_dword v{QA+15}, v2, s[14:15]
s_mov_b64 exec, -1
""")
    if TLB:
        a(f"""
s_lshr_b32 s{t0}, s{t0}, 9
s_mul_i32 s{t1}, s{t0}, {2*RST}
s_add_u32 s{t1}, s{t1}, {F_REC+EP*16}
s_add_u32 s52, s20, s{t1}
s_addc_u32 s53, s21, 0
s_load_dword s44, s[52:53], 0
s_load_dword s45, s[52:53], {RST}
""")
    a(f"""
s_branch KF_B0
KF_n0:
s_memrealtime s[44:45]
v_and_b32 v2, 63, v0
v_lshlrev_b32 v2, {2 if NW else 6}, v2
s_cmp_eq_u32 s{sWV}, {0 if NWG else 4}
s_waitcnt lgkmcnt(0)
s_cbranch_scc0 KF_n1
s_lshl_b32 s46, s44, 2
s_or_b32 s46, s46, 1
v_mov_b32 v3, s46
s_mov_b64 exec, {-1 if NW else 15}
global_store_dword v2, v3, s[18:19] sc1
s_mov_b64 exec, -1
s_branch KF_n1
KF_S:
s_min_u32 s{t2}, s2, {NPROD-1}
s_mul_i32 s{t2}, s{t2}, {EP*4}
s_mul_i32 s{t3}, s{sWV}, 400
v_add_u32 v108, s{t3}, v{VL}
v_lshlrev_b32 v109, 2, v108
s_mov_b32 s{sD+2}, {E*4}
s_mov_b32 s{sD+3}, 0x00020000
s_waitcnt lgkmcnt(0)
""")
    if WSB: a(f"s_add_u32 s20, s20, {hex(WSB)}\ns_addc_u32 s21, s21, 0")
    (0 if FST else stamp(a,0,True)); stamp(a,1); pt('st')
    a(f"s_mov_b32 s{sD}, s10\ns_and_b32 s{sD+1}, s11, 0xffff")
    def ld7(dst,sr):
        for i in range(7):
            if i==6: a(Q16)
            a(f"buffer_load_dword v{dst+i}, v109, {SR4(sr)}, s{t2} offen offset:{i*256}{NT}")
        a(FULL)
    ld7(D,sD); pt('dl')
    def srcld(): srd(a,sS,8,E*4); ld7(SRc,sS)
    def eld():
        srd(a,sE,6,E*8)
        a(f"""
s_lshl_b32 s{sLB}, s{t3}, 3
s_lshl_b32 s{t2}, s{t2}, 1
s_add_u32 s{t2}, s{t2}, s{sLB}
s_add_u32 m0, s{sLB}, {ERAW}
s_add_u32 s{sLB}, s{sLB}, {S1}
""")
        for j in range(4):
            if j==3: a("s_mov_b64 exec, 0xff")
            a(f"buffer_load_dwordx4 v113, {SR4(sE)}, s{t2} offen offset:{1024*j}{NT} lds")
        a(FULL)
    if EO<2: srcld()
    if EO<1: eld()
    if CLM==2: claim()
    a(f"""
KF_B0:
""")
    if DBGP:
        a("v_mov_b32 v1, 0")
        for j,r in enumerate((4,6,8,10,12,14,16,18,20)): a(f"v_writelane_b32 v1, s{r}, {j}")
        a(f"v_lshlrev_b32 v2, 2, v{VL}\ns_mov_b64 exec, 0x1ff\nglobal_store_dword v2, v1, s[18:19]\ns_mov_b64 exec, -1\ns_waitcnt vmcnt(0)")
    if ALN: a(f"s_add_u32 s20, s20, {ALN-1}\ns_addc_u32 s21, s21, 0\ns_and_b32 s20, s20, {-ALN}")
    a(f"""
s_lshl_b32 s{sBUF}, s{sWV}, 13
s_add_u32 s{sBUF}, s{sBUF}, {GBUF}
s_barrier
""")
    if W1E:
        a(f"s_cmp_ge_u32 s{sWV}, 4\ns_cbranch_scc0 KF_c0")
        srd(a,sA,12,260*256); vyc(); sdma(sA,0,0,VY,range(W1E))
        a("KF_c0:")
    consts()
    a(f"""
s_cmp_ge_u32 s{sWV}, 4
s_cbranch_scc1 KF_T
""")
    if EO>=2: a(f"v_lshlrev_b32 v109, 2, v108"); srcld()
    if EO>=1: eld()
    a(f"""
v_mov_b32 v111, 8
v_and_b32 v124, 7, v{VL}
v_lshlrev_b32 v124, 7, v124
v_lshrrev_b32 v125, 3, v{VL}
v_lshl_add_u32 v124, v125, 2, v124
v_add_u32 v124, {HIST}, v124
v_add_u32 v125, 1024, v124
v_lshlrev_b32 v112, 3, v108
v_lshlrev_b32 v110, 4, v108
""")
    for i in range(7): a(f"v_add_u32 v{W2+1+2*i}, {i*512}, v112")
    if N4==1: a(f"s_load_dword s{sNON}, s[18:19], 0")
    if N4==2: a(f"s_mov_b32 s{sNON}, 0")
    a(f"s_cmp_ge_u32 s2, {NPROD}\ns_cbranch_scc1 KS_d\ns_waitcnt vmcnt({11+(CLM==2)})")
    pt('dst')
    if N4==2: a(f"s_load_dword s{sNON}, s[18:19], 0")
    for i in range(7):
        if i==6: a(Q16)
        a(f"v_lshlrev_b32_sdwa v{K+i}, 2, v{D+i} dst_sel:DWORD dst_unused:UNUSED_PAD src0_sel:DWORD src1_sel:BYTE_0\nds_add_rtn_u32 v{R+i}, v{K+i}, v111 offset:{HIST}")
    a(FULL+"\nKS_d:")
    gsync('b1',"KS_y1",mS,4,VZ,2)
    if PERM: a(f"ds_read2_b32 v[116:117], v124 offset0:0 offset1:8\nds_read2_b32 v[118:119], v124 offset0:16 offset1:24")
    else: a(f"ds_read_b128 v[116:119], v113 offset:{HIST}")
    if NE==3 and not N4: a(f"s_load_dword s{sNON}, s[18:19], 0")
    if N4: a(f"s_cmp_lg_u32 s{sNON}, 0\ns_cbranch_scc1 KS_na\ns_load_dword s{sNON}, s[18:19], 128\nKS_na:")
    for i in range(7): a(f"v_lshrrev_b32 v{D+i}, 8, v{D+i}")
    a(f"""
s_waitcnt lgkmcnt(0)
v_add_u32 v2, v116, v117
v_add3_u32 v2, v2, v118, v119
v_mov_b32 v3, v2
""")
    dpp_scan(a,"v_add_u32",[3])
    a(f"""
v_sub_u32 v120, v3, v2
v_add_u32 v121, v120, v116
v_add_u32 v122, v121, v117
v_add_u32 v123, v122, v118
""")
    if PERM: a(f"ds_write2_b32 v125, v120, v121 offset0:0 offset1:8\nds_write2_b32 v125, v122, v123 offset0:16 offset1:24")
    else: a(f"ds_write_b128 v113, v[120:123] offset:{HIST+1024}")
    for i in range(7):
        if i==6: a(Q16)
        a(f"ds_read_b32 v{K+i}, v{K+i} offset:{HIST+1024}")
    a(FULL)
    def tpub():
        if not NE: a(f"s_load_dword s{sNON}, s[18:19], 0")
        a(f"""
v_lshl_or_b32 v{QA}, v121, 16, v120
v_lshl_or_b32 v{QA+1}, v123, 16, v122
s_lshl_b32 s{t2}, s2, 10
s_add_u32 s{t2}, s{t2}, {F_TBL}
s_lshl_b32 s{t3}, s{sWV}, 4
""")
        for k,off in enumerate((64,192,None) if N4 else (128,64,192,None)):
            a(f"s_waitcnt lgkmcnt(0)\ns_cmp_lg_u32 s{sNON}, 0\ns_cbranch_scc1 KS_n1")
            if off is not None: a(f"s_sleep {NS}\ns_load_dword s{sNON}, s[18:19], {off}")
        a(f"""
KS_n0:
global_load_dword v1, v{VZ}, s[18:19] sc1
s_waitcnt vmcnt(0)
v_readfirstlane_b32 s{sNON}, v1
s_cmp_lg_u32 s{sNON}, 0
s_cbranch_scc1 KS_n1
s_sub_u32 s{sBUD}, s{sBUD}, 1
s_cbranch_scc0 KS_n0
s_mov_b32 s{sBUD}, 0
s_mov_b32 s{sNON}, 1
KS_n1:
v_mov_b32 v1, s{sNON}
ds_write_b32 v{VZ}, v1 offset:{mNO}
""")
        pt('non')
        slot()
        a(f"""
v_mov_b32 v{QA+3}, v1
s_add_u32 s{t2}, s{t2}, s{sRO}
s_lshl_b64 exec, 0xffff, s{t3}
buffer_store_dwordx4 {P4(QA)}, v113, {SR4(sR)}, s{t2} offen{SSC}
s_mov_b64 exec, -1
""")
    if NE==3:
        a(f"v_mov_b32 v{QA+2}, v3"); tpub()
        if WG_: arrive(mPS,2)
    else: a(f"s_mov_b32 s{sNON}, 0")
    a(f"s_cmp_ge_u32 s2, {NPROD}\ns_cbranch_scc1 KS_e\ns_waitcnt vmcnt({5 if NE==3 else 4})")
    if X&64:
        for i in range(7): a(f"v_and_b32 v{SRc+i}, 0x1ff, v{SRc+i}")
    for i in range(7): a(f"v_lshl_or_b32 v{W2+2*i}, v{D+i}, 19, v{SRc+i}")
    a(f"s_waitcnt lgkmcnt(0)")
    if NE==2: a(f"s_load_dword s{sNON}, s[18:19], 0")
    for i in range(7):
        if i==6: a(Q16)
        a(f"v_add_u32 v{K+i}, v{K+i}, v{R+i}\nds_write_b64 v{K+i}, {P2(W2+2*i)} offset:{S1}")
    a(FULL+"\nKS_e:")
    pt('sc1')
    if NE<3: a(f"v_mov_b32 v{QA+2}, v3")
    if NE==1: a(f"s_load_dword s{sNON}, s[18:19], 0")
    if NE<2: epi_consts(); tpub()
    else:
        if NE==2: tpub()
        pass
    a(f"""
v_lshlrev_b32 v114, 10, v0
s_lshr_b32 s{sLO}, s{sK}, 2
s_lshl_b32 s{sLO}, s{sLO}, 4
s_add_u32 s{sLO}, s{sLO}, {F_TBL}
s_add_u32 s{sLO}, s{sLO}, s{sRO}
s_add_u32 s{sRO}, s{sRO}, {F_REC}
v_cmp_gt_u32 vcc, {NPROD}, v0
v_mov_b32 v{QA+4}, 0
v_mov_b32 v{QA+5}, 0
v_mov_b32 v{QA+6}, 0
s_mul_i32 s{t0}, s2, {RST}
s_add_u32 s{t0}, s{t0}, s{sRO}
s_add_u32 s{t2}, s{t0}, 4096
v_mul_u32_u24 v115, {RST}, v0
v_add_u32 v115, s{sRO}, v115
""")
    gsync('bS',"KS_y2",mS,8,VZ,2,f"s_waitcnt vmcnt({1+(CLM==2)})")
    tl=f"s_mov_b64 exec, vcc\nbuffer_load_dwordx4 {P4(QA+4)}, v114, {SR4(sR)}, s{sLO} offen{SC}\ns_mov_b64 exec, -1"
    a(f"""
s_cmp_ge_u32 s2, {NPROD}
s_cbranch_scc0 KS_h0
""")
    if H1: arrive(mE,2); gwait("KS_h1",mPI,4,VZ,2)
    else: gwait("KS_h1",mGP,4,VZ,2)
    a(f"""
{tl}
s_waitcnt vmcnt(0)
v_mov_b32 v1, 0
s_branch KS_j
KS_h0:
""")
    order=[6,0,1,2,3,4,5]
    for i in order:
        if i==6: a(Q16)
        a(f"ds_read_b64 {P2(RO+2+4*i)}, v112 offset:{S1+i*512}")
        if i==6: a(FULL)
    for i in order:
        if i==6: a(Q16)
        a(f"s_waitcnt lgkmcnt(6)\nds_read_b64 {P2(RO+4*i)}, v{RO+3+4*i} offset:{ERAW}")
        if i==6: a(FULL)
    gwait("KS_ww",mW,4,VZ,2)
    for k,i in enumerate(order):
        if k==TP_: a(tl)
        if i==6: a(Q16)
        a(f"v_mov_b32 v{RO+3+4*i}, v1\nbuffer_store_dwordx4 {P4(RO+4*i)}, v110, {SR4(sR)}, s{t0 if i<4 else t2} offen offset:{1024*(i&3)}{SSC}")
        if i==6: a(FULL)
    if TP_==7: a(tl)
    pt('out')
    a(f"v_pk_maximum3_f16 v1, v{RO}, v{RO+1}, v{RO+1}\nv_pk_minimum3_f16 v2, v{RO}, v{RO+1}, v{RO+1}")
    for i in range(1,7):
        if i==6: a(Q16)
        a(f"v_pk_maximum3_f16 v1, v1, v{RO+4*i}, v{RO+4*i+1}\nv_pk_minimum3_f16 v2, v2, v{RO+4*i}, v{RO+4*i+1}")
    a(FULL)
    absmax_fin(a,1,2,3)
    dpp_scan(a,"v_max_u32",[1])
    a(f"""
KS_j:
v_mov_b32 v2, 1
s_mov_b32 exec_lo, 0
s_brev_b32 exec_hi, 1
ds_max_u32 v{VZ}, v1 offset:{mEM}
ds_add_u32 v{VZ}, v2 offset:{mE}
s_mov_b64 exec, -1
""")
    if NE>=2: epi_consts()
    gwait("KS_xw",mGX,4,VZ,2)
    xfrags([0,1])
    a(f"""
s_bitcmp1_b32 s{sK}, 1
s_cselect_b64 {S2(t2)}, -1, 0
s_lshl_b32 s{t0}, s{sK}, 4
s_and_b32 s{t0}, s{t0}, 16
s_waitcnt vmcnt({7-TP_})
s_mov_b64 exec, vcc
KT_f:
v_cmp_ne_u32 vcc, s{sNON}, v{QA+7}
s_cbranch_vccz KT_g
s_mov_b64 exec, vcc
s_sub_u32 s{sBUD}, s{sBUD}, 1
s_cbranch_scc1 KT_f2
{'s_sleep '+str(RS1) if RS1 else ''}
buffer_load_dwordx4 {P4(QA+4)}, v114, {SR4(sR)}, s{sLO} offen{SC}
s_waitcnt vmcnt(0)
s_branch KT_f
KT_f2:
s_mov_b32 s{sBUD}, 0
v_mov_b32 v{QA+4}, 0
v_mov_b32 v{QA+5}, 0
v_mov_b32 v{QA+6}, 0
KT_g:
s_mov_b64 exec, -1
""")
    pt('tp'); ret('rt1')
    a(f"""
v_cndmask_b32 v1, v{QA+4}, v{QA+5}, {S2(t2)}
v_cndmask_b32 v2, v{QA+5}, v{QA+6}, {S2(t2)}
v_alignbit_b32 v1, v2, v1, s{t0}
v_sub_u32_sdwa v{TC}, v1, v1 dst_sel:DWORD dst_unused:UNUSED_PAD src0_sel:WORD_1 src1_sel:WORD_0
v_and_b32 v1, 0xffff, v1
v_lshrrev_b32 v{TC}, 3, v{TC}
v_lshl_add_u32 v{TD}, v1, 1, v115
v_mov_b32 v{TO}, v{TC}
""")
    dpp_scan(a,"v_add_u32",[TO])
    a(f"""
v_readlane_b32 s{sTOT}, v{TO}, 63
v_sub_u32 v{TO}, v{TO}, v{TC}
v_mov_b32 v2, v{TC}
v_lshlrev_b32 v1, 4, v{TO}
s_mov_b32 s{sLO}, 0
s_cmp_gt_u32 s{sTOT}, 512
v_sub_u32 v{TD}, v{TD}, v1
v_lshl_add_u32 v1, v{TO}, 2, s{sLB}
s_cselect_b32 s{t1}, 0, s{sTOT}
s_cbranch_scc1 KT_xe
""")
    expand("KT_x",False)
    a("KT_xe:")
    reclist(8)
    arrive(mSL,1)
    pt('exp')
    if SWU:
        gwait("KS_gp",mGP,4,VZ,1); srd(a,sA,14,256*256); sdma(sA,0,32768,WV)
    gwait("KS_rw",{0:mPD,1:mPS,2:mPS}[RWI],4,VZ,1)
    if SWU==2: a("s_waitcnt vmcnt(0)"); arrive(mPI,1)
    if TP_<7: a("s_waitcnt vmcnt(0)")
    recload(8,"KT_l")
    pt('rl')
    def pfp():
        a(f"""
s_lshr_b32 s{t1}, s2, 3
s_mul_i32 s{t1}, s{t1}, 391
""")
        if PF0: a(f"v_and_b32 v2, 255, v0\nv_add_u32 v2, s{t1}, v2\nv_mov_b32 v3, 0")
        else: a(f"v_bfe_u32 v2, v0, 1, 7\nv_add_u32 v2, s{t1}, v2\nv_and_b32 v3, 1, v0\nv_lshlrev_b32 v3, 7, v3")
        if PFN<64: a(f"s_bfm_b64 exec, {PFN}, 0")
        a(f"buffer_load_dword v{QA+15}, v[2:3], {SR4(sP)}, 0 idxen offen offset:3072{SC}\ns_mov_b64 exec, -1")
    if PFP==1: pfp()
    if SWU==1:
        a(f"s_add_u32 s{t1}, s{sTOT}, 63\ns_lshr_b32 s{t1}, s{t1}, 6\ns_cmp_ge_u32 s{t1}, 6\ns_cbranch_scc1 KS_v6\ns_waitcnt vmcnt(0)\nKS_v6:\ns_cmp_gt_u32 s{sTOT}, 512\ns_cbranch_scc0 KS_v7\ns_waitcnt vmcnt(0)\nKS_v7:\ns_waitcnt vmcnt(6)")
        arrive(mPI,1)
    if not US:
        if not SWU: gwait("KS_w2",mPI,4,VZ,1)
        trw()
        a("s_waitcnt lgkmcnt(0)")
        w3rd()
        ugemm(0)
    pt('ud')
    hist(8,"KT_h",1 if PFP==1 else 0,True)
    if PFP==3: pfp()
    pt('hs'); ret('rt2')
    gwait("KS_b2",mH,16,VZ,1)
    pt('b2')
    scan(False)
    a(f"""
v_cmp_lt_u32 vcc, 0x100, v{QA}
s_add_u32 s{sNT}, s{t0}, 127
s_lshr_b32 s{sNT}, s{sNT}, 7
s_cmp_gt_u32 s{sNT}, {CAPT}
s_cbranch_scc1 KT_j
s_cbranch_vccnz KT_j
""")
    fill("KFz",False,4)
    a(f"v_mov_b32 v1, s{sNT}\nds_write_b32 v{VZ}, v1 offset:{mNT}")
    pt('fil')
    a(f"""
s_cmp_gt_u32 s{sTOT}, 512
s_cbranch_scc0 KT_k
KT_j:
ds_write_b32 v{VZ}, v{FA} offset:{mSLOW}
KT_k:
s_mov_b32 s{sWU}, 1
""")
    if US: gwait("KS_w2",mPI,4,VZ,1); trw(); w3rd()
    ranges()
    srd(a,sA,14,256*256)
    if PRIO: a("s_setprio 3")
    bar('b3')
    a("s_branch KF_J")
    a(f"""
KF_T:
{"s_load_dword s47, s[18:19], 0" if GPN else ""}
v_and_b32 v108, 255, v0
v_mov_b32 v32, 0
v_mov_b32 v33, 0
v_mov_b32 v34, 0
v_mov_b32 v35, 0
v_lshlrev_b32 v110, 4, v108
""")
    sG=40
    srd(a,sX,4,N,stride=256)
    def xld():
        for j in range(4):
            if j==3: a(f"s_cmp_eq_u32 s{sWV}, 4\ns_cbranch_scc0 KT_c")
            a(f"s_add_u32 m0, s{sW4K}, {AGB+j*4096}\ns_nop 0\nbuffer_load_dwordx4 v[36:37], {SR4(sX)}, 0 idxen offen{NT} lds\nv_add_u32 v36, 4096, v36")
        a("KT_c:")
    def warm():
        a(f"""
v_and_b32 v1, 28, v{VL}
v_and_b32 v2, 3, v{VL}
v_lshlrev_b32 v2, 1, v2
v_lshl_or_b32 v1, v1, 2, v2
s_lshr_b32 s{t0}, s{sW4}, 1
s_lshl_b32 s{t0}, s{t0}, 7
s_and_b32 s{t1}, s{sW4}, 1
s_lshl_b32 s{t1}, s{t1}, 3
s_add_u32 s{t0}, s{t0}, s{t1}
s_add_u32 s{t0}, s{t0}, 65536
""")
        for k in range(4): a(f"buffer_load_ushort v{124+k}, v1, {SR4(sA)}, s{t0} offen offset:{k*256}")
    def zer():
        a(f"v_cmp_le_u32 vcc, 32, v108\ns_mov_b64 exec, vcc\nds_write_b128 v110, v[32:35]\ns_mov_b64 exec, -1")
        for j in range(1,4): a(f"ds_write_b128 v110, v[32:35] offset:{j*4096}")
        a(f"""
s_cmp_eq_u32 s{sWV}, 4
s_cbranch_scc0 KT_b
ds_write_b128 v110, v[32:35] offset:16384
KT_b:
""")
    srd(a,sA,12,260*256); warm(); vyc()
    if XORD==1: xld()
    if not ZL: zer()
    a(f"""
s_lshl_b32 s{t0}, s{sW4}, 2
v_lshrrev_b32 v2, 4, v{VL}
v_or_b32 v1, s{t0}, v2                  ; 4u+g
v_xor_b32 v3, v1, v{WT}
v_lshlrev_b32 v3, 4, v3
v_lshl_add_u32 v116, v{WT}, 8, v3
v_add_u32 v116, {PSC}, v116
v_add_u32 v117, {PSC}, v110
v_lshl_add_u32 v118, v1, 16, v3
""")
    if XORD==2:
        gwait("KG_x",mS,4,VZ,1); xld()
    if WG_: sdma(sA,0,0,VY,range(WG_-1)); gwait("KG_tw",mPS,4,VZ,1)
    sdma(sA,0,0,VY,range(max(W1E,WG_-1),8))
    sdma(sA,32768,-32768,VY,range(W2N))
    arrive(mW,1)
    if ZL: zer()
    pt('w1i')
    def w3m():
        w=[124,125,126,127]; u=QA
        for k in range(4): a(f"v_lshlrev_b32 v{w[k]}, 16, v{w[k]}\nv_mul_f32 v{w[k]}, s{sL2E}, v{w[k]}")
        a(f"""
v_cvt_pk_bf16_f32 v{u}, v124, v125
v_cvt_pk_bf16_f32 v{u+1}, v126, v127
v_lshlrev_b32 v{u+2}, 16, v{u}
v_and_b32 v{u+3}, 0xffff0000, v{u}
v_lshlrev_b32 v{u+4}, 16, v{u+1}
v_and_b32 v{u+5}, 0xffff0000, v{u+1}
v_add_f32 v{u+6}, abs(v124), abs(v125)
v_sub_f32 v{u+2}, v124, v{u+2}
v_sub_f32 v{u+3}, v125, v{u+3}
v_sub_f32 v{u+4}, v126, v{u+4}
v_sub_f32 v{u+5}, v127, v{u+5}
v_add_f32 v{u+7}, abs(v126), abs(v127)
s_mov_b32 exec_lo, 0
v_cvt_pk_bf16_f32 v{u}, v{u+2}, v{u+3}
v_cvt_pk_bf16_f32 v{u+1}, v{u+4}, v{u+5}
s_mov_b32 exec_lo, -1
v_add_f32 v{u+6}, v{u+6}, v{u+7}
v_lshlrev_b32 v1, 3, v108
v_and_b32 v{u+6}, 0x7fffffff, v{u+6}
ds_write_b64 v1, {P2(u)} offset:{W3L}
""")
        dpp_scan(a,"v_max_u32",[u+6])
        a(f"""
s_mov_b32 exec_lo, 0
s_brev_b32 exec_hi, 1
ds_max_u32 v{VZ}, v{u+6} offset:{mC3}
s_mov_b64 exec, -1
""")
    e2=W2N
    a(f"v_mov_b32 v1, {hex(ONE2)}\nds_write2_b32 v{VZ}, v1, v1 offset0:{OH//4} offset1:{OH//4+3}")
    gsync('bX',"KG_y1",mGX,4,VZ,2,f"s_waitcnt vmcnt({8+e2-W1E})")
    if GP_: a(f"s_setprio {GP_}")
    xfrags([0])
    a(f"s_waitcnt vmcnt({e2})")
    pt('xl')
    trfrag(WF,TP,32768,2048,256)
    a("s_waitcnt lgkmcnt(7)")
    trfrag(WF+16,TP,32768+8,2048,256)
    def pm(T,i):
        for s in range(4): a(mfma16(GA+8*T+4*i,WF+16*i+4*s,XF+16*T+4*s,None if s==0 else GA+8*T+4*i))
    def pcv(T):
        c=GA+8*T
        L=[f"v_mul_f32 v{c+j}, s{sL2E}, v{c+j}" for j in range(8)]
        L+=[f"v_cvt_pk_bf16_f32 v{c+j}, v{c+2*j}, v{c+2*j+1}" for j in range(4)]
        L+=[f"ds_write_b128 v116, {P4(c)} offset:{T*4096}"]
        return L
    def pmi(T,fillers):
        for i in range(2):
            for s in range(4):
                a(mfma16(GA+8*T+4*i,WF+16*i+4*s,XF+16*T+4*s,None if s==0 else GA+8*T+4*i))
                for _ in range(2):
                    if fillers: a(fillers.pop(0))
    a("s_waitcnt lgkmcnt(8)"); xfrags([1]); pm(0,0)
    a("s_waitcnt lgkmcnt(4)"); xfrags([2,3]); pm(0,1)
    a("s_waitcnt lgkmcnt(8)"); pm(1,0); pm(1,1)
    a("s_waitcnt lgkmcnt(0)"); pmi(2,pcv(0)); pmi(3,pcv(1))
    a(f"s_lshl_b32 s{t2}, s{sNB}, 8\ns_nop 2")
    for T in (2,3):
        for x in pcv(T): a(x)
    gsync('pg',"KG_y2",mGP,4,VZ,2)
    for T in range(4): a(f"ds_read_b128 {P4(PO+4*T)}, v117 offset:{T*4096}")
    a(f"""
KG_n:
ds_read_b32 v1, v{VZ} offset:{mNO}
s_waitcnt vmcnt(0) lgkmcnt(0)
v_readfirstlane_b32 s{sNON}, v1
s_cmp_eq_u32 s{sNON}, 0
s_cbranch_scc1 KG_n
""")
    slot()
    a(f"s_add_u32 s{t2}, s{t2}, s{sPO}")
    for T in range(3):
        a(f"s_add_u32 s{t1}, s{t2}, {F_P+T*16*65536}")
        a(f"buffer_store_dwordx4 {P4(PO+4*T)}, v118, {SR4(sR)}, s{t1} offen{SSC}")
    a(f"""
s_cmp_eq_u32 s{sWV}, 4
s_cbranch_scc0 KG_p
s_add_u32 s{t1}, s{t2}, {F_P+3*16*65536}
s_waitcnt lgkmcnt(0)
s_mov_b64 exec, 0xffff
buffer_store_dwordx4 {P4(PO+12)}, v118, {SR4(sR)}, s{t1} offen{SSC}
s_mov_b64 exec, -1
KG_p:
""")
    pt('pst')
    if RWI==1: arrive(mPS,1)
    if GP_: a("s_setprio 0")
    if W2N<8: sdma(sA,32768,-32768,VY,range(W2N,8))
    srd(a,sA,14,256*256)
    w3m()
    for T in range(4):
        c=GA+8*T
        if T==3: a("s_mov_b32 exec_lo, 0x10001\ns_mov_b32 exec_hi, 0x10001")
        if T==0: a(f"v_pk_maximum3_f16 v114, v{c}, v{c+1}, v{c+2}\nv_pk_minimum3_f16 v115, v{c}, v{c+1}, v{c+2}\nv_pk_maximum3_f16 v114, v114, v{c+3}, v{c+3}\nv_pk_minimum3_f16 v115, v115, v{c+3}, v{c+3}")
        else: a(f"v_pk_maximum3_f16 v114, v114, v{c}, v{c+1}\nv_pk_minimum3_f16 v115, v115, v{c}, v{c+1}\nv_pk_maximum3_f16 v114, v114, v{c+2}, v{c+3}\nv_pk_minimum3_f16 v115, v115, v{c+2}, v{c+3}")
    a("s_mov_b64 exec, -1")
    absmax_fin(a,114,115,2)
    a(f"""
v_cmp_lt_u32 vcc, 0x40e80000, v114
s_cmp_lg_u64 vcc, 0
s_cselect_b32 s{sFLAG}, 0x101, 1
""")
    def pflag(n):
        a(f"""
s_lshl_b32 s{t2}, s2, {FS}
s_add_u32 s{t2}, s{t2}, {F_FLG}
s_add_u32 s{t2}, s{t2}, s{sPO}
v_mov_b32 v1, s{sFLAG}
s_waitcnt vmcnt({n})
s_mov_b64 exec, 1
ds_add_rtn_u32 v1, v{VZ}, v1 offset:{mPD}
s_waitcnt lgkmcnt(0)
v_readfirstlane_b32 s{t1}, v1
s_add_u32 s{t1}, s{t1}, s{sFLAG}
s_and_b32 s{t0}, s{t1}, 255
s_cmp_eq_u32 s{t0}, 4
s_cbranch_scc0 KG_f
KG_e:
ds_read_b64 v[2:3], v{VZ} offset:{mE}
ds_read_b32 v1, v{VZ} offset:{mC3}
s_waitcnt lgkmcnt(0)
v_cmp_gt_u32 vcc, 4, v2
v_mul_f32 v1, v1, v3
s_cbranch_vccnz KG_e
v_cmp_nge_f32 vcc, 0x41680000, v1       ; !(14.5 >= e*c3)
s_lshl_b32 s{t0}, vcc_lo, 8
s_or_b32 s{t1}, s{t1}, s{t0}
s_cmp_gt_u32 s{t1}, 255
s_cselect_b32 s{t0}, 2, 0
s_xor_b32 s{t0}, s{sNON}, s{t0}
s_mov_b64 exec, {(1<<FR)-1}
v_mov_b32 v1, s{t0}
v_lshlrev_b32 v2, {8+FS}, v{VL}
buffer_store_dword v1, v2, {SR4(sR)}, s{t2} offen{SSC}
s_waitcnt vmcnt(1)
s_branch KG_f2
KG_f:
s_waitcnt vmcnt(0)
KG_f2:
s_mov_b64 exec, -1
""")
        pt('pfl')
    def mid():
        sdma(sA,0)
        if RWI==2: arrive(mPS,1)
        pflag(8); arrive(mPI,1)
    if W2N<8:
        if WU1L:
            epi_consts(); pflag(8-W2N)
            if GQP: a(f"s_setprio {GQP}")
            qfull("KGq",lambda: sdma(sA,0))
            if PFI==2: sdma(sA,0)
            if GQP: a("s_setprio 0")
            a("s_waitcnt vmcnt(0)"); arrive(mPI,1)
        else:
            sdma(sA,0); epi_consts(); pflag(16-W2N); arrive(mPI,1); qfull("KGq",lambda: 0)
    elif WU1L:
        if PFI==2: pflag(0)
        qfull("KGq",lambda: pflag(0)); sdma(sA,0); epi_consts(); a("s_waitcnt vmcnt(0)"); arrive(mPI,1)
    elif SWU:
        if PFI==2: pflag(0)
        qfull("KGq",lambda: pflag(0)); epi_consts(); gwait("KG_pi",mPI,4,VZ,1)
    else: qfull("KGq",mid); epi_consts()
    gwait("KG_w3",mPD,4,VZ,1)
    w3rd(); trw()
    if not GU: a("s_waitcnt lgkmcnt(0)"); ugemm(1)
    if FLP==1: gwait("KG_b2",mH,16,VZ,1)
    a(f"""
s_and_b32 s{sLO}, s2, {FR-1}
s_lshl_b32 s{sLO}, s{sLO}, {8+FS}
s_add_u32 s{sLO}, s{sLO}, {F_FLG}
s_add_u32 s{sLO}, s{sLO}, s{sPO}
v_lshlrev_b32 v110, {FS}, v108
buffer_load_dword v116, v110, {SR4(sR)}, s{sLO} offen{SC}
""")
    if PFP==2: pfp()
    if PFT:
        a(f"""
s_mul_i32 s{t1}, s{sW4}, {PFK*4}
v_mov_b32 v1, s{t1}
s_lshl_b32 s{t1}, s{t1}, 6
v_lshl_add_u32 v117, v{VL}, 2, s{t1}
ds_read_b32 v1, v1
ds_read_u16 v2, v117 offset:{WB}
v_mov_b32 v3, 0
s_waitcnt lgkmcnt(0)
v_cmp_lt_u32 vcc, v117, v1
s_or_b64 exec, vcc, 1
""")
        for k in range(PFT): a(f"buffer_load_dword v{QA+15}, v[2:3], {SR4(sP)}, 0 idxen offen offset:{3072+128*k}{SC}")
        a("s_mov_b64 exec, -1")
    a(f"""
s_mov_b32 s{sWU}, -1
s_or_b32 s{t1}, s{sNON}, 2
s_waitcnt vmcnt({(1 if PFP==2 else 0)+PFT})
KS_m:
v_or_b32 v2, 2, v116
v_cmp_ne_u32 vcc, s{t1}, v2
s_cbranch_vccz KS_n
s_sub_u32 s{sBUD}, s{sBUD}, 1
s_cbranch_scc1 KS_n
s_sleep {FSL}
s_mov_b64 exec, vcc
buffer_load_dword v116, v110, {SR4(sR)}, s{sLO} offen{SC}
s_mov_b64 exec, -1
s_waitcnt vmcnt(0)
s_branch KS_m
KS_n:
v_cmp_ne_u32 vcc, s{sNON}, v116
s_cbranch_vccz KS_o
ds_write_b32 v{VZ}, v{FA} offset:{mSLOW}
KS_o:
""")
    pt('flg')
    if PRIO: a("s_setprio 3")
    bar('b3')
    a(f"ds_read_b32 v1, v{VZ} offset:{mNT}\ns_waitcnt lgkmcnt(0)\nv_readfirstlane_b32 s{sNT}, v1")
    ranges()
    a("KF_J:")
    def rd_ga(off): a(f"ds_read_u16 v{GA0}, v{SB} offset:{GL+off}")
    def rd_gg(off): a(f"ds_read_u16 v{YA}, v{RB} offset:{GL+off}")
    ya=f"v_lshl_add_u32 v{EA}, v{YA}, 1, v{EC}\nv_add_u32 v{YA}, v{YA}, v{M4}"
    ry=f"ds_read_u16 v{VY}, v{YA} offset:{WB+2}"
    def rd_y(): a(ya); a(ry)
    def idx1(i): return f"ds_read_u16 v{IDX+2*i}, v{GA0} offset:{WB+4*i}"
    def rd_idx():
        for i in range(4): a(idx1(i))
    def dmai(i): return f"buffer_load_dwordx4 {P2(IDX+2*(i&3))}, {SR4(sP)}, {'0' if i<4 else 's'+str(s128)} idxen offen offset:{1024*(i&3)}{GSC} lds"
    def dma():
        for i in range(8):
            if i==0: a(f"s_mov_b32 m0, s{sBUF}\ns_nop 0")
            if i==4: a(f"s_add_u32 m0, s{sBUF}, 4096\ns_nop 0")
            a(dmai(i))
    def dma_h1(mid):
        a(f"s_add_u32 m0, s{sBUF}, 4096"); a(mid)
        for i in range(4,8): a(dmai(i))
        a(f"s_mov_b32 m0, s{sBUF}")
        rd_idx()
    def dma_idx():
        for i in range(4): a(dmai(i))
        dma_h1(ry)
    rd_b=f"ds_read_b128 {P4(B3+2)}, v{QAD}\nds_read_b128 {P4(B3+10)}, v{QAD} offset:512"
    rd_a3=f"ds_read_b64 {P2(A6)}, v{EA}\nds_read_b64 {P2(A6+2)}, v{VY} offset:{OH}\nds_read_b64 {P2(A6+4)}, v{EA}"
    def rd_a(t): return f"ds_read_b128 {P4(A+4*t)}, v{AR} offset:{4096*(t>>2)+(16*(t&1)+2*((t>>1)&1))*128}"
    def m4(z,q,j,c=False): return mfma4(z+4*j,A+16*(q>>1)+4*j+2*(q&1),z+4*j if c else None)
    rd_s=f"ds_read_b64 {P2(SS)}, v{SA2}\nds_read_b64 {P2(SS+2)}, v{SA2+1}"
    def AQ(q): return A6+2*(q&1)
    win=f"v_add3_u32 v{VY}, v{VY}, v{OH2}, s{sW8}\nv_lshl_add_u32 v{QAD}, s{sQ}, 6, v{QC}"
    rd_ga(0); rd_gg(0)
    a(f"""
ds_read_u16 v{WT}, v1 offset:{GL}
ds_read_b32 v{GP}, v{VZ} offset:{mSLOW}
s_waitcnt lgkmcnt(3)
""")
    rd_idx()
    a("s_waitcnt lgkmcnt(0)")
    dma()
    pt('d0')
    a(f"v_readlane_b32 s{sNF}, v{WT}, s{sCNT}\nv_readfirstlane_b32 s{t3}, v{GP}")
    rd_y(); rd_ga(16)
    if US:
        a(f"s_cmp_ge_u32 s{sWV}, 4\ns_cbranch_scc1 KF_u"); ugemm(0)
        if GU: a("s_branch KF_u2\nKF_u:"); ugemm(1); a("KF_u2:")
        else: a("KF_u:")
    a("s_waitcnt lgkmcnt(0)")
    rd_idx()
    a(f"""
s_cmp_lg_u32 s{t3}, 0
s_cbranch_scc1 KF_SLOW
s_lshr_b32 s{sNF}, s{sNF}, 8
v_subrev_u32 v2, s{sNF}, v{VL}
v_and_b32 v2, 15, v2
v_add_u32 v{DR}, s{sNF}, v2
v_lshlrev_b32 v2, 2, v{DR}
ds_read_b32 v{GP}, v2 offset:{BT}
s_and_b32 s{sQ}, s{sNF}, -2
s_lshl_b32 s{sQ}, s{sQ}, 3
s_sub_u32 s{sW8}, 0, s{sQ}
{win}
{rd_b}
{rd_a3}
""")
    rd_gg(16)
    a(f"""
v_lshrrev_b32 v{WT}, 9, v{WT}
v_lshlrev_b32 v{WT}, 4, v{WT}           ; 8*(w&~1)
v_mov_b32 v{SS}, 0
v_mov_b32 v{SS+1}, 0
v_mov_b32 v{SS+2}, 0
v_mov_b32 v{SS+3}, 0
v_mad_u32_u24 v{SA2}, v{SI2}, s{sT0}, v{SA2}
v_mad_u32_u24 v{SA2+1}, v{SI2+1}, s{sT0}, v{SA2+1}
s_add_u32 s{t1}, s{sT0}, s{sCNT}
s_lshl_b32 s{t1}, s{t1}, 7
s_add_u32 s{t2}, s{sWV}, 48
v_mov_b32 v1, s{t2}
{mfma32(ACC+16,SS,SS,None)}
s_waitcnt lgkmcnt(0)
""")
    rd_y(); rd_ga(32)
    a(f"""
v_cmp_gt_u32 vcc, s{t0}, v{GP}
v_cmp_gt_u32 {S2(t2)}, s{t1}, v{GP}
v_cmp_gt_u32 {S2(t0)}, s{sNN}, v{DR}
v_cndmask_b32 v{DR}, v{DR}, v1, vcc
s_cmp_lg_u64 vcc, 0
s_cselect_b32 s{sHEAD}, 1, 0
s_and_b64 vcc, {S2(t2)}, {S2(t0)}
v_lshlrev_b32 v1, 2, v{VL}
v_cndmask_b32 v{DR}, 56, v{DR}, vcc
v_lshrrev_b32 v2, 1, v{VL}
v_mul_u32_u24 v{DR}, {AS}, v{DR}
v_and_b32 v2, 24, v2
v_add_u32 v{DR}, v{DR}, v2
s_mul_i32 s{t0}, s{sNF}, {AS}
v_add_u32 v{eM0}, s{t0}, v1
s_sub_u32 s{sCNT}, s{sCNT}, 1
s_mov_b32 m0, s{sBUF}
""")
    pt('pre')
    a("s_waitcnt vmcnt(4)")
    pt('g0')
    for t in range(4): a(rd_a(t))
    a("s_waitcnt lgkmcnt(0)")
    for j in range(4): a(m4(Z[0],0,j))
    a("s_nop 3")
    a(mfma32(Z[0],AQ(0),B3,Z[0]))
    a("s_nop 9")
    pt('pro')
    def finals(qprev):
        for u in range(2): a(f"v_pk_mul_f32 {P2(NN+2*u)}, {P2(NN+2*u)}, {P2(DD+2*u)}")
        for u in range(2): a(f"v_cvt_pk_bf16_f32 v{GP+2*(qprev&1)+u}, v{NN+2*u}, v{NN+2*u+1}")
    def ex(zc,r): return f"v_exp_f32 v{EE+r}, v{zc+r}"
    def body(first):
        for q in range(4):
            zc=Z[q&1]; zn=Z[(q+1)&1]; qn=(q+1)&3
            pend=[0,1,2,3,8,9,10,11,4,5,12,13,6,7,14,15]
            f0=first and q==0
            if q==0: a(f"v_readlane_b32 s{sQ}, v{WT}, s{sCNT}")
            if q==3 or (first and q==1): a(f"s_waitcnt lgkmcnt(0)")
            agg=(q&1) and not (first and q==1)
            p=1 if q==1 else 0
            if MO:
                a(mfma32(zn,AQ(qn),B3+4*qn,None))
                for j in range(4): a(f"v_rcp_f32 v{DD+j}, v{DD+j}" if not f0 else ex(zc,pend.pop(0)))
                if agg: a(mfma32(ACC+16*p,GP,SS,None if first else ACC+16*p))
                for r in range(5 if agg else 6): a(ex(zc,pend.pop(0)))
                for j in range(4):
                    a(m4(zn,qn,j,True))
                    if j<3: a(ex(zc,pend.pop(0)))
            else:
                for j in range(4):
                    a(m4(zn,qn,j))
                    a(f"v_rcp_f32 v{DD+j}, v{DD+j}" if not f0 else ex(zc,pend.pop(0)))
                if agg: a(mfma32(ACC+16*p,GP,SS,None if first else ACC+16*p))
                for r in range(4 if agg else 3): a(ex(zc,pend.pop(0)))
                a(mfma32(zn,AQ(qn),B3+4*qn,zn))
            def bx():
                a(f"s_sub_u32 s{sW8}, 0, s{sQ}\ns_waitcnt vmcnt(0) lgkmcnt(0)\n{win}")
                rd_gg(32); rd_ga(48)
                a(rd_b); a(rd_a3); a(rd_s)
                for t in range(8): a(rd_a(t))
            if q==2 and XP==0: a(ex(zc,pend.pop(0))); bx()
            for r in range((4 if not (q==2 and XP==0) else 3)-(3 if MO else 0)): a(ex(zc,pend.pop(0)))
            if q==2 and XP==1: bx()
            if f0:
                for i in range(4): a(dmai(i))
            if first and q==1: dma_h1("s_nop 0")
            if q==3:
                a(ya)
                if first: dma_idx()
                else:
                    a(f"s_cmp_gt_u32 s{sCNT}, 1\ns_cbranch_scc0 KF_lt")
                    dma_idx()
                    a("KF_lb:")
            if not f0: finals((q-1)&3)
            seq=[]
            for u in range(2): seq.append(f"v_pk_add_f32 {P2(DD+2*u)}, {P2(EE+8*u)}, 1.0 op_sel_hi:[1,0]")
            for m in range(1,4):
                for u in range(2):
                    src=(zc+8*u) if m==1 else NN+2*u
                    seq.append(f"v_pk_fma_f32 {P2(NN+2*u)}, {P2(src)}, {P2(EE+8*u+2*m)}, {P2(src)}")
                for u in range(2): seq.append(f"v_pk_fma_f32 {P2(NN+2*u)}, {P2(zc+8*u+2*m)}, {P2(DD+2*u)}, {P2(NN+2*u)}")
                for u in range(2): seq.append(f"v_pk_fma_f32 {P2(DD+2*u)}, {P2(DD+2*u)}, {P2(EE+8*u+2*m)}, {P2(DD+2*u)}")
            slots={7:[0,2,4,6,8,10,12],6:[1,3,6,8,10,12],2:[4,10],9:[0,1,2,3,4,6,8,10,12],8:[0,1,2,3,5,7,9,11],5:[1,4,7,10,12]}[len(pend)]
            for k,x in enumerate(seq):
                if f0 and k==H1P:
                    a("s_waitcnt vmcnt(4)")
                    for t in range(4,8): a(rd_a(t))
                a(x)
                if k in slots: a(ex(zc,pend.pop(0)))
            if q==2: a(f"v_pk_add_f32 {P2(RB)}, {P2(RB)}, {S2(sINC)}\nv_pk_add_f32 {P2(SA2)}, {P2(SA2)}, {P2(SI2)}")
    if PROF and 'dyn' in PTS: stamp(a,8); stamp(a,9,True)
    if PROF and 'clk' in PTS: stamp(a,6,True)
    n0=len(a.l)
    body(True)
    a("s_branch KF_LE\n.p2align 6\nKF_LOOP:")
    body(False)
    def keep(l):
        t=l.strip()
        if X&1 and t.startswith('buffer_load'): return False
        if X&2 and t.startswith('ds_read_b128 v[') and int(t.split('[')[1].split(':')[0])>=28: return False
        if X&8 and t.startswith('v_mfma'): return False
        if X&16 and t.startswith('v_pk_fma'): return False
        if X&32 and t.startswith('v_exp'): return False
        if Y&1 and t.startswith('v_mfma_f32_4x4'): return False
        if Y&2 and t.startswith('v_mfma_f32_32x32') and int(t.split('[')[1].split(':')[0])<ACC: return False
        if Y&4 and t.startswith('v_mfma_f32_32x32') and int(t.split('[')[1].split(':')[0])>=ACC: return False
        if Y&8 and t.startswith('v_rcp'): return False
        if Y&16 and t.startswith(('v_cvt_pk','v_pk_mul')): return False
        if Y&32 and t.startswith(('ds_read_b64','ds_read_b128 v[14','ds_read_b128 v[22')): return False
        return True
    a.l[n0:]=[l for l in a.l[n0:] if keep(l)]
    import re
    if UNP:
        L=[]; cnt=0
        for l in a.l[n0:]:
            m=re.match(r"\s*v_pk_fma_f32 v\[(\d+):\d+\], v\[(\d+):\d+\], v\[(\d+):\d+\], v\[(\d+):\d+\]",l)
            if m:
                cnt+=1
                d,x,y,z=map(int,m.groups())
                if UNP==1 or (UNP==2 and cnt%2==0) or (UNP==3 and d>=DD):
                    for k in range(2):
                        L.append(f"    v_fmac_f32 v{d+k}, v{x+k}, v{y+k}" if d==z else f"    v_fma_f32 v{d+k}, v{x+k}, v{y+k}, v{z+k}")
                    continue
            L.append(l)
        a.l[n0:]=L
    if X&(128|256|512|1024):
        L=[]
        for l in a.l[n0:]:
            m=re.match(r"\s*v_mfma_f32_32x32x16_bf16 v\[(\d+):\d+\], v\[(\d+):\d+\], v\[(\d+):\d+\], (.*)",l)
            if m and int(m.group(1))<ACC:
                d,x,y=int(m.group(1)),int(m.group(2)),int(m.group(3))
                if X&128:
                    if y==ID0: L+=["    "+mfma16(d+4,x,ID0,None),"    "+mfma16(d+8,x,ID1,None)]
                    elif y==ID1: L.append("    "+mfma16(d+12,x,ID0,None))
                    else: L.append("    "+mfma16(d,x,y,None))
                if X&1024:
                    if y in (ID0,ID1):
                        o=0 if y==ID0 else 8
                        for k in range(2): L.append(f"    v_mfma_f32_4x4x4_16b_bf16 v[{d+o+4*k}:{d+o+4*k+3}], v[{x+2*k}:{x+2*k+1}], v[{ID0}:{ID0+1}], v[{d+o+4*k}:{d+o+4*k+3}]")
                    else: L.append(l)
                if X&256:
                    if y!=ID1: L.append(l)
                if X&512:
                    if y==ID0: L.append(f"    v_mfma_f32_32x32x64_f8f6f4 v[{d}:{d+15}], v[{x}:{x+7}], v[{ID0}:{ID0+7}], v[{d}:{d+15}]")
                    elif y!=ID1: L.append(l)
            else: L.append(l)
        a.l[n0:]=L
    a("KF_LE:")
    if PRIO: a(f"s_bitcmp1_b32 {(1<<PT[0])|(1<<PT[1])|(1<<PT[2])}, s{sCNT}\ns_cbranch_scc1 KF_pr\nKF_pb:")
    a(f"""
s_sub_u32 s{sCNT}, s{sCNT}, 1
s_cbranch_scc0 KF_LOOP
""")
    def loop_tails():
        a(f"KF_lt:\ns_cmp_eq_u32 s{sCNT}, s{sWU}\ns_cbranch_scc0 KF_lb")
        sdma(sA,32768,0,WV)
        a(f"""
s_branch KF_lb
KF_pr:
""")
        if PROF and 'dyn' in PTS:
            a("s_mov_b32 s90, s92\ns_mov_b32 s91, s93\ns_mov_b32 s92, s94\ns_mov_b32 s93, s95\ns_mov_b32 s94, s96\ns_mov_b32 s95, s97")
            stamp(a,8); stamp(a,9,True)
        a(f"""
s_setprio 2
s_cmp_eq_u32 s{sCNT}, {PT[0]}
s_cbranch_scc1 KF_pb
s_setprio 1
s_cmp_eq_u32 s{sCNT}, {PT[1]}
s_cbranch_scc1 KF_pb
s_cmp_ge_u32 s{sWV}, {PL}
s_cbranch_scc1 KF_pb
s_setprio 0
s_branch KF_pb
""")
    a(f"""
s_lshl_b32 s{t0}, s{sW4}, 2
v_mov_b32 v1, s{t0}
s_cmp_ge_u32 s{sWV}, 4
s_cbranch_scc1 KF_w0
ds_write_b32 v1, v{TP} offset:{mWU}
s_branch KF_w1
KF_w0:
ds_read_b32 v2, v1 offset:{mWU}
s_waitcnt lgkmcnt(0)
v_cmp_eq_u32 vcc, 0, v2
s_cbranch_vccnz KF_w0
KF_w1:
""")
    def trw2(): trfrag(A,TP,0,2048,256); trfrag(A+16,TP,8,2048,256)
    trw2()
    for j in range(4): a(f"v_rcp_f32 v{DD+j}, v{DD+j}")
    a("s_nop 0")
    finals(3)
    a("s_nop 1")
    a(mfma32(ACC+16,GP,SS,ACC+16))
    pt('loop')
    if PROF and 'clk' in PTS: stamp(a,7,True)
    def epst():
        a(f"""
s_or_b32 s{t1}, s2, s{sWV}
s_cbranch_scc1 KF_e2
v_mov_b32 v2, s{sNON}
s_mov_b64 exec, 1
buffer_store_dword v2, v{VZ}, {SR4(sR)}, 0 offen{ESC}
s_mov_b64 exec, -1
KF_e2:
""")
    for p in range(2):
        for j in range(4):
            c=ACC+16*p+4*j
            if MR: a(f"v_pk_mul_f32 {P2(c)}, {P2(c)}, {S2(sLN)}\nv_pk_mul_f32 {P2(c+2)}, {P2(c+2)}, {S2(sLN)}")
            a(f"v_cvt_pk_bf16_f32 v{c}, v{c}, v{c+1}\nv_cvt_pk_bf16_f32 v{c+1}, v{c+2}, v{c+3}")
        for j in range(4): a(f"ds_write_b64 v{DR}, {P2(ACC+16*p+4*j)} offset:{AGB+128*p+32*j}")
    a(f"""
s_cmp_eq_u32 s{sHEAD}, 0
""")
    pt('dmp')
    bar('be',"s_waitcnt vmcnt(0) lgkmcnt(0)")
    a(f"""
s_cbranch_scc1 KF_FIN
ds_read_b32 v4, v{eM0} offset:{AGB}
ds_read_b32 v5, v{eM1} offset:{AGB+48*AS}
""")
    a(f"""
s_waitcnt lgkmcnt(0)
v_lshlrev_b32 v6, 16, v4
v_and_b32 v7, 0xffff0000, v4
v_lshlrev_b32 v8, 16, v5
v_and_b32 v9, 0xffff0000, v5
v_pk_add_f32 v[6:7], v[6:7], v[8:9]
v_cvt_pk_bf16_f32 v6, v6, v7
ds_write_b32 v{eM0}, v6 offset:{AGB}
KF_FIN:
""")
    a(f"s_cmp_ge_u32 s{sWV}, 4")
    if EP_==0: epst()
    bar('mrg')
    def EXP(rs):
        if not MR: return [f"v_exp_f32 v{EE+i}, v{UA+i}" for i in rs]
        return [f"v_mul_f32 v{EE+i}, s{sL2E}, v{UA+i}" for i in rs]+[f"v_exp_f32 v{EE+i}, v{EE+i}" for i in rs]
    def RCP(rs): return [f"v_rcp_f32 v{EE+i}, v{EE+i}" for i in rs]
    def FMA(rs): return [f"v_add_f32 v{EE+i}, 1.0, v{EE+i}" if MR else f"v_fma_f32 v{EE+i}, v{EE+i}, s{sL2E}, s{sL2E}" for i in rs]
    def FIN(tau):
        e=EE+8*tau; c=UA+8*tau
        return [f"v_pk_mul_f32 {P2(e+2*j)}, {P2(e+2*j)}, {P2(c+2*j)}" for j in range(4)]+[f"v_cvt_pk_bf16_f32 v{e+j}, v{e+2*j}, v{e+2*j+1}" for j in range(4)]+[f"ds_write_b128 v{eOW}, {P4(e)} offset:{tau*1024}",f"ds_read_b128 {P4(e+4)}, v{eRD} offset:{tau*1024}"]
    def PFM(rs): return [f"v_pk_add_f32 {P2(EE+i)}, {P2(EE+i)}, 1.0 op_sel_hi:[1,0]" if MR else f"v_pk_fma_f32 {P2(EE+i)}, {P2(EE+i)}, {S2(sL2E)}, {S2(sL2E)}" for i in rs]
    XE=Z[0]
    for tau in range(2):
        for s_ in range(4): a(f"ds_read_b128 {P4(XE+16*tau+4*s_)}, v{eFA} offset:{AGB+tau*16*AS+64*s_}")
    for k,(x,y) in enumerate(zip(um(0,0,0,XE,True,A),um(0,0,1,XE,True,A))): a(f"s_waitcnt lgkmcnt({7-k})"); a(x); a(y)
    a("s_waitcnt lgkmcnt(0)"); pt('e1'); a("s_cbranch_scc1 KF_eg")
    for r in range(2):
        if r==1: a("KF_eg:")
        for x,y in zip(um(r,1,0,XE+16,True,A),um(r,1,1,XE+16,True,A)): a(x); a(y)
        pt('e2')
        if r==0:
            for x in EXP(range(8))+FMA(range(8))+RCP(range(8))+EXP(range(8,16))+FIN(0)+PFM(range(8,16,2))+RCP(range(8,16))+["s_waitcnt lgkmcnt(0)",f"buffer_store_dwordx4 {P4(EE+4)}, v{eST}, {SR4(sX)}, s{sE0} offen{OSC}"]+FIN(1): a(x)
            a("s_branch KF_ej")
        else:
            for x in EXP(list(range(8))+[8,12])+PFM((0,2,4,6,8,12))+RCP(list(range(8))+[8,12])+FIN(0): a(x)
            a(f"""
v_mul_f32 v{EE+8}, v{EE+8}, v{UA+8}
v_mul_f32 v{EE+12}, v{EE+12}, v{UA+12}
s_mov_b64 exec, 0xffff
v_cvt_pk_bf16_f32 v{EE+8}, v{EE+8}, v{EE+12}
ds_write_b16 v{eN48}, v{EE+8} offset:1024
ds_write_b16_d16_hi v{eN48}, v{EE+8} offset:1032
ds_read_b128 {P4(EE+12)}, v{eRD} offset:1024
s_mov_b64 exec, -1
s_waitcnt lgkmcnt(3)
buffer_store_dwordx4 {P4(EE+4)}, v{eST}, {SR4(sX)}, s{sE0} offen{OSC}
s_mov_b64 exec, 15
""")
    a(f"KF_ej:\ns_waitcnt lgkmcnt(0)\nbuffer_store_dwordx4 {P4(EE+12)}, v{eST}, {SR4(sX)}, s{sE1} offen{OSC}")
    pt('sto')
    a(f"""
""")
    if PROF: a("s_waitcnt vmcnt(0)")
    stamp(a,10); stamp(a,11,True)
    stamp_out(a,1,sWV)
    a("KF_END:\ns_endpgm")
    loop_tails()
    hist_retry(8,"KT_h",True)
    a("KF_CEND:")
    SV=ACC; AGs=SV+8; RS_=SV+16
    a(f"""
KF_SLOW:
s_setprio 0
s_cmp_ge_u32 s{sWV}, 4
s_cselect_b32 s{sTOT}, 0, s{sTOT}
v_mov_b32 v1, s{sTOT}
ds_max_u32 v{VZ}, v1 offset:{mMX}
v_mov_b32 v{SS}, 0
v_mov_b32 v{SS+1}, 0
v_mov_b32 v{SS+2}, 0
v_mov_b32 v{SS+3}, 0
s_mov_b32 s{sLO}, 0
s_mov_b32 s{sLB}, s{sBUF}
s_sub_u32 s{t0}, s{sWV}, s{sT0}
s_lshl_b32 s{t0}, s{t0}, 4
v_add_u32 v{SV+4}, s{t0}, v{RB}
v_add_u32 v{SV+5}, s{t0}, v{SB}
s_lshl_b32 s{t0}, s{sWV}, 4
v_sub_u32 v{SV+6}, s{t0}, v{OHC}
v_and_b32 v{SV+7}, 28, v{VL}
v_and_b32 v1, 3, v{VL}
v_lshlrev_b32 v1, 2, v1
v_lshl_or_b32 v{SV+7}, v{SV+7}, 3, v1
v_lshlrev_b32 v1, 4, v0
""")
    for j in range(3): a(f"ds_write_b128 v1, {P4(SS)} offset:{AGG+j*8192}")
    a(f"""
v_lshlrev_b32 v1, 4, v{VL}
ds_write_b128 v1, {P4(SS)} offset:{AGG+3*8192}
s_waitcnt vmcnt(0) lgkmcnt(0)
s_barrier
ds_read_b32 v1, v{VZ} offset:{mMX}
s_waitcnt lgkmcnt(0)
v_readfirstlane_b32 s{sRND}, v1
KF_SR:
s_cmp_lt_u32 s{sLO}, s{sRND}
s_cbranch_scc0 KF_SE
s_barrier
v_lshlrev_b32 v1, 2, v{VL}
v_lshlrev_b32 v2, 8, v{VL}
ds_write_b32 v1, v2
s_waitcnt lgkmcnt(0)
s_barrier
s_cmp_ge_u32 s{sWV}, 4
s_cbranch_scc1 KF_S1
s_movk_i32 s{t3}, 256
""")
    expand("KF_x")
    a(f"s_sub_u32 s{t1}, s{sTOT}, s{sLO}")
    reclist(4)
    recload(4,"KF_rl")
    for i in range(4): a(f"s_mov_b64 {S2(sM+8+2*i)}, {S2(sM+2*i)}")
    hist(4,"KF_h",0,False)
    a("s_waitcnt lgkmcnt(0)")
    for i in range(4):
        a(f"""
v_mov_b32 v{RS_+4*i}, v{RC+4*i}
v_mov_b32 v{RS_+4*i+1}, v{RC+4*i+1}
v_mov_b32 v{RS_+4*i+2}, v{RC+4*i+2}
v_lshlrev_b32 v1, 6, v{RC+4*i+3}
v_sub_u32 v1, v{RK+i}, v1
v_cndmask_b32 v{RS_+4*i+3}, -1, v1, {S2(sM+8+2*i)}
""")
    a(f"""
KF_S1:
s_mov_b32 s{sHEAD}, 0                    ; 256*k
KF_SK:
s_waitcnt lgkmcnt(0)
s_barrier
s_cmp_ge_u32 s{sWV}, 4
s_cbranch_scc1 KF_S2
s_mov_b32 s{t1}, {EB}
""")
    for i in range(4):
        a(f"""
v_subrev_u32 v1, s{sHEAD}, v{RS_+4*i+3}
v_lshrrev_b32 v2, 19, v{RS_+4*i+2}
v_lshl_add_u32 v2, v2, 8, v1
v_lshl_add_u32 v3, v2, 1, s{t1}
v_cmpx_gt_u32 vcc, 0x100, v1
ds_write_b32 v2, v{RS_+4*i+2} offset:{WB}
ds_write_b64 v3, {P2(RS_+4*i)}
s_mov_b64 exec, -1
""")
    a("KF_S2:")
    scan(True)
    a(f"s_cmp_lg_u64 {S2(t2)}, 0\ns_cselect_b32 s{sFLAG}, 1, 0")
    fill("KFs",True,8)
    a(f"""
s_add_u32 s{sNT}, s{t0}, 127
s_lshr_b32 s{sNT}, s{sNT}, 7
s_waitcnt lgkmcnt(0)
s_barrier
v_mov_b32 v{RB}, v{SV+4}
v_mov_b32 v{SB}, v{SV+5}
v_mov_b32 v{SV+12}, v{SV+6}
s_mov_b32 s{sI}, s{sWV}
KF_SL:
s_cmp_lt_u32 s{sI}, s{sNT}
s_cbranch_scc0 KF_SN
""")
    rd_ga(0); rd_gg(0)
    for j in range(4): a(f"ds_read_u16 v{AGs+j}, v{SV+12} offset:{GL+2*j}")
    a("s_waitcnt lgkmcnt(0)")
    rd_y(); rd_idx()
    a(f"s_waitcnt lgkmcnt(0)\nv_cmp_ne_u32 vcc, 0xffff, v{IDX}\ns_cbranch_vccz KF_SM")
    dma()
    for j in range(4): a(f"v_lshrrev_b32 v{AGs+j}, 8, v{AGs+j}")
    a(f"""
v_readfirstlane_b32 s{sQ}, v{AGs}
s_nop 3
s_and_b32 s{sQ}, s{sQ}, -2
s_lshl_b32 s{sQ}, s{sQ}, 3
s_sub_u32 s{sW8}, 0, s{sQ}
{win}
{rd_b}
{rd_a3}
""")
    for j in range(4): a(f"v_lshl_add_u32 v{AGs+j}, v{AGs+j}, 9, v{SV+7}")
    a("s_waitcnt vmcnt(0) lgkmcnt(0)")
    for t in range(8): a(rd_a(t))
    a("s_waitcnt lgkmcnt(0)")
    for q in range(4):
        z=Z[0]
        for j in range(4): a(m4(z,q,j))
        a("s_nop 3"); a(mfma32(z,AQ(q),B3+4*q,z))
        a("s_nop 15")
        for r in range(16): a(f"v_exp_f32 v{EE+r}, v{z+r}")
        for r in range(16): a(f"v_add_f32 v{EE+r}, 1.0, v{EE+r}")
        for r in range(16): a(f"v_rcp_f32 v{EE+r}, v{EE+r}")
        for m in range(4):
            for u in range(2):
                for par in range(2):
                    r=8*u+2*m+par; g=GP+2*u+par
                    a(f"v_mul_f32 v{g}, v{z+r}, v{EE+r}" if m==0 else f"v_fmac_f32 v{g}, v{z+r}, v{EE+r}")
        for j in range(4): a(f"ds_add_f32 v{AGs+j}, v{GP+j} offset:{AGG+256*(q>>1)+16*(q&1)}")
        a("s_waitcnt lgkmcnt(0)")
    a(f"""
KF_SM:
v_add_u32 v{SB}, 128, v{SB}
v_add_u32 v{RB}, 128, v{RB}
v_add_u32 v{SV+12}, 128, v{SV+12}
s_add_u32 s{sI}, s{sI}, 8
s_branch KF_SL
KF_SN:
s_add_u32 s{sHEAD}, s{sHEAD}, 256
s_cmp_lg_u32 s{sFLAG}, 0
s_cbranch_scc1 KF_SK
s_add_u32 s{sLO}, s{sLO}, 256
s_branch KF_SR
KF_SE:
s_cmp_ge_u32 s{sWV}, 4
s_cbranch_scc1 KF_SE2
""")
    sdma(sA,32768,0,WV)
    a(f"""
KF_SE2:
v_lshlrev_b32 v1, 4, v0
v_lshrrev_b32 v2, 5, v0
s_waitcnt vmcnt(0) lgkmcnt(0)
s_barrier
""")
    for j in range(4): a(f"ds_read_b128 {P4(A+4*j)}, v1 offset:{AGG+j*8192}")
    a(f"""
v_mul_u32_u24 v2, {AS}, v2
v_and_b32 v3, 31, v0
v_lshl_add_u32 v4, v3, 3, v2
s_waitcnt lgkmcnt(0)
s_barrier
""")
    for j in range(4):
        if MR: a(f"v_pk_mul_f32 {P2(A+4*j)}, {P2(A+4*j)}, {S2(sLN)}\nv_pk_mul_f32 {P2(A+4*j+2)}, {P2(A+4*j+2)}, {S2(sLN)}")
        a(f"v_cvt_pk_bf16_f32 v{A+4*j}, v{A+4*j}, v{A+4*j+1}\nv_cvt_pk_bf16_f32 v{A+4*j+1}, v{A+4*j+2}, v{A+4*j+3}")
        a(f"ds_write_b64 v4, {P2(A+4*j)} offset:{AGB+j*16*AS}")
    trw2()
    a("s_branch KF_FIN")
    hist_retry(4,"KF_h",False)
    return a.text()

DOC='''; ---------------------------------------------------------------------------------------------
; ---------------------------------------------------------------------------------------------
'''
if __name__=='__main__':
    import sys
    nm='standalone__mpnn_edge_mlp__graph_kernel'
    hdr=open('standalone__mpnn_edge_mlp__graph.s.ref').read().split('; Override')[0]
    out=hdr+(f"; @launch kernel={nm} grid=(256,1,1) block=(512,1,1) lds={KF_LDS}\n" if os.environ.get('LISTF') else f"; @launch grid=(256,1,1) block=(512,1,1) lds={KF_LDS}\n")
    out+=DOC+'.amdgcn_target "amdgcn-amd-amdhsa--gfx950"\n.text\n'
    out+=f".globl {nm}\n.p2align 8\n.type {nm},@function\n"+gen_kf(nm)
    out+='.section .rodata,"a"\n.p2align 6\n'+kd(nm,256)
    open(sys.argv[1],'w').write(out)
```
